```python
import torch

def _softmax(x, axis=-1):
    return torch.softmax(x, dim=axis)

def _gelu(x):
    return torch.nn.functional.gelu(x, approximate='tanh')

def _silu(x):
    return torch.nn.functional.silu(x)

def _sigmoid(x):
    return torch.sigmoid(x)

def _layernorm(x, axis=-1, eps=1e-05):
    m = x.mean(dim=axis, keepdim=True)
    v = x.var(dim=axis, keepdim=True, unbiased=False)
    return (x - m) / torch.sqrt(v + eps)

def _scatter_add(tgt, idx, src, axis=0):
    return tgt.clone().index_add_(axis, idx, src)

def _segment_sum(src, seg, n):
    out = torch.zeros((n,) + src.shape[1:], dtype=src.dtype)
    return out.index_add_(0, seg, src)

def _pad(x, pw):
    flat = tuple((v for pair in reversed(pw) for v in pair))
    return torch.nn.functional.pad(x, flat)
kernel_name = 'adaLN_cond__softmax_full_mha__mixer_gmlp__prompt'

def setup_inputs():

    _w = lambda a: (lambda t: t.to(torch.bfloat16) if t.is_floating_point() else t)(torch.as_tensor(a))

    def _A_setup():
        B, S, D = (1, 2048, 1024)
        return {'x': _w((lambda *s: torch.randn(*s, dtype=torch.bfloat16) * 0.05)(B, S, D)), 'wqkv': _w((lambda *s: torch.randn(*s, dtype=torch.bfloat16) * 0.05)(D, 3 * D)), 'wo': _w((lambda *s: torch.randn(*s, dtype=torch.bfloat16) * 0.05)(D, D))}
    _A_in = _A_setup()

    def _B_setup():
        B, S, D, F = (1, 2048, 1024, 3584)
        Fh = F // 2
        return {'x': _w((lambda *s: torch.randn(*s, dtype=torch.bfloat16) * 0.05)(B, S, D)), 'w_in': _w((lambda *s: torch.randn(*s, dtype=torch.bfloat16) * 0.8)(D, 2 * Fh)), 'w_sp': _w(0.01 * (lambda *s: torch.randn(*s, dtype=torch.bfloat16) * 0.8)(S, S)), 'b_sp': _w(1.0 + 0.01 * (lambda *s: torch.randn(*s, dtype=torch.bfloat16) * 0.05)(S)), 'w_out': _w((lambda *s: torch.randn(*s, dtype=torch.bfloat16) * 0.05)(Fh, D))}
    _B_in = _B_setup()
    return {'A_x': _A_in['x'], 'A_wqkv': _A_in['wqkv'], 'A_wo': _A_in['wo'], 'B_x': _B_in['x'], 'B_w_in': _B_in['w_in'], 'B_w_sp': _B_in['w_sp'], 'B_b_sp': _B_in['b_sp'], 'B_w_out': _B_in['w_out'], 'c': _w((lambda *s: torch.randn(*s, dtype=torch.bfloat16) * 0.2)(1, 1024) * 8.0), 'w_mod': _w((lambda *s: torch.randn(*s, dtype=torch.bfloat16) * 0.2)(1024, 6 * 1024) * 1024 ** (-0.5) * 8.0)}

def reference(A_x, A_wqkv, A_wo, B_x, B_w_in, B_w_sp, B_b_sp, B_w_out, c, w_mod):

    def _A_ref(x, wqkv, wo):
        B, S, D = x.shape
        H = 32
        Dh = D // H
        qkv = (lambda x, *d: x.permute(*d))((x @ wqkv).reshape(B, S, 3, H, Dh), 2, 0, 3, 1, 4)
        q, k, v = (qkv[0], qkv[1], qkv[2])
        scale = Dh ** (-0.5)
        scores = torch.einsum('bhqd,bhkd->bhqk', q, k) * scale
        p = _softmax(scores, axis=-1)
        o = torch.einsum('bhqk,bhkd->bhqd', p, v)
        return (lambda x, *d: x.permute(*d))(o, 0, 2, 1, 3).reshape(B, S, D) @ wo

    def _B_ref(x, w_in, w_sp, b_sp, w_out):
        B, S, D = x.shape
        F = w_in.shape[-1]
        Fh = F // 2
        z = _gelu(torch.einsum('bsd,df->bsf', x, w_in))
        z1 = z[..., :Fh].clone()
        z2 = _layernorm(z[..., Fh:], axis=-1)
        g = torch.einsum('ts,bsf->btf', w_sp, z2) + b_sp[None, :, None]
        return torch.einsum('bsf,fd->bsd', z1 * g, w_out)
    x = A_x
    mod = (_silu(c) @ w_mod).reshape(c.shape[0], 6, 1, -1)
    sa, ca, ga, sb, cb, gb = (mod[:, 0].clone(), mod[:, 1].clone(), mod[:, 2].clone(), mod[:, 3].clone(), mod[:, 4].clone(), mod[:, 5].clone())
    h = _layernorm(x, axis=-1) * (1 + ca) + sa
    x = x + ga * _A_ref(h, A_wqkv, A_wo)
    h = _layernorm(x, axis=-1) * (1 + cb) + sb
    x = x + gb * _B_ref(h, B_w_in, B_w_sp, B_b_sp, B_w_out)
    return x
```

```python
import sys, struct

MB = 1 << 20
WS_MOD = 0
WS_H   = 1 * MB
WS_Q   = 5 * MB
WS_KV  = 9 * MB
WS_O   = 17 * MB
WS_X1  = 21 * MB
WS_H2  = 25 * MB
WS_Z   = 29 * MB
ZSZ = 2048 * 1792 * 2
WS_Z2N = 43 * MB
WS_U2  = 50 * MB

def f2u(f):
    return struct.unpack('<I', struct.pack('<f', f))[0]
def hx(f):
    return '0x%08x' % f2u(f)

LOG2E = 1.4426950408889634

class Kern:
    def __init__(self, name, grid, block, lds):
        self.name = name; self.grid = grid; self.block = block; self.lds = lds
        self.lines = []; self.vgpr = 0; self.nlab = 0
    def e(self, s):
        for l in s.strip('\n').split('\n'):
            l = l.strip()
            if l: self.lines.append('    ' + l)
    def label(self, l):
        self.lines.append(l + ':')
    def newlabel(self, base):
        self.nlab += 1
        return 'L_%s_%s%d' % (self.name, base, self.nlab)
    def text(self):
        n = self.name + '_kernel'
        s = '.globl %s\n.p2align 8\n.type %s,@function\n%s:\n' % (n, n, n)
        s += '\n'.join(self.lines) + '\n'
        return s
    def desc(self):
        n = self.name + '_kernel'
        v = self.vgpr
        acc = (v + 3) // 4 * 4
        return ('.p2align 6\n.amdhsa_kernel %s\n  .amdhsa_next_free_vgpr %d\n  .amdhsa_next_free_sgpr 96\n'
                '  .amdhsa_accum_offset %d\n  .amdhsa_group_segment_fixed_size 0\n  .amdhsa_kernarg_size 104\n'
                '  .amdhsa_user_sgpr_count 2\n  .amdhsa_user_sgpr_kernarg_segment_ptr 1\n'
                '  .amdhsa_system_sgpr_workgroup_id_x 1\n.end_amdhsa_kernel\n' % (n, v, acc))
    def launch(self):
        return '; @launch kernel=%s_kernel grid=(%d,1,1) block=(%d,1,1) lds=%d\n' % (self.name, self.grid, self.block, self.lds)

PTR = dict(x=4, wqkv=6, wo=8, bx=10, w_in=12, w_sp=14, b_sp=16, w_out=18, c=20, w_mod=22, out=24, dbg=26, ws=28)
SIZES = dict(x=2048*1024*2, wqkv=1024*3072*2, wo=1024*1024*2, w_in=1024*3584*2, w_sp=2048*2048*2, b_sp=2048*2,
             w_out=1792*1024*2, c=2048, w_mod=1024*6144*2, out=2048*1024*2, dbg=256)

def prologue(k):
    k.endl = 'L_%s_end' % k.name
    k.e('''
    s_cmp_ge_u32 s2, %d
    s_cbranch_scc1 %s
    s_load_dwordx16 s[4:19], s[0:1], 0
    s_load_dwordx8 s[20:27], s[0:1], 64
    s_load_dwordx2 s[28:29], s[0:1], 96
    ''' % (k.grid, k.endl))

def srd(k, d, what, off=0, size=None):
    p = PTR[what]
    if size is None: size = SIZES[what]
    if off:
        k.e('s_add_u32 s%d, s%d, 0x%x' % (d, p, off))
        k.e('s_addc_u32 s%d, s%d, 0' % (d + 1, p + 1))
        k.e('s_and_b32 s%d, s%d, 0xffff' % (d + 1, d + 1))
    else:
        k.e('s_mov_b32 s%d, s%d' % (d, p))
        k.e('s_and_b32 s%d, s%d, 0xffff' % (d + 1, p + 1))
    k.e('s_mov_b32 s%d, 0x%x' % (d + 2, size))
    k.e('s_mov_b32 s%d, 0x20000' % (d + 3))

def finish(k):
    k.label(k.endl)
    k.e('s_endpgm')

def vr(b, n):
    return 'v[%d:%d]' % (b, b + n - 1)

def round_bf16_pair(k, a, b, tmp):
    k.e('v_cvt_pk_bf16_f32 v%d, v%d, v%d' % (tmp, a, b))
    k.e('v_lshlrev_b32 v%d, 16, v%d' % (a, tmp))
    k.e('v_and_b32 v%d, 0xffff0000, v%d' % (b, tmp))

def red8(k, regs, tmp):
    k.e('s_nop 1')
    for r in regs:
        k.e('v_add_f32_dpp v%d, v%d, v%d row_ror:8 row_mask:0xf bank_mask:0xf' % (r, r, r))
    for op in ('v_permlane16_swap_b32', 'v_permlane32_swap_b32'):
        for r, t in zip(regs, tmp):
            k.e('v_mov_b32 v%d, v%d' % (t, r))
        k.e('s_nop 1')
        for r, t in zip(regs, tmp):
            k.e('%s v%d, v%d' % (op, r, t))
        k.e('s_nop 1')
        for r, t in zip(regs, tmp):
            k.e('v_add_f32 v%d, v%d, v%d' % (r, r, t))

def k_mod():
    k = Kern('mod', 96, 1024, 16 * 256)
    prologue(k)
    k.e('''
    v_and_b32 v1, 63, v0               ; lane
    v_lshrrev_b32 v2, 3, v0            ; tid/8  -> row group (0..127): rows 8*g .. 8*g+7
    v_and_b32 v3, 7, v0                ; chunk
    v_lshlrev_b32 v4, 4, v2            ; c byte offset = g*16
    s_mov_b32 s30, %d
    v_mul_lo_u32 v5, v2, s30           ; g*8*12288
    v_lshlrev_b32 v6, 4, v3
    v_add_u32 v5, v5, v6
    s_lshl_b32 s31, s2, 7              ; col block byte offset
    s_waitcnt lgkmcnt(0)
    ''' % (8 * 12288))
    srd(k, 32, 'c'); srd(k, 36, 'w_mod'); srd(k, 40, 'ws', WS_MOD, 6144 * 4)
    k.e('buffer_load_dwordx4 v[8:11], v4, s[32:35], 0 offen')
    for j in range(8):
        k.e('s_add_u32 s44, s31, %d' % (j * 12288))
        k.e('buffer_load_dwordx4 %s, v5, s[36:39], s44 offen' % vr(12 + 4 * j, 4))
    k.e('s_waitcnt vmcnt(8)')
    for j in range(4):
        k.e('v_lshlrev_b32 v%d, 16, v%d' % (44 + 2 * j, 8 + j))
        k.e('v_and_b32 v%d, 0xffff0000, v%d' % (45 + 2 * j, 8 + j))
    for j in range(8):
        k.e('v_mul_f32 v%d, %s, v%d' % (52 + j, hx(-LOG2E), 44 + j))
    for j in range(8):
        k.e('v_exp_f32 v%d, v%d' % (52 + j, 52 + j))
    for j in range(8):
        k.e('v_add_f32 v%d, 1.0, v%d' % (52 + j, 52 + j))
    for j in range(8):
        k.e('v_rcp_f32 v%d, v%d' % (52 + j, 52 + j))
    for j in range(8):
        k.e('v_mul_f32 v%d, v%d, v%d' % (44 + j, 44 + j, 52 + j))
    for j in range(4):
        round_bf16_pair(k, 44 + 2 * j, 45 + 2 * j, 52)
    for j in range(8):
        k.e('s_waitcnt vmcnt(%d)' % (7 - j))
        for d in range(4):
            src = 12 + 4 * j + d
            k.e('v_lshlrev_b32 v52, 16, v%d' % src)
            k.e('v_and_b32 v53, 0xffff0000, v%d' % src)
            if j == 0:
                k.e('v_mul_f32 v%d, v52, v44' % (60 + 2 * d))
                k.e('v_mul_f32 v%d, v53, v44' % (61 + 2 * d))
            else:
                k.e('v_fmac_f32 v%d, v52, v%d' % (60 + 2 * d, 44 + j))
                k.e('v_fmac_f32 v%d, v53, v%d' % (61 + 2 * d, 44 + j))
    red8(k, list(range(60, 68)), list(range(12, 20)))
    k.e('''
    v_lshrrev_b32 v2, 6, v0
    v_lshlrev_b32 v2, 8, v2
    v_lshlrev_b32 v6, 5, v3
    v_add_u32 v2, v2, v6
    v_cmp_gt_u32 vcc, 8, v1
    s_and_saveexec_b64 s[46:47], vcc
    ds_write_b128 v2, v[60:63]
    ds_write_b128 v2, v[64:67] offset:16
    s_mov_b64 exec, s[46:47]
    s_waitcnt lgkmcnt(0)
    s_barrier
    v_cmp_gt_u32 vcc, 64, v0
    s_and_saveexec_b64 s[46:47], vcc
    s_cbranch_execz %s
    v_lshlrev_b32 v2, 2, v0
    ''' % k.endl)
    for w in range(16):
        k.e('ds_read_b32 v%d, v2 offset:%d' % (12 + w, w * 256))
    k.e('s_waitcnt lgkmcnt(0)')
    for w in range(1, 16):
        k.e('v_add_f32 v12, v12, v%d' % (12 + w))
    k.e('''
    v_cvt_pk_bf16_f32 v13, v12, v12
    v_lshlrev_b32 v12, 16, v13
    s_lshl_b32 s31, s2, 8
    buffer_store_dword v12, v2, s[40:43], s31 offen
    ''')
    finish(k)
    k.vgpr = 68
    return k

def k_ln(name, src, C, dst_off, mod_scale=None, mod_shift=None):
    nw = C // 128
    ncb = C // 16
    k = Kern(name, 256, nw * 64, 2 * 16 * 8 * 4)
    prologue(k)
    k.e('''
    v_and_b32 v1, 7, v0                ; row in group
    v_lshrrev_b32 v2, 3, v0            ; cb
    v_lshrrev_b32 v3, 6, v0            ; wave
    s_lshr_b32 s30, s2, 2              ; rb
    s_and_b32 s31, s2, 3               ; row group in rb
    s_mul_i32 s30, s30, %d             ; rb*ncb*1024
    s_lshl_b32 s31, s31, 7             ; rowgroup*8*16
    s_add_u32 s30, s30, s31
    v_lshlrev_b32 v4, 10, v2
    v_lshlrev_b32 v5, 4, v1
    v_add_u32 v4, v4, v5               ; XF offset of granule h=0 (rel. s30)
    v_lshlrev_b32 v6, 6, v2            ; mod fp32 offset = cb*64
    s_waitcnt lgkmcnt(0)
    ''' % (ncb * 1024))
    srd(k, 36, 'ws', dst_off, 2048 * C * 2)
    if src[0] == 'rm':
        srd(k, 32, src[1])
        k.e('''
        s_lshl_b32 s44, s2, 14             ; 8 rows * 2048
        v_lshlrev_b32 v7, 11, v1
        v_lshlrev_b32 v5, 5, v2
        v_add_u32 v7, v7, v5
        buffer_load_dwordx4 v[8:11], v7, s[32:35], s44 offen
        buffer_load_dwordx4 v[12:15], v7, s[32:35], s44 offen offset:16
        ''')
        inreg = [8 + d for d in range(8)]
    else:
        srd(k, 32, 'ws', src[1], 2048 * C * 2)
        k.e('''
        buffer_load_dwordx4 v[8:11], v4, s[32:35], s30 offen
        buffer_load_dwordx4 v[12:15], v4, s[32:35], s30 offen offset:512
        ''')
        inreg = [8, 9, 12, 13, 10, 11, 14, 15]
    if mod_scale is not None:
        srd(k, 40, 'ws', WS_MOD, 6144 * 4)
        for q in range(4):
            k.e('s_mov_b32 s45, %d' % (mod_scale * 4096))
            k.e('buffer_load_dwordx4 %s, v6, s[40:43], s45 offen offset:%d' % (vr(32 + 4 * q, 4), q * 16))
        for q in range(4):
            k.e('s_mov_b32 s45, %d' % (mod_shift * 4096))
            k.e('buffer_load_dwordx4 %s, v6, s[40:43], s45 offen offset:%d' % (vr(48 + 4 * q, 4), q * 16))
        k.e('s_waitcnt vmcnt(8)')
    else:
        k.e('s_waitcnt vmcnt(0)')
    X = 16
    for d in range(8):
        k.e('v_lshlrev_b32 v%d, 16, v%d' % (X + 2 * d, inreg[d]))
        k.e('v_and_b32 v%d, 0xffff0000, v%d' % (X + 2 * d + 1, inreg[d]))
    k.e('''
    v_lshlrev_b32 v64, 5, v3
    v_lshlrev_b32 v65, 2, v1
    v_add_u32 v64, v64, v65
    ''')
    def wg_reduce(reg, ldsbase):
        red8(k, [reg], [67])
        k.e('ds_write_b32 v64, v%d offset:%d' % (reg, ldsbase))
        k.e('s_waitcnt lgkmcnt(0)')
        k.e('s_barrier')
        for w in range(nw):
            k.e('ds_read_b32 v%d, v65 offset:%d' % (68 + w, ldsbase + w * 32))
        k.e('s_waitcnt lgkmcnt(0)')
        k.e('v_add_f32 v%d, v68, v69' % reg)
        for w in range(2, nw):
            k.e('v_add_f32 v%d, v%d, v%d' % (reg, reg, 68 + w))
    k.e('v_add_f32 v66, v%d, v%d' % (X, X + 1))
    for e in range(2, 16):
        k.e('v_add_f32 v66, v66, v%d' % (X + e))
    wg_reduce(66, 0)
    k.e('v_mul_f32 v66, %s, v66' % hx(1.0 / C))
    k.e('v_sub_f32 v8, v%d, v66' % X)
    k.e('v_mul_f32 v9, v8, v8')
    for e in range(1, 16):
        k.e('v_sub_f32 v8, v%d, v66' % (X + e))
        k.e('v_fmac_f32 v9, v8, v8')
    wg_reduce(9, 512)
    k.e('v_mul_f32 v9, %s, v9' % hx(1.0 / C))
    round_bf16_pair(k, 66, 9, 8)
    k.e('v_add_f32 v9, %s, v9' % hx(1e-5))
    round_bf16_pair(k, 9, 10, 8)
    k.e('v_sqrt_f32 v9, v9')
    k.e('s_nop 0')
    round_bf16_pair(k, 9, 10, 8)
    k.e('v_rcp_f32 v9, v9')
    for e in range(16):
        k.e('v_sub_f32 v%d, v%d, v66' % (X + e, X + e))
    for d in range(8):
        round_bf16_pair(k, X + 2 * d, X + 2 * d + 1, 8)
    for e in range(16):
        k.e('v_mul_f32 v%d, v%d, v9' % (X + e, X + e))
    outreg = [8, 9, 12, 13, 10, 11, 14, 15]
    if mod_scale is not None:
        for d in range(8):
            round_bf16_pair(k, X + 2 * d, X + 2 * d + 1, 8)
        k.e('s_waitcnt vmcnt(0)')
        for e in range(16):
            k.e('v_add_f32 v%d, 1.0, v%d' % (32 + e, 32 + e))
        for d in range(8):
            round_bf16_pair(k, 32 + 2 * d, 33 + 2 * d, 8)
        for e in range(16):
            k.e('v_mul_f32 v%d, v%d, v%d' % (X + e, X + e, 32 + e))
        for d in range(8):
            round_bf16_pair(k, X + 2 * d, X + 2 * d + 1, 8)
        for e in range(16):
            k.e('v_add_f32 v%d, v%d, v%d' % (X + e, X + e, 48 + e))
    for d in range(8):
        k.e('v_cvt_pk_bf16_f32 v%d, v%d, v%d' % (outreg[d], X + 2 * d, X + 2 * d + 1))
    k.e('''
    buffer_store_dwordx4 v[8:11], v4, s[36:39], s30 offen
    buffer_store_dwordx4 v[12:15], v4, s[36:39], s30 offen offset:512
    ''')
    finish(k)
    k.vgpr = 68 + 16
    return k

def log2(n):
    l = n.bit_length() - 1
    assert 1 << l == n
    return l

class G: pass

def k_gemm(name, GM, GN, bm_log2, xm_log2, bn, TM, TN, WM, WN, K, KS, NS, X, Y, pre, epi, swap=()):
    g = G()
    mb = TM // WM // 32; nb = TN // WN // 32
    S = KS // 16
    xb = TM * KS * 2; yb = TN * KS * 2; STAGE = xb + yb
    nst = K // KS
    k = Kern(name, GM * GN, 512, NS * STAGE)
    g.k = k; g.mb = mb; g.nb = nb; g.TM = TM; g.TN = TN
    prologue(k)
    k.e('''
    v_lshrrev_b32 v2, 6, v0
    v_and_b32 v1, 63, v0               ; lane
    v_readfirstlane_b32 s46, v2
    s_and_b32 s47, s2, 7               ; xcd
    s_lshr_b32 s48, s2, 3              ; idx
    s_and_b32 s30, s47, %d
    s_lshl_b32 s30, s30, %d
    s_and_b32 s49, s48, %d
    s_add_u32 s30, s30, s49            ; tm
    s_lshr_b32 s31, s47, %d
    s_mul_i32 s31, s31, %d
    s_lshr_b32 s49, s48, %d
    s_add_u32 s31, s31, s49            ; tn
    s_waitcnt lgkmcnt(0)
    ''' % ((1 << xm_log2) - 1, bm_log2, (1 << bm_log2) - 1, xm_log2, bn, bm_log2))
    lload = 'L_%s_loader' % name
    k.e('s_cmp_ge_u32 s46, 4')
    k.e('s_cbranch_scc1 %s' % lload)
    k.e('s_lshr_b32 s50, s46, %d' % log2(WN))
    k.e('s_and_b32 s51, s46, %d' % (WN - 1))
    ACC = 8
    nacc = mb * nb * 16
    FR = ACC + nacc
    fsz = (mb + nb) * 4
    XA = FR + 2 * fsz
    nxa = S if X[0] == 'rm' else 1
    XB = XA; XC = XA + nxa; YB = XC + nxa; YC = YB + 1
    g.free = YC + 1
    g.ACC = ACC
    g.acc = lambda i, j: ACC + (i * nb + j) * 16
    k.e('v_and_b32 v3, 31, v1')
    k.e('v_lshrrev_b32 v4, 5, v1')
    if X[0] == 'xf':
        k.e('s_mul_i32 s52, s50, %d' % (mb * S * 1024))
        k.e('v_lshlrev_b32 v%d, 4, v1' % XB)
        k.e('v_add_u32 v%d, s52, v%d' % (XB, XB))
    else:
        assert KS == 64
        k.e('s_mul_i32 s52, s50, %d' % (mb * 4096))
        k.e('v_lshrrev_b32 v5, 1, v3')
        k.e('v_and_b32 v5, 7, v5')
        k.e('v_lshlrev_b32 v6, 7, v3')
        k.e('v_add_u32 v6, s52, v6')
        for ss in range(S):
            k.e('v_add_u32 v7, %d, v4' % (2 * ss))
            k.e('v_xor_b32 v7, v7, v5')
            k.e('v_lshl_add_u32 v%d, v7, 4, v6' % (XB + ss))
    k.e('''
    v_lshlrev_b32 v5, 9, v4            ; h*512
    v_bfe_u32 v6, v1, 2, 2             ; r
    v_lshl_add_u32 v5, v6, 6, v5
    v_bfe_u32 v6, v1, 4, 1             ; G&1
    v_lshl_add_u32 v5, v6, 5, v5
    v_bfe_u32 v6, v1, 1, 1             ; c>>1
    v_and_b32 v7, 1, v1                ; c&1
    ''')
    if Y[0] == 'w':
        k.e('v_lshl_add_u32 v5, v6, 4, v5')
        k.e('v_lshl_add_u32 v5, v7, 3, v5')
        NP = TN // 64
        if Y[3]: k.e('s_lshl_b32 s52, s51, 8')
        else:
            assert nb % 2 == 0
            k.e('s_mul_i32 s52, s51, %d' % (nb // 2 * 1024))
        def yoff(j, ss, rd):
            if Y[3]: return ((2 * ss + rd) * NP + j) * 1024
            return ((2 * ss + rd) * NP + j // 2) * 1024 + (j % 2) * 256
    else:
        k.e('v_lshl_add_u32 v5, v7, 4, v5')
        k.e('v_lshl_add_u32 v5, v6, 3, v5')
        NB = TN // 32
        k.e('s_mul_i32 s52, s51, %d' % (nb * 1024))
        def yoff(j, ss, rd):
            return (ss * NB + j) * 1024 + rd * 256
    k.e('s_add_u32 s52, s52, %d' % xb)
    k.e('v_add_u32 v%d, s52, v5' % YB)
    pre(g)
    def xf(s, i): return FR + s * fsz + i * 4
    def yf(s, j): return FR + s * fsz + (mb + j) * 4
    def reads(ss):
        st = ss % 2
        out = []
        xr = []; yr = []
        for i in range(mb):
            if X[0] == 'xf':
                xr.append('ds_read_b128 %s, v%d offset:%d' % (vr(xf(st, i), 4), XC, (i * S + ss) * 1024))
            else:
                xr.append('ds_read_b128 %s, v%d offset:%d' % (vr(xf(st, i), 4), XC + ss, i * 4096))
        for j in range(nb):
            for rd in range(2):
                yr.append('ds_read_b64_tr_b16 %s, v%d offset:%d' % (vr(yf(st, j) + 2 * rd, 2), YC, yoff(j, ss, rd)))
        out = [xr[0]] + yr[:2] + xr[1:] + yr[2:]
        return out
    def mfmas(ss, first):
        st = ss % 2
        out = []
        for j in range(nb):
            for i in range(mb):
                a = g.acc(i, j)
                c = '0' if first else vr(a, 16)
                if j in swap:
                    out.append('v_mfma_f32_32x32x16_bf16 %s, %s, %s, %s' % (vr(a, 16), vr(xf(st, i), 4), vr(yf(st, j), 4), c))
                else:
                    out.append('v_mfma_f32_32x32x16_bf16 %s, %s, %s, %s' % (vr(a, 16), vr(yf(st, j), 4), vr(xf(st, i), 4), c))
        return out
    def setaddr():
        for t in range(nxa):
            k.e('v_add_u32 v%d, s53, v%d' % (XC + t, XB + t))
        k.e('v_add_u32 v%d, s53, v%d' % (YC, YB))
    def interleave(ms, rs, per=3):
        ri = 0
        for m in ms:
            k.e(m)
            for _ in range(per):
                if ri < len(rs):
                    k.e(rs[ri]); ri += 1
        while ri < len(rs):
            k.e(rs[ri]); ri += 1
    def stage(first, last):
        for ss in range(S):
            k.e('s_waitcnt lgkmcnt(0)')
            if ss < S - 1:
                interleave(mfmas(ss, first and ss == 0), reads(ss + 1))
            elif last:
                interleave(mfmas(ss, False), [])
            else:
                k.e('s_barrier')
                k.e('s_add_u32 s53, s53, %d' % STAGE)
                k.e('s_cmp_eq_u32 s53, %d' % (NS * STAGE))
                k.e('s_cselect_b32 s53, 0, s53')
                setaddr()
                interleave(mfmas(ss, False), reads(0))
    k.e('s_mov_b32 s53, 0')
    setaddr()
    k.e('s_barrier')
    for r in reads(0): k.e(r)
    stage(True, False)
    k.e('s_mov_b32 s54, %d' % (nst - 2))
    lp = 'L_%s_loop' % name
    k.label(lp)
    stage(False, False)
    k.e('s_sub_u32 s54, s54, 1')
    k.e('s_cmp_lg_u32 s54, 0')
    k.e('s_cbranch_scc1 %s' % lp)
    stage(False, True)
    k.e('s_nop 15')
    epi(g)
    k.e('s_endpgm')
    k.label(lload)
    k.e('s_sub_u32 s46, s46, 4')
    nx = xb // 1024 // 4; ny = yb // 1024 // 4
    assert nx * 4096 == xb and ny * 4096 == yb
    VX = 8; VY = VX + nx
    if X[0] == 'xf':
        C = X[2]; ncb = C // 16
        srd(k, 32, 'ws', X[1], 2048 * C * 2)
        k.e('s_mul_i32 s50, s30, %d' % (TM // 32 * ncb * 1024))
        k.e('v_lshlrev_b32 v2, 4, v1')
        for j in range(nx):
            k.e('s_mul_i32 s51, s46, %d' % nx)
            k.e('s_add_u32 s51, s51, %d' % j)
            k.e('s_lshr_b32 s52, s51, %d' % log2(S))
            k.e('s_and_b32 s51, s51, %d' % (S - 1))
            k.e('s_mul_i32 s52, s52, %d' % (ncb * 1024))
            k.e('s_lshl_b32 s51, s51, 10')
            k.e('s_add_u32 s51, s51, s52')
            k.e('s_add_u32 s51, s51, s50')
            k.e('v_add_u32 v%d, s51, v2' % (VX + j))
        xadv = S * 1024
    else:
        ld = X[2]
        srd(k, 32, X[1])
        assert nx % 2 == 0
        k.e('s_mul_i32 s50, s30, %d' % (TM * ld))
        k.e('s_mul_i32 s51, s46, %d' % (nx * 8 * ld))
        k.e('s_add_u32 s50, s50, s51')
        k.e('s_mov_b32 s52, %d' % ld)
        k.e('v_lshrrev_b32 v2, 3, v1')
        k.e('v_mul_lo_u32 v2, v2, s52')
        k.e('v_add_u32 v2, s50, v2')
        k.e('v_and_b32 v3, 7, v1')
        k.e('v_lshrrev_b32 v4, 4, v1')
        for j in range(nx):
            k.e('v_add_u32 v5, %d, v4' % (4 * (j % 2)))
            k.e('v_xor_b32 v5, v5, v3')
            k.e('v_lshl_add_u32 v5, v5, 4, v2')
            k.e('v_add_u32 v%d, %d, v5' % (VX + j, j * 8 * ld))
        xadv = KS * 2
    k.e('''
    v_lshrrev_b32 v2, 4, v1            ; u
    v_bfe_u32 v3, v1, 2, 2             ; r
    v_and_b32 v4, 3, v1                ; g
    ''')
    if Y[0] == 'w':
        ld = Y[2]
        srd(k, 36, Y[1])
        NP = TN // 64
        assert ny % NP == 0
        k.e('v_lshrrev_b32 v5, 1, v2')
        k.e('v_lshl_add_u32 v5, v5, 2, v3')
        k.e('s_mov_b32 s52, %d' % ld)
        k.e('v_mul_lo_u32 v5, v5, s52')
        k.e('v_and_b32 v6, 1, v2')
        k.e('v_lshl_add_u32 v5, v6, 6, v5')
        k.e('v_lshl_add_u32 v5, v4, 4, v5')
        k.e('s_mul_i32 s50, s46, %d' % (ny // NP * 8 * ld))
        k.e('s_mul_i32 s51, s31, %d' % (128 if Y[3] else TN * 2))
        k.e('s_add_u32 s50, s50, s51')
        k.e('v_add_u32 v5, s50, v5')
        for j in range(ny):
            off = (j // NP) * 8 * ld + (j % NP) * (2048 if Y[3] else 128)
            k.e('v_add_u32 v%d, %d, v5' % (VY + j, off))
        yadv = KS * ld
    else:
        C = Y[2]; ncb = C // 16
        srd(k, 36, 'ws', Y[1], 2048 * C * 2)
        NB = TN // 32
        assert ny == NB and S == 4
        k.e('v_lshl_add_u32 v5, v2, 2, v3')
        k.e('v_lshlrev_b32 v5, 4, v5')
        k.e('v_lshl_add_u32 v5, v4, 9, v5')
        k.e('s_lshr_b32 s50, s46, 1')
        k.e('s_mul_i32 s50, s50, %d' % (ncb * 1024))
        k.e('s_and_b32 s51, s46, 1')
        k.e('s_lshl_b32 s51, s51, 8')
        k.e('s_add_u32 s50, s50, s51')
        k.e('s_mul_i32 s51, s31, %d' % (TN // 16 * 1024))
        k.e('s_add_u32 s50, s50, s51')
        k.e('v_add_u32 v5, s50, v5')
        for j in range(ny):
            k.e('v_add_u32 v%d, %d, v5' % (VY + j, j * 2048))
        yadv = 2 * ncb * 1024
    k.e('s_mul_i32 s55, s46, %d' % (nx * 1024))
    k.e('s_mul_i32 s56, s46, %d' % (ny * 1024))
    k.e('s_add_u32 s56, s56, %d' % xb)
    def issue(st):
        slot = (st % NS) * STAGE
        k.e('s_mov_b32 s57, %d' % (st * xadv))
        k.e('s_mov_b32 s58, %d' % (st * yadv))
        for j in range(nx):
            k.e('s_add_u32 m0, s55, %d' % (slot + j * 1024))
            k.e('s_nop 0')
            k.e('buffer_load_dwordx4 v%d, s[32:35], s57 offen lds' % (VX + j))
        for j in range(ny):
            k.e('s_add_u32 m0, s56, %d' % (slot + j * 1024))
            k.e('s_nop 0')
            k.e('buffer_load_dwordx4 v%d, s[36:39], s58 offen lds' % (VY + j))
    per = nx + ny
    assert per * NS <= 63
    issued = min(NS, nst)
    for st in range(issued): issue(st)
    for st in range(nst):
        k.e('s_waitcnt vmcnt(%d)' % (per * (issued - st - 1)))
        k.e('s_barrier')
        if st >= 1 and issued < nst:
            issue(issued); issued += 1
    finish(k)
    k.vgpr = g.free
    assert k.vgpr <= 256, k.vgpr
    return k

def alloc(g, n, align=4):
    b = (g.free + align - 1) // align * align
    g.free = b + n
    return b

def store_xf_tile(g, a, T, voff, srdn, soff, imm):
    k = g.k
    for d in range(8):
        k.e('v_cvt_pk_bf16_f32 v%d, v%d, v%d' % (T + d, a + 2 * d, a + 2 * d + 1))
    k.e('buffer_store_dwordx4 %s, v%d, s[%d:%d], %s offen offset:%d' % (vr(T, 4), voff, srdn, srdn + 3, soff, imm))
    k.e('buffer_store_dwordx4 %s, v%d, s[%d:%d], %s offen offset:%d' % (vr(T + 4, 4), voff, srdn, srdn + 3, soff, imm + 1024))

def k_qkv():
    def pre(g):
        k = g.k
        srd(k, 32, 'ws', WS_Q, 4 * MB); srd(k, 36, 'ws', WS_KV, 8 * MB)
        g.L16 = alloc(g, 1, 1); g.T = alloc(g, 16)
        k.e('v_lshlrev_b32 v%d, 4, v1' % g.L16)
        k.e('''
        s_lshl_b32 s60, s31, 1
        s_add_u32 s60, s60, s51
        s_lshl_b32 s60, s60, 6
        s_lshl_b32 s61, s30, 2
        s_add_u32 s60, s60, s61
        s_lshl_b32 s61, s50, 1
        s_add_u32 s60, s60, s61
        s_lshl_b32 s61, s60, 11           ; Q offset
        s_lshl_b32 s62, s60, 12
        s_add_u32 s63, s62, 4096
        ''')
    def epi(g):
        k = g.k
        qs = hx(32 ** -0.5 * LOG2E)
        for i in range(2):
            a = g.acc(i, 0)
            for r in range(16):
                k.e('v_mul_f32 v%d, %s, v%d' % (a + r, qs, a + r))
            store_xf_tile(g, a, g.T + 8 * (i % 2), g.L16, 32, 's61', i * 2048)
        for i in range(2):
            store_xf_tile(g, g.acc(i, 1), g.T, g.L16, 36, 's62' if i == 0 else 's63', 0)
            store_xf_tile(g, g.acc(i, 2), g.T + 8, g.L16, 36, 's62' if i == 0 else 's63', 2048)
    return k_gemm('qkv', 16, 16, 3, 1, 4, 128, 192, 2, 2, 1024, 32, 7, ('xf', WS_H, 1024), ('w', 'wqkv', 6144, True), pre, epi, swap=(2,))

def k_proj(name, K, X, wname, modrow, final):
    def pre(g):
        k = g.k
        g.L16 = alloc(g, 1, 1); g.VR = alloc(g, 1, 1); g.VM = alloc(g, 1, 1)
        g.RES = alloc(g, 16); g.GA = alloc(g, 32); g.T = alloc(g, 8)
        srd(k, 40, 'ws', WS_MOD, 6144 * 4)
        srd(k, 36, 'ws', WS_X1, 4 * MB)
        srd(k, 32, 'out' if final else 'x')
        k.e('v_lshlrev_b32 v%d, 4, v1' % g.L16)
        k.e('''
        s_lshl_b32 s60, s31, 7
        s_lshl_b32 s61, s51, 6
        s_add_u32 s60, s60, s61           ; col0
        s_lshl_b32 s61, s30, 1
        s_add_u32 s61, s61, s50           ; rb
        s_lshl_b32 s62, s61, 16           ; rb*32*2048 (row-major) == rb*64*1024 (XF)
        s_lshl_b32 s63, s60, 1
        s_add_u32 s63, s63, s62           ; row-major byte offset of (row0,col0)
        s_lshl_b32 s64, s60, 6            ; col0/16*1024
        s_add_u32 s64, s64, s62           ; XF offset
        s_lshl_b32 s65, s60, 2
        s_add_u32 s65, s65, %d            ; mod offset
        v_lshlrev_b32 v%d, 11, v3
        v_lshl_add_u32 v%d, v4, 3, v%d    ; row*2048 + h*8
        v_lshlrev_b32 v%d, 4, v4          ; h*16
        ''' % (modrow * 4096, g.VR, g.VR, g.VR, g.VM))
        if final:
            for j in range(2):
                for t in range(2):
                    k.e('buffer_load_dwordx4 %s, v%d, s[36:39], s64 offen offset:%d' % (vr(g.RES + 8 * j + 4 * t, 4), g.L16, (2 * j + t) * 1024))
        else:
            for j in range(2):
                for q in range(4):
                    k.e('buffer_load_dwordx2 %s, v%d, s[32:35], s63 offen offset:%d' % (vr(g.RES + 8 * j + 2 * q, 2), g.VR, j * 64 + q * 16))
        for j in range(2):
            for q in range(4):
                k.e('buffer_load_dwordx4 %s, v%d, s[40:43], s65 offen offset:%d' % (vr(g.GA + 16 * j + 4 * q, 4), g.VM, j * 128 + q * 32))
    def epi(g):
        k = g.k
        k.e('s_waitcnt vmcnt(0)')
        for j in range(2):
            a = g.acc(0, j)
            for d in range(8):
                r = g.RES + 8 * j + d
                k.e('v_lshlrev_b32 v5, 16, v%d' % r)
                k.e('v_and_b32 v6, 0xffff0000, v%d' % r)
                k.e('v_fma_f32 v%d, v%d, v%d, v5' % (a + 2 * d, a + 2 * d, g.GA + 16 * j + 2 * d))
                k.e('v_fma_f32 v%d, v%d, v%d, v6' % (a + 2 * d + 1, a + 2 * d + 1, g.GA + 16 * j + 2 * d + 1))
            if final:
                for d in range(8):
                    k.e('v_cvt_pk_bf16_f32 v%d, v%d, v%d' % (g.RES + 8 * j + d, a + 2 * d, a + 2 * d + 1))
                for q in range(4):
                    k.e('buffer_store_dwordx2 %s, v%d, s[32:35], s63 offen offset:%d' % (vr(g.RES + 8 * j + 2 * q, 2), g.VR, j * 64 + q * 16))
            else:
                store_xf_tile(g, a, g.RES + 8 * j, g.L16, 36, 's64', j * 2048)
    return k_gemm(name, 32, 8, 3, 2, 4, 64, 128, 2, 2, K, 64, 6, X, ('w', wname, 2048, False), pre, epi)

def gelu(k, a, n, t):
    c1 = -2.0 * 0.7978845608028654 * LOG2E
    c2 = c1 * 0.044715
    for r in range(n): k.e('v_mul_f32 v%d, v%d, v%d' % (t + r, a + r, a + r))
    for r in range(n): k.e('v_fma_f32 v%d, v%d, s66, v7' % (t + r, t + r))
    for r in range(n): k.e('v_mul_f32 v%d, v%d, v%d' % (t + r, t + r, a + r))
    for r in range(n): k.e('v_exp_f32 v%d, v%d' % (t + r, t + r))
    for r in range(n): k.e('v_add_f32 v%d, 1.0, v%d' % (t + r, t + r))
    for r in range(n): k.e('v_rcp_f32 v%d, v%d' % (t + r, t + r))
    for r in range(n): k.e('v_mul_f32 v%d, v%d, v%d' % (a + r, a + r, t + r))
def k_win():
    def pre(g):
        k = g.k
        g.L16 = alloc(g, 1, 1); g.T = alloc(g, 16); g.T2 = alloc(g, 16)
        srd(k, 32, 'ws', WS_Z, 2 * ZSZ)
        k.e('v_lshlrev_b32 v%d, 4, v1' % g.L16)
        k.e('''
        s_cmp_ge_u32 s31, 7
        s_cselect_b32 s60, %d, 0
        s_cselect_b32 s61, 7, 0
        s_sub_u32 s61, s31, s61           ; tn%%7
        s_lshl_b32 s61, s61, 14           ; *256/16*1024
        s_add_u32 s60, s60, s61
        s_lshl_b32 s61, s51, 13           ; wn*128/16*1024
        s_add_u32 s60, s60, s61
        s_lshl_b32 s61, s30, 2
        s_lshl_b32 s62, s50, 1
        s_add_u32 s61, s61, s62           ; rb0
        s_mul_i32 s61, s61, %d
        s_add_u32 s60, s60, s61
        ''' % (ZSZ, 112 * 1024))
    def epi(g):
        k = g.k
        c1 = -2.0 * 0.7978845608028654 * LOG2E
        k.e('s_mov_b32 s66, %s' % hx(c1 * 0.044715))
        k.e('v_mov_b32 v7, %s' % hx(c1))
        n = 0
        for i in range(2):
            for j in range(4):
                a = g.acc(i, j)
                gelu(k, a, 16, g.T2)
                k.e('s_add_u32 s61, s60, %d' % (i * 112 * 1024 + j * 2048))
                store_xf_tile(g, a, g.T + 8 * (n % 2), g.L16, 32, 's61', 0)
                n += 1
    return k_gemm('win', 16, 14, 2, 2, 7, 128, 256, 2, 2, 1024, 32, 6, ('xf', WS_H2, 1024), ('w', 'w_in', 7168, False), pre, epi)

def k_wsp():
    def pre(g):
        k = g.k
        g.L16 = alloc(g, 1, 1); g.B = alloc(g, 2, 1); g.Z = alloc(g, 32)
        srd(k, 32, 'ws', WS_Z, ZSZ); srd(k, 36, 'ws', WS_U2, ZSZ); srd(k, 40, 'b_sp')
        k.e('v_lshlrev_b32 v%d, 4, v1' % g.L16)
        k.e('''
        s_lshl_b32 s60, s31, 13           ; tn*128/16*1024
        s_lshl_b32 s61, s51, 12           ; wn*64/16*1024
        s_add_u32 s60, s60, s61
        s_lshl_b32 s61, s30, 2
        s_lshl_b32 s62, s50, 1
        s_add_u32 s61, s61, s62           ; rb0
        s_lshl_b32 s63, s61, 6            ; row0*2 bytes
        s_mul_i32 s61, s61, %d
        s_add_u32 s60, s60, s61
        s_add_u32 s61, s60, %d
        v_lshlrev_b32 v5, 1, v3
        ''' % (112 * 1024, 112 * 1024))
        for i in range(2):
            k.e('buffer_load_ushort v%d, v5, s[40:43], s63 offen offset:%d' % (g.B + i, i * 64))
        for i in range(2):
            for j in range(2):
                for t in range(2):
                    k.e('buffer_load_dwordx4 %s, v%d, s[32:35], s%d offen offset:%d' % (vr(g.Z + 16 * i + 8 * j + 4 * t, 4), g.L16, 60 + i, (2 * j + t) * 1024))
    def epi(g):
        k = g.k
        k.e('s_waitcnt vmcnt(0)')
        for i in range(2):
            k.e('v_lshlrev_b32 v%d, 16, v%d' % (g.B + i, g.B + i))
        for i in range(2):
            for j in range(2):
                a = g.acc(i, j); z = g.Z + 16 * i + 8 * j
                for d in range(8):
                    k.e('v_lshlrev_b32 v5, 16, v%d' % (z + d))
                    k.e('v_and_b32 v6, 0xffff0000, v%d' % (z + d))
                    k.e('v_add_f32 v%d, v%d, v%d' % (a + 2 * d, a + 2 * d, g.B + i))
                    k.e('v_add_f32 v%d, v%d, v%d' % (a + 2 * d + 1, a + 2 * d + 1, g.B + i))
                    k.e('v_mul_f32 v%d, v%d, v5' % (a + 2 * d, a + 2 * d))
                    k.e('v_mul_f32 v%d, v%d, v6' % (a + 2 * d + 1, a + 2 * d + 1))
                store_xf_tile(g, a, z, g.L16, 36, 's%d' % (60 + i), j * 2048)
    return k_gemm('wsp', 16, 14, 2, 2, 7, 128, 128, 2, 2, 2048, 64, 5, ('rm', 'w_sp', 4096), ('z', WS_Z2N, 1792), pre, epi)

def k_attn():
    NS = 4; STG = 16384; NST = 16
    k = Kern('attn', 256, 512, NS * STG + 64)
    FLAG = NS * STG
    prologue(k)
    SA, SB, O, NEGM = 8, 24, 40, 56
    L, ONES, Q, KF, VF, P = 72, 76, 80, 88, 96, 104
    A0 = 112
    A1 = 113; M = 114; T = 115
    k.e('''
    v_lshrrev_b32 v2, 6, v0
    v_and_b32 v1, 63, v0
    v_readfirstlane_b32 s46, v2        ; wave
    s_and_b32 s47, s2, 7
    s_lshr_b32 s48, s2, 3
    s_lshl_b32 s30, s47, 2
    s_lshr_b32 s49, s48, 3
    s_add_u32 s30, s30, s49            ; head
    s_and_b32 s31, s48, 7              ; q block (256 rows)
    v_lshlrev_b32 v%d, 4, v1
    s_waitcnt lgkmcnt(0)
    ''' % A0)
    srd(k, 32, 'ws', WS_Q, 4 * MB); srd(k, 36, 'ws', WS_KV, 8 * MB); srd(k, 40, 'ws', WS_O, 4 * MB)
    k.e('''
    s_lshl_b32 s50, s31, 3
    s_add_u32 s50, s50, s46            ; rb of this wave's queries
    s_lshl_b32 s51, s30, 6
    s_add_u32 s51, s51, s50
    s_lshl_b32 s51, s51, 11            ; Q offset
    buffer_load_dwordx4 %s, v%d, s[32:35], s51 offen
    buffer_load_dwordx4 %s, v%d, s[32:35], s51 offen offset:1024
    s_lshl_b32 s52, s30, 18            ; KV head base
    s_lshl_b32 s53, s46, 11            ; wave part (2KB)
    s_add_u32 s52, s52, s53            ; global offset of wave's part in stage 0
    s_lshl_b32 s54, s50, 16
    s_lshl_b32 s55, s30, 11
    s_add_u32 s54, s54, s55            ; O offset
    s_mov_b32 s60, 0                   ; mode: 0 fast, 1 safe
    ''' % (vr(Q, 4), A0, vr(Q + 4, 4), A0))
    k.e('''
    v_and_b32 v3, 3, v1
    v_bfe_u32 v4, v1, 2, 1
    v_bfe_u32 v5, v1, 4, 1
    v_xor_b32 v4, v4, v5
    v_or_b32 v3, v3, v4
    v_cmp_eq_u32 vcc, 0, v3
    v_mov_b32 v4, 0x3f803f80
    s_nop 1
    v_cndmask_b32 v%d, 0, v4, vcc
    v_mov_b32 v%d, v%d
    v_mov_b32 v%d, v%d
    v_mov_b32 v%d, v%d
    v_mov_b32 v3, 0
    v_mov_b32 v4, %d
    ds_write_b32 v4, v3
    ''' % (ONES, ONES + 1, ONES, ONES + 2, ONES, ONES + 3, ONES, FLAG))
    def dma(slot_s, st_s):
        k.e('s_add_u32 m0, %s, s53' % slot_s)
        k.e('s_nop 0')
        k.e('buffer_load_dwordx4 v%d, s[36:39], %s offen lds' % (A0, st_s))
        k.e('buffer_load_dwordx4 v%d, s[36:39], %s offen offset:1024 lds' % (A0, st_s))
    def start_stream():
        k.e('s_mov_b32 s56, s52')
        for st in range(NS):
            k.e('s_mov_b32 s57, %d' % (st * STG))
            dma('s57', 's56')
            k.e('s_add_u32 s56, s56, %d' % STG)
    def rdK(tile_off, a=A1):
        return ['ds_read_b128 %s, v%d offset:%d' % (vr(KF, 4), a, tile_off), 'ds_read_b128 %s, v%d offset:%d' % (vr(KF + 4, 4), a, tile_off + 1024)]
    def rdV(tile_off, a=A1):
        return ['ds_read_b128 %s, v%d offset:%d' % (vr(VF, 4), a, tile_off + 2048), 'ds_read_b128 %s, v%d offset:%d' % (vr(VF + 4, 4), a, tile_off + 3072)]
    def qk(S, c):
        return ['v_mfma_f32_32x32x16_bf16 %s, %s, %s, %s' % (vr(S, 16), vr(KF, 4), vr(Q, 4), c),
                'v_mfma_f32_32x32x16_bf16 %s, %s, %s, %s' % (vr(S, 16), vr(KF + 4, 4), vr(Q + 4, 4), vr(S, 16))]
    def maxtile(S, first):
        if first:
            k.e('v_max3_f32 v%d, v%d, v%d, v%d' % (M, S, S + 1, S + 2))
            k.e('v_max_f32 v%d, v%d, v%d' % (M, M, S + 3))
            st = 4
        else: st = 0
        for r in range(st, 16, 2):
            k.e('v_max3_f32 v%d, v%d, v%d, v%d' % (M, M, S + r, S + r + 1))
    def set_negm(bias):
        k.e('v_mov_b32 v%d, v%d' % (T, M))
        k.e('s_nop 1')
        k.e('v_permlane32_swap_b32 v%d, v%d' % (M, T))
        k.e('s_nop 1')
        k.e('v_max_f32 v%d, v%d, v%d' % (M, M, T))
        k.e('v_sub_f32 v%d, %s, v%d' % (NEGM, hx(-bias), M))
        for r in range(1, 16):
            k.e('v_mov_b32 v%d, v%d' % (NEGM + r, NEGM))
    start_stream()
    k.e('s_waitcnt vmcnt(%d) lgkmcnt(0)' % (2 * (NS - 1)))
    k.e('s_barrier')
    for t in range(2):
        for r in rdK(t * 4096, A0): k.e(r)
        k.e('s_waitcnt lgkmcnt(0)')
        for m in qk(SA, '0'): k.e(m)
        k.e('s_nop 15')
        maxtile(SA, t == 0)
    set_negm(40.0)
    lmain = 'L_attn_main'
    k.label(lmain)
    for r in range(16): k.e('v_mov_b32 v%d, 0' % (O + r))
    for r in range(4): k.e('v_mov_b32 v%d, 0' % (L + r))
    k.e('s_mov_b32 s58, 0')
    k.e('s_mov_b32 s59, 0')
    k.e('v_mov_b32 v%d, v%d' % (A1, A0))
    for r in rdK(0): k.e(r)
    for r in rdV(0): k.e(r)
    k.e('s_waitcnt lgkmcnt(2)')
    for m in qk(SA, vr(NEGM, 16)): k.e(m)
    for r in rdK(4096): k.e(r)
    k.e('s_nop 7')
    lp = 'L_attn_loop'
    k.label(lp)
    lnoissue = k.newlabel('noissue')
    k.e('s_cmp_ge_u32 s59, %d' % (NST - NS + 1))
    k.e('s_cbranch_scc1 %s' % (lnoissue + 'w'))
    k.e('s_waitcnt vmcnt(%d)' % (2 * (NS - 3)))
    k.e('s_branch %s' % (lnoissue + 'b'))
    k.label(lnoissue + 'w')
    k.e('s_waitcnt vmcnt(0)')
    k.label(lnoissue + 'b')
    k.e('s_barrier')
    k.e('s_cmp_eq_u32 s59, 0')
    k.e('s_cbranch_scc1 %s' % lnoissue)
    k.e('s_cmp_gt_u32 s59, %d' % (NST - NS))
    k.e('s_cbranch_scc1 %s' % lnoissue)
    k.e('s_sub_u32 s57, s58, %d' % STG)
    k.e('s_and_b32 s57, s57, %d' % (NS * STG - 1))
    dma('s57', 's56')
    k.e('s_add_u32 s56, s56, %d' % STG)
    k.label(lnoissue)
    A2 = 116
    k.e('s_add_u32 s57, s58, %d' % STG)
    k.e('s_and_b32 s57, s57, %d' % (NS * STG - 1))
    k.e('v_add_u32 v%d, s57, v%d' % (A2, A0))
    for t in range(4):
        cur, nxt = (SA, SB) if t % 2 == 0 else (SB, SA)
        m_qk = qk(nxt, vr(NEGM, 16))
        kn = rdK((t + 2) * 4096) if t + 2 < 4 else rdK((t + 2 - 4) * 4096, A2)
        vn = rdV((t + 1) * 4096) if t + 1 < 4 else rdV(0, A2)
        ex = ['v_exp_f32 v%d, v%d' % (cur + r, cur + r) for r in range(16)]
        cv = ['v_cvt_pk_bf16_f32 v%d, v%d, v%d' % (P + d, cur + 2 * d, cur + 2 * d + 1) for d in range(8)]
        k.e('s_waitcnt lgkmcnt(0)')
        k.e(m_qk[0])
        for x in ex[0:4]: k.e(x)
        k.e(m_qk[1])
        for x in kn: k.e(x)
        for x in ex[4:8]: k.e(x)
        for x in cv[0:4]: k.e(x)
        for x in ex[8:10]: k.e(x)
        k.e('v_mfma_f32_32x32x16_bf16 %s, %s, %s, %s' % (vr(O, 16), vr(VF, 4), vr(P, 4), vr(O, 16)))
        for x in ex[10:13]: k.e(x)
        k.e('v_mfma_f32_16x16x32_bf16 %s, %s, %s, %s' % (vr(L, 4), vr(ONES, 4), vr(P, 4), vr(L, 4)))
        for x in ex[13:16]: k.e(x)
        for x in cv[4:8]: k.e(x)
        k.e('s_nop 1')
        k.e('v_mfma_f32_32x32x16_bf16 %s, %s, %s, %s' % (vr(O, 16), vr(VF + 4, 4), vr(P + 4, 4), vr(O, 16)))
        k.e('v_mfma_f32_16x16x32_bf16 %s, %s, %s, %s' % (vr(L, 4), vr(ONES, 4), vr(P + 4, 4), vr(L, 4)))
        for x in vn: k.e(x)
    k.e('s_mov_b32 s58, s57')
    k.e('v_mov_b32 v%d, v%d' % (A1, A2))
    k.e('s_add_u32 s59, s59, 1')
    k.e('s_cmp_lt_u32 s59, %d' % NST)
    k.e('s_cbranch_scc1 %s' % lp)
    k.e('s_waitcnt lgkmcnt(0)')
    k.e('s_nop 15')
    lstore = 'L_attn_store'
    k.e('s_cmp_lg_u32 s60, 0')
    k.e('s_cbranch_scc1 %s' % lstore)
    k.e('v_max3_f32 v%d, |v%d|, |v%d|, |v%d|' % (T, O, O + 1, L))
    for r in range(2, 16, 2):
        k.e('v_max3_f32 v%d, |v%d|, |v%d|, v%d' % (T, O + r, O + r + 1, T))
    T2 = 117
    k.e('v_mul_f32 v%d, 0, v%d' % (T2, L))
    for r in range(16):
        k.e('v_fma_f32 v%d, 0, v%d, v%d' % (T2, O + r, T2))
    k.e('v_add_f32 v%d, v%d, v%d' % (T, T, T2))
    k.e('v_mov_b32 v3, %s' % hx(2.0 ** 120))
    k.e('v_cmp_nlt_f32 vcc, v%d, v3' % T)
    lok = k.newlabel('ok')
    k.e('s_nop 4')
    k.e('s_cbranch_vccz %s' % lok)
    k.e('v_mov_b32 v3, 1')
    k.e('v_mov_b32 v4, %d' % FLAG)
    k.e('ds_write_b32 v4, v3')
    k.label(lok)
    k.e('''
    s_waitcnt lgkmcnt(0)
    s_barrier
    v_mov_b32 v4, %d
    ds_read_b32 v3, v4
    s_waitcnt lgkmcnt(0)
    v_readfirstlane_b32 s61, v3
    s_cmp_eq_u32 s61, 0
    s_cbranch_scc1 %s
    ''' % (FLAG, lstore))
    k.e('s_mov_b32 s60, 1')
    k.e('s_mov_b32 s56, s52')
    k.e('s_mov_b32 s59, 0')
    k.e('v_mov_b32 v%d, 0xff800000' % M)
    lsafe = 'L_attn_safe'
    k.label(lsafe)
    k.e('s_barrier')
    k.e('s_mov_b32 s57, 0')
    dma('s57', 's56')
    k.e('s_add_u32 s56, s56, %d' % STG)
    k.e('s_waitcnt vmcnt(0)')
    k.e('s_barrier')
    for t in range(4):
        for r in rdK(t * 4096, A0): k.e(r)
        k.e('s_waitcnt lgkmcnt(0)')
        for m in qk(SA, '0'): k.e(m)
        k.e('s_nop 15')
        maxtile(SA, False)
    k.e('s_add_u32 s59, s59, 1')
    k.e('s_cmp_lt_u32 s59, %d' % NST)
    k.e('s_cbranch_scc1 %s' % lsafe)
    set_negm(0.0)
    k.e('s_barrier')
    start_stream()
    k.e('s_waitcnt vmcnt(%d)' % (2 * (NS - 1)))
    k.e('s_barrier')
    k.e('s_branch %s' % lmain)
    k.label(lstore)
    k.e('v_rcp_f32 v%d, v%d' % (T, L))
    k.e('s_nop 0')
    for r in range(16):
        k.e('v_mul_f32 v%d, v%d, v%d' % (O + r, O + r, T))
    for d in range(8):
        k.e('v_cvt_pk_bf16_f32 v%d, v%d, v%d' % (P + d, O + 2 * d, O + 2 * d + 1))
    k.e('buffer_store_dwordx4 %s, v%d, s[40:43], s54 offen' % (vr(P, 4), A0))
    k.e('buffer_store_dwordx4 %s, v%d, s[40:43], s54 offen offset:1024' % (vr(P + 4, 4), A0))
    finish(k)
    k.vgpr = 118
    return k

def build():
    ks = [k_mod(),
          k_ln('ln1', ('rm', 'x'), 1024, WS_H, 1, 0),
          k_qkv(),
          k_attn(),
          k_proj('wo', 1024, ('xf', WS_O, 1024), 'wo', 2, False),
          k_ln('ln2', ('xf', WS_X1), 1024, WS_H2, 4, 3),
          k_win(),
          k_ln('ln3', ('xf', WS_Z + ZSZ), 1792, WS_Z2N),
          k_wsp(),
          k_proj('wout', 1792, ('xf', WS_U2, 1792), 'w_out', 5, True)]
    s = '; adaLN + softmax MHA + gMLP block, generated by gen.py (hand-written generator)\n'
    for k in ks: s += k.launch()
    s += '.amdgcn_target "amdgcn-amd-amdhsa--gfx950"\n.text\n'
    for k in ks: s += k.text()
    s += '.section .rodata,"a"\n'
    for k in ks: s += k.desc()
    return s

if __name__ == '__main__':
    out = sys.argv[1] if len(sys.argv) > 1 else 'adaLN_cond__softmax_full_mha__mixer_gmlp__prompt.s'
    open(out, 'w').write(build())
    print('wrote', out)
```

```python
import sys, struct, os
STAMP = int(os.environ.get('STAMP', '0'))
WS_STAMP = 128 << 20
KIDX = [0]
def env(n, d): return int(os.environ.get(n, d))

MB = 1 << 20
KB = 1024
WS_MOD = 0
WS_UW  = 32 * KB
WS_ST0 = 64 * KB
WS_MODP = 128 * KB
WS_ST1 = 256 * KB
WS_G   = 512 * KB
WS_H   = 1 * MB
WS_Q   = 5 * MB
WS_KV  = 9 * MB
WS_O   = 17 * MB
WS_X1  = 21 * MB
WS_X1S = 25 * MB
WS_Z   = 29 * MB
ZSZ = 2048 * 1792 * 2
WS_Z2N = WS_Z + ZSZ
WS_U2  = 50 * MB

ROLES = {'pre': [('mod', 0, 192, 0, 16), ('stats', 192, 256, 0, 16)],
         'attn': [('main', 0, 256, 0, 8)]}
for _n in ('qkv', 'wo', 'wout'): ROLES[_n] = [('load', 0, 256, 0, 4), ('comp', 0, 256, 4, 8)]
for _n in ('win', 'wsp'): ROLES[_n] = [('load', 0, 224, 0, 4), ('comp', 0, 224, 4, 8), ('pf', 224, 256, 0, 8)]
def f2u(f): return struct.unpack('<I', struct.pack('<f', f))[0]
def hx(f): return '0x%08x' % f2u(f)
LOG2E = 1.4426950408889634
WT = ' sc1'

class Kern:
    def __init__(self, name, grid, block, lds):
        self.name = name; self.grid = grid; self.block = block; self.lds = lds
        self.lines = []; self.vgpr = 0; self.nlab = 0
    def e(self, s):
        for l in s.strip('\n').split('\n'):
            l = l.strip()
            if l: self.lines.append('    ' + l)
    def label(self, l): self.lines.append(l + ':')
    def newlabel(self, base):
        self.nlab += 1
        return 'L_%s_%s%d' % (self.name, base, self.nlab)
    def text(self):
        n = self.name + '_kernel'
        return '.globl %s\n.p2align 8\n.type %s,@function\n%s:\n' % (n, n, n) + '\n'.join(self.lines) + '\n'
    def desc(self):
        n = self.name + '_kernel'
        v = self.vgpr
        acc = (v + 3) // 4 * 4
        return ('.p2align 6\n.amdhsa_kernel %s\n  .amdhsa_next_free_vgpr %d\n  .amdhsa_next_free_sgpr 96\n'
                '  .amdhsa_accum_offset %d\n  .amdhsa_group_segment_fixed_size 0\n  .amdhsa_kernarg_size 104\n'
                '  .amdhsa_user_sgpr_count 2\n  .amdhsa_user_sgpr_kernarg_segment_ptr 1\n'
                '  .amdhsa_system_sgpr_workgroup_id_x 1\n.end_amdhsa_kernel\n' % (n, v, acc))
    def launch(self):
        return '; @launch kernel=%s_kernel grid=(%d,1,1) block=(%d,1,1) lds=%d\n' % (self.name, self.grid, self.block, self.lds)

PTR = dict(x=4, wqkv=6, wo=8, bx=10, w_in=12, w_sp=14, b_sp=16, w_out=18, c=20, w_mod=22, out=24, dbg=26, ws=28)
SIZES = dict(x=2048*1024*2, wqkv=1024*3072*2, wo=1024*1024*2, w_in=1024*3584*2, w_sp=2048*2048*2, b_sp=2048*2,
             w_out=1792*1024*2, c=2048, w_mod=1024*6144*2, out=2048*1024*2, dbg=256)

def prologue(k):
    k.endl = 'L_%s_end' % k.name
    k.e('''
    s_load_dwordx16 s[4:19], s[0:1], 0
    s_load_dwordx8 s[20:27], s[0:1], 64
    s_load_dwordx2 s[28:29], s[0:1], 96
    s_cmp_ge_u32 s2, %d
    s_cbranch_scc1 %s
    ''' % (k.grid, k.endl))
    k.kidx = KIDX[0]; KIDX[0] += 1
    if STAMP:
        k.e('s_memtime s[88:89]')
        k.e('s_memrealtime s[90:91]')
        k.e('v_lshrrev_b32 v1, 6, v0')
        for i in range(4): k.e('s_mov_b64 s[%d:%d], 0' % (72 + 2 * i, 73 + 2 * i))
        k.e('v_readfirstlane_b32 s87, v1')

def endpgm(k):
    if STAMP:
        k.e('''
        s_waitcnt vmcnt(0) lgkmcnt(0)
        s_memtime s[92:93]
        s_memrealtime s[94:95]
        s_mov_b64 exec, 1
        s_add_u32 s80, s28, 0x%x
        s_addc_u32 s81, s29, 0
        s_and_b32 s81, s81, 0xffff
        s_mov_b32 s82, 0x100000
        s_mov_b32 s83, 0x20000
        s_lshl_b32 s84, s2, 4
        s_add_u32 s84, s84, s87
        s_lshl_b32 s84, s84, 5
        s_waitcnt lgkmcnt(0)
        v_mov_b32 v0, s90
        v_mov_b32 v1, s94
        v_mov_b32 v2, s88
        v_mov_b32 v3, s92
        v_mov_b32 v4, s72
        v_mov_b32 v5, s74
        v_mov_b32 v6, s76
        v_mov_b32 v7, s78
        v_mov_b32 v8, s84
        buffer_store_dwordx4 v[0:3], v8, s[80:83], 0 offen
        buffer_store_dwordx4 v[4:7], v8, s[80:83], 0 offen offset:16
        ''' % (WS_STAMP + k.kidx * (1 << 20)))
    k.e('s_endpgm')
def mark(k, i=0):
    if STAMP:
        k.e('s_memtime s[%d:%d]' % (72 + 2 * i, 73 + 2 * i))
        k.e('s_waitcnt lgkmcnt(0)')

def srd(k, d, what, off=0, size=None, soff=None):
    p = PTR[what]
    if size is None: size = SIZES[what]
    if off or soff:
        k.e('s_add_u32 s%d, s%d, 0x%x' % (d, p, off))
        k.e('s_addc_u32 s%d, s%d, 0' % (d + 1, p + 1))
        if soff:
            k.e('s_add_u32 s%d, s%d, %s' % (d, d, soff))
            k.e('s_addc_u32 s%d, s%d, 0' % (d + 1, d + 1))
        k.e('s_and_b32 s%d, s%d, 0xffff' % (d + 1, d + 1))
    else:
        k.e('s_mov_b32 s%d, s%d' % (d, p))
        k.e('s_and_b32 s%d, s%d, 0xffff' % (d + 1, p + 1))
    k.e('s_mov_b32 s%d, 0x%x' % (d + 2, size))
    k.e('s_mov_b32 s%d, 0x20000' % (d + 3))

def finish(k):
    endpgm(k)
    k.label(k.endl)
    k.e('s_endpgm')

CPF = env('CPF', 1)
def code_pf(k, start, end, maxbytes, lane=1, vt=6, vd=7, sb=84):
    if not CPF: return 0
    h = k.newlabel('pc')
    k.e('s_getpc_b64 s[%d:%d]' % (sb, sb + 1))
    k.label(h)
    k.e('s_add_u32 s%d, s%d, %s-%s' % (sb, sb, start, h))
    k.e('s_addc_u32 s%d, s%d, 0' % (sb + 1, sb + 1))
    n = (maxbytes + 8191) // 8192
    for i in range(n):
        k.e('v_lshlrev_b32 v%d, 7, v%d' % (vt, lane))
        if i: k.e('v_add_u32 v%d, %d, v%d' % (vt, i * 8192, vt))
        k.e('v_min_u32 v%d, %s-%s-4, v%d' % (vt, end, start, vt))
        k.e('global_load_dword v%d, v%d, s[%d:%d]' % (vd, vt, sb, sb + 1))
    return n

def vr(b, n): return 'v[%d:%d]' % (b, b + n - 1)
def sr(b): return 's[%d:%d]' % (b, b + 3)

def round_bf16_pair(k, a, b, tmp):
    k.e('v_cvt_pk_bf16_f32 v%d, v%d, v%d' % (tmp, a, b))
    k.e('v_lshlrev_b32 v%d, 16, v%d' % (a, tmp))
    k.e('v_and_b32 v%d, 0xffff0000, v%d' % (b, tmp))

def red_lanes(k, regs, tmp, rors=(8,)):
    for ro in rors:
        k.e('s_nop 1')
        for r in regs:
            k.e('v_add_f32_dpp v%d, v%d, v%d row_ror:%d row_mask:0xf bank_mask:0xf' % (r, r, r, ro))
    for op in ('v_permlane16_swap_b32', 'v_permlane32_swap_b32'):
        for r, t in zip(regs, tmp): k.e('v_mov_b32 v%d, v%d' % (t, r))
        k.e('s_nop 1')
        for r, t in zip(regs, tmp): k.e('%s v%d, v%d' % (op, r, t))
        k.e('s_nop 1')
        for r, t in zip(regs, tmp): k.e('v_add_f32 v%d, v%d, v%d' % (r, r, t))

def unpack(k, lo, hi, src):
    k.e('v_lshlrev_b32 v%d, 16, v%d' % (lo, src))
    k.e('v_and_b32 v%d, 0xffff0000, v%d' % (hi, src))

def k_pre():
    k = Kern('pre', 256, 1024, 16 * 256)
    prologue(k)
    lst = 'L_pre_stats'
    k.e("""
    v_and_b32 v1, 63, v0               ; lane
    s_cmp_ge_u32 s2, 192
    s_cbranch_scc1 %s
    s_lshr_b32 s48, s2, 1              ; col block
    s_and_b32 s49, s2, 1               ; k half
    v_lshrrev_b32 v2, 3, v0            ; row group (0..127): rows 4*g .. 4*g+3 (+512*half)
    v_and_b32 v3, 7, v0                ; chunk
    v_lshlrev_b32 v4, 3, v2            ; c byte offset = g*8
    s_mov_b32 s30, %d
    v_mul_lo_u32 v5, v2, s30
    v_lshl_add_u32 v5, v3, 4, v5
    s_lshl_b32 s31, s48, 7
    s_mul_i32 s44, s49, %d
    s_add_u32 s31, s31, s44
    s_lshl_b32 s45, s49, 10
    s_waitcnt lgkmcnt(0)
    """ % (lst, 4 * 12288, 512 * 12288))
    mark(k, 0)
    srd(k, 36, 'w_mod'); srd(k, 32, 'c')
    for j in range(4):
        k.e('buffer_load_dwordx4 %s, v5, s[36:39], s31 offen' % vr(12 + 4 * j, 4))
        k.e('s_add_u32 s31, s31, 12288')
        if j == 0: k.e('buffer_load_dwordx2 v[8:9], v4, s[32:35], s45 offen')
    srd(k, 40, 'ws', WS_MODP, 2 * 6144 * 4)
    k.e('s_waitcnt vmcnt(3)')
    mark(k, 1)
    for j in range(2): unpack(k, 44 + 2 * j, 45 + 2 * j, 8 + j)
    for j in range(4): k.e('v_mul_f32 v%d, %s, v%d' % (52 + j, hx(-LOG2E), 44 + j))
    for j in range(4): k.e('v_exp_f32 v%d, v%d' % (52 + j, 52 + j))
    for j in range(4): k.e('v_add_f32 v%d, 1.0, v%d' % (52 + j, 52 + j))
    for j in range(4): k.e('v_rcp_f32 v%d, v%d' % (52 + j, 52 + j))
    for j in range(4): k.e('v_mul_f32 v%d, v%d, v%d' % (44 + j, 44 + j, 52 + j))
    for j in range(2): round_bf16_pair(k, 44 + 2 * j, 45 + 2 * j, 52)
    A = 56
    for j in range(4):
        k.e('s_waitcnt vmcnt(%d)' % (3 - j))
        for d in range(4):
            unpack(k, 52, 53, 12 + 4 * j + d)
            op = 'v_mul_f32' if j == 0 else 'v_fmac_f32'
            k.e('%s v%d, v52, v%d' % (op, A + 2 * d, 44 + j))
            k.e('%s v%d, v53, v%d' % (op, A + 1 + 2 * d, 44 + j))
    mark(k, 2)
    red_lanes(k, list(range(A, A + 8)), list(range(12, 20)))
    k.e("""
    v_lshrrev_b32 v2, 6, v0
    v_lshlrev_b32 v2, 8, v2
    v_lshl_add_u32 v2, v3, 5, v2
    v_cmp_gt_u32 vcc, 8, v1
    s_and_saveexec_b64 s[46:47], vcc
    ds_write_b128 v2, v[56:59]
    ds_write_b128 v2, v[60:63] offset:16
    s_mov_b64 exec, s[46:47]
    s_waitcnt lgkmcnt(0)
    s_barrier
    v_lshlrev_b32 v2, 2, v0
    v_cmp_gt_u32 vcc, 64, v0
    s_and_saveexec_b64 s[46:47], vcc
    s_cbranch_execz %s
    """ % k.endl)
    mark(k, 3)
    for w in range(16): k.e('ds_read_b32 v%d, v2 offset:%d' % (12 + w, w * 256))
    k.e('s_lshl_b32 s31, s48, 8')
    k.e('s_mul_i32 s44, s49, %d' % (6144 * 4))
    k.e('s_add_u32 s31, s31, s44')
    k.e('s_waitcnt lgkmcnt(0)')
    for w in range(0, 16, 2): k.e('v_add_f32 v%d, v%d, v%d' % (12 + w, 12 + w, 13 + w))
    for w in range(0, 16, 4): k.e('v_add_f32 v%d, v%d, v%d' % (12 + w, 12 + w, 14 + w))
    k.e('v_add_f32 v12, v12, v16')
    k.e('v_add_f32 v20, v20, v24')
    k.e('v_add_f32 v12, v12, v20')
    k.e('buffer_store_dword v12, v2, s[40:43], s31 offen' + WT)
    endpgm(k)
    k.label(lst)
    k.e("""
    s_sub_u32 s30, s2, 192
    v_lshrrev_b32 v2, 6, v0
    v_lshlrev_b32 v3, 12, v2
    v_lshl_add_u32 v3, v1, 4, v3
    s_lshl_b32 s31, s30, 16            ; 32 rows * 2048
    v_lshlrev_b32 v4, 4, v0            ; tid*16
    s_waitcnt lgkmcnt(0)
    """)
    srd(k, 32, 'x')
    for q in range(4): k.e('buffer_load_dwordx4 %s, v3, s[32:35], s31 offen offset:%d' % (vr(8 + 4 * q, 4), q * 1024))
    srd(k, 40, 'ws', WS_G, 256 * KB)
    k.e("""
    s_lshl_b32 s45, s30, 12
    v_mov_b32 v60, -1
    v_mov_b32 v61, -1
    v_mov_b32 v62, -1
    v_mov_b32 v63, -1
    v_cmp_gt_u32 vcc, 256, v0
    s_and_saveexec_b64 s[46:47], vcc
    buffer_store_dwordx4 v[60:63], v4, s[40:43], s45 offen%s
    s_mov_b64 exec, s[46:47]
    """ % WT)
    srd(k, 40, 'ws', WS_UW, 32 * KB)
    k.e("""
    s_lshl_b32 s45, s30, 9
    v_cmp_gt_u32 vcc, 32, v0
    s_and_saveexec_b64 s[46:47], vcc
    buffer_store_dwordx4 v[60:63], v4, s[40:43], s45 offen%s
    s_mov_b64 exec, s[46:47]
    """ % WT)
    srd(k, 36, 'ws', WS_ST0, 16 * KB)
    code_pf(k, 'ln1_kernel', 'L_qkv_epi', 8192)
    mark(k, 0)
    k.e('s_waitcnt vmcnt(0)')
    mark(k, 1)
    X = 24
    for d in range(16): unpack(k, X + 2 * d, X + 2 * d + 1, 8 + d)
    MU = [56, 58]; VA = [57, 59]
    for r in range(2):
        k.e('v_add_f32 v%d, v%d, v%d' % (MU[r], X + 16 * r, X + 16 * r + 1))
        for e in range(2, 16): k.e('v_add_f32 v%d, v%d, v%d' % (MU[r], MU[r], X + 16 * r + e))
    red_lanes(k, MU, [8, 9], rors=(8, 4, 2, 1))
    for r in range(2):
        k.e('v_mul_f32 v%d, %s, v%d' % (MU[r], hx(1.0 / 1024), MU[r]))
        for e in range(16):
            k.e('v_sub_f32 v8, v%d, v%d' % (X + 16 * r + e, MU[r]))
            k.e(('v_mul_f32 v%d, v8, v8' if e == 0 else 'v_fmac_f32 v%d, v8, v8') % VA[r])
    red_lanes(k, VA, [8, 9], rors=(8, 4, 2, 1))
    for r in range(2):
        k.e('v_mul_f32 v%d, %s, v%d' % (VA[r], hx(1.0 / 1024), VA[r]))
        round_bf16_pair(k, MU[r], VA[r], 8)
        k.e('v_add_f32 v%d, %s, v%d' % (VA[r], hx(1e-5), VA[r]))
    round_bf16_pair(k, VA[0], VA[1], 8)
    k.e('v_sqrt_f32 v57, v57')
    k.e('v_sqrt_f32 v59, v59')
    k.e('s_nop 0')
    round_bf16_pair(k, VA[0], VA[1], 8)
    k.e("""
    v_rcp_f32 v57, v57
    v_rcp_f32 v59, v59
    """)
    mark(k, 2)
    k.e("""
    v_lshlrev_b32 v2, 4, v2            ; wave*16
    s_lshl_b32 s45, s30, 8
    s_mov_b64 exec, 1
    buffer_store_dwordx4 v[56:59], v2, s[36:39], s45 offen%s
    """ % WT)
    finish(k)
    k.vgpr = 64
    return k

def k_ln1():
    k = Kern('ln1', 256, 512, 8192)
    prologue(k)
    k.e("""
    v_and_b32 v1, 7, v0                ; row in group
    v_lshrrev_b32 v2, 3, v0            ; cb
    s_lshr_b32 s30, s2, 2              ; rb
    s_and_b32 s31, s2, 3
    s_lshl_b32 s30, s30, 16
    s_lshl_b32 s31, s31, 7
    s_add_u32 s30, s30, s31
    v_lshlrev_b32 v4, 10, v2
    v_lshl_add_u32 v4, v1, 4, v4       ; XF offset of granule h=0 (rel. s30)
    v_lshlrev_b32 v6, 6, v2            ; lds offset = cb*64
    s_lshl_b32 s44, s2, 14
    v_lshlrev_b32 v7, 11, v1
    v_lshl_add_u32 v7, v2, 5, v7
    v_lshlrev_b32 v3, 3, v1
    s_lshl_b32 s45, s2, 6
    s_add_u32 s45, s45, %d
    v_lshlrev_b32 v5, 4, v0            ; tid*16
    s_mov_b32 s46, %d
    s_mov_b32 s47, %d
    s_waitcnt lgkmcnt(0)
    """ % (WS_ST0, WS_MODP, WS_MODP + 6144 * 4))
    srd(k, 40, 'ws', 0, 256 * KB); srd(k, 32, 'x')
    k.e("""
    buffer_load_dwordx4 v[32:35], v5, s[40:43], s46 offen
    buffer_load_dwordx4 v[36:39], v5, s[40:43], s47 offen
    buffer_load_dwordx4 v[8:11], v7, s[32:35], s44 offen
    buffer_load_dwordx4 v[12:15], v7, s[32:35], s44 offen offset:16
    buffer_load_dwordx2 v[64:65], v3, s[40:43], s45 offen
    ; 16 more mod values per WG (cols 2048 + 16*wg + lane%%16)
    v_and_b32 v66, 15, v0
    v_lshlrev_b32 v66, 2, v66
    s_lshl_b32 s48, s2, 6
    s_add_u32 s48, s48, 8192
    s_add_u32 s49, s48, s46
    s_add_u32 s50, s48, s47
    buffer_load_dword v67, v66, s[40:43], s49 offen
    buffer_load_dword v68, v66, s[40:43], s50 offen
    s_mul_i32 s51, s2, %d
    """ % (24 * KB))
    srd(k, 36, 'wqkv')
    for p in range(3):
        k.e('buffer_load_dwordx4 %s, v5, s[36:39], s51 offen' % vr(72 + 4 * p, 4))
        k.e('s_add_u32 s51, s51, 8192')
    srd(k, 36, 'ws', WS_H, 4 * MB)
    k.e('v_cmp_le_u32 vcc, 256, v0')
    k.e('s_nop 0')
    k.e('s_waitcnt vmcnt(8)')
    k.e('v_cndmask_b32 v40, 0, 1.0, vcc')
    for e in range(4): k.e('v_add_f32 v%d, v%d, v%d' % (32 + e, 32 + e, 36 + e))
    for d in range(2): round_bf16_pair(k, 32 + 2 * d, 33 + 2 * d, 36)
    for e in range(4): k.e('v_add_f32 v%d, v%d, v40' % (32 + e, 32 + e))
    for d in range(2): round_bf16_pair(k, 32 + 2 * d, 33 + 2 * d, 36)
    k.e('ds_write_b128 v5, v[32:35]')
    k.e('s_waitcnt vmcnt(5)')
    X = 16
    for d in range(8): unpack(k, X + 2 * d, X + 2 * d + 1, 8 + d)
    k.e('s_waitcnt lgkmcnt(0)')
    k.e('s_barrier')
    for q in range(4): k.e('ds_read_b128 %s, v6 offset:%d' % (vr(32 + 4 * q, 4), 4096 + q * 16))
    for q in range(4): k.e('ds_read_b128 %s, v6 offset:%d' % (vr(48 + 4 * q, 4), q * 16))
    for e in range(16): k.e('v_sub_f32 v%d, v%d, v64' % (X + e, X + e))
    for d in range(8): round_bf16_pair(k, X + 2 * d, X + 2 * d + 1, 8 + d)
    for e in range(16): k.e('v_mul_f32 v%d, v%d, v65' % (X + e, X + e))
    for d in range(8): round_bf16_pair(k, X + 2 * d, X + 2 * d + 1, 8 + d)
    k.e('s_waitcnt lgkmcnt(0)')
    for e in range(16): k.e('v_mul_f32 v%d, v%d, v%d' % (X + e, X + e, 32 + e))
    for d in range(8): round_bf16_pair(k, X + 2 * d, X + 2 * d + 1, 8 + d)
    for e in range(16): k.e('v_add_f32 v%d, v%d, v%d' % (X + e, X + e, 48 + e))
    outreg = [8, 9, 12, 13, 10, 11, 14, 15]
    for d in range(8): k.e('v_cvt_pk_bf16_f32 v%d, v%d, v%d' % (outreg[d], X + 2 * d, X + 2 * d + 1))
    k.e('buffer_store_dwordx4 v[8:11], v4, s[36:39], s30 offen' + WT)
    k.e('buffer_store_dwordx4 v[12:15], v4, s[36:39], s30 offen offset:512' + WT)
    k.e("""
    s_lshr_b32 s52, s2, 6
    s_cmp_eq_u32 s52, 2
    s_cselect_b32 s52, 1.0, 0
    v_cmp_gt_u32 vcc, 16, v0
    s_and_saveexec_b64 s[54:55], vcc
    s_cbranch_execz %s
    s_waitcnt vmcnt(5)
    v_add_f32 v67, v67, v68
    v_cvt_pk_bf16_f32 v67, v67, v67
    v_lshlrev_b32 v67, 16, v67
    v_add_f32 v67, s52, v67
    v_cvt_pk_bf16_f32 v67, v67, v67
    v_lshlrev_b32 v67, 16, v67
    buffer_store_dword v67, v66, s[40:43], s48 offen%s
    """ % (k.endl, WT))
    finish(k)
    k.vgpr = 84
    return k

def log2(n):
    l = n.bit_length() - 1
    assert 1 << l == n
    return l
class G: pass

def k_gemm(name, GM, GN, bm_log2, xm_log2, bn, TM, TN, WM, WN, K, KS, NS, X, Y, pre, pre2, epi, swap=(), aux=None, auxsz=0, pf=None, aux_end=None, side=None, nxt=None, cpfb=16384):
    g = G()
    NS = env('NS_' + name, NS)
    mb = TM // WM // 32; nb = TN // WN // 32
    S = KS // 16
    xb = TM * KS * 2; yb = TN * KS * 2; STAGE = xb + yb
    nst = K // KS
    k = Kern(name, 256 if pf else (GM * GN + side[0] if side else GM * GN), 512, NS * STAGE + auxsz)
    g.k = k; g.mb = mb; g.nb = nb; g.TM = TM; g.TN = TN; g.AUX = NS * STAGE
    prologue(k)
    k.e('''
    v_lshrrev_b32 v2, 6, v0
    v_and_b32 v1, 63, v0               ; lane
    v_readfirstlane_b32 s46, v2
    s_and_b32 s47, s2, 7               ; xcd
    s_lshr_b32 s48, s2, 3              ; idx
    s_and_b32 s30, s47, %d
    s_lshl_b32 s30, s30, %d
    s_and_b32 s49, s48, %d
    s_add_u32 s30, s30, s49            ; tm
    s_lshr_b32 s31, s47, %d
    s_mul_i32 s31, s31, %d
    s_lshr_b32 s49, s48, %d
    s_add_u32 s31, s31, s49            ; tn
    ''' % ((1 << xm_log2) - 1, bm_log2, (1 << bm_log2) - 1, xm_log2, bn, bm_log2))
    lcomp = 'L_%s_comp' % name
    if pf or side:
        k.e('s_cmp_ge_u32 s2, %d' % (GM * GN))
        k.e('s_cbranch_scc1 L_%s_pf' % name)
    k.e('s_cmp_ge_u32 s46, 4')
    k.e('s_cbranch_scc1 %s' % lcomp)
    nx = xb // 1024 // 4; ny = yb // 1024 // 4
    assert nx * 4096 == xb and ny * 4096 == yb
    VX = 8; VY = VX + nx
    g.LV = VY + ny
    if X[0] == 'xf':
        C = X[2]; ncb = C // 16
        assert S % nx == 0 or nx % S == 0
        k.e('s_mul_i32 s50, s30, %d' % (TM // 32 * ncb * 1024))
        k.e('s_mul_i32 s51, s46, %d' % nx)
        k.e('s_lshr_b32 s52, s51, %d' % log2(S))
        k.e('s_and_b32 s51, s51, %d' % (S - 1))
        k.e('s_mul_i32 s52, s52, %d' % (ncb * 1024))
        k.e('s_lshl_b32 s51, s51, 10')
        k.e('s_add_u32 s50, s50, s52')
        k.e('s_add_u32 s50, s50, s51')
        k.e('v_lshl_add_u32 v%d, v1, 4, s50' % VX)
        for j in range(1, nx):
            k.e('v_add_u32 v%d, %d, v%d' % (VX + j, (j // S) * ncb * 1024 + (j % S) * 1024, VX))
        xadv = S * 1024
    else:
        ld = X[2]
        assert nx % 2 == 0
        k.e('s_mul_i32 s50, s30, %d' % (TM * ld))
        k.e('s_mul_i32 s51, s46, %d' % (nx * 8 * ld))
        k.e('s_add_u32 s50, s50, s51')
        k.e('v_lshrrev_b32 v2, 3, v1')
        k.e('v_lshl_add_u32 v2, v2, %d, s50' % log2(ld))
        k.e('v_and_b32 v3, 7, v1')
        k.e('v_lshrrev_b32 v4, 4, v1')
        k.e('v_xor_b32 v5, v4, v3')
        k.e('v_lshl_add_u32 v%d, v5, 4, v2' % VX)
        k.e('v_xor_b32 v5, 64, v%d' % VX)
        k.e('v_add_u32 v%d, %d, v5' % (VX + 1, 8 * ld))
        for j in range(2, nx):
            k.e('v_add_u32 v%d, %d, v%d' % (VX + j, (j - j % 2) * 8 * ld, VX + j % 2))
        xadv = KS * 2
    k.e('''
    v_lshrrev_b32 v2, 4, v1            ; u
    v_bfe_u32 v3, v1, 2, 2             ; (i>>2)&3
    v_and_b32 v4, 3, v1                ; i&3
    ''')
    if Y[0] == 'w':
        ld = Y[2]
        NP = TN // 64
        assert ny % NP == 0
        k.e('v_lshrrev_b32 v5, 1, v2')
        k.e('v_lshl_add_u32 v5, v5, 2, v3')
        k.e('v_mul_u32_u24 v5, %d, v5' % ld)
        k.e('v_and_b32 v6, 1, v2')
        k.e('v_lshl_add_u32 v5, v6, 6, v5')
        k.e('v_lshl_add_u32 v5, v4, 4, v5')
        if Y[3] == 'qkv': tstride, segs = 128, [0, 2048, 4096]
        elif Y[3]: tstride, segs = Y[3]
        else: tstride, segs = TN * 2, [p * 128 for p in range(NP)]
        k.e('s_mul_i32 s50, s46, %d' % (ny // NP * 8 * ld))
        k.e('s_mul_i32 s51, s31, %d' % tstride)
        k.e('s_add_u32 s50, s50, s51')
        k.e('v_add_u32 v5, s50, v5')
        for j in range(ny):
            k.e('v_add_u32 v%d, %d, v5' % (VY + j, (j // NP) * 8 * ld + segs[j % NP]))
        yadv = KS * ld
    else:
        C = Y[2]; ncb = C // 16
        NB = TN // 32
        assert ny == NB and S == 4
        k.e('v_lshl_add_u32 v5, v2, 2, v4')
        k.e('v_lshlrev_b32 v5, 4, v5')
        k.e('v_lshl_add_u32 v5, v3, 9, v5')
        k.e('s_lshr_b32 s50, s46, 1')
        k.e('s_mul_i32 s50, s50, %d' % (ncb * 1024))
        k.e('s_and_b32 s51, s46, 1')
        k.e('s_lshl_b32 s51, s51, 8')
        k.e('s_add_u32 s50, s50, s51')
        k.e('s_mul_i32 s51, s31, %d' % (TN // 16 * 1024))
        k.e('s_add_u32 s50, s50, s51')
        k.e('v_add_u32 v%d, s50, v5' % VY)
        for j in range(1, ny):
            k.e('v_add_u32 v%d, %d, v%d' % (VY + j, j * 2048, VY))
        yadv = 2 * ncb * 1024
    k.e('s_mul_i32 s55, s46, %d' % (nx * 1024))
    k.e('s_mul_i32 s56, s46, %d' % (ny * 1024))
    k.e('s_add_u32 s56, s56, %d' % xb)
    per = nx + ny
    assert per * NS <= 55 and nst > NS
    k.e('s_mov_b32 s57, 0')
    k.e('s_mov_b32 s58, 0')
    k.e('s_mov_b32 s59, 0')
    k.e('s_add_u32 s60, s55, %d' % (NS * STAGE))
    k.e('s_waitcnt lgkmcnt(0)')
    mark(k, 0)
    if Y[0] == 'w': srd(k, 36, Y[1])
    else: srd(k, 36, 'ws', Y[1], 2048 * Y[2] * 2)
    if X[0] == 'xf': srd(k, 32, 'ws', X[1], 2048 * X[2] * 2)
    else: srd(k, 32, X[1])
    ll = 'L_%s_lloop' % name
    k.e('s_branch %s_issue' % ll)
    k.label(ll)
    I0 = env('I0_' + name, 2)
    k.e('s_cmp_ge_u32 s59, %d' % NS)
    k.e('s_cbranch_scc1 %s_reg' % ll)
    k.e('s_cmp_lg_u32 s59, %d' % I0)
    k.e('s_cbranch_scc1 %s_issue' % ll)
    mark(k, 1)
    k.e('s_waitcnt vmcnt(%d)' % (per * (I0 - 1)))
    mark(k, 2)
    k.e('s_barrier')
    k.e('s_branch %s_issue' % ll)
    k.label(ll + '_reg')
    k.e('s_waitcnt vmcnt(%d)' % (per * (NS - 2)))
    k.e('s_barrier')
    assert I0 < NS
    k.label(ll + '_issue')
    for j in range(ny):
        k.e('s_add_u32 m0, s56, %d' % (j * 1024))
        k.e('s_nop 0')
        k.e('buffer_load_dwordx4 v%d, s[36:39], s58 offen lds' % (VY + j))
    for j in range(nx):
        k.e('s_add_u32 m0, s55, %d' % (j * 1024))
        k.e('s_nop 0')
        k.e('buffer_load_dwordx4 v%d, s[32:35], s57 offen lds' % (VX + j))
    k.e('s_add_u32 s57, s57, %d' % xadv)
    k.e('s_add_u32 s58, s58, %d' % yadv)
    k.e('s_add_u32 s55, s55, %d' % STAGE)
    k.e('s_add_u32 s56, s56, %d' % STAGE)
    k.e('s_cmp_eq_u32 s55, s60')
    k.e('s_cselect_b32 s61, %d, 0' % (NS * STAGE))
    k.e('s_sub_u32 s55, s55, s61')
    k.e('s_sub_u32 s56, s56, s61')
    k.e('s_add_u32 s59, s59, 1')
    k.e('s_cmp_lt_u32 s59, %d' % nst)
    k.e('s_cbranch_scc1 %s' % ll)
    naux = aux(g) if aux else 0
    naux += code_pf(k, 'L_%s_epi' % name, ('L_%s_epi' % nxt) if nxt else k.endl, cpfb)
    for st in range(nst - NS + 1, nst):
        k.e('s_waitcnt vmcnt(%d)' % (per * (nst - st - 1) + naux if st < nst - 1 else 0))
        if st == nst - 1 and aux_end: aux_end(g)
        k.e('s_barrier')
    endpgm(k)
    k.label(lcomp)
    k.e('s_setprio 1')
    k.e('s_sub_u32 s46, s46, 4')
    k.e('s_lshr_b32 s50, s46, %d' % log2(WN))
    k.e('s_and_b32 s51, s46, %d' % (WN - 1))
    ACC = 8
    nacc = mb * nb * 16
    FR = ACC + nacc
    fsz = (mb + nb) * 4
    XA = FR + 2 * fsz
    nxa = S if X[0] == 'rm' else 1
    XB = XA; XC = XA + nxa; YB = XC + nxa; YC = YB + 1
    g.free = YC + 1
    g.FR = FR; g.nfr = 2 * fsz
    g.acc = lambda i, j: ACC + (i * nb + j) * 16
    k.e('v_and_b32 v3, 31, v1')
    k.e('v_lshrrev_b32 v4, 5, v1')
    if X[0] == 'xf':
        k.e('s_mul_i32 s52, s50, %d' % (mb * S * 1024))
        k.e('v_lshl_add_u32 v%d, v1, 4, s52' % XB)
    else:
        assert KS == 64
        k.e('s_mul_i32 s52, s50, %d' % (mb * 4096))
        k.e('v_bfe_u32 v5, v3, 1, 3')
        k.e('v_lshl_add_u32 v6, v3, 7, s52')
        for ss in range(S):
            k.e('v_add_u32 v7, %d, v4' % (2 * ss))
            k.e('v_xor_b32 v7, v7, v5')
            k.e('v_lshl_add_u32 v%d, v7, 4, v6' % (XB + ss))
    k.e('''
    v_lshlrev_b32 v5, 9, v4            ; h*512
    v_bfe_u32 v6, v1, 2, 2             ; r
    v_lshl_add_u32 v5, v6, %d, v5
    v_bfe_u32 v6, v1, 4, 1             ; G&1
    v_lshl_add_u32 v5, v6, %d, v5
    v_bfe_u32 v6, v1, 1, 1             ; c>>1
    v_and_b32 v7, 1, v1                ; c&1
    ''' % ((6, 5) if Y[0] == 'w' else (4, 7)))
    if Y[0] == 'w':
        k.e('v_lshl_add_u32 v5, v6, 4, v5')
        k.e('v_lshl_add_u32 v5, v7, 3, v5')
        NP = TN // 64
        if Y[3] == 'qkv': k.e('s_lshl_b32 s52, s51, 8')
        else:
            assert nb % 2 == 0
            k.e('s_mul_i32 s52, s51, %d' % (nb // 2 * 1024))
        def yoff(j, ss, rd):
            if Y[3] == 'qkv': return ((2 * ss + rd) * NP + j) * 1024
            return ((2 * ss + rd) * NP + j // 2) * 1024 + (j % 2) * 256
    else:
        k.e('v_lshl_add_u32 v5, v7, 6, v5')
        k.e('v_lshl_add_u32 v5, v6, 3, v5')
        NB = TN // 32
        k.e('s_mul_i32 s52, s51, %d' % (nb * 1024))
        def yoff(j, ss, rd):
            return (ss * NB + j) * 1024 + rd * 256
    k.e('s_add_u32 s52, s52, %d' % xb)
    k.e('v_add_u32 v%d, s52, v5' % YB)
    k.e('s_waitcnt lgkmcnt(0)')
    mark(k, 0)
    pre(g)
    def xf(s, i): return FR + s * fsz + i * 4
    def yf(s, j): return FR + s * fsz + (mb + j) * 4
    def reads(ss):
        st = ss % 2
        xr = []; yr = []
        for i in range(mb):
            if X[0] == 'xf':
                xr.append('ds_read_b128 %s, v%d offset:%d' % (vr(xf(st, i), 4), XC, (i * S + ss) * 1024))
            else:
                xr.append('ds_read_b128 %s, v%d offset:%d' % (vr(xf(st, i), 4), XC + ss, i * 4096))
        for j in range(nb):
            for rd in range(2):
                yr.append('ds_read_b64_tr_b16 %s, v%d offset:%d' % (vr(yf(st, j) + 2 * rd, 2), YC, yoff(j, ss, rd)))
        return [xr[0]] + yr[:2] + xr[1:] + yr[2:]
    def mfmas(ss, first):
        st = ss % 2
        out = []
        for j in range(nb):
            for i in range(mb):
                a = g.acc(i, j)
                c = '0' if first else vr(a, 16)
                p, q = (xf(st, i), yf(st, j)) if j in swap else (yf(st, j), xf(st, i))
                out.append('v_mfma_f32_32x32x16_bf16 %s, %s, %s, %s' % (vr(a, 16), vr(p, 4), vr(q, 4), c))
        return out
    def setaddr():
        for t in range(nxa): k.e('v_add_u32 v%d, s53, v%d' % (XC + t, XB + t))
        k.e('v_add_u32 v%d, s53, v%d' % (YC, YB))
    def interleave(ms, rs, per=3):
        ri = 0
        for m in ms:
            k.e(m)
            for _ in range(per):
                if ri < len(rs): k.e(rs[ri]); ri += 1
        while ri < len(rs): k.e(rs[ri]); ri += 1
    def stage(first, last):
        for ss in range(S):
            if ss == S - 1 and not last:
                k.e('s_add_u32 s53, s53, %d' % STAGE)
                k.e('s_cmp_eq_u32 s53, %d' % (NS * STAGE))
                k.e('s_cselect_b32 s53, 0, s53')
                setaddr()
            k.e('s_waitcnt lgkmcnt(0)')
            if ss < S - 1: interleave(mfmas(ss, first and ss == 0), reads(ss + 1))
            elif last: interleave(mfmas(ss, False), [])
            else:
                k.e('s_barrier')
                interleave(mfmas(ss, False), reads(0))
    k.e('s_mov_b32 s53, 0')
    setaddr()
    k.e('s_barrier')
    mark(k, 1)
    for r in reads(0): k.e(r)
    stage(True, False)
    pre2(g)
    UNR = 2 if (nst - 2) % 2 == 0 else 1
    k.e('s_mov_b32 s54, %d' % ((nst - 2) // UNR))
    lp = 'L_%s_loop' % name
    k.label(lp)
    for _ in range(UNR): stage(False, False)
    k.e('s_sub_u32 s54, s54, 1')
    k.e('s_cmp_lg_u32 s54, 0')
    k.e('s_cbranch_scc1 %s' % lp)
    k.label('L_%s_epi' % name)
    stage(False, True)
    mark(k, 2)
    epi(g)
    if side:
        endpgm(k)
        k.label('L_%s_pf' % name)
        k.e('s_sub_u32 s30, s2, %d' % (GM * GN))
        side[1](k)
    if pf:
        endpgm(k)
        k.label('L_%s_pf' % name)
        npf = 256 - GM * GN
        per_wg = SIZES[pf] // npf
        assert per_wg % (8192 * 2) == 0
        k.e('s_sub_u32 s30, s2, %d' % (GM * GN))
        k.e('s_mul_i32 s30, s30, %d' % per_wg)
        k.e('v_lshlrev_b32 v2, 4, v0')
        k.e('s_mov_b32 s31, %d' % (per_wg // 16384))
        k.e('s_waitcnt lgkmcnt(0)')
        srd(k, 32, pf)
        k.label('L_%s_pfl' % name)
        k.e('buffer_load_dwordx4 v[8:11], v2, s[32:35], s30 offen')
        k.e('s_add_u32 s30, s30, 8192')
        k.e('buffer_load_dwordx4 v[12:15], v2, s[32:35], s30 offen')
        k.e('s_add_u32 s30, s30, 8192')
        k.e('s_waitcnt vmcnt(6)')
        k.e('s_sub_u32 s31, s31, 1')
        k.e('s_cmp_lg_u32 s31, 0')
        k.e('s_cbranch_scc1 L_%s_pfl' % name)
    finish(k)
    k.vgpr = g.free
    assert k.vgpr <= 256, k.vgpr
    return k

def alloc(g, n, align=4):
    b = (g.free + align - 1) // align * align
    g.free = b + n
    return b
def nop(g): pass

def store_xf_tile(g, a, T, voff, srdn, soff, imm):
    k = g.k
    for d in range(8):
        k.e('v_cvt_pk_bf16_f32 v%d, v%d, v%d' % (T + d, a + 2 * d, a + 2 * d + 1))
    k.e('buffer_store_dwordx4 %s, v%d, %s, %s offen offset:%d%s' % (vr(T, 4), voff, sr(srdn), soff, imm, WT))
    k.e('buffer_store_dwordx4 %s, v%d, %s, %s offen offset:%d%s' % (vr(T + 4, 4), voff, sr(srdn), soff, imm + 1024, WT))

def pk(op, d, *src, sel=None):
    s = 'v_pk_%s_f32 %s' % (op, vr(d, 2))
    hi = []
    for x in src:
        if isinstance(x, int): s += ', ' + vr(x, 2); hi.append(1)
        elif isinstance(x, tuple): s += ', ' + vr(x[0], 2); hi.append(0)
        elif x.startswith('s['): s += ', ' + x; hi.append(1)
        else: s += ', ' + x; hi.append(0)
    if 0 in hi: s += ' op_sel_hi:[%s]' % ','.join(map(str, hi))
    return s

def k_qkv():
    def pre(g):
        k = g.k
        srd(k, 32, 'ws', WS_Q, 4 * MB); srd(k, 36, 'ws', WS_KV, 8 * MB)
        g.L16 = alloc(g, 1, 1)
        k.e('v_lshlrev_b32 v%d, 4, v1' % g.L16)
        k.e('''
        s_lshl_b32 s60, s31, 1
        s_add_u32 s60, s60, s51
        s_lshl_b32 s60, s60, 6
        s_lshl_b32 s61, s30, 2
        s_add_u32 s60, s60, s61
        s_lshl_b32 s61, s50, 1
        s_add_u32 s60, s60, s61           ; head*64 + rb0
        s_lshl_b32 s61, s60, 11           ; Q offset
        s_lshl_b32 s62, s60, 12           ; KV offset
        s_add_u32 s63, s62, 4096
        s_mov_b32 s66, %s
        s_mov_b32 s67, %s
        ''' % ((hx(32 ** -0.5 * LOG2E),) * 2))
    def epi(g):
        k = g.k
        T = g.FR
        k.e('s_nop 7')
        n = 0
        for i in range(2):
            a = g.acc(i, 0)
            for r in range(0, 16, 2): k.e(pk('mul', a + r, a + r, 's[66:67]'))
            store_xf_tile(g, a, T + 8 * n, g.L16, 32, 's61', i * 2048); n += 1
        for j in (1, 2):
            for i in range(2):
                store_xf_tile(g, g.acc(i, j), T + 8 * (n % 5), g.L16, 36, 's62' if i == 0 else 's63', (j - 1) * 2048); n += 1
    return k_gemm('qkv', 16, 16, 3, 1, 4, 128, 192, 2, 2, 1024, 32, 4, ('xf', WS_H, 1024), ('w', 'wqkv', 6144, 'qkv'), pre, nop, epi, swap=(2,), nxt='attn', cpfb=8192)

def k_proj(name, K, X, wname, final):
    def aux(g):
        k = g.k; V = g.LV
        srd(k, 40, 'ws', WS_MOD, 6144 * 4)
        k.e('''
        v_and_b32 v2, 31, v1
        v_lshrrev_b32 v3, 5, v1
        v_lshlrev_b32 v2, 4, v2
        v_lshl_add_u32 v2, v3, 13, v2      ; +2 rows for the upper half
        s_lshl_b32 s62, s31, 9
        s_add_u32 s62, s62, %d
        s_mov_b32 m0, %d
        s_nop 0
        buffer_load_dwordx4 v2, s[40:43], s62 offen lds
        ''' % ((5 if final else 2) * 4096, g.AUX + 16 * KB))
        if final: return 1
        srd(k, 40, 'x')
        k.e('''
        v_lshrrev_b32 v2, 4, v1
        v_and_b32 v3, 15, v1
        s_lshl_b32 s62, s30, 17            ; tm*64*2048
        s_lshl_b32 s63, s31, 8
        s_add_u32 s62, s62, s63
        s_lshl_b32 s63, s46, 15            ; lw*16 rows
        s_add_u32 s62, s62, s63
        s_lshl_b32 s63, s46, 12
        s_add_u32 s63, s63, %d
        ''' % g.AUX)
        for j in range(4):
            k.e('v_add_u32 v4, %d, v2' % (4 * j))
            k.e('v_xor_b32 v5, v4, v3')
            k.e('v_lshlrev_b32 v5, 4, v5')
            k.e('v_lshl_add_u32 v5, v4, 11, v5')
            k.e('s_add_u32 m0, s63, %d' % (j * 1024))
            k.e('s_nop 0')
            k.e('buffer_load_dwordx4 v5, s[40:43], s62 offen lds')
        return 5
    def pre(g):
        k = g.k
        g.L16 = alloc(g, 1, 1); g.RA = alloc(g, 1, 1); g.CA = alloc(g, 1, 1); g.TA = alloc(g, 1, 1)
        g.RES = alloc(g, 16); g.GA = alloc(g, 32); g.G2 = alloc(g, 32) if not final else None
        srd(k, 36, 'ws', WS_X1, 8 * MB)
        if final: srd(k, 32, 'out')
        else: srd(k, 32, 'ws', WS_ST1, 256 * KB)
        k.e('v_lshlrev_b32 v%d, 4, v1' % g.L16)
        k.e('''
        s_lshl_b32 s60, s31, 7
        s_lshl_b32 s61, s51, 6
        s_add_u32 s60, s60, s61           ; col0
        s_lshl_b32 s61, s30, 1
        s_add_u32 s61, s61, s50           ; rb
        s_lshl_b32 s62, s61, 16
        s_lshl_b32 s63, s60, 1
        s_add_u32 s63, s63, s62           ; row-major byte offset of (row0,col0)
        s_lshl_b32 s64, s60, 6
        s_add_u32 s64, s64, s62           ; XF offset
        s_add_u32 s65, s64, %d            ; X1S offset
        ; tile image address: row*256 + ((wn*8) ^ (row%%16))*16 + h*8
        s_lshl_b32 s66, s50, 13
        s_add_u32 s66, s66, %d
        v_and_b32 v5, 15, v3
        s_lshl_b32 s67, s51, 3
        v_xor_b32 v5, s67, v5
        v_lshlrev_b32 v5, 4, v5
        v_lshl_add_u32 v5, v3, 8, v5
        v_lshl_add_u32 v5, v4, 3, v5
        v_add_u32 v%d, s66, v5
        ; column vector address: wn*256 + h*16
        s_lshl_b32 s67, s51, 8
        s_add_u32 s67, s67, %d
        v_lshl_add_u32 v%d, v4, 4, s67
        ''' % (4 * MB, g.AUX, g.RA, g.AUX + 16 * KB, g.CA))
    def pre2(g):
        k = g.k
        if final:
            for j in range(2):
                for t in range(2):
                    k.e('buffer_load_dwordx4 %s, v%d, s[36:39], s64 offen offset:%d' % (vr(g.RES + 8 * j + 4 * t, 4), g.L16, (2 * j + t) * 1024))
    def epi(g):
        k = g.k
        for j in range(2):
            for q in range(4):
                k.e('ds_read_b128 %s, v%d offset:%d' % (vr(g.GA + 16 * j + 4 * q, 4), g.CA, j * 128 + q * 32))
        if not final:
            for j in range(2):
                for q in range(4):
                    k.e('v_xor_b32 v%d, %d, v%d' % (g.TA, (j * 4 + q) * 16, g.RA))
                    k.e('ds_read_b64 %s, v%d' % (vr(g.RES + 8 * j + 2 * q, 2), g.TA))
            k.e('s_waitcnt lgkmcnt(0)')
            for j in range(2):
                for q in range(4):
                    k.e('ds_read_b128 %s, v%d offset:%d' % (vr(g.G2 + 16 * j + 4 * q, 4), g.CA, 512 + j * 128 + q * 32))
        else:
            k.e('s_nop 3')
            k.e('s_waitcnt vmcnt(0) lgkmcnt(0)')
        T = g.FR
        for j in range(2):
            a = g.acc(0, j)
            for d in range(8):
                unpack(k, T + 2 * (d % 4), T + 2 * (d % 4) + 1, g.RES + 8 * j + d)
                k.e(pk('fma', a + 2 * d, a + 2 * d, g.GA + 16 * j + 2 * d, T + 2 * (d % 4)))
            if final:
                for d in range(8):
                    k.e('v_cvt_pk_bf16_f32 v%d, v%d, v%d' % (g.RES + 8 * j + d, a + 2 * d, a + 2 * d + 1))
                for q in range(4):
                    k.e('v_xor_b32 v%d, %d, v%d' % (g.TA, (j * 4 + q) * 16, g.RA))
                    k.e('ds_write_b64 v%d, %s' % (g.TA, vr(g.RES + 8 * j + 2 * q, 2)))
            else:
                store_xf_tile(g, a, g.RES + 8 * j, g.L16, 36, 's64', j * 2048)
        if final:
            k.e('''
            v_lshrrev_b32 v5, 3, v1
            v_and_b32 v6, 7, v1
            s_lshl_b32 s67, s51, 3
            v_or_b32 v7, s67, v6
            v_xor_b32 v7, v7, v5
            v_lshlrev_b32 v7, 4, v7
            v_lshl_add_u32 v7, v5, 8, v7
            v_add_u32 v7, s66, v7              ; b=0 address
            v_xor_b32 v%d, 128, v7             ; rows 8..15: slot ^ 8
            v_lshlrev_b32 v5, 11, v5
            v_lshl_add_u32 v5, v6, 4, v5       ; global: row*2048 + c*16
            s_waitcnt lgkmcnt(0)
            ''' % g.TA)
            for b in range(4):
                k.e('ds_read_b128 %s, v%d offset:%d' % (vr(g.GA + 4 * b, 4), 7 if b % 2 == 0 else g.TA, b * 2048))
            for b in range(4):
                k.e('s_waitcnt lgkmcnt(%d)' % (3 - b))
                k.e('buffer_store_dwordx4 %s, v5, s[32:35], s63 offen%s' % (vr(g.GA + 4 * b, 4), os.environ.get('OUTFLAG', '')))
                k.e('s_add_u32 s63, s63, %d' % (8 * 2048))
        else:
            S1 = T + 8; S2 = T + 10
            a0 = g.acc(0, 0)
            k.e(pk('add', S1, a0, a0 + 2))
            k.e(pk('mul', S2, a0, a0))
            k.e(pk('fma', S2, a0 + 2, a0 + 2, S2))
            for r in range(4, 32, 2):
                k.e(pk('add', S1, S1, a0 + r))
                k.e(pk('fma', S2, a0 + r, a0 + r, S2))
            k.e('s_waitcnt lgkmcnt(0)')
            for j in range(2):
                a = g.acc(0, j)
                for d in range(8): k.e(pk('mul', a + 2 * d, a + 2 * d, g.G2 + 16 * j + 2 * d))
                store_xf_tile(g, a, g.GA + 8 * j, g.L16, 36, 's65', j * 2048)
            k.e('v_add_f32 v%d, v%d, v%d' % (S1, S1, S1 + 1))
            k.e('v_add_f32 v%d, v%d, v%d' % (S1 + 1, S2, S2 + 1))
            k.e('v_mov_b32 v%d, v%d' % (S2, S1))
            k.e('v_mov_b32 v%d, v%d' % (S2 + 1, S1 + 1))
            k.e('''
            s_lshl_b32 s66, s30, 4
            s_lshl_b32 s67, s31, 1
            s_add_u32 s66, s66, s67
            s_add_u32 s66, s66, s51
            s_lshl_b32 s66, s66, 9             ; (tm*16+part)*512
            s_lshl_b32 s67, s50, 8
            s_add_u32 s66, s66, s67
            v_lshlrev_b32 v5, 3, v3
            ''')
            k.e('v_permlane32_swap_b32 v%d, v%d' % (S1, S2))
            k.e('v_permlane32_swap_b32 v%d, v%d' % (S1 + 1, S2 + 1))
            k.e('s_nop 1')
            k.e(pk('add', S1, S1, S2))
            k.e('s_mov_b32 exec_hi, 0')
            k.e('buffer_store_dwordx2 %s, v5, s[32:35], s66 offen%s' % (vr(S1, 2), WT))
    return k_gemm(name, 32, 8, 3, 2, 4, 64, 128, 2, 2, K, 64, 4, X, ('w', wname, 2048, None), pre, pre2, epi, aux=aux, auxsz=17 * KB, nxt=None if final else 'win', cpfb=8192)

def stats_finish(k, S, n, R, M, T):
    k.e('v_mov_b32 v%d, v%d' % (T, S))
    k.e('v_mov_b32 v%d, v%d' % (T + 1, S + 1))
    k.e('s_nop 1')
    k.e('v_permlane32_swap_b32 v%d, v%d' % (S, T))
    k.e('v_permlane32_swap_b32 v%d, v%d' % (S + 1, T + 1))
    k.e('s_nop 1')
    k.e(pk('add', S, S, T))
    k.e('v_mul_f32 v%d, %s, v%d' % (S, hx(1.0 / n), S))
    k.e('v_mul_f32 v%d, v%d, v%d' % (T, S, S))
    k.e('v_mov_b32 v%d, %s' % (T + 1, hx(1.0 / n)))
    k.e('v_fma_f32 v%d, v%d, v%d, -v%d' % (S + 1, S + 1, T + 1, T))
    k.e('v_max_f32 v%d, 0, v%d' % (S + 1, S + 1))
    k.e('v_add_f32 v%d, %s, v%d' % (S + 1, hx(1e-5), S + 1))
    k.e('v_rsq_f32 v%d, v%d' % (R, S + 1))
    k.e('s_nop 0')
    k.e('v_mul_f32_e64 v%d, -v%d, v%d' % (M, S, R))

def uw_job(k):
    k.e("""
    v_lshrrev_b32 v2, 3, v0
    v_and_b32 v3, 7, v0
    v_lshlrev_b32 v4, 6, v2
    s_mov_b32 s31, %d
    v_mul_lo_u32 v5, v2, s31
    v_lshl_add_u32 v5, v3, 4, v5
    s_movk_i32 s44, %d
    s_movk_i32 s45, %d
    s_lshl_b32 s30, s30, 1
    s_waitcnt lgkmcnt(0)
    """ % (16 * 7168, 4 * 4096, 3 * 4096))
    srd(k, 36, 'w_in'); srd(k, 40, 'ws', 0, 64 * KB)
    AV = 72; SV = 88; UA = 104; WA = 112
    for q in range(4): k.e('buffer_load_dwordx4 %s, v4, s[40:43], s44 offen offset:%d' % (vr(AV + 4 * q, 4), q * 16))
    for q in range(4): k.e('buffer_load_dwordx4 %s, v4, s[40:43], s45 offen offset:%d' % (vr(SV + 4 * q, 4), q * 16))
    k.e('s_mov_b32 s50, 0')
    lp = k.newlabel('uw')
    k.label(lp)
    k.e('s_lshl_b32 s31, s30, 7')
    for j in range(16):
        k.e('buffer_load_dwordx4 %s, v5, s[36:39], s31 offen' % vr(8 + 4 * j, 4))
        k.e('s_add_u32 s31, s31, 7168')
    for j in range(16):
        k.e('s_waitcnt vmcnt(%d)' % (15 - j))
        for d in range(4):
            unpack(k, 6, 7, 8 + 4 * j + d)
            for acc, cf in ((UA, AV), (WA, SV)):
                op = 'v_mul_f32' if j == 0 else 'v_fmac_f32'
                k.e('%s v%d, v6, v%d' % (op, acc + 2 * d, cf + j))
                k.e('%s v%d, v7, v%d' % (op, acc + 2 * d + 1, cf + j))
    red_lanes(k, list(range(UA, UA + 16)), list(range(8, 24)))
    lskip = k.newlabel('uwskip')
    k.e("""
    s_lshl_b32 s47, s46, 9
    s_add_u32 s47, s47, s50
    v_lshl_add_u32 v2, v3, 5, s47      ; pass*4096 + wave*512 + chunk*32
    v_cmp_gt_u32 vcc, 8, v1
    s_and_saveexec_b64 s[48:49], vcc
    ds_write_b128 v2, v[104:107]
    ds_write_b128 v2, v[108:111] offset:16
    ds_write_b128 v2, v[112:115] offset:256
    ds_write_b128 v2, v[116:119] offset:272
    s_mov_b64 exec, s[48:49]
    s_waitcnt lgkmcnt(0)
    s_barrier
    s_cmp_ge_u32 s46, 2
    s_cbranch_scc1 %s
    v_lshl_add_u32 v2, v0, 2, s50      ; wave0: u cols, wave1: w0 cols
    """ % lskip)
    for w in range(8): k.e('ds_read_b32 v%d, v2 offset:%d' % (8 + w, w * 512))
    k.e('s_waitcnt lgkmcnt(0)')
    for w in range(1, 8): k.e('v_add_f32 v8, v8, v%d' % (8 + w))
    k.e("""
    v_min_u32 v8, -2, v8
    v_lshlrev_b32 v2, 2, v1
    s_lshl_b32 s31, s30, 8
    s_lshl_b32 s47, s46, 14
    s_add_u32 s31, s31, s47
    s_add_u32 s31, s31, %d
    buffer_store_dword v8, v2, s[40:43], s31 offen sc1
    s_waitcnt vmcnt(0)
    """ % WS_UW)
    k.label(lskip)
    k.e("""
    s_add_u32 s30, s30, 1
    s_add_u32 s50, s50, 4096
    s_cmp_lt_u32 s50, 8192
    s_cbranch_scc1 %s
    """ % lp)

def k_win():
    def uw_loads(g):
        g.k.e('buffer_load_dwordx4 v[24:27], v2, s[40:43], s62 offen sc1')
        g.k.e('buffer_load_dwordx4 v[28:31], v2, s[40:43], s63 offen sc1')
    def aux(g):
        k = g.k
        srd(k, 40, 'ws', WS_UW, 32 * KB)
        k.e("""
        v_and_b32 v2, 31, v1
        v_lshlrev_b32 v2, 4, v2
        v_add_u32 v3, 7168, v2
        v_cmp_gt_u32 vcc, 32, v1
        s_lshl_b32 s62, s31, 9
        s_add_u32 s63, s62, %d
        v_cndmask_b32 v2, v2, v3, vcc
        v_lshlrev_b32 v3, 4, v1
        v_add_u32 v3, %d, v3
        """ % (16 * KB, g.AUX))
        uw_loads(g)
        return 2
    def aux_end(g):
        k = g.k
        lp = k.newlabel('uwp'); lc = k.newlabel('uwc')
        k.e('s_branch %s' % lc)
        k.label(lp)
        uw_loads(g)
        k.e('s_waitcnt vmcnt(0)')
        k.label(lc)
        k.e("""
        v_max3_u32 v4, v24, v25, v26
        v_max3_u32 v4, v4, v27, v28
        v_max3_u32 v4, v4, v29, v30
        v_max_u32 v4, v4, v31
        v_cmp_eq_u32 vcc, -1, v4
        s_nop 4
        s_cbranch_vccnz %s
        ds_write_b128 v3, v[24:27]
        ds_write_b128 v3, v[28:31] offset:1024
        s_waitcnt lgkmcnt(0)
        """ % lp)
    def pre(g):
        k = g.k
        g.L16 = alloc(g, 1, 1); g.SA = alloc(g, 1, 1); g.GA = alloc(g, 1, 1); g.CA = alloc(g, 1, 1)
        g.R = alloc(g, 2, 2); g.M = alloc(g, 2, 2); g.P = alloc(g, 16)
        srd(k, 32, 'ws', WS_Z, 2 * ZSZ); srd(k, 36, 'ws', WS_ST1, 512 * KB)
        k.e('v_lshlrev_b32 v%d, 4, v1' % g.L16)
        k.e("""
        s_lshl_b32 s61, s30, 2
        s_add_u32 s61, s61, s50           ; rb32
        s_lshr_b32 s64, s61, 1
        s_lshl_b32 s64, s64, 13           ; rb64*8192
        s_and_b32 s65, s61, 1
        s_lshl_b32 s65, s65, 8
        s_add_u32 s64, s64, s65           ; x1 stats offset
        s_lshl_b32 s65, s61, 12
        s_add_u32 s65, s65, %d            ; granule offset (row block)
        s_lshl_b32 s66, s31, 8
        s_add_u32 s66, s66, s65           ; own granule
        s_mul_i32 s60, s61, %d
        s_lshl_b32 s61, s31, 13
        s_add_u32 s60, s60, s61           ; Z1 offset
        v_lshlrev_b32 v5, 3, v3
        v_lshl_add_u32 v%d, v4, 12, v5    ; h*8*512 + row*8
        v_mul_u32_u24 v6, %d, v4
        v_add_u32 v%d, v6, v5             ; h*7*256 + row*8
        v_lshlrev_b32 v%d, 4, v4
        v_add_u32 v%d, %d, v%d
        """ % (WS_G - WS_ST1, 112 * 1024, g.SA, 7 * 256, g.GA, g.CA, g.CA, g.AUX, g.CA))
    def pre2(g):
        k = g.k
        for p in range(8):
            k.e('buffer_load_dwordx2 %s, v%d, s[36:39], s64 offen offset:%d' % (vr(g.P + 2 * p, 2), g.SA, p * 512))
    def epi(g):
        k = g.k
        c1 = -2.0 * 0.7978845608028654 * LOG2E
        U = g.FR; W0 = g.FR + 16; T = g.FR + 32; PS = g.FR + 48
        def rd_uw(j):
            for q in range(4):
                k.e('ds_read_b128 %s, v%d offset:%d' % (vr(U + 4 * q, 4), g.CA, j * 128 + q * 32))
                k.e('ds_read_b128 %s, v%d offset:%d' % (vr(W0 + 4 * q, 4), g.CA, 1024 + j * 128 + q * 32))
        k.e('s_nop 7')
        rd_uw(0)
        k.e('s_mov_b32 s70, %s' % hx(c1 * 0.044715)); k.e('s_mov_b32 s71, s70')
        k.e('v_mov_b32 v6, %s' % hx(c1))
        k.e('s_waitcnt vmcnt(0)')
        for p in range(1, 8): k.e(pk('add', g.P, g.P, g.P + 2 * p))
        stats_finish(k, g.P, 1024, g.R, g.M, g.P + 2)
        S1 = g.P; S2 = g.P + 2
        GR = g.P + 2
        n = 0
        def poll_loads():
            for p in range(7):
                k.e('buffer_load_dwordx2 %s, v%d, s[36:39], s65 offen offset:%d sc1' % (vr(GR + 2 * p, 2), g.GA, p * 256))
        for j in range(8):
            a = g.acc(0, j)
            k.e('s_waitcnt lgkmcnt(0)')
            for r in range(0, 16, 2): k.e(pk('fma', T + r, U + r, (g.M,), W0 + r))
            if j < 7: rd_uw(j + 1)
            for r in range(0, 16, 2): k.e(pk('fma', a + r, a + r, (g.R,), T + r))
            for r in range(0, 16, 2): k.e(pk('mul', T + r, a + r, a + r))
            for r in range(0, 16, 2): k.e(pk('fma', T + r, T + r, 's[70:71]', (6,)))
            for r in range(0, 16, 2): k.e(pk('mul', T + r, T + r, a + r))
            for r in range(16): k.e('v_exp_f32 v%d, v%d' % (T + r, T + r))
            for r in range(0, 16, 2): k.e(pk('add', T + r, T + r, '1.0'))
            for r in range(16): k.e('v_rcp_f32 v%d, v%d' % (T + r, T + r))
            for r in range(0, 16, 2): k.e(pk('mul', a + r, a + r, T + r))
            if j >= 4:
                if j == 7: poll_loads()
                k.e('s_add_u32 s61, s60, %d' % ((j - 4) * 2048))
                store_xf_tile(g, a, PS + 8 * (n % 3), g.L16, 32, 's61', 0); n += 1
            else:
                for r in range(0, 16, 2):
                    if j == 0 and r == 0:
                        k.e(pk('add', S1, a, a + 2)); k.e(pk('mul', S2, a, a))
                    else:
                        if not (j == 0 and r == 2): k.e(pk('add', S1, S1, a + r))
                        k.e(pk('fma', S2, a + r, a + r, S2))
                if j == 3:
                    k.e('v_add_f32 v%d, v%d, v%d' % (S1, S1, S1 + 1))
                    k.e('v_add_f32 v%d, v%d, v%d' % (S1 + 1, S2, S2 + 1))
                    k.e('v_mov_b32 v%d, v%d' % (S2, S1))
                    k.e('v_mov_b32 v%d, v%d' % (S2 + 1, S1 + 1))
                    k.e('v_lshlrev_b32 v5, 3, v3')
                    k.e('s_nop 0')
                    k.e('v_permlane32_swap_b32 v%d, v%d' % (S1, S2))
                    k.e('v_permlane32_swap_b32 v%d, v%d' % (S1 + 1, S2 + 1))
                    k.e('s_nop 1')
                    k.e(pk('add', S1, S1, S2))
                    k.e('v_min_u32 v%d, -2, v%d' % (S1, S1))
                    k.e('v_min_u32 v%d, -2, v%d' % (S1 + 1, S1 + 1))
                    k.e('s_mov_b32 exec_hi, 0')
                    k.e('buffer_store_dwordx2 %s, v5, s[36:39], s66 offen sc1' % vr(S1, 2))
                    k.e('s_mov_b32 exec_hi, -1')
        lpoll = k.newlabel('poll'); lchk = k.newlabel('chk')
        k.e('s_waitcnt vmcnt(2)')
        k.e('s_branch %s' % lchk)
        k.label(lpoll)
        poll_loads()
        k.e('s_waitcnt vmcnt(0)')
        k.label(lchk)
        k.e('v_max_u32 v5, v%d, v%d' % (GR, GR + 1))
        for p in range(1, 7): k.e('v_max3_u32 v5, v5, v%d, v%d' % (GR + 2 * p, GR + 2 * p + 1))
        k.e('v_cmp_eq_u32 vcc, -1, v5')
        k.e('s_nop 4')
        k.e('s_cbranch_vccnz %s' % lpoll)
        mark(k, 3)
        for p in range(1, 7): k.e(pk('add', GR, GR, GR + 2 * p))
        stats_finish(k, GR, 1792, g.R, g.M, GR + 2)
        for j in range(4):
            a = g.acc(0, j)
            for r in range(0, 16, 2): k.e(pk('fma', a + r, a + r, (g.R,), (g.M,)))
            k.e('s_add_u32 s61, s60, %d' % (ZSZ + j * 2048))
            store_xf_tile(g, a, PS + 8 * (n % 3), g.L16, 32, 's61', 0); n += 1
    return k_gemm('win', 16, 14, 2, 2, 7, 128, 256, 4, 1, 1024, 32, 3, ('xf', WS_X1S, 1024), ('w', 'w_in', 7168, (256, [3584, 3584 + 128, 0, 128])),
                  pre, pre2, epi, aux=aux, auxsz=2 * KB, aux_end=aux_end, side=(28, uw_job), nxt='wsp', cpfb=16384)

def k_wsp():
    def pre(g):
        k = g.k
        g.L16 = alloc(g, 1, 1); g.L2 = alloc(g, 1, 1); g.B = alloc(g, 4); g.Z = alloc(g, 32)
        srd(k, 32, 'ws', WS_Z, ZSZ); srd(k, 36, 'ws', WS_U2, ZSZ); srd(k, 40, 'b_sp')
        k.e('v_lshlrev_b32 v%d, 4, v1' % g.L16)
        k.e('''
        s_lshl_b32 s60, s31, 13
        s_lshl_b32 s61, s51, 12
        s_add_u32 s60, s60, s61
        s_lshl_b32 s61, s30, 2
        s_lshl_b32 s62, s50, 1
        s_add_u32 s61, s61, s62           ; rb0
        s_lshl_b32 s63, s61, 6
        s_mul_i32 s61, s61, %d
        s_add_u32 s60, s60, s61
        s_add_u32 s61, s60, %d
        v_lshlrev_b32 v%d, 1, v3
        ''' % (112 * 1024, 112 * 1024, g.L2))
    def pre2(g):
        k = g.k
        for i in range(2):
            k.e('buffer_load_ushort v%d, v%d, s[40:43], s63 offen offset:%d' % (g.B + 2 * i, g.L2, i * 64))
        for i in range(2):
            for j in range(2):
                for t in range(2):
                    k.e('buffer_load_dwordx4 %s, v%d, s[32:35], s%d offen offset:%d' % (vr(g.Z + 16 * i + 8 * j + 4 * t, 4), g.L16, 60 + i, (2 * j + t) * 1024))
    def epi(g):
        k = g.k
        T = g.FR
        k.e('s_waitcnt vmcnt(0)')
        for i in range(2): k.e('v_lshlrev_b32 v%d, 16, v%d' % (g.B + 2 * i, g.B + 2 * i))
        k.e('s_nop 7')
        for j in range(2):
            for i in range(2):
                a = g.acc(i, j); z = g.Z + 16 * i + 8 * j
                for d in range(8): unpack(k, T + 2 * d, T + 2 * d + 1, z + d)
                for d in range(8): k.e(pk('add', a + 2 * d, a + 2 * d, (g.B + 2 * i,)))
                for d in range(8): k.e(pk('mul', a + 2 * d, a + 2 * d, T + 2 * d))
                store_xf_tile(g, a, z, g.L16, 36, 's%d' % (60 + i), j * 2048)
    return k_gemm('wsp', 16, 14, 2, 2, 7, 128, 128, 2, 2, 2048, 64, 3, ('rm', 'w_sp', 4096), ('z', WS_Z2N, 1792), pre, pre2, epi, pf='w_out', nxt='wout', cpfb=8192)

def k_attn():
    NS = 4; STG = 32768; NST = 8
    k = Kern('attn', 256, 512, NS * STG)
    prologue(k)
    SA, SB, O, NEGM = 8, 24, 40, 56
    L, ONES, Q, KF, VF, P = 72, 76, 80, 88, 96, 104
    A0 = 112; AC = 113; AO = 114; M = 115; T = 116; T2 = 117; PFA = 118; CPA = 119; PFD = 120
    k.e("""
    v_lshrrev_b32 v2, 6, v0
    v_and_b32 v1, 63, v0
    v_readfirstlane_b32 s46, v2        ; wave
    s_and_b32 s47, s2, 7
    s_lshr_b32 s48, s2, 3
    s_lshl_b32 s30, s47, 2
    s_lshr_b32 s49, s48, 3
    s_add_u32 s30, s30, s49            ; head
    s_and_b32 s31, s48, 7              ; q block (256 rows)
    v_lshlrev_b32 v%d, 4, v1
    s_lshl_b32 s50, s31, 3
    s_add_u32 s50, s50, s46            ; rb of this wave's queries
    s_lshl_b32 s51, s30, 6
    s_add_u32 s51, s51, s50
    s_lshl_b32 s51, s51, 11            ; Q offset
    s_lshl_b32 s52, s30, 18            ; KV head base
    s_lshl_b32 s53, s46, 12            ; wave part (4KB = one tile)
    s_lshl_b32 s62, s2, 13
    v_lshl_add_u32 v%d, v0, 4, s62     ; prefetch offset wg*8K + tid*16
    s_mov_b32 s62, 0
    s_waitcnt lgkmcnt(0)
    """ % (A0, PFA))
    mark(k, 0)
    srd(k, 36, 'ws', WS_KV, 256 * KB, soff='s52'); srd(k, 32, 'ws', WS_Q, 4 * MB)
    def dma(slot_expr):
        return ['s_add_u32 m0, s53, %s' % slot_expr] + \
               ['buffer_load_dwordx4 v%d, s[36:39], s56 offen offset:%d lds' % (A0, q * 1024) for q in range(4)] + \
               ['s_add_u32 s56, s56, %d' % STG]
    def pfl(n): return 'buffer_load_dwordx4 %s, v%d, %s, s62 offen' % (vr(PFD, 4), PFA, sr(n))
    def emit_dma(slot_expr):
        d = dma(slot_expr); k.e(d[0]); k.e('s_nop 0')
        for x in d[1:]: k.e(x)
    k.e('s_mov_b32 s56, s53')
    emit_dma('0')
    k.e('buffer_load_dwordx4 %s, v%d, s[32:35], s51 offen' % (vr(Q, 4), A0))
    k.e('buffer_load_dwordx4 %s, v%d, s[32:35], s51 offen offset:1024' % (vr(Q + 4, 4), A0))
    srd(k, 64, 'w_in'); srd(k, 68, 'w_sp'); srd(k, 32, 'wo')
    srd(k, 40, 'ws', WS_O, 4 * MB)
    k.e("""
    s_lshl_b32 s54, s50, 16
    s_lshl_b32 s55, s30, 11
    s_add_u32 s54, s54, s55            ; O offset
    v_and_b32 v3, 3, v1
    v_bfe_u32 v4, v1, 2, 1
    v_bfe_u32 v5, v1, 4, 1
    v_xor_b32 v4, v4, v5
    v_or_b32 v3, v3, v4
    v_cmp_eq_u32 vcc, 0, v3
    v_mov_b32 v4, 0x3f803f80
    s_nop 1
    v_cndmask_b32 v%d, 0, v4, vcc
    v_mov_b32 v%d, v%d
    v_mov_b32 v%d, v%d
    v_mov_b32 v%d, v%d
    """ % (ONES, ONES + 1, ONES, ONES + 2, ONES, ONES + 3, ONES))
    def adr(t): return (AC if t < 16 else AO), (t % 16) * 4096
    def rdK(t):
        a, o = adr(t)
        return ['ds_read_b128 %s, v%d offset:%d' % (vr(KF, 4), a, o), 'ds_read_b128 %s, v%d offset:%d' % (vr(KF + 4, 4), a, o + 1024)]
    def rdV(t):
        a, o = adr(t)
        return ['ds_read_b128 %s, v%d offset:%d' % (vr(VF, 4), a, o + 2048), 'ds_read_b128 %s, v%d offset:%d' % (vr(VF + 4, 4), a, o + 3072)]
    def qk(S, c):
        return ['v_mfma_f32_32x32x16_bf16 %s, %s, %s, %s' % (vr(S, 16), vr(KF, 4), vr(Q, 4), c),
                'v_mfma_f32_32x32x16_bf16 %s, %s, %s, %s' % (vr(S, 16), vr(KF + 4, 4), vr(Q + 4, 4), vr(S, 16))]
    def maxtile(S, first):
        st = 0
        if first:
            k.e('v_max3_f32 v%d, v%d, v%d, v%d' % (M, S, S + 1, S + 2))
            k.e('v_max_f32 v%d, v%d, v%d' % (M, M, S + 3))
            st = 4
        for r in range(st, 16, 2): k.e('v_max3_f32 v%d, v%d, v%d, v%d' % (M, M, S + r, S + r + 1))
    def set_negm(bias):
        k.e('v_mov_b32 v%d, v%d' % (T, M))
        k.e('s_nop 1')
        k.e('v_permlane32_swap_b32 v%d, v%d' % (M, T))
        k.e('s_nop 1')
        k.e('v_max_f32 v%d, v%d, v%d' % (M, M, T))
        k.e('v_sub_f32 v%d, %s, v%d' % (NEGM, hx(-bias), M))
        for r in range(1, 16): k.e('v_mov_b32 v%d, v%d' % (NEGM + r, NEGM))
    def zero_state():
        for r in range(16): k.e('v_mov_b32 v%d, 0' % (O + r))
        for r in range(4):
            k.e('v_mov_b32 v%d, 0' % (L + r))
            k.e('v_mov_b32 v%d, 0' % (P + 4 + r))
            k.e('v_mov_b32 v%d, 0' % (VF + 4 + r))
        k.e('v_mov_b32 v%d, v%d' % (AC, A0))
        k.e('v_add_u32 v%d, 0x10000, v%d' % (AO, A0))
        k.e('s_mov_b32 s57, 0')
    zero_state()
    k.e('s_getpc_b64 s[84:85]')
    k.label('L_attn_pc')
    k.e('s_add_u32 s84, s84, L_attn_epi-L_attn_pc')
    k.e('s_addc_u32 s85, s85, 0')
    k.e('v_lshlrev_b32 v%d, 7, v1' % CPA)
    k.e('v_min_u32 v%d, L_wo_epi-L_attn_epi-4, v%d' % (CPA, CPA))
    k.e('s_waitcnt vmcnt(0)')
    k.e('s_barrier')
    mark(k, 1)
    for r in rdK(1): k.e(r)
    k.e('s_waitcnt lgkmcnt(0)')
    for m in qk(SB, '0'): k.e(m)
    for r in rdK(0): k.e(r)
    k.e('s_waitcnt lgkmcnt(0)')
    for m in qk(SA, '0'): k.e(m)
    emit_dma(str(STG))
    k.e(pfl(32))
    maxtile(SB, True)
    maxtile(SA, False)
    set_negm(40.0)
    mark(k, 2)
    if env('APRIO', 0):
        k.e('s_cmp_ge_u32 s46, 4')
        k.e('s_cbranch_scc0 L_attn_noprio')
        k.e('s_setprio 1')
        k.label('L_attn_noprio')
    k.e('s_mov_b32 s59, %d' % (NST // 2))
    k.e('s_nop 0')
    for m in qk(SA, vr(NEGM, 16)): k.e(m)
    k.e(rdK(1)[0])
    k.e('ds_read_b32 v%d, v%d' % (T, A0))
    k.e(rdK(1)[1])
    k.e(rdV(0)[0])
    k.e('s_nop 7')
    lp = 'L_attn_loop'
    k.label(lp)
    def pv(h): return 'v_mfma_f32_32x32x16_bf16 %s, %s, %s, %s' % (vr(O, 16), vr(VF + 4 * h, 4), vr(P + 4 * h, 4), vr(O, 16))
    def ls(h): return 'v_mfma_f32_16x16x32_bf16 %s, %s, %s, %s' % (vr(L, 4), vr(ONES, 4), vr(P + 4 * h, 4), vr(L, 4))
    for t in range(16):
        cur, nxt = (SA, SB) if t % 2 == 0 else (SB, SA)
        m_qk = qk(nxt, vr(NEGM, 16))
        kn = rdK(t + 2); v0n = rdV(t + 1)[0]; v1n = rdV(t)[1]
        ex = ['v_exp_f32 v%d, v%d' % (cur + r, cur + r) for r in range(16)]
        cv = ['v_cvt_pk_bf16_f32 v%d, v%d, v%d' % (P + d, cur + 2 * d, cur + 2 * d + 1) for d in range(8)]
        W = 's_waitcnt lgkmcnt(2)'
        head = []; xs = []
        if t % 8 == 6: head = ['s_waitcnt vmcnt(7)', 's_barrier']
        d = dma('s58')
        if t % 8 == 0: xs = ['s_xor_b32 s58, s57, 0x%x' % (0x10000 if t == 0 else 0x18000), d[0], d[1]]
        elif t % 8 < 3: xs = [d[1 + t % 8]]
        elif t % 8 == 3: xs = [d[4], d[5]]
        elif t == 4: xs = [pfl(64)]
        elif t == 5: xs = [pfl(68)]
        elif t == 12: xs = ['global_load_dword v%d, v%d, s[84:85]' % (PFD, CPA), 's_add_u32 s62, s62, %d' % (2 * MB)]
        elif t == 15: xs = ['s_xor_b32 s57, s57, 0x10000']
        body = ex[0:3] + [W, m_qk[0], kn[0]] + ex[3:6] + [pv(1), v1n] + ex[6:8] + cv[0:2] + [ls(1)] + cv[2:4]
        body += ex[8:11] + [W, m_qk[1], kn[1]] + ex[11:14] + [pv(0), v0n]
        tail = ['v_swap_b32 v%d, v%d' % (AC, AO), 's_sub_u32 s59, s59, 1', 's_cmp_lg_u32 s59, 0'] if t == 15 else []
        body += ex[14:16] + tail + cv[4:6] + [ls(0)] + cv[6:8]
        seq = list(head)
        for x in body:
            seq.append(x)
            if xs and x.startswith('v_exp'): seq.append(xs.pop(0))
        assert not xs
        AX = os.environ.get('AX', '')
        if 'p' in AX: seq = [x for x in seq if 's62 offen' not in x]
        for x in seq: k.e(x)
    k.e('s_cbranch_scc1 %s' % lp)
    k.label('L_attn_epi')
    mark(k, 3)
    k.e('s_waitcnt lgkmcnt(0)')
    k.e(pv(1)); k.e(ls(1))
    k.e('s_nop 15')
    lstore = 'L_attn_store'; lsafe = 'L_attn_safe'
    k.e('v_max3_f32 v%d, |v%d|, |v%d|, |v%d|' % (T, O, O + 1, L))
    for r in range(2, 16, 2): k.e('v_max3_f32 v%d, |v%d|, |v%d|, v%d' % (T, O + r, O + r + 1, T))
    k.e('v_mul_f32 v%d, 0, v%d' % (T2, L))
    for r in range(16): k.e('v_fma_f32 v%d, 0, v%d, v%d' % (T2, O + r, T2))
    k.e('v_add_f32 v%d, v%d, v%d' % (T, T, T2))
    k.e('v_mov_b32 v3, %s' % hx(2.0 ** 120))
    k.e('v_cmp_nlt_f32 vcc, v%d, v3' % T)
    k.e('s_nop 4')
    k.e('s_cbranch_vccnz %s' % lsafe)
    k.label(lstore)
    k.e('v_rcp_f32 v%d, v%d' % (T, L))
    k.e('s_nop 0')
    for r in range(16): k.e('v_mul_f32 v%d, v%d, v%d' % (O + r, O + r, T))
    for d in range(8): k.e('v_cvt_pk_bf16_f32 v%d, v%d, v%d' % (P + d, O + 2 * d, O + 2 * d + 1))
    k.e('buffer_store_dwordx4 %s, v%d, s[40:43], s54 offen%s' % (vr(P, 4), A0, WT))
    k.e('buffer_store_dwordx4 %s, v%d, s[40:43], s54 offen offset:1024%s' % (vr(P + 4, 4), A0, WT))
    endpgm(k)
    k.label(lsafe)
    def gl(dst, off): return 'buffer_load_dwordx4 %s, v%d, s[36:39], s56 offen offset:%d' % (vr(dst, 4), A0, off)
    k.e('s_waitcnt vmcnt(0)')
    k.e('s_mov_b32 s56, 0')
    k.e('v_mov_b32 v%d, 0xff800000' % M)
    k.label(lsafe + '1')
    k.e(gl(KF, 0)); k.e(gl(KF + 4, 1024))
    k.e('s_waitcnt vmcnt(0)')
    for m in qk(SA, '0'): k.e(m)
    k.e('s_nop 15')
    maxtile(SA, False)
    k.e('s_add_u32 s56, s56, 4096')
    k.e('s_cmp_lt_u32 s56, %d' % (256 * KB))
    k.e('s_cbranch_scc1 %s1' % lsafe)
    set_negm(0.0)
    zero_state()
    k.e('s_mov_b32 s56, 0')
    k.label(lsafe + '2')
    k.e(gl(KF, 0)); k.e(gl(KF + 4, 1024)); k.e(gl(VF, 2048)); k.e(gl(VF + 4, 3072))
    k.e('s_waitcnt vmcnt(0)')
    for m in qk(SA, vr(NEGM, 16)): k.e(m)
    k.e('s_nop 15')
    for r in range(16): k.e('v_exp_f32 v%d, v%d' % (SA + r, SA + r))
    k.e('s_nop 0')
    for d in range(8): k.e('v_cvt_pk_bf16_f32 v%d, v%d, v%d' % (P + d, SA + 2 * d, SA + 2 * d + 1))
    k.e('s_nop 1')
    k.e(pv(0)); k.e(ls(0)); k.e(pv(1)); k.e(ls(1))
    k.e('s_add_u32 s56, s56, 4096')
    k.e('s_nop 7')
    k.e('s_cmp_lt_u32 s56, %d' % (256 * KB))
    k.e('s_cbranch_scc1 %s2' % lsafe)
    k.e('s_nop 15')
    k.e('s_branch %s' % lstore)
    k.label(k.endl)
    k.e('s_endpgm')
    k.vgpr = 124
    return k

def build():
    ks = [k_pre(), k_ln1(), k_qkv(), k_attn(),
          k_proj('wo', 1024, ('xf', WS_O, 1024), 'wo', False),
          k_win(), k_wsp(),
          k_proj('wout', 1792, ('xf', WS_U2, 1792), 'w_out', True)]
    s = '; adaLN + softmax MHA + gMLP block, generated by gen.py (hand-written generator)\n'
    for k in ks: s += k.launch()
    s += '.amdgcn_target "amdgcn-amd-amdhsa--gfx950"\n.text\n'
    for k in ks: s += k.text()
    s += '.section .rodata,"a"\n'
    for k in ks: s += k.desc()
    return s

if __name__ == '__main__':
    out = sys.argv[1] if len(sys.argv) > 1 else 'adaLN_cond__softmax_full_mha__mixer_gmlp__prompt.s'
    open(out, 'w').write(build())
    print('wrote', out)
```

```python
import sys, struct, os
STAMP = int(os.environ.get('STAMP', '0'))
WS_STAMP = 128 << 20
KIDX = [0]
def env(n, d): return int(os.environ.get(n, d))

MB = 1 << 20
KB = 1024
WS_MOD = 0
WS_UW  = 32 * KB
WS_ST0 = 64 * KB
WS_MODP = 128 * KB
WS_MODT = 768 * KB
TAGP = env('TAGP', 1)
WS_SC = 96 * KB
WS_MODQ = 160 * KB
WS_ST1 = 256 * KB
WS_G   = 512 * KB
WS_FL  = 58 * MB
FLSZ = 2 * MB
FL_LN1, FL_QKV, FL_ATT, FL_WO, FL_WIN, FL_WSP, FL_MOD = [i * 8 * KB for i in range(7)]
WS_EPOCH = 240 * KB
AUX_A = 128 * KB; AUX_B = 148 * KB
WS_H   = 1 * MB
WS_Q   = 5 * MB
WS_KV  = 9 * MB
WS_N   = 60 * MB
WS_O   = 17 * MB
WS_X1  = 21 * MB
WS_X1S = 25 * MB
WS_Z   = 29 * MB
ZSZ = 2048 * 1792 * 2
WS_Z2N = WS_Z + ZSZ
WS_U2  = 50 * MB
if env('ALIAS', 0):
    WS_Q = 1 * MB; WS_KV = 5 * MB; WS_H = 13 * MB
    WS_O = WS_H; WS_X1 = WS_Q; WS_X1S = WS_KV
    WS_Z2N = 9 * MB; WS_Z = 17 * MB; WS_U2 = WS_Z
ZB = min(WS_Z, WS_Z2N)

ROLES = {'pre': [('mod', 0, 128, 0, 16), ('stats', 128, 256, 0, 16)], 'ln1': [('pf', 0, 256, 0, 4), ('ln', 0, 256, 4, 8)],
         'attn': [('main', 0, 256, 0, 8)]}
for _n in ('qkv', 'wo', 'wout'): ROLES[_n] = [('load', 0, 256, 0, 4), ('comp', 0, 256, 4, 8)]
for _n in ('win', 'wsp'): ROLES[_n] = [('load', 0, 224, 0, 4), ('comp', 0, 224, 4, 8), ('pf', 224, 256, 0, 8)]
def f2u(f): return struct.unpack('<I', struct.pack('<f', f))[0]
def hx(f): return '0x%08x' % f2u(f)
LOG2E = 1.4426950408889634
WT = os.environ.get('WTF', ' sc1')

class Kern:
    def __init__(self, name, grid, block, lds):
        self.name = name; self.grid = grid; self.block = block; self.lds = lds
        self.lines = []; self.vgpr = 0; self.nlab = 0
    def e(self, s):
        for l in s.strip('\n').split('\n'):
            l = l.strip()
            if l: self.lines.append('    ' + l)
    def label(self, l):
        if env('ALIGN', 0) and ('_loop' in l or '_lloop' in l):
            self.lines.append('.p2align %d' % env('ALIGN', 0))
            for _ in range(env('ALOFF', 0)): self.lines.append('    s_nop 0')
        self.lines.append(l + ':')
    def newlabel(self, base):
        self.nlab += 1
        return 'L_%s_%s%d' % (self.name, base, self.nlab)
    def need(self, vgpr, lds):
        self.vgpr = max(self.vgpr, vgpr); self.lds = max(self.lds, lds)
    def text(self):
        GX = os.environ.get('GX', '')
        if self.name != 'pre':
            if 'm' in GX: self.lines = [l for l in self.lines if 'v_mfma' not in l]
            if 'l' in GX: self.lines = [l for l in self.lines if not (' lds' in l and 'buffer_load' in l and ('s57' in l or 's58' in l))]
            if 'r' in GX: self.lines = [l for l in self.lines if not ('ds_read_b64_tr' in l)]
        if os.environ.get('NOLDSC'):
            self.lines = [l.replace(' sc1 lds', ' lds') for l in self.lines]
        n = self.name + '_kernel'
        return '.globl %s\n.p2align 8\n.type %s,@function\n%s:\n' % (n, n, n) + '\n'.join(self.lines) + '\n'
    def desc(self):
        n = self.name + '_kernel'
        v = self.vgpr
        acc = (v + 3) // 4 * 4
        return ('.p2align 6\n.amdhsa_kernel %s\n  .amdhsa_next_free_vgpr %d\n  .amdhsa_next_free_sgpr 102\n'
                '  .amdhsa_accum_offset %d\n  .amdhsa_group_segment_fixed_size 0\n  .amdhsa_kernarg_size 104\n'
                '  .amdhsa_user_sgpr_count 2\n  .amdhsa_user_sgpr_kernarg_segment_ptr 1\n'
                '  .amdhsa_system_sgpr_workgroup_id_x 1\n.end_amdhsa_kernel\n' % (n, v, acc))
    def launch(self):
        return '; @launch kernel=%s_kernel grid=(%d,1,1) block=(%d,1,1) lds=%d\n' % (self.name, self.grid, self.block, self.lds)

PTR = dict(x=4, wqkv=6, wo=8, bx=10, w_in=12, w_sp=14, b_sp=16, w_out=18, c=20, w_mod=22, out=24, dbg=26, ws=28)
SIZES = dict(x=2048*1024*2, wqkv=1024*3072*2, wo=1024*1024*2, w_in=1024*3584*2, w_sp=2048*2048*2, b_sp=2048*2,
             w_out=1792*1024*2, c=2048, w_mod=1024*6144*2, out=2048*1024*2, dbg=256)

class Ctx: pass
PHIDX = {}
def prologue(k):
    k.endl = 'L_%s_end' % k.name
    k.e("""
    s_load_dwordx16 s[4:19], s[0:1], 0
    s_load_dwordx8 s[20:27], s[0:1], 64
    s_load_dwordx2 s[28:29], s[0:1], 96
    s_cmp_ge_u32 s2, %d
    s_cbranch_scc1 %s
    v_lshrrev_b32 v1, 6, v0
    s_nop 0
    v_readfirstlane_b32 s3, v1
    """ % (k.grid, k.endl))

def phase_begin(k, c):
    k.c = c
    k.label('L_%s_entry' % c.name)
    if env('IDLE_' + c.name, 0):
        for _ in range(env('IDLE_' + c.name, 0)): k.e('s_sleep 36')
    c.kidx = KIDX[0]; KIDX[0] += 1
    PHIDX[c.name] = c.kidx
    if env('PADTO', 0) and c.first: k.e('s_memrealtime s[90:91]')
    if env('DBG', 0) and c.first: dbgstamp(k, 0 if c.name == 'pre' else 10, 512 if c.name == 'pre' else 0, '')
    if STAMP:
        k.e('s_memtime s[88:89]')
        k.e('s_memrealtime s[90:91]')
        for i in range(4): k.e('s_mov_b64 s[%d:%d], 0' % (72 + 2 * i, 73 + 2 * i))

def dbgstamp(k, idx, off, op):
    l = k.newlabel('dbg')
    k.e('''
    s_lshl_b32 s80, s2, 4
    s_add_u32 s80, s80, s3
    s_cmp_lg_u32 s80, %d
    s_cbranch_scc1 %s
    s_waitcnt lgkmcnt(0)
    s_memrealtime s[92:93]
    s_add_u32 s80, s26, %d
    s_addc_u32 s81, s27, 0
    s_and_b32 s81, s81, 0xffff
    s_mov_b32 s82, 256
    s_mov_b32 s83, 0x20000
    s_mov_b64 exec, 1
    s_waitcnt lgkmcnt(0)
    v_mov_b32 v2, s92
    v_mov_b32 v5, %d
    buffer_store_dword v2, v5, s[80:83], 0 offen
    s_mov_b64 exec, -1
    ''' % (5 * 16 + 4, l, off, idx * 4))
    k.label(l)
def endpgm(k):
    c = k.c
    if env('DBG', 0): dbgstamp(k, 1 + c.kidx, 512 if c.name == 'pre' else 0, '')
    if STAMP:
        k.e("""
        s_waitcnt vmcnt(0) lgkmcnt(0)
        s_memtime s[92:93]
        s_memrealtime s[94:95]
        s_mov_b64 exec, 1
        s_add_u32 s80, s28, 0x%x
        s_addc_u32 s81, s29, 0
        s_and_b32 s81, s81, 0xffff
        s_mov_b32 s82, 0x100000
        s_mov_b32 s83, 0x20000
        s_lshl_b32 s86, s2, 4
        s_add_u32 s86, s86, s3
        s_lshl_b32 s86, s86, 5
        s_waitcnt lgkmcnt(0)
        v_mov_b32 v4, s90
        v_mov_b32 v5, s94
        v_mov_b32 v6, s88
        v_mov_b32 v7, s92
        v_mov_b32 v8, s72
        v_mov_b32 v9, s74
        v_mov_b32 v10, s76
        v_mov_b32 v11, s78
        v_mov_b32 v2, s86
        buffer_store_dwordx4 v[4:7], v2, s[80:83], 0 offen
        buffer_store_dwordx4 v[8:11], v2, s[80:83], 0 offen offset:16
        s_waitcnt vmcnt(0)
        """ % (WS_STAMP + c.kidx * (1 << 20)))
    if c.last and env('PADTO', 0):
        l = k.newlabel('pad')
        k.label(l)
        k.e('s_memrealtime s[92:93]\ns_waitcnt lgkmcnt(0)\ns_sub_u32 s92, s92, s90\ns_cmp_lt_u32 s92, %d\ns_cbranch_scc1 %s' % (env('PADTO', 0) * 100, l))
    if c.last: k.e('s_endpgm')
    else:
        k.e('s_mov_b64 exec, -1')
        k.e('s_setprio 0')
        k.e('s_branch L_%s_entry' % c.nxt)
def mark(k, i=0):
    if STAMP:
        k.e('s_memtime s[%d:%d]' % (72 + 2 * i, 73 + 2 * i))
        k.e('s_waitcnt lgkmcnt(0)')

def set_flag(k, setup):
    if not k.c.last:
        k.e(setup)
        k.e('s_lshl_b32 s87, s100, 5')
def OWNF(n): return n in os.environ.get('OWN', 'none').split(',')
ZOWN = env('ZOWN', 1)
FV = 252
def flag_store(k, soff):
    k.e('s_mov_b64 exec, 1')
    k.e('buffer_store_dwordx2 %s, v%d, s[96:99], %s offen sc1' % (vr(FV, 2), FV + 2, soff))
    k.e('s_mov_b64 exec, -1')
def flag_prep(k):
    srd(k, 96, 'ws', WS_FL, FLSZ)
    k.e('v_mov_b32 v%d, s84' % FV); k.e('v_mov_b32 v%d, s85' % (FV + 1)); k.e('v_mov_b32 v%d, 0' % (FV + 2))
    k.need(FV + 3, 0)
def signal(k, role='L', keep=0):
    if k.c.last: return
    if role in ('C', 'S'): flag_prep(k)
    if role == 'C':
        k.e('s_and_b32 s100, s3, 3')
        k.e('s_lshl_b32 s100, s100, 7')
        k.e('s_add_u32 s100, s100, s87')
    if role == 'C' and env('SM', 0): mark(k, 3)
    k.e('s_waitcnt vmcnt(%d)' % keep)
    if role == 'C' and env('SM', 0): mark(k, 0)
    if role == 'C':
        flag_store(k, 's100')
        if OWNF(k.c.nxt): k.e('s_barrier')
    elif role == 'A' and OWNF(k.c.nxt) and k.c.nxt == 'wout':
        l = k.newlabel('sg')
        k.e('s_cmp_lt_u32 s3, 4'); k.e('s_cbranch_scc1 %s' % l); k.e('s_barrier'); k.label(l)
    elif role == 'S':
        l = k.newlabel('sg')
        k.e('s_barrier')
        k.e('s_cmp_lg_u32 s3, 7'); k.e('s_cbranch_scc1 %s' % l)
        flag_store(k, 's87')
        k.label(l)
POLLW = env('POLLW', 4)
def handoff(k, setup, n, role='L', force=False, slp=None):
    if (k.c.first and not force) or not n: return
    if role == 'A' or (role == 'C') == (POLLW >= 4):
        ld = k.newlabel('wd')
        if n <= 64:
            k.e('s_cmp_lg_u32 s3, %d' % POLLW)
            k.e('s_cbranch_scc1 %s' % ld)
        else:
            assert n == 128
            k.e('s_sub_u32 s101, s3, %d' % POLLW)
            k.e('s_cmp_gt_u32 s101, 1')
            k.e('s_cbranch_scc1 %s' % ld)
        srd(k, 96, 'ws', WS_FL, FLSZ)
        k.e(setup)
        k.e('s_lshl_b32 s100, s100, 5')
        if n > 64:
            k.e('s_lshl_b32 s101, s101, 13')
            k.e('s_add_u32 s100, s100, s101')
        k.e('v_lshlrev_b32 v%d, 7, v1' % (FV + 2))
        k.e('s_mov_b32 s101, 0x100000')
        if n < 64: k.e('s_bfm_b64 exec, %d, 0' % n)
        k.need(FV + 3, 0)
        lp = k.newlabel('wf'); le = k.newlabel('we')
        k.label(lp)
        k.e('buffer_load_dwordx2 %s, v%d, s[96:99], s100 offen sc1' % (vr(FV, 2), FV + 2))
        k.e('s_waitcnt vmcnt(0)')
        k.e('v_cmp_ne_u64 vcc, s[84:85], %s' % vr(FV, 2))
        k.e('s_sub_u32 s101, s101, 1')
        k.e('s_nop 3')
        k.e('s_cbranch_vccz %s' % le)
        if env('PMASK', 1): k.e('s_mov_b64 exec, vcc')
        if slp is None: slp = env('PSLEEP', 1)
        if slp: k.e('s_sleep %d' % slp)
        k.e('s_cmp_lg_u32 s101, 0')
        k.e('s_cbranch_scc1 %s' % lp)
        k.label(le)
        k.e('s_mov_b64 exec, -1')
        k.label(ld)
    k.e('s_barrier')

def handoff_multi(k, polls):
    ld = k.newlabel('wd'); lgo = k.newlabel('wg')
    srd(k, 96, 'ws', WS_FL, FLSZ)
    for w, setup, n in polls:
        ln = k.newlabel('wn')
        k.e('s_cmp_lg_u32 s3, %d' % w)
        k.e('s_cbranch_scc1 %s' % ln)
        k.e(setup)
        k.e('v_min_u32 v%d, %d, v1' % (FV + 2, n - 1))
        k.e('s_branch %s' % lgo)
        k.label(ln)
    k.e('s_branch %s' % ld)
    k.label(lgo)
    k.e('s_lshl_b32 s100, s100, 5')
    k.e('v_lshlrev_b32 v%d, 7, v%d' % (FV + 2, FV + 2))
    k.e('s_mov_b32 s101, 0x100000')
    lp = k.newlabel('wf')
    k.label(lp)
    k.e('buffer_load_dwordx2 %s, v%d, s[96:99], s100 offen sc1' % (vr(FV, 2), FV + 2))
    k.e('s_waitcnt vmcnt(0)')
    k.e('v_cmp_ne_u64 vcc, s[84:85], %s' % vr(FV, 2))
    k.e('s_sub_u32 s101, s101, 1')
    k.e('s_nop 3')
    k.e('s_cbranch_vccz %s' % ld)
    k.e('s_sleep %d' % env('P0SLEEP', 2))
    k.e('s_cmp_lg_u32 s101, 0')
    k.e('s_cbranch_scc1 %s' % lp)
    k.label(ld)
    k.e('s_barrier')

def mod_table(k, R, between=None, nb=0):
    srd(k, 40, 'ws', 0, 256 * KB)
    k.e('v_lshlrev_b32 v%d, 4, v0' % (R + 16))
    for q in range(4):
        k.e('s_mov_b32 s48, %d' % (WS_MODP + q * 8192))
        k.e('buffer_load_dwordx4 %s, v%d, s[40:43], s48 offen sc1' % (vr(R + 4 * q, 4), R + 16))
    if between: between()
    k.e('s_cmp_lt_u32 s3, 4')
    k.e('s_cselect_b32 s49, 0, 1.0')
    k.e('v_add_u32 v%d, %d, v%d' % (R + 16, AUX_A, R + 16))
    k.e('s_waitcnt vmcnt(%d)' % nb)
    k.e(pk('add', R, R, R + 4)); k.e(pk('add', R + 2, R + 2, R + 6)); k.e(pk('add', R + 8, R + 8, R + 12)); k.e(pk('add', R + 10, R + 10, R + 14))
    k.e(pk('add', R, R, R + 8)); k.e(pk('add', R + 2, R + 2, R + 10))
    for d in range(2): round_bf16_pair(k, R + 2 * d, R + 2 * d + 1, R + 4)
    for q in range(4): k.e('v_add_f32 v%d, s49, v%d' % (R + q, R + q))
    for d in range(2): round_bf16_pair(k, R + 2 * d, R + 2 * d + 1, R + 4)
    k.e('ds_write_b128 v%d, %s' % (R + 16, vr(R, 4)))
    k.e('s_waitcnt lgkmcnt(0)')
    k.e('s_barrier')

def poll_back(k, lp):
    l = k.newlabel('pd')
    k.e('s_sub_u32 s101, s101, 1')
    k.e('s_nop 3')
    k.e('s_cbranch_vccz %s' % l)
    k.e('s_cmp_lg_u32 s101, 0')
    k.e('s_cbranch_scc1 %s' % lp)
    k.label(l)
def poll_init(k): k.e('s_mov_b32 s101, 0x100000')

def srd(k, d, what, off=0, size=None, soff=None):
    p = PTR[what]
    if what == 'ws': off += env('WSB', 0) * MB
    if size is None: size = SIZES[what]
    if off or soff:
        k.e('s_add_u32 s%d, s%d, 0x%x' % (d, p, off))
        k.e('s_addc_u32 s%d, s%d, 0' % (d + 1, p + 1))
        if soff:
            k.e('s_add_u32 s%d, s%d, %s' % (d, d, soff))
            k.e('s_addc_u32 s%d, s%d, 0' % (d + 1, d + 1))
        k.e('s_and_b32 s%d, s%d, 0xffff' % (d + 1, d + 1))
    else:
        k.e('s_mov_b32 s%d, s%d' % (d, p))
        k.e('s_and_b32 s%d, s%d, 0xffff' % (d + 1, p + 1))
    k.e('s_mov_b32 s%d, 0x%x' % (d + 2, size))
    k.e('s_mov_b32 s%d, 0x20000' % (d + 3))

def finish(k):
    endpgm(k)

XT = env('XT', 0)
AOWN = env('AOWN', 3)
AT2 = env('AT2', 1)
MP0 = env('MP0', 0)
CPF = env('CPF', 1)
def code_pf(k, start, end, maxbytes, lane=1, vt=6, vd=7, sb=84):
    if not CPF: return 0
    h = k.newlabel('pc')
    k.e('s_getpc_b64 s[%d:%d]' % (sb, sb + 1))
    k.label(h)
    k.e('s_add_u32 s%d, s%d, %s-%s' % (sb, sb, start, h))
    k.e('s_addc_u32 s%d, s%d, 0' % (sb + 1, sb + 1))
    n = (maxbytes + 8191) // 8192
    for i in range(n):
        k.e('v_lshlrev_b32 v%d, 7, v%d' % (vt, lane))
        if i: k.e('v_add_u32 v%d, %d, v%d' % (vt, i * 8192, vt))
        k.e('v_min_u32 v%d, %s-%s-4, v%d' % (vt, end, start, vt))
        k.e('global_load_dword v%d, v%d, s[%d:%d]' % (vd, vt, sb, sb + 1))
    return n

def vr(b, n): return 'v[%d:%d]' % (b, b + n - 1)
def sr(b): return 's[%d:%d]' % (b, b + 3)

def round_bf16_pair(k, a, b, tmp):
    k.e('v_cvt_pk_bf16_f32 v%d, v%d, v%d' % (tmp, a, b))
    k.e('v_lshlrev_b32 v%d, 16, v%d' % (a, tmp))
    k.e('v_and_b32 v%d, 0xffff0000, v%d' % (b, tmp))

def red_lanes(k, regs, tmp, rors=(8,)):
    for ro in rors:
        k.e('s_nop 1')
        for r in regs:
            k.e('v_add_f32_dpp v%d, v%d, v%d row_ror:%d row_mask:0xf bank_mask:0xf' % (r, r, r, ro))
    for op in ('v_permlane16_swap_b32', 'v_permlane32_swap_b32'):
        for r, t in zip(regs, tmp): k.e('v_mov_b32 v%d, v%d' % (t, r))
        k.e('s_nop 1')
        for r, t in zip(regs, tmp): k.e('%s v%d, v%d' % (op, r, t))
        k.e('s_nop 1')
        for r, t in zip(regs, tmp): k.e('v_add_f32 v%d, v%d, v%d' % (r, r, t))

def unpack(k, lo, hi, src):
    k.e('v_lshlrev_b32 v%d, 16, v%d' % (lo, src))
    k.e('v_and_b32 v%d, 0xffff0000, v%d' % (hi, src))

def k_p0(k, c):
    phase_begin(k, c)
    KIDX[0] += 1
    assert c.first and not c.last
    lst = 'L_p0_stats'
    def rest_issue():
        srd(k, 52, 'w_mod'); srd(k, 56, 'c')
        k.e("""
        v_lshrrev_b32 v164, 3, v0
        v_lshlrev_b32 v165, 4, v164        ; c byte offset = g*16
        v_mul_u32_u24 v164, %d, v164
        v_and_b32 v166, 7, v0
        v_lshl_add_u32 v164, v166, 4, v164
        s_lshr_b32 s60, s30, 1             ; col block
        s_and_b32 s61, s30, 1              ; k half
        s_lshl_b32 s62, s60, 7
        s_mul_i32 s63, s61, %d
        s_add_u32 s62, s62, s63
        s_add_u32 s62, s62, 4096
        s_lshl_b32 s63, s61, 10
        buffer_load_dwordx4 v[128:131], v165, s[56:59], s63 offen
        """ % (8 * 12288, 512 * 12288))
        for j in range(8):
            k.e('buffer_load_dwordx4 %s, v164, s[52:55], s62 offen' % vr(132 + 4 * j, 4))
            k.e('s_add_u32 s62, s62, 12288')
        k.need(192, 0)
    def rest_compute(newer):
        S_ = 168; T_ = 176; A_ = 184
        k.e('s_waitcnt vmcnt(%d)' % (8 + newer))
        for j in range(4): unpack(k, S_ + 2 * j, S_ + 1 + 2 * j, 128 + j)
        for j in range(8): k.e('v_mul_f32 v%d, %s, v%d' % (T_ + j, hx(-LOG2E), S_ + j))
        for j in range(8): k.e('v_exp_f32 v%d, v%d' % (T_ + j, T_ + j))
        for j in range(8): k.e('v_add_f32 v%d, 1.0, v%d' % (T_ + j, T_ + j))
        for j in range(8): k.e('v_rcp_f32 v%d, v%d' % (T_ + j, T_ + j))
        for j in range(8): k.e('v_mul_f32 v%d, v%d, v%d' % (S_ + j, S_ + j, T_ + j))
        for j in range(4): round_bf16_pair(k, S_ + 2 * j, S_ + 1 + 2 * j, T_)
        for j in range(8):
            k.e('s_waitcnt vmcnt(%d)' % (7 - j + newer))
            for d in range(4):
                unpack(k, T_, T_ + 1, 132 + 4 * j + d)
                op = 'v_mul_f32' if j == 0 else 'v_fmac_f32'
                k.e('%s v%d, v%d, v%d' % (op, A_ + 2 * d, T_, S_ + j))
                k.e('%s v%d, v%d, v%d' % (op, A_ + 1 + 2 * d, T_ + 1, S_ + j))
        k.e('s_nop 1')
        for e in range(4): k.e('v_permlane32_swap_b32 v%d, v%d' % (A_ + e, A_ + 4 + e))
        k.e('s_nop 1')
        for e in range(4): k.e('v_add_f32 v%d, v%d, v%d' % (A_ + e, A_ + e, A_ + 4 + e))
        k.e('s_nop 1')
        for e in range(2): k.e('v_permlane16_swap_b32 v%d, v%d' % (A_ + e, A_ + 2 + e))
        k.e('s_nop 1')
        for e in range(2): k.e('v_add_f32 v%d, v%d, v%d' % (A_ + e, A_ + e, A_ + 2 + e))
        k.e('s_nop 1')
        for e in range(2): k.e('v_add_f32_dpp v%d, v%d, v%d row_ror:8 row_mask:0xf bank_mask:0xf' % (A_ + e, A_ + e, A_ + e))
        lw2 = k.newlabel('nw')
        k.e("""
        v_lshlrev_b32 v164, 5, v166
        v_lshrrev_b32 v165, 4, v1
        v_lshl_add_u32 v164, v165, 3, v164
        s_lshl_b32 s62, s3, 8
        s_add_u32 s62, s62, %d
        v_add_u32 v164, s62, v164
        ds_write_b64 v164, v[184:185]
        s_waitcnt lgkmcnt(0)
        s_barrier
        s_cmp_lg_u32 s3, 7
        s_cbranch_scc1 %s
        v_lshlrev_b32 v164, 2, v1
        v_add_u32 v165, %d, v164
        """ % (AUX_A + 8192, lw2, AUX_A + 8192))
        for w in range(8): k.e('ds_read_b32 v%d, v165 offset:%d' % (T_ + w, w * 256))
        k.e("""
        s_lshl_b32 s62, s60, 8
        s_lshl_b32 s63, s61, 14
        s_add_u32 s62, s62, s63
        s_add_u32 s62, s62, %d
        s_waitcnt lgkmcnt(0)
        """ % WS_MODQ)
        for w in range(0, 8, 2): k.e('v_add_f32 v%d, v%d, v%d' % (T_ + w, T_ + w, T_ + w + 1))
        k.e('v_add_f32 v%d, v%d, v%d' % (T_, T_, T_ + 2))
        k.e('v_add_f32 v%d, v%d, v%d' % (T_ + 4, T_ + 4, T_ + 6))
        k.e('v_add_f32 v%d, v%d, v%d' % (T_, T_, T_ + 4))
        k.e('buffer_store_dword v%d, v164, s[40:43], s62 offen%s' % (T_, WT))
        k.label(lw2)
    k.e("""
    v_and_b32 v1, 63, v0               ; lane
    v_lshlrev_b32 v6, 4, v0            ; tid*16
    s_lshr_b32 s30, s2, 4
    s_lshl_b32 s30, s30, 3
    s_and_b32 s47, s2, 7
    s_add_u32 s30, s30, s47            ; index within role (0..127)
    s_bitcmp1_b32 s2, 3
    s_cbranch_scc1 %s
    s_lshr_b32 s48, s30, 2             ; col block
    s_and_b32 s49, s30, 3              ; k quarter
    v_lshrrev_b32 v2, 3, v0            ; row group (0..63): rows 4g..4g+3 (+256*q)
    v_and_b32 v3, 7, v0                ; chunk
    v_lshlrev_b32 v4, 3, v2            ; c byte offset = g*8
    v_mul_u32_u24 v5, %d, v2
    v_lshl_add_u32 v5, v3, 4, v5
    s_lshl_b32 s31, s48, 7
    s_mul_i32 s44, s49, %d
    s_add_u32 s31, s31, s44
    s_lshl_b32 s45, s49, 9
    s_waitcnt lgkmcnt(0)
    s_load_dwordx2 s[84:85], s[28:29], 0x%x
    """ % (lst, 4 * 12288, 256 * 12288, WS_EPOCH + env('WSB', 0) * MB))
    mark(k, 0)
    srd(k, 36, 'w_mod'); srd(k, 32, 'c')
    CL = env('CLAST', 0)
    if not CL: k.e('buffer_load_dwordx2 v[8:9], v4, s[32:35], s45 offen')
    for j in range(4):
        k.e('buffer_load_dwordx4 %s, v5, s[36:39], s31 offen' % vr(12 + 4 * j, 4))
        k.e('s_add_u32 s31, s31, 12288')
    if CL: k.e('buffer_load_dwordx2 v[8:9], v4, s[32:35], s45 offen')
    lnr = k.newlabel('nr'); lnc = k.newlabel('nc')
    k.e('s_cmp_gt_u32 s3, 1')
    k.e('s_cbranch_scc1 %s' % lnr)
    for r in range(4): k.e('v_mov_b32 v%d, -1' % (40 + r))
    for off, size in ((WS_G, 256 * KB), (WS_MOD, 64 * KB)) + (() if MP0 else ((WS_MODQ, 64 * KB),)):
        per = size // 128
        srd(k, 40, 'ws', off, size)
        k.e('s_mul_i32 s45, s30, %d' % per)
        k.e('v_cmp_gt_u32 vcc, %d, v0' % (per // 16))
        k.e('s_and_saveexec_b64 s[46:47], vcc')
        k.e('buffer_store_dwordx4 v[40:43], v6, s[40:43], s45 offen' + WT)
        k.e('s_mov_b64 exec, s[46:47]')
    k.e('s_waitcnt vmcnt(0)')
    k.label(lnr)
    srd(k, 40, 'ws', 0, 256 * KB)
    if CL == 2:
        k.e('s_waitcnt vmcnt(1)'); mark(k, 0)
    k.e('s_waitcnt vmcnt(%d)' % (0 if CL else 4))
    mark(k, 1)
    for j in range(2): unpack(k, 44 + 2 * j, 45 + 2 * j, 8 + j)
    for j in range(4): k.e('v_mul_f32 v%d, %s, v%d' % (52 + j, hx(-LOG2E), 44 + j))
    for j in range(4): k.e('v_exp_f32 v%d, v%d' % (52 + j, 52 + j))
    for j in range(4): k.e('v_add_f32 v%d, 1.0, v%d' % (52 + j, 52 + j))
    for j in range(4): k.e('v_rcp_f32 v%d, v%d' % (52 + j, 52 + j))
    for j in range(4): k.e('v_mul_f32 v%d, v%d, v%d' % (44 + j, 44 + j, 52 + j))
    for j in range(2): round_bf16_pair(k, 44 + 2 * j, 45 + 2 * j, 52)
    lns = k.newlabel('nosc')
    if not MP0: k.e("""
    s_cmp_lg_u32 s48, 0
    s_cbranch_scc1 %s
    v_lshlrev_b32 v7, 4, v2
    s_lshl_b32 s44, s49, 10
    s_add_u32 s44, s44, %d
    buffer_store_dwordx4 v[44:47], v7, s[40:43], s44 offen%s
    s_waitcnt vmcnt(0)
    """ % (lns, WS_SC, WT))
    k.label(lns)
    A = 56
    for j in range(4):
        k.e('s_waitcnt vmcnt(%d)' % (3 - j))
        for d in range(4):
            unpack(k, 52, 53, 12 + 4 * j + d)
            op = 'v_mul_f32' if j == 0 else 'v_fmac_f32'
            k.e('%s v%d, v52, v%d' % (op, A + 2 * d, 44 + j))
            k.e('%s v%d, v53, v%d' % (op, A + 1 + 2 * d, 44 + j))
    mark(k, 2)
    k.e('s_nop 1')
    for e in range(4): k.e('v_permlane32_swap_b32 v%d, v%d' % (A + e, A + 4 + e))
    k.e('s_nop 1')
    for e in range(4): k.e('v_add_f32 v%d, v%d, v%d' % (A + e, A + e, A + 4 + e))
    k.e('s_nop 1')
    for e in range(2): k.e('v_permlane16_swap_b32 v%d, v%d' % (A + e, A + 2 + e))
    k.e('s_nop 1')
    for e in range(2): k.e('v_add_f32 v%d, v%d, v%d' % (A + e, A + e, A + 2 + e))
    k.e('s_nop 1')
    for e in range(2): k.e('v_add_f32_dpp v%d, v%d, v%d row_ror:8 row_mask:0xf bank_mask:0xf' % (A + e, A + e, A + e))
    lw = k.newlabel('nw')
    k.e("""
    v_lshlrev_b32 v2, 5, v3
    v_lshrrev_b32 v7, 4, v1
    v_lshl_add_u32 v2, v7, 3, v2
    s_lshl_b32 s44, s3, 8
    s_add_u32 s44, s44, %d
    v_add_u32 v2, s44, v2
    ds_write_b64 v2, v[56:57]
    s_waitcnt lgkmcnt(0)
    s_add_u32 s84, s84, 1
    s_barrier
    s_cmp_lg_u32 s3, 0
    s_cbranch_scc1 %s
    v_lshlrev_b32 v2, 2, v1
    v_add_u32 v7, %d, v2
    """ % (AUX_A, lw, AUX_A))
    for w in range(8): k.e('ds_read_b32 v%d, v7 offset:%d' % (12 + w, w * 256))
    flag_prep(k)
    k.e("""
    s_lshl_b32 s31, s48, 8
    s_lshl_b32 s44, s49, 13
    s_add_u32 s31, s31, s44
    s_add_u32 s31, s31, %d
    s_lshl_b32 s100, s30, 7
    s_add_u32 s100, s100, %d
    s_waitcnt lgkmcnt(0)
    """ % (WS_MODP, FL_MOD * 32))
    for w in range(0, 8, 2): k.e('v_add_f32 v%d, v%d, v%d' % (12 + w, 12 + w, 13 + w))
    k.e('v_add_f32 v12, v12, v14')
    k.e('v_add_f32 v16, v16, v18')
    k.e('v_add_f32 v12, v12, v16')
    if TAGP:
        srd(k, 96, 'ws', WS_MODT, 64 * KB)
        k.e("""
        v_mov_b32 v14, s84
        v_mov_b32 v15, s85
        v_mov_b32_dpp v13, v12 quad_perm:[1,1,3,3] row_mask:0xf bank_mask:0xf
        v_lshlrev_b32 v2, 3, v1
        s_lshl_b32 s31, s48, 9
        s_lshl_b32 s44, s49, 14
        s_add_u32 s31, s31, s44
        s_mov_b32 exec_lo, 0x55555555
        s_mov_b32 exec_hi, 0x55555555
        buffer_store_dwordx4 v[12:15], v2, s[96:99], s31 offen sc1
        s_mov_b64 exec, -1
        """)
    else:
        k.e('buffer_store_dword v12, v2, s[40:43], s31 offen' + WT)
        k.e('s_waitcnt vmcnt(0)')
        flag_store(k, 's100')
    k.label(lw)
    k.e('s_barrier')
    mark(k, 3)
    if env('TLBW', 0):
        lt = k.newlabel('tl')
        for w, (nm, sz) in enumerate((('ws', 64 * MB), ('w_mod', None), ('w_sp', None), ('w_in', None), ('w_out', None), ('wo', None), ('out', None), ('x', None))):
            ln = k.newlabel('tn')
            k.e('s_cmp_lg_u32 s3, %d' % w)
            k.e('s_cbranch_scc1 %s' % ln)
            srd(k, 36, nm, 0, sz)
            k.e('s_branch %s' % lt)
            k.label(ln)
        k.label(lt)
        k.e('s_lshr_b32 s51, s30, 3')
        k.e('s_lshl_b32 s51, s51, 22')
        k.e('s_add_u32 s51, s51, %d' % (65536 - 128))
        k.e('v_lshlrev_b32 v36, 16, v1')
        k.e('buffer_load_dword v37, v36, s[36:39], s51 offen')
    srd(k, 36, 'wqkv')
    k.e('s_lshl_b32 s51, s30, 13')
    k.e('s_add_u32 s51, s51, %d' % (env('NPFE', 0) * MB))
    for p in range(env('NPFQ', 0) - env('NPFE', 0)):
        k.e('buffer_load_dwordx4 v[8:11], v6, s[36:39], s51 offen')
        k.e('s_add_u32 s51, s51, %d' % MB)
    if CPF:
        h = k.newlabel('pc')
        k.e('s_cmp_lg_u32 s3, 2')
        k.e('s_cbranch_scc1 %s' % lnc)
        k.e('s_cmp_ge_u32 s30, 64')
        k.e('s_cbranch_scc1 %s' % lnc)
        k.e('s_getpc_b64 s[64:65]')
        k.label(h)
        k.e('s_add_u32 s64, s64, L_qkv_entry-%s' % h)
        k.e('s_addc_u32 s65, s65, 0')
        k.e('s_lshr_b32 s44, s30, 3')
        k.e('s_lshl_b32 s44, s44, 13')
        k.e('v_lshl_add_u32 v38, v1, 7, s44')
        k.e('v_min_u32 v38, L_text_end-L_qkv_entry-4, v38')
        k.e('global_load_dword v39, v38, s[64:65]')
        k.label(lnc)
    if MP0 == 1:
        rest_issue(); rest_compute(0)
    k.e('s_waitcnt vmcnt(0)')
    endpgm(k)
    k.label(lst)
    k.e("""
    s_lshl_b32 s44, s3, 12
    v_lshl_add_u32 v3, v1, 4, s44      ; wave*4096 + lane*16
    s_lshl_b32 s31, s30, 15            ; 16 rows * 2048
    s_waitcnt lgkmcnt(0)
    s_load_dwordx2 s[84:85], s[28:29], 0x%x
    """ % (WS_EPOCH + env('WSB', 0) * MB))
    srd(k, 32, 'x')
    if env('XDELAY', 0): k.e('s_waitcnt lgkmcnt(0)')
    for q in range(4): k.e('buffer_load_dwordx4 %s, v3, s[32:35], s31 offen offset:%d' % (vr(8 + 4 * q, 4), q * 1024))
    if MP0 == 2: rest_issue()
    NE = env('NPFE', 0)
    if NE:
        srd(k, 36, 'wqkv')
        k.e('s_lshl_b32 s51, s30, 13')
        for p in range(NE):
            k.e('buffer_load_dwordx4 v[128:131], v6, s[36:39], s51 offen')
            k.e('s_add_u32 s51, s51, %d' % MB)
    srd(k, 36, 'ws', WS_H, 4 * MB); srd(k, 40, 'ws', 0, 256 * KB)
    set_flag(k, 's_lshr_b32 s100, s30, 3\ns_lshl_b32 s100, s100, 8\ns_and_b32 s101, s30, 7\ns_lshl_b32 s101, s101, 2\ns_add_u32 s100, s100, s101\ns_add_u32 s100, s100, %d' % FL_LN1)
    mark(k, 0)
    k.e('s_waitcnt vmcnt(%d) lgkmcnt(0)' % (NE + (9 if MP0 == 2 else 0)))
    k.e('s_add_u32 s84, s84, 1')
    if MP0 == 3: rest_issue()
    X = 24
    for d in range(16): unpack(k, X + 2 * d, X + 2 * d + 1, 8 + d)
    MU = [56, 58]; VA = [60, 62]
    for r in range(2):
        k.e(pk('add', 8 + 2 * r, X + 16 * r, X + 16 * r + 2))
        for e in range(4, 16, 2): k.e(pk('add', 8 + 2 * r, 8 + 2 * r, X + 16 * r + e))
        k.e('v_add_f32 v%d, v%d, v%d' % (MU[r], 8 + 2 * r, 9 + 2 * r))
    red_lanes(k, MU, [8, 9], rors=(8, 4, 2, 1))
    for r in range(2):
        k.e('v_mul_f32 v%d, %s, v%d' % (MU[r], hx(-1.0 / 1024), MU[r]))
        for e in range(0, 16, 2):
            k.e(pk('add', 8, X + 16 * r + e, (MU[r],)))
            k.e(pk('mul', 10, 8, 8) if e == 0 else pk('fma', 10, 8, 8, 10))
        k.e('v_add_f32 v%d, v10, v11' % VA[r])
    red_lanes(k, VA, [8, 9], rors=(8, 4, 2, 1))
    for r in range(2):
        k.e('v_mul_f32 v%d, %s, v%d' % (VA[r], hx(1.0 / 1024), VA[r]))
        round_bf16_pair(k, MU[r], VA[r], 8)
        k.e('v_add_f32 v%d, %s, v%d' % (VA[r], hx(1e-5), VA[r]))
    round_bf16_pair(k, VA[0], VA[1], 8)
    for r in range(2): k.e('v_sqrt_f32 v%d, v%d' % (VA[r], VA[r]))
    k.e('s_nop 0')
    round_bf16_pair(k, VA[0], VA[1], 8)
    for r in range(2): k.e('v_rcp_f32 v%d, v%d' % (VA[r], VA[r]))
    k.e("""
    v_lshrrev_b32 v5, 1, v1
    v_mul_u32_u24 v5, 544, v5          ; cb*2*272
    v_and_b32 v7, 1, v1
    v_lshl_add_u32 v5, v7, 3, v5
    s_lshl_b32 s44, s3, 5
    v_add_u32 v5, s44, v5
    """)
    for r in range(2):
        x = X + 16 * r; pin = 8 + 8 * r
        for d in range(8): k.e(pk('add', x + 2 * d, x + 2 * d, (MU[r],)))
        for d in range(8): round_bf16_pair(k, x + 2 * d, x + 2 * d + 1, pin + d)
        for d in range(8): k.e(pk('mul', x + 2 * d, x + 2 * d, (VA[r],)))
        for d in range(8): k.e('v_cvt_pk_bf16_f32 v%d, v%d, v%d' % (pin + d, x + 2 * d, x + 2 * d + 1))
        for q, o in enumerate((0, 272, 64 * 272, 65 * 272)):
            k.e('ds_write_b64 v5, %s offset:%d' % (vr(pin + 2 * q, 2), o + 16 * r))
    k.e("""
    v_lshrrev_b32 v5, 4, v0            ; gi (p=0)
    v_and_b32 v7, 15, v0               ; row
    v_mul_u32_u24 v2, 272, v5
    v_lshl_add_u32 v2, v7, 4, v2       ; granule lds address
    v_lshlrev_b32 v4, 9, v5
    v_lshl_add_u32 v4, v7, 4, v4       ; global offset
    v_lshrrev_b32 v3, 1, v5
    v_lshlrev_b32 v3, 6, v3
    v_and_b32 v5, 1, v5
    v_lshl_add_u32 v3, v5, 4, v3
    v_add_u32 v3, %d, v3               ; table address: cb*64 + h*16
    s_lshr_b32 s44, s30, 1
    s_lshl_b32 s44, s44, 16
    s_and_b32 s45, s30, 1
    s_lshl_b32 s45, s45, 8
    s_add_u32 s44, s44, s45
    s_mov_b32 s48, %d
    s_cmp_lt_u32 s3, 4
    s_cselect_b32 s49, 0, 1.0
    s_waitcnt lgkmcnt(0)
    """ % (AUX_A, WS_MODP))
    if MP0 >= 2: rest_compute(0)
    mark(k, 1)
    if XT:
        srd(k, 36, 'ws', WS_N, 4 * MB)
        k.e('s_barrier')
        for p in range(4): k.e('ds_read_b128 %s, v2 offset:%d' % (vr(8 + 4 * p, 4), p * 32 * 272))
        for p in range(4):
            k.e('s_waitcnt lgkmcnt(%d)' % (3 - p))
            k.e('buffer_store_dwordx4 %s, v4, s[36:39], s44 offen%s' % (vr(8 + 4 * p, 4), WT))
            k.e('s_add_u32 s44, s44, 16384')
        mark(k, 3)
        signal(k, 'S')
        finish(k)
        k.need(128, AUX_A + 8192)
        return
    X = 24
    k.e('s_barrier')
    for p in range(4): k.e('ds_read_b128 %s, v2 offset:%d' % (vr(8 + 4 * p, 4), p * 32 * 272))
    for p in range(4):
        k.e('s_waitcnt lgkmcnt(%d)' % (3 - p))
        for d in range(4): unpack(k, X + 8 * p + 2 * d, X + 8 * p + 2 * d + 1, 8 + 4 * p + d)
    if TAGP:
        srd(k, 96, 'ws', WS_MODT, 64 * KB)
        lp = k.newlabel('wf'); le = k.newlabel('we')
        k.e('v_lshlrev_b32 v81, 4, v1')
        k.e('s_lshl_b32 s100, s3, 11')
        k.e('v_add_u32 v81, s100, v81')
        k.e('v_lshlrev_b32 v80, 3, v1')
        k.e('s_lshl_b32 s100, s3, 10')
        k.e('s_add_u32 s100, s100, %d' % AUX_A)
        k.e('v_add_u32 v80, s100, v80')
        k.e('s_mov_b32 s101, 0x100000')
        k.label(lp)
        for q in range(4):
            k.e('s_mov_b32 s48, %d' % (q * 16384))
            for hh in range(2): k.e('buffer_load_dwordx4 %s, v81, s[96:99], s48 offen offset:%d sc1' % (vr(96 + 8 * q + 4 * hh, 4), hh * 1024))
        k.e('s_mov_b64 s[50:51], 0')
        for n in range(8):
            k.e('s_waitcnt vmcnt(%d)' % (7 - n))
            k.e('v_cmp_ne_u64 vcc, s[84:85], %s' % vr(98 + 4 * n, 2))
            k.e('s_or_b64 s[50:51], s[50:51], vcc')
        k.e('s_cbranch_scc0 %s' % le)
        k.e('s_sub_u32 s101, s101, 1')
        k.e('s_sleep %d' % env('P0SLEEP', 1))
        k.e('s_cmp_lg_u32 s101, 0')
        k.e('s_cbranch_scc1 %s' % lp)
        k.label(le)
        mark(k, 2)
        for hh in range(2):
            b = 96 + 4 * hh
            k.e(pk('add', b, b, b + 8)); k.e(pk('add', b + 16, b + 16, b + 24)); k.e(pk('add', 64 + 2 * hh, b, b + 16))
    else:
        srd(k, 96, 'ws', WS_FL, FLSZ)
        lp = k.newlabel('wf'); le = k.newlabel('we')
        k.e("""
        s_lshl_b32 s100, s3, 11
        s_add_u32 s100, s100, %d
        v_lshlrev_b32 v%d, 7, v1
        v_add_u32 v80, %d, v6
        s_mov_b32 s101, 0x100000
        s_mov_b64 exec, 0xffff
        %s:
        buffer_load_dwordx2 %s, v%d, s[96:99], s100 offen sc1
        s_waitcnt vmcnt(0)
        v_cmp_ne_u64 vcc, s[84:85], %s
        s_sub_u32 s101, s101, 1
        s_nop 3
        s_cbranch_vccz %s
        s_mov_b64 exec, vcc
        s_sleep %d
        s_cmp_lg_u32 s101, 0
        s_cbranch_scc1 %s
        %s:
        s_mov_b64 exec, -1
        """ % (FL_MOD * 32, FV + 2, AUX_A, lp, vr(FV, 2), FV + 2, vr(FV, 2), le, env('P0SLEEP', 1), lp, le))
        mark(k, 2)
        for q in range(4):
            k.e('buffer_load_dwordx4 %s, v6, s[40:43], s48 offen sc1' % vr(64 + 4 * q, 4))
            k.e('s_add_u32 s48, s48, 8192')
        k.e('s_waitcnt vmcnt(0)')
        k.e(pk('add', 64, 64, 68)); k.e(pk('add', 66, 66, 70)); k.e(pk('add', 72, 72, 76)); k.e(pk('add', 74, 74, 78))
        k.e(pk('add', 64, 64, 72)); k.e(pk('add', 66, 66, 74))
    for d in range(2): round_bf16_pair(k, 64 + 2 * d, 65 + 2 * d, 68)
    for q in range(4): k.e('v_add_f32 v%d, s49, v%d' % (64 + q, 64 + q))
    for d in range(2): round_bf16_pair(k, 64 + 2 * d, 65 + 2 * d, 68)
    if TAGP:
        k.e('ds_write_b64 v80, v[64:65]')
        k.e('ds_write_b64 v80, v[66:67] offset:512')
    else: k.e('ds_write_b128 v80, v[64:67]')
    k.e('s_waitcnt lgkmcnt(0)')
    k.e('s_barrier')
    SC = 64; SH = 96
    for p in range(4):
        for sub in range(2):
            k.e('ds_read_b128 %s, v3 offset:%d' % (vr(SC + 8 * p + 4 * sub, 4), 4096 + p * 1024 + sub * 32))
            k.e('ds_read_b128 %s, v3 offset:%d' % (vr(SH + 8 * p + 4 * sub, 4), p * 1024 + sub * 32))
    for p in range(4):
        pin = 8 + 4 * p; x = X + 8 * p
        k.e('s_waitcnt lgkmcnt(%d)' % (12 - 4 * p))
        if env('NORND', 0):
            for d in range(4): k.e(pk('fma', x + 2 * d, x + 2 * d, SC + 8 * p + 2 * d, SH + 8 * p + 2 * d))
        else:
            for d in range(4): k.e(pk('mul', x + 2 * d, x + 2 * d, SC + 8 * p + 2 * d))
            for d in range(4): round_bf16_pair(k, x + 2 * d, x + 2 * d + 1, pin + d)
            for d in range(4): k.e(pk('add', x + 2 * d, x + 2 * d, SH + 8 * p + 2 * d))
        for d in range(4): k.e('v_cvt_pk_bf16_f32 v%d, v%d, v%d' % (pin + d, x + 2 * d, x + 2 * d + 1))
        k.e('buffer_store_dwordx4 %s, v4, s[36:39], s44 offen%s' % (vr(pin, 4), WT))
        k.e('s_add_u32 s44, s44, 16384')
    mark(k, 3)
    signal(k, 'S')
    finish(k)
    k.need(128, AUX_A + 10240)

def log2(n):
    l = n.bit_length() - 1
    assert 1 << l == n
    return l
class G: pass

def k_gemm(k, c, GM, GN, bm_log2, xm_log2, bn, TM, TN, WM, WN, K, KS, NS, X, Y, pre, pre2, epi, swap=(), aux=None, auxsz=0, auxbase=None,
           pf=None, aux_end=None, side=None, wait=None, sig=None, dep='X', GU=1, RWD=1, post=None, frbase=None, selfsig=False, RR=0, early=None, JG=1, lazyfix=False, SOFT=0, own=None, ownlim=None, altmap=False, prelast=None, DEFER=0, dcols=None):
    g = G()
    name = c.name
    xt = X[0] == 'xt'
    M16 = name in os.environ.get('M16', 'qkv,wo,win,wsp,wout').split(',')
    if xt: X = ('xf',) + X[1:]
    ROLL = env('ROLL_' + name, env('ROLL', 0 if name == 'qkv' else 1))
    LAG = 2 if ROLL else 1
    NS = env('NS_' + name, NS + LAG - 1)
    mb = TM // WM // 32; nb = TN // WN // 32
    S = KS // 16
    xb = TM * KS * 2; yb = TN * KS * 2; STAGE = xb + yb
    nst = K // KS
    solo = c.first and c.last
    g.k = k; g.mb = mb; g.nb = nb; g.TM = TM; g.TN = TN; g.AUX = NS * STAGE if solo or auxbase is None else auxbase
    assert NS * STAGE <= g.AUX
    phase_begin(k, c)
    k.e('''
    v_and_b32 v1, 63, v0               ; lane
    s_mov_b32 s46, s3
    s_and_b32 s47, s2, 7               ; xcd
    s_lshr_b32 s48, s2, 3              ; idx
    s_and_b32 s30, s47, %d
    s_lshl_b32 s30, s30, %d
    s_and_b32 s49, s48, %d
    s_add_u32 s30, s30, s49            ; tm
    s_lshr_b32 s31, s47, %d
    s_mul_i32 s31, s31, %d
    s_lshr_b32 s49, s48, %d
    s_add_u32 s31, s31, s49            ; tn
    ''' % ((1 << xm_log2) - 1, bm_log2, (1 << bm_log2) - 1, xm_log2, bn, bm_log2))
    if altmap:
        k.e('''
        s_and_b32 s30, s47, 3
        s_lshl_b32 s30, s30, 3
        s_and_b32 s49, s48, 3
        s_lshl_b32 s49, s49, 1
        s_add_u32 s30, s30, s49
        s_bfe_u32 s49, s48, 0x10002
        s_add_u32 s30, s30, s49
        ''')
    if env('MAP_' + name, 0):
        k.e('''
        s_lshr_b32 s31, s47, 1
        s_mul_i32 s31, s31, 28
        s_add_u32 s31, s31, s48
        s_and_b32 s30, s47, 1
        s_lshl_b32 s30, s30, 3
        s_and_b32 s49, s31, 7
        s_add_u32 s30, s30, s49
        s_lshr_b32 s31, s31, 3
        ''')
    lcomp = 'L_%s_comp' % name
    set_flag(k, sig)
    if pf or side:
        k.e('s_cmp_ge_u32 s2, %d' % (GM * GN))
        k.e('s_cbranch_scc1 L_%s_pf' % name)
    k.e('s_cmp_ge_u32 s46, 4')
    k.e('s_cbranch_scc1 %s' % lcomp)
    nx = xb // 1024 // 4; ny = yb // 1024 // 4
    assert nx * 4096 == xb and ny * 4096 == yb
    VX = 8; VY = VX + nx
    g.LV = VY + ny
    if X[0] == 'xf':
        C = X[2]; ncb = C // 16
        assert S % nx == 0 or nx % S == 0
        k.e('s_mul_i32 s50, s30, %d' % (TM // 32 * ncb * 1024))
        k.e('s_mul_i32 s51, s46, %d' % nx)
        k.e('s_lshr_b32 s52, s51, %d' % log2(S))
        k.e('s_and_b32 s51, s51, %d' % (S - 1))
        k.e('s_mul_i32 s52, s52, %d' % (ncb * 1024))
        k.e('s_lshl_b32 s51, s51, 10')
        k.e('s_add_u32 s50, s50, s52')
        k.e('s_add_u32 s50, s50, s51')
        k.e('v_lshl_add_u32 v%d, v1, 4, s50' % VX)
        for j in range(1, nx):
            k.e('v_add_u32 v%d, %d, v%d' % (VX + j, (j // S) * ncb * 1024 + (j % S) * 1024, VX))
        xadv = S * 1024
    else:
        ld = X[2]
        assert nx % 2 == 0
        k.e('s_mul_i32 s50, s30, %d' % (TM * ld))
        k.e('s_mul_i32 s51, s46, %d' % (nx * 8 * ld))
        k.e('s_add_u32 s50, s50, s51')
        k.e('v_lshrrev_b32 v2, 3, v1')
        k.e('v_lshl_add_u32 v2, v2, %d, s50' % log2(ld))
        k.e('v_and_b32 v3, 7, v1')
        k.e('v_lshrrev_b32 v4, 4, v1')
        k.e('v_xor_b32 v5, v4, v3')
        k.e('v_lshl_add_u32 v%d, v5, 4, v2' % VX)
        k.e('v_xor_b32 v5, 64, v%d' % VX)
        k.e('v_add_u32 v%d, %d, v5' % (VX + 1, 8 * ld))
        for j in range(2, nx):
            k.e('v_add_u32 v%d, %d, v%d' % (VX + j, (j - j % 2) * 8 * ld, VX + j % 2))
        xadv = KS * 2
    k.e('''
    v_lshrrev_b32 v2, 4, v1            ; u
    v_bfe_u32 v3, v1, 2, 2             ; (i>>2)&3
    v_and_b32 v4, 3, v1                ; i&3
    ''')
    if Y[0] == 'w':
        ld = Y[2]
        NP = TN // 64
        assert ny % NP == 0
        if M16:
            k.e('v_and_b32 v5, 2, v2')
            k.e('v_xor_b32 v4, v4, v5')
        k.e('v_lshrrev_b32 v5, 1, v2')
        k.e('v_lshl_add_u32 v5, v5, 2, v3')
        k.e('v_mul_u32_u24 v5, %d, v5' % ld)
        k.e('v_and_b32 v6, 1, v2')
        k.e('v_lshl_add_u32 v5, v6, 6, v5')
        k.e('v_lshl_add_u32 v5, v4, 4, v5')
        if Y[3] == 'qkv': tstride, segs = 128, [0, 2048, 4096]
        elif Y[3]: tstride, segs = Y[3]
        else: tstride, segs = TN * 2, [p * 128 for p in range(NP)]
        k.e('s_mul_i32 s50, s46, %d' % (ny // NP * 8 * ld))
        k.e('s_mul_i32 s51, s31, %d' % tstride)
        k.e('s_add_u32 s50, s50, s51')
        k.e('v_add_u32 v5, s50, v5')
        for j in range(ny):
            k.e('v_add_u32 v%d, %d, v5' % (VY + j, (j // NP) * 8 * ld + segs[j % NP]))
        yadv = KS * ld
    else:
        C = Y[2]; ncb = C // 16
        NB = TN // 32
        assert ny == NB and S == 4
        if M16:
            k.e('v_and_b32 v5, 2, v2')
            k.e('v_xor_b32 v3, v3, v5')
        k.e('v_lshl_add_u32 v5, v2, 2, v4')
        k.e('v_lshlrev_b32 v5, 4, v5')
        k.e('v_lshl_add_u32 v5, v3, 9, v5')
        k.e('s_lshr_b32 s50, s46, 1')
        k.e('s_mul_i32 s50, s50, %d' % (ncb * 1024))
        k.e('s_and_b32 s51, s46, 1')
        k.e('s_lshl_b32 s51, s51, 8')
        k.e('s_add_u32 s50, s50, s51')
        k.e('s_mul_i32 s51, s31, %d' % (TN // 16 * 1024))
        k.e('s_add_u32 s50, s50, s51')
        k.e('v_add_u32 v%d, s50, v5' % VY)
        for j in range(1, ny):
            k.e('v_add_u32 v%d, %d, v%d' % (VY + j, j * 2048, VY))
        yadv = 2 * ncb * 1024
    k.e('s_mul_i32 s55, s46, %d' % (nx * 1024))
    k.e('s_mul_i32 s56, s46, %d' % (ny * 1024))
    k.e('s_add_u32 s56, s56, %d' % xb)
    per = nx + ny
    assert per * NS <= 55 and nst >= 2 * NS
    k.e('s_waitcnt lgkmcnt(0)')
    mark(k, 0)
    if Y[0] == 'w': srd(k, 36, Y[1])
    else: srd(k, 36, 'ws', Y[1], 2048 * Y[2] * 2)
    if X[0] == 'xf': srd(k, 32, 'ws', X[1], 2048 * X[2] * 2)
    else: srd(k, 32, X[1])
    xfl = ' sc1' if X[0] == 'xf' else ''
    yfl = ' sc1' if Y[0] == 'z' else ''
    ntf = os.environ.get('NT_' + name, os.environ.get('NT', ''))
    if 'X' in ntf: xfl += ' nt'
    if 'Y' in ntf: yfl += ' nt'
    ownlds = name == 'wsp' and ZOWN and c.prev == 'win'
    OWN = own if (own and not c.first and (OWNF(name) or ownlds)) else None
    RW = env('RW_' + name, min(RWD, 2) if OWN else RWD); RC = env('RC_' + name, 1)
    assert nst % RW == 0
    if RW > 1:
        k.e('s_mul_i32 s54, s31, %d' % RC)
        k.e('s_add_u32 s54, s54, s30')
    if OWN:
        assert RW <= 2
        k.e(OWN)
        k.e('s_and_b32 s54, s54, 1' if RW > 1 else 's_mov_b32 s54, 0')
    out = []
    RB = 48
    dyn = [None]
    def soff(st, adv):
        if OWN:
            if st < 2: k.e('s_add_u32 s57, s68, %d' % st)
            else:
                k.e('s_cmp_le_u32 s68, %d' % (st - 2))
                k.e('s_cselect_b32 s57, %d, %d' % (st, st - 2))
                k.e('s_xor_b32 s57, s57, s54')
            k.e('s_mul_i32 s57, s57, %d' % adv)
        elif dyn[0] is not None:
            assert RW in (1, 2, 4)
            if RW > 1:
                k.e('s_add_u32 s57, s54, %d' % st)
                k.e('s_and_b32 s57, s57, %d' % (RW - 1))
                k.e('s_add_u32 s57, s57, s59')
                k.e('s_add_u32 s57, s57, %d' % (st // RW * RW))
            else: k.e('s_add_u32 s57, s59, %d' % st)
            k.e('s_mul_i32 s57, s57, %d' % adv)
        elif RW > 1:
            k.e('s_add_u32 s57, s54, %d' % st)
            k.e('s_and_b32 s57, s57, %d' % (RW - 1))
            k.e('s_mul_i32 s57, s57, %d' % adv)
            if st // RW: k.e('s_add_u32 s57, s57, %d' % (st // RW * RW * adv))
        else: k.e('s_mov_b32 s57, %d' % (st * adv))
    def opinfo(op): return (nx, 's55', VX, 32, xadv, xfl) if op == 'X' else (ny, 's56', VY, 36, yadv, yfl)
    def throttle(n):
        if len(out) + n > 60:
            k.e('s_waitcnt vmcnt(40)'); del out[:len(out) - 40]
    def iss(op, st):
        slot = (st % NS) * STAGE
        n, base, V, sd, adv, fl = opinfo(op)
        if op == ind and st in Rset:
            if ('r', st) in out:
                last = max(i for i, t in enumerate(out) if t == ('r', st))
                k.e('s_waitcnt vmcnt(%d)' % (len(out) - 1 - last)); del out[:last + 1]
            r0 = RB + Rset.index(st) * n * 4
            for j in range(n):
                o = slot + j * 1024
                k.e('ds_write_b128 v%d, %s offset:%d' % (44 + o // 65536, vr(r0 + 4 * j, 4), o % 65536))
            return
        throttle(n)
        soff(st, adv)
        for j in range(n):
            k.e('s_add_u32 m0, %s, %d' % (base, slot + j * 1024))
            k.e('s_nop 0')
            k.e('buffer_load_dwordx4 v%d, %s, s57 offen%s lds' % (V + j, sr(sd), fl))
            out.append(st)
    def issr(st):
        n, base, V, sd, adv, fl = opinfo(ind)
        throttle(n)
        soff(st, adv)
        r0 = RB + Rset.index(st) * n * 4
        for j in range(n):
            k.e('buffer_load_dwordx4 %s, v%d, %s, s57 offen' % (vr(r0 + 4 * j, 4), V + j, sr(sd)))
            out.append(('r', st))
    def wait_stage(st):
        lg = ' lgkmcnt(%d)' % min(15, opinfo(ind)[0] * len([r_ for r_ in Rset if st < r_ < st + NS - LAG])) if st in Rset else ''
        if st in out:
            last = max(i for i, t in enumerate(out) if t == st)
            k.e('s_waitcnt vmcnt(%d)%s' % (len(out) - 1 - last, lg))
            del out[:last + 1]
        elif lg: k.e('s_waitcnt' + lg)
    I0 = env('I0_' + name, 2)
    ind = 'Y' if dep == 'X' else 'X'
    fusedw = wait and not c.first and not env('WLATE_' + name, 0)
    R = env('RR_' + name, RR) if fusedw else 0
    Rset = sorted(set(NS + (2 * i + 1) * (nst - NS) // (2 * R) for i in range(R))) if R else []
    if Rset:
        assert RB + len(Rset) * opinfo(ind)[0] * 4 <= 256
        k.need(RB + len(Rset) * opinfo(ind)[0] * 4, 0)
        k.e('v_lshl_add_u32 v44, v1, 4, %s' % opinfo(ind)[1])
        k.e('v_add_u32 v45, 0x10000, v44')
    if xt:
        DX = env('DX', 4); NR = 64; TB = NR + DX * 8; TX = TB + 32
        assert nx == 2 and S == 2
        k.need(TX + 16, 0)
        k.e('v_lshl_add_u32 v44, v1, 4, s55')
        k.e('v_add_u32 v45, 0x10000, v44')
        k.e('v_lshrrev_b32 v46, 5, v1')
        k.e('v_lshlrev_b32 v46, 4, v46')
        k.e('v_add_u32 v46, %d, v46' % AUX_A)
        def ldn(st):
            soff(st, xadv)
            for j in range(2):
                k.e('buffer_load_dwordx4 %s, v%d, s[32:35], s57 offen sc1' % (vr(NR + (st % DX) * 8 + 4 * j, 4), VX + j))
                out.append(('n', st))
        TW = TX + 16
        k.need(TW + 8, 0)
        def tabrd(st):
            soff(st, 128)
            k.e('v_add_u32 v47, s57, v46')
            for j in range(2):
                for sub in range(2):
                    k.e('ds_read_b128 %s, v47 offset:%d' % (vr(TB + 16 * j + 4 * sub, 4), 4096 + j * 64 + sub * 32))
                    k.e('ds_read_b128 %s, v47 offset:%d' % (vr(TB + 16 * j + 8 + 4 * sub, 4), j * 64 + sub * 32))
        def xform(st):
            if ('n', st) in out:
                last = max(i for i, t in enumerate(out) if t == ('n', st))
                k.e('s_waitcnt vmcnt(%d)' % (len(out) - 1 - last)); del out[:last + 1]
            r0 = NR + (st % DX) * 8
            for d in range(8): unpack(k, TX + 2 * d, TX + 2 * d + 1, r0 + d)
            if st + DX < nst: ldn(st + DX)
            k.e('s_waitcnt lgkmcnt(0)')
            for j in range(2):
                for e in range(8): k.e('v_fma_f32 v%d, v%d, v%d, v%d' % (TX + 8 * j + e, TX + 8 * j + e, TB + 16 * j + e, TB + 16 * j + 8 + e))
            for j in range(2):
                for d in range(4): k.e('v_cvt_pk_bf16_f32 v%d, v%d, v%d' % (TW + 4 * j + d, TX + 8 * j + 2 * d, TX + 8 * j + 2 * d + 1))
                o = (st % NS) * STAGE + j * 1024
                k.e('ds_write_b128 v%d, %s offset:%d' % (44 + o // 65536, vr(TW + 4 * j, 4), o % 65536))
            if st + 1 < nst: tabrd(st + 1)
        for st in range(NS): iss('Y', st)
        k.e('s_barrier')
        mark(k, 1)
        out.extend(['p'] * 4)
        mod_table(k, 24, between=lambda: [ldn(st) for st in range(DX)], nb=2 * DX)
        del out[:len(out) - 2 * DX]
        if env('XPRIO', 0): k.e('s_setprio %d' % env('XPRIO', 0))
        XL = env('XL', 2)
        assert XL >= 2
        tabrd(0)
        for st in range(XL): xform(st)
        def capture(fn):
            n0 = len(k.lines); fn(); got = k.lines[n0:]; del k.lines[n0:]
            return got
        def step(st):
            lg = ' lgkmcnt(0)' if st + XL > nst else ''
            if st in out:
                last = max(i for i, t in enumerate(out) if t == st)
                k.e('s_waitcnt vmcnt(%d)%s' % (len(out) - 1 - last, lg)); del out[:last + 1]
            elif lg: k.e('s_waitcnt' + lg)
            if st == 0: mark(k, 2)
            k.e('s_barrier')
            sx = st + XL; sy = st + NS - LAG
            doy = st >= LAG and sy < nst
            if sx >= nst:
                if doy: iss('Y', sy)
                return
            if ('n', sx) in out:
                last = max(i for i, t in enumerate(out) if t == ('n', sx))
                nw = 's_waitcnt vmcnt(%d)' % (len(out) - 1 - last + (1 if doy else 0)); del out[:last + 1]
            else: nw = None
            yl = capture(lambda: iss('Y', sy)) if doy else []
            yp = []; cur = []
            for l in yl:
                if 's_nop' in l: continue
                cur.append(l)
                if 'buffer_load' in l: yp.append(cur); cur = []
            nl = capture(lambda: ldn(sx + DX)) if (sx + DX < nst or dyn[0] is not None) else []
            nl = [l.replace('s57', 's58') for l in nl]
            npc = [nl[:-1], nl[-1:]] if nl else [[], []]
            r0 = NR + (sx % DX) * 8
            un = capture(lambda: [unpack(k, TX + 2 * d, TX + 2 * d + 1, r0 + d) for d in range(8)])
            fm = ['    v_fma_f32 v%d, v%d, v%d, v%d' % (TX + 8 * j + e, TX + 8 * j + e, TB + 16 * j + e, TB + 16 * j + 8 + e) for j in range(2) for e in range(8)]
            def put(piece):
                if len(piece) >= 2 and 'm0' in piece[-2]: piece = piece[:-1] + ['    s_nop 0', piece[-1]]
                k.lines.extend(piece)
            if yp: put(yp[0])
            if nw: k.e(nw)
            k.lines.extend(un[:8])
            if yp: put(yp[1])
            k.lines.extend(un[8:])
            if yp: put(yp[2])
            k.e('s_waitcnt lgkmcnt(0)')
            k.lines.extend(fm[:10])
            k.lines.extend(npc[0])
            k.lines.extend(fm[10:])
            if sx + 1 < nst: tabrd(sx + 1)
            k.lines.extend(npc[1])
            for j in range(2):
                for d in range(4): k.e('v_cvt_pk_bf16_f32 v%d, v%d, v%d' % (TW + 4 * j + d, TX + 8 * j + 2 * d, TX + 8 * j + 2 * d + 1))
                o = (sx % NS) * STAGE + j * 1024
                k.e('ds_write_b128 v%d, %s offset:%d' % (44 + o // 65536, vr(TW + 4 * j, 4), o % 65536))
        assert NS == 4 and DX == 4 and XL == 2 and LAG == 1 and nst == 32
        for st in range(5): step(st)
        k.e('s_mov_b32 s59, 0')
        k.label('L_%s_xl' % name)
        dyn[0] = 0
        before = list(out)
        for st in range(5, 9): step(st)
        dyn[0] = None
        sh = lambda t, d: (t[0], t[1] + d) if isinstance(t, tuple) else t + d
        assert [sh(t, 4) for t in before] == out, (before, out)
        k.e('s_add_u32 s59, s59, 4')
        k.e('s_cmp_lt_u32 s59, 24')
        k.e('s_cbranch_scc1 L_%s_xl' % name)
        out[:] = [sh(t, 20) for t in out]
        for st in range(29, 32): step(st)
    elif wait and not c.first and env('WLATE_' + name, 0):
        handoff(k, wait[0], wait[1])
    if xt: pass
    elif fusedw:
        for st in range(NS): iss(ind, st)
        for st in Rset: issr(st)
        if ownlds:
            handoff(k, wait[0], wait[1])
            mark(k, 1)
            I1 = env('I1_' + name, 3)
            for st in range(2, I1): iss(dep, st)
            wait_stage(0); mark(k, 2); k.e('s_barrier')
            for st in range(I1, NS): iss(dep, st)
        elif OWN:
            l1 = k.newlabel('no'); l2 = k.newlabel('no')
            k.e('s_barrier')
            if ownlim:
                k.e('s_cmp_ge_u32 s2, %d' % ownlim); k.e('s_cbranch_scc1 %s' % l1)
            n0 = len(k.lines)
            iss(dep, 0); iss(dep, 1)
            dup = k.lines[n0:]
            k.label(l1)
            handoff(k, wait[0], wait[1])
            mark(k, 1)
            if ownlim:
                k.e('s_cmp_lt_u32 s2, %d' % ownlim); k.e('s_cbranch_scc1 %s' % l2)
                k.lines.extend(dup)
                k.label(l2)
            I1 = env('I1_' + name, 3)
            for st in range(2, I1): iss(dep, st)
            wait_stage(0); mark(k, 2); k.e('s_barrier')
            for st in range(I1, NS): iss(dep, st)
        else:
            handoff(k, wait[0], wait[1])
            mark(k, 1)
            for st in range(I0): iss(dep, st)
            wait_stage(0); mark(k, 2); k.e('s_barrier')
            for st in range(I0, NS): iss(dep, st)
    else:
        for st in range(I0): iss(ind, st); iss(dep, st)
        mark(k, 1)
        wait_stage(0); mark(k, 2); k.e('s_barrier')
        for st in range(I0, NS): iss(ind, st); iss(dep, st)
    FS = bool(Rset) or env('STATIC', 0) or xt
    if FS and not xt:
        for st in range(1, nst):
            if st == nst - 1: k.e('s_waitcnt vmcnt(0) lgkmcnt(0)')
            else: wait_stage(st)
            if st == nst - 1 and aux_end: aux_end(g)
            k.e('s_barrier')
            nx_st = st + NS - LAG
            if st >= LAG and nx_st < nst:
                iss(dep, nx_st); iss(ind, nx_st)
                if nx_st == nst - 1 and aux:
                    out.extend(['aux'] * aux(g))
    for st in range(1, NS if not FS else 0):
        wait_stage(st); k.e('s_barrier')
        if st >= LAG: iss('Y', st + NS - LAG); iss('X', st + NS - LAG)
    if not FS:
        s0 = 2 * NS - LAG
        k.e('s_add_u32 s60, s55, %d' % (NS * STAGE))
        k.e('s_add_u32 s55, s55, %d' % ((s0 % NS) * STAGE))
        k.e('s_add_u32 s56, s56, %d' % ((s0 % NS) * STAGE))
        k.e('s_mov_b32 s57, %d' % (s0 * xadv))
        k.e('s_mov_b32 s58, %d' % (s0 * yadv))
        k.e('s_mov_b32 s59, %d' % s0)
        ll = 'L_%s_lloop' % name
        k.label(ll)
        if OWN:
            k.e('s_sub_u32 s57, s59, 2')
            k.e('s_cmp_le_u32 s68, s57')
            k.e('s_cselect_b32 s57, s59, s57')
            k.e('s_xor_b32 s57, s57, s54')
            k.e('s_mul_i32 s58, s57, %d' % yadv)
            k.e('s_mul_i32 s57, s57, %d' % xadv)
        elif RW > 1:
            k.e('s_add_u32 s57, s54, s59')
            k.e('s_and_b32 s57, s57, %d' % (RW - 1))
            k.e('s_andn2_b32 s58, s59, %d' % (RW - 1))
            k.e('s_or_b32 s57, s57, s58')
            k.e('s_mul_i32 s58, s57, %d' % yadv)
            k.e('s_mul_i32 s57, s57, %d' % xadv)
        k.e('s_waitcnt vmcnt(%d)' % (per * (NS - 1 - LAG)))
        k.e('s_barrier')
        for j in range(ny):
            k.e('s_add_u32 m0, s56, %d' % (j * 1024))
            k.e('s_nop 0')
            k.e('buffer_load_dwordx4 v%d, s[36:39], s58 offen%s lds' % (VY + j, yfl))
        for j in range(nx):
            k.e('s_add_u32 m0, s55, %d' % (j * 1024))
            k.e('s_nop 0')
            k.e('buffer_load_dwordx4 v%d, s[32:35], s57 offen%s lds' % (VX + j, xfl))
        k.e('s_add_u32 s57, s57, %d' % xadv)
        k.e('s_add_u32 s58, s58, %d' % yadv)
        k.e('s_add_u32 s55, s55, %d' % STAGE)
        k.e('s_add_u32 s56, s56, %d' % STAGE)
        k.e('s_cmp_eq_u32 s55, s60')
        k.e('s_cselect_b32 s61, %d, 0' % (NS * STAGE))
        k.e('s_sub_u32 s55, s55, s61')
        k.e('s_sub_u32 s56, s56, s61')
        k.e('s_add_u32 s59, s59, 1')
        k.e('s_cmp_lt_u32 s59, %d' % nst)
        k.e('s_cbranch_scc1 %s' % ll)
        naux = aux(g) if aux else 0
        NXT = dict(qkv=('attn', 1), wo=('win', 1), win=('wsp', 2), wsp=('wout', 1))
        if CPF >= 2:
            if name in NXT: naux += code_pf(k, 'L_%s_epi' % name, 'L_%s_epi' % NXT[name][0], NXT[name][1] * 8192, vt=22, vd=23)
            else: naux += code_pf(k, 'L_%s_epi' % name, 'L_text_end', 8192, vt=22, vd=23)
        for st in range(nst - NS + LAG, nst):
            k.e('s_waitcnt vmcnt(%d)' % (per * (nst - st - 1) + naux if st < nst - 1 else 0))
            if st == nst - 1 and aux_end: aux_end(g)
            k.e('s_barrier')
    LE = env('LE_' + name, env('LE', 0))
    g.LE = LE and not c.last
    if not c.last and not LE: k.e('s_barrier')
    if post: post(g)
    if not c.last and LE: k.e('s_barrier')
    signal(k)
    endpgm(k)
    k.label(lcomp)
    k.e('s_setprio 1')
    k.e('s_sub_u32 s46, s46, 4')
    k.e('s_lshr_b32 s50, s46, %d' % log2(WN))
    k.e('s_and_b32 s51, s46, %d' % (WN - 1))
    ACC = 8
    nacc = mb * nb * 16
    FR = frbase if frbase else ACC + nacc
    GU = env('GU_' + name, GU)
    g.acc = lambda i, j: ACC + (i * nb + j) * 16
    g.M16 = M16
    k.e('v_and_b32 v3, 31, v1')
    k.e('v_lshrrev_b32 v4, 5, v1')
    if M16:
        JG = env('JG_' + name, JG)
        KSN = KS // 32; NU = KSN * JG; nbj = nb // JG
        XA = FR + 16 * mb + 16 * nbj
        nxa = KSN if X[0] == 'rm' else 1
        nya = 2
    else:
        NU = S // GU
        assert NU % 2 == 0
        fs1 = (mb + nb) * 4
        fsz = fs1 * GU
        XA = FR + 2 * fsz
        nxa = S if X[0] == 'rm' else 1
        nya = 1
    XB = XA; XC = XA + nxa; YB = XC + nxa; YC = YB + nya
    g.free = YC + nya
    g.FR = FR
    NP = TN // 64; NB = TN // 32
    if Y[0] == 'w':
        if Y[3] == 'qkv': ywave = 's_lshl_b32 s52, s51, 8'
        else:
            assert nb % 2 == 0
            ywave = 's_mul_i32 s52, s51, %d' % (nb // 2 * 1024)
        def yblk(j): return j * 1024 if Y[3] == 'qkv' else (j // 2) * 1024 + (j % 2) * 256
    else: ywave = 's_mul_i32 s52, s51, %d' % (nb * 1024)
    if M16:
        k.e('v_and_b32 v5, 15, v1')
        k.e('v_lshrrev_b32 v6, 4, v1')
        if X[0] == 'xf':
            k.e('s_mul_i32 s52, s50, %d' % (mb * S * 1024))
            k.e('v_lshl_add_u32 v7, v5, 4, s52')
            k.e('v_lshl_add_u32 v%d, v6, 9, v7' % XB)
        else:
            k.e('s_mul_i32 s52, s50, %d' % (mb * 4096))
            k.e('v_lshl_add_u32 v2, v5, 7, s52')
            k.e('v_lshrrev_b32 v5, 1, v5')
            for ks in range(KSN):
                k.e('v_add_u32 v7, %d, v6' % (4 * ks))
                k.e('v_xor_b32 v7, v7, v5')
                k.e('v_lshl_add_u32 v%d, v7, 4, v2' % (XB + ks))
        k.e('v_mul_u32_u24 v5, %d, v4' % (2 * NP * 1024 if Y[0] == 'w' else NB * 1024))
        k.e('v_and_b32 v6, 1, v6')
        k.e('v_lshl_add_u32 v5, v6, 9, v5')
        k.e('v_lshl_add_u32 v5, v6, %d, v5' % (5 if Y[0] == 'w' else 7))
        k.e('v_bfe_u32 v6, v1, 2, 2')
        k.e('v_lshl_add_u32 v5, v6, %d, v5' % (6 if Y[0] == 'w' else 4))
        k.e('v_bfe_u32 v6, v1, 1, 1')
        k.e('v_lshl_add_u32 v5, v6, %d, v5' % (3 if Y[0] == 'w' else 6))
        k.e('v_and_b32 v6, 1, v1')
        k.e('v_lshl_add_u32 v5, v6, %d, v5' % (4 if Y[0] == 'w' else 3))
        k.e(ywave)
        k.e('s_add_u32 s52, s52, %d' % xb)
        k.e('v_add_u32 v%d, s52, v5' % YB)
        k.e('v_xor_b32 v%d, %d, v%d' % (YB + 1, 32 if Y[0] == 'w' else 128, YB))
    else:
        if X[0] == 'xf':
            k.e('s_mul_i32 s52, s50, %d' % (mb * S * 1024))
            k.e('v_lshl_add_u32 v%d, v1, 4, s52' % XB)
        else:
            assert KS == 64
            k.e('s_mul_i32 s52, s50, %d' % (mb * 4096))
            k.e('v_bfe_u32 v5, v3, 1, 3')
            k.e('v_lshl_add_u32 v6, v3, 7, s52')
            for ss in range(S):
                k.e('v_add_u32 v7, %d, v4' % (2 * ss))
                k.e('v_xor_b32 v7, v7, v5')
                k.e('v_lshl_add_u32 v%d, v7, 4, v6' % (XB + ss))
        k.e("""
        v_lshlrev_b32 v5, 9, v4            ; h*512
        v_bfe_u32 v6, v1, 2, 2             ; r
        v_lshl_add_u32 v5, v6, %d, v5
        v_bfe_u32 v6, v1, 4, 1             ; G&1
        v_lshl_add_u32 v5, v6, %d, v5
        v_bfe_u32 v6, v1, 1, 1             ; c>>1
        v_and_b32 v7, 1, v1                ; c&1
        """ % ((6, 5) if Y[0] == 'w' else (4, 7)))
        if Y[0] == 'w':
            k.e('v_lshl_add_u32 v5, v6, 4, v5')
            k.e('v_lshl_add_u32 v5, v7, 3, v5')
        else:
            k.e('v_lshl_add_u32 v5, v7, 6, v5')
            k.e('v_lshl_add_u32 v5, v6, 3, v5')
        k.e(ywave)
        k.e('s_add_u32 s52, s52, %d' % xb)
        k.e('v_add_u32 v%d, s52, v5' % YB)
    k.e('s_waitcnt lgkmcnt(0)')
    mark(k, 0)
    pre(g)
    if M16:
        def xr16(sp, ks, i, rh): return FR + (sp[0] if isinstance(sp, tuple) else (sp * KSN + ks) % 2) * 8 * mb + (2 * i + rh) * 4
        def yr16(sp, u, j, t): return FR + 16 * mb + (sp[1] if isinstance(sp, tuple) else (sp * NU + u) % 2) * 8 * nbj + ((j % nbj) * 2 + t) * 4
        def cols(jg, sp): return sp[2] if isinstance(sp, tuple) else range(jg * nbj, (jg + 1) * nbj)
        def reads(u, sp=0):
            ks = u // JG; jg = u % JG
            xr = []; yr = []
            if jg == 0 or isinstance(sp, tuple):
                for i in range(mb):
                    for rh in range(2):
                        if X[0] == 'xf': xr.append('ds_read_b128 %s, v%d offset:%d' % (vr(xr16(sp, ks, i, rh), 4), XC, (i * S + 2 * ks) * 1024 + rh * 256))
                        else: xr.append('ds_read_b128 %s, v%d offset:%d' % (vr(xr16(sp, ks, i, rh), 4), XC + ks, i * 4096 + rh * 2048))
            for j in cols(jg, sp):
                for t in range(2):
                    for rd in range(2):
                        o = (4 * ks + rd) * NP * 1024 + yblk(j) if Y[0] == 'w' else (2 * ks * NB + j) * 1024 + rd * 256
                        yr.append('ds_read_b64_tr_b16 %s, v%d offset:%d' % (vr(yr16(sp, u, j, t) + 2 * rd, 2), YC + t, o))
            return xr[:1] + yr[:2] + xr[1:] + yr[2:]
        def mfmas(u, first, sp=0):
            ks = u // JG; jg = u % JG
            out = []
            for j in cols(jg, sp):
                for t in range(2):
                    for i in range(mb):
                        for rh in range(2):
                            x_ = xr16(sp, ks, i, rh); y_ = yr16(sp, u, j, t)
                            if j in swap: a = g.acc(i, j) + 8 * rh + 4 * t; p, q = x_, y_
                            else: a = g.acc(i, j) + 8 * t + 4 * rh; p, q = y_, x_
                            out.append('v_mfma_f32_16x16x32_bf16 %s, %s, %s, %s' % (vr(a, 4), vr(p, 4), vr(q, 4), '0' if first and ks == 0 else vr(a, 4)))
            return out
        def fix(i, j):
            a = g.acc(i, j)
            for hb in range(2):
                for e in range(4):
                    k.e('%s v%d, v%d' % ('v_permlane32_swap_b32' if j in swap else 'v_permlane16_swap_b32', a + 8 * hb + e, a + 8 * hb + 4 + e))
    else:
        def yoff(j, ss, rd):
            return (2 * ss + rd) * NP * 1024 + yblk(j) if Y[0] == 'w' else (ss * NB + j) * 1024 + rd * 256
        def xf(ss, i): return FR + ((ss // GU) % 2) * fsz + (ss % GU) * fs1 + i * 4
        def yf(ss, j): return FR + ((ss // GU) % 2) * fsz + (ss % GU) * fs1 + (mb + j) * 4
        def reads1(ss):
            xr = []; yr = []
            for i in range(mb):
                if X[0] == 'xf':
                    xr.append('ds_read_b128 %s, v%d offset:%d' % (vr(xf(ss, i), 4), XC, (i * S + ss) * 1024))
                else:
                    xr.append('ds_read_b128 %s, v%d offset:%d' % (vr(xf(ss, i), 4), XC + ss, i * 4096))
            for j in range(nb):
                for rd in range(2):
                    yr.append('ds_read_b64_tr_b16 %s, v%d offset:%d' % (vr(yf(ss, j) + 2 * rd, 2), YC, yoff(j, ss, rd)))
            return [xr[0]] + yr[:2] + xr[1:] + yr[2:]
        def reads(u, sp=0): return [r for ss in range(u * GU, (u + 1) * GU) for r in reads1(ss)]
        def mfmas(u, first, sp=0):
            out = []
            for ss in range(u * GU, (u + 1) * GU):
                for j in range(nb):
                    for i in range(mb):
                        a = g.acc(i, j)
                        c_ = '0' if first and ss == 0 else vr(a, 16)
                        p, q = (xf(ss, i), yf(ss, j)) if j in swap else (yf(ss, j), xf(ss, i))
                        out.append('v_mfma_f32_32x32x16_bf16 %s, %s, %s, %s' % (vr(a, 16), vr(p, 4), vr(q, 4), c_))
            return out
        def fix(i, j): pass
    g.fix = fix
    def setaddr():
        for t in range(nxa): k.e('v_add_u32 v%d, s53, v%d' % (XC + t, XB + t))
        for t in range(nya): k.e('v_add_u32 v%d, s53, v%d' % (YC + t, YB + t))
    RPGV = [env('RPG2_' + name, (5 if mb * nb == 2 else (2 if name == 'qkv' else 3)) * (1 if M16 else 2))]
    import re
    def regs_of(txt):
        return [(int(a_), int(b_)) for a_, b_ in re.findall(r'v\[(\d+):(\d+)\]', txt)]
    def advance():
        n0 = len(k.lines)
        k.e('s_add_u32 s53, s53, %d' % STAGE)
        k.e('s_cmp_eq_u32 s53, %d' % (NS * STAGE))
        k.e('s_cselect_b32 s53, 0, s53')
        setaddr()
        got = [l.strip() for l in k.lines[n0:]]; del k.lines[n0:]
        return got
    EARLY = env('EARLYADV', 1)
    RM = [ROLL]
    def unit(u, first, rs, sp, extra):
        ms = mfmas(u, first, sp)
        prev = reads(u, sp)
        dst = [regs_of(r)[0] for r in prev]
        ROLL = RM[0]
        covered = -1 if ROLL else len(prev); issued = 0; xi = 0
        WMAX = env('WMAX_' + name, env('WMAX', 9))
        nspread = len(ms) - (min(len(extra) // 2 + 1, len(ms) // 3) if extra else 0)
        for mi, m in enumerate(ms):
            ops = regs_of(m)[1:3]
            need = max(i for i, d in enumerate(dst) if any(o[0] <= d[0] <= o[1] for o in ops))
            if need > covered:
                n = min(len(prev) - 1 - need + issued, WMAX)
                k.e('s_waitcnt lgkmcnt(%d)' % n)
                covered = len(prev) - 1 - (n - issued) if n >= issued else len(prev) - 1
            k.e(m)
            e = min(len(rs), -(-len(rs) * (mi + 1) // nspread) if ROLL == 1 else -(-RPGV[0] * (mi + 1) // 2))
            if issued == len(rs):
                for _ in range(2):
                    if xi < len(extra): k.e(extra[xi]); xi += 1
            while issued < e: k.e(rs[issued]); issued += 1
        while issued < len(rs): k.e(rs[issued]); issued += 1
        while xi < len(extra): k.e(extra[xi]); xi += 1
    def stage(first, last, sp, tail=()):
        for u in range(NU):
            if u == NU - 1 and not last and not EARLY:
                for x in advance(): k.e(x)
            if u < NU - 1: rs = reads(u + 1, sp)
            elif last: rs = []
            else: rs = reads(0, sp ^ 1)
            extra = []
            if EARLY and not last and u == (NU - 2) % NU: extra = advance()
            if u == NU - 1: extra = extra + list(tail)
            if not RM[0] or (last and u == NU - 1 and not c.last and not LE): k.e('s_waitcnt lgkmcnt(0)')
            if u == NU - 1 and not (last and (c.last or LE)): k.e('s_barrier')
            unit(u, first, rs, sp, extra)
    k.e('s_mov_b32 s53, 0')
    setaddr()
    if xt:
        handoff_multi(k, [(4, 's_mov_b32 s100, %d' % FL_MOD, 64), (5, 's_mov_b32 s100, %d' % (FL_MOD + 256), 64), (6, wait[0], wait[1])])
        mod_table(k, FR)
    elif wait: handoff(k, wait[0], wait[1], role='C')
    if early: early(g)
    k.e('s_barrier')
    mark(k, 1)
    for r in reads(0): k.e(r)
    if EARLY and NU == 1:
        for x in advance(): k.e(x)
    DEFER = env('DEFER_' + name, DEFER)
    npair = (nst - 1 - max(DEFER, 1)) // 2
    assert nst % 2 == 0 and (DEFER == 0 or (DEFER % 2 == 1 and M16 and KSN == 1 and not LE and DEFER <= NS))
    soft = env('SOFT_' + name, SOFT)
    srp = env('SRP_' + name, 1 if name == 'qkv' else 2)
    segs_ = [(npair, RPGV[0], ROLL)] if not soft else [(soft, srp, 0), (npair - soft, RPGV[0], ROLL)]
    RPGV[0] = segs_[0][1]; RM[0] = segs_[0][2]
    stage(True, False, 0)
    pre2(g)
    for si, (cnt_, rp_, rm_) in enumerate(segs_):
        RPGV[0] = rp_; RM[0] = rm_
        k.e('s_mov_b32 s54, %d' % cnt_)
        lp = 'L_%s_loop%s' % (name, si or '')
        k.label(lp)
        stage(False, False, 1); stage(False, False, 0, tail=['s_sub_u32 s54, s54, 1', 's_cmp_lg_u32 s54, 0'])
        k.e('s_cbranch_scc1 %s' % lp)
    k.label('L_%s_epi' % name)
    if prelast: prelast(g)
    def addr_for(st):
        o = (st % NS) * STAGE
        return ['v_add_u32 v%d, %d, v%d' % (XC, o, XB)] + ['v_add_u32 v%d, %d, v%d' % (YC + t, o, YB + t) for t in range(nya)]
    if DEFER:
        s0_ = nst - DEFER
        c0, c1 = dcols
        y0 = NU % 2
        for n_ in range(DEFER):
            par = ((1 + n_) % 2, (y0 + n_) % 2, c0)
            if n_ < DEFER - 1:
                for x in addr_for(s0_ + n_ + 1): k.e(x)
                rs = reads(0, (par[0] ^ 1, par[1] ^ 1, c0))
            else: rs = []
            if not RM[0] or (n_ == 0 and JG == 1): k.e('s_waitcnt lgkmcnt(0)')
            if n_ < DEFER - 1: k.e('s_barrier')
            unit(0, False, rs, par, [])
        def deferred():
            for x in addr_for(s0_): k.e(x)
            for r in reads(0, (0, 0, c1)): k.e(r)
            for n_ in range(DEFER):
                par = (n_ % 2, n_ % 2, c1)
                if n_ < DEFER - 1:
                    for x in addr_for(s0_ + n_ + 1): k.e(x)
                    rs = reads(0, (par[0] ^ 1, par[1] ^ 1, c1))
                else: rs = []
                if not RM[0] or n_ == DEFER - 1: k.e('s_waitcnt lgkmcnt(0)')
                if n_ == DEFER - 1: k.e('s_barrier')
                unit(0, False, rs, par, [])
            k.e('s_nop 7')
        g.deferred = deferred
    else:
        g.deferred = None
        stage(False, True, 1)
    mark(k, 2)
    if M16:
        k.e('s_nop 7')
        if not lazyfix:
            for j in range(nb):
                for i in range(mb): fix(i, j)
            k.e('s_nop 1')
    epi(g)
    if not selfsig:
        if g.LE and not getattr(g, 'ended', 0): k.e('s_barrier')
        signal(k, 'C')
    if side:
        endpgm(k)
        k.label('L_%s_pf' % name)
        k.e('s_sub_u32 s30, s2, %d' % (GM * GN))
        k.e('s_cmp_ge_u32 s30, %d' % side[0])
        k.e('s_cbranch_scc1 L_%s_pfe' % name)
        side[1](k, 0 if solo else AUX_B + 4096)
        k.label('L_%s_pfe' % name)
        signal(k, 'A')
    if pf:
        endpgm(k)
        k.label('L_%s_pf' % name)
        npf = 256 - GM * GN
        per_wg = SIZES[pf] // npf
        assert per_wg % (8192 * 2) == 0
        k.e('s_sub_u32 s30, s2, %d' % (GM * GN))
        k.e('s_mul_i32 s30, s30, %d' % per_wg)
        if env('PFOFF', 0): k.e('s_mov_b32 s30, 0x40000000')
        k.e('v_lshlrev_b32 v2, 4, v0')
        k.e('s_mov_b32 s31, %d' % (per_wg // 16384))
        k.e('s_waitcnt lgkmcnt(0)')
        srd(k, 32, pf)
        k.label('L_%s_pfl' % name)
        k.e('buffer_load_dwordx4 v[8:11], v2, s[32:35], s30 offen')
        k.e('s_add_u32 s30, s30, 8192')
        k.e('buffer_load_dwordx4 v[12:15], v2, s[32:35], s30 offen')
        k.e('s_add_u32 s30, s30, 8192')
        k.e('s_waitcnt vmcnt(6)')
        k.e('s_sub_u32 s31, s31, 1')
        k.e('s_cmp_lg_u32 s31, 0')
        k.e('s_cbranch_scc1 L_%s_pfl' % name)
        signal(k, 'A')
    finish(k)
    assert g.free <= 256, g.free
    k.need(g.free, max(NS * STAGE, g.AUX + auxsz, (AUX_B + 12288) if side and not solo else 0))

def alloc(g, n, align=4):
    b = (g.free + align - 1) // align * align
    g.free = b + n
    return b
def nop(g): pass

def store_xf_tile(g, a, T, voff, srdn, soff, imm):
    k = g.k
    for d in range(8):
        k.e('v_cvt_pk_bf16_f32 v%d, v%d, v%d' % (T + d, a + 2 * d, a + 2 * d + 1))
    if os.environ.get('SDATA') == 'zero' and k.c.name == 'qkv':
        for d in range(8): k.e('v_mov_b32 v%d, 0' % (T + d))
    if os.environ.get('SDATA') == 'rand' and k.c.name == 'qkv':
        import random
        for d in range(8):
            k.e('s_mul_i32 s68, s2, %d' % (random.getrandbits(31) | 1))
            k.e('v_add_u32 v%d, s68, v0' % (T + d))
            k.e('s_mov_b32 s69, %d' % (random.getrandbits(31) | 1))
            k.e('v_mul_lo_u32 v%d, v%d, s69' % (T + d, T + d))
            k.e('v_and_b32 v%d, 0xbfffbfff, v%d' % (T + d, T + d))
    if env('PACE', -1) >= 0: k.e('s_waitcnt vmcnt(%d)' % env('PACE', -1))
    k.e('buffer_store_dwordx4 %s, v%d, %s, %s offen offset:%d%s' % (vr(T, 4), voff, sr(srdn), soff, imm, WT))
    k.e('buffer_store_dwordx4 %s, v%d, %s, %s offen offset:%d%s' % (vr(T + 4, 4), voff, sr(srdn), soff, imm + 1024, WT))

def pk(op, d, *src, sel=None):
    s = 'v_pk_%s_f32 %s' % (op, vr(d, 2))
    hi = []
    for x in src:
        if isinstance(x, int): s += ', ' + vr(x, 2); hi.append(1)
        elif isinstance(x, tuple): s += ', ' + vr(x[0], 2); hi.append(0)
        elif x.startswith('s['): s += ', ' + x; hi.append(1)
        else: s += ', ' + x; hi.append(0)
    if 0 in hi: s += ' op_sel_hi:[%s]' % ','.join(map(str, hi))
    return s

def k_qkv(k, c):
    def pre(g):
        k = g.k
        srd(k, 32, 'ws', WS_Q, 4 * MB); srd(k, 36, 'ws', WS_KV, 8 * MB)
        g.L16 = alloc(g, 1, 1); g.LV16 = alloc(g, 1, 1)
        k.e('v_lshlrev_b32 v%d, 4, v1' % g.L16)
        if g.M16:
            k.e('v_and_b32 v5, 3, v1')
            k.e('v_lshl_add_u32 v5, v4, 4, v5')
            k.e('v_bfe_u32 v6, v1, 2, 1')
            k.e('v_lshl_add_u32 v5, v6, 3, v5')
            k.e('v_bfe_u32 v6, v1, 3, 1')
            k.e('v_lshl_add_u32 v5, v6, 2, v5')
            k.e('v_bfe_u32 v6, v1, 4, 1')
            k.e('v_lshl_add_u32 v5, v6, 5, v5')
            k.e('v_lshlrev_b32 v%d, 4, v5' % g.LV16)
        else: k.e('v_mov_b32 v%d, v%d' % (g.LV16, g.L16))
        k.e('''
        s_lshl_b32 s60, s31, 1
        s_add_u32 s60, s60, s51
        s_lshl_b32 s60, s60, 6
        s_lshl_b32 s61, s30, 2
        s_add_u32 s60, s60, s61
        s_lshl_b32 s61, s50, 1
        s_add_u32 s60, s60, s61           ; head*64 + rb0
        s_lshl_b32 s61, s60, 11           ; Q offset
        s_lshl_b32 s62, s60, 12           ; KV offset
        s_add_u32 s63, s62, 4096
        s_mov_b32 s66, %s
        s_mov_b32 s67, %s
        ''' % ((hx(32 ** -0.5 * LOG2E * float(os.environ.get('QERR', '1'))),) * 2))
    def epi(g):
        k = g.k
        T = g.FR
        k.e('s_nop 7')
        n = 0
        for i in range(2):
            a = g.acc(i, 0)
            for r in range(0, 16, 2): k.e(pk('mul', a + r, a + r, 's[66:67]'))
            store_xf_tile(g, a, T + 8 * n, g.L16, 32, 's61', i * 2048); n += 1
        for j in (1, 2):
            for i in range(2):
                store_xf_tile(g, g.acc(i, j), T + 8 * (n % 5), g.L16 if j == 1 else g.LV16, 36, 's62' if i == 0 else 's63', (j - 1) * 2048); n += 1
    QSP = env('QSP', 0)
    def epi2(g):
        k = g.k
        T = g.FR
        KP = [g.acc(0, 1), g.acc(1, 1)]; VP = [g.acc(0, 2), g.acc(1, 2)]; QP = [g.acc(0, 0), g.acc(1, 0)]
        for j in (1, 2):
            for i in range(2):
                g.fix(i, j)
                k.e('s_nop 0')
                store_xf_tile(g, g.acc(i, j), g.acc(i, j), g.L16 if j == 1 else g.LV16, 36, 's62' if i == 0 else 's63', (j - 1) * 2048)
        if g.deferred:
            g.deferred()
            if env('QSIG', 1): signal(k, 'C')
        for i in range(2):
            a = g.acc(i, 0)
            g.fix(i, 0)
            k.e('s_nop 0')
            for r in range(0, 16, 2): k.e(pk('mul', a + r, a + r, 's[66:67]'))
            for d in range(8): k.e('v_cvt_pk_bf16_f32 v%d, v%d, v%d' % (a + d, a + 2 * d, a + 2 * d + 1))
        if QSP == 1: signal(k, 'C')
        k.e('s_mul_i32 s68, s46, 5120')
        k.e('s_add_u32 s68, s68, %d' % AUX_A)
        k.e('v_add_u32 v5, s68, v%d' % g.L16)
        Sreg = [T, T + 16, T + 32, T + 48]
        for qi in range(2):
            for ki in range(2):
                S_ = Sreg[2 * qi + ki]
                k.e('v_mfma_f32_32x32x16_bf16 %s, %s, %s, 0' % (vr(S_, 16), vr(KP[ki], 4), vr(QP[qi], 4)))
                k.e('v_mfma_f32_32x32x16_bf16 %s, %s, %s, %s' % (vr(S_, 16), vr(KP[ki] + 4, 4), vr(QP[qi] + 4, 4), vr(S_, 16)))
        for q in range(4): k.e('ds_write_b128 v5, %s offset:%d' % (vr(QP[q // 2] + 4 * (q % 2), 4), q * 1024))
        if AOWN:
            k.e('s_lshl_b32 s69, s46, 15')
            k.e('v_add_u32 v6, s69, v%d' % g.L16)
            k.e('v_add_u32 v7, s69, v%d' % g.LV16)
            for i in range(2):
                for hh in range(2):
                    k.e('ds_write_b128 v6, %s offset:%d' % (vr(KP[i] + 4 * hh, 4), i * 4096 + hh * 1024))
                    k.e('ds_write_b128 v7, %s offset:%d' % (vr(VP[i] + 4 * hh, 4), i * 4096 + 2048 + hh * 1024))
        k.e('v_lshl_add_u32 v5, v1, 3, s68')
        if QSP == 2: signal(k, 'C')
        k.e('s_nop 7')
        MM = T + 64
        for qi in range(2):
            a0, a1 = Sreg[2 * qi], Sreg[2 * qi + 1]
            k.e('v_max_f32 v%d, v%d, v%d' % (MM + qi, a0, a1))
            for r in range(1, 16): k.e('v_max3_f32 v%d, v%d, v%d, v%d' % (MM + qi, MM + qi, a0 + r, a1 + r))
        for qi in range(2): k.e('v_mov_b32 v%d, v%d' % (MM + 2 + qi, MM + qi))
        k.e('s_nop 1')
        for qi in range(2): k.e('v_permlane32_swap_b32 v%d, v%d' % (MM + qi, MM + 2 + qi))
        k.e('s_nop 1')
        for qi in range(2): k.e('v_max_f32 v%d, v%d, v%d' % (MM + qi, MM + qi, MM + 2 + qi))
        for qi in range(2): k.e('v_sub_f32 v%d, %s, v%d' % (MM + qi, hx(-40.0), MM + qi))
        k.e('ds_write_b64 v5, %s offset:4096' % vr(MM, 2))
        k.e('s_waitcnt lgkmcnt(0)')
    sig = 's_lshl_b32 s100, s31, 8\ns_lshl_b32 s101, s30, 4\ns_add_u32 s100, s100, s101\ns_add_u32 s100, s100, %d' % FL_QKV
    wait = ('s_lshl_b32 s100, s30, 8\ns_add_u32 s100, s100, %d' % FL_LN1, 8)
    k_gemm(k, c, 16, 16, 3, 1, 4, 128, 192, 2, 2, 1024, 32, 4, ('xt', WS_N, 1024) if XT else ('xf', WS_H, 1024), ('w', 'wqkv', 6144, 'qkv'), pre, nop, epi2 if AT2 else epi, selfsig=bool(AT2 and (QSP or AOWN == 1 or (env('DEFER_qkv', 0) and env('QSIG', 1)))), lazyfix=bool(AT2), DEFER=0, dcols=([1, 2], [0]), swap=(2,), wait=wait, sig=sig, RWD=4, SOFT=4)

def k_proj(k, c, K, X, wname, final):
    NQ = 2 if MP0 else 4
    def modq_loads(k):
        for q in range(NQ):
            k.e('s_add_u32 s62, s69, %d' % (q * 16384))
            k.e('s_add_u32 s63, s70, %d' % (q * 16384))
            k.e('buffer_load_dwordx4 %s, v7, s[64:67], s62 offen sc1' % vr(24 + 4 * q, 4))
            k.e('buffer_load_dword v%d, v6, s[64:67], s63 offen sc1' % (40 + q))
    def aux(g):
        k = g.k
        if final:
            srd(k, 40, 'ws', WS_MOD, 6144 * 4)
            k.e('''
            v_and_b32 v7, 31, v1
            v_lshlrev_b32 v7, 4, v7
            s_lshl_b32 s62, s31, 9
            s_add_u32 s62, s62, %d
            buffer_load_dwordx4 v[24:27], v7, s[40:43], s62 offen sc1
            ''' % (5 * 4096))
            return 1
        srd(k, 64, 'ws', 0, 256 * KB)
        k.e('''
        v_and_b32 v2, 31, v1
        v_lshrrev_b32 v3, 5, v1
        v_lshlrev_b32 v2, 4, v2
        v_lshl_add_u32 v2, v3, 13, v2
        s_lshl_b32 s62, s31, 9
        s_add_u32 s62, s62, %d
        v_and_b32 v6, 15, v1
        v_lshlrev_b32 v6, 2, v6
        s_lshl_b32 s68, s2, 6
        s_add_u32 s63, s68, %d
        s_mov_b32 s69, s62
        s_mov_b32 s70, s63
        v_mov_b32 v7, v2
        ''' % (WS_MODQ, WS_MODQ))
        modq_loads(k)
        srd(k, 40, 'x')
        k.e('''
        v_lshrrev_b32 v2, 4, v1
        v_and_b32 v3, 15, v1
        s_lshl_b32 s62, s30, 17            ; tm*64*2048
        s_lshl_b32 s63, s31, 8
        s_add_u32 s62, s62, s63
        s_lshl_b32 s63, s46, 15            ; lw*16 rows
        s_add_u32 s62, s62, s63
        s_lshl_b32 s63, s46, 12
        s_add_u32 s63, s63, %d
        ''' % g.AUX)
        for j in range(4):
            k.e('v_add_u32 v4, %d, v2' % (4 * j))
            k.e('v_xor_b32 v5, v4, v3')
            k.e('v_lshlrev_b32 v5, 4, v5')
            k.e('v_lshl_add_u32 v5, v4, 11, v5')
            k.e('s_add_u32 m0, s63, %d' % (j * 1024))
            k.e('s_nop 0')
            k.e('buffer_load_dwordx4 v5, s[40:43], s62 offen lds')
        return 4 + 2 * NQ
    def aux_end(g):
        k = g.k
        lp = k.newlabel('mqp'); lc = k.newlabel('mqc')
        if final:
            poll_init(k)
            k.e('s_branch %s' % lc)
            k.label(lp)
            k.e('buffer_load_dwordx4 v[24:27], v7, s[40:43], s62 offen sc1')
            k.e('s_waitcnt vmcnt(0)')
            k.label(lc)
            k.e('v_max3_u32 v2, v24, v25, v26')
            k.e('v_max_u32 v2, v2, v27')
            k.e('v_cmp_eq_u32 vcc, -1, v2')
            poll_back(k, lp)
            k.e('v_add_u32 v2, %d, v7' % (g.AUX + 16 * KB))
            k.e('ds_write_b128 v2, v[24:27]')
            k.e('s_waitcnt lgkmcnt(0)')
            return
        if MP0:
            k.e('v_cmp_lt_u32 vcc, 31, v1')
            k.e(pk('add', 24, 24, 28)); k.e(pk('add', 26, 26, 30))
            k.e('v_add_f32 v40, v40, v41')
        else:
            poll_init(k)
            k.e('s_branch %s' % lc)
            k.label(lp)
            modq_loads(k)
            k.e('s_waitcnt vmcnt(0)')
            k.label(lc)
            k.e('v_max_u32 v2, v24, v25')
            for r in range(26, 44, 2): k.e('v_max3_u32 v2, v2, v%d, v%d' % (r, r + 1))
            k.e('v_cmp_eq_u32 vcc, -1, v2')
            poll_back(k, lp)
            k.e(pk('add', 24, 24, 28)); k.e(pk('add', 26, 26, 30)); k.e(pk('add', 32, 32, 36)); k.e(pk('add', 34, 34, 38))
            k.e(pk('add', 24, 24, 32)); k.e(pk('add', 26, 26, 34))
            k.e('v_cmp_lt_u32 vcc, 31, v1')
            k.e('v_add_f32 v40, v40, v41')
            k.e('v_add_f32 v42, v42, v43')
            k.e('v_add_f32 v40, v40, v42')
        k.e('v_cndmask_b32 v7, 0, 1.0, vcc')
        for d in range(2): round_bf16_pair(k, 24 + 2 * d, 25 + 2 * d, 28)
        for e in range(4): k.e('v_add_f32 v%d, v7, v%d' % (24 + e, 24 + e))
        for d in range(2): round_bf16_pair(k, 24 + 2 * d, 25 + 2 * d, 28)
        k.e('v_lshlrev_b32 v2, 4, v1')
        k.e('v_add_u32 v2, %d, v2' % (g.AUX + 16 * KB))
        k.e('ds_write_b128 v2, v[24:27]')
        k.e("""
        s_lshr_b32 s62, s2, 6
        s_cmp_eq_u32 s62, 2
        s_cselect_b32 s62, 1.0, 0
        v_cvt_pk_bf16_f32 v40, v40, v40
        v_lshlrev_b32 v40, 16, v40
        v_add_f32 v40, s62, v40
        v_cvt_pk_bf16_f32 v40, v40, v40
        v_lshlrev_b32 v40, 16, v40
        s_add_u32 s68, s68, 8192
        v_cmp_gt_u32 vcc, 16, v0
        s_and_saveexec_b64 s[62:63], vcc
        buffer_store_dword v40, v6, s[64:67], s68 offen%s
        s_mov_b64 exec, s[62:63]
        s_waitcnt lgkmcnt(0)
        """ % WT)
    def pre(g):
        k = g.k
        g.L16 = alloc(g, 1, 1); g.RA = alloc(g, 1, 1); g.CA = alloc(g, 1, 1); g.TA = alloc(g, 1, 1)
        g.RES = alloc(g, 16); g.GA = alloc(g, 32); g.G2 = alloc(g, 32) if not final else None
        srd(k, 36, 'ws', WS_X1, 8 * MB)
        if final: srd(k, 32, 'out')
        else: srd(k, 32, 'ws', WS_ST1, 256 * KB)
        k.e('v_lshlrev_b32 v%d, 4, v1' % g.L16)
        k.e('''
        s_lshl_b32 s60, s31, 7
        s_lshl_b32 s61, s51, 6
        s_add_u32 s60, s60, s61           ; col0
        s_lshl_b32 s61, s30, 1
        s_add_u32 s61, s61, s50           ; rb
        s_lshl_b32 s62, s61, 16
        s_lshl_b32 s63, s60, 1
        s_add_u32 s63, s63, s62           ; row-major byte offset of (row0,col0)
        s_lshl_b32 s64, s60, 6
        s_add_u32 s64, s64, s62           ; XF offset
        s_add_u32 s65, s64, %d            ; X1S offset
        ; tile image address: row*256 + ((wn*8) ^ (row%%16))*16 + h*8
        s_lshl_b32 s66, s50, 13
        s_add_u32 s66, s66, %d
        v_and_b32 v5, 15, v3
        s_lshl_b32 s67, s51, 3
        v_xor_b32 v5, s67, v5
        v_lshlrev_b32 v5, 4, v5
        v_lshl_add_u32 v5, v3, 8, v5
        v_lshl_add_u32 v5, v4, 3, v5
        v_add_u32 v%d, s66, v5
        ; column vector address: wn*256 + h*16
        s_lshl_b32 s67, s51, 8
        s_add_u32 s67, s67, %d
        v_lshl_add_u32 v%d, v4, 4, s67
        ''' % (4 * MB, g.AUX, g.RA, g.AUX + 16 * KB, g.CA))
    KX = same_kernel('wo', 'wout') and env('KEEPX', 1)
    def early(g):
        if final or MP0: return
        k = g.k
        D = g.GA; MC = g.RES; MT = g.RES + 8
        k.e('s_lshl_b32 s68, s46, 13')
        k.e('s_add_u32 s68, s68, %d' % AUX_A)
        k.e('v_add_u32 v%d, s68, v%d' % (MT, g.L16))
        for j in range(8): k.e('ds_read_b128 %s, v%d offset:%d' % (vr(D + 4 * j, 4), MT, j * 1024))
        for j in range(8):
            k.e('s_waitcnt lgkmcnt(%d)' % (7 - j))
            for d in range(4):
                unpack(k, MT, MT + 1, D + 4 * j + d)
                op = 'v_mul_f32' if j == 0 else 'v_fmac_f32'
                k.e('%s v%d, v%d, v%d' % (op, MC + 2 * d, MT, MSV + j))
                k.e('%s v%d, v%d, v%d' % (op, MC + 2 * d + 1, MT + 1, MSV + j))
        k.e('s_nop 1')
        for e in range(4): k.e('v_permlane32_swap_b32 v%d, v%d' % (MC + e, MC + 4 + e))
        k.e('s_nop 1')
        for e in range(4): k.e('v_add_f32 v%d, v%d, v%d' % (MC + e, MC + e, MC + 4 + e))
        k.e('s_nop 1')
        for e in range(2): k.e('v_permlane16_swap_b32 v%d, v%d' % (MC + e, MC + 2 + e))
        k.e('s_nop 1')
        for e in range(2): k.e('v_add_f32 v%d, v%d, v%d' % (MC + e, MC + e, MC + 2 + e))
        k.e('s_nop 1')
        for e in range(2): k.e('v_add_f32_dpp v%d, v%d, v%d row_ror:8 row_mask:0xf bank_mask:0xf' % (MC + e, MC + e, MC + e))
        k.e('''
        v_and_b32 v%d, 7, v1
        v_lshlrev_b32 v%d, 5, v%d
        v_lshrrev_b32 v%d, 4, v1
        v_lshl_add_u32 v%d, v%d, 3, v%d
        v_add_u32 v%d, s68, v%d
        ds_write_b64 v%d, %s
        s_waitcnt lgkmcnt(0)
        ''' % (MT, MT, MT, MT + 1, MT, MT + 1, MT, MT, MT, MT, vr(MC, 2)))
    def pre2(g):
        k = g.k
        if not final and not MP0:
            MC = g.RES; MT = g.RES + 8
            l = k.newlabel('noC')
            k.e('s_cmp_lg_u32 s46, 1')
            k.e('s_cbranch_scc1 %s' % l)
            srd(k, 80, 'ws', 0, 256 * KB)
            k.e('v_lshlrev_b32 v%d, 2, v1' % (MT + 1))
            k.e('v_add_u32 v%d, %d, v%d' % (MT, AUX_A, MT + 1))
            for w in range(4): k.e('ds_read_b32 v%d, v%d offset:%d' % (MC + w, MT, w * 8192))
            k.e('''
            s_and_b32 s68, s2, 3
            s_lshl_b32 s68, s68, 14
            s_lshr_b32 s69, s2, 2
            s_lshl_b32 s69, s69, 8
            s_add_u32 s68, s68, s69
            s_add_u32 s68, s68, %d
            s_waitcnt lgkmcnt(0)
            v_add_f32 v%d, v%d, v%d
            v_add_f32 v%d, v%d, v%d
            v_add_f32 v%d, v%d, v%d
            v_min_u32 v%d, -2, v%d
            buffer_store_dword v%d, v%d, s[80:83], s68 offen sc1
            ''' % (WS_MODQ, MC, MC, MC + 1, MC + 2, MC + 2, MC + 3, MC, MC, MC + 2, MC, MC, MC, MT + 1))
            k.label(l)
        if final and not KX:
            for j in range(2):
                for t in range(2):
                    k.e('buffer_load_dwordx4 %s, v%d, s[36:39], s64 offen offset:%d sc1' % (vr(g.RES + 8 * j + 4 * t, 4), g.L16, (2 * j + t) * 1024))
    PL = env('PRELAST', 1)
    def operands(g):
        k = g.k
        for j in range(2):
            for q in range(4):
                k.e('ds_read_b128 %s, v%d offset:%d' % (vr(g.GA + 16 * j + 4 * q, 4), g.CA, j * 128 + q * 32))
        if not final or KX:
            for j in range(2):
                for q in range(4):
                    k.e('v_xor_b32 v%d, %d, v%d' % (g.TA, (j * 4 + q) * 16, g.RA))
                    k.e('ds_read_b64 %s, v%d' % (vr(g.RES + 8 * j + 2 * q, 2), g.TA))
        if not final:
            for j in range(2):
                for q in range(4):
                    k.e('ds_read_b128 %s, v%d offset:%d' % (vr(g.G2 + 16 * j + 4 * q, 4), g.CA, 512 + j * 128 + q * 32))
    def epi(g):
        k = g.k
        assert g.M16
        if not PL: operands(g)
        k.e('s_waitcnt lgkmcnt(0)' if (KX or not final) else 's_waitcnt vmcnt(0) lgkmcnt(0)')
        T = g.FR
        for j in range(2):
            a = g.acc(0, j)
            for d in range(8):
                unpack(k, T + 2 * (d % 4), T + 2 * (d % 4) + 1, g.RES + 8 * j + d)
                k.e(pk('fma', a + 2 * d, a + 2 * d, g.GA + 16 * j + 2 * d, T + 2 * (d % 4)))
            if not final:
                if j == 0: k.e('s_waitcnt lgkmcnt(0)')
                for d in range(8): k.e(pk('mul', g.G2 + 16 * j + 2 * d, a + 2 * d, g.G2 + 16 * j + 2 * d))
                store_xf_tile(g, g.G2 + 16 * j, g.GA + 16 * j, g.L16, 36, 's65', j * 2048)
        def keep():
            for j in range(2):
                a = g.acc(0, j)
                if final or KX:
                    for d in range(8):
                        k.e('v_cvt_pk_bf16_f32 v%d, v%d, v%d' % (g.RES + 8 * j + d, a + 2 * d, a + 2 * d + 1))
                    for q in range(4):
                        k.e('v_xor_b32 v%d, %d, v%d' % (g.TA, (j * 4 + q) * 16, g.RA))
                        k.e('ds_write_b64 v%d, %s' % (g.TA, vr(g.RES + 8 * j + 2 * q, 2)))
                else:
                    store_xf_tile(g, a, g.RES + 8 * j, g.L16, 36, 's64', j * 2048)
        if final: keep()
        if final:
            k.e('''
            v_lshrrev_b32 v5, 3, v1
            v_and_b32 v6, 7, v1
            s_lshl_b32 s67, s51, 3
            v_or_b32 v7, s67, v6
            v_xor_b32 v7, v7, v5
            v_lshlrev_b32 v7, 4, v7
            v_lshl_add_u32 v7, v5, 8, v7
            v_add_u32 v7, s66, v7              ; b=0 address
            v_xor_b32 v%d, 128, v7             ; rows 8..15: slot ^ 8
            v_lshlrev_b32 v5, 11, v5
            v_lshl_add_u32 v5, v6, 4, v5       ; global: row*2048 + c*16
            s_waitcnt lgkmcnt(0)
            ''' % g.TA)
            for b in range(4):
                k.e('ds_read_b128 %s, v%d offset:%d' % (vr(g.GA + 4 * b, 4), 7 if b % 2 == 0 else g.TA, b * 2048))
            for b in range(4):
                k.e('s_waitcnt lgkmcnt(%d)' % (3 - b))
                k.e('buffer_store_dwordx4 %s, v5, s[32:35], s63 offen%s' % (vr(g.GA + 4 * b, 4), os.environ.get('OUTFLAG', ' sc1')))
                k.e('s_add_u32 s63, s63, %d' % (8 * 2048))
            l = k.newlabel('ep')
            k.e('s_or_b32 s67, s2, s46')
            k.e('s_cbranch_scc1 %s' % l)
            srd(k, 96, 'ws', WS_EPOCH, 8)
            k.e('v_mov_b32 v%d, s84' % FV); k.e('v_mov_b32 v%d, s85' % (FV + 1)); k.e('v_mov_b32 v%d, 0' % (FV + 2))
            flag_store(k, '0')
            k.label(l)
        else:
            S1 = T + 8; S2 = T + 10
            a0 = g.acc(0, 0)
            k.e(pk('add', S1, a0, a0 + 2))
            k.e(pk('mul', S2, a0, a0))
            k.e(pk('fma', S2, a0 + 2, a0 + 2, S2))
            for r in range(4, 32, 2):
                k.e(pk('add', S1, S1, a0 + r))
                k.e(pk('fma', S2, a0 + r, a0 + r, S2))
            k.e('v_add_f32 v%d, v%d, v%d' % (S1, S1, S1 + 1))
            k.e('v_add_f32 v%d, v%d, v%d' % (S1 + 1, S2, S2 + 1))
            k.e('v_mov_b32 v%d, v%d' % (S2, S1))
            k.e('v_mov_b32 v%d, v%d' % (S2 + 1, S1 + 1))
            k.e('''
            s_lshl_b32 s66, s30, 4
            s_lshl_b32 s67, s31, 1
            s_add_u32 s66, s66, s67
            s_add_u32 s66, s66, s51
            s_lshl_b32 s66, s66, 9             ; (tm*16+part)*512
            s_lshl_b32 s67, s50, 8
            s_add_u32 s66, s66, s67
            v_lshlrev_b32 v5, 3, v3
            ''')
            k.e('v_permlane32_swap_b32 v%d, v%d' % (S1, S2))
            k.e('v_permlane32_swap_b32 v%d, v%d' % (S1 + 1, S2 + 1))
            k.e('s_nop 1')
            k.e(pk('add', S1, S1, S2))
            k.e('s_mov_b32 exec_hi, 0')
            k.e('buffer_store_dwordx2 %s, v5, s[32:35], s66 offen%s' % (vr(S1, 2), WT))
            k.e('s_mov_b32 exec_hi, -1')
            if g.LE and KX:
                k.e('s_barrier'); g.ended = 1
            keep()
            k.e('s_waitcnt lgkmcnt(0)')
    if final:
        sig = None
        wait = ('s_lshr_b32 s100, s30, 1\ns_lshl_b32 s100, s100, 8\ns_add_u32 s100, s100, %d' % FL_WSP, 56)
    else:
        sig = 's_lshr_b32 s100, s30, 1\ns_lshl_b32 s100, s100, 8\ns_and_b32 s101, s30, 1\ns_lshl_b32 s101, s101, 7\ns_add_u32 s100, s100, s101\ns_lshl_b32 s101, s31, 4\ns_add_u32 s100, s100, s101\ns_add_u32 s100, s100, %d' % FL_WO
        wait = ('s_lshr_b32 s100, s30, %d\ns_lshl_b32 s100, s100, 8\ns_add_u32 s100, s100, %d' % (1 if AT2 else 2, FL_ATT), 16 if AT2 else 32)
    k_gemm(k, c, 32, 8, 3, 2, 4, 64, 128, 2, 2, K, 64, 4, X, ('w', wname, 2048, None), pre, pre2, epi, aux=aux, auxsz=17 * KB, auxbase=AUX_A, aux_end=aux_end, wait=wait, sig=sig, GU=2, RWD=4, early=early, altmap=True, prelast=operands if PL else None,
           own='s_lshr_b32 s68, s47, 2\ns_mul_i32 s68, s68, 7\ns_lshr_b32 s69, s48, 2\ns_add_u32 s68, s68, s69\ns_min_u32 s68, s68, 13\ns_lshl_b32 s68, s68, 1' if final else None, ownlim=224)

ZKEEP = 72
MSV = 240
def stats_finish(k, S, n, R, M, T):
    k.e('v_mov_b32 v%d, v%d' % (T, S))
    k.e('v_mov_b32 v%d, v%d' % (T + 1, S + 1))
    k.e('s_nop 1')
    k.e('v_permlane32_swap_b32 v%d, v%d' % (S, T))
    k.e('v_permlane32_swap_b32 v%d, v%d' % (S + 1, T + 1))
    k.e('s_nop 1')
    k.e(pk('add', S, S, T))
    k.e('v_mul_f32 v%d, %s, v%d' % (S, hx(1.0 / n), S))
    k.e('v_mul_f32 v%d, v%d, v%d' % (T, S, S))
    k.e('v_mov_b32 v%d, %s' % (T + 1, hx(1.0 / n)))
    k.e('v_fma_f32 v%d, v%d, v%d, -v%d' % (S + 1, S + 1, T + 1, T))
    k.e('v_max_f32 v%d, 0, v%d' % (S + 1, S + 1))
    k.e('v_add_f32 v%d, %s, v%d' % (S + 1, hx(1e-5), S + 1))
    k.e('v_rsq_f32 v%d, v%d' % (R, S + 1))
    k.e('s_nop 0')
    k.e('v_mul_f32_e64 v%d, -v%d, v%d' % (M, S, R))

def uw_job(k, LB):
    k.e("""
    v_lshrrev_b32 v2, 3, v0
    v_and_b32 v3, 7, v0
    v_lshlrev_b32 v4, 6, v2
    s_mov_b32 s31, %d
    v_mul_lo_u32 v5, v2, s31
    v_lshl_add_u32 v5, v3, 4, v5
    s_movk_i32 s44, %d
    s_movk_i32 s45, %d
    s_lshl_b32 s30, s30, 1
    s_waitcnt lgkmcnt(0)
    """ % (16 * 7168, 4 * 4096, 3 * 4096))
    srd(k, 36, 'w_in'); srd(k, 40, 'ws', 0, 64 * KB)
    AV = 72; SV = 88; UA = 104; WA = 112
    lq = k.newlabel('uwq')
    poll_init(k)
    k.label(lq)
    for q in range(4): k.e('buffer_load_dwordx4 %s, v4, s[40:43], s44 offen offset:%d sc1' % (vr(AV + 4 * q, 4), q * 16))
    for q in range(4): k.e('buffer_load_dwordx4 %s, v4, s[40:43], s45 offen offset:%d sc1' % (vr(SV + 4 * q, 4), q * 16))
    if not k.c.first:
        k.e('s_waitcnt vmcnt(0)')
        k.e('v_max_u32 v6, v%d, v%d' % (AV, AV + 1))
        for r in range(AV + 2, AV + 32, 2): k.e('v_max3_u32 v6, v6, v%d, v%d' % (r, r + 1))
        k.e('v_cmp_eq_u32 vcc, -1, v6')
        poll_back(k, lq)
    k.e('s_mov_b32 s50, %d' % LB)
    lp = k.newlabel('uw')
    k.label(lp)
    k.e('s_lshl_b32 s31, s30, 7')
    for j in range(16):
        k.e('buffer_load_dwordx4 %s, v5, s[36:39], s31 offen' % vr(8 + 4 * j, 4))
        k.e('s_add_u32 s31, s31, 7168')
    for j in range(16):
        k.e('s_waitcnt vmcnt(%d)' % (15 - j))
        for d in range(4):
            unpack(k, 6, 7, 8 + 4 * j + d)
            for acc, cf in ((UA, AV), (WA, SV)):
                op = 'v_mul_f32' if j == 0 else 'v_fmac_f32'
                k.e('%s v%d, v6, v%d' % (op, acc + 2 * d, cf + j))
                k.e('%s v%d, v7, v%d' % (op, acc + 2 * d + 1, cf + j))
    red_lanes(k, list(range(UA, UA + 16)), list(range(8, 24)))
    lskip = k.newlabel('uwskip')
    k.e("""
    s_lshl_b32 s47, s46, 9
    s_add_u32 s47, s47, s50
    v_lshl_add_u32 v2, v3, 5, s47      ; pass*4096 + wave*512 + chunk*32
    v_cmp_gt_u32 vcc, 8, v1
    s_and_saveexec_b64 s[48:49], vcc
    ds_write_b128 v2, v[104:107]
    ds_write_b128 v2, v[108:111] offset:16
    ds_write_b128 v2, v[112:115] offset:256
    ds_write_b128 v2, v[116:119] offset:272
    s_mov_b64 exec, s[48:49]
    s_waitcnt lgkmcnt(0)
    s_barrier
    s_cmp_ge_u32 s46, 2
    s_cbranch_scc1 %s
    v_lshl_add_u32 v2, v0, 2, s50      ; wave0: u cols, wave1: w0 cols
    """ % lskip)
    for w in range(8): k.e('ds_read_b32 v%d, v2 offset:%d' % (8 + w, w * 512))
    k.e('s_waitcnt lgkmcnt(0)')
    for w in range(1, 8): k.e('v_add_f32 v8, v8, v%d' % (8 + w))
    k.e("""
    v_min_u32 v8, -2, v8
    v_lshlrev_b32 v2, 2, v1
    s_lshl_b32 s31, s30, 8
    s_lshl_b32 s47, s46, 14
    s_add_u32 s31, s31, s47
    s_add_u32 s31, s31, %d
    buffer_store_dword v8, v2, s[40:43], s31 offen sc1
    s_waitcnt vmcnt(0)
    """ % WS_UW)
    k.label(lskip)
    k.e("""
    s_add_u32 s30, s30, 1
    s_add_u32 s50, s50, 4096
    s_cmp_lt_u32 s50, %d
    s_cbranch_scc1 %s
    """ % (LB + 8192, lp))

def k_win(k, c):
    LP = 1; LPJ = env('LPJ', 3)
    KZ = c.nxt == 'wsp' and env('KEEPZ', 1)
    def post(g):
        if not LP: return
        k = g.k
        srd(k, 36, 'ws', WS_G, 256 * KB)
        k.e("""
        s_lshl_b32 s65, s30, 2
        s_add_u32 s65, s65, s46
        s_lshl_b32 s65, s65, 12            ; rb32*4096
        v_and_b32 v2, 31, v1
        v_lshrrev_b32 v3, 5, v1
        v_mul_u32_u24 v3, %d, v3
        v_lshl_add_u32 v2, v2, 3, v3
        s_lshl_b32 s67, s46, 9
        s_add_u32 s67, s67, %d
        v_lshl_add_u32 v3, v1, 3, s67
        s_setprio 2
        s_barrier
        """ % (7 * 256, g.AUX + 2048))
        lp = k.newlabel('lpoll')
        poll_init(k)
        k.label(lp)
        for p in range(7):
            k.e('buffer_load_dwordx2 %s, v2, s[36:39], s65 offen offset:%d sc1' % (vr(24 + 2 * p, 2), p * 256))
        k.e('s_waitcnt vmcnt(0)')
        k.e('v_max_u32 v5, v24, v25')
        for p in range(1, 7): k.e('v_max3_u32 v5, v5, v%d, v%d' % (24 + 2 * p, 25 + 2 * p))
        k.e('v_cmp_eq_u32 vcc, -1, v5')
        poll_back(k, lp)
        for p in range(1, 7): k.e(pk('add', 24, 24, 24 + 2 * p))
        stats_finish(k, 24, 1792, 40, 41, 26)
        k.e('ds_write_b64 v3, v[40:41]')
        k.e('s_waitcnt lgkmcnt(0)')
        k.e('s_barrier')
    def uw_loads(g):
        g.k.e('buffer_load_dwordx4 v[24:27], v2, s[40:43], s62 offen sc1')
        g.k.e('buffer_load_dwordx4 v[28:31], v2, s[40:43], s63 offen sc1')
    def aux(g):
        k = g.k
        srd(k, 40, 'ws', WS_UW, 32 * KB)
        k.e("""
        v_and_b32 v2, 31, v1
        v_lshlrev_b32 v2, 4, v2
        v_add_u32 v3, 7168, v2
        v_cmp_gt_u32 vcc, 32, v1
        s_lshl_b32 s62, s31, 9
        s_add_u32 s63, s62, %d
        v_cndmask_b32 v2, v2, v3, vcc
        v_lshlrev_b32 v3, 4, v1
        v_add_u32 v3, %d, v3
        """ % (16 * KB, g.AUX))
        uw_loads(g)
        return 2
    def aux_end(g):
        k = g.k
        lp = k.newlabel('uwp'); lc = k.newlabel('uwc')
        poll_init(k)
        k.e('s_branch %s' % lc)
        k.label(lp)
        uw_loads(g)
        k.e('s_waitcnt vmcnt(0)')
        k.label(lc)
        k.e("""
        v_max3_u32 v4, v24, v25, v26
        v_max3_u32 v4, v4, v27, v28
        v_max3_u32 v4, v4, v29, v30
        v_max_u32 v4, v4, v31
        v_cmp_eq_u32 vcc, -1, v4
        """)
        poll_back(k, lp)
        k.e("""
        ds_write_b128 v3, v[24:27]
        ds_write_b128 v3, v[28:31] offset:1024
        s_waitcnt lgkmcnt(0)
        """)
    def pre(g):
        k = g.k
        g.L16 = alloc(g, 1, 1); g.SA = alloc(g, 1, 1); g.GA = alloc(g, 1, 1); g.CA = alloc(g, 1, 1)
        g.R = alloc(g, 2, 2); g.M = alloc(g, 2, 2); g.P = alloc(g, 16)
        srd(k, 32, 'ws', ZB, max(WS_Z, WS_Z2N) - ZB + ZSZ); srd(k, 36, 'ws', WS_ST1, 512 * KB)
        k.e('v_lshlrev_b32 v%d, 4, v1' % g.L16)
        k.e("""
        s_lshl_b32 s61, s30, 2
        s_add_u32 s61, s61, s50           ; rb32
        s_lshr_b32 s64, s61, 1
        s_lshl_b32 s64, s64, 13           ; rb64*8192
        s_and_b32 s65, s61, 1
        s_lshl_b32 s65, s65, 8
        s_add_u32 s64, s64, s65           ; x1 stats offset
        s_lshl_b32 s65, s61, 12
        s_add_u32 s65, s65, %d            ; granule offset (row block)
        s_lshl_b32 s66, s31, 8
        s_add_u32 s66, s66, s65           ; own granule
        s_mul_i32 s60, s61, %d
        s_lshl_b32 s61, s31, 13
        s_add_u32 s60, s60, s61           ; Z1 offset
        v_lshlrev_b32 v5, 3, v3
        v_lshl_add_u32 v%d, v4, 12, v5    ; h*8*512 + row*8
        v_mul_u32_u24 v6, %d, v4
        v_add_u32 v%d, v6, v5             ; h*7*256 + row*8
        v_lshlrev_b32 v%d, 4, v4
        v_add_u32 v%d, %d, v%d
        """ % (WS_G - WS_ST1, 112 * 1024, g.SA, 7 * 256, g.GA, g.CA, g.CA, g.AUX, g.CA))
    def early(g):
        k = g.k
        for p in range(8):
            k.e('buffer_load_dwordx2 %s, v%d, s[36:39], s64 offen offset:%d sc1' % (vr(g.P + 2 * p, 2), g.SA, p * 512))
        k.e('s_waitcnt vmcnt(0)')
        for p in range(1, 8): k.e(pk('add', g.P, g.P, g.P + 2 * p))
        stats_finish(k, g.P, 1024, g.R, g.M, g.P + 2)
    def pre2(g): pass
    def epi(g):
        k = g.k
        c1 = -2.0 * 0.7978845608028654 * LOG2E
        U = g.FR; W0 = g.FR + 16; T = g.FR + 32; PS = g.FR + 48
        def rd_uw(j):
            for q in range(4):
                k.e('ds_read_b128 %s, v%d offset:%d' % (vr(U + 4 * q, 4), g.CA, j * 128 + q * 32))
                k.e('ds_read_b128 %s, v%d offset:%d' % (vr(W0 + 4 * q, 4), g.CA, 1024 + j * 128 + q * 32))
        k.e('s_nop 7')
        rd_uw(0)
        k.e('s_mov_b32 s70, %s' % hx(c1 * 0.044715)); k.e('s_mov_b32 s71, s70')
        k.e('v_mov_b32 v6, %s' % hx(c1))
        S1 = g.P; S2 = g.P + 2
        GR = g.P + 2
        n = 0
        def poll_loads():
            for p in range(7):
                k.e('buffer_load_dwordx2 %s, v%d, s[36:39], s65 offen offset:%d sc1' % (vr(GR + 2 * p, 2), g.GA, p * 256))
        cnt = [0]
        def block(j):
            a = g.acc(0, j)
            g.fix(0, j)
            k.e('s_waitcnt lgkmcnt(0)')
            for r in range(0, 16, 2): k.e(pk('fma', T + r, U + r, (g.M,), W0 + r))
            if j < 7 and not (j == 3 and g.deferred): rd_uw(j + 1)
            for r in range(0, 16, 2): k.e(pk('fma', a + r, a + r, (g.R,), T + r))
            for r in range(0, 16, 2): k.e(pk('mul', T + r, a + r, a + r))
            for r in range(0, 16, 2): k.e(pk('fma', T + r, T + r, 's[70:71]', (6,)))
            for r in range(0, 16, 2): k.e(pk('mul', T + r, T + r, a + r))
            for r in range(16): k.e('v_exp_f32 v%d, v%d' % (T + r, T + r))
            for r in range(0, 16, 2): k.e(pk('add', T + r, T + r, '1.0'))
            for r in range(16): k.e('v_rcp_f32 v%d, v%d' % (T + r, T + r))
            for r in range(0, 16, 2): k.e(pk('mul', a + r, a + r, T + r))
            if j >= 4:
                if KZ:
                    for d in range(8): k.e('v_cvt_pk_bf16_f32 v%d, v%d, v%d' % (ZKEEP + 8 * (j - 4) + d, a + 2 * d, a + 2 * d + 1))
                else:
                    k.e('s_add_u32 s61, s60, %d' % (WS_Z - ZB + (j - 4) * 2048))
                    store_xf_tile(g, a, PS + 8 * (cnt[0] % 3), g.L16, 32, 's61', 0); cnt[0] += 1
            else:
                for r in range(0, 16, 2):
                    if j == 0 and r == 0:
                        k.e(pk('add', S1, a, a + 2)); k.e(pk('mul', S2, a, a))
                    else:
                        if not (j == 0 and r == 2): k.e(pk('add', S1, S1, a + r))
                        k.e(pk('fma', S2, a + r, a + r, S2))
        for j in range(4): block(j)
        k.e('v_add_f32 v%d, v%d, v%d' % (S1, S1, S1 + 1))
        k.e('v_add_f32 v%d, v%d, v%d' % (S1 + 1, S2, S2 + 1))
        k.e('v_mov_b32 v%d, v%d' % (S2, S1))
        k.e('v_mov_b32 v%d, v%d' % (S2 + 1, S1 + 1))
        k.e('v_lshlrev_b32 v5, 3, v3')
        k.e('s_nop 0')
        k.e('v_permlane32_swap_b32 v%d, v%d' % (S1, S2))
        k.e('v_permlane32_swap_b32 v%d, v%d' % (S1 + 1, S2 + 1))
        k.e('s_nop 1')
        k.e(pk('add', S1, S1, S2))
        k.e('v_min_u32 v%d, -2, v%d' % (S1, S1))
        k.e('v_min_u32 v%d, -2, v%d' % (S1 + 1, S1 + 1))
        k.e('s_mov_b32 exec_hi, 0')
        k.e('buffer_store_dwordx2 %s, v5, s[36:39], s66 offen sc1' % vr(S1, 2))
        k.e('s_mov_b32 exec_hi, -1')
        if env('WM', 0): mark(k, 0)
        NB4 = env('NB4', 1) if KZ else 4
        if g.deferred:
            g.deferred()
            rd_uw(4)
        if LPJ == 3: k.e('s_barrier')
        for j in range(4, 4 + NB4):
            block(j)
            if j == LPJ: k.e('s_barrier')
        if env('WM', 0): mark(k, 1)
        R2 = g.P + 4; M2 = g.P + 6
        k.e('s_lshl_b32 s67, s46, 9')
        k.e('s_add_u32 s67, s67, %d' % (g.AUX + 2048))
        k.e('v_lshl_add_u32 v5, v1, 3, s67')
        k.e('s_barrier')
        k.e('ds_read_b64 %s, v5' % vr(R2, 2))
        k.e('s_waitcnt lgkmcnt(0)')
        mark(k, 3)
        k.e('v_mov_b32 v%d, v%d' % (M2, R2 + 1))
        zo = ZOWN and c.nxt == 'wsp'
        if zo:
            assert g.M16
            ZA = g.P + 8
            k.e('''
            s_lshr_b32 s67, s46, 1
            s_lshl_b32 s67, s67, 15
            s_and_b32 s68, s46, 1
            s_lshl_b32 s68, s68, 13
            s_add_u32 s67, s67, s68
            s_add_u32 s67, s67, 16384
            v_bfe_u32 v5, v1, 4, 1
            v_lshl_add_u32 v%d, v5, 12, s67
            v_bfe_u32 v5, v1, 2, 2
            v_lshl_add_u32 v%d, v5, 8, v%d
            v_and_b32 v5, 2, v5
            v_or_b32 v5, v5, v4
            v_lshl_add_u32 v%d, v5, 6, v%d
            v_and_b32 v5, 3, v1
            v_lshl_add_u32 v%d, v5, 4, v%d
            v_xor_b32 v%d, 128, v%d
            ''' % (ZA, ZA, ZA, ZA, ZA, ZA, ZA, ZA + 1, ZA))
        for j in range(4):
            a = g.acc(0, j)
            for r in range(0, 16, 2): k.e(pk('fma', a + r, a + r, (R2,), (M2,)))
            k.e('s_add_u32 s61, s60, %d' % (WS_Z2N - ZB + j * 2048))
            if zo:
                store_xf_tile(g, a, a, g.L16, 32, 's61', 0)
            else:
                store_xf_tile(g, a, PS + 8 * (cnt[0] % 3), g.L16, 32, 's61', 0); cnt[0] += 1
        if zo:
            for j in range(4):
                for t in range(2): k.e('ds_write_b128 v%d, %s offset:%d' % (ZA + t, vr(g.acc(0, j) + 4 * t, 4), j * 1024))
        if g.LE: k.e('s_barrier')
        rest = list(range(4 + NB4, 8))
        NBS = env('NBS', 2)
        for j in rest[:NBS]: block(j)
        signal(k, 'C')
        for j in rest[NBS:]: block(j)
        k.e('s_waitcnt lgkmcnt(0)')
    sig = 's_lshl_b32 s100, s31, 8\ns_lshl_b32 s101, s30, 4\ns_add_u32 s100, s100, s101\ns_add_u32 s100, s100, %d' % FL_WIN
    wait = ('s_lshl_b32 s100, s30, 8\ns_add_u32 s100, s100, %d' % FL_WO, 64)
    k_gemm(k, c, 16, 14, 2, 2, 7, 128, 256, 4, 1, 1024, 32, 4, ('xf', WS_X1S, 1024), ('w', 'w_in', 7168, (256, [3584, 3584 + 128, 0, 128])),
           pre, pre2, epi, aux=aux, auxsz=4 * KB, auxbase=AUX_B, aux_end=aux_end, post=post, selfsig=True, early=early, SOFT=3, DEFER=3, dcols=([0, 1, 2, 3], [4, 5, 6, 7]), JG=2, lazyfix=True, side=(28, uw_job), wait=wait, sig=sig)

def k_wsp(k, c):
    def pre(g):
        k = g.k
        g.L16 = alloc(g, 1, 1); g.L2 = alloc(g, 1, 1); g.B = alloc(g, 4); g.Z = alloc(g, 32)
        srd(k, 32, 'ws', WS_Z, ZSZ); srd(k, 36, 'ws', WS_U2, ZSZ); srd(k, 40, 'b_sp')
        k.e('v_lshlrev_b32 v%d, 4, v1' % g.L16)
        k.e('''
        s_lshl_b32 s60, s31, 13
        s_lshl_b32 s61, s51, 12
        s_add_u32 s60, s60, s61
        s_lshl_b32 s61, s30, 2
        s_lshl_b32 s62, s50, 1
        s_add_u32 s61, s61, s62           ; rb0
        s_lshl_b32 s63, s61, 6
        s_mul_i32 s61, s61, %d
        s_add_u32 s60, s60, s61
        s_add_u32 s61, s60, %d
        v_lshlrev_b32 v%d, 1, v3
        ''' % (112 * 1024, 112 * 1024, g.L2))
    def pre2(g):
        k = g.k
        for i in range(2):
            k.e('buffer_load_ushort v%d, v%d, s[40:43], s63 offen offset:%d' % (g.B + 2 * i, g.L2, i * 64))
        for i in range(2):
            for j in range(2):
                for t in range(2):
                    k.e('buffer_load_dwordx4 %s, v%d, s[32:35], s%d offen offset:%d sc1' % (vr(g.Z + 16 * i + 8 * j + 4 * t, 4), g.L16, 60 + i, (2 * j + t) * 1024))
    def epi(g):
        k = g.k
        T = g.FR
        k.e('s_waitcnt vmcnt(0)')
        for i in range(2): k.e('v_lshlrev_b32 v%d, 16, v%d' % (g.B + 2 * i, g.B + 2 * i))
        k.e('s_nop 7')
        for j in range(2):
            for i in range(2):
                a = g.acc(i, j); z = g.Z + 16 * i + 8 * j
                for d in range(8): unpack(k, T + 2 * d, T + 2 * d + 1, z + d)
                for d in range(8): k.e(pk('add', a + 2 * d, a + 2 * d, (g.B + 2 * i,)))
                for d in range(8): k.e(pk('mul', a + 2 * d, a + 2 * d, T + 2 * d))
                store_xf_tile(g, a, z, g.L16, 36, 's%d' % (60 + i), j * 2048)
    KZ = c.prev == 'win' and env('KEEPZ', 1)
    def preK(g):
        k = g.k
        g.L16 = alloc(g, 1, 1); g.L2 = alloc(g, 1, 1); g.B = alloc(g, 2, 2)
        srd(k, 36, 'ws', WS_U2, ZSZ); srd(k, 40, 'b_sp')
        k.e('v_lshlrev_b32 v%d, 4, v1' % g.L16)
        k.e('''
        s_lshl_b32 s60, s31, 13
        s_lshl_b32 s61, s30, 2
        s_add_u32 s61, s61, s50           ; rb32
        s_lshl_b32 s63, s61, 6
        s_mul_i32 s61, s61, %d
        s_add_u32 s60, s60, s61
        s_add_u32 s61, s60, 4096
        v_lshlrev_b32 v%d, 1, v3
        ''' % (112 * 1024, g.L2))
    def pre2K(g):
        g.k.e('buffer_load_ushort v%d, v%d, s[40:43], s63 offen' % (g.B, g.L2))
    def epiK(g):
        k = g.k
        T = g.FR
        k.e('s_waitcnt vmcnt(0)')
        k.e('v_lshlrev_b32 v%d, 16, v%d' % (g.B, g.B))
        for j in range(4):
            a = g.acc(0, j); z = ZKEEP + 8 * j
            for d in range(8): unpack(k, T + 2 * d, T + 2 * d + 1, z + d)
            for d in range(8): k.e(pk('add', a + 2 * d, a + 2 * d, (g.B,)))
            for d in range(8): k.e(pk('mul', a + 2 * d, a + 2 * d, T + 2 * d))
            store_xf_tile(g, a, z, g.L16, 36, 's%d' % (60 + j // 2), (j % 2) * 2048)
    sig = 's_lshl_b32 s100, s30, 8\ns_lshl_b32 s101, s31, 4\ns_add_u32 s100, s100, s101\ns_add_u32 s100, s100, %d' % FL_WSP
    wait = ('s_lshl_b32 s100, s31, 8\ns_add_u32 s100, s100, %d' % FL_WIN, 64)
    if KZ: k_gemm(k, c, 16, 14, 2, 2, 7, 128, 128, 4, 1, 2048, 64, 3, ('rm', 'w_sp', 4096), ('z', WS_Z2N, 1792), preK, pre2K, epiK, pf='w_out', wait=wait, sig=sig, dep='Y', GU=2, RWD=2, frbase=ZKEEP + 32, own='s_lshl_b32 s68, s30, 1')
    else: k_gemm(k, c, 16, 14, 2, 2, 7, 128, 128, 2, 2, 2048, 64, 3, ('rm', 'w_sp', 4096), ('z', WS_Z2N, 1792), pre, pre2, epi, pf='w_out', wait=wait, sig=sig, dep='Y', GU=2, RWD=2, own='s_lshl_b32 s68, s30, 1')

def k_attn(k, c):
    NS = 4; STG = 32768; NST = 8
    phase_begin(k, c)
    SA, SB, O, NEGM = 8, 24, 40, 56
    L, ONES, Q, KF, VF, P = 72, 76, 80, 88, 96, 104
    A0 = 112; AC = 113; AO = 114; M = 115; T = 116; T2 = 117; PFA = 118; MA = 119; PFD = 120; MT = 124
    assert c.nxt == 'wo'
    k.e("""
    v_and_b32 v1, 63, v0
    s_mov_b32 s46, s3
    s_and_b32 s47, s2, 7
    s_lshr_b32 s48, s2, 3
    s_lshl_b32 s30, s47, 2
    s_lshr_b32 s49, s48, 3
    s_add_u32 s30, s30, s49            ; head
    s_and_b32 s31, s48, 7              ; q block (256 rows)
    v_lshlrev_b32 v%d, 4, v1
    s_lshl_b32 s50, s31, 3
    s_add_u32 s50, s50, s46            ; rb of this wave's queries
    s_lshl_b32 s51, s30, 6
    s_add_u32 s51, s51, s50
    s_lshl_b32 s51, s51, 11            ; Q offset
    s_lshl_b32 s52, s30, 18            ; KV head base
    s_lshl_b32 s53, s46, 12            ; wave part (4KB = one tile)
    s_lshl_b32 s62, s2, 13
    v_lshl_add_u32 v%d, v0, 4, s62     ; prefetch offset wg*8K + tid*16
    s_mov_b32 s62, %d
    s_waitcnt lgkmcnt(0)
    """ % (A0, PFA, 0x40000000 if env('PFOFF', 0) else 0))
    mark(k, 0)
    srd(k, 36, 'ws', WS_KV, 256 * KB, soff='s52'); srd(k, 32, 'ws', WS_Q, 4 * MB)
    set_flag(k, 's_lshl_b32 s100, s31, 8\ns_lshl_b32 s101, s30, 2\ns_add_u32 s100, s100, s101\ns_add_u32 s100, s100, %d' % FL_ATT)
    handoff(k, 's_lshr_b32 s100, s30, 1\ns_lshl_b32 s100, s100, 8\ns_add_u32 s100, s100, %d' % FL_QKV, 64, role='A')
    def dma(slot_expr):
        return ['s_add_u32 m0, s53, %s' % slot_expr] + \
               ['buffer_load_dwordx4 v%d, s[36:39], s56 offen offset:%d sc1 lds' % (A0, q * 1024) for q in range(4)] + \
               ['s_add_u32 s56, s56, %d' % STG]
    def pfl(n): return 'buffer_load_dwordx4 %s, v%d, %s, s62 offen' % (vr(PFD, 4), PFA, sr(n))
    def emit_dma(slot_expr):
        d = dma(slot_expr); k.e(d[0]); k.e('s_nop 0')
        for x in d[1:]: k.e(x)
    AST = env('AST', 1)
    if AST:
        k.e('s_lshl_b32 s56, s46, 10')
        k.e('s_mov_b32 m0, s56')
        k.e('s_mul_i32 s58, s46, 3072')
        k.e('buffer_load_dwordx4 v%d, s[36:39], s56 offen sc1 lds' % A0)
    else:
        k.e('s_mov_b32 s56, s53')
        emit_dma('0')
    k.e('buffer_load_dwordx4 %s, v%d, s[32:35], s51 offen sc1' % (vr(Q, 4), A0))
    k.e('buffer_load_dwordx4 %s, v%d, s[32:35], s51 offen offset:1024 sc1' % (vr(Q + 4, 4), A0))
    if AST:
        k.e('s_add_u32 s56, s58, 8192')
        k.e('s_mov_b32 m0, s56')
        k.e('s_nop 0')
        for q in range(3): k.e('buffer_load_dwordx4 v%d, s[36:39], s56 offen offset:%d sc1 lds' % (A0, q * 1024))
        k.e('s_add_u32 s56, s53, %d' % STG)
        emit_dma(str(STG))
    srd(k, 64, 'w_in'); srd(k, 68, 'w_sp'); srd(k, 32, 'wo')
    srd(k, 40, 'ws', WS_O, 4 * MB)
    k.e("""
    s_lshl_b32 s54, s50, 16
    s_lshl_b32 s55, s30, 11
    s_add_u32 s54, s54, s55            ; O offset
    v_and_b32 v3, 3, v1
    v_bfe_u32 v4, v1, 2, 1
    v_bfe_u32 v5, v1, 4, 1
    v_xor_b32 v4, v4, v5
    v_or_b32 v3, v3, v4
    v_cmp_eq_u32 vcc, 0, v3
    v_mov_b32 v4, 0x3f803f80
    s_nop 1
    v_cndmask_b32 v%d, 0, v4, vcc
    v_mov_b32 v%d, v%d
    v_mov_b32 v%d, v%d
    v_mov_b32 v%d, v%d
    """ % (ONES, ONES + 1, ONES, ONES + 2, ONES, ONES + 3, ONES))
    def adr(t): return (AC if t < 16 else AO), (t % 16) * 4096
    def rdK(t):
        a, o = adr(t)
        return ['ds_read_b128 %s, v%d offset:%d' % (vr(KF, 4), a, o), 'ds_read_b128 %s, v%d offset:%d' % (vr(KF + 4, 4), a, o + 1024)]
    def rdV(t):
        a, o = adr(t)
        return ['ds_read_b128 %s, v%d offset:%d' % (vr(VF, 4), a, o + 2048), 'ds_read_b128 %s, v%d offset:%d' % (vr(VF + 4, 4), a, o + 3072)]
    def qk(S, c):
        return ['v_mfma_f32_32x32x16_bf16 %s, %s, %s, %s' % (vr(S, 16), vr(KF, 4), vr(Q, 4), c),
                'v_mfma_f32_32x32x16_bf16 %s, %s, %s, %s' % (vr(S, 16), vr(KF + 4, 4), vr(Q + 4, 4), vr(S, 16))]
    def maxtile(S, first):
        st = 0
        if first:
            k.e('v_max3_f32 v%d, v%d, v%d, v%d' % (M, S, S + 1, S + 2))
            k.e('v_max_f32 v%d, v%d, v%d' % (M, M, S + 3))
            st = 4
        for r in range(st, 16, 2): k.e('v_max3_f32 v%d, v%d, v%d, v%d' % (M, M, S + r, S + r + 1))
    def set_negm(bias):
        k.e('v_mov_b32 v%d, v%d' % (T, M))
        k.e('s_nop 1')
        k.e('v_permlane32_swap_b32 v%d, v%d' % (M, T))
        k.e('s_nop 1')
        k.e('v_max_f32 v%d, v%d, v%d' % (M, M, T))
        k.e('v_sub_f32 v%d, %s, v%d' % (NEGM, hx(-bias), M))
        for r in range(1, 16): k.e('v_mov_b32 v%d, v%d' % (NEGM + r, NEGM))
    def zero_state():
        for r in range(16): k.e('v_mov_b32 v%d, 0' % (O + r))
        for r in range(4):
            k.e('v_mov_b32 v%d, 0' % (L + r))
            k.e('v_mov_b32 v%d, 0' % (P + 4 + r))
            k.e('v_mov_b32 v%d, 0' % (VF + 4 + r))
        k.e('v_mov_b32 v%d, v%d' % (AC, A0))
        k.e('v_add_u32 v%d, 0x10000, v%d' % (AO, A0))
        k.e('s_mov_b32 s57, 0')
    zero_state()
    if not MP0: srd(k, 80, 'ws', 0, 256 * KB)
    if not MP0: k.e("""
    s_and_b32 s49, s2, 3               ; k quarter
    s_lshl_b32 s49, s49, 3
    s_add_u32 s49, s49, s46            ; 32-row group
    s_mul_i32 s60, s49, %d
    s_lshr_b32 s63, s2, 2              ; col block
    s_lshl_b32 s63, s63, 7
    s_add_u32 s60, s60, s63
    s_add_u32 s60, s60, 4096
    s_add_u32 s61, s60, 12288
    s_and_b32 s49, s2, 3
    s_lshl_b32 s49, s49, 2
    s_and_b32 s63, s46, 3
    s_add_u32 s49, s49, s63
    s_lshl_b32 s49, s49, 8             ; silu offset of row groups 2(w&3), +1
    s_add_u32 s49, s49, %d
    v_lshrrev_b32 v%d, 3, v1
    v_mul_u32_u24 v%d, %d, v%d
    v_and_b32 v%d, 7, v1
    v_lshl_add_u32 v%d, v%d, 4, v%d
    v_lshlrev_b32 v%d, 4, v%d
    """ % (32 * 12288, WS_SC, MT, MA, 4 * 12288, MT, MT + 1, MA, MT + 1, MA, MT, MT))
    def mld(j): return ['s_add_u32 m0, s53, %d' % (AUX_A + j * 1024), 'buffer_load_dwordx4 v%d, s[80:83], s%d offen lds' % (MA, (60, 61, 63, 49)[j])]
    k.e('s_waitcnt vmcnt(%d)' % (7 if AST else 0))
    k.e('s_barrier')
    mark(k, 1)
    for r in rdK(1): k.e(r)
    k.e('s_waitcnt lgkmcnt(0)')
    for m in qk(SB, '0'): k.e(m)
    for r in rdK(0): k.e(r)
    k.e('s_waitcnt lgkmcnt(0)')
    for m in qk(SA, '0'): k.e(m)
    def extras():
        if MP0: return
        k.e(pfl(32))
        k.e('buffer_load_dwordx4 %s, v%d, s[80:83], s49 offen' % (vr(MSV, 4), MT))
        k.e('buffer_load_dwordx4 %s, v%d, s[80:83], s49 offen offset:128' % (vr(MSV + 4, 4), MT))
        srd(k, 80, 'w_mod')
        k.e('s_mov_b32 s49, 0x40000000')
        k.e('s_mov_b32 s63, 0x40000000')
    if AST: k.e('s_nop 7')
    else:
        emit_dma(str(STG)); extras()
    maxtile(SB, True)
    maxtile(SA, False)
    set_negm(40.0)
    if AST:
        k.e('s_waitcnt vmcnt(4)')
        k.e('s_barrier')
        extras()
    mark(k, 2)
    if env('APRIO', 0):
        k.e('s_cmp_ge_u32 s46, 4')
        k.e('s_cbranch_scc0 L_attn_noprio')
        k.e('s_setprio 1')
        k.label('L_attn_noprio')
    k.e('s_mov_b32 s59, %d' % (NST // 2))
    k.e('s_nop 0')
    for m in qk(SA, vr(NEGM, 16)): k.e(m)
    k.e(rdK(1)[0])
    k.e('ds_read_b32 v%d, v%d' % (T, A0))
    k.e(rdK(1)[1])
    k.e(rdV(0)[0])
    k.e('s_nop 7')
    lp = 'L_attn_loop'
    def pv(h): return 'v_mfma_f32_32x32x16_bf16 %s, %s, %s, %s' % (vr(O, 16), vr(VF + 4 * h, 4), vr(P + 4 * h, 4), vr(O, 16))
    def ls(h): return 'v_mfma_f32_16x16x32_bf16 %s, %s, %s, %s' % (vr(L, 4), vr(ONES, 4), vr(P + 4 * h, 4), vr(L, 4))
    def iteration(nsoft, pat0):
        for t in range(16):
            cur, nxt = (SA, SB) if t % 2 == 0 else (SB, SA)
            m_qk = qk(nxt, vr(NEGM, 16))
            kn = rdK(t + 2); v0n = rdV(t + 1)[0]; v1n = rdV(t)[1]
            ex = ['v_exp_f32 v%d, v%d' % (cur + r, cur + r) for r in range(16)]
            cv = ['v_cvt_pk_bf16_f32 v%d, v%d, v%d' % (P + d, cur + 2 * d, cur + 2 * d + 1) for d in range(8)]
            W = 's_waitcnt lgkmcnt(2)'
            head = []; xs = []
            if t % 8 == 6: head = ['s_waitcnt vmcnt(%d)' % (9 if not MP0 else (6 if t == 6 else 7)), 's_barrier']
            if t == 14 and not c.last and not nsoft: head = ['s_cmp_eq_u32 s59, 1', 's_cbranch_scc0 L_attn_nd', 's_waitcnt vmcnt(0)', 'L_attn_nd:'] + head
            d = dma('s58')
            if t % 8 == 0: xs = ['s_xor_b32 s58, s57, 0x%x' % (0x10000 if t == 0 else 0x18000), d[0], d[1]]
            elif t % 8 < 3: xs = [d[1 + t % 8]]
            elif t % 8 == 3: xs = [d[4], d[5]]
            elif t == 4: xs = [pfl(64)]
            elif t == 5: xs = [pfl(68)]
            elif MP0 and t == 7: xs = [pfl(32)]
            elif MP0 and t == 12: xs = ['s_add_u32 s62, s62, %d' % (2 * MB)]
            elif MP0 and t == 13: xs = []
            elif MP0 and t == 15: xs = ['s_xor_b32 s57, s57, 0x10000']
            elif t == 7: xs = mld(0)
            elif t == 12: xs = ['s_add_u32 s62, s62, %d' % (2 * MB)] + mld(2)
            elif t == 13: xs = mld(1)
            elif t == 15: xs = ['s_xor_b32 s57, s57, 0x10000'] + mld(3) + ['s_add_u32 s63, s60, %d' % (2 * 12288), 's_add_u32 s49, s60, %d' % (3 * 12288)]
            tail = ['v_swap_b32 v%d, v%d' % (AC, AO), 's_sub_u32 s59, s59, 1', 's_cmp_lg_u32 s59, 0'] if t == 15 else []
            pat = pat0 if t < nsoft else os.environ.get('APAT', 'eeeQeeePeeccLcc')
            body = []
            for hh in range(2):
                ei = 8 * hh; ci = 4 * hh
                for ch in pat:
                    if ch == 'e': body.append(ex[ei]); ei += 1
                    elif ch == 'c': body.append(cv[ci]); ci += 1
                    elif ch == 'Q': body += [W, m_qk[hh], kn[hh]]
                    elif ch == 'P': body += [pv(1 - hh), v1n if hh == 0 else v0n]
                    elif ch == 'L': body.append(ls(1 - hh))
                assert ei == 8 * hh + 8 and ci == 4 * hh + 4
            if tail:
                last_ds = max(i for i, x in enumerate(body) if x.startswith('ds_') or x.startswith('v_exp'))
                body = body[:last_ds + 1] + tail + body[last_ds + 1:]
            iq = max(i for i, x in enumerate(body) if x == m_qk[1])
            first_e = min(i for i, x in enumerate(body) if x.startswith('v_exp'))
            assert len(body) - 1 - iq + first_e >= 12, 'qk->exp distance'
            seq = list(head)
            for x in body:
                seq.append(x)
                if xs and x.startswith('v_exp'): seq.append(xs.pop(0))
            assert not xs
            AX = os.environ.get('AX', '')
            if 'p' in AX: seq = [x for x in seq if 's62 offen' not in x]
            for x in seq: k.e(x)
    if env('ASOFT', 8): iteration(env('ASOFT', 8), os.environ.get('APAT0', 'eQPLeeeeeeecccc'))
    k.label(lp)
    iteration(0, None)
    k.e('s_cbranch_scc1 %s' % lp)
    k.label('L_attn_epi')
    mark(k, 3)
    k.e('s_waitcnt lgkmcnt(0)')
    k.e(pv(1)); k.e(ls(1))
    k.e('s_nop 15')
    lstore = 'L_attn_store'; lsafe = 'L_attn_safe'
    k.e('v_max3_f32 v%d, |v%d|, |v%d|, |v%d|' % (T, O, O + 1, L))
    for r in range(2, 16, 2): k.e('v_max3_f32 v%d, |v%d|, |v%d|, v%d' % (T, O + r, O + r + 1, T))
    k.e('v_mul_f32 v%d, 0, v%d' % (T2, L))
    for r in range(16): k.e('v_fma_f32 v%d, 0, v%d, v%d' % (T2, O + r, T2))
    k.e('v_add_f32 v%d, v%d, v%d' % (T, T, T2))
    k.e('v_mov_b32 v3, %s' % hx(2.0 ** 120))
    k.e('v_cmp_nlt_f32 vcc, v%d, v3' % T)
    k.e('s_nop 4')
    k.e('s_cbranch_vccnz %s' % lsafe)
    k.label(lstore)
    k.e('v_rcp_f32 v%d, v%d' % (T, L))
    k.e('s_nop 0')
    for r in range(16): k.e('v_mul_f32 v%d, v%d, v%d' % (O + r, O + r, T))
    for d in range(8): k.e('v_cvt_pk_bf16_f32 v%d, v%d, v%d' % (P + d, O + 2 * d, O + 2 * d + 1))
    k.e('buffer_store_dwordx4 %s, v%d, s[40:43], s54 offen%s' % (vr(P, 4), A0, WT))
    k.e('buffer_store_dwordx4 %s, v%d, s[40:43], s54 offen offset:1024%s' % (vr(P + 4, 4), A0, WT))
    signal(k, 'S')
    endpgm(k)
    k.label(lsafe)
    def gl(dst, off): return 'buffer_load_dwordx4 %s, v%d, s[36:39], s56 offen offset:%d sc1' % (vr(dst, 4), A0, off)
    k.e('s_waitcnt vmcnt(0)')
    k.e('s_mov_b32 s56, 0')
    k.e('v_mov_b32 v%d, 0xff800000' % M)
    k.label(lsafe + '1')
    k.e(gl(KF, 0)); k.e(gl(KF + 4, 1024))
    k.e('s_waitcnt vmcnt(0)')
    for m in qk(SA, '0'): k.e(m)
    k.e('s_nop 15')
    maxtile(SA, False)
    k.e('s_add_u32 s56, s56, 4096')
    k.e('s_cmp_lt_u32 s56, %d' % (256 * KB))
    k.e('s_cbranch_scc1 %s1' % lsafe)
    set_negm(0.0)
    zero_state()
    k.e('s_mov_b32 s56, 0')
    k.label(lsafe + '2')
    k.e(gl(KF, 0)); k.e(gl(KF + 4, 1024)); k.e(gl(VF, 2048)); k.e(gl(VF + 4, 3072))
    k.e('s_waitcnt vmcnt(0)')
    for m in qk(SA, vr(NEGM, 16)): k.e(m)
    k.e('s_nop 15')
    for r in range(16): k.e('v_exp_f32 v%d, v%d' % (SA + r, SA + r))
    k.e('s_nop 0')
    for d in range(8): k.e('v_cvt_pk_bf16_f32 v%d, v%d, v%d' % (P + d, SA + 2 * d, SA + 2 * d + 1))
    k.e('s_nop 1')
    k.e(pv(0)); k.e(ls(0)); k.e(pv(1)); k.e(ls(1))
    k.e('s_add_u32 s56, s56, 4096')
    k.e('s_nop 7')
    k.e('s_cmp_lt_u32 s56, %d' % (256 * KB))
    k.e('s_cbranch_scc1 %s2' % lsafe)
    k.e('s_nop 15')
    k.e('s_branch %s' % lstore)
    k.need(MSV + 8, 160 * KB)

def k_attn2(k, c):
    phase_begin(k, c)
    assert c.prev == 'qkv' and c.nxt == 'wo' and not MP0
    S2 = (8, 24); O2 = (40, 56); N2 = (72, 88); L2 = (104, 108); Q2 = (112, 120)
    ONES, KF, VF, P = 128, 132, 140, 148
    A0 = 156; AR = 157; M = 158; T = 159; T2 = 160; PFA = 161; MA = 162; MT = 164; PFD = 168
    k.e("""
    v_and_b32 v1, 63, v0
    s_mov_b32 s46, s3
    s_and_b32 s47, s3, 1               ; wn
    s_bfe_u32 s48, s3, 0x10001         ; wm
    s_lshr_b32 s49, s3, 2              ; kh
    s_lshl_b32 s50, s31, 1
    s_add_u32 s50, s50, s47            ; head
    s_lshl_b32 s52, s50, 18
    s_lshl_b32 s51, s49, 17
    s_add_u32 s51, s51, s52            ; stream base in KV
    s_lshl_b32 s55, s49, 1
    s_add_u32 s55, s55, s47
    s_lshl_b32 s55, s55, 15            ; stream ring base in LDS
    s_lshl_b32 s56, s48, 12            ; next global offset: own tile of stage 0
    s_add_u32 s57, s55, s56            ; LDS address of own tile in slot 0
    s_lshl_b32 s53, s3, 12             ; wave*4KB (mod slice staging)
    v_lshlrev_b32 v%d, 4, v1
    v_add_u32 v%d, s55, v%d
    s_lshl_b32 s54, s30, 2
    s_lshl_b32 s58, s48, 1
    s_add_u32 s54, s54, s58
    s_add_u32 s54, s54, s49            ; rb of the tile this wave finalises
    s_lshl_b32 s54, s54, 16
    s_lshl_b32 s58, s50, 11
    s_add_u32 s54, s54, s58            ; O offset
    s_lshl_b32 s62, s2, 13
    v_lshl_add_u32 v%d, v0, 4, s62     ; prefetch offset wg*8K + tid*16
    s_mov_b32 s62, 0
    v_and_b32 v3, 3, v1
    v_bfe_u32 v4, v1, 2, 1
    v_bfe_u32 v5, v1, 4, 1
    v_xor_b32 v4, v4, v5
    v_or_b32 v3, v3, v4
    v_cmp_eq_u32 vcc, 0, v3
    v_mov_b32 v4, 0x3f803f80
    s_nop 1
    v_cndmask_b32 v%d, 0, v4, vcc
    v_mov_b32 v%d, v%d
    v_mov_b32 v%d, v%d
    v_mov_b32 v%d, v%d
    """ % (A0, AR, A0, PFA, ONES, ONES + 1, ONES, ONES + 2, ONES, ONES + 3, ONES))
    mark(k, 0)
    if AOWN:
        srd(k, 36, 'ws', WS_KV, 256 * KB, soff='s52')
        k.e('''
        s_mov_b32 s86, s87                 ; qkv flag the compute waves still have to publish
        s_lshl_b32 s51, s30, 14
        s_add_u32 s51, s51, s56            ; offset of the own pairs (skipped in the stream)
        s_mul_i32 s58, s49, %d
        s_add_u32 s56, s56, s58
        s_cmp_ge_u32 s56, s51
        s_cselect_b32 s58, 16384, 0
        s_add_u32 s56, s56, s58
        ''' % (15 * 8192))
    else: srd(k, 36, 'ws', WS_KV, 128 * KB, soff='s51')
    srd(k, 80, 'ws', 0, 256 * KB)
    srd(k, 64, 'w_in'); srd(k, 68, 'w_sp'); srd(k, 32, 'wo')
    for r in range(16):
        k.e('v_mov_b32 v%d, 0' % (O2[0] + r)); k.e('v_mov_b32 v%d, 0' % (O2[1] + r))
    for r in range(4):
        for b in (L2[0], L2[1], P + 4, VF + 4): k.e('v_mov_b32 v%d, 0' % (b + r))
    k.e("""
    s_and_b32 s58, s2, 3               ; k quarter
    s_lshl_b32 s58, s58, 3
    s_add_u32 s58, s58, s46            ; 32-row group
    s_mul_i32 s60, s58, %d
    s_lshr_b32 s63, s2, 2              ; col block
    s_lshl_b32 s63, s63, 7
    s_add_u32 s60, s60, s63
    s_add_u32 s60, s60, 4096
    s_add_u32 s61, s60, 12288
    s_and_b32 s44, s2, 3
    s_lshl_b32 s44, s44, 2
    s_and_b32 s63, s46, 3
    s_add_u32 s44, s44, s63
    s_lshl_b32 s44, s44, 8             ; silu offset of row groups 2(w&3), +1
    s_add_u32 s44, s44, %d
    v_lshrrev_b32 v%d, 3, v1
    v_mul_u32_u24 v%d, %d, v%d
    v_and_b32 v%d, 7, v1
    v_lshl_add_u32 v%d, v%d, 4, v%d
    v_lshlrev_b32 v%d, 4, v%d
    ; Q / stand-in exchange area: tile A of this wave = tile kh
    s_and_b32 s58, s3, 3
    s_mul_i32 s58, s58, 5120
    s_add_u32 s58, s58, %d
    s_lshl_b32 s63, s49, 11
    s_add_u32 s63, s63, s58
    v_add_u32 v2, s63, v%d             ; Q of tile kh
    v_xor_b32 v3, 1, v2
    s_xor_b32 s63, s49, 1
    s_lshl_b32 s63, s63, 11
    s_add_u32 s63, s63, s58
    v_add_u32 v3, s63, v%d             ; Q of the other tile
    s_lshl_b32 s63, s49, 2
    s_add_u32 s63, s63, s58
    v_lshl_add_u32 v4, v1, 3, s63
    v_xor_b32 v5, 4, v4
    """ % (32 * 12288, WS_SC, MT, MA, 4 * 12288, MT, MT + 1, MA, MT + 1, MA, MT, MT, AUX_A, A0, A0))
    set_flag(k, 's_lshl_b32 s100, s30, 8\ns_lshl_b32 s101, s31, 2\ns_add_u32 s100, s100, s101\ns_add_u32 s100, s100, %d' % FL_ATT)
    def hand(): handoff(k, 's_lshl_b32 s100, s31, 8\ns_add_u32 s100, s100, %d' % FL_QKV, 64, role='A')
    if AOWN: k.e('s_barrier')
    else: hand()
    def dma(slot):
        return ['s_add_u32 m0, s57, %d' % (slot * 8192)] + \
               ['buffer_load_dwordx4 v%d, s[36:39], s56 offen offset:%d sc1 lds' % (A0, q * 1024) for q in range(4)] + \
               ['s_add_u32 s56, s56, 8192' + ('\ns_cmp_eq_u32 s56, s51\ns_cselect_b32 s58, 16384, 0\ns_add_u32 s56, s56, s58' if AOWN else '')]
    def emit_dma(slot):
        d = dma(slot); k.e(d[0]); k.e('s_nop 0')
        for x in d[1:]: k.e(x)
    def pfl(n): return 'buffer_load_dwordx4 %s, v%d, %s, s62 offen' % (vr(PFD, 4), PFA, sr(n))
    def mld(j): return ['s_add_u32 m0, s53, %d' % (AUX_A + j * 1024), 'buffer_load_dwordx4 v%d, s[80:83], s%d offen lds' % (MA, (60, 61, 63, 45)[j])]
    if not AOWN: emit_dma(0); emit_dma(1)
    for q in range(2):
        k.e('ds_read_b128 %s, v%d' % (vr(Q2[q], 4), 2 + q))
        k.e('ds_read_b128 %s, v%d offset:1024' % (vr(Q2[q] + 4, 4), 2 + q))
        k.e('ds_read_b32 v%d, v%d offset:4096' % (N2[q], 4 + q))
    k.e('s_waitcnt lgkmcnt(0)')
    for r in range(1, 16):
        for q in range(2): k.e('v_mov_b32 v%d, v%d' % (N2[q] + r, N2[q]))
    if not AOWN:
        k.e('s_waitcnt vmcnt(4)')
        k.e('s_barrier')
        mark(k, 1)
    def rd(dst, t, part): return 'ds_read_b128 %s, v%d offset:%d' % (vr(dst, 4), AR, (t % 8) * 4096 + part * 1024)
    def qk(q, hh, c0=None):
        S_ = S2[q]
        return 'v_mfma_f32_32x32x16_bf16 %s, %s, %s, %s' % (vr(S_, 16), vr(KF + 4 * hh, 4), vr(Q2[q] + 4 * hh, 4), (c0 or vr(N2[q], 16)) if hh == 0 else vr(S_, 16))
    def pv(q, h): return 'v_mfma_f32_32x32x16_bf16 %s, %s, %s, %s' % (vr(O2[q], 16), vr(VF + 4 * h, 4), vr(P + 4 * h, 4), vr(O2[q], 16))
    def ls(q, h): return 'v_mfma_f32_16x16x32_bf16 %s, %s, %s, %s' % (vr(L2[q], 4), vr(ONES, 4), vr(P + 4 * h, 4), vr(L2[q], 4))
    k.e(rd(KF, 0, 0)); k.e(rd(KF + 4, 0, 1)); k.e(rd(VF, 0, 2))
    def silu_loads():
        k.e('buffer_load_dwordx4 %s, v%d, s[80:83], s44 offen sc1' % (vr(MSV, 4), MT))
        k.e('buffer_load_dwordx4 %s, v%d, s[80:83], s44 offen offset:128 sc1' % (vr(MSV + 4, 4), MT))
    def wmod():
        srd(k, 80, 'w_mod')
        k.e('s_add_u32 s63, s60, %d' % (2 * 12288))
        k.e('s_add_u32 s45, s60, %d' % (3 * 12288))
    if not AOWN: silu_loads()
    k.e('s_waitcnt lgkmcnt(1)')
    k.e(qk(0, 0)); k.e(qk(0, 1))
    if AOWN: k.e('s_nop 11')
    else:
        emit_dma(2); wmod()
    OD = env('OD', 0) and AOWN == 3
    ool = []
    def late_start():
        if AOWN == 1:
            l = k.newlabel('ls')
            k.e('s_cmp_lt_u32 s3, 4'); k.e('s_cbranch_scc1 %s' % l)
            flag_prep(k)
            k.e('s_and_b32 s100, s3, 3\ns_lshl_b32 s100, s100, 7\ns_add_u32 s100, s100, s86')
            k.e('s_waitcnt vmcnt(0)')
            flag_store(k, 's100')
            k.label(l)
        hand()
        mark(k, 1)
        if OD:
            emit_dma(1); silu_loads(); wmod()
            k.e('''
            s_lshl_b32 s43, s48, 12
            s_add_u32 s43, s43, %d
            s_cmp_ge_u32 s43, s51
            s_cselect_b32 s58, 16384, 0
            s_add_u32 s43, s43, s58
            s_cmp_lt_u32 s3, 4
            s_cselect_b64 vcc, -1, 0
            s_cbranch_scc0 L_attn_np
            s_setprio 1
            L_attn_np:
            ''' % (16 * 8192))
        else:
            emit_dma(1); silu_loads(); emit_dma(2); wmod()
    k.e('s_mov_b32 s59, %d' % (3 if env('LASTB', 1) and not OD else 4))
    mark(k, 2)
    lp = 'L_attn_loop'
    LASTB = env('LASTB', 1) and not OD
    def iteration(first, nsoft, pat0, last=False):
        for u in range(16):
            t = u // 2; q = u % 2; st = u // 4; us = u % 4
            cur = S2[q]
            ex = ['v_exp_f32 v%d, v%d' % (cur + r, cur + r) for r in range(16)]
            cv = ['v_cvt_pk_bf16_f32 v%d, v%d, v%d' % (P + d, cur + 2 * d, cur + 2 * d + 1) for d in range(8)]
            if q == 0:
                Qs = [[qk(1, 0), rd(KF, t + 1, 0)], [qk(1, 1), rd(KF + 4, t + 1, 1)]]
                Ps = [[pv(1, 1), rd(VF + 4, t, 3)], ['WAITV', pv(0, 0)]]
            else:
                Qs = [['s_waitcnt lgkmcnt(0)', qk(0, 0)], [qk(0, 1)]]
                Ps = [[pv(0, 1)], [pv(1, 0), rd(VF, t + 1, 2)]]
            Ls = [ls(1 - q, 1), ls(q, 0)]
            peel = first and AOWN == 4 and u in (2, 3)
            if peel and u == 2:
                Qs = [[qk(1, 0)], [qk(1, 1)]]; Ps = [[pv(1, 1), rd(VF + 4, t, 3)], ['s_waitcnt lgkmcnt(1)', pv(0, 0)]]
            if peel and u == 3:
                Qs = [['s_waitcnt lgkmcnt(0)'], ['s_nop 0']]; Ps = [[pv(0, 1)], [pv(1, 0)]]
            inc = ['s_add_u32 s62, s62, %d' % (2 * MB)]
            NOPF = env('NOPF', 0)
            if first and AOWN: extra = [[], [], mld(0) + [pfl(32)], [pfl(64)], mld(1), mld(2), mld(3), [pfl(68)] + inc]
            elif first: extra = [[], [pfl(32)], mld(0), [pfl(64)], mld(1), mld(2), mld(3), [pfl(68)] + inc]
            else: extra = [[], [], [pfl(64)], [], [], [], [pfl(68)] + inc, []]
            if NOPF: extra = [[y for y in x if 's62' not in y] for x in extra]
            cnt = lambda e: [sum('buffer_load' in y for y in e[2 * i] + e[2 * i + 1]) for i in range(4)]
            nx_ = cnt(extra)
            prevx = (2 if first else nx_[3]) if st == 0 else nx_[st - 1]
            head = ['s_waitcnt vmcnt(%d)' % (prevx + 4 + nx_[st]), 's_barrier'] if us == 2 else []
            if last and us == 2 and st >= 2: head = (['s_waitcnt vmcnt(%d)' % (prevx + nx_[st])] if st == 2 else []) + ['s_barrier']
            if peel: head = []
            d = dma((st + 3) % 4)
            if OD and us == 2:
                lb = 'L_attn_fd%d_%d' % (first, st)
                d0 = dma((st + 2) % 4)
                d1 = [x.replace('s56', 's43').replace('s57, %d' % (((st + 2) % 4) * 8192), 's57, %d' % (((st + 2) % 4) * 8192 + 65536)) for x in d0]
                nw = 8 + nx_[st] + (2 if first and st == 0 else 0)
                ool.append([lb + ':', d0[0], 's_nop 0'] + d0[1:5] + [d1[0], 's_nop 0'] + d1[1:5] + [d0[5], d1[5], 's_waitcnt vmcnt(%d)' % nw, 's_branch %sr' % lb])
                head = ['s_cbranch_vccnz %s' % lb] + (['s_waitcnt vmcnt(2)'] if first and st == 0 else []) + [lb + 'r:', 's_barrier']
            if (OD or (last and st >= 1)) and us >= 2: xs = []
            elif us == 2: xs = [d[0], d[1], None, None, None, None, None, None, None, d[2]]
            elif us == 3: xs = [d[3], None, None, None, None, None, None, None, d[4], d[5]]
            else: xs = list(extra[2 * st + us])
            pat = pat0 if u < nsoft else os.environ.get('APAT', 'eeeQeeePeeccLcc')
            assert pat.index('Q') < pat.index('P')
            body = []
            for hh in range(2):
                ei = 8 * hh; ci = 4 * hh
                for ch in pat:
                    if ch == 'e': body.append(ex[ei]); ei += 1
                    elif ch == 'c': body.append(cv[ci]); ci += 1
                    elif ch == 'Q': body += Qs[hh]
                    elif ch == 'P': body += Ps[hh]
                    elif ch == 'L': body.append(Ls[hh])
            body = ['s_waitcnt lgkmcnt(3)' if x == 'WAITV' else x for x in body]
            if u == 15 and not last:
                le = max(i for i, x in enumerate(body) if x.startswith('v_exp'))
                body = body[:le + 1] + ['s_sub_u32 s59, s59, 1', 's_cmp_lg_u32 s59, 0'] + body[le + 1:]
            if peel and u == 3:
                body += ['s_waitcnt vmcnt(10)', 's_barrier', rd(KF, 2, 0), rd(KF + 4, 2, 1), rd(VF, 2, 2), 's_waitcnt lgkmcnt(1)', qk(0, 0), qk(0, 1)]
            iq = body.index(qk(1 - q, 1))
            first_e = min(i for i, x in enumerate(body) if x.startswith('v_exp'))
            gap = len(body) - 1 - iq + first_e
            if gap < 12: body.append('s_nop %d' % (11 - gap))
            if first and AOWN and u == (0 if AOWN == 3 else 2): late_start()
            seq = list(head)
            for x in body:
                seq.append(x)
                if xs and x.startswith('v_exp'):
                    y = xs.pop(0)
                    if y: seq.append(y)
            assert not xs
            AX = os.environ.get('AX', '')
            if 'b' in AX: seq = [x for x in seq if x != 's_barrier']
            if 'p' in AX: seq = [x for x in seq if 's62 offen' not in x and 's[80:83]' not in x]
            if 'v' in AX: seq = [x for x in seq if 'buffer_load' not in x]
            if 'd' in AX: seq = [x for x in seq if not x.startswith('ds_read') and 'lgkmcnt' not in x]
            if 'l' in AX: seq = [x for x in seq if '16x16x32' not in x]
            for x in seq: k.e(x)
    iteration(True, env('ASOFT', 8), os.environ.get('APAT0', 'eQPLeeeeeeecccc'))
    k.label(lp)
    iteration(False, 0, None)
    k.e('s_cbranch_scc1 %s' % lp)
    if LASTB:
        iteration(False, 0, None, last=True)
        k.e('s_nop 0')
    k.label('L_attn_epi')
    if 'b' in os.environ.get('AX', ''): k.e('s_barrier')
    mark(k, 3)
    k.e('s_nop 0')
    k.e(pv(1, 1)); k.e(ls(1, 1))
    if LASTB:
        k.e("""
        s_lshl_b32 s58, s48, 13
        s_add_u32 s58, s58, s55
        s_add_u32 s58, s58, 8192
        v_add_u32 v2, s58, v%d
        v_lshl_add_u32 v4, v1, 2, s58
        s_xor_b32 s58, s58, 0x10000
        v_add_u32 v3, s58, v%d
        v_lshl_add_u32 v5, v1, 2, s58
        s_nop 3
        """ % (A0, A0))
    else:
        k.e("""
        s_mul_i32 s58, s3, 5120
        v_add_u32 v2, s58, v%d
        v_lshl_add_u32 v4, v1, 2, s58
        s_xor_b32 s58, s3, 4
        s_mul_i32 s58, s58, 5120
        v_add_u32 v3, s58, v%d
        v_lshl_add_u32 v5, v1, 2, s58
        s_waitcnt vmcnt(0) lgkmcnt(0)
        s_barrier
        s_nop 3
        """ % (A0, A0))
    for r in range(4): k.e('ds_write_b128 v2, %s offset:%d' % (vr(O2[1] + 4 * r, 4), r * 1024))
    k.e('ds_write_b32 v4, v%d offset:4096' % L2[1])
    srd(k, 40, 'ws', WS_O, 4 * MB)
    k.e('s_waitcnt lgkmcnt(0)')
    k.e('s_barrier')
    for r in range(4): k.e('ds_read_b128 %s, v3 offset:%d' % (vr(S2[0] + 4 * r, 4), r * 1024))
    k.e('ds_read_b32 v%d, v5 offset:4096' % T)
    k.e('s_waitcnt lgkmcnt(0)')
    O = O2[0]; L = L2[0]; SA = S2[0]; NEGM = N2[0]
    for r in range(0, 16, 2): k.e(pk('add', O + r, O + r, SA + r))
    k.e('v_add_f32 v%d, v%d, v%d' % (L, L, T))
    lstore = 'L_attn_store'; lsafe = 'L_attn_safe'
    k.e('v_max3_f32 v%d, |v%d|, |v%d|, |v%d|' % (T, O, O + 1, L))
    for r in range(2, 16, 2): k.e('v_max3_f32 v%d, |v%d|, |v%d|, v%d' % (T, O + r, O + r + 1, T))
    k.e('v_mul_f32 v%d, 0, v%d' % (T2, L))
    for r in range(16): k.e('v_fma_f32 v%d, 0, v%d, v%d' % (T2, O + r, T2))
    k.e('v_add_f32 v%d, v%d, v%d' % (T, T, T2))
    k.e('v_mov_b32 v3, %s' % hx(2.0 ** 120))
    k.e('v_cmp_nlt_f32 vcc, v%d, v3' % T)
    k.e('s_nop 4')
    k.e('s_cbranch_vccnz %s' % lsafe)
    k.label(lstore)
    k.e('v_rcp_f32 v%d, v%d' % (T2, L))
    k.e('s_nop 0')
    for r in range(0, 16, 2): k.e(pk('mul', O + r, O + r, (T2,)))
    for d in range(8): k.e('v_cvt_pk_bf16_f32 v%d, v%d, v%d' % (P + d, O + 2 * d, O + 2 * d + 1))
    k.e('buffer_store_dwordx4 %s, v%d, s[40:43], s54 offen%s' % (vr(P, 4), A0, WT))
    k.e('buffer_store_dwordx4 %s, v%d, s[40:43], s54 offen offset:1024%s' % (vr(P + 4, 4), A0, WT))
    signal(k, 'S')
    endpgm(k)
    for blk in ool:
        for x in blk: k.e(x)
    k.label(lsafe)
    srd(k, 36, 'ws', WS_KV, 256 * KB, soff='s52')
    def gl(dst, off): return 'buffer_load_dwordx4 %s, v%d, s[36:39], s56 offen offset:%d sc1' % (vr(dst, 4), A0, off)
    k.e('s_mov_b32 s56, 0')
    k.e('v_mov_b32 v%d, 0xff800000' % M)
    k.label(lsafe + '1')
    k.e(gl(KF, 0)); k.e(gl(KF + 4, 1024))
    k.e('s_waitcnt vmcnt(0)')
    k.e(qk(0, 0, '0')); k.e(qk(0, 1))
    k.e('s_nop 15')
    for r in range(0, 16, 2): k.e('v_max3_f32 v%d, v%d, v%d, v%d' % (M, M, SA + r, SA + r + 1))
    k.e('s_add_u32 s56, s56, 4096')
    k.e('s_cmp_lt_u32 s56, %d' % (256 * KB))
    k.e('s_cbranch_scc1 %s1' % lsafe)
    k.e('v_mov_b32 v%d, v%d' % (T, M))
    k.e('s_nop 1')
    k.e('v_permlane32_swap_b32 v%d, v%d' % (M, T))
    k.e('s_nop 1')
    k.e('v_max_f32 v%d, v%d, v%d' % (M, M, T))
    k.e('v_sub_f32 v%d, 0, v%d' % (NEGM, M))
    for r in range(1, 16): k.e('v_mov_b32 v%d, v%d' % (NEGM + r, NEGM))
    for r in range(16): k.e('v_mov_b32 v%d, 0' % (O + r))
    for r in range(4): k.e('v_mov_b32 v%d, 0' % (L + r))
    k.e('s_mov_b32 s56, 0')
    k.label(lsafe + '2')
    k.e(gl(KF, 0)); k.e(gl(KF + 4, 1024)); k.e(gl(VF, 2048)); k.e(gl(VF + 4, 3072))
    k.e('s_waitcnt vmcnt(0)')
    k.e(qk(0, 0)); k.e(qk(0, 1))
    k.e('s_nop 15')
    for r in range(16): k.e('v_exp_f32 v%d, v%d' % (SA + r, SA + r))
    k.e('s_nop 0')
    for d in range(8): k.e('v_cvt_pk_bf16_f32 v%d, v%d, v%d' % (P + d, SA + 2 * d, SA + 2 * d + 1))
    k.e('s_nop 1')
    k.e(pv(0, 0)); k.e(ls(0, 0)); k.e(pv(0, 1)); k.e(ls(0, 1))
    k.e('s_add_u32 s56, s56, 4096')
    k.e('s_nop 7')
    k.e('s_cmp_lt_u32 s56, %d' % (256 * KB))
    k.e('s_cbranch_scc1 %s2' % lsafe)
    k.e('s_nop 15')
    k.e('s_branch %s' % lstore)
    k.need(MSV + 8, 160 * KB)

PHASES = dict(p0=k_p0, qkv=k_qkv, attn=k_attn2 if AT2 else k_attn,
              wo=lambda k, c: k_proj(k, c, 1024, ('xf', WS_O, 1024), 'wo', False),
              win=k_win, wsp=k_wsp,
              wout=lambda k, c: k_proj(k, c, 1792, ('xf', WS_U2, 1792), 'w_out', True))
GROUPS = [g.split('+') for g in os.environ.get('GRP', 'p0+qkv+attn+wo+win+wsp+wout').split(',')]
def same_kernel(a, b): return any(a in g_ and b in g_ for g_ in GROUPS)
def build():
    ks = []
    for grp in GROUPS:
        k = Kern(grp[0] if len(grp) == 1 else 'm' + grp[0], 256, 1024 if grp[0] == 'pre' else 512, 0)
        prologue(k)
        for i, ph in enumerate(grp):
            c = Ctx(); c.name = ph; c.first = i == 0; c.last = i == len(grp) - 1; c.nxt = None if c.last else grp[i + 1]; c.prev = grp[i - 1] if i else None
            PHASES[ph](k, c)
        k.label(k.endl)
        k.e('s_endpgm')
        assert k.lds <= 160 * KB
        ks.append(k)
    s = '; adaLN + softmax MHA + gMLP block, generated by gen.py (hand-written generator)\n'
    for k in ks: s += k.launch()
    s += '.amdgcn_target "amdgcn-amd-amdhsa--gfx950"\n.text\n'
    for k in ks: s += k.text()
    s += 'L_text_end:\n    s_endpgm\n'
    s += '.section .rodata,"a"\n'
    for k in ks: s += k.desc()
    if len(ks) == 1 and env('SINGLE', 0):
        s = s.replace('; @launch kernel=%s_kernel ' % ks[0].name, '; @launch ')
        s = s.replace(ks[0].name + '_kernel', 'adaLN_cond__softmax_full_mha__mixer_gmlp__prompt_kernel')
    return s

PROMO = ('v_exp_f32', 'v_rcp_f32', 'v_mov_b32', 'v_add_f32', 'v_mul_f32', 'v_sub_f32', 'v_max_f32', 'v_lshlrev_b32', 'v_lshrrev_b32',
         'v_and_b32', 'v_xor_b32', 'v_or_b32', 'v_add_u32', 'v_fmac_f32', 'v_min_u32', 'v_max_u32', 'v_rsq_f32', 'v_sqrt_f32')
def align8(text):
    import subprocess, tempfile, re
    lines = text.split('\n')
    i0 = next(i for i, l in enumerate(lines) if l.endswith('_kernel:')); i1 = next(i for i, l in enumerate(lines) if l.startswith('.section'))
    idx = [i for i in range(i0, i1) if lines[i].strip() and not lines[i].strip().startswith((';', '.')) and not lines[i].strip().endswith(':')]
    with tempfile.TemporaryDirectory() as d:
        open(d + '/a.s', 'w').write(text)
        subprocess.check_call(['clang', '-x', 'assembler', '-target', 'amdgcn-amd-amdhsa', '-mcpu=gfx950', '-c', d + '/a.s', '-o', d + '/a.o'])
        dis = subprocess.check_output(['llvm-objdump', '-d', '--mcpu=gfx950', d + '/a.o'], text=True)
    sz = [4 * len(m.group(1).split()) for m in re.finditer(r'// [0-9A-F]{12}: ([0-9A-F ]+)', dis)]
    assert len(sz) == len(idx), (len(sz), len(idx))
    off = 0; ins = {}; npro = nnop = 0
    MINRUN = env('MINRUN', 8)
    for n, i in enumerate(idx):
        if sz[n] == 8 and off % 8 == 4:
            p = n - 1; done = False
            while p >= 0 and sz[p] == 4:
                op = lines[idx[p]].split()[0]
                if op in PROMO:
                    lines[idx[p]] = lines[idx[p]].replace(op, op + '_e64', 1); sz[p] = 8; off += 4; done = True; npro += 1
                    break
                p -= 1
            if not done:
                r = 0
                while n + r < len(sz) and sz[n + r] == 8: r += 1
                prev = lines[idx[n - 1]].split()[0]
                if r >= MINRUN and prev != 's_getpc_b64':
                    ins[i] = '    s_nop 0'; off += 4; nnop += 1
        off += sz[n]
    out = []
    for i, l in enumerate(lines):
        if i in ins: out.append(ins[i])
        out.append(l)
    print('align8: %d widened, %d nops' % (npro, nnop))
    return '\n'.join(out)

if __name__ == '__main__':
    out = sys.argv[1] if len(sys.argv) > 1 else 'adaLN_cond__softmax_full_mha__mixer_gmlp__prompt.s'
    txt = build()
    if env('AL8', 1): txt = align8(txt)
    open(out, 'w').write(txt)
    print('wrote', out)
```

```python
import sys, struct, os
STAMP = int(os.environ.get('STAMP', '0'))
WS_STAMP = 128 << 20
KIDX = [0]
def env(n, d): return int(os.environ.get(n, d))

MB = 1 << 20
KB = 1024
WS_MOD = 0
WS_UW  = 32 * KB
WS_ST0 = 64 * KB
WS_MODP = 128 * KB
WS_MODT = 768 * KB
TAGP = env('TAGP', 1)
WS_SC = 96 * KB
WS_MODQ = 160 * KB
WS_ST1 = 256 * KB
WS_G   = 512 * KB
WS_FL  = 58 * MB
FLSZ = 2 * MB
FL_LN1, FL_QKV, FL_ATT, FL_WO, FL_WIN, FL_WSP, FL_MOD = [i * 8 * KB for i in range(7)]
WS_EPOCH = 240 * KB
AUX_A = 128 * KB; AUX_B = 148 * KB
WS_H   = 1 * MB
WS_Q   = 5 * MB
WS_KV  = 9 * MB
WS_N   = 60 * MB
WS_O   = 17 * MB
WS_X1  = 21 * MB
WS_X1S = 25 * MB
WS_Z   = 29 * MB
ZSZ = 2048 * 1792 * 2
WS_Z2N = WS_Z + ZSZ
WS_U2  = 50 * MB
if env('ALIAS', 0):
    WS_Q = 1 * MB; WS_KV = 5 * MB; WS_H = 13 * MB
    WS_O = WS_H; WS_X1 = WS_Q; WS_X1S = WS_KV
    WS_Z2N = 9 * MB; WS_Z = 17 * MB; WS_U2 = WS_Z
ZB = min(WS_Z, WS_Z2N)

ROLES = {'pre': [('mod', 0, 128, 0, 16), ('stats', 128, 256, 0, 16)], 'ln1': [('pf', 0, 256, 0, 4), ('ln', 0, 256, 4, 8)],
         'attn': [('main', 0, 256, 0, 8)]}
for _n in ('qkv', 'wo', 'wout'): ROLES[_n] = [('load', 0, 256, 0, 4), ('comp', 0, 256, 4, 8)]
for _n in ('win', 'wsp'): ROLES[_n] = [('load', 0, 224, 0, 4), ('comp', 0, 224, 4, 8), ('pf', 224, 256, 0, 8)]
def f2u(f): return struct.unpack('<I', struct.pack('<f', f))[0]
def hx(f): return '0x%08x' % f2u(f)
LOG2E = 1.4426950408889634
WT = os.environ.get('WTF', ' sc1')

class Kern:
    def __init__(self, name, grid, block, lds):
        self.name = name; self.grid = grid; self.block = block; self.lds = lds
        self.lines = []; self.vgpr = 0; self.nlab = 0
    def e(self, s):
        for l in s.strip('\n').split('\n'):
            l = l.strip()
            if l: self.lines.append('    ' + l)
    def label(self, l):
        if env('ALIGN', 0) and ('_loop' in l or '_lloop' in l):
            self.lines.append('.p2align %d' % env('ALIGN', 0))
            for _ in range(env('ALOFF', 0)): self.lines.append('    s_nop 0')
        self.lines.append(l + ':')
    def newlabel(self, base):
        self.nlab += 1
        return 'L_%s_%s%d' % (self.name, base, self.nlab)
    def need(self, vgpr, lds):
        self.vgpr = max(self.vgpr, vgpr); self.lds = max(self.lds, lds)
    def text(self):
        GX = os.environ.get('GX', '')
        if self.name != 'pre':
            if 'm' in GX: self.lines = [l for l in self.lines if 'v_mfma' not in l]
            if 'l' in GX: self.lines = [l for l in self.lines if not (' lds' in l and 'buffer_load' in l and ('s57' in l or 's58' in l))]
            if 'r' in GX: self.lines = [l for l in self.lines if not ('ds_read_b64_tr' in l)]
        if os.environ.get('NOLDSC'):
            self.lines = [l.replace(' sc1 lds', ' lds') for l in self.lines]
        n = self.name + '_kernel'
        return '.globl %s\n.p2align 8\n.type %s,@function\n%s:\n' % (n, n, n) + '\n'.join(self.lines) + '\n'
    def desc(self):
        n = self.name + '_kernel'
        v = self.vgpr
        acc = (v + 3) // 4 * 4
        return ('.p2align 6\n.amdhsa_kernel %s\n  .amdhsa_next_free_vgpr %d\n  .amdhsa_next_free_sgpr 102\n'
                '  .amdhsa_accum_offset %d\n  .amdhsa_group_segment_fixed_size 0\n  .amdhsa_kernarg_size 104\n'
                '  .amdhsa_user_sgpr_count 2\n  .amdhsa_user_sgpr_kernarg_segment_ptr 1\n'
                '  .amdhsa_system_sgpr_workgroup_id_x 1\n.end_amdhsa_kernel\n' % (n, v, acc))
    def launch(self):
        return '; @launch kernel=%s_kernel grid=(%d,1,1) block=(%d,1,1) lds=%d\n' % (self.name, self.grid, self.block, self.lds)

PTR = dict(x=4, wqkv=6, wo=8, bx=10, w_in=12, w_sp=14, b_sp=16, w_out=18, c=20, w_mod=22, out=24, dbg=26, ws=28)
SIZES = dict(x=2048*1024*2, wqkv=1024*3072*2, wo=1024*1024*2, w_in=1024*3584*2, w_sp=2048*2048*2, b_sp=2048*2,
             w_out=1792*1024*2, c=2048, w_mod=1024*6144*2, out=2048*1024*2, dbg=256)

class Ctx: pass
PHIDX = {}
def prologue(k):
    k.endl = 'L_%s_end' % k.name
    k.e("""
    s_load_dwordx16 s[4:19], s[0:1], 0
    s_load_dwordx8 s[20:27], s[0:1], 64
    s_load_dwordx2 s[28:29], s[0:1], 96
    s_cmp_ge_u32 s2, %d
    s_cbranch_scc1 %s
    v_lshrrev_b32 v1, 6, v0
    s_nop 0
    v_readfirstlane_b32 s3, v1
    """ % (k.grid, k.endl))

def phase_begin(k, c):
    k.c = c
    k.label('L_%s_entry' % c.name)
    if env('IDLE_' + c.name, 0):
        for _ in range(env('IDLE_' + c.name, 0)): k.e('s_sleep 36')
    c.kidx = KIDX[0]; KIDX[0] += 1
    PHIDX[c.name] = c.kidx
    if env('PADTO', 0) and c.first: k.e('s_memrealtime s[90:91]')
    if env('DBG', 0) and c.first: dbgstamp(k, 0 if c.name == 'pre' else 10, 512 if c.name == 'pre' else 0, '')
    if STAMP:
        k.e('s_memtime s[88:89]')
        k.e('s_memrealtime s[90:91]')
        for i in range(4): k.e('s_mov_b64 s[%d:%d], 0' % (72 + 2 * i, 73 + 2 * i))

def dbgstamp(k, idx, off, op):
    l = k.newlabel('dbg')
    k.e('''
    s_lshl_b32 s80, s2, 4
    s_add_u32 s80, s80, s3
    s_cmp_lg_u32 s80, %d
    s_cbranch_scc1 %s
    s_waitcnt lgkmcnt(0)
    s_memrealtime s[92:93]
    s_add_u32 s80, s26, %d
    s_addc_u32 s81, s27, 0
    s_and_b32 s81, s81, 0xffff
    s_mov_b32 s82, 256
    s_mov_b32 s83, 0x20000
    s_mov_b64 exec, 1
    s_waitcnt lgkmcnt(0)
    v_mov_b32 v2, s92
    v_mov_b32 v5, %d
    buffer_store_dword v2, v5, s[80:83], 0 offen
    s_mov_b64 exec, -1
    ''' % (5 * 16 + 4, l, off, idx * 4))
    k.label(l)
def endpgm(k):
    c = k.c
    if env('DBG', 0): dbgstamp(k, 1 + c.kidx, 512 if c.name == 'pre' else 0, '')
    if STAMP:
        k.e("""
        s_waitcnt vmcnt(0) lgkmcnt(0)
        s_memtime s[92:93]
        s_memrealtime s[94:95]
        s_mov_b64 exec, 1
        s_add_u32 s80, s28, 0x%x
        s_addc_u32 s81, s29, 0
        s_and_b32 s81, s81, 0xffff
        s_mov_b32 s82, 0x100000
        s_mov_b32 s83, 0x20000
        s_lshl_b32 s86, s2, 4
        s_add_u32 s86, s86, s3
        s_lshl_b32 s86, s86, 5
        s_waitcnt lgkmcnt(0)
        v_mov_b32 v4, s90
        v_mov_b32 v5, s94
        v_mov_b32 v6, s88
        v_mov_b32 v7, s92
        v_mov_b32 v8, s72
        v_mov_b32 v9, s74
        v_mov_b32 v10, s76
        v_mov_b32 v11, s78
        v_mov_b32 v2, s86
        buffer_store_dwordx4 v[4:7], v2, s[80:83], 0 offen
        buffer_store_dwordx4 v[8:11], v2, s[80:83], 0 offen offset:16
        s_waitcnt vmcnt(0)
        """ % (WS_STAMP + c.kidx * (1 << 20)))
    if c.last and env('PADTO', 0):
        l = k.newlabel('pad')
        k.label(l)
        k.e('s_memrealtime s[92:93]\ns_waitcnt lgkmcnt(0)\ns_sub_u32 s92, s92, s90\ns_cmp_lt_u32 s92, %d\ns_cbranch_scc1 %s' % (env('PADTO', 0) * 100, l))
    if c.last: k.e('s_endpgm')
    else:
        k.e('s_mov_b64 exec, -1')
        k.e('s_setprio 0')
        k.e('s_branch L_%s_entry' % c.nxt)
def mark(k, i=0):
    if STAMP:
        k.e('s_memtime s[%d:%d]' % (72 + 2 * i, 73 + 2 * i))
        k.e('s_waitcnt lgkmcnt(0)')

def set_flag(k, setup):
    if not k.c.last:
        k.e(setup)
        k.e('s_lshl_b32 s87, s100, 5')
def OWNF(n): return n in os.environ.get('OWN', 'none').split(',')
ZOWN = env('ZOWN', 1)
FV = 252
def flag_store(k, soff):
    k.e('s_mov_b64 exec, 1')
    k.e('buffer_store_dwordx2 %s, v%d, s[96:99], %s offen sc1' % (vr(FV, 2), FV + 2, soff))
    k.e('s_mov_b64 exec, -1')
def flag_prep(k):
    srd(k, 96, 'ws', WS_FL, FLSZ)
    k.e('v_mov_b32 v%d, s84' % FV); k.e('v_mov_b32 v%d, s85' % (FV + 1)); k.e('v_mov_b32 v%d, 0' % (FV + 2))
    k.need(FV + 3, 0)
def signal(k, role='L', keep=0):
    if k.c.last: return
    if role in ('C', 'S'): flag_prep(k)
    if role == 'C':
        k.e('s_and_b32 s100, s3, 3')
        k.e('s_lshl_b32 s100, s100, 7')
        k.e('s_add_u32 s100, s100, s87')
    if role == 'C' and env('SM', 0): mark(k, 3)
    k.e('s_waitcnt vmcnt(%d)' % keep)
    if role == 'C' and env('SM', 0): mark(k, 0)
    if role == 'C':
        flag_store(k, 's100')
        if OWNF(k.c.nxt): k.e('s_barrier')
    elif role == 'A' and OWNF(k.c.nxt) and k.c.nxt == 'wout':
        l = k.newlabel('sg')
        k.e('s_cmp_lt_u32 s3, 4'); k.e('s_cbranch_scc1 %s' % l); k.e('s_barrier'); k.label(l)
    elif role == 'S':
        l = k.newlabel('sg')
        k.e('s_barrier')
        k.e('s_cmp_lg_u32 s3, 7'); k.e('s_cbranch_scc1 %s' % l)
        flag_store(k, 's87')
        k.label(l)
POLLW = env('POLLW', 4)
def handoff(k, setup, n, role='L', force=False, slp=None):
    if (k.c.first and not force) or not n: return
    if role == 'A' or (role == 'C') == (POLLW >= 4):
        ld = k.newlabel('wd')
        if n <= 64:
            k.e('s_cmp_lg_u32 s3, %d' % POLLW)
            k.e('s_cbranch_scc1 %s' % ld)
        else:
            assert n == 128
            k.e('s_sub_u32 s101, s3, %d' % POLLW)
            k.e('s_cmp_gt_u32 s101, 1')
            k.e('s_cbranch_scc1 %s' % ld)
        srd(k, 96, 'ws', WS_FL, FLSZ)
        k.e(setup)
        k.e('s_lshl_b32 s100, s100, 5')
        if n > 64:
            k.e('s_lshl_b32 s101, s101, 13')
            k.e('s_add_u32 s100, s100, s101')
        k.e('v_lshlrev_b32 v%d, 7, v1' % (FV + 2))
        k.e('s_mov_b32 s101, 0x100000')
        if n < 64: k.e('s_bfm_b64 exec, %d, 0' % n)
        k.need(FV + 3, 0)
        PP = env('PPIPE', 0)
        if PP:
            lp = k.newlabel('wf'); le = k.newlabel('we')
            B = [FV, FV - 2, FV - 4][:PP]
            ldp = lambda b: 'buffer_load_dwordx2 %s, v%d, s[96:99], s100 offen sc1' % (vr(b, 2), FV + 2)
            for b in B[:-1]:
                k.e(ldp(b)); k.e('s_sleep %d' % env('PGAP', 5))
            k.label(lp)
            for i_ in range(PP):
                k.e(ldp(B[i_ - 1]))
                k.e('s_waitcnt vmcnt(%d)' % (PP - 1))
                k.e('v_cmp_ne_u64 vcc, s[84:85], %s' % vr(B[i_], 2))
                k.e('s_nop 4')
                k.e('s_cbranch_vccz %s' % le)
            k.e('s_sub_u32 s101, s101, 1')
            k.e('s_cmp_lg_u32 s101, 0')
            k.e('s_cbranch_scc1 %s' % lp)
        else:
            lp = k.newlabel('wf'); le = k.newlabel('we')
            k.label(lp)
            k.e('buffer_load_dwordx2 %s, v%d, s[96:99], s100 offen sc1' % (vr(FV, 2), FV + 2))
            k.e('s_waitcnt vmcnt(0)')
            k.e('v_cmp_ne_u64 vcc, s[84:85], %s' % vr(FV, 2))
            k.e('s_sub_u32 s101, s101, 1')
            k.e('s_nop 3')
            k.e('s_cbranch_vccz %s' % le)
            if env('PMASK', 1): k.e('s_mov_b64 exec, vcc')
            if slp is None: slp = env('PSLEEP', 1)
            if slp: k.e('s_sleep %d' % slp)
            k.e('s_cmp_lg_u32 s101, 0')
            k.e('s_cbranch_scc1 %s' % lp)
        k.label(le)
        k.e('s_mov_b64 exec, -1')
        k.label(ld)
    k.e('s_barrier')

def handoff_multi(k, polls):
    ld = k.newlabel('wd'); lgo = k.newlabel('wg')
    srd(k, 96, 'ws', WS_FL, FLSZ)
    for w, setup, n in polls:
        ln = k.newlabel('wn')
        k.e('s_cmp_lg_u32 s3, %d' % w)
        k.e('s_cbranch_scc1 %s' % ln)
        k.e(setup)
        k.e('v_min_u32 v%d, %d, v1' % (FV + 2, n - 1))
        k.e('s_branch %s' % lgo)
        k.label(ln)
    k.e('s_branch %s' % ld)
    k.label(lgo)
    k.e('s_lshl_b32 s100, s100, 5')
    k.e('v_lshlrev_b32 v%d, 7, v%d' % (FV + 2, FV + 2))
    k.e('s_mov_b32 s101, 0x100000')
    lp = k.newlabel('wf')
    k.label(lp)
    k.e('buffer_load_dwordx2 %s, v%d, s[96:99], s100 offen sc1' % (vr(FV, 2), FV + 2))
    k.e('s_waitcnt vmcnt(0)')
    k.e('v_cmp_ne_u64 vcc, s[84:85], %s' % vr(FV, 2))
    k.e('s_sub_u32 s101, s101, 1')
    k.e('s_nop 3')
    k.e('s_cbranch_vccz %s' % ld)
    k.e('s_sleep %d' % env('P0SLEEP', 2))
    k.e('s_cmp_lg_u32 s101, 0')
    k.e('s_cbranch_scc1 %s' % lp)
    k.label(ld)
    k.e('s_barrier')

def mod_table(k, R, between=None, nb=0):
    srd(k, 40, 'ws', 0, 256 * KB)
    k.e('v_lshlrev_b32 v%d, 4, v0' % (R + 16))
    for q in range(4):
        k.e('s_mov_b32 s48, %d' % (WS_MODP + q * 8192))
        k.e('buffer_load_dwordx4 %s, v%d, s[40:43], s48 offen sc1' % (vr(R + 4 * q, 4), R + 16))
    if between: between()
    k.e('s_cmp_lt_u32 s3, 4')
    k.e('s_cselect_b32 s49, 0, 1.0')
    k.e('v_add_u32 v%d, %d, v%d' % (R + 16, AUX_A, R + 16))
    k.e('s_waitcnt vmcnt(%d)' % nb)
    k.e(pk('add', R, R, R + 4)); k.e(pk('add', R + 2, R + 2, R + 6)); k.e(pk('add', R + 8, R + 8, R + 12)); k.e(pk('add', R + 10, R + 10, R + 14))
    k.e(pk('add', R, R, R + 8)); k.e(pk('add', R + 2, R + 2, R + 10))
    for d in range(2): round_bf16_pair(k, R + 2 * d, R + 2 * d + 1, R + 4)
    for q in range(4): k.e('v_add_f32 v%d, s49, v%d' % (R + q, R + q))
    for d in range(2): round_bf16_pair(k, R + 2 * d, R + 2 * d + 1, R + 4)
    k.e('ds_write_b128 v%d, %s' % (R + 16, vr(R, 4)))
    k.e('s_waitcnt lgkmcnt(0)')
    k.e('s_barrier')

def poll_back(k, lp):
    l = k.newlabel('pd')
    k.e('s_sub_u32 s101, s101, 1')
    k.e('s_nop 3')
    k.e('s_cbranch_vccz %s' % l)
    k.e('s_cmp_lg_u32 s101, 0')
    k.e('s_cbranch_scc1 %s' % lp)
    k.label(l)
def poll_init(k): k.e('s_mov_b32 s101, 0x100000')

def srd(k, d, what, off=0, size=None, soff=None):
    p = PTR[what]
    if what == 'ws': off += env('WSB', 0) * MB
    if size is None: size = SIZES[what]
    if off or soff:
        k.e('s_add_u32 s%d, s%d, 0x%x' % (d, p, off))
        k.e('s_addc_u32 s%d, s%d, 0' % (d + 1, p + 1))
        if soff:
            k.e('s_add_u32 s%d, s%d, %s' % (d, d, soff))
            k.e('s_addc_u32 s%d, s%d, 0' % (d + 1, d + 1))
        k.e('s_and_b32 s%d, s%d, 0xffff' % (d + 1, d + 1))
    else:
        k.e('s_mov_b32 s%d, s%d' % (d, p))
        k.e('s_and_b32 s%d, s%d, 0xffff' % (d + 1, p + 1))
    k.e('s_mov_b32 s%d, 0x%x' % (d + 2, size))
    k.e('s_mov_b32 s%d, 0x20000' % (d + 3))

def finish(k):
    endpgm(k)

XT = env('XT', 0)
AOWN = env('AOWN', 3)
AT2 = env('AT2', 1)
MP0 = env('MP0', 0)
CPF = env('CPF', 1)
def code_pf(k, start, end, maxbytes, lane=1, vt=6, vd=7, sb=84):
    if not CPF: return 0
    h = k.newlabel('pc')
    k.e('s_getpc_b64 s[%d:%d]' % (sb, sb + 1))
    k.label(h)
    k.e('s_add_u32 s%d, s%d, %s-%s' % (sb, sb, start, h))
    k.e('s_addc_u32 s%d, s%d, 0' % (sb + 1, sb + 1))
    n = (maxbytes + 8191) // 8192
    for i in range(n):
        k.e('v_lshlrev_b32 v%d, 7, v%d' % (vt, lane))
        if i: k.e('v_add_u32 v%d, %d, v%d' % (vt, i * 8192, vt))
        k.e('v_min_u32 v%d, %s-%s-4, v%d' % (vt, end, start, vt))
        k.e('global_load_dword v%d, v%d, s[%d:%d]' % (vd, vt, sb, sb + 1))
    return n

def vr(b, n): return 'v[%d:%d]' % (b, b + n - 1)
def sr(b): return 's[%d:%d]' % (b, b + 3)

def round_bf16_pair(k, a, b, tmp):
    k.e('v_cvt_pk_bf16_f32 v%d, v%d, v%d' % (tmp, a, b))
    k.e('v_lshlrev_b32 v%d, 16, v%d' % (a, tmp))
    k.e('v_and_b32 v%d, 0xffff0000, v%d' % (b, tmp))

def red_lanes(k, regs, tmp, rors=(8,)):
    for ro in rors:
        k.e('s_nop 1')
        for r in regs:
            k.e('v_add_f32_dpp v%d, v%d, v%d row_ror:%d row_mask:0xf bank_mask:0xf' % (r, r, r, ro))
    for op in ('v_permlane16_swap_b32', 'v_permlane32_swap_b32'):
        for r, t in zip(regs, tmp): k.e('v_mov_b32 v%d, v%d' % (t, r))
        k.e('s_nop 1')
        for r, t in zip(regs, tmp): k.e('%s v%d, v%d' % (op, r, t))
        k.e('s_nop 1')
        for r, t in zip(regs, tmp): k.e('v_add_f32 v%d, v%d, v%d' % (r, r, t))

def unpack(k, lo, hi, src):
    k.e('v_lshlrev_b32 v%d, 16, v%d' % (lo, src))
    k.e('v_and_b32 v%d, 0xffff0000, v%d' % (hi, src))

def k_p0(k, c):
    phase_begin(k, c)
    KIDX[0] += 1
    assert c.first and not c.last
    lst = 'L_p0_stats'
    def rest_issue():
        srd(k, 52, 'w_mod'); srd(k, 56, 'c')
        k.e("""
        v_lshrrev_b32 v164, 3, v0
        v_lshlrev_b32 v165, 4, v164        ; c byte offset = g*16
        v_mul_u32_u24 v164, %d, v164
        v_and_b32 v166, 7, v0
        v_lshl_add_u32 v164, v166, 4, v164
        s_lshr_b32 s60, s30, 1             ; col block
        s_and_b32 s61, s30, 1              ; k half
        s_lshl_b32 s62, s60, 7
        s_mul_i32 s63, s61, %d
        s_add_u32 s62, s62, s63
        s_add_u32 s62, s62, 4096
        s_lshl_b32 s63, s61, 10
        buffer_load_dwordx4 v[128:131], v165, s[56:59], s63 offen
        """ % (8 * 12288, 512 * 12288))
        for j in range(8):
            k.e('buffer_load_dwordx4 %s, v164, s[52:55], s62 offen' % vr(132 + 4 * j, 4))
            k.e('s_add_u32 s62, s62, 12288')
        k.need(192, 0)
    def rest_compute(newer):
        S_ = 168; T_ = 176; A_ = 184
        k.e('s_waitcnt vmcnt(%d)' % (8 + newer))
        for j in range(4): unpack(k, S_ + 2 * j, S_ + 1 + 2 * j, 128 + j)
        for j in range(8): k.e('v_mul_f32 v%d, %s, v%d' % (T_ + j, hx(-LOG2E), S_ + j))
        for j in range(8): k.e('v_exp_f32 v%d, v%d' % (T_ + j, T_ + j))
        for j in range(8): k.e('v_add_f32 v%d, 1.0, v%d' % (T_ + j, T_ + j))
        for j in range(8): k.e('v_rcp_f32 v%d, v%d' % (T_ + j, T_ + j))
        for j in range(8): k.e('v_mul_f32 v%d, v%d, v%d' % (S_ + j, S_ + j, T_ + j))
        for j in range(4): round_bf16_pair(k, S_ + 2 * j, S_ + 1 + 2 * j, T_)
        for j in range(8):
            k.e('s_waitcnt vmcnt(%d)' % (7 - j + newer))
            for d in range(4):
                unpack(k, T_, T_ + 1, 132 + 4 * j + d)
                op = 'v_mul_f32' if j == 0 else 'v_fmac_f32'
                k.e('%s v%d, v%d, v%d' % (op, A_ + 2 * d, T_, S_ + j))
                k.e('%s v%d, v%d, v%d' % (op, A_ + 1 + 2 * d, T_ + 1, S_ + j))
        k.e('s_nop 1')
        for e in range(4): k.e('v_permlane32_swap_b32 v%d, v%d' % (A_ + e, A_ + 4 + e))
        k.e('s_nop 1')
        for e in range(4): k.e('v_add_f32 v%d, v%d, v%d' % (A_ + e, A_ + e, A_ + 4 + e))
        k.e('s_nop 1')
        for e in range(2): k.e('v_permlane16_swap_b32 v%d, v%d' % (A_ + e, A_ + 2 + e))
        k.e('s_nop 1')
        for e in range(2): k.e('v_add_f32 v%d, v%d, v%d' % (A_ + e, A_ + e, A_ + 2 + e))
        k.e('s_nop 1')
        for e in range(2): k.e('v_add_f32_dpp v%d, v%d, v%d row_ror:8 row_mask:0xf bank_mask:0xf' % (A_ + e, A_ + e, A_ + e))
        lw2 = k.newlabel('nw')
        k.e("""
        v_lshlrev_b32 v164, 5, v166
        v_lshrrev_b32 v165, 4, v1
        v_lshl_add_u32 v164, v165, 3, v164
        s_lshl_b32 s62, s3, 8
        s_add_u32 s62, s62, %d
        v_add_u32 v164, s62, v164
        ds_write_b64 v164, v[184:185]
        s_waitcnt lgkmcnt(0)
        s_barrier
        s_cmp_lg_u32 s3, 7
        s_cbranch_scc1 %s
        v_lshlrev_b32 v164, 2, v1
        v_add_u32 v165, %d, v164
        """ % (AUX_A + 8192, lw2, AUX_A + 8192))
        for w in range(8): k.e('ds_read_b32 v%d, v165 offset:%d' % (T_ + w, w * 256))
        k.e("""
        s_lshl_b32 s62, s60, 8
        s_lshl_b32 s63, s61, 14
        s_add_u32 s62, s62, s63
        s_add_u32 s62, s62, %d
        s_waitcnt lgkmcnt(0)
        """ % WS_MODQ)
        for w in range(0, 8, 2): k.e('v_add_f32 v%d, v%d, v%d' % (T_ + w, T_ + w, T_ + w + 1))
        k.e('v_add_f32 v%d, v%d, v%d' % (T_, T_, T_ + 2))
        k.e('v_add_f32 v%d, v%d, v%d' % (T_ + 4, T_ + 4, T_ + 6))
        k.e('v_add_f32 v%d, v%d, v%d' % (T_, T_, T_ + 4))
        k.e('buffer_store_dword v%d, v164, s[40:43], s62 offen%s' % (T_, WT))
        k.label(lw2)
    k.e("""
    v_and_b32 v1, 63, v0               ; lane
    v_lshlrev_b32 v6, 4, v0            ; tid*16
    s_lshr_b32 s30, s2, 4
    s_lshl_b32 s30, s30, 3
    s_and_b32 s47, s2, 7
    s_add_u32 s30, s30, s47            ; index within role (0..127)
    s_bitcmp1_b32 s2, 3
    s_cbranch_scc1 %s
    s_lshr_b32 s48, s30, 2             ; col block
    s_and_b32 s49, s30, 3              ; k quarter
    v_lshrrev_b32 v2, 3, v0            ; row group (0..63): rows 4g..4g+3 (+256*q)
    v_and_b32 v3, 7, v0                ; chunk
    v_lshlrev_b32 v4, 3, v2            ; c byte offset = g*8
    v_mul_u32_u24 v5, %d, v2
    v_lshl_add_u32 v5, v3, 4, v5
    s_lshl_b32 s31, s48, 7
    s_mul_i32 s44, s49, %d
    s_add_u32 s31, s31, s44
    s_lshl_b32 s45, s49, 9
    s_waitcnt lgkmcnt(0)
    s_load_dwordx2 s[84:85], s[28:29], 0x%x
    """ % (lst, 4 * 12288, 256 * 12288, WS_EPOCH + env('WSB', 0) * MB))
    mark(k, 0)
    srd(k, 36, 'w_mod'); srd(k, 32, 'c')
    CL = env('CLAST', 0)
    if not CL: k.e('buffer_load_dwordx2 v[8:9], v4, s[32:35], s45 offen')
    for j in range(4):
        k.e('buffer_load_dwordx4 %s, v5, s[36:39], s31 offen' % vr(12 + 4 * j, 4))
        k.e('s_add_u32 s31, s31, 12288')
    if CL: k.e('buffer_load_dwordx2 v[8:9], v4, s[32:35], s45 offen')
    lnr = k.newlabel('nr'); lnc = k.newlabel('nc')
    k.e('s_cmp_gt_u32 s3, 1')
    k.e('s_cbranch_scc1 %s' % lnr)
    for r in range(4): k.e('v_mov_b32 v%d, -1' % (40 + r))
    for off, size in ((WS_G, 256 * KB), (WS_MOD, 64 * KB)) + (() if MP0 else ((WS_MODQ, 64 * KB),)):
        per = size // 128
        srd(k, 40, 'ws', off, size)
        k.e('s_mul_i32 s45, s30, %d' % per)
        k.e('v_cmp_gt_u32 vcc, %d, v0' % (per // 16))
        k.e('s_and_saveexec_b64 s[46:47], vcc')
        k.e('buffer_store_dwordx4 v[40:43], v6, s[40:43], s45 offen' + WT)
        k.e('s_mov_b64 exec, s[46:47]')
    k.e('s_waitcnt vmcnt(0)')
    k.label(lnr)
    srd(k, 40, 'ws', 0, 256 * KB)
    if CL == 2:
        k.e('s_waitcnt vmcnt(1)'); mark(k, 0)
    k.e('s_waitcnt vmcnt(%d)' % (0 if CL else 4))
    mark(k, 1)
    for j in range(2): unpack(k, 44 + 2 * j, 45 + 2 * j, 8 + j)
    for j in range(4): k.e('v_mul_f32 v%d, %s, v%d' % (52 + j, hx(-LOG2E), 44 + j))
    for j in range(4): k.e('v_exp_f32 v%d, v%d' % (52 + j, 52 + j))
    for j in range(4): k.e('v_add_f32 v%d, 1.0, v%d' % (52 + j, 52 + j))
    for j in range(4): k.e('v_rcp_f32 v%d, v%d' % (52 + j, 52 + j))
    for j in range(4): k.e('v_mul_f32 v%d, v%d, v%d' % (44 + j, 44 + j, 52 + j))
    for j in range(2): round_bf16_pair(k, 44 + 2 * j, 45 + 2 * j, 52)
    lns = k.newlabel('nosc')
    if not MP0: k.e("""
    s_cmp_lg_u32 s48, 0
    s_cbranch_scc1 %s
    v_lshlrev_b32 v7, 4, v2
    s_lshl_b32 s44, s49, 10
    s_add_u32 s44, s44, %d
    buffer_store_dwordx4 v[44:47], v7, s[40:43], s44 offen%s
    s_waitcnt vmcnt(0)
    """ % (lns, WS_SC, WT))
    k.label(lns)
    A = 56
    for j in range(4):
        k.e('s_waitcnt vmcnt(%d)' % (3 - j))
        for d in range(4):
            unpack(k, 52, 53, 12 + 4 * j + d)
            op = 'v_mul_f32' if j == 0 else 'v_fmac_f32'
            k.e('%s v%d, v52, v%d' % (op, A + 2 * d, 44 + j))
            k.e('%s v%d, v53, v%d' % (op, A + 1 + 2 * d, 44 + j))
    mark(k, 2)
    if MP0 == 4: rest_issue()
    k.e('s_nop 1')
    for e in range(4): k.e('v_permlane32_swap_b32 v%d, v%d' % (A + e, A + 4 + e))
    k.e('s_nop 1')
    for e in range(4): k.e('v_add_f32 v%d, v%d, v%d' % (A + e, A + e, A + 4 + e))
    k.e('s_nop 1')
    for e in range(2): k.e('v_permlane16_swap_b32 v%d, v%d' % (A + e, A + 2 + e))
    k.e('s_nop 1')
    for e in range(2): k.e('v_add_f32 v%d, v%d, v%d' % (A + e, A + e, A + 2 + e))
    k.e('s_nop 1')
    for e in range(2): k.e('v_add_f32_dpp v%d, v%d, v%d row_ror:8 row_mask:0xf bank_mask:0xf' % (A + e, A + e, A + e))
    lw = k.newlabel('nw')
    k.e("""
    v_lshlrev_b32 v2, 5, v3
    v_lshrrev_b32 v7, 4, v1
    v_lshl_add_u32 v2, v7, 3, v2
    s_lshl_b32 s44, s3, 8
    s_add_u32 s44, s44, %d
    v_add_u32 v2, s44, v2
    ds_write_b64 v2, v[56:57]
    s_waitcnt lgkmcnt(0)
    s_add_u32 s84, s84, 1
    s_barrier
    s_cmp_lg_u32 s3, 0
    s_cbranch_scc1 %s
    v_lshlrev_b32 v2, 2, v1
    v_add_u32 v7, %d, v2
    """ % (AUX_A, lw, AUX_A))
    for w in range(8): k.e('ds_read_b32 v%d, v7 offset:%d' % (12 + w, w * 256))
    flag_prep(k)
    k.e("""
    s_lshl_b32 s31, s48, 8
    s_lshl_b32 s44, s49, 13
    s_add_u32 s31, s31, s44
    s_add_u32 s31, s31, %d
    s_lshl_b32 s100, s30, 7
    s_add_u32 s100, s100, %d
    s_waitcnt lgkmcnt(0)
    """ % (WS_MODP, FL_MOD * 32))
    for w in range(0, 8, 2): k.e('v_add_f32 v%d, v%d, v%d' % (12 + w, 12 + w, 13 + w))
    k.e('v_add_f32 v12, v12, v14')
    k.e('v_add_f32 v16, v16, v18')
    k.e('v_add_f32 v12, v12, v16')
    if TAGP:
        srd(k, 96, 'ws', WS_MODT, 64 * KB)
        k.e("""
        v_mov_b32 v14, s84
        v_mov_b32 v15, s85
        v_mov_b32_dpp v13, v12 quad_perm:[1,1,3,3] row_mask:0xf bank_mask:0xf
        v_lshlrev_b32 v2, 3, v1
        s_lshl_b32 s31, s48, 9
        s_lshl_b32 s44, s49, 14
        s_add_u32 s31, s31, s44
        s_mov_b32 exec_lo, 0x55555555
        s_mov_b32 exec_hi, 0x55555555
        buffer_store_dwordx4 v[12:15], v2, s[96:99], s31 offen sc1
        s_mov_b64 exec, -1
        """)
    else:
        k.e('buffer_store_dword v12, v2, s[40:43], s31 offen' + WT)
        k.e('s_waitcnt vmcnt(0)')
        flag_store(k, 's100')
    k.label(lw)
    k.e('s_barrier')
    mark(k, 3)
    if env('TLBW', 0):
        lt = k.newlabel('tl')
        for w, (nm, sz) in enumerate((('ws', 64 * MB), ('w_mod', None), ('w_sp', None), ('w_in', None), ('w_out', None), ('wo', None), ('out', None), ('x', None))):
            ln = k.newlabel('tn')
            k.e('s_cmp_lg_u32 s3, %d' % w)
            k.e('s_cbranch_scc1 %s' % ln)
            srd(k, 36, nm, 0, sz)
            k.e('s_branch %s' % lt)
            k.label(ln)
        k.label(lt)
        k.e('s_lshr_b32 s51, s30, 3')
        k.e('s_lshl_b32 s51, s51, 22')
        k.e('s_add_u32 s51, s51, %d' % (65536 - 128))
        k.e('v_lshlrev_b32 v36, 16, v1')
        k.e('buffer_load_dword v37, v36, s[36:39], s51 offen')
    srd(k, 36, 'wqkv')
    k.e('s_lshl_b32 s51, s30, 13')
    k.e('s_add_u32 s51, s51, %d' % (env('NPFE', 0) * MB))
    for p in range(env('NPFQ', 0) - env('NPFE', 0)):
        k.e('buffer_load_dwordx4 v[8:11], v6, s[36:39], s51 offen')
        k.e('s_add_u32 s51, s51, %d' % MB)
    if CPF:
        h = k.newlabel('pc')
        k.e('s_cmp_lg_u32 s3, 2')
        k.e('s_cbranch_scc1 %s' % lnc)
        k.e('s_cmp_ge_u32 s30, 64')
        k.e('s_cbranch_scc1 %s' % lnc)
        k.e('s_getpc_b64 s[64:65]')
        k.label(h)
        k.e('s_add_u32 s64, s64, L_qkv_entry-%s' % h)
        k.e('s_addc_u32 s65, s65, 0')
        k.e('s_lshr_b32 s44, s30, 3')
        k.e('s_lshl_b32 s44, s44, 13')
        k.e('v_lshl_add_u32 v38, v1, 7, s44')
        k.e('v_min_u32 v38, L_text_end-L_qkv_entry-4, v38')
        k.e('global_load_dword v39, v38, s[64:65]')
        k.label(lnc)
    if MP0 == 1:
        rest_issue(); rest_compute(0)
    if MP0 == 4: rest_compute(0)
    k.e('s_waitcnt vmcnt(0)')
    endpgm(k)
    k.label(lst)
    k.e("""
    s_lshl_b32 s44, s3, 12
    v_lshl_add_u32 v3, v1, 4, s44      ; wave*4096 + lane*16
    s_lshl_b32 s31, s30, 15            ; 16 rows * 2048
    s_waitcnt lgkmcnt(0)
    s_load_dwordx2 s[84:85], s[28:29], 0x%x
    """ % (WS_EPOCH + env('WSB', 0) * MB))
    srd(k, 32, 'x')
    if env('XDELAY', 0): k.e('s_waitcnt lgkmcnt(0)')
    for q in range(4): k.e('buffer_load_dwordx4 %s, v3, s[32:35], s31 offen offset:%d' % (vr(8 + 4 * q, 4), q * 1024))
    if MP0 == 2: rest_issue()
    NE = env('NPFE', 0)
    if NE:
        srd(k, 36, 'wqkv')
        k.e('s_lshl_b32 s51, s30, 13')
        for p in range(NE):
            k.e('buffer_load_dwordx4 v[128:131], v6, s[36:39], s51 offen')
            k.e('s_add_u32 s51, s51, %d' % MB)
    srd(k, 36, 'ws', WS_H, 4 * MB); srd(k, 40, 'ws', 0, 256 * KB)
    set_flag(k, 's_lshr_b32 s100, s30, 3\ns_lshl_b32 s100, s100, 8\ns_and_b32 s101, s30, 7\ns_lshl_b32 s101, s101, 2\ns_add_u32 s100, s100, s101\ns_add_u32 s100, s100, %d' % FL_LN1)
    mark(k, 0)
    k.e('s_waitcnt vmcnt(%d) lgkmcnt(0)' % (NE + (9 if MP0 == 2 else 0)))
    k.e('s_add_u32 s84, s84, 1')
    if MP0 == 3: rest_issue()
    X = 24
    for d in range(16): unpack(k, X + 2 * d, X + 2 * d + 1, 8 + d)
    MU = [56, 58]; VA = [60, 62]
    for r in range(2):
        k.e(pk('add', 8 + 2 * r, X + 16 * r, X + 16 * r + 2))
        for e in range(4, 16, 2): k.e(pk('add', 8 + 2 * r, 8 + 2 * r, X + 16 * r + e))
        k.e('v_add_f32 v%d, v%d, v%d' % (MU[r], 8 + 2 * r, 9 + 2 * r))
    red_lanes(k, MU, [8, 9], rors=(8, 4, 2, 1))
    for r in range(2):
        k.e('v_mul_f32 v%d, %s, v%d' % (MU[r], hx(-1.0 / 1024), MU[r]))
        for e in range(0, 16, 2):
            k.e(pk('add', 8, X + 16 * r + e, (MU[r],)))
            k.e(pk('mul', 10, 8, 8) if e == 0 else pk('fma', 10, 8, 8, 10))
        k.e('v_add_f32 v%d, v10, v11' % VA[r])
    red_lanes(k, VA, [8, 9], rors=(8, 4, 2, 1))
    for r in range(2):
        k.e('v_mul_f32 v%d, %s, v%d' % (VA[r], hx(1.0 / 1024), VA[r]))
        round_bf16_pair(k, MU[r], VA[r], 8)
        k.e('v_add_f32 v%d, %s, v%d' % (VA[r], hx(1e-5), VA[r]))
    round_bf16_pair(k, VA[0], VA[1], 8)
    for r in range(2): k.e('v_sqrt_f32 v%d, v%d' % (VA[r], VA[r]))
    k.e('s_nop 0')
    round_bf16_pair(k, VA[0], VA[1], 8)
    for r in range(2): k.e('v_rcp_f32 v%d, v%d' % (VA[r], VA[r]))
    k.e("""
    v_lshrrev_b32 v5, 1, v1
    v_mul_u32_u24 v5, 544, v5          ; cb*2*272
    v_and_b32 v7, 1, v1
    v_lshl_add_u32 v5, v7, 3, v5
    s_lshl_b32 s44, s3, 5
    v_add_u32 v5, s44, v5
    """)
    for r in range(2):
        x = X + 16 * r; pin = 8 + 8 * r
        for d in range(8): k.e(pk('add', x + 2 * d, x + 2 * d, (MU[r],)))
        for d in range(8): round_bf16_pair(k, x + 2 * d, x + 2 * d + 1, pin + d)
        for d in range(8): k.e(pk('mul', x + 2 * d, x + 2 * d, (VA[r],)))
        for d in range(8): k.e('v_cvt_pk_bf16_f32 v%d, v%d, v%d' % (pin + d, x + 2 * d, x + 2 * d + 1))
        for q, o in enumerate((0, 272, 64 * 272, 65 * 272)):
            k.e('ds_write_b64 v5, %s offset:%d' % (vr(pin + 2 * q, 2), o + 16 * r))
    k.e("""
    v_lshrrev_b32 v5, 4, v0            ; gi (p=0)
    v_and_b32 v7, 15, v0               ; row
    v_mul_u32_u24 v2, 272, v5
    v_lshl_add_u32 v2, v7, 4, v2       ; granule lds address
    v_lshlrev_b32 v4, 9, v5
    v_lshl_add_u32 v4, v7, 4, v4       ; global offset
    v_lshrrev_b32 v3, 1, v5
    v_lshlrev_b32 v3, 6, v3
    v_and_b32 v5, 1, v5
    v_lshl_add_u32 v3, v5, 4, v3
    v_add_u32 v3, %d, v3               ; table address: cb*64 + h*16
    s_lshr_b32 s44, s30, 1
    s_lshl_b32 s44, s44, 16
    s_and_b32 s45, s30, 1
    s_lshl_b32 s45, s45, 8
    s_add_u32 s44, s44, s45
    s_mov_b32 s48, %d
    s_cmp_lt_u32 s3, 4
    s_cselect_b32 s49, 0, 1.0
    s_waitcnt lgkmcnt(0)
    """ % (AUX_A, WS_MODP))
    if MP0 in (2, 3): rest_compute(0)
    mark(k, 1)
    if XT:
        srd(k, 36, 'ws', WS_N, 4 * MB)
        k.e('s_barrier')
        for p in range(4): k.e('ds_read_b128 %s, v2 offset:%d' % (vr(8 + 4 * p, 4), p * 32 * 272))
        for p in range(4):
            k.e('s_waitcnt lgkmcnt(%d)' % (3 - p))
            k.e('buffer_store_dwordx4 %s, v4, s[36:39], s44 offen%s' % (vr(8 + 4 * p, 4), WT))
            k.e('s_add_u32 s44, s44, 16384')
        mark(k, 3)
        signal(k, 'S')
        finish(k)
        k.need(128, AUX_A + 8192)
        return
    X = 24
    k.e('s_barrier')
    for p in range(4): k.e('ds_read_b128 %s, v2 offset:%d' % (vr(8 + 4 * p, 4), p * 32 * 272))
    for p in range(4):
        k.e('s_waitcnt lgkmcnt(%d)' % (3 - p))
        for d in range(4): unpack(k, X + 8 * p + 2 * d, X + 8 * p + 2 * d + 1, 8 + 4 * p + d)
    if TAGP:
        srd(k, 96, 'ws', WS_MODT, 64 * KB)
        lp = k.newlabel('wf'); le = k.newlabel('we')
        k.e('v_lshlrev_b32 v81, 4, v1')
        k.e('s_lshl_b32 s100, s3, 11')
        k.e('v_add_u32 v81, s100, v81')
        k.e('v_lshlrev_b32 v80, 3, v1')
        k.e('s_lshl_b32 s100, s3, 10')
        k.e('s_add_u32 s100, s100, %d' % AUX_A)
        k.e('v_add_u32 v80, s100, v80')
        k.e('s_mov_b32 s101, 0x100000')
        k.label(lp)
        for q in range(4):
            k.e('s_mov_b32 s48, %d' % (q * 16384))
            for hh in range(2): k.e('buffer_load_dwordx4 %s, v81, s[96:99], s48 offen offset:%d sc1' % (vr(96 + 8 * q + 4 * hh, 4), hh * 1024))
        k.e('s_mov_b64 s[50:51], 0')
        for n in range(8):
            k.e('s_waitcnt vmcnt(%d)' % (7 - n))
            k.e('v_cmp_ne_u64 vcc, s[84:85], %s' % vr(98 + 4 * n, 2))
            k.e('s_or_b64 s[50:51], s[50:51], vcc')
        k.e('s_cbranch_scc0 %s' % le)
        k.e('s_sub_u32 s101, s101, 1')
        k.e('s_sleep %d' % env('P0SLEEP', 1))
        k.e('s_cmp_lg_u32 s101, 0')
        k.e('s_cbranch_scc1 %s' % lp)
        k.label(le)
        mark(k, 2)
        for hh in range(2):
            b = 96 + 4 * hh
            k.e(pk('add', b, b, b + 8)); k.e(pk('add', b + 16, b + 16, b + 24)); k.e(pk('add', 64 + 2 * hh, b, b + 16))
    else:
        srd(k, 96, 'ws', WS_FL, FLSZ)
        lp = k.newlabel('wf'); le = k.newlabel('we')
        k.e("""
        s_lshl_b32 s100, s3, 11
        s_add_u32 s100, s100, %d
        v_lshlrev_b32 v%d, 7, v1
        v_add_u32 v80, %d, v6
        s_mov_b32 s101, 0x100000
        s_mov_b64 exec, 0xffff
        %s:
        buffer_load_dwordx2 %s, v%d, s[96:99], s100 offen sc1
        s_waitcnt vmcnt(0)
        v_cmp_ne_u64 vcc, s[84:85], %s
        s_sub_u32 s101, s101, 1
        s_nop 3
        s_cbranch_vccz %s
        s_mov_b64 exec, vcc
        s_sleep %d
        s_cmp_lg_u32 s101, 0
        s_cbranch_scc1 %s
        %s:
        s_mov_b64 exec, -1
        """ % (FL_MOD * 32, FV + 2, AUX_A, lp, vr(FV, 2), FV + 2, vr(FV, 2), le, env('P0SLEEP', 1), lp, le))
        mark(k, 2)
        for q in range(4):
            k.e('buffer_load_dwordx4 %s, v6, s[40:43], s48 offen sc1' % vr(64 + 4 * q, 4))
            k.e('s_add_u32 s48, s48, 8192')
        k.e('s_waitcnt vmcnt(0)')
        k.e(pk('add', 64, 64, 68)); k.e(pk('add', 66, 66, 70)); k.e(pk('add', 72, 72, 76)); k.e(pk('add', 74, 74, 78))
        k.e(pk('add', 64, 64, 72)); k.e(pk('add', 66, 66, 74))
    for d in range(2): round_bf16_pair(k, 64 + 2 * d, 65 + 2 * d, 68)
    for q in range(4): k.e('v_add_f32 v%d, s49, v%d' % (64 + q, 64 + q))
    for d in range(2): round_bf16_pair(k, 64 + 2 * d, 65 + 2 * d, 68)
    if TAGP:
        k.e('ds_write_b64 v80, v[64:65]')
        k.e('ds_write_b64 v80, v[66:67] offset:512')
    else: k.e('ds_write_b128 v80, v[64:67]')
    k.e('s_waitcnt lgkmcnt(0)')
    k.e('s_barrier')
    SC = 64; SH = 96
    for p in range(4):
        for sub in range(2):
            k.e('ds_read_b128 %s, v3 offset:%d' % (vr(SC + 8 * p + 4 * sub, 4), 4096 + p * 1024 + sub * 32))
            k.e('ds_read_b128 %s, v3 offset:%d' % (vr(SH + 8 * p + 4 * sub, 4), p * 1024 + sub * 32))
    for p in range(4):
        pin = 8 + 4 * p; x = X + 8 * p
        k.e('s_waitcnt lgkmcnt(%d)' % (12 - 4 * p))
        if env('NORND', 0):
            for d in range(4): k.e(pk('fma', x + 2 * d, x + 2 * d, SC + 8 * p + 2 * d, SH + 8 * p + 2 * d))
        else:
            for d in range(4): k.e(pk('mul', x + 2 * d, x + 2 * d, SC + 8 * p + 2 * d))
            for d in range(4): round_bf16_pair(k, x + 2 * d, x + 2 * d + 1, pin + d)
            for d in range(4): k.e(pk('add', x + 2 * d, x + 2 * d, SH + 8 * p + 2 * d))
        for d in range(4): k.e('v_cvt_pk_bf16_f32 v%d, v%d, v%d' % (pin + d, x + 2 * d, x + 2 * d + 1))
        k.e('buffer_store_dwordx4 %s, v4, s[36:39], s44 offen%s' % (vr(pin, 4), WT))
        k.e('s_add_u32 s44, s44, 16384')
    mark(k, 3)
    signal(k, 'S')
    finish(k)
    k.need(128, AUX_A + 10240)

def log2(n):
    l = n.bit_length() - 1
    assert 1 << l == n
    return l
class G: pass

def k_gemm(k, c, GM, GN, bm_log2, xm_log2, bn, TM, TN, WM, WN, K, KS, NS, X, Y, pre, pre2, epi, swap=(), aux=None, auxsz=0, auxbase=None,
           pf=None, aux_end=None, side=None, wait=None, sig=None, dep='X', GU=1, RWD=1, post=None, frbase=None, selfsig=False, RR=0, early=None, JG=1, lazyfix=False, SOFT=0, own=None, ownlim=None, altmap=False, prelast=None, DEFER=0, dcols=None):
    g = G()
    name = c.name
    xt = X[0] == 'xt'
    M16 = name in os.environ.get('M16', 'qkv,wo,win,wsp,wout').split(',')
    if xt: X = ('xf',) + X[1:]
    ROLL = env('ROLL_' + name, env('ROLL', 0 if name == 'qkv' else 1))
    LAG = 2 if ROLL else 1
    NS = env('NS_' + name, NS + LAG - 1)
    mb = TM // WM // 32; nb = TN // WN // 32
    S = KS // 16
    xb = TM * KS * 2; yb = TN * KS * 2; STAGE = xb + yb
    nst = K // KS
    solo = c.first and c.last
    g.k = k; g.mb = mb; g.nb = nb; g.TM = TM; g.TN = TN; g.AUX = NS * STAGE if solo or auxbase is None else auxbase
    assert NS * STAGE <= g.AUX
    phase_begin(k, c)
    k.e('''
    v_and_b32 v1, 63, v0               ; lane
    s_mov_b32 s46, s3
    s_and_b32 s47, s2, 7               ; xcd
    s_lshr_b32 s48, s2, 3              ; idx
    s_and_b32 s30, s47, %d
    s_lshl_b32 s30, s30, %d
    s_and_b32 s49, s48, %d
    s_add_u32 s30, s30, s49            ; tm
    s_lshr_b32 s31, s47, %d
    s_mul_i32 s31, s31, %d
    s_lshr_b32 s49, s48, %d
    s_add_u32 s31, s31, s49            ; tn
    ''' % ((1 << xm_log2) - 1, bm_log2, (1 << bm_log2) - 1, xm_log2, bn, bm_log2))
    if altmap:
        k.e('''
        s_and_b32 s30, s47, 3
        s_lshl_b32 s30, s30, 3
        s_and_b32 s49, s48, 3
        s_lshl_b32 s49, s49, 1
        s_add_u32 s30, s30, s49
        s_bfe_u32 s49, s48, 0x10002
        s_add_u32 s30, s30, s49
        ''')
    if env('MAP_' + name, 0):
        k.e('''
        s_lshr_b32 s31, s47, 1
        s_mul_i32 s31, s31, 28
        s_add_u32 s31, s31, s48
        s_and_b32 s30, s47, 1
        s_lshl_b32 s30, s30, 3
        s_and_b32 s49, s31, 7
        s_add_u32 s30, s30, s49
        s_lshr_b32 s31, s31, 3
        ''')
    lcomp = 'L_%s_comp' % name
    set_flag(k, sig)
    if pf or side:
        k.e('s_cmp_ge_u32 s2, %d' % (GM * GN))
        k.e('s_cbranch_scc1 L_%s_pf' % name)
    k.e('s_cmp_ge_u32 s46, 4')
    k.e('s_cbranch_scc1 %s' % lcomp)
    nx = xb // 1024 // 4; ny = yb // 1024 // 4
    assert nx * 4096 == xb and ny * 4096 == yb
    VX = 8; VY = VX + nx
    g.LV = VY + ny
    if X[0] == 'xf':
        C = X[2]; ncb = C // 16
        assert S % nx == 0 or nx % S == 0
        k.e('s_mul_i32 s50, s30, %d' % (TM // 32 * ncb * 1024))
        k.e('s_mul_i32 s51, s46, %d' % nx)
        k.e('s_lshr_b32 s52, s51, %d' % log2(S))
        k.e('s_and_b32 s51, s51, %d' % (S - 1))
        k.e('s_mul_i32 s52, s52, %d' % (ncb * 1024))
        k.e('s_lshl_b32 s51, s51, 10')
        k.e('s_add_u32 s50, s50, s52')
        k.e('s_add_u32 s50, s50, s51')
        k.e('v_lshl_add_u32 v%d, v1, 4, s50' % VX)
        for j in range(1, nx):
            k.e('v_add_u32 v%d, %d, v%d' % (VX + j, (j // S) * ncb * 1024 + (j % S) * 1024, VX))
        xadv = S * 1024
    else:
        ld = X[2]
        assert nx % 2 == 0
        k.e('s_mul_i32 s50, s30, %d' % (TM * ld))
        k.e('s_mul_i32 s51, s46, %d' % (nx * 8 * ld))
        k.e('s_add_u32 s50, s50, s51')
        k.e('v_lshrrev_b32 v2, 3, v1')
        k.e('v_lshl_add_u32 v2, v2, %d, s50' % log2(ld))
        k.e('v_and_b32 v3, 7, v1')
        k.e('v_lshrrev_b32 v4, 4, v1')
        k.e('v_xor_b32 v5, v4, v3')
        k.e('v_lshl_add_u32 v%d, v5, 4, v2' % VX)
        k.e('v_xor_b32 v5, 64, v%d' % VX)
        k.e('v_add_u32 v%d, %d, v5' % (VX + 1, 8 * ld))
        for j in range(2, nx):
            k.e('v_add_u32 v%d, %d, v%d' % (VX + j, (j - j % 2) * 8 * ld, VX + j % 2))
        xadv = KS * 2
    k.e('''
    v_lshrrev_b32 v2, 4, v1            ; u
    v_bfe_u32 v3, v1, 2, 2             ; (i>>2)&3
    v_and_b32 v4, 3, v1                ; i&3
    ''')
    if Y[0] == 'w':
        ld = Y[2]
        NP = TN // 64
        assert ny % NP == 0
        if M16:
            k.e('v_and_b32 v5, 2, v2')
            k.e('v_xor_b32 v4, v4, v5')
        k.e('v_lshrrev_b32 v5, 1, v2')
        k.e('v_lshl_add_u32 v5, v5, 2, v3')
        k.e('v_mul_u32_u24 v5, %d, v5' % ld)
        k.e('v_and_b32 v6, 1, v2')
        k.e('v_lshl_add_u32 v5, v6, 6, v5')
        k.e('v_lshl_add_u32 v5, v4, 4, v5')
        if Y[3] == 'qkv': tstride, segs = 128, [0, 2048, 4096]
        elif Y[3]: tstride, segs = Y[3]
        else: tstride, segs = TN * 2, [p * 128 for p in range(NP)]
        k.e('s_mul_i32 s50, s46, %d' % (ny // NP * 8 * ld))
        k.e('s_mul_i32 s51, s31, %d' % tstride)
        k.e('s_add_u32 s50, s50, s51')
        k.e('v_add_u32 v5, s50, v5')
        for j in range(ny):
            k.e('v_add_u32 v%d, %d, v5' % (VY + j, (j // NP) * 8 * ld + segs[j % NP]))
        yadv = KS * ld
    else:
        C = Y[2]; ncb = C // 16
        NB = TN // 32
        assert ny == NB and S == 4
        if M16:
            k.e('v_and_b32 v5, 2, v2')
            k.e('v_xor_b32 v3, v3, v5')
        k.e('v_lshl_add_u32 v5, v2, 2, v4')
        k.e('v_lshlrev_b32 v5, 4, v5')
        k.e('v_lshl_add_u32 v5, v3, 9, v5')
        k.e('s_lshr_b32 s50, s46, 1')
        k.e('s_mul_i32 s50, s50, %d' % (ncb * 1024))
        k.e('s_and_b32 s51, s46, 1')
        k.e('s_lshl_b32 s51, s51, 8')
        k.e('s_add_u32 s50, s50, s51')
        k.e('s_mul_i32 s51, s31, %d' % (TN // 16 * 1024))
        k.e('s_add_u32 s50, s50, s51')
        k.e('v_add_u32 v%d, s50, v5' % VY)
        for j in range(1, ny):
            k.e('v_add_u32 v%d, %d, v%d' % (VY + j, j * 2048, VY))
        yadv = 2 * ncb * 1024
    k.e('s_mul_i32 s55, s46, %d' % (nx * 1024))
    k.e('s_mul_i32 s56, s46, %d' % (ny * 1024))
    k.e('s_add_u32 s56, s56, %d' % xb)
    per = nx + ny
    assert per * NS <= 55 and nst >= 2 * NS
    k.e('s_waitcnt lgkmcnt(0)')
    mark(k, 0)
    if Y[0] == 'w': srd(k, 36, Y[1])
    else: srd(k, 36, 'ws', Y[1], 2048 * Y[2] * 2)
    if X[0] == 'xf': srd(k, 32, 'ws', X[1], 2048 * X[2] * 2)
    else: srd(k, 32, X[1])
    xfl = ' sc1' if X[0] == 'xf' else ''
    yfl = ' sc1' if Y[0] == 'z' else ''
    ntf = os.environ.get('NT_' + name, os.environ.get('NT', ''))
    if 'X' in ntf: xfl += ' nt'
    if 'Y' in ntf: yfl += ' nt'
    ownlds = name == 'wsp' and ZOWN and c.prev == 'win'
    OWN = own if (own and not c.first and (OWNF(name) or ownlds)) else None
    RW = env('RW_' + name, min(RWD, 2) if OWN else RWD); RC = env('RC_' + name, 1)
    assert nst % RW == 0
    if RW > 1:
        k.e('s_mul_i32 s54, s31, %d' % RC)
        k.e('s_add_u32 s54, s54, s30')
    if OWN:
        assert RW <= 2
        k.e(OWN)
        k.e('s_and_b32 s54, s54, 1' if RW > 1 else 's_mov_b32 s54, 0')
    out = []
    RB = 48
    dyn = [None]
    def soff(st, adv):
        if OWN:
            if st < 2: k.e('s_add_u32 s57, s68, %d' % st)
            else:
                k.e('s_cmp_le_u32 s68, %d' % (st - 2))
                k.e('s_cselect_b32 s57, %d, %d' % (st, st - 2))
                k.e('s_xor_b32 s57, s57, s54')
            k.e('s_mul_i32 s57, s57, %d' % adv)
        elif dyn[0] is not None:
            assert RW in (1, 2, 4)
            if RW > 1:
                k.e('s_add_u32 s57, s54, %d' % st)
                k.e('s_and_b32 s57, s57, %d' % (RW - 1))
                k.e('s_add_u32 s57, s57, s59')
                k.e('s_add_u32 s57, s57, %d' % (st // RW * RW))
            else: k.e('s_add_u32 s57, s59, %d' % st)
            k.e('s_mul_i32 s57, s57, %d' % adv)
        elif RW > 1:
            k.e('s_add_u32 s57, s54, %d' % st)
            k.e('s_and_b32 s57, s57, %d' % (RW - 1))
            k.e('s_mul_i32 s57, s57, %d' % adv)
            if st // RW: k.e('s_add_u32 s57, s57, %d' % (st // RW * RW * adv))
        else: k.e('s_mov_b32 s57, %d' % (st * adv))
    def opinfo(op): return (nx, 's55', VX, 32, xadv, xfl) if op == 'X' else (ny, 's56', VY, 36, yadv, yfl)
    def throttle(n):
        if len(out) + n > 60:
            k.e('s_waitcnt vmcnt(40)'); del out[:len(out) - 40]
    def iss(op, st):
        slot = (st % NS) * STAGE
        n, base, V, sd, adv, fl = opinfo(op)
        if op == ind and st in Rset:
            if ('r', st) in out:
                last = max(i for i, t in enumerate(out) if t == ('r', st))
                k.e('s_waitcnt vmcnt(%d)' % (len(out) - 1 - last)); del out[:last + 1]
            r0 = RB + Rset.index(st) * n * 4
            for j in range(n):
                o = slot + j * 1024
                k.e('ds_write_b128 v%d, %s offset:%d' % (44 + o // 65536, vr(r0 + 4 * j, 4), o % 65536))
            return
        throttle(n)
        soff(st, adv)
        for j in range(n):
            k.e('s_add_u32 m0, %s, %d' % (base, slot + j * 1024))
            k.e('s_nop 0')
            k.e('buffer_load_dwordx4 v%d, %s, s57 offen%s lds' % (V + j, sr(sd), fl))
            out.append(st)
    def issr(st):
        n, base, V, sd, adv, fl = opinfo(ind)
        throttle(n)
        soff(st, adv)
        r0 = RB + Rset.index(st) * n * 4
        for j in range(n):
            k.e('buffer_load_dwordx4 %s, v%d, %s, s57 offen' % (vr(r0 + 4 * j, 4), V + j, sr(sd)))
            out.append(('r', st))
    def wait_stage(st):
        lg = ' lgkmcnt(%d)' % min(15, opinfo(ind)[0] * len([r_ for r_ in Rset if st < r_ < st + NS - LAG])) if st in Rset else ''
        if st in out:
            last = max(i for i, t in enumerate(out) if t == st)
            k.e('s_waitcnt vmcnt(%d)%s' % (len(out) - 1 - last, lg))
            del out[:last + 1]
        elif lg: k.e('s_waitcnt' + lg)
    I0 = env('I0_' + name, 2)
    ind = 'Y' if dep == 'X' else 'X'
    fusedw = wait and not c.first and not env('WLATE_' + name, 0)
    R = env('RR_' + name, RR) if fusedw else 0
    Rset = sorted(set(NS + (2 * i + 1) * (nst - NS) // (2 * R) for i in range(R))) if R else []
    if Rset:
        assert RB + len(Rset) * opinfo(ind)[0] * 4 <= 256
        k.need(RB + len(Rset) * opinfo(ind)[0] * 4, 0)
        k.e('v_lshl_add_u32 v44, v1, 4, %s' % opinfo(ind)[1])
        k.e('v_add_u32 v45, 0x10000, v44')
    if xt:
        DX = env('DX', 4); NR = 64; TB = NR + DX * 8; TX = TB + 32
        assert nx == 2 and S == 2
        k.need(TX + 16, 0)
        k.e('v_lshl_add_u32 v44, v1, 4, s55')
        k.e('v_add_u32 v45, 0x10000, v44')
        k.e('v_lshrrev_b32 v46, 5, v1')
        k.e('v_lshlrev_b32 v46, 4, v46')
        k.e('v_add_u32 v46, %d, v46' % AUX_A)
        def ldn(st):
            soff(st, xadv)
            for j in range(2):
                k.e('buffer_load_dwordx4 %s, v%d, s[32:35], s57 offen sc1' % (vr(NR + (st % DX) * 8 + 4 * j, 4), VX + j))
                out.append(('n', st))
        TW = TX + 16
        k.need(TW + 8, 0)
        def tabrd(st):
            soff(st, 128)
            k.e('v_add_u32 v47, s57, v46')
            for j in range(2):
                for sub in range(2):
                    k.e('ds_read_b128 %s, v47 offset:%d' % (vr(TB + 16 * j + 4 * sub, 4), 4096 + j * 64 + sub * 32))
                    k.e('ds_read_b128 %s, v47 offset:%d' % (vr(TB + 16 * j + 8 + 4 * sub, 4), j * 64 + sub * 32))
        def xform(st):
            if ('n', st) in out:
                last = max(i for i, t in enumerate(out) if t == ('n', st))
                k.e('s_waitcnt vmcnt(%d)' % (len(out) - 1 - last)); del out[:last + 1]
            r0 = NR + (st % DX) * 8
            for d in range(8): unpack(k, TX + 2 * d, TX + 2 * d + 1, r0 + d)
            if st + DX < nst: ldn(st + DX)
            k.e('s_waitcnt lgkmcnt(0)')
            for j in range(2):
                for e in range(8): k.e('v_fma_f32 v%d, v%d, v%d, v%d' % (TX + 8 * j + e, TX + 8 * j + e, TB + 16 * j + e, TB + 16 * j + 8 + e))
            for j in range(2):
                for d in range(4): k.e('v_cvt_pk_bf16_f32 v%d, v%d, v%d' % (TW + 4 * j + d, TX + 8 * j + 2 * d, TX + 8 * j + 2 * d + 1))
                o = (st % NS) * STAGE + j * 1024
                k.e('ds_write_b128 v%d, %s offset:%d' % (44 + o // 65536, vr(TW + 4 * j, 4), o % 65536))
            if st + 1 < nst: tabrd(st + 1)
        for st in range(NS): iss('Y', st)
        k.e('s_barrier')
        mark(k, 1)
        out.extend(['p'] * 4)
        mod_table(k, 24, between=lambda: [ldn(st) for st in range(DX)], nb=2 * DX)
        del out[:len(out) - 2 * DX]
        if env('XPRIO', 0): k.e('s_setprio %d' % env('XPRIO', 0))
        XL = env('XL', 2)
        assert XL >= 2
        tabrd(0)
        for st in range(XL): xform(st)
        def capture(fn):
            n0 = len(k.lines); fn(); got = k.lines[n0:]; del k.lines[n0:]
            return got
        def step(st):
            lg = ' lgkmcnt(0)' if st + XL > nst else ''
            if st in out:
                last = max(i for i, t in enumerate(out) if t == st)
                k.e('s_waitcnt vmcnt(%d)%s' % (len(out) - 1 - last, lg)); del out[:last + 1]
            elif lg: k.e('s_waitcnt' + lg)
            if st == 0: mark(k, 2)
            k.e('s_barrier')
            sx = st + XL; sy = st + NS - LAG
            doy = st >= LAG and sy < nst
            if sx >= nst:
                if doy: iss('Y', sy)
                return
            if ('n', sx) in out:
                last = max(i for i, t in enumerate(out) if t == ('n', sx))
                nw = 's_waitcnt vmcnt(%d)' % (len(out) - 1 - last + (1 if doy else 0)); del out[:last + 1]
            else: nw = None
            yl = capture(lambda: iss('Y', sy)) if doy else []
            yp = []; cur = []
            for l in yl:
                if 's_nop' in l: continue
                cur.append(l)
                if 'buffer_load' in l: yp.append(cur); cur = []
            nl = capture(lambda: ldn(sx + DX)) if (sx + DX < nst or dyn[0] is not None) else []
            nl = [l.replace('s57', 's58') for l in nl]
            npc = [nl[:-1], nl[-1:]] if nl else [[], []]
            r0 = NR + (sx % DX) * 8
            un = capture(lambda: [unpack(k, TX + 2 * d, TX + 2 * d + 1, r0 + d) for d in range(8)])
            fm = ['    v_fma_f32 v%d, v%d, v%d, v%d' % (TX + 8 * j + e, TX + 8 * j + e, TB + 16 * j + e, TB + 16 * j + 8 + e) for j in range(2) for e in range(8)]
            def put(piece):
                if len(piece) >= 2 and 'm0' in piece[-2]: piece = piece[:-1] + ['    s_nop 0', piece[-1]]
                k.lines.extend(piece)
            if yp: put(yp[0])
            if nw: k.e(nw)
            k.lines.extend(un[:8])
            if yp: put(yp[1])
            k.lines.extend(un[8:])
            if yp: put(yp[2])
            k.e('s_waitcnt lgkmcnt(0)')
            k.lines.extend(fm[:10])
            k.lines.extend(npc[0])
            k.lines.extend(fm[10:])
            if sx + 1 < nst: tabrd(sx + 1)
            k.lines.extend(npc[1])
            for j in range(2):
                for d in range(4): k.e('v_cvt_pk_bf16_f32 v%d, v%d, v%d' % (TW + 4 * j + d, TX + 8 * j + 2 * d, TX + 8 * j + 2 * d + 1))
                o = (sx % NS) * STAGE + j * 1024
                k.e('ds_write_b128 v%d, %s offset:%d' % (44 + o // 65536, vr(TW + 4 * j, 4), o % 65536))
        assert NS == 4 and DX == 4 and XL == 2 and LAG == 1 and nst == 32
        for st in range(5): step(st)
        k.e('s_mov_b32 s59, 0')
        k.label('L_%s_xl' % name)
        dyn[0] = 0
        before = list(out)
        for st in range(5, 9): step(st)
        dyn[0] = None
        sh = lambda t, d: (t[0], t[1] + d) if isinstance(t, tuple) else t + d
        assert [sh(t, 4) for t in before] == out, (before, out)
        k.e('s_add_u32 s59, s59, 4')
        k.e('s_cmp_lt_u32 s59, 24')
        k.e('s_cbranch_scc1 L_%s_xl' % name)
        out[:] = [sh(t, 20) for t in out]
        for st in range(29, 32): step(st)
    elif wait and not c.first and env('WLATE_' + name, 0):
        handoff(k, wait[0], wait[1])
    if xt: pass
    elif fusedw:
        for st in range(NS): iss(ind, st)
        for st in Rset: issr(st)
        if ownlds:
            handoff(k, wait[0], wait[1])
            mark(k, 1)
            I1 = env('I1_' + name, 3)
            for st in range(2, I1): iss(dep, st)
            wait_stage(0); mark(k, 2); k.e('s_barrier')
            for st in range(I1, NS): iss(dep, st)
        elif OWN:
            l1 = k.newlabel('no'); l2 = k.newlabel('no')
            k.e('s_barrier')
            if ownlim:
                k.e('s_cmp_ge_u32 s2, %d' % ownlim); k.e('s_cbranch_scc1 %s' % l1)
            n0 = len(k.lines)
            iss(dep, 0); iss(dep, 1)
            dup = k.lines[n0:]
            k.label(l1)
            handoff(k, wait[0], wait[1])
            mark(k, 1)
            if ownlim:
                k.e('s_cmp_lt_u32 s2, %d' % ownlim); k.e('s_cbranch_scc1 %s' % l2)
                k.lines.extend(dup)
                k.label(l2)
            I1 = env('I1_' + name, 3)
            for st in range(2, I1): iss(dep, st)
            wait_stage(0); mark(k, 2); k.e('s_barrier')
            for st in range(I1, NS): iss(dep, st)
        else:
            handoff(k, wait[0], wait[1])
            mark(k, 1)
            for st in range(I0): iss(dep, st)
            wait_stage(0); mark(k, 2); k.e('s_barrier')
            for st in range(I0, NS): iss(dep, st)
    else:
        for st in range(I0): iss(ind, st); iss(dep, st)
        mark(k, 1)
        wait_stage(0); mark(k, 2); k.e('s_barrier')
        for st in range(I0, NS): iss(ind, st); iss(dep, st)
    FS = bool(Rset) or env('STATIC', 0) or xt
    if FS and not xt:
        for st in range(1, nst):
            if st == nst - 1: k.e('s_waitcnt vmcnt(0) lgkmcnt(0)')
            else: wait_stage(st)
            if st == nst - 1 and aux_end: aux_end(g)
            k.e('s_barrier')
            nx_st = st + NS - LAG
            if st >= LAG and nx_st < nst:
                iss(dep, nx_st); iss(ind, nx_st)
                if nx_st == nst - 1 and aux:
                    out.extend(['aux'] * aux(g))
    for st in range(1, NS if not FS else 0):
        wait_stage(st); k.e('s_barrier')
        if st >= LAG: iss('Y', st + NS - LAG); iss('X', st + NS - LAG)
    if not FS:
        s0 = 2 * NS - LAG
        k.e('s_add_u32 s60, s55, %d' % (NS * STAGE))
        k.e('s_add_u32 s55, s55, %d' % ((s0 % NS) * STAGE))
        k.e('s_add_u32 s56, s56, %d' % ((s0 % NS) * STAGE))
        k.e('s_mov_b32 s57, %d' % (s0 * xadv))
        k.e('s_mov_b32 s58, %d' % (s0 * yadv))
        k.e('s_mov_b32 s59, %d' % s0)
        ll = 'L_%s_lloop' % name
        k.label(ll)
        if OWN:
            k.e('s_sub_u32 s57, s59, 2')
            k.e('s_cmp_le_u32 s68, s57')
            k.e('s_cselect_b32 s57, s59, s57')
            k.e('s_xor_b32 s57, s57, s54')
            k.e('s_mul_i32 s58, s57, %d' % yadv)
            k.e('s_mul_i32 s57, s57, %d' % xadv)
        elif RW > 1:
            k.e('s_add_u32 s57, s54, s59')
            k.e('s_and_b32 s57, s57, %d' % (RW - 1))
            k.e('s_andn2_b32 s58, s59, %d' % (RW - 1))
            k.e('s_or_b32 s57, s57, s58')
            k.e('s_mul_i32 s58, s57, %d' % yadv)
            k.e('s_mul_i32 s57, s57, %d' % xadv)
        k.e('s_waitcnt vmcnt(%d)' % (per * (NS - 1 - LAG)))
        k.e('s_barrier')
        for j in range(ny):
            k.e('s_add_u32 m0, s56, %d' % (j * 1024))
            k.e('s_nop 0')
            k.e('buffer_load_dwordx4 v%d, s[36:39], s58 offen%s lds' % (VY + j, yfl))
        for j in range(nx):
            k.e('s_add_u32 m0, s55, %d' % (j * 1024))
            k.e('s_nop 0')
            k.e('buffer_load_dwordx4 v%d, s[32:35], s57 offen%s lds' % (VX + j, xfl))
        k.e('s_add_u32 s57, s57, %d' % xadv)
        k.e('s_add_u32 s58, s58, %d' % yadv)
        k.e('s_add_u32 s55, s55, %d' % STAGE)
        k.e('s_add_u32 s56, s56, %d' % STAGE)
        k.e('s_cmp_eq_u32 s55, s60')
        k.e('s_cselect_b32 s61, %d, 0' % (NS * STAGE))
        k.e('s_sub_u32 s55, s55, s61')
        k.e('s_sub_u32 s56, s56, s61')
        k.e('s_add_u32 s59, s59, 1')
        k.e('s_cmp_lt_u32 s59, %d' % nst)
        k.e('s_cbranch_scc1 %s' % ll)
        naux = aux(g) if aux else 0
        NXT = dict(qkv=('attn', 1), wo=('win', 1), win=('wsp', 2), wsp=('wout', 1))
        if CPF >= 2:
            if name in NXT: naux += code_pf(k, 'L_%s_epi' % name, 'L_%s_epi' % NXT[name][0], NXT[name][1] * 8192, vt=22, vd=23)
            else: naux += code_pf(k, 'L_%s_epi' % name, 'L_text_end', 8192, vt=22, vd=23)
        for st in range(nst - NS + LAG, nst):
            k.e('s_waitcnt vmcnt(%d)' % (per * (nst - st - 1) + naux if st < nst - 1 else 0))
            if st == nst - 1 and aux_end: aux_end(g)
            k.e('s_barrier')
    LE = env('LE_' + name, env('LE', 0))
    g.LE = LE and not c.last
    if not c.last and not LE: k.e('s_barrier')
    if post: post(g)
    if not c.last and LE: k.e('s_barrier')
    signal(k)
    endpgm(k)
    k.label(lcomp)
    k.e('s_setprio 1')
    k.e('s_sub_u32 s46, s46, 4')
    k.e('s_lshr_b32 s50, s46, %d' % log2(WN))
    k.e('s_and_b32 s51, s46, %d' % (WN - 1))
    ACC = 8
    nacc = mb * nb * 16
    FR = frbase if frbase else ACC + nacc
    GU = env('GU_' + name, GU)
    g.acc = lambda i, j: ACC + (i * nb + j) * 16
    g.M16 = M16
    k.e('v_and_b32 v3, 31, v1')
    k.e('v_lshrrev_b32 v4, 5, v1')
    if M16:
        JG = env('JG_' + name, JG)
        KSN = KS // 32; NU = KSN * JG; nbj = nb // JG
        XA = FR + 16 * mb + 16 * nbj
        nxa = KSN if X[0] == 'rm' else 1
        nya = 2
    else:
        NU = S // GU
        assert NU % 2 == 0
        fs1 = (mb + nb) * 4
        fsz = fs1 * GU
        XA = FR + 2 * fsz
        nxa = S if X[0] == 'rm' else 1
        nya = 1
    XB = XA; XC = XA + nxa; YB = XC + nxa; YC = YB + nya
    g.free = YC + nya
    g.FR = FR
    NP = TN // 64; NB = TN // 32
    if Y[0] == 'w':
        if Y[3] == 'qkv': ywave = 's_lshl_b32 s52, s51, 8'
        else:
            assert nb % 2 == 0
            ywave = 's_mul_i32 s52, s51, %d' % (nb // 2 * 1024)
        def yblk(j): return j * 1024 if Y[3] == 'qkv' else (j // 2) * 1024 + (j % 2) * 256
    else: ywave = 's_mul_i32 s52, s51, %d' % (nb * 1024)
    if M16:
        k.e('v_and_b32 v5, 15, v1')
        k.e('v_lshrrev_b32 v6, 4, v1')
        if X[0] == 'xf':
            k.e('s_mul_i32 s52, s50, %d' % (mb * S * 1024))
            k.e('v_lshl_add_u32 v7, v5, 4, s52')
            k.e('v_lshl_add_u32 v%d, v6, 9, v7' % XB)
        else:
            k.e('s_mul_i32 s52, s50, %d' % (mb * 4096))
            k.e('v_lshl_add_u32 v2, v5, 7, s52')
            k.e('v_lshrrev_b32 v5, 1, v5')
            for ks in range(KSN):
                k.e('v_add_u32 v7, %d, v6' % (4 * ks))
                k.e('v_xor_b32 v7, v7, v5')
                k.e('v_lshl_add_u32 v%d, v7, 4, v2' % (XB + ks))
        k.e('v_mul_u32_u24 v5, %d, v4' % (2 * NP * 1024 if Y[0] == 'w' else NB * 1024))
        k.e('v_and_b32 v6, 1, v6')
        k.e('v_lshl_add_u32 v5, v6, 9, v5')
        k.e('v_lshl_add_u32 v5, v6, %d, v5' % (5 if Y[0] == 'w' else 7))
        k.e('v_bfe_u32 v6, v1, 2, 2')
        k.e('v_lshl_add_u32 v5, v6, %d, v5' % (6 if Y[0] == 'w' else 4))
        k.e('v_bfe_u32 v6, v1, 1, 1')
        k.e('v_lshl_add_u32 v5, v6, %d, v5' % (3 if Y[0] == 'w' else 6))
        k.e('v_and_b32 v6, 1, v1')
        k.e('v_lshl_add_u32 v5, v6, %d, v5' % (4 if Y[0] == 'w' else 3))
        k.e(ywave)
        k.e('s_add_u32 s52, s52, %d' % xb)
        k.e('v_add_u32 v%d, s52, v5' % YB)
        k.e('v_xor_b32 v%d, %d, v%d' % (YB + 1, 32 if Y[0] == 'w' else 128, YB))
    else:
        if X[0] == 'xf':
            k.e('s_mul_i32 s52, s50, %d' % (mb * S * 1024))
            k.e('v_lshl_add_u32 v%d, v1, 4, s52' % XB)
        else:
            assert KS == 64
            k.e('s_mul_i32 s52, s50, %d' % (mb * 4096))
            k.e('v_bfe_u32 v5, v3, 1, 3')
            k.e('v_lshl_add_u32 v6, v3, 7, s52')
            for ss in range(S):
                k.e('v_add_u32 v7, %d, v4' % (2 * ss))
                k.e('v_xor_b32 v7, v7, v5')
                k.e('v_lshl_add_u32 v%d, v7, 4, v6' % (XB + ss))
        k.e("""
        v_lshlrev_b32 v5, 9, v4            ; h*512
        v_bfe_u32 v6, v1, 2, 2             ; r
        v_lshl_add_u32 v5, v6, %d, v5
        v_bfe_u32 v6, v1, 4, 1             ; G&1
        v_lshl_add_u32 v5, v6, %d, v5
        v_bfe_u32 v6, v1, 1, 1             ; c>>1
        v_and_b32 v7, 1, v1                ; c&1
        """ % ((6, 5) if Y[0] == 'w' else (4, 7)))
        if Y[0] == 'w':
            k.e('v_lshl_add_u32 v5, v6, 4, v5')
            k.e('v_lshl_add_u32 v5, v7, 3, v5')
        else:
            k.e('v_lshl_add_u32 v5, v7, 6, v5')
            k.e('v_lshl_add_u32 v5, v6, 3, v5')
        k.e(ywave)
        k.e('s_add_u32 s52, s52, %d' % xb)
        k.e('v_add_u32 v%d, s52, v5' % YB)
    k.e('s_waitcnt lgkmcnt(0)')
    mark(k, 0)
    pre(g)
    if M16:
        def xr16(sp, ks, i, rh): return FR + (sp[0] if isinstance(sp, tuple) else (sp * KSN + ks) % 2) * 8 * mb + (2 * i + rh) * 4
        def yr16(sp, u, j, t): return FR + 16 * mb + (sp[1] if isinstance(sp, tuple) else (sp * NU + u) % 2) * 8 * nbj + ((j % nbj) * 2 + t) * 4
        def cols(jg, sp): return sp[2] if isinstance(sp, tuple) else range(jg * nbj, (jg + 1) * nbj)
        def reads(u, sp=0):
            ks = u // JG; jg = u % JG
            xr = []; yr = []
            if jg == 0 or isinstance(sp, tuple):
                for i in range(mb):
                    for rh in range(2):
                        if X[0] == 'xf': xr.append('ds_read_b128 %s, v%d offset:%d' % (vr(xr16(sp, ks, i, rh), 4), XC, (i * S + 2 * ks) * 1024 + rh * 256))
                        else: xr.append('ds_read_b128 %s, v%d offset:%d' % (vr(xr16(sp, ks, i, rh), 4), XC + ks, i * 4096 + rh * 2048))
            for j in cols(jg, sp):
                for t in range(2):
                    for rd in range(2):
                        o = (4 * ks + rd) * NP * 1024 + yblk(j) if Y[0] == 'w' else (2 * ks * NB + j) * 1024 + rd * 256
                        yr.append('ds_read_b64_tr_b16 %s, v%d offset:%d' % (vr(yr16(sp, u, j, t) + 2 * rd, 2), YC + t, o))
            return xr[:1] + yr[:2] + xr[1:] + yr[2:]
        def mfmas(u, first, sp=0):
            ks = u // JG; jg = u % JG
            out = []
            for j in cols(jg, sp):
                for t in range(2):
                    for i in range(mb):
                        for rh in range(2):
                            x_ = xr16(sp, ks, i, rh); y_ = yr16(sp, u, j, t)
                            if j in swap: a = g.acc(i, j) + 8 * rh + 4 * t; p, q = x_, y_
                            else: a = g.acc(i, j) + 8 * t + 4 * rh; p, q = y_, x_
                            out.append('v_mfma_f32_16x16x32_bf16 %s, %s, %s, %s' % (vr(a, 4), vr(p, 4), vr(q, 4), '0' if first and ks == 0 else vr(a, 4)))
            return out
        def fix(i, j):
            a = g.acc(i, j)
            for hb in range(2):
                for e in range(4):
                    k.e('%s v%d, v%d' % ('v_permlane32_swap_b32' if j in swap else 'v_permlane16_swap_b32', a + 8 * hb + e, a + 8 * hb + 4 + e))
    else:
        def yoff(j, ss, rd):
            return (2 * ss + rd) * NP * 1024 + yblk(j) if Y[0] == 'w' else (ss * NB + j) * 1024 + rd * 256
        def xf(ss, i): return FR + ((ss // GU) % 2) * fsz + (ss % GU) * fs1 + i * 4
        def yf(ss, j): return FR + ((ss // GU) % 2) * fsz + (ss % GU) * fs1 + (mb + j) * 4
        def reads1(ss):
            xr = []; yr = []
            for i in range(mb):
                if X[0] == 'xf':
                    xr.append('ds_read_b128 %s, v%d offset:%d' % (vr(xf(ss, i), 4), XC, (i * S + ss) * 1024))
                else:
                    xr.append('ds_read_b128 %s, v%d offset:%d' % (vr(xf(ss, i), 4), XC + ss, i * 4096))
            for j in range(nb):
                for rd in range(2):
                    yr.append('ds_read_b64_tr_b16 %s, v%d offset:%d' % (vr(yf(ss, j) + 2 * rd, 2), YC, yoff(j, ss, rd)))
            return [xr[0]] + yr[:2] + xr[1:] + yr[2:]
        def reads(u, sp=0): return [r for ss in range(u * GU, (u + 1) * GU) for r in reads1(ss)]
        def mfmas(u, first, sp=0):
            out = []
            for ss in range(u * GU, (u + 1) * GU):
                for j in range(nb):
                    for i in range(mb):
                        a = g.acc(i, j)
                        c_ = '0' if first and ss == 0 else vr(a, 16)
                        p, q = (xf(ss, i), yf(ss, j)) if j in swap else (yf(ss, j), xf(ss, i))
                        out.append('v_mfma_f32_32x32x16_bf16 %s, %s, %s, %s' % (vr(a, 16), vr(p, 4), vr(q, 4), c_))
            return out
        def fix(i, j): pass
    g.fix = fix
    def setaddr():
        for t in range(nxa): k.e('v_add_u32 v%d, s53, v%d' % (XC + t, XB + t))
        for t in range(nya): k.e('v_add_u32 v%d, s53, v%d' % (YC + t, YB + t))
    RPGV = [env('RPG2_' + name, (5 if mb * nb == 2 else (2 if name == 'qkv' else 3)) * (1 if M16 else 2))]
    import re
    def regs_of(txt):
        return [(int(a_), int(b_)) for a_, b_ in re.findall(r'v\[(\d+):(\d+)\]', txt)]
    def advance():
        n0 = len(k.lines)
        k.e('s_add_u32 s53, s53, %d' % STAGE)
        k.e('s_cmp_eq_u32 s53, %d' % (NS * STAGE))
        k.e('s_cselect_b32 s53, 0, s53')
        setaddr()
        got = [l.strip() for l in k.lines[n0:]]; del k.lines[n0:]
        return got
    EARLY = env('EARLYADV', 1)
    RM = [ROLL]
    def unit(u, first, rs, sp, extra):
        ms = mfmas(u, first, sp)
        prev = reads(u, sp)
        dst = [regs_of(r)[0] for r in prev]
        ROLL = RM[0]
        covered = -1 if ROLL else len(prev); issued = 0; xi = 0
        WMAX = env('WMAX_' + name, env('WMAX', 9))
        nspread = len(ms) - (min(len(extra) // 2 + 1, len(ms) // 3) if extra else 0)
        for mi, m in enumerate(ms):
            ops = regs_of(m)[1:3]
            need = max(i for i, d in enumerate(dst) if any(o[0] <= d[0] <= o[1] for o in ops))
            if need > covered:
                n = min(len(prev) - 1 - need + issued, WMAX)
                k.e('s_waitcnt lgkmcnt(%d)' % n)
                covered = len(prev) - 1 - (n - issued) if n >= issued else len(prev) - 1
            k.e(m)
            e = min(len(rs), -(-len(rs) * (mi + 1) // nspread) if ROLL == 1 else -(-RPGV[0] * (mi + 1) // 2))
            if issued == len(rs):
                for _ in range(2):
                    if xi < len(extra): k.e(extra[xi]); xi += 1
            while issued < e: k.e(rs[issued]); issued += 1
        while issued < len(rs): k.e(rs[issued]); issued += 1
        while xi < len(extra): k.e(extra[xi]); xi += 1
    def stage(first, last, sp, tail=()):
        for u in range(NU):
            if u == NU - 1 and not last and not EARLY:
                for x in advance(): k.e(x)
            if u < NU - 1: rs = reads(u + 1, sp)
            elif last: rs = []
            else: rs = reads(0, sp ^ 1)
            extra = []
            if EARLY and not last and u == (NU - 2) % NU: extra = advance()
            if u == NU - 1: extra = extra + list(tail)
            if not RM[0] or (last and u == NU - 1 and not c.last and not LE): k.e('s_waitcnt lgkmcnt(0)')
            if u == NU - 1 and not (last and (c.last or LE)): k.e('s_barrier')
            unit(u, first, rs, sp, extra)
    k.e('s_mov_b32 s53, 0')
    setaddr()
    if xt:
        handoff_multi(k, [(4, 's_mov_b32 s100, %d' % FL_MOD, 64), (5, 's_mov_b32 s100, %d' % (FL_MOD + 256), 64), (6, wait[0], wait[1])])
        mod_table(k, FR)
    elif wait: handoff(k, wait[0], wait[1], role='C')
    if early: early(g)
    k.e('s_barrier')
    mark(k, 1)
    for r in reads(0): k.e(r)
    if EARLY and NU == 1:
        for x in advance(): k.e(x)
    DEFER = env('DEFER_' + name, DEFER)
    npair = (nst - 1 - max(DEFER, 1)) // 2
    assert nst % 2 == 0 and (DEFER == 0 or (DEFER % 2 == 1 and M16 and KSN == 1 and not LE and DEFER <= NS))
    soft = env('SOFT_' + name, SOFT)
    srp = env('SRP_' + name, 1 if name == 'qkv' else 2)
    segs_ = [(npair, RPGV[0], ROLL)] if not soft else [(soft, srp, 0), (npair - soft, RPGV[0], ROLL)]
    RPGV[0] = segs_[0][1]; RM[0] = segs_[0][2]
    stage(True, False, 0)
    pre2(g)
    for si, (cnt_, rp_, rm_) in enumerate(segs_):
        RPGV[0] = rp_; RM[0] = rm_
        k.e('s_mov_b32 s54, %d' % cnt_)
        lp = 'L_%s_loop%s' % (name, si or '')
        k.label(lp)
        stage(False, False, 1); stage(False, False, 0, tail=['s_sub_u32 s54, s54, 1', 's_cmp_lg_u32 s54, 0'])
        k.e('s_cbranch_scc1 %s' % lp)
    k.label('L_%s_epi' % name)
    if prelast: prelast(g)
    def addr_for(st):
        o = (st % NS) * STAGE
        return ['v_add_u32 v%d, %d, v%d' % (XC, o, XB)] + ['v_add_u32 v%d, %d, v%d' % (YC + t, o, YB + t) for t in range(nya)]
    if DEFER:
        s0_ = nst - DEFER
        c0, c1 = dcols
        y0 = NU % 2
        for n_ in range(DEFER):
            par = ((1 + n_) % 2, (y0 + n_) % 2, c0)
            if n_ < DEFER - 1:
                for x in addr_for(s0_ + n_ + 1): k.e(x)
                rs = reads(0, (par[0] ^ 1, par[1] ^ 1, c0))
            else: rs = []
            if not RM[0] or (n_ == 0 and JG == 1): k.e('s_waitcnt lgkmcnt(0)')
            if n_ < DEFER - 1: k.e('s_barrier')
            unit(0, False, rs, par, [])
        def deferred():
            for x in addr_for(s0_): k.e(x)
            for r in reads(0, (0, 0, c1)): k.e(r)
            for n_ in range(DEFER):
                par = (n_ % 2, n_ % 2, c1)
                if n_ < DEFER - 1:
                    for x in addr_for(s0_ + n_ + 1): k.e(x)
                    rs = reads(0, (par[0] ^ 1, par[1] ^ 1, c1))
                else: rs = []
                if not RM[0] or n_ == DEFER - 1: k.e('s_waitcnt lgkmcnt(0)')
                if n_ == DEFER - 1: k.e('s_barrier')
                unit(0, False, rs, par, [])
            k.e('s_nop 7')
        g.deferred = deferred
    else:
        g.deferred = None
        stage(False, True, 1)
    mark(k, 2)
    if M16:
        k.e('s_nop 7')
        if not lazyfix:
            for j in range(nb):
                for i in range(mb): fix(i, j)
            k.e('s_nop 1')
    epi(g)
    if not selfsig:
        if g.LE and not getattr(g, 'ended', 0): k.e('s_barrier')
        signal(k, 'C')
    if side:
        endpgm(k)
        k.label('L_%s_pf' % name)
        k.e('s_sub_u32 s30, s2, %d' % (GM * GN))
        k.e('s_cmp_ge_u32 s30, %d' % side[0])
        k.e('s_cbranch_scc1 L_%s_pfe' % name)
        side[1](k, 0 if solo else AUX_B + 4096)
        k.label('L_%s_pfe' % name)
        signal(k, 'A')
    if pf:
        endpgm(k)
        k.label('L_%s_pf' % name)
        npf = 256 - GM * GN
        per_wg = SIZES[pf] // npf
        assert per_wg % (8192 * 2) == 0
        k.e('s_sub_u32 s30, s2, %d' % (GM * GN))
        k.e('s_mul_i32 s30, s30, %d' % per_wg)
        if env('PFOFF', 0): k.e('s_mov_b32 s30, 0x40000000')
        k.e('v_lshlrev_b32 v2, 4, v0')
        k.e('s_mov_b32 s31, %d' % (per_wg // 16384))
        k.e('s_waitcnt lgkmcnt(0)')
        srd(k, 32, pf)
        k.label('L_%s_pfl' % name)
        k.e('buffer_load_dwordx4 v[8:11], v2, s[32:35], s30 offen')
        k.e('s_add_u32 s30, s30, 8192')
        k.e('buffer_load_dwordx4 v[12:15], v2, s[32:35], s30 offen')
        k.e('s_add_u32 s30, s30, 8192')
        k.e('s_waitcnt vmcnt(6)')
        k.e('s_sub_u32 s31, s31, 1')
        k.e('s_cmp_lg_u32 s31, 0')
        k.e('s_cbranch_scc1 L_%s_pfl' % name)
        signal(k, 'A')
    finish(k)
    assert g.free <= 256, g.free
    k.need(g.free, max(NS * STAGE, g.AUX + auxsz, (AUX_B + 12288) if side and not solo else 0))

def alloc(g, n, align=4):
    b = (g.free + align - 1) // align * align
    g.free = b + n
    return b
def nop(g): pass

def store_xf_tile(g, a, T, voff, srdn, soff, imm):
    k = g.k
    for d in range(8):
        k.e('v_cvt_pk_bf16_f32 v%d, v%d, v%d' % (T + d, a + 2 * d, a + 2 * d + 1))
    if os.environ.get('SDATA') == 'zero' and k.c.name == 'qkv':
        for d in range(8): k.e('v_mov_b32 v%d, 0' % (T + d))
    if os.environ.get('SDATA') == 'rand' and k.c.name == 'qkv':
        import random
        for d in range(8):
            k.e('s_mul_i32 s68, s2, %d' % (random.getrandbits(31) | 1))
            k.e('v_add_u32 v%d, s68, v0' % (T + d))
            k.e('s_mov_b32 s69, %d' % (random.getrandbits(31) | 1))
            k.e('v_mul_lo_u32 v%d, v%d, s69' % (T + d, T + d))
            k.e('v_and_b32 v%d, 0xbfffbfff, v%d' % (T + d, T + d))
    if env('PACE', -1) >= 0: k.e('s_waitcnt vmcnt(%d)' % env('PACE', -1))
    k.e('buffer_store_dwordx4 %s, v%d, %s, %s offen offset:%d%s' % (vr(T, 4), voff, sr(srdn), soff, imm, WT))
    k.e('buffer_store_dwordx4 %s, v%d, %s, %s offen offset:%d%s' % (vr(T + 4, 4), voff, sr(srdn), soff, imm + 1024, WT))

def pk(op, d, *src, sel=None):
    s = 'v_pk_%s_f32 %s' % (op, vr(d, 2))
    hi = []
    for x in src:
        if isinstance(x, int): s += ', ' + vr(x, 2); hi.append(1)
        elif isinstance(x, tuple): s += ', ' + vr(x[0], 2); hi.append(0)
        elif x.startswith('s['): s += ', ' + x; hi.append(1)
        else: s += ', ' + x; hi.append(0)
    if 0 in hi: s += ' op_sel_hi:[%s]' % ','.join(map(str, hi))
    return s

def k_qkv(k, c):
    def pre(g):
        k = g.k
        srd(k, 32, 'ws', WS_Q, 4 * MB); srd(k, 36, 'ws', WS_KV, 8 * MB)
        g.L16 = alloc(g, 1, 1); g.LV16 = alloc(g, 1, 1)
        k.e('v_lshlrev_b32 v%d, 4, v1' % g.L16)
        if g.M16:
            k.e('v_and_b32 v5, 3, v1')
            k.e('v_lshl_add_u32 v5, v4, 4, v5')
            k.e('v_bfe_u32 v6, v1, 2, 1')
            k.e('v_lshl_add_u32 v5, v6, 3, v5')
            k.e('v_bfe_u32 v6, v1, 3, 1')
            k.e('v_lshl_add_u32 v5, v6, 2, v5')
            k.e('v_bfe_u32 v6, v1, 4, 1')
            k.e('v_lshl_add_u32 v5, v6, 5, v5')
            k.e('v_lshlrev_b32 v%d, 4, v5' % g.LV16)
        else: k.e('v_mov_b32 v%d, v%d' % (g.LV16, g.L16))
        k.e('''
        s_lshl_b32 s60, s31, 1
        s_add_u32 s60, s60, s51
        s_lshl_b32 s60, s60, 6
        s_lshl_b32 s61, s30, 2
        s_add_u32 s60, s60, s61
        s_lshl_b32 s61, s50, 1
        s_add_u32 s60, s60, s61           ; head*64 + rb0
        s_lshl_b32 s61, s60, 11           ; Q offset
        s_lshl_b32 s62, s60, 12           ; KV offset
        s_add_u32 s63, s62, 4096
        s_mov_b32 s66, %s
        s_mov_b32 s67, %s
        ''' % ((hx(32 ** -0.5 * LOG2E * float(os.environ.get('QERR', '1'))),) * 2))
    def epi(g):
        k = g.k
        T = g.FR
        k.e('s_nop 7')
        n = 0
        for i in range(2):
            a = g.acc(i, 0)
            for r in range(0, 16, 2): k.e(pk('mul', a + r, a + r, 's[66:67]'))
            store_xf_tile(g, a, T + 8 * n, g.L16, 32, 's61', i * 2048); n += 1
        for j in (1, 2):
            for i in range(2):
                store_xf_tile(g, g.acc(i, j), T + 8 * (n % 5), g.L16 if j == 1 else g.LV16, 36, 's62' if i == 0 else 's63', (j - 1) * 2048); n += 1
    QSP = env('QSP', 0)
    def epi2(g):
        k = g.k
        T = g.FR
        KP = [g.acc(0, 1), g.acc(1, 1)]; VP = [g.acc(0, 2), g.acc(1, 2)]; QP = [g.acc(0, 0), g.acc(1, 0)]
        for j in (1, 2):
            for i in range(2):
                g.fix(i, j)
                k.e('s_nop 0')
                store_xf_tile(g, g.acc(i, j), g.acc(i, j), g.L16 if j == 1 else g.LV16, 36, 's62' if i == 0 else 's63', (j - 1) * 2048)
        if g.deferred:
            g.deferred()
            if env('QSIG', 1): signal(k, 'C')
        for i in range(2):
            a = g.acc(i, 0)
            g.fix(i, 0)
            k.e('s_nop 0')
            for r in range(0, 16, 2): k.e(pk('mul', a + r, a + r, 's[66:67]'))
            for d in range(8): k.e('v_cvt_pk_bf16_f32 v%d, v%d, v%d' % (a + d, a + 2 * d, a + 2 * d + 1))
        if QSP == 1: signal(k, 'C')
        k.e('s_mul_i32 s68, s46, 5120')
        k.e('s_add_u32 s68, s68, %d' % AUX_A)
        k.e('v_add_u32 v5, s68, v%d' % g.L16)
        Sreg = [T, T + 16, T + 32, T + 48]
        for qi in range(2):
            for ki in range(2):
                S_ = Sreg[2 * qi + ki]
                k.e('v_mfma_f32_32x32x16_bf16 %s, %s, %s, 0' % (vr(S_, 16), vr(KP[ki], 4), vr(QP[qi], 4)))
                k.e('v_mfma_f32_32x32x16_bf16 %s, %s, %s, %s' % (vr(S_, 16), vr(KP[ki] + 4, 4), vr(QP[qi] + 4, 4), vr(S_, 16)))
        for q in range(4): k.e('ds_write_b128 v5, %s offset:%d' % (vr(QP[q // 2] + 4 * (q % 2), 4), q * 1024))
        if AOWN:
            k.e('s_lshl_b32 s69, s46, 15')
            k.e('v_add_u32 v6, s69, v%d' % g.L16)
            k.e('v_add_u32 v7, s69, v%d' % g.LV16)
            for i in range(2):
                for hh in range(2):
                    k.e('ds_write_b128 v6, %s offset:%d' % (vr(KP[i] + 4 * hh, 4), i * 4096 + hh * 1024))
                    k.e('ds_write_b128 v7, %s offset:%d' % (vr(VP[i] + 4 * hh, 4), i * 4096 + 2048 + hh * 1024))
        k.e('v_lshl_add_u32 v5, v1, 3, s68')
        if QSP == 2: signal(k, 'C')
        k.e('s_nop 7')
        MM = T + 64
        for qi in range(2):
            a0, a1 = Sreg[2 * qi], Sreg[2 * qi + 1]
            k.e('v_max_f32 v%d, v%d, v%d' % (MM + qi, a0, a1))
            for r in range(1, 16): k.e('v_max3_f32 v%d, v%d, v%d, v%d' % (MM + qi, MM + qi, a0 + r, a1 + r))
        for qi in range(2): k.e('v_mov_b32 v%d, v%d' % (MM + 2 + qi, MM + qi))
        k.e('s_nop 1')
        for qi in range(2): k.e('v_permlane32_swap_b32 v%d, v%d' % (MM + qi, MM + 2 + qi))
        k.e('s_nop 1')
        for qi in range(2): k.e('v_max_f32 v%d, v%d, v%d' % (MM + qi, MM + qi, MM + 2 + qi))
        for qi in range(2): k.e('v_sub_f32 v%d, %s, v%d' % (MM + qi, hx(-40.0), MM + qi))
        k.e('ds_write_b64 v5, %s offset:4096' % vr(MM, 2))
        k.e('s_waitcnt lgkmcnt(0)')
    sig = 's_lshl_b32 s100, s31, 8\ns_lshl_b32 s101, s30, 4\ns_add_u32 s100, s100, s101\ns_add_u32 s100, s100, %d' % FL_QKV
    wait = ('s_lshl_b32 s100, s30, 8\ns_add_u32 s100, s100, %d' % FL_LN1, 8)
    k_gemm(k, c, 16, 16, 3, 1, 4, 128, 192, 2, 2, 1024, 32, 4, ('xt', WS_N, 1024) if XT else ('xf', WS_H, 1024), ('w', 'wqkv', 6144, 'qkv'), pre, nop, epi2 if AT2 else epi, selfsig=bool(AT2 and (QSP or AOWN == 1 or (env('DEFER_qkv', 0) and env('QSIG', 1)))), lazyfix=bool(AT2), DEFER=0, dcols=([1, 2], [0]), swap=(2,), wait=wait, sig=sig, RWD=4, SOFT=4)

def k_proj(k, c, K, X, wname, final):
    NQ = 2 if MP0 else 4
    def modq_loads(k):
        for q in range(NQ):
            k.e('s_add_u32 s62, s69, %d' % (q * 16384))
            k.e('s_add_u32 s63, s70, %d' % (q * 16384))
            k.e('buffer_load_dwordx4 %s, v7, s[64:67], s62 offen sc1' % vr(24 + 4 * q, 4))
            k.e('buffer_load_dword v%d, v6, s[64:67], s63 offen sc1' % (40 + q))
    def aux(g):
        k = g.k
        if final:
            srd(k, 40, 'ws', WS_MOD, 6144 * 4)
            k.e('''
            v_and_b32 v7, 31, v1
            v_lshlrev_b32 v7, 4, v7
            s_lshl_b32 s62, s31, 9
            s_add_u32 s62, s62, %d
            buffer_load_dwordx4 v[24:27], v7, s[40:43], s62 offen sc1
            ''' % (5 * 4096))
            return 1
        srd(k, 64, 'ws', 0, 256 * KB)
        k.e('''
        v_and_b32 v2, 31, v1
        v_lshrrev_b32 v3, 5, v1
        v_lshlrev_b32 v2, 4, v2
        v_lshl_add_u32 v2, v3, 13, v2
        s_lshl_b32 s62, s31, 9
        s_add_u32 s62, s62, %d
        v_and_b32 v6, 15, v1
        v_lshlrev_b32 v6, 2, v6
        s_lshl_b32 s68, s2, 6
        s_add_u32 s63, s68, %d
        s_mov_b32 s69, s62
        s_mov_b32 s70, s63
        v_mov_b32 v7, v2
        ''' % (WS_MODQ, WS_MODQ))
        modq_loads(k)
        srd(k, 40, 'x')
        k.e('''
        v_lshrrev_b32 v2, 4, v1
        v_and_b32 v3, 15, v1
        s_lshl_b32 s62, s30, 17            ; tm*64*2048
        s_lshl_b32 s63, s31, 8
        s_add_u32 s62, s62, s63
        s_lshl_b32 s63, s46, 15            ; lw*16 rows
        s_add_u32 s62, s62, s63
        s_lshl_b32 s63, s46, 12
        s_add_u32 s63, s63, %d
        ''' % g.AUX)
        for j in range(4):
            k.e('v_add_u32 v4, %d, v2' % (4 * j))
            k.e('v_xor_b32 v5, v4, v3')
            k.e('v_lshlrev_b32 v5, 4, v5')
            k.e('v_lshl_add_u32 v5, v4, 11, v5')
            k.e('s_add_u32 m0, s63, %d' % (j * 1024))
            k.e('s_nop 0')
            k.e('buffer_load_dwordx4 v5, s[40:43], s62 offen lds')
        return 4 + 2 * NQ
    def aux_end(g):
        k = g.k
        lp = k.newlabel('mqp'); lc = k.newlabel('mqc')
        if final:
            poll_init(k)
            k.e('s_branch %s' % lc)
            k.label(lp)
            k.e('buffer_load_dwordx4 v[24:27], v7, s[40:43], s62 offen sc1')
            k.e('s_waitcnt vmcnt(0)')
            k.label(lc)
            k.e('v_max3_u32 v2, v24, v25, v26')
            k.e('v_max_u32 v2, v2, v27')
            k.e('v_cmp_eq_u32 vcc, -1, v2')
            poll_back(k, lp)
            k.e('v_add_u32 v2, %d, v7' % (g.AUX + 16 * KB))
            k.e('ds_write_b128 v2, v[24:27]')
            k.e('s_waitcnt lgkmcnt(0)')
            return
        if MP0:
            k.e('v_cmp_lt_u32 vcc, 31, v1')
            k.e(pk('add', 24, 24, 28)); k.e(pk('add', 26, 26, 30))
            k.e('v_add_f32 v40, v40, v41')
        else:
            poll_init(k)
            k.e('s_branch %s' % lc)
            k.label(lp)
            modq_loads(k)
            k.e('s_waitcnt vmcnt(0)')
            k.label(lc)
            k.e('v_max_u32 v2, v24, v25')
            for r in range(26, 44, 2): k.e('v_max3_u32 v2, v2, v%d, v%d' % (r, r + 1))
            k.e('v_cmp_eq_u32 vcc, -1, v2')
            poll_back(k, lp)
            k.e(pk('add', 24, 24, 28)); k.e(pk('add', 26, 26, 30)); k.e(pk('add', 32, 32, 36)); k.e(pk('add', 34, 34, 38))
            k.e(pk('add', 24, 24, 32)); k.e(pk('add', 26, 26, 34))
            k.e('v_cmp_lt_u32 vcc, 31, v1')
            k.e('v_add_f32 v40, v40, v41')
            k.e('v_add_f32 v42, v42, v43')
            k.e('v_add_f32 v40, v40, v42')
        k.e('v_cndmask_b32 v7, 0, 1.0, vcc')
        for d in range(2): round_bf16_pair(k, 24 + 2 * d, 25 + 2 * d, 28)
        for e in range(4): k.e('v_add_f32 v%d, v7, v%d' % (24 + e, 24 + e))
        for d in range(2): round_bf16_pair(k, 24 + 2 * d, 25 + 2 * d, 28)
        k.e('v_lshlrev_b32 v2, 4, v1')
        k.e('v_add_u32 v2, %d, v2' % (g.AUX + 16 * KB))
        k.e('ds_write_b128 v2, v[24:27]')
        k.e("""
        s_lshr_b32 s62, s2, 6
        s_cmp_eq_u32 s62, 2
        s_cselect_b32 s62, 1.0, 0
        v_cvt_pk_bf16_f32 v40, v40, v40
        v_lshlrev_b32 v40, 16, v40
        v_add_f32 v40, s62, v40
        v_cvt_pk_bf16_f32 v40, v40, v40
        v_lshlrev_b32 v40, 16, v40
        s_add_u32 s68, s68, 8192
        v_cmp_gt_u32 vcc, 16, v0
        s_and_saveexec_b64 s[62:63], vcc
        buffer_store_dword v40, v6, s[64:67], s68 offen%s
        s_mov_b64 exec, s[62:63]
        s_waitcnt lgkmcnt(0)
        """ % WT)
    def pre(g):
        k = g.k
        g.L16 = alloc(g, 1, 1); g.RA = alloc(g, 1, 1); g.CA = alloc(g, 1, 1); g.TA = alloc(g, 1, 1)
        g.RES = alloc(g, 16); g.GA = alloc(g, 32); g.G2 = alloc(g, 32) if not final else None
        srd(k, 36, 'ws', WS_X1, 8 * MB)
        if final: srd(k, 32, 'out')
        else: srd(k, 32, 'ws', WS_ST1, 256 * KB)
        k.e('v_lshlrev_b32 v%d, 4, v1' % g.L16)
        k.e('''
        s_lshl_b32 s60, s31, 7
        s_lshl_b32 s61, s51, 6
        s_add_u32 s60, s60, s61           ; col0
        s_lshl_b32 s61, s30, 1
        s_add_u32 s61, s61, s50           ; rb
        s_lshl_b32 s62, s61, 16
        s_lshl_b32 s63, s60, 1
        s_add_u32 s63, s63, s62           ; row-major byte offset of (row0,col0)
        s_lshl_b32 s64, s60, 6
        s_add_u32 s64, s64, s62           ; XF offset
        s_add_u32 s65, s64, %d            ; X1S offset
        ; tile image address: row*256 + ((wn*8) ^ (row%%16))*16 + h*8
        s_lshl_b32 s66, s50, 13
        s_add_u32 s66, s66, %d
        v_and_b32 v5, 15, v3
        s_lshl_b32 s67, s51, 3
        v_xor_b32 v5, s67, v5
        v_lshlrev_b32 v5, 4, v5
        v_lshl_add_u32 v5, v3, 8, v5
        v_lshl_add_u32 v5, v4, 3, v5
        v_add_u32 v%d, s66, v5
        ; column vector address: wn*256 + h*16
        s_lshl_b32 s67, s51, 8
        s_add_u32 s67, s67, %d
        v_lshl_add_u32 v%d, v4, 4, s67
        ''' % (4 * MB, g.AUX, g.RA, g.AUX + 16 * KB, g.CA))
    KX = same_kernel('wo', 'wout') and env('KEEPX', 1)
    def early(g):
        if final or MP0: return
        k = g.k
        D = g.GA; MC = g.RES; MT = g.RES + 8
        k.e('s_lshl_b32 s68, s46, 13')
        k.e('s_add_u32 s68, s68, %d' % AUX_A)
        k.e('v_add_u32 v%d, s68, v%d' % (MT, g.L16))
        for j in range(8): k.e('ds_read_b128 %s, v%d offset:%d' % (vr(D + 4 * j, 4), MT, j * 1024))
        for j in range(8):
            k.e('s_waitcnt lgkmcnt(%d)' % (7 - j))
            for d in range(4):
                unpack(k, MT, MT + 1, D + 4 * j + d)
                op = 'v_mul_f32' if j == 0 else 'v_fmac_f32'
                k.e('%s v%d, v%d, v%d' % (op, MC + 2 * d, MT, MSV + j))
                k.e('%s v%d, v%d, v%d' % (op, MC + 2 * d + 1, MT + 1, MSV + j))
        k.e('s_nop 1')
        for e in range(4): k.e('v_permlane32_swap_b32 v%d, v%d' % (MC + e, MC + 4 + e))
        k.e('s_nop 1')
        for e in range(4): k.e('v_add_f32 v%d, v%d, v%d' % (MC + e, MC + e, MC + 4 + e))
        k.e('s_nop 1')
        for e in range(2): k.e('v_permlane16_swap_b32 v%d, v%d' % (MC + e, MC + 2 + e))
        k.e('s_nop 1')
        for e in range(2): k.e('v_add_f32 v%d, v%d, v%d' % (MC + e, MC + e, MC + 2 + e))
        k.e('s_nop 1')
        for e in range(2): k.e('v_add_f32_dpp v%d, v%d, v%d row_ror:8 row_mask:0xf bank_mask:0xf' % (MC + e, MC + e, MC + e))
        k.e('''
        v_and_b32 v%d, 7, v1
        v_lshlrev_b32 v%d, 5, v%d
        v_lshrrev_b32 v%d, 4, v1
        v_lshl_add_u32 v%d, v%d, 3, v%d
        v_add_u32 v%d, s68, v%d
        ds_write_b64 v%d, %s
        s_waitcnt lgkmcnt(0)
        ''' % (MT, MT, MT, MT + 1, MT, MT + 1, MT, MT, MT, MT, vr(MC, 2)))
    def pre2(g):
        k = g.k
        if not final and not MP0:
            MC = g.RES; MT = g.RES + 8
            l = k.newlabel('noC')
            k.e('s_cmp_lg_u32 s46, 1')
            k.e('s_cbranch_scc1 %s' % l)
            srd(k, 80, 'ws', 0, 256 * KB)
            k.e('v_lshlrev_b32 v%d, 2, v1' % (MT + 1))
            k.e('v_add_u32 v%d, %d, v%d' % (MT, AUX_A, MT + 1))
            for w in range(4): k.e('ds_read_b32 v%d, v%d offset:%d' % (MC + w, MT, w * 8192))
            k.e('''
            s_and_b32 s68, s2, 3
            s_lshl_b32 s68, s68, 14
            s_lshr_b32 s69, s2, 2
            s_lshl_b32 s69, s69, 8
            s_add_u32 s68, s68, s69
            s_add_u32 s68, s68, %d
            s_waitcnt lgkmcnt(0)
            v_add_f32 v%d, v%d, v%d
            v_add_f32 v%d, v%d, v%d
            v_add_f32 v%d, v%d, v%d
            v_min_u32 v%d, -2, v%d
            buffer_store_dword v%d, v%d, s[80:83], s68 offen sc1
            ''' % (WS_MODQ, MC, MC, MC + 1, MC + 2, MC + 2, MC + 3, MC, MC, MC + 2, MC, MC, MC, MT + 1))
            k.label(l)
        if final and not KX:
            for j in range(2):
                for t in range(2):
                    k.e('buffer_load_dwordx4 %s, v%d, s[36:39], s64 offen offset:%d sc1' % (vr(g.RES + 8 * j + 4 * t, 4), g.L16, (2 * j + t) * 1024))
    PL = env('PRELAST', 1)
    def operands(g):
        k = g.k
        for j in range(2):
            for q in range(4):
                k.e('ds_read_b128 %s, v%d offset:%d' % (vr(g.GA + 16 * j + 4 * q, 4), g.CA, j * 128 + q * 32))
        if not final or KX:
            for j in range(2):
                for q in range(4):
                    k.e('v_xor_b32 v%d, %d, v%d' % (g.TA, (j * 4 + q) * 16, g.RA))
                    k.e('ds_read_b64 %s, v%d' % (vr(g.RES + 8 * j + 2 * q, 2), g.TA))
        if not final:
            for j in range(2):
                for q in range(4):
                    k.e('ds_read_b128 %s, v%d offset:%d' % (vr(g.G2 + 16 * j + 4 * q, 4), g.CA, 512 + j * 128 + q * 32))
    def epi(g):
        k = g.k
        assert g.M16
        if not PL: operands(g)
        k.e('s_waitcnt lgkmcnt(0)' if (KX or not final) else 's_waitcnt vmcnt(0) lgkmcnt(0)')
        T = g.FR
        for j in range(2):
            a = g.acc(0, j)
            for d in range(8):
                unpack(k, T + 2 * (d % 4), T + 2 * (d % 4) + 1, g.RES + 8 * j + d)
                k.e(pk('fma', a + 2 * d, a + 2 * d, g.GA + 16 * j + 2 * d, T + 2 * (d % 4)))
            if not final:
                if j == 0: k.e('s_waitcnt lgkmcnt(0)')
                for d in range(8): k.e(pk('mul', g.G2 + 16 * j + 2 * d, a + 2 * d, g.G2 + 16 * j + 2 * d))
                store_xf_tile(g, g.G2 + 16 * j, g.GA + 16 * j, g.L16, 36, 's65', j * 2048)
        def keep():
            for j in range(2):
                a = g.acc(0, j)
                if final or KX:
                    for d in range(8):
                        k.e('v_cvt_pk_bf16_f32 v%d, v%d, v%d' % (g.RES + 8 * j + d, a + 2 * d, a + 2 * d + 1))
                    for q in range(4):
                        k.e('v_xor_b32 v%d, %d, v%d' % (g.TA, (j * 4 + q) * 16, g.RA))
                        k.e('ds_write_b64 v%d, %s' % (g.TA, vr(g.RES + 8 * j + 2 * q, 2)))
                else:
                    store_xf_tile(g, a, g.RES + 8 * j, g.L16, 36, 's64', j * 2048)
        if final: keep()
        if final:
            k.e('''
            v_lshrrev_b32 v5, 3, v1
            v_and_b32 v6, 7, v1
            s_lshl_b32 s67, s51, 3
            v_or_b32 v7, s67, v6
            v_xor_b32 v7, v7, v5
            v_lshlrev_b32 v7, 4, v7
            v_lshl_add_u32 v7, v5, 8, v7
            v_add_u32 v7, s66, v7              ; b=0 address
            v_xor_b32 v%d, 128, v7             ; rows 8..15: slot ^ 8
            v_lshlrev_b32 v5, 11, v5
            v_lshl_add_u32 v5, v6, 4, v5       ; global: row*2048 + c*16
            s_waitcnt lgkmcnt(0)
            ''' % g.TA)
            for b in range(4):
                k.e('ds_read_b128 %s, v%d offset:%d' % (vr(g.GA + 4 * b, 4), 7 if b % 2 == 0 else g.TA, b * 2048))
            for b in range(4):
                k.e('s_waitcnt lgkmcnt(%d)' % (3 - b))
                k.e('buffer_store_dwordx4 %s, v5, s[32:35], s63 offen%s' % (vr(g.GA + 4 * b, 4), os.environ.get('OUTFLAG', ' sc1')))
                k.e('s_add_u32 s63, s63, %d' % (8 * 2048))
            l = k.newlabel('ep')
            k.e('s_or_b32 s67, s2, s46')
            k.e('s_cbranch_scc1 %s' % l)
            srd(k, 96, 'ws', WS_EPOCH, 8)
            k.e('v_mov_b32 v%d, s84' % FV); k.e('v_mov_b32 v%d, s85' % (FV + 1)); k.e('v_mov_b32 v%d, 0' % (FV + 2))
            flag_store(k, '0')
            k.label(l)
        else:
            S1 = T + 8; S2 = T + 10
            a0 = g.acc(0, 0)
            k.e(pk('add', S1, a0, a0 + 2))
            k.e(pk('mul', S2, a0, a0))
            k.e(pk('fma', S2, a0 + 2, a0 + 2, S2))
            for r in range(4, 32, 2):
                k.e(pk('add', S1, S1, a0 + r))
                k.e(pk('fma', S2, a0 + r, a0 + r, S2))
            k.e('v_add_f32 v%d, v%d, v%d' % (S1, S1, S1 + 1))
            k.e('v_add_f32 v%d, v%d, v%d' % (S1 + 1, S2, S2 + 1))
            k.e('v_mov_b32 v%d, v%d' % (S2, S1))
            k.e('v_mov_b32 v%d, v%d' % (S2 + 1, S1 + 1))
            k.e('''
            s_lshl_b32 s66, s30, 4
            s_lshl_b32 s67, s31, 1
            s_add_u32 s66, s66, s67
            s_add_u32 s66, s66, s51
            s_lshl_b32 s66, s66, 9             ; (tm*16+part)*512
            s_lshl_b32 s67, s50, 8
            s_add_u32 s66, s66, s67
            v_lshlrev_b32 v5, 3, v3
            ''')
            k.e('v_permlane32_swap_b32 v%d, v%d' % (S1, S2))
            k.e('v_permlane32_swap_b32 v%d, v%d' % (S1 + 1, S2 + 1))
            k.e('s_nop 1')
            k.e(pk('add', S1, S1, S2))
            k.e('s_mov_b32 exec_hi, 0')
            k.e('buffer_store_dwordx2 %s, v5, s[32:35], s66 offen%s' % (vr(S1, 2), WT))
            k.e('s_mov_b32 exec_hi, -1')
            if g.LE and KX:
                k.e('s_barrier'); g.ended = 1
            keep()
            k.e('s_waitcnt lgkmcnt(0)')
    if final:
        sig = None
        wait = ('s_lshr_b32 s100, s30, 1\ns_lshl_b32 s100, s100, 8\ns_add_u32 s100, s100, %d' % FL_WSP, 56)
    else:
        sig = 's_lshr_b32 s100, s30, 1\ns_lshl_b32 s100, s100, 8\ns_and_b32 s101, s30, 1\ns_lshl_b32 s101, s101, 7\ns_add_u32 s100, s100, s101\ns_lshl_b32 s101, s31, 4\ns_add_u32 s100, s100, s101\ns_add_u32 s100, s100, %d' % FL_WO
        wait = ('s_lshr_b32 s100, s30, %d\ns_lshl_b32 s100, s100, 8\ns_add_u32 s100, s100, %d' % (1 if AT2 else 2, FL_ATT), 16 if AT2 else 32)
    k_gemm(k, c, 32, 8, 3, 2, 4, 64, 128, 2, 2, K, 64, 4, X, ('w', wname, 2048, None), pre, pre2, epi, aux=aux, auxsz=17 * KB, auxbase=AUX_A, aux_end=aux_end, wait=wait, sig=sig, GU=2, RWD=4, early=early, altmap=True, prelast=operands if PL else None,
           own='s_lshr_b32 s68, s47, 2\ns_mul_i32 s68, s68, 7\ns_lshr_b32 s69, s48, 2\ns_add_u32 s68, s68, s69\ns_min_u32 s68, s68, 13\ns_lshl_b32 s68, s68, 1' if final else None, ownlim=224)

ZKEEP = 72
MSV = 240
def stats_finish(k, S, n, R, M, T):
    k.e('v_mov_b32 v%d, v%d' % (T, S))
    k.e('v_mov_b32 v%d, v%d' % (T + 1, S + 1))
    k.e('s_nop 1')
    k.e('v_permlane32_swap_b32 v%d, v%d' % (S, T))
    k.e('v_permlane32_swap_b32 v%d, v%d' % (S + 1, T + 1))
    k.e('s_nop 1')
    k.e(pk('add', S, S, T))
    k.e('v_mul_f32 v%d, %s, v%d' % (S, hx(1.0 / n), S))
    k.e('v_mul_f32 v%d, v%d, v%d' % (T, S, S))
    k.e('v_mov_b32 v%d, %s' % (T + 1, hx(1.0 / n)))
    k.e('v_fma_f32 v%d, v%d, v%d, -v%d' % (S + 1, S + 1, T + 1, T))
    k.e('v_max_f32 v%d, 0, v%d' % (S + 1, S + 1))
    k.e('v_add_f32 v%d, %s, v%d' % (S + 1, hx(1e-5), S + 1))
    k.e('v_rsq_f32 v%d, v%d' % (R, S + 1))
    k.e('s_nop 0')
    k.e('v_mul_f32_e64 v%d, -v%d, v%d' % (M, S, R))

def uw_job(k, LB):
    k.e("""
    v_lshrrev_b32 v2, 3, v0
    v_and_b32 v3, 7, v0
    v_lshlrev_b32 v4, 6, v2
    s_mov_b32 s31, %d
    v_mul_lo_u32 v5, v2, s31
    v_lshl_add_u32 v5, v3, 4, v5
    s_movk_i32 s44, %d
    s_movk_i32 s45, %d
    s_lshl_b32 s30, s30, 1
    s_waitcnt lgkmcnt(0)
    """ % (16 * 7168, 4 * 4096, 3 * 4096))
    srd(k, 36, 'w_in'); srd(k, 40, 'ws', 0, 64 * KB)
    AV = 72; SV = 88; UA = 104; WA = 112
    lq = k.newlabel('uwq')
    poll_init(k)
    k.label(lq)
    for q in range(4): k.e('buffer_load_dwordx4 %s, v4, s[40:43], s44 offen offset:%d sc1' % (vr(AV + 4 * q, 4), q * 16))
    for q in range(4): k.e('buffer_load_dwordx4 %s, v4, s[40:43], s45 offen offset:%d sc1' % (vr(SV + 4 * q, 4), q * 16))
    if not k.c.first:
        k.e('s_waitcnt vmcnt(0)')
        k.e('v_max_u32 v6, v%d, v%d' % (AV, AV + 1))
        for r in range(AV + 2, AV + 32, 2): k.e('v_max3_u32 v6, v6, v%d, v%d' % (r, r + 1))
        k.e('v_cmp_eq_u32 vcc, -1, v6')
        poll_back(k, lq)
    k.e('s_mov_b32 s50, %d' % LB)
    lp = k.newlabel('uw')
    k.label(lp)
    k.e('s_lshl_b32 s31, s30, 7')
    for j in range(16):
        k.e('buffer_load_dwordx4 %s, v5, s[36:39], s31 offen' % vr(8 + 4 * j, 4))
        k.e('s_add_u32 s31, s31, 7168')
    for j in range(16):
        k.e('s_waitcnt vmcnt(%d)' % (15 - j))
        for d in range(4):
            unpack(k, 6, 7, 8 + 4 * j + d)
            for acc, cf in ((UA, AV), (WA, SV)):
                op = 'v_mul_f32' if j == 0 else 'v_fmac_f32'
                k.e('%s v%d, v6, v%d' % (op, acc + 2 * d, cf + j))
                k.e('%s v%d, v7, v%d' % (op, acc + 2 * d + 1, cf + j))
    red_lanes(k, list(range(UA, UA + 16)), list(range(8, 24)))
    lskip = k.newlabel('uwskip')
    k.e("""
    s_lshl_b32 s47, s46, 9
    s_add_u32 s47, s47, s50
    v_lshl_add_u32 v2, v3, 5, s47      ; pass*4096 + wave*512 + chunk*32
    v_cmp_gt_u32 vcc, 8, v1
    s_and_saveexec_b64 s[48:49], vcc
    ds_write_b128 v2, v[104:107]
    ds_write_b128 v2, v[108:111] offset:16
    ds_write_b128 v2, v[112:115] offset:256
    ds_write_b128 v2, v[116:119] offset:272
    s_mov_b64 exec, s[48:49]
    s_waitcnt lgkmcnt(0)
    s_barrier
    s_cmp_ge_u32 s46, 2
    s_cbranch_scc1 %s
    v_lshl_add_u32 v2, v0, 2, s50      ; wave0: u cols, wave1: w0 cols
    """ % lskip)
    for w in range(8): k.e('ds_read_b32 v%d, v2 offset:%d' % (8 + w, w * 512))
    k.e('s_waitcnt lgkmcnt(0)')
    for w in range(1, 8): k.e('v_add_f32 v8, v8, v%d' % (8 + w))
    k.e("""
    v_min_u32 v8, -2, v8
    v_lshlrev_b32 v2, 2, v1
    s_lshl_b32 s31, s30, 8
    s_lshl_b32 s47, s46, 14
    s_add_u32 s31, s31, s47
    s_add_u32 s31, s31, %d
    buffer_store_dword v8, v2, s[40:43], s31 offen sc1
    s_waitcnt vmcnt(0)
    """ % WS_UW)
    k.label(lskip)
    k.e("""
    s_add_u32 s30, s30, 1
    s_add_u32 s50, s50, 4096
    s_cmp_lt_u32 s50, %d
    s_cbranch_scc1 %s
    """ % (LB + 8192, lp))

def k_win(k, c):
    LP = 1; LPJ = env('LPJ', 3)
    KZ = c.nxt == 'wsp' and env('KEEPZ', 1)
    def post(g):
        if not LP: return
        k = g.k
        srd(k, 36, 'ws', WS_G, 256 * KB)
        k.e("""
        s_lshl_b32 s65, s30, 2
        s_add_u32 s65, s65, s46
        s_lshl_b32 s65, s65, 12            ; rb32*4096
        v_and_b32 v2, 31, v1
        v_lshrrev_b32 v3, 5, v1
        v_mul_u32_u24 v3, %d, v3
        v_lshl_add_u32 v2, v2, 3, v3
        s_lshl_b32 s67, s46, 9
        s_add_u32 s67, s67, %d
        v_lshl_add_u32 v3, v1, 3, s67
        s_setprio 2
        s_barrier
        """ % (7 * 256, g.AUX + 2048))
        lp = k.newlabel('lpoll')
        poll_init(k)
        k.label(lp)
        for p in range(7):
            k.e('buffer_load_dwordx2 %s, v2, s[36:39], s65 offen offset:%d sc1' % (vr(24 + 2 * p, 2), p * 256))
        k.e('s_waitcnt vmcnt(0)')
        k.e('v_max_u32 v5, v24, v25')
        for p in range(1, 7): k.e('v_max3_u32 v5, v5, v%d, v%d' % (24 + 2 * p, 25 + 2 * p))
        k.e('v_cmp_eq_u32 vcc, -1, v5')
        poll_back(k, lp)
        for p in range(1, 7): k.e(pk('add', 24, 24, 24 + 2 * p))
        stats_finish(k, 24, 1792, 40, 41, 26)
        k.e('ds_write_b64 v3, v[40:41]')
        k.e('s_waitcnt lgkmcnt(0)')
        k.e('s_barrier')
    def uw_loads(g):
        g.k.e('buffer_load_dwordx4 v[24:27], v2, s[40:43], s62 offen sc1')
        g.k.e('buffer_load_dwordx4 v[28:31], v2, s[40:43], s63 offen sc1')
    def aux(g):
        k = g.k
        srd(k, 40, 'ws', WS_UW, 32 * KB)
        k.e("""
        v_and_b32 v2, 31, v1
        v_lshlrev_b32 v2, 4, v2
        v_add_u32 v3, 7168, v2
        v_cmp_gt_u32 vcc, 32, v1
        s_lshl_b32 s62, s31, 9
        s_add_u32 s63, s62, %d
        v_cndmask_b32 v2, v2, v3, vcc
        v_lshlrev_b32 v3, 4, v1
        v_add_u32 v3, %d, v3
        """ % (16 * KB, g.AUX))
        uw_loads(g)
        return 2
    def aux_end(g):
        k = g.k
        lp = k.newlabel('uwp'); lc = k.newlabel('uwc')
        poll_init(k)
        k.e('s_branch %s' % lc)
        k.label(lp)
        uw_loads(g)
        k.e('s_waitcnt vmcnt(0)')
        k.label(lc)
        k.e("""
        v_max3_u32 v4, v24, v25, v26
        v_max3_u32 v4, v4, v27, v28
        v_max3_u32 v4, v4, v29, v30
        v_max_u32 v4, v4, v31
        v_cmp_eq_u32 vcc, -1, v4
        """)
        poll_back(k, lp)
        k.e("""
        ds_write_b128 v3, v[24:27]
        ds_write_b128 v3, v[28:31] offset:1024
        s_waitcnt lgkmcnt(0)
        """)
    def pre(g):
        k = g.k
        g.L16 = alloc(g, 1, 1); g.SA = alloc(g, 1, 1); g.GA = alloc(g, 1, 1); g.CA = alloc(g, 1, 1)
        g.R = alloc(g, 2, 2); g.M = alloc(g, 2, 2); g.P = alloc(g, 16)
        srd(k, 32, 'ws', ZB, max(WS_Z, WS_Z2N) - ZB + ZSZ); srd(k, 36, 'ws', WS_ST1, 512 * KB)
        k.e('v_lshlrev_b32 v%d, 4, v1' % g.L16)
        k.e("""
        s_lshl_b32 s61, s30, 2
        s_add_u32 s61, s61, s50           ; rb32
        s_lshr_b32 s64, s61, 1
        s_lshl_b32 s64, s64, 13           ; rb64*8192
        s_and_b32 s65, s61, 1
        s_lshl_b32 s65, s65, 8
        s_add_u32 s64, s64, s65           ; x1 stats offset
        s_lshl_b32 s65, s61, 12
        s_add_u32 s65, s65, %d            ; granule offset (row block)
        s_lshl_b32 s66, s31, 8
        s_add_u32 s66, s66, s65           ; own granule
        s_mul_i32 s60, s61, %d
        s_lshl_b32 s61, s31, 13
        s_add_u32 s60, s60, s61           ; Z1 offset
        v_lshlrev_b32 v5, 3, v3
        v_lshl_add_u32 v%d, v4, 12, v5    ; h*8*512 + row*8
        v_mul_u32_u24 v6, %d, v4
        v_add_u32 v%d, v6, v5             ; h*7*256 + row*8
        v_lshlrev_b32 v%d, 4, v4
        v_add_u32 v%d, %d, v%d
        """ % (WS_G - WS_ST1, 112 * 1024, g.SA, 7 * 256, g.GA, g.CA, g.CA, g.AUX, g.CA))
    def early(g):
        k = g.k
        for p in range(8):
            k.e('buffer_load_dwordx2 %s, v%d, s[36:39], s64 offen offset:%d sc1' % (vr(g.P + 2 * p, 2), g.SA, p * 512))
        k.e('s_waitcnt vmcnt(0)')
        for p in range(1, 8): k.e(pk('add', g.P, g.P, g.P + 2 * p))
        stats_finish(k, g.P, 1024, g.R, g.M, g.P + 2)
    def pre2(g): pass
    def epi(g):
        k = g.k
        c1 = -2.0 * 0.7978845608028654 * LOG2E
        U = g.FR; W0 = g.FR + 16; T = g.FR + 32; PS = g.FR + 48
        def rd_uw(j):
            for q in range(4):
                k.e('ds_read_b128 %s, v%d offset:%d' % (vr(U + 4 * q, 4), g.CA, j * 128 + q * 32))
                k.e('ds_read_b128 %s, v%d offset:%d' % (vr(W0 + 4 * q, 4), g.CA, 1024 + j * 128 + q * 32))
        k.e('s_nop 7')
        rd_uw(0)
        k.e('s_mov_b32 s70, %s' % hx(c1 * 0.044715)); k.e('s_mov_b32 s71, s70')
        k.e('v_mov_b32 v6, %s' % hx(c1))
        S1 = g.P; S2 = g.P + 2
        GR = g.P + 2
        n = 0
        def poll_loads():
            for p in range(7):
                k.e('buffer_load_dwordx2 %s, v%d, s[36:39], s65 offen offset:%d sc1' % (vr(GR + 2 * p, 2), g.GA, p * 256))
        cnt = [0]
        def block(j):
            a = g.acc(0, j)
            g.fix(0, j)
            k.e('s_waitcnt lgkmcnt(0)')
            for r in range(0, 16, 2): k.e(pk('fma', T + r, U + r, (g.M,), W0 + r))
            if j < 7 and not (j == 3 and g.deferred): rd_uw(j + 1)
            for r in range(0, 16, 2): k.e(pk('fma', a + r, a + r, (g.R,), T + r))
            for r in range(0, 16, 2): k.e(pk('mul', T + r, a + r, a + r))
            for r in range(0, 16, 2): k.e(pk('fma', T + r, T + r, 's[70:71]', (6,)))
            for r in range(0, 16, 2): k.e(pk('mul', T + r, T + r, a + r))
            for r in range(16): k.e('v_exp_f32 v%d, v%d' % (T + r, T + r))
            for r in range(0, 16, 2): k.e(pk('add', T + r, T + r, '1.0'))
            for r in range(16): k.e('v_rcp_f32 v%d, v%d' % (T + r, T + r))
            for r in range(0, 16, 2): k.e(pk('mul', a + r, a + r, T + r))
            if j >= 4:
                if KZ:
                    for d in range(8): k.e('v_cvt_pk_bf16_f32 v%d, v%d, v%d' % (ZKEEP + 8 * (j - 4) + d, a + 2 * d, a + 2 * d + 1))
                else:
                    k.e('s_add_u32 s61, s60, %d' % (WS_Z - ZB + (j - 4) * 2048))
                    store_xf_tile(g, a, PS + 8 * (cnt[0] % 3), g.L16, 32, 's61', 0); cnt[0] += 1
            else:
                for r in range(0, 16, 2):
                    if j == 0 and r == 0:
                        k.e(pk('add', S1, a, a + 2)); k.e(pk('mul', S2, a, a))
                    else:
                        if not (j == 0 and r == 2): k.e(pk('add', S1, S1, a + r))
                        k.e(pk('fma', S2, a + r, a + r, S2))
        for j in range(4): block(j)
        k.e('v_add_f32 v%d, v%d, v%d' % (S1, S1, S1 + 1))
        k.e('v_add_f32 v%d, v%d, v%d' % (S1 + 1, S2, S2 + 1))
        k.e('v_mov_b32 v%d, v%d' % (S2, S1))
        k.e('v_mov_b32 v%d, v%d' % (S2 + 1, S1 + 1))
        k.e('v_lshlrev_b32 v5, 3, v3')
        k.e('s_nop 0')
        k.e('v_permlane32_swap_b32 v%d, v%d' % (S1, S2))
        k.e('v_permlane32_swap_b32 v%d, v%d' % (S1 + 1, S2 + 1))
        k.e('s_nop 1')
        k.e(pk('add', S1, S1, S2))
        k.e('v_min_u32 v%d, -2, v%d' % (S1, S1))
        k.e('v_min_u32 v%d, -2, v%d' % (S1 + 1, S1 + 1))
        k.e('s_mov_b32 exec_hi, 0')
        k.e('buffer_store_dwordx2 %s, v5, s[36:39], s66 offen sc1' % vr(S1, 2))
        k.e('s_mov_b32 exec_hi, -1')
        if env('WM', 0): mark(k, 0)
        NB4 = env('NB4', 1) if KZ else 4
        if g.deferred:
            g.deferred()
            rd_uw(4)
        if LPJ == 3: k.e('s_barrier')
        for j in range(4, 4 + NB4):
            block(j)
            if j == LPJ: k.e('s_barrier')
        if env('WM', 0): mark(k, 1)
        R2 = g.P + 4; M2 = g.P + 6
        k.e('s_lshl_b32 s67, s46, 9')
        k.e('s_add_u32 s67, s67, %d' % (g.AUX + 2048))
        k.e('v_lshl_add_u32 v5, v1, 3, s67')
        k.e('s_barrier')
        k.e('ds_read_b64 %s, v5' % vr(R2, 2))
        k.e('s_waitcnt lgkmcnt(0)')
        mark(k, 3)
        k.e('v_mov_b32 v%d, v%d' % (M2, R2 + 1))
        zo = ZOWN and c.nxt == 'wsp'
        if zo:
            assert g.M16
            ZA = g.P + 8
            k.e('''
            s_lshr_b32 s67, s46, 1
            s_lshl_b32 s67, s67, 15
            s_and_b32 s68, s46, 1
            s_lshl_b32 s68, s68, 13
            s_add_u32 s67, s67, s68
            s_add_u32 s67, s67, 16384
            v_bfe_u32 v5, v1, 4, 1
            v_lshl_add_u32 v%d, v5, 12, s67
            v_bfe_u32 v5, v1, 2, 2
            v_lshl_add_u32 v%d, v5, 8, v%d
            v_and_b32 v5, 2, v5
            v_or_b32 v5, v5, v4
            v_lshl_add_u32 v%d, v5, 6, v%d
            v_and_b32 v5, 3, v1
            v_lshl_add_u32 v%d, v5, 4, v%d
            v_xor_b32 v%d, 128, v%d
            ''' % (ZA, ZA, ZA, ZA, ZA, ZA, ZA, ZA + 1, ZA))
        for j in range(4):
            a = g.acc(0, j)
            for r in range(0, 16, 2): k.e(pk('fma', a + r, a + r, (R2,), (M2,)))
            k.e('s_add_u32 s61, s60, %d' % (WS_Z2N - ZB + j * 2048))
            if zo:
                store_xf_tile(g, a, a, g.L16, 32, 's61', 0)
            else:
                store_xf_tile(g, a, PS + 8 * (cnt[0] % 3), g.L16, 32, 's61', 0); cnt[0] += 1
        if zo:
            for j in range(4):
                for t in range(2): k.e('ds_write_b128 v%d, %s offset:%d' % (ZA + t, vr(g.acc(0, j) + 4 * t, 4), j * 1024))
        if g.LE: k.e('s_barrier')
        rest = list(range(4 + NB4, 8))
        NBS = env('NBS', 2)
        for j in rest[:NBS]: block(j)
        signal(k, 'C')
        for j in rest[NBS:]: block(j)
        k.e('s_waitcnt lgkmcnt(0)')
    sig = 's_lshl_b32 s100, s31, 8\ns_lshl_b32 s101, s30, 4\ns_add_u32 s100, s100, s101\ns_add_u32 s100, s100, %d' % FL_WIN
    wait = ('s_lshl_b32 s100, s30, 8\ns_add_u32 s100, s100, %d' % FL_WO, 64)
    k_gemm(k, c, 16, 14, 2, 2, 7, 128, 256, 4, 1, 1024, 32, 4, ('xf', WS_X1S, 1024), ('w', 'w_in', 7168, (256, [3584, 3584 + 128, 0, 128])),
           pre, pre2, epi, aux=aux, auxsz=4 * KB, auxbase=AUX_B, aux_end=aux_end, post=post, selfsig=True, early=early, SOFT=3, DEFER=3, dcols=([0, 1, 2, 3], [4, 5, 6, 7]), JG=2, lazyfix=True, side=(28, uw_job), wait=wait, sig=sig)

def k_wsp(k, c):
    def pre(g):
        k = g.k
        g.L16 = alloc(g, 1, 1); g.L2 = alloc(g, 1, 1); g.B = alloc(g, 4); g.Z = alloc(g, 32)
        srd(k, 32, 'ws', WS_Z, ZSZ); srd(k, 36, 'ws', WS_U2, ZSZ); srd(k, 40, 'b_sp')
        k.e('v_lshlrev_b32 v%d, 4, v1' % g.L16)
        k.e('''
        s_lshl_b32 s60, s31, 13
        s_lshl_b32 s61, s51, 12
        s_add_u32 s60, s60, s61
        s_lshl_b32 s61, s30, 2
        s_lshl_b32 s62, s50, 1
        s_add_u32 s61, s61, s62           ; rb0
        s_lshl_b32 s63, s61, 6
        s_mul_i32 s61, s61, %d
        s_add_u32 s60, s60, s61
        s_add_u32 s61, s60, %d
        v_lshlrev_b32 v%d, 1, v3
        ''' % (112 * 1024, 112 * 1024, g.L2))
    def pre2(g):
        k = g.k
        for i in range(2):
            k.e('buffer_load_ushort v%d, v%d, s[40:43], s63 offen offset:%d' % (g.B + 2 * i, g.L2, i * 64))
        for i in range(2):
            for j in range(2):
                for t in range(2):
                    k.e('buffer_load_dwordx4 %s, v%d, s[32:35], s%d offen offset:%d sc1' % (vr(g.Z + 16 * i + 8 * j + 4 * t, 4), g.L16, 60 + i, (2 * j + t) * 1024))
    def epi(g):
        k = g.k
        T = g.FR
        k.e('s_waitcnt vmcnt(0)')
        for i in range(2): k.e('v_lshlrev_b32 v%d, 16, v%d' % (g.B + 2 * i, g.B + 2 * i))
        k.e('s_nop 7')
        for j in range(2):
            for i in range(2):
                a = g.acc(i, j); z = g.Z + 16 * i + 8 * j
                for d in range(8): unpack(k, T + 2 * d, T + 2 * d + 1, z + d)
                for d in range(8): k.e(pk('add', a + 2 * d, a + 2 * d, (g.B + 2 * i,)))
                for d in range(8): k.e(pk('mul', a + 2 * d, a + 2 * d, T + 2 * d))
                store_xf_tile(g, a, z, g.L16, 36, 's%d' % (60 + i), j * 2048)
    KZ = c.prev == 'win' and env('KEEPZ', 1)
    def preK(g):
        k = g.k
        g.L16 = alloc(g, 1, 1); g.L2 = alloc(g, 1, 1); g.B = alloc(g, 2, 2)
        srd(k, 36, 'ws', WS_U2, ZSZ); srd(k, 40, 'b_sp')
        k.e('v_lshlrev_b32 v%d, 4, v1' % g.L16)
        k.e('''
        s_lshl_b32 s60, s31, 13
        s_lshl_b32 s61, s30, 2
        s_add_u32 s61, s61, s50           ; rb32
        s_lshl_b32 s63, s61, 6
        s_mul_i32 s61, s61, %d
        s_add_u32 s60, s60, s61
        s_add_u32 s61, s60, 4096
        v_lshlrev_b32 v%d, 1, v3
        ''' % (112 * 1024, g.L2))
    def pre2K(g):
        g.k.e('buffer_load_ushort v%d, v%d, s[40:43], s63 offen' % (g.B, g.L2))
    def epiK(g):
        k = g.k
        T = g.FR
        k.e('s_waitcnt vmcnt(0)')
        k.e('v_lshlrev_b32 v%d, 16, v%d' % (g.B, g.B))
        for j in range(4):
            a = g.acc(0, j); z = ZKEEP + 8 * j
            for d in range(8): unpack(k, T + 2 * d, T + 2 * d + 1, z + d)
            for d in range(8): k.e(pk('add', a + 2 * d, a + 2 * d, (g.B,)))
            for d in range(8): k.e(pk('mul', a + 2 * d, a + 2 * d, T + 2 * d))
            store_xf_tile(g, a, z, g.L16, 36, 's%d' % (60 + j // 2), (j % 2) * 2048)
    sig = 's_lshl_b32 s100, s30, 8\ns_lshl_b32 s101, s31, 4\ns_add_u32 s100, s100, s101\ns_add_u32 s100, s100, %d' % FL_WSP
    wait = ('s_lshl_b32 s100, s31, 8\ns_add_u32 s100, s100, %d' % FL_WIN, 64)
    if KZ: k_gemm(k, c, 16, 14, 2, 2, 7, 128, 128, 4, 1, 2048, 64, 3, ('rm', 'w_sp', 4096), ('z', WS_Z2N, 1792), preK, pre2K, epiK, pf='w_out', wait=wait, sig=sig, dep='Y', GU=2, RWD=2, frbase=ZKEEP + 32, own='s_lshl_b32 s68, s30, 1')
    else: k_gemm(k, c, 16, 14, 2, 2, 7, 128, 128, 2, 2, 2048, 64, 3, ('rm', 'w_sp', 4096), ('z', WS_Z2N, 1792), pre, pre2, epi, pf='w_out', wait=wait, sig=sig, dep='Y', GU=2, RWD=2, own='s_lshl_b32 s68, s30, 1')

def k_attn(k, c):
    NS = 4; STG = 32768; NST = 8
    phase_begin(k, c)
    SA, SB, O, NEGM = 8, 24, 40, 56
    L, ONES, Q, KF, VF, P = 72, 76, 80, 88, 96, 104
    A0 = 112; AC = 113; AO = 114; M = 115; T = 116; T2 = 117; PFA = 118; MA = 119; PFD = 120; MT = 124
    assert c.nxt == 'wo'
    k.e("""
    v_and_b32 v1, 63, v0
    s_mov_b32 s46, s3
    s_and_b32 s47, s2, 7
    s_lshr_b32 s48, s2, 3
    s_lshl_b32 s30, s47, 2
    s_lshr_b32 s49, s48, 3
    s_add_u32 s30, s30, s49            ; head
    s_and_b32 s31, s48, 7              ; q block (256 rows)
    v_lshlrev_b32 v%d, 4, v1
    s_lshl_b32 s50, s31, 3
    s_add_u32 s50, s50, s46            ; rb of this wave's queries
    s_lshl_b32 s51, s30, 6
    s_add_u32 s51, s51, s50
    s_lshl_b32 s51, s51, 11            ; Q offset
    s_lshl_b32 s52, s30, 18            ; KV head base
    s_lshl_b32 s53, s46, 12            ; wave part (4KB = one tile)
    s_lshl_b32 s62, s2, 13
    v_lshl_add_u32 v%d, v0, 4, s62     ; prefetch offset wg*8K + tid*16
    s_mov_b32 s62, %d
    s_waitcnt lgkmcnt(0)
    """ % (A0, PFA, 0x40000000 if env('PFOFF', 0) else 0))
    mark(k, 0)
    srd(k, 36, 'ws', WS_KV, 256 * KB, soff='s52'); srd(k, 32, 'ws', WS_Q, 4 * MB)
    set_flag(k, 's_lshl_b32 s100, s31, 8\ns_lshl_b32 s101, s30, 2\ns_add_u32 s100, s100, s101\ns_add_u32 s100, s100, %d' % FL_ATT)
    handoff(k, 's_lshr_b32 s100, s30, 1\ns_lshl_b32 s100, s100, 8\ns_add_u32 s100, s100, %d' % FL_QKV, 64, role='A')
    def dma(slot_expr):
        return ['s_add_u32 m0, s53, %s' % slot_expr] + \
               ['buffer_load_dwordx4 v%d, s[36:39], s56 offen offset:%d sc1 lds' % (A0, q * 1024) for q in range(4)] + \
               ['s_add_u32 s56, s56, %d' % STG]
    def pfl(n): return 'buffer_load_dwordx4 %s, v%d, %s, s62 offen' % (vr(PFD, 4), PFA, sr(n))
    def emit_dma(slot_expr):
        d = dma(slot_expr); k.e(d[0]); k.e('s_nop 0')
        for x in d[1:]: k.e(x)
    AST = env('AST', 1)
    if AST:
        k.e('s_lshl_b32 s56, s46, 10')
        k.e('s_mov_b32 m0, s56')
        k.e('s_mul_i32 s58, s46, 3072')
        k.e('buffer_load_dwordx4 v%d, s[36:39], s56 offen sc1 lds' % A0)
    else:
        k.e('s_mov_b32 s56, s53')
        emit_dma('0')
    k.e('buffer_load_dwordx4 %s, v%d, s[32:35], s51 offen sc1' % (vr(Q, 4), A0))
    k.e('buffer_load_dwordx4 %s, v%d, s[32:35], s51 offen offset:1024 sc1' % (vr(Q + 4, 4), A0))
    if AST:
        k.e('s_add_u32 s56, s58, 8192')
        k.e('s_mov_b32 m0, s56')
        k.e('s_nop 0')
        for q in range(3): k.e('buffer_load_dwordx4 v%d, s[36:39], s56 offen offset:%d sc1 lds' % (A0, q * 1024))
        k.e('s_add_u32 s56, s53, %d' % STG)
        emit_dma(str(STG))
    srd(k, 64, 'w_in'); srd(k, 68, 'w_sp'); srd(k, 32, 'wo')
    srd(k, 40, 'ws', WS_O, 4 * MB)
    k.e("""
    s_lshl_b32 s54, s50, 16
    s_lshl_b32 s55, s30, 11
    s_add_u32 s54, s54, s55            ; O offset
    v_and_b32 v3, 3, v1
    v_bfe_u32 v4, v1, 2, 1
    v_bfe_u32 v5, v1, 4, 1
    v_xor_b32 v4, v4, v5
    v_or_b32 v3, v3, v4
    v_cmp_eq_u32 vcc, 0, v3
    v_mov_b32 v4, 0x3f803f80
    s_nop 1
    v_cndmask_b32 v%d, 0, v4, vcc
    v_mov_b32 v%d, v%d
    v_mov_b32 v%d, v%d
    v_mov_b32 v%d, v%d
    """ % (ONES, ONES + 1, ONES, ONES + 2, ONES, ONES + 3, ONES))
    def adr(t): return (AC if t < 16 else AO), (t % 16) * 4096
    def rdK(t):
        a, o = adr(t)
        return ['ds_read_b128 %s, v%d offset:%d' % (vr(KF, 4), a, o), 'ds_read_b128 %s, v%d offset:%d' % (vr(KF + 4, 4), a, o + 1024)]
    def rdV(t):
        a, o = adr(t)
        return ['ds_read_b128 %s, v%d offset:%d' % (vr(VF, 4), a, o + 2048), 'ds_read_b128 %s, v%d offset:%d' % (vr(VF + 4, 4), a, o + 3072)]
    def qk(S, c):
        return ['v_mfma_f32_32x32x16_bf16 %s, %s, %s, %s' % (vr(S, 16), vr(KF, 4), vr(Q, 4), c),
                'v_mfma_f32_32x32x16_bf16 %s, %s, %s, %s' % (vr(S, 16), vr(KF + 4, 4), vr(Q + 4, 4), vr(S, 16))]
    def maxtile(S, first):
        st = 0
        if first:
            k.e('v_max3_f32 v%d, v%d, v%d, v%d' % (M, S, S + 1, S + 2))
            k.e('v_max_f32 v%d, v%d, v%d' % (M, M, S + 3))
            st = 4
        for r in range(st, 16, 2): k.e('v_max3_f32 v%d, v%d, v%d, v%d' % (M, M, S + r, S + r + 1))
    def set_negm(bias):
        k.e('v_mov_b32 v%d, v%d' % (T, M))
        k.e('s_nop 1')
        k.e('v_permlane32_swap_b32 v%d, v%d' % (M, T))
        k.e('s_nop 1')
        k.e('v_max_f32 v%d, v%d, v%d' % (M, M, T))
        k.e('v_sub_f32 v%d, %s, v%d' % (NEGM, hx(-bias), M))
        for r in range(1, 16): k.e('v_mov_b32 v%d, v%d' % (NEGM + r, NEGM))
    def zero_state():
        for r in range(16): k.e('v_mov_b32 v%d, 0' % (O + r))
        for r in range(4):
            k.e('v_mov_b32 v%d, 0' % (L + r))
            k.e('v_mov_b32 v%d, 0' % (P + 4 + r))
            k.e('v_mov_b32 v%d, 0' % (VF + 4 + r))
        k.e('v_mov_b32 v%d, v%d' % (AC, A0))
        k.e('v_add_u32 v%d, 0x10000, v%d' % (AO, A0))
        k.e('s_mov_b32 s57, 0')
    zero_state()
    if not MP0: srd(k, 80, 'ws', 0, 256 * KB)
    if not MP0: k.e("""
    s_and_b32 s49, s2, 3               ; k quarter
    s_lshl_b32 s49, s49, 3
    s_add_u32 s49, s49, s46            ; 32-row group
    s_mul_i32 s60, s49, %d
    s_lshr_b32 s63, s2, 2              ; col block
    s_lshl_b32 s63, s63, 7
    s_add_u32 s60, s60, s63
    s_add_u32 s60, s60, 4096
    s_add_u32 s61, s60, 12288
    s_and_b32 s49, s2, 3
    s_lshl_b32 s49, s49, 2
    s_and_b32 s63, s46, 3
    s_add_u32 s49, s49, s63
    s_lshl_b32 s49, s49, 8             ; silu offset of row groups 2(w&3), +1
    s_add_u32 s49, s49, %d
    v_lshrrev_b32 v%d, 3, v1
    v_mul_u32_u24 v%d, %d, v%d
    v_and_b32 v%d, 7, v1
    v_lshl_add_u32 v%d, v%d, 4, v%d
    v_lshlrev_b32 v%d, 4, v%d
    """ % (32 * 12288, WS_SC, MT, MA, 4 * 12288, MT, MT + 1, MA, MT + 1, MA, MT, MT))
    def mld(j): return ['s_add_u32 m0, s53, %d' % (AUX_A + j * 1024), 'buffer_load_dwordx4 v%d, s[80:83], s%d offen lds' % (MA, (60, 61, 63, 49)[j])]
    k.e('s_waitcnt vmcnt(%d)' % (7 if AST else 0))
    k.e('s_barrier')
    mark(k, 1)
    for r in rdK(1): k.e(r)
    k.e('s_waitcnt lgkmcnt(0)')
    for m in qk(SB, '0'): k.e(m)
    for r in rdK(0): k.e(r)
    k.e('s_waitcnt lgkmcnt(0)')
    for m in qk(SA, '0'): k.e(m)
    def extras():
        if MP0: return
        k.e(pfl(32))
        k.e('buffer_load_dwordx4 %s, v%d, s[80:83], s49 offen' % (vr(MSV, 4), MT))
        k.e('buffer_load_dwordx4 %s, v%d, s[80:83], s49 offen offset:128' % (vr(MSV + 4, 4), MT))
        srd(k, 80, 'w_mod')
        k.e('s_mov_b32 s49, 0x40000000')
        k.e('s_mov_b32 s63, 0x40000000')
    if AST: k.e('s_nop 7')
    else:
        emit_dma(str(STG)); extras()
    maxtile(SB, True)
    maxtile(SA, False)
    set_negm(40.0)
    if AST:
        k.e('s_waitcnt vmcnt(4)')
        k.e('s_barrier')
        extras()
    mark(k, 2)
    if env('APRIO', 0):
        k.e('s_cmp_ge_u32 s46, 4')
        k.e('s_cbranch_scc0 L_attn_noprio')
        k.e('s_setprio 1')
        k.label('L_attn_noprio')
    k.e('s_mov_b32 s59, %d' % (NST // 2))
    k.e('s_nop 0')
    for m in qk(SA, vr(NEGM, 16)): k.e(m)
    k.e(rdK(1)[0])
    k.e('ds_read_b32 v%d, v%d' % (T, A0))
    k.e(rdK(1)[1])
    k.e(rdV(0)[0])
    k.e('s_nop 7')
    lp = 'L_attn_loop'
    def pv(h): return 'v_mfma_f32_32x32x16_bf16 %s, %s, %s, %s' % (vr(O, 16), vr(VF + 4 * h, 4), vr(P + 4 * h, 4), vr(O, 16))
    def ls(h): return 'v_mfma_f32_16x16x32_bf16 %s, %s, %s, %s' % (vr(L, 4), vr(ONES, 4), vr(P + 4 * h, 4), vr(L, 4))
    def iteration(nsoft, pat0):
        for t in range(16):
            cur, nxt = (SA, SB) if t % 2 == 0 else (SB, SA)
            m_qk = qk(nxt, vr(NEGM, 16))
            kn = rdK(t + 2); v0n = rdV(t + 1)[0]; v1n = rdV(t)[1]
            ex = ['v_exp_f32 v%d, v%d' % (cur + r, cur + r) for r in range(16)]
            cv = ['v_cvt_pk_bf16_f32 v%d, v%d, v%d' % (P + d, cur + 2 * d, cur + 2 * d + 1) for d in range(8)]
            W = 's_waitcnt lgkmcnt(2)'
            head = []; xs = []
            if t % 8 == 6: head = ['s_waitcnt vmcnt(%d)' % (9 if not MP0 else (6 if t == 6 else 7)), 's_barrier']
            if t == 14 and not c.last and not nsoft: head = ['s_cmp_eq_u32 s59, 1', 's_cbranch_scc0 L_attn_nd', 's_waitcnt vmcnt(0)', 'L_attn_nd:'] + head
            d = dma('s58')
            if t % 8 == 0: xs = ['s_xor_b32 s58, s57, 0x%x' % (0x10000 if t == 0 else 0x18000), d[0], d[1]]
            elif t % 8 < 3: xs = [d[1 + t % 8]]
            elif t % 8 == 3: xs = [d[4], d[5]]
            elif t == 4: xs = [pfl(64)]
            elif t == 5: xs = [pfl(68)]
            elif MP0 and t == 7: xs = [pfl(32)]
            elif MP0 and t == 12: xs = ['s_add_u32 s62, s62, %d' % (2 * MB)]
            elif MP0 and t == 13: xs = []
            elif MP0 and t == 15: xs = ['s_xor_b32 s57, s57, 0x10000']
            elif t == 7: xs = mld(0)
            elif t == 12: xs = ['s_add_u32 s62, s62, %d' % (2 * MB)] + mld(2)
            elif t == 13: xs = mld(1)
            elif t == 15: xs = ['s_xor_b32 s57, s57, 0x10000'] + mld(3) + ['s_add_u32 s63, s60, %d' % (2 * 12288), 's_add_u32 s49, s60, %d' % (3 * 12288)]
            tail = ['v_swap_b32 v%d, v%d' % (AC, AO), 's_sub_u32 s59, s59, 1', 's_cmp_lg_u32 s59, 0'] if t == 15 else []
            pat = pat0 if t < nsoft else os.environ.get('APAT', 'eeeQeeePeeccLcc')
            body = []
            for hh in range(2):
                ei = 8 * hh; ci = 4 * hh
                for ch in pat:
                    if ch == 'e': body.append(ex[ei]); ei += 1
                    elif ch == 'c': body.append(cv[ci]); ci += 1
                    elif ch == 'Q': body += [W, m_qk[hh], kn[hh]]
                    elif ch == 'P': body += [pv(1 - hh), v1n if hh == 0 else v0n]
                    elif ch == 'L': body.append(ls(1 - hh))
                assert ei == 8 * hh + 8 and ci == 4 * hh + 4
            if tail:
                last_ds = max(i for i, x in enumerate(body) if x.startswith('ds_') or x.startswith('v_exp'))
                body = body[:last_ds + 1] + tail + body[last_ds + 1:]
            iq = max(i for i, x in enumerate(body) if x == m_qk[1])
            first_e = min(i for i, x in enumerate(body) if x.startswith('v_exp'))
            assert len(body) - 1 - iq + first_e >= 12, 'qk->exp distance'
            seq = list(head)
            for x in body:
                seq.append(x)
                if xs and x.startswith('v_exp'): seq.append(xs.pop(0))
            assert not xs
            AX = os.environ.get('AX', '')
            if 'p' in AX: seq = [x for x in seq if 's62 offen' not in x]
            for x in seq: k.e(x)
    if env('ASOFT', 8): iteration(env('ASOFT', 8), os.environ.get('APAT0', 'eQPLeeeeeeecccc'))
    k.label(lp)
    iteration(0, None)
    k.e('s_cbranch_scc1 %s' % lp)
    k.label('L_attn_epi')
    mark(k, 3)
    k.e('s_waitcnt lgkmcnt(0)')
    k.e(pv(1)); k.e(ls(1))
    k.e('s_nop 15')
    lstore = 'L_attn_store'; lsafe = 'L_attn_safe'
    k.e('v_max3_f32 v%d, |v%d|, |v%d|, |v%d|' % (T, O, O + 1, L))
    for r in range(2, 16, 2): k.e('v_max3_f32 v%d, |v%d|, |v%d|, v%d' % (T, O + r, O + r + 1, T))
    k.e('v_mul_f32 v%d, 0, v%d' % (T2, L))
    for r in range(16): k.e('v_fma_f32 v%d, 0, v%d, v%d' % (T2, O + r, T2))
    k.e('v_add_f32 v%d, v%d, v%d' % (T, T, T2))
    k.e('v_mov_b32 v3, %s' % hx(2.0 ** 120))
    k.e('v_cmp_nlt_f32 vcc, v%d, v3' % T)
    k.e('s_nop 4')
    k.e('s_cbranch_vccnz %s' % lsafe)
    k.label(lstore)
    k.e('v_rcp_f32 v%d, v%d' % (T, L))
    k.e('s_nop 0')
    for r in range(16): k.e('v_mul_f32 v%d, v%d, v%d' % (O + r, O + r, T))
    for d in range(8): k.e('v_cvt_pk_bf16_f32 v%d, v%d, v%d' % (P + d, O + 2 * d, O + 2 * d + 1))
    k.e('buffer_store_dwordx4 %s, v%d, s[40:43], s54 offen%s' % (vr(P, 4), A0, WT))
    k.e('buffer_store_dwordx4 %s, v%d, s[40:43], s54 offen offset:1024%s' % (vr(P + 4, 4), A0, WT))
    signal(k, 'S')
    endpgm(k)
    k.label(lsafe)
    def gl(dst, off): return 'buffer_load_dwordx4 %s, v%d, s[36:39], s56 offen offset:%d sc1' % (vr(dst, 4), A0, off)
    k.e('s_waitcnt vmcnt(0)')
    k.e('s_mov_b32 s56, 0')
    k.e('v_mov_b32 v%d, 0xff800000' % M)
    k.label(lsafe + '1')
    k.e(gl(KF, 0)); k.e(gl(KF + 4, 1024))
    k.e('s_waitcnt vmcnt(0)')
    for m in qk(SA, '0'): k.e(m)
    k.e('s_nop 15')
    maxtile(SA, False)
    k.e('s_add_u32 s56, s56, 4096')
    k.e('s_cmp_lt_u32 s56, %d' % (256 * KB))
    k.e('s_cbranch_scc1 %s1' % lsafe)
    set_negm(0.0)
    zero_state()
    k.e('s_mov_b32 s56, 0')
    k.label(lsafe + '2')
    k.e(gl(KF, 0)); k.e(gl(KF + 4, 1024)); k.e(gl(VF, 2048)); k.e(gl(VF + 4, 3072))
    k.e('s_waitcnt vmcnt(0)')
    for m in qk(SA, vr(NEGM, 16)): k.e(m)
    k.e('s_nop 15')
    for r in range(16): k.e('v_exp_f32 v%d, v%d' % (SA + r, SA + r))
    k.e('s_nop 0')
    for d in range(8): k.e('v_cvt_pk_bf16_f32 v%d, v%d, v%d' % (P + d, SA + 2 * d, SA + 2 * d + 1))
    k.e('s_nop 1')
    k.e(pv(0)); k.e(ls(0)); k.e(pv(1)); k.e(ls(1))
    k.e('s_add_u32 s56, s56, 4096')
    k.e('s_nop 7')
    k.e('s_cmp_lt_u32 s56, %d' % (256 * KB))
    k.e('s_cbranch_scc1 %s2' % lsafe)
    k.e('s_nop 15')
    k.e('s_branch %s' % lstore)
    k.need(MSV + 8, 160 * KB)

def k_attn2(k, c):
    phase_begin(k, c)
    assert c.prev == 'qkv' and c.nxt == 'wo' and not (MP0 and AOWN != 3)
    S2 = (8, 24); O2 = (40, 56); N2 = (72, 88); L2 = (104, 108); Q2 = (112, 120)
    ONES, KF, VF, P = 128, 132, 140, 148
    A0 = 156; AR = 157; M = 158; T = 159; T2 = 160; PFA = 161; MA = 162; MT = 164; PFD = 168
    k.e("""
    v_and_b32 v1, 63, v0
    s_mov_b32 s46, s3
    s_and_b32 s47, s3, 1               ; wn
    s_bfe_u32 s48, s3, 0x10001         ; wm
    s_lshr_b32 s49, s3, 2              ; kh
    s_lshl_b32 s50, s31, 1
    s_add_u32 s50, s50, s47            ; head
    s_lshl_b32 s52, s50, 18
    s_lshl_b32 s51, s49, 17
    s_add_u32 s51, s51, s52            ; stream base in KV
    s_lshl_b32 s55, s49, 1
    s_add_u32 s55, s55, s47
    s_lshl_b32 s55, s55, 15            ; stream ring base in LDS
    s_lshl_b32 s56, s48, 12            ; next global offset: own tile of stage 0
    s_add_u32 s57, s55, s56            ; LDS address of own tile in slot 0
    s_lshl_b32 s53, s3, 12             ; wave*4KB (mod slice staging)
    v_lshlrev_b32 v%d, 4, v1
    v_add_u32 v%d, s55, v%d
    s_lshl_b32 s54, s30, 2
    s_lshl_b32 s58, s48, 1
    s_add_u32 s54, s54, s58
    s_add_u32 s54, s54, s49            ; rb of the tile this wave finalises
    s_lshl_b32 s54, s54, 16
    s_lshl_b32 s58, s50, 11
    s_add_u32 s54, s54, s58            ; O offset
    s_lshl_b32 s62, s2, 13
    v_lshl_add_u32 v%d, v0, 4, s62     ; prefetch offset wg*8K + tid*16
    s_mov_b32 s62, 0
    v_and_b32 v3, 3, v1
    v_bfe_u32 v4, v1, 2, 1
    v_bfe_u32 v5, v1, 4, 1
    v_xor_b32 v4, v4, v5
    v_or_b32 v3, v3, v4
    v_cmp_eq_u32 vcc, 0, v3
    v_mov_b32 v4, 0x3f803f80
    s_nop 1
    v_cndmask_b32 v%d, 0, v4, vcc
    v_mov_b32 v%d, v%d
    v_mov_b32 v%d, v%d
    v_mov_b32 v%d, v%d
    """ % (A0, AR, A0, PFA, ONES, ONES + 1, ONES, ONES + 2, ONES, ONES + 3, ONES))
    mark(k, 0)
    if AOWN:
        srd(k, 36, 'ws', WS_KV, 256 * KB, soff='s52')
        k.e('''
        s_mov_b32 s86, s87                 ; qkv flag the compute waves still have to publish
        s_lshl_b32 s51, s30, 14
        s_add_u32 s51, s51, s56            ; offset of the own pairs (skipped in the stream)
        s_mul_i32 s58, s49, %d
        s_add_u32 s56, s56, s58
        s_cmp_ge_u32 s56, s51
        s_cselect_b32 s58, 16384, 0
        s_add_u32 s56, s56, s58
        ''' % (15 * 8192))
    else: srd(k, 36, 'ws', WS_KV, 128 * KB, soff='s51')
    srd(k, 80, 'ws', 0, 256 * KB)
    srd(k, 64, 'w_in'); srd(k, 68, 'w_sp'); srd(k, 32, 'wo')
    for r in range(16):
        k.e('v_mov_b32 v%d, 0' % (O2[0] + r)); k.e('v_mov_b32 v%d, 0' % (O2[1] + r))
    for r in range(4):
        for b in (L2[0], L2[1], P + 4, VF + 4): k.e('v_mov_b32 v%d, 0' % (b + r))
    k.e("""
    s_and_b32 s58, s2, 3               ; k quarter
    s_lshl_b32 s58, s58, 3
    s_add_u32 s58, s58, s46            ; 32-row group
    s_mul_i32 s60, s58, %d
    s_lshr_b32 s63, s2, 2              ; col block
    s_lshl_b32 s63, s63, 7
    s_add_u32 s60, s60, s63
    s_add_u32 s60, s60, 4096
    s_add_u32 s61, s60, 12288
    s_and_b32 s44, s2, 3
    s_lshl_b32 s44, s44, 2
    s_and_b32 s63, s46, 3
    s_add_u32 s44, s44, s63
    s_lshl_b32 s44, s44, 8             ; silu offset of row groups 2(w&3), +1
    s_add_u32 s44, s44, %d
    v_lshrrev_b32 v%d, 3, v1
    v_mul_u32_u24 v%d, %d, v%d
    v_and_b32 v%d, 7, v1
    v_lshl_add_u32 v%d, v%d, 4, v%d
    v_lshlrev_b32 v%d, 4, v%d
    ; Q / stand-in exchange area: tile A of this wave = tile kh
    s_and_b32 s58, s3, 3
    s_mul_i32 s58, s58, 5120
    s_add_u32 s58, s58, %d
    s_lshl_b32 s63, s49, 11
    s_add_u32 s63, s63, s58
    v_add_u32 v2, s63, v%d             ; Q of tile kh
    v_xor_b32 v3, 1, v2
    s_xor_b32 s63, s49, 1
    s_lshl_b32 s63, s63, 11
    s_add_u32 s63, s63, s58
    v_add_u32 v3, s63, v%d             ; Q of the other tile
    s_lshl_b32 s63, s49, 2
    s_add_u32 s63, s63, s58
    v_lshl_add_u32 v4, v1, 3, s63
    v_xor_b32 v5, 4, v4
    """ % (32 * 12288, WS_SC, MT, MA, 4 * 12288, MT, MT + 1, MA, MT + 1, MA, MT, MT, AUX_A, A0, A0))
    set_flag(k, 's_lshl_b32 s100, s30, 8\ns_lshl_b32 s101, s31, 2\ns_add_u32 s100, s100, s101\ns_add_u32 s100, s100, %d' % FL_ATT)
    def hand(): handoff(k, 's_lshl_b32 s100, s31, 8\ns_add_u32 s100, s100, %d' % FL_QKV, 64, role='A')
    if AOWN: k.e('s_barrier')
    else: hand()
    def dma(slot):
        return ['s_add_u32 m0, s57, %d' % (slot * 8192)] + \
               ['buffer_load_dwordx4 v%d, s[36:39], s56 offen offset:%d sc1 lds' % (A0, q * 1024) for q in range(4)] + \
               ['s_add_u32 s56, s56, 8192' + ('\ns_cmp_eq_u32 s56, s51\ns_cselect_b32 s58, 16384, 0\ns_add_u32 s56, s56, s58' if AOWN else '')]
    def emit_dma(slot):
        d = dma(slot); k.e(d[0]); k.e('s_nop 0')
        for x in d[1:]: k.e(x)
    def pfl(n): return 'buffer_load_dwordx4 %s, v%d, %s, s62 offen' % (vr(PFD, 4), PFA, sr(n))
    def mld(j): return [] if MP0 else ['s_add_u32 m0, s53, %d' % (AUX_A + j * 1024), 'buffer_load_dwordx4 v%d, s[80:83], s%d offen lds' % (MA, (60, 61, 63, 45)[j])]
    if not AOWN: emit_dma(0); emit_dma(1)
    for q in range(2):
        k.e('ds_read_b128 %s, v%d' % (vr(Q2[q], 4), 2 + q))
        k.e('ds_read_b128 %s, v%d offset:1024' % (vr(Q2[q] + 4, 4), 2 + q))
        k.e('ds_read_b32 v%d, v%d offset:4096' % (N2[q], 4 + q))
    k.e('s_waitcnt lgkmcnt(0)')
    for r in range(1, 16):
        for q in range(2): k.e('v_mov_b32 v%d, v%d' % (N2[q] + r, N2[q]))
    if not AOWN:
        k.e('s_waitcnt vmcnt(4)')
        k.e('s_barrier')
        mark(k, 1)
    def rd(dst, t, part): return 'ds_read_b128 %s, v%d offset:%d' % (vr(dst, 4), AR, (t % 8) * 4096 + part * 1024)
    def qk(q, hh, c0=None):
        S_ = S2[q]
        return 'v_mfma_f32_32x32x16_bf16 %s, %s, %s, %s' % (vr(S_, 16), vr(KF + 4 * hh, 4), vr(Q2[q] + 4 * hh, 4), (c0 or vr(N2[q], 16)) if hh == 0 else vr(S_, 16))
    def pv(q, h): return 'v_mfma_f32_32x32x16_bf16 %s, %s, %s, %s' % (vr(O2[q], 16), vr(VF + 4 * h, 4), vr(P + 4 * h, 4), vr(O2[q], 16))
    def ls(q, h): return 'v_mfma_f32_16x16x32_bf16 %s, %s, %s, %s' % (vr(L2[q], 4), vr(ONES, 4), vr(P + 4 * h, 4), vr(L2[q], 4))
    k.e(rd(KF, 0, 0)); k.e(rd(KF + 4, 0, 1)); k.e(rd(VF, 0, 2))
    def silu_loads():
        if MP0: return
        k.e('buffer_load_dwordx4 %s, v%d, s[80:83], s44 offen sc1' % (vr(MSV, 4), MT))
        k.e('buffer_load_dwordx4 %s, v%d, s[80:83], s44 offen offset:128 sc1' % (vr(MSV + 4, 4), MT))
    def wmod():
        if MP0: return
        srd(k, 80, 'w_mod')
        k.e('s_add_u32 s63, s60, %d' % (2 * 12288))
        k.e('s_add_u32 s45, s60, %d' % (3 * 12288))
    if not AOWN: silu_loads()
    k.e('s_waitcnt lgkmcnt(1)')
    k.e(qk(0, 0)); k.e(qk(0, 1))
    if AOWN: k.e('s_nop 11')
    else:
        emit_dma(2); wmod()
    OD = env('OD', 0) and AOWN == 3
    ool = []
    def late_start():
        if AOWN == 1:
            l = k.newlabel('ls')
            k.e('s_cmp_lt_u32 s3, 4'); k.e('s_cbranch_scc1 %s' % l)
            flag_prep(k)
            k.e('s_and_b32 s100, s3, 3\ns_lshl_b32 s100, s100, 7\ns_add_u32 s100, s100, s86')
            k.e('s_waitcnt vmcnt(0)')
            flag_store(k, 's100')
            k.label(l)
        hand()
        mark(k, 1)
        if OD:
            emit_dma(1); silu_loads(); wmod()
            k.e('''
            s_lshl_b32 s43, s48, 12
            s_add_u32 s43, s43, %d
            s_cmp_ge_u32 s43, s51
            s_cselect_b32 s58, 16384, 0
            s_add_u32 s43, s43, s58
            s_cmp_lt_u32 s3, 4
            s_cselect_b64 vcc, -1, 0
            s_cbranch_scc0 L_attn_np
            s_setprio 1
            L_attn_np:
            ''' % (16 * 8192))
        else:
            emit_dma(1); silu_loads(); emit_dma(2); wmod()
    k.e('s_mov_b32 s59, %d' % (3 if env('LASTB', 1) and not OD else 4))
    mark(k, 2)
    lp = 'L_attn_loop'
    LASTB = env('LASTB', 1) and not OD
    def iteration(first, nsoft, pat0, last=False):
        for u in range(16):
            t = u // 2; q = u % 2; st = u // 4; us = u % 4
            cur = S2[q]
            ex = ['v_exp_f32 v%d, v%d' % (cur + r, cur + r) for r in range(16)]
            cv = ['v_cvt_pk_bf16_f32 v%d, v%d, v%d' % (P + d, cur + 2 * d, cur + 2 * d + 1) for d in range(8)]
            if q == 0:
                Qs = [[qk(1, 0), rd(KF, t + 1, 0)], [qk(1, 1), rd(KF + 4, t + 1, 1)]]
                Ps = [[pv(1, 1), rd(VF + 4, t, 3)], ['WAITV', pv(0, 0)]]
            else:
                Qs = [['s_waitcnt lgkmcnt(0)', qk(0, 0)], [qk(0, 1)]]
                Ps = [[pv(0, 1)], [pv(1, 0), rd(VF, t + 1, 2)]]
            Ls = [ls(1 - q, 1), ls(q, 0)]
            peel = first and AOWN == 4 and u in (2, 3)
            if peel and u == 2:
                Qs = [[qk(1, 0)], [qk(1, 1)]]; Ps = [[pv(1, 1), rd(VF + 4, t, 3)], ['s_waitcnt lgkmcnt(1)', pv(0, 0)]]
            if peel and u == 3:
                Qs = [['s_waitcnt lgkmcnt(0)'], ['s_nop 0']]; Ps = [[pv(0, 1)], [pv(1, 0)]]
            inc = ['s_add_u32 s62, s62, %d' % (2 * MB)]
            NOPF = env('NOPF', 0)
            if first and AOWN: extra = [[], [], mld(0) + [pfl(32)], [pfl(64)], mld(1), mld(2), mld(3), [pfl(68)] + inc]
            elif first: extra = [[], [pfl(32)], mld(0), [pfl(64)], mld(1), mld(2), mld(3), [pfl(68)] + inc]
            else: extra = [[], [], [pfl(64)], [], [], [], [pfl(68)] + inc, []]
            if NOPF: extra = [[y for y in x if 's62' not in y] for x in extra]
            cnt = lambda e: [sum('buffer_load' in y for y in e[2 * i] + e[2 * i + 1]) for i in range(4)]
            nx_ = cnt(extra)
            prevx = ((0 if MP0 else 2) if first else nx_[3]) if st == 0 else nx_[st - 1]
            head = ['s_waitcnt vmcnt(%d)' % (prevx + 4 + nx_[st]), 's_barrier'] if us == 2 else []
            if last and us == 2 and st >= 2: head = (['s_waitcnt vmcnt(%d)' % (prevx + nx_[st])] if st == 2 else []) + ['s_barrier']
            if peel: head = []
            d = dma((st + 3) % 4)
            if OD and us == 2:
                lb = 'L_attn_fd%d_%d' % (first, st)
                d0 = dma((st + 2) % 4)
                d1 = [x.replace('s56', 's43').replace('s57, %d' % (((st + 2) % 4) * 8192), 's57, %d' % (((st + 2) % 4) * 8192 + 65536)) for x in d0]
                nw = 8 + nx_[st] + (2 if first and st == 0 else 0)
                ool.append([lb + ':', d0[0], 's_nop 0'] + d0[1:5] + [d1[0], 's_nop 0'] + d1[1:5] + [d0[5], d1[5], 's_waitcnt vmcnt(%d)' % nw, 's_branch %sr' % lb])
                head = ['s_cbranch_vccnz %s' % lb] + (['s_waitcnt vmcnt(2)'] if first and st == 0 else []) + [lb + 'r:', 's_barrier']
            if (OD or (last and st >= 1)) and us >= 2: xs = []
            elif us == 2: xs = [d[0], d[1], None, None, None, None, None, None, None, d[2]]
            elif us == 3: xs = [d[3], None, None, None, None, None, None, None, d[4], d[5]]
            else: xs = list(extra[2 * st + us])
            pat = pat0 if u < nsoft else os.environ.get('APAT', 'eeeQeeePeeccLcc')
            assert pat.index('Q') < pat.index('P')
            body = []
            for hh in range(2):
                ei = 8 * hh; ci = 4 * hh
                for ch in pat:
                    if ch == 'e': body.append(ex[ei]); ei += 1
                    elif ch == 'c': body.append(cv[ci]); ci += 1
                    elif ch == 'Q': body += Qs[hh]
                    elif ch == 'P': body += Ps[hh]
                    elif ch == 'L': body.append(Ls[hh])
            body = ['s_waitcnt lgkmcnt(3)' if x == 'WAITV' else x for x in body]
            if u == 15 and not last:
                le = max(i for i, x in enumerate(body) if x.startswith('v_exp'))
                body = body[:le + 1] + ['s_sub_u32 s59, s59, 1', 's_cmp_lg_u32 s59, 0'] + body[le + 1:]
            if peel and u == 3:
                body += ['s_waitcnt vmcnt(10)', 's_barrier', rd(KF, 2, 0), rd(KF + 4, 2, 1), rd(VF, 2, 2), 's_waitcnt lgkmcnt(1)', qk(0, 0), qk(0, 1)]
            iq = body.index(qk(1 - q, 1))
            first_e = min(i for i, x in enumerate(body) if x.startswith('v_exp'))
            gap = len(body) - 1 - iq + first_e
            if gap < 12: body.append('s_nop %d' % (11 - gap))
            if first and AOWN and u == (0 if AOWN == 3 else 2): late_start()
            seq = list(head)
            for x in body:
                seq.append(x)
                if xs and x.startswith('v_exp'):
                    y = xs.pop(0)
                    if y: seq.append(y)
            assert not xs
            AX = os.environ.get('AX', '')
            if 'b' in AX: seq = [x for x in seq if x != 's_barrier']
            if 'p' in AX: seq = [x for x in seq if 's62 offen' not in x and 's[80:83]' not in x]
            if 'v' in AX: seq = [x for x in seq if 'buffer_load' not in x]
            if 'd' in AX: seq = [x for x in seq if not x.startswith('ds_read') and 'lgkmcnt' not in x]
            if 'l' in AX: seq = [x for x in seq if '16x16x32' not in x]
            for x in seq: k.e(x)
    iteration(True, env('ASOFT', 8), os.environ.get('APAT0', 'eQPLeeeeeeecccc'))
    k.label(lp)
    iteration(False, 0, None)
    k.e('s_cbranch_scc1 %s' % lp)
    if LASTB:
        iteration(False, 0, None, last=True)
        k.e('s_nop 0')
    k.label('L_attn_epi')
    if 'b' in os.environ.get('AX', ''): k.e('s_barrier')
    mark(k, 3)
    k.e('s_nop 0')
    k.e(pv(1, 1)); k.e(ls(1, 1))
    if LASTB:
        k.e("""
        s_lshl_b32 s58, s48, 13
        s_add_u32 s58, s58, s55
        s_add_u32 s58, s58, 8192
        v_add_u32 v2, s58, v%d
        v_lshl_add_u32 v4, v1, 2, s58
        s_xor_b32 s58, s58, 0x10000
        v_add_u32 v3, s58, v%d
        v_lshl_add_u32 v5, v1, 2, s58
        s_nop 3
        """ % (A0, A0))
    else:
        k.e("""
        s_mul_i32 s58, s3, 5120
        v_add_u32 v2, s58, v%d
        v_lshl_add_u32 v4, v1, 2, s58
        s_xor_b32 s58, s3, 4
        s_mul_i32 s58, s58, 5120
        v_add_u32 v3, s58, v%d
        v_lshl_add_u32 v5, v1, 2, s58
        s_waitcnt vmcnt(0) lgkmcnt(0)
        s_barrier
        s_nop 3
        """ % (A0, A0))
    for r in range(4): k.e('ds_write_b128 v2, %s offset:%d' % (vr(O2[1] + 4 * r, 4), r * 1024))
    k.e('ds_write_b32 v4, v%d offset:4096' % L2[1])
    srd(k, 40, 'ws', WS_O, 4 * MB)
    k.e('s_waitcnt lgkmcnt(0)')
    k.e('s_barrier')
    for r in range(4): k.e('ds_read_b128 %s, v3 offset:%d' % (vr(S2[0] + 4 * r, 4), r * 1024))
    k.e('ds_read_b32 v%d, v5 offset:4096' % T)
    k.e('s_waitcnt lgkmcnt(0)')
    O = O2[0]; L = L2[0]; SA = S2[0]; NEGM = N2[0]
    for r in range(0, 16, 2): k.e(pk('add', O + r, O + r, SA + r))
    k.e('v_add_f32 v%d, v%d, v%d' % (L, L, T))
    lstore = 'L_attn_store'; lsafe = 'L_attn_safe'
    k.e('v_max3_f32 v%d, |v%d|, |v%d|, |v%d|' % (T, O, O + 1, L))
    for r in range(2, 16, 2): k.e('v_max3_f32 v%d, |v%d|, |v%d|, v%d' % (T, O + r, O + r + 1, T))
    k.e('v_mul_f32 v%d, 0, v%d' % (T2, L))
    for r in range(16): k.e('v_fma_f32 v%d, 0, v%d, v%d' % (T2, O + r, T2))
    k.e('v_add_f32 v%d, v%d, v%d' % (T, T, T2))
    k.e('v_mov_b32 v3, %s' % hx(2.0 ** 120))
    k.e('v_cmp_nlt_f32 vcc, v%d, v3' % T)
    k.e('s_nop 4')
    k.e('s_cbranch_vccnz %s' % lsafe)
    k.label(lstore)
    k.e('v_rcp_f32 v%d, v%d' % (T2, L))
    k.e('s_nop 0')
    for r in range(0, 16, 2): k.e(pk('mul', O + r, O + r, (T2,)))
    for d in range(8): k.e('v_cvt_pk_bf16_f32 v%d, v%d, v%d' % (P + d, O + 2 * d, O + 2 * d + 1))
    k.e('buffer_store_dwordx4 %s, v%d, s[40:43], s54 offen%s' % (vr(P, 4), A0, WT))
    k.e('buffer_store_dwordx4 %s, v%d, s[40:43], s54 offen offset:1024%s' % (vr(P + 4, 4), A0, WT))
    signal(k, 'S')
    endpgm(k)
    for blk in ool:
        for x in blk: k.e(x)
    k.label(lsafe)
    srd(k, 36, 'ws', WS_KV, 256 * KB, soff='s52')
    def gl(dst, off): return 'buffer_load_dwordx4 %s, v%d, s[36:39], s56 offen offset:%d sc1' % (vr(dst, 4), A0, off)
    k.e('s_mov_b32 s56, 0')
    k.e('v_mov_b32 v%d, 0xff800000' % M)
    k.label(lsafe + '1')
    k.e(gl(KF, 0)); k.e(gl(KF + 4, 1024))
    k.e('s_waitcnt vmcnt(0)')
    k.e(qk(0, 0, '0')); k.e(qk(0, 1))
    k.e('s_nop 15')
    for r in range(0, 16, 2): k.e('v_max3_f32 v%d, v%d, v%d, v%d' % (M, M, SA + r, SA + r + 1))
    k.e('s_add_u32 s56, s56, 4096')
    k.e('s_cmp_lt_u32 s56, %d' % (256 * KB))
    k.e('s_cbranch_scc1 %s1' % lsafe)
    k.e('v_mov_b32 v%d, v%d' % (T, M))
    k.e('s_nop 1')
    k.e('v_permlane32_swap_b32 v%d, v%d' % (M, T))
    k.e('s_nop 1')
    k.e('v_max_f32 v%d, v%d, v%d' % (M, M, T))
    k.e('v_sub_f32 v%d, 0, v%d' % (NEGM, M))
    for r in range(1, 16): k.e('v_mov_b32 v%d, v%d' % (NEGM + r, NEGM))
    for r in range(16): k.e('v_mov_b32 v%d, 0' % (O + r))
    for r in range(4): k.e('v_mov_b32 v%d, 0' % (L + r))
    k.e('s_mov_b32 s56, 0')
    k.label(lsafe + '2')
    k.e(gl(KF, 0)); k.e(gl(KF + 4, 1024)); k.e(gl(VF, 2048)); k.e(gl(VF + 4, 3072))
    k.e('s_waitcnt vmcnt(0)')
    k.e(qk(0, 0)); k.e(qk(0, 1))
    k.e('s_nop 15')
    for r in range(16): k.e('v_exp_f32 v%d, v%d' % (SA + r, SA + r))
    k.e('s_nop 0')
    for d in range(8): k.e('v_cvt_pk_bf16_f32 v%d, v%d, v%d' % (P + d, SA + 2 * d, SA + 2 * d + 1))
    k.e('s_nop 1')
    k.e(pv(0, 0)); k.e(ls(0, 0)); k.e(pv(0, 1)); k.e(ls(0, 1))
    k.e('s_add_u32 s56, s56, 4096')
    k.e('s_nop 7')
    k.e('s_cmp_lt_u32 s56, %d' % (256 * KB))
    k.e('s_cbranch_scc1 %s2' % lsafe)
    k.e('s_nop 15')
    k.e('s_branch %s' % lstore)
    k.need(MSV + 8, 160 * KB)

PHASES = dict(p0=k_p0, qkv=k_qkv, attn=k_attn2 if AT2 else k_attn,
              wo=lambda k, c: k_proj(k, c, 1024, ('xf', WS_O, 1024), 'wo', False),
              win=k_win, wsp=k_wsp,
              wout=lambda k, c: k_proj(k, c, 1792, ('xf', WS_U2, 1792), 'w_out', True))
GROUPS = [g.split('+') for g in os.environ.get('GRP', 'p0+qkv+attn+wo+win+wsp+wout').split(',')]
def same_kernel(a, b): return any(a in g_ and b in g_ for g_ in GROUPS)
def build():
    ks = []
    for grp in GROUPS:
        k = Kern(grp[0] if len(grp) == 1 else 'm' + grp[0], 256, 1024 if grp[0] == 'pre' else 512, 0)
        prologue(k)
        for i, ph in enumerate(grp):
            c = Ctx(); c.name = ph; c.first = i == 0; c.last = i == len(grp) - 1; c.nxt = None if c.last else grp[i + 1]; c.prev = grp[i - 1] if i else None
            PHASES[ph](k, c)
        k.label(k.endl)
        k.e('s_endpgm')
        assert k.lds <= 160 * KB
        ks.append(k)
    s = '; adaLN + softmax MHA + gMLP block, generated by gen.py (hand-written generator)\n'
    for k in ks: s += k.launch()
    s += '.amdgcn_target "amdgcn-amd-amdhsa--gfx950"\n.text\n'
    for k in ks: s += k.text()
    s += 'L_text_end:\n    s_endpgm\n'
    s += '.section .rodata,"a"\n'
    for k in ks: s += k.desc()
    if len(ks) == 1 and env('SINGLE', 0):
        s = s.replace('; @launch kernel=%s_kernel ' % ks[0].name, '; @launch ')
        s = s.replace(ks[0].name + '_kernel', 'adaLN_cond__softmax_full_mha__mixer_gmlp__prompt_kernel')
    return s

PROMO = ('v_exp_f32', 'v_rcp_f32', 'v_mov_b32', 'v_add_f32', 'v_mul_f32', 'v_sub_f32', 'v_max_f32', 'v_lshlrev_b32', 'v_lshrrev_b32',
         'v_and_b32', 'v_xor_b32', 'v_or_b32', 'v_add_u32', 'v_fmac_f32', 'v_min_u32', 'v_max_u32', 'v_rsq_f32', 'v_sqrt_f32')
def align8(text):
    import subprocess, tempfile, re
    lines = text.split('\n')
    i0 = next(i for i, l in enumerate(lines) if l.endswith('_kernel:')); i1 = next(i for i, l in enumerate(lines) if l.startswith('.section'))
    idx = [i for i in range(i0, i1) if lines[i].strip() and not lines[i].strip().startswith((';', '.')) and not lines[i].strip().endswith(':')]
    with tempfile.TemporaryDirectory() as d:
        open(d + '/a.s', 'w').write(text)
        subprocess.check_call(['clang', '-x', 'assembler', '-target', 'amdgcn-amd-amdhsa', '-mcpu=gfx950', '-c', d + '/a.s', '-o', d + '/a.o'])
        dis = subprocess.check_output(['llvm-objdump', '-d', '--mcpu=gfx950', d + '/a.o'], text=True)
    sz = [4 * len(m.group(1).split()) for m in re.finditer(r'// [0-9A-F]{12}: ([0-9A-F ]+)', dis)]
    assert len(sz) == len(idx), (len(sz), len(idx))
    off = 0; ins = {}; npro = nnop = 0
    MINRUN = env('MINRUN', 8)
    for n, i in enumerate(idx):
        if sz[n] == 8 and off % 8 == 4:
            p = n - 1; done = False
            while p >= 0 and sz[p] == 4:
                op = lines[idx[p]].split()[0]
                if op in PROMO:
                    lines[idx[p]] = lines[idx[p]].replace(op, op + '_e64', 1); sz[p] = 8; off += 4; done = True; npro += 1
                    break
                p -= 1
            if not done:
                r = 0
                while n + r < len(sz) and sz[n + r] == 8: r += 1
                prev = lines[idx[n - 1]].split()[0]
                if r >= MINRUN and prev != 's_getpc_b64':
                    ins[i] = '    s_nop 0'; off += 4; nnop += 1
        off += sz[n]
    out = []
    for i, l in enumerate(lines):
        if i in ins: out.append(ins[i])
        out.append(l)
    print('align8: %d widened, %d nops' % (npro, nnop))
    return '\n'.join(out)

if __name__ == '__main__':
    out = sys.argv[1] if len(sys.argv) > 1 else 'adaLN_cond__softmax_full_mha__mixer_gmlp__prompt.s'
    txt = build()
    if env('AL8', 1): txt = align8(txt)
    open(out, 'w').write(txt)
    print('wrote', out)
```

```python
import sys, struct, os
STAMP = int(os.environ.get('STAMP', '0'))
WS_STAMP = 128 << 20
KIDX = [0]
def env(n, d): return int(os.environ.get(n, d))

MB = 1 << 20
KB = 1024
WS_MOD = 0
WS_UW  = 32 * KB
WS_ST0 = 64 * KB
WS_MODP = 128 * KB
WS_MODT = 768 * KB
TAGP = env('TAGP', 1)
WS_SC = 96 * KB
WS_MODQ = 160 * KB
WS_ST1 = 256 * KB
WS_G   = 512 * KB
WS_FL  = 58 * MB
FLSZ = 2 * MB
FL_LN1, FL_QKV, FL_ATT, FL_WO, FL_WIN, FL_WSP, FL_MOD = [i * 8 * KB for i in range(7)]
WS_EPOCH = 240 * KB
AUX_A = 128 * KB; AUX_B = 148 * KB
WS_H   = 1 * MB
WS_Q   = 5 * MB
WS_KV  = 9 * MB
WS_N   = 60 * MB
WS_O   = 17 * MB
WS_X1  = 21 * MB
WS_X1S = 25 * MB
WS_Z   = 29 * MB
ZSZ = 2048 * 1792 * 2
WS_Z2N = WS_Z + ZSZ
WS_U2  = 50 * MB
if env('ALIAS', 0):
    WS_Q = 1 * MB; WS_KV = 5 * MB; WS_H = 13 * MB
    WS_O = WS_H; WS_X1 = WS_Q; WS_X1S = WS_KV
    WS_Z2N = 9 * MB; WS_Z = 17 * MB; WS_U2 = WS_Z
ZB = min(WS_Z, WS_Z2N)

ROLES = {'pre': [('mod', 0, 128, 0, 16), ('stats', 128, 256, 0, 16)], 'ln1': [('pf', 0, 256, 0, 4), ('ln', 0, 256, 4, 8)],
         'attn': [('main', 0, 256, 0, 8)]}
for _n in ('qkv', 'wo', 'wout'): ROLES[_n] = [('load', 0, 256, 0, 4), ('comp', 0, 256, 4, 8)]
for _n in ('win', 'wsp'): ROLES[_n] = [('load', 0, 224, 0, 4), ('comp', 0, 224, 4, 8), ('pf', 224, 256, 0, 8)]
def f2u(f): return struct.unpack('<I', struct.pack('<f', f))[0]
def hx(f): return '0x%08x' % f2u(f)
LOG2E = 1.4426950408889634
WT = os.environ.get('WTF', ' sc1')

class Kern:
    def __init__(self, name, grid, block, lds):
        self.name = name; self.grid = grid; self.block = block; self.lds = lds
        self.lines = []; self.vgpr = 0; self.nlab = 0
    def e(self, s):
        for l in s.strip('\n').split('\n'):
            l = l.strip()
            if l: self.lines.append('    ' + l)
    def label(self, l):
        if env('ALIGN', 0) and ('_loop' in l or '_lloop' in l):
            self.lines.append('.p2align %d' % env('ALIGN', 0))
            for _ in range(env('ALOFF', 0)): self.lines.append('    s_nop 0')
        self.lines.append(l + ':')
    def newlabel(self, base):
        self.nlab += 1
        return 'L_%s_%s%d' % (self.name, base, self.nlab)
    def need(self, vgpr, lds):
        self.vgpr = max(self.vgpr, vgpr); self.lds = max(self.lds, lds)
    def text(self):
        GX = os.environ.get('GX', '')
        if self.name != 'pre':
            if 'm' in GX: self.lines = [l for l in self.lines if 'v_mfma' not in l]
            if 'l' in GX: self.lines = [l for l in self.lines if not (' lds' in l and 'buffer_load' in l and ('s57' in l or 's58' in l))]
            if 'r' in GX: self.lines = [l for l in self.lines if not ('ds_read_b64_tr' in l)]
        if os.environ.get('NOLDSC'):
            self.lines = [l.replace(' sc1 lds', ' lds') for l in self.lines]
        n = self.name + '_kernel'
        return '.globl %s\n.p2align 8\n.type %s,@function\n%s:\n' % (n, n, n) + '\n'.join(self.lines) + '\n'
    def desc(self):
        n = self.name + '_kernel'
        v = self.vgpr
        acc = (v + 3) // 4 * 4
        return ('.p2align 6\n.amdhsa_kernel %s\n  .amdhsa_next_free_vgpr %d\n  .amdhsa_next_free_sgpr 102\n'
                '  .amdhsa_accum_offset %d\n  .amdhsa_group_segment_fixed_size 0\n  .amdhsa_kernarg_size 104\n'
                '  .amdhsa_user_sgpr_count 2\n  .amdhsa_user_sgpr_kernarg_segment_ptr 1\n'
                '  .amdhsa_system_sgpr_workgroup_id_x 1\n.end_amdhsa_kernel\n' % (n, v, acc))
    def launch(self):
        return '; @launch kernel=%s_kernel grid=(%d,1,1) block=(%d,1,1) lds=%d\n' % (self.name, self.grid, self.block, self.lds)

PTR = dict(x=4, wqkv=6, wo=8, bx=10, w_in=12, w_sp=14, b_sp=16, w_out=18, c=20, w_mod=22, out=24, dbg=26, ws=28)
SIZES = dict(x=2048*1024*2, wqkv=1024*3072*2, wo=1024*1024*2, w_in=1024*3584*2, w_sp=2048*2048*2, b_sp=2048*2,
             w_out=1792*1024*2, c=2048, w_mod=1024*6144*2, out=2048*1024*2, dbg=256)

class Ctx: pass
PHIDX = {}
def prologue(k):
    k.endl = 'L_%s_end' % k.name
    k.e("""
    s_load_dwordx16 s[4:19], s[0:1], 0
    s_load_dwordx8 s[20:27], s[0:1], 64
    s_load_dwordx2 s[28:29], s[0:1], 96
    s_cmp_ge_u32 s2, %d
    s_cbranch_scc1 %s
    v_lshrrev_b32 v1, 6, v0
    s_nop 0
    v_readfirstlane_b32 s3, v1
    """ % (k.grid, k.endl))

def phase_begin(k, c):
    k.c = c
    k.label('L_%s_entry' % c.name)
    if env('IDLE_' + c.name, 0):
        for _ in range(env('IDLE_' + c.name, 0)): k.e('s_sleep 36')
    c.kidx = KIDX[0]; KIDX[0] += 1
    PHIDX[c.name] = c.kidx
    if env('PADTO', 0) and c.first: k.e('s_memrealtime s[90:91]')
    if env('DBG', 0) and c.first: dbgstamp(k, 0 if c.name == 'pre' else 10, 512 if c.name == 'pre' else 0, '')
    if STAMP:
        k.e('s_memtime s[88:89]')
        k.e('s_memrealtime s[90:91]')
        for i in range(4): k.e('s_mov_b64 s[%d:%d], 0' % (72 + 2 * i, 73 + 2 * i))

def dbgstamp(k, idx, off, op):
    l = k.newlabel('dbg')
    k.e('''
    s_lshl_b32 s80, s2, 4
    s_add_u32 s80, s80, s3
    s_cmp_lg_u32 s80, %d
    s_cbranch_scc1 %s
    s_waitcnt lgkmcnt(0)
    s_memrealtime s[92:93]
    s_add_u32 s80, s26, %d
    s_addc_u32 s81, s27, 0
    s_and_b32 s81, s81, 0xffff
    s_mov_b32 s82, 256
    s_mov_b32 s83, 0x20000
    s_mov_b64 exec, 1
    s_waitcnt lgkmcnt(0)
    v_mov_b32 v2, s92
    v_mov_b32 v5, %d
    buffer_store_dword v2, v5, s[80:83], 0 offen
    s_mov_b64 exec, -1
    ''' % (5 * 16 + 4, l, off, idx * 4))
    k.label(l)
def endpgm(k):
    c = k.c
    if env('DBG', 0): dbgstamp(k, 1 + c.kidx, 512 if c.name == 'pre' else 0, '')
    if STAMP:
        k.e("""
        s_waitcnt vmcnt(0) lgkmcnt(0)
        s_memtime s[92:93]
        s_memrealtime s[94:95]
        s_mov_b64 exec, 1
        s_add_u32 s80, s28, 0x%x
        s_addc_u32 s81, s29, 0
        s_and_b32 s81, s81, 0xffff
        s_mov_b32 s82, 0x100000
        s_mov_b32 s83, 0x20000
        s_lshl_b32 s86, s2, 4
        s_add_u32 s86, s86, s3
        s_lshl_b32 s86, s86, 5
        s_waitcnt lgkmcnt(0)
        v_mov_b32 v4, s90
        v_mov_b32 v5, s94
        v_mov_b32 v6, s88
        v_mov_b32 v7, s92
        v_mov_b32 v8, s72
        v_mov_b32 v9, s74
        v_mov_b32 v10, s76
        v_mov_b32 v11, s78
        v_mov_b32 v2, s86
        buffer_store_dwordx4 v[4:7], v2, s[80:83], 0 offen
        buffer_store_dwordx4 v[8:11], v2, s[80:83], 0 offen offset:16
        s_waitcnt vmcnt(0)
        """ % (WS_STAMP + c.kidx * (1 << 20)))
    if c.last and env('PADTO', 0):
        l = k.newlabel('pad')
        k.label(l)
        k.e('s_memrealtime s[92:93]\ns_waitcnt lgkmcnt(0)\ns_sub_u32 s92, s92, s90\ns_cmp_lt_u32 s92, %d\ns_cbranch_scc1 %s' % (env('PADTO', 0) * 100, l))
    if c.last: k.e('s_endpgm')
    else:
        k.e('s_mov_b64 exec, -1')
        k.e('s_setprio 0')
        k.e('s_branch L_%s_entry' % c.nxt)
def mark(k, i=0):
    if STAMP:
        k.e('s_memtime s[%d:%d]' % (72 + 2 * i, 73 + 2 * i))
        k.e('s_waitcnt lgkmcnt(0)')

def set_flag(k, setup):
    if not k.c.last:
        k.e(setup)
        k.e('s_lshl_b32 s87, s100, 5')
def OWNF(n): return n in os.environ.get('OWN', 'none').split(',')
ZOWN = env('ZOWN', 1)
FV = 252
def flag_store(k, soff):
    k.e('s_mov_b64 exec, 1')
    k.e('buffer_store_dwordx2 %s, v%d, s[96:99], %s offen sc1' % (vr(FV, 2), FV + 2, soff))
    k.e('s_mov_b64 exec, -1')
def flag_prep(k):
    srd(k, 96, 'ws', WS_FL, FLSZ)
    k.e('v_mov_b32 v%d, s84' % FV); k.e('v_mov_b32 v%d, s85' % (FV + 1)); k.e('v_mov_b32 v%d, 0' % (FV + 2))
    k.need(FV + 3, 0)
def signal(k, role='L', keep=0):
    if k.c.last: return
    if role in ('C', 'S'): flag_prep(k)
    if role == 'C':
        k.e('s_and_b32 s100, s3, 3')
        k.e('s_lshl_b32 s100, s100, 7')
        k.e('s_add_u32 s100, s100, s87')
    if role == 'C' and env('SM', 0): mark(k, 3)
    k.e('s_waitcnt vmcnt(%d)' % keep)
    if role == 'C' and env('SM', 0): mark(k, 0)
    if role == 'C':
        flag_store(k, 's100')
        if OWNF(k.c.nxt): k.e('s_barrier')
    elif role == 'A' and OWNF(k.c.nxt) and k.c.nxt == 'wout':
        l = k.newlabel('sg')
        k.e('s_cmp_lt_u32 s3, 4'); k.e('s_cbranch_scc1 %s' % l); k.e('s_barrier'); k.label(l)
    elif role == 'S':
        l = k.newlabel('sg')
        k.e('s_barrier')
        k.e('s_cmp_lg_u32 s3, 7'); k.e('s_cbranch_scc1 %s' % l)
        flag_store(k, 's87')
        k.label(l)
POLLW = env('POLLW', 4)
def handoff(k, setup, n, role='L', force=False, slp=None):
    if (k.c.first and not force) or not n: return
    if role == 'A' or (role == 'C') == (POLLW >= 4):
        ld = k.newlabel('wd')
        if n <= 64:
            k.e('s_cmp_lg_u32 s3, %d' % POLLW)
            k.e('s_cbranch_scc1 %s' % ld)
        else:
            assert n == 128
            k.e('s_sub_u32 s101, s3, %d' % POLLW)
            k.e('s_cmp_gt_u32 s101, 1')
            k.e('s_cbranch_scc1 %s' % ld)
        srd(k, 96, 'ws', WS_FL, FLSZ)
        k.e(setup)
        k.e('s_lshl_b32 s100, s100, 5')
        if n > 64:
            k.e('s_lshl_b32 s101, s101, 13')
            k.e('s_add_u32 s100, s100, s101')
        k.e('v_lshlrev_b32 v%d, 7, v1' % (FV + 2))
        k.e('s_mov_b32 s101, 0x100000')
        if n < 64: k.e('s_bfm_b64 exec, %d, 0' % n)
        k.need(FV + 3, 0)
        PP = env('PPIPE', 0)
        if PP:
            lp = k.newlabel('wf'); le = k.newlabel('we')
            B = [FV, FV - 2, FV - 4][:PP]
            ldp = lambda b: 'buffer_load_dwordx2 %s, v%d, s[96:99], s100 offen sc1' % (vr(b, 2), FV + 2)
            for b in B[:-1]:
                k.e(ldp(b)); k.e('s_sleep %d' % env('PGAP', 5))
            k.label(lp)
            for i_ in range(PP):
                k.e(ldp(B[i_ - 1]))
                k.e('s_waitcnt vmcnt(%d)' % (PP - 1))
                k.e('v_cmp_ne_u64 vcc, s[84:85], %s' % vr(B[i_], 2))
                k.e('s_nop 4')
                k.e('s_cbranch_vccz %s' % le)
            k.e('s_sub_u32 s101, s101, 1')
            k.e('s_cmp_lg_u32 s101, 0')
            k.e('s_cbranch_scc1 %s' % lp)
        else:
            lp = k.newlabel('wf'); le = k.newlabel('we')
            k.label(lp)
            k.e('buffer_load_dwordx2 %s, v%d, s[96:99], s100 offen sc1' % (vr(FV, 2), FV + 2))
            k.e('s_waitcnt vmcnt(0)')
            k.e('v_cmp_ne_u64 vcc, s[84:85], %s' % vr(FV, 2))
            k.e('s_sub_u32 s101, s101, 1')
            k.e('s_nop 3')
            k.e('s_cbranch_vccz %s' % le)
            if env('PMASK', 1): k.e('s_mov_b64 exec, vcc')
            if slp is None: slp = env('PSLEEP', 1)
            if slp: k.e('s_sleep %d' % slp)
            k.e('s_cmp_lg_u32 s101, 0')
            k.e('s_cbranch_scc1 %s' % lp)
        k.label(le)
        k.e('s_mov_b64 exec, -1')
        k.label(ld)
    k.e('s_barrier')

def handoff_multi(k, polls):
    ld = k.newlabel('wd'); lgo = k.newlabel('wg')
    srd(k, 96, 'ws', WS_FL, FLSZ)
    for w, setup, n in polls:
        ln = k.newlabel('wn')
        k.e('s_cmp_lg_u32 s3, %d' % w)
        k.e('s_cbranch_scc1 %s' % ln)
        k.e(setup)
        k.e('v_min_u32 v%d, %d, v1' % (FV + 2, n - 1))
        k.e('s_branch %s' % lgo)
        k.label(ln)
    k.e('s_branch %s' % ld)
    k.label(lgo)
    k.e('s_lshl_b32 s100, s100, 5')
    k.e('v_lshlrev_b32 v%d, 7, v%d' % (FV + 2, FV + 2))
    k.e('s_mov_b32 s101, 0x100000')
    lp = k.newlabel('wf')
    k.label(lp)
    k.e('buffer_load_dwordx2 %s, v%d, s[96:99], s100 offen sc1' % (vr(FV, 2), FV + 2))
    k.e('s_waitcnt vmcnt(0)')
    k.e('v_cmp_ne_u64 vcc, s[84:85], %s' % vr(FV, 2))
    k.e('s_sub_u32 s101, s101, 1')
    k.e('s_nop 3')
    k.e('s_cbranch_vccz %s' % ld)
    k.e('s_sleep %d' % env('P0SLEEP', 2))
    k.e('s_cmp_lg_u32 s101, 0')
    k.e('s_cbranch_scc1 %s' % lp)
    k.label(ld)
    k.e('s_barrier')

def mod_table(k, R, between=None, nb=0):
    srd(k, 40, 'ws', 0, 256 * KB)
    k.e('v_lshlrev_b32 v%d, 4, v0' % (R + 16))
    for q in range(4):
        k.e('s_mov_b32 s48, %d' % (WS_MODP + q * 8192))
        k.e('buffer_load_dwordx4 %s, v%d, s[40:43], s48 offen sc1' % (vr(R + 4 * q, 4), R + 16))
    if between: between()
    k.e('s_cmp_lt_u32 s3, 4')
    k.e('s_cselect_b32 s49, 0, 1.0')
    k.e('v_add_u32 v%d, %d, v%d' % (R + 16, AUX_A, R + 16))
    k.e('s_waitcnt vmcnt(%d)' % nb)
    k.e(pk('add', R, R, R + 4)); k.e(pk('add', R + 2, R + 2, R + 6)); k.e(pk('add', R + 8, R + 8, R + 12)); k.e(pk('add', R + 10, R + 10, R + 14))
    k.e(pk('add', R, R, R + 8)); k.e(pk('add', R + 2, R + 2, R + 10))
    for d in range(2): round_bf16_pair(k, R + 2 * d, R + 2 * d + 1, R + 4)
    for q in range(4): k.e('v_add_f32 v%d, s49, v%d' % (R + q, R + q))
    for d in range(2): round_bf16_pair(k, R + 2 * d, R + 2 * d + 1, R + 4)
    k.e('ds_write_b128 v%d, %s' % (R + 16, vr(R, 4)))
    k.e('s_waitcnt lgkmcnt(0)')
    k.e('s_barrier')

def poll_back(k, lp):
    l = k.newlabel('pd')
    k.e('s_sub_u32 s101, s101, 1')
    k.e('s_nop 3')
    k.e('s_cbranch_vccz %s' % l)
    k.e('s_cmp_lg_u32 s101, 0')
    k.e('s_cbranch_scc1 %s' % lp)
    k.label(l)
def poll_init(k): k.e('s_mov_b32 s101, 0x100000')

def srd(k, d, what, off=0, size=None, soff=None):
    p = PTR[what]
    if what == 'ws': off += env('WSB', 0) * MB
    if size is None: size = SIZES[what]
    if off or soff:
        k.e('s_add_u32 s%d, s%d, 0x%x' % (d, p, off))
        k.e('s_addc_u32 s%d, s%d, 0' % (d + 1, p + 1))
        if soff:
            k.e('s_add_u32 s%d, s%d, %s' % (d, d, soff))
            k.e('s_addc_u32 s%d, s%d, 0' % (d + 1, d + 1))
        k.e('s_and_b32 s%d, s%d, 0xffff' % (d + 1, d + 1))
    else:
        k.e('s_mov_b32 s%d, s%d' % (d, p))
        k.e('s_and_b32 s%d, s%d, 0xffff' % (d + 1, p + 1))
    k.e('s_mov_b32 s%d, 0x%x' % (d + 2, size))
    k.e('s_mov_b32 s%d, 0x20000' % (d + 3))

def finish(k):
    endpgm(k)

XT = env('XT', 0)
AOWN = env('AOWN', 3)
AT2 = env('AT2', 1)
MP0 = env('MP0', 1)
CPF = env('CPF', 1)
def code_pf(k, start, end, maxbytes, lane=1, vt=6, vd=7, sb=84):
    if not CPF: return 0
    h = k.newlabel('pc')
    k.e('s_getpc_b64 s[%d:%d]' % (sb, sb + 1))
    k.label(h)
    k.e('s_add_u32 s%d, s%d, %s-%s' % (sb, sb, start, h))
    k.e('s_addc_u32 s%d, s%d, 0' % (sb + 1, sb + 1))
    n = (maxbytes + 8191) // 8192
    for i in range(n):
        k.e('v_lshlrev_b32 v%d, 7, v%d' % (vt, lane))
        if i: k.e('v_add_u32 v%d, %d, v%d' % (vt, i * 8192, vt))
        k.e('v_min_u32 v%d, %s-%s-4, v%d' % (vt, end, start, vt))
        k.e('global_load_dword v%d, v%d, s[%d:%d]' % (vd, vt, sb, sb + 1))
    return n

def vr(b, n): return 'v[%d:%d]' % (b, b + n - 1)
def sr(b): return 's[%d:%d]' % (b, b + 3)

def round_bf16_pair(k, a, b, tmp):
    k.e('v_cvt_pk_bf16_f32 v%d, v%d, v%d' % (tmp, a, b))
    k.e('v_lshlrev_b32 v%d, 16, v%d' % (a, tmp))
    k.e('v_and_b32 v%d, 0xffff0000, v%d' % (b, tmp))

def red_lanes(k, regs, tmp, rors=(8,)):
    for ro in rors:
        k.e('s_nop 1')
        for r in regs:
            k.e('v_add_f32_dpp v%d, v%d, v%d row_ror:%d row_mask:0xf bank_mask:0xf' % (r, r, r, ro))
    for op in ('v_permlane16_swap_b32', 'v_permlane32_swap_b32'):
        for r, t in zip(regs, tmp): k.e('v_mov_b32 v%d, v%d' % (t, r))
        k.e('s_nop 1')
        for r, t in zip(regs, tmp): k.e('%s v%d, v%d' % (op, r, t))
        k.e('s_nop 1')
        for r, t in zip(regs, tmp): k.e('v_add_f32 v%d, v%d, v%d' % (r, r, t))

def unpack(k, lo, hi, src):
    k.e('v_lshlrev_b32 v%d, 16, v%d' % (lo, src))
    k.e('v_and_b32 v%d, 0xffff0000, v%d' % (hi, src))

def k_p0(k, c):
    phase_begin(k, c)
    KIDX[0] += 1
    assert c.first and not c.last
    lst = 'L_p0_stats'
    def rest_issue():
        srd(k, 52, 'w_mod'); srd(k, 56, 'c')
        k.e("""
        v_lshrrev_b32 v164, 3, v0
        v_lshlrev_b32 v165, 4, v164        ; c byte offset = g*16
        v_mul_u32_u24 v164, %d, v164
        v_and_b32 v166, 7, v0
        v_lshl_add_u32 v164, v166, 4, v164
        s_lshr_b32 s60, s30, 1             ; col block
        s_and_b32 s61, s30, 1              ; k half
        s_lshl_b32 s62, s60, 7
        s_mul_i32 s63, s61, %d
        s_add_u32 s62, s62, s63
        s_add_u32 s62, s62, 4096
        s_lshl_b32 s63, s61, 10
        buffer_load_dwordx4 v[128:131], v165, s[56:59], s63 offen
        """ % (8 * 12288, 512 * 12288))
        for j in range(8):
            k.e('buffer_load_dwordx4 %s, v164, s[52:55], s62 offen' % vr(132 + 4 * j, 4))
            k.e('s_add_u32 s62, s62, 12288')
        k.need(192, 0)
    def rest_compute(newer):
        S_ = 168; T_ = 176; A_ = 184
        k.e('s_waitcnt vmcnt(%d)' % (8 + newer))
        for j in range(4): unpack(k, S_ + 2 * j, S_ + 1 + 2 * j, 128 + j)
        for j in range(8): k.e('v_mul_f32 v%d, %s, v%d' % (T_ + j, hx(-LOG2E), S_ + j))
        for j in range(8): k.e('v_exp_f32 v%d, v%d' % (T_ + j, T_ + j))
        for j in range(8): k.e('v_add_f32 v%d, 1.0, v%d' % (T_ + j, T_ + j))
        for j in range(8): k.e('v_rcp_f32 v%d, v%d' % (T_ + j, T_ + j))
        for j in range(8): k.e('v_mul_f32 v%d, v%d, v%d' % (S_ + j, S_ + j, T_ + j))
        for j in range(4): round_bf16_pair(k, S_ + 2 * j, S_ + 1 + 2 * j, T_)
        for j in range(8):
            k.e('s_waitcnt vmcnt(%d)' % (7 - j + newer))
            for d in range(4):
                unpack(k, T_, T_ + 1, 132 + 4 * j + d)
                op = 'v_mul_f32' if j == 0 else 'v_fmac_f32'
                k.e('%s v%d, v%d, v%d' % (op, A_ + 2 * d, T_, S_ + j))
                k.e('%s v%d, v%d, v%d' % (op, A_ + 1 + 2 * d, T_ + 1, S_ + j))
        k.e('s_nop 1')
        for e in range(4): k.e('v_permlane32_swap_b32 v%d, v%d' % (A_ + e, A_ + 4 + e))
        k.e('s_nop 1')
        for e in range(4): k.e('v_add_f32 v%d, v%d, v%d' % (A_ + e, A_ + e, A_ + 4 + e))
        k.e('s_nop 1')
        for e in range(2): k.e('v_permlane16_swap_b32 v%d, v%d' % (A_ + e, A_ + 2 + e))
        k.e('s_nop 1')
        for e in range(2): k.e('v_add_f32 v%d, v%d, v%d' % (A_ + e, A_ + e, A_ + 2 + e))
        k.e('s_nop 1')
        for e in range(2): k.e('v_add_f32_dpp v%d, v%d, v%d row_ror:8 row_mask:0xf bank_mask:0xf' % (A_ + e, A_ + e, A_ + e))
        lw2 = k.newlabel('nw')
        k.e("""
        v_lshlrev_b32 v164, 5, v166
        v_lshrrev_b32 v165, 4, v1
        v_lshl_add_u32 v164, v165, 3, v164
        s_lshl_b32 s62, s3, 8
        s_add_u32 s62, s62, %d
        v_add_u32 v164, s62, v164
        ds_write_b64 v164, v[184:185]
        s_waitcnt lgkmcnt(0)
        s_barrier
        s_cmp_lg_u32 s3, 7
        s_cbranch_scc1 %s
        v_lshlrev_b32 v164, 2, v1
        v_add_u32 v165, %d, v164
        """ % (AUX_A + 8192, lw2, AUX_A + 8192))
        for w in range(8): k.e('ds_read_b32 v%d, v165 offset:%d' % (T_ + w, w * 256))
        k.e("""
        s_lshl_b32 s62, s60, 8
        s_lshl_b32 s63, s61, 14
        s_add_u32 s62, s62, s63
        s_add_u32 s62, s62, %d
        s_waitcnt lgkmcnt(0)
        """ % WS_MODQ)
        for w in range(0, 8, 2): k.e('v_add_f32 v%d, v%d, v%d' % (T_ + w, T_ + w, T_ + w + 1))
        k.e('v_add_f32 v%d, v%d, v%d' % (T_, T_, T_ + 2))
        k.e('v_add_f32 v%d, v%d, v%d' % (T_ + 4, T_ + 4, T_ + 6))
        k.e('v_add_f32 v%d, v%d, v%d' % (T_, T_, T_ + 4))
        k.e('buffer_store_dword v%d, v164, s[40:43], s62 offen%s' % (T_, WT))
        k.label(lw2)
    k.e("""
    v_and_b32 v1, 63, v0               ; lane
    v_lshlrev_b32 v6, 4, v0            ; tid*16
    s_lshr_b32 s30, s2, 4
    s_lshl_b32 s30, s30, 3
    s_and_b32 s47, s2, 7
    s_add_u32 s30, s30, s47            ; index within role (0..127)
    s_bitcmp1_b32 s2, 3
    s_cbranch_scc1 %s
    s_lshr_b32 s48, s30, 2             ; col block
    s_and_b32 s49, s30, 3              ; k quarter
    v_lshrrev_b32 v2, 3, v0            ; row group (0..63): rows 4g..4g+3 (+256*q)
    v_and_b32 v3, 7, v0                ; chunk
    v_lshlrev_b32 v4, 3, v2            ; c byte offset = g*8
    v_mul_u32_u24 v5, %d, v2
    v_lshl_add_u32 v5, v3, 4, v5
    s_lshl_b32 s31, s48, 7
    s_mul_i32 s44, s49, %d
    s_add_u32 s31, s31, s44
    s_lshl_b32 s45, s49, 9
    s_waitcnt lgkmcnt(0)
    s_load_dwordx2 s[84:85], s[28:29], 0x%x
    """ % (lst, 4 * 12288, 256 * 12288, WS_EPOCH + env('WSB', 0) * MB))
    mark(k, 0)
    srd(k, 36, 'w_mod'); srd(k, 32, 'c')
    CL = env('CLAST', 0)
    if not CL: k.e('buffer_load_dwordx2 v[8:9], v4, s[32:35], s45 offen')
    for j in range(4):
        k.e('buffer_load_dwordx4 %s, v5, s[36:39], s31 offen' % vr(12 + 4 * j, 4))
        k.e('s_add_u32 s31, s31, 12288')
    if CL: k.e('buffer_load_dwordx2 v[8:9], v4, s[32:35], s45 offen')
    lnr = k.newlabel('nr'); lnc = k.newlabel('nc')
    k.e('s_cmp_gt_u32 s3, 1')
    k.e('s_cbranch_scc1 %s' % lnr)
    for r in range(4): k.e('v_mov_b32 v%d, -1' % (40 + r))
    for off, size in ((WS_G, 256 * KB), (WS_MOD, 64 * KB)) + (() if MP0 else ((WS_MODQ, 64 * KB),)):
        per = size // 128
        srd(k, 40, 'ws', off, size)
        k.e('s_mul_i32 s45, s30, %d' % per)
        k.e('v_cmp_gt_u32 vcc, %d, v0' % (per // 16))
        k.e('s_and_saveexec_b64 s[46:47], vcc')
        k.e('buffer_store_dwordx4 v[40:43], v6, s[40:43], s45 offen' + WT)
        k.e('s_mov_b64 exec, s[46:47]')
    k.e('s_waitcnt vmcnt(0)')
    k.label(lnr)
    srd(k, 40, 'ws', 0, 256 * KB)
    if CL == 2:
        k.e('s_waitcnt vmcnt(1)'); mark(k, 0)
    k.e('s_waitcnt vmcnt(%d)' % (0 if CL else 4))
    mark(k, 1)
    for j in range(2): unpack(k, 44 + 2 * j, 45 + 2 * j, 8 + j)
    for j in range(4): k.e('v_mul_f32 v%d, %s, v%d' % (52 + j, hx(-LOG2E), 44 + j))
    for j in range(4): k.e('v_exp_f32 v%d, v%d' % (52 + j, 52 + j))
    for j in range(4): k.e('v_add_f32 v%d, 1.0, v%d' % (52 + j, 52 + j))
    for j in range(4): k.e('v_rcp_f32 v%d, v%d' % (52 + j, 52 + j))
    for j in range(4): k.e('v_mul_f32 v%d, v%d, v%d' % (44 + j, 44 + j, 52 + j))
    for j in range(2): round_bf16_pair(k, 44 + 2 * j, 45 + 2 * j, 52)
    lns = k.newlabel('nosc')
    if not MP0: k.e("""
    s_cmp_lg_u32 s48, 0
    s_cbranch_scc1 %s
    v_lshlrev_b32 v7, 4, v2
    s_lshl_b32 s44, s49, 10
    s_add_u32 s44, s44, %d
    buffer_store_dwordx4 v[44:47], v7, s[40:43], s44 offen%s
    s_waitcnt vmcnt(0)
    """ % (lns, WS_SC, WT))
    k.label(lns)
    A = 56
    for j in range(4):
        k.e('s_waitcnt vmcnt(%d)' % (3 - j))
        for d in range(4):
            unpack(k, 52, 53, 12 + 4 * j + d)
            op = 'v_mul_f32' if j == 0 else 'v_fmac_f32'
            k.e('%s v%d, v52, v%d' % (op, A + 2 * d, 44 + j))
            k.e('%s v%d, v53, v%d' % (op, A + 1 + 2 * d, 44 + j))
    mark(k, 2)
    if MP0 == 4: rest_issue()
    k.e('s_nop 1')
    for e in range(4): k.e('v_permlane32_swap_b32 v%d, v%d' % (A + e, A + 4 + e))
    k.e('s_nop 1')
    for e in range(4): k.e('v_add_f32 v%d, v%d, v%d' % (A + e, A + e, A + 4 + e))
    k.e('s_nop 1')
    for e in range(2): k.e('v_permlane16_swap_b32 v%d, v%d' % (A + e, A + 2 + e))
    k.e('s_nop 1')
    for e in range(2): k.e('v_add_f32 v%d, v%d, v%d' % (A + e, A + e, A + 2 + e))
    k.e('s_nop 1')
    for e in range(2): k.e('v_add_f32_dpp v%d, v%d, v%d row_ror:8 row_mask:0xf bank_mask:0xf' % (A + e, A + e, A + e))
    lw = k.newlabel('nw')
    k.e("""
    v_lshlrev_b32 v2, 5, v3
    v_lshrrev_b32 v7, 4, v1
    v_lshl_add_u32 v2, v7, 3, v2
    s_lshl_b32 s44, s3, 8
    s_add_u32 s44, s44, %d
    v_add_u32 v2, s44, v2
    ds_write_b64 v2, v[56:57]
    s_waitcnt lgkmcnt(0)
    s_add_u32 s84, s84, 1
    s_barrier
    s_cmp_lg_u32 s3, 0
    s_cbranch_scc1 %s
    v_lshlrev_b32 v2, 2, v1
    v_add_u32 v7, %d, v2
    """ % (AUX_A, lw, AUX_A))
    for w in range(8): k.e('ds_read_b32 v%d, v7 offset:%d' % (12 + w, w * 256))
    flag_prep(k)
    k.e("""
    s_lshl_b32 s31, s48, 8
    s_lshl_b32 s44, s49, 13
    s_add_u32 s31, s31, s44
    s_add_u32 s31, s31, %d
    s_lshl_b32 s100, s30, 7
    s_add_u32 s100, s100, %d
    s_waitcnt lgkmcnt(0)
    """ % (WS_MODP, FL_MOD * 32))
    for w in range(0, 8, 2): k.e('v_add_f32 v%d, v%d, v%d' % (12 + w, 12 + w, 13 + w))
    k.e('v_add_f32 v12, v12, v14')
    k.e('v_add_f32 v16, v16, v18')
    k.e('v_add_f32 v12, v12, v16')
    if TAGP:
        srd(k, 96, 'ws', WS_MODT, 64 * KB)
        k.e("""
        v_mov_b32 v14, s84
        v_mov_b32 v15, s85
        v_mov_b32_dpp v13, v12 quad_perm:[1,1,3,3] row_mask:0xf bank_mask:0xf
        v_lshlrev_b32 v2, 3, v1
        s_lshl_b32 s31, s48, 9
        s_lshl_b32 s44, s49, 14
        s_add_u32 s31, s31, s44
        s_mov_b32 exec_lo, 0x55555555
        s_mov_b32 exec_hi, 0x55555555
        buffer_store_dwordx4 v[12:15], v2, s[96:99], s31 offen sc1
        s_mov_b64 exec, -1
        """)
    else:
        k.e('buffer_store_dword v12, v2, s[40:43], s31 offen' + WT)
        k.e('s_waitcnt vmcnt(0)')
        flag_store(k, 's100')
    k.label(lw)
    k.e('s_barrier')
    mark(k, 3)
    if env('TLBW', 0):
        lt = k.newlabel('tl')
        for w, (nm, sz) in enumerate((('ws', 64 * MB), ('w_mod', None), ('w_sp', None), ('w_in', None), ('w_out', None), ('wo', None), ('out', None), ('x', None))):
            ln = k.newlabel('tn')
            k.e('s_cmp_lg_u32 s3, %d' % w)
            k.e('s_cbranch_scc1 %s' % ln)
            srd(k, 36, nm, 0, sz)
            k.e('s_branch %s' % lt)
            k.label(ln)
        k.label(lt)
        k.e('s_lshr_b32 s51, s30, 3')
        k.e('s_lshl_b32 s51, s51, 22')
        k.e('s_add_u32 s51, s51, %d' % (65536 - 128))
        k.e('v_lshlrev_b32 v36, 16, v1')
        k.e('buffer_load_dword v37, v36, s[36:39], s51 offen')
    srd(k, 36, 'wqkv')
    k.e('s_lshl_b32 s51, s30, 13')
    k.e('s_add_u32 s51, s51, %d' % (env('NPFE', 0) * MB))
    for p in range(env('NPFQ', 0) - env('NPFE', 0)):
        k.e('buffer_load_dwordx4 v[8:11], v6, s[36:39], s51 offen')
        k.e('s_add_u32 s51, s51, %d' % MB)
    if CPF:
        h = k.newlabel('pc')
        k.e('s_cmp_lg_u32 s3, 2')
        k.e('s_cbranch_scc1 %s' % lnc)
        k.e('s_cmp_ge_u32 s30, 64')
        k.e('s_cbranch_scc1 %s' % lnc)
        k.e('s_getpc_b64 s[64:65]')
        k.label(h)
        k.e('s_add_u32 s64, s64, L_qkv_entry-%s' % h)
        k.e('s_addc_u32 s65, s65, 0')
        k.e('s_lshr_b32 s44, s30, 3')
        k.e('s_lshl_b32 s44, s44, 13')
        k.e('v_lshl_add_u32 v38, v1, 7, s44')
        k.e('v_min_u32 v38, L_text_end-L_qkv_entry-4, v38')
        k.e('global_load_dword v39, v38, s[64:65]')
        k.label(lnc)
    if MP0 == 1:
        rest_issue(); rest_compute(0)
    if MP0 == 4: rest_compute(0)
    k.e('s_waitcnt vmcnt(0)')
    endpgm(k)
    k.label(lst)
    k.e("""
    s_lshl_b32 s44, s3, 12
    v_lshl_add_u32 v3, v1, 4, s44      ; wave*4096 + lane*16
    s_lshl_b32 s31, s30, 15            ; 16 rows * 2048
    s_waitcnt lgkmcnt(0)
    s_load_dwordx2 s[84:85], s[28:29], 0x%x
    """ % (WS_EPOCH + env('WSB', 0) * MB))
    srd(k, 32, 'x')
    if env('XDELAY', 0): k.e('s_waitcnt lgkmcnt(0)')
    for q in range(4): k.e('buffer_load_dwordx4 %s, v3, s[32:35], s31 offen offset:%d' % (vr(8 + 4 * q, 4), q * 1024))
    if MP0 == 2: rest_issue()
    NE = env('NPFE', 0)
    if NE:
        srd(k, 36, 'wqkv')
        k.e('s_lshl_b32 s51, s30, 13')
        for p in range(NE):
            k.e('buffer_load_dwordx4 v[128:131], v6, s[36:39], s51 offen')
            k.e('s_add_u32 s51, s51, %d' % MB)
    srd(k, 36, 'ws', WS_H, 4 * MB); srd(k, 40, 'ws', 0, 256 * KB)
    set_flag(k, 's_lshr_b32 s100, s30, 3\ns_lshl_b32 s100, s100, 8\ns_and_b32 s101, s30, 7\ns_lshl_b32 s101, s101, 2\ns_add_u32 s100, s100, s101\ns_add_u32 s100, s100, %d' % FL_LN1)
    mark(k, 0)
    k.e('s_waitcnt vmcnt(%d) lgkmcnt(0)' % (NE + (9 if MP0 == 2 else 0)))
    k.e('s_add_u32 s84, s84, 1')
    if MP0 == 3: rest_issue()
    X = 24
    for d in range(16): unpack(k, X + 2 * d, X + 2 * d + 1, 8 + d)
    MU = [56, 58]; VA = [60, 62]
    for r in range(2):
        k.e(pk('add', 8 + 2 * r, X + 16 * r, X + 16 * r + 2))
        for e in range(4, 16, 2): k.e(pk('add', 8 + 2 * r, 8 + 2 * r, X + 16 * r + e))
        k.e('v_add_f32 v%d, v%d, v%d' % (MU[r], 8 + 2 * r, 9 + 2 * r))
    red_lanes(k, MU, [8, 9], rors=(8, 4, 2, 1))
    for r in range(2):
        k.e('v_mul_f32 v%d, %s, v%d' % (MU[r], hx(-1.0 / 1024), MU[r]))
        for e in range(0, 16, 2):
            k.e(pk('add', 8, X + 16 * r + e, (MU[r],)))
            k.e(pk('mul', 10, 8, 8) if e == 0 else pk('fma', 10, 8, 8, 10))
        k.e('v_add_f32 v%d, v10, v11' % VA[r])
    red_lanes(k, VA, [8, 9], rors=(8, 4, 2, 1))
    for r in range(2):
        k.e('v_mul_f32 v%d, %s, v%d' % (VA[r], hx(1.0 / 1024), VA[r]))
        round_bf16_pair(k, MU[r], VA[r], 8)
        k.e('v_add_f32 v%d, %s, v%d' % (VA[r], hx(1e-5), VA[r]))
    round_bf16_pair(k, VA[0], VA[1], 8)
    for r in range(2): k.e('v_sqrt_f32 v%d, v%d' % (VA[r], VA[r]))
    k.e('s_nop 0')
    round_bf16_pair(k, VA[0], VA[1], 8)
    for r in range(2): k.e('v_rcp_f32 v%d, v%d' % (VA[r], VA[r]))
    k.e("""
    v_lshrrev_b32 v5, 1, v1
    v_mul_u32_u24 v5, 544, v5          ; cb*2*272
    v_and_b32 v7, 1, v1
    v_lshl_add_u32 v5, v7, 3, v5
    s_lshl_b32 s44, s3, 5
    v_add_u32 v5, s44, v5
    """)
    for r in range(2):
        x = X + 16 * r; pin = 8 + 8 * r
        for d in range(8): k.e(pk('add', x + 2 * d, x + 2 * d, (MU[r],)))
        for d in range(8): round_bf16_pair(k, x + 2 * d, x + 2 * d + 1, pin + d)
        for d in range(8): k.e(pk('mul', x + 2 * d, x + 2 * d, (VA[r],)))
        for d in range(8): k.e('v_cvt_pk_bf16_f32 v%d, v%d, v%d' % (pin + d, x + 2 * d, x + 2 * d + 1))
        for q, o in enumerate((0, 272, 64 * 272, 65 * 272)):
            k.e('ds_write_b64 v5, %s offset:%d' % (vr(pin + 2 * q, 2), o + 16 * r))
    k.e("""
    v_lshrrev_b32 v5, 4, v0            ; gi (p=0)
    v_and_b32 v7, 15, v0               ; row
    v_mul_u32_u24 v2, 272, v5
    v_lshl_add_u32 v2, v7, 4, v2       ; granule lds address
    v_lshlrev_b32 v4, 9, v5
    v_lshl_add_u32 v4, v7, 4, v4       ; global offset
    v_lshrrev_b32 v3, 1, v5
    v_lshlrev_b32 v3, 6, v3
    v_and_b32 v5, 1, v5
    v_lshl_add_u32 v3, v5, 4, v3
    v_add_u32 v3, %d, v3               ; table address: cb*64 + h*16
    s_lshr_b32 s44, s30, 1
    s_lshl_b32 s44, s44, 16
    s_and_b32 s45, s30, 1
    s_lshl_b32 s45, s45, 8
    s_add_u32 s44, s44, s45
    s_mov_b32 s48, %d
    s_cmp_lt_u32 s3, 4
    s_cselect_b32 s49, 0, 1.0
    s_waitcnt lgkmcnt(0)
    """ % (AUX_A, WS_MODP))
    if MP0 in (2, 3): rest_compute(0)
    mark(k, 1)
    if XT:
        srd(k, 36, 'ws', WS_N, 4 * MB)
        k.e('s_barrier')
        for p in range(4): k.e('ds_read_b128 %s, v2 offset:%d' % (vr(8 + 4 * p, 4), p * 32 * 272))
        for p in range(4):
            k.e('s_waitcnt lgkmcnt(%d)' % (3 - p))
            k.e('buffer_store_dwordx4 %s, v4, s[36:39], s44 offen%s' % (vr(8 + 4 * p, 4), WT))
            k.e('s_add_u32 s44, s44, 16384')
        mark(k, 3)
        signal(k, 'S')
        finish(k)
        k.need(128, AUX_A + 8192)
        return
    X = 24
    k.e('s_barrier')
    for p in range(4): k.e('ds_read_b128 %s, v2 offset:%d' % (vr(8 + 4 * p, 4), p * 32 * 272))
    for p in range(4):
        k.e('s_waitcnt lgkmcnt(%d)' % (3 - p))
        for d in range(4): unpack(k, X + 8 * p + 2 * d, X + 8 * p + 2 * d + 1, 8 + 4 * p + d)
    if TAGP:
        srd(k, 96, 'ws', WS_MODT, 64 * KB)
        lp = k.newlabel('wf'); le = k.newlabel('we')
        k.e('v_lshlrev_b32 v81, 4, v1')
        k.e('s_lshl_b32 s100, s3, 11')
        k.e('v_add_u32 v81, s100, v81')
        k.e('v_lshlrev_b32 v80, 3, v1')
        k.e('s_lshl_b32 s100, s3, 10')
        k.e('s_add_u32 s100, s100, %d' % AUX_A)
        k.e('v_add_u32 v80, s100, v80')
        k.e('s_mov_b32 s101, 0x100000')
        k.label(lp)
        for q in range(4):
            k.e('s_mov_b32 s48, %d' % (q * 16384))
            for hh in range(2): k.e('buffer_load_dwordx4 %s, v81, s[96:99], s48 offen offset:%d sc1' % (vr(96 + 8 * q + 4 * hh, 4), hh * 1024))
        k.e('s_mov_b64 s[50:51], 0')
        for n in range(8):
            k.e('s_waitcnt vmcnt(%d)' % (7 - n))
            k.e('v_cmp_ne_u64 vcc, s[84:85], %s' % vr(98 + 4 * n, 2))
            k.e('s_or_b64 s[50:51], s[50:51], vcc')
        k.e('s_cbranch_scc0 %s' % le)
        k.e('s_sub_u32 s101, s101, 1')
        k.e('s_sleep %d' % env('P0SLEEP', 1))
        k.e('s_cmp_lg_u32 s101, 0')
        k.e('s_cbranch_scc1 %s' % lp)
        k.label(le)
        mark(k, 2)
        for hh in range(2):
            b = 96 + 4 * hh
            k.e(pk('add', b, b, b + 8)); k.e(pk('add', b + 16, b + 16, b + 24)); k.e(pk('add', 64 + 2 * hh, b, b + 16))
    else:
        srd(k, 96, 'ws', WS_FL, FLSZ)
        lp = k.newlabel('wf'); le = k.newlabel('we')
        k.e("""
        s_lshl_b32 s100, s3, 11
        s_add_u32 s100, s100, %d
        v_lshlrev_b32 v%d, 7, v1
        v_add_u32 v80, %d, v6
        s_mov_b32 s101, 0x100000
        s_mov_b64 exec, 0xffff
        %s:
        buffer_load_dwordx2 %s, v%d, s[96:99], s100 offen sc1
        s_waitcnt vmcnt(0)
        v_cmp_ne_u64 vcc, s[84:85], %s
        s_sub_u32 s101, s101, 1
        s_nop 3
        s_cbranch_vccz %s
        s_mov_b64 exec, vcc
        s_sleep %d
        s_cmp_lg_u32 s101, 0
        s_cbranch_scc1 %s
        %s:
        s_mov_b64 exec, -1
        """ % (FL_MOD * 32, FV + 2, AUX_A, lp, vr(FV, 2), FV + 2, vr(FV, 2), le, env('P0SLEEP', 1), lp, le))
        mark(k, 2)
        for q in range(4):
            k.e('buffer_load_dwordx4 %s, v6, s[40:43], s48 offen sc1' % vr(64 + 4 * q, 4))
            k.e('s_add_u32 s48, s48, 8192')
        k.e('s_waitcnt vmcnt(0)')
        k.e(pk('add', 64, 64, 68)); k.e(pk('add', 66, 66, 70)); k.e(pk('add', 72, 72, 76)); k.e(pk('add', 74, 74, 78))
        k.e(pk('add', 64, 64, 72)); k.e(pk('add', 66, 66, 74))
    for d in range(2): round_bf16_pair(k, 64 + 2 * d, 65 + 2 * d, 68)
    for q in range(4): k.e('v_add_f32 v%d, s49, v%d' % (64 + q, 64 + q))
    for d in range(2): round_bf16_pair(k, 64 + 2 * d, 65 + 2 * d, 68)
    if TAGP:
        k.e('ds_write_b64 v80, v[64:65]')
        k.e('ds_write_b64 v80, v[66:67] offset:512')
    else: k.e('ds_write_b128 v80, v[64:67]')
    k.e('s_waitcnt lgkmcnt(0)')
    k.e('s_barrier')
    SC = 64; SH = 96
    for p in range(4):
        for sub in range(2):
            k.e('ds_read_b128 %s, v3 offset:%d' % (vr(SC + 8 * p + 4 * sub, 4), 4096 + p * 1024 + sub * 32))
            k.e('ds_read_b128 %s, v3 offset:%d' % (vr(SH + 8 * p + 4 * sub, 4), p * 1024 + sub * 32))
    for p in range(4):
        pin = 8 + 4 * p; x = X + 8 * p
        k.e('s_waitcnt lgkmcnt(%d)' % (12 - 4 * p))
        if env('NORND', 0):
            for d in range(4): k.e(pk('fma', x + 2 * d, x + 2 * d, SC + 8 * p + 2 * d, SH + 8 * p + 2 * d))
        else:
            for d in range(4): k.e(pk('mul', x + 2 * d, x + 2 * d, SC + 8 * p + 2 * d))
            for d in range(4): round_bf16_pair(k, x + 2 * d, x + 2 * d + 1, pin + d)
            for d in range(4): k.e(pk('add', x + 2 * d, x + 2 * d, SH + 8 * p + 2 * d))
        for d in range(4): k.e('v_cvt_pk_bf16_f32 v%d, v%d, v%d' % (pin + d, x + 2 * d, x + 2 * d + 1))
        k.e('buffer_store_dwordx4 %s, v4, s[36:39], s44 offen%s' % (vr(pin, 4), WT))
        k.e('s_add_u32 s44, s44, 16384')
    mark(k, 3)
    signal(k, 'S')
    finish(k)
    k.need(128, AUX_A + 10240)

def log2(n):
    l = n.bit_length() - 1
    assert 1 << l == n
    return l
class G: pass

def k_gemm(k, c, GM, GN, bm_log2, xm_log2, bn, TM, TN, WM, WN, K, KS, NS, X, Y, pre, pre2, epi, swap=(), aux=None, auxsz=0, auxbase=None,
           pf=None, aux_end=None, side=None, wait=None, sig=None, dep='X', GU=1, RWD=1, post=None, frbase=None, selfsig=False, RR=0, early=None, JG=1, lazyfix=False, SOFT=0, own=None, ownlim=None, altmap=False, prelast=None, DEFER=0, dcols=None, auxpre=None):
    g = G()
    name = c.name
    xt = X[0] == 'xt'
    M16 = name in os.environ.get('M16', 'qkv,wo,win,wsp,wout').split(',')
    if xt: X = ('xf',) + X[1:]
    ROLL = env('ROLL_' + name, env('ROLL', 0 if name == 'qkv' else 1))
    LAG = 2 if ROLL else 1
    NS = env('NS_' + name, NS + LAG - 1)
    mb = TM // WM // 32; nb = TN // WN // 32
    S = KS // 16
    xb = TM * KS * 2; yb = TN * KS * 2; STAGE = xb + yb
    nst = K // KS
    solo = c.first and c.last
    g.k = k; g.mb = mb; g.nb = nb; g.TM = TM; g.TN = TN; g.AUX = NS * STAGE if solo or auxbase is None else auxbase
    assert NS * STAGE <= g.AUX
    phase_begin(k, c)
    k.e('''
    v_and_b32 v1, 63, v0               ; lane
    s_mov_b32 s46, s3
    s_and_b32 s47, s2, 7               ; xcd
    s_lshr_b32 s48, s2, 3              ; idx
    s_and_b32 s30, s47, %d
    s_lshl_b32 s30, s30, %d
    s_and_b32 s49, s48, %d
    s_add_u32 s30, s30, s49            ; tm
    s_lshr_b32 s31, s47, %d
    s_mul_i32 s31, s31, %d
    s_lshr_b32 s49, s48, %d
    s_add_u32 s31, s31, s49            ; tn
    ''' % ((1 << xm_log2) - 1, bm_log2, (1 << bm_log2) - 1, xm_log2, bn, bm_log2))
    if altmap:
        k.e('''
        s_and_b32 s30, s47, 3
        s_lshl_b32 s30, s30, 3
        s_and_b32 s49, s48, 3
        s_lshl_b32 s49, s49, 1
        s_add_u32 s30, s30, s49
        s_bfe_u32 s49, s48, 0x10002
        s_add_u32 s30, s30, s49
        ''')
    if env('MAP_' + name, 0):
        k.e('''
        s_lshr_b32 s31, s47, 1
        s_mul_i32 s31, s31, 28
        s_add_u32 s31, s31, s48
        s_and_b32 s30, s47, 1
        s_lshl_b32 s30, s30, 3
        s_and_b32 s49, s31, 7
        s_add_u32 s30, s30, s49
        s_lshr_b32 s31, s31, 3
        ''')
    lcomp = 'L_%s_comp' % name
    set_flag(k, sig)
    if pf or side:
        k.e('s_cmp_ge_u32 s2, %d' % (GM * GN))
        k.e('s_cbranch_scc1 L_%s_pf' % name)
    k.e('s_cmp_ge_u32 s46, 4')
    k.e('s_cbranch_scc1 %s' % lcomp)
    nx = xb // 1024 // 4; ny = yb // 1024 // 4
    assert nx * 4096 == xb and ny * 4096 == yb
    VX = 8; VY = VX + nx
    g.LV = VY + ny
    if X[0] == 'xf':
        C = X[2]; ncb = C // 16
        assert S % nx == 0 or nx % S == 0
        k.e('s_mul_i32 s50, s30, %d' % (TM // 32 * ncb * 1024))
        k.e('s_mul_i32 s51, s46, %d' % nx)
        k.e('s_lshr_b32 s52, s51, %d' % log2(S))
        k.e('s_and_b32 s51, s51, %d' % (S - 1))
        k.e('s_mul_i32 s52, s52, %d' % (ncb * 1024))
        k.e('s_lshl_b32 s51, s51, 10')
        k.e('s_add_u32 s50, s50, s52')
        k.e('s_add_u32 s50, s50, s51')
        k.e('v_lshl_add_u32 v%d, v1, 4, s50' % VX)
        for j in range(1, nx):
            k.e('v_add_u32 v%d, %d, v%d' % (VX + j, (j // S) * ncb * 1024 + (j % S) * 1024, VX))
        xadv = S * 1024
    else:
        ld = X[2]
        assert nx % 2 == 0
        k.e('s_mul_i32 s50, s30, %d' % (TM * ld))
        k.e('s_mul_i32 s51, s46, %d' % (nx * 8 * ld))
        k.e('s_add_u32 s50, s50, s51')
        k.e('v_lshrrev_b32 v2, 3, v1')
        k.e('v_lshl_add_u32 v2, v2, %d, s50' % log2(ld))
        k.e('v_and_b32 v3, 7, v1')
        k.e('v_lshrrev_b32 v4, 4, v1')
        k.e('v_xor_b32 v5, v4, v3')
        k.e('v_lshl_add_u32 v%d, v5, 4, v2' % VX)
        k.e('v_xor_b32 v5, 64, v%d' % VX)
        k.e('v_add_u32 v%d, %d, v5' % (VX + 1, 8 * ld))
        for j in range(2, nx):
            k.e('v_add_u32 v%d, %d, v%d' % (VX + j, (j - j % 2) * 8 * ld, VX + j % 2))
        xadv = KS * 2
    k.e('''
    v_lshrrev_b32 v2, 4, v1            ; u
    v_bfe_u32 v3, v1, 2, 2             ; (i>>2)&3
    v_and_b32 v4, 3, v1                ; i&3
    ''')
    if Y[0] == 'w':
        ld = Y[2]
        NP = TN // 64
        assert ny % NP == 0
        if M16:
            k.e('v_and_b32 v5, 2, v2')
            k.e('v_xor_b32 v4, v4, v5')
        k.e('v_lshrrev_b32 v5, 1, v2')
        k.e('v_lshl_add_u32 v5, v5, 2, v3')
        k.e('v_mul_u32_u24 v5, %d, v5' % ld)
        k.e('v_and_b32 v6, 1, v2')
        k.e('v_lshl_add_u32 v5, v6, 6, v5')
        k.e('v_lshl_add_u32 v5, v4, 4, v5')
        if Y[3] == 'qkv': tstride, segs = 128, [0, 2048, 4096]
        elif Y[3]: tstride, segs = Y[3]
        else: tstride, segs = TN * 2, [p * 128 for p in range(NP)]
        k.e('s_mul_i32 s50, s46, %d' % (ny // NP * 8 * ld))
        k.e('s_mul_i32 s51, s31, %d' % tstride)
        k.e('s_add_u32 s50, s50, s51')
        k.e('v_add_u32 v5, s50, v5')
        for j in range(ny):
            k.e('v_add_u32 v%d, %d, v5' % (VY + j, (j // NP) * 8 * ld + segs[j % NP]))
        yadv = KS * ld
    else:
        C = Y[2]; ncb = C // 16
        NB = TN // 32
        assert ny == NB and S == 4
        if M16:
            k.e('v_and_b32 v5, 2, v2')
            k.e('v_xor_b32 v3, v3, v5')
        k.e('v_lshl_add_u32 v5, v2, 2, v4')
        k.e('v_lshlrev_b32 v5, 4, v5')
        k.e('v_lshl_add_u32 v5, v3, 9, v5')
        k.e('s_lshr_b32 s50, s46, 1')
        k.e('s_mul_i32 s50, s50, %d' % (ncb * 1024))
        k.e('s_and_b32 s51, s46, 1')
        k.e('s_lshl_b32 s51, s51, 8')
        k.e('s_add_u32 s50, s50, s51')
        k.e('s_mul_i32 s51, s31, %d' % (TN // 16 * 1024))
        k.e('s_add_u32 s50, s50, s51')
        k.e('v_add_u32 v%d, s50, v5' % VY)
        for j in range(1, ny):
            k.e('v_add_u32 v%d, %d, v%d' % (VY + j, j * 2048, VY))
        yadv = 2 * ncb * 1024
    k.e('s_mul_i32 s55, s46, %d' % (nx * 1024))
    k.e('s_mul_i32 s56, s46, %d' % (ny * 1024))
    k.e('s_add_u32 s56, s56, %d' % xb)
    per = nx + ny
    assert per * NS <= 55 and nst >= 2 * NS
    k.e('s_waitcnt lgkmcnt(0)')
    mark(k, 0)
    if Y[0] == 'w': srd(k, 36, Y[1])
    else: srd(k, 36, 'ws', Y[1], 2048 * Y[2] * 2)
    if X[0] == 'xf': srd(k, 32, 'ws', X[1], 2048 * X[2] * 2)
    else: srd(k, 32, X[1])
    xfl = ' sc1' if X[0] == 'xf' else ''
    yfl = ' sc1' if Y[0] == 'z' else ''
    ntf = os.environ.get('NT_' + name, os.environ.get('NT', ''))
    if 'X' in ntf: xfl += ' nt'
    if 'Y' in ntf: yfl += ' nt'
    ownlds = name == 'wsp' and ZOWN and c.prev == 'win'
    OWN = own if (own and not c.first and (OWNF(name) or ownlds)) else None
    RW = env('RW_' + name, min(RWD, 2) if OWN else RWD); RC = env('RC_' + name, 1)
    assert nst % RW == 0
    if RW > 1:
        k.e('s_mul_i32 s54, s31, %d' % RC)
        k.e('s_add_u32 s54, s54, s30')
    if OWN:
        assert RW <= 2
        k.e(OWN)
        k.e('s_and_b32 s54, s54, 1' if RW > 1 else 's_mov_b32 s54, 0')
    out = []
    RB = 48
    dyn = [None]
    def soff(st, adv):
        if OWN:
            if st < 2: k.e('s_add_u32 s57, s68, %d' % st)
            else:
                k.e('s_cmp_le_u32 s68, %d' % (st - 2))
                k.e('s_cselect_b32 s57, %d, %d' % (st, st - 2))
                k.e('s_xor_b32 s57, s57, s54')
            k.e('s_mul_i32 s57, s57, %d' % adv)
        elif dyn[0] is not None:
            assert RW in (1, 2, 4)
            if RW > 1:
                k.e('s_add_u32 s57, s54, %d' % st)
                k.e('s_and_b32 s57, s57, %d' % (RW - 1))
                k.e('s_add_u32 s57, s57, s59')
                k.e('s_add_u32 s57, s57, %d' % (st // RW * RW))
            else: k.e('s_add_u32 s57, s59, %d' % st)
            k.e('s_mul_i32 s57, s57, %d' % adv)
        elif RW > 1:
            k.e('s_add_u32 s57, s54, %d' % st)
            k.e('s_and_b32 s57, s57, %d' % (RW - 1))
            k.e('s_mul_i32 s57, s57, %d' % adv)
            if st // RW: k.e('s_add_u32 s57, s57, %d' % (st // RW * RW * adv))
        else: k.e('s_mov_b32 s57, %d' % (st * adv))
    def opinfo(op): return (nx, 's55', VX, 32, xadv, xfl) if op == 'X' else (ny, 's56', VY, 36, yadv, yfl)
    def throttle(n):
        if len(out) + n > 60:
            k.e('s_waitcnt vmcnt(40)'); del out[:len(out) - 40]
    def iss(op, st):
        slot = (st % NS) * STAGE
        n, base, V, sd, adv, fl = opinfo(op)
        if op == ind and st in Rset:
            if ('r', st) in out:
                last = max(i for i, t in enumerate(out) if t == ('r', st))
                k.e('s_waitcnt vmcnt(%d)' % (len(out) - 1 - last)); del out[:last + 1]
            r0 = RB + Rset.index(st) * n * 4
            for j in range(n):
                o = slot + j * 1024
                k.e('ds_write_b128 v%d, %s offset:%d' % (44 + o // 65536, vr(r0 + 4 * j, 4), o % 65536))
            return
        throttle(n)
        soff(st, adv)
        for j in range(n):
            k.e('s_add_u32 m0, %s, %d' % (base, slot + j * 1024))
            k.e('s_nop 0')
            k.e('buffer_load_dwordx4 v%d, %s, s57 offen%s lds' % (V + j, sr(sd), fl))
            out.append(st)
    def issr(st):
        n, base, V, sd, adv, fl = opinfo(ind)
        throttle(n)
        soff(st, adv)
        r0 = RB + Rset.index(st) * n * 4
        for j in range(n):
            k.e('buffer_load_dwordx4 %s, v%d, %s, s57 offen' % (vr(r0 + 4 * j, 4), V + j, sr(sd)))
            out.append(('r', st))
    def wait_stage(st):
        lg = ' lgkmcnt(%d)' % min(15, opinfo(ind)[0] * len([r_ for r_ in Rset if st < r_ < st + NS - LAG])) if st in Rset else ''
        if st in out:
            last = max(i for i, t in enumerate(out) if t == st)
            k.e('s_waitcnt vmcnt(%d)%s' % (len(out) - 1 - last, lg))
            del out[:last + 1]
        elif lg: k.e('s_waitcnt' + lg)
    I0 = env('I0_' + name, 2)
    ind = 'Y' if dep == 'X' else 'X'
    fusedw = wait and not c.first and not env('WLATE_' + name, 0)
    R = env('RR_' + name, RR) if fusedw else 0
    Rset = sorted(set(NS + (2 * i + 1) * (nst - NS) // (2 * R) for i in range(R))) if R else []
    if Rset:
        assert RB + len(Rset) * opinfo(ind)[0] * 4 <= 256
        k.need(RB + len(Rset) * opinfo(ind)[0] * 4, 0)
        k.e('v_lshl_add_u32 v44, v1, 4, %s' % opinfo(ind)[1])
        k.e('v_add_u32 v45, 0x10000, v44')
    if xt:
        DX = env('DX', 4); NR = 64; TB = NR + DX * 8; TX = TB + 32
        assert nx == 2 and S == 2
        k.need(TX + 16, 0)
        k.e('v_lshl_add_u32 v44, v1, 4, s55')
        k.e('v_add_u32 v45, 0x10000, v44')
        k.e('v_lshrrev_b32 v46, 5, v1')
        k.e('v_lshlrev_b32 v46, 4, v46')
        k.e('v_add_u32 v46, %d, v46' % AUX_A)
        def ldn(st):
            soff(st, xadv)
            for j in range(2):
                k.e('buffer_load_dwordx4 %s, v%d, s[32:35], s57 offen sc1' % (vr(NR + (st % DX) * 8 + 4 * j, 4), VX + j))
                out.append(('n', st))
        TW = TX + 16
        k.need(TW + 8, 0)
        def tabrd(st):
            soff(st, 128)
            k.e('v_add_u32 v47, s57, v46')
            for j in range(2):
                for sub in range(2):
                    k.e('ds_read_b128 %s, v47 offset:%d' % (vr(TB + 16 * j + 4 * sub, 4), 4096 + j * 64 + sub * 32))
                    k.e('ds_read_b128 %s, v47 offset:%d' % (vr(TB + 16 * j + 8 + 4 * sub, 4), j * 64 + sub * 32))
        def xform(st):
            if ('n', st) in out:
                last = max(i for i, t in enumerate(out) if t == ('n', st))
                k.e('s_waitcnt vmcnt(%d)' % (len(out) - 1 - last)); del out[:last + 1]
            r0 = NR + (st % DX) * 8
            for d in range(8): unpack(k, TX + 2 * d, TX + 2 * d + 1, r0 + d)
            if st + DX < nst: ldn(st + DX)
            k.e('s_waitcnt lgkmcnt(0)')
            for j in range(2):
                for e in range(8): k.e('v_fma_f32 v%d, v%d, v%d, v%d' % (TX + 8 * j + e, TX + 8 * j + e, TB + 16 * j + e, TB + 16 * j + 8 + e))
            for j in range(2):
                for d in range(4): k.e('v_cvt_pk_bf16_f32 v%d, v%d, v%d' % (TW + 4 * j + d, TX + 8 * j + 2 * d, TX + 8 * j + 2 * d + 1))
                o = (st % NS) * STAGE + j * 1024
                k.e('ds_write_b128 v%d, %s offset:%d' % (44 + o // 65536, vr(TW + 4 * j, 4), o % 65536))
            if st + 1 < nst: tabrd(st + 1)
        for st in range(NS): iss('Y', st)
        k.e('s_barrier')
        mark(k, 1)
        out.extend(['p'] * 4)
        mod_table(k, 24, between=lambda: [ldn(st) for st in range(DX)], nb=2 * DX)
        del out[:len(out) - 2 * DX]
        if env('XPRIO', 0): k.e('s_setprio %d' % env('XPRIO', 0))
        XL = env('XL', 2)
        assert XL >= 2
        tabrd(0)
        for st in range(XL): xform(st)
        def capture(fn):
            n0 = len(k.lines); fn(); got = k.lines[n0:]; del k.lines[n0:]
            return got
        def step(st):
            lg = ' lgkmcnt(0)' if st + XL > nst else ''
            if st in out:
                last = max(i for i, t in enumerate(out) if t == st)
                k.e('s_waitcnt vmcnt(%d)%s' % (len(out) - 1 - last, lg)); del out[:last + 1]
            elif lg: k.e('s_waitcnt' + lg)
            if st == 0: mark(k, 2)
            k.e('s_barrier')
            sx = st + XL; sy = st + NS - LAG
            doy = st >= LAG and sy < nst
            if sx >= nst:
                if doy: iss('Y', sy)
                return
            if ('n', sx) in out:
                last = max(i for i, t in enumerate(out) if t == ('n', sx))
                nw = 's_waitcnt vmcnt(%d)' % (len(out) - 1 - last + (1 if doy else 0)); del out[:last + 1]
            else: nw = None
            yl = capture(lambda: iss('Y', sy)) if doy else []
            yp = []; cur = []
            for l in yl:
                if 's_nop' in l: continue
                cur.append(l)
                if 'buffer_load' in l: yp.append(cur); cur = []
            nl = capture(lambda: ldn(sx + DX)) if (sx + DX < nst or dyn[0] is not None) else []
            nl = [l.replace('s57', 's58') for l in nl]
            npc = [nl[:-1], nl[-1:]] if nl else [[], []]
            r0 = NR + (sx % DX) * 8
            un = capture(lambda: [unpack(k, TX + 2 * d, TX + 2 * d + 1, r0 + d) for d in range(8)])
            fm = ['    v_fma_f32 v%d, v%d, v%d, v%d' % (TX + 8 * j + e, TX + 8 * j + e, TB + 16 * j + e, TB + 16 * j + 8 + e) for j in range(2) for e in range(8)]
            def put(piece):
                if len(piece) >= 2 and 'm0' in piece[-2]: piece = piece[:-1] + ['    s_nop 0', piece[-1]]
                k.lines.extend(piece)
            if yp: put(yp[0])
            if nw: k.e(nw)
            k.lines.extend(un[:8])
            if yp: put(yp[1])
            k.lines.extend(un[8:])
            if yp: put(yp[2])
            k.e('s_waitcnt lgkmcnt(0)')
            k.lines.extend(fm[:10])
            k.lines.extend(npc[0])
            k.lines.extend(fm[10:])
            if sx + 1 < nst: tabrd(sx + 1)
            k.lines.extend(npc[1])
            for j in range(2):
                for d in range(4): k.e('v_cvt_pk_bf16_f32 v%d, v%d, v%d' % (TW + 4 * j + d, TX + 8 * j + 2 * d, TX + 8 * j + 2 * d + 1))
                o = (sx % NS) * STAGE + j * 1024
                k.e('ds_write_b128 v%d, %s offset:%d' % (44 + o // 65536, vr(TW + 4 * j, 4), o % 65536))
        assert NS == 4 and DX == 4 and XL == 2 and LAG == 1 and nst == 32
        for st in range(5): step(st)
        k.e('s_mov_b32 s59, 0')
        k.label('L_%s_xl' % name)
        dyn[0] = 0
        before = list(out)
        for st in range(5, 9): step(st)
        dyn[0] = None
        sh = lambda t, d: (t[0], t[1] + d) if isinstance(t, tuple) else t + d
        assert [sh(t, 4) for t in before] == out, (before, out)
        k.e('s_add_u32 s59, s59, 4')
        k.e('s_cmp_lt_u32 s59, 24')
        k.e('s_cbranch_scc1 L_%s_xl' % name)
        out[:] = [sh(t, 20) for t in out]
        for st in range(29, 32): step(st)
    elif wait and not c.first and env('WLATE_' + name, 0):
        handoff(k, wait[0], wait[1])
    if xt: pass
    elif fusedw:
        for st in range(NS): iss(ind, st)
        for st in Rset: issr(st)
        if auxpre: out.extend(['aux'] * auxpre(g))
        if ownlds:
            handoff(k, wait[0], wait[1])
            mark(k, 1)
            I1 = env('I1_' + name, 3)
            for st in range(2, I1): iss(dep, st)
            wait_stage(0); mark(k, 2); k.e('s_barrier')
            for st in range(I1, NS): iss(dep, st)
        elif OWN:
            l1 = k.newlabel('no'); l2 = k.newlabel('no')
            k.e('s_barrier')
            if ownlim:
                k.e('s_cmp_ge_u32 s2, %d' % ownlim); k.e('s_cbranch_scc1 %s' % l1)
            n0 = len(k.lines)
            iss(dep, 0); iss(dep, 1)
            dup = k.lines[n0:]
            k.label(l1)
            handoff(k, wait[0], wait[1])
            mark(k, 1)
            if ownlim:
                k.e('s_cmp_lt_u32 s2, %d' % ownlim); k.e('s_cbranch_scc1 %s' % l2)
                k.lines.extend(dup)
                k.label(l2)
            I1 = env('I1_' + name, 3)
            for st in range(2, I1): iss(dep, st)
            wait_stage(0); mark(k, 2); k.e('s_barrier')
            for st in range(I1, NS): iss(dep, st)
        else:
            handoff(k, wait[0], wait[1])
            mark(k, 1)
            for st in range(I0): iss(dep, st)
            wait_stage(0); mark(k, 2); k.e('s_barrier')
            for st in range(I0, NS): iss(dep, st)
    else:
        for st in range(I0): iss(ind, st); iss(dep, st)
        mark(k, 1)
        wait_stage(0); mark(k, 2); k.e('s_barrier')
        for st in range(I0, NS): iss(ind, st); iss(dep, st)
    FS = bool(Rset) or env('STATIC', 0) or xt
    if FS and not xt:
        for st in range(1, nst):
            if st == nst - 1: k.e('s_waitcnt vmcnt(0) lgkmcnt(0)')
            else: wait_stage(st)
            if st == nst - 1 and aux_end: aux_end(g)
            k.e('s_barrier')
            nx_st = st + NS - LAG
            if st >= LAG and nx_st < nst:
                iss(dep, nx_st); iss(ind, nx_st)
                if nx_st == nst - 1 and aux:
                    out.extend(['aux'] * aux(g))
    for st in range(1, NS if not FS else 0):
        wait_stage(st); k.e('s_barrier')
        if st >= LAG: iss('Y', st + NS - LAG); iss('X', st + NS - LAG)
    if not FS:
        s0 = 2 * NS - LAG
        k.e('s_add_u32 s60, s55, %d' % (NS * STAGE))
        k.e('s_add_u32 s55, s55, %d' % ((s0 % NS) * STAGE))
        k.e('s_add_u32 s56, s56, %d' % ((s0 % NS) * STAGE))
        k.e('s_mov_b32 s57, %d' % (s0 * xadv))
        k.e('s_mov_b32 s58, %d' % (s0 * yadv))
        k.e('s_mov_b32 s59, %d' % s0)
        ll = 'L_%s_lloop' % name
        k.label(ll)
        if OWN:
            k.e('s_sub_u32 s57, s59, 2')
            k.e('s_cmp_le_u32 s68, s57')
            k.e('s_cselect_b32 s57, s59, s57')
            k.e('s_xor_b32 s57, s57, s54')
            k.e('s_mul_i32 s58, s57, %d' % yadv)
            k.e('s_mul_i32 s57, s57, %d' % xadv)
        elif RW > 1:
            k.e('s_add_u32 s57, s54, s59')
            k.e('s_and_b32 s57, s57, %d' % (RW - 1))
            k.e('s_andn2_b32 s58, s59, %d' % (RW - 1))
            k.e('s_or_b32 s57, s57, s58')
            k.e('s_mul_i32 s58, s57, %d' % yadv)
            k.e('s_mul_i32 s57, s57, %d' % xadv)
        k.e('s_waitcnt vmcnt(%d)' % (per * (NS - 1 - LAG)))
        k.e('s_barrier')
        for j in range(ny):
            k.e('s_add_u32 m0, s56, %d' % (j * 1024))
            k.e('s_nop 0')
            k.e('buffer_load_dwordx4 v%d, s[36:39], s58 offen%s lds' % (VY + j, yfl))
        for j in range(nx):
            k.e('s_add_u32 m0, s55, %d' % (j * 1024))
            k.e('s_nop 0')
            k.e('buffer_load_dwordx4 v%d, s[32:35], s57 offen%s lds' % (VX + j, xfl))
        k.e('s_add_u32 s57, s57, %d' % xadv)
        k.e('s_add_u32 s58, s58, %d' % yadv)
        k.e('s_add_u32 s55, s55, %d' % STAGE)
        k.e('s_add_u32 s56, s56, %d' % STAGE)
        k.e('s_cmp_eq_u32 s55, s60')
        k.e('s_cselect_b32 s61, %d, 0' % (NS * STAGE))
        k.e('s_sub_u32 s55, s55, s61')
        k.e('s_sub_u32 s56, s56, s61')
        k.e('s_add_u32 s59, s59, 1')
        k.e('s_cmp_lt_u32 s59, %d' % nst)
        k.e('s_cbranch_scc1 %s' % ll)
        naux = aux(g) if aux else 0
        NXT = dict(qkv=('attn', 1), wo=('win', 1), win=('wsp', 2), wsp=('wout', 1))
        if CPF >= 2:
            if name in NXT: naux += code_pf(k, 'L_%s_epi' % name, 'L_%s_epi' % NXT[name][0], NXT[name][1] * 8192, vt=22, vd=23)
            else: naux += code_pf(k, 'L_%s_epi' % name, 'L_text_end', 8192, vt=22, vd=23)
        for st in range(nst - NS + LAG, nst):
            k.e('s_waitcnt vmcnt(%d)' % (per * (nst - st - 1) + naux if st < nst - 1 else 0))
            if st == nst - 1 and aux_end: aux_end(g)
            k.e('s_barrier')
    LE = env('LE_' + name, env('LE', 0))
    g.LE = LE and not c.last
    if not c.last and not LE: k.e('s_barrier')
    if post: post(g)
    if not c.last and LE: k.e('s_barrier')
    signal(k)
    endpgm(k)
    k.label(lcomp)
    k.e('s_setprio 1')
    k.e('s_sub_u32 s46, s46, 4')
    k.e('s_lshr_b32 s50, s46, %d' % log2(WN))
    k.e('s_and_b32 s51, s46, %d' % (WN - 1))
    ACC = 8
    nacc = mb * nb * 16
    FR = frbase if frbase else ACC + nacc
    GU = env('GU_' + name, GU)
    g.acc = lambda i, j: ACC + (i * nb + j) * 16
    g.M16 = M16
    k.e('v_and_b32 v3, 31, v1')
    k.e('v_lshrrev_b32 v4, 5, v1')
    if M16:
        JG = env('JG_' + name, JG)
        KSN = KS // 32; NU = KSN * JG; nbj = nb // JG
        XA = FR + 16 * mb + 16 * nbj
        nxa = KSN if X[0] == 'rm' else 1
        nya = 2
    else:
        NU = S // GU
        assert NU % 2 == 0
        fs1 = (mb + nb) * 4
        fsz = fs1 * GU
        XA = FR + 2 * fsz
        nxa = S if X[0] == 'rm' else 1
        nya = 1
    XB = XA; XC = XA + nxa; YB = XC + nxa; YC = YB + nya
    g.free = YC + nya
    g.FR = FR
    NP = TN // 64; NB = TN // 32
    if Y[0] == 'w':
        if Y[3] == 'qkv': ywave = 's_lshl_b32 s52, s51, 8'
        else:
            assert nb % 2 == 0
            ywave = 's_mul_i32 s52, s51, %d' % (nb // 2 * 1024)
        def yblk(j): return j * 1024 if Y[3] == 'qkv' else (j // 2) * 1024 + (j % 2) * 256
    else: ywave = 's_mul_i32 s52, s51, %d' % (nb * 1024)
    if M16:
        k.e('v_and_b32 v5, 15, v1')
        k.e('v_lshrrev_b32 v6, 4, v1')
        if X[0] == 'xf':
            k.e('s_mul_i32 s52, s50, %d' % (mb * S * 1024))
            k.e('v_lshl_add_u32 v7, v5, 4, s52')
            k.e('v_lshl_add_u32 v%d, v6, 9, v7' % XB)
        else:
            k.e('s_mul_i32 s52, s50, %d' % (mb * 4096))
            k.e('v_lshl_add_u32 v2, v5, 7, s52')
            k.e('v_lshrrev_b32 v5, 1, v5')
            for ks in range(KSN):
                k.e('v_add_u32 v7, %d, v6' % (4 * ks))
                k.e('v_xor_b32 v7, v7, v5')
                k.e('v_lshl_add_u32 v%d, v7, 4, v2' % (XB + ks))
        k.e('v_mul_u32_u24 v5, %d, v4' % (2 * NP * 1024 if Y[0] == 'w' else NB * 1024))
        k.e('v_and_b32 v6, 1, v6')
        k.e('v_lshl_add_u32 v5, v6, 9, v5')
        k.e('v_lshl_add_u32 v5, v6, %d, v5' % (5 if Y[0] == 'w' else 7))
        k.e('v_bfe_u32 v6, v1, 2, 2')
        k.e('v_lshl_add_u32 v5, v6, %d, v5' % (6 if Y[0] == 'w' else 4))
        k.e('v_bfe_u32 v6, v1, 1, 1')
        k.e('v_lshl_add_u32 v5, v6, %d, v5' % (3 if Y[0] == 'w' else 6))
        k.e('v_and_b32 v6, 1, v1')
        k.e('v_lshl_add_u32 v5, v6, %d, v5' % (4 if Y[0] == 'w' else 3))
        k.e(ywave)
        k.e('s_add_u32 s52, s52, %d' % xb)
        k.e('v_add_u32 v%d, s52, v5' % YB)
        k.e('v_xor_b32 v%d, %d, v%d' % (YB + 1, 32 if Y[0] == 'w' else 128, YB))
    else:
        if X[0] == 'xf':
            k.e('s_mul_i32 s52, s50, %d' % (mb * S * 1024))
            k.e('v_lshl_add_u32 v%d, v1, 4, s52' % XB)
        else:
            assert KS == 64
            k.e('s_mul_i32 s52, s50, %d' % (mb * 4096))
            k.e('v_bfe_u32 v5, v3, 1, 3')
            k.e('v_lshl_add_u32 v6, v3, 7, s52')
            for ss in range(S):
                k.e('v_add_u32 v7, %d, v4' % (2 * ss))
                k.e('v_xor_b32 v7, v7, v5')
                k.e('v_lshl_add_u32 v%d, v7, 4, v6' % (XB + ss))
        k.e("""
        v_lshlrev_b32 v5, 9, v4            ; h*512
        v_bfe_u32 v6, v1, 2, 2             ; r
        v_lshl_add_u32 v5, v6, %d, v5
        v_bfe_u32 v6, v1, 4, 1             ; G&1
        v_lshl_add_u32 v5, v6, %d, v5
        v_bfe_u32 v6, v1, 1, 1             ; c>>1
        v_and_b32 v7, 1, v1                ; c&1
        """ % ((6, 5) if Y[0] == 'w' else (4, 7)))
        if Y[0] == 'w':
            k.e('v_lshl_add_u32 v5, v6, 4, v5')
            k.e('v_lshl_add_u32 v5, v7, 3, v5')
        else:
            k.e('v_lshl_add_u32 v5, v7, 6, v5')
            k.e('v_lshl_add_u32 v5, v6, 3, v5')
        k.e(ywave)
        k.e('s_add_u32 s52, s52, %d' % xb)
        k.e('v_add_u32 v%d, s52, v5' % YB)
    k.e('s_waitcnt lgkmcnt(0)')
    mark(k, 0)
    pre(g)
    if M16:
        def xr16(sp, ks, i, rh): return FR + (sp[0] if isinstance(sp, tuple) else (sp * KSN + ks) % 2) * 8 * mb + (2 * i + rh) * 4
        def yr16(sp, u, j, t): return FR + 16 * mb + (sp[1] if isinstance(sp, tuple) else (sp * NU + u) % 2) * 8 * nbj + ((j % nbj) * 2 + t) * 4
        def cols(jg, sp): return sp[2] if isinstance(sp, tuple) else range(jg * nbj, (jg + 1) * nbj)
        def reads(u, sp=0):
            ks = u // JG; jg = u % JG
            xr = []; yr = []
            if jg == 0 or isinstance(sp, tuple):
                for i in range(mb):
                    for rh in range(2):
                        if X[0] == 'xf': xr.append('ds_read_b128 %s, v%d offset:%d' % (vr(xr16(sp, ks, i, rh), 4), XC, (i * S + 2 * ks) * 1024 + rh * 256))
                        else: xr.append('ds_read_b128 %s, v%d offset:%d' % (vr(xr16(sp, ks, i, rh), 4), XC + ks, i * 4096 + rh * 2048))
            for j in cols(jg, sp):
                for t in range(2):
                    for rd in range(2):
                        o = (4 * ks + rd) * NP * 1024 + yblk(j) if Y[0] == 'w' else (2 * ks * NB + j) * 1024 + rd * 256
                        yr.append('ds_read_b64_tr_b16 %s, v%d offset:%d' % (vr(yr16(sp, u, j, t) + 2 * rd, 2), YC + t, o))
            return xr[:1] + yr[:2] + xr[1:] + yr[2:]
        def mfmas(u, first, sp=0):
            ks = u // JG; jg = u % JG
            out = []
            for j in cols(jg, sp):
                for t in range(2):
                    for i in range(mb):
                        for rh in range(2):
                            x_ = xr16(sp, ks, i, rh); y_ = yr16(sp, u, j, t)
                            if j in swap: a = g.acc(i, j) + 8 * rh + 4 * t; p, q = x_, y_
                            else: a = g.acc(i, j) + 8 * t + 4 * rh; p, q = y_, x_
                            out.append('v_mfma_f32_16x16x32_bf16 %s, %s, %s, %s' % (vr(a, 4), vr(p, 4), vr(q, 4), '0' if first and ks == 0 else vr(a, 4)))
            return out
        def fix(i, j):
            a = g.acc(i, j)
            for hb in range(2):
                for e in range(4):
                    k.e('%s v%d, v%d' % ('v_permlane32_swap_b32' if j in swap else 'v_permlane16_swap_b32', a + 8 * hb + e, a + 8 * hb + 4 + e))
    else:
        def yoff(j, ss, rd):
            return (2 * ss + rd) * NP * 1024 + yblk(j) if Y[0] == 'w' else (ss * NB + j) * 1024 + rd * 256
        def xf(ss, i): return FR + ((ss // GU) % 2) * fsz + (ss % GU) * fs1 + i * 4
        def yf(ss, j): return FR + ((ss // GU) % 2) * fsz + (ss % GU) * fs1 + (mb + j) * 4
        def reads1(ss):
            xr = []; yr = []
            for i in range(mb):
                if X[0] == 'xf':
                    xr.append('ds_read_b128 %s, v%d offset:%d' % (vr(xf(ss, i), 4), XC, (i * S + ss) * 1024))
                else:
                    xr.append('ds_read_b128 %s, v%d offset:%d' % (vr(xf(ss, i), 4), XC + ss, i * 4096))
            for j in range(nb):
                for rd in range(2):
                    yr.append('ds_read_b64_tr_b16 %s, v%d offset:%d' % (vr(yf(ss, j) + 2 * rd, 2), YC, yoff(j, ss, rd)))
            return [xr[0]] + yr[:2] + xr[1:] + yr[2:]
        def reads(u, sp=0): return [r for ss in range(u * GU, (u + 1) * GU) for r in reads1(ss)]
        def mfmas(u, first, sp=0):
            out = []
            for ss in range(u * GU, (u + 1) * GU):
                for j in range(nb):
                    for i in range(mb):
                        a = g.acc(i, j)
                        c_ = '0' if first and ss == 0 else vr(a, 16)
                        p, q = (xf(ss, i), yf(ss, j)) if j in swap else (yf(ss, j), xf(ss, i))
                        out.append('v_mfma_f32_32x32x16_bf16 %s, %s, %s, %s' % (vr(a, 16), vr(p, 4), vr(q, 4), c_))
            return out
        def fix(i, j): pass
    g.fix = fix
    def setaddr():
        for t in range(nxa): k.e('v_add_u32 v%d, s53, v%d' % (XC + t, XB + t))
        for t in range(nya): k.e('v_add_u32 v%d, s53, v%d' % (YC + t, YB + t))
    RPGV = [env('RPG2_' + name, (5 if mb * nb == 2 else (2 if name == 'qkv' else 3)) * (1 if M16 else 2))]
    import re
    def regs_of(txt):
        return [(int(a_), int(b_)) for a_, b_ in re.findall(r'v\[(\d+):(\d+)\]', txt)]
    def advance():
        n0 = len(k.lines)
        k.e('s_add_u32 s53, s53, %d' % STAGE)
        k.e('s_cmp_eq_u32 s53, %d' % (NS * STAGE))
        k.e('s_cselect_b32 s53, 0, s53')
        setaddr()
        got = [l.strip() for l in k.lines[n0:]]; del k.lines[n0:]
        return got
    EARLY = env('EARLYADV', 1)
    RM = [ROLL]
    def unit(u, first, rs, sp, extra):
        ms = mfmas(u, first, sp)
        prev = reads(u, sp)
        dst = [regs_of(r)[0] for r in prev]
        ROLL = RM[0]
        covered = -1 if ROLL else len(prev); issued = 0; xi = 0
        WMAX = env('WMAX_' + name, env('WMAX', 9))
        nspread = len(ms) - (min(len(extra) // 2 + 1, len(ms) // 3) if extra else 0)
        for mi, m in enumerate(ms):
            ops = regs_of(m)[1:3]
            need = max(i for i, d in enumerate(dst) if any(o[0] <= d[0] <= o[1] for o in ops))
            if need > covered:
                n = min(len(prev) - 1 - need + issued, WMAX)
                k.e('s_waitcnt lgkmcnt(%d)' % n)
                covered = len(prev) - 1 - (n - issued) if n >= issued else len(prev) - 1
            k.e(m)
            e = min(len(rs), -(-len(rs) * (mi + 1) // nspread) if ROLL == 1 else -(-RPGV[0] * (mi + 1) // 2))
            if issued == len(rs):
                for _ in range(2):
                    if xi < len(extra): k.e(extra[xi]); xi += 1
            while issued < e: k.e(rs[issued]); issued += 1
        while issued < len(rs): k.e(rs[issued]); issued += 1
        while xi < len(extra): k.e(extra[xi]); xi += 1
    def stage(first, last, sp, tail=()):
        for u in range(NU):
            if u == NU - 1 and not last and not EARLY:
                for x in advance(): k.e(x)
            if u < NU - 1: rs = reads(u + 1, sp)
            elif last: rs = []
            else: rs = reads(0, sp ^ 1)
            extra = []
            if EARLY and not last and u == (NU - 2) % NU: extra = advance()
            if u == NU - 1: extra = extra + list(tail)
            if not RM[0] or (last and u == NU - 1 and not c.last and not LE): k.e('s_waitcnt lgkmcnt(0)')
            if u == NU - 1 and not (last and (c.last or LE)): k.e('s_barrier')
            unit(u, first, rs, sp, extra)
    k.e('s_mov_b32 s53, 0')
    setaddr()
    if xt:
        handoff_multi(k, [(4, 's_mov_b32 s100, %d' % FL_MOD, 64), (5, 's_mov_b32 s100, %d' % (FL_MOD + 256), 64), (6, wait[0], wait[1])])
        mod_table(k, FR)
    elif wait: handoff(k, wait[0], wait[1], role='C')
    if early: early(g)
    k.e('s_barrier')
    mark(k, 1)
    for r in reads(0): k.e(r)
    if EARLY and NU == 1:
        for x in advance(): k.e(x)
    DEFER = env('DEFER_' + name, DEFER)
    npair = (nst - 1 - max(DEFER, 1)) // 2
    assert nst % 2 == 0 and (DEFER == 0 or (DEFER % 2 == 1 and M16 and KSN == 1 and not LE and DEFER <= NS))
    soft = env('SOFT_' + name, SOFT)
    srp = env('SRP_' + name, 1 if name == 'qkv' else 2)
    segs_ = [(npair, RPGV[0], ROLL)] if not soft else [(soft, srp, 0), (npair - soft, RPGV[0], ROLL)]
    RPGV[0] = segs_[0][1]; RM[0] = segs_[0][2]
    stage(True, False, 0)
    pre2(g)
    for si, (cnt_, rp_, rm_) in enumerate(segs_):
        RPGV[0] = rp_; RM[0] = rm_
        k.e('s_mov_b32 s54, %d' % cnt_)
        lp = 'L_%s_loop%s' % (name, si or '')
        k.label(lp)
        stage(False, False, 1); stage(False, False, 0, tail=['s_sub_u32 s54, s54, 1', 's_cmp_lg_u32 s54, 0'])
        k.e('s_cbranch_scc1 %s' % lp)
    k.label('L_%s_epi' % name)
    if prelast: prelast(g)
    def addr_for(st):
        o = (st % NS) * STAGE
        return ['v_add_u32 v%d, %d, v%d' % (XC, o, XB)] + ['v_add_u32 v%d, %d, v%d' % (YC + t, o, YB + t) for t in range(nya)]
    if DEFER:
        s0_ = nst - DEFER
        c0, c1 = dcols
        y0 = NU % 2
        for n_ in range(DEFER):
            par = ((1 + n_) % 2, (y0 + n_) % 2, c0)
            if n_ < DEFER - 1:
                for x in addr_for(s0_ + n_ + 1): k.e(x)
                rs = reads(0, (par[0] ^ 1, par[1] ^ 1, c0))
            else: rs = []
            if not RM[0] or (n_ == 0 and JG == 1): k.e('s_waitcnt lgkmcnt(0)')
            if n_ < DEFER - 1: k.e('s_barrier')
            unit(0, False, rs, par, [])
        def deferred():
            for x in addr_for(s0_): k.e(x)
            for r in reads(0, (0, 0, c1)): k.e(r)
            for n_ in range(DEFER):
                par = (n_ % 2, n_ % 2, c1)
                if n_ < DEFER - 1:
                    for x in addr_for(s0_ + n_ + 1): k.e(x)
                    rs = reads(0, (par[0] ^ 1, par[1] ^ 1, c1))
                else: rs = []
                if not RM[0] or n_ == DEFER - 1: k.e('s_waitcnt lgkmcnt(0)')
                if n_ == DEFER - 1: k.e('s_barrier')
                unit(0, False, rs, par, [])
            k.e('s_nop 7')
        g.deferred = deferred
    else:
        g.deferred = None
        stage(False, True, 1)
    mark(k, 2)
    if M16:
        k.e('s_nop 7')
        if not lazyfix:
            for j in range(nb):
                for i in range(mb): fix(i, j)
            k.e('s_nop 1')
    epi(g)
    if not selfsig:
        if g.LE and not getattr(g, 'ended', 0): k.e('s_barrier')
        signal(k, 'C')
    if side:
        endpgm(k)
        k.label('L_%s_pf' % name)
        k.e('s_sub_u32 s30, s2, %d' % (GM * GN))
        k.e('s_cmp_ge_u32 s30, %d' % side[0])
        k.e('s_cbranch_scc1 L_%s_pfe' % name)
        side[1](k, 0 if solo else AUX_B + 4096)
        k.label('L_%s_pfe' % name)
        signal(k, 'A')
    if pf:
        endpgm(k)
        k.label('L_%s_pf' % name)
        npf = 256 - GM * GN
        per_wg = SIZES[pf] // npf
        assert per_wg % (8192 * 2) == 0
        k.e('s_sub_u32 s30, s2, %d' % (GM * GN))
        k.e('s_mul_i32 s30, s30, %d' % per_wg)
        if env('PFOFF', 0): k.e('s_mov_b32 s30, 0x40000000')
        k.e('v_lshlrev_b32 v2, 4, v0')
        k.e('s_mov_b32 s31, %d' % (per_wg // 16384))
        k.e('s_waitcnt lgkmcnt(0)')
        srd(k, 32, pf)
        k.label('L_%s_pfl' % name)
        k.e('buffer_load_dwordx4 v[8:11], v2, s[32:35], s30 offen')
        k.e('s_add_u32 s30, s30, 8192')
        k.e('buffer_load_dwordx4 v[12:15], v2, s[32:35], s30 offen')
        k.e('s_add_u32 s30, s30, 8192')
        k.e('s_waitcnt vmcnt(6)')
        k.e('s_sub_u32 s31, s31, 1')
        k.e('s_cmp_lg_u32 s31, 0')
        k.e('s_cbranch_scc1 L_%s_pfl' % name)
        signal(k, 'A')
    finish(k)
    assert g.free <= 256, g.free
    k.need(g.free, max(NS * STAGE, g.AUX + auxsz, (AUX_B + 12288) if side and not solo else 0))

def alloc(g, n, align=4):
    b = (g.free + align - 1) // align * align
    g.free = b + n
    return b
def nop(g): pass

def store_xf_tile(g, a, T, voff, srdn, soff, imm):
    k = g.k
    for d in range(8):
        k.e('v_cvt_pk_bf16_f32 v%d, v%d, v%d' % (T + d, a + 2 * d, a + 2 * d + 1))
    if os.environ.get('SDATA') == 'zero' and k.c.name == 'qkv':
        for d in range(8): k.e('v_mov_b32 v%d, 0' % (T + d))
    if os.environ.get('SDATA') == 'rand' and k.c.name == 'qkv':
        import random
        for d in range(8):
            k.e('s_mul_i32 s68, s2, %d' % (random.getrandbits(31) | 1))
            k.e('v_add_u32 v%d, s68, v0' % (T + d))
            k.e('s_mov_b32 s69, %d' % (random.getrandbits(31) | 1))
            k.e('v_mul_lo_u32 v%d, v%d, s69' % (T + d, T + d))
            k.e('v_and_b32 v%d, 0xbfffbfff, v%d' % (T + d, T + d))
    if env('PACE', -1) >= 0: k.e('s_waitcnt vmcnt(%d)' % env('PACE', -1))
    k.e('buffer_store_dwordx4 %s, v%d, %s, %s offen offset:%d%s' % (vr(T, 4), voff, sr(srdn), soff, imm, WT))
    k.e('buffer_store_dwordx4 %s, v%d, %s, %s offen offset:%d%s' % (vr(T + 4, 4), voff, sr(srdn), soff, imm + 1024, WT))

def pk(op, d, *src, sel=None):
    s = 'v_pk_%s_f32 %s' % (op, vr(d, 2))
    hi = []
    for x in src:
        if isinstance(x, int): s += ', ' + vr(x, 2); hi.append(1)
        elif isinstance(x, tuple): s += ', ' + vr(x[0], 2); hi.append(0)
        elif x.startswith('s['): s += ', ' + x; hi.append(1)
        else: s += ', ' + x; hi.append(0)
    if 0 in hi: s += ' op_sel_hi:[%s]' % ','.join(map(str, hi))
    return s

def k_qkv(k, c):
    def pre(g):
        k = g.k
        srd(k, 32, 'ws', WS_Q, 4 * MB); srd(k, 36, 'ws', WS_KV, 8 * MB)
        g.L16 = alloc(g, 1, 1); g.LV16 = alloc(g, 1, 1)
        k.e('v_lshlrev_b32 v%d, 4, v1' % g.L16)
        if g.M16:
            k.e('v_and_b32 v5, 3, v1')
            k.e('v_lshl_add_u32 v5, v4, 4, v5')
            k.e('v_bfe_u32 v6, v1, 2, 1')
            k.e('v_lshl_add_u32 v5, v6, 3, v5')
            k.e('v_bfe_u32 v6, v1, 3, 1')
            k.e('v_lshl_add_u32 v5, v6, 2, v5')
            k.e('v_bfe_u32 v6, v1, 4, 1')
            k.e('v_lshl_add_u32 v5, v6, 5, v5')
            k.e('v_lshlrev_b32 v%d, 4, v5' % g.LV16)
        else: k.e('v_mov_b32 v%d, v%d' % (g.LV16, g.L16))
        k.e('''
        s_lshl_b32 s60, s31, 1
        s_add_u32 s60, s60, s51
        s_lshl_b32 s60, s60, 6
        s_lshl_b32 s61, s30, 2
        s_add_u32 s60, s60, s61
        s_lshl_b32 s61, s50, 1
        s_add_u32 s60, s60, s61           ; head*64 + rb0
        s_lshl_b32 s61, s60, 11           ; Q offset
        s_lshl_b32 s62, s60, 12           ; KV offset
        s_add_u32 s63, s62, 4096
        s_mov_b32 s66, %s
        s_mov_b32 s67, %s
        ''' % ((hx(32 ** -0.5 * LOG2E * float(os.environ.get('QERR', '1'))),) * 2))
    def epi(g):
        k = g.k
        T = g.FR
        k.e('s_nop 7')
        n = 0
        for i in range(2):
            a = g.acc(i, 0)
            for r in range(0, 16, 2): k.e(pk('mul', a + r, a + r, 's[66:67]'))
            store_xf_tile(g, a, T + 8 * n, g.L16, 32, 's61', i * 2048); n += 1
        for j in (1, 2):
            for i in range(2):
                store_xf_tile(g, g.acc(i, j), T + 8 * (n % 5), g.L16 if j == 1 else g.LV16, 36, 's62' if i == 0 else 's63', (j - 1) * 2048); n += 1
    QSP = env('QSP', 0)
    def epi2(g):
        k = g.k
        T = g.FR
        KP = [g.acc(0, 1), g.acc(1, 1)]; VP = [g.acc(0, 2), g.acc(1, 2)]; QP = [g.acc(0, 0), g.acc(1, 0)]
        for j in (1, 2):
            for i in range(2):
                g.fix(i, j)
                k.e('s_nop 0')
                store_xf_tile(g, g.acc(i, j), g.acc(i, j), g.L16 if j == 1 else g.LV16, 36, 's62' if i == 0 else 's63', (j - 1) * 2048)
        if g.deferred:
            g.deferred()
            if env('QSIG', 1): signal(k, 'C')
        for i in range(2):
            a = g.acc(i, 0)
            g.fix(i, 0)
            k.e('s_nop 0')
            for r in range(0, 16, 2): k.e(pk('mul', a + r, a + r, 's[66:67]'))
            for d in range(8): k.e('v_cvt_pk_bf16_f32 v%d, v%d, v%d' % (a + d, a + 2 * d, a + 2 * d + 1))
        if QSP == 1: signal(k, 'C')
        k.e('s_mul_i32 s68, s46, 5120')
        k.e('s_add_u32 s68, s68, %d' % AUX_A)
        k.e('v_add_u32 v5, s68, v%d' % g.L16)
        Sreg = [T, T + 16, T + 32, T + 48]
        for qi in range(2):
            for ki in range(2):
                S_ = Sreg[2 * qi + ki]
                k.e('v_mfma_f32_32x32x16_bf16 %s, %s, %s, 0' % (vr(S_, 16), vr(KP[ki], 4), vr(QP[qi], 4)))
                k.e('v_mfma_f32_32x32x16_bf16 %s, %s, %s, %s' % (vr(S_, 16), vr(KP[ki] + 4, 4), vr(QP[qi] + 4, 4), vr(S_, 16)))
        for q in range(4): k.e('ds_write_b128 v5, %s offset:%d' % (vr(QP[q // 2] + 4 * (q % 2), 4), q * 1024))
        if AOWN:
            k.e('s_lshl_b32 s69, s46, 15')
            k.e('v_add_u32 v6, s69, v%d' % g.L16)
            k.e('v_add_u32 v7, s69, v%d' % g.LV16)
            for i in range(2):
                for hh in range(2):
                    k.e('ds_write_b128 v6, %s offset:%d' % (vr(KP[i] + 4 * hh, 4), i * 4096 + hh * 1024))
                    k.e('ds_write_b128 v7, %s offset:%d' % (vr(VP[i] + 4 * hh, 4), i * 4096 + 2048 + hh * 1024))
        k.e('v_lshl_add_u32 v5, v1, 3, s68')
        if QSP == 2: signal(k, 'C')
        k.e('s_nop 7')
        MM = T + 64
        for qi in range(2):
            a0, a1 = Sreg[2 * qi], Sreg[2 * qi + 1]
            k.e('v_max_f32 v%d, v%d, v%d' % (MM + qi, a0, a1))
            for r in range(1, 16): k.e('v_max3_f32 v%d, v%d, v%d, v%d' % (MM + qi, MM + qi, a0 + r, a1 + r))
        for qi in range(2): k.e('v_mov_b32 v%d, v%d' % (MM + 2 + qi, MM + qi))
        k.e('s_nop 1')
        for qi in range(2): k.e('v_permlane32_swap_b32 v%d, v%d' % (MM + qi, MM + 2 + qi))
        k.e('s_nop 1')
        for qi in range(2): k.e('v_max_f32 v%d, v%d, v%d' % (MM + qi, MM + qi, MM + 2 + qi))
        for qi in range(2): k.e('v_sub_f32 v%d, %s, v%d' % (MM + qi, hx(-40.0), MM + qi))
        k.e('ds_write_b64 v5, %s offset:4096' % vr(MM, 2))
        k.e('s_waitcnt lgkmcnt(0)')
    sig = 's_lshl_b32 s100, s31, 8\ns_lshl_b32 s101, s30, 4\ns_add_u32 s100, s100, s101\ns_add_u32 s100, s100, %d' % FL_QKV
    wait = ('s_lshl_b32 s100, s30, 8\ns_add_u32 s100, s100, %d' % FL_LN1, 8)
    k_gemm(k, c, 16, 16, 3, 1, 4, 128, 192, 2, 2, 1024, 32, 4, ('xt', WS_N, 1024) if XT else ('xf', WS_H, 1024), ('w', 'wqkv', 6144, 'qkv'), pre, nop, epi2 if AT2 else epi, selfsig=bool(AT2 and (QSP or AOWN == 1 or (env('DEFER_qkv', 0) and env('QSIG', 1)))), lazyfix=bool(AT2), DEFER=0, dcols=([1, 2], [0]), swap=(2,), wait=wait, sig=sig, RWD=4, SOFT=4)

def k_proj(k, c, K, X, wname, final):
    NQ = 2 if MP0 else 4
    EARLYV = MP0 and env('EARLYV', 1)
    def modq_loads(k):
        for q in range(NQ):
            k.e('s_add_u32 s62, s69, %d' % (q * 16384))
            k.e('s_add_u32 s63, s70, %d' % (q * 16384))
            k.e('buffer_load_dwordx4 %s, v7, s[64:67], s62 offen sc1' % vr(24 + 4 * q, 4))
            k.e('buffer_load_dword v%d, v6, s[64:67], s63 offen sc1' % (40 + q))
    def aux(g):
        k = g.k
        if final:
            srd(k, 40, 'ws', WS_MOD, 6144 * 4)
            k.e('''
            v_and_b32 v7, 31, v1
            v_lshlrev_b32 v7, 4, v7
            s_lshl_b32 s62, s31, 9
            s_add_u32 s62, s62, %d
            buffer_load_dwordx4 v[24:27], v7, s[40:43], s62 offen sc1
            ''' % (5 * 4096))
            return 1
        srd(k, 64, 'ws', 0, 256 * KB)
        k.e('''
        v_and_b32 v2, 31, v1
        v_lshrrev_b32 v3, 5, v1
        v_lshlrev_b32 v2, 4, v2
        v_lshl_add_u32 v2, v3, 13, v2
        s_lshl_b32 s62, s31, 9
        s_add_u32 s62, s62, %d
        v_and_b32 v6, 15, v1
        v_lshlrev_b32 v6, 2, v6
        s_lshl_b32 s68, s2, 6
        s_add_u32 s63, s68, %d
        s_mov_b32 s69, s62
        s_mov_b32 s70, s63
        v_mov_b32 v7, v2
        ''' % (WS_MODQ, WS_MODQ))
        modq_loads(k)
        return xtile(g) + 2 * NQ
    def xtile(g):
        k = g.k
        srd(k, 40, 'x')
        k.e('''
        v_lshrrev_b32 v2, 4, v1
        v_and_b32 v3, 15, v1
        s_lshl_b32 s62, s30, 17            ; tm*64*2048
        s_lshl_b32 s63, s31, 8
        s_add_u32 s62, s62, s63
        s_lshl_b32 s63, s46, 15            ; lw*16 rows
        s_add_u32 s62, s62, s63
        s_lshl_b32 s63, s46, 12
        s_add_u32 s63, s63, %d
        ''' % g.AUX)
        for j in range(4):
            k.e('v_add_u32 v4, %d, v2' % (4 * j))
            k.e('v_xor_b32 v5, v4, v3')
            k.e('v_lshlrev_b32 v5, 4, v5')
            k.e('v_lshl_add_u32 v5, v4, 11, v5')
            k.e('s_add_u32 m0, s63, %d' % (j * 1024))
            k.e('s_nop 0')
            k.e('buffer_load_dwordx4 v5, s[40:43], s62 offen lds')
        return 4
    def aux_end(g):
        k = g.k
        lp = k.newlabel('mqp'); lc = k.newlabel('mqc')
        if final:
            poll_init(k)
            k.e('s_branch %s' % lc)
            k.label(lp)
            k.e('buffer_load_dwordx4 v[24:27], v7, s[40:43], s62 offen sc1')
            k.e('s_waitcnt vmcnt(0)')
            k.label(lc)
            k.e('v_max3_u32 v2, v24, v25, v26')
            k.e('v_max_u32 v2, v2, v27')
            k.e('v_cmp_eq_u32 vcc, -1, v2')
            poll_back(k, lp)
            k.e('v_add_u32 v2, %d, v7' % (g.AUX + 16 * KB))
            k.e('ds_write_b128 v2, v[24:27]')
            k.e('s_waitcnt lgkmcnt(0)')
            return
        if MP0:
            k.e('v_cmp_lt_u32 vcc, 31, v1')
            k.e(pk('add', 24, 24, 28)); k.e(pk('add', 26, 26, 30))
            k.e('v_add_f32 v40, v40, v41')
        else:
            poll_init(k)
            k.e('s_branch %s' % lc)
            k.label(lp)
            modq_loads(k)
            k.e('s_waitcnt vmcnt(0)')
            k.label(lc)
            k.e('v_max_u32 v2, v24, v25')
            for r in range(26, 44, 2): k.e('v_max3_u32 v2, v2, v%d, v%d' % (r, r + 1))
            k.e('v_cmp_eq_u32 vcc, -1, v2')
            poll_back(k, lp)
            k.e(pk('add', 24, 24, 28)); k.e(pk('add', 26, 26, 30)); k.e(pk('add', 32, 32, 36)); k.e(pk('add', 34, 34, 38))
            k.e(pk('add', 24, 24, 32)); k.e(pk('add', 26, 26, 34))
            k.e('v_cmp_lt_u32 vcc, 31, v1')
            k.e('v_add_f32 v40, v40, v41')
            k.e('v_add_f32 v42, v42, v43')
            k.e('v_add_f32 v40, v40, v42')
        k.e('v_cndmask_b32 v7, 0, 1.0, vcc')
        for d in range(2): round_bf16_pair(k, 24 + 2 * d, 25 + 2 * d, 28)
        for e in range(4): k.e('v_add_f32 v%d, v7, v%d' % (24 + e, 24 + e))
        for d in range(2): round_bf16_pair(k, 24 + 2 * d, 25 + 2 * d, 28)
        k.e('v_lshlrev_b32 v2, 4, v1')
        k.e('v_add_u32 v2, %d, v2' % (g.AUX + 16 * KB))
        k.e('ds_write_b128 v2, v[24:27]')
        k.e("""
        s_lshr_b32 s62, s2, 6
        s_cmp_eq_u32 s62, 2
        s_cselect_b32 s62, 1.0, 0
        v_cvt_pk_bf16_f32 v40, v40, v40
        v_lshlrev_b32 v40, 16, v40
        v_add_f32 v40, s62, v40
        v_cvt_pk_bf16_f32 v40, v40, v40
        v_lshlrev_b32 v40, 16, v40
        s_add_u32 s68, s68, 8192
        v_cmp_gt_u32 vcc, 16, v0
        s_and_saveexec_b64 s[62:63], vcc
        buffer_store_dword v40, v6, s[64:67], s68 offen%s
        s_mov_b64 exec, s[62:63]
        s_waitcnt lgkmcnt(0)
        """ % WT)
    def pre(g):
        k = g.k
        g.L16 = alloc(g, 1, 1); g.RA = alloc(g, 1, 1); g.CA = alloc(g, 1, 1); g.TA = alloc(g, 1, 1)
        g.RES = alloc(g, 16); g.GA = alloc(g, 32); g.G2 = alloc(g, 32) if not final else None
        srd(k, 36, 'ws', WS_X1, 8 * MB)
        if final: srd(k, 32, 'out')
        else: srd(k, 32, 'ws', WS_ST1, 256 * KB)
        k.e('v_lshlrev_b32 v%d, 4, v1' % g.L16)
        k.e('''
        s_lshl_b32 s60, s31, 7
        s_lshl_b32 s61, s51, 6
        s_add_u32 s60, s60, s61           ; col0
        s_lshl_b32 s61, s30, 1
        s_add_u32 s61, s61, s50           ; rb
        s_lshl_b32 s62, s61, 16
        s_lshl_b32 s63, s60, 1
        s_add_u32 s63, s63, s62           ; row-major byte offset of (row0,col0)
        s_lshl_b32 s64, s60, 6
        s_add_u32 s64, s64, s62           ; XF offset
        s_add_u32 s65, s64, %d            ; X1S offset
        ; tile image address: row*256 + ((wn*8) ^ (row%%16))*16 + h*8
        s_lshl_b32 s66, s50, 13
        s_add_u32 s66, s66, %d
        v_and_b32 v5, 15, v3
        s_lshl_b32 s67, s51, 3
        v_xor_b32 v5, s67, v5
        v_lshlrev_b32 v5, 4, v5
        v_lshl_add_u32 v5, v3, 8, v5
        v_lshl_add_u32 v5, v4, 3, v5
        v_add_u32 v%d, s66, v5
        ; column vector address: wn*256 + h*16
        s_lshl_b32 s67, s51, 8
        s_add_u32 s67, s67, %d
        v_lshl_add_u32 v%d, v4, 4, s67
        ''' % (4 * MB, g.AUX, g.RA, g.AUX + 16 * KB, g.CA))
    KX = same_kernel('wo', 'wout') and env('KEEPX', 1)
    def early(g):
        k = g.k
        if EARLYV:
            A_ = g.GA; V_ = g.RES
            l = k.newlabel('ev')
            k.e('s_cmp_lg_u32 s46, 1'); k.e('s_cbranch_scc1 %s' % l)
            srd(k, 80, 'ws', 0, 256 * KB)
            k.e('''
            v_lshlrev_b32 v%d, 4, v3
            v_lshl_add_u32 v%d, v4, 13, v%d
            s_lshl_b32 s68, s31, 9
            s_add_u32 s68, s68, %d
            s_add_u32 s69, s68, 16384
            buffer_load_dwordx4 %s, v%d, s[80:83], s68 offen sc1
            buffer_load_dwordx4 %s, v%d, s[80:83], s69 offen sc1
            ''' % (V_, V_, V_, WS_MODQ + (3 * 4096 if final else 0), vr(A_, 4), V_, vr(A_ + 4, 4), V_))
            if not final:
                k.e('''
                v_and_b32 v%d, 15, v1
                v_lshlrev_b32 v%d, 2, v%d
                s_lshl_b32 s70, s2, 6
                s_add_u32 s68, s70, %d
                s_add_u32 s69, s68, 16384
                buffer_load_dword v%d, v%d, s[80:83], s68 offen sc1
                buffer_load_dword v%d, v%d, s[80:83], s69 offen sc1
                ''' % (V_ + 1, V_ + 1, V_ + 1, WS_MODQ, A_ + 8, V_ + 1, A_ + 9, V_ + 1))
            k.e('v_cvt_f32_u32 v%d, v4' % (V_ + 2))
            k.e('v_add_u32 v%d, %d, v%d' % (V_ + 3, g.AUX + 16 * KB, g.L16))
            k.e('s_waitcnt vmcnt(0)')
            k.e(pk('add', A_, A_, A_ + 4)); k.e(pk('add', A_ + 2, A_ + 2, A_ + 6))
            for d in range(2): round_bf16_pair(k, A_ + 2 * d, A_ + 1 + 2 * d, A_ + 4)
            for e in range(4): k.e('v_add_f32 v%d, v%d, v%d' % (A_ + e, V_ + 2, A_ + e))
            for d in range(2): round_bf16_pair(k, A_ + 2 * d, A_ + 1 + 2 * d, A_ + 4)
            k.e('ds_write_b128 v%d, %s' % (V_ + 3, vr(A_, 4)))
            if not final:
                F = A_ + 8
                k.e('''
                s_lshr_b32 s68, s2, 6
                s_cmp_eq_u32 s68, 2
                s_cselect_b32 s68, 1.0, 0
                v_add_f32 v%d, v%d, v%d
                v_cvt_pk_bf16_f32 v%d, v%d, v%d
                v_lshlrev_b32 v%d, 16, v%d
                v_add_f32 v%d, s68, v%d
                v_cvt_pk_bf16_f32 v%d, v%d, v%d
                v_lshlrev_b32 v%d, 16, v%d
                s_add_u32 s70, s70, 8192
                s_mov_b64 exec, 0xffff
                buffer_store_dword v%d, v%d, s[80:83], s70 offen%s
                s_mov_b64 exec, -1
                ''' % (F, F, F + 1, F, F, F, F, F, F, F, F, F, F, F, F, F, V_ + 1, WT))
            k.e('s_waitcnt lgkmcnt(0)')
            k.label(l)
            return
        if final or MP0: return
        D = g.GA; MC = g.RES; MT = g.RES + 8
        k.e('s_lshl_b32 s68, s46, 13')
        k.e('s_add_u32 s68, s68, %d' % AUX_A)
        k.e('v_add_u32 v%d, s68, v%d' % (MT, g.L16))
        for j in range(8): k.e('ds_read_b128 %s, v%d offset:%d' % (vr(D + 4 * j, 4), MT, j * 1024))
        for j in range(8):
            k.e('s_waitcnt lgkmcnt(%d)' % (7 - j))
            for d in range(4):
                unpack(k, MT, MT + 1, D + 4 * j + d)
                op = 'v_mul_f32' if j == 0 else 'v_fmac_f32'
                k.e('%s v%d, v%d, v%d' % (op, MC + 2 * d, MT, MSV + j))
                k.e('%s v%d, v%d, v%d' % (op, MC + 2 * d + 1, MT + 1, MSV + j))
        k.e('s_nop 1')
        for e in range(4): k.e('v_permlane32_swap_b32 v%d, v%d' % (MC + e, MC + 4 + e))
        k.e('s_nop 1')
        for e in range(4): k.e('v_add_f32 v%d, v%d, v%d' % (MC + e, MC + e, MC + 4 + e))
        k.e('s_nop 1')
        for e in range(2): k.e('v_permlane16_swap_b32 v%d, v%d' % (MC + e, MC + 2 + e))
        k.e('s_nop 1')
        for e in range(2): k.e('v_add_f32 v%d, v%d, v%d' % (MC + e, MC + e, MC + 2 + e))
        k.e('s_nop 1')
        for e in range(2): k.e('v_add_f32_dpp v%d, v%d, v%d row_ror:8 row_mask:0xf bank_mask:0xf' % (MC + e, MC + e, MC + e))
        k.e('''
        v_and_b32 v%d, 7, v1
        v_lshlrev_b32 v%d, 5, v%d
        v_lshrrev_b32 v%d, 4, v1
        v_lshl_add_u32 v%d, v%d, 3, v%d
        v_add_u32 v%d, s68, v%d
        ds_write_b64 v%d, %s
        s_waitcnt lgkmcnt(0)
        ''' % (MT, MT, MT, MT + 1, MT, MT + 1, MT, MT, MT, MT, vr(MC, 2)))
    def pre2(g):
        k = g.k
        if not final and not MP0:
            MC = g.RES; MT = g.RES + 8
            l = k.newlabel('noC')
            k.e('s_cmp_lg_u32 s46, 1')
            k.e('s_cbranch_scc1 %s' % l)
            srd(k, 80, 'ws', 0, 256 * KB)
            k.e('v_lshlrev_b32 v%d, 2, v1' % (MT + 1))
            k.e('v_add_u32 v%d, %d, v%d' % (MT, AUX_A, MT + 1))
            for w in range(4): k.e('ds_read_b32 v%d, v%d offset:%d' % (MC + w, MT, w * 8192))
            k.e('''
            s_and_b32 s68, s2, 3
            s_lshl_b32 s68, s68, 14
            s_lshr_b32 s69, s2, 2
            s_lshl_b32 s69, s69, 8
            s_add_u32 s68, s68, s69
            s_add_u32 s68, s68, %d
            s_waitcnt lgkmcnt(0)
            v_add_f32 v%d, v%d, v%d
            v_add_f32 v%d, v%d, v%d
            v_add_f32 v%d, v%d, v%d
            v_min_u32 v%d, -2, v%d
            buffer_store_dword v%d, v%d, s[80:83], s68 offen sc1
            ''' % (WS_MODQ, MC, MC, MC + 1, MC + 2, MC + 2, MC + 3, MC, MC, MC + 2, MC, MC, MC, MT + 1))
            k.label(l)
        if final and not KX:
            for j in range(2):
                for t in range(2):
                    k.e('buffer_load_dwordx4 %s, v%d, s[36:39], s64 offen offset:%d sc1' % (vr(g.RES + 8 * j + 4 * t, 4), g.L16, (2 * j + t) * 1024))
    PL = env('PRELAST', 1)
    def operands(g):
        k = g.k
        for j in range(2):
            for q in range(4):
                k.e('ds_read_b128 %s, v%d offset:%d' % (vr(g.GA + 16 * j + 4 * q, 4), g.CA, j * 128 + q * 32))
        if not final or KX:
            for j in range(2):
                for q in range(4):
                    k.e('v_xor_b32 v%d, %d, v%d' % (g.TA, (j * 4 + q) * 16, g.RA))
                    k.e('ds_read_b64 %s, v%d' % (vr(g.RES + 8 * j + 2 * q, 2), g.TA))
        if not final:
            for j in range(2):
                for q in range(4):
                    k.e('ds_read_b128 %s, v%d offset:%d' % (vr(g.G2 + 16 * j + 4 * q, 4), g.CA, 512 + j * 128 + q * 32))
    def epi(g):
        k = g.k
        assert g.M16
        if not PL: operands(g)
        k.e('s_waitcnt lgkmcnt(0)' if (KX or not final) else 's_waitcnt vmcnt(0) lgkmcnt(0)')
        T = g.FR
        for j in range(2):
            a = g.acc(0, j)
            for d in range(8):
                unpack(k, T + 2 * (d % 4), T + 2 * (d % 4) + 1, g.RES + 8 * j + d)
                k.e(pk('fma', a + 2 * d, a + 2 * d, g.GA + 16 * j + 2 * d, T + 2 * (d % 4)))
            if not final:
                if j == 0: k.e('s_waitcnt lgkmcnt(0)')
                for d in range(8): k.e(pk('mul', g.G2 + 16 * j + 2 * d, a + 2 * d, g.G2 + 16 * j + 2 * d))
                store_xf_tile(g, g.G2 + 16 * j, g.GA + 16 * j, g.L16, 36, 's65', j * 2048)
        def keep():
            for j in range(2):
                a = g.acc(0, j)
                if final or KX:
                    for d in range(8):
                        k.e('v_cvt_pk_bf16_f32 v%d, v%d, v%d' % (g.RES + 8 * j + d, a + 2 * d, a + 2 * d + 1))
                    for q in range(4):
                        k.e('v_xor_b32 v%d, %d, v%d' % (g.TA, (j * 4 + q) * 16, g.RA))
                        k.e('ds_write_b64 v%d, %s' % (g.TA, vr(g.RES + 8 * j + 2 * q, 2)))
                else:
                    store_xf_tile(g, a, g.RES + 8 * j, g.L16, 36, 's64', j * 2048)
        if final: keep()
        if final:
            k.e('''
            v_lshrrev_b32 v5, 3, v1
            v_and_b32 v6, 7, v1
            s_lshl_b32 s67, s51, 3
            v_or_b32 v7, s67, v6
            v_xor_b32 v7, v7, v5
            v_lshlrev_b32 v7, 4, v7
            v_lshl_add_u32 v7, v5, 8, v7
            v_add_u32 v7, s66, v7              ; b=0 address
            v_xor_b32 v%d, 128, v7             ; rows 8..15: slot ^ 8
            v_lshlrev_b32 v5, 11, v5
            v_lshl_add_u32 v5, v6, 4, v5       ; global: row*2048 + c*16
            s_waitcnt lgkmcnt(0)
            ''' % g.TA)
            for b in range(4):
                k.e('ds_read_b128 %s, v%d offset:%d' % (vr(g.GA + 4 * b, 4), 7 if b % 2 == 0 else g.TA, b * 2048))
            for b in range(4):
                k.e('s_waitcnt lgkmcnt(%d)' % (3 - b))
                k.e('buffer_store_dwordx4 %s, v5, s[32:35], s63 offen%s' % (vr(g.GA + 4 * b, 4), os.environ.get('OUTFLAG', ' sc1')))
                k.e('s_add_u32 s63, s63, %d' % (8 * 2048))
            l = k.newlabel('ep')
            k.e('s_or_b32 s67, s2, s46')
            k.e('s_cbranch_scc1 %s' % l)
            srd(k, 96, 'ws', WS_EPOCH, 8)
            k.e('v_mov_b32 v%d, s84' % FV); k.e('v_mov_b32 v%d, s85' % (FV + 1)); k.e('v_mov_b32 v%d, 0' % (FV + 2))
            flag_store(k, '0')
            k.label(l)
        else:
            S1 = T + 8; S2 = T + 10
            a0 = g.acc(0, 0)
            k.e(pk('add', S1, a0, a0 + 2))
            k.e(pk('mul', S2, a0, a0))
            k.e(pk('fma', S2, a0 + 2, a0 + 2, S2))
            for r in range(4, 32, 2):
                k.e(pk('add', S1, S1, a0 + r))
                k.e(pk('fma', S2, a0 + r, a0 + r, S2))
            k.e('v_add_f32 v%d, v%d, v%d' % (S1, S1, S1 + 1))
            k.e('v_add_f32 v%d, v%d, v%d' % (S1 + 1, S2, S2 + 1))
            k.e('v_mov_b32 v%d, v%d' % (S2, S1))
            k.e('v_mov_b32 v%d, v%d' % (S2 + 1, S1 + 1))
            k.e('''
            s_lshl_b32 s66, s30, 4
            s_lshl_b32 s67, s31, 1
            s_add_u32 s66, s66, s67
            s_add_u32 s66, s66, s51
            s_lshl_b32 s66, s66, 9             ; (tm*16+part)*512
            s_lshl_b32 s67, s50, 8
            s_add_u32 s66, s66, s67
            v_lshlrev_b32 v5, 3, v3
            ''')
            k.e('v_permlane32_swap_b32 v%d, v%d' % (S1, S2))
            k.e('v_permlane32_swap_b32 v%d, v%d' % (S1 + 1, S2 + 1))
            k.e('s_nop 1')
            k.e(pk('add', S1, S1, S2))
            k.e('s_mov_b32 exec_hi, 0')
            k.e('buffer_store_dwordx2 %s, v5, s[32:35], s66 offen%s' % (vr(S1, 2), WT))
            k.e('s_mov_b32 exec_hi, -1')
            if g.LE and KX:
                k.e('s_barrier'); g.ended = 1
            keep()
            k.e('s_waitcnt lgkmcnt(0)')
    if final:
        sig = None
        wait = ('s_lshr_b32 s100, s30, 1\ns_lshl_b32 s100, s100, 8\ns_add_u32 s100, s100, %d' % FL_WSP, 56)
    else:
        sig = 's_lshr_b32 s100, s30, 1\ns_lshl_b32 s100, s100, 8\ns_and_b32 s101, s30, 1\ns_lshl_b32 s101, s101, 7\ns_add_u32 s100, s100, s101\ns_lshl_b32 s101, s31, 4\ns_add_u32 s100, s100, s101\ns_add_u32 s100, s100, %d' % FL_WO
        wait = ('s_lshr_b32 s100, s30, %d\ns_lshl_b32 s100, s100, 8\ns_add_u32 s100, s100, %d' % (1 if AT2 else 2, FL_ATT), 16 if AT2 else 32)
    k_gemm(k, c, 32, 8, 3, 2, 4, 64, 128, 2, 2, K, 64, 4, X, ('w', wname, 2048, None), pre, pre2, epi, aux=None if EARLYV else aux, auxsz=17 * KB, auxbase=AUX_A, aux_end=None if EARLYV else aux_end,
           auxpre=xtile if EARLYV and not final else None, wait=wait, sig=sig, GU=2, RWD=4, early=early, altmap=True, prelast=operands if PL else None,
           own='s_lshr_b32 s68, s47, 2\ns_mul_i32 s68, s68, 7\ns_lshr_b32 s69, s48, 2\ns_add_u32 s68, s68, s69\ns_min_u32 s68, s68, 13\ns_lshl_b32 s68, s68, 1' if final else None, ownlim=224)

ZKEEP = 72
MSV = 240
def stats_finish(k, S, n, R, M, T):
    k.e('v_mov_b32 v%d, v%d' % (T, S))
    k.e('v_mov_b32 v%d, v%d' % (T + 1, S + 1))
    k.e('s_nop 1')
    k.e('v_permlane32_swap_b32 v%d, v%d' % (S, T))
    k.e('v_permlane32_swap_b32 v%d, v%d' % (S + 1, T + 1))
    k.e('s_nop 1')
    k.e(pk('add', S, S, T))
    k.e('v_mul_f32 v%d, %s, v%d' % (S, hx(1.0 / n), S))
    k.e('v_mul_f32 v%d, v%d, v%d' % (T, S, S))
    k.e('v_mov_b32 v%d, %s' % (T + 1, hx(1.0 / n)))
    k.e('v_fma_f32 v%d, v%d, v%d, -v%d' % (S + 1, S + 1, T + 1, T))
    k.e('v_max_f32 v%d, 0, v%d' % (S + 1, S + 1))
    k.e('v_add_f32 v%d, %s, v%d' % (S + 1, hx(1e-5), S + 1))
    k.e('v_rsq_f32 v%d, v%d' % (R, S + 1))
    k.e('s_nop 0')
    k.e('v_mul_f32_e64 v%d, -v%d, v%d' % (M, S, R))

def uw_job(k, LB):
    k.e("""
    v_lshrrev_b32 v2, 3, v0
    v_and_b32 v3, 7, v0
    v_lshlrev_b32 v4, 6, v2
    s_mov_b32 s31, %d
    v_mul_lo_u32 v5, v2, s31
    v_lshl_add_u32 v5, v3, 4, v5
    s_movk_i32 s44, %d
    s_movk_i32 s45, %d
    s_lshl_b32 s30, s30, 1
    s_waitcnt lgkmcnt(0)
    """ % (16 * 7168, 4 * 4096, 3 * 4096))
    srd(k, 36, 'w_in'); srd(k, 40, 'ws', 0, 64 * KB)
    AV = 72; SV = 88; UA = 104; WA = 112
    lq = k.newlabel('uwq')
    poll_init(k)
    k.label(lq)
    for q in range(4): k.e('buffer_load_dwordx4 %s, v4, s[40:43], s44 offen offset:%d sc1' % (vr(AV + 4 * q, 4), q * 16))
    for q in range(4): k.e('buffer_load_dwordx4 %s, v4, s[40:43], s45 offen offset:%d sc1' % (vr(SV + 4 * q, 4), q * 16))
    if not k.c.first:
        k.e('s_waitcnt vmcnt(0)')
        k.e('v_max_u32 v6, v%d, v%d' % (AV, AV + 1))
        for r in range(AV + 2, AV + 32, 2): k.e('v_max3_u32 v6, v6, v%d, v%d' % (r, r + 1))
        k.e('v_cmp_eq_u32 vcc, -1, v6')
        poll_back(k, lq)
    k.e('s_mov_b32 s50, %d' % LB)
    lp = k.newlabel('uw')
    k.label(lp)
    k.e('s_lshl_b32 s31, s30, 7')
    for j in range(16):
        k.e('buffer_load_dwordx4 %s, v5, s[36:39], s31 offen' % vr(8 + 4 * j, 4))
        k.e('s_add_u32 s31, s31, 7168')
    for j in range(16):
        k.e('s_waitcnt vmcnt(%d)' % (15 - j))
        for d in range(4):
            unpack(k, 6, 7, 8 + 4 * j + d)
            for acc, cf in ((UA, AV), (WA, SV)):
                op = 'v_mul_f32' if j == 0 else 'v_fmac_f32'
                k.e('%s v%d, v6, v%d' % (op, acc + 2 * d, cf + j))
                k.e('%s v%d, v7, v%d' % (op, acc + 2 * d + 1, cf + j))
    red_lanes(k, list(range(UA, UA + 16)), list(range(8, 24)))
    lskip = k.newlabel('uwskip')
    k.e("""
    s_lshl_b32 s47, s46, 9
    s_add_u32 s47, s47, s50
    v_lshl_add_u32 v2, v3, 5, s47      ; pass*4096 + wave*512 + chunk*32
    v_cmp_gt_u32 vcc, 8, v1
    s_and_saveexec_b64 s[48:49], vcc
    ds_write_b128 v2, v[104:107]
    ds_write_b128 v2, v[108:111] offset:16
    ds_write_b128 v2, v[112:115] offset:256
    ds_write_b128 v2, v[116:119] offset:272
    s_mov_b64 exec, s[48:49]
    s_waitcnt lgkmcnt(0)
    s_barrier
    s_cmp_ge_u32 s46, 2
    s_cbranch_scc1 %s
    v_lshl_add_u32 v2, v0, 2, s50      ; wave0: u cols, wave1: w0 cols
    """ % lskip)
    for w in range(8): k.e('ds_read_b32 v%d, v2 offset:%d' % (8 + w, w * 512))
    k.e('s_waitcnt lgkmcnt(0)')
    for w in range(1, 8): k.e('v_add_f32 v8, v8, v%d' % (8 + w))
    k.e("""
    v_min_u32 v8, -2, v8
    v_lshlrev_b32 v2, 2, v1
    s_lshl_b32 s31, s30, 8
    s_lshl_b32 s47, s46, 14
    s_add_u32 s31, s31, s47
    s_add_u32 s31, s31, %d
    buffer_store_dword v8, v2, s[40:43], s31 offen sc1
    s_waitcnt vmcnt(0)
    """ % WS_UW)
    k.label(lskip)
    k.e("""
    s_add_u32 s30, s30, 1
    s_add_u32 s50, s50, 4096
    s_cmp_lt_u32 s50, %d
    s_cbranch_scc1 %s
    """ % (LB + 8192, lp))

def k_win(k, c):
    LP = 1; LPJ = env('LPJ', 3)
    KZ = c.nxt == 'wsp' and env('KEEPZ', 1)
    def post(g):
        if not LP: return
        k = g.k
        srd(k, 36, 'ws', WS_G, 256 * KB)
        k.e("""
        s_lshl_b32 s65, s30, 2
        s_add_u32 s65, s65, s46
        s_lshl_b32 s65, s65, 12            ; rb32*4096
        v_and_b32 v2, 31, v1
        v_lshrrev_b32 v3, 5, v1
        v_mul_u32_u24 v3, %d, v3
        v_lshl_add_u32 v2, v2, 3, v3
        s_lshl_b32 s67, s46, 9
        s_add_u32 s67, s67, %d
        v_lshl_add_u32 v3, v1, 3, s67
        s_setprio 2
        s_barrier
        """ % (7 * 256, g.AUX + 2048))
        lp = k.newlabel('lpoll')
        poll_init(k)
        k.label(lp)
        for p in range(7):
            k.e('buffer_load_dwordx2 %s, v2, s[36:39], s65 offen offset:%d sc1' % (vr(24 + 2 * p, 2), p * 256))
        k.e('s_waitcnt vmcnt(0)')
        k.e('v_max_u32 v5, v24, v25')
        for p in range(1, 7): k.e('v_max3_u32 v5, v5, v%d, v%d' % (24 + 2 * p, 25 + 2 * p))
        k.e('v_cmp_eq_u32 vcc, -1, v5')
        poll_back(k, lp)
        for p in range(1, 7): k.e(pk('add', 24, 24, 24 + 2 * p))
        stats_finish(k, 24, 1792, 40, 41, 26)
        k.e('ds_write_b64 v3, v[40:41]')
        k.e('s_waitcnt lgkmcnt(0)')
        k.e('s_barrier')
    def uw_loads(g):
        g.k.e('buffer_load_dwordx4 v[24:27], v2, s[40:43], s62 offen sc1')
        g.k.e('buffer_load_dwordx4 v[28:31], v2, s[40:43], s63 offen sc1')
    def aux(g):
        k = g.k
        srd(k, 40, 'ws', WS_UW, 32 * KB)
        k.e("""
        v_and_b32 v2, 31, v1
        v_lshlrev_b32 v2, 4, v2
        v_add_u32 v3, 7168, v2
        v_cmp_gt_u32 vcc, 32, v1
        s_lshl_b32 s62, s31, 9
        s_add_u32 s63, s62, %d
        v_cndmask_b32 v2, v2, v3, vcc
        v_lshlrev_b32 v3, 4, v1
        v_add_u32 v3, %d, v3
        """ % (16 * KB, g.AUX))
        uw_loads(g)
        return 2
    def aux_end(g):
        k = g.k
        lp = k.newlabel('uwp'); lc = k.newlabel('uwc')
        poll_init(k)
        k.e('s_branch %s' % lc)
        k.label(lp)
        uw_loads(g)
        k.e('s_waitcnt vmcnt(0)')
        k.label(lc)
        k.e("""
        v_max3_u32 v4, v24, v25, v26
        v_max3_u32 v4, v4, v27, v28
        v_max3_u32 v4, v4, v29, v30
        v_max_u32 v4, v4, v31
        v_cmp_eq_u32 vcc, -1, v4
        """)
        poll_back(k, lp)
        k.e("""
        ds_write_b128 v3, v[24:27]
        ds_write_b128 v3, v[28:31] offset:1024
        s_waitcnt lgkmcnt(0)
        """)
    def pre(g):
        k = g.k
        g.L16 = alloc(g, 1, 1); g.SA = alloc(g, 1, 1); g.GA = alloc(g, 1, 1); g.CA = alloc(g, 1, 1)
        g.R = alloc(g, 2, 2); g.M = alloc(g, 2, 2); g.P = alloc(g, 16)
        srd(k, 32, 'ws', ZB, max(WS_Z, WS_Z2N) - ZB + ZSZ); srd(k, 36, 'ws', WS_ST1, 512 * KB)
        k.e('v_lshlrev_b32 v%d, 4, v1' % g.L16)
        k.e("""
        s_lshl_b32 s61, s30, 2
        s_add_u32 s61, s61, s50           ; rb32
        s_lshr_b32 s64, s61, 1
        s_lshl_b32 s64, s64, 13           ; rb64*8192
        s_and_b32 s65, s61, 1
        s_lshl_b32 s65, s65, 8
        s_add_u32 s64, s64, s65           ; x1 stats offset
        s_lshl_b32 s65, s61, 12
        s_add_u32 s65, s65, %d            ; granule offset (row block)
        s_lshl_b32 s66, s31, 8
        s_add_u32 s66, s66, s65           ; own granule
        s_mul_i32 s60, s61, %d
        s_lshl_b32 s61, s31, 13
        s_add_u32 s60, s60, s61           ; Z1 offset
        v_lshlrev_b32 v5, 3, v3
        v_lshl_add_u32 v%d, v4, 12, v5    ; h*8*512 + row*8
        v_mul_u32_u24 v6, %d, v4
        v_add_u32 v%d, v6, v5             ; h*7*256 + row*8
        v_lshlrev_b32 v%d, 4, v4
        v_add_u32 v%d, %d, v%d
        """ % (WS_G - WS_ST1, 112 * 1024, g.SA, 7 * 256, g.GA, g.CA, g.CA, g.AUX, g.CA))
    def early(g):
        k = g.k
        for p in range(8):
            k.e('buffer_load_dwordx2 %s, v%d, s[36:39], s64 offen offset:%d sc1' % (vr(g.P + 2 * p, 2), g.SA, p * 512))
        k.e('s_waitcnt vmcnt(0)')
        for p in range(1, 8): k.e(pk('add', g.P, g.P, g.P + 2 * p))
        stats_finish(k, g.P, 1024, g.R, g.M, g.P + 2)
    def pre2(g): pass
    def epi(g):
        k = g.k
        c1 = -2.0 * 0.7978845608028654 * LOG2E
        U = g.FR; W0 = g.FR + 16; T = g.FR + 32; PS = g.FR + 48
        def rd_uw(j):
            for q in range(4):
                k.e('ds_read_b128 %s, v%d offset:%d' % (vr(U + 4 * q, 4), g.CA, j * 128 + q * 32))
                k.e('ds_read_b128 %s, v%d offset:%d' % (vr(W0 + 4 * q, 4), g.CA, 1024 + j * 128 + q * 32))
        k.e('s_nop 7')
        rd_uw(0)
        k.e('s_mov_b32 s70, %s' % hx(c1 * 0.044715)); k.e('s_mov_b32 s71, s70')
        k.e('v_mov_b32 v6, %s' % hx(c1))
        S1 = g.P; S2 = g.P + 2
        GR = g.P + 2
        n = 0
        def poll_loads():
            for p in range(7):
                k.e('buffer_load_dwordx2 %s, v%d, s[36:39], s65 offen offset:%d sc1' % (vr(GR + 2 * p, 2), g.GA, p * 256))
        cnt = [0]
        def block(j):
            a = g.acc(0, j)
            g.fix(0, j)
            k.e('s_waitcnt lgkmcnt(0)')
            for r in range(0, 16, 2): k.e(pk('fma', T + r, U + r, (g.M,), W0 + r))
            if j < 7 and not (j == 3 and g.deferred): rd_uw(j + 1)
            for r in range(0, 16, 2): k.e(pk('fma', a + r, a + r, (g.R,), T + r))
            for r in range(0, 16, 2): k.e(pk('mul', T + r, a + r, a + r))
            for r in range(0, 16, 2): k.e(pk('fma', T + r, T + r, 's[70:71]', (6,)))
            for r in range(0, 16, 2): k.e(pk('mul', T + r, T + r, a + r))
            for r in range(16): k.e('v_exp_f32 v%d, v%d' % (T + r, T + r))
            for r in range(0, 16, 2): k.e(pk('add', T + r, T + r, '1.0'))
            for r in range(16): k.e('v_rcp_f32 v%d, v%d' % (T + r, T + r))
            for r in range(0, 16, 2): k.e(pk('mul', a + r, a + r, T + r))
            if j >= 4:
                if KZ:
                    for d in range(8): k.e('v_cvt_pk_bf16_f32 v%d, v%d, v%d' % (ZKEEP + 8 * (j - 4) + d, a + 2 * d, a + 2 * d + 1))
                else:
                    k.e('s_add_u32 s61, s60, %d' % (WS_Z - ZB + (j - 4) * 2048))
                    store_xf_tile(g, a, PS + 8 * (cnt[0] % 3), g.L16, 32, 's61', 0); cnt[0] += 1
            else:
                for r in range(0, 16, 2):
                    if j == 0 and r == 0:
                        k.e(pk('add', S1, a, a + 2)); k.e(pk('mul', S2, a, a))
                    else:
                        if not (j == 0 and r == 2): k.e(pk('add', S1, S1, a + r))
                        k.e(pk('fma', S2, a + r, a + r, S2))
        for j in range(4): block(j)
        k.e('v_add_f32 v%d, v%d, v%d' % (S1, S1, S1 + 1))
        k.e('v_add_f32 v%d, v%d, v%d' % (S1 + 1, S2, S2 + 1))
        k.e('v_mov_b32 v%d, v%d' % (S2, S1))
        k.e('v_mov_b32 v%d, v%d' % (S2 + 1, S1 + 1))
        k.e('v_lshlrev_b32 v5, 3, v3')
        k.e('s_nop 0')
        k.e('v_permlane32_swap_b32 v%d, v%d' % (S1, S2))
        k.e('v_permlane32_swap_b32 v%d, v%d' % (S1 + 1, S2 + 1))
        k.e('s_nop 1')
        k.e(pk('add', S1, S1, S2))
        k.e('v_min_u32 v%d, -2, v%d' % (S1, S1))
        k.e('v_min_u32 v%d, -2, v%d' % (S1 + 1, S1 + 1))
        k.e('s_mov_b32 exec_hi, 0')
        k.e('buffer_store_dwordx2 %s, v5, s[36:39], s66 offen sc1' % vr(S1, 2))
        k.e('s_mov_b32 exec_hi, -1')
        if env('WM', 0): mark(k, 0)
        NB4 = env('NB4', 1) if KZ else 4
        if g.deferred:
            g.deferred()
            rd_uw(4)
        if LPJ == 3: k.e('s_barrier')
        for j in range(4, 4 + NB4):
            block(j)
            if j == LPJ: k.e('s_barrier')
        if env('WM', 0): mark(k, 1)
        R2 = g.P + 4; M2 = g.P + 6
        k.e('s_lshl_b32 s67, s46, 9')
        k.e('s_add_u32 s67, s67, %d' % (g.AUX + 2048))
        k.e('v_lshl_add_u32 v5, v1, 3, s67')
        k.e('s_barrier')
        k.e('ds_read_b64 %s, v5' % vr(R2, 2))
        k.e('s_waitcnt lgkmcnt(0)')
        mark(k, 3)
        k.e('v_mov_b32 v%d, v%d' % (M2, R2 + 1))
        zo = ZOWN and c.nxt == 'wsp'
        if zo:
            assert g.M16
            ZA = g.P + 8
            k.e('''
            s_lshr_b32 s67, s46, 1
            s_lshl_b32 s67, s67, 15
            s_and_b32 s68, s46, 1
            s_lshl_b32 s68, s68, 13
            s_add_u32 s67, s67, s68
            s_add_u32 s67, s67, 16384
            v_bfe_u32 v5, v1, 4, 1
            v_lshl_add_u32 v%d, v5, 12, s67
            v_bfe_u32 v5, v1, 2, 2
            v_lshl_add_u32 v%d, v5, 8, v%d
            v_and_b32 v5, 2, v5
            v_or_b32 v5, v5, v4
            v_lshl_add_u32 v%d, v5, 6, v%d
            v_and_b32 v5, 3, v1
            v_lshl_add_u32 v%d, v5, 4, v%d
            v_xor_b32 v%d, 128, v%d
            ''' % (ZA, ZA, ZA, ZA, ZA, ZA, ZA, ZA + 1, ZA))
        for j in range(4):
            a = g.acc(0, j)
            for r in range(0, 16, 2): k.e(pk('fma', a + r, a + r, (R2,), (M2,)))
            k.e('s_add_u32 s61, s60, %d' % (WS_Z2N - ZB + j * 2048))
            if zo:
                store_xf_tile(g, a, a, g.L16, 32, 's61', 0)
            else:
                store_xf_tile(g, a, PS + 8 * (cnt[0] % 3), g.L16, 32, 's61', 0); cnt[0] += 1
        if zo:
            for j in range(4):
                for t in range(2): k.e('ds_write_b128 v%d, %s offset:%d' % (ZA + t, vr(g.acc(0, j) + 4 * t, 4), j * 1024))
        if g.LE: k.e('s_barrier')
        rest = list(range(4 + NB4, 8))
        NBS = env('NBS', 2)
        for j in rest[:NBS]: block(j)
        signal(k, 'C')
        for j in rest[NBS:]: block(j)
        k.e('s_waitcnt lgkmcnt(0)')
    sig = 's_lshl_b32 s100, s31, 8\ns_lshl_b32 s101, s30, 4\ns_add_u32 s100, s100, s101\ns_add_u32 s100, s100, %d' % FL_WIN
    wait = ('s_lshl_b32 s100, s30, 8\ns_add_u32 s100, s100, %d' % FL_WO, 64)
    k_gemm(k, c, 16, 14, 2, 2, 7, 128, 256, 4, 1, 1024, 32, 4, ('xf', WS_X1S, 1024), ('w', 'w_in', 7168, (256, [3584, 3584 + 128, 0, 128])),
           pre, pre2, epi, aux=aux, auxsz=4 * KB, auxbase=AUX_B, aux_end=aux_end, post=post, selfsig=True, early=early, SOFT=3, DEFER=3, dcols=([0, 1, 2, 3], [4, 5, 6, 7]), JG=2, lazyfix=True, side=(28, uw_job), wait=wait, sig=sig)

def k_wsp(k, c):
    def pre(g):
        k = g.k
        g.L16 = alloc(g, 1, 1); g.L2 = alloc(g, 1, 1); g.B = alloc(g, 4); g.Z = alloc(g, 32)
        srd(k, 32, 'ws', WS_Z, ZSZ); srd(k, 36, 'ws', WS_U2, ZSZ); srd(k, 40, 'b_sp')
        k.e('v_lshlrev_b32 v%d, 4, v1' % g.L16)
        k.e('''
        s_lshl_b32 s60, s31, 13
        s_lshl_b32 s61, s51, 12
        s_add_u32 s60, s60, s61
        s_lshl_b32 s61, s30, 2
        s_lshl_b32 s62, s50, 1
        s_add_u32 s61, s61, s62           ; rb0
        s_lshl_b32 s63, s61, 6
        s_mul_i32 s61, s61, %d
        s_add_u32 s60, s60, s61
        s_add_u32 s61, s60, %d
        v_lshlrev_b32 v%d, 1, v3
        ''' % (112 * 1024, 112 * 1024, g.L2))
    def pre2(g):
        k = g.k
        for i in range(2):
            k.e('buffer_load_ushort v%d, v%d, s[40:43], s63 offen offset:%d' % (g.B + 2 * i, g.L2, i * 64))
        for i in range(2):
            for j in range(2):
                for t in range(2):
                    k.e('buffer_load_dwordx4 %s, v%d, s[32:35], s%d offen offset:%d sc1' % (vr(g.Z + 16 * i + 8 * j + 4 * t, 4), g.L16, 60 + i, (2 * j + t) * 1024))
    def epi(g):
        k = g.k
        T = g.FR
        k.e('s_waitcnt vmcnt(0)')
        for i in range(2): k.e('v_lshlrev_b32 v%d, 16, v%d' % (g.B + 2 * i, g.B + 2 * i))
        k.e('s_nop 7')
        for j in range(2):
            for i in range(2):
                a = g.acc(i, j); z = g.Z + 16 * i + 8 * j
                for d in range(8): unpack(k, T + 2 * d, T + 2 * d + 1, z + d)
                for d in range(8): k.e(pk('add', a + 2 * d, a + 2 * d, (g.B + 2 * i,)))
                for d in range(8): k.e(pk('mul', a + 2 * d, a + 2 * d, T + 2 * d))
                store_xf_tile(g, a, z, g.L16, 36, 's%d' % (60 + i), j * 2048)
    KZ = c.prev == 'win' and env('KEEPZ', 1)
    def preK(g):
        k = g.k
        g.L16 = alloc(g, 1, 1); g.L2 = alloc(g, 1, 1); g.B = alloc(g, 2, 2)
        srd(k, 36, 'ws', WS_U2, ZSZ); srd(k, 40, 'b_sp')
        k.e('v_lshlrev_b32 v%d, 4, v1' % g.L16)
        k.e('''
        s_lshl_b32 s60, s31, 13
        s_lshl_b32 s61, s30, 2
        s_add_u32 s61, s61, s50           ; rb32
        s_lshl_b32 s63, s61, 6
        s_mul_i32 s61, s61, %d
        s_add_u32 s60, s60, s61
        s_add_u32 s61, s60, 4096
        v_lshlrev_b32 v%d, 1, v3
        ''' % (112 * 1024, g.L2))
    def pre2K(g):
        g.k.e('buffer_load_ushort v%d, v%d, s[40:43], s63 offen' % (g.B, g.L2))
    def epiK(g):
        k = g.k
        T = g.FR
        k.e('s_waitcnt vmcnt(0)')
        k.e('v_lshlrev_b32 v%d, 16, v%d' % (g.B, g.B))
        for j in range(4):
            a = g.acc(0, j); z = ZKEEP + 8 * j
            for d in range(8): unpack(k, T + 2 * d, T + 2 * d + 1, z + d)
            for d in range(8): k.e(pk('add', a + 2 * d, a + 2 * d, (g.B,)))
            for d in range(8): k.e(pk('mul', a + 2 * d, a + 2 * d, T + 2 * d))
            store_xf_tile(g, a, z, g.L16, 36, 's%d' % (60 + j // 2), (j % 2) * 2048)
    sig = 's_lshl_b32 s100, s30, 8\ns_lshl_b32 s101, s31, 4\ns_add_u32 s100, s100, s101\ns_add_u32 s100, s100, %d' % FL_WSP
    wait = ('s_lshl_b32 s100, s31, 8\ns_add_u32 s100, s100, %d' % FL_WIN, 64)
    if KZ: k_gemm(k, c, 16, 14, 2, 2, 7, 128, 128, 4, 1, 2048, 64, 3, ('rm', 'w_sp', 4096), ('z', WS_Z2N, 1792), preK, pre2K, epiK, pf='w_out', wait=wait, sig=sig, dep='Y', GU=2, RWD=2, frbase=ZKEEP + 32, own='s_lshl_b32 s68, s30, 1')
    else: k_gemm(k, c, 16, 14, 2, 2, 7, 128, 128, 2, 2, 2048, 64, 3, ('rm', 'w_sp', 4096), ('z', WS_Z2N, 1792), pre, pre2, epi, pf='w_out', wait=wait, sig=sig, dep='Y', GU=2, RWD=2, own='s_lshl_b32 s68, s30, 1')

def k_attn(k, c):
    NS = 4; STG = 32768; NST = 8
    phase_begin(k, c)
    SA, SB, O, NEGM = 8, 24, 40, 56
    L, ONES, Q, KF, VF, P = 72, 76, 80, 88, 96, 104
    A0 = 112; AC = 113; AO = 114; M = 115; T = 116; T2 = 117; PFA = 118; MA = 119; PFD = 120; MT = 124
    assert c.nxt == 'wo'
    k.e("""
    v_and_b32 v1, 63, v0
    s_mov_b32 s46, s3
    s_and_b32 s47, s2, 7
    s_lshr_b32 s48, s2, 3
    s_lshl_b32 s30, s47, 2
    s_lshr_b32 s49, s48, 3
    s_add_u32 s30, s30, s49            ; head
    s_and_b32 s31, s48, 7              ; q block (256 rows)
    v_lshlrev_b32 v%d, 4, v1
    s_lshl_b32 s50, s31, 3
    s_add_u32 s50, s50, s46            ; rb of this wave's queries
    s_lshl_b32 s51, s30, 6
    s_add_u32 s51, s51, s50
    s_lshl_b32 s51, s51, 11            ; Q offset
    s_lshl_b32 s52, s30, 18            ; KV head base
    s_lshl_b32 s53, s46, 12            ; wave part (4KB = one tile)
    s_lshl_b32 s62, s2, 13
    v_lshl_add_u32 v%d, v0, 4, s62     ; prefetch offset wg*8K + tid*16
    s_mov_b32 s62, %d
    s_waitcnt lgkmcnt(0)
    """ % (A0, PFA, 0x40000000 if env('PFOFF', 0) else 0))
    mark(k, 0)
    srd(k, 36, 'ws', WS_KV, 256 * KB, soff='s52'); srd(k, 32, 'ws', WS_Q, 4 * MB)
    set_flag(k, 's_lshl_b32 s100, s31, 8\ns_lshl_b32 s101, s30, 2\ns_add_u32 s100, s100, s101\ns_add_u32 s100, s100, %d' % FL_ATT)
    handoff(k, 's_lshr_b32 s100, s30, 1\ns_lshl_b32 s100, s100, 8\ns_add_u32 s100, s100, %d' % FL_QKV, 64, role='A')
    def dma(slot_expr):
        return ['s_add_u32 m0, s53, %s' % slot_expr] + \
               ['buffer_load_dwordx4 v%d, s[36:39], s56 offen offset:%d sc1 lds' % (A0, q * 1024) for q in range(4)] + \
               ['s_add_u32 s56, s56, %d' % STG]
    def pfl(n): return 'buffer_load_dwordx4 %s, v%d, %s, s62 offen' % (vr(PFD, 4), PFA, sr(n))
    def emit_dma(slot_expr):
        d = dma(slot_expr); k.e(d[0]); k.e('s_nop 0')
        for x in d[1:]: k.e(x)
    AST = env('AST', 1)
    if AST:
        k.e('s_lshl_b32 s56, s46, 10')
        k.e('s_mov_b32 m0, s56')
        k.e('s_mul_i32 s58, s46, 3072')
        k.e('buffer_load_dwordx4 v%d, s[36:39], s56 offen sc1 lds' % A0)
    else:
        k.e('s_mov_b32 s56, s53')
        emit_dma('0')
    k.e('buffer_load_dwordx4 %s, v%d, s[32:35], s51 offen sc1' % (vr(Q, 4), A0))
    k.e('buffer_load_dwordx4 %s, v%d, s[32:35], s51 offen offset:1024 sc1' % (vr(Q + 4, 4), A0))
    if AST:
        k.e('s_add_u32 s56, s58, 8192')
        k.e('s_mov_b32 m0, s56')
        k.e('s_nop 0')
        for q in range(3): k.e('buffer_load_dwordx4 v%d, s[36:39], s56 offen offset:%d sc1 lds' % (A0, q * 1024))
        k.e('s_add_u32 s56, s53, %d' % STG)
        emit_dma(str(STG))
    srd(k, 64, 'w_in'); srd(k, 68, 'w_sp'); srd(k, 32, 'wo')
    srd(k, 40, 'ws', WS_O, 4 * MB)
    k.e("""
    s_lshl_b32 s54, s50, 16
    s_lshl_b32 s55, s30, 11
    s_add_u32 s54, s54, s55            ; O offset
    v_and_b32 v3, 3, v1
    v_bfe_u32 v4, v1, 2, 1
    v_bfe_u32 v5, v1, 4, 1
    v_xor_b32 v4, v4, v5
    v_or_b32 v3, v3, v4
    v_cmp_eq_u32 vcc, 0, v3
    v_mov_b32 v4, 0x3f803f80
    s_nop 1
    v_cndmask_b32 v%d, 0, v4, vcc
    v_mov_b32 v%d, v%d
    v_mov_b32 v%d, v%d
    v_mov_b32 v%d, v%d
    """ % (ONES, ONES + 1, ONES, ONES + 2, ONES, ONES + 3, ONES))
    def adr(t): return (AC if t < 16 else AO), (t % 16) * 4096
    def rdK(t):
        a, o = adr(t)
        return ['ds_read_b128 %s, v%d offset:%d' % (vr(KF, 4), a, o), 'ds_read_b128 %s, v%d offset:%d' % (vr(KF + 4, 4), a, o + 1024)]
    def rdV(t):
        a, o = adr(t)
        return ['ds_read_b128 %s, v%d offset:%d' % (vr(VF, 4), a, o + 2048), 'ds_read_b128 %s, v%d offset:%d' % (vr(VF + 4, 4), a, o + 3072)]
    def qk(S, c):
        return ['v_mfma_f32_32x32x16_bf16 %s, %s, %s, %s' % (vr(S, 16), vr(KF, 4), vr(Q, 4), c),
                'v_mfma_f32_32x32x16_bf16 %s, %s, %s, %s' % (vr(S, 16), vr(KF + 4, 4), vr(Q + 4, 4), vr(S, 16))]
    def maxtile(S, first):
        st = 0
        if first:
            k.e('v_max3_f32 v%d, v%d, v%d, v%d' % (M, S, S + 1, S + 2))
            k.e('v_max_f32 v%d, v%d, v%d' % (M, M, S + 3))
            st = 4
        for r in range(st, 16, 2): k.e('v_max3_f32 v%d, v%d, v%d, v%d' % (M, M, S + r, S + r + 1))
    def set_negm(bias):
        k.e('v_mov_b32 v%d, v%d' % (T, M))
        k.e('s_nop 1')
        k.e('v_permlane32_swap_b32 v%d, v%d' % (M, T))
        k.e('s_nop 1')
        k.e('v_max_f32 v%d, v%d, v%d' % (M, M, T))
        k.e('v_sub_f32 v%d, %s, v%d' % (NEGM, hx(-bias), M))
        for r in range(1, 16): k.e('v_mov_b32 v%d, v%d' % (NEGM + r, NEGM))
    def zero_state():
        for r in range(16): k.e('v_mov_b32 v%d, 0' % (O + r))
        for r in range(4):
            k.e('v_mov_b32 v%d, 0' % (L + r))
            k.e('v_mov_b32 v%d, 0' % (P + 4 + r))
            k.e('v_mov_b32 v%d, 0' % (VF + 4 + r))
        k.e('v_mov_b32 v%d, v%d' % (AC, A0))
        k.e('v_add_u32 v%d, 0x10000, v%d' % (AO, A0))
        k.e('s_mov_b32 s57, 0')
    zero_state()
    if not MP0: srd(k, 80, 'ws', 0, 256 * KB)
    if not MP0: k.e("""
    s_and_b32 s49, s2, 3               ; k quarter
    s_lshl_b32 s49, s49, 3
    s_add_u32 s49, s49, s46            ; 32-row group
    s_mul_i32 s60, s49, %d
    s_lshr_b32 s63, s2, 2              ; col block
    s_lshl_b32 s63, s63, 7
    s_add_u32 s60, s60, s63
    s_add_u32 s60, s60, 4096
    s_add_u32 s61, s60, 12288
    s_and_b32 s49, s2, 3
    s_lshl_b32 s49, s49, 2
    s_and_b32 s63, s46, 3
    s_add_u32 s49, s49, s63
    s_lshl_b32 s49, s49, 8             ; silu offset of row groups 2(w&3), +1
    s_add_u32 s49, s49, %d
    v_lshrrev_b32 v%d, 3, v1
    v_mul_u32_u24 v%d, %d, v%d
    v_and_b32 v%d, 7, v1
    v_lshl_add_u32 v%d, v%d, 4, v%d
    v_lshlrev_b32 v%d, 4, v%d
    """ % (32 * 12288, WS_SC, MT, MA, 4 * 12288, MT, MT + 1, MA, MT + 1, MA, MT, MT))
    def mld(j): return ['s_add_u32 m0, s53, %d' % (AUX_A + j * 1024), 'buffer_load_dwordx4 v%d, s[80:83], s%d offen lds' % (MA, (60, 61, 63, 49)[j])]
    k.e('s_waitcnt vmcnt(%d)' % (7 if AST else 0))
    k.e('s_barrier')
    mark(k, 1)
    for r in rdK(1): k.e(r)
    k.e('s_waitcnt lgkmcnt(0)')
    for m in qk(SB, '0'): k.e(m)
    for r in rdK(0): k.e(r)
    k.e('s_waitcnt lgkmcnt(0)')
    for m in qk(SA, '0'): k.e(m)
    def extras():
        if MP0: return
        k.e(pfl(32))
        k.e('buffer_load_dwordx4 %s, v%d, s[80:83], s49 offen' % (vr(MSV, 4), MT))
        k.e('buffer_load_dwordx4 %s, v%d, s[80:83], s49 offen offset:128' % (vr(MSV + 4, 4), MT))
        srd(k, 80, 'w_mod')
        k.e('s_mov_b32 s49, 0x40000000')
        k.e('s_mov_b32 s63, 0x40000000')
    if AST: k.e('s_nop 7')
    else:
        emit_dma(str(STG)); extras()
    maxtile(SB, True)
    maxtile(SA, False)
    set_negm(40.0)
    if AST:
        k.e('s_waitcnt vmcnt(4)')
        k.e('s_barrier')
        extras()
    mark(k, 2)
    if env('APRIO', 0):
        k.e('s_cmp_ge_u32 s46, 4')
        k.e('s_cbranch_scc0 L_attn_noprio')
        k.e('s_setprio 1')
        k.label('L_attn_noprio')
    k.e('s_mov_b32 s59, %d' % (NST // 2))
    k.e('s_nop 0')
    for m in qk(SA, vr(NEGM, 16)): k.e(m)
    k.e(rdK(1)[0])
    k.e('ds_read_b32 v%d, v%d' % (T, A0))
    k.e(rdK(1)[1])
    k.e(rdV(0)[0])
    k.e('s_nop 7')
    lp = 'L_attn_loop'
    def pv(h): return 'v_mfma_f32_32x32x16_bf16 %s, %s, %s, %s' % (vr(O, 16), vr(VF + 4 * h, 4), vr(P + 4 * h, 4), vr(O, 16))
    def ls(h): return 'v_mfma_f32_16x16x32_bf16 %s, %s, %s, %s' % (vr(L, 4), vr(ONES, 4), vr(P + 4 * h, 4), vr(L, 4))
    def iteration(nsoft, pat0):
        for t in range(16):
            cur, nxt = (SA, SB) if t % 2 == 0 else (SB, SA)
            m_qk = qk(nxt, vr(NEGM, 16))
            kn = rdK(t + 2); v0n = rdV(t + 1)[0]; v1n = rdV(t)[1]
            ex = ['v_exp_f32 v%d, v%d' % (cur + r, cur + r) for r in range(16)]
            cv = ['v_cvt_pk_bf16_f32 v%d, v%d, v%d' % (P + d, cur + 2 * d, cur + 2 * d + 1) for d in range(8)]
            W = 's_waitcnt lgkmcnt(2)'
            head = []; xs = []
            if t % 8 == 6: head = ['s_waitcnt vmcnt(%d)' % (9 if not MP0 else (6 if t == 6 else 7)), 's_barrier']
            if t == 14 and not c.last and not nsoft: head = ['s_cmp_eq_u32 s59, 1', 's_cbranch_scc0 L_attn_nd', 's_waitcnt vmcnt(0)', 'L_attn_nd:'] + head
            d = dma('s58')
            if t % 8 == 0: xs = ['s_xor_b32 s58, s57, 0x%x' % (0x10000 if t == 0 else 0x18000), d[0], d[1]]
            elif t % 8 < 3: xs = [d[1 + t % 8]]
            elif t % 8 == 3: xs = [d[4], d[5]]
            elif t == 4: xs = [pfl(64)]
            elif t == 5: xs = [pfl(68)]
            elif MP0 and t == 7: xs = [pfl(32)]
            elif MP0 and t == 12: xs = ['s_add_u32 s62, s62, %d' % (2 * MB)]
            elif MP0 and t == 13: xs = []
            elif MP0 and t == 15: xs = ['s_xor_b32 s57, s57, 0x10000']
            elif t == 7: xs = mld(0)
            elif t == 12: xs = ['s_add_u32 s62, s62, %d' % (2 * MB)] + mld(2)
            elif t == 13: xs = mld(1)
            elif t == 15: xs = ['s_xor_b32 s57, s57, 0x10000'] + mld(3) + ['s_add_u32 s63, s60, %d' % (2 * 12288), 's_add_u32 s49, s60, %d' % (3 * 12288)]
            tail = ['v_swap_b32 v%d, v%d' % (AC, AO), 's_sub_u32 s59, s59, 1', 's_cmp_lg_u32 s59, 0'] if t == 15 else []
            pat = pat0 if t < nsoft else os.environ.get('APAT', 'eeeQeeePeeccLcc')
            body = []
            for hh in range(2):
                ei = 8 * hh; ci = 4 * hh
                for ch in pat:
                    if ch == 'e': body.append(ex[ei]); ei += 1
                    elif ch == 'c': body.append(cv[ci]); ci += 1
                    elif ch == 'Q': body += [W, m_qk[hh], kn[hh]]
                    elif ch == 'P': body += [pv(1 - hh), v1n if hh == 0 else v0n]
                    elif ch == 'L': body.append(ls(1 - hh))
                assert ei == 8 * hh + 8 and ci == 4 * hh + 4
            if tail:
                last_ds = max(i for i, x in enumerate(body) if x.startswith('ds_') or x.startswith('v_exp'))
                body = body[:last_ds + 1] + tail + body[last_ds + 1:]
            iq = max(i for i, x in enumerate(body) if x == m_qk[1])
            first_e = min(i for i, x in enumerate(body) if x.startswith('v_exp'))
            assert len(body) - 1 - iq + first_e >= 12, 'qk->exp distance'
            seq = list(head)
            for x in body:
                seq.append(x)
                if xs and x.startswith('v_exp'): seq.append(xs.pop(0))
            assert not xs
            AX = os.environ.get('AX', '')
            if 'p' in AX: seq = [x for x in seq if 's62 offen' not in x]
            for x in seq: k.e(x)
    if env('ASOFT', 8): iteration(env('ASOFT', 8), os.environ.get('APAT0', 'eQPLeeeeeeecccc'))
    k.label(lp)
    iteration(0, None)
    k.e('s_cbranch_scc1 %s' % lp)
    k.label('L_attn_epi')
    mark(k, 3)
    k.e('s_waitcnt lgkmcnt(0)')
    k.e(pv(1)); k.e(ls(1))
    k.e('s_nop 15')
    lstore = 'L_attn_store'; lsafe = 'L_attn_safe'
    k.e('v_max3_f32 v%d, |v%d|, |v%d|, |v%d|' % (T, O, O + 1, L))
    for r in range(2, 16, 2): k.e('v_max3_f32 v%d, |v%d|, |v%d|, v%d' % (T, O + r, O + r + 1, T))
    k.e('v_mul_f32 v%d, 0, v%d' % (T2, L))
    for r in range(16): k.e('v_fma_f32 v%d, 0, v%d, v%d' % (T2, O + r, T2))
    k.e('v_add_f32 v%d, v%d, v%d' % (T, T, T2))
    k.e('v_mov_b32 v3, %s' % hx(2.0 ** 120))
    k.e('v_cmp_nlt_f32 vcc, v%d, v3' % T)
    k.e('s_nop 4')
    k.e('s_cbranch_vccnz %s' % lsafe)
    k.label(lstore)
    k.e('v_rcp_f32 v%d, v%d' % (T, L))
    k.e('s_nop 0')
    for r in range(16): k.e('v_mul_f32 v%d, v%d, v%d' % (O + r, O + r, T))
    for d in range(8): k.e('v_cvt_pk_bf16_f32 v%d, v%d, v%d' % (P + d, O + 2 * d, O + 2 * d + 1))
    k.e('buffer_store_dwordx4 %s, v%d, s[40:43], s54 offen%s' % (vr(P, 4), A0, WT))
    k.e('buffer_store_dwordx4 %s, v%d, s[40:43], s54 offen offset:1024%s' % (vr(P + 4, 4), A0, WT))
    signal(k, 'S')
    endpgm(k)
    k.label(lsafe)
    def gl(dst, off): return 'buffer_load_dwordx4 %s, v%d, s[36:39], s56 offen offset:%d sc1' % (vr(dst, 4), A0, off)
    k.e('s_waitcnt vmcnt(0)')
    k.e('s_mov_b32 s56, 0')
    k.e('v_mov_b32 v%d, 0xff800000' % M)
    k.label(lsafe + '1')
    k.e(gl(KF, 0)); k.e(gl(KF + 4, 1024))
    k.e('s_waitcnt vmcnt(0)')
    for m in qk(SA, '0'): k.e(m)
    k.e('s_nop 15')
    maxtile(SA, False)
    k.e('s_add_u32 s56, s56, 4096')
    k.e('s_cmp_lt_u32 s56, %d' % (256 * KB))
    k.e('s_cbranch_scc1 %s1' % lsafe)
    set_negm(0.0)
    zero_state()
    k.e('s_mov_b32 s56, 0')
    k.label(lsafe + '2')
    k.e(gl(KF, 0)); k.e(gl(KF + 4, 1024)); k.e(gl(VF, 2048)); k.e(gl(VF + 4, 3072))
    k.e('s_waitcnt vmcnt(0)')
    for m in qk(SA, vr(NEGM, 16)): k.e(m)
    k.e('s_nop 15')
    for r in range(16): k.e('v_exp_f32 v%d, v%d' % (SA + r, SA + r))
    k.e('s_nop 0')
    for d in range(8): k.e('v_cvt_pk_bf16_f32 v%d, v%d, v%d' % (P + d, SA + 2 * d, SA + 2 * d + 1))
    k.e('s_nop 1')
    k.e(pv(0)); k.e(ls(0)); k.e(pv(1)); k.e(ls(1))
    k.e('s_add_u32 s56, s56, 4096')
    k.e('s_nop 7')
    k.e('s_cmp_lt_u32 s56, %d' % (256 * KB))
    k.e('s_cbranch_scc1 %s2' % lsafe)
    k.e('s_nop 15')
    k.e('s_branch %s' % lstore)
    k.need(MSV + 8, 160 * KB)

def k_attn2(k, c):
    phase_begin(k, c)
    assert c.prev == 'qkv' and c.nxt == 'wo' and not (MP0 and AOWN != 3)
    S2 = (8, 24); O2 = (40, 56); N2 = (72, 88); L2 = (104, 108); Q2 = (112, 120)
    ONES, KF, VF, P = 128, 132, 140, 148
    A0 = 156; AR = 157; M = 158; T = 159; T2 = 160; PFA = 161; MA = 162; MT = 164; PFD = 168
    k.e("""
    v_and_b32 v1, 63, v0
    s_mov_b32 s46, s3
    s_and_b32 s47, s3, 1               ; wn
    s_bfe_u32 s48, s3, 0x10001         ; wm
    s_lshr_b32 s49, s3, 2              ; kh
    s_lshl_b32 s50, s31, 1
    s_add_u32 s50, s50, s47            ; head
    s_lshl_b32 s52, s50, 18
    s_lshl_b32 s51, s49, 17
    s_add_u32 s51, s51, s52            ; stream base in KV
    s_lshl_b32 s55, s49, 1
    s_add_u32 s55, s55, s47
    s_lshl_b32 s55, s55, 15            ; stream ring base in LDS
    s_lshl_b32 s56, s48, 12            ; next global offset: own tile of stage 0
    s_add_u32 s57, s55, s56            ; LDS address of own tile in slot 0
    s_lshl_b32 s53, s3, 12             ; wave*4KB (mod slice staging)
    v_lshlrev_b32 v%d, 4, v1
    v_add_u32 v%d, s55, v%d
    s_lshl_b32 s54, s30, 2
    s_lshl_b32 s58, s48, 1
    s_add_u32 s54, s54, s58
    s_add_u32 s54, s54, s49            ; rb of the tile this wave finalises
    s_lshl_b32 s54, s54, 16
    s_lshl_b32 s58, s50, 11
    s_add_u32 s54, s54, s58            ; O offset
    s_lshl_b32 s62, s2, 13
    v_lshl_add_u32 v%d, v0, 4, s62     ; prefetch offset wg*8K + tid*16
    s_mov_b32 s62, 0
    v_and_b32 v3, 3, v1
    v_bfe_u32 v4, v1, 2, 1
    v_bfe_u32 v5, v1, 4, 1
    v_xor_b32 v4, v4, v5
    v_or_b32 v3, v3, v4
    v_cmp_eq_u32 vcc, 0, v3
    v_mov_b32 v4, 0x3f803f80
    s_nop 1
    v_cndmask_b32 v%d, 0, v4, vcc
    v_mov_b32 v%d, v%d
    v_mov_b32 v%d, v%d
    v_mov_b32 v%d, v%d
    """ % (A0, AR, A0, PFA, ONES, ONES + 1, ONES, ONES + 2, ONES, ONES + 3, ONES))
    mark(k, 0)
    if AOWN:
        srd(k, 36, 'ws', WS_KV, 256 * KB, soff='s52')
        k.e('''
        s_mov_b32 s86, s87                 ; qkv flag the compute waves still have to publish
        s_lshl_b32 s51, s30, 14
        s_add_u32 s51, s51, s56            ; offset of the own pairs (skipped in the stream)
        s_mul_i32 s58, s49, %d
        s_add_u32 s56, s56, s58
        s_cmp_ge_u32 s56, s51
        s_cselect_b32 s58, 16384, 0
        s_add_u32 s56, s56, s58
        ''' % (15 * 8192))
    else: srd(k, 36, 'ws', WS_KV, 128 * KB, soff='s51')
    srd(k, 80, 'ws', 0, 256 * KB)
    srd(k, 64, 'w_in'); srd(k, 68, 'w_sp'); srd(k, 32, 'wo')
    for r in range(16):
        k.e('v_mov_b32 v%d, 0' % (O2[0] + r)); k.e('v_mov_b32 v%d, 0' % (O2[1] + r))
    for r in range(4):
        for b in (L2[0], L2[1], P + 4, VF + 4): k.e('v_mov_b32 v%d, 0' % (b + r))
    k.e("""
    s_and_b32 s58, s2, 3               ; k quarter
    s_lshl_b32 s58, s58, 3
    s_add_u32 s58, s58, s46            ; 32-row group
    s_mul_i32 s60, s58, %d
    s_lshr_b32 s63, s2, 2              ; col block
    s_lshl_b32 s63, s63, 7
    s_add_u32 s60, s60, s63
    s_add_u32 s60, s60, 4096
    s_add_u32 s61, s60, 12288
    s_and_b32 s44, s2, 3
    s_lshl_b32 s44, s44, 2
    s_and_b32 s63, s46, 3
    s_add_u32 s44, s44, s63
    s_lshl_b32 s44, s44, 8             ; silu offset of row groups 2(w&3), +1
    s_add_u32 s44, s44, %d
    v_lshrrev_b32 v%d, 3, v1
    v_mul_u32_u24 v%d, %d, v%d
    v_and_b32 v%d, 7, v1
    v_lshl_add_u32 v%d, v%d, 4, v%d
    v_lshlrev_b32 v%d, 4, v%d
    ; Q / stand-in exchange area: tile A of this wave = tile kh
    s_and_b32 s58, s3, 3
    s_mul_i32 s58, s58, 5120
    s_add_u32 s58, s58, %d
    s_lshl_b32 s63, s49, 11
    s_add_u32 s63, s63, s58
    v_add_u32 v2, s63, v%d             ; Q of tile kh
    v_xor_b32 v3, 1, v2
    s_xor_b32 s63, s49, 1
    s_lshl_b32 s63, s63, 11
    s_add_u32 s63, s63, s58
    v_add_u32 v3, s63, v%d             ; Q of the other tile
    s_lshl_b32 s63, s49, 2
    s_add_u32 s63, s63, s58
    v_lshl_add_u32 v4, v1, 3, s63
    v_xor_b32 v5, 4, v4
    """ % (32 * 12288, WS_SC, MT, MA, 4 * 12288, MT, MT + 1, MA, MT + 1, MA, MT, MT, AUX_A, A0, A0))
    set_flag(k, 's_lshl_b32 s100, s30, 8\ns_lshl_b32 s101, s31, 2\ns_add_u32 s100, s100, s101\ns_add_u32 s100, s100, %d' % FL_ATT)
    def hand(): handoff(k, 's_lshl_b32 s100, s31, 8\ns_add_u32 s100, s100, %d' % FL_QKV, 64, role='A')
    if AOWN: k.e('s_barrier')
    else: hand()
    def dma(slot):
        return ['s_add_u32 m0, s57, %d' % (slot * 8192)] + \
               ['buffer_load_dwordx4 v%d, s[36:39], s56 offen offset:%d sc1 lds' % (A0, q * 1024) for q in range(4)] + \
               ['s_add_u32 s56, s56, 8192' + ('\ns_cmp_eq_u32 s56, s51\ns_cselect_b32 s58, 16384, 0\ns_add_u32 s56, s56, s58' if AOWN else '')]
    def emit_dma(slot):
        d = dma(slot); k.e(d[0]); k.e('s_nop 0')
        for x in d[1:]: k.e(x)
    def pfl(n): return 'buffer_load_dwordx4 %s, v%d, %s, s62 offen' % (vr(PFD, 4), PFA, sr(n))
    def mld(j): return [] if MP0 else ['s_add_u32 m0, s53, %d' % (AUX_A + j * 1024), 'buffer_load_dwordx4 v%d, s[80:83], s%d offen lds' % (MA, (60, 61, 63, 45)[j])]
    if not AOWN: emit_dma(0); emit_dma(1)
    for q in range(2):
        k.e('ds_read_b128 %s, v%d' % (vr(Q2[q], 4), 2 + q))
        k.e('ds_read_b128 %s, v%d offset:1024' % (vr(Q2[q] + 4, 4), 2 + q))
        k.e('ds_read_b32 v%d, v%d offset:4096' % (N2[q], 4 + q))
    k.e('s_waitcnt lgkmcnt(0)')
    for r in range(1, 16):
        for q in range(2): k.e('v_mov_b32 v%d, v%d' % (N2[q] + r, N2[q]))
    if not AOWN:
        k.e('s_waitcnt vmcnt(4)')
        k.e('s_barrier')
        mark(k, 1)
    def rd(dst, t, part): return 'ds_read_b128 %s, v%d offset:%d' % (vr(dst, 4), AR, (t % 8) * 4096 + part * 1024)
    def qk(q, hh, c0=None):
        S_ = S2[q]
        return 'v_mfma_f32_32x32x16_bf16 %s, %s, %s, %s' % (vr(S_, 16), vr(KF + 4 * hh, 4), vr(Q2[q] + 4 * hh, 4), (c0 or vr(N2[q], 16)) if hh == 0 else vr(S_, 16))
    def pv(q, h): return 'v_mfma_f32_32x32x16_bf16 %s, %s, %s, %s' % (vr(O2[q], 16), vr(VF + 4 * h, 4), vr(P + 4 * h, 4), vr(O2[q], 16))
    def ls(q, h): return 'v_mfma_f32_16x16x32_bf16 %s, %s, %s, %s' % (vr(L2[q], 4), vr(ONES, 4), vr(P + 4 * h, 4), vr(L2[q], 4))
    k.e(rd(KF, 0, 0)); k.e(rd(KF + 4, 0, 1)); k.e(rd(VF, 0, 2))
    def silu_loads():
        if MP0: return
        k.e('buffer_load_dwordx4 %s, v%d, s[80:83], s44 offen sc1' % (vr(MSV, 4), MT))
        k.e('buffer_load_dwordx4 %s, v%d, s[80:83], s44 offen offset:128 sc1' % (vr(MSV + 4, 4), MT))
    def wmod():
        if MP0: return
        srd(k, 80, 'w_mod')
        k.e('s_add_u32 s63, s60, %d' % (2 * 12288))
        k.e('s_add_u32 s45, s60, %d' % (3 * 12288))
    if not AOWN: silu_loads()
    k.e('s_waitcnt lgkmcnt(1)')
    k.e(qk(0, 0)); k.e(qk(0, 1))
    if AOWN: k.e('s_nop 11')
    else:
        emit_dma(2); wmod()
    OD = env('OD', 0) and AOWN == 3
    ool = []
    def late_start():
        if AOWN == 1:
            l = k.newlabel('ls')
            k.e('s_cmp_lt_u32 s3, 4'); k.e('s_cbranch_scc1 %s' % l)
            flag_prep(k)
            k.e('s_and_b32 s100, s3, 3\ns_lshl_b32 s100, s100, 7\ns_add_u32 s100, s100, s86')
            k.e('s_waitcnt vmcnt(0)')
            flag_store(k, 's100')
            k.label(l)
        hand()
        mark(k, 1)
        if OD:
            emit_dma(1); silu_loads(); wmod()
            k.e('''
            s_lshl_b32 s43, s48, 12
            s_add_u32 s43, s43, %d
            s_cmp_ge_u32 s43, s51
            s_cselect_b32 s58, 16384, 0
            s_add_u32 s43, s43, s58
            s_cmp_lt_u32 s3, 4
            s_cselect_b64 vcc, -1, 0
            s_cbranch_scc0 L_attn_np
            s_setprio 1
            L_attn_np:
            ''' % (16 * 8192))
        else:
            emit_dma(1); silu_loads(); emit_dma(2); wmod()
    k.e('s_mov_b32 s59, %d' % (3 if env('LASTB', 1) and not OD else 4))
    mark(k, 2)
    lp = 'L_attn_loop'
    LASTB = env('LASTB', 1) and not OD
    def iteration(first, nsoft, pat0, last=False):
        for u in range(16):
            t = u // 2; q = u % 2; st = u // 4; us = u % 4
            cur = S2[q]
            ex = ['v_exp_f32 v%d, v%d' % (cur + r, cur + r) for r in range(16)]
            cv = ['v_cvt_pk_bf16_f32 v%d, v%d, v%d' % (P + d, cur + 2 * d, cur + 2 * d + 1) for d in range(8)]
            if q == 0:
                Qs = [[qk(1, 0), rd(KF, t + 1, 0)], [qk(1, 1), rd(KF + 4, t + 1, 1)]]
                Ps = [[pv(1, 1), rd(VF + 4, t, 3)], ['WAITV', pv(0, 0)]]
            else:
                Qs = [['s_waitcnt lgkmcnt(0)', qk(0, 0)], [qk(0, 1)]]
                Ps = [[pv(0, 1)], [pv(1, 0), rd(VF, t + 1, 2)]]
            Ls = [ls(1 - q, 1), ls(q, 0)]
            peel = first and AOWN == 4 and u in (2, 3)
            if peel and u == 2:
                Qs = [[qk(1, 0)], [qk(1, 1)]]; Ps = [[pv(1, 1), rd(VF + 4, t, 3)], ['s_waitcnt lgkmcnt(1)', pv(0, 0)]]
            if peel and u == 3:
                Qs = [['s_waitcnt lgkmcnt(0)'], ['s_nop 0']]; Ps = [[pv(0, 1)], [pv(1, 0)]]
            inc = ['s_add_u32 s62, s62, %d' % (2 * MB)]
            NOPF = env('NOPF', 0)
            if first and AOWN: extra = [[], [], mld(0) + [pfl(32)], [pfl(64)], mld(1), mld(2), mld(3), [pfl(68)] + inc]
            elif first: extra = [[], [pfl(32)], mld(0), [pfl(64)], mld(1), mld(2), mld(3), [pfl(68)] + inc]
            else: extra = [[], [], [pfl(64)], [], [], [], [pfl(68)] + inc, []]
            if NOPF: extra = [[y for y in x if 's62' not in y] for x in extra]
            cnt = lambda e: [sum('buffer_load' in y for y in e[2 * i] + e[2 * i + 1]) for i in range(4)]
            nx_ = cnt(extra)
            prevx = ((0 if MP0 else 2) if first else nx_[3]) if st == 0 else nx_[st - 1]
            head = ['s_waitcnt vmcnt(%d)' % (prevx + 4 + nx_[st]), 's_barrier'] if us == 2 else []
            if last and us == 2 and st >= 2: head = (['s_waitcnt vmcnt(%d)' % (prevx + nx_[st])] if st == 2 else []) + ['s_barrier']
            if peel: head = []
            d = dma((st + 3) % 4)
            if OD and us == 2:
                lb = 'L_attn_fd%d_%d' % (first, st)
                d0 = dma((st + 2) % 4)
                d1 = [x.replace('s56', 's43').replace('s57, %d' % (((st + 2) % 4) * 8192), 's57, %d' % (((st + 2) % 4) * 8192 + 65536)) for x in d0]
                nw = 8 + nx_[st] + (2 if first and st == 0 else 0)
                ool.append([lb + ':', d0[0], 's_nop 0'] + d0[1:5] + [d1[0], 's_nop 0'] + d1[1:5] + [d0[5], d1[5], 's_waitcnt vmcnt(%d)' % nw, 's_branch %sr' % lb])
                head = ['s_cbranch_vccnz %s' % lb] + (['s_waitcnt vmcnt(2)'] if first and st == 0 else []) + [lb + 'r:', 's_barrier']
            if (OD or (last and st >= 1)) and us >= 2: xs = []
            elif us == 2: xs = [d[0], d[1], None, None, None, None, None, None, None, d[2]]
            elif us == 3: xs = [d[3], None, None, None, None, None, None, None, d[4], d[5]]
            else: xs = list(extra[2 * st + us])
            pat = pat0 if u < nsoft else os.environ.get('APAT', 'eeeQeeePeeccLcc')
            assert pat.index('Q') < pat.index('P')
            body = []
            for hh in range(2):
                ei = 8 * hh; ci = 4 * hh
                for ch in pat:
                    if ch == 'e': body.append(ex[ei]); ei += 1
                    elif ch == 'c': body.append(cv[ci]); ci += 1
                    elif ch == 'Q': body += Qs[hh]
                    elif ch == 'P': body += Ps[hh]
                    elif ch == 'L': body.append(Ls[hh])
            body = ['s_waitcnt lgkmcnt(3)' if x == 'WAITV' else x for x in body]
            if u == 15 and not last:
                le = max(i for i, x in enumerate(body) if x.startswith('v_exp'))
                body = body[:le + 1] + ['s_sub_u32 s59, s59, 1', 's_cmp_lg_u32 s59, 0'] + body[le + 1:]
            if peel and u == 3:
                body += ['s_waitcnt vmcnt(10)', 's_barrier', rd(KF, 2, 0), rd(KF + 4, 2, 1), rd(VF, 2, 2), 's_waitcnt lgkmcnt(1)', qk(0, 0), qk(0, 1)]
            iq = body.index(qk(1 - q, 1))
            first_e = min(i for i, x in enumerate(body) if x.startswith('v_exp'))
            gap = len(body) - 1 - iq + first_e
            if gap < 12: body.append('s_nop %d' % (11 - gap))
            if first and AOWN and u == (0 if AOWN == 3 else 2): late_start()
            seq = list(head)
            for x in body:
                seq.append(x)
                if xs and x.startswith('v_exp'):
                    y = xs.pop(0)
                    if y: seq.append(y)
            assert not xs
            AX = os.environ.get('AX', '')
            if 'b' in AX: seq = [x for x in seq if x != 's_barrier']
            if 'p' in AX: seq = [x for x in seq if 's62 offen' not in x and 's[80:83]' not in x]
            if 'v' in AX: seq = [x for x in seq if 'buffer_load' not in x]
            if 'd' in AX: seq = [x for x in seq if not x.startswith('ds_read') and 'lgkmcnt' not in x]
            if 'l' in AX: seq = [x for x in seq if '16x16x32' not in x]
            for x in seq: k.e(x)
    iteration(True, env('ASOFT', 8), os.environ.get('APAT0', 'eQPLeeeeeeecccc'))
    k.label(lp)
    iteration(False, 0, None)
    k.e('s_cbranch_scc1 %s' % lp)
    if LASTB:
        iteration(False, 0, None, last=True)
        k.e('s_nop 0')
    k.label('L_attn_epi')
    if 'b' in os.environ.get('AX', ''): k.e('s_barrier')
    mark(k, 3)
    k.e('s_nop 0')
    k.e(pv(1, 1)); k.e(ls(1, 1))
    if LASTB:
        k.e("""
        s_lshl_b32 s58, s48, 13
        s_add_u32 s58, s58, s55
        s_add_u32 s58, s58, 8192
        v_add_u32 v2, s58, v%d
        v_lshl_add_u32 v4, v1, 2, s58
        s_xor_b32 s58, s58, 0x10000
        v_add_u32 v3, s58, v%d
        v_lshl_add_u32 v5, v1, 2, s58
        s_nop 3
        """ % (A0, A0))
    else:
        k.e("""
        s_mul_i32 s58, s3, 5120
        v_add_u32 v2, s58, v%d
        v_lshl_add_u32 v4, v1, 2, s58
        s_xor_b32 s58, s3, 4
        s_mul_i32 s58, s58, 5120
        v_add_u32 v3, s58, v%d
        v_lshl_add_u32 v5, v1, 2, s58
        s_waitcnt vmcnt(0) lgkmcnt(0)
        s_barrier
        s_nop 3
        """ % (A0, A0))
    for r in range(4): k.e('ds_write_b128 v2, %s offset:%d' % (vr(O2[1] + 4 * r, 4), r * 1024))
    k.e('ds_write_b32 v4, v%d offset:4096' % L2[1])
    srd(k, 40, 'ws', WS_O, 4 * MB)
    k.e('s_waitcnt lgkmcnt(0)')
    k.e('s_barrier')
    for r in range(4): k.e('ds_read_b128 %s, v3 offset:%d' % (vr(S2[0] + 4 * r, 4), r * 1024))
    k.e('ds_read_b32 v%d, v5 offset:4096' % T)
    k.e('s_waitcnt lgkmcnt(0)')
    O = O2[0]; L = L2[0]; SA = S2[0]; NEGM = N2[0]
    for r in range(0, 16, 2): k.e(pk('add', O + r, O + r, SA + r))
    k.e('v_add_f32 v%d, v%d, v%d' % (L, L, T))
    lstore = 'L_attn_store'; lsafe = 'L_attn_safe'
    k.e('v_max3_f32 v%d, |v%d|, |v%d|, |v%d|' % (T, O, O + 1, L))
    for r in range(2, 16, 2): k.e('v_max3_f32 v%d, |v%d|, |v%d|, v%d' % (T, O + r, O + r + 1, T))
    k.e('v_mul_f32 v%d, 0, v%d' % (T2, L))
    for r in range(16): k.e('v_fma_f32 v%d, 0, v%d, v%d' % (T2, O + r, T2))
    k.e('v_add_f32 v%d, v%d, v%d' % (T, T, T2))
    k.e('v_mov_b32 v3, %s' % hx(2.0 ** 120))
    k.e('v_cmp_nlt_f32 vcc, v%d, v3' % T)
    k.e('s_nop 4')
    k.e('s_cbranch_vccnz %s' % lsafe)
    k.label(lstore)
    k.e('v_rcp_f32 v%d, v%d' % (T2, L))
    k.e('s_nop 0')
    for r in range(0, 16, 2): k.e(pk('mul', O + r, O + r, (T2,)))
    for d in range(8): k.e('v_cvt_pk_bf16_f32 v%d, v%d, v%d' % (P + d, O + 2 * d, O + 2 * d + 1))
    k.e('buffer_store_dwordx4 %s, v%d, s[40:43], s54 offen%s' % (vr(P, 4), A0, WT))
    k.e('buffer_store_dwordx4 %s, v%d, s[40:43], s54 offen offset:1024%s' % (vr(P + 4, 4), A0, WT))
    signal(k, 'S')
    endpgm(k)
    for blk in ool:
        for x in blk: k.e(x)
    k.label(lsafe)
    srd(k, 36, 'ws', WS_KV, 256 * KB, soff='s52')
    def gl(dst, off): return 'buffer_load_dwordx4 %s, v%d, s[36:39], s56 offen offset:%d sc1' % (vr(dst, 4), A0, off)
    k.e('s_mov_b32 s56, 0')
    k.e('v_mov_b32 v%d, 0xff800000' % M)
    k.label(lsafe + '1')
    k.e(gl(KF, 0)); k.e(gl(KF + 4, 1024))
    k.e('s_waitcnt vmcnt(0)')
    k.e(qk(0, 0, '0')); k.e(qk(0, 1))
    k.e('s_nop 15')
    for r in range(0, 16, 2): k.e('v_max3_f32 v%d, v%d, v%d, v%d' % (M, M, SA + r, SA + r + 1))
    k.e('s_add_u32 s56, s56, 4096')
    k.e('s_cmp_lt_u32 s56, %d' % (256 * KB))
    k.e('s_cbranch_scc1 %s1' % lsafe)
    k.e('v_mov_b32 v%d, v%d' % (T, M))
    k.e('s_nop 1')
    k.e('v_permlane32_swap_b32 v%d, v%d' % (M, T))
    k.e('s_nop 1')
    k.e('v_max_f32 v%d, v%d, v%d' % (M, M, T))
    k.e('v_sub_f32 v%d, 0, v%d' % (NEGM, M))
    for r in range(1, 16): k.e('v_mov_b32 v%d, v%d' % (NEGM + r, NEGM))
    for r in range(16): k.e('v_mov_b32 v%d, 0' % (O + r))
    for r in range(4): k.e('v_mov_b32 v%d, 0' % (L + r))
    k.e('s_mov_b32 s56, 0')
    k.label(lsafe + '2')
    k.e(gl(KF, 0)); k.e(gl(KF + 4, 1024)); k.e(gl(VF, 2048)); k.e(gl(VF + 4, 3072))
    k.e('s_waitcnt vmcnt(0)')
    k.e(qk(0, 0)); k.e(qk(0, 1))
    k.e('s_nop 15')
    for r in range(16): k.e('v_exp_f32 v%d, v%d' % (SA + r, SA + r))
    k.e('s_nop 0')
    for d in range(8): k.e('v_cvt_pk_bf16_f32 v%d, v%d, v%d' % (P + d, SA + 2 * d, SA + 2 * d + 1))
    k.e('s_nop 1')
    k.e(pv(0, 0)); k.e(ls(0, 0)); k.e(pv(0, 1)); k.e(ls(0, 1))
    k.e('s_add_u32 s56, s56, 4096')
    k.e('s_nop 7')
    k.e('s_cmp_lt_u32 s56, %d' % (256 * KB))
    k.e('s_cbranch_scc1 %s2' % lsafe)
    k.e('s_nop 15')
    k.e('s_branch %s' % lstore)
    k.need(MSV + 8, 160 * KB)

PHASES = dict(p0=k_p0, qkv=k_qkv, attn=k_attn2 if AT2 else k_attn,
              wo=lambda k, c: k_proj(k, c, 1024, ('xf', WS_O, 1024), 'wo', False),
              win=k_win, wsp=k_wsp,
              wout=lambda k, c: k_proj(k, c, 1792, ('xf', WS_U2, 1792), 'w_out', True))
GROUPS = [g.split('+') for g in os.environ.get('GRP', 'p0+qkv+attn+wo+win+wsp+wout').split(',')]
def same_kernel(a, b): return any(a in g_ and b in g_ for g_ in GROUPS)
def build():
    ks = []
    for grp in GROUPS:
        k = Kern(grp[0] if len(grp) == 1 else 'm' + grp[0], 256, 1024 if grp[0] == 'pre' else 512, 0)
        prologue(k)
        for i, ph in enumerate(grp):
            c = Ctx(); c.name = ph; c.first = i == 0; c.last = i == len(grp) - 1; c.nxt = None if c.last else grp[i + 1]; c.prev = grp[i - 1] if i else None
            PHASES[ph](k, c)
        k.label(k.endl)
        k.e('s_endpgm')
        assert k.lds <= 160 * KB
        ks.append(k)
    s = '; adaLN + softmax MHA + gMLP block, generated by gen.py (hand-written generator)\n'
    for k in ks: s += k.launch()
    s += '.amdgcn_target "amdgcn-amd-amdhsa--gfx950"\n.text\n'
    for k in ks: s += k.text()
    s += 'L_text_end:\n    s_endpgm\n'
    s += '.section .rodata,"a"\n'
    for k in ks: s += k.desc()
    if len(ks) == 1 and env('SINGLE', 0):
        s = s.replace('; @launch kernel=%s_kernel ' % ks[0].name, '; @launch ')
        s = s.replace(ks[0].name + '_kernel', 'adaLN_cond__softmax_full_mha__mixer_gmlp__prompt_kernel')
    return s

PROMO = ('v_exp_f32', 'v_rcp_f32', 'v_mov_b32', 'v_add_f32', 'v_mul_f32', 'v_sub_f32', 'v_max_f32', 'v_lshlrev_b32', 'v_lshrrev_b32',
         'v_and_b32', 'v_xor_b32', 'v_or_b32', 'v_add_u32', 'v_fmac_f32', 'v_min_u32', 'v_max_u32', 'v_rsq_f32', 'v_sqrt_f32')
def align8(text):
    import subprocess, tempfile, re
    lines = text.split('\n')
    i0 = next(i for i, l in enumerate(lines) if l.endswith('_kernel:')); i1 = next(i for i, l in enumerate(lines) if l.startswith('.section'))
    idx = [i for i in range(i0, i1) if lines[i].strip() and not lines[i].strip().startswith((';', '.')) and not lines[i].strip().endswith(':')]
    with tempfile.TemporaryDirectory() as d:
        open(d + '/a.s', 'w').write(text)
        subprocess.check_call(['clang', '-x', 'assembler', '-target', 'amdgcn-amd-amdhsa', '-mcpu=gfx950', '-c', d + '/a.s', '-o', d + '/a.o'])
        dis = subprocess.check_output(['llvm-objdump', '-d', '--mcpu=gfx950', d + '/a.o'], text=True)
    sz = [4 * len(m.group(1).split()) for m in re.finditer(r'// [0-9A-F]{12}: ([0-9A-F ]+)', dis)]
    assert len(sz) == len(idx), (len(sz), len(idx))
    off = 0; ins = {}; npro = nnop = 0
    MINRUN = env('MINRUN', 8)
    for n, i in enumerate(idx):
        if sz[n] == 8 and off % 8 == 4:
            p = n - 1; done = False
            while p >= 0 and sz[p] == 4:
                op = lines[idx[p]].split()[0]
                if op in PROMO:
                    lines[idx[p]] = lines[idx[p]].replace(op, op + '_e64', 1); sz[p] = 8; off += 4; done = True; npro += 1
                    break
                p -= 1
            if not done:
                r = 0
                while n + r < len(sz) and sz[n + r] == 8: r += 1
                prev = lines[idx[n - 1]].split()[0]
                if r >= MINRUN and prev != 's_getpc_b64':
                    ins[i] = '    s_nop 0'; off += 4; nnop += 1
        off += sz[n]
    out = []
    for i, l in enumerate(lines):
        if i in ins: out.append(ins[i])
        out.append(l)
    print('align8: %d widened, %d nops' % (npro, nnop))
    return '\n'.join(out)

if __name__ == '__main__':
    out = sys.argv[1] if len(sys.argv) > 1 else 'adaLN_cond__softmax_full_mha__mixer_gmlp__prompt.s'
    txt = build()
    if env('AL8', 1): txt = align8(txt)
    open(out, 'w').write(txt)
    print('wrote', out)
```

```python
import sys, struct, os
STAMP = int(os.environ.get('STAMP', '0'))
WS_STAMP = 128 << 20
KIDX = [0]
def env(n, d): return int(os.environ.get(n, d))

MB = 1 << 20
KB = 1024
WS_MOD = 0
WS_UW  = 32 * KB
WS_ST0 = 64 * KB
WS_MODP = 128 * KB
WS_MODT = 768 * KB
TAGP = env('TAGP', 1)
WS_SC = 96 * KB
WS_MODQ = 160 * KB
WS_ST1 = 256 * KB
WS_G   = 512 * KB
WS_FL  = 58 * MB
FLSZ = 2 * MB
FL_LN1, FL_QKV, FL_ATT, FL_WO, FL_WIN, FL_WSP, FL_MOD = [i * 8 * KB for i in range(7)]
WS_EPOCH = 240 * KB
AUX_A = 128 * KB; AUX_B = 148 * KB
WS_H   = 1 * MB
WS_Q   = 5 * MB
WS_KV  = 9 * MB
WS_G2  = 57 * MB
WS_N   = 60 * MB
WS_O   = 17 * MB
WS_X1  = 21 * MB
WS_X1S = 25 * MB
WS_Z   = 29 * MB
ZSZ = 2048 * 1792 * 2
WS_Z2N = WS_Z + ZSZ
WS_U2  = 50 * MB
if env('ALIAS', 0):
    WS_Q = 1 * MB; WS_KV = 5 * MB; WS_H = 13 * MB
    WS_O = WS_H; WS_X1 = WS_Q; WS_X1S = WS_KV
    WS_Z2N = 9 * MB; WS_Z = 17 * MB; WS_U2 = WS_Z
ZB = min(WS_Z, WS_Z2N)

ROLES = {'pre': [('mod', 0, 128, 0, 16), ('stats', 128, 256, 0, 16)], 'ln1': [('pf', 0, 256, 0, 4), ('ln', 0, 256, 4, 8)],
         'attn': [('main', 0, 256, 0, 8)]}
for _n in ('qkv', 'wo', 'wout'): ROLES[_n] = [('load', 0, 256, 0, 4), ('comp', 0, 256, 4, 8)]
for _n in ('win', 'wsp'): ROLES[_n] = [('load', 0, 224, 0, 4), ('comp', 0, 224, 4, 8), ('pf', 224, 256, 0, 8)]
def f2u(f): return struct.unpack('<I', struct.pack('<f', f))[0]
def hx(f): return '0x%08x' % f2u(f)
LOG2E = 1.4426950408889634
WT = os.environ.get('WTF', ' sc1')

class Kern:
    def __init__(self, name, grid, block, lds):
        self.name = name; self.grid = grid; self.block = block; self.lds = lds
        self.lines = []; self.vgpr = 0; self.nlab = 0
    def e(self, s):
        for l in s.strip('\n').split('\n'):
            l = l.strip()
            if l: self.lines.append('    ' + l)
    def label(self, l):
        if env('ALIGN', 0) and ('_loop' in l or '_lloop' in l):
            self.lines.append('.p2align %d' % env('ALIGN', 0))
            for _ in range(env('ALOFF', 0)): self.lines.append('    s_nop 0')
        self.lines.append(l + ':')
    def newlabel(self, base):
        self.nlab += 1
        return 'L_%s_%s%d' % (self.name, base, self.nlab)
    def need(self, vgpr, lds):
        self.vgpr = max(self.vgpr, vgpr); self.lds = max(self.lds, lds)
    def text(self):
        GX = os.environ.get('GX', '')
        if self.name != 'pre':
            if 'm' in GX: self.lines = [l for l in self.lines if 'v_mfma' not in l]
            if 'l' in GX: self.lines = [l for l in self.lines if not (' lds' in l and 'buffer_load' in l and ('s57' in l or 's58' in l))]
            if 'r' in GX: self.lines = [l for l in self.lines if not ('ds_read_b64_tr' in l)]
        if os.environ.get('NOLDSC'):
            self.lines = [l.replace(' sc1 lds', ' lds') for l in self.lines]
        n = self.name + '_kernel'
        return '.globl %s\n.p2align 8\n.type %s,@function\n%s:\n' % (n, n, n) + '\n'.join(self.lines) + '\n'
    def desc(self):
        n = self.name + '_kernel'
        v = self.vgpr
        acc = (v + 3) // 4 * 4
        return ('.p2align 6\n.amdhsa_kernel %s\n  .amdhsa_next_free_vgpr %d\n  .amdhsa_next_free_sgpr 102\n'
                '  .amdhsa_accum_offset %d\n  .amdhsa_group_segment_fixed_size 0\n  .amdhsa_kernarg_size 104\n'
                '  .amdhsa_user_sgpr_count 2\n  .amdhsa_user_sgpr_kernarg_segment_ptr 1\n'
                '  .amdhsa_system_sgpr_workgroup_id_x 1\n.end_amdhsa_kernel\n' % (n, v, acc))
    def launch(self):
        return '; @launch kernel=%s_kernel grid=(%d,1,1) block=(%d,1,1) lds=%d\n' % (self.name, self.grid, self.block, self.lds)

PTR = dict(x=4, wqkv=6, wo=8, bx=10, w_in=12, w_sp=14, b_sp=16, w_out=18, c=20, w_mod=22, out=24, dbg=26, ws=28)
SIZES = dict(x=2048*1024*2, wqkv=1024*3072*2, wo=1024*1024*2, w_in=1024*3584*2, w_sp=2048*2048*2, b_sp=2048*2,
             w_out=1792*1024*2, c=2048, w_mod=1024*6144*2, out=2048*1024*2, dbg=256)

class Ctx: pass
PHIDX = {}
def prologue(k):
    k.endl = 'L_%s_end' % k.name
    k.e("""
    s_load_dwordx16 s[4:19], s[0:1], 0
    s_load_dwordx8 s[20:27], s[0:1], 64
    s_load_dwordx2 s[28:29], s[0:1], 96
    s_cmp_ge_u32 s2, %d
    s_cbranch_scc1 %s
    v_lshrrev_b32 v1, 6, v0
    s_nop 0
    v_readfirstlane_b32 s3, v1
    """ % (k.grid, k.endl))

def phase_begin(k, c):
    k.c = c
    k.label('L_%s_entry' % c.name)
    if env('IDLE_' + c.name, 0):
        for _ in range(env('IDLE_' + c.name, 0)): k.e('s_sleep 36')
    c.kidx = KIDX[0]; KIDX[0] += 1
    PHIDX[c.name] = c.kidx
    if env('PADTO', 0) and c.first: k.e('s_memrealtime s[90:91]')
    if env('DBG', 0) and c.first: dbgstamp(k, 0 if c.name == 'pre' else 10, 512 if c.name == 'pre' else 0, '')
    if STAMP:
        k.e('s_memtime s[88:89]')
        k.e('s_memrealtime s[90:91]')
        for i in range(4): k.e('s_mov_b64 s[%d:%d], 0' % (72 + 2 * i, 73 + 2 * i))

def dbgstamp(k, idx, off, op):
    l = k.newlabel('dbg')
    k.e('''
    s_lshl_b32 s80, s2, 4
    s_add_u32 s80, s80, s3
    s_cmp_lg_u32 s80, %d
    s_cbranch_scc1 %s
    s_waitcnt lgkmcnt(0)
    s_memrealtime s[92:93]
    s_add_u32 s80, s26, %d
    s_addc_u32 s81, s27, 0
    s_and_b32 s81, s81, 0xffff
    s_mov_b32 s82, 256
    s_mov_b32 s83, 0x20000
    s_mov_b64 exec, 1
    s_waitcnt lgkmcnt(0)
    v_mov_b32 v2, s92
    v_mov_b32 v5, %d
    buffer_store_dword v2, v5, s[80:83], 0 offen
    s_mov_b64 exec, -1
    ''' % (5 * 16 + 4, l, off, idx * 4))
    k.label(l)
def endpgm(k):
    c = k.c
    if env('DBG', 0): dbgstamp(k, 1 + c.kidx, 512 if c.name == 'pre' else 0, '')
    if STAMP:
        k.e("""
        s_waitcnt vmcnt(0) lgkmcnt(0)
        s_memtime s[92:93]
        s_memrealtime s[94:95]
        s_mov_b64 exec, 1
        s_add_u32 s80, s28, 0x%x
        s_addc_u32 s81, s29, 0
        s_and_b32 s81, s81, 0xffff
        s_mov_b32 s82, 0x100000
        s_mov_b32 s83, 0x20000
        s_lshl_b32 s86, s2, 4
        s_add_u32 s86, s86, s3
        s_lshl_b32 s86, s86, 5
        s_waitcnt lgkmcnt(0)
        v_mov_b32 v4, s90
        v_mov_b32 v5, s94
        v_mov_b32 v6, s88
        v_mov_b32 v7, s92
        v_mov_b32 v8, s72
        v_mov_b32 v9, s74
        v_mov_b32 v10, s76
        v_mov_b32 v11, s78
        v_mov_b32 v2, s86
        buffer_store_dwordx4 v[4:7], v2, s[80:83], 0 offen
        buffer_store_dwordx4 v[8:11], v2, s[80:83], 0 offen offset:16
        s_waitcnt vmcnt(0)
        """ % (WS_STAMP + c.kidx * (1 << 20)))
    if c.last and env('PADTO', 0):
        l = k.newlabel('pad')
        k.label(l)
        k.e('s_memrealtime s[92:93]\ns_waitcnt lgkmcnt(0)\ns_sub_u32 s92, s92, s90\ns_cmp_lt_u32 s92, %d\ns_cbranch_scc1 %s' % (env('PADTO', 0) * 100, l))
    if c.last: k.e('s_endpgm')
    else:
        k.e('s_mov_b64 exec, -1')
        k.e('s_setprio 0')
        k.e('s_branch L_%s_entry' % c.nxt)
def mark(k, i=0):
    if STAMP:
        k.e('s_memtime s[%d:%d]' % (72 + 2 * i, 73 + 2 * i))
        k.e('s_waitcnt lgkmcnt(0)')

def set_flag(k, setup):
    if not k.c.last:
        k.e(setup)
        k.e('s_lshl_b32 s87, s100, 5')
def OWNF(n): return n in os.environ.get('OWN', 'none').split(',')
W22 = env('W22', 1)
LPW = env('LPW', 0)
ZOWN = env('ZOWN', 1)
FV = 252
def flag_store(k, soff):
    k.e('s_mov_b64 exec, 1')
    k.e('buffer_store_dwordx2 %s, v%d, s[96:99], %s offen sc1' % (vr(FV, 2), FV + 2, soff))
    k.e('s_mov_b64 exec, -1')
def flag_prep(k):
    srd(k, 96, 'ws', WS_FL, FLSZ)
    k.e('v_mov_b32 v%d, s84' % FV); k.e('v_mov_b32 v%d, s85' % (FV + 1)); k.e('v_mov_b32 v%d, 0' % (FV + 2))
    k.need(FV + 3, 0)
def signal(k, role='L', keep=0):
    if k.c.last: return
    if role in ('C', 'S'): flag_prep(k)
    if role == 'C':
        k.e('s_and_b32 s100, s3, 3')
        k.e('s_lshl_b32 s100, s100, 7')
        k.e('s_add_u32 s100, s100, s87')
    if role == 'C' and env('SM', 0): mark(k, 3)
    k.e('s_waitcnt vmcnt(%d)' % keep)
    if role == 'C' and env('SM', 0): mark(k, 0)
    if role == 'C':
        flag_store(k, 's100')
        if OWNF(k.c.nxt): k.e('s_barrier')
    elif role == 'A' and OWNF(k.c.nxt) and k.c.nxt == 'wout':
        l = k.newlabel('sg')
        k.e('s_cmp_lt_u32 s3, 4'); k.e('s_cbranch_scc1 %s' % l); k.e('s_barrier'); k.label(l)
    elif role == 'S':
        l = k.newlabel('sg')
        k.e('s_barrier')
        k.e('s_cmp_lg_u32 s3, 7'); k.e('s_cbranch_scc1 %s' % l)
        flag_store(k, 's87')
        k.label(l)
POLLW = env('POLLW', 4)
def handoff(k, setup, n, role='L', force=False, slp=None):
    if (k.c.first and not force) or not n: return
    if role in 'AW' or (role == 'C') == (POLLW >= 4):
        ld = k.newlabel('wd')
        if role == 'W': pass
        elif n <= 64:
            k.e('s_cmp_lg_u32 s3, %d' % POLLW)
            k.e('s_cbranch_scc1 %s' % ld)
        else:
            assert n == 128
            k.e('s_sub_u32 s101, s3, %d' % POLLW)
            k.e('s_cmp_gt_u32 s101, 1')
            k.e('s_cbranch_scc1 %s' % ld)
        srd(k, 96, 'ws', WS_FL, FLSZ)
        k.e(setup)
        k.e('s_lshl_b32 s100, s100, 5')
        if n > 64:
            k.e('s_lshl_b32 s101, s101, 13')
            k.e('s_add_u32 s100, s100, s101')
        k.e('v_lshlrev_b32 v%d, 7, v1' % (FV + 2))
        k.e('s_mov_b32 s101, 0x100000')
        if n < 64: k.e('s_bfm_b64 exec, %d, 0' % n)
        k.need(FV + 3, 0)
        PP = env('PPIPE', 0)
        if PP:
            lp = k.newlabel('wf'); le = k.newlabel('we')
            B = [FV, FV - 2, FV - 4][:PP]
            ldp = lambda b: 'buffer_load_dwordx2 %s, v%d, s[96:99], s100 offen sc1' % (vr(b, 2), FV + 2)
            for b in B[:-1]:
                k.e(ldp(b)); k.e('s_sleep %d' % env('PGAP', 5))
            k.label(lp)
            for i_ in range(PP):
                k.e(ldp(B[i_ - 1]))
                k.e('s_waitcnt vmcnt(%d)' % (PP - 1))
                k.e('v_cmp_ne_u64 vcc, s[84:85], %s' % vr(B[i_], 2))
                k.e('s_nop 4')
                k.e('s_cbranch_vccz %s' % le)
            k.e('s_sub_u32 s101, s101, 1')
            k.e('s_cmp_lg_u32 s101, 0')
            k.e('s_cbranch_scc1 %s' % lp)
        else:
            lp = k.newlabel('wf'); le = k.newlabel('we')
            k.label(lp)
            k.e('buffer_load_dwordx2 %s, v%d, s[96:99], s100 offen sc1' % (vr(FV, 2), FV + 2))
            k.e('s_waitcnt vmcnt(0)')
            k.e('v_cmp_ne_u64 vcc, s[84:85], %s' % vr(FV, 2))
            k.e('s_sub_u32 s101, s101, 1')
            k.e('s_nop 3')
            k.e('s_cbranch_vccz %s' % le)
            if env('PMASK', 1): k.e('s_mov_b64 exec, vcc')
            if slp is None: slp = env('PSLEEP', 1)
            if slp: k.e('s_sleep %d' % slp)
            k.e('s_cmp_lg_u32 s101, 0')
            k.e('s_cbranch_scc1 %s' % lp)
        k.label(le)
        k.e('s_mov_b64 exec, -1')
        k.label(ld)
    if role != 'W': k.e('s_barrier')

def handoff_multi(k, polls):
    ld = k.newlabel('wd'); lgo = k.newlabel('wg')
    srd(k, 96, 'ws', WS_FL, FLSZ)
    for w, setup, n in polls:
        ln = k.newlabel('wn')
        k.e('s_cmp_lg_u32 s3, %d' % w)
        k.e('s_cbranch_scc1 %s' % ln)
        k.e(setup)
        k.e('v_min_u32 v%d, %d, v1' % (FV + 2, n - 1))
        k.e('s_branch %s' % lgo)
        k.label(ln)
    k.e('s_branch %s' % ld)
    k.label(lgo)
    k.e('s_lshl_b32 s100, s100, 5')
    k.e('v_lshlrev_b32 v%d, 7, v%d' % (FV + 2, FV + 2))
    k.e('s_mov_b32 s101, 0x100000')
    lp = k.newlabel('wf')
    k.label(lp)
    k.e('buffer_load_dwordx2 %s, v%d, s[96:99], s100 offen sc1' % (vr(FV, 2), FV + 2))
    k.e('s_waitcnt vmcnt(0)')
    k.e('v_cmp_ne_u64 vcc, s[84:85], %s' % vr(FV, 2))
    k.e('s_sub_u32 s101, s101, 1')
    k.e('s_nop 3')
    k.e('s_cbranch_vccz %s' % ld)
    k.e('s_sleep %d' % env('P0SLEEP', 2))
    k.e('s_cmp_lg_u32 s101, 0')
    k.e('s_cbranch_scc1 %s' % lp)
    k.label(ld)
    k.e('s_barrier')

def mod_table(k, R, between=None, nb=0):
    srd(k, 40, 'ws', 0, 256 * KB)
    k.e('v_lshlrev_b32 v%d, 4, v0' % (R + 16))
    for q in range(4):
        k.e('s_mov_b32 s48, %d' % (WS_MODP + q * 8192))
        k.e('buffer_load_dwordx4 %s, v%d, s[40:43], s48 offen sc1' % (vr(R + 4 * q, 4), R + 16))
    if between: between()
    k.e('s_cmp_lt_u32 s3, 4')
    k.e('s_cselect_b32 s49, 0, 1.0')
    k.e('v_add_u32 v%d, %d, v%d' % (R + 16, AUX_A, R + 16))
    k.e('s_waitcnt vmcnt(%d)' % nb)
    k.e(pk('add', R, R, R + 4)); k.e(pk('add', R + 2, R + 2, R + 6)); k.e(pk('add', R + 8, R + 8, R + 12)); k.e(pk('add', R + 10, R + 10, R + 14))
    k.e(pk('add', R, R, R + 8)); k.e(pk('add', R + 2, R + 2, R + 10))
    for d in range(2): round_bf16_pair(k, R + 2 * d, R + 2 * d + 1, R + 4)
    for q in range(4): k.e('v_add_f32 v%d, s49, v%d' % (R + q, R + q))
    for d in range(2): round_bf16_pair(k, R + 2 * d, R + 2 * d + 1, R + 4)
    k.e('ds_write_b128 v%d, %s' % (R + 16, vr(R, 4)))
    k.e('s_waitcnt lgkmcnt(0)')
    k.e('s_barrier')

def poll_back(k, lp):
    l = k.newlabel('pd')
    k.e('s_sub_u32 s101, s101, 1')
    k.e('s_nop 3')
    k.e('s_cbranch_vccz %s' % l)
    k.e('s_cmp_lg_u32 s101, 0')
    k.e('s_cbranch_scc1 %s' % lp)
    k.label(l)
def poll_init(k): k.e('s_mov_b32 s101, 0x100000')

def srd(k, d, what, off=0, size=None, soff=None):
    p = PTR[what]
    if what == 'ws': off += env('WSB', 0) * MB
    if size is None: size = SIZES[what]
    if off or soff:
        k.e('s_add_u32 s%d, s%d, 0x%x' % (d, p, off))
        k.e('s_addc_u32 s%d, s%d, 0' % (d + 1, p + 1))
        if soff:
            k.e('s_add_u32 s%d, s%d, %s' % (d, d, soff))
            k.e('s_addc_u32 s%d, s%d, 0' % (d + 1, d + 1))
        k.e('s_and_b32 s%d, s%d, 0xffff' % (d + 1, d + 1))
    else:
        k.e('s_mov_b32 s%d, s%d' % (d, p))
        k.e('s_and_b32 s%d, s%d, 0xffff' % (d + 1, p + 1))
    k.e('s_mov_b32 s%d, 0x%x' % (d + 2, size))
    k.e('s_mov_b32 s%d, 0x20000' % (d + 3))

def finish(k):
    endpgm(k)

XT = env('XT', 0)
AOWN = env('AOWN', 3)
AT2 = env('AT2', 1)
MP0 = env('MP0', 1)
CPF = env('CPF', 1)
def code_pf(k, start, end, maxbytes, lane=1, vt=6, vd=7, sb=84):
    if not CPF: return 0
    h = k.newlabel('pc')
    k.e('s_getpc_b64 s[%d:%d]' % (sb, sb + 1))
    k.label(h)
    k.e('s_add_u32 s%d, s%d, %s-%s' % (sb, sb, start, h))
    k.e('s_addc_u32 s%d, s%d, 0' % (sb + 1, sb + 1))
    n = (maxbytes + 8191) // 8192
    for i in range(n):
        k.e('v_lshlrev_b32 v%d, 7, v%d' % (vt, lane))
        if i: k.e('v_add_u32 v%d, %d, v%d' % (vt, i * 8192, vt))
        k.e('v_min_u32 v%d, %s-%s-4, v%d' % (vt, end, start, vt))
        k.e('global_load_dword v%d, v%d, s[%d:%d]' % (vd, vt, sb, sb + 1))
    return n

def vr(b, n): return 'v[%d:%d]' % (b, b + n - 1)
def sr(b): return 's[%d:%d]' % (b, b + 3)

def round_bf16_pair(k, a, b, tmp):
    k.e('v_cvt_pk_bf16_f32 v%d, v%d, v%d' % (tmp, a, b))
    k.e('v_lshlrev_b32 v%d, 16, v%d' % (a, tmp))
    k.e('v_and_b32 v%d, 0xffff0000, v%d' % (b, tmp))

def red_lanes(k, regs, tmp, rors=(8,)):
    for ro in rors:
        k.e('s_nop 1')
        for r in regs:
            k.e('v_add_f32_dpp v%d, v%d, v%d row_ror:%d row_mask:0xf bank_mask:0xf' % (r, r, r, ro))
    for op in ('v_permlane16_swap_b32', 'v_permlane32_swap_b32'):
        for r, t in zip(regs, tmp): k.e('v_mov_b32 v%d, v%d' % (t, r))
        k.e('s_nop 1')
        for r, t in zip(regs, tmp): k.e('%s v%d, v%d' % (op, r, t))
        k.e('s_nop 1')
        for r, t in zip(regs, tmp): k.e('v_add_f32 v%d, v%d, v%d' % (r, r, t))

def unpack(k, lo, hi, src):
    k.e('v_lshlrev_b32 v%d, 16, v%d' % (lo, src))
    k.e('v_and_b32 v%d, 0xffff0000, v%d' % (hi, src))

def k_p0(k, c):
    phase_begin(k, c)
    KIDX[0] += 1
    assert c.first and not c.last
    lst = 'L_p0_stats'
    def rest_issue():
        srd(k, 52, 'w_mod'); srd(k, 56, 'c')
        k.e("""
        v_lshrrev_b32 v164, 3, v0
        v_lshlrev_b32 v165, 4, v164        ; c byte offset = g*16
        v_mul_u32_u24 v164, %d, v164
        v_and_b32 v166, 7, v0
        v_lshl_add_u32 v164, v166, 4, v164
        s_lshr_b32 s60, s30, 1             ; col block
        s_and_b32 s61, s30, 1              ; k half
        s_lshl_b32 s62, s60, 7
        s_mul_i32 s63, s61, %d
        s_add_u32 s62, s62, s63
        s_add_u32 s62, s62, 4096
        s_lshl_b32 s63, s61, 10
        buffer_load_dwordx4 v[128:131], v165, s[56:59], s63 offen
        """ % (8 * 12288, 512 * 12288))
        if env('PWAIT', 2) == 2: k.e('s_waitcnt vmcnt(0)')
        for j in range(8):
            k.e('buffer_load_dwordx4 %s, v164, s[52:55], s62 offen' % vr(132 + 4 * j, 4))
            k.e('s_add_u32 s62, s62, 12288')
        k.need(192, 0)
    def rest_compute(newer):
        S_ = 168; T_ = 176; A_ = 184
        k.e('s_waitcnt vmcnt(%d)' % (8 + newer))
        for j in range(4): unpack(k, S_ + 2 * j, S_ + 1 + 2 * j, 128 + j)
        for j in range(8): k.e('v_mul_f32 v%d, %s, v%d' % (T_ + j, hx(-LOG2E), S_ + j))
        for j in range(8): k.e('v_exp_f32 v%d, v%d' % (T_ + j, T_ + j))
        for j in range(8): k.e('v_add_f32 v%d, 1.0, v%d' % (T_ + j, T_ + j))
        for j in range(8): k.e('v_rcp_f32 v%d, v%d' % (T_ + j, T_ + j))
        for j in range(8): k.e('v_mul_f32 v%d, v%d, v%d' % (S_ + j, S_ + j, T_ + j))
        for j in range(4): round_bf16_pair(k, S_ + 2 * j, S_ + 1 + 2 * j, T_)
        for j in range(8):
            k.e('s_waitcnt vmcnt(%d)' % (7 - j + newer))
            for d in range(4):
                unpack(k, T_, T_ + 1, 132 + 4 * j + d)
                op = 'v_mul_f32' if j == 0 else 'v_fmac_f32'
                k.e('%s v%d, v%d, v%d' % (op, A_ + 2 * d, T_, S_ + j))
                k.e('%s v%d, v%d, v%d' % (op, A_ + 1 + 2 * d, T_ + 1, S_ + j))
        k.e('s_nop 1')
        for e in range(4): k.e('v_permlane32_swap_b32 v%d, v%d' % (A_ + e, A_ + 4 + e))
        k.e('s_nop 1')
        for e in range(4): k.e('v_add_f32 v%d, v%d, v%d' % (A_ + e, A_ + e, A_ + 4 + e))
        k.e('s_nop 1')
        for e in range(2): k.e('v_permlane16_swap_b32 v%d, v%d' % (A_ + e, A_ + 2 + e))
        k.e('s_nop 1')
        for e in range(2): k.e('v_add_f32 v%d, v%d, v%d' % (A_ + e, A_ + e, A_ + 2 + e))
        k.e('s_nop 1')
        for e in range(2): k.e('v_add_f32_dpp v%d, v%d, v%d row_ror:8 row_mask:0xf bank_mask:0xf' % (A_ + e, A_ + e, A_ + e))
        lw2 = k.newlabel('nw')
        k.e("""
        v_lshlrev_b32 v164, 5, v166
        v_lshrrev_b32 v165, 4, v1
        v_lshl_add_u32 v164, v165, 3, v164
        s_lshl_b32 s62, s3, 8
        s_add_u32 s62, s62, %d
        v_add_u32 v164, s62, v164
        ds_write_b64 v164, v[184:185]
        s_waitcnt lgkmcnt(0)
        s_barrier
        s_cmp_lg_u32 s3, 7
        s_cbranch_scc1 %s
        v_lshlrev_b32 v164, 2, v1
        v_add_u32 v165, %d, v164
        """ % (AUX_A + 8192, lw2, AUX_A + 8192))
        for w in range(8): k.e('ds_read_b32 v%d, v165 offset:%d' % (T_ + w, w * 256))
        k.e("""
        s_lshl_b32 s62, s60, 8
        s_lshl_b32 s63, s61, 14
        s_add_u32 s62, s62, s63
        s_add_u32 s62, s62, %d
        s_waitcnt lgkmcnt(0)
        """ % WS_MODQ)
        for w in range(0, 8, 2): k.e('v_add_f32 v%d, v%d, v%d' % (T_ + w, T_ + w, T_ + w + 1))
        k.e('v_add_f32 v%d, v%d, v%d' % (T_, T_, T_ + 2))
        k.e('v_add_f32 v%d, v%d, v%d' % (T_ + 4, T_ + 4, T_ + 6))
        k.e('v_add_f32 v%d, v%d, v%d' % (T_, T_, T_ + 4))
        k.e('buffer_store_dword v%d, v164, s[40:43], s62 offen%s' % (T_, WT))
        k.label(lw2)
    k.e("""
    v_and_b32 v1, 63, v0               ; lane
    v_lshlrev_b32 v6, 4, v0            ; tid*16
    s_lshr_b32 s30, s2, 4
    s_lshl_b32 s30, s30, 3
    s_and_b32 s47, s2, 7
    s_add_u32 s30, s30, s47            ; index within role (0..127)
    s_bitcmp1_b32 s2, 3
    s_cbranch_scc1 %s
    s_lshr_b32 s48, s30, 2             ; col block
    s_and_b32 s49, s30, 3              ; k quarter
    v_lshrrev_b32 v2, 3, v0            ; row group (0..63): rows 4g..4g+3 (+256*q)
    v_and_b32 v3, 7, v0                ; chunk
    v_lshlrev_b32 v4, 3, v2            ; c byte offset = g*8
    v_mul_u32_u24 v5, %d, v2
    v_lshl_add_u32 v5, v3, 4, v5
    s_lshl_b32 s31, s48, 7
    s_mul_i32 s44, s49, %d
    s_add_u32 s31, s31, s44
    s_lshl_b32 s45, s49, 9
    s_waitcnt lgkmcnt(0)
    s_load_dwordx2 s[84:85], s[28:29], 0x%x
    """ % (lst, 4 * 12288, 256 * 12288, WS_EPOCH + env('WSB', 0) * MB))
    mark(k, 0)
    srd(k, 36, 'w_mod'); srd(k, 32, 'c')
    CL = env('CLAST', 0)
    if not CL: k.e('buffer_load_dwordx2 v[8:9], v4, s[32:35], s45 offen')
    for j in range(4):
        k.e('buffer_load_dwordx4 %s, v5, s[36:39], s31 offen' % vr(12 + 4 * j, 4))
        k.e('s_add_u32 s31, s31, 12288')
    if CL: k.e('buffer_load_dwordx2 v[8:9], v4, s[32:35], s45 offen')
    lnc = k.newlabel('nc')
    def resets(R, wait):
        lnr = k.newlabel('nr')
        k.e('s_cmp_gt_u32 s3, 3')
        k.e('s_cbranch_scc1 %s' % lnr)
        for r in range(4): k.e('v_mov_b32 v%d, -1' % (R + r))
        for off, size in (((WS_G2, 512 * KB) if W22 else (WS_G, 256 * KB)), (WS_MOD, 64 * KB)) + (() if MP0 else ((WS_MODQ, 64 * KB),)):
            per = size // 128
            srd(k, 52, 'ws', off, size)
            k.e('s_mul_i32 s50, s30, %d' % per)
            k.e('v_cmp_gt_u32 vcc, %d, v0' % (per // 16))
            k.e('s_and_saveexec_b64 s[46:47], vcc')
            k.e('buffer_store_dwordx4 %s, v6, s[52:55], s50 offen%s' % (vr(R, 4), WT))
            k.e('s_mov_b64 exec, s[46:47]')
        if wait: k.e('s_waitcnt vmcnt(0)')
        k.label(lnr)
    RLN = env('RLN', 1)
    if not RLN: resets(40, True)
    srd(k, 40, 'ws', 0, 256 * KB)
    if CL == 2:
        k.e('s_waitcnt vmcnt(1)'); mark(k, 0)
    k.e('s_waitcnt vmcnt(%d)' % (0 if CL else 4))
    mark(k, 1)
    for j in range(2): unpack(k, 44 + 2 * j, 45 + 2 * j, 8 + j)
    for j in range(4): k.e('v_mul_f32 v%d, %s, v%d' % (52 + j, hx(-LOG2E), 44 + j))
    for j in range(4): k.e('v_exp_f32 v%d, v%d' % (52 + j, 52 + j))
    for j in range(4): k.e('v_add_f32 v%d, 1.0, v%d' % (52 + j, 52 + j))
    for j in range(4): k.e('v_rcp_f32 v%d, v%d' % (52 + j, 52 + j))
    for j in range(4): k.e('v_mul_f32 v%d, v%d, v%d' % (44 + j, 44 + j, 52 + j))
    for j in range(2): round_bf16_pair(k, 44 + 2 * j, 45 + 2 * j, 52)
    lns = k.newlabel('nosc')
    if not MP0: k.e("""
    s_cmp_lg_u32 s48, 0
    s_cbranch_scc1 %s
    v_lshlrev_b32 v7, 4, v2
    s_lshl_b32 s44, s49, 10
    s_add_u32 s44, s44, %d
    buffer_store_dwordx4 v[44:47], v7, s[40:43], s44 offen%s
    s_waitcnt vmcnt(0)
    """ % (lns, WS_SC, WT))
    k.label(lns)
    A = 56
    for j in range(4):
        k.e('s_waitcnt vmcnt(%d)' % (3 - j))
        for d in range(4):
            unpack(k, 52, 53, 12 + 4 * j + d)
            op = 'v_mul_f32' if j == 0 else 'v_fmac_f32'
            k.e('%s v%d, v52, v%d' % (op, A + 2 * d, 44 + j))
            k.e('%s v%d, v53, v%d' % (op, A + 1 + 2 * d, 44 + j))
    mark(k, 2)
    if MP0 == 4: rest_issue()
    k.e('s_nop 1')
    for e in range(4): k.e('v_permlane32_swap_b32 v%d, v%d' % (A + e, A + 4 + e))
    k.e('s_nop 1')
    for e in range(4): k.e('v_add_f32 v%d, v%d, v%d' % (A + e, A + e, A + 4 + e))
    k.e('s_nop 1')
    for e in range(2): k.e('v_permlane16_swap_b32 v%d, v%d' % (A + e, A + 2 + e))
    k.e('s_nop 1')
    for e in range(2): k.e('v_add_f32 v%d, v%d, v%d' % (A + e, A + e, A + 2 + e))
    k.e('s_nop 1')
    for e in range(2): k.e('v_add_f32_dpp v%d, v%d, v%d row_ror:8 row_mask:0xf bank_mask:0xf' % (A + e, A + e, A + e))
    lw = k.newlabel('nw')
    k.e("""
    v_lshlrev_b32 v2, 5, v3
    v_lshrrev_b32 v7, 4, v1
    v_lshl_add_u32 v2, v7, 3, v2
    s_lshl_b32 s44, s3, 8
    s_add_u32 s44, s44, %d
    v_add_u32 v2, s44, v2
    ds_write_b64 v2, v[56:57]
    s_waitcnt lgkmcnt(0)
    s_add_u32 s84, s84, 1
    s_barrier
    s_cmp_lg_u32 s3, 0
    s_cbranch_scc1 %s
    v_lshlrev_b32 v2, 2, v1
    v_add_u32 v7, %d, v2
    """ % (AUX_A, lw, AUX_A))
    for w in range(8): k.e('ds_read_b32 v%d, v7 offset:%d' % (12 + w, w * 256))
    flag_prep(k)
    k.e("""
    s_lshl_b32 s31, s48, 8
    s_lshl_b32 s44, s49, 13
    s_add_u32 s31, s31, s44
    s_add_u32 s31, s31, %d
    s_lshl_b32 s100, s30, 7
    s_add_u32 s100, s100, %d
    s_waitcnt lgkmcnt(0)
    """ % (WS_MODP, FL_MOD * 32))
    for w in range(0, 8, 2): k.e('v_add_f32 v%d, v%d, v%d' % (12 + w, 12 + w, 13 + w))
    k.e('v_add_f32 v12, v12, v14')
    k.e('v_add_f32 v16, v16, v18')
    k.e('v_add_f32 v12, v12, v16')
    if TAGP:
        srd(k, 96, 'ws', WS_MODT, 64 * KB)
        k.e("""
        v_mov_b32 v14, s84
        v_mov_b32 v15, s85
        v_mov_b32_dpp v13, v12 quad_perm:[1,1,3,3] row_mask:0xf bank_mask:0xf
        v_lshlrev_b32 v2, 3, v1
        s_lshl_b32 s31, s48, 9
        s_lshl_b32 s44, s49, 14
        s_add_u32 s31, s31, s44
        s_mov_b32 exec_lo, 0x55555555
        s_mov_b32 exec_hi, 0x55555555
        buffer_store_dwordx4 v[12:15], v2, s[96:99], s31 offen sc1
        s_mov_b64 exec, -1
        """)
        if env('PWAIT', 2): k.e('s_waitcnt vmcnt(0)')
    else:
        k.e('buffer_store_dword v12, v2, s[40:43], s31 offen' + WT)
        k.e('s_waitcnt vmcnt(0)')
        flag_store(k, 's100')
    k.label(lw)
    k.e('s_barrier')
    mark(k, 3)
    if env('TLBW', 0):
        lt = k.newlabel('tl')
        for w, (nm, sz) in enumerate((('ws', 64 * MB), ('w_mod', None), ('w_sp', None), ('w_in', None), ('w_out', None), ('wo', None), ('out', None), ('x', None))):
            ln = k.newlabel('tn')
            k.e('s_cmp_lg_u32 s3, %d' % w)
            k.e('s_cbranch_scc1 %s' % ln)
            srd(k, 36, nm, 0, sz)
            k.e('s_branch %s' % lt)
            k.label(ln)
        k.label(lt)
        k.e('s_lshr_b32 s51, s30, 3')
        k.e('s_lshl_b32 s51, s51, 22')
        k.e('s_add_u32 s51, s51, %d' % (65536 - 128))
        k.e('v_lshlrev_b32 v36, 16, v1')
        k.e('buffer_load_dword v37, v36, s[36:39], s51 offen')
    srd(k, 36, 'wqkv')
    k.e('s_lshl_b32 s51, s30, 13')
    k.e('s_add_u32 s51, s51, %d' % (env('NPFE', 0) * MB))
    for p in range(env('NPFQ', 0) - env('NPFE', 0)):
        k.e('buffer_load_dwordx4 v[8:11], v6, s[36:39], s51 offen')
        k.e('s_add_u32 s51, s51, %d' % MB)
    if CPF:
        h = k.newlabel('pc')
        k.e('s_cmp_lg_u32 s3, 2')
        k.e('s_cbranch_scc1 %s' % lnc)
        k.e('s_cmp_ge_u32 s30, 64')
        k.e('s_cbranch_scc1 %s' % lnc)
        k.e('s_getpc_b64 s[64:65]')
        k.label(h)
        k.e('s_add_u32 s64, s64, L_qkv_entry-%s' % h)
        k.e('s_addc_u32 s65, s65, 0')
        k.e('s_lshr_b32 s44, s30, 3')
        k.e('s_lshl_b32 s44, s44, 13')
        k.e('v_lshl_add_u32 v38, v1, 7, s44')
        k.e('v_min_u32 v38, L_text_end-L_qkv_entry-4, v38')
        k.e('global_load_dword v39, v38, s[64:65]')
        k.label(lnc)
    if MP0 == 1:
        rest_issue(); rest_compute(0)
    if MP0 == 4: rest_compute(0)
    k.e('s_waitcnt vmcnt(0)')
    endpgm(k)
    k.label(lst)
    k.e("""
    s_lshl_b32 s44, s3, 12
    v_lshl_add_u32 v3, v1, 4, s44      ; wave*4096 + lane*16
    s_lshl_b32 s31, s30, 15            ; 16 rows * 2048
    s_waitcnt lgkmcnt(0)
    s_load_dwordx2 s[84:85], s[28:29], 0x%x
    """ % (WS_EPOCH + env('WSB', 0) * MB))
    srd(k, 32, 'x')
    if env('XDELAY', 0): k.e('s_waitcnt lgkmcnt(0)')
    for q in range(4): k.e('buffer_load_dwordx4 %s, v3, s[32:35], s31 offen offset:%d' % (vr(8 + 4 * q, 4), q * 1024))
    if MP0 == 2: rest_issue()
    NE = env('NPFE', 0)
    if NE:
        srd(k, 36, 'wqkv')
        k.e('s_lshl_b32 s51, s30, 13')
        for p in range(NE):
            k.e('buffer_load_dwordx4 v[128:131], v6, s[36:39], s51 offen')
            k.e('s_add_u32 s51, s51, %d' % MB)
    srd(k, 36, 'ws', WS_H, 4 * MB); srd(k, 40, 'ws', 0, 256 * KB)
    if env('HTOUCH', 0):
        srd(k, 96, 'ws', WS_FL, FLSZ)
        k.e('v_mov_b32 v126, 0')
        k.e('s_mov_b64 exec, 1')
        k.e('buffer_load_dword v127, v126, s[36:39], s31 offen')
        k.e('buffer_load_dword v127, v126, s[96:99], 0 offen offset:64')
        k.e('s_mov_b64 exec, -1')
        NE += 2
    set_flag(k, 's_lshr_b32 s100, s30, 3\ns_lshl_b32 s100, s100, 8\ns_and_b32 s101, s30, 7\ns_lshl_b32 s101, s101, 2\ns_add_u32 s100, s100, s101\ns_add_u32 s100, s100, %d' % FL_LN1)
    mark(k, 0)
    k.e('s_waitcnt vmcnt(%d) lgkmcnt(0)' % (NE + (9 if MP0 == 2 else 0)))
    k.e('s_add_u32 s84, s84, 1')
    if MP0 == 3: rest_issue()
    X = 24
    for d in range(16): unpack(k, X + 2 * d, X + 2 * d + 1, 8 + d)
    MU = [56, 58]; VA = [60, 62]
    for r in range(2):
        k.e(pk('add', 8 + 2 * r, X + 16 * r, X + 16 * r + 2))
        for e in range(4, 16, 2): k.e(pk('add', 8 + 2 * r, 8 + 2 * r, X + 16 * r + e))
        k.e('v_add_f32 v%d, v%d, v%d' % (MU[r], 8 + 2 * r, 9 + 2 * r))
    red_lanes(k, MU, [8, 9], rors=(8, 4, 2, 1))
    for r in range(2):
        k.e('v_mul_f32 v%d, %s, v%d' % (MU[r], hx(-1.0 / 1024), MU[r]))
        for e in range(0, 16, 2):
            k.e(pk('add', 8, X + 16 * r + e, (MU[r],)))
            k.e(pk('mul', 10, 8, 8) if e == 0 else pk('fma', 10, 8, 8, 10))
        k.e('v_add_f32 v%d, v10, v11' % VA[r])
    red_lanes(k, VA, [8, 9], rors=(8, 4, 2, 1))
    for r in range(2):
        k.e('v_mul_f32 v%d, %s, v%d' % (VA[r], hx(1.0 / 1024), VA[r]))
        round_bf16_pair(k, MU[r], VA[r], 8)
        k.e('v_add_f32 v%d, %s, v%d' % (VA[r], hx(1e-5), VA[r]))
    round_bf16_pair(k, VA[0], VA[1], 8)
    for r in range(2): k.e('v_sqrt_f32 v%d, v%d' % (VA[r], VA[r]))
    k.e('s_nop 0')
    round_bf16_pair(k, VA[0], VA[1], 8)
    for r in range(2): k.e('v_rcp_f32 v%d, v%d' % (VA[r], VA[r]))
    def tag_setup():
        srd(k, 96, 'ws', WS_MODT, 64 * KB)
        k.e('v_lshlrev_b32 v81, 4, v1')
        k.e('s_lshl_b32 s100, s3, 11')
        k.e('v_add_u32 v81, s100, v81')
        k.e('v_lshlrev_b32 v80, 3, v1')
        k.e('s_lshl_b32 s100, s3, 10')
        k.e('s_add_u32 s100, s100, %d' % AUX_A)
        k.e('v_add_u32 v80, s100, v80')
        k.e('s_mov_b32 s101, 0x100000')
    def tag_loads():
        for q in range(4):
            k.e('s_mov_b32 s56, %d' % (q * 16384))
            for hh in range(2): k.e('buffer_load_dwordx4 %s, v81, s[96:99], s56 offen offset:%d sc1' % (vr(96 + 8 * q + 4 * hh, 4), hh * 1024))
    ET = env('ET', 0)
    if ET == 1:
        if RLN: resets(132, False)
        tag_setup(); tag_loads()
    k.e("""
    v_lshrrev_b32 v5, 1, v1
    v_mul_u32_u24 v5, 544, v5          ; cb*2*272
    v_and_b32 v7, 1, v1
    v_lshl_add_u32 v5, v7, 3, v5
    s_lshl_b32 s44, s3, 5
    v_add_u32 v5, s44, v5
    """)
    for r in range(2):
        x = X + 16 * r; pin = 8 + 8 * r
        for d in range(8): k.e(pk('add', x + 2 * d, x + 2 * d, (MU[r],)))
        for d in range(8): round_bf16_pair(k, x + 2 * d, x + 2 * d + 1, pin + d)
        for d in range(8): k.e(pk('mul', x + 2 * d, x + 2 * d, (VA[r],)))
        for d in range(8): k.e('v_cvt_pk_bf16_f32 v%d, v%d, v%d' % (pin + d, x + 2 * d, x + 2 * d + 1))
        for q, o in enumerate((0, 272, 64 * 272, 65 * 272)):
            k.e('ds_write_b64 v5, %s offset:%d' % (vr(pin + 2 * q, 2), o + 16 * r))
    k.e("""
    v_lshrrev_b32 v5, 4, v0            ; gi (p=0)
    v_and_b32 v7, 15, v0               ; row
    v_mul_u32_u24 v2, 272, v5
    v_lshl_add_u32 v2, v7, 4, v2       ; granule lds address
    v_lshlrev_b32 v4, 9, v5
    v_lshl_add_u32 v4, v7, 4, v4       ; global offset
    v_lshrrev_b32 v3, 1, v5
    v_lshlrev_b32 v3, 6, v3
    v_and_b32 v5, 1, v5
    v_lshl_add_u32 v3, v5, 4, v3
    v_add_u32 v3, %d, v3               ; table address: cb*64 + h*16
    s_lshr_b32 s44, s30, 1
    s_lshl_b32 s44, s44, 16
    s_and_b32 s45, s30, 1
    s_lshl_b32 s45, s45, 8
    s_add_u32 s44, s44, s45
    s_mov_b32 s48, %d
    s_cmp_lt_u32 s3, 4
    s_cselect_b32 s49, 0, 1.0
    s_waitcnt lgkmcnt(0)
    """ % (AUX_A, WS_MODP))
    if MP0 in (2, 3): rest_compute(0)
    if RLN and ET != 1: resets(132, False)
    if ET == 2: tag_setup(); tag_loads()
    mark(k, 1)
    if XT:
        srd(k, 36, 'ws', WS_N, 4 * MB)
        k.e('s_barrier')
        for p in range(4): k.e('ds_read_b128 %s, v2 offset:%d' % (vr(8 + 4 * p, 4), p * 32 * 272))
        for p in range(4):
            k.e('s_waitcnt lgkmcnt(%d)' % (3 - p))
            k.e('buffer_store_dwordx4 %s, v4, s[36:39], s44 offen%s' % (vr(8 + 4 * p, 4), WT))
            k.e('s_add_u32 s44, s44, 16384')
        mark(k, 3)
        signal(k, 'S')
        finish(k)
        k.need(128, AUX_A + 8192)
        return
    X = 24
    k.e('s_barrier')
    for p in range(4): k.e('ds_read_b128 %s, v2 offset:%d' % (vr(8 + 4 * p, 4), p * 32 * 272))
    for p in range(4):
        k.e('s_waitcnt lgkmcnt(%d)' % (3 - p))
        for d in range(4): unpack(k, X + 8 * p + 2 * d, X + 8 * p + 2 * d + 1, 8 + 4 * p + d)
    if TAGP:
        lp = k.newlabel('wf'); le = k.newlabel('we')
        if ET:
            k.e('s_branch %sc' % lp)
        else: tag_setup()
        k.label(lp)
        tag_loads()
        k.label(lp + 'c')
        k.e('s_mov_b64 s[50:51], 0')
        for n in range(8):
            k.e('s_waitcnt vmcnt(%d)' % (7 - n))
            k.e('v_cmp_ne_u64 vcc, s[84:85], %s' % vr(98 + 4 * n, 2))
            k.e('s_or_b64 s[50:51], s[50:51], vcc')
        k.e('s_cbranch_scc0 %s' % le)
        k.e('s_sub_u32 s101, s101, 1')
        k.e('s_sleep %d' % env('P0SLEEP', 1))
        k.e('s_cmp_lg_u32 s101, 0')
        k.e('s_cbranch_scc1 %s' % lp)
        k.label(le)
        mark(k, 2)
        for hh in range(2):
            b = 96 + 4 * hh
            k.e(pk('add', b, b, b + 8)); k.e(pk('add', b + 16, b + 16, b + 24)); k.e(pk('add', 64 + 2 * hh, b, b + 16))
    else:
        srd(k, 96, 'ws', WS_FL, FLSZ)
        lp = k.newlabel('wf'); le = k.newlabel('we')
        k.e("""
        s_lshl_b32 s100, s3, 11
        s_add_u32 s100, s100, %d
        v_lshlrev_b32 v%d, 7, v1
        v_add_u32 v80, %d, v6
        s_mov_b32 s101, 0x100000
        s_mov_b64 exec, 0xffff
        %s:
        buffer_load_dwordx2 %s, v%d, s[96:99], s100 offen sc1
        s_waitcnt vmcnt(0)
        v_cmp_ne_u64 vcc, s[84:85], %s
        s_sub_u32 s101, s101, 1
        s_nop 3
        s_cbranch_vccz %s
        s_mov_b64 exec, vcc
        s_sleep %d
        s_cmp_lg_u32 s101, 0
        s_cbranch_scc1 %s
        %s:
        s_mov_b64 exec, -1
        """ % (FL_MOD * 32, FV + 2, AUX_A, lp, vr(FV, 2), FV + 2, vr(FV, 2), le, env('P0SLEEP', 1), lp, le))
        mark(k, 2)
        for q in range(4):
            k.e('buffer_load_dwordx4 %s, v6, s[40:43], s48 offen sc1' % vr(64 + 4 * q, 4))
            k.e('s_add_u32 s48, s48, 8192')
        k.e('s_waitcnt vmcnt(0)')
        k.e(pk('add', 64, 64, 68)); k.e(pk('add', 66, 66, 70)); k.e(pk('add', 72, 72, 76)); k.e(pk('add', 74, 74, 78))
        k.e(pk('add', 64, 64, 72)); k.e(pk('add', 66, 66, 74))
    for d in range(2): round_bf16_pair(k, 64 + 2 * d, 65 + 2 * d, 68)
    for q in range(4): k.e('v_add_f32 v%d, s49, v%d' % (64 + q, 64 + q))
    for d in range(2): round_bf16_pair(k, 64 + 2 * d, 65 + 2 * d, 68)
    if TAGP:
        k.e('ds_write_b64 v80, v[64:65]')
        k.e('ds_write_b64 v80, v[66:67] offset:512')
    else: k.e('ds_write_b128 v80, v[64:67]')
    k.e('s_waitcnt lgkmcnt(0)')
    k.e('s_barrier')
    SC = 64; SH = 96
    for p in range(4):
        for sub in range(2):
            k.e('ds_read_b128 %s, v3 offset:%d' % (vr(SC + 8 * p + 4 * sub, 4), 4096 + p * 1024 + sub * 32))
            k.e('ds_read_b128 %s, v3 offset:%d' % (vr(SH + 8 * p + 4 * sub, 4), p * 1024 + sub * 32))
    for p in range(4):
        pin = 8 + 4 * p; x = X + 8 * p
        k.e('s_waitcnt lgkmcnt(%d)' % (12 - 4 * p))
        if env('NORND', 0):
            for d in range(4): k.e(pk('fma', x + 2 * d, x + 2 * d, SC + 8 * p + 2 * d, SH + 8 * p + 2 * d))
        else:
            for d in range(4): k.e(pk('mul', x + 2 * d, x + 2 * d, SC + 8 * p + 2 * d))
            for d in range(4): round_bf16_pair(k, x + 2 * d, x + 2 * d + 1, pin + d)
            for d in range(4): k.e(pk('add', x + 2 * d, x + 2 * d, SH + 8 * p + 2 * d))
        for d in range(4): k.e('v_cvt_pk_bf16_f32 v%d, v%d, v%d' % (pin + d, x + 2 * d, x + 2 * d + 1))
        k.e('buffer_store_dwordx4 %s, v4, s[36:39], s44 offen%s' % (vr(pin, 4), WT))
        k.e('s_add_u32 s44, s44, 16384')
    mark(k, 3)
    signal(k, 'S')
    finish(k)
    k.need(128, AUX_A + 10240)

def log2(n):
    l = n.bit_length() - 1
    assert 1 << l == n
    return l
class G: pass

def k_gemm(k, c, GM, GN, bm_log2, xm_log2, bn, TM, TN, WM, WN, K, KS, NS, X, Y, pre, pre2, epi, swap=(), aux=None, auxsz=0, auxbase=None,
           pf=None, aux_end=None, side=None, wait=None, sig=None, dep='X', GU=1, RWD=1, post=None, frbase=None, selfsig=False, RR=0, early=None, JG=1, lazyfix=False, SOFT=0, own=None, ownlim=None, altmap=False, prelast=None, DEFER=0, dcols=None, auxpre=None, mid=None, accmap=None):
    g = G()
    name = c.name
    xt = X[0] == 'xt'
    M16 = name in os.environ.get('M16', 'qkv,wo,win,wsp,wout').split(',')
    if xt: X = ('xf',) + X[1:]
    ROLL = env('ROLL_' + name, env('ROLL', 0 if name == 'qkv' else 1))
    LAG = 2 if ROLL else 1
    NS = env('NS_' + name, NS + LAG - 1)
    mb = TM // WM // 32; nb = TN // WN // 32
    S = KS // 16
    xb = TM * KS * 2; yb = TN * KS * 2; STAGE = xb + yb
    nst = K // KS
    solo = c.first and c.last
    g.k = k; g.mb = mb; g.nb = nb; g.TM = TM; g.TN = TN; g.AUX = NS * STAGE if solo or auxbase is None else auxbase
    assert NS * STAGE <= g.AUX
    phase_begin(k, c)
    k.e('''
    v_and_b32 v1, 63, v0               ; lane
    s_mov_b32 s46, s3
    s_and_b32 s47, s2, 7               ; xcd
    s_lshr_b32 s48, s2, 3              ; idx
    s_and_b32 s30, s47, %d
    s_lshl_b32 s30, s30, %d
    s_and_b32 s49, s48, %d
    s_add_u32 s30, s30, s49            ; tm
    s_lshr_b32 s31, s47, %d
    s_mul_i32 s31, s31, %d
    s_lshr_b32 s49, s48, %d
    s_add_u32 s31, s31, s49            ; tn
    ''' % ((1 << xm_log2) - 1, bm_log2, (1 << bm_log2) - 1, xm_log2, bn, bm_log2))
    if altmap:
        k.e('''
        s_and_b32 s30, s47, 3
        s_lshl_b32 s30, s30, 3
        s_and_b32 s49, s48, 3
        s_lshl_b32 s49, s49, 1
        s_add_u32 s30, s30, s49
        s_bfe_u32 s49, s48, 0x10002
        s_add_u32 s30, s30, s49
        ''')
    if env('MAP_' + name, 0):
        k.e('''
        s_lshr_b32 s31, s47, 1
        s_mul_i32 s31, s31, 28
        s_add_u32 s31, s31, s48
        s_and_b32 s30, s47, 1
        s_lshl_b32 s30, s30, 3
        s_and_b32 s49, s31, 7
        s_add_u32 s30, s30, s49
        s_lshr_b32 s31, s31, 3
        ''')
    lcomp = 'L_%s_comp' % name
    set_flag(k, sig)
    if pf or side:
        k.e('s_cmp_ge_u32 s2, %d' % (GM * GN))
        k.e('s_cbranch_scc1 L_%s_pf' % name)
    k.e('s_cmp_ge_u32 s46, 4')
    k.e('s_cbranch_scc1 %s' % lcomp)
    nx = xb // 1024 // 4; ny = yb // 1024 // 4
    assert nx * 4096 == xb and ny * 4096 == yb
    VX = 8; VY = VX + nx
    g.LV = VY + ny
    if X[0] == 'xf':
        C = X[2]; ncb = C // 16
        assert S % nx == 0 or nx % S == 0
        k.e('s_mul_i32 s50, s30, %d' % (TM // 32 * ncb * 1024))
        k.e('s_mul_i32 s51, s46, %d' % nx)
        k.e('s_lshr_b32 s52, s51, %d' % log2(S))
        k.e('s_and_b32 s51, s51, %d' % (S - 1))
        k.e('s_mul_i32 s52, s52, %d' % (ncb * 1024))
        k.e('s_lshl_b32 s51, s51, 10')
        k.e('s_add_u32 s50, s50, s52')
        k.e('s_add_u32 s50, s50, s51')
        k.e('v_lshl_add_u32 v%d, v1, 4, s50' % VX)
        for j in range(1, nx):
            k.e('v_add_u32 v%d, %d, v%d' % (VX + j, (j // S) * ncb * 1024 + (j % S) * 1024, VX))
        xadv = S * 1024
    else:
        ld = X[2]
        assert nx % 2 == 0
        k.e('s_mul_i32 s50, s30, %d' % (TM * ld))
        k.e('s_mul_i32 s51, s46, %d' % (nx * 8 * ld))
        k.e('s_add_u32 s50, s50, s51')
        k.e('v_lshrrev_b32 v2, 3, v1')
        k.e('v_lshl_add_u32 v2, v2, %d, s50' % log2(ld))
        k.e('v_and_b32 v3, 7, v1')
        k.e('v_lshrrev_b32 v4, 4, v1')
        k.e('v_xor_b32 v5, v4, v3')
        k.e('v_lshl_add_u32 v%d, v5, 4, v2' % VX)
        k.e('v_xor_b32 v5, 64, v%d' % VX)
        k.e('v_add_u32 v%d, %d, v5' % (VX + 1, 8 * ld))
        for j in range(2, nx):
            k.e('v_add_u32 v%d, %d, v%d' % (VX + j, (j - j % 2) * 8 * ld, VX + j % 2))
        xadv = KS * 2
    k.e('''
    v_lshrrev_b32 v2, 4, v1            ; u
    v_bfe_u32 v3, v1, 2, 2             ; (i>>2)&3
    v_and_b32 v4, 3, v1                ; i&3
    ''')
    if Y[0] == 'w':
        ld = Y[2]
        NP = TN // 64
        assert ny % NP == 0
        if M16:
            k.e('v_and_b32 v5, 2, v2')
            k.e('v_xor_b32 v4, v4, v5')
        k.e('v_lshrrev_b32 v5, 1, v2')
        k.e('v_lshl_add_u32 v5, v5, 2, v3')
        k.e('v_mul_u32_u24 v5, %d, v5' % ld)
        k.e('v_and_b32 v6, 1, v2')
        k.e('v_lshl_add_u32 v5, v6, 6, v5')
        k.e('v_lshl_add_u32 v5, v4, 4, v5')
        if Y[3] == 'qkv': tstride, segs = 128, [0, 2048, 4096]
        elif Y[3]: tstride, segs = Y[3]
        else: tstride, segs = TN * 2, [p * 128 for p in range(NP)]
        k.e('s_mul_i32 s50, s46, %d' % (ny // NP * 8 * ld))
        k.e('s_mul_i32 s51, s31, %d' % tstride)
        k.e('s_add_u32 s50, s50, s51')
        k.e('v_add_u32 v5, s50, v5')
        for j in range(ny):
            k.e('v_add_u32 v%d, %d, v5' % (VY + j, (j // NP) * 8 * ld + segs[j % NP]))
        yadv = KS * ld
    else:
        C = Y[2]; ncb = C // 16
        NB = TN // 32
        assert ny == NB and S == 4
        if M16:
            k.e('v_and_b32 v5, 2, v2')
            k.e('v_xor_b32 v3, v3, v5')
        k.e('v_lshl_add_u32 v5, v2, 2, v4')
        k.e('v_lshlrev_b32 v5, 4, v5')
        k.e('v_lshl_add_u32 v5, v3, 9, v5')
        k.e('s_lshr_b32 s50, s46, 1')
        k.e('s_mul_i32 s50, s50, %d' % (ncb * 1024))
        k.e('s_and_b32 s51, s46, 1')
        k.e('s_lshl_b32 s51, s51, 8')
        k.e('s_add_u32 s50, s50, s51')
        k.e('s_mul_i32 s51, s31, %d' % (TN // 16 * 1024))
        k.e('s_add_u32 s50, s50, s51')
        k.e('v_add_u32 v%d, s50, v5' % VY)
        for j in range(1, ny):
            k.e('v_add_u32 v%d, %d, v%d' % (VY + j, j * 2048, VY))
        yadv = 2 * ncb * 1024
    k.e('s_mul_i32 s55, s46, %d' % (nx * 1024))
    k.e('s_mul_i32 s56, s46, %d' % (ny * 1024))
    k.e('s_add_u32 s56, s56, %d' % xb)
    per = nx + ny
    assert per * NS <= 55 and nst >= 2 * NS
    k.e('s_waitcnt lgkmcnt(0)')
    mark(k, 0)
    if Y[0] == 'w': srd(k, 36, Y[1])
    else: srd(k, 36, 'ws', Y[1], 2048 * Y[2] * 2)
    if X[0] == 'xf': srd(k, 32, 'ws', X[1], 2048 * X[2] * 2)
    else: srd(k, 32, X[1])
    xfl = ' sc1' if X[0] == 'xf' else ''
    yfl = ' sc1' if Y[0] == 'z' else ''
    ntf = os.environ.get('NT_' + name, os.environ.get('NT', ''))
    if 'X' in ntf: xfl += ' nt'
    if 'Y' in ntf: yfl += ' nt'
    ownlds = name == 'wsp' and ZOWN and c.prev == 'win'
    OWN = own if (own and not c.first and (OWNF(name) or ownlds)) else None
    RW = env('RW_' + name, min(RWD, 2) if OWN else RWD); RC = env('RC_' + name, 1)
    assert nst % RW == 0
    if RW > 1:
        k.e('s_mul_i32 s54, s31, %d' % RC)
        k.e('s_add_u32 s54, s54, s30')
    if OWN:
        assert RW <= 2
        k.e(OWN)
        k.e('s_and_b32 s54, s54, 1' if RW > 1 else 's_mov_b32 s54, 0')
    out = []
    RB = 48
    dyn = [None]
    def soff(st, adv):
        if OWN:
            if st < 2: k.e('s_add_u32 s57, s68, %d' % st)
            else:
                k.e('s_cmp_le_u32 s68, %d' % (st - 2))
                k.e('s_cselect_b32 s57, %d, %d' % (st, st - 2))
                k.e('s_xor_b32 s57, s57, s54')
            k.e('s_mul_i32 s57, s57, %d' % adv)
        elif dyn[0] is not None:
            assert RW in (1, 2, 4)
            if RW > 1:
                k.e('s_add_u32 s57, s54, %d' % st)
                k.e('s_and_b32 s57, s57, %d' % (RW - 1))
                k.e('s_add_u32 s57, s57, s59')
                k.e('s_add_u32 s57, s57, %d' % (st // RW * RW))
            else: k.e('s_add_u32 s57, s59, %d' % st)
            k.e('s_mul_i32 s57, s57, %d' % adv)
        elif RW > 1:
            k.e('s_add_u32 s57, s54, %d' % st)
            k.e('s_and_b32 s57, s57, %d' % (RW - 1))
            k.e('s_mul_i32 s57, s57, %d' % adv)
            if st // RW: k.e('s_add_u32 s57, s57, %d' % (st // RW * RW * adv))
        else: k.e('s_mov_b32 s57, %d' % (st * adv))
    def opinfo(op): return (nx, 's55', VX, 32, xadv, xfl) if op == 'X' else (ny, 's56', VY, 36, yadv, yfl)
    def throttle(n):
        if len(out) + n > 60:
            k.e('s_waitcnt vmcnt(40)'); del out[:len(out) - 40]
    def iss(op, st):
        slot = (st % NS) * STAGE
        n, base, V, sd, adv, fl = opinfo(op)
        if op == ind and st in Rset:
            if ('r', st) in out:
                last = max(i for i, t in enumerate(out) if t == ('r', st))
                k.e('s_waitcnt vmcnt(%d)' % (len(out) - 1 - last)); del out[:last + 1]
            r0 = RB + Rset.index(st) * n * 4
            for j in range(n):
                o = slot + j * 1024
                k.e('ds_write_b128 v%d, %s offset:%d' % (44 + o // 65536, vr(r0 + 4 * j, 4), o % 65536))
            return
        throttle(n)
        soff(st, adv)
        for j in range(n):
            k.e('s_add_u32 m0, %s, %d' % (base, slot + j * 1024))
            k.e('s_nop 0')
            k.e('buffer_load_dwordx4 v%d, %s, s57 offen%s lds' % (V + j, sr(sd), fl))
            out.append(st)
    def issr(st):
        n, base, V, sd, adv, fl = opinfo(ind)
        throttle(n)
        soff(st, adv)
        r0 = RB + Rset.index(st) * n * 4
        for j in range(n):
            k.e('buffer_load_dwordx4 %s, v%d, %s, s57 offen' % (vr(r0 + 4 * j, 4), V + j, sr(sd)))
            out.append(('r', st))
    def wait_stage(st):
        lg = ' lgkmcnt(%d)' % min(15, opinfo(ind)[0] * len([r_ for r_ in Rset if st < r_ < st + NS - LAG])) if st in Rset else ''
        if st in out:
            last = max(i for i, t in enumerate(out) if t == st)
            k.e('s_waitcnt vmcnt(%d)%s' % (len(out) - 1 - last, lg))
            del out[:last + 1]
        elif lg: k.e('s_waitcnt' + lg)
    I0 = env('I0_' + name, 2)
    ind = 'Y' if dep == 'X' else 'X'
    fusedw = wait and not c.first and not env('WLATE_' + name, 0)
    R = env('RR_' + name, RR) if fusedw else 0
    Rset = sorted(set(NS + (2 * i + 1) * (nst - NS) // (2 * R) for i in range(R))) if R else []
    if Rset:
        assert RB + len(Rset) * opinfo(ind)[0] * 4 <= 256
        k.need(RB + len(Rset) * opinfo(ind)[0] * 4, 0)
        k.e('v_lshl_add_u32 v44, v1, 4, %s' % opinfo(ind)[1])
        k.e('v_add_u32 v45, 0x10000, v44')
    if xt:
        DX = env('DX', 4); NR = 64; TB = NR + DX * 8; TX = TB + 32
        assert nx == 2 and S == 2
        k.need(TX + 16, 0)
        k.e('v_lshl_add_u32 v44, v1, 4, s55')
        k.e('v_add_u32 v45, 0x10000, v44')
        k.e('v_lshrrev_b32 v46, 5, v1')
        k.e('v_lshlrev_b32 v46, 4, v46')
        k.e('v_add_u32 v46, %d, v46' % AUX_A)
        def ldn(st):
            soff(st, xadv)
            for j in range(2):
                k.e('buffer_load_dwordx4 %s, v%d, s[32:35], s57 offen sc1' % (vr(NR + (st % DX) * 8 + 4 * j, 4), VX + j))
                out.append(('n', st))
        TW = TX + 16
        k.need(TW + 8, 0)
        def tabrd(st):
            soff(st, 128)
            k.e('v_add_u32 v47, s57, v46')
            for j in range(2):
                for sub in range(2):
                    k.e('ds_read_b128 %s, v47 offset:%d' % (vr(TB + 16 * j + 4 * sub, 4), 4096 + j * 64 + sub * 32))
                    k.e('ds_read_b128 %s, v47 offset:%d' % (vr(TB + 16 * j + 8 + 4 * sub, 4), j * 64 + sub * 32))
        def xform(st):
            if ('n', st) in out:
                last = max(i for i, t in enumerate(out) if t == ('n', st))
                k.e('s_waitcnt vmcnt(%d)' % (len(out) - 1 - last)); del out[:last + 1]
            r0 = NR + (st % DX) * 8
            for d in range(8): unpack(k, TX + 2 * d, TX + 2 * d + 1, r0 + d)
            if st + DX < nst: ldn(st + DX)
            k.e('s_waitcnt lgkmcnt(0)')
            for j in range(2):
                for e in range(8): k.e('v_fma_f32 v%d, v%d, v%d, v%d' % (TX + 8 * j + e, TX + 8 * j + e, TB + 16 * j + e, TB + 16 * j + 8 + e))
            for j in range(2):
                for d in range(4): k.e('v_cvt_pk_bf16_f32 v%d, v%d, v%d' % (TW + 4 * j + d, TX + 8 * j + 2 * d, TX + 8 * j + 2 * d + 1))
                o = (st % NS) * STAGE + j * 1024
                k.e('ds_write_b128 v%d, %s offset:%d' % (44 + o // 65536, vr(TW + 4 * j, 4), o % 65536))
            if st + 1 < nst: tabrd(st + 1)
        for st in range(NS): iss('Y', st)
        k.e('s_barrier')
        mark(k, 1)
        out.extend(['p'] * 4)
        mod_table(k, 24, between=lambda: [ldn(st) for st in range(DX)], nb=2 * DX)
        del out[:len(out) - 2 * DX]
        if env('XPRIO', 0): k.e('s_setprio %d' % env('XPRIO', 0))
        XL = env('XL', 2)
        assert XL >= 2
        tabrd(0)
        for st in range(XL): xform(st)
        def capture(fn):
            n0 = len(k.lines); fn(); got = k.lines[n0:]; del k.lines[n0:]
            return got
        def step(st):
            lg = ' lgkmcnt(0)' if st + XL > nst else ''
            if st in out:
                last = max(i for i, t in enumerate(out) if t == st)
                k.e('s_waitcnt vmcnt(%d)%s' % (len(out) - 1 - last, lg)); del out[:last + 1]
            elif lg: k.e('s_waitcnt' + lg)
            if st == 0: mark(k, 2)
            k.e('s_barrier')
            sx = st + XL; sy = st + NS - LAG
            doy = st >= LAG and sy < nst
            if sx >= nst:
                if doy: iss('Y', sy)
                return
            if ('n', sx) in out:
                last = max(i for i, t in enumerate(out) if t == ('n', sx))
                nw = 's_waitcnt vmcnt(%d)' % (len(out) - 1 - last + (1 if doy else 0)); del out[:last + 1]
            else: nw = None
            yl = capture(lambda: iss('Y', sy)) if doy else []
            yp = []; cur = []
            for l in yl:
                if 's_nop' in l: continue
                cur.append(l)
                if 'buffer_load' in l: yp.append(cur); cur = []
            nl = capture(lambda: ldn(sx + DX)) if (sx + DX < nst or dyn[0] is not None) else []
            nl = [l.replace('s57', 's58') for l in nl]
            npc = [nl[:-1], nl[-1:]] if nl else [[], []]
            r0 = NR + (sx % DX) * 8
            un = capture(lambda: [unpack(k, TX + 2 * d, TX + 2 * d + 1, r0 + d) for d in range(8)])
            fm = ['    v_fma_f32 v%d, v%d, v%d, v%d' % (TX + 8 * j + e, TX + 8 * j + e, TB + 16 * j + e, TB + 16 * j + 8 + e) for j in range(2) for e in range(8)]
            def put(piece):
                if len(piece) >= 2 and 'm0' in piece[-2]: piece = piece[:-1] + ['    s_nop 0', piece[-1]]
                k.lines.extend(piece)
            if yp: put(yp[0])
            if nw: k.e(nw)
            k.lines.extend(un[:8])
            if yp: put(yp[1])
            k.lines.extend(un[8:])
            if yp: put(yp[2])
            k.e('s_waitcnt lgkmcnt(0)')
            k.lines.extend(fm[:10])
            k.lines.extend(npc[0])
            k.lines.extend(fm[10:])
            if sx + 1 < nst: tabrd(sx + 1)
            k.lines.extend(npc[1])
            for j in range(2):
                for d in range(4): k.e('v_cvt_pk_bf16_f32 v%d, v%d, v%d' % (TW + 4 * j + d, TX + 8 * j + 2 * d, TX + 8 * j + 2 * d + 1))
                o = (sx % NS) * STAGE + j * 1024
                k.e('ds_write_b128 v%d, %s offset:%d' % (44 + o // 65536, vr(TW + 4 * j, 4), o % 65536))
        assert NS == 4 and DX == 4 and XL == 2 and LAG == 1 and nst == 32
        for st in range(5): step(st)
        k.e('s_mov_b32 s59, 0')
        k.label('L_%s_xl' % name)
        dyn[0] = 0
        before = list(out)
        for st in range(5, 9): step(st)
        dyn[0] = None
        sh = lambda t, d: (t[0], t[1] + d) if isinstance(t, tuple) else t + d
        assert [sh(t, 4) for t in before] == out, (before, out)
        k.e('s_add_u32 s59, s59, 4')
        k.e('s_cmp_lt_u32 s59, 24')
        k.e('s_cbranch_scc1 L_%s_xl' % name)
        out[:] = [sh(t, 20) for t in out]
        for st in range(29, 32): step(st)
    elif wait and not c.first and env('WLATE_' + name, 0):
        handoff(k, wait[0], wait[1])
    if xt: pass
    elif fusedw:
        for st in range(NS): iss(ind, st)
        for st in Rset: issr(st)
        if auxpre: out.extend(['aux'] * auxpre(g))
        if ownlds and LPW:
            k.e('s_barrier')
            handoff(k, wait[0], wait[1], role='W')
            mark(k, 1)
            for st in range(2, NS): iss(dep, st)
            wait_stage(0); mark(k, 2); k.e('s_barrier')
        elif ownlds:
            handoff(k, wait[0], wait[1])
            mark(k, 1)
            I1 = env('I1_' + name, 3)
            for st in range(2, I1): iss(dep, st)
            wait_stage(0); mark(k, 2); k.e('s_barrier')
            for st in range(I1, NS): iss(dep, st)
        elif OWN:
            l1 = k.newlabel('no'); l2 = k.newlabel('no')
            k.e('s_barrier')
            if ownlim:
                k.e('s_cmp_ge_u32 s2, %d' % ownlim); k.e('s_cbranch_scc1 %s' % l1)
            n0 = len(k.lines)
            iss(dep, 0); iss(dep, 1)
            dup = k.lines[n0:]
            k.label(l1)
            handoff(k, wait[0], wait[1])
            mark(k, 1)
            if ownlim:
                k.e('s_cmp_lt_u32 s2, %d' % ownlim); k.e('s_cbranch_scc1 %s' % l2)
                k.lines.extend(dup)
                k.label(l2)
            I1 = env('I1_' + name, 3)
            for st in range(2, I1): iss(dep, st)
            wait_stage(0); mark(k, 2); k.e('s_barrier')
            for st in range(I1, NS): iss(dep, st)
        else:
            handoff(k, wait[0], wait[1])
            mark(k, 1)
            for st in range(I0): iss(dep, st)
            wait_stage(0); mark(k, 2); k.e('s_barrier')
            for st in range(I0, NS): iss(dep, st)
    else:
        for st in range(I0): iss(ind, st); iss(dep, st)
        mark(k, 1)
        wait_stage(0); mark(k, 2); k.e('s_barrier')
        for st in range(I0, NS): iss(ind, st); iss(dep, st)
    FS = bool(Rset) or env('STATIC', 0) or xt
    if FS and not xt:
        for st in range(1, nst):
            if st == nst - 1: k.e('s_waitcnt vmcnt(0) lgkmcnt(0)')
            else: wait_stage(st)
            if st == nst - 1 and aux_end: aux_end(g)
            k.e('s_barrier')
            nx_st = st + NS - LAG
            if st >= LAG and nx_st < nst:
                iss(dep, nx_st); iss(ind, nx_st)
                if nx_st == nst - 1 and aux:
                    out.extend(['aux'] * aux(g))
    for st in range(1, NS if not FS else 0):
        wait_stage(st); k.e('s_barrier')
        if st >= LAG: iss('Y', st + NS - LAG); iss('X', st + NS - LAG)
    if not FS:
        s0 = 2 * NS - LAG
        k.e('s_add_u32 s60, s55, %d' % (NS * STAGE))
        k.e('s_add_u32 s55, s55, %d' % ((s0 % NS) * STAGE))
        k.e('s_add_u32 s56, s56, %d' % ((s0 % NS) * STAGE))
        k.e('s_mov_b32 s57, %d' % (s0 * xadv))
        k.e('s_mov_b32 s58, %d' % (s0 * yadv))
        k.e('s_mov_b32 s59, %d' % s0)
        ll = 'L_%s_lloop' % name
        k.label(ll)
        if OWN:
            k.e('s_sub_u32 s57, s59, 2')
            k.e('s_cmp_le_u32 s68, s57')
            k.e('s_cselect_b32 s57, s59, s57')
            k.e('s_xor_b32 s57, s57, s54')
            k.e('s_mul_i32 s58, s57, %d' % yadv)
            k.e('s_mul_i32 s57, s57, %d' % xadv)
        elif RW > 1:
            k.e('s_add_u32 s57, s54, s59')
            k.e('s_and_b32 s57, s57, %d' % (RW - 1))
            k.e('s_andn2_b32 s58, s59, %d' % (RW - 1))
            k.e('s_or_b32 s57, s57, s58')
            k.e('s_mul_i32 s58, s57, %d' % yadv)
            k.e('s_mul_i32 s57, s57, %d' % xadv)
        k.e('s_waitcnt vmcnt(%d)' % (per * (NS - 1 - LAG)))
        k.e('s_barrier')
        for j in range(ny):
            k.e('s_add_u32 m0, s56, %d' % (j * 1024))
            k.e('s_nop 0')
            k.e('buffer_load_dwordx4 v%d, s[36:39], s58 offen%s lds' % (VY + j, yfl))
        for j in range(nx):
            k.e('s_add_u32 m0, s55, %d' % (j * 1024))
            k.e('s_nop 0')
            k.e('buffer_load_dwordx4 v%d, s[32:35], s57 offen%s lds' % (VX + j, xfl))
        k.e('s_add_u32 s57, s57, %d' % xadv)
        k.e('s_add_u32 s58, s58, %d' % yadv)
        k.e('s_add_u32 s55, s55, %d' % STAGE)
        k.e('s_add_u32 s56, s56, %d' % STAGE)
        k.e('s_cmp_eq_u32 s55, s60')
        k.e('s_cselect_b32 s61, %d, 0' % (NS * STAGE))
        k.e('s_sub_u32 s55, s55, s61')
        k.e('s_sub_u32 s56, s56, s61')
        k.e('s_add_u32 s59, s59, 1')
        k.e('s_cmp_lt_u32 s59, %d' % nst)
        k.e('s_cbranch_scc1 %s' % ll)
        naux = aux(g) if aux else 0
        NXT = dict(qkv=('attn', 1), wo=('win', 1), win=('wsp', 2), wsp=('wout', 1))
        if CPF >= 2:
            if name in NXT: naux += code_pf(k, 'L_%s_epi' % name, 'L_%s_epi' % NXT[name][0], NXT[name][1] * 8192, vt=22, vd=23)
            else: naux += code_pf(k, 'L_%s_epi' % name, 'L_text_end', 8192, vt=22, vd=23)
        for st in range(nst - NS + LAG, nst):
            k.e('s_waitcnt vmcnt(%d)' % (per * (nst - st - 1) + naux if st < nst - 1 else 0))
            if st == nst - 1 and aux_end: aux_end(g)
            k.e('s_barrier')
    LE = env('LE_' + name, env('LE', 0))
    g.LE = LE and not c.last
    if mid: mid(g)
    if not c.last and not LE: k.e('s_barrier')
    if post: post(g)
    if not c.last and LE: k.e('s_barrier')
    signal(k)
    endpgm(k)
    k.label(lcomp)
    k.e('s_setprio 1')
    k.e('s_sub_u32 s46, s46, 4')
    k.e('s_lshr_b32 s50, s46, %d' % log2(WN))
    k.e('s_and_b32 s51, s46, %d' % (WN - 1))
    ACC = 8
    nacc = mb * nb * 16
    FR = frbase if frbase else ACC + nacc
    GU = env('GU_' + name, GU)
    g.acc = lambda i, j: ACC + (accmap(i, j) if accmap else i * nb + j) * 16
    g.M16 = M16
    k.e('v_and_b32 v3, 31, v1')
    k.e('v_lshrrev_b32 v4, 5, v1')
    if M16:
        JG = env('JG_' + name, JG)
        KSN = KS // 32; NU = KSN * JG; nbj = nb // JG
        XA = FR + max(16 * mb + 16 * nbj, 72 if name == 'win' else 0)
        nxa = KSN if X[0] == 'rm' else 1
        nya = 2
    else:
        NU = S // GU
        assert NU % 2 == 0
        fs1 = (mb + nb) * 4
        fsz = fs1 * GU
        XA = FR + 2 * fsz
        nxa = S if X[0] == 'rm' else 1
        nya = 1
    XB = XA; XC = XA + nxa; YB = XC + nxa; YC = YB + nya
    g.free = YC + nya
    g.FR = FR
    NP = TN // 64; NB = TN // 32
    if Y[0] == 'w':
        if Y[3] == 'qkv': ywave = 's_lshl_b32 s52, s51, 8'
        else:
            assert nb % 2 == 0
            ywave = 's_mul_i32 s52, s51, %d' % (nb // 2 * 1024)
        def yblk(j): return j * 1024 if Y[3] == 'qkv' else (j // 2) * 1024 + (j % 2) * 256
    else: ywave = 's_mul_i32 s52, s51, %d' % (nb * 1024)
    if M16:
        k.e('v_and_b32 v5, 15, v1')
        k.e('v_lshrrev_b32 v6, 4, v1')
        if X[0] == 'xf':
            k.e('s_mul_i32 s52, s50, %d' % (mb * S * 1024))
            k.e('v_lshl_add_u32 v7, v5, 4, s52')
            k.e('v_lshl_add_u32 v%d, v6, 9, v7' % XB)
        else:
            k.e('s_mul_i32 s52, s50, %d' % (mb * 4096))
            k.e('v_lshl_add_u32 v2, v5, 7, s52')
            k.e('v_lshrrev_b32 v5, 1, v5')
            for ks in range(KSN):
                k.e('v_add_u32 v7, %d, v6' % (4 * ks))
                k.e('v_xor_b32 v7, v7, v5')
                k.e('v_lshl_add_u32 v%d, v7, 4, v2' % (XB + ks))
        k.e('v_mul_u32_u24 v5, %d, v4' % (2 * NP * 1024 if Y[0] == 'w' else NB * 1024))
        k.e('v_and_b32 v6, 1, v6')
        k.e('v_lshl_add_u32 v5, v6, 9, v5')
        k.e('v_lshl_add_u32 v5, v6, %d, v5' % (5 if Y[0] == 'w' else 7))
        k.e('v_bfe_u32 v6, v1, 2, 2')
        k.e('v_lshl_add_u32 v5, v6, %d, v5' % (6 if Y[0] == 'w' else 4))
        k.e('v_bfe_u32 v6, v1, 1, 1')
        k.e('v_lshl_add_u32 v5, v6, %d, v5' % (3 if Y[0] == 'w' else 6))
        k.e('v_and_b32 v6, 1, v1')
        k.e('v_lshl_add_u32 v5, v6, %d, v5' % (4 if Y[0] == 'w' else 3))
        k.e(ywave)
        k.e('s_add_u32 s52, s52, %d' % xb)
        k.e('v_add_u32 v%d, s52, v5' % YB)
        k.e('v_xor_b32 v%d, %d, v%d' % (YB + 1, 32 if Y[0] == 'w' else 128, YB))
    else:
        if X[0] == 'xf':
            k.e('s_mul_i32 s52, s50, %d' % (mb * S * 1024))
            k.e('v_lshl_add_u32 v%d, v1, 4, s52' % XB)
        else:
            assert KS == 64
            k.e('s_mul_i32 s52, s50, %d' % (mb * 4096))
            k.e('v_bfe_u32 v5, v3, 1, 3')
            k.e('v_lshl_add_u32 v6, v3, 7, s52')
            for ss in range(S):
                k.e('v_add_u32 v7, %d, v4' % (2 * ss))
                k.e('v_xor_b32 v7, v7, v5')
                k.e('v_lshl_add_u32 v%d, v7, 4, v6' % (XB + ss))
        k.e("""
        v_lshlrev_b32 v5, 9, v4            ; h*512
        v_bfe_u32 v6, v1, 2, 2             ; r
        v_lshl_add_u32 v5, v6, %d, v5
        v_bfe_u32 v6, v1, 4, 1             ; G&1
        v_lshl_add_u32 v5, v6, %d, v5
        v_bfe_u32 v6, v1, 1, 1             ; c>>1
        v_and_b32 v7, 1, v1                ; c&1
        """ % ((6, 5) if Y[0] == 'w' else (4, 7)))
        if Y[0] == 'w':
            k.e('v_lshl_add_u32 v5, v6, 4, v5')
            k.e('v_lshl_add_u32 v5, v7, 3, v5')
        else:
            k.e('v_lshl_add_u32 v5, v7, 6, v5')
            k.e('v_lshl_add_u32 v5, v6, 3, v5')
        k.e(ywave)
        k.e('s_add_u32 s52, s52, %d' % xb)
        k.e('v_add_u32 v%d, s52, v5' % YB)
    k.e('s_waitcnt lgkmcnt(0)')
    mark(k, 0)
    pre(g)
    if M16:
        def xr16(sp, ks, i, rh): return FR + (sp[0] if isinstance(sp, tuple) else (sp * KSN + ks) % 2) * 8 * mb + (2 * i + rh) * 4
        def yr16(sp, u, j, t): return FR + 16 * mb + (sp[1] if isinstance(sp, tuple) else (sp * NU + u) % 2) * 8 * nbj + ((j % nbj) * 2 + t) * 4
        def cols(jg, sp): return sp[2] if isinstance(sp, tuple) else range(jg * nbj, (jg + 1) * nbj)
        def reads(u, sp=0):
            ks = u // JG; jg = u % JG
            xr = []; yr = []
            if jg == 0 or isinstance(sp, tuple):
                for i in range(mb):
                    for rh in range(2):
                        if X[0] == 'xf': xr.append('ds_read_b128 %s, v%d offset:%d' % (vr(xr16(sp, ks, i, rh), 4), XC, (i * S + 2 * ks) * 1024 + rh * 256))
                        else: xr.append('ds_read_b128 %s, v%d offset:%d' % (vr(xr16(sp, ks, i, rh), 4), XC + ks, i * 4096 + rh * 2048))
            for j in cols(jg, sp):
                for t in range(2):
                    for rd in range(2):
                        o = (4 * ks + rd) * NP * 1024 + yblk(j) if Y[0] == 'w' else (2 * ks * NB + j) * 1024 + rd * 256
                        yr.append('ds_read_b64_tr_b16 %s, v%d offset:%d' % (vr(yr16(sp, u, j, t) + 2 * rd, 2), YC + t, o))
            return xr[:1] + yr[:2] + xr[1:] + yr[2:]
        def mfmas(u, first, sp=0):
            ks = u // JG; jg = u % JG
            out = []
            for j in cols(jg, sp):
                for t in range(2):
                    for i in range(mb):
                        for rh in range(2):
                            x_ = xr16(sp, ks, i, rh); y_ = yr16(sp, u, j, t)
                            if j in swap: a = g.acc(i, j) + 8 * rh + 4 * t; p, q = x_, y_
                            else: a = g.acc(i, j) + 8 * t + 4 * rh; p, q = y_, x_
                            out.append('v_mfma_f32_16x16x32_bf16 %s, %s, %s, %s' % (vr(a, 4), vr(p, 4), vr(q, 4), '0' if first and ks == 0 else vr(a, 4)))
            return out
        def fix(i, j):
            a = g.acc(i, j)
            for hb in range(2):
                for e in range(4):
                    k.e('%s v%d, v%d' % ('v_permlane32_swap_b32' if j in swap else 'v_permlane16_swap_b32', a + 8 * hb + e, a + 8 * hb + 4 + e))
    else:
        def yoff(j, ss, rd):
            return (2 * ss + rd) * NP * 1024 + yblk(j) if Y[0] == 'w' else (ss * NB + j) * 1024 + rd * 256
        def xf(ss, i): return FR + ((ss // GU) % 2) * fsz + (ss % GU) * fs1 + i * 4
        def yf(ss, j): return FR + ((ss // GU) % 2) * fsz + (ss % GU) * fs1 + (mb + j) * 4
        def reads1(ss):
            xr = []; yr = []
            for i in range(mb):
                if X[0] == 'xf':
                    xr.append('ds_read_b128 %s, v%d offset:%d' % (vr(xf(ss, i), 4), XC, (i * S + ss) * 1024))
                else:
                    xr.append('ds_read_b128 %s, v%d offset:%d' % (vr(xf(ss, i), 4), XC + ss, i * 4096))
            for j in range(nb):
                for rd in range(2):
                    yr.append('ds_read_b64_tr_b16 %s, v%d offset:%d' % (vr(yf(ss, j) + 2 * rd, 2), YC, yoff(j, ss, rd)))
            return [xr[0]] + yr[:2] + xr[1:] + yr[2:]
        def reads(u, sp=0): return [r for ss in range(u * GU, (u + 1) * GU) for r in reads1(ss)]
        def mfmas(u, first, sp=0):
            out = []
            for ss in range(u * GU, (u + 1) * GU):
                for j in range(nb):
                    for i in range(mb):
                        a = g.acc(i, j)
                        c_ = '0' if first and ss == 0 else vr(a, 16)
                        p, q = (xf(ss, i), yf(ss, j)) if j in swap else (yf(ss, j), xf(ss, i))
                        out.append('v_mfma_f32_32x32x16_bf16 %s, %s, %s, %s' % (vr(a, 16), vr(p, 4), vr(q, 4), c_))
            return out
        def fix(i, j): pass
    g.fix = fix
    def setaddr():
        for t in range(nxa): k.e('v_add_u32 v%d, s53, v%d' % (XC + t, XB + t))
        for t in range(nya): k.e('v_add_u32 v%d, s53, v%d' % (YC + t, YB + t))
    RPGV = [env('RPG2_' + name, (5 if mb * nb == 2 else (2 if name == 'qkv' else 3)) * (1 if M16 else 2))]
    import re
    def regs_of(txt):
        return [(int(a_), int(b_)) for a_, b_ in re.findall(r'v\[(\d+):(\d+)\]', txt)]
    def advance():
        n0 = len(k.lines)
        k.e('s_add_u32 s53, s53, %d' % STAGE)
        k.e('s_cmp_eq_u32 s53, %d' % (NS * STAGE))
        k.e('s_cselect_b32 s53, 0, s53')
        setaddr()
        got = [l.strip() for l in k.lines[n0:]]; del k.lines[n0:]
        return got
    EARLY = env('EARLYADV', 1)
    RM = [ROLL]
    def unit(u, first, rs, sp, extra):
        ms = mfmas(u, first, sp)
        prev = reads(u, sp)
        dst = [regs_of(r)[0] for r in prev]
        ROLL = RM[0]
        covered = -1 if ROLL else len(prev); issued = 0; xi = 0
        WMAX = env('WMAX_' + name, env('WMAX', 9))
        nspread = len(ms) - (min(len(extra) // 2 + 1, len(ms) // 3) if extra else 0)
        for mi, m in enumerate(ms):
            ops = regs_of(m)[1:3]
            need = max(i for i, d in enumerate(dst) if any(o[0] <= d[0] <= o[1] for o in ops))
            if need > covered:
                n = min(len(prev) - 1 - need + issued, WMAX)
                k.e('s_waitcnt lgkmcnt(%d)' % n)
                covered = len(prev) - 1 - (n - issued) if n >= issued else len(prev) - 1
            k.e(m)
            e = min(len(rs), -(-len(rs) * (mi + 1) // nspread) if ROLL == 1 else -(-RPGV[0] * (mi + 1) // 2))
            if issued == len(rs):
                for _ in range(2):
                    if xi < len(extra): k.e(extra[xi]); xi += 1
            while issued < e: k.e(rs[issued]); issued += 1
        while issued < len(rs): k.e(rs[issued]); issued += 1
        while xi < len(extra): k.e(extra[xi]); xi += 1
    def stage(first, last, sp, tail=()):
        for u in range(NU):
            if u == NU - 1 and not last and not EARLY:
                for x in advance(): k.e(x)
            if u < NU - 1: rs = reads(u + 1, sp)
            elif last: rs = []
            else: rs = reads(0, sp ^ 1)
            extra = []
            if EARLY and not last and u == (NU - 2) % NU: extra = advance()
            if u == NU - 1: extra = extra + list(tail)
            if not RM[0] or (last and u == NU - 1 and not c.last and not LE): k.e('s_waitcnt lgkmcnt(0)')
            if u == NU - 1 and not (last and (c.last or LE)): k.e('s_barrier')
            unit(u, first, rs, sp, extra)
    k.e('s_mov_b32 s53, 0')
    setaddr()
    if xt:
        handoff_multi(k, [(4, 's_mov_b32 s100, %d' % FL_MOD, 64), (5, 's_mov_b32 s100, %d' % (FL_MOD + 256), 64), (6, wait[0], wait[1])])
        mod_table(k, FR)
    elif wait and not (ownlds and LPW): handoff(k, wait[0], wait[1], role='C')
    if early: early(g)
    k.e('s_barrier')
    mark(k, 1)
    for r in reads(0): k.e(r)
    if EARLY and NU == 1:
        for x in advance(): k.e(x)
    DEFER = env('DEFER_' + name, DEFER)
    npair = (nst - 1 - max(DEFER, 1)) // 2
    assert nst % 2 == 0 and (DEFER == 0 or (DEFER % 2 == 1 and M16 and KSN == 1 and not LE and DEFER <= NS))
    soft = env('SOFT_' + name, SOFT)
    srp = env('SRP_' + name, 1 if name == 'qkv' else 2)
    segs_ = [(npair, RPGV[0], ROLL)] if not soft else [(soft, srp, 0), (npair - soft, RPGV[0], ROLL)]
    RPGV[0] = segs_[0][1]; RM[0] = segs_[0][2]
    stage(True, False, 0)
    pre2(g)
    for si, (cnt_, rp_, rm_) in enumerate(segs_):
        RPGV[0] = rp_; RM[0] = rm_
        k.e('s_mov_b32 s54, %d' % cnt_)
        lp = 'L_%s_loop%s' % (name, si or '')
        k.label(lp)
        stage(False, False, 1); stage(False, False, 0, tail=['s_sub_u32 s54, s54, 1', 's_cmp_lg_u32 s54, 0'])
        k.e('s_cbranch_scc1 %s' % lp)
    k.label('L_%s_epi' % name)
    if prelast: prelast(g)
    def addr_for(st):
        o = (st % NS) * STAGE
        return ['v_add_u32 v%d, %d, v%d' % (XC, o, XB)] + ['v_add_u32 v%d, %d, v%d' % (YC + t, o, YB + t) for t in range(nya)]
    if DEFER:
        s0_ = nst - DEFER
        c0, c1 = dcols
        y0 = NU % 2
        for n_ in range(DEFER):
            par = ((1 + n_) % 2, (y0 + n_) % 2, c0)
            if n_ < DEFER - 1:
                for x in addr_for(s0_ + n_ + 1): k.e(x)
                rs = reads(0, (par[0] ^ 1, par[1] ^ 1, c0))
            else: rs = []
            if not RM[0] or (n_ == 0 and JG == 1): k.e('s_waitcnt lgkmcnt(0)')
            if n_ < DEFER - 1: k.e('s_barrier')
            unit(0, False, rs, par, [])
        def deferred():
            for x in addr_for(s0_): k.e(x)
            for r in reads(0, (0, 0, c1)): k.e(r)
            for n_ in range(DEFER):
                par = (n_ % 2, n_ % 2, c1)
                if n_ < DEFER - 1:
                    for x in addr_for(s0_ + n_ + 1): k.e(x)
                    rs = reads(0, (par[0] ^ 1, par[1] ^ 1, c1))
                else: rs = []
                if not RM[0] or n_ == DEFER - 1: k.e('s_waitcnt lgkmcnt(0)')
                if n_ == DEFER - 1: k.e('s_barrier')
                unit(0, False, rs, par, [])
            k.e('s_nop 7')
        g.deferred = deferred
    else:
        g.deferred = None
        stage(False, True, 1)
    mark(k, 2)
    if M16:
        k.e('s_nop 7')
        if not lazyfix:
            for j in range(nb):
                for i in range(mb): fix(i, j)
            k.e('s_nop 1')
    epi(g)
    if not selfsig:
        if g.LE and not getattr(g, 'ended', 0): k.e('s_barrier')
        signal(k, 'C')
    if side:
        endpgm(k)
        k.label('L_%s_pf' % name)
        k.e('s_sub_u32 s30, s2, %d' % (GM * GN))
        k.e('s_cmp_ge_u32 s30, %d' % side[0])
        k.e('s_cbranch_scc1 L_%s_pfe' % name)
        side[1](k, 0 if solo else AUX_B + 4096)
        k.label('L_%s_pfe' % name)
        signal(k, 'A')
    if pf:
        endpgm(k)
        k.label('L_%s_pf' % name)
        npf = 256 - GM * GN
        per_wg = SIZES[pf] // npf
        assert per_wg % (8192 * 2) == 0
        k.e('s_sub_u32 s30, s2, %d' % (GM * GN))
        k.e('s_mul_i32 s30, s30, %d' % per_wg)
        if env('PFOFF', 0): k.e('s_mov_b32 s30, 0x40000000')
        k.e('v_lshlrev_b32 v2, 4, v0')
        k.e('s_mov_b32 s31, %d' % (per_wg // 16384))
        k.e('s_waitcnt lgkmcnt(0)')
        srd(k, 32, pf)
        k.label('L_%s_pfl' % name)
        k.e('buffer_load_dwordx4 v[8:11], v2, s[32:35], s30 offen')
        k.e('s_add_u32 s30, s30, 8192')
        k.e('buffer_load_dwordx4 v[12:15], v2, s[32:35], s30 offen')
        k.e('s_add_u32 s30, s30, 8192')
        k.e('s_waitcnt vmcnt(6)')
        k.e('s_sub_u32 s31, s31, 1')
        k.e('s_cmp_lg_u32 s31, 0')
        k.e('s_cbranch_scc1 L_%s_pfl' % name)
        signal(k, 'A')
    finish(k)
    assert g.free <= 256, g.free
    k.need(g.free, max(NS * STAGE, g.AUX + auxsz, (AUX_B + 12288) if side and not solo else 0))

def alloc(g, n, align=4):
    b = (g.free + align - 1) // align * align
    g.free = b + n
    return b
def nop(g): pass

def store_xf_tile(g, a, T, voff, srdn, soff, imm):
    k = g.k
    for d in range(8):
        k.e('v_cvt_pk_bf16_f32 v%d, v%d, v%d' % (T + d, a + 2 * d, a + 2 * d + 1))
    if os.environ.get('SDATA') == 'zero' and k.c.name == 'qkv':
        for d in range(8): k.e('v_mov_b32 v%d, 0' % (T + d))
    if os.environ.get('SDATA') == 'rand' and k.c.name == 'qkv':
        import random
        for d in range(8):
            k.e('s_mul_i32 s68, s2, %d' % (random.getrandbits(31) | 1))
            k.e('v_add_u32 v%d, s68, v0' % (T + d))
            k.e('s_mov_b32 s69, %d' % (random.getrandbits(31) | 1))
            k.e('v_mul_lo_u32 v%d, v%d, s69' % (T + d, T + d))
            k.e('v_and_b32 v%d, 0xbfffbfff, v%d' % (T + d, T + d))
    if env('PACE', -1) >= 0: k.e('s_waitcnt vmcnt(%d)' % env('PACE', -1))
    k.e('buffer_store_dwordx4 %s, v%d, %s, %s offen offset:%d%s' % (vr(T, 4), voff, sr(srdn), soff, imm, WT))
    k.e('buffer_store_dwordx4 %s, v%d, %s, %s offen offset:%d%s' % (vr(T + 4, 4), voff, sr(srdn), soff, imm + 1024, WT))

def pk(op, d, *src, sel=None):
    s = 'v_pk_%s_f32 %s' % (op, vr(d, 2))
    hi = []
    for x in src:
        if isinstance(x, int): s += ', ' + vr(x, 2); hi.append(1)
        elif isinstance(x, tuple): s += ', ' + vr(x[0], 2); hi.append(0)
        elif x.startswith('s['): s += ', ' + x; hi.append(1)
        else: s += ', ' + x; hi.append(0)
    if 0 in hi: s += ' op_sel_hi:[%s]' % ','.join(map(str, hi))
    return s

def k_qkv(k, c):
    def pre(g):
        k = g.k
        srd(k, 32, 'ws', WS_Q, 4 * MB); srd(k, 36, 'ws', WS_KV, 8 * MB)
        g.L16 = alloc(g, 1, 1); g.LV16 = alloc(g, 1, 1)
        k.e('v_lshlrev_b32 v%d, 4, v1' % g.L16)
        if g.M16:
            k.e('v_and_b32 v5, 3, v1')
            k.e('v_lshl_add_u32 v5, v4, 4, v5')
            k.e('v_bfe_u32 v6, v1, 2, 1')
            k.e('v_lshl_add_u32 v5, v6, 3, v5')
            k.e('v_bfe_u32 v6, v1, 3, 1')
            k.e('v_lshl_add_u32 v5, v6, 2, v5')
            k.e('v_bfe_u32 v6, v1, 4, 1')
            k.e('v_lshl_add_u32 v5, v6, 5, v5')
            k.e('v_lshlrev_b32 v%d, 4, v5' % g.LV16)
        else: k.e('v_mov_b32 v%d, v%d' % (g.LV16, g.L16))
        k.e('''
        s_lshl_b32 s60, s31, 1
        s_add_u32 s60, s60, s51
        s_lshl_b32 s60, s60, 6
        s_lshl_b32 s61, s30, 2
        s_add_u32 s60, s60, s61
        s_lshl_b32 s61, s50, 1
        s_add_u32 s60, s60, s61           ; head*64 + rb0
        s_lshl_b32 s61, s60, 11           ; Q offset
        s_lshl_b32 s62, s60, 12           ; KV offset
        s_add_u32 s63, s62, 4096
        s_mov_b32 s66, %s
        s_mov_b32 s67, %s
        ''' % ((hx(32 ** -0.5 * LOG2E * float(os.environ.get('QERR', '1'))),) * 2))
    def epi(g):
        k = g.k
        T = g.FR
        k.e('s_nop 7')
        n = 0
        for i in range(2):
            a = g.acc(i, 0)
            for r in range(0, 16, 2): k.e(pk('mul', a + r, a + r, 's[66:67]'))
            store_xf_tile(g, a, T + 8 * n, g.L16, 32, 's61', i * 2048); n += 1
        for j in (1, 2):
            for i in range(2):
                store_xf_tile(g, g.acc(i, j), T + 8 * (n % 5), g.L16 if j == 1 else g.LV16, 36, 's62' if i == 0 else 's63', (j - 1) * 2048); n += 1
    QSP = env('QSP', 0)
    def epi2(g):
        k = g.k
        T = g.FR
        KP = [g.acc(0, 1), g.acc(1, 1)]; VP = [g.acc(0, 2), g.acc(1, 2)]; QP = [g.acc(0, 0), g.acc(1, 0)]
        for j in (1, 2):
            for i in range(2):
                g.fix(i, j)
                k.e('s_nop 0')
                store_xf_tile(g, g.acc(i, j), g.acc(i, j), g.L16 if j == 1 else g.LV16, 36, 's62' if i == 0 else 's63', (j - 1) * 2048)
        if g.deferred:
            g.deferred()
            if env('QSIG', 1): signal(k, 'C')
        for i in range(2):
            a = g.acc(i, 0)
            g.fix(i, 0)
            k.e('s_nop 0')
            for r in range(0, 16, 2): k.e(pk('mul', a + r, a + r, 's[66:67]'))
            for d in range(8): k.e('v_cvt_pk_bf16_f32 v%d, v%d, v%d' % (a + d, a + 2 * d, a + 2 * d + 1))
        if QSP == 1: signal(k, 'C')
        k.e('s_mul_i32 s68, s46, 5120')
        k.e('s_add_u32 s68, s68, %d' % AUX_A)
        k.e('v_add_u32 v5, s68, v%d' % g.L16)
        Sreg = [T, T + 16, T + 32, T + 48]
        for qi in range(2):
            for ki in range(2):
                S_ = Sreg[2 * qi + ki]
                k.e('v_mfma_f32_32x32x16_bf16 %s, %s, %s, 0' % (vr(S_, 16), vr(KP[ki], 4), vr(QP[qi], 4)))
                k.e('v_mfma_f32_32x32x16_bf16 %s, %s, %s, %s' % (vr(S_, 16), vr(KP[ki] + 4, 4), vr(QP[qi] + 4, 4), vr(S_, 16)))
        for q in range(4): k.e('ds_write_b128 v5, %s offset:%d' % (vr(QP[q // 2] + 4 * (q % 2), 4), q * 1024))
        if AOWN:
            k.e('s_lshl_b32 s69, s46, 15')
            k.e('v_add_u32 v6, s69, v%d' % g.L16)
            k.e('v_add_u32 v7, s69, v%d' % g.LV16)
            for i in range(2):
                for hh in range(2):
                    k.e('ds_write_b128 v6, %s offset:%d' % (vr(KP[i] + 4 * hh, 4), i * 4096 + hh * 1024))
                    k.e('ds_write_b128 v7, %s offset:%d' % (vr(VP[i] + 4 * hh, 4), i * 4096 + 2048 + hh * 1024))
        k.e('v_lshl_add_u32 v5, v1, 3, s68')
        if QSP == 2: signal(k, 'C')
        k.e('s_nop 7')
        MM = T + 64
        for qi in range(2):
            a0, a1 = Sreg[2 * qi], Sreg[2 * qi + 1]
            k.e('v_max_f32 v%d, v%d, v%d' % (MM + qi, a0, a1))
            for r in range(1, 16): k.e('v_max3_f32 v%d, v%d, v%d, v%d' % (MM + qi, MM + qi, a0 + r, a1 + r))
        for qi in range(2): k.e('v_mov_b32 v%d, v%d' % (MM + 2 + qi, MM + qi))
        k.e('s_nop 1')
        for qi in range(2): k.e('v_permlane32_swap_b32 v%d, v%d' % (MM + qi, MM + 2 + qi))
        k.e('s_nop 1')
        for qi in range(2): k.e('v_max_f32 v%d, v%d, v%d' % (MM + qi, MM + qi, MM + 2 + qi))
        for qi in range(2): k.e('v_sub_f32 v%d, %s, v%d' % (MM + qi, hx(-40.0), MM + qi))
        k.e('ds_write_b64 v5, %s offset:4096' % vr(MM, 2))
        k.e('s_waitcnt lgkmcnt(0)')
    sig = 's_lshl_b32 s100, s31, 8\ns_lshl_b32 s101, s30, 4\ns_add_u32 s100, s100, s101\ns_add_u32 s100, s100, %d' % FL_QKV
    wait = ('s_lshl_b32 s100, s30, 8\ns_add_u32 s100, s100, %d' % FL_LN1, 8)
    k_gemm(k, c, 16, 16, 3, 1, 4, 128, 192, 2, 2, 1024, 32, 4, ('xt', WS_N, 1024) if XT else ('xf', WS_H, 1024), ('w', 'wqkv', 6144, 'qkv'), pre, nop, epi2 if AT2 else epi, selfsig=bool(AT2 and (QSP or AOWN == 1 or (env('DEFER_qkv', 0) and env('QSIG', 1)))), lazyfix=bool(AT2), DEFER=0, dcols=([1, 2], [0]), swap=(2,), wait=wait, sig=sig, RWD=4, SOFT=4)

def k_proj(k, c, K, X, wname, final):
    NQ = 2 if MP0 else 4
    EARLYV = MP0 and env('EARLYV', 1)
    def modq_loads(k):
        for q in range(NQ):
            k.e('s_add_u32 s62, s69, %d' % (q * 16384))
            k.e('s_add_u32 s63, s70, %d' % (q * 16384))
            k.e('buffer_load_dwordx4 %s, v7, s[64:67], s62 offen sc1' % vr(24 + 4 * q, 4))
            k.e('buffer_load_dword v%d, v6, s[64:67], s63 offen sc1' % (40 + q))
    def aux(g):
        k = g.k
        if final:
            srd(k, 40, 'ws', WS_MOD, 6144 * 4)
            k.e('''
            v_and_b32 v7, 31, v1
            v_lshlrev_b32 v7, 4, v7
            s_lshl_b32 s62, s31, 9
            s_add_u32 s62, s62, %d
            buffer_load_dwordx4 v[24:27], v7, s[40:43], s62 offen sc1
            ''' % (5 * 4096))
            return 1
        srd(k, 64, 'ws', 0, 256 * KB)
        k.e('''
        v_and_b32 v2, 31, v1
        v_lshrrev_b32 v3, 5, v1
        v_lshlrev_b32 v2, 4, v2
        v_lshl_add_u32 v2, v3, 13, v2
        s_lshl_b32 s62, s31, 9
        s_add_u32 s62, s62, %d
        v_and_b32 v6, 15, v1
        v_lshlrev_b32 v6, 2, v6
        s_lshl_b32 s68, s2, 6
        s_add_u32 s63, s68, %d
        s_mov_b32 s69, s62
        s_mov_b32 s70, s63
        v_mov_b32 v7, v2
        ''' % (WS_MODQ, WS_MODQ))
        modq_loads(k)
        return xtile(g) + 2 * NQ
    def xtile(g):
        k = g.k
        srd(k, 40, 'x')
        k.e('''
        v_lshrrev_b32 v2, 4, v1
        v_and_b32 v3, 15, v1
        s_lshl_b32 s62, s30, 17            ; tm*64*2048
        s_lshl_b32 s63, s31, 8
        s_add_u32 s62, s62, s63
        s_lshl_b32 s63, s46, 15            ; lw*16 rows
        s_add_u32 s62, s62, s63
        s_lshl_b32 s63, s46, 12
        s_add_u32 s63, s63, %d
        ''' % g.AUX)
        for j in range(4):
            k.e('v_add_u32 v4, %d, v2' % (4 * j))
            k.e('v_xor_b32 v5, v4, v3')
            k.e('v_lshlrev_b32 v5, 4, v5')
            k.e('v_lshl_add_u32 v5, v4, 11, v5')
            k.e('s_add_u32 m0, s63, %d' % (j * 1024))
            k.e('s_nop 0')
            k.e('buffer_load_dwordx4 v5, s[40:43], s62 offen lds')
        return 4
    def aux_end(g):
        k = g.k
        lp = k.newlabel('mqp'); lc = k.newlabel('mqc')
        if final:
            poll_init(k)
            k.e('s_branch %s' % lc)
            k.label(lp)
            k.e('buffer_load_dwordx4 v[24:27], v7, s[40:43], s62 offen sc1')
            k.e('s_waitcnt vmcnt(0)')
            k.label(lc)
            k.e('v_max3_u32 v2, v24, v25, v26')
            k.e('v_max_u32 v2, v2, v27')
            k.e('v_cmp_eq_u32 vcc, -1, v2')
            poll_back(k, lp)
            k.e('v_add_u32 v2, %d, v7' % (g.AUX + 16 * KB))
            k.e('ds_write_b128 v2, v[24:27]')
            k.e('s_waitcnt lgkmcnt(0)')
            return
        if MP0:
            k.e('v_cmp_lt_u32 vcc, 31, v1')
            k.e(pk('add', 24, 24, 28)); k.e(pk('add', 26, 26, 30))
            k.e('v_add_f32 v40, v40, v41')
        else:
            poll_init(k)
            k.e('s_branch %s' % lc)
            k.label(lp)
            modq_loads(k)
            k.e('s_waitcnt vmcnt(0)')
            k.label(lc)
            k.e('v_max_u32 v2, v24, v25')
            for r in range(26, 44, 2): k.e('v_max3_u32 v2, v2, v%d, v%d' % (r, r + 1))
            k.e('v_cmp_eq_u32 vcc, -1, v2')
            poll_back(k, lp)
            k.e(pk('add', 24, 24, 28)); k.e(pk('add', 26, 26, 30)); k.e(pk('add', 32, 32, 36)); k.e(pk('add', 34, 34, 38))
            k.e(pk('add', 24, 24, 32)); k.e(pk('add', 26, 26, 34))
            k.e('v_cmp_lt_u32 vcc, 31, v1')
            k.e('v_add_f32 v40, v40, v41')
            k.e('v_add_f32 v42, v42, v43')
            k.e('v_add_f32 v40, v40, v42')
        k.e('v_cndmask_b32 v7, 0, 1.0, vcc')
        for d in range(2): round_bf16_pair(k, 24 + 2 * d, 25 + 2 * d, 28)
        for e in range(4): k.e('v_add_f32 v%d, v7, v%d' % (24 + e, 24 + e))
        for d in range(2): round_bf16_pair(k, 24 + 2 * d, 25 + 2 * d, 28)
        k.e('v_lshlrev_b32 v2, 4, v1')
        k.e('v_add_u32 v2, %d, v2' % (g.AUX + 16 * KB))
        k.e('ds_write_b128 v2, v[24:27]')
        k.e("""
        s_lshr_b32 s62, s2, 6
        s_cmp_eq_u32 s62, 2
        s_cselect_b32 s62, 1.0, 0
        v_cvt_pk_bf16_f32 v40, v40, v40
        v_lshlrev_b32 v40, 16, v40
        v_add_f32 v40, s62, v40
        v_cvt_pk_bf16_f32 v40, v40, v40
        v_lshlrev_b32 v40, 16, v40
        s_add_u32 s68, s68, 8192
        v_cmp_gt_u32 vcc, 16, v0
        s_and_saveexec_b64 s[62:63], vcc
        buffer_store_dword v40, v6, s[64:67], s68 offen%s
        s_mov_b64 exec, s[62:63]
        s_waitcnt lgkmcnt(0)
        """ % WT)
    def pre(g):
        k = g.k
        g.L16 = alloc(g, 1, 1); g.RA = alloc(g, 1, 1); g.CA = alloc(g, 1, 1); g.TA = alloc(g, 1, 1)
        g.RES = alloc(g, 16); g.GA = alloc(g, 32); g.G2 = alloc(g, 32) if not final else None
        srd(k, 36, 'ws', WS_X1, 8 * MB)
        if final: srd(k, 32, 'out')
        else: srd(k, 32, 'ws', WS_ST1, 256 * KB)
        k.e('v_lshlrev_b32 v%d, 4, v1' % g.L16)
        k.e('''
        s_lshl_b32 s60, s31, 7
        s_lshl_b32 s61, s51, 6
        s_add_u32 s60, s60, s61           ; col0
        s_lshl_b32 s61, s30, 1
        s_add_u32 s61, s61, s50           ; rb
        s_lshl_b32 s62, s61, 16
        s_lshl_b32 s63, s60, 1
        s_add_u32 s63, s63, s62           ; row-major byte offset of (row0,col0)
        s_lshl_b32 s64, s60, 6
        s_add_u32 s64, s64, s62           ; XF offset
        s_add_u32 s65, s64, %d            ; X1S offset
        ; tile image address: row*256 + ((wn*8) ^ (row%%16))*16 + h*8
        s_lshl_b32 s66, s50, 13
        s_add_u32 s66, s66, %d
        v_and_b32 v5, 15, v3
        s_lshl_b32 s67, s51, 3
        v_xor_b32 v5, s67, v5
        v_lshlrev_b32 v5, 4, v5
        v_lshl_add_u32 v5, v3, 8, v5
        v_lshl_add_u32 v5, v4, 3, v5
        v_add_u32 v%d, s66, v5
        ; column vector address: wn*256 + h*16
        s_lshl_b32 s67, s51, 8
        s_add_u32 s67, s67, %d
        v_lshl_add_u32 v%d, v4, 4, s67
        ''' % (4 * MB, g.AUX, g.RA, g.AUX + 16 * KB, g.CA))
    KX = same_kernel('wo', 'wout') and env('KEEPX', 1)
    def early(g):
        k = g.k
        if EARLYV:
            A_ = g.GA; V_ = g.RES
            l = k.newlabel('ev')
            k.e('s_cmp_lg_u32 s46, 1'); k.e('s_cbranch_scc1 %s' % l)
            srd(k, 80, 'ws', 0, 256 * KB)
            k.e('''
            v_lshlrev_b32 v%d, 4, v3
            v_lshl_add_u32 v%d, v4, 13, v%d
            s_lshl_b32 s68, s31, 9
            s_add_u32 s68, s68, %d
            s_add_u32 s69, s68, 16384
            buffer_load_dwordx4 %s, v%d, s[80:83], s68 offen sc1
            buffer_load_dwordx4 %s, v%d, s[80:83], s69 offen sc1
            ''' % (V_, V_, V_, WS_MODQ + (3 * 4096 if final else 0), vr(A_, 4), V_, vr(A_ + 4, 4), V_))
            if not final:
                k.e('''
                v_and_b32 v%d, 15, v1
                v_lshlrev_b32 v%d, 2, v%d
                s_lshl_b32 s70, s2, 6
                s_add_u32 s68, s70, %d
                s_add_u32 s69, s68, 16384
                buffer_load_dword v%d, v%d, s[80:83], s68 offen sc1
                buffer_load_dword v%d, v%d, s[80:83], s69 offen sc1
                ''' % (V_ + 1, V_ + 1, V_ + 1, WS_MODQ, A_ + 8, V_ + 1, A_ + 9, V_ + 1))
            k.e('v_cvt_f32_u32 v%d, v4' % (V_ + 2))
            k.e('v_add_u32 v%d, %d, v%d' % (V_ + 3, g.AUX + 16 * KB, g.L16))
            k.e('s_waitcnt vmcnt(0)')
            k.e(pk('add', A_, A_, A_ + 4)); k.e(pk('add', A_ + 2, A_ + 2, A_ + 6))
            for d in range(2): round_bf16_pair(k, A_ + 2 * d, A_ + 1 + 2 * d, A_ + 4)
            for e in range(4): k.e('v_add_f32 v%d, v%d, v%d' % (A_ + e, V_ + 2, A_ + e))
            for d in range(2): round_bf16_pair(k, A_ + 2 * d, A_ + 1 + 2 * d, A_ + 4)
            k.e('ds_write_b128 v%d, %s' % (V_ + 3, vr(A_, 4)))
            if not final:
                F = A_ + 8
                k.e('''
                s_lshr_b32 s68, s2, 6
                s_cmp_eq_u32 s68, 2
                s_cselect_b32 s68, 1.0, 0
                v_add_f32 v%d, v%d, v%d
                v_cvt_pk_bf16_f32 v%d, v%d, v%d
                v_lshlrev_b32 v%d, 16, v%d
                v_add_f32 v%d, s68, v%d
                v_cvt_pk_bf16_f32 v%d, v%d, v%d
                v_lshlrev_b32 v%d, 16, v%d
                s_add_u32 s70, s70, 8192
                s_mov_b64 exec, 0xffff
                buffer_store_dword v%d, v%d, s[80:83], s70 offen%s
                s_mov_b64 exec, -1
                ''' % (F, F, F + 1, F, F, F, F, F, F, F, F, F, F, F, F, F, V_ + 1, WT))
            k.e('s_waitcnt lgkmcnt(0)')
            k.label(l)
            return
        if final or MP0: return
        D = g.GA; MC = g.RES; MT = g.RES + 8
        k.e('s_lshl_b32 s68, s46, 13')
        k.e('s_add_u32 s68, s68, %d' % AUX_A)
        k.e('v_add_u32 v%d, s68, v%d' % (MT, g.L16))
        for j in range(8): k.e('ds_read_b128 %s, v%d offset:%d' % (vr(D + 4 * j, 4), MT, j * 1024))
        for j in range(8):
            k.e('s_waitcnt lgkmcnt(%d)' % (7 - j))
            for d in range(4):
                unpack(k, MT, MT + 1, D + 4 * j + d)
                op = 'v_mul_f32' if j == 0 else 'v_fmac_f32'
                k.e('%s v%d, v%d, v%d' % (op, MC + 2 * d, MT, MSV + j))
                k.e('%s v%d, v%d, v%d' % (op, MC + 2 * d + 1, MT + 1, MSV + j))
        k.e('s_nop 1')
        for e in range(4): k.e('v_permlane32_swap_b32 v%d, v%d' % (MC + e, MC + 4 + e))
        k.e('s_nop 1')
        for e in range(4): k.e('v_add_f32 v%d, v%d, v%d' % (MC + e, MC + e, MC + 4 + e))
        k.e('s_nop 1')
        for e in range(2): k.e('v_permlane16_swap_b32 v%d, v%d' % (MC + e, MC + 2 + e))
        k.e('s_nop 1')
        for e in range(2): k.e('v_add_f32 v%d, v%d, v%d' % (MC + e, MC + e, MC + 2 + e))
        k.e('s_nop 1')
        for e in range(2): k.e('v_add_f32_dpp v%d, v%d, v%d row_ror:8 row_mask:0xf bank_mask:0xf' % (MC + e, MC + e, MC + e))
        k.e('''
        v_and_b32 v%d, 7, v1
        v_lshlrev_b32 v%d, 5, v%d
        v_lshrrev_b32 v%d, 4, v1
        v_lshl_add_u32 v%d, v%d, 3, v%d
        v_add_u32 v%d, s68, v%d
        ds_write_b64 v%d, %s
        s_waitcnt lgkmcnt(0)
        ''' % (MT, MT, MT, MT + 1, MT, MT + 1, MT, MT, MT, MT, vr(MC, 2)))
    def pre2(g):
        k = g.k
        if not final and not MP0:
            MC = g.RES; MT = g.RES + 8
            l = k.newlabel('noC')
            k.e('s_cmp_lg_u32 s46, 1')
            k.e('s_cbranch_scc1 %s' % l)
            srd(k, 80, 'ws', 0, 256 * KB)
            k.e('v_lshlrev_b32 v%d, 2, v1' % (MT + 1))
            k.e('v_add_u32 v%d, %d, v%d' % (MT, AUX_A, MT + 1))
            for w in range(4): k.e('ds_read_b32 v%d, v%d offset:%d' % (MC + w, MT, w * 8192))
            k.e('''
            s_and_b32 s68, s2, 3
            s_lshl_b32 s68, s68, 14
            s_lshr_b32 s69, s2, 2
            s_lshl_b32 s69, s69, 8
            s_add_u32 s68, s68, s69
            s_add_u32 s68, s68, %d
            s_waitcnt lgkmcnt(0)
            v_add_f32 v%d, v%d, v%d
            v_add_f32 v%d, v%d, v%d
            v_add_f32 v%d, v%d, v%d
            v_min_u32 v%d, -2, v%d
            buffer_store_dword v%d, v%d, s[80:83], s68 offen sc1
            ''' % (WS_MODQ, MC, MC, MC + 1, MC + 2, MC + 2, MC + 3, MC, MC, MC + 2, MC, MC, MC, MT + 1))
            k.label(l)
        if final and not KX:
            for j in range(2):
                for t in range(2):
                    k.e('buffer_load_dwordx4 %s, v%d, s[36:39], s64 offen offset:%d sc1' % (vr(g.RES + 8 * j + 4 * t, 4), g.L16, (2 * j + t) * 1024))
    PL = env('PRELAST', 1)
    def operands(g):
        k = g.k
        for j in range(2):
            for q in range(4):
                k.e('ds_read_b128 %s, v%d offset:%d' % (vr(g.GA + 16 * j + 4 * q, 4), g.CA, j * 128 + q * 32))
        if not final or KX:
            for j in range(2):
                for q in range(4):
                    k.e('v_xor_b32 v%d, %d, v%d' % (g.TA, (j * 4 + q) * 16, g.RA))
                    k.e('ds_read_b64 %s, v%d' % (vr(g.RES + 8 * j + 2 * q, 2), g.TA))
        if not final:
            for j in range(2):
                for q in range(4):
                    k.e('ds_read_b128 %s, v%d offset:%d' % (vr(g.G2 + 16 * j + 4 * q, 4), g.CA, 512 + j * 128 + q * 32))
    def epi(g):
        k = g.k
        assert g.M16
        if not PL: operands(g)
        k.e('s_waitcnt lgkmcnt(0)' if (KX or not final) else 's_waitcnt vmcnt(0) lgkmcnt(0)')
        T = g.FR
        for j in range(2):
            a = g.acc(0, j)
            for d in range(8):
                unpack(k, T + 2 * (d % 4), T + 2 * (d % 4) + 1, g.RES + 8 * j + d)
                k.e(pk('fma', a + 2 * d, a + 2 * d, g.GA + 16 * j + 2 * d, T + 2 * (d % 4)))
            if not final:
                if j == 0: k.e('s_waitcnt lgkmcnt(0)')
                for d in range(8): k.e(pk('mul', g.G2 + 16 * j + 2 * d, a + 2 * d, g.G2 + 16 * j + 2 * d))
                store_xf_tile(g, g.G2 + 16 * j, g.GA + 16 * j, g.L16, 36, 's65', j * 2048)
        def keep():
            for j in range(2):
                a = g.acc(0, j)
                if final or KX:
                    for d in range(8):
                        k.e('v_cvt_pk_bf16_f32 v%d, v%d, v%d' % (g.RES + 8 * j + d, a + 2 * d, a + 2 * d + 1))
                    for q in range(4):
                        k.e('v_xor_b32 v%d, %d, v%d' % (g.TA, (j * 4 + q) * 16, g.RA))
                        k.e('ds_write_b64 v%d, %s' % (g.TA, vr(g.RES + 8 * j + 2 * q, 2)))
                else:
                    store_xf_tile(g, a, g.RES + 8 * j, g.L16, 36, 's64', j * 2048)
        if final: keep()
        if final:
            k.e('''
            v_lshrrev_b32 v5, 3, v1
            v_and_b32 v6, 7, v1
            s_lshl_b32 s67, s51, 3
            v_or_b32 v7, s67, v6
            v_xor_b32 v7, v7, v5
            v_lshlrev_b32 v7, 4, v7
            v_lshl_add_u32 v7, v5, 8, v7
            v_add_u32 v7, s66, v7              ; b=0 address
            v_xor_b32 v%d, 128, v7             ; rows 8..15: slot ^ 8
            v_lshlrev_b32 v5, 11, v5
            v_lshl_add_u32 v5, v6, 4, v5       ; global: row*2048 + c*16
            s_waitcnt lgkmcnt(0)
            ''' % g.TA)
            for b in range(4):
                k.e('ds_read_b128 %s, v%d offset:%d' % (vr(g.GA + 4 * b, 4), 7 if b % 2 == 0 else g.TA, b * 2048))
            for b in range(4):
                k.e('s_waitcnt lgkmcnt(%d)' % (3 - b))
                k.e('buffer_store_dwordx4 %s, v5, s[32:35], s63 offen%s' % (vr(g.GA + 4 * b, 4), os.environ.get('OUTFLAG', ' sc1')))
                k.e('s_add_u32 s63, s63, %d' % (8 * 2048))
            l = k.newlabel('ep')
            k.e('s_or_b32 s67, s2, s46')
            k.e('s_cbranch_scc1 %s' % l)
            srd(k, 96, 'ws', WS_EPOCH, 8)
            k.e('v_mov_b32 v%d, s84' % FV); k.e('v_mov_b32 v%d, s85' % (FV + 1)); k.e('v_mov_b32 v%d, 0' % (FV + 2))
            flag_store(k, '0')
            k.label(l)
        else:
            S1 = T + 8; S2 = T + 10
            a0 = g.acc(0, 0)
            k.e(pk('add', S1, a0, a0 + 2))
            k.e(pk('mul', S2, a0, a0))
            k.e(pk('fma', S2, a0 + 2, a0 + 2, S2))
            for r in range(4, 32, 2):
                k.e(pk('add', S1, S1, a0 + r))
                k.e(pk('fma', S2, a0 + r, a0 + r, S2))
            k.e('v_add_f32 v%d, v%d, v%d' % (S1, S1, S1 + 1))
            k.e('v_add_f32 v%d, v%d, v%d' % (S1 + 1, S2, S2 + 1))
            k.e('v_mov_b32 v%d, v%d' % (S2, S1))
            k.e('v_mov_b32 v%d, v%d' % (S2 + 1, S1 + 1))
            k.e('''
            s_lshl_b32 s66, s30, 4
            s_lshl_b32 s67, s31, 1
            s_add_u32 s66, s66, s67
            s_add_u32 s66, s66, s51
            s_lshl_b32 s66, s66, 9             ; (tm*16+part)*512
            s_lshl_b32 s67, s50, 8
            s_add_u32 s66, s66, s67
            v_lshlrev_b32 v5, 3, v3
            ''')
            k.e('v_permlane32_swap_b32 v%d, v%d' % (S1, S2))
            k.e('v_permlane32_swap_b32 v%d, v%d' % (S1 + 1, S2 + 1))
            k.e('s_nop 1')
            k.e(pk('add', S1, S1, S2))
            k.e('s_mov_b32 exec_hi, 0')
            k.e('buffer_store_dwordx2 %s, v5, s[32:35], s66 offen%s' % (vr(S1, 2), WT))
            k.e('s_mov_b32 exec_hi, -1')
            if g.LE and KX:
                k.e('s_barrier'); g.ended = 1
            keep()
            k.e('s_waitcnt lgkmcnt(0)')
    if final:
        sig = None
        wait = ('s_lshr_b32 s100, s30, 1\ns_lshl_b32 s100, s100, 8\ns_add_u32 s100, s100, %d' % FL_WSP, 56)
    else:
        sig = 's_lshr_b32 s100, s30, 1\ns_lshl_b32 s100, s100, 8\ns_and_b32 s101, s30, 1\ns_lshl_b32 s101, s101, 7\ns_add_u32 s100, s100, s101\ns_lshl_b32 s101, s31, 4\ns_add_u32 s100, s100, s101\ns_add_u32 s100, s100, %d' % FL_WO
        wait = ('s_lshr_b32 s100, s30, %d\ns_lshl_b32 s100, s100, 8\ns_add_u32 s100, s100, %d' % (1 if AT2 else 2, FL_ATT), 16 if AT2 else 32)
    k_gemm(k, c, 32, 8, 3, 2, 4, 64, 128, 2, 2, K, 64, 4, X, ('w', wname, 2048, None), pre, pre2, epi, aux=None if EARLYV else aux, auxsz=17 * KB, auxbase=AUX_A, aux_end=None if EARLYV else aux_end,
           auxpre=xtile if EARLYV and not final else None, wait=wait, sig=sig, GU=2, RWD=4, early=early, altmap=True, prelast=operands if PL else None,
           own='s_lshr_b32 s68, s47, 2\ns_mul_i32 s68, s68, 7\ns_lshr_b32 s69, s48, 2\ns_add_u32 s68, s68, s69\ns_min_u32 s68, s68, 13\ns_lshl_b32 s68, s68, 1' if final else None, ownlim=224)

ZKEEP = 72
MSV = 240
def stats_finish(k, S, n, R, M, T):
    k.e('v_mov_b32 v%d, v%d' % (T, S))
    k.e('v_mov_b32 v%d, v%d' % (T + 1, S + 1))
    k.e('s_nop 1')
    k.e('v_permlane32_swap_b32 v%d, v%d' % (S, T))
    k.e('v_permlane32_swap_b32 v%d, v%d' % (S + 1, T + 1))
    k.e('s_nop 1')
    k.e(pk('add', S, S, T))
    k.e('v_mul_f32 v%d, %s, v%d' % (S, hx(1.0 / n), S))
    k.e('v_mul_f32 v%d, v%d, v%d' % (T, S, S))
    k.e('v_mov_b32 v%d, %s' % (T + 1, hx(1.0 / n)))
    k.e('v_fma_f32 v%d, v%d, v%d, -v%d' % (S + 1, S + 1, T + 1, T))
    k.e('v_max_f32 v%d, 0, v%d' % (S + 1, S + 1))
    k.e('v_add_f32 v%d, %s, v%d' % (S + 1, hx(1e-5), S + 1))
    k.e('v_rsq_f32 v%d, v%d' % (R, S + 1))
    k.e('s_nop 0')
    k.e('v_mul_f32_e64 v%d, -v%d, v%d' % (M, S, R))

def uw_job(k, LB):
    k.e("""
    v_lshrrev_b32 v2, 3, v0
    v_and_b32 v3, 7, v0
    v_lshlrev_b32 v4, 6, v2
    s_mov_b32 s31, %d
    v_mul_lo_u32 v5, v2, s31
    v_lshl_add_u32 v5, v3, 4, v5
    s_movk_i32 s44, %d
    s_movk_i32 s45, %d
    s_lshl_b32 s30, s30, 1
    s_waitcnt lgkmcnt(0)
    """ % (16 * 7168, 4 * 4096, 3 * 4096))
    srd(k, 36, 'w_in'); srd(k, 40, 'ws', 0, 64 * KB)
    AV = 72; SV = 88; UA = 104; WA = 112
    lq = k.newlabel('uwq')
    poll_init(k)
    k.label(lq)
    for q in range(4): k.e('buffer_load_dwordx4 %s, v4, s[40:43], s44 offen offset:%d sc1' % (vr(AV + 4 * q, 4), q * 16))
    for q in range(4): k.e('buffer_load_dwordx4 %s, v4, s[40:43], s45 offen offset:%d sc1' % (vr(SV + 4 * q, 4), q * 16))
    if not k.c.first:
        k.e('s_waitcnt vmcnt(0)')
        k.e('v_max_u32 v6, v%d, v%d' % (AV, AV + 1))
        for r in range(AV + 2, AV + 32, 2): k.e('v_max3_u32 v6, v6, v%d, v%d' % (r, r + 1))
        k.e('v_cmp_eq_u32 vcc, -1, v6')
        poll_back(k, lq)
    k.e('s_mov_b32 s50, %d' % LB)
    lp = k.newlabel('uw')
    k.label(lp)
    k.e('s_lshl_b32 s31, s30, 7')
    for j in range(16):
        k.e('buffer_load_dwordx4 %s, v5, s[36:39], s31 offen' % vr(8 + 4 * j, 4))
        k.e('s_add_u32 s31, s31, 7168')
    for j in range(16):
        k.e('s_waitcnt vmcnt(%d)' % (15 - j))
        for d in range(4):
            unpack(k, 6, 7, 8 + 4 * j + d)
            for acc, cf in ((UA, AV), (WA, SV)):
                op = 'v_mul_f32' if j == 0 else 'v_fmac_f32'
                k.e('%s v%d, v6, v%d' % (op, acc + 2 * d, cf + j))
                k.e('%s v%d, v7, v%d' % (op, acc + 2 * d + 1, cf + j))
    red_lanes(k, list(range(UA, UA + 16)), list(range(8, 24)))
    lskip = k.newlabel('uwskip')
    k.e("""
    s_lshl_b32 s47, s46, 9
    s_add_u32 s47, s47, s50
    v_lshl_add_u32 v2, v3, 5, s47      ; pass*4096 + wave*512 + chunk*32
    v_cmp_gt_u32 vcc, 8, v1
    s_and_saveexec_b64 s[48:49], vcc
    ds_write_b128 v2, v[104:107]
    ds_write_b128 v2, v[108:111] offset:16
    ds_write_b128 v2, v[112:115] offset:256
    ds_write_b128 v2, v[116:119] offset:272
    s_mov_b64 exec, s[48:49]
    s_waitcnt lgkmcnt(0)
    s_barrier
    s_cmp_ge_u32 s46, 2
    s_cbranch_scc1 %s
    v_lshl_add_u32 v2, v0, 2, s50      ; wave0: u cols, wave1: w0 cols
    """ % lskip)
    for w in range(8): k.e('ds_read_b32 v%d, v2 offset:%d' % (8 + w, w * 512))
    k.e('s_waitcnt lgkmcnt(0)')
    for w in range(1, 8): k.e('v_add_f32 v8, v8, v%d' % (8 + w))
    k.e("""
    v_min_u32 v8, -2, v8
    v_lshlrev_b32 v2, 2, v1
    s_lshl_b32 s31, s30, 8
    s_lshl_b32 s47, s46, 14
    s_add_u32 s31, s31, s47
    s_add_u32 s31, s31, %d
    buffer_store_dword v8, v2, s[40:43], s31 offen sc1
    s_waitcnt vmcnt(0)
    """ % WS_UW)
    k.label(lskip)
    k.e("""
    s_add_u32 s30, s30, 1
    s_add_u32 s50, s50, 4096
    s_cmp_lt_u32 s50, %d
    s_cbranch_scc1 %s
    """ % (LB + 8192, lp))

GC1 = -2.0 * 0.7978845608028654 * LOG2E
def gelu_ops(k, a, U, W0, T, R, M, after_t=None):
    for r in range(0, 16, 2): k.e(pk('fma', T + r, U + r, (M,), W0 + r))
    if after_t: after_t()
    for r in range(0, 16, 2): k.e(pk('fma', a + r, a + r, (R,), T + r))
    for r in range(0, 16, 2): k.e(pk('mul', T + r, a + r, a + r))
    for r in range(0, 16, 2): k.e(pk('fma', T + r, T + r, 's[70:71]', (6,)))
    for r in range(0, 16, 2): k.e(pk('mul', T + r, T + r, a + r))
    for r in range(16): k.e('v_exp_f32 v%d, v%d' % (T + r, T + r))
    for r in range(0, 16, 2): k.e(pk('add', T + r, T + r, '1.0'))
    for r in range(16): k.e('v_rcp_f32 v%d, v%d' % (T + r, T + r))
    for r in range(0, 16, 2): k.e(pk('mul', a + r, a + r, T + r))
def stat_ops(k, a, S1, S2, first):
    for r in range(0, 16, 2):
        if first and r == 0:
            k.e(pk('add', S1, a, a + 2)); k.e(pk('mul', S2, a, a))
        else:
            if not (first and r == 2): k.e(pk('add', S1, S1, a + r))
            k.e(pk('fma', S2, a + r, a + r, S2))

def k_win(k, c):
    SPLIT = env('SPLIT', 0)
    XFER = 48 * KB
    def mid(g):
        k = g.k
        Z = 64; U = 96; T = 160; S = 176; RM_ = 180
        k.e("""
        s_lshl_b32 s67, s46, 13
        s_add_u32 s67, s67, %d
        v_lshl_add_u32 v44, v1, 4, s67     ; transfer area
        s_lshl_b32 s67, s46, 9
        s_add_u32 s67, s67, %d
        v_lshl_add_u32 v45, v1, 3, s67     ; (R,M) / stats slot
        v_lshrrev_b32 v46, 5, v1
        v_lshlrev_b32 v46, 4, v46
        v_add_u32 v46, %d, v46
        s_mov_b32 s70, %s
        s_mov_b32 s71, s70
        v_mov_b32 v6, %s
        ds_read_b64 v[%d:%d], v45
        """ % (XFER, g.AUX + 2048, g.AUX, hx(GC1 * 0.044715), hx(GC1), RM_, RM_ + 1))
        for b in range(2):
            for q in range(4):
                k.e('ds_read_b128 %s, v46 offset:%d' % (vr(U + 32 * b + 4 * q, 4), (2 + b) * 128 + q * 32))
                k.e('ds_read_b128 %s, v46 offset:%d' % (vr(U + 32 * b + 16 + 4 * q, 4), 1024 + (2 + b) * 128 + q * 32))
        k.e('s_setprio 1')
        k.e('s_waitcnt lgkmcnt(0)')
        k.e('v_mov_b32 v%d, v%d' % (RM_ + 2, RM_ + 1))
        k.e('s_barrier')
        for q in range(8): k.e('ds_read_b128 %s, v44 offset:%d' % (vr(Z + 4 * q, 4), q * 1024))
        for b in range(2):
            a = Z + 16 * b
            k.e('s_waitcnt lgkmcnt(%d)' % (4 - 4 * b))
            for hb in range(2):
                for e in range(4): k.e('v_permlane16_swap_b32 v%d, v%d' % (a + 8 * hb + e, a + 8 * hb + 4 + e))
            gelu_ops(k, a, U + 32 * b, U + 32 * b + 16, T, RM_, RM_ + 2)
            stat_ops(k, a, S, S + 2, b == 0)
        k.e('v_add_f32 v%d, v%d, v%d' % (S, S, S + 1))
        k.e('v_add_f32 v%d, v%d, v%d' % (S + 1, S + 2, S + 3))
        k.e('ds_write_b64 v45, %s' % vr(S, 2))
        k.e('s_waitcnt lgkmcnt(0)')
        k.e('s_barrier')
        for q in range(8): k.e('ds_write_b128 v44, %s offset:%d' % (vr(Z + 4 * q, 4), q * 1024))
        k.e('s_waitcnt lgkmcnt(0)')
    LP = 1; LPJ = env('LPJ', 3)
    KZ = c.nxt == 'wsp' and env('KEEPZ', 1)
    def post(g):
        if not LP: return
        k = g.k
        srd(k, 36, 'ws', WS_G, 256 * KB)
        k.e("""
        s_lshl_b32 s65, s30, 2
        s_add_u32 s65, s65, s46
        s_lshl_b32 s65, s65, 12            ; rb32*4096
        v_and_b32 v2, 31, v1
        v_lshrrev_b32 v3, 5, v1
        v_mul_u32_u24 v3, %d, v3
        v_lshl_add_u32 v2, v2, 3, v3
        s_lshl_b32 s67, s46, 9
        s_add_u32 s67, s67, %d
        v_lshl_add_u32 v3, v1, 3, s67
        s_setprio 2
        s_barrier
        """ % (7 * 256, g.AUX + 2048))
        lp = k.newlabel('lpoll')
        poll_init(k)
        k.label(lp)
        for p in range(7):
            k.e('buffer_load_dwordx2 %s, v2, s[36:39], s65 offen offset:%d sc1' % (vr(24 + 2 * p, 2), p * 256))
        k.e('s_waitcnt vmcnt(0)')
        k.e('v_max_u32 v5, v24, v25')
        for p in range(1, 7): k.e('v_max3_u32 v5, v5, v%d, v%d' % (24 + 2 * p, 25 + 2 * p))
        k.e('v_cmp_eq_u32 vcc, -1, v5')
        poll_back(k, lp)
        for p in range(1, 7): k.e(pk('add', 24, 24, 24 + 2 * p))
        stats_finish(k, 24, 1792, 40, 41, 26)
        k.e('ds_write_b64 v3, v[40:41]')
        k.e('s_waitcnt lgkmcnt(0)')
        k.e('s_barrier')
    def uw_loads(g):
        g.k.e('buffer_load_dwordx4 v[24:27], v2, s[40:43], s62 offen sc1')
        g.k.e('buffer_load_dwordx4 v[28:31], v2, s[40:43], s63 offen sc1')
    def aux(g):
        k = g.k
        srd(k, 40, 'ws', WS_UW, 32 * KB)
        k.e("""
        v_and_b32 v2, 31, v1
        v_lshlrev_b32 v2, 4, v2
        v_add_u32 v3, 7168, v2
        v_cmp_gt_u32 vcc, 32, v1
        s_lshl_b32 s62, s31, 9
        s_add_u32 s63, s62, %d
        v_cndmask_b32 v2, v2, v3, vcc
        v_lshlrev_b32 v3, 4, v1
        v_add_u32 v3, %d, v3
        """ % (16 * KB, g.AUX))
        uw_loads(g)
        return 2
    def aux_end(g):
        k = g.k
        lp = k.newlabel('uwp'); lc = k.newlabel('uwc')
        poll_init(k)
        k.e('s_branch %s' % lc)
        k.label(lp)
        uw_loads(g)
        k.e('s_waitcnt vmcnt(0)')
        k.label(lc)
        k.e("""
        v_max3_u32 v4, v24, v25, v26
        v_max3_u32 v4, v4, v27, v28
        v_max3_u32 v4, v4, v29, v30
        v_max_u32 v4, v4, v31
        v_cmp_eq_u32 vcc, -1, v4
        """)
        poll_back(k, lp)
        k.e("""
        ds_write_b128 v3, v[24:27]
        ds_write_b128 v3, v[28:31] offset:1024
        s_waitcnt lgkmcnt(0)
        """)
    def pre(g):
        k = g.k
        g.L16 = alloc(g, 1, 1); g.SA = alloc(g, 1, 1); g.GA = alloc(g, 1, 1); g.CA = alloc(g, 1, 1)
        g.R = alloc(g, 2, 2); g.M = alloc(g, 2, 2); g.P = alloc(g, 16)
        srd(k, 32, 'ws', ZB, max(WS_Z, WS_Z2N) - ZB + ZSZ); srd(k, 36, 'ws', WS_ST1, 512 * KB)
        k.e('v_lshlrev_b32 v%d, 4, v1' % g.L16)
        k.e("""
        s_lshl_b32 s61, s30, 2
        s_add_u32 s61, s61, s46           ; rb32
        s_lshr_b32 s64, s61, 1
        s_lshl_b32 s64, s64, 13           ; rb64*8192
        s_and_b32 s65, s61, 1
        s_lshl_b32 s65, s65, 8
        s_add_u32 s64, s64, s65           ; x1 stats offset
        s_lshl_b32 s65, s61, 12
        s_add_u32 s65, s65, %d            ; granule offset (row block)
        s_lshl_b32 s66, s31, 8
        s_add_u32 s66, s66, s65           ; own granule
        s_mul_i32 s60, s61, %d
        s_lshl_b32 s61, s31, 13
        s_add_u32 s60, s60, s61           ; Z1 offset
        v_lshlrev_b32 v5, 3, v3
        v_lshl_add_u32 v%d, v4, 12, v5    ; h*8*512 + row*8
        v_mul_u32_u24 v6, %d, v4
        v_add_u32 v%d, v6, v5             ; h*7*256 + row*8
        v_lshlrev_b32 v%d, 4, v4
        v_add_u32 v%d, %d, v%d
        """ % (WS_G - WS_ST1, 112 * 1024, g.SA, 7 * 256, g.GA, g.CA, g.CA, g.AUX, g.CA))
    def early(g):
        k = g.k
        for p in range(8):
            k.e('buffer_load_dwordx2 %s, v%d, s[36:39], s64 offen offset:%d sc1' % (vr(g.P + 2 * p, 2), g.SA, p * 512))
        k.e('s_waitcnt vmcnt(0)')
        for p in range(1, 8): k.e(pk('add', g.P, g.P, g.P + 2 * p))
        stats_finish(k, g.P, 1024, g.R, g.M, g.P + 2)
        if SPLIT:
            k.e('s_lshl_b32 s67, s46, 9')
            k.e('s_add_u32 s67, s67, %d' % (g.AUX + 2048))
            k.e('v_lshl_add_u32 v%d, v1, 3, s67' % g.SA)
            k.e('s_lshl_b32 s67, s46, 13')
            k.e('s_add_u32 s67, s67, %d' % XFER)
            k.e('v_lshl_add_u32 v%d, v1, 4, s67' % g.GA)
            k.e('v_mov_b32 v%d, v%d' % (g.R + 1, g.M))
            k.e('ds_write_b64 v%d, %s' % (g.SA, vr(g.R, 2)))
            k.e('s_waitcnt lgkmcnt(0)')
    def pre2(g): pass
    def epi(g):
        k = g.k
        c1 = -2.0 * 0.7978845608028654 * LOG2E
        U = g.FR; W0 = g.FR + 16; T = g.FR + 32; PS = g.FR + 48
        def rd_uw(j):
            for q in range(4):
                k.e('ds_read_b128 %s, v%d offset:%d' % (vr(U + 4 * q, 4), g.CA, j * 128 + q * 32))
                k.e('ds_read_b128 %s, v%d offset:%d' % (vr(W0 + 4 * q, 4), g.CA, 1024 + j * 128 + q * 32))
        k.e('s_nop 7')
        rd_uw(0)
        k.e('s_mov_b32 s70, %s' % hx(c1 * 0.044715)); k.e('s_mov_b32 s71, s70')
        k.e('v_mov_b32 v6, %s' % hx(c1))
        S1 = g.P; S2 = g.P + 2
        GR = g.P + 2
        n = 0
        def poll_loads():
            for p in range(7):
                k.e('buffer_load_dwordx2 %s, v%d, s[36:39], s65 offen offset:%d sc1' % (vr(GR + 2 * p, 2), g.GA, p * 256))
        cnt = [0]
        def block(j):
            a = g.acc(0, j)
            g.fix(0, j)
            k.e('s_waitcnt lgkmcnt(0)')
            lastz2 = 1 if SPLIT else 3
            gelu_ops(k, a, U, W0, T, g.R, g.M, after_t=(lambda: rd_uw(j + 1)) if (j < 7 and not (j == lastz2 and g.deferred)) else None)
            if j >= 4:
                if KZ:
                    for d in range(8): k.e('v_cvt_pk_bf16_f32 v%d, v%d, v%d' % (ZKEEP + 8 * (j - 4) + d, a + 2 * d, a + 2 * d + 1))
                else:
                    k.e('s_add_u32 s61, s60, %d' % (WS_Z - ZB + (j - 4) * 2048))
                    store_xf_tile(g, a, PS + 8 * (cnt[0] % 3), g.L16, 32, 's61', 0); cnt[0] += 1
            else: stat_ops(k, a, S1, S2, j == 0)
        if SPLIT:
            assert g.deferred and LPJ == 3
            for q in range(8): k.e('ds_write_b128 v%d, %s offset:%d' % (g.GA, vr(g.acc(0, 2) + 4 * q, 4), q * 1024))
            k.e('s_waitcnt lgkmcnt(0)')
            k.e('s_barrier')
        for j in range(2 if SPLIT else 4): block(j)
        k.e('v_add_f32 v%d, v%d, v%d' % (S1, S1, S1 + 1))
        k.e('v_add_f32 v%d, v%d, v%d' % (S1 + 1, S2, S2 + 1))
        if SPLIT:
            k.e('s_barrier')
            k.e('ds_read_b64 %s, v%d' % (vr(S2, 2), g.SA))
            k.e('s_waitcnt lgkmcnt(0)')
            k.e(pk('add', S1, S1, S2))
        k.e('v_mov_b32 v%d, v%d' % (S2, S1))
        k.e('v_mov_b32 v%d, v%d' % (S2 + 1, S1 + 1))
        k.e('v_lshlrev_b32 v5, 3, v3')
        k.e('s_nop 0')
        k.e('v_permlane32_swap_b32 v%d, v%d' % (S1, S2))
        k.e('v_permlane32_swap_b32 v%d, v%d' % (S1 + 1, S2 + 1))
        k.e('s_nop 1')
        k.e(pk('add', S1, S1, S2))
        k.e('v_min_u32 v%d, -2, v%d' % (S1, S1))
        k.e('v_min_u32 v%d, -2, v%d' % (S1 + 1, S1 + 1))
        k.e('s_mov_b32 exec_hi, 0')
        k.e('buffer_store_dwordx2 %s, v5, s[36:39], s66 offen sc1' % vr(S1, 2))
        k.e('s_mov_b32 exec_hi, -1')
        if env('WM', 0): mark(k, 0)
        NB4 = env('NB4', 1) if KZ else 4
        if g.deferred:
            g.deferred()
            rd_uw(4)
        if LPJ == 3: k.e('s_barrier')
        if SPLIT:
            assert NB4 >= 1
            for q in range(8): k.e('ds_read_b128 %s, v%d offset:%d' % (vr(g.acc(0, 2) + 4 * q, 4), g.GA, q * 1024))
        for j in range(4, 4 + NB4):
            block(j)
            if j == LPJ: k.e('s_barrier')
        if env('WM', 0): mark(k, 1)
        R2 = g.P + 4; M2 = g.P + 6
        k.e('s_lshl_b32 s67, s46, 9')
        k.e('s_add_u32 s67, s67, %d' % (g.AUX + 2048))
        k.e('v_lshl_add_u32 v5, v1, 3, s67')
        k.e('s_barrier')
        k.e('ds_read_b64 %s, v5' % vr(R2, 2))
        k.e('s_waitcnt lgkmcnt(0)')
        mark(k, 3)
        k.e('v_mov_b32 v%d, v%d' % (M2, R2 + 1))
        zo = ZOWN and c.nxt == 'wsp'
        if zo:
            assert g.M16
            ZA = g.P + 8
            k.e('''
            s_lshr_b32 s67, s46, 1
            s_lshl_b32 s67, s67, 15
            s_and_b32 s68, s46, 1
            s_lshl_b32 s68, s68, 13
            s_add_u32 s67, s67, s68
            s_add_u32 s67, s67, 16384
            v_bfe_u32 v5, v1, 4, 1
            v_lshl_add_u32 v%d, v5, 12, s67
            v_bfe_u32 v5, v1, 2, 2
            v_lshl_add_u32 v%d, v5, 8, v%d
            v_and_b32 v5, 2, v5
            v_or_b32 v5, v5, v4
            v_lshl_add_u32 v%d, v5, 6, v%d
            v_and_b32 v5, 3, v1
            v_lshl_add_u32 v%d, v5, 4, v%d
            v_xor_b32 v%d, 128, v%d
            ''' % (ZA, ZA, ZA, ZA, ZA, ZA, ZA, ZA + 1, ZA))
        for j in range(4):
            a = g.acc(0, j)
            for r in range(0, 16, 2): k.e(pk('fma', a + r, a + r, (R2,), (M2,)))
            k.e('s_add_u32 s61, s60, %d' % (WS_Z2N - ZB + j * 2048))
            if zo:
                store_xf_tile(g, a, a, g.L16, 32, 's61', 0)
            else:
                store_xf_tile(g, a, PS + 8 * (cnt[0] % 3), g.L16, 32, 's61', 0); cnt[0] += 1
        if zo:
            for j in range(4):
                for t in range(2): k.e('ds_write_b128 v%d, %s offset:%d' % (ZA + t, vr(g.acc(0, j) + 4 * t, 4), j * 1024))
        if g.LE: k.e('s_barrier')
        rest = list(range(4 + NB4, 8))
        NBS = env('NBS', 2)
        for j in rest[:NBS]: block(j)
        signal(k, 'C')
        if zo and LPW: k.e('s_barrier')
        for j in rest[NBS:]: block(j)
        k.e('s_waitcnt lgkmcnt(0)')
    sig = 's_lshl_b32 s100, s31, 8\ns_lshl_b32 s101, s30, 4\ns_add_u32 s100, s100, s101\ns_add_u32 s100, s100, %d' % FL_WIN
    wait = ('s_lshl_b32 s100, s30, 8\ns_add_u32 s100, s100, %d' % FL_WO, 64)
    H22 = env('H22', 0)
    k_gemm(k, c, 16, 14, 2, 2, 7, 128, 256, 2 if H22 else 4, 2 if H22 else 1, 1024, 32, 4, ('xf', WS_X1S, 1024), ('w', 'w_in', 7168, (256, [3584, 3584 + 128, 0, 128])),
           pre, pre2, epi, aux=aux, auxsz=4 * KB, auxbase=AUX_B, aux_end=aux_end, post=post, mid=mid if SPLIT else None, selfsig=True, early=early, SOFT=3, DEFER=3, dcols=([0, 1], [2, 3]) if H22 else ([0, 1, 2, 3], [4, 5, 6, 7]), JG=2, lazyfix=True, side=(28, uw_job), wait=wait, sig=sig)

def k_win2(k, c):
    assert c.nxt == 'wsp' and ZOWN
    def post(g):
        k = g.k
        srd(k, 36, 'ws', WS_G2, 512 * KB)
        k.e("""
        s_lshl_b32 s65, s30, 1
        s_lshr_b32 s66, s46, 1
        s_add_u32 s65, s65, s66
        s_lshl_b32 s65, s65, 14            ; rb64*16K
        s_and_b32 s66, s46, 1
        s_lshl_b32 s66, s66, 8
        s_add_u32 s65, s65, s66
        s_add_u32 s66, s65, 3584
        v_and_b32 v2, 31, v1
        v_lshrrev_b32 v3, 5, v1
        v_mul_u32_u24 v3, %d, v3
        v_lshl_add_u32 v2, v2, 3, v3
        s_lshl_b32 s67, s46, 9
        s_add_u32 s67, s67, %d
        v_lshl_add_u32 v3, v1, 3, s67
        s_setprio 2
        s_barrier
        """ % (14 * 512, g.AUX + 2048))
        lp = k.newlabel('lpoll')
        poll_init(k)
        k.label(lp)
        for p in range(14):
            k.e('buffer_load_dwordx2 %s, v2, s[36:39], s%d offen offset:%d sc1' % (vr(24 + 2 * p, 2), 65 + p // 7, (p % 7) * 512))
        k.e('s_waitcnt vmcnt(0)')
        k.e('v_max_u32 v5, v24, v25')
        for p in range(1, 14): k.e('v_max3_u32 v5, v5, v%d, v%d' % (24 + 2 * p, 25 + 2 * p))
        k.e('v_cmp_eq_u32 vcc, -1, v5')
        poll_back(k, lp)
        for p in range(1, 14): k.e(pk('add', 24, 24, 24 + 2 * p))
        stats_finish(k, 24, 1792, 56, 57, 26)
        k.e('ds_write_b64 v3, v[56:57]')
        k.e('s_waitcnt lgkmcnt(0)')
        k.e('s_barrier')
    def uw_loads(g):
        g.k.e('buffer_load_dwordx4 v[24:27], v2, s[40:43], s62 offen sc1')
        g.k.e('buffer_load_dwordx4 v[28:31], v2, s[40:43], s63 offen sc1')
    def aux(g):
        k = g.k
        srd(k, 40, 'ws', WS_UW, 32 * KB)
        k.e("""
        v_and_b32 v2, 31, v1
        v_lshlrev_b32 v2, 4, v2
        v_add_u32 v3, 7168, v2
        v_cmp_gt_u32 vcc, 32, v1
        s_lshl_b32 s62, s31, 9
        s_add_u32 s63, s62, %d
        v_cndmask_b32 v2, v2, v3, vcc
        v_lshlrev_b32 v3, 4, v1
        v_add_u32 v3, %d, v3
        """ % (16 * KB, g.AUX))
        uw_loads(g)
        return 2
    def aux_end(g):
        k = g.k
        lp = k.newlabel('uwp'); lc = k.newlabel('uwc')
        poll_init(k)
        k.e('s_branch %s' % lc)
        k.label(lp)
        uw_loads(g)
        k.e('s_waitcnt vmcnt(0)')
        k.label(lc)
        k.e("""
        v_max3_u32 v4, v24, v25, v26
        v_max3_u32 v4, v4, v27, v28
        v_max3_u32 v4, v4, v29, v30
        v_max_u32 v4, v4, v31
        v_cmp_eq_u32 vcc, -1, v4
        """)
        poll_back(k, lp)
        k.e("""
        ds_write_b128 v3, v[24:27]
        ds_write_b128 v3, v[28:31] offset:1024
        s_waitcnt lgkmcnt(0)
        """)
    def pre(g):
        k = g.k
        g.L16 = alloc(g, 1, 1); g.L8 = alloc(g, 1, 1); g.CA = alloc(g, 1, 1)
        g.R = alloc(g, 4); g.M = alloc(g, 4); g.P = alloc(g, 16)
        srd(k, 32, 'ws', WS_Z2N, ZSZ); srd(k, 36, 'ws', WS_ST1, 256 * KB); srd(k, 40, 'ws', WS_G2, 512 * KB)
        k.e('v_lshlrev_b32 v%d, 4, v1' % g.L16)
        k.e('v_lshlrev_b32 v%d, 3, v1' % g.L8)
        k.e("""
        s_lshl_b32 s61, s30, 1
        s_add_u32 s61, s61, s50           ; rb64
        s_lshl_b32 s64, s61, 13           ; x1 stats offset
        s_add_u32 s65, s64, 4096
        s_lshl_b32 s66, s31, 1
        s_add_u32 s66, s66, s51
        s_lshl_b32 s66, s66, 9
        s_lshl_b32 s67, s61, 14
        s_add_u32 s66, s66, s67           ; own granule
        s_mul_i32 s60, s61, %d
        s_lshl_b32 s61, s31, 13
        s_add_u32 s60, s60, s61
        s_lshl_b32 s61, s51, 12
        s_add_u32 s60, s60, s61           ; Z2N offset of block (0,0)
        s_add_u32 s61, s60, %d
        s_lshl_b32 s67, s51, 8
        s_add_u32 s67, s67, %d
        v_lshl_add_u32 v%d, v4, 4, s67
        """ % (2 * 112 * 1024, 112 * 1024, g.AUX, g.CA))
    def early(g):
        k = g.k
        Pp = g.FR
        for p in range(16):
            k.e('buffer_load_dwordx2 %s, v%d, s[36:39], s%d offen offset:%d sc1' % (vr(Pp + 2 * p, 2), g.L8, 64 + p // 8, (p % 8) * 512))
        k.e('s_waitcnt vmcnt(0)')
        for p in range(1, 16): k.e(pk('add', Pp, Pp, Pp + 2 * p))
        T_ = Pp + 2
        k.e('v_mul_f32 v%d, %s, v%d' % (Pp, hx(1.0 / 1024), Pp))
        k.e('v_mul_f32 v%d, v%d, v%d' % (T_, Pp, Pp))
        k.e('v_mov_b32 v%d, %s' % (T_ + 1, hx(1.0 / 1024)))
        k.e('v_fma_f32 v%d, v%d, v%d, -v%d' % (Pp + 1, Pp + 1, T_ + 1, T_))
        k.e('v_max_f32 v%d, 0, v%d' % (Pp + 1, Pp + 1))
        k.e('v_add_f32 v%d, %s, v%d' % (Pp + 1, hx(1e-5), Pp + 1))
        k.e('v_rsq_f32 v%d, v%d' % (g.R, Pp + 1))
        k.e('s_nop 0')
        k.e('v_mul_f32_e64 v%d, -v%d, v%d' % (g.M, Pp, g.R))
        k.e('v_mov_b32 v%d, v%d' % (g.R + 2, g.R))
        k.e('v_mov_b32 v%d, v%d' % (g.M + 2, g.M))
        k.e('s_nop 1')
        k.e('v_permlane32_swap_b32 v%d, v%d' % (g.R, g.R + 2))
        k.e('v_permlane32_swap_b32 v%d, v%d' % (g.M, g.M + 2))
    def epi(g):
        k = g.k
        U = g.FR; W0 = g.FR + 16; T = g.FR + 32
        def rd_uw(j):
            o = (j // 2) * 512 + (j % 2) * 128
            for q in range(4):
                k.e('ds_read_b128 %s, v%d offset:%d' % (vr(U + 4 * q, 4), g.CA, o + q * 32))
                k.e('ds_read_b128 %s, v%d offset:%d' % (vr(W0 + 4 * q, 4), g.CA, 1024 + o + q * 32))
        rd_uw(0)
        k.e('s_mov_b32 s70, %s' % hx(GC1 * 0.044715)); k.e('s_mov_b32 s71, s70')
        k.e('v_mov_b32 v6, %s' % hx(GC1))
        SS = g.P
        def block(n):
            j, i = n // 2, n % 2
            a = g.acc(i, j)
            g.fix(i, j)
            if i == 0: k.e('s_waitcnt lgkmcnt(0)')
            gelu_ops(k, a, U, W0, T, g.R + 2 * i, g.M + 2 * i, after_t=(lambda: rd_uw(j + 1)) if (i == 1 and j in (0, 2)) else None)
            if j >= 2:
                for d in range(8): k.e('v_cvt_pk_bf16_f32 v%d, v%d, v%d' % (a + d, a + 2 * d, a + 2 * d + 1))
            else: stat_ops(k, a, SS + 4 * i, SS + 4 * i + 2, j == 0)
        for n in range(4): block(n)
        for i in range(2):
            k.e('v_add_f32 v%d, v%d, v%d' % (SS + 4 * i, SS + 4 * i, SS + 4 * i + 1))
            k.e('v_add_f32 v%d, v%d, v%d' % (SS + 4 * i + 1, SS + 4 * i + 2, SS + 4 * i + 3))
        k.e('s_nop 1')
        k.e('v_permlane32_swap_b32 v%d, v%d' % (SS, SS + 4))
        k.e('v_permlane32_swap_b32 v%d, v%d' % (SS + 1, SS + 5))
        k.e('s_nop 1')
        k.e(pk('add', SS, SS, SS + 4))
        k.e('v_min_u32 v%d, -2, v%d' % (SS, SS))
        k.e('v_min_u32 v%d, -2, v%d' % (SS + 1, SS + 1))
        k.e('buffer_store_dwordx2 %s, v%d, s[40:43], s66 offen sc1' % (vr(SS, 2), g.L8))
        if env('WM', 0): mark(k, 0)
        NB4 = env('NB4', 1)
        g.deferred()
        rd_uw(2)
        k.e('s_barrier')
        for n in range(4, 4 + NB4): block(n)
        if env('WM', 0): mark(k, 1)
        R2 = g.P + 4; ZA = g.P + 12
        k.e("""
        s_lshl_b32 s67, s50, 10
        s_add_u32 s67, s67, %d
        v_add_u32 v7, s67, v%d
        s_lshl_b32 s67, s50, 15
        s_lshl_b32 s68, s51, 11
        s_add_u32 s67, s67, s68
        s_add_u32 s67, s67, 16384
        v_bfe_u32 v5, v1, 4, 1
        v_lshl_add_u32 v%d, v5, 12, s67
        v_bfe_u32 v5, v1, 2, 2
        v_lshl_add_u32 v%d, v5, 8, v%d
        v_and_b32 v5, 2, v5
        v_or_b32 v5, v5, v4
        v_lshl_add_u32 v%d, v5, 6, v%d
        v_and_b32 v5, 3, v1
        v_lshl_add_u32 v%d, v5, 4, v%d
        v_xor_b32 v%d, 128, v%d
        s_barrier
        ds_read_b64 %s, v7
        ds_read_b64 %s, v7 offset:512
        s_waitcnt lgkmcnt(0)
        """ % (g.AUX + 2048, g.L8, ZA, ZA, ZA, ZA, ZA, ZA, ZA, ZA + 1, ZA, vr(R2, 2), vr(R2 + 4, 2)))
        mark(k, 3)
        for i in range(2): k.e('v_mov_b32 v%d, v%d' % (R2 + 4 * i + 2, R2 + 4 * i + 1))
        for i in range(2):
            for j in range(2):
                a = g.acc(i, j)
                for r in range(0, 16, 2): k.e(pk('fma', a + r, a + r, (R2 + 4 * i,), (R2 + 4 * i + 2,)))
                store_xf_tile(g, a, a, g.L16, 32, 's%d' % (60 + i), j * 2048)
        for i in range(2):
            for j in range(2):
                for t in range(2): k.e('ds_write_b128 v%d, %s offset:%d' % (ZA + t, vr(g.acc(i, j) + 4 * t, 4), i * 8192 + j * 1024))
        rest = list(range(4 + NB4, 8))
        NBS = env('NBS', 2)
        for n in rest[:NBS]: block(n)
        signal(k, 'C')
        for n in rest[NBS:]: block(n)
        k.e('s_waitcnt lgkmcnt(0)')
    sig = 's_lshl_b32 s100, s31, 8\ns_lshl_b32 s101, s30, 4\ns_add_u32 s100, s100, s101\ns_add_u32 s100, s100, %d' % FL_WIN
    wait = ('s_lshl_b32 s100, s30, 8\ns_add_u32 s100, s100, %d' % FL_WO, 64)
    k_gemm(k, c, 16, 14, 2, 2, 7, 128, 256, 2, 2, 1024, 32, 4, ('xf', WS_X1S, 1024), ('w', 'w_in', 7168, (256, [3584, 0, 3584 + 128, 128])),
           pre, nop, epi, aux=aux, auxsz=4 * KB, auxbase=AUX_B, aux_end=aux_end, post=post, selfsig=True, early=early, SOFT=3, DEFER=3,
           dcols=([0, 1], [2, 3]), JG=2, lazyfix=True, side=(28, uw_job), wait=wait, sig=sig, accmap=lambda i, j: (j // 2) * 4 + i * 2 + j % 2)

def k_wsp(k, c):
    def pre(g):
        k = g.k
        g.L16 = alloc(g, 1, 1); g.L2 = alloc(g, 1, 1); g.B = alloc(g, 4); g.Z = alloc(g, 32)
        srd(k, 32, 'ws', WS_Z, ZSZ); srd(k, 36, 'ws', WS_U2, ZSZ); srd(k, 40, 'b_sp')
        k.e('v_lshlrev_b32 v%d, 4, v1' % g.L16)
        k.e('''
        s_lshl_b32 s60, s31, 13
        s_lshl_b32 s61, s51, 12
        s_add_u32 s60, s60, s61
        s_lshl_b32 s61, s30, 2
        s_lshl_b32 s62, s50, 1
        s_add_u32 s61, s61, s62           ; rb0
        s_lshl_b32 s63, s61, 6
        s_mul_i32 s61, s61, %d
        s_add_u32 s60, s60, s61
        s_add_u32 s61, s60, %d
        v_lshlrev_b32 v%d, 1, v3
        ''' % (112 * 1024, 112 * 1024, g.L2))
    def pre2(g):
        k = g.k
        for i in range(2):
            k.e('buffer_load_ushort v%d, v%d, s[40:43], s63 offen offset:%d' % (g.B + 2 * i, g.L2, i * 64))
        for i in range(2):
            for j in range(2):
                for t in range(2):
                    k.e('buffer_load_dwordx4 %s, v%d, s[32:35], s%d offen offset:%d sc1' % (vr(g.Z + 16 * i + 8 * j + 4 * t, 4), g.L16, 60 + i, (2 * j + t) * 1024))
    def epi(g):
        k = g.k
        T = g.FR
        k.e('s_waitcnt vmcnt(0)')
        for i in range(2): k.e('v_lshlrev_b32 v%d, 16, v%d' % (g.B + 2 * i, g.B + 2 * i))
        k.e('s_nop 7')
        for j in range(2):
            for i in range(2):
                a = g.acc(i, j); z = g.Z + 16 * i + 8 * j
                for d in range(8): unpack(k, T + 2 * d, T + 2 * d + 1, z + d)
                for d in range(8): k.e(pk('add', a + 2 * d, a + 2 * d, (g.B + 2 * i,)))
                for d in range(8): k.e(pk('mul', a + 2 * d, a + 2 * d, T + 2 * d))
                store_xf_tile(g, a, z, g.L16, 36, 's%d' % (60 + i), j * 2048)
    KZ = c.prev == 'win' and env('KEEPZ', 1)
    def preK(g):
        k = g.k
        g.L16 = alloc(g, 1, 1); g.L2 = alloc(g, 1, 1); g.B = alloc(g, 2, 2)
        srd(k, 36, 'ws', WS_U2, ZSZ); srd(k, 40, 'b_sp')
        k.e('v_lshlrev_b32 v%d, 4, v1' % g.L16)
        k.e('''
        s_lshl_b32 s60, s31, 13
        s_lshl_b32 s61, s30, 2
        s_add_u32 s61, s61, s46           ; rb32
        s_lshl_b32 s63, s61, 6
        s_mul_i32 s61, s61, %d
        s_add_u32 s60, s60, s61
        s_add_u32 s61, s60, 4096
        v_lshlrev_b32 v%d, 1, v3
        ''' % (112 * 1024, g.L2))
    def pre2K(g):
        g.k.e('buffer_load_ushort v%d, v%d, s[40:43], s63 offen' % (g.B, g.L2))
    def epiK(g):
        k = g.k
        T = g.FR
        k.e('s_waitcnt vmcnt(0)')
        k.e('v_lshlrev_b32 v%d, 16, v%d' % (g.B, g.B))
        for j in range(4):
            a = g.acc(0, j); z = ZKEEP + 8 * j
            for d in range(8): unpack(k, T + 2 * d, T + 2 * d + 1, z + d)
            for d in range(8): k.e(pk('add', a + 2 * d, a + 2 * d, (g.B,)))
            for d in range(8): k.e(pk('mul', a + 2 * d, a + 2 * d, T + 2 * d))
            store_xf_tile(g, a, z, g.L16, 36, 's%d' % (60 + j // 2), (j % 2) * 2048)
    sig = 's_lshl_b32 s100, s30, 8\ns_lshl_b32 s101, s31, 4\ns_add_u32 s100, s100, s101\ns_add_u32 s100, s100, %d' % FL_WSP
    wait = ('s_lshl_b32 s100, s31, 8\ns_add_u32 s100, s100, %d' % FL_WIN, 64)
    def pre22(g):
        k = g.k
        g.L16 = alloc(g, 1, 1); g.L2 = alloc(g, 1, 1); g.B = alloc(g, 4)
        srd(k, 36, 'ws', WS_U2, ZSZ); srd(k, 40, 'b_sp')
        k.e('v_lshlrev_b32 v%d, 4, v1' % g.L16)
        k.e('''
        s_lshl_b32 s60, s31, 13
        s_lshl_b32 s61, s51, 12
        s_add_u32 s60, s60, s61
        s_lshl_b32 s61, s30, 2
        s_lshl_b32 s62, s50, 1
        s_add_u32 s61, s61, s62           ; rb0
        s_lshl_b32 s63, s61, 6
        s_mul_i32 s61, s61, %d
        s_add_u32 s60, s60, s61
        s_add_u32 s61, s60, %d
        v_lshlrev_b32 v%d, 1, v3
        ''' % (112 * 1024, 112 * 1024, g.L2))
    def pre222(g):
        for i in range(2): g.k.e('buffer_load_ushort v%d, v%d, s[40:43], s63 offen offset:%d' % (g.B + 2 * i, g.L2, i * 64))
    def epi22(g):
        k = g.k
        T = g.FR
        k.e('s_waitcnt vmcnt(0)')
        for i in range(2): k.e('v_lshlrev_b32 v%d, 16, v%d' % (g.B + 2 * i, g.B + 2 * i))
        for j in range(2):
            for i in range(2):
                a = g.acc(i, j); z = ZKEEP + 16 * (2 * i + j)
                for d in range(8): unpack(k, T + 2 * d, T + 2 * d + 1, z + d)
                for d in range(8): k.e(pk('add', a + 2 * d, a + 2 * d, (g.B + 2 * i,)))
                for d in range(8): k.e(pk('mul', a + 2 * d, a + 2 * d, T + 2 * d))
                store_xf_tile(g, a, z, g.L16, 36, 's%d' % (60 + i), j * 2048)
    if W22: k_gemm(k, c, 16, 14, 2, 2, 7, 128, 128, 2, 2, 2048, 64, 3, ('rm', 'w_sp', 4096), ('z', WS_Z2N, 1792), pre22, pre222, epi22, pf='w_out', wait=wait, sig=sig, dep='Y', GU=2, RWD=2, frbase=ZKEEP + 64, own='s_lshl_b32 s68, s30, 1')
    elif KZ: k_gemm(k, c, 16, 14, 2, 2, 7, 128, 128, 2 if env('H22', 0) else 4, 2 if env('H22', 0) else 1, 2048, 64, 3, ('rm', 'w_sp', 4096), ('z', WS_Z2N, 1792), preK, pre2K, epiK, pf='w_out', wait=wait, sig=sig, dep='Y', GU=2, RWD=2, frbase=ZKEEP + 32, own='s_lshl_b32 s68, s30, 1')
    else: k_gemm(k, c, 16, 14, 2, 2, 7, 128, 128, 2, 2, 2048, 64, 3, ('rm', 'w_sp', 4096), ('z', WS_Z2N, 1792), pre, pre2, epi, pf='w_out', wait=wait, sig=sig, dep='Y', GU=2, RWD=2, own='s_lshl_b32 s68, s30, 1')

def k_attn(k, c):
    NS = 4; STG = 32768; NST = 8
    phase_begin(k, c)
    SA, SB, O, NEGM = 8, 24, 40, 56
    L, ONES, Q, KF, VF, P = 72, 76, 80, 88, 96, 104
    A0 = 112; AC = 113; AO = 114; M = 115; T = 116; T2 = 117; PFA = 118; MA = 119; PFD = 120; MT = 124
    assert c.nxt == 'wo'
    k.e("""
    v_and_b32 v1, 63, v0
    s_mov_b32 s46, s3
    s_and_b32 s47, s2, 7
    s_lshr_b32 s48, s2, 3
    s_lshl_b32 s30, s47, 2
    s_lshr_b32 s49, s48, 3
    s_add_u32 s30, s30, s49            ; head
    s_and_b32 s31, s48, 7              ; q block (256 rows)
    v_lshlrev_b32 v%d, 4, v1
    s_lshl_b32 s50, s31, 3
    s_add_u32 s50, s50, s46            ; rb of this wave's queries
    s_lshl_b32 s51, s30, 6
    s_add_u32 s51, s51, s50
    s_lshl_b32 s51, s51, 11            ; Q offset
    s_lshl_b32 s52, s30, 18            ; KV head base
    s_lshl_b32 s53, s46, 12            ; wave part (4KB = one tile)
    s_lshl_b32 s62, s2, 13
    v_lshl_add_u32 v%d, v0, 4, s62     ; prefetch offset wg*8K + tid*16
    s_mov_b32 s62, %d
    s_waitcnt lgkmcnt(0)
    """ % (A0, PFA, 0x40000000 if env('PFOFF', 0) else 0))
    mark(k, 0)
    srd(k, 36, 'ws', WS_KV, 256 * KB, soff='s52'); srd(k, 32, 'ws', WS_Q, 4 * MB)
    set_flag(k, 's_lshl_b32 s100, s31, 8\ns_lshl_b32 s101, s30, 2\ns_add_u32 s100, s100, s101\ns_add_u32 s100, s100, %d' % FL_ATT)
    handoff(k, 's_lshr_b32 s100, s30, 1\ns_lshl_b32 s100, s100, 8\ns_add_u32 s100, s100, %d' % FL_QKV, 64, role='A')
    def dma(slot_expr):
        return ['s_add_u32 m0, s53, %s' % slot_expr] + \
               ['buffer_load_dwordx4 v%d, s[36:39], s56 offen offset:%d sc1 lds' % (A0, q * 1024) for q in range(4)] + \
               ['s_add_u32 s56, s56, %d' % STG]
    def pfl(n): return 'buffer_load_dwordx4 %s, v%d, %s, s62 offen' % (vr(PFD, 4), PFA, sr(n))
    def emit_dma(slot_expr):
        d = dma(slot_expr); k.e(d[0]); k.e('s_nop 0')
        for x in d[1:]: k.e(x)
    AST = env('AST', 1)
    if AST:
        k.e('s_lshl_b32 s56, s46, 10')
        k.e('s_mov_b32 m0, s56')
        k.e('s_mul_i32 s58, s46, 3072')
        k.e('buffer_load_dwordx4 v%d, s[36:39], s56 offen sc1 lds' % A0)
    else:
        k.e('s_mov_b32 s56, s53')
        emit_dma('0')
    k.e('buffer_load_dwordx4 %s, v%d, s[32:35], s51 offen sc1' % (vr(Q, 4), A0))
    k.e('buffer_load_dwordx4 %s, v%d, s[32:35], s51 offen offset:1024 sc1' % (vr(Q + 4, 4), A0))
    if AST:
        k.e('s_add_u32 s56, s58, 8192')
        k.e('s_mov_b32 m0, s56')
        k.e('s_nop 0')
        for q in range(3): k.e('buffer_load_dwordx4 v%d, s[36:39], s56 offen offset:%d sc1 lds' % (A0, q * 1024))
        k.e('s_add_u32 s56, s53, %d' % STG)
        emit_dma(str(STG))
    srd(k, 64, 'w_in'); srd(k, 68, 'w_sp'); srd(k, 32, 'wo')
    srd(k, 40, 'ws', WS_O, 4 * MB)
    k.e("""
    s_lshl_b32 s54, s50, 16
    s_lshl_b32 s55, s30, 11
    s_add_u32 s54, s54, s55            ; O offset
    v_and_b32 v3, 3, v1
    v_bfe_u32 v4, v1, 2, 1
    v_bfe_u32 v5, v1, 4, 1
    v_xor_b32 v4, v4, v5
    v_or_b32 v3, v3, v4
    v_cmp_eq_u32 vcc, 0, v3
    v_mov_b32 v4, 0x3f803f80
    s_nop 1
    v_cndmask_b32 v%d, 0, v4, vcc
    v_mov_b32 v%d, v%d
    v_mov_b32 v%d, v%d
    v_mov_b32 v%d, v%d
    """ % (ONES, ONES + 1, ONES, ONES + 2, ONES, ONES + 3, ONES))
    def adr(t): return (AC if t < 16 else AO), (t % 16) * 4096
    def rdK(t):
        a, o = adr(t)
        return ['ds_read_b128 %s, v%d offset:%d' % (vr(KF, 4), a, o), 'ds_read_b128 %s, v%d offset:%d' % (vr(KF + 4, 4), a, o + 1024)]
    def rdV(t):
        a, o = adr(t)
        return ['ds_read_b128 %s, v%d offset:%d' % (vr(VF, 4), a, o + 2048), 'ds_read_b128 %s, v%d offset:%d' % (vr(VF + 4, 4), a, o + 3072)]
    def qk(S, c):
        return ['v_mfma_f32_32x32x16_bf16 %s, %s, %s, %s' % (vr(S, 16), vr(KF, 4), vr(Q, 4), c),
                'v_mfma_f32_32x32x16_bf16 %s, %s, %s, %s' % (vr(S, 16), vr(KF + 4, 4), vr(Q + 4, 4), vr(S, 16))]
    def maxtile(S, first):
        st = 0
        if first:
            k.e('v_max3_f32 v%d, v%d, v%d, v%d' % (M, S, S + 1, S + 2))
            k.e('v_max_f32 v%d, v%d, v%d' % (M, M, S + 3))
            st = 4
        for r in range(st, 16, 2): k.e('v_max3_f32 v%d, v%d, v%d, v%d' % (M, M, S + r, S + r + 1))
    def set_negm(bias):
        k.e('v_mov_b32 v%d, v%d' % (T, M))
        k.e('s_nop 1')
        k.e('v_permlane32_swap_b32 v%d, v%d' % (M, T))
        k.e('s_nop 1')
        k.e('v_max_f32 v%d, v%d, v%d' % (M, M, T))
        k.e('v_sub_f32 v%d, %s, v%d' % (NEGM, hx(-bias), M))
        for r in range(1, 16): k.e('v_mov_b32 v%d, v%d' % (NEGM + r, NEGM))
    def zero_state():
        for r in range(16): k.e('v_mov_b32 v%d, 0' % (O + r))
        for r in range(4):
            k.e('v_mov_b32 v%d, 0' % (L + r))
            k.e('v_mov_b32 v%d, 0' % (P + 4 + r))
            k.e('v_mov_b32 v%d, 0' % (VF + 4 + r))
        k.e('v_mov_b32 v%d, v%d' % (AC, A0))
        k.e('v_add_u32 v%d, 0x10000, v%d' % (AO, A0))
        k.e('s_mov_b32 s57, 0')
    zero_state()
    if not MP0: srd(k, 80, 'ws', 0, 256 * KB)
    if not MP0: k.e("""
    s_and_b32 s49, s2, 3               ; k quarter
    s_lshl_b32 s49, s49, 3
    s_add_u32 s49, s49, s46            ; 32-row group
    s_mul_i32 s60, s49, %d
    s_lshr_b32 s63, s2, 2              ; col block
    s_lshl_b32 s63, s63, 7
    s_add_u32 s60, s60, s63
    s_add_u32 s60, s60, 4096
    s_add_u32 s61, s60, 12288
    s_and_b32 s49, s2, 3
    s_lshl_b32 s49, s49, 2
    s_and_b32 s63, s46, 3
    s_add_u32 s49, s49, s63
    s_lshl_b32 s49, s49, 8             ; silu offset of row groups 2(w&3), +1
    s_add_u32 s49, s49, %d
    v_lshrrev_b32 v%d, 3, v1
    v_mul_u32_u24 v%d, %d, v%d
    v_and_b32 v%d, 7, v1
    v_lshl_add_u32 v%d, v%d, 4, v%d
    v_lshlrev_b32 v%d, 4, v%d
    """ % (32 * 12288, WS_SC, MT, MA, 4 * 12288, MT, MT + 1, MA, MT + 1, MA, MT, MT))
    def mld(j): return ['s_add_u32 m0, s53, %d' % (AUX_A + j * 1024), 'buffer_load_dwordx4 v%d, s[80:83], s%d offen lds' % (MA, (60, 61, 63, 49)[j])]
    k.e('s_waitcnt vmcnt(%d)' % (7 if AST else 0))
    k.e('s_barrier')
    mark(k, 1)
    for r in rdK(1): k.e(r)
    k.e('s_waitcnt lgkmcnt(0)')
    for m in qk(SB, '0'): k.e(m)
    for r in rdK(0): k.e(r)
    k.e('s_waitcnt lgkmcnt(0)')
    for m in qk(SA, '0'): k.e(m)
    def extras():
        if MP0: return
        k.e(pfl(32))
        k.e('buffer_load_dwordx4 %s, v%d, s[80:83], s49 offen' % (vr(MSV, 4), MT))
        k.e('buffer_load_dwordx4 %s, v%d, s[80:83], s49 offen offset:128' % (vr(MSV + 4, 4), MT))
        srd(k, 80, 'w_mod')
        k.e('s_mov_b32 s49, 0x40000000')
        k.e('s_mov_b32 s63, 0x40000000')
    if AST: k.e('s_nop 7')
    else:
        emit_dma(str(STG)); extras()
    maxtile(SB, True)
    maxtile(SA, False)
    set_negm(40.0)
    if AST:
        k.e('s_waitcnt vmcnt(4)')
        k.e('s_barrier')
        extras()
    mark(k, 2)
    if env('APRIO', 0):
        k.e('s_cmp_ge_u32 s46, 4')
        k.e('s_cbranch_scc0 L_attn_noprio')
        k.e('s_setprio 1')
        k.label('L_attn_noprio')
    k.e('s_mov_b32 s59, %d' % (NST // 2))
    k.e('s_nop 0')
    for m in qk(SA, vr(NEGM, 16)): k.e(m)
    k.e(rdK(1)[0])
    k.e('ds_read_b32 v%d, v%d' % (T, A0))
    k.e(rdK(1)[1])
    k.e(rdV(0)[0])
    k.e('s_nop 7')
    lp = 'L_attn_loop'
    def pv(h): return 'v_mfma_f32_32x32x16_bf16 %s, %s, %s, %s' % (vr(O, 16), vr(VF + 4 * h, 4), vr(P + 4 * h, 4), vr(O, 16))
    def ls(h): return 'v_mfma_f32_16x16x32_bf16 %s, %s, %s, %s' % (vr(L, 4), vr(ONES, 4), vr(P + 4 * h, 4), vr(L, 4))
    def iteration(nsoft, pat0):
        for t in range(16):
            cur, nxt = (SA, SB) if t % 2 == 0 else (SB, SA)
            m_qk = qk(nxt, vr(NEGM, 16))
            kn = rdK(t + 2); v0n = rdV(t + 1)[0]; v1n = rdV(t)[1]
            ex = ['v_exp_f32 v%d, v%d' % (cur + r, cur + r) for r in range(16)]
            cv = ['v_cvt_pk_bf16_f32 v%d, v%d, v%d' % (P + d, cur + 2 * d, cur + 2 * d + 1) for d in range(8)]
            W = 's_waitcnt lgkmcnt(2)'
            head = []; xs = []
            if t % 8 == 6: head = ['s_waitcnt vmcnt(%d)' % (9 if not MP0 else (6 if t == 6 else 7)), 's_barrier']
            if t == 14 and not c.last and not nsoft: head = ['s_cmp_eq_u32 s59, 1', 's_cbranch_scc0 L_attn_nd', 's_waitcnt vmcnt(0)', 'L_attn_nd:'] + head
            d = dma('s58')
            if t % 8 == 0: xs = ['s_xor_b32 s58, s57, 0x%x' % (0x10000 if t == 0 else 0x18000), d[0], d[1]]
            elif t % 8 < 3: xs = [d[1 + t % 8]]
            elif t % 8 == 3: xs = [d[4], d[5]]
            elif t == 4: xs = [pfl(64)]
            elif t == 5: xs = [pfl(68)]
            elif MP0 and t == 7: xs = [pfl(32)]
            elif MP0 and t == 12: xs = ['s_add_u32 s62, s62, %d' % (2 * MB)]
            elif MP0 and t == 13: xs = []
            elif MP0 and t == 15: xs = ['s_xor_b32 s57, s57, 0x10000']
            elif t == 7: xs = mld(0)
            elif t == 12: xs = ['s_add_u32 s62, s62, %d' % (2 * MB)] + mld(2)
            elif t == 13: xs = mld(1)
            elif t == 15: xs = ['s_xor_b32 s57, s57, 0x10000'] + mld(3) + ['s_add_u32 s63, s60, %d' % (2 * 12288), 's_add_u32 s49, s60, %d' % (3 * 12288)]
            tail = ['v_swap_b32 v%d, v%d' % (AC, AO), 's_sub_u32 s59, s59, 1', 's_cmp_lg_u32 s59, 0'] if t == 15 else []
            pat = pat0 if t < nsoft else os.environ.get('APAT', 'eeeQeeePeeccLcc')
            body = []
            for hh in range(2):
                ei = 8 * hh; ci = 4 * hh
                for ch in pat:
                    if ch == 'e': body.append(ex[ei]); ei += 1
                    elif ch == 'c': body.append(cv[ci]); ci += 1
                    elif ch == 'Q': body += [W, m_qk[hh], kn[hh]]
                    elif ch == 'P': body += [pv(1 - hh), v1n if hh == 0 else v0n]
                    elif ch == 'L': body.append(ls(1 - hh))
                assert ei == 8 * hh + 8 and ci == 4 * hh + 4
            if tail:
                last_ds = max(i for i, x in enumerate(body) if x.startswith('ds_') or x.startswith('v_exp'))
                body = body[:last_ds + 1] + tail + body[last_ds + 1:]
            iq = max(i for i, x in enumerate(body) if x == m_qk[1])
            first_e = min(i for i, x in enumerate(body) if x.startswith('v_exp'))
            assert len(body) - 1 - iq + first_e >= 12, 'qk->exp distance'
            seq = list(head)
            for x in body:
                seq.append(x)
                if xs and x.startswith('v_exp'): seq.append(xs.pop(0))
            assert not xs
            AX = os.environ.get('AX', '')
            if 'p' in AX: seq = [x for x in seq if 's62 offen' not in x]
            for x in seq: k.e(x)
    if env('ASOFT', 8): iteration(env('ASOFT', 8), os.environ.get('APAT0', 'eQPLeeeeeeecccc'))
    k.label(lp)
    iteration(0, None)
    k.e('s_cbranch_scc1 %s' % lp)
    k.label('L_attn_epi')
    mark(k, 3)
    k.e('s_waitcnt lgkmcnt(0)')
    k.e(pv(1)); k.e(ls(1))
    k.e('s_nop 15')
    lstore = 'L_attn_store'; lsafe = 'L_attn_safe'
    k.e('v_max3_f32 v%d, |v%d|, |v%d|, |v%d|' % (T, O, O + 1, L))
    for r in range(2, 16, 2): k.e('v_max3_f32 v%d, |v%d|, |v%d|, v%d' % (T, O + r, O + r + 1, T))
    k.e('v_mul_f32 v%d, 0, v%d' % (T2, L))
    for r in range(16): k.e('v_fma_f32 v%d, 0, v%d, v%d' % (T2, O + r, T2))
    k.e('v_add_f32 v%d, v%d, v%d' % (T, T, T2))
    k.e('v_mov_b32 v3, %s' % hx(2.0 ** 120))
    k.e('v_cmp_nlt_f32 vcc, v%d, v3' % T)
    k.e('s_nop 4')
    k.e('s_cbranch_vccnz %s' % lsafe)
    k.label(lstore)
    k.e('v_rcp_f32 v%d, v%d' % (T, L))
    k.e('s_nop 0')
    for r in range(16): k.e('v_mul_f32 v%d, v%d, v%d' % (O + r, O + r, T))
    for d in range(8): k.e('v_cvt_pk_bf16_f32 v%d, v%d, v%d' % (P + d, O + 2 * d, O + 2 * d + 1))
    k.e('buffer_store_dwordx4 %s, v%d, s[40:43], s54 offen%s' % (vr(P, 4), A0, WT))
    k.e('buffer_store_dwordx4 %s, v%d, s[40:43], s54 offen offset:1024%s' % (vr(P + 4, 4), A0, WT))
    signal(k, 'S')
    endpgm(k)
    k.label(lsafe)
    def gl(dst, off): return 'buffer_load_dwordx4 %s, v%d, s[36:39], s56 offen offset:%d sc1' % (vr(dst, 4), A0, off)
    k.e('s_waitcnt vmcnt(0)')
    k.e('s_mov_b32 s56, 0')
    k.e('v_mov_b32 v%d, 0xff800000' % M)
    k.label(lsafe + '1')
    k.e(gl(KF, 0)); k.e(gl(KF + 4, 1024))
    k.e('s_waitcnt vmcnt(0)')
    for m in qk(SA, '0'): k.e(m)
    k.e('s_nop 15')
    maxtile(SA, False)
    k.e('s_add_u32 s56, s56, 4096')
    k.e('s_cmp_lt_u32 s56, %d' % (256 * KB))
    k.e('s_cbranch_scc1 %s1' % lsafe)
    set_negm(0.0)
    zero_state()
    k.e('s_mov_b32 s56, 0')
    k.label(lsafe + '2')
    k.e(gl(KF, 0)); k.e(gl(KF + 4, 1024)); k.e(gl(VF, 2048)); k.e(gl(VF + 4, 3072))
    k.e('s_waitcnt vmcnt(0)')
    for m in qk(SA, vr(NEGM, 16)): k.e(m)
    k.e('s_nop 15')
    for r in range(16): k.e('v_exp_f32 v%d, v%d' % (SA + r, SA + r))
    k.e('s_nop 0')
    for d in range(8): k.e('v_cvt_pk_bf16_f32 v%d, v%d, v%d' % (P + d, SA + 2 * d, SA + 2 * d + 1))
    k.e('s_nop 1')
    k.e(pv(0)); k.e(ls(0)); k.e(pv(1)); k.e(ls(1))
    k.e('s_add_u32 s56, s56, 4096')
    k.e('s_nop 7')
    k.e('s_cmp_lt_u32 s56, %d' % (256 * KB))
    k.e('s_cbranch_scc1 %s2' % lsafe)
    k.e('s_nop 15')
    k.e('s_branch %s' % lstore)
    k.need(MSV + 8, 160 * KB)

def k_attn2(k, c):
    phase_begin(k, c)
    assert c.prev == 'qkv' and c.nxt == 'wo' and not (MP0 and AOWN != 3)
    S2 = (8, 24); O2 = (40, 56); N2 = (72, 88); L2 = (104, 108); Q2 = (112, 120)
    ONES, KF, VF, P = 128, 132, 140, 148
    A0 = 156; AR = 157; M = 158; T = 159; T2 = 160; PFA = 161; MA = 162; MT = 164; PFD = 168
    k.e("""
    v_and_b32 v1, 63, v0
    s_mov_b32 s46, s3
    s_and_b32 s47, s3, 1               ; wn
    s_bfe_u32 s48, s3, 0x10001         ; wm
    s_lshr_b32 s49, s3, 2              ; kh
    s_lshl_b32 s50, s31, 1
    s_add_u32 s50, s50, s47            ; head
    s_lshl_b32 s52, s50, 18
    s_lshl_b32 s51, s49, 17
    s_add_u32 s51, s51, s52            ; stream base in KV
    s_lshl_b32 s55, s49, 1
    s_add_u32 s55, s55, s47
    s_lshl_b32 s55, s55, 15            ; stream ring base in LDS
    s_lshl_b32 s56, s48, 12            ; next global offset: own tile of stage 0
    s_add_u32 s57, s55, s56            ; LDS address of own tile in slot 0
    s_lshl_b32 s53, s3, 12             ; wave*4KB (mod slice staging)
    v_lshlrev_b32 v%d, 4, v1
    v_add_u32 v%d, s55, v%d
    s_lshl_b32 s54, s30, 2
    s_lshl_b32 s58, s48, 1
    s_add_u32 s54, s54, s58
    s_add_u32 s54, s54, s49            ; rb of the tile this wave finalises
    s_lshl_b32 s54, s54, 16
    s_lshl_b32 s58, s50, 11
    s_add_u32 s54, s54, s58            ; O offset
    s_lshl_b32 s62, s2, 13
    v_lshl_add_u32 v%d, v0, 4, s62     ; prefetch offset wg*8K + tid*16
    s_mov_b32 s62, 0
    v_and_b32 v3, 3, v1
    v_bfe_u32 v4, v1, 2, 1
    v_bfe_u32 v5, v1, 4, 1
    v_xor_b32 v4, v4, v5
    v_or_b32 v3, v3, v4
    v_cmp_eq_u32 vcc, 0, v3
    v_mov_b32 v4, 0x3f803f80
    s_nop 1
    v_cndmask_b32 v%d, 0, v4, vcc
    v_mov_b32 v%d, v%d
    v_mov_b32 v%d, v%d
    v_mov_b32 v%d, v%d
    """ % (A0, AR, A0, PFA, ONES, ONES + 1, ONES, ONES + 2, ONES, ONES + 3, ONES))
    mark(k, 0)
    if AOWN:
        srd(k, 36, 'ws', WS_KV, 256 * KB, soff='s52')
        k.e('''
        s_mov_b32 s86, s87                 ; qkv flag the compute waves still have to publish
        s_lshl_b32 s51, s30, 14
        s_add_u32 s51, s51, s56            ; offset of the own pairs (skipped in the stream)
        s_mul_i32 s58, s49, %d
        s_add_u32 s56, s56, s58
        s_cmp_ge_u32 s56, s51
        s_cselect_b32 s58, 16384, 0
        s_add_u32 s56, s56, s58
        ''' % (15 * 8192))
    else: srd(k, 36, 'ws', WS_KV, 128 * KB, soff='s51')
    srd(k, 80, 'ws', 0, 256 * KB)
    srd(k, 64, 'w_in'); srd(k, 68, 'w_sp'); srd(k, 32, 'wo')
    for r in range(16):
        k.e('v_mov_b32 v%d, 0' % (O2[0] + r)); k.e('v_mov_b32 v%d, 0' % (O2[1] + r))
    for r in range(4):
        for b in (L2[0], L2[1], P + 4, VF + 4): k.e('v_mov_b32 v%d, 0' % (b + r))
    k.e("""
    s_and_b32 s58, s2, 3               ; k quarter
    s_lshl_b32 s58, s58, 3
    s_add_u32 s58, s58, s46            ; 32-row group
    s_mul_i32 s60, s58, %d
    s_lshr_b32 s63, s2, 2              ; col block
    s_lshl_b32 s63, s63, 7
    s_add_u32 s60, s60, s63
    s_add_u32 s60, s60, 4096
    s_add_u32 s61, s60, 12288
    s_and_b32 s44, s2, 3
    s_lshl_b32 s44, s44, 2
    s_and_b32 s63, s46, 3
    s_add_u32 s44, s44, s63
    s_lshl_b32 s44, s44, 8             ; silu offset of row groups 2(w&3), +1
    s_add_u32 s44, s44, %d
    v_lshrrev_b32 v%d, 3, v1
    v_mul_u32_u24 v%d, %d, v%d
    v_and_b32 v%d, 7, v1
    v_lshl_add_u32 v%d, v%d, 4, v%d
    v_lshlrev_b32 v%d, 4, v%d
    ; Q / stand-in exchange area: tile A of this wave = tile kh
    s_and_b32 s58, s3, 3
    s_mul_i32 s58, s58, 5120
    s_add_u32 s58, s58, %d
    s_lshl_b32 s63, s49, 11
    s_add_u32 s63, s63, s58
    v_add_u32 v2, s63, v%d             ; Q of tile kh
    v_xor_b32 v3, 1, v2
    s_xor_b32 s63, s49, 1
    s_lshl_b32 s63, s63, 11
    s_add_u32 s63, s63, s58
    v_add_u32 v3, s63, v%d             ; Q of the other tile
    s_lshl_b32 s63, s49, 2
    s_add_u32 s63, s63, s58
    v_lshl_add_u32 v4, v1, 3, s63
    v_xor_b32 v5, 4, v4
    """ % (32 * 12288, WS_SC, MT, MA, 4 * 12288, MT, MT + 1, MA, MT + 1, MA, MT, MT, AUX_A, A0, A0))
    set_flag(k, 's_lshl_b32 s100, s30, 8\ns_lshl_b32 s101, s31, 2\ns_add_u32 s100, s100, s101\ns_add_u32 s100, s100, %d' % FL_ATT)
    def hand(): handoff(k, 's_lshl_b32 s100, s31, 8\ns_add_u32 s100, s100, %d' % FL_QKV, 64, role='A')
    if AOWN: k.e('s_barrier')
    else: hand()
    def dma(slot):
        return ['s_add_u32 m0, s57, %d' % (slot * 8192)] + \
               ['buffer_load_dwordx4 v%d, s[36:39], s56 offen offset:%d sc1 lds' % (A0, q * 1024) for q in range(4)] + \
               ['s_add_u32 s56, s56, 8192' + ('\ns_cmp_eq_u32 s56, s51\ns_cselect_b32 s58, 16384, 0\ns_add_u32 s56, s56, s58' if AOWN else '')]
    def emit_dma(slot):
        d = dma(slot); k.e(d[0]); k.e('s_nop 0')
        for x in d[1:]: k.e(x)
    def pfl(n): return 'buffer_load_dwordx4 %s, v%d, %s, s62 offen' % (vr(PFD, 4), PFA, sr(n))
    def mld(j): return [] if MP0 else ['s_add_u32 m0, s53, %d' % (AUX_A + j * 1024), 'buffer_load_dwordx4 v%d, s[80:83], s%d offen lds' % (MA, (60, 61, 63, 45)[j])]
    if not AOWN: emit_dma(0); emit_dma(1)
    for q in range(2):
        k.e('ds_read_b128 %s, v%d' % (vr(Q2[q], 4), 2 + q))
        k.e('ds_read_b128 %s, v%d offset:1024' % (vr(Q2[q] + 4, 4), 2 + q))
        k.e('ds_read_b32 v%d, v%d offset:4096' % (N2[q], 4 + q))
    k.e('s_waitcnt lgkmcnt(0)')
    for r in range(1, 16):
        for q in range(2): k.e('v_mov_b32 v%d, v%d' % (N2[q] + r, N2[q]))
    if not AOWN:
        k.e('s_waitcnt vmcnt(4)')
        k.e('s_barrier')
        mark(k, 1)
    def rd(dst, t, part): return 'ds_read_b128 %s, v%d offset:%d' % (vr(dst, 4), AR, (t % 8) * 4096 + part * 1024)
    def qk(q, hh, c0=None):
        S_ = S2[q]
        return 'v_mfma_f32_32x32x16_bf16 %s, %s, %s, %s' % (vr(S_, 16), vr(KF + 4 * hh, 4), vr(Q2[q] + 4 * hh, 4), (c0 or vr(N2[q], 16)) if hh == 0 else vr(S_, 16))
    def pv(q, h): return 'v_mfma_f32_32x32x16_bf16 %s, %s, %s, %s' % (vr(O2[q], 16), vr(VF + 4 * h, 4), vr(P + 4 * h, 4), vr(O2[q], 16))
    def ls(q, h): return 'v_mfma_f32_16x16x32_bf16 %s, %s, %s, %s' % (vr(L2[q], 4), vr(ONES, 4), vr(P + 4 * h, 4), vr(L2[q], 4))
    k.e(rd(KF, 0, 0)); k.e(rd(KF + 4, 0, 1)); k.e(rd(VF, 0, 2))
    def silu_loads():
        if MP0: return
        k.e('buffer_load_dwordx4 %s, v%d, s[80:83], s44 offen sc1' % (vr(MSV, 4), MT))
        k.e('buffer_load_dwordx4 %s, v%d, s[80:83], s44 offen offset:128 sc1' % (vr(MSV + 4, 4), MT))
    def wmod():
        if MP0: return
        srd(k, 80, 'w_mod')
        k.e('s_add_u32 s63, s60, %d' % (2 * 12288))
        k.e('s_add_u32 s45, s60, %d' % (3 * 12288))
    if not AOWN: silu_loads()
    k.e('s_waitcnt lgkmcnt(1)')
    k.e(qk(0, 0)); k.e(qk(0, 1))
    if AOWN: k.e('s_nop 11')
    else:
        emit_dma(2); wmod()
    OD = env('OD', 0) and AOWN == 3
    ool = []
    def late_start():
        if AOWN == 1:
            l = k.newlabel('ls')
            k.e('s_cmp_lt_u32 s3, 4'); k.e('s_cbranch_scc1 %s' % l)
            flag_prep(k)
            k.e('s_and_b32 s100, s3, 3\ns_lshl_b32 s100, s100, 7\ns_add_u32 s100, s100, s86')
            k.e('s_waitcnt vmcnt(0)')
            flag_store(k, 's100')
            k.label(l)
        hand()
        mark(k, 1)
        if OD:
            emit_dma(1); silu_loads(); wmod()
            k.e('''
            s_lshl_b32 s43, s48, 12
            s_add_u32 s43, s43, %d
            s_cmp_ge_u32 s43, s51
            s_cselect_b32 s58, 16384, 0
            s_add_u32 s43, s43, s58
            s_cmp_lt_u32 s3, 4
            s_cselect_b64 vcc, -1, 0
            s_cbranch_scc0 L_attn_np
            s_setprio 1
            L_attn_np:
            ''' % (16 * 8192))
        else:
            emit_dma(1); silu_loads(); emit_dma(2); wmod()
    k.e('s_mov_b32 s59, %d' % (3 if env('LASTB', 1) and not OD else 4))
    mark(k, 2)
    lp = 'L_attn_loop'
    LASTB = env('LASTB', 1) and not OD
    def iteration(first, nsoft, pat0, last=False):
        for u in range(16):
            t = u // 2; q = u % 2; st = u // 4; us = u % 4
            cur = S2[q]
            ex = ['v_exp_f32 v%d, v%d' % (cur + r, cur + r) for r in range(16)]
            cv = ['v_cvt_pk_bf16_f32 v%d, v%d, v%d' % (P + d, cur + 2 * d, cur + 2 * d + 1) for d in range(8)]
            if q == 0:
                Qs = [[qk(1, 0), rd(KF, t + 1, 0)], [qk(1, 1), rd(KF + 4, t + 1, 1)]]
                Ps = [[pv(1, 1), rd(VF + 4, t, 3)], ['WAITV', pv(0, 0)]]
            else:
                Qs = [['s_waitcnt lgkmcnt(0)', qk(0, 0)], [qk(0, 1)]]
                Ps = [[pv(0, 1)], [pv(1, 0), rd(VF, t + 1, 2)]]
            Ls = [ls(1 - q, 1), ls(q, 0)]
            peel = first and AOWN == 4 and u in (2, 3)
            if peel and u == 2:
                Qs = [[qk(1, 0)], [qk(1, 1)]]; Ps = [[pv(1, 1), rd(VF + 4, t, 3)], ['s_waitcnt lgkmcnt(1)', pv(0, 0)]]
            if peel and u == 3:
                Qs = [['s_waitcnt lgkmcnt(0)'], ['s_nop 0']]; Ps = [[pv(0, 1)], [pv(1, 0)]]
            inc = ['s_add_u32 s62, s62, %d' % (2 * MB)]
            NOPF = env('NOPF', 0)
            if first and AOWN: extra = [[], [], mld(0) + [pfl(32)], [pfl(64)], mld(1), mld(2), mld(3), [pfl(68)] + inc]
            elif first: extra = [[], [pfl(32)], mld(0), [pfl(64)], mld(1), mld(2), mld(3), [pfl(68)] + inc]
            else: extra = [[], [], [pfl(64)], [], [], [], [pfl(68)] + inc, []]
            if NOPF: extra = [[y for y in x if 's62' not in y] for x in extra]
            cnt = lambda e: [sum('buffer_load' in y for y in e[2 * i] + e[2 * i + 1]) for i in range(4)]
            nx_ = cnt(extra)
            prevx = ((0 if MP0 else 2) if first else nx_[3]) if st == 0 else nx_[st - 1]
            head = ['s_waitcnt vmcnt(%d)' % (prevx + 4 + nx_[st]), 's_barrier'] if us == 2 else []
            if last and us == 2 and st >= 2: head = (['s_waitcnt vmcnt(%d)' % (prevx + nx_[st])] if st == 2 else []) + ['s_barrier']
            if peel: head = []
            d = dma((st + 3) % 4)
            if OD and us == 2:
                lb = 'L_attn_fd%d_%d' % (first, st)
                d0 = dma((st + 2) % 4)
                d1 = [x.replace('s56', 's43').replace('s57, %d' % (((st + 2) % 4) * 8192), 's57, %d' % (((st + 2) % 4) * 8192 + 65536)) for x in d0]
                nw = 8 + nx_[st] + (2 if first and st == 0 else 0)
                ool.append([lb + ':', d0[0], 's_nop 0'] + d0[1:5] + [d1[0], 's_nop 0'] + d1[1:5] + [d0[5], d1[5], 's_waitcnt vmcnt(%d)' % nw, 's_branch %sr' % lb])
                head = ['s_cbranch_vccnz %s' % lb] + (['s_waitcnt vmcnt(2)'] if first and st == 0 else []) + [lb + 'r:', 's_barrier']
            if (OD or (last and st >= 1)) and us >= 2: xs = []
            elif us == 2: xs = [d[0], d[1], None, None, None, None, None, None, None, d[2]]
            elif us == 3: xs = [d[3], None, None, None, None, None, None, None, d[4], d[5]]
            else: xs = list(extra[2 * st + us])
            pat = pat0 if u < nsoft else os.environ.get('APAT', 'eeeQeeePeeccLcc')
            assert pat.index('Q') < pat.index('P')
            body = []
            for hh in range(2):
                ei = 8 * hh; ci = 4 * hh
                for ch in pat:
                    if ch == 'e': body.append(ex[ei]); ei += 1
                    elif ch == 'c': body.append(cv[ci]); ci += 1
                    elif ch == 'Q': body += Qs[hh]
                    elif ch == 'P': body += Ps[hh]
                    elif ch == 'L': body.append(Ls[hh])
            body = ['s_waitcnt lgkmcnt(3)' if x == 'WAITV' else x for x in body]
            if u == 15 and not last:
                le = max(i for i, x in enumerate(body) if x.startswith('v_exp'))
                body = body[:le + 1] + ['s_sub_u32 s59, s59, 1', 's_cmp_lg_u32 s59, 0'] + body[le + 1:]
            if peel and u == 3:
                body += ['s_waitcnt vmcnt(10)', 's_barrier', rd(KF, 2, 0), rd(KF + 4, 2, 1), rd(VF, 2, 2), 's_waitcnt lgkmcnt(1)', qk(0, 0), qk(0, 1)]
            iq = body.index(qk(1 - q, 1))
            first_e = min(i for i, x in enumerate(body) if x.startswith('v_exp'))
            gap = len(body) - 1 - iq + first_e
            if gap < 12: body.append('s_nop %d' % (11 - gap))
            if first and AOWN and u == (0 if AOWN == 3 else 2): late_start()
            seq = list(head)
            for x in body:
                seq.append(x)
                if xs and x.startswith('v_exp'):
                    y = xs.pop(0)
                    if y: seq.append(y)
            assert not xs
            AX = os.environ.get('AX', '')
            if 'b' in AX: seq = [x for x in seq if x != 's_barrier']
            if 'p' in AX: seq = [x for x in seq if 's62 offen' not in x and 's[80:83]' not in x]
            if 'v' in AX: seq = [x for x in seq if 'buffer_load' not in x]
            if 'd' in AX: seq = [x for x in seq if not x.startswith('ds_read') and 'lgkmcnt' not in x]
            if 'l' in AX: seq = [x for x in seq if '16x16x32' not in x]
            for x in seq: k.e(x)
    iteration(True, env('ASOFT', 8), os.environ.get('APAT0', 'eQPLeeeeeeecccc'))
    k.label(lp)
    iteration(False, 0, None)
    k.e('s_cbranch_scc1 %s' % lp)
    if LASTB:
        iteration(False, 0, None, last=True)
        k.e('s_nop 0')
    k.label('L_attn_epi')
    if 'b' in os.environ.get('AX', ''): k.e('s_barrier')
    mark(k, 3)
    k.e('s_nop 0')
    k.e(pv(1, 1)); k.e(ls(1, 1))
    if LASTB:
        k.e("""
        s_lshl_b32 s58, s48, 13
        s_add_u32 s58, s58, s55
        s_add_u32 s58, s58, 8192
        v_add_u32 v2, s58, v%d
        v_lshl_add_u32 v4, v1, 2, s58
        s_xor_b32 s58, s58, 0x10000
        v_add_u32 v3, s58, v%d
        v_lshl_add_u32 v5, v1, 2, s58
        s_nop 3
        """ % (A0, A0))
    else:
        k.e("""
        s_mul_i32 s58, s3, 5120
        v_add_u32 v2, s58, v%d
        v_lshl_add_u32 v4, v1, 2, s58
        s_xor_b32 s58, s3, 4
        s_mul_i32 s58, s58, 5120
        v_add_u32 v3, s58, v%d
        v_lshl_add_u32 v5, v1, 2, s58
        s_waitcnt vmcnt(0) lgkmcnt(0)
        s_barrier
        s_nop 3
        """ % (A0, A0))
    for r in range(4): k.e('ds_write_b128 v2, %s offset:%d' % (vr(O2[1] + 4 * r, 4), r * 1024))
    k.e('ds_write_b32 v4, v%d offset:4096' % L2[1])
    srd(k, 40, 'ws', WS_O, 4 * MB)
    k.e('s_waitcnt lgkmcnt(0)')
    k.e('s_barrier')
    for r in range(4): k.e('ds_read_b128 %s, v3 offset:%d' % (vr(S2[0] + 4 * r, 4), r * 1024))
    k.e('ds_read_b32 v%d, v5 offset:4096' % T)
    k.e('s_waitcnt lgkmcnt(0)')
    O = O2[0]; L = L2[0]; SA = S2[0]; NEGM = N2[0]
    for r in range(0, 16, 2): k.e(pk('add', O + r, O + r, SA + r))
    k.e('v_add_f32 v%d, v%d, v%d' % (L, L, T))
    lstore = 'L_attn_store'; lsafe = 'L_attn_safe'
    k.e('v_max3_f32 v%d, |v%d|, |v%d|, |v%d|' % (T, O, O + 1, L))
    for r in range(2, 16, 2): k.e('v_max3_f32 v%d, |v%d|, |v%d|, v%d' % (T, O + r, O + r + 1, T))
    k.e('v_mul_f32 v%d, 0, v%d' % (T2, L))
    for r in range(16): k.e('v_fma_f32 v%d, 0, v%d, v%d' % (T2, O + r, T2))
    k.e('v_add_f32 v%d, v%d, v%d' % (T, T, T2))
    k.e('v_mov_b32 v3, %s' % hx(2.0 ** 120))
    k.e('v_cmp_nlt_f32 vcc, v%d, v3' % T)
    k.e('s_nop 4')
    k.e('s_cbranch_vccnz %s' % lsafe)
    k.label(lstore)
    k.e('v_rcp_f32 v%d, v%d' % (T2, L))
    k.e('s_nop 0')
    for r in range(0, 16, 2): k.e(pk('mul', O + r, O + r, (T2,)))
    for d in range(8): k.e('v_cvt_pk_bf16_f32 v%d, v%d, v%d' % (P + d, O + 2 * d, O + 2 * d + 1))
    k.e('buffer_store_dwordx4 %s, v%d, s[40:43], s54 offen%s' % (vr(P, 4), A0, WT))
    k.e('buffer_store_dwordx4 %s, v%d, s[40:43], s54 offen offset:1024%s' % (vr(P + 4, 4), A0, WT))
    signal(k, 'S')
    endpgm(k)
    for blk in ool:
        for x in blk: k.e(x)
    k.label(lsafe)
    srd(k, 36, 'ws', WS_KV, 256 * KB, soff='s52')
    def gl(dst, off): return 'buffer_load_dwordx4 %s, v%d, s[36:39], s56 offen offset:%d sc1' % (vr(dst, 4), A0, off)
    k.e('s_mov_b32 s56, 0')
    k.e('v_mov_b32 v%d, 0xff800000' % M)
    k.label(lsafe + '1')
    k.e(gl(KF, 0)); k.e(gl(KF + 4, 1024))
    k.e('s_waitcnt vmcnt(0)')
    k.e(qk(0, 0, '0')); k.e(qk(0, 1))
    k.e('s_nop 15')
    for r in range(0, 16, 2): k.e('v_max3_f32 v%d, v%d, v%d, v%d' % (M, M, SA + r, SA + r + 1))
    k.e('s_add_u32 s56, s56, 4096')
    k.e('s_cmp_lt_u32 s56, %d' % (256 * KB))
    k.e('s_cbranch_scc1 %s1' % lsafe)
    k.e('v_mov_b32 v%d, v%d' % (T, M))
    k.e('s_nop 1')
    k.e('v_permlane32_swap_b32 v%d, v%d' % (M, T))
    k.e('s_nop 1')
    k.e('v_max_f32 v%d, v%d, v%d' % (M, M, T))
    k.e('v_sub_f32 v%d, 0, v%d' % (NEGM, M))
    for r in range(1, 16): k.e('v_mov_b32 v%d, v%d' % (NEGM + r, NEGM))
    for r in range(16): k.e('v_mov_b32 v%d, 0' % (O + r))
    for r in range(4): k.e('v_mov_b32 v%d, 0' % (L + r))
    k.e('s_mov_b32 s56, 0')
    k.label(lsafe + '2')
    k.e(gl(KF, 0)); k.e(gl(KF + 4, 1024)); k.e(gl(VF, 2048)); k.e(gl(VF + 4, 3072))
    k.e('s_waitcnt vmcnt(0)')
    k.e(qk(0, 0)); k.e(qk(0, 1))
    k.e('s_nop 15')
    for r in range(16): k.e('v_exp_f32 v%d, v%d' % (SA + r, SA + r))
    k.e('s_nop 0')
    for d in range(8): k.e('v_cvt_pk_bf16_f32 v%d, v%d, v%d' % (P + d, SA + 2 * d, SA + 2 * d + 1))
    k.e('s_nop 1')
    k.e(pv(0, 0)); k.e(ls(0, 0)); k.e(pv(0, 1)); k.e(ls(0, 1))
    k.e('s_add_u32 s56, s56, 4096')
    k.e('s_nop 7')
    k.e('s_cmp_lt_u32 s56, %d' % (256 * KB))
    k.e('s_cbranch_scc1 %s2' % lsafe)
    k.e('s_nop 15')
    k.e('s_branch %s' % lstore)
    k.need(MSV + 8, 160 * KB)

PHASES = dict(p0=k_p0, qkv=k_qkv, attn=k_attn2 if AT2 else k_attn,
              wo=lambda k, c: k_proj(k, c, 1024, ('xf', WS_O, 1024), 'wo', False),
              win=k_win2 if W22 else k_win, wsp=k_wsp,
              wout=lambda k, c: k_proj(k, c, 1792, ('xf', WS_U2, 1792), 'w_out', True))
GROUPS = [g.split('+') for g in os.environ.get('GRP', 'p0+qkv+attn+wo+win+wsp+wout').split(',')]
def same_kernel(a, b): return any(a in g_ and b in g_ for g_ in GROUPS)
def build():
    ks = []
    for grp in GROUPS:
        k = Kern(grp[0] if len(grp) == 1 else 'm' + grp[0], 256, 1024 if grp[0] == 'pre' else 512, 0)
        prologue(k)
        for i, ph in enumerate(grp):
            c = Ctx(); c.name = ph; c.first = i == 0; c.last = i == len(grp) - 1; c.nxt = None if c.last else grp[i + 1]; c.prev = grp[i - 1] if i else None
            PHASES[ph](k, c)
        k.label(k.endl)
        k.e('s_endpgm')
        assert k.lds <= 160 * KB
        ks.append(k)
    s = '; adaLN + softmax MHA + gMLP block, generated by gen.py (hand-written generator)\n'
    for k in ks: s += k.launch()
    s += '.amdgcn_target "amdgcn-amd-amdhsa--gfx950"\n.text\n'
    for k in ks: s += k.text()
    s += 'L_text_end:\n    s_endpgm\n'
    s += '.section .rodata,"a"\n'
    for k in ks: s += k.desc()
    if len(ks) == 1 and env('SINGLE', 0):
        s = s.replace('; @launch kernel=%s_kernel ' % ks[0].name, '; @launch ')
        s = s.replace(ks[0].name + '_kernel', 'adaLN_cond__softmax_full_mha__mixer_gmlp__prompt_kernel')
    return s

PROMO = ('v_exp_f32', 'v_rcp_f32', 'v_mov_b32', 'v_add_f32', 'v_mul_f32', 'v_sub_f32', 'v_max_f32', 'v_lshlrev_b32', 'v_lshrrev_b32',
         'v_and_b32', 'v_xor_b32', 'v_or_b32', 'v_add_u32', 'v_fmac_f32', 'v_min_u32', 'v_max_u32', 'v_rsq_f32', 'v_sqrt_f32')
def align8(text):
    import subprocess, tempfile, re
    lines = text.split('\n')
    i0 = next(i for i, l in enumerate(lines) if l.endswith('_kernel:')); i1 = next(i for i, l in enumerate(lines) if l.startswith('.section'))
    idx = [i for i in range(i0, i1) if lines[i].strip() and not lines[i].strip().startswith((';', '.')) and not lines[i].strip().endswith(':')]
    with tempfile.TemporaryDirectory() as d:
        open(d + '/a.s', 'w').write(text)
        subprocess.check_call(['clang', '-x', 'assembler', '-target', 'amdgcn-amd-amdhsa', '-mcpu=gfx950', '-c', d + '/a.s', '-o', d + '/a.o'])
        dis = subprocess.check_output(['llvm-objdump', '-d', '--mcpu=gfx950', d + '/a.o'], text=True)
    sz = [4 * len(m.group(1).split()) for m in re.finditer(r'// [0-9A-F]{12}: ([0-9A-F ]+)', dis)]
    assert len(sz) == len(idx), (len(sz), len(idx))
    off = 0; ins = {}; npro = nnop = 0
    MINRUN = env('MINRUN', 8)
    for n, i in enumerate(idx):
        if sz[n] == 8 and off % 8 == 4:
            p = n - 1; done = False
            while p >= 0 and sz[p] == 4:
                op = lines[idx[p]].split()[0]
                if op in PROMO:
                    lines[idx[p]] = lines[idx[p]].replace(op, op + '_e64', 1); sz[p] = 8; off += 4; done = True; npro += 1
                    break
                p -= 1
            if not done:
                r = 0
                while n + r < len(sz) and sz[n + r] == 8: r += 1
                prev = lines[idx[n - 1]].split()[0]
                if r >= MINRUN and prev != 's_getpc_b64':
                    ins[i] = '    s_nop 0'; off += 4; nnop += 1
        off += sz[n]
    out = []
    for i, l in enumerate(lines):
        if i in ins: out.append(ins[i])
        out.append(l)
    print('align8: %d widened, %d nops' % (npro, nnop))
    return '\n'.join(out)

if __name__ == '__main__':
    out = sys.argv[1] if len(sys.argv) > 1 else 'adaLN_cond__softmax_full_mha__mixer_gmlp__prompt.s'
    txt = build()
    if env('AL8', 1): txt = align8(txt)
    open(out, 'w').write(txt)
    print('wrote', out)
```

```python
import sys, struct, os
STAMP = int(os.environ.get('STAMP', '0'))
WS_STAMP = 128 << 20
KIDX = [0]
def env(n, d): return int(os.environ.get(n, d))

MB = 1 << 20
KB = 1024
WS_MOD = 0
WS_UW  = 32 * KB
WS_ST0 = 64 * KB
WS_MODP = 128 * KB
WS_MODT = 768 * KB
TAGP = env('TAGP', 1)
WS_SC = 96 * KB
WS_MODQ = 160 * KB
WS_ST1 = 256 * KB
WS_G   = 512 * KB
WS_FL  = 58 * MB
FLSZ = 2 * MB
FL_LN1, FL_QKV, FL_ATT, FL_WO, FL_WIN, FL_WSP, FL_MOD = [i * 8 * KB for i in range(7)]
WS_EPOCH = 240 * KB
AUX_A = 128 * KB; AUX_B = 148 * KB
WS_H   = 1 * MB
WS_Q   = 5 * MB
WS_KV  = 9 * MB
WS_G2  = 57 * MB
WS_N   = 60 * MB
WS_O   = 17 * MB
WS_X1  = 21 * MB
WS_X1S = 25 * MB
WS_Z   = 29 * MB
ZSZ = 2048 * 1792 * 2
WS_Z2N = WS_Z + ZSZ
WS_U2  = 50 * MB
if env('ALIAS', 0):
    WS_Q = 1 * MB; WS_KV = 5 * MB; WS_H = 13 * MB
    WS_O = WS_H; WS_X1 = WS_Q; WS_X1S = WS_KV
    WS_Z2N = 9 * MB; WS_Z = 17 * MB; WS_U2 = WS_Z
ZB = min(WS_Z, WS_Z2N)

ROLES = {'pre': [('mod', 0, 128, 0, 16), ('stats', 128, 256, 0, 16)], 'ln1': [('pf', 0, 256, 0, 4), ('ln', 0, 256, 4, 8)],
         'attn': [('main', 0, 256, 0, 8)]}
for _n in ('qkv', 'wo', 'wout'): ROLES[_n] = [('load', 0, 256, 0, 4), ('comp', 0, 256, 4, 8)]
for _n in ('win', 'wsp'): ROLES[_n] = [('load', 0, 224, 0, 4), ('comp', 0, 224, 4, 8), ('pf', 224, 256, 0, 8)]
def f2u(f): return struct.unpack('<I', struct.pack('<f', f))[0]
def hx(f): return '0x%08x' % f2u(f)
LOG2E = 1.4426950408889634
WT = os.environ.get('WTF', ' sc1')

class Kern:
    def __init__(self, name, grid, block, lds):
        self.name = name; self.grid = grid; self.block = block; self.lds = lds
        self.lines = []; self.vgpr = 0; self.nlab = 0
    def e(self, s):
        for l in s.strip('\n').split('\n'):
            l = l.strip()
            if l: self.lines.append('    ' + l)
    def label(self, l):
        if env('ALIGN', 0) and ('_loop' in l or '_lloop' in l):
            self.lines.append('.p2align %d' % env('ALIGN', 0))
            for _ in range(env('ALOFF', 0)): self.lines.append('    s_nop 0')
        self.lines.append(l + ':')
    def newlabel(self, base):
        self.nlab += 1
        return 'L_%s_%s%d' % (self.name, base, self.nlab)
    def need(self, vgpr, lds):
        self.vgpr = max(self.vgpr, vgpr); self.lds = max(self.lds, lds)
    def text(self):
        GX = os.environ.get('GX', '')
        if self.name != 'pre':
            if 'm' in GX: self.lines = [l for l in self.lines if 'v_mfma' not in l]
            if 'l' in GX: self.lines = [l for l in self.lines if not (' lds' in l and 'buffer_load' in l and ('s57' in l or 's58' in l))]
            if 'r' in GX: self.lines = [l for l in self.lines if not ('ds_read_b64_tr' in l)]
        if os.environ.get('NOLDSC'):
            self.lines = [l.replace(' sc1 lds', ' lds') for l in self.lines]
        n = self.name + '_kernel'
        return '.globl %s\n.p2align 8\n.type %s,@function\n%s:\n' % (n, n, n) + '\n'.join(self.lines) + '\n'
    def desc(self):
        n = self.name + '_kernel'
        v = self.vgpr
        acc = (v + 3) // 4 * 4
        return ('.p2align 6\n.amdhsa_kernel %s\n  .amdhsa_next_free_vgpr %d\n  .amdhsa_next_free_sgpr 102\n'
                '  .amdhsa_accum_offset %d\n  .amdhsa_group_segment_fixed_size 0\n  .amdhsa_kernarg_size 104\n'
                '  .amdhsa_user_sgpr_count 2\n  .amdhsa_user_sgpr_kernarg_segment_ptr 1\n'
                '  .amdhsa_system_sgpr_workgroup_id_x 1\n.end_amdhsa_kernel\n' % (n, v, acc))
    def launch(self):
        return '; @launch kernel=%s_kernel grid=(%d,1,1) block=(%d,1,1) lds=%d\n' % (self.name, self.grid, self.block, self.lds)

PTR = dict(x=4, wqkv=6, wo=8, bx=10, w_in=12, w_sp=14, b_sp=16, w_out=18, c=20, w_mod=22, out=24, dbg=26, ws=28)
SIZES = dict(x=2048*1024*2, wqkv=1024*3072*2, wo=1024*1024*2, w_in=1024*3584*2, w_sp=2048*2048*2, b_sp=2048*2,
             w_out=1792*1024*2, c=2048, w_mod=1024*6144*2, out=2048*1024*2, dbg=256)

class Ctx: pass
PHIDX = {}
def prologue(k):
    k.endl = 'L_%s_end' % k.name
    k.e("""
    s_load_dwordx16 s[4:19], s[0:1], 0
    s_load_dwordx8 s[20:27], s[0:1], 64
    s_load_dwordx2 s[28:29], s[0:1], 96
    s_cmp_ge_u32 s2, %d
    s_cbranch_scc1 %s
    v_lshrrev_b32 v1, 6, v0
    s_nop 0
    v_readfirstlane_b32 s3, v1
    """ % (k.grid, k.endl))

def phase_begin(k, c):
    k.c = c
    k.label('L_%s_entry' % c.name)
    if env('IDLE_' + c.name, 0):
        for _ in range(env('IDLE_' + c.name, 0)): k.e('s_sleep 36')
    c.kidx = KIDX[0]; KIDX[0] += 1
    PHIDX[c.name] = c.kidx
    if env('PADTO', 0) and c.first: k.e('s_memrealtime s[90:91]')
    if env('DBG', 0) and c.first: dbgstamp(k, 0 if c.name == 'pre' else 10, 512 if c.name == 'pre' else 0, '')
    if STAMP:
        k.e('s_memtime s[88:89]')
        k.e('s_memrealtime s[90:91]')
        for i in range(4): k.e('s_mov_b64 s[%d:%d], 0' % (72 + 2 * i, 73 + 2 * i))

def dbgstamp(k, idx, off, op):
    l = k.newlabel('dbg')
    k.e('''
    s_lshl_b32 s80, s2, 4
    s_add_u32 s80, s80, s3
    s_cmp_lg_u32 s80, %d
    s_cbranch_scc1 %s
    s_waitcnt lgkmcnt(0)
    s_memrealtime s[92:93]
    s_add_u32 s80, s26, %d
    s_addc_u32 s81, s27, 0
    s_and_b32 s81, s81, 0xffff
    s_mov_b32 s82, 256
    s_mov_b32 s83, 0x20000
    s_mov_b64 exec, 1
    s_waitcnt lgkmcnt(0)
    v_mov_b32 v2, s92
    v_mov_b32 v5, %d
    buffer_store_dword v2, v5, s[80:83], 0 offen
    s_mov_b64 exec, -1
    ''' % (5 * 16 + 4, l, off, idx * 4))
    k.label(l)
def endpgm(k):
    c = k.c
    if env('DBG', 0): dbgstamp(k, 1 + c.kidx, 512 if c.name == 'pre' else 0, '')
    if STAMP:
        k.e("""
        s_waitcnt vmcnt(0) lgkmcnt(0)
        s_memtime s[92:93]
        s_memrealtime s[94:95]
        s_mov_b64 exec, 1
        s_add_u32 s80, s28, 0x%x
        s_addc_u32 s81, s29, 0
        s_and_b32 s81, s81, 0xffff
        s_mov_b32 s82, 0x100000
        s_mov_b32 s83, 0x20000
        s_lshl_b32 s86, s2, 4
        s_add_u32 s86, s86, s3
        s_lshl_b32 s86, s86, 5
        s_waitcnt lgkmcnt(0)
        v_mov_b32 v4, s90
        v_mov_b32 v5, s94
        v_mov_b32 v6, s88
        v_mov_b32 v7, s92
        v_mov_b32 v8, s72
        v_mov_b32 v9, s74
        v_mov_b32 v10, s76
        v_mov_b32 v11, s78
        v_mov_b32 v2, s86
        buffer_store_dwordx4 v[4:7], v2, s[80:83], 0 offen
        buffer_store_dwordx4 v[8:11], v2, s[80:83], 0 offen offset:16
        s_waitcnt vmcnt(0)
        """ % (WS_STAMP + c.kidx * (1 << 20)))
    if c.last and env('PADTO', 0):
        l = k.newlabel('pad')
        k.label(l)
        k.e('s_memrealtime s[92:93]\ns_waitcnt lgkmcnt(0)\ns_sub_u32 s92, s92, s90\ns_cmp_lt_u32 s92, %d\ns_cbranch_scc1 %s' % (env('PADTO', 0) * 100, l))
    if c.last: k.e('s_endpgm')
    else:
        k.e('s_mov_b64 exec, -1')
        k.e('s_setprio 0')
        k.e('s_branch L_%s_entry' % c.nxt)
def mark(k, i=0):
    if STAMP:
        k.e('s_memtime s[%d:%d]' % (72 + 2 * i, 73 + 2 * i))
        k.e('s_waitcnt lgkmcnt(0)')

def set_flag(k, setup):
    if not k.c.last:
        k.e(setup)
        k.e('s_lshl_b32 s87, s100, 5')
def OWNF(n): return n in os.environ.get('OWN', 'none').split(',')
ZF32 = env('ZF32', 1)
W22 = env('W22', 1)
LPW = env('LPW', 0)
ZOWN = env('ZOWN', 1)
FV = 252
def flag_store(k, soff):
    k.e('s_mov_b64 exec, 1')
    k.e('buffer_store_dwordx2 %s, v%d, s[96:99], %s offen sc1' % (vr(FV, 2), FV + 2, soff))
    k.e('s_mov_b64 exec, -1')
def flag_prep(k):
    srd(k, 96, 'ws', WS_FL, FLSZ)
    k.e('v_mov_b32 v%d, s84' % FV); k.e('v_mov_b32 v%d, s85' % (FV + 1)); k.e('v_mov_b32 v%d, 0' % (FV + 2))
    k.need(FV + 3, 0)
def signal(k, role='L', keep=0):
    if k.c.last: return
    if role in ('C', 'S'): flag_prep(k)
    if role == 'C':
        k.e('s_and_b32 s100, s3, 3')
        k.e('s_lshl_b32 s100, s100, 7')
        k.e('s_add_u32 s100, s100, s87')
    if role == 'C' and env('SM', 0): mark(k, 3)
    k.e('s_waitcnt vmcnt(%d)' % keep)
    if role == 'C' and env('SM', 0): mark(k, 0)
    if role == 'C':
        flag_store(k, 's100')
        if OWNF(k.c.nxt): k.e('s_barrier')
    elif role == 'A' and OWNF(k.c.nxt) and k.c.nxt == 'wout':
        l = k.newlabel('sg')
        k.e('s_cmp_lt_u32 s3, 4'); k.e('s_cbranch_scc1 %s' % l); k.e('s_barrier'); k.label(l)
    elif role == 'S':
        l = k.newlabel('sg')
        k.e('s_barrier')
        k.e('s_cmp_lg_u32 s3, 7'); k.e('s_cbranch_scc1 %s' % l)
        flag_store(k, 's87')
        k.label(l)
POLLW = env('POLLW', 4)
def handoff(k, setup, n, role='L', force=False, slp=None):
    if (k.c.first and not force) or not n: return
    if role in 'AW' or (role == 'C') == (POLLW >= 4):
        ld = k.newlabel('wd')
        if role == 'W': pass
        elif n <= 64:
            k.e('s_cmp_lg_u32 s3, %d' % POLLW)
            k.e('s_cbranch_scc1 %s' % ld)
        else:
            assert n == 128
            k.e('s_sub_u32 s101, s3, %d' % POLLW)
            k.e('s_cmp_gt_u32 s101, 1')
            k.e('s_cbranch_scc1 %s' % ld)
        srd(k, 96, 'ws', WS_FL, FLSZ)
        k.e(setup)
        k.e('s_lshl_b32 s100, s100, 5')
        if n > 64:
            k.e('s_lshl_b32 s101, s101, 13')
            k.e('s_add_u32 s100, s100, s101')
        k.e('v_lshlrev_b32 v%d, 7, v1' % (FV + 2))
        k.e('s_mov_b32 s101, 0x100000')
        if n < 64: k.e('s_bfm_b64 exec, %d, 0' % n)
        k.need(FV + 3, 0)
        PP = env('PPIPE', 0)
        if PP:
            lp = k.newlabel('wf'); le = k.newlabel('we')
            B = [FV, FV - 2, FV - 4][:PP]
            ldp = lambda b: 'buffer_load_dwordx2 %s, v%d, s[96:99], s100 offen sc1' % (vr(b, 2), FV + 2)
            for b in B[:-1]:
                k.e(ldp(b)); k.e('s_sleep %d' % env('PGAP', 5))
            k.label(lp)
            for i_ in range(PP):
                k.e(ldp(B[i_ - 1]))
                k.e('s_waitcnt vmcnt(%d)' % (PP - 1))
                k.e('v_cmp_ne_u64 vcc, s[84:85], %s' % vr(B[i_], 2))
                k.e('s_nop 4')
                k.e('s_cbranch_vccz %s' % le)
            k.e('s_sub_u32 s101, s101, 1')
            k.e('s_cmp_lg_u32 s101, 0')
            k.e('s_cbranch_scc1 %s' % lp)
        else:
            lp = k.newlabel('wf'); le = k.newlabel('we')
            k.label(lp)
            k.e('buffer_load_dwordx2 %s, v%d, s[96:99], s100 offen sc1' % (vr(FV, 2), FV + 2))
            k.e('s_waitcnt vmcnt(0)')
            k.e('v_cmp_ne_u64 vcc, s[84:85], %s' % vr(FV, 2))
            k.e('s_sub_u32 s101, s101, 1')
            k.e('s_nop 3')
            k.e('s_cbranch_vccz %s' % le)
            if env('PMASK', 1): k.e('s_mov_b64 exec, vcc')
            if slp is None: slp = env('PSLEEP', 1)
            if slp: k.e('s_sleep %d' % slp)
            k.e('s_cmp_lg_u32 s101, 0')
            k.e('s_cbranch_scc1 %s' % lp)
        k.label(le)
        k.e('s_mov_b64 exec, -1')
        k.label(ld)
    if role != 'W': k.e('s_barrier')

def handoff_multi(k, polls):
    ld = k.newlabel('wd'); lgo = k.newlabel('wg')
    srd(k, 96, 'ws', WS_FL, FLSZ)
    for w, setup, n in polls:
        ln = k.newlabel('wn')
        k.e('s_cmp_lg_u32 s3, %d' % w)
        k.e('s_cbranch_scc1 %s' % ln)
        k.e(setup)
        k.e('v_min_u32 v%d, %d, v1' % (FV + 2, n - 1))
        k.e('s_branch %s' % lgo)
        k.label(ln)
    k.e('s_branch %s' % ld)
    k.label(lgo)
    k.e('s_lshl_b32 s100, s100, 5')
    k.e('v_lshlrev_b32 v%d, 7, v%d' % (FV + 2, FV + 2))
    k.e('s_mov_b32 s101, 0x100000')
    lp = k.newlabel('wf')
    k.label(lp)
    k.e('buffer_load_dwordx2 %s, v%d, s[96:99], s100 offen sc1' % (vr(FV, 2), FV + 2))
    k.e('s_waitcnt vmcnt(0)')
    k.e('v_cmp_ne_u64 vcc, s[84:85], %s' % vr(FV, 2))
    k.e('s_sub_u32 s101, s101, 1')
    k.e('s_nop 3')
    k.e('s_cbranch_vccz %s' % ld)
    k.e('s_sleep %d' % env('P0SLEEP', 2))
    k.e('s_cmp_lg_u32 s101, 0')
    k.e('s_cbranch_scc1 %s' % lp)
    k.label(ld)
    k.e('s_barrier')

def mod_table(k, R, between=None, nb=0):
    srd(k, 40, 'ws', 0, 256 * KB)
    k.e('v_lshlrev_b32 v%d, 4, v0' % (R + 16))
    for q in range(4):
        k.e('s_mov_b32 s48, %d' % (WS_MODP + q * 8192))
        k.e('buffer_load_dwordx4 %s, v%d, s[40:43], s48 offen sc1' % (vr(R + 4 * q, 4), R + 16))
    if between: between()
    k.e('s_cmp_lt_u32 s3, 4')
    k.e('s_cselect_b32 s49, 0, 1.0')
    k.e('v_add_u32 v%d, %d, v%d' % (R + 16, AUX_A, R + 16))
    k.e('s_waitcnt vmcnt(%d)' % nb)
    k.e(pk('add', R, R, R + 4)); k.e(pk('add', R + 2, R + 2, R + 6)); k.e(pk('add', R + 8, R + 8, R + 12)); k.e(pk('add', R + 10, R + 10, R + 14))
    k.e(pk('add', R, R, R + 8)); k.e(pk('add', R + 2, R + 2, R + 10))
    for d in range(2): round_bf16_pair(k, R + 2 * d, R + 2 * d + 1, R + 4)
    for q in range(4): k.e('v_add_f32 v%d, s49, v%d' % (R + q, R + q))
    for d in range(2): round_bf16_pair(k, R + 2 * d, R + 2 * d + 1, R + 4)
    k.e('ds_write_b128 v%d, %s' % (R + 16, vr(R, 4)))
    k.e('s_waitcnt lgkmcnt(0)')
    k.e('s_barrier')

def poll_back(k, lp):
    l = k.newlabel('pd')
    k.e('s_sub_u32 s101, s101, 1')
    k.e('s_nop 3')
    k.e('s_cbranch_vccz %s' % l)
    k.e('s_cmp_lg_u32 s101, 0')
    k.e('s_cbranch_scc1 %s' % lp)
    k.label(l)
def poll_init(k): k.e('s_mov_b32 s101, 0x100000')

def srd(k, d, what, off=0, size=None, soff=None):
    p = PTR[what]
    if what == 'ws': off += env('WSB', 0) * MB
    if size is None: size = SIZES[what]
    if off or soff:
        k.e('s_add_u32 s%d, s%d, 0x%x' % (d, p, off))
        k.e('s_addc_u32 s%d, s%d, 0' % (d + 1, p + 1))
        if soff:
            k.e('s_add_u32 s%d, s%d, %s' % (d, d, soff))
            k.e('s_addc_u32 s%d, s%d, 0' % (d + 1, d + 1))
        k.e('s_and_b32 s%d, s%d, 0xffff' % (d + 1, d + 1))
    else:
        k.e('s_mov_b32 s%d, s%d' % (d, p))
        k.e('s_and_b32 s%d, s%d, 0xffff' % (d + 1, p + 1))
    k.e('s_mov_b32 s%d, 0x%x' % (d + 2, size))
    k.e('s_mov_b32 s%d, 0x20000' % (d + 3))

def finish(k):
    endpgm(k)

XT = env('XT', 0)
AOWN = env('AOWN', 3)
AT2 = env('AT2', 1)
MP0 = env('MP0', 1)
CPF = env('CPF', 1)
def code_pf(k, start, end, maxbytes, lane=1, vt=6, vd=7, sb=84):
    if not CPF: return 0
    h = k.newlabel('pc')
    k.e('s_getpc_b64 s[%d:%d]' % (sb, sb + 1))
    k.label(h)
    k.e('s_add_u32 s%d, s%d, %s-%s' % (sb, sb, start, h))
    k.e('s_addc_u32 s%d, s%d, 0' % (sb + 1, sb + 1))
    n = (maxbytes + 8191) // 8192
    for i in range(n):
        k.e('v_lshlrev_b32 v%d, 7, v%d' % (vt, lane))
        if i: k.e('v_add_u32 v%d, %d, v%d' % (vt, i * 8192, vt))
        k.e('v_min_u32 v%d, %s-%s-4, v%d' % (vt, end, start, vt))
        k.e('global_load_dword v%d, v%d, s[%d:%d]' % (vd, vt, sb, sb + 1))
    return n

def vr(b, n): return 'v[%d:%d]' % (b, b + n - 1)
def sr(b): return 's[%d:%d]' % (b, b + 3)

def round_bf16_pair(k, a, b, tmp):
    k.e('v_cvt_pk_bf16_f32 v%d, v%d, v%d' % (tmp, a, b))
    k.e('v_lshlrev_b32 v%d, 16, v%d' % (a, tmp))
    k.e('v_and_b32 v%d, 0xffff0000, v%d' % (b, tmp))

def red_lanes(k, regs, tmp, rors=(8,)):
    for ro in rors:
        k.e('s_nop 1')
        for r in regs:
            k.e('v_add_f32_dpp v%d, v%d, v%d row_ror:%d row_mask:0xf bank_mask:0xf' % (r, r, r, ro))
    for op in ('v_permlane16_swap_b32', 'v_permlane32_swap_b32'):
        for r, t in zip(regs, tmp): k.e('v_mov_b32 v%d, v%d' % (t, r))
        k.e('s_nop 1')
        for r, t in zip(regs, tmp): k.e('%s v%d, v%d' % (op, r, t))
        k.e('s_nop 1')
        for r, t in zip(regs, tmp): k.e('v_add_f32 v%d, v%d, v%d' % (r, r, t))

def unpack(k, lo, hi, src):
    k.e('v_lshlrev_b32 v%d, 16, v%d' % (lo, src))
    k.e('v_and_b32 v%d, 0xffff0000, v%d' % (hi, src))

def k_p0(k, c):
    phase_begin(k, c)
    KIDX[0] += 1
    assert c.first and not c.last
    lst = 'L_p0_stats'
    def rest_issue():
        srd(k, 52, 'w_mod'); srd(k, 56, 'c')
        k.e("""
        v_lshrrev_b32 v164, 3, v0
        v_lshlrev_b32 v165, 4, v164        ; c byte offset = g*16
        v_mul_u32_u24 v164, %d, v164
        v_and_b32 v166, 7, v0
        v_lshl_add_u32 v164, v166, 4, v164
        s_lshr_b32 s60, s30, 1             ; col block
        s_and_b32 s61, s30, 1              ; k half
        s_lshl_b32 s62, s60, 7
        s_mul_i32 s63, s61, %d
        s_add_u32 s62, s62, s63
        s_add_u32 s62, s62, 4096
        s_lshl_b32 s63, s61, 10
        buffer_load_dwordx4 v[128:131], v165, s[56:59], s63 offen
        """ % (8 * 12288, 512 * 12288))
        if env('PWAIT', 2) == 2: k.e('s_waitcnt vmcnt(0)')
        for j in range(8):
            k.e('buffer_load_dwordx4 %s, v164, s[52:55], s62 offen' % vr(132 + 4 * j, 4))
            k.e('s_add_u32 s62, s62, 12288')
        k.need(192, 0)
    def rest_compute(newer):
        S_ = 168; T_ = 176; A_ = 184
        k.e('s_waitcnt vmcnt(%d)' % (8 + newer))
        for j in range(4): unpack(k, S_ + 2 * j, S_ + 1 + 2 * j, 128 + j)
        for j in range(8): k.e('v_mul_f32 v%d, %s, v%d' % (T_ + j, hx(-LOG2E), S_ + j))
        for j in range(8): k.e('v_exp_f32 v%d, v%d' % (T_ + j, T_ + j))
        for j in range(8): k.e('v_add_f32 v%d, 1.0, v%d' % (T_ + j, T_ + j))
        for j in range(8): k.e('v_rcp_f32 v%d, v%d' % (T_ + j, T_ + j))
        for j in range(8): k.e('v_mul_f32 v%d, v%d, v%d' % (S_ + j, S_ + j, T_ + j))
        for j in range(4): round_bf16_pair(k, S_ + 2 * j, S_ + 1 + 2 * j, T_)
        for j in range(8):
            k.e('s_waitcnt vmcnt(%d)' % (7 - j + newer))
            for d in range(4):
                unpack(k, T_, T_ + 1, 132 + 4 * j + d)
                op = 'v_mul_f32' if j == 0 else 'v_fmac_f32'
                k.e('%s v%d, v%d, v%d' % (op, A_ + 2 * d, T_, S_ + j))
                k.e('%s v%d, v%d, v%d' % (op, A_ + 1 + 2 * d, T_ + 1, S_ + j))
        k.e('s_nop 1')
        for e in range(4): k.e('v_permlane32_swap_b32 v%d, v%d' % (A_ + e, A_ + 4 + e))
        k.e('s_nop 1')
        for e in range(4): k.e('v_add_f32 v%d, v%d, v%d' % (A_ + e, A_ + e, A_ + 4 + e))
        k.e('s_nop 1')
        for e in range(2): k.e('v_permlane16_swap_b32 v%d, v%d' % (A_ + e, A_ + 2 + e))
        k.e('s_nop 1')
        for e in range(2): k.e('v_add_f32 v%d, v%d, v%d' % (A_ + e, A_ + e, A_ + 2 + e))
        k.e('s_nop 1')
        for e in range(2): k.e('v_add_f32_dpp v%d, v%d, v%d row_ror:8 row_mask:0xf bank_mask:0xf' % (A_ + e, A_ + e, A_ + e))
        lw2 = k.newlabel('nw')
        k.e("""
        v_lshlrev_b32 v164, 5, v166
        v_lshrrev_b32 v165, 4, v1
        v_lshl_add_u32 v164, v165, 3, v164
        s_lshl_b32 s62, s3, 8
        s_add_u32 s62, s62, %d
        v_add_u32 v164, s62, v164
        ds_write_b64 v164, v[184:185]
        s_waitcnt lgkmcnt(0)
        s_barrier
        s_cmp_lg_u32 s3, 7
        s_cbranch_scc1 %s
        v_lshlrev_b32 v164, 2, v1
        v_add_u32 v165, %d, v164
        """ % (AUX_A + 8192, lw2, AUX_A + 8192))
        for w in range(8): k.e('ds_read_b32 v%d, v165 offset:%d' % (T_ + w, w * 256))
        k.e("""
        s_lshl_b32 s62, s60, 8
        s_lshl_b32 s63, s61, 14
        s_add_u32 s62, s62, s63
        s_add_u32 s62, s62, %d
        s_waitcnt lgkmcnt(0)
        """ % WS_MODQ)
        for w in range(0, 8, 2): k.e('v_add_f32 v%d, v%d, v%d' % (T_ + w, T_ + w, T_ + w + 1))
        k.e('v_add_f32 v%d, v%d, v%d' % (T_, T_, T_ + 2))
        k.e('v_add_f32 v%d, v%d, v%d' % (T_ + 4, T_ + 4, T_ + 6))
        k.e('v_add_f32 v%d, v%d, v%d' % (T_, T_, T_ + 4))
        k.e('buffer_store_dword v%d, v164, s[40:43], s62 offen%s' % (T_, WT))
        k.label(lw2)
    k.e("""
    v_and_b32 v1, 63, v0               ; lane
    v_lshlrev_b32 v6, 4, v0            ; tid*16
    s_lshr_b32 s30, s2, 4
    s_lshl_b32 s30, s30, 3
    s_and_b32 s47, s2, 7
    s_add_u32 s30, s30, s47            ; index within role (0..127)
    s_bitcmp1_b32 s2, 3
    s_cbranch_scc1 %s
    s_lshr_b32 s48, s30, 2             ; col block
    s_and_b32 s49, s30, 3              ; k quarter
    v_lshrrev_b32 v2, 3, v0            ; row group (0..63): rows 4g..4g+3 (+256*q)
    v_and_b32 v3, 7, v0                ; chunk
    v_lshlrev_b32 v4, 3, v2            ; c byte offset = g*8
    v_mul_u32_u24 v5, %d, v2
    v_lshl_add_u32 v5, v3, 4, v5
    s_lshl_b32 s31, s48, 7
    s_mul_i32 s44, s49, %d
    s_add_u32 s31, s31, s44
    s_lshl_b32 s45, s49, 9
    s_waitcnt lgkmcnt(0)
    s_load_dwordx2 s[84:85], s[28:29], 0x%x
    """ % (lst, 4 * 12288, 256 * 12288, WS_EPOCH + env('WSB', 0) * MB))
    mark(k, 0)
    srd(k, 36, 'w_mod'); srd(k, 32, 'c')
    CL = env('CLAST', 0)
    if not CL: k.e('buffer_load_dwordx2 v[8:9], v4, s[32:35], s45 offen')
    for j in range(4):
        k.e('buffer_load_dwordx4 %s, v5, s[36:39], s31 offen' % vr(12 + 4 * j, 4))
        k.e('s_add_u32 s31, s31, 12288')
    if CL: k.e('buffer_load_dwordx2 v[8:9], v4, s[32:35], s45 offen')
    lnc = k.newlabel('nc')
    def resets(R, wait):
        lnr = k.newlabel('nr')
        k.e('s_cmp_gt_u32 s3, 3')
        k.e('s_cbranch_scc1 %s' % lnr)
        for r in range(4): k.e('v_mov_b32 v%d, -1' % (R + r))
        for off, size in (((WS_G2, 512 * KB) if W22 else (WS_G, 256 * KB)), (WS_MOD, 64 * KB)) + (() if MP0 else ((WS_MODQ, 64 * KB),)):
            per = size // 128
            srd(k, 52, 'ws', off, size)
            k.e('s_mul_i32 s50, s30, %d' % per)
            k.e('v_cmp_gt_u32 vcc, %d, v0' % (per // 16))
            k.e('s_and_saveexec_b64 s[46:47], vcc')
            k.e('buffer_store_dwordx4 %s, v6, s[52:55], s50 offen%s' % (vr(R, 4), WT))
            k.e('s_mov_b64 exec, s[46:47]')
        if wait: k.e('s_waitcnt vmcnt(0)')
        k.label(lnr)
    RLN = env('RLN', 1)
    if not RLN: resets(40, True)
    srd(k, 40, 'ws', 0, 256 * KB)
    if CL == 2:
        k.e('s_waitcnt vmcnt(1)'); mark(k, 0)
    k.e('s_waitcnt vmcnt(%d)' % (0 if CL else 4))
    mark(k, 1)
    for j in range(2): unpack(k, 44 + 2 * j, 45 + 2 * j, 8 + j)
    for j in range(4): k.e('v_mul_f32 v%d, %s, v%d' % (52 + j, hx(-LOG2E), 44 + j))
    for j in range(4): k.e('v_exp_f32 v%d, v%d' % (52 + j, 52 + j))
    for j in range(4): k.e('v_add_f32 v%d, 1.0, v%d' % (52 + j, 52 + j))
    for j in range(4): k.e('v_rcp_f32 v%d, v%d' % (52 + j, 52 + j))
    for j in range(4): k.e('v_mul_f32 v%d, v%d, v%d' % (44 + j, 44 + j, 52 + j))
    for j in range(2): round_bf16_pair(k, 44 + 2 * j, 45 + 2 * j, 52)
    lns = k.newlabel('nosc')
    if not MP0: k.e("""
    s_cmp_lg_u32 s48, 0
    s_cbranch_scc1 %s
    v_lshlrev_b32 v7, 4, v2
    s_lshl_b32 s44, s49, 10
    s_add_u32 s44, s44, %d
    buffer_store_dwordx4 v[44:47], v7, s[40:43], s44 offen%s
    s_waitcnt vmcnt(0)
    """ % (lns, WS_SC, WT))
    k.label(lns)
    A = 56
    for j in range(4):
        k.e('s_waitcnt vmcnt(%d)' % (3 - j))
        for d in range(4):
            unpack(k, 52, 53, 12 + 4 * j + d)
            op = 'v_mul_f32' if j == 0 else 'v_fmac_f32'
            k.e('%s v%d, v52, v%d' % (op, A + 2 * d, 44 + j))
            k.e('%s v%d, v53, v%d' % (op, A + 1 + 2 * d, 44 + j))
    mark(k, 2)
    if MP0 == 4: rest_issue()
    k.e('s_nop 1')
    for e in range(4): k.e('v_permlane32_swap_b32 v%d, v%d' % (A + e, A + 4 + e))
    k.e('s_nop 1')
    for e in range(4): k.e('v_add_f32 v%d, v%d, v%d' % (A + e, A + e, A + 4 + e))
    k.e('s_nop 1')
    for e in range(2): k.e('v_permlane16_swap_b32 v%d, v%d' % (A + e, A + 2 + e))
    k.e('s_nop 1')
    for e in range(2): k.e('v_add_f32 v%d, v%d, v%d' % (A + e, A + e, A + 2 + e))
    k.e('s_nop 1')
    for e in range(2): k.e('v_add_f32_dpp v%d, v%d, v%d row_ror:8 row_mask:0xf bank_mask:0xf' % (A + e, A + e, A + e))
    lw = k.newlabel('nw')
    k.e("""
    v_lshlrev_b32 v2, 5, v3
    v_lshrrev_b32 v7, 4, v1
    v_lshl_add_u32 v2, v7, 3, v2
    s_lshl_b32 s44, s3, 8
    s_add_u32 s44, s44, %d
    v_add_u32 v2, s44, v2
    ds_write_b64 v2, v[56:57]
    s_waitcnt lgkmcnt(0)
    s_add_u32 s84, s84, 1
    s_barrier
    s_cmp_lg_u32 s3, 0
    s_cbranch_scc1 %s
    v_lshlrev_b32 v2, 2, v1
    v_add_u32 v7, %d, v2
    """ % (AUX_A, lw, AUX_A))
    for w in range(8): k.e('ds_read_b32 v%d, v7 offset:%d' % (12 + w, w * 256))
    flag_prep(k)
    k.e("""
    s_lshl_b32 s31, s48, 8
    s_lshl_b32 s44, s49, 13
    s_add_u32 s31, s31, s44
    s_add_u32 s31, s31, %d
    s_lshl_b32 s100, s30, 7
    s_add_u32 s100, s100, %d
    s_waitcnt lgkmcnt(0)
    """ % (WS_MODP, FL_MOD * 32))
    for w in range(0, 8, 2): k.e('v_add_f32 v%d, v%d, v%d' % (12 + w, 12 + w, 13 + w))
    k.e('v_add_f32 v12, v12, v14')
    k.e('v_add_f32 v16, v16, v18')
    k.e('v_add_f32 v12, v12, v16')
    if TAGP:
        srd(k, 96, 'ws', WS_MODT, 64 * KB)
        k.e("""
        v_mov_b32 v14, s84
        v_mov_b32 v15, s85
        v_mov_b32_dpp v13, v12 quad_perm:[1,1,3,3] row_mask:0xf bank_mask:0xf
        v_lshlrev_b32 v2, 3, v1
        s_lshl_b32 s31, s48, 9
        s_lshl_b32 s44, s49, 14
        s_add_u32 s31, s31, s44
        s_mov_b32 exec_lo, 0x55555555
        s_mov_b32 exec_hi, 0x55555555
        buffer_store_dwordx4 v[12:15], v2, s[96:99], s31 offen sc1
        s_mov_b64 exec, -1
        """)
        if env('PWAIT', 2): k.e('s_waitcnt vmcnt(0)')
    else:
        k.e('buffer_store_dword v12, v2, s[40:43], s31 offen' + WT)
        k.e('s_waitcnt vmcnt(0)')
        flag_store(k, 's100')
    k.label(lw)
    k.e('s_barrier')
    mark(k, 3)
    if env('TLBW', 0):
        lt = k.newlabel('tl')
        for w, (nm, sz) in enumerate((('ws', 64 * MB), ('w_mod', None), ('w_sp', None), ('w_in', None), ('w_out', None), ('wo', None), ('out', None), ('x', None))):
            ln = k.newlabel('tn')
            k.e('s_cmp_lg_u32 s3, %d' % w)
            k.e('s_cbranch_scc1 %s' % ln)
            srd(k, 36, nm, 0, sz)
            k.e('s_branch %s' % lt)
            k.label(ln)
        k.label(lt)
        k.e('s_lshr_b32 s51, s30, 3')
        k.e('s_lshl_b32 s51, s51, 22')
        k.e('s_add_u32 s51, s51, %d' % (65536 - 128))
        k.e('v_lshlrev_b32 v36, 16, v1')
        k.e('buffer_load_dword v37, v36, s[36:39], s51 offen')
    srd(k, 36, 'wqkv')
    k.e('s_lshl_b32 s51, s30, 13')
    k.e('s_add_u32 s51, s51, %d' % (env('NPFE', 0) * MB))
    for p in range(env('NPFQ', 0) - env('NPFE', 0)):
        k.e('buffer_load_dwordx4 v[8:11], v6, s[36:39], s51 offen')
        k.e('s_add_u32 s51, s51, %d' % MB)
    if CPF:
        h = k.newlabel('pc')
        k.e('s_cmp_lg_u32 s3, 2')
        k.e('s_cbranch_scc1 %s' % lnc)
        k.e('s_cmp_ge_u32 s30, 64')
        k.e('s_cbranch_scc1 %s' % lnc)
        k.e('s_getpc_b64 s[64:65]')
        k.label(h)
        k.e('s_add_u32 s64, s64, L_qkv_entry-%s' % h)
        k.e('s_addc_u32 s65, s65, 0')
        k.e('s_lshr_b32 s44, s30, 3')
        k.e('s_lshl_b32 s44, s44, 13')
        k.e('v_lshl_add_u32 v38, v1, 7, s44')
        k.e('v_min_u32 v38, L_text_end-L_qkv_entry-4, v38')
        k.e('global_load_dword v39, v38, s[64:65]')
        k.label(lnc)
    if MP0 == 1:
        rest_issue(); rest_compute(0)
    if MP0 == 4: rest_compute(0)
    k.e('s_waitcnt vmcnt(0)')
    endpgm(k)
    k.label(lst)
    k.e("""
    s_lshl_b32 s44, s3, 12
    v_lshl_add_u32 v3, v1, 4, s44      ; wave*4096 + lane*16
    s_lshl_b32 s31, s30, 15            ; 16 rows * 2048
    s_waitcnt lgkmcnt(0)
    s_load_dwordx2 s[84:85], s[28:29], 0x%x
    """ % (WS_EPOCH + env('WSB', 0) * MB))
    srd(k, 32, 'x')
    if env('XDELAY', 0): k.e('s_waitcnt lgkmcnt(0)')
    for q in range(4): k.e('buffer_load_dwordx4 %s, v3, s[32:35], s31 offen offset:%d' % (vr(8 + 4 * q, 4), q * 1024))
    if MP0 == 2: rest_issue()
    NE = env('NPFE', 0)
    if NE:
        srd(k, 36, 'wqkv')
        k.e('s_lshl_b32 s51, s30, 13')
        for p in range(NE):
            k.e('buffer_load_dwordx4 v[128:131], v6, s[36:39], s51 offen')
            k.e('s_add_u32 s51, s51, %d' % MB)
    srd(k, 36, 'ws', WS_H, 4 * MB); srd(k, 40, 'ws', 0, 256 * KB)
    if env('HTOUCH', 0):
        srd(k, 96, 'ws', WS_FL, FLSZ)
        k.e('v_mov_b32 v126, 0')
        k.e('s_mov_b64 exec, 1')
        k.e('buffer_load_dword v127, v126, s[36:39], s31 offen')
        k.e('buffer_load_dword v127, v126, s[96:99], 0 offen offset:64')
        k.e('s_mov_b64 exec, -1')
        NE += 2
    set_flag(k, 's_lshr_b32 s100, s30, 3\ns_lshl_b32 s100, s100, 8\ns_and_b32 s101, s30, 7\ns_lshl_b32 s101, s101, 2\ns_add_u32 s100, s100, s101\ns_add_u32 s100, s100, %d' % FL_LN1)
    mark(k, 0)
    k.e('s_waitcnt vmcnt(%d) lgkmcnt(0)' % (NE + (9 if MP0 == 2 else 0)))
    k.e('s_add_u32 s84, s84, 1')
    if MP0 == 3: rest_issue()
    X = 24
    for d in range(16): unpack(k, X + 2 * d, X + 2 * d + 1, 8 + d)
    MU = [56, 58]; VA = [60, 62]
    for r in range(2):
        k.e(pk('add', 8 + 2 * r, X + 16 * r, X + 16 * r + 2))
        for e in range(4, 16, 2): k.e(pk('add', 8 + 2 * r, 8 + 2 * r, X + 16 * r + e))
        k.e('v_add_f32 v%d, v%d, v%d' % (MU[r], 8 + 2 * r, 9 + 2 * r))
    red_lanes(k, MU, [8, 9], rors=(8, 4, 2, 1))
    for r in range(2):
        k.e('v_mul_f32 v%d, %s, v%d' % (MU[r], hx(-1.0 / 1024), MU[r]))
        for e in range(0, 16, 2):
            k.e(pk('add', 8, X + 16 * r + e, (MU[r],)))
            k.e(pk('mul', 10, 8, 8) if e == 0 else pk('fma', 10, 8, 8, 10))
        k.e('v_add_f32 v%d, v10, v11' % VA[r])
    red_lanes(k, VA, [8, 9], rors=(8, 4, 2, 1))
    for r in range(2):
        k.e('v_mul_f32 v%d, %s, v%d' % (VA[r], hx(1.0 / 1024), VA[r]))
        round_bf16_pair(k, MU[r], VA[r], 8)
        k.e('v_add_f32 v%d, %s, v%d' % (VA[r], hx(1e-5), VA[r]))
    round_bf16_pair(k, VA[0], VA[1], 8)
    for r in range(2): k.e('v_sqrt_f32 v%d, v%d' % (VA[r], VA[r]))
    k.e('s_nop 0')
    round_bf16_pair(k, VA[0], VA[1], 8)
    for r in range(2): k.e('v_rcp_f32 v%d, v%d' % (VA[r], VA[r]))
    def tag_setup():
        srd(k, 96, 'ws', WS_MODT, 64 * KB)
        k.e('v_lshlrev_b32 v81, 4, v1')
        k.e('s_lshl_b32 s100, s3, 11')
        k.e('v_add_u32 v81, s100, v81')
        k.e('v_lshlrev_b32 v80, 3, v1')
        k.e('s_lshl_b32 s100, s3, 10')
        k.e('s_add_u32 s100, s100, %d' % AUX_A)
        k.e('v_add_u32 v80, s100, v80')
        k.e('s_mov_b32 s101, 0x100000')
    def tag_loads():
        for q in range(4):
            k.e('s_mov_b32 s56, %d' % (q * 16384))
            for hh in range(2): k.e('buffer_load_dwordx4 %s, v81, s[96:99], s56 offen offset:%d sc1' % (vr(96 + 8 * q + 4 * hh, 4), hh * 1024))
    ET = env('ET', 0)
    if ET == 1:
        if RLN: resets(132, False)
        tag_setup(); tag_loads()
    k.e("""
    v_lshrrev_b32 v5, 1, v1
    v_mul_u32_u24 v5, 544, v5          ; cb*2*272
    v_and_b32 v7, 1, v1
    v_lshl_add_u32 v5, v7, 3, v5
    s_lshl_b32 s44, s3, 5
    v_add_u32 v5, s44, v5
    """)
    for r in range(2):
        x = X + 16 * r; pin = 8 + 8 * r
        for d in range(8): k.e(pk('add', x + 2 * d, x + 2 * d, (MU[r],)))
        for d in range(8): round_bf16_pair(k, x + 2 * d, x + 2 * d + 1, pin + d)
        for d in range(8): k.e(pk('mul', x + 2 * d, x + 2 * d, (VA[r],)))
        for d in range(8): k.e('v_cvt_pk_bf16_f32 v%d, v%d, v%d' % (pin + d, x + 2 * d, x + 2 * d + 1))
        for q, o in enumerate((0, 272, 64 * 272, 65 * 272)):
            k.e('ds_write_b64 v5, %s offset:%d' % (vr(pin + 2 * q, 2), o + 16 * r))
    k.e("""
    v_lshrrev_b32 v5, 4, v0            ; gi (p=0)
    v_and_b32 v7, 15, v0               ; row
    v_mul_u32_u24 v2, 272, v5
    v_lshl_add_u32 v2, v7, 4, v2       ; granule lds address
    v_lshlrev_b32 v4, 9, v5
    v_lshl_add_u32 v4, v7, 4, v4       ; global offset
    v_lshrrev_b32 v3, 1, v5
    v_lshlrev_b32 v3, 6, v3
    v_and_b32 v5, 1, v5
    v_lshl_add_u32 v3, v5, 4, v3
    v_add_u32 v3, %d, v3               ; table address: cb*64 + h*16
    s_lshr_b32 s44, s30, 1
    s_lshl_b32 s44, s44, 16
    s_and_b32 s45, s30, 1
    s_lshl_b32 s45, s45, 8
    s_add_u32 s44, s44, s45
    s_mov_b32 s48, %d
    s_cmp_lt_u32 s3, 4
    s_cselect_b32 s49, 0, 1.0
    s_waitcnt lgkmcnt(0)
    """ % (AUX_A, WS_MODP))
    if MP0 in (2, 3): rest_compute(0)
    if RLN and ET != 1: resets(132, False)
    if ET == 2: tag_setup(); tag_loads()
    mark(k, 1)
    if XT:
        srd(k, 36, 'ws', WS_N, 4 * MB)
        k.e('s_barrier')
        for p in range(4): k.e('ds_read_b128 %s, v2 offset:%d' % (vr(8 + 4 * p, 4), p * 32 * 272))
        for p in range(4):
            k.e('s_waitcnt lgkmcnt(%d)' % (3 - p))
            k.e('buffer_store_dwordx4 %s, v4, s[36:39], s44 offen%s' % (vr(8 + 4 * p, 4), WT))
            k.e('s_add_u32 s44, s44, 16384')
        mark(k, 3)
        signal(k, 'S')
        finish(k)
        k.need(128, AUX_A + 8192)
        return
    X = 24
    k.e('s_barrier')
    for p in range(4): k.e('ds_read_b128 %s, v2 offset:%d' % (vr(8 + 4 * p, 4), p * 32 * 272))
    for p in range(4):
        k.e('s_waitcnt lgkmcnt(%d)' % (3 - p))
        for d in range(4): unpack(k, X + 8 * p + 2 * d, X + 8 * p + 2 * d + 1, 8 + 4 * p + d)
    if TAGP:
        lp = k.newlabel('wf'); le = k.newlabel('we')
        if ET:
            k.e('s_branch %sc' % lp)
        else: tag_setup()
        k.label(lp)
        tag_loads()
        k.label(lp + 'c')
        k.e('s_mov_b64 s[50:51], 0')
        for n in range(8):
            k.e('s_waitcnt vmcnt(%d)' % (7 - n))
            k.e('v_cmp_ne_u64 vcc, s[84:85], %s' % vr(98 + 4 * n, 2))
            k.e('s_or_b64 s[50:51], s[50:51], vcc')
        k.e('s_cbranch_scc0 %s' % le)
        k.e('s_sub_u32 s101, s101, 1')
        k.e('s_sleep %d' % env('P0SLEEP', 1))
        k.e('s_cmp_lg_u32 s101, 0')
        k.e('s_cbranch_scc1 %s' % lp)
        k.label(le)
        mark(k, 2)
        for hh in range(2):
            b = 96 + 4 * hh
            k.e(pk('add', b, b, b + 8)); k.e(pk('add', b + 16, b + 16, b + 24)); k.e(pk('add', 64 + 2 * hh, b, b + 16))
    else:
        srd(k, 96, 'ws', WS_FL, FLSZ)
        lp = k.newlabel('wf'); le = k.newlabel('we')
        k.e("""
        s_lshl_b32 s100, s3, 11
        s_add_u32 s100, s100, %d
        v_lshlrev_b32 v%d, 7, v1
        v_add_u32 v80, %d, v6
        s_mov_b32 s101, 0x100000
        s_mov_b64 exec, 0xffff
        %s:
        buffer_load_dwordx2 %s, v%d, s[96:99], s100 offen sc1
        s_waitcnt vmcnt(0)
        v_cmp_ne_u64 vcc, s[84:85], %s
        s_sub_u32 s101, s101, 1
        s_nop 3
        s_cbranch_vccz %s
        s_mov_b64 exec, vcc
        s_sleep %d
        s_cmp_lg_u32 s101, 0
        s_cbranch_scc1 %s
        %s:
        s_mov_b64 exec, -1
        """ % (FL_MOD * 32, FV + 2, AUX_A, lp, vr(FV, 2), FV + 2, vr(FV, 2), le, env('P0SLEEP', 1), lp, le))
        mark(k, 2)
        for q in range(4):
            k.e('buffer_load_dwordx4 %s, v6, s[40:43], s48 offen sc1' % vr(64 + 4 * q, 4))
            k.e('s_add_u32 s48, s48, 8192')
        k.e('s_waitcnt vmcnt(0)')
        k.e(pk('add', 64, 64, 68)); k.e(pk('add', 66, 66, 70)); k.e(pk('add', 72, 72, 76)); k.e(pk('add', 74, 74, 78))
        k.e(pk('add', 64, 64, 72)); k.e(pk('add', 66, 66, 74))
    for d in range(2): round_bf16_pair(k, 64 + 2 * d, 65 + 2 * d, 68)
    for q in range(4): k.e('v_add_f32 v%d, s49, v%d' % (64 + q, 64 + q))
    for d in range(2): round_bf16_pair(k, 64 + 2 * d, 65 + 2 * d, 68)
    if TAGP:
        k.e('ds_write_b64 v80, v[64:65]')
        k.e('ds_write_b64 v80, v[66:67] offset:512')
    else: k.e('ds_write_b128 v80, v[64:67]')
    k.e('s_waitcnt lgkmcnt(0)')
    k.e('s_barrier')
    SC = 64; SH = 96
    for p in range(4):
        for sub in range(2):
            k.e('ds_read_b128 %s, v3 offset:%d' % (vr(SC + 8 * p + 4 * sub, 4), 4096 + p * 1024 + sub * 32))
            k.e('ds_read_b128 %s, v3 offset:%d' % (vr(SH + 8 * p + 4 * sub, 4), p * 1024 + sub * 32))
    for p in range(4):
        pin = 8 + 4 * p; x = X + 8 * p
        k.e('s_waitcnt lgkmcnt(%d)' % (12 - 4 * p))
        if env('NORND', 0):
            for d in range(4): k.e(pk('fma', x + 2 * d, x + 2 * d, SC + 8 * p + 2 * d, SH + 8 * p + 2 * d))
        else:
            for d in range(4): k.e(pk('mul', x + 2 * d, x + 2 * d, SC + 8 * p + 2 * d))
            for d in range(4): round_bf16_pair(k, x + 2 * d, x + 2 * d + 1, pin + d)
            for d in range(4): k.e(pk('add', x + 2 * d, x + 2 * d, SH + 8 * p + 2 * d))
        for d in range(4): k.e('v_cvt_pk_bf16_f32 v%d, v%d, v%d' % (pin + d, x + 2 * d, x + 2 * d + 1))
        k.e('buffer_store_dwordx4 %s, v4, s[36:39], s44 offen%s' % (vr(pin, 4), WT))
        k.e('s_add_u32 s44, s44, 16384')
    mark(k, 3)
    signal(k, 'S')
    finish(k)
    k.need(128, AUX_A + 10240)

def log2(n):
    l = n.bit_length() - 1
    assert 1 << l == n
    return l
class G: pass

def k_gemm(k, c, GM, GN, bm_log2, xm_log2, bn, TM, TN, WM, WN, K, KS, NS, X, Y, pre, pre2, epi, swap=(), aux=None, auxsz=0, auxbase=None,
           pf=None, aux_end=None, side=None, wait=None, sig=None, dep='X', GU=1, RWD=1, post=None, frbase=None, selfsig=False, RR=0, early=None, JG=1, lazyfix=False, SOFT=0, own=None, ownlim=None, altmap=False, prelast=None, DEFER=0, dcols=None, auxpre=None, mid=None, accmap=None, cinit=False):
    g = G()
    name = c.name
    xt = X[0] == 'xt'
    M16 = name in os.environ.get('M16', 'qkv,wo,win,wsp,wout').split(',')
    if xt: X = ('xf',) + X[1:]
    ROLL = env('ROLL_' + name, env('ROLL', 0 if name == 'qkv' else 1))
    LAG = 2 if ROLL else 1
    NS = env('NS_' + name, NS + LAG - 1)
    mb = TM // WM // 32; nb = TN // WN // 32
    S = KS // 16
    xb = TM * KS * 2; yb = TN * KS * 2; STAGE = xb + yb
    nst = K // KS
    solo = c.first and c.last
    g.k = k; g.mb = mb; g.nb = nb; g.TM = TM; g.TN = TN; g.AUX = NS * STAGE if solo or auxbase is None else auxbase
    assert NS * STAGE <= g.AUX
    phase_begin(k, c)
    k.e('''
    v_and_b32 v1, 63, v0               ; lane
    s_mov_b32 s46, s3
    s_and_b32 s47, s2, 7               ; xcd
    s_lshr_b32 s48, s2, 3              ; idx
    s_and_b32 s30, s47, %d
    s_lshl_b32 s30, s30, %d
    s_and_b32 s49, s48, %d
    s_add_u32 s30, s30, s49            ; tm
    s_lshr_b32 s31, s47, %d
    s_mul_i32 s31, s31, %d
    s_lshr_b32 s49, s48, %d
    s_add_u32 s31, s31, s49            ; tn
    ''' % ((1 << xm_log2) - 1, bm_log2, (1 << bm_log2) - 1, xm_log2, bn, bm_log2))
    if altmap:
        k.e('''
        s_and_b32 s30, s47, 3
        s_lshl_b32 s30, s30, 3
        s_and_b32 s49, s48, 3
        s_lshl_b32 s49, s49, 1
        s_add_u32 s30, s30, s49
        s_bfe_u32 s49, s48, 0x10002
        s_add_u32 s30, s30, s49
        ''')
    if env('MAP_' + name, 0):
        k.e('''
        s_lshr_b32 s31, s47, 1
        s_mul_i32 s31, s31, 28
        s_add_u32 s31, s31, s48
        s_and_b32 s30, s47, 1
        s_lshl_b32 s30, s30, 3
        s_and_b32 s49, s31, 7
        s_add_u32 s30, s30, s49
        s_lshr_b32 s31, s31, 3
        ''')
    lcomp = 'L_%s_comp' % name
    set_flag(k, sig)
    if pf or side:
        k.e('s_cmp_ge_u32 s2, %d' % (GM * GN))
        k.e('s_cbranch_scc1 L_%s_pf' % name)
    k.e('s_cmp_ge_u32 s46, 4')
    k.e('s_cbranch_scc1 %s' % lcomp)
    nx = xb // 1024 // 4; ny = yb // 1024 // 4
    assert nx * 4096 == xb and ny * 4096 == yb
    VX = 8; VY = VX + nx
    g.LV = VY + ny
    if X[0] == 'xf':
        C = X[2]; ncb = C // 16
        assert S % nx == 0 or nx % S == 0
        k.e('s_mul_i32 s50, s30, %d' % (TM // 32 * ncb * 1024))
        k.e('s_mul_i32 s51, s46, %d' % nx)
        k.e('s_lshr_b32 s52, s51, %d' % log2(S))
        k.e('s_and_b32 s51, s51, %d' % (S - 1))
        k.e('s_mul_i32 s52, s52, %d' % (ncb * 1024))
        k.e('s_lshl_b32 s51, s51, 10')
        k.e('s_add_u32 s50, s50, s52')
        k.e('s_add_u32 s50, s50, s51')
        k.e('v_lshl_add_u32 v%d, v1, 4, s50' % VX)
        for j in range(1, nx):
            k.e('v_add_u32 v%d, %d, v%d' % (VX + j, (j // S) * ncb * 1024 + (j % S) * 1024, VX))
        xadv = S * 1024
    else:
        ld = X[2]
        assert nx % 2 == 0
        k.e('s_mul_i32 s50, s30, %d' % (TM * ld))
        k.e('s_mul_i32 s51, s46, %d' % (nx * 8 * ld))
        k.e('s_add_u32 s50, s50, s51')
        k.e('v_lshrrev_b32 v2, 3, v1')
        k.e('v_lshl_add_u32 v2, v2, %d, s50' % log2(ld))
        k.e('v_and_b32 v3, 7, v1')
        k.e('v_lshrrev_b32 v4, 4, v1')
        k.e('v_xor_b32 v5, v4, v3')
        k.e('v_lshl_add_u32 v%d, v5, 4, v2' % VX)
        k.e('v_xor_b32 v5, 64, v%d' % VX)
        k.e('v_add_u32 v%d, %d, v5' % (VX + 1, 8 * ld))
        for j in range(2, nx):
            k.e('v_add_u32 v%d, %d, v%d' % (VX + j, (j - j % 2) * 8 * ld, VX + j % 2))
        xadv = KS * 2
    k.e('''
    v_lshrrev_b32 v2, 4, v1            ; u
    v_bfe_u32 v3, v1, 2, 2             ; (i>>2)&3
    v_and_b32 v4, 3, v1                ; i&3
    ''')
    if Y[0] == 'w':
        ld = Y[2]
        NP = TN // 64
        assert ny % NP == 0
        if M16:
            k.e('v_and_b32 v5, 2, v2')
            k.e('v_xor_b32 v4, v4, v5')
        k.e('v_lshrrev_b32 v5, 1, v2')
        k.e('v_lshl_add_u32 v5, v5, 2, v3')
        k.e('v_mul_u32_u24 v5, %d, v5' % ld)
        k.e('v_and_b32 v6, 1, v2')
        k.e('v_lshl_add_u32 v5, v6, 6, v5')
        k.e('v_lshl_add_u32 v5, v4, 4, v5')
        if Y[3] == 'qkv': tstride, segs = 128, [0, 2048, 4096]
        elif Y[3]: tstride, segs = Y[3]
        else: tstride, segs = TN * 2, [p * 128 for p in range(NP)]
        k.e('s_mul_i32 s50, s46, %d' % (ny // NP * 8 * ld))
        k.e('s_mul_i32 s51, s31, %d' % tstride)
        k.e('s_add_u32 s50, s50, s51')
        k.e('v_add_u32 v5, s50, v5')
        for j in range(ny):
            k.e('v_add_u32 v%d, %d, v5' % (VY + j, (j // NP) * 8 * ld + segs[j % NP]))
        yadv = KS * ld
    else:
        C = Y[2]; ncb = C // 16
        NB = TN // 32
        assert ny == NB and S == 4
        if M16:
            k.e('v_and_b32 v5, 2, v2')
            k.e('v_xor_b32 v3, v3, v5')
        k.e('v_lshl_add_u32 v5, v2, 2, v4')
        k.e('v_lshlrev_b32 v5, 4, v5')
        k.e('v_lshl_add_u32 v5, v3, 9, v5')
        k.e('s_lshr_b32 s50, s46, 1')
        k.e('s_mul_i32 s50, s50, %d' % (ncb * 1024))
        k.e('s_and_b32 s51, s46, 1')
        k.e('s_lshl_b32 s51, s51, 8')
        k.e('s_add_u32 s50, s50, s51')
        k.e('s_mul_i32 s51, s31, %d' % (TN // 16 * 1024))
        k.e('s_add_u32 s50, s50, s51')
        k.e('v_add_u32 v%d, s50, v5' % VY)
        for j in range(1, ny):
            k.e('v_add_u32 v%d, %d, v%d' % (VY + j, j * 2048, VY))
        yadv = 2 * ncb * 1024
    k.e('s_mul_i32 s55, s46, %d' % (nx * 1024))
    k.e('s_mul_i32 s56, s46, %d' % (ny * 1024))
    k.e('s_add_u32 s56, s56, %d' % xb)
    per = nx + ny
    assert per * NS <= 55 and nst >= 2 * NS
    k.e('s_waitcnt lgkmcnt(0)')
    mark(k, 0)
    if Y[0] == 'w': srd(k, 36, Y[1])
    else: srd(k, 36, 'ws', Y[1], 2048 * Y[2] * 2)
    if X[0] == 'xf': srd(k, 32, 'ws', X[1], 2048 * X[2] * 2)
    else: srd(k, 32, X[1])
    xfl = ' sc1' if X[0] == 'xf' else ''
    yfl = ' sc1' if Y[0] == 'z' else ''
    ntf = os.environ.get('NT_' + name, os.environ.get('NT', ''))
    if 'X' in ntf: xfl += ' nt'
    if 'Y' in ntf: yfl += ' nt'
    ownlds = name == 'wsp' and ZOWN and c.prev == 'win'
    OWN = own if (own and not c.first and (OWNF(name) or ownlds)) else None
    RW = env('RW_' + name, min(RWD, 2) if OWN else RWD); RC = env('RC_' + name, 1)
    assert nst % RW == 0
    if RW > 1:
        k.e('s_mul_i32 s54, s31, %d' % RC)
        k.e('s_add_u32 s54, s54, s30')
    if OWN:
        assert RW <= 2
        k.e(OWN)
        k.e('s_and_b32 s54, s54, 1' if RW > 1 else 's_mov_b32 s54, 0')
    out = []
    RB = 48
    dyn = [None]
    def soff(st, adv):
        if OWN:
            if st < 2: k.e('s_add_u32 s57, s68, %d' % st)
            else:
                k.e('s_cmp_le_u32 s68, %d' % (st - 2))
                k.e('s_cselect_b32 s57, %d, %d' % (st, st - 2))
                k.e('s_xor_b32 s57, s57, s54')
            k.e('s_mul_i32 s57, s57, %d' % adv)
        elif dyn[0] is not None:
            assert RW in (1, 2, 4)
            if RW > 1:
                k.e('s_add_u32 s57, s54, %d' % st)
                k.e('s_and_b32 s57, s57, %d' % (RW - 1))
                k.e('s_add_u32 s57, s57, s59')
                k.e('s_add_u32 s57, s57, %d' % (st // RW * RW))
            else: k.e('s_add_u32 s57, s59, %d' % st)
            k.e('s_mul_i32 s57, s57, %d' % adv)
        elif RW > 1:
            k.e('s_add_u32 s57, s54, %d' % st)
            k.e('s_and_b32 s57, s57, %d' % (RW - 1))
            k.e('s_mul_i32 s57, s57, %d' % adv)
            if st // RW: k.e('s_add_u32 s57, s57, %d' % (st // RW * RW * adv))
        else: k.e('s_mov_b32 s57, %d' % (st * adv))
    def opinfo(op): return (nx, 's55', VX, 32, xadv, xfl) if op == 'X' else (ny, 's56', VY, 36, yadv, yfl)
    def throttle(n):
        if len(out) + n > 60:
            k.e('s_waitcnt vmcnt(40)'); del out[:len(out) - 40]
    def iss(op, st):
        slot = (st % NS) * STAGE
        n, base, V, sd, adv, fl = opinfo(op)
        if op == ind and st in Rset:
            if ('r', st) in out:
                last = max(i for i, t in enumerate(out) if t == ('r', st))
                k.e('s_waitcnt vmcnt(%d)' % (len(out) - 1 - last)); del out[:last + 1]
            r0 = RB + Rset.index(st) * n * 4
            for j in range(n):
                o = slot + j * 1024
                k.e('ds_write_b128 v%d, %s offset:%d' % (44 + o // 65536, vr(r0 + 4 * j, 4), o % 65536))
            return
        throttle(n)
        soff(st, adv)
        for j in range(n):
            k.e('s_add_u32 m0, %s, %d' % (base, slot + j * 1024))
            k.e('s_nop 0')
            k.e('buffer_load_dwordx4 v%d, %s, s57 offen%s lds' % (V + j, sr(sd), fl))
            out.append(st)
    def issr(st):
        n, base, V, sd, adv, fl = opinfo(ind)
        throttle(n)
        soff(st, adv)
        r0 = RB + Rset.index(st) * n * 4
        for j in range(n):
            k.e('buffer_load_dwordx4 %s, v%d, %s, s57 offen' % (vr(r0 + 4 * j, 4), V + j, sr(sd)))
            out.append(('r', st))
    def wait_stage(st):
        lg = ' lgkmcnt(%d)' % min(15, opinfo(ind)[0] * len([r_ for r_ in Rset if st < r_ < st + NS - LAG])) if st in Rset else ''
        if st in out:
            last = max(i for i, t in enumerate(out) if t == st)
            k.e('s_waitcnt vmcnt(%d)%s' % (len(out) - 1 - last, lg))
            del out[:last + 1]
        elif lg: k.e('s_waitcnt' + lg)
    I0 = env('I0_' + name, 2)
    ind = 'Y' if dep == 'X' else 'X'
    fusedw = wait and not c.first and not env('WLATE_' + name, 0)
    R = env('RR_' + name, RR) if fusedw else 0
    Rset = sorted(set(NS + (2 * i + 1) * (nst - NS) // (2 * R) for i in range(R))) if R else []
    if Rset:
        assert RB + len(Rset) * opinfo(ind)[0] * 4 <= 256
        k.need(RB + len(Rset) * opinfo(ind)[0] * 4, 0)
        k.e('v_lshl_add_u32 v44, v1, 4, %s' % opinfo(ind)[1])
        k.e('v_add_u32 v45, 0x10000, v44')
    if xt:
        DX = env('DX', 4); NR = 64; TB = NR + DX * 8; TX = TB + 32
        assert nx == 2 and S == 2
        k.need(TX + 16, 0)
        k.e('v_lshl_add_u32 v44, v1, 4, s55')
        k.e('v_add_u32 v45, 0x10000, v44')
        k.e('v_lshrrev_b32 v46, 5, v1')
        k.e('v_lshlrev_b32 v46, 4, v46')
        k.e('v_add_u32 v46, %d, v46' % AUX_A)
        def ldn(st):
            soff(st, xadv)
            for j in range(2):
                k.e('buffer_load_dwordx4 %s, v%d, s[32:35], s57 offen sc1' % (vr(NR + (st % DX) * 8 + 4 * j, 4), VX + j))
                out.append(('n', st))
        TW = TX + 16
        k.need(TW + 8, 0)
        def tabrd(st):
            soff(st, 128)
            k.e('v_add_u32 v47, s57, v46')
            for j in range(2):
                for sub in range(2):
                    k.e('ds_read_b128 %s, v47 offset:%d' % (vr(TB + 16 * j + 4 * sub, 4), 4096 + j * 64 + sub * 32))
                    k.e('ds_read_b128 %s, v47 offset:%d' % (vr(TB + 16 * j + 8 + 4 * sub, 4), j * 64 + sub * 32))
        def xform(st):
            if ('n', st) in out:
                last = max(i for i, t in enumerate(out) if t == ('n', st))
                k.e('s_waitcnt vmcnt(%d)' % (len(out) - 1 - last)); del out[:last + 1]
            r0 = NR + (st % DX) * 8
            for d in range(8): unpack(k, TX + 2 * d, TX + 2 * d + 1, r0 + d)
            if st + DX < nst: ldn(st + DX)
            k.e('s_waitcnt lgkmcnt(0)')
            for j in range(2):
                for e in range(8): k.e('v_fma_f32 v%d, v%d, v%d, v%d' % (TX + 8 * j + e, TX + 8 * j + e, TB + 16 * j + e, TB + 16 * j + 8 + e))
            for j in range(2):
                for d in range(4): k.e('v_cvt_pk_bf16_f32 v%d, v%d, v%d' % (TW + 4 * j + d, TX + 8 * j + 2 * d, TX + 8 * j + 2 * d + 1))
                o = (st % NS) * STAGE + j * 1024
                k.e('ds_write_b128 v%d, %s offset:%d' % (44 + o // 65536, vr(TW + 4 * j, 4), o % 65536))
            if st + 1 < nst: tabrd(st + 1)
        for st in range(NS): iss('Y', st)
        k.e('s_barrier')
        mark(k, 1)
        out.extend(['p'] * 4)
        mod_table(k, 24, between=lambda: [ldn(st) for st in range(DX)], nb=2 * DX)
        del out[:len(out) - 2 * DX]
        if env('XPRIO', 0): k.e('s_setprio %d' % env('XPRIO', 0))
        XL = env('XL', 2)
        assert XL >= 2
        tabrd(0)
        for st in range(XL): xform(st)
        def capture(fn):
            n0 = len(k.lines); fn(); got = k.lines[n0:]; del k.lines[n0:]
            return got
        def step(st):
            lg = ' lgkmcnt(0)' if st + XL > nst else ''
            if st in out:
                last = max(i for i, t in enumerate(out) if t == st)
                k.e('s_waitcnt vmcnt(%d)%s' % (len(out) - 1 - last, lg)); del out[:last + 1]
            elif lg: k.e('s_waitcnt' + lg)
            if st == 0: mark(k, 2)
            k.e('s_barrier')
            sx = st + XL; sy = st + NS - LAG
            doy = st >= LAG and sy < nst
            if sx >= nst:
                if doy: iss('Y', sy)
                return
            if ('n', sx) in out:
                last = max(i for i, t in enumerate(out) if t == ('n', sx))
                nw = 's_waitcnt vmcnt(%d)' % (len(out) - 1 - last + (1 if doy else 0)); del out[:last + 1]
            else: nw = None
            yl = capture(lambda: iss('Y', sy)) if doy else []
            yp = []; cur = []
            for l in yl:
                if 's_nop' in l: continue
                cur.append(l)
                if 'buffer_load' in l: yp.append(cur); cur = []
            nl = capture(lambda: ldn(sx + DX)) if (sx + DX < nst or dyn[0] is not None) else []
            nl = [l.replace('s57', 's58') for l in nl]
            npc = [nl[:-1], nl[-1:]] if nl else [[], []]
            r0 = NR + (sx % DX) * 8
            un = capture(lambda: [unpack(k, TX + 2 * d, TX + 2 * d + 1, r0 + d) for d in range(8)])
            fm = ['    v_fma_f32 v%d, v%d, v%d, v%d' % (TX + 8 * j + e, TX + 8 * j + e, TB + 16 * j + e, TB + 16 * j + 8 + e) for j in range(2) for e in range(8)]
            def put(piece):
                if len(piece) >= 2 and 'm0' in piece[-2]: piece = piece[:-1] + ['    s_nop 0', piece[-1]]
                k.lines.extend(piece)
            if yp: put(yp[0])
            if nw: k.e(nw)
            k.lines.extend(un[:8])
            if yp: put(yp[1])
            k.lines.extend(un[8:])
            if yp: put(yp[2])
            k.e('s_waitcnt lgkmcnt(0)')
            k.lines.extend(fm[:10])
            k.lines.extend(npc[0])
            k.lines.extend(fm[10:])
            if sx + 1 < nst: tabrd(sx + 1)
            k.lines.extend(npc[1])
            for j in range(2):
                for d in range(4): k.e('v_cvt_pk_bf16_f32 v%d, v%d, v%d' % (TW + 4 * j + d, TX + 8 * j + 2 * d, TX + 8 * j + 2 * d + 1))
                o = (sx % NS) * STAGE + j * 1024
                k.e('ds_write_b128 v%d, %s offset:%d' % (44 + o // 65536, vr(TW + 4 * j, 4), o % 65536))
        assert NS == 4 and DX == 4 and XL == 2 and LAG == 1 and nst == 32
        for st in range(5): step(st)
        k.e('s_mov_b32 s59, 0')
        k.label('L_%s_xl' % name)
        dyn[0] = 0
        before = list(out)
        for st in range(5, 9): step(st)
        dyn[0] = None
        sh = lambda t, d: (t[0], t[1] + d) if isinstance(t, tuple) else t + d
        assert [sh(t, 4) for t in before] == out, (before, out)
        k.e('s_add_u32 s59, s59, 4')
        k.e('s_cmp_lt_u32 s59, 24')
        k.e('s_cbranch_scc1 L_%s_xl' % name)
        out[:] = [sh(t, 20) for t in out]
        for st in range(29, 32): step(st)
    elif wait and not c.first and env('WLATE_' + name, 0):
        handoff(k, wait[0], wait[1])
    if xt: pass
    elif fusedw:
        for st in range(NS): iss(ind, st)
        for st in Rset: issr(st)
        if auxpre: out.extend(['aux'] * auxpre(g))
        if ownlds and LPW:
            k.e('s_barrier')
            handoff(k, wait[0], wait[1], role='W')
            mark(k, 1)
            for st in range(2, NS): iss(dep, st)
            wait_stage(0); mark(k, 2); k.e('s_barrier')
        elif ownlds:
            handoff(k, wait[0], wait[1])
            mark(k, 1)
            I1 = env('I1_' + name, 3)
            for st in range(2, I1): iss(dep, st)
            wait_stage(0); mark(k, 2); k.e('s_barrier')
            for st in range(I1, NS): iss(dep, st)
        elif OWN:
            l1 = k.newlabel('no'); l2 = k.newlabel('no')
            k.e('s_barrier')
            if ownlim:
                k.e('s_cmp_ge_u32 s2, %d' % ownlim); k.e('s_cbranch_scc1 %s' % l1)
            n0 = len(k.lines)
            iss(dep, 0); iss(dep, 1)
            dup = k.lines[n0:]
            k.label(l1)
            handoff(k, wait[0], wait[1])
            mark(k, 1)
            if ownlim:
                k.e('s_cmp_lt_u32 s2, %d' % ownlim); k.e('s_cbranch_scc1 %s' % l2)
                k.lines.extend(dup)
                k.label(l2)
            I1 = env('I1_' + name, 3)
            for st in range(2, I1): iss(dep, st)
            wait_stage(0); mark(k, 2); k.e('s_barrier')
            for st in range(I1, NS): iss(dep, st)
        else:
            handoff(k, wait[0], wait[1])
            mark(k, 1)
            for st in range(I0): iss(dep, st)
            wait_stage(0); mark(k, 2); k.e('s_barrier')
            for st in range(I0, NS): iss(dep, st)
    else:
        for st in range(I0): iss(ind, st); iss(dep, st)
        mark(k, 1)
        wait_stage(0); mark(k, 2); k.e('s_barrier')
        for st in range(I0, NS): iss(ind, st); iss(dep, st)
    FS = bool(Rset) or env('STATIC', 0) or xt
    if FS and not xt:
        for st in range(1, nst):
            if st == nst - 1: k.e('s_waitcnt vmcnt(0) lgkmcnt(0)')
            else: wait_stage(st)
            if st == nst - 1 and aux_end: aux_end(g)
            k.e('s_barrier')
            nx_st = st + NS - LAG
            if st >= LAG and nx_st < nst:
                iss(dep, nx_st); iss(ind, nx_st)
                if nx_st == nst - 1 and aux:
                    out.extend(['aux'] * aux(g))
    for st in range(1, NS if not FS else 0):
        wait_stage(st); k.e('s_barrier')
        if st >= LAG: iss('Y', st + NS - LAG); iss('X', st + NS - LAG)
    if not FS:
        s0 = 2 * NS - LAG
        k.e('s_add_u32 s60, s55, %d' % (NS * STAGE))
        k.e('s_add_u32 s55, s55, %d' % ((s0 % NS) * STAGE))
        k.e('s_add_u32 s56, s56, %d' % ((s0 % NS) * STAGE))
        k.e('s_mov_b32 s57, %d' % (s0 * xadv))
        k.e('s_mov_b32 s58, %d' % (s0 * yadv))
        k.e('s_mov_b32 s59, %d' % s0)
        ll = 'L_%s_lloop' % name
        k.label(ll)
        if OWN:
            k.e('s_sub_u32 s57, s59, 2')
            k.e('s_cmp_le_u32 s68, s57')
            k.e('s_cselect_b32 s57, s59, s57')
            k.e('s_xor_b32 s57, s57, s54')
            k.e('s_mul_i32 s58, s57, %d' % yadv)
            k.e('s_mul_i32 s57, s57, %d' % xadv)
        elif RW > 1:
            k.e('s_add_u32 s57, s54, s59')
            k.e('s_and_b32 s57, s57, %d' % (RW - 1))
            k.e('s_andn2_b32 s58, s59, %d' % (RW - 1))
            k.e('s_or_b32 s57, s57, s58')
            k.e('s_mul_i32 s58, s57, %d' % yadv)
            k.e('s_mul_i32 s57, s57, %d' % xadv)
        k.e('s_waitcnt vmcnt(%d)' % (per * (NS - 1 - LAG)))
        k.e('s_barrier')
        for j in range(ny):
            k.e('s_add_u32 m0, s56, %d' % (j * 1024))
            k.e('s_nop 0')
            k.e('buffer_load_dwordx4 v%d, s[36:39], s58 offen%s lds' % (VY + j, yfl))
        for j in range(nx):
            k.e('s_add_u32 m0, s55, %d' % (j * 1024))
            k.e('s_nop 0')
            k.e('buffer_load_dwordx4 v%d, s[32:35], s57 offen%s lds' % (VX + j, xfl))
        k.e('s_add_u32 s57, s57, %d' % xadv)
        k.e('s_add_u32 s58, s58, %d' % yadv)
        k.e('s_add_u32 s55, s55, %d' % STAGE)
        k.e('s_add_u32 s56, s56, %d' % STAGE)
        k.e('s_cmp_eq_u32 s55, s60')
        k.e('s_cselect_b32 s61, %d, 0' % (NS * STAGE))
        k.e('s_sub_u32 s55, s55, s61')
        k.e('s_sub_u32 s56, s56, s61')
        k.e('s_add_u32 s59, s59, 1')
        k.e('s_cmp_lt_u32 s59, %d' % nst)
        k.e('s_cbranch_scc1 %s' % ll)
        naux = aux(g) if aux else 0
        NXT = dict(qkv=('attn', 1), wo=('win', 1), win=('wsp', 2), wsp=('wout', 1))
        if CPF >= 2:
            if name in NXT: naux += code_pf(k, 'L_%s_epi' % name, 'L_%s_epi' % NXT[name][0], NXT[name][1] * 8192, vt=22, vd=23)
            else: naux += code_pf(k, 'L_%s_epi' % name, 'L_text_end', 8192, vt=22, vd=23)
        for st in range(nst - NS + LAG, nst):
            k.e('s_waitcnt vmcnt(%d)' % (per * (nst - st - 1) + naux if st < nst - 1 else 0))
            if st == nst - 1 and aux_end: aux_end(g)
            k.e('s_barrier')
    LE = env('LE_' + name, 1 if name in ('wo', 'wsp') else 0)
    g.LE = LE and not c.last
    if mid: mid(g)
    if not c.last and not LE: k.e('s_barrier')
    if post: post(g)
    if not c.last and LE: k.e('s_barrier')
    signal(k)
    endpgm(k)
    k.label(lcomp)
    k.e('s_setprio 1')
    k.e('s_sub_u32 s46, s46, 4')
    k.e('s_lshr_b32 s50, s46, %d' % log2(WN))
    k.e('s_and_b32 s51, s46, %d' % (WN - 1))
    ACC = 8
    nacc = mb * nb * 16
    FR = frbase if frbase else ACC + nacc
    GU = env('GU_' + name, GU)
    g.acc = lambda i, j: ACC + (accmap(i, j) if accmap else i * nb + j) * 16
    g.M16 = M16
    k.e('v_and_b32 v3, 31, v1')
    k.e('v_lshrrev_b32 v4, 5, v1')
    if M16:
        JG = env('JG_' + name, JG)
        KSN = KS // 32; NU = KSN * JG; nbj = nb // JG
        XA = FR + max(16 * mb + 16 * nbj, 72 if name == 'win' else 0)
        nxa = KSN if X[0] == 'rm' else 1
        nya = 2
    else:
        NU = S // GU
        assert NU % 2 == 0
        fs1 = (mb + nb) * 4
        fsz = fs1 * GU
        XA = FR + 2 * fsz
        nxa = S if X[0] == 'rm' else 1
        nya = 1
    XB = XA; XC = XA + nxa; YB = XC + nxa; YC = YB + nya
    g.free = YC + nya
    g.FR = FR
    NP = TN // 64; NB = TN // 32
    if Y[0] == 'w':
        if Y[3] == 'qkv': ywave = 's_lshl_b32 s52, s51, 8'
        else:
            assert nb % 2 == 0
            ywave = 's_mul_i32 s52, s51, %d' % (nb // 2 * 1024)
        def yblk(j): return j * 1024 if Y[3] == 'qkv' else (j // 2) * 1024 + (j % 2) * 256
    else: ywave = 's_mul_i32 s52, s51, %d' % (nb * 1024)
    if M16:
        k.e('v_and_b32 v5, 15, v1')
        k.e('v_lshrrev_b32 v6, 4, v1')
        if X[0] == 'xf':
            k.e('s_mul_i32 s52, s50, %d' % (mb * S * 1024))
            k.e('v_lshl_add_u32 v7, v5, 4, s52')
            k.e('v_lshl_add_u32 v%d, v6, 9, v7' % XB)
        else:
            k.e('s_mul_i32 s52, s50, %d' % (mb * 4096))
            k.e('v_lshl_add_u32 v2, v5, 7, s52')
            k.e('v_lshrrev_b32 v5, 1, v5')
            for ks in range(KSN):
                k.e('v_add_u32 v7, %d, v6' % (4 * ks))
                k.e('v_xor_b32 v7, v7, v5')
                k.e('v_lshl_add_u32 v%d, v7, 4, v2' % (XB + ks))
        k.e('v_mul_u32_u24 v5, %d, v4' % (2 * NP * 1024 if Y[0] == 'w' else NB * 1024))
        k.e('v_and_b32 v6, 1, v6')
        k.e('v_lshl_add_u32 v5, v6, 9, v5')
        k.e('v_lshl_add_u32 v5, v6, %d, v5' % (5 if Y[0] == 'w' else 7))
        k.e('v_bfe_u32 v6, v1, 2, 2')
        k.e('v_lshl_add_u32 v5, v6, %d, v5' % (6 if Y[0] == 'w' else 4))
        k.e('v_bfe_u32 v6, v1, 1, 1')
        k.e('v_lshl_add_u32 v5, v6, %d, v5' % (3 if Y[0] == 'w' else 6))
        k.e('v_and_b32 v6, 1, v1')
        k.e('v_lshl_add_u32 v5, v6, %d, v5' % (4 if Y[0] == 'w' else 3))
        k.e(ywave)
        k.e('s_add_u32 s52, s52, %d' % xb)
        k.e('v_add_u32 v%d, s52, v5' % YB)
        k.e('v_xor_b32 v%d, %d, v%d' % (YB + 1, 32 if Y[0] == 'w' else 128, YB))
    else:
        if X[0] == 'xf':
            k.e('s_mul_i32 s52, s50, %d' % (mb * S * 1024))
            k.e('v_lshl_add_u32 v%d, v1, 4, s52' % XB)
        else:
            assert KS == 64
            k.e('s_mul_i32 s52, s50, %d' % (mb * 4096))
            k.e('v_bfe_u32 v5, v3, 1, 3')
            k.e('v_lshl_add_u32 v6, v3, 7, s52')
            for ss in range(S):
                k.e('v_add_u32 v7, %d, v4' % (2 * ss))
                k.e('v_xor_b32 v7, v7, v5')
                k.e('v_lshl_add_u32 v%d, v7, 4, v6' % (XB + ss))
        k.e("""
        v_lshlrev_b32 v5, 9, v4            ; h*512
        v_bfe_u32 v6, v1, 2, 2             ; r
        v_lshl_add_u32 v5, v6, %d, v5
        v_bfe_u32 v6, v1, 4, 1             ; G&1
        v_lshl_add_u32 v5, v6, %d, v5
        v_bfe_u32 v6, v1, 1, 1             ; c>>1
        v_and_b32 v7, 1, v1                ; c&1
        """ % ((6, 5) if Y[0] == 'w' else (4, 7)))
        if Y[0] == 'w':
            k.e('v_lshl_add_u32 v5, v6, 4, v5')
            k.e('v_lshl_add_u32 v5, v7, 3, v5')
        else:
            k.e('v_lshl_add_u32 v5, v7, 6, v5')
            k.e('v_lshl_add_u32 v5, v6, 3, v5')
        k.e(ywave)
        k.e('s_add_u32 s52, s52, %d' % xb)
        k.e('v_add_u32 v%d, s52, v5' % YB)
    k.e('s_waitcnt lgkmcnt(0)')
    mark(k, 0)
    pre(g)
    if M16:
        def xr16(sp, ks, i, rh): return FR + (sp[0] if isinstance(sp, tuple) else (sp * KSN + ks) % 2) * 8 * mb + (2 * i + rh) * 4
        def yr16(sp, u, j, t): return FR + 16 * mb + (sp[1] if isinstance(sp, tuple) else (sp * NU + u) % 2) * 8 * nbj + ((j % nbj) * 2 + t) * 4
        def cols(jg, sp): return sp[2] if isinstance(sp, tuple) else range(jg * nbj, (jg + 1) * nbj)
        def reads(u, sp=0):
            ks = u // JG; jg = u % JG
            xr = []; yr = []
            if jg == 0 or isinstance(sp, tuple):
                for i in range(mb):
                    for rh in range(2):
                        if X[0] == 'xf': xr.append('ds_read_b128 %s, v%d offset:%d' % (vr(xr16(sp, ks, i, rh), 4), XC, (i * S + 2 * ks) * 1024 + rh * 256))
                        else: xr.append('ds_read_b128 %s, v%d offset:%d' % (vr(xr16(sp, ks, i, rh), 4), XC + ks, i * 4096 + rh * 2048))
            for j in cols(jg, sp):
                for t in range(2):
                    for rd in range(2):
                        o = (4 * ks + rd) * NP * 1024 + yblk(j) if Y[0] == 'w' else (2 * ks * NB + j) * 1024 + rd * 256
                        yr.append('ds_read_b64_tr_b16 %s, v%d offset:%d' % (vr(yr16(sp, u, j, t) + 2 * rd, 2), YC + t, o))
            return xr[:1] + yr[:2] + xr[1:] + yr[2:]
        def mfmas(u, first, sp=0):
            ks = u // JG; jg = u % JG
            out = []
            for j in cols(jg, sp):
                for t in range(2):
                    for i in range(mb):
                        for rh in range(2):
                            x_ = xr16(sp, ks, i, rh); y_ = yr16(sp, u, j, t)
                            if j in swap: a = g.acc(i, j) + 8 * rh + 4 * t; p, q = x_, y_
                            else: a = g.acc(i, j) + 8 * t + 4 * rh; p, q = y_, x_
                            out.append('v_mfma_f32_16x16x32_bf16 %s, %s, %s, %s' % (vr(a, 4), vr(p, 4), vr(q, 4), '0' if first and ks == 0 and not cinit else vr(a, 4)))
            return out
        def fix(i, j):
            a = g.acc(i, j)
            for hb in range(2):
                for e in range(4):
                    k.e('%s v%d, v%d' % ('v_permlane32_swap_b32' if j in swap else 'v_permlane16_swap_b32', a + 8 * hb + e, a + 8 * hb + 4 + e))
    else:
        def yoff(j, ss, rd):
            return (2 * ss + rd) * NP * 1024 + yblk(j) if Y[0] == 'w' else (ss * NB + j) * 1024 + rd * 256
        def xf(ss, i): return FR + ((ss // GU) % 2) * fsz + (ss % GU) * fs1 + i * 4
        def yf(ss, j): return FR + ((ss // GU) % 2) * fsz + (ss % GU) * fs1 + (mb + j) * 4
        def reads1(ss):
            xr = []; yr = []
            for i in range(mb):
                if X[0] == 'xf':
                    xr.append('ds_read_b128 %s, v%d offset:%d' % (vr(xf(ss, i), 4), XC, (i * S + ss) * 1024))
                else:
                    xr.append('ds_read_b128 %s, v%d offset:%d' % (vr(xf(ss, i), 4), XC + ss, i * 4096))
            for j in range(nb):
                for rd in range(2):
                    yr.append('ds_read_b64_tr_b16 %s, v%d offset:%d' % (vr(yf(ss, j) + 2 * rd, 2), YC, yoff(j, ss, rd)))
            return [xr[0]] + yr[:2] + xr[1:] + yr[2:]
        def reads(u, sp=0): return [r for ss in range(u * GU, (u + 1) * GU) for r in reads1(ss)]
        def mfmas(u, first, sp=0):
            out = []
            for ss in range(u * GU, (u + 1) * GU):
                for j in range(nb):
                    for i in range(mb):
                        a = g.acc(i, j)
                        c_ = '0' if first and ss == 0 else vr(a, 16)
                        p, q = (xf(ss, i), yf(ss, j)) if j in swap else (yf(ss, j), xf(ss, i))
                        out.append('v_mfma_f32_32x32x16_bf16 %s, %s, %s, %s' % (vr(a, 16), vr(p, 4), vr(q, 4), c_))
            return out
        def fix(i, j): pass
    g.fix = fix
    def setaddr():
        for t in range(nxa): k.e('v_add_u32 v%d, s53, v%d' % (XC + t, XB + t))
        for t in range(nya): k.e('v_add_u32 v%d, s53, v%d' % (YC + t, YB + t))
    RPGV = [env('RPG2_' + name, (5 if mb * nb == 2 else (2 if name == 'qkv' else 3)) * (1 if M16 else 2))]
    import re
    def regs_of(txt):
        return [(int(a_), int(b_)) for a_, b_ in re.findall(r'v\[(\d+):(\d+)\]', txt)]
    def advance():
        n0 = len(k.lines)
        k.e('s_add_u32 s53, s53, %d' % STAGE)
        k.e('s_cmp_eq_u32 s53, %d' % (NS * STAGE))
        k.e('s_cselect_b32 s53, 0, s53')
        setaddr()
        got = [l.strip() for l in k.lines[n0:]]; del k.lines[n0:]
        return got
    EARLY = env('EARLYADV', 1)
    RM = [ROLL]
    def unit(u, first, rs, sp, extra):
        ms = mfmas(u, first, sp)
        prev = reads(u, sp)
        dst = [regs_of(r)[0] for r in prev]
        ROLL = RM[0]
        covered = -1 if ROLL else len(prev); issued = 0; xi = 0
        WMAX = env('WMAX_' + name, env('WMAX', 9))
        nspread = len(ms) - (min(len(extra) // 2 + 1, len(ms) // 3) if extra else 0)
        for mi, m in enumerate(ms):
            ops = regs_of(m)[1:3]
            need = max(i for i, d in enumerate(dst) if any(o[0] <= d[0] <= o[1] for o in ops))
            if need > covered:
                n = min(len(prev) - 1 - need + issued, WMAX)
                k.e('s_waitcnt lgkmcnt(%d)' % n)
                covered = len(prev) - 1 - (n - issued) if n >= issued else len(prev) - 1
            k.e(m)
            e = min(len(rs), -(-len(rs) * (mi + 1) // nspread) if ROLL == 1 else -(-RPGV[0] * (mi + 1) // 2))
            if issued == len(rs):
                for _ in range(2):
                    if xi < len(extra): k.e(extra[xi]); xi += 1
            while issued < e: k.e(rs[issued]); issued += 1
        while issued < len(rs): k.e(rs[issued]); issued += 1
        while xi < len(extra): k.e(extra[xi]); xi += 1
    def stage(first, last, sp, tail=()):
        for u in range(NU):
            if u == NU - 1 and not last and not EARLY:
                for x in advance(): k.e(x)
            if u < NU - 1: rs = reads(u + 1, sp)
            elif last: rs = []
            else: rs = reads(0, sp ^ 1)
            extra = []
            if EARLY and not last and u == (NU - 2) % NU: extra = advance()
            if u == NU - 1: extra = extra + list(tail)
            if not RM[0] or (last and u == NU - 1 and not c.last and not LE): k.e('s_waitcnt lgkmcnt(0)')
            if u == NU - 1 and not (last and (c.last or LE)): k.e('s_barrier')
            unit(u, first, rs, sp, extra)
    k.e('s_mov_b32 s53, 0')
    setaddr()
    if xt:
        handoff_multi(k, [(4, 's_mov_b32 s100, %d' % FL_MOD, 64), (5, 's_mov_b32 s100, %d' % (FL_MOD + 256), 64), (6, wait[0], wait[1])])
        mod_table(k, FR)
    elif wait and not (ownlds and LPW): handoff(k, wait[0], wait[1], role='C')
    if early: early(g)
    k.e('s_barrier')
    mark(k, 1)
    for r in reads(0): k.e(r)
    if EARLY and NU == 1:
        for x in advance(): k.e(x)
    DEFER = env('DEFER_' + name, DEFER)
    npair = (nst - 1 - max(DEFER, 1)) // 2
    assert nst % 2 == 0 and (DEFER == 0 or (DEFER % 2 == 1 and M16 and KSN == 1 and not LE and DEFER <= NS))
    soft = env('SOFT_' + name, SOFT)
    srp = env('SRP_' + name, 1 if name == 'qkv' else 2)
    segs_ = [(npair, RPGV[0], ROLL)] if not soft else [(soft, srp, 0), (npair - soft, RPGV[0], ROLL)]
    RPGV[0] = segs_[0][1]; RM[0] = segs_[0][2]
    stage(True, False, 0)
    pre2(g)
    for si, (cnt_, rp_, rm_) in enumerate(segs_):
        RPGV[0] = rp_; RM[0] = rm_
        k.e('s_mov_b32 s54, %d' % cnt_)
        lp = 'L_%s_loop%s' % (name, si or '')
        k.label(lp)
        stage(False, False, 1); stage(False, False, 0, tail=['s_sub_u32 s54, s54, 1', 's_cmp_lg_u32 s54, 0'])
        k.e('s_cbranch_scc1 %s' % lp)
    k.label('L_%s_epi' % name)
    if prelast: prelast(g)
    def addr_for(st):
        o = (st % NS) * STAGE
        return ['v_add_u32 v%d, %d, v%d' % (XC, o, XB)] + ['v_add_u32 v%d, %d, v%d' % (YC + t, o, YB + t) for t in range(nya)]
    if DEFER:
        s0_ = nst - DEFER
        c0, c1 = dcols
        y0 = NU % 2
        for n_ in range(DEFER):
            par = ((1 + n_) % 2, (y0 + n_) % 2, c0)
            if n_ < DEFER - 1:
                for x in addr_for(s0_ + n_ + 1): k.e(x)
                rs = reads(0, (par[0] ^ 1, par[1] ^ 1, c0))
            else: rs = []
            if not RM[0] or (n_ == 0 and JG == 1): k.e('s_waitcnt lgkmcnt(0)')
            if n_ < DEFER - 1: k.e('s_barrier')
            unit(0, False, rs, par, [])
        def deferred():
            for x in addr_for(s0_): k.e(x)
            for r in reads(0, (0, 0, c1)): k.e(r)
            for n_ in range(DEFER):
                par = (n_ % 2, n_ % 2, c1)
                if n_ < DEFER - 1:
                    for x in addr_for(s0_ + n_ + 1): k.e(x)
                    rs = reads(0, (par[0] ^ 1, par[1] ^ 1, c1))
                else: rs = []
                if not RM[0] or n_ == DEFER - 1: k.e('s_waitcnt lgkmcnt(0)')
                if n_ == DEFER - 1: k.e('s_barrier')
                unit(0, False, rs, par, [])
            k.e('s_nop 7')
        g.deferred = deferred
    else:
        g.deferred = None
        stage(False, True, 1)
    mark(k, 2)
    if M16:
        k.e('s_nop 7')
        if not lazyfix:
            for j in range(nb):
                for i in range(mb): fix(i, j)
            k.e('s_nop 1')
    epi(g)
    if not selfsig:
        if g.LE and not getattr(g, 'ended', 0): k.e('s_barrier')
        signal(k, 'C')
    if side:
        endpgm(k)
        k.label('L_%s_pf' % name)
        k.e('s_sub_u32 s30, s2, %d' % (GM * GN))
        k.e('s_cmp_ge_u32 s30, %d' % side[0])
        k.e('s_cbranch_scc1 L_%s_pfe' % name)
        side[1](k, 0 if solo else AUX_B + 4096)
        k.label('L_%s_pfe' % name)
        signal(k, 'A')
    if pf:
        endpgm(k)
        k.label('L_%s_pf' % name)
        npf = 256 - GM * GN
        per_wg = SIZES[pf] // npf
        assert per_wg % (8192 * 2) == 0
        k.e('s_sub_u32 s30, s2, %d' % (GM * GN))
        k.e('s_mul_i32 s30, s30, %d' % per_wg)
        if env('PFOFF', 0): k.e('s_mov_b32 s30, 0x40000000')
        k.e('v_lshlrev_b32 v2, 4, v0')
        k.e('s_mov_b32 s31, %d' % (per_wg // 16384))
        k.e('s_waitcnt lgkmcnt(0)')
        srd(k, 32, pf)
        k.label('L_%s_pfl' % name)
        k.e('buffer_load_dwordx4 v[8:11], v2, s[32:35], s30 offen')
        k.e('s_add_u32 s30, s30, 8192')
        k.e('buffer_load_dwordx4 v[12:15], v2, s[32:35], s30 offen')
        k.e('s_add_u32 s30, s30, 8192')
        k.e('s_waitcnt vmcnt(6)')
        k.e('s_sub_u32 s31, s31, 1')
        k.e('s_cmp_lg_u32 s31, 0')
        k.e('s_cbranch_scc1 L_%s_pfl' % name)
        signal(k, 'A')
    finish(k)
    assert g.free <= 256, g.free
    k.need(g.free, max(NS * STAGE, g.AUX + auxsz, (AUX_B + 12288) if side and not solo else 0))

def alloc(g, n, align=4):
    b = (g.free + align - 1) // align * align
    g.free = b + n
    return b
def nop(g): pass

def store_xf_tile(g, a, T, voff, srdn, soff, imm):
    k = g.k
    for d in range(8):
        k.e('v_cvt_pk_bf16_f32 v%d, v%d, v%d' % (T + d, a + 2 * d, a + 2 * d + 1))
    if os.environ.get('SDATA') == 'zero' and k.c.name == 'qkv':
        for d in range(8): k.e('v_mov_b32 v%d, 0' % (T + d))
    if os.environ.get('SDATA') == 'rand' and k.c.name == 'qkv':
        import random
        for d in range(8):
            k.e('s_mul_i32 s68, s2, %d' % (random.getrandbits(31) | 1))
            k.e('v_add_u32 v%d, s68, v0' % (T + d))
            k.e('s_mov_b32 s69, %d' % (random.getrandbits(31) | 1))
            k.e('v_mul_lo_u32 v%d, v%d, s69' % (T + d, T + d))
            k.e('v_and_b32 v%d, 0xbfffbfff, v%d' % (T + d, T + d))
    if env('PACE', -1) >= 0: k.e('s_waitcnt vmcnt(%d)' % env('PACE', -1))
    k.e('buffer_store_dwordx4 %s, v%d, %s, %s offen offset:%d%s' % (vr(T, 4), voff, sr(srdn), soff, imm, WT))
    k.e('buffer_store_dwordx4 %s, v%d, %s, %s offen offset:%d%s' % (vr(T + 4, 4), voff, sr(srdn), soff, imm + 1024, WT))

def pk(op, d, *src, sel=None):
    s = 'v_pk_%s_f32 %s' % (op, vr(d, 2))
    hi = []
    for x in src:
        if isinstance(x, int): s += ', ' + vr(x, 2); hi.append(1)
        elif isinstance(x, tuple): s += ', ' + vr(x[0], 2); hi.append(0)
        elif x.startswith('s['): s += ', ' + x; hi.append(1)
        else: s += ', ' + x; hi.append(0)
    if 0 in hi: s += ' op_sel_hi:[%s]' % ','.join(map(str, hi))
    return s

def k_qkv(k, c):
    def pre(g):
        k = g.k
        srd(k, 32, 'ws', WS_Q, 4 * MB); srd(k, 36, 'ws', WS_KV, 8 * MB)
        g.L16 = alloc(g, 1, 1); g.LV16 = alloc(g, 1, 1)
        k.e('v_lshlrev_b32 v%d, 4, v1' % g.L16)
        if g.M16:
            k.e('v_and_b32 v5, 3, v1')
            k.e('v_lshl_add_u32 v5, v4, 4, v5')
            k.e('v_bfe_u32 v6, v1, 2, 1')
            k.e('v_lshl_add_u32 v5, v6, 3, v5')
            k.e('v_bfe_u32 v6, v1, 3, 1')
            k.e('v_lshl_add_u32 v5, v6, 2, v5')
            k.e('v_bfe_u32 v6, v1, 4, 1')
            k.e('v_lshl_add_u32 v5, v6, 5, v5')
            k.e('v_lshlrev_b32 v%d, 4, v5' % g.LV16)
        else: k.e('v_mov_b32 v%d, v%d' % (g.LV16, g.L16))
        k.e('''
        s_lshl_b32 s60, s31, 1
        s_add_u32 s60, s60, s51
        s_lshl_b32 s60, s60, 6
        s_lshl_b32 s61, s30, 2
        s_add_u32 s60, s60, s61
        s_lshl_b32 s61, s50, 1
        s_add_u32 s60, s60, s61           ; head*64 + rb0
        s_lshl_b32 s61, s60, 11           ; Q offset
        s_lshl_b32 s62, s60, 12           ; KV offset
        s_add_u32 s63, s62, 4096
        s_mov_b32 s66, %s
        s_mov_b32 s67, %s
        ''' % ((hx(32 ** -0.5 * LOG2E * float(os.environ.get('QERR', '1'))),) * 2))
    def epi(g):
        k = g.k
        T = g.FR
        k.e('s_nop 7')
        n = 0
        for i in range(2):
            a = g.acc(i, 0)
            for r in range(0, 16, 2): k.e(pk('mul', a + r, a + r, 's[66:67]'))
            store_xf_tile(g, a, T + 8 * n, g.L16, 32, 's61', i * 2048); n += 1
        for j in (1, 2):
            for i in range(2):
                store_xf_tile(g, g.acc(i, j), T + 8 * (n % 5), g.L16 if j == 1 else g.LV16, 36, 's62' if i == 0 else 's63', (j - 1) * 2048); n += 1
    QSP = env('QSP', 0)
    def epi2(g):
        k = g.k
        T = g.FR
        KP = [g.acc(0, 1), g.acc(1, 1)]; VP = [g.acc(0, 2), g.acc(1, 2)]; QP = [g.acc(0, 0), g.acc(1, 0)]
        for j in (1, 2):
            for i in range(2):
                g.fix(i, j)
                k.e('s_nop 0')
                store_xf_tile(g, g.acc(i, j), g.acc(i, j), g.L16 if j == 1 else g.LV16, 36, 's62' if i == 0 else 's63', (j - 1) * 2048)
        if g.deferred:
            g.deferred()
            if env('QSIG', 1): signal(k, 'C')
        for i in range(2):
            a = g.acc(i, 0)
            g.fix(i, 0)
            k.e('s_nop 0')
            for r in range(0, 16, 2): k.e(pk('mul', a + r, a + r, 's[66:67]'))
            for d in range(8): k.e('v_cvt_pk_bf16_f32 v%d, v%d, v%d' % (a + d, a + 2 * d, a + 2 * d + 1))
        if QSP == 1: signal(k, 'C')
        k.e('s_mul_i32 s68, s46, 5120')
        k.e('s_add_u32 s68, s68, %d' % AUX_A)
        k.e('v_add_u32 v5, s68, v%d' % g.L16)
        Sreg = [T, T + 16, T + 32, T + 48]
        for qi in range(2):
            for ki in range(2):
                S_ = Sreg[2 * qi + ki]
                k.e('v_mfma_f32_32x32x16_bf16 %s, %s, %s, 0' % (vr(S_, 16), vr(KP[ki], 4), vr(QP[qi], 4)))
                k.e('v_mfma_f32_32x32x16_bf16 %s, %s, %s, %s' % (vr(S_, 16), vr(KP[ki] + 4, 4), vr(QP[qi] + 4, 4), vr(S_, 16)))
        for q in range(4): k.e('ds_write_b128 v5, %s offset:%d' % (vr(QP[q // 2] + 4 * (q % 2), 4), q * 1024))
        if AOWN:
            k.e('s_lshl_b32 s69, s46, 15')
            k.e('v_add_u32 v6, s69, v%d' % g.L16)
            k.e('v_add_u32 v7, s69, v%d' % g.LV16)
            for i in range(2):
                for hh in range(2):
                    k.e('ds_write_b128 v6, %s offset:%d' % (vr(KP[i] + 4 * hh, 4), i * 4096 + hh * 1024))
                    k.e('ds_write_b128 v7, %s offset:%d' % (vr(VP[i] + 4 * hh, 4), i * 4096 + 2048 + hh * 1024))
        k.e('v_lshl_add_u32 v5, v1, 3, s68')
        if QSP == 2: signal(k, 'C')
        k.e('s_nop 7')
        MM = T + 64
        for qi in range(2):
            a0, a1 = Sreg[2 * qi], Sreg[2 * qi + 1]
            k.e('v_max_f32 v%d, v%d, v%d' % (MM + qi, a0, a1))
            for r in range(1, 16): k.e('v_max3_f32 v%d, v%d, v%d, v%d' % (MM + qi, MM + qi, a0 + r, a1 + r))
        for qi in range(2): k.e('v_mov_b32 v%d, v%d' % (MM + 2 + qi, MM + qi))
        k.e('s_nop 1')
        for qi in range(2): k.e('v_permlane32_swap_b32 v%d, v%d' % (MM + qi, MM + 2 + qi))
        k.e('s_nop 1')
        for qi in range(2): k.e('v_max_f32 v%d, v%d, v%d' % (MM + qi, MM + qi, MM + 2 + qi))
        for qi in range(2): k.e('v_sub_f32 v%d, %s, v%d' % (MM + qi, hx(-40.0), MM + qi))
        k.e('ds_write_b64 v5, %s offset:4096' % vr(MM, 2))
        k.e('s_waitcnt lgkmcnt(0)')
    sig = 's_lshl_b32 s100, s31, 8\ns_lshl_b32 s101, s30, 4\ns_add_u32 s100, s100, s101\ns_add_u32 s100, s100, %d' % FL_QKV
    wait = ('s_lshl_b32 s100, s30, 8\ns_add_u32 s100, s100, %d' % FL_LN1, 8)
    k_gemm(k, c, 16, 16, 3, 1, 4, 128, 192, 2, 2, 1024, 32, 4, ('xt', WS_N, 1024) if XT else ('xf', WS_H, 1024), ('w', 'wqkv', 6144, 'qkv'), pre, nop, epi2 if AT2 else epi, selfsig=bool(AT2 and (QSP or AOWN == 1 or (env('DEFER_qkv', 0) and env('QSIG', 1)))), lazyfix=bool(AT2), DEFER=0, dcols=([1, 2], [0]), swap=(2,), wait=wait, sig=sig, RWD=4, SOFT=4)

def k_proj(k, c, K, X, wname, final):
    NQ = 2 if MP0 else 4
    EARLYV = MP0 and env('EARLYV', 1)
    def modq_loads(k):
        for q in range(NQ):
            k.e('s_add_u32 s62, s69, %d' % (q * 16384))
            k.e('s_add_u32 s63, s70, %d' % (q * 16384))
            k.e('buffer_load_dwordx4 %s, v7, s[64:67], s62 offen sc1' % vr(24 + 4 * q, 4))
            k.e('buffer_load_dword v%d, v6, s[64:67], s63 offen sc1' % (40 + q))
    def aux(g):
        k = g.k
        if final:
            srd(k, 40, 'ws', WS_MOD, 6144 * 4)
            k.e('''
            v_and_b32 v7, 31, v1
            v_lshlrev_b32 v7, 4, v7
            s_lshl_b32 s62, s31, 9
            s_add_u32 s62, s62, %d
            buffer_load_dwordx4 v[24:27], v7, s[40:43], s62 offen sc1
            ''' % (5 * 4096))
            return 1
        srd(k, 64, 'ws', 0, 256 * KB)
        k.e('''
        v_and_b32 v2, 31, v1
        v_lshrrev_b32 v3, 5, v1
        v_lshlrev_b32 v2, 4, v2
        v_lshl_add_u32 v2, v3, 13, v2
        s_lshl_b32 s62, s31, 9
        s_add_u32 s62, s62, %d
        v_and_b32 v6, 15, v1
        v_lshlrev_b32 v6, 2, v6
        s_lshl_b32 s68, s2, 6
        s_add_u32 s63, s68, %d
        s_mov_b32 s69, s62
        s_mov_b32 s70, s63
        v_mov_b32 v7, v2
        ''' % (WS_MODQ, WS_MODQ))
        modq_loads(k)
        return xtile(g) + 2 * NQ
    def xtile(g):
        k = g.k
        srd(k, 40, 'x')
        k.e('''
        v_lshrrev_b32 v2, 4, v1
        v_and_b32 v3, 15, v1
        s_lshl_b32 s62, s30, 17            ; tm*64*2048
        s_lshl_b32 s63, s31, 8
        s_add_u32 s62, s62, s63
        s_lshl_b32 s63, s46, 15            ; lw*16 rows
        s_add_u32 s62, s62, s63
        s_lshl_b32 s63, s46, 12
        s_add_u32 s63, s63, %d
        ''' % g.AUX)
        for j in range(4):
            k.e('v_add_u32 v4, %d, v2' % (4 * j))
            k.e('v_xor_b32 v5, v4, v3')
            k.e('v_lshlrev_b32 v5, 4, v5')
            k.e('v_lshl_add_u32 v5, v4, 11, v5')
            k.e('s_add_u32 m0, s63, %d' % (j * 1024))
            k.e('s_nop 0')
            k.e('buffer_load_dwordx4 v5, s[40:43], s62 offen lds')
        return 4
    def aux_end(g):
        k = g.k
        lp = k.newlabel('mqp'); lc = k.newlabel('mqc')
        if final:
            poll_init(k)
            k.e('s_branch %s' % lc)
            k.label(lp)
            k.e('buffer_load_dwordx4 v[24:27], v7, s[40:43], s62 offen sc1')
            k.e('s_waitcnt vmcnt(0)')
            k.label(lc)
            k.e('v_max3_u32 v2, v24, v25, v26')
            k.e('v_max_u32 v2, v2, v27')
            k.e('v_cmp_eq_u32 vcc, -1, v2')
            poll_back(k, lp)
            k.e('v_add_u32 v2, %d, v7' % (g.AUX + 16 * KB))
            k.e('ds_write_b128 v2, v[24:27]')
            k.e('s_waitcnt lgkmcnt(0)')
            return
        if MP0:
            k.e('v_cmp_lt_u32 vcc, 31, v1')
            k.e(pk('add', 24, 24, 28)); k.e(pk('add', 26, 26, 30))
            k.e('v_add_f32 v40, v40, v41')
        else:
            poll_init(k)
            k.e('s_branch %s' % lc)
            k.label(lp)
            modq_loads(k)
            k.e('s_waitcnt vmcnt(0)')
            k.label(lc)
            k.e('v_max_u32 v2, v24, v25')
            for r in range(26, 44, 2): k.e('v_max3_u32 v2, v2, v%d, v%d' % (r, r + 1))
            k.e('v_cmp_eq_u32 vcc, -1, v2')
            poll_back(k, lp)
            k.e(pk('add', 24, 24, 28)); k.e(pk('add', 26, 26, 30)); k.e(pk('add', 32, 32, 36)); k.e(pk('add', 34, 34, 38))
            k.e(pk('add', 24, 24, 32)); k.e(pk('add', 26, 26, 34))
            k.e('v_cmp_lt_u32 vcc, 31, v1')
            k.e('v_add_f32 v40, v40, v41')
            k.e('v_add_f32 v42, v42, v43')
            k.e('v_add_f32 v40, v40, v42')
        k.e('v_cndmask_b32 v7, 0, 1.0, vcc')
        for d in range(2): round_bf16_pair(k, 24 + 2 * d, 25 + 2 * d, 28)
        for e in range(4): k.e('v_add_f32 v%d, v7, v%d' % (24 + e, 24 + e))
        for d in range(2): round_bf16_pair(k, 24 + 2 * d, 25 + 2 * d, 28)
        k.e('v_lshlrev_b32 v2, 4, v1')
        k.e('v_add_u32 v2, %d, v2' % (g.AUX + 16 * KB))
        k.e('ds_write_b128 v2, v[24:27]')
        k.e("""
        s_lshr_b32 s62, s2, 6
        s_cmp_eq_u32 s62, 2
        s_cselect_b32 s62, 1.0, 0
        v_cvt_pk_bf16_f32 v40, v40, v40
        v_lshlrev_b32 v40, 16, v40
        v_add_f32 v40, s62, v40
        v_cvt_pk_bf16_f32 v40, v40, v40
        v_lshlrev_b32 v40, 16, v40
        s_add_u32 s68, s68, 8192
        v_cmp_gt_u32 vcc, 16, v0
        s_and_saveexec_b64 s[62:63], vcc
        buffer_store_dword v40, v6, s[64:67], s68 offen%s
        s_mov_b64 exec, s[62:63]
        s_waitcnt lgkmcnt(0)
        """ % WT)
    def pre(g):
        k = g.k
        g.L16 = alloc(g, 1, 1); g.RA = alloc(g, 1, 1); g.CA = alloc(g, 1, 1); g.TA = alloc(g, 1, 1)
        g.RES = alloc(g, 16); g.GA = alloc(g, 32); g.G2 = alloc(g, 32) if not final else None
        srd(k, 36, 'ws', WS_X1, 8 * MB)
        if final: srd(k, 32, 'out')
        else: srd(k, 32, 'ws', WS_ST1, 256 * KB)
        k.e('v_lshlrev_b32 v%d, 4, v1' % g.L16)
        k.e('''
        s_lshl_b32 s60, s31, 7
        s_lshl_b32 s61, s51, 6
        s_add_u32 s60, s60, s61           ; col0
        s_lshl_b32 s61, s30, 1
        s_add_u32 s61, s61, s50           ; rb
        s_lshl_b32 s62, s61, 16
        s_lshl_b32 s63, s60, 1
        s_add_u32 s63, s63, s62           ; row-major byte offset of (row0,col0)
        s_lshl_b32 s64, s60, 6
        s_add_u32 s64, s64, s62           ; XF offset
        s_add_u32 s65, s64, %d            ; X1S offset
        ; tile image address: row*256 + ((wn*8) ^ (row%%16))*16 + h*8
        s_lshl_b32 s66, s50, 13
        s_add_u32 s66, s66, %d
        v_and_b32 v5, 15, v3
        s_lshl_b32 s67, s51, 3
        v_xor_b32 v5, s67, v5
        v_lshlrev_b32 v5, 4, v5
        v_lshl_add_u32 v5, v3, 8, v5
        v_lshl_add_u32 v5, v4, 3, v5
        v_add_u32 v%d, s66, v5
        ; column vector address: wn*256 + h*16
        s_lshl_b32 s67, s51, 8
        s_add_u32 s67, s67, %d
        v_lshl_add_u32 v%d, v4, 4, s67
        ''' % (4 * MB, g.AUX, g.RA, g.AUX + 16 * KB, g.CA))
    KX = same_kernel('wo', 'wout') and env('KEEPX', 1)
    def early(g):
        k = g.k
        if EARLYV:
            A_ = g.GA; V_ = g.RES
            l = k.newlabel('ev')
            k.e('s_cmp_lg_u32 s46, 1'); k.e('s_cbranch_scc1 %s' % l)
            srd(k, 80, 'ws', 0, 256 * KB)
            k.e('''
            v_lshlrev_b32 v%d, 4, v3
            v_lshl_add_u32 v%d, v4, 13, v%d
            s_lshl_b32 s68, s31, 9
            s_add_u32 s68, s68, %d
            s_add_u32 s69, s68, 16384
            buffer_load_dwordx4 %s, v%d, s[80:83], s68 offen sc1
            buffer_load_dwordx4 %s, v%d, s[80:83], s69 offen sc1
            ''' % (V_, V_, V_, WS_MODQ + (3 * 4096 if final else 0), vr(A_, 4), V_, vr(A_ + 4, 4), V_))
            if not final:
                k.e('''
                v_and_b32 v%d, 15, v1
                v_lshlrev_b32 v%d, 2, v%d
                s_lshl_b32 s70, s2, 6
                s_add_u32 s68, s70, %d
                s_add_u32 s69, s68, 16384
                buffer_load_dword v%d, v%d, s[80:83], s68 offen sc1
                buffer_load_dword v%d, v%d, s[80:83], s69 offen sc1
                ''' % (V_ + 1, V_ + 1, V_ + 1, WS_MODQ, A_ + 8, V_ + 1, A_ + 9, V_ + 1))
            k.e('v_cvt_f32_u32 v%d, v4' % (V_ + 2))
            k.e('v_add_u32 v%d, %d, v%d' % (V_ + 3, g.AUX + 16 * KB, g.L16))
            k.e('s_waitcnt vmcnt(0)')
            k.e(pk('add', A_, A_, A_ + 4)); k.e(pk('add', A_ + 2, A_ + 2, A_ + 6))
            for d in range(2): round_bf16_pair(k, A_ + 2 * d, A_ + 1 + 2 * d, A_ + 4)
            for e in range(4): k.e('v_add_f32 v%d, v%d, v%d' % (A_ + e, V_ + 2, A_ + e))
            for d in range(2): round_bf16_pair(k, A_ + 2 * d, A_ + 1 + 2 * d, A_ + 4)
            k.e('ds_write_b128 v%d, %s' % (V_ + 3, vr(A_, 4)))
            if not final:
                F = A_ + 8
                k.e('''
                s_lshr_b32 s68, s2, 6
                s_cmp_eq_u32 s68, 2
                s_cselect_b32 s68, 1.0, 0
                v_add_f32 v%d, v%d, v%d
                v_cvt_pk_bf16_f32 v%d, v%d, v%d
                v_lshlrev_b32 v%d, 16, v%d
                v_add_f32 v%d, s68, v%d
                v_cvt_pk_bf16_f32 v%d, v%d, v%d
                v_lshlrev_b32 v%d, 16, v%d
                s_add_u32 s70, s70, 8192
                s_mov_b64 exec, 0xffff
                buffer_store_dword v%d, v%d, s[80:83], s70 offen%s
                s_mov_b64 exec, -1
                ''' % (F, F, F + 1, F, F, F, F, F, F, F, F, F, F, F, F, F, V_ + 1, WT))
            k.e('s_waitcnt lgkmcnt(0)')
            k.label(l)
            return
        if final or MP0: return
        D = g.GA; MC = g.RES; MT = g.RES + 8
        k.e('s_lshl_b32 s68, s46, 13')
        k.e('s_add_u32 s68, s68, %d' % AUX_A)
        k.e('v_add_u32 v%d, s68, v%d' % (MT, g.L16))
        for j in range(8): k.e('ds_read_b128 %s, v%d offset:%d' % (vr(D + 4 * j, 4), MT, j * 1024))
        for j in range(8):
            k.e('s_waitcnt lgkmcnt(%d)' % (7 - j))
            for d in range(4):
                unpack(k, MT, MT + 1, D + 4 * j + d)
                op = 'v_mul_f32' if j == 0 else 'v_fmac_f32'
                k.e('%s v%d, v%d, v%d' % (op, MC + 2 * d, MT, MSV + j))
                k.e('%s v%d, v%d, v%d' % (op, MC + 2 * d + 1, MT + 1, MSV + j))
        k.e('s_nop 1')
        for e in range(4): k.e('v_permlane32_swap_b32 v%d, v%d' % (MC + e, MC + 4 + e))
        k.e('s_nop 1')
        for e in range(4): k.e('v_add_f32 v%d, v%d, v%d' % (MC + e, MC + e, MC + 4 + e))
        k.e('s_nop 1')
        for e in range(2): k.e('v_permlane16_swap_b32 v%d, v%d' % (MC + e, MC + 2 + e))
        k.e('s_nop 1')
        for e in range(2): k.e('v_add_f32 v%d, v%d, v%d' % (MC + e, MC + e, MC + 2 + e))
        k.e('s_nop 1')
        for e in range(2): k.e('v_add_f32_dpp v%d, v%d, v%d row_ror:8 row_mask:0xf bank_mask:0xf' % (MC + e, MC + e, MC + e))
        k.e('''
        v_and_b32 v%d, 7, v1
        v_lshlrev_b32 v%d, 5, v%d
        v_lshrrev_b32 v%d, 4, v1
        v_lshl_add_u32 v%d, v%d, 3, v%d
        v_add_u32 v%d, s68, v%d
        ds_write_b64 v%d, %s
        s_waitcnt lgkmcnt(0)
        ''' % (MT, MT, MT, MT + 1, MT, MT + 1, MT, MT, MT, MT, vr(MC, 2)))
    def pre2(g):
        k = g.k
        if not final and not MP0:
            MC = g.RES; MT = g.RES + 8
            l = k.newlabel('noC')
            k.e('s_cmp_lg_u32 s46, 1')
            k.e('s_cbranch_scc1 %s' % l)
            srd(k, 80, 'ws', 0, 256 * KB)
            k.e('v_lshlrev_b32 v%d, 2, v1' % (MT + 1))
            k.e('v_add_u32 v%d, %d, v%d' % (MT, AUX_A, MT + 1))
            for w in range(4): k.e('ds_read_b32 v%d, v%d offset:%d' % (MC + w, MT, w * 8192))
            k.e('''
            s_and_b32 s68, s2, 3
            s_lshl_b32 s68, s68, 14
            s_lshr_b32 s69, s2, 2
            s_lshl_b32 s69, s69, 8
            s_add_u32 s68, s68, s69
            s_add_u32 s68, s68, %d
            s_waitcnt lgkmcnt(0)
            v_add_f32 v%d, v%d, v%d
            v_add_f32 v%d, v%d, v%d
            v_add_f32 v%d, v%d, v%d
            v_min_u32 v%d, -2, v%d
            buffer_store_dword v%d, v%d, s[80:83], s68 offen sc1
            ''' % (WS_MODQ, MC, MC, MC + 1, MC + 2, MC + 2, MC + 3, MC, MC, MC + 2, MC, MC, MC, MT + 1))
            k.label(l)
        if final and not KX:
            for j in range(2):
                for t in range(2):
                    k.e('buffer_load_dwordx4 %s, v%d, s[36:39], s64 offen offset:%d sc1' % (vr(g.RES + 8 * j + 4 * t, 4), g.L16, (2 * j + t) * 1024))
    PL = env('PRELAST', 1)
    def operands(g):
        k = g.k
        for j in range(2):
            for q in range(4):
                k.e('ds_read_b128 %s, v%d offset:%d' % (vr(g.GA + 16 * j + 4 * q, 4), g.CA, j * 128 + q * 32))
        if not final or KX:
            for j in range(2):
                for q in range(4):
                    k.e('v_xor_b32 v%d, %d, v%d' % (g.TA, (j * 4 + q) * 16, g.RA))
                    k.e('ds_read_b64 %s, v%d' % (vr(g.RES + 8 * j + 2 * q, 2), g.TA))
        if not final:
            for j in range(2):
                for q in range(4):
                    k.e('ds_read_b128 %s, v%d offset:%d' % (vr(g.G2 + 16 * j + 4 * q, 4), g.CA, 512 + j * 128 + q * 32))
    def epi(g):
        k = g.k
        assert g.M16
        if not PL: operands(g)
        k.e('s_waitcnt lgkmcnt(0)' if (KX or not final) else 's_waitcnt vmcnt(0) lgkmcnt(0)')
        T = g.FR
        for j in range(2):
            a = g.acc(0, j)
            for d in range(8):
                unpack(k, T + 2 * (d % 4), T + 2 * (d % 4) + 1, g.RES + 8 * j + d)
                k.e(pk('fma', a + 2 * d, a + 2 * d, g.GA + 16 * j + 2 * d, T + 2 * (d % 4)))
            if not final:
                if j == 0: k.e('s_waitcnt lgkmcnt(0)')
                for d in range(8): k.e(pk('mul', g.G2 + 16 * j + 2 * d, a + 2 * d, g.G2 + 16 * j + 2 * d))
                store_xf_tile(g, g.G2 + 16 * j, g.GA + 16 * j, g.L16, 36, 's65', j * 2048)
        def keep():
            for j in range(2):
                a = g.acc(0, j)
                if final or KX:
                    for d in range(8):
                        k.e('v_cvt_pk_bf16_f32 v%d, v%d, v%d' % (g.RES + 8 * j + d, a + 2 * d, a + 2 * d + 1))
                    for q in range(4):
                        k.e('v_xor_b32 v%d, %d, v%d' % (g.TA, (j * 4 + q) * 16, g.RA))
                        k.e('ds_write_b64 v%d, %s' % (g.TA, vr(g.RES + 8 * j + 2 * q, 2)))
                else:
                    store_xf_tile(g, a, g.RES + 8 * j, g.L16, 36, 's64', j * 2048)
        if final: keep()
        if final:
            k.e('''
            v_lshrrev_b32 v5, 3, v1
            v_and_b32 v6, 7, v1
            s_lshl_b32 s67, s51, 3
            v_or_b32 v7, s67, v6
            v_xor_b32 v7, v7, v5
            v_lshlrev_b32 v7, 4, v7
            v_lshl_add_u32 v7, v5, 8, v7
            v_add_u32 v7, s66, v7              ; b=0 address
            v_xor_b32 v%d, 128, v7             ; rows 8..15: slot ^ 8
            v_lshlrev_b32 v5, 11, v5
            v_lshl_add_u32 v5, v6, 4, v5       ; global: row*2048 + c*16
            s_waitcnt lgkmcnt(0)
            ''' % g.TA)
            for b in range(4):
                k.e('ds_read_b128 %s, v%d offset:%d' % (vr(g.GA + 4 * b, 4), 7 if b % 2 == 0 else g.TA, b * 2048))
            for b in range(4):
                k.e('s_waitcnt lgkmcnt(%d)' % (3 - b))
                k.e('buffer_store_dwordx4 %s, v5, s[32:35], s63 offen%s' % (vr(g.GA + 4 * b, 4), os.environ.get('OUTFLAG', ' sc1')))
                k.e('s_add_u32 s63, s63, %d' % (8 * 2048))
            l = k.newlabel('ep')
            k.e('s_or_b32 s67, s2, s46')
            k.e('s_cbranch_scc1 %s' % l)
            srd(k, 96, 'ws', WS_EPOCH, 8)
            k.e('v_mov_b32 v%d, s84' % FV); k.e('v_mov_b32 v%d, s85' % (FV + 1)); k.e('v_mov_b32 v%d, 0' % (FV + 2))
            flag_store(k, '0')
            k.label(l)
        else:
            S1 = T + 8; S2 = T + 10
            a0 = g.acc(0, 0)
            k.e(pk('add', S1, a0, a0 + 2))
            k.e(pk('mul', S2, a0, a0))
            k.e(pk('fma', S2, a0 + 2, a0 + 2, S2))
            for r in range(4, 32, 2):
                k.e(pk('add', S1, S1, a0 + r))
                k.e(pk('fma', S2, a0 + r, a0 + r, S2))
            k.e('v_add_f32 v%d, v%d, v%d' % (S1, S1, S1 + 1))
            k.e('v_add_f32 v%d, v%d, v%d' % (S1 + 1, S2, S2 + 1))
            k.e('v_mov_b32 v%d, v%d' % (S2, S1))
            k.e('v_mov_b32 v%d, v%d' % (S2 + 1, S1 + 1))
            k.e('''
            s_lshl_b32 s66, s30, 4
            s_lshl_b32 s67, s31, 1
            s_add_u32 s66, s66, s67
            s_add_u32 s66, s66, s51
            s_lshl_b32 s66, s66, 9             ; (tm*16+part)*512
            s_lshl_b32 s67, s50, 8
            s_add_u32 s66, s66, s67
            v_lshlrev_b32 v5, 3, v3
            ''')
            k.e('v_permlane32_swap_b32 v%d, v%d' % (S1, S2))
            k.e('v_permlane32_swap_b32 v%d, v%d' % (S1 + 1, S2 + 1))
            k.e('s_nop 1')
            k.e(pk('add', S1, S1, S2))
            k.e('s_mov_b32 exec_hi, 0')
            k.e('buffer_store_dwordx2 %s, v5, s[32:35], s66 offen%s' % (vr(S1, 2), WT))
            k.e('s_mov_b32 exec_hi, -1')
            if g.LE and KX:
                k.e('s_barrier'); g.ended = 1
            keep()
            k.e('s_waitcnt lgkmcnt(0)')
    if final:
        sig = None
        wait = ('s_lshr_b32 s100, s30, 1\ns_lshl_b32 s100, s100, 8\ns_add_u32 s100, s100, %d' % FL_WSP, 56)
    else:
        sig = 's_lshr_b32 s100, s30, 1\ns_lshl_b32 s100, s100, 8\ns_and_b32 s101, s30, 1\ns_lshl_b32 s101, s101, 7\ns_add_u32 s100, s100, s101\ns_lshl_b32 s101, s31, 4\ns_add_u32 s100, s100, s101\ns_add_u32 s100, s100, %d' % FL_WO
        wait = ('s_lshr_b32 s100, s30, %d\ns_lshl_b32 s100, s100, 8\ns_add_u32 s100, s100, %d' % (1 if AT2 else 2, FL_ATT), 16 if AT2 else 32)
    k_gemm(k, c, 32, 8, 3, 2, 4, 64, 128, 2, 2, K, 64, 4, X, ('w', wname, 2048, None), pre, pre2, epi, aux=None if EARLYV else aux, auxsz=17 * KB, auxbase=AUX_A, aux_end=None if EARLYV else aux_end,
           auxpre=xtile if EARLYV and not final else None, wait=wait, sig=sig, GU=2, RWD=4, early=early, altmap=True, prelast=operands if PL else None,
           own='s_lshr_b32 s68, s47, 2\ns_mul_i32 s68, s68, 7\ns_lshr_b32 s69, s48, 2\ns_add_u32 s68, s68, s69\ns_min_u32 s68, s68, 13\ns_lshl_b32 s68, s68, 1' if final else None, ownlim=224)

ZKEEP = 72
BSV = 244
MSV = 240
def stats_finish(k, S, n, R, M, T):
    k.e('v_mov_b32 v%d, v%d' % (T, S))
    k.e('v_mov_b32 v%d, v%d' % (T + 1, S + 1))
    k.e('s_nop 1')
    k.e('v_permlane32_swap_b32 v%d, v%d' % (S, T))
    k.e('v_permlane32_swap_b32 v%d, v%d' % (S + 1, T + 1))
    k.e('s_nop 1')
    k.e(pk('add', S, S, T))
    k.e('v_mul_f32 v%d, %s, v%d' % (S, hx(1.0 / n), S))
    k.e('v_mul_f32 v%d, v%d, v%d' % (T, S, S))
    k.e('v_mov_b32 v%d, %s' % (T + 1, hx(1.0 / n)))
    k.e('v_fma_f32 v%d, v%d, v%d, -v%d' % (S + 1, S + 1, T + 1, T))
    k.e('v_max_f32 v%d, 0, v%d' % (S + 1, S + 1))
    k.e('v_add_f32 v%d, %s, v%d' % (S + 1, hx(1e-5), S + 1))
    k.e('v_rsq_f32 v%d, v%d' % (R, S + 1))
    k.e('s_nop 0')
    k.e('v_mul_f32_e64 v%d, -v%d, v%d' % (M, S, R))

def uw_job(k, LB):
    k.e("""
    v_lshrrev_b32 v2, 3, v0
    v_and_b32 v3, 7, v0
    v_lshlrev_b32 v4, 6, v2
    s_mov_b32 s31, %d
    v_mul_lo_u32 v5, v2, s31
    v_lshl_add_u32 v5, v3, 4, v5
    s_movk_i32 s44, %d
    s_movk_i32 s45, %d
    s_lshl_b32 s30, s30, 1
    s_waitcnt lgkmcnt(0)
    """ % (16 * 7168, 4 * 4096, 3 * 4096))
    srd(k, 36, 'w_in'); srd(k, 40, 'ws', 0, 64 * KB)
    AV = 72; SV = 88; UA = 104; WA = 112
    lq = k.newlabel('uwq')
    poll_init(k)
    k.label(lq)
    for q in range(4): k.e('buffer_load_dwordx4 %s, v4, s[40:43], s44 offen offset:%d sc1' % (vr(AV + 4 * q, 4), q * 16))
    for q in range(4): k.e('buffer_load_dwordx4 %s, v4, s[40:43], s45 offen offset:%d sc1' % (vr(SV + 4 * q, 4), q * 16))
    if not k.c.first:
        k.e('s_waitcnt vmcnt(0)')
        k.e('v_max_u32 v6, v%d, v%d' % (AV, AV + 1))
        for r in range(AV + 2, AV + 32, 2): k.e('v_max3_u32 v6, v6, v%d, v%d' % (r, r + 1))
        k.e('v_cmp_eq_u32 vcc, -1, v6')
        poll_back(k, lq)
    k.e('s_mov_b32 s50, %d' % LB)
    lp = k.newlabel('uw')
    k.label(lp)
    k.e('s_lshl_b32 s31, s30, 7')
    for j in range(16):
        k.e('buffer_load_dwordx4 %s, v5, s[36:39], s31 offen' % vr(8 + 4 * j, 4))
        k.e('s_add_u32 s31, s31, 7168')
    for j in range(16):
        k.e('s_waitcnt vmcnt(%d)' % (15 - j))
        for d in range(4):
            unpack(k, 6, 7, 8 + 4 * j + d)
            for acc, cf in ((UA, AV), (WA, SV)):
                op = 'v_mul_f32' if j == 0 else 'v_fmac_f32'
                k.e('%s v%d, v6, v%d' % (op, acc + 2 * d, cf + j))
                k.e('%s v%d, v7, v%d' % (op, acc + 2 * d + 1, cf + j))
    red_lanes(k, list(range(UA, UA + 16)), list(range(8, 24)))
    lskip = k.newlabel('uwskip')
    k.e("""
    s_lshl_b32 s47, s46, 9
    s_add_u32 s47, s47, s50
    v_lshl_add_u32 v2, v3, 5, s47      ; pass*4096 + wave*512 + chunk*32
    v_cmp_gt_u32 vcc, 8, v1
    s_and_saveexec_b64 s[48:49], vcc
    ds_write_b128 v2, v[104:107]
    ds_write_b128 v2, v[108:111] offset:16
    ds_write_b128 v2, v[112:115] offset:256
    ds_write_b128 v2, v[116:119] offset:272
    s_mov_b64 exec, s[48:49]
    s_waitcnt lgkmcnt(0)
    s_barrier
    s_cmp_ge_u32 s46, 2
    s_cbranch_scc1 %s
    v_lshl_add_u32 v2, v0, 2, s50      ; wave0: u cols, wave1: w0 cols
    """ % lskip)
    for w in range(8): k.e('ds_read_b32 v%d, v2 offset:%d' % (8 + w, w * 512))
    k.e('s_waitcnt lgkmcnt(0)')
    for w in range(1, 8): k.e('v_add_f32 v8, v8, v%d' % (8 + w))
    k.e("""
    v_min_u32 v8, -2, v8
    v_lshlrev_b32 v2, 2, v1
    s_lshl_b32 s31, s30, 8
    s_lshl_b32 s47, s46, 14
    s_add_u32 s31, s31, s47
    s_add_u32 s31, s31, %d
    buffer_store_dword v8, v2, s[40:43], s31 offen sc1
    s_waitcnt vmcnt(0)
    """ % WS_UW)
    k.label(lskip)
    k.e("""
    s_add_u32 s30, s30, 1
    s_add_u32 s50, s50, 4096
    s_cmp_lt_u32 s50, %d
    s_cbranch_scc1 %s
    """ % (LB + 8192, lp))

GC1 = -2.0 * 0.7978845608028654 * LOG2E
def gelu_ops(k, a, U, W0, T, R, M, after_t=None):
    for r in range(0, 16, 2): k.e(pk('fma', T + r, U + r, (M,), W0 + r))
    if after_t: after_t()
    for r in range(0, 16, 2): k.e(pk('fma', a + r, a + r, (R,), T + r))
    for r in range(0, 16, 2): k.e(pk('mul', T + r, a + r, a + r))
    for r in range(0, 16, 2): k.e(pk('fma', T + r, T + r, 's[70:71]', (6,)))
    for r in range(0, 16, 2): k.e(pk('mul', T + r, T + r, a + r))
    for r in range(16): k.e('v_exp_f32 v%d, v%d' % (T + r, T + r))
    for r in range(0, 16, 2): k.e(pk('add', T + r, T + r, '1.0'))
    for r in range(16): k.e('v_rcp_f32 v%d, v%d' % (T + r, T + r))
    for r in range(0, 16, 2): k.e(pk('mul', a + r, a + r, T + r))
def stat_ops(k, a, S1, S2, first):
    for r in range(0, 16, 2):
        if first and r == 0:
            k.e(pk('add', S1, a, a + 2)); k.e(pk('mul', S2, a, a))
        else:
            if not (first and r == 2): k.e(pk('add', S1, S1, a + r))
            k.e(pk('fma', S2, a + r, a + r, S2))

def k_win(k, c):
    SPLIT = env('SPLIT', 0)
    XFER = 48 * KB
    def mid(g):
        k = g.k
        Z = 64; U = 96; T = 160; S = 176; RM_ = 180
        k.e("""
        s_lshl_b32 s67, s46, 13
        s_add_u32 s67, s67, %d
        v_lshl_add_u32 v44, v1, 4, s67     ; transfer area
        s_lshl_b32 s67, s46, 9
        s_add_u32 s67, s67, %d
        v_lshl_add_u32 v45, v1, 3, s67     ; (R,M) / stats slot
        v_lshrrev_b32 v46, 5, v1
        v_lshlrev_b32 v46, 4, v46
        v_add_u32 v46, %d, v46
        s_mov_b32 s70, %s
        s_mov_b32 s71, s70
        v_mov_b32 v6, %s
        ds_read_b64 v[%d:%d], v45
        """ % (XFER, g.AUX + 2048, g.AUX, hx(GC1 * 0.044715), hx(GC1), RM_, RM_ + 1))
        for b in range(2):
            for q in range(4):
                k.e('ds_read_b128 %s, v46 offset:%d' % (vr(U + 32 * b + 4 * q, 4), (2 + b) * 128 + q * 32))
                k.e('ds_read_b128 %s, v46 offset:%d' % (vr(U + 32 * b + 16 + 4 * q, 4), 1024 + (2 + b) * 128 + q * 32))
        k.e('s_setprio 1')
        k.e('s_waitcnt lgkmcnt(0)')
        k.e('v_mov_b32 v%d, v%d' % (RM_ + 2, RM_ + 1))
        k.e('s_barrier')
        for q in range(8): k.e('ds_read_b128 %s, v44 offset:%d' % (vr(Z + 4 * q, 4), q * 1024))
        for b in range(2):
            a = Z + 16 * b
            k.e('s_waitcnt lgkmcnt(%d)' % (4 - 4 * b))
            for hb in range(2):
                for e in range(4): k.e('v_permlane16_swap_b32 v%d, v%d' % (a + 8 * hb + e, a + 8 * hb + 4 + e))
            gelu_ops(k, a, U + 32 * b, U + 32 * b + 16, T, RM_, RM_ + 2)
            stat_ops(k, a, S, S + 2, b == 0)
        k.e('v_add_f32 v%d, v%d, v%d' % (S, S, S + 1))
        k.e('v_add_f32 v%d, v%d, v%d' % (S + 1, S + 2, S + 3))
        k.e('ds_write_b64 v45, %s' % vr(S, 2))
        k.e('s_waitcnt lgkmcnt(0)')
        k.e('s_barrier')
        for q in range(8): k.e('ds_write_b128 v44, %s offset:%d' % (vr(Z + 4 * q, 4), q * 1024))
        k.e('s_waitcnt lgkmcnt(0)')
    LP = 1; LPJ = env('LPJ', 3)
    KZ = c.nxt == 'wsp' and env('KEEPZ', 1)
    def post(g):
        if not LP: return
        k = g.k
        srd(k, 36, 'ws', WS_G, 256 * KB)
        k.e("""
        s_lshl_b32 s65, s30, 2
        s_add_u32 s65, s65, s46
        s_lshl_b32 s65, s65, 12            ; rb32*4096
        v_and_b32 v2, 31, v1
        v_lshrrev_b32 v3, 5, v1
        v_mul_u32_u24 v3, %d, v3
        v_lshl_add_u32 v2, v2, 3, v3
        s_lshl_b32 s67, s46, 9
        s_add_u32 s67, s67, %d
        v_lshl_add_u32 v3, v1, 3, s67
        s_setprio 2
        s_barrier
        """ % (7 * 256, g.AUX + 2048))
        lp = k.newlabel('lpoll')
        poll_init(k)
        k.label(lp)
        for p in range(7):
            k.e('buffer_load_dwordx2 %s, v2, s[36:39], s65 offen offset:%d sc1' % (vr(24 + 2 * p, 2), p * 256))
        k.e('s_waitcnt vmcnt(0)')
        k.e('v_max_u32 v5, v24, v25')
        for p in range(1, 7): k.e('v_max3_u32 v5, v5, v%d, v%d' % (24 + 2 * p, 25 + 2 * p))
        k.e('v_cmp_eq_u32 vcc, -1, v5')
        poll_back(k, lp)
        for p in range(1, 7): k.e(pk('add', 24, 24, 24 + 2 * p))
        stats_finish(k, 24, 1792, 40, 41, 26)
        k.e('ds_write_b64 v3, v[40:41]')
        k.e('s_waitcnt lgkmcnt(0)')
        k.e('s_barrier')
    def uw_loads(g):
        g.k.e('buffer_load_dwordx4 v[24:27], v2, s[40:43], s62 offen sc1')
        g.k.e('buffer_load_dwordx4 v[28:31], v2, s[40:43], s63 offen sc1')
    def aux(g):
        k = g.k
        srd(k, 40, 'ws', WS_UW, 32 * KB)
        k.e("""
        v_and_b32 v2, 31, v1
        v_lshlrev_b32 v2, 4, v2
        v_add_u32 v3, 7168, v2
        v_cmp_gt_u32 vcc, 32, v1
        s_lshl_b32 s62, s31, 9
        s_add_u32 s63, s62, %d
        v_cndmask_b32 v2, v2, v3, vcc
        v_lshlrev_b32 v3, 4, v1
        v_add_u32 v3, %d, v3
        """ % (16 * KB, g.AUX))
        uw_loads(g)
        return 2
    def aux_end(g):
        k = g.k
        lp = k.newlabel('uwp'); lc = k.newlabel('uwc')
        poll_init(k)
        k.e('s_branch %s' % lc)
        k.label(lp)
        uw_loads(g)
        k.e('s_waitcnt vmcnt(0)')
        k.label(lc)
        k.e("""
        v_max3_u32 v4, v24, v25, v26
        v_max3_u32 v4, v4, v27, v28
        v_max3_u32 v4, v4, v29, v30
        v_max_u32 v4, v4, v31
        v_cmp_eq_u32 vcc, -1, v4
        """)
        poll_back(k, lp)
        k.e("""
        ds_write_b128 v3, v[24:27]
        ds_write_b128 v3, v[28:31] offset:1024
        s_waitcnt lgkmcnt(0)
        """)
    def pre(g):
        k = g.k
        g.L16 = alloc(g, 1, 1); g.SA = alloc(g, 1, 1); g.GA = alloc(g, 1, 1); g.CA = alloc(g, 1, 1)
        g.R = alloc(g, 2, 2); g.M = alloc(g, 2, 2); g.P = alloc(g, 16)
        srd(k, 32, 'ws', ZB, max(WS_Z, WS_Z2N) - ZB + ZSZ); srd(k, 36, 'ws', WS_ST1, 512 * KB)
        k.e('v_lshlrev_b32 v%d, 4, v1' % g.L16)
        k.e("""
        s_lshl_b32 s61, s30, 2
        s_add_u32 s61, s61, s46           ; rb32
        s_lshr_b32 s64, s61, 1
        s_lshl_b32 s64, s64, 13           ; rb64*8192
        s_and_b32 s65, s61, 1
        s_lshl_b32 s65, s65, 8
        s_add_u32 s64, s64, s65           ; x1 stats offset
        s_lshl_b32 s65, s61, 12
        s_add_u32 s65, s65, %d            ; granule offset (row block)
        s_lshl_b32 s66, s31, 8
        s_add_u32 s66, s66, s65           ; own granule
        s_mul_i32 s60, s61, %d
        s_lshl_b32 s61, s31, 13
        s_add_u32 s60, s60, s61           ; Z1 offset
        v_lshlrev_b32 v5, 3, v3
        v_lshl_add_u32 v%d, v4, 12, v5    ; h*8*512 + row*8
        v_mul_u32_u24 v6, %d, v4
        v_add_u32 v%d, v6, v5             ; h*7*256 + row*8
        v_lshlrev_b32 v%d, 4, v4
        v_add_u32 v%d, %d, v%d
        """ % (WS_G - WS_ST1, 112 * 1024, g.SA, 7 * 256, g.GA, g.CA, g.CA, g.AUX, g.CA))
    def early(g):
        k = g.k
        for p in range(8):
            k.e('buffer_load_dwordx2 %s, v%d, s[36:39], s64 offen offset:%d sc1' % (vr(g.P + 2 * p, 2), g.SA, p * 512))
        k.e('s_waitcnt vmcnt(0)')
        for p in range(1, 8): k.e(pk('add', g.P, g.P, g.P + 2 * p))
        stats_finish(k, g.P, 1024, g.R, g.M, g.P + 2)
        if SPLIT:
            k.e('s_lshl_b32 s67, s46, 9')
            k.e('s_add_u32 s67, s67, %d' % (g.AUX + 2048))
            k.e('v_lshl_add_u32 v%d, v1, 3, s67' % g.SA)
            k.e('s_lshl_b32 s67, s46, 13')
            k.e('s_add_u32 s67, s67, %d' % XFER)
            k.e('v_lshl_add_u32 v%d, v1, 4, s67' % g.GA)
            k.e('v_mov_b32 v%d, v%d' % (g.R + 1, g.M))
            k.e('ds_write_b64 v%d, %s' % (g.SA, vr(g.R, 2)))
            k.e('s_waitcnt lgkmcnt(0)')
    def pre2(g): pass
    def epi(g):
        k = g.k
        c1 = -2.0 * 0.7978845608028654 * LOG2E
        U = g.FR; W0 = g.FR + 16; T = g.FR + 32; PS = g.FR + 48
        def rd_uw(j):
            for q in range(4):
                k.e('ds_read_b128 %s, v%d offset:%d' % (vr(U + 4 * q, 4), g.CA, j * 128 + q * 32))
                k.e('ds_read_b128 %s, v%d offset:%d' % (vr(W0 + 4 * q, 4), g.CA, 1024 + j * 128 + q * 32))
        k.e('s_nop 7')
        rd_uw(0)
        k.e('s_mov_b32 s70, %s' % hx(c1 * 0.044715)); k.e('s_mov_b32 s71, s70')
        k.e('v_mov_b32 v6, %s' % hx(c1))
        S1 = g.P; S2 = g.P + 2
        GR = g.P + 2
        n = 0
        def poll_loads():
            for p in range(7):
                k.e('buffer_load_dwordx2 %s, v%d, s[36:39], s65 offen offset:%d sc1' % (vr(GR + 2 * p, 2), g.GA, p * 256))
        cnt = [0]
        def block(j):
            a = g.acc(0, j)
            g.fix(0, j)
            k.e('s_waitcnt lgkmcnt(0)')
            lastz2 = 1 if SPLIT else 3
            gelu_ops(k, a, U, W0, T, g.R, g.M, after_t=(lambda: rd_uw(j + 1)) if (j < 7 and not (j == lastz2 and g.deferred)) else None)
            if j >= 4:
                if KZ:
                    for d in range(8): k.e('v_cvt_pk_bf16_f32 v%d, v%d, v%d' % (ZKEEP + 8 * (j - 4) + d, a + 2 * d, a + 2 * d + 1))
                else:
                    k.e('s_add_u32 s61, s60, %d' % (WS_Z - ZB + (j - 4) * 2048))
                    store_xf_tile(g, a, PS + 8 * (cnt[0] % 3), g.L16, 32, 's61', 0); cnt[0] += 1
            else: stat_ops(k, a, S1, S2, j == 0)
        if SPLIT:
            assert g.deferred and LPJ == 3
            for q in range(8): k.e('ds_write_b128 v%d, %s offset:%d' % (g.GA, vr(g.acc(0, 2) + 4 * q, 4), q * 1024))
            k.e('s_waitcnt lgkmcnt(0)')
            k.e('s_barrier')
        for j in range(2 if SPLIT else 4): block(j)
        k.e('v_add_f32 v%d, v%d, v%d' % (S1, S1, S1 + 1))
        k.e('v_add_f32 v%d, v%d, v%d' % (S1 + 1, S2, S2 + 1))
        if SPLIT:
            k.e('s_barrier')
            k.e('ds_read_b64 %s, v%d' % (vr(S2, 2), g.SA))
            k.e('s_waitcnt lgkmcnt(0)')
            k.e(pk('add', S1, S1, S2))
        k.e('v_mov_b32 v%d, v%d' % (S2, S1))
        k.e('v_mov_b32 v%d, v%d' % (S2 + 1, S1 + 1))
        k.e('v_lshlrev_b32 v5, 3, v3')
        k.e('s_nop 0')
        k.e('v_permlane32_swap_b32 v%d, v%d' % (S1, S2))
        k.e('v_permlane32_swap_b32 v%d, v%d' % (S1 + 1, S2 + 1))
        k.e('s_nop 1')
        k.e(pk('add', S1, S1, S2))
        k.e('v_min_u32 v%d, -2, v%d' % (S1, S1))
        k.e('v_min_u32 v%d, -2, v%d' % (S1 + 1, S1 + 1))
        k.e('s_mov_b32 exec_hi, 0')
        k.e('buffer_store_dwordx2 %s, v5, s[36:39], s66 offen sc1' % vr(S1, 2))
        k.e('s_mov_b32 exec_hi, -1')
        if env('WM', 0): mark(k, 0)
        NB4 = env('NB4', 1) if KZ else 4
        if g.deferred:
            g.deferred()
            rd_uw(4)
        if LPJ == 3: k.e('s_barrier')
        if SPLIT:
            assert NB4 >= 1
            for q in range(8): k.e('ds_read_b128 %s, v%d offset:%d' % (vr(g.acc(0, 2) + 4 * q, 4), g.GA, q * 1024))
        for j in range(4, 4 + NB4):
            block(j)
            if j == LPJ: k.e('s_barrier')
        if env('WM', 0): mark(k, 1)
        R2 = g.P + 4; M2 = g.P + 6
        k.e('s_lshl_b32 s67, s46, 9')
        k.e('s_add_u32 s67, s67, %d' % (g.AUX + 2048))
        k.e('v_lshl_add_u32 v5, v1, 3, s67')
        k.e('s_barrier')
        k.e('ds_read_b64 %s, v5' % vr(R2, 2))
        k.e('s_waitcnt lgkmcnt(0)')
        mark(k, 3)
        k.e('v_mov_b32 v%d, v%d' % (M2, R2 + 1))
        zo = ZOWN and c.nxt == 'wsp'
        if zo:
            assert g.M16
            ZA = g.P + 8
            k.e('''
            s_lshr_b32 s67, s46, 1
            s_lshl_b32 s67, s67, 15
            s_and_b32 s68, s46, 1
            s_lshl_b32 s68, s68, 13
            s_add_u32 s67, s67, s68
            s_add_u32 s67, s67, 16384
            v_bfe_u32 v5, v1, 4, 1
            v_lshl_add_u32 v%d, v5, 12, s67
            v_bfe_u32 v5, v1, 2, 2
            v_lshl_add_u32 v%d, v5, 8, v%d
            v_and_b32 v5, 2, v5
            v_or_b32 v5, v5, v4
            v_lshl_add_u32 v%d, v5, 6, v%d
            v_and_b32 v5, 3, v1
            v_lshl_add_u32 v%d, v5, 4, v%d
            v_xor_b32 v%d, 128, v%d
            ''' % (ZA, ZA, ZA, ZA, ZA, ZA, ZA, ZA + 1, ZA))
        for j in range(4):
            a = g.acc(0, j)
            for r in range(0, 16, 2): k.e(pk('fma', a + r, a + r, (R2,), (M2,)))
            k.e('s_add_u32 s61, s60, %d' % (WS_Z2N - ZB + j * 2048))
            if zo:
                store_xf_tile(g, a, a, g.L16, 32, 's61', 0)
            else:
                store_xf_tile(g, a, PS + 8 * (cnt[0] % 3), g.L16, 32, 's61', 0); cnt[0] += 1
        if zo:
            for j in range(4):
                for t in range(2): k.e('ds_write_b128 v%d, %s offset:%d' % (ZA + t, vr(g.acc(0, j) + 4 * t, 4), j * 1024))
        if g.LE: k.e('s_barrier')
        rest = list(range(4 + NB4, 8))
        NBS = env('NBS', 2)
        for j in rest[:NBS]: block(j)
        signal(k, 'C')
        if zo and LPW: k.e('s_barrier')
        for j in rest[NBS:]: block(j)
        k.e('s_waitcnt lgkmcnt(0)')
    sig = 's_lshl_b32 s100, s31, 8\ns_lshl_b32 s101, s30, 4\ns_add_u32 s100, s100, s101\ns_add_u32 s100, s100, %d' % FL_WIN
    wait = ('s_lshl_b32 s100, s30, 8\ns_add_u32 s100, s100, %d' % FL_WO, 64)
    H22 = env('H22', 0)
    k_gemm(k, c, 16, 14, 2, 2, 7, 128, 256, 2 if H22 else 4, 2 if H22 else 1, 1024, 32, 4, ('xf', WS_X1S, 1024), ('w', 'w_in', 7168, (256, [3584, 3584 + 128, 0, 128])),
           pre, pre2, epi, aux=aux, auxsz=4 * KB, auxbase=AUX_B, aux_end=aux_end, post=post, mid=mid if SPLIT else None, selfsig=True, early=early, SOFT=3, DEFER=3, dcols=([0, 1], [2, 3]) if H22 else ([0, 1, 2, 3], [4, 5, 6, 7]), JG=2, lazyfix=True, side=(28, uw_job), wait=wait, sig=sig)

def k_win2(k, c):
    assert c.nxt == 'wsp' and ZOWN
    def post(g):
        k = g.k
        srd(k, 36, 'ws', WS_G2, 512 * KB)
        k.e("""
        s_lshl_b32 s65, s30, 1
        s_lshr_b32 s66, s46, 1
        s_add_u32 s65, s65, s66
        s_lshl_b32 s65, s65, 14            ; rb64*16K
        s_and_b32 s66, s46, 1
        s_lshl_b32 s66, s66, 8
        s_add_u32 s65, s65, s66
        s_add_u32 s66, s65, 3584
        v_and_b32 v2, 31, v1
        v_lshrrev_b32 v3, 5, v1
        v_mul_u32_u24 v3, %d, v3
        v_lshl_add_u32 v2, v2, 3, v3
        s_lshl_b32 s67, s46, 9
        s_add_u32 s67, s67, %d
        v_lshl_add_u32 v3, v1, 3, s67
        s_setprio 2
        s_barrier
        """ % (14 * 512, g.AUX + 2048))
        lp = k.newlabel('lpoll')
        poll_init(k)
        k.label(lp)
        for p in range(14):
            k.e('buffer_load_dwordx2 %s, v2, s[36:39], s%d offen offset:%d sc1' % (vr(24 + 2 * p, 2), 65 + p // 7, (p % 7) * 512))
        k.e('s_waitcnt vmcnt(0)')
        k.e('v_max_u32 v5, v24, v25')
        for p in range(1, 14): k.e('v_max3_u32 v5, v5, v%d, v%d' % (24 + 2 * p, 25 + 2 * p))
        k.e('v_cmp_eq_u32 vcc, -1, v5')
        poll_back(k, lp)
        for p in range(1, 14): k.e(pk('add', 24, 24, 24 + 2 * p))
        stats_finish(k, 24, 1792, 56, 57, 26)
        k.e('ds_write_b64 v3, v[56:57]')
        k.e('s_waitcnt lgkmcnt(0)')
        k.e('s_barrier')
        if env('WLE', 0): k.e('s_barrier')
    def uw_loads(g):
        g.k.e('buffer_load_dwordx4 v[24:27], v2, s[40:43], s62 offen sc1')
        g.k.e('buffer_load_dwordx4 v[28:31], v2, s[40:43], s63 offen sc1')
    def aux(g):
        k = g.k
        srd(k, 40, 'ws', WS_UW, 32 * KB)
        k.e("""
        v_and_b32 v2, 31, v1
        v_lshlrev_b32 v2, 4, v2
        v_add_u32 v3, 7168, v2
        v_cmp_gt_u32 vcc, 32, v1
        s_lshl_b32 s62, s31, 9
        s_add_u32 s63, s62, %d
        v_cndmask_b32 v2, v2, v3, vcc
        v_lshlrev_b32 v3, 4, v1
        v_add_u32 v3, %d, v3
        """ % (16 * KB, g.AUX))
        uw_loads(g)
        return 2
    def aux_end(g):
        k = g.k
        lp = k.newlabel('uwp'); lc = k.newlabel('uwc')
        poll_init(k)
        k.e('s_branch %s' % lc)
        k.label(lp)
        uw_loads(g)
        k.e('s_waitcnt vmcnt(0)')
        k.label(lc)
        k.e("""
        v_max3_u32 v4, v24, v25, v26
        v_max3_u32 v4, v4, v27, v28
        v_max3_u32 v4, v4, v29, v30
        v_max_u32 v4, v4, v31
        v_cmp_eq_u32 vcc, -1, v4
        """)
        poll_back(k, lp)
        k.e("""
        ds_write_b128 v3, v[24:27]
        ds_write_b128 v3, v[28:31] offset:1024
        s_waitcnt lgkmcnt(0)
        """)
    def pre(g):
        k = g.k
        g.L16 = alloc(g, 1, 1); g.L8 = alloc(g, 1, 1); g.CA = alloc(g, 1, 1)
        g.R = alloc(g, 4); g.M = alloc(g, 4); g.P = alloc(g, 16)
        srd(k, 32, 'ws', WS_Z2N, ZSZ); srd(k, 36, 'ws', WS_ST1, 256 * KB); srd(k, 40, 'ws', WS_G2, 512 * KB)
        k.e('v_lshlrev_b32 v%d, 4, v1' % g.L16)
        k.e('v_lshlrev_b32 v%d, 3, v1' % g.L8)
        k.e("""
        s_lshl_b32 s61, s30, 1
        s_add_u32 s61, s61, s50           ; rb64
        s_lshl_b32 s64, s61, 13           ; x1 stats offset
        s_add_u32 s65, s64, 4096
        s_lshl_b32 s66, s31, 1
        s_add_u32 s66, s66, s51
        s_lshl_b32 s66, s66, 9
        s_lshl_b32 s67, s61, 14
        s_add_u32 s66, s66, s67           ; own granule
        s_mul_i32 s60, s61, %d
        s_lshl_b32 s61, s31, 13
        s_add_u32 s60, s60, s61
        s_lshl_b32 s61, s51, 12
        s_add_u32 s60, s60, s61           ; Z2N offset of block (0,0)
        s_add_u32 s61, s60, %d
        s_lshl_b32 s67, s51, 8
        s_add_u32 s67, s67, %d
        v_lshl_add_u32 v%d, v4, 4, s67
        """ % (2 * 112 * 1024, 112 * 1024, g.AUX, g.CA))
    def early(g):
        k = g.k
        if ZF32:
            assert g.free <= BSV
            srd(k, 80, 'b_sp')
            k.e('s_lshr_b32 s67, s64, 6')
            k.e('v_and_b32 v5, 15, v1')
            k.e('v_lshlrev_b32 v5, 1, v5')
            for q in range(4): k.e('buffer_load_ushort v%d, v5, s[80:83], s67 offen offset:%d' % (BSV + q, q * 32))
        Pp = g.FR
        for p in range(16):
            k.e('buffer_load_dwordx2 %s, v%d, s[36:39], s%d offen offset:%d sc1' % (vr(Pp + 2 * p, 2), g.L8, 64 + p // 8, (p % 8) * 512))
        k.e('s_waitcnt vmcnt(0)')
        for p in range(1, 16): k.e(pk('add', Pp, Pp, Pp + 2 * p))
        T_ = Pp + 2
        k.e('v_mul_f32 v%d, %s, v%d' % (Pp, hx(1.0 / 1024), Pp))
        k.e('v_mul_f32 v%d, v%d, v%d' % (T_, Pp, Pp))
        k.e('v_mov_b32 v%d, %s' % (T_ + 1, hx(1.0 / 1024)))
        k.e('v_fma_f32 v%d, v%d, v%d, -v%d' % (Pp + 1, Pp + 1, T_ + 1, T_))
        k.e('v_max_f32 v%d, 0, v%d' % (Pp + 1, Pp + 1))
        k.e('v_add_f32 v%d, %s, v%d' % (Pp + 1, hx(1e-5), Pp + 1))
        k.e('v_rsq_f32 v%d, v%d' % (g.R, Pp + 1))
        k.e('s_nop 0')
        k.e('v_mul_f32_e64 v%d, -v%d, v%d' % (g.M, Pp, g.R))
        k.e('v_mov_b32 v%d, v%d' % (g.R + 2, g.R))
        k.e('v_mov_b32 v%d, v%d' % (g.M + 2, g.M))
        k.e('s_nop 1')
        k.e('v_permlane32_swap_b32 v%d, v%d' % (g.R, g.R + 2))
        k.e('v_permlane32_swap_b32 v%d, v%d' % (g.M, g.M + 2))
    def epi(g):
        k = g.k
        U = g.FR; W0 = g.FR + 16; T = g.FR + 32
        def rd_uw(j):
            o = (j // 2) * 512 + (j % 2) * 128
            for q in range(4):
                k.e('ds_read_b128 %s, v%d offset:%d' % (vr(U + 4 * q, 4), g.CA, o + q * 32))
                k.e('ds_read_b128 %s, v%d offset:%d' % (vr(W0 + 4 * q, 4), g.CA, 1024 + o + q * 32))
        rd_uw(0)
        k.e('s_mov_b32 s70, %s' % hx(GC1 * 0.044715)); k.e('s_mov_b32 s71, s70')
        k.e('v_mov_b32 v6, %s' % hx(GC1))
        SS = g.P
        def block(n):
            j, i = n // 2, n % 2
            a = g.acc(i, j)
            g.fix(i, j)
            if i == 0: k.e('s_waitcnt lgkmcnt(0)')
            gelu_ops(k, a, U, W0, T, g.R + 2 * i, g.M + 2 * i, after_t=(lambda: rd_uw(j + 1)) if (i == 1 and j in (0, 2)) else None)
            if j >= 2:
                if not ZF32:
                    for d in range(8): k.e('v_cvt_pk_bf16_f32 v%d, v%d, v%d' % (a + d, a + 2 * d, a + 2 * d + 1))
            else: stat_ops(k, a, SS + 4 * i, SS + 4 * i + 2, j == 0)
        for n in range(4): block(n)
        for i in range(2):
            k.e('v_add_f32 v%d, v%d, v%d' % (SS + 4 * i, SS + 4 * i, SS + 4 * i + 1))
            k.e('v_add_f32 v%d, v%d, v%d' % (SS + 4 * i + 1, SS + 4 * i + 2, SS + 4 * i + 3))
        k.e('s_nop 1')
        k.e('v_permlane32_swap_b32 v%d, v%d' % (SS, SS + 4))
        k.e('v_permlane32_swap_b32 v%d, v%d' % (SS + 1, SS + 5))
        k.e('s_nop 1')
        k.e(pk('add', SS, SS, SS + 4))
        k.e('v_min_u32 v%d, -2, v%d' % (SS, SS))
        k.e('v_min_u32 v%d, -2, v%d' % (SS + 1, SS + 1))
        k.e('buffer_store_dwordx2 %s, v%d, s[40:43], s66 offen sc1' % (vr(SS, 2), g.L8))
        if env('WM', 0): mark(k, 0)
        NB4 = env('NB4', 1)
        g.deferred()
        rd_uw(2)
        k.e('s_barrier')
        for n in range(4, 4 + NB4): block(n)
        if env('WM', 0): mark(k, 1)
        R2 = g.P + 4; ZA = g.P + 12
        k.e("""
        s_lshl_b32 s67, s50, 10
        s_add_u32 s67, s67, %d
        v_add_u32 v7, s67, v%d
        s_lshl_b32 s67, s50, 15
        s_lshl_b32 s68, s51, 11
        s_add_u32 s67, s67, s68
        s_add_u32 s67, s67, 16384
        v_bfe_u32 v5, v1, 4, 1
        v_lshl_add_u32 v%d, v5, 12, s67
        v_bfe_u32 v5, v1, 2, 2
        v_lshl_add_u32 v%d, v5, 8, v%d
        v_and_b32 v5, 2, v5
        v_or_b32 v5, v5, v4
        v_lshl_add_u32 v%d, v5, 6, v%d
        v_and_b32 v5, 3, v1
        v_lshl_add_u32 v%d, v5, 4, v%d
        v_xor_b32 v%d, 128, v%d
        s_barrier
        ds_read_b64 %s, v7
        ds_read_b64 %s, v7 offset:512
        s_waitcnt lgkmcnt(0)
        """ % (g.AUX + 2048, g.L8, ZA, ZA, ZA, ZA, ZA, ZA, ZA, ZA + 1, ZA, vr(R2, 2), vr(R2 + 4, 2)))
        mark(k, 3)
        for i in range(2): k.e('v_mov_b32 v%d, v%d' % (R2 + 4 * i + 2, R2 + 4 * i + 1))
        for i in range(2):
            for j in range(2):
                a = g.acc(i, j)
                for r in range(0, 16, 2): k.e(pk('fma', a + r, a + r, (R2 + 4 * i,), (R2 + 4 * i + 2,)))
                store_xf_tile(g, a, a, g.L16, 32, 's%d' % (60 + i), j * 2048)
        if env('WLE', 0): k.e('s_barrier')
        for i in range(2):
            for j in range(2):
                for t in range(2): k.e('ds_write_b128 v%d, %s offset:%d' % (ZA + t, vr(g.acc(i, j) + 4 * t, 4), i * 8192 + j * 1024))
        rest = list(range(4 + NB4, 8))
        NBS = env('NBS', 2)
        for n in rest[:NBS]: block(n)
        signal(k, 'C')
        for n in rest[NBS:]: block(n)
        k.e('s_waitcnt lgkmcnt(0)')
    sig = 's_lshl_b32 s100, s31, 8\ns_lshl_b32 s101, s30, 4\ns_add_u32 s100, s100, s101\ns_add_u32 s100, s100, %d' % FL_WIN
    wait = ('s_lshl_b32 s100, s30, 8\ns_add_u32 s100, s100, %d' % FL_WO, 64)
    k_gemm(k, c, 16, 14, 2, 2, 7, 128, 256, 2, 2, 1024, 32, 4, ('xf', WS_X1S, 1024), ('w', 'w_in', 7168, (256, [3584, 0, 3584 + 128, 128])),
           pre, nop, epi, aux=aux, auxsz=4 * KB, auxbase=AUX_B, aux_end=aux_end, post=post, selfsig=True, early=early, SOFT=3, DEFER=3,
           dcols=([0, 1], [2, 3]), JG=2, lazyfix=True, side=(28, uw_job), wait=wait, sig=sig, accmap=lambda i, j: (j // 2) * 4 + i * 2 + j % 2)

def k_wsp(k, c):
    def pre(g):
        k = g.k
        g.L16 = alloc(g, 1, 1); g.L2 = alloc(g, 1, 1); g.B = alloc(g, 4); g.Z = alloc(g, 32)
        srd(k, 32, 'ws', WS_Z, ZSZ); srd(k, 36, 'ws', WS_U2, ZSZ); srd(k, 40, 'b_sp')
        k.e('v_lshlrev_b32 v%d, 4, v1' % g.L16)
        k.e('''
        s_lshl_b32 s60, s31, 13
        s_lshl_b32 s61, s51, 12
        s_add_u32 s60, s60, s61
        s_lshl_b32 s61, s30, 2
        s_lshl_b32 s62, s50, 1
        s_add_u32 s61, s61, s62           ; rb0
        s_lshl_b32 s63, s61, 6
        s_mul_i32 s61, s61, %d
        s_add_u32 s60, s60, s61
        s_add_u32 s61, s60, %d
        v_lshlrev_b32 v%d, 1, v3
        ''' % (112 * 1024, 112 * 1024, g.L2))
    def pre2(g):
        k = g.k
        for i in range(2):
            k.e('buffer_load_ushort v%d, v%d, s[40:43], s63 offen offset:%d' % (g.B + 2 * i, g.L2, i * 64))
        for i in range(2):
            for j in range(2):
                for t in range(2):
                    k.e('buffer_load_dwordx4 %s, v%d, s[32:35], s%d offen offset:%d sc1' % (vr(g.Z + 16 * i + 8 * j + 4 * t, 4), g.L16, 60 + i, (2 * j + t) * 1024))
    def epi(g):
        k = g.k
        T = g.FR
        k.e('s_waitcnt vmcnt(0)')
        for i in range(2): k.e('v_lshlrev_b32 v%d, 16, v%d' % (g.B + 2 * i, g.B + 2 * i))
        k.e('s_nop 7')
        for j in range(2):
            for i in range(2):
                a = g.acc(i, j); z = g.Z + 16 * i + 8 * j
                for d in range(8): unpack(k, T + 2 * d, T + 2 * d + 1, z + d)
                for d in range(8): k.e(pk('add', a + 2 * d, a + 2 * d, (g.B + 2 * i,)))
                for d in range(8): k.e(pk('mul', a + 2 * d, a + 2 * d, T + 2 * d))
                store_xf_tile(g, a, z, g.L16, 36, 's%d' % (60 + i), j * 2048)
    KZ = c.prev == 'win' and env('KEEPZ', 1)
    def preK(g):
        k = g.k
        g.L16 = alloc(g, 1, 1); g.L2 = alloc(g, 1, 1); g.B = alloc(g, 2, 2)
        srd(k, 36, 'ws', WS_U2, ZSZ); srd(k, 40, 'b_sp')
        k.e('v_lshlrev_b32 v%d, 4, v1' % g.L16)
        k.e('''
        s_lshl_b32 s60, s31, 13
        s_lshl_b32 s61, s30, 2
        s_add_u32 s61, s61, s46           ; rb32
        s_lshl_b32 s63, s61, 6
        s_mul_i32 s61, s61, %d
        s_add_u32 s60, s60, s61
        s_add_u32 s61, s60, 4096
        v_lshlrev_b32 v%d, 1, v3
        ''' % (112 * 1024, g.L2))
    def pre2K(g):
        g.k.e('buffer_load_ushort v%d, v%d, s[40:43], s63 offen' % (g.B, g.L2))
    def epiK(g):
        k = g.k
        T = g.FR
        k.e('s_waitcnt vmcnt(0)')
        k.e('v_lshlrev_b32 v%d, 16, v%d' % (g.B, g.B))
        for j in range(4):
            a = g.acc(0, j); z = ZKEEP + 8 * j
            for d in range(8): unpack(k, T + 2 * d, T + 2 * d + 1, z + d)
            for d in range(8): k.e(pk('add', a + 2 * d, a + 2 * d, (g.B,)))
            for d in range(8): k.e(pk('mul', a + 2 * d, a + 2 * d, T + 2 * d))
            store_xf_tile(g, a, z, g.L16, 36, 's%d' % (60 + j // 2), (j % 2) * 2048)
    sig = 's_lshl_b32 s100, s30, 8\ns_lshl_b32 s101, s31, 4\ns_add_u32 s100, s100, s101\ns_add_u32 s100, s100, %d' % FL_WSP
    wait = ('s_lshl_b32 s100, s31, 8\ns_add_u32 s100, s100, %d' % FL_WIN, 64)
    def pre22(g):
        k = g.k
        g.L16 = alloc(g, 1, 1); g.L2 = alloc(g, 1, 1); g.B = alloc(g, 4)
        srd(k, 36, 'ws', WS_U2, ZSZ); srd(k, 40, 'b_sp')
        k.e('v_lshlrev_b32 v%d, 4, v1' % g.L16)
        k.e('''
        s_lshl_b32 s60, s31, 13
        s_lshl_b32 s61, s51, 12
        s_add_u32 s60, s60, s61
        s_lshl_b32 s61, s30, 2
        s_lshl_b32 s62, s50, 1
        s_add_u32 s61, s61, s62           ; rb0
        s_lshl_b32 s63, s61, 6
        s_mul_i32 s61, s61, %d
        s_add_u32 s60, s60, s61
        s_add_u32 s61, s60, %d
        v_lshlrev_b32 v%d, 1, v3
        ''' % (112 * 1024, 112 * 1024, g.L2))
    def pre22f(g):
        pre22(g)
        k = g.k
        for q in range(4): k.e('v_lshlrev_b32 v%d, 16, v%d' % (BSV + q, BSV + q))
        for i in range(2):
            for j in range(2):
                for r in range(16): k.e('v_mov_b32 v%d, v%d' % (g.acc(i, j) + r, BSV + 2 * i + (r // 4) % 2))
    def epi22f(g):
        k = g.k
        for j in range(2):
            for i in range(2):
                a = g.acc(i, j); z = ZKEEP + 16 * (2 * i + j)
                g.fix(i, j)
                k.e('s_nop 0')
                for d in range(8): k.e(pk('mul', a + 2 * d, a + 2 * d, z + 2 * d))
                store_xf_tile(g, a, a, g.L16, 36, 's%d' % (60 + i), j * 2048)
    def pre222(g):
        for i in range(2): g.k.e('buffer_load_ushort v%d, v%d, s[40:43], s63 offen offset:%d' % (g.B + 2 * i, g.L2, i * 64))
    def epi22(g):
        k = g.k
        T = g.FR
        k.e('s_waitcnt vmcnt(0)')
        for i in range(2): k.e('v_lshlrev_b32 v%d, 16, v%d' % (g.B + 2 * i, g.B + 2 * i))
        for j in range(2):
            for i in range(2):
                a = g.acc(i, j); z = ZKEEP + 16 * (2 * i + j)
                for d in range(8): unpack(k, T + 2 * d, T + 2 * d + 1, z + d)
                for d in range(8): k.e(pk('add', a + 2 * d, a + 2 * d, (g.B + 2 * i,)))
                for d in range(8): k.e(pk('mul', a + 2 * d, a + 2 * d, T + 2 * d))
                store_xf_tile(g, a, z, g.L16, 36, 's%d' % (60 + i), j * 2048)
    if W22 and ZF32: k_gemm(k, c, 16, 14, 2, 2, 7, 128, 128, 2, 2, 2048, 64, 3, ('rm', 'w_sp', 4096), ('z', WS_Z2N, 1792), pre22f, nop, epi22f, pf='w_out', wait=wait, sig=sig, dep='Y', GU=2, RWD=2, frbase=ZKEEP + 64, own='s_lshl_b32 s68, s30, 1', cinit=True, lazyfix=True)
    elif W22: k_gemm(k, c, 16, 14, 2, 2, 7, 128, 128, 2, 2, 2048, 64, 3, ('rm', 'w_sp', 4096), ('z', WS_Z2N, 1792), pre22, pre222, epi22, pf='w_out', wait=wait, sig=sig, dep='Y', GU=2, RWD=2, frbase=ZKEEP + 64, own='s_lshl_b32 s68, s30, 1')
    elif KZ: k_gemm(k, c, 16, 14, 2, 2, 7, 128, 128, 2 if env('H22', 0) else 4, 2 if env('H22', 0) else 1, 2048, 64, 3, ('rm', 'w_sp', 4096), ('z', WS_Z2N, 1792), preK, pre2K, epiK, pf='w_out', wait=wait, sig=sig, dep='Y', GU=2, RWD=2, frbase=ZKEEP + 32, own='s_lshl_b32 s68, s30, 1')
    else: k_gemm(k, c, 16, 14, 2, 2, 7, 128, 128, 2, 2, 2048, 64, 3, ('rm', 'w_sp', 4096), ('z', WS_Z2N, 1792), pre, pre2, epi, pf='w_out', wait=wait, sig=sig, dep='Y', GU=2, RWD=2, own='s_lshl_b32 s68, s30, 1')

def k_attn(k, c):
    NS = 4; STG = 32768; NST = 8
    phase_begin(k, c)
    SA, SB, O, NEGM = 8, 24, 40, 56
    L, ONES, Q, KF, VF, P = 72, 76, 80, 88, 96, 104
    A0 = 112; AC = 113; AO = 114; M = 115; T = 116; T2 = 117; PFA = 118; MA = 119; PFD = 120; MT = 124
    assert c.nxt == 'wo'
    k.e("""
    v_and_b32 v1, 63, v0
    s_mov_b32 s46, s3
    s_and_b32 s47, s2, 7
    s_lshr_b32 s48, s2, 3
    s_lshl_b32 s30, s47, 2
    s_lshr_b32 s49, s48, 3
    s_add_u32 s30, s30, s49            ; head
    s_and_b32 s31, s48, 7              ; q block (256 rows)
    v_lshlrev_b32 v%d, 4, v1
    s_lshl_b32 s50, s31, 3
    s_add_u32 s50, s50, s46            ; rb of this wave's queries
    s_lshl_b32 s51, s30, 6
    s_add_u32 s51, s51, s50
    s_lshl_b32 s51, s51, 11            ; Q offset
    s_lshl_b32 s52, s30, 18            ; KV head base
    s_lshl_b32 s53, s46, 12            ; wave part (4KB = one tile)
    s_lshl_b32 s62, s2, 13
    v_lshl_add_u32 v%d, v0, 4, s62     ; prefetch offset wg*8K + tid*16
    s_mov_b32 s62, %d
    s_waitcnt lgkmcnt(0)
    """ % (A0, PFA, 0x40000000 if env('PFOFF', 0) else 0))
    mark(k, 0)
    srd(k, 36, 'ws', WS_KV, 256 * KB, soff='s52'); srd(k, 32, 'ws', WS_Q, 4 * MB)
    set_flag(k, 's_lshl_b32 s100, s31, 8\ns_lshl_b32 s101, s30, 2\ns_add_u32 s100, s100, s101\ns_add_u32 s100, s100, %d' % FL_ATT)
    handoff(k, 's_lshr_b32 s100, s30, 1\ns_lshl_b32 s100, s100, 8\ns_add_u32 s100, s100, %d' % FL_QKV, 64, role='A')
    def dma(slot_expr):
        return ['s_add_u32 m0, s53, %s' % slot_expr] + \
               ['buffer_load_dwordx4 v%d, s[36:39], s56 offen offset:%d sc1 lds' % (A0, q * 1024) for q in range(4)] + \
               ['s_add_u32 s56, s56, %d' % STG]
    def pfl(n): return 'buffer_load_dwordx4 %s, v%d, %s, s62 offen' % (vr(PFD, 4), PFA, sr(n))
    def emit_dma(slot_expr):
        d = dma(slot_expr); k.e(d[0]); k.e('s_nop 0')
        for x in d[1:]: k.e(x)
    AST = env('AST', 1)
    if AST:
        k.e('s_lshl_b32 s56, s46, 10')
        k.e('s_mov_b32 m0, s56')
        k.e('s_mul_i32 s58, s46, 3072')
        k.e('buffer_load_dwordx4 v%d, s[36:39], s56 offen sc1 lds' % A0)
    else:
        k.e('s_mov_b32 s56, s53')
        emit_dma('0')
    k.e('buffer_load_dwordx4 %s, v%d, s[32:35], s51 offen sc1' % (vr(Q, 4), A0))
    k.e('buffer_load_dwordx4 %s, v%d, s[32:35], s51 offen offset:1024 sc1' % (vr(Q + 4, 4), A0))
    if AST:
        k.e('s_add_u32 s56, s58, 8192')
        k.e('s_mov_b32 m0, s56')
        k.e('s_nop 0')
        for q in range(3): k.e('buffer_load_dwordx4 v%d, s[36:39], s56 offen offset:%d sc1 lds' % (A0, q * 1024))
        k.e('s_add_u32 s56, s53, %d' % STG)
        emit_dma(str(STG))
    srd(k, 64, 'w_in'); srd(k, 68, 'w_sp'); srd(k, 32, 'wo')
    srd(k, 40, 'ws', WS_O, 4 * MB)
    k.e("""
    s_lshl_b32 s54, s50, 16
    s_lshl_b32 s55, s30, 11
    s_add_u32 s54, s54, s55            ; O offset
    v_and_b32 v3, 3, v1
    v_bfe_u32 v4, v1, 2, 1
    v_bfe_u32 v5, v1, 4, 1
    v_xor_b32 v4, v4, v5
    v_or_b32 v3, v3, v4
    v_cmp_eq_u32 vcc, 0, v3
    v_mov_b32 v4, 0x3f803f80
    s_nop 1
    v_cndmask_b32 v%d, 0, v4, vcc
    v_mov_b32 v%d, v%d
    v_mov_b32 v%d, v%d
    v_mov_b32 v%d, v%d
    """ % (ONES, ONES + 1, ONES, ONES + 2, ONES, ONES + 3, ONES))
    def adr(t): return (AC if t < 16 else AO), (t % 16) * 4096
    def rdK(t):
        a, o = adr(t)
        return ['ds_read_b128 %s, v%d offset:%d' % (vr(KF, 4), a, o), 'ds_read_b128 %s, v%d offset:%d' % (vr(KF + 4, 4), a, o + 1024)]
    def rdV(t):
        a, o = adr(t)
        return ['ds_read_b128 %s, v%d offset:%d' % (vr(VF, 4), a, o + 2048), 'ds_read_b128 %s, v%d offset:%d' % (vr(VF + 4, 4), a, o + 3072)]
    def qk(S, c):
        return ['v_mfma_f32_32x32x16_bf16 %s, %s, %s, %s' % (vr(S, 16), vr(KF, 4), vr(Q, 4), c),
                'v_mfma_f32_32x32x16_bf16 %s, %s, %s, %s' % (vr(S, 16), vr(KF + 4, 4), vr(Q + 4, 4), vr(S, 16))]
    def maxtile(S, first):
        st = 0
        if first:
            k.e('v_max3_f32 v%d, v%d, v%d, v%d' % (M, S, S + 1, S + 2))
            k.e('v_max_f32 v%d, v%d, v%d' % (M, M, S + 3))
            st = 4
        for r in range(st, 16, 2): k.e('v_max3_f32 v%d, v%d, v%d, v%d' % (M, M, S + r, S + r + 1))
    def set_negm(bias):
        k.e('v_mov_b32 v%d, v%d' % (T, M))
        k.e('s_nop 1')
        k.e('v_permlane32_swap_b32 v%d, v%d' % (M, T))
        k.e('s_nop 1')
        k.e('v_max_f32 v%d, v%d, v%d' % (M, M, T))
        k.e('v_sub_f32 v%d, %s, v%d' % (NEGM, hx(-bias), M))
        for r in range(1, 16): k.e('v_mov_b32 v%d, v%d' % (NEGM + r, NEGM))
    def zero_state():
        for r in range(16): k.e('v_mov_b32 v%d, 0' % (O + r))
        for r in range(4):
            k.e('v_mov_b32 v%d, 0' % (L + r))
            k.e('v_mov_b32 v%d, 0' % (P + 4 + r))
            k.e('v_mov_b32 v%d, 0' % (VF + 4 + r))
        k.e('v_mov_b32 v%d, v%d' % (AC, A0))
        k.e('v_add_u32 v%d, 0x10000, v%d' % (AO, A0))
        k.e('s_mov_b32 s57, 0')
    zero_state()
    if not MP0: srd(k, 80, 'ws', 0, 256 * KB)
    if not MP0: k.e("""
    s_and_b32 s49, s2, 3               ; k quarter
    s_lshl_b32 s49, s49, 3
    s_add_u32 s49, s49, s46            ; 32-row group
    s_mul_i32 s60, s49, %d
    s_lshr_b32 s63, s2, 2              ; col block
    s_lshl_b32 s63, s63, 7
    s_add_u32 s60, s60, s63
    s_add_u32 s60, s60, 4096
    s_add_u32 s61, s60, 12288
    s_and_b32 s49, s2, 3
    s_lshl_b32 s49, s49, 2
    s_and_b32 s63, s46, 3
    s_add_u32 s49, s49, s63
    s_lshl_b32 s49, s49, 8             ; silu offset of row groups 2(w&3), +1
    s_add_u32 s49, s49, %d
    v_lshrrev_b32 v%d, 3, v1
    v_mul_u32_u24 v%d, %d, v%d
    v_and_b32 v%d, 7, v1
    v_lshl_add_u32 v%d, v%d, 4, v%d
    v_lshlrev_b32 v%d, 4, v%d
    """ % (32 * 12288, WS_SC, MT, MA, 4 * 12288, MT, MT + 1, MA, MT + 1, MA, MT, MT))
    def mld(j): return ['s_add_u32 m0, s53, %d' % (AUX_A + j * 1024), 'buffer_load_dwordx4 v%d, s[80:83], s%d offen lds' % (MA, (60, 61, 63, 49)[j])]
    k.e('s_waitcnt vmcnt(%d)' % (7 if AST else 0))
    k.e('s_barrier')
    mark(k, 1)
    for r in rdK(1): k.e(r)
    k.e('s_waitcnt lgkmcnt(0)')
    for m in qk(SB, '0'): k.e(m)
    for r in rdK(0): k.e(r)
    k.e('s_waitcnt lgkmcnt(0)')
    for m in qk(SA, '0'): k.e(m)
    def extras():
        if MP0: return
        k.e(pfl(32))
        k.e('buffer_load_dwordx4 %s, v%d, s[80:83], s49 offen' % (vr(MSV, 4), MT))
        k.e('buffer_load_dwordx4 %s, v%d, s[80:83], s49 offen offset:128' % (vr(MSV + 4, 4), MT))
        srd(k, 80, 'w_mod')
        k.e('s_mov_b32 s49, 0x40000000')
        k.e('s_mov_b32 s63, 0x40000000')
    if AST: k.e('s_nop 7')
    else:
        emit_dma(str(STG)); extras()
    maxtile(SB, True)
    maxtile(SA, False)
    set_negm(40.0)
    if AST:
        k.e('s_waitcnt vmcnt(4)')
        k.e('s_barrier')
        extras()
    mark(k, 2)
    if env('APRIO', 0):
        k.e('s_cmp_ge_u32 s46, 4')
        k.e('s_cbranch_scc0 L_attn_noprio')
        k.e('s_setprio 1')
        k.label('L_attn_noprio')
    k.e('s_mov_b32 s59, %d' % (NST // 2))
    k.e('s_nop 0')
    for m in qk(SA, vr(NEGM, 16)): k.e(m)
    k.e(rdK(1)[0])
    k.e('ds_read_b32 v%d, v%d' % (T, A0))
    k.e(rdK(1)[1])
    k.e(rdV(0)[0])
    k.e('s_nop 7')
    lp = 'L_attn_loop'
    def pv(h): return 'v_mfma_f32_32x32x16_bf16 %s, %s, %s, %s' % (vr(O, 16), vr(VF + 4 * h, 4), vr(P + 4 * h, 4), vr(O, 16))
    def ls(h): return 'v_mfma_f32_16x16x32_bf16 %s, %s, %s, %s' % (vr(L, 4), vr(ONES, 4), vr(P + 4 * h, 4), vr(L, 4))
    def iteration(nsoft, pat0):
        for t in range(16):
            cur, nxt = (SA, SB) if t % 2 == 0 else (SB, SA)
            m_qk = qk(nxt, vr(NEGM, 16))
            kn = rdK(t + 2); v0n = rdV(t + 1)[0]; v1n = rdV(t)[1]
            ex = ['v_exp_f32 v%d, v%d' % (cur + r, cur + r) for r in range(16)]
            cv = ['v_cvt_pk_bf16_f32 v%d, v%d, v%d' % (P + d, cur + 2 * d, cur + 2 * d + 1) for d in range(8)]
            W = 's_waitcnt lgkmcnt(2)'
            head = []; xs = []
            if t % 8 == 6: head = ['s_waitcnt vmcnt(%d)' % (9 if not MP0 else (6 if t == 6 else 7)), 's_barrier']
            if t == 14 and not c.last and not nsoft: head = ['s_cmp_eq_u32 s59, 1', 's_cbranch_scc0 L_attn_nd', 's_waitcnt vmcnt(0)', 'L_attn_nd:'] + head
            d = dma('s58')
            if t % 8 == 0: xs = ['s_xor_b32 s58, s57, 0x%x' % (0x10000 if t == 0 else 0x18000), d[0], d[1]]
            elif t % 8 < 3: xs = [d[1 + t % 8]]
            elif t % 8 == 3: xs = [d[4], d[5]]
            elif t == 4: xs = [pfl(64)]
            elif t == 5: xs = [pfl(68)]
            elif MP0 and t == 7: xs = [pfl(32)]
            elif MP0 and t == 12: xs = ['s_add_u32 s62, s62, %d' % (2 * MB)]
            elif MP0 and t == 13: xs = []
            elif MP0 and t == 15: xs = ['s_xor_b32 s57, s57, 0x10000']
            elif t == 7: xs = mld(0)
            elif t == 12: xs = ['s_add_u32 s62, s62, %d' % (2 * MB)] + mld(2)
            elif t == 13: xs = mld(1)
            elif t == 15: xs = ['s_xor_b32 s57, s57, 0x10000'] + mld(3) + ['s_add_u32 s63, s60, %d' % (2 * 12288), 's_add_u32 s49, s60, %d' % (3 * 12288)]
            tail = ['v_swap_b32 v%d, v%d' % (AC, AO), 's_sub_u32 s59, s59, 1', 's_cmp_lg_u32 s59, 0'] if t == 15 else []
            pat = pat0 if t < nsoft else os.environ.get('APAT', 'eeeQeeePeeccLcc')
            body = []
            for hh in range(2):
                ei = 8 * hh; ci = 4 * hh
                for ch in pat:
                    if ch == 'e': body.append(ex[ei]); ei += 1
                    elif ch == 'c': body.append(cv[ci]); ci += 1
                    elif ch == 'Q': body += [W, m_qk[hh], kn[hh]]
                    elif ch == 'P': body += [pv(1 - hh), v1n if hh == 0 else v0n]
                    elif ch == 'L': body.append(ls(1 - hh))
                assert ei == 8 * hh + 8 and ci == 4 * hh + 4
            if tail:
                last_ds = max(i for i, x in enumerate(body) if x.startswith('ds_') or x.startswith('v_exp'))
                body = body[:last_ds + 1] + tail + body[last_ds + 1:]
            iq = max(i for i, x in enumerate(body) if x == m_qk[1])
            first_e = min(i for i, x in enumerate(body) if x.startswith('v_exp'))
            assert len(body) - 1 - iq + first_e >= 12, 'qk->exp distance'
            seq = list(head)
            for x in body:
                seq.append(x)
                if xs and x.startswith('v_exp'): seq.append(xs.pop(0))
            assert not xs
            AX = os.environ.get('AX', '')
            if 'p' in AX: seq = [x for x in seq if 's62 offen' not in x]
            for x in seq: k.e(x)
    if env('ASOFT', 8): iteration(env('ASOFT', 8), os.environ.get('APAT0', 'eQPLeeeeeeecccc'))
    k.label(lp)
    iteration(0, None)
    k.e('s_cbranch_scc1 %s' % lp)
    k.label('L_attn_epi')
    mark(k, 3)
    k.e('s_waitcnt lgkmcnt(0)')
    k.e(pv(1)); k.e(ls(1))
    k.e('s_nop 15')
    lstore = 'L_attn_store'; lsafe = 'L_attn_safe'
    k.e('v_max3_f32 v%d, |v%d|, |v%d|, |v%d|' % (T, O, O + 1, L))
    for r in range(2, 16, 2): k.e('v_max3_f32 v%d, |v%d|, |v%d|, v%d' % (T, O + r, O + r + 1, T))
    k.e('v_mul_f32 v%d, 0, v%d' % (T2, L))
    for r in range(16): k.e('v_fma_f32 v%d, 0, v%d, v%d' % (T2, O + r, T2))
    k.e('v_add_f32 v%d, v%d, v%d' % (T, T, T2))
    k.e('v_mov_b32 v3, %s' % hx(2.0 ** 120))
    k.e('v_cmp_nlt_f32 vcc, v%d, v3' % T)
    k.e('s_nop 4')
    k.e('s_cbranch_vccnz %s' % lsafe)
    k.label(lstore)
    k.e('v_rcp_f32 v%d, v%d' % (T, L))
    k.e('s_nop 0')
    for r in range(16): k.e('v_mul_f32 v%d, v%d, v%d' % (O + r, O + r, T))
    for d in range(8): k.e('v_cvt_pk_bf16_f32 v%d, v%d, v%d' % (P + d, O + 2 * d, O + 2 * d + 1))
    k.e('buffer_store_dwordx4 %s, v%d, s[40:43], s54 offen%s' % (vr(P, 4), A0, WT))
    k.e('buffer_store_dwordx4 %s, v%d, s[40:43], s54 offen offset:1024%s' % (vr(P + 4, 4), A0, WT))
    signal(k, 'S')
    endpgm(k)
    k.label(lsafe)
    def gl(dst, off): return 'buffer_load_dwordx4 %s, v%d, s[36:39], s56 offen offset:%d sc1' % (vr(dst, 4), A0, off)
    k.e('s_waitcnt vmcnt(0)')
    k.e('s_mov_b32 s56, 0')
    k.e('v_mov_b32 v%d, 0xff800000' % M)
    k.label(lsafe + '1')
    k.e(gl(KF, 0)); k.e(gl(KF + 4, 1024))
    k.e('s_waitcnt vmcnt(0)')
    for m in qk(SA, '0'): k.e(m)
    k.e('s_nop 15')
    maxtile(SA, False)
    k.e('s_add_u32 s56, s56, 4096')
    k.e('s_cmp_lt_u32 s56, %d' % (256 * KB))
    k.e('s_cbranch_scc1 %s1' % lsafe)
    set_negm(0.0)
    zero_state()
    k.e('s_mov_b32 s56, 0')
    k.label(lsafe + '2')
    k.e(gl(KF, 0)); k.e(gl(KF + 4, 1024)); k.e(gl(VF, 2048)); k.e(gl(VF + 4, 3072))
    k.e('s_waitcnt vmcnt(0)')
    for m in qk(SA, vr(NEGM, 16)): k.e(m)
    k.e('s_nop 15')
    for r in range(16): k.e('v_exp_f32 v%d, v%d' % (SA + r, SA + r))
    k.e('s_nop 0')
    for d in range(8): k.e('v_cvt_pk_bf16_f32 v%d, v%d, v%d' % (P + d, SA + 2 * d, SA + 2 * d + 1))
    k.e('s_nop 1')
    k.e(pv(0)); k.e(ls(0)); k.e(pv(1)); k.e(ls(1))
    k.e('s_add_u32 s56, s56, 4096')
    k.e('s_nop 7')
    k.e('s_cmp_lt_u32 s56, %d' % (256 * KB))
    k.e('s_cbranch_scc1 %s2' % lsafe)
    k.e('s_nop 15')
    k.e('s_branch %s' % lstore)
    k.need(MSV + 8, 160 * KB)

def k_attn2(k, c):
    phase_begin(k, c)
    assert c.prev == 'qkv' and c.nxt == 'wo' and not (MP0 and AOWN != 3)
    S2 = (8, 24); O2 = (40, 56); N2 = (72, 88); L2 = (104, 108); Q2 = (112, 120)
    ONES, KF, VF, P = 128, 132, 140, 148
    A0 = 156; AR = 157; M = 158; T = 159; T2 = 160; PFA = 161; MA = 162; MT = 164; PFD = 168
    k.e("""
    v_and_b32 v1, 63, v0
    s_mov_b32 s46, s3
    s_and_b32 s47, s3, 1               ; wn
    s_bfe_u32 s48, s3, 0x10001         ; wm
    s_lshr_b32 s49, s3, 2              ; kh
    s_lshl_b32 s50, s31, 1
    s_add_u32 s50, s50, s47            ; head
    s_lshl_b32 s52, s50, 18
    s_lshl_b32 s51, s49, 17
    s_add_u32 s51, s51, s52            ; stream base in KV
    s_lshl_b32 s55, s49, 1
    s_add_u32 s55, s55, s47
    s_lshl_b32 s55, s55, 15            ; stream ring base in LDS
    s_lshl_b32 s56, s48, 12            ; next global offset: own tile of stage 0
    s_add_u32 s57, s55, s56            ; LDS address of own tile in slot 0
    s_lshl_b32 s53, s3, 12             ; wave*4KB (mod slice staging)
    v_lshlrev_b32 v%d, 4, v1
    v_add_u32 v%d, s55, v%d
    s_lshl_b32 s54, s30, 2
    s_lshl_b32 s58, s48, 1
    s_add_u32 s54, s54, s58
    s_add_u32 s54, s54, s49            ; rb of the tile this wave finalises
    s_lshl_b32 s54, s54, 16
    s_lshl_b32 s58, s50, 11
    s_add_u32 s54, s54, s58            ; O offset
    s_lshl_b32 s62, s2, 13
    v_lshl_add_u32 v%d, v0, 4, s62     ; prefetch offset wg*8K + tid*16
    s_mov_b32 s62, 0
    v_and_b32 v3, 3, v1
    v_bfe_u32 v4, v1, 2, 1
    v_bfe_u32 v5, v1, 4, 1
    v_xor_b32 v4, v4, v5
    v_or_b32 v3, v3, v4
    v_cmp_eq_u32 vcc, 0, v3
    v_mov_b32 v4, 0x3f803f80
    s_nop 1
    v_cndmask_b32 v%d, 0, v4, vcc
    v_mov_b32 v%d, v%d
    v_mov_b32 v%d, v%d
    v_mov_b32 v%d, v%d
    """ % (A0, AR, A0, PFA, ONES, ONES + 1, ONES, ONES + 2, ONES, ONES + 3, ONES))
    mark(k, 0)
    if AOWN:
        srd(k, 36, 'ws', WS_KV, 256 * KB, soff='s52')
        k.e('''
        s_mov_b32 s86, s87                 ; qkv flag the compute waves still have to publish
        s_lshl_b32 s51, s30, 14
        s_add_u32 s51, s51, s56            ; offset of the own pairs (skipped in the stream)
        s_mul_i32 s58, s49, %d
        s_add_u32 s56, s56, s58
        s_cmp_ge_u32 s56, s51
        s_cselect_b32 s58, 16384, 0
        s_add_u32 s56, s56, s58
        ''' % (15 * 8192))
    else: srd(k, 36, 'ws', WS_KV, 128 * KB, soff='s51')
    srd(k, 80, 'ws', 0, 256 * KB)
    srd(k, 64, 'w_in'); srd(k, 68, 'w_sp'); srd(k, 32, 'wo')
    for r in range(16):
        k.e('v_mov_b32 v%d, 0' % (O2[0] + r)); k.e('v_mov_b32 v%d, 0' % (O2[1] + r))
    for r in range(4):
        for b in (L2[0], L2[1], P + 4, VF + 4): k.e('v_mov_b32 v%d, 0' % (b + r))
    k.e("""
    s_and_b32 s58, s2, 3               ; k quarter
    s_lshl_b32 s58, s58, 3
    s_add_u32 s58, s58, s46            ; 32-row group
    s_mul_i32 s60, s58, %d
    s_lshr_b32 s63, s2, 2              ; col block
    s_lshl_b32 s63, s63, 7
    s_add_u32 s60, s60, s63
    s_add_u32 s60, s60, 4096
    s_add_u32 s61, s60, 12288
    s_and_b32 s44, s2, 3
    s_lshl_b32 s44, s44, 2
    s_and_b32 s63, s46, 3
    s_add_u32 s44, s44, s63
    s_lshl_b32 s44, s44, 8             ; silu offset of row groups 2(w&3), +1
    s_add_u32 s44, s44, %d
    v_lshrrev_b32 v%d, 3, v1
    v_mul_u32_u24 v%d, %d, v%d
    v_and_b32 v%d, 7, v1
    v_lshl_add_u32 v%d, v%d, 4, v%d
    v_lshlrev_b32 v%d, 4, v%d
    ; Q / stand-in exchange area: tile A of this wave = tile kh
    s_and_b32 s58, s3, 3
    s_mul_i32 s58, s58, 5120
    s_add_u32 s58, s58, %d
    s_lshl_b32 s63, s49, 11
    s_add_u32 s63, s63, s58
    v_add_u32 v2, s63, v%d             ; Q of tile kh
    v_xor_b32 v3, 1, v2
    s_xor_b32 s63, s49, 1
    s_lshl_b32 s63, s63, 11
    s_add_u32 s63, s63, s58
    v_add_u32 v3, s63, v%d             ; Q of the other tile
    s_lshl_b32 s63, s49, 2
    s_add_u32 s63, s63, s58
    v_lshl_add_u32 v4, v1, 3, s63
    v_xor_b32 v5, 4, v4
    """ % (32 * 12288, WS_SC, MT, MA, 4 * 12288, MT, MT + 1, MA, MT + 1, MA, MT, MT, AUX_A, A0, A0))
    set_flag(k, 's_lshl_b32 s100, s30, 8\ns_lshl_b32 s101, s31, 2\ns_add_u32 s100, s100, s101\ns_add_u32 s100, s100, %d' % FL_ATT)
    def hand(): handoff(k, 's_lshl_b32 s100, s31, 8\ns_add_u32 s100, s100, %d' % FL_QKV, 64, role='A')
    if AOWN: k.e('s_barrier')
    else: hand()
    def dma(slot):
        return ['s_add_u32 m0, s57, %d' % (slot * 8192)] + \
               ['buffer_load_dwordx4 v%d, s[36:39], s56 offen offset:%d sc1 lds' % (A0, q * 1024) for q in range(4)] + \
               ['s_add_u32 s56, s56, 8192' + ('\ns_cmp_eq_u32 s56, s51\ns_cselect_b32 s58, 16384, 0\ns_add_u32 s56, s56, s58' if AOWN else '')]
    def emit_dma(slot):
        d = dma(slot); k.e(d[0]); k.e('s_nop 0')
        for x in d[1:]: k.e(x)
    def pfl(n): return 'buffer_load_dwordx4 %s, v%d, %s, s62 offen' % (vr(PFD, 4), PFA, sr(n))
    def mld(j): return [] if MP0 else ['s_add_u32 m0, s53, %d' % (AUX_A + j * 1024), 'buffer_load_dwordx4 v%d, s[80:83], s%d offen lds' % (MA, (60, 61, 63, 45)[j])]
    if not AOWN: emit_dma(0); emit_dma(1)
    for q in range(2):
        k.e('ds_read_b128 %s, v%d' % (vr(Q2[q], 4), 2 + q))
        k.e('ds_read_b128 %s, v%d offset:1024' % (vr(Q2[q] + 4, 4), 2 + q))
        k.e('ds_read_b32 v%d, v%d offset:4096' % (N2[q], 4 + q))
    k.e('s_waitcnt lgkmcnt(0)')
    for r in range(1, 16):
        for q in range(2): k.e('v_mov_b32 v%d, v%d' % (N2[q] + r, N2[q]))
    if not AOWN:
        k.e('s_waitcnt vmcnt(4)')
        k.e('s_barrier')
        mark(k, 1)
    def rd(dst, t, part): return 'ds_read_b128 %s, v%d offset:%d' % (vr(dst, 4), AR, (t % 8) * 4096 + part * 1024)
    def qk(q, hh, c0=None):
        S_ = S2[q]
        return 'v_mfma_f32_32x32x16_bf16 %s, %s, %s, %s' % (vr(S_, 16), vr(KF + 4 * hh, 4), vr(Q2[q] + 4 * hh, 4), (c0 or vr(N2[q], 16)) if hh == 0 else vr(S_, 16))
    def pv(q, h): return 'v_mfma_f32_32x32x16_bf16 %s, %s, %s, %s' % (vr(O2[q], 16), vr(VF + 4 * h, 4), vr(P + 4 * h, 4), vr(O2[q], 16))
    def ls(q, h): return 'v_mfma_f32_16x16x32_bf16 %s, %s, %s, %s' % (vr(L2[q], 4), vr(ONES, 4), vr(P + 4 * h, 4), vr(L2[q], 4))
    k.e(rd(KF, 0, 0)); k.e(rd(KF + 4, 0, 1)); k.e(rd(VF, 0, 2))
    def silu_loads():
        if MP0: return
        k.e('buffer_load_dwordx4 %s, v%d, s[80:83], s44 offen sc1' % (vr(MSV, 4), MT))
        k.e('buffer_load_dwordx4 %s, v%d, s[80:83], s44 offen offset:128 sc1' % (vr(MSV + 4, 4), MT))
    def wmod():
        if MP0: return
        srd(k, 80, 'w_mod')
        k.e('s_add_u32 s63, s60, %d' % (2 * 12288))
        k.e('s_add_u32 s45, s60, %d' % (3 * 12288))
    if not AOWN: silu_loads()
    k.e('s_waitcnt lgkmcnt(1)')
    k.e(qk(0, 0)); k.e(qk(0, 1))
    if AOWN: k.e('s_nop 11')
    else:
        emit_dma(2); wmod()
    OD = env('OD', 0) and AOWN == 3
    ool = []
    def late_start():
        if AOWN == 1:
            l = k.newlabel('ls')
            k.e('s_cmp_lt_u32 s3, 4'); k.e('s_cbranch_scc1 %s' % l)
            flag_prep(k)
            k.e('s_and_b32 s100, s3, 3\ns_lshl_b32 s100, s100, 7\ns_add_u32 s100, s100, s86')
            k.e('s_waitcnt vmcnt(0)')
            flag_store(k, 's100')
            k.label(l)
        hand()
        mark(k, 1)
        if OD:
            emit_dma(1); silu_loads(); wmod()
            k.e('''
            s_lshl_b32 s43, s48, 12
            s_add_u32 s43, s43, %d
            s_cmp_ge_u32 s43, s51
            s_cselect_b32 s58, 16384, 0
            s_add_u32 s43, s43, s58
            s_cmp_lt_u32 s3, 4
            s_cselect_b64 vcc, -1, 0
            s_cbranch_scc0 L_attn_np
            s_setprio 1
            L_attn_np:
            ''' % (16 * 8192))
        else:
            emit_dma(1); silu_loads(); emit_dma(2); wmod()
    k.e('s_mov_b32 s59, %d' % (3 if env('LASTB', 1) and not OD else 4))
    mark(k, 2)
    lp = 'L_attn_loop'
    LASTB = env('LASTB', 1) and not OD
    def iteration(first, nsoft, pat0, last=False):
        for u in range(16):
            t = u // 2; q = u % 2; st = u // 4; us = u % 4
            cur = S2[q]
            ex = ['v_exp_f32 v%d, v%d' % (cur + r, cur + r) for r in range(16)]
            cv = ['v_cvt_pk_bf16_f32 v%d, v%d, v%d' % (P + d, cur + 2 * d, cur + 2 * d + 1) for d in range(8)]
            if q == 0:
                Qs = [[qk(1, 0), rd(KF, t + 1, 0)], [qk(1, 1), rd(KF + 4, t + 1, 1)]]
                Ps = [[pv(1, 1), rd(VF + 4, t, 3)], ['WAITV', pv(0, 0)]]
            else:
                Qs = [['s_waitcnt lgkmcnt(0)', qk(0, 0)], [qk(0, 1)]]
                Ps = [[pv(0, 1)], [pv(1, 0), rd(VF, t + 1, 2)]]
            Ls = [ls(1 - q, 1), ls(q, 0)]
            peel = first and AOWN == 4 and u in (2, 3)
            if peel and u == 2:
                Qs = [[qk(1, 0)], [qk(1, 1)]]; Ps = [[pv(1, 1), rd(VF + 4, t, 3)], ['s_waitcnt lgkmcnt(1)', pv(0, 0)]]
            if peel and u == 3:
                Qs = [['s_waitcnt lgkmcnt(0)'], ['s_nop 0']]; Ps = [[pv(0, 1)], [pv(1, 0)]]
            inc = ['s_add_u32 s62, s62, %d' % (2 * MB)]
            NOPF = env('NOPF', 0)
            if first and AOWN: extra = [[], [], mld(0) + [pfl(32)], [pfl(64)], mld(1), mld(2), mld(3), [pfl(68)] + inc]
            elif first: extra = [[], [pfl(32)], mld(0), [pfl(64)], mld(1), mld(2), mld(3), [pfl(68)] + inc]
            else: extra = [[], [], [pfl(64)], [], [], [], [pfl(68)] + inc, []]
            if NOPF: extra = [[y for y in x if 's62' not in y] for x in extra]
            cnt = lambda e: [sum('buffer_load' in y for y in e[2 * i] + e[2 * i + 1]) for i in range(4)]
            nx_ = cnt(extra)
            prevx = ((0 if MP0 else 2) if first else nx_[3]) if st == 0 else nx_[st - 1]
            head = ['s_waitcnt vmcnt(%d)' % (prevx + 4 + nx_[st]), 's_barrier'] if us == 2 else []
            if last and us == 2 and st >= 2: head = (['s_waitcnt vmcnt(%d)' % (prevx + nx_[st])] if st == 2 else []) + ['s_barrier']
            if peel: head = []
            d = dma((st + 3) % 4)
            if OD and us == 2:
                lb = 'L_attn_fd%d_%d' % (first, st)
                d0 = dma((st + 2) % 4)
                d1 = [x.replace('s56', 's43').replace('s57, %d' % (((st + 2) % 4) * 8192), 's57, %d' % (((st + 2) % 4) * 8192 + 65536)) for x in d0]
                nw = 8 + nx_[st] + (2 if first and st == 0 else 0)
                ool.append([lb + ':', d0[0], 's_nop 0'] + d0[1:5] + [d1[0], 's_nop 0'] + d1[1:5] + [d0[5], d1[5], 's_waitcnt vmcnt(%d)' % nw, 's_branch %sr' % lb])
                head = ['s_cbranch_vccnz %s' % lb] + (['s_waitcnt vmcnt(2)'] if first and st == 0 else []) + [lb + 'r:', 's_barrier']
            if (OD or (last and st >= 1)) and us >= 2: xs = []
            elif us == 2: xs = [d[0], d[1], None, None, None, None, None, None, None, d[2]]
            elif us == 3: xs = [d[3], None, None, None, None, None, None, None, d[4], d[5]]
            else: xs = list(extra[2 * st + us])
            pat = pat0 if u < nsoft else os.environ.get('APAT', 'eeeQeeePeeccLcc')
            assert pat.index('Q') < pat.index('P')
            body = []
            for hh in range(2):
                ei = 8 * hh; ci = 4 * hh
                for ch in pat:
                    if ch == 'e': body.append(ex[ei]); ei += 1
                    elif ch == 'c': body.append(cv[ci]); ci += 1
                    elif ch == 'Q': body += Qs[hh]
                    elif ch == 'P': body += Ps[hh]
                    elif ch == 'L': body.append(Ls[hh])
            body = ['s_waitcnt lgkmcnt(3)' if x == 'WAITV' else x for x in body]
            if u == 15 and not last:
                le = max(i for i, x in enumerate(body) if x.startswith('v_exp'))
                body = body[:le + 1] + ['s_sub_u32 s59, s59, 1', 's_cmp_lg_u32 s59, 0'] + body[le + 1:]
            if peel and u == 3:
                body += ['s_waitcnt vmcnt(10)', 's_barrier', rd(KF, 2, 0), rd(KF + 4, 2, 1), rd(VF, 2, 2), 's_waitcnt lgkmcnt(1)', qk(0, 0), qk(0, 1)]
            iq = body.index(qk(1 - q, 1))
            first_e = min(i for i, x in enumerate(body) if x.startswith('v_exp'))
            gap = len(body) - 1 - iq + first_e
            if gap < 12: body.append('s_nop %d' % (11 - gap))
            if first and AOWN and u == (0 if AOWN == 3 else 2): late_start()
            seq = list(head)
            for x in body:
                seq.append(x)
                if xs and x.startswith('v_exp'):
                    y = xs.pop(0)
                    if y: seq.append(y)
            assert not xs
            AX = os.environ.get('AX', '')
            if 'b' in AX: seq = [x for x in seq if x != 's_barrier']
            if 'p' in AX: seq = [x for x in seq if 's62 offen' not in x and 's[80:83]' not in x]
            if 'v' in AX: seq = [x for x in seq if 'buffer_load' not in x]
            if 'd' in AX: seq = [x for x in seq if not x.startswith('ds_read') and 'lgkmcnt' not in x]
            if 'l' in AX: seq = [x for x in seq if '16x16x32' not in x]
            for x in seq: k.e(x)
    iteration(True, env('ASOFT', 8), os.environ.get('APAT0', 'eQPLeeeeeeecccc'))
    k.label(lp)
    iteration(False, 0, None)
    k.e('s_cbranch_scc1 %s' % lp)
    if LASTB:
        iteration(False, 0, None, last=True)
        k.e('s_nop 0')
    k.label('L_attn_epi')
    if 'b' in os.environ.get('AX', ''): k.e('s_barrier')
    mark(k, 3)
    k.e('s_nop 0')
    k.e(pv(1, 1)); k.e(ls(1, 1))
    if LASTB:
        k.e("""
        s_lshl_b32 s58, s48, 13
        s_add_u32 s58, s58, s55
        s_add_u32 s58, s58, 8192
        v_add_u32 v2, s58, v%d
        v_lshl_add_u32 v4, v1, 2, s58
        s_xor_b32 s58, s58, 0x10000
        v_add_u32 v3, s58, v%d
        v_lshl_add_u32 v5, v1, 2, s58
        s_nop 3
        """ % (A0, A0))
    else:
        k.e("""
        s_mul_i32 s58, s3, 5120
        v_add_u32 v2, s58, v%d
        v_lshl_add_u32 v4, v1, 2, s58
        s_xor_b32 s58, s3, 4
        s_mul_i32 s58, s58, 5120
        v_add_u32 v3, s58, v%d
        v_lshl_add_u32 v5, v1, 2, s58
        s_waitcnt vmcnt(0) lgkmcnt(0)
        s_barrier
        s_nop 3
        """ % (A0, A0))
    for r in range(4): k.e('ds_write_b128 v2, %s offset:%d' % (vr(O2[1] + 4 * r, 4), r * 1024))
    k.e('ds_write_b32 v4, v%d offset:4096' % L2[1])
    srd(k, 40, 'ws', WS_O, 4 * MB)
    k.e('s_waitcnt lgkmcnt(0)')
    k.e('s_barrier')
    for r in range(4): k.e('ds_read_b128 %s, v3 offset:%d' % (vr(S2[0] + 4 * r, 4), r * 1024))
    k.e('ds_read_b32 v%d, v5 offset:4096' % T)
    k.e('s_waitcnt lgkmcnt(0)')
    O = O2[0]; L = L2[0]; SA = S2[0]; NEGM = N2[0]
    for r in range(0, 16, 2): k.e(pk('add', O + r, O + r, SA + r))
    k.e('v_add_f32 v%d, v%d, v%d' % (L, L, T))
    lstore = 'L_attn_store'; lsafe = 'L_attn_safe'
    k.e('v_max3_f32 v%d, |v%d|, |v%d|, |v%d|' % (T, O, O + 1, L))
    for r in range(2, 16, 2): k.e('v_max3_f32 v%d, |v%d|, |v%d|, v%d' % (T, O + r, O + r + 1, T))
    k.e('v_mul_f32 v%d, 0, v%d' % (T2, L))
    for r in range(16): k.e('v_fma_f32 v%d, 0, v%d, v%d' % (T2, O + r, T2))
    k.e('v_add_f32 v%d, v%d, v%d' % (T, T, T2))
    k.e('v_mov_b32 v3, %s' % hx(2.0 ** 120))
    k.e('v_cmp_nlt_f32 vcc, v%d, v3' % T)
    k.e('s_nop 4')
    k.e('s_cbranch_vccnz %s' % lsafe)
    k.label(lstore)
    k.e('v_rcp_f32 v%d, v%d' % (T2, L))
    k.e('s_nop 0')
    for r in range(0, 16, 2): k.e(pk('mul', O + r, O + r, (T2,)))
    for d in range(8): k.e('v_cvt_pk_bf16_f32 v%d, v%d, v%d' % (P + d, O + 2 * d, O + 2 * d + 1))
    k.e('buffer_store_dwordx4 %s, v%d, s[40:43], s54 offen%s' % (vr(P, 4), A0, WT))
    k.e('buffer_store_dwordx4 %s, v%d, s[40:43], s54 offen offset:1024%s' % (vr(P + 4, 4), A0, WT))
    signal(k, 'S')
    endpgm(k)
    for blk in ool:
        for x in blk: k.e(x)
    k.label(lsafe)
    srd(k, 36, 'ws', WS_KV, 256 * KB, soff='s52')
    def gl(dst, off): return 'buffer_load_dwordx4 %s, v%d, s[36:39], s56 offen offset:%d sc1' % (vr(dst, 4), A0, off)
    k.e('s_mov_b32 s56, 0')
    k.e('v_mov_b32 v%d, 0xff800000' % M)
    k.label(lsafe + '1')
    k.e(gl(KF, 0)); k.e(gl(KF + 4, 1024))
    k.e('s_waitcnt vmcnt(0)')
    k.e(qk(0, 0, '0')); k.e(qk(0, 1))
    k.e('s_nop 15')
    for r in range(0, 16, 2): k.e('v_max3_f32 v%d, v%d, v%d, v%d' % (M, M, SA + r, SA + r + 1))
    k.e('s_add_u32 s56, s56, 4096')
    k.e('s_cmp_lt_u32 s56, %d' % (256 * KB))
    k.e('s_cbranch_scc1 %s1' % lsafe)
    k.e('v_mov_b32 v%d, v%d' % (T, M))
    k.e('s_nop 1')
    k.e('v_permlane32_swap_b32 v%d, v%d' % (M, T))
    k.e('s_nop 1')
    k.e('v_max_f32 v%d, v%d, v%d' % (M, M, T))
    k.e('v_sub_f32 v%d, 0, v%d' % (NEGM, M))
    for r in range(1, 16): k.e('v_mov_b32 v%d, v%d' % (NEGM + r, NEGM))
    for r in range(16): k.e('v_mov_b32 v%d, 0' % (O + r))
    for r in range(4): k.e('v_mov_b32 v%d, 0' % (L + r))
    k.e('s_mov_b32 s56, 0')
    k.label(lsafe + '2')
    k.e(gl(KF, 0)); k.e(gl(KF + 4, 1024)); k.e(gl(VF, 2048)); k.e(gl(VF + 4, 3072))
    k.e('s_waitcnt vmcnt(0)')
    k.e(qk(0, 0)); k.e(qk(0, 1))
    k.e('s_nop 15')
    for r in range(16): k.e('v_exp_f32 v%d, v%d' % (SA + r, SA + r))
    k.e('s_nop 0')
    for d in range(8): k.e('v_cvt_pk_bf16_f32 v%d, v%d, v%d' % (P + d, SA + 2 * d, SA + 2 * d + 1))
    k.e('s_nop 1')
    k.e(pv(0, 0)); k.e(ls(0, 0)); k.e(pv(0, 1)); k.e(ls(0, 1))
    k.e('s_add_u32 s56, s56, 4096')
    k.e('s_nop 7')
    k.e('s_cmp_lt_u32 s56, %d' % (256 * KB))
    k.e('s_cbranch_scc1 %s2' % lsafe)
    k.e('s_nop 15')
    k.e('s_branch %s' % lstore)
    k.need(MSV + 8, 160 * KB)

PHASES = dict(p0=k_p0, qkv=k_qkv, attn=k_attn2 if AT2 else k_attn,
              wo=lambda k, c: k_proj(k, c, 1024, ('xf', WS_O, 1024), 'wo', False),
              win=k_win2 if W22 else k_win, wsp=k_wsp,
              wout=lambda k, c: k_proj(k, c, 1792, ('xf', WS_U2, 1792), 'w_out', True))
GROUPS = [g.split('+') for g in os.environ.get('GRP', 'p0+qkv+attn+wo+win+wsp+wout').split(',')]
def same_kernel(a, b): return any(a in g_ and b in g_ for g_ in GROUPS)
def build():
    ks = []
    for grp in GROUPS:
        k = Kern(grp[0] if len(grp) == 1 else 'm' + grp[0], 256, 1024 if grp[0] == 'pre' else 512, 0)
        prologue(k)
        for i, ph in enumerate(grp):
            c = Ctx(); c.name = ph; c.first = i == 0; c.last = i == len(grp) - 1; c.nxt = None if c.last else grp[i + 1]; c.prev = grp[i - 1] if i else None
            PHASES[ph](k, c)
        k.label(k.endl)
        k.e('s_endpgm')
        assert k.lds <= 160 * KB
        ks.append(k)
    s = '; adaLN + softmax MHA + gMLP block, generated by gen.py (hand-written generator)\n'
    for k in ks: s += k.launch()
    s += '.amdgcn_target "amdgcn-amd-amdhsa--gfx950"\n.text\n'
    for k in ks: s += k.text()
    s += 'L_text_end:\n    s_endpgm\n'
    s += '.section .rodata,"a"\n'
    for k in ks: s += k.desc()
    if len(ks) == 1 and env('SINGLE', 0):
        s = s.replace('; @launch kernel=%s_kernel ' % ks[0].name, '; @launch ')
        s = s.replace(ks[0].name + '_kernel', 'adaLN_cond__softmax_full_mha__mixer_gmlp__prompt_kernel')
    return s

PROMO = ('v_exp_f32', 'v_rcp_f32', 'v_mov_b32', 'v_add_f32', 'v_mul_f32', 'v_sub_f32', 'v_max_f32', 'v_lshlrev_b32', 'v_lshrrev_b32',
         'v_and_b32', 'v_xor_b32', 'v_or_b32', 'v_add_u32', 'v_fmac_f32', 'v_min_u32', 'v_max_u32', 'v_rsq_f32', 'v_sqrt_f32')
def align8(text):
    import subprocess, tempfile, re
    lines = text.split('\n')
    i0 = next(i for i, l in enumerate(lines) if l.endswith('_kernel:')); i1 = next(i for i, l in enumerate(lines) if l.startswith('.section'))
    idx = [i for i in range(i0, i1) if lines[i].strip() and not lines[i].strip().startswith((';', '.')) and not lines[i].strip().endswith(':')]
    with tempfile.TemporaryDirectory() as d:
        open(d + '/a.s', 'w').write(text)
        subprocess.check_call(['clang', '-x', 'assembler', '-target', 'amdgcn-amd-amdhsa', '-mcpu=gfx950', '-c', d + '/a.s', '-o', d + '/a.o'])
        dis = subprocess.check_output(['llvm-objdump', '-d', '--mcpu=gfx950', d + '/a.o'], text=True)
    sz = [4 * len(m.group(1).split()) for m in re.finditer(r'// [0-9A-F]{12}: ([0-9A-F ]+)', dis)]
    assert len(sz) == len(idx), (len(sz), len(idx))
    off = 0; ins = {}; npro = nnop = 0
    MINRUN = env('MINRUN', 8)
    for n, i in enumerate(idx):
        if sz[n] == 8 and off % 8 == 4:
            p = n - 1; done = False
            while p >= 0 and sz[p] == 4:
                op = lines[idx[p]].split()[0]
                if op in PROMO:
                    lines[idx[p]] = lines[idx[p]].replace(op, op + '_e64', 1); sz[p] = 8; off += 4; done = True; npro += 1
                    break
                p -= 1
            if not done:
                r = 0
                while n + r < len(sz) and sz[n + r] == 8: r += 1
                prev = lines[idx[n - 1]].split()[0]
                if r >= MINRUN and prev != 's_getpc_b64':
                    ins[i] = '    s_nop 0'; off += 4; nnop += 1
        off += sz[n]
    out = []
    for i, l in enumerate(lines):
        if i in ins: out.append(ins[i])
        out.append(l)
    print('align8: %d widened, %d nops' % (npro, nnop))
    return '\n'.join(out)

if __name__ == '__main__':
    out = sys.argv[1] if len(sys.argv) > 1 else 'adaLN_cond__softmax_full_mha__mixer_gmlp__prompt.s'
    txt = build()
    if env('AL8', 1): txt = align8(txt)
    open(out, 'w').write(txt)
    print('wrote', out)
```

```python
import sys, struct, os
STAMP = int(os.environ.get('STAMP', '0'))
WS_STAMP = 128 << 20
KIDX = [0]
def env(n, d): return int(os.environ.get(n, d))

MB = 1 << 20
KB = 1024
WS_MOD = 0
WS_UW  = 32 * KB
WS_ST0 = 64 * KB
WS_MODP = 128 * KB
WS_MODT = 768 * KB
TAGP = env('TAGP', 1)
WS_SC = 96 * KB
WS_MODQ = 160 * KB
WS_ST1 = 256 * KB
WS_G   = 512 * KB
WS_FL  = 58 * MB
FLSZ = 2 * MB
FL_LN1, FL_QKV, FL_ATT, FL_WO, FL_WIN, FL_WSP, FL_MOD = [i * 8 * KB for i in range(7)]
WS_EPOCH = 240 * KB
AUX_A = 128 * KB; AUX_B = 148 * KB
WS_H   = 1 * MB
WS_Q   = 5 * MB
WS_KV  = 9 * MB
WS_G2  = 57 * MB
WS_N   = 60 * MB
WS_O   = 17 * MB
WS_X1  = 21 * MB
WS_X1S = 25 * MB
WS_Z   = 29 * MB
ZSZ = 2048 * 1792 * 2
WS_Z2N = WS_Z + ZSZ
WS_U2  = 50 * MB
if env('ALIAS', 0):
    WS_Q = 1 * MB; WS_KV = 5 * MB; WS_H = 13 * MB
    WS_O = WS_H; WS_X1 = WS_Q; WS_X1S = WS_KV
    WS_Z2N = 9 * MB; WS_Z = 17 * MB; WS_U2 = WS_Z
ZB = min(WS_Z, WS_Z2N)

ROLES = {'pre': [('mod', 0, 128, 0, 16), ('stats', 128, 256, 0, 16)], 'ln1': [('pf', 0, 256, 0, 4), ('ln', 0, 256, 4, 8)],
         'attn': [('main', 0, 256, 0, 8)]}
for _n in ('qkv', 'wo', 'wout'): ROLES[_n] = [('load', 0, 256, 0, 4), ('comp', 0, 256, 4, 8)]
for _n in ('win', 'wsp'): ROLES[_n] = [('load', 0, 224, 0, 4), ('comp', 0, 224, 4, 8), ('pf', 224, 256, 0, 8)]
def f2u(f): return struct.unpack('<I', struct.pack('<f', f))[0]
def hx(f): return '0x%08x' % f2u(f)
LOG2E = 1.4426950408889634
WT = os.environ.get('WTF', ' sc1')

class Kern:
    def __init__(self, name, grid, block, lds):
        self.name = name; self.grid = grid; self.block = block; self.lds = lds
        self.lines = []; self.vgpr = 0; self.nlab = 0
    def e(self, s):
        for l in s.strip('\n').split('\n'):
            l = l.strip()
            if l: self.lines.append('    ' + l)
    def label(self, l):
        if env('ALIGN', 0) and ('_loop' in l or '_lloop' in l):
            self.lines.append('.p2align %d' % env('ALIGN', 0))
            for _ in range(env('ALOFF', 0)): self.lines.append('    s_nop 0')
        self.lines.append(l + ':')
    def newlabel(self, base):
        self.nlab += 1
        return 'L_%s_%s%d' % (self.name, base, self.nlab)
    def need(self, vgpr, lds):
        self.vgpr = max(self.vgpr, vgpr); self.lds = max(self.lds, lds)
    def text(self):
        GX = os.environ.get('GX', '')
        if self.name != 'pre':
            if 'm' in GX: self.lines = [l for l in self.lines if 'v_mfma' not in l]
            if 'l' in GX: self.lines = [l for l in self.lines if not (' lds' in l and 'buffer_load' in l and ('s57' in l or 's58' in l))]
            if 'r' in GX: self.lines = [l for l in self.lines if not ('ds_read_b64_tr' in l)]
        if os.environ.get('NOLDSC'):
            self.lines = [l.replace(' sc1 lds', ' lds') for l in self.lines]
        n = self.name + '_kernel'
        return '.globl %s\n.p2align 8\n.type %s,@function\n%s:\n' % (n, n, n) + '\n'.join(self.lines) + '\n'
    def desc(self):
        n = self.name + '_kernel'
        v = self.vgpr
        acc = (v + 3) // 4 * 4
        return ('.p2align 6\n.amdhsa_kernel %s\n  .amdhsa_next_free_vgpr %d\n  .amdhsa_next_free_sgpr 102\n'
                '  .amdhsa_accum_offset %d\n  .amdhsa_group_segment_fixed_size 0\n  .amdhsa_kernarg_size 104\n'
                '  .amdhsa_user_sgpr_count 2\n  .amdhsa_user_sgpr_kernarg_segment_ptr 1\n'
                '  .amdhsa_system_sgpr_workgroup_id_x 1\n.end_amdhsa_kernel\n' % (n, v, acc))
    def launch(self):
        return '; @launch kernel=%s_kernel grid=(%d,1,1) block=(%d,1,1) lds=%d\n' % (self.name, self.grid, self.block, self.lds)

PTR = dict(x=4, wqkv=6, wo=8, bx=10, w_in=12, w_sp=14, b_sp=16, w_out=18, c=20, w_mod=22, out=24, dbg=26, ws=28)
SIZES = dict(x=2048*1024*2, wqkv=1024*3072*2, wo=1024*1024*2, w_in=1024*3584*2, w_sp=2048*2048*2, b_sp=2048*2,
             w_out=1792*1024*2, c=2048, w_mod=1024*6144*2, out=2048*1024*2, dbg=256)

class Ctx: pass
PHIDX = {}
def prologue(k):
    k.endl = 'L_%s_end' % k.name
    k.e("""
    s_load_dwordx16 s[4:19], s[0:1], 0
    s_load_dwordx8 s[20:27], s[0:1], 64
    s_load_dwordx2 s[28:29], s[0:1], 96
    s_cmp_ge_u32 s2, %d
    s_cbranch_scc1 %s
    v_lshrrev_b32 v1, 6, v0
    s_nop 0
    v_readfirstlane_b32 s3, v1
    """ % (k.grid, k.endl))

def phase_begin(k, c):
    k.c = c
    k.label('L_%s_entry' % c.name)
    if env('IDLE_' + c.name, 0):
        for _ in range(env('IDLE_' + c.name, 0)): k.e('s_sleep 36')
    c.kidx = KIDX[0]; KIDX[0] += 1
    PHIDX[c.name] = c.kidx
    if env('PADTO', 0) and c.first: k.e('s_memrealtime s[90:91]')
    if env('DBG', 0) and c.first: dbgstamp(k, 0 if c.name == 'pre' else 10, 512 if c.name == 'pre' else 0, '')
    if STAMP:
        k.e('s_memtime s[88:89]')
        k.e('s_memrealtime s[90:91]')
        for i in range(4): k.e('s_mov_b64 s[%d:%d], 0' % (72 + 2 * i, 73 + 2 * i))

def dbgstamp(k, idx, off, op):
    l = k.newlabel('dbg')
    k.e('''
    s_lshl_b32 s80, s2, 4
    s_add_u32 s80, s80, s3
    s_cmp_lg_u32 s80, %d
    s_cbranch_scc1 %s
    s_waitcnt lgkmcnt(0)
    s_memrealtime s[92:93]
    s_add_u32 s80, s26, %d
    s_addc_u32 s81, s27, 0
    s_and_b32 s81, s81, 0xffff
    s_mov_b32 s82, 256
    s_mov_b32 s83, 0x20000
    s_mov_b64 exec, 1
    s_waitcnt lgkmcnt(0)
    v_mov_b32 v2, s92
    v_mov_b32 v5, %d
    buffer_store_dword v2, v5, s[80:83], 0 offen
    s_mov_b64 exec, -1
    ''' % (5 * 16 + 4, l, off, idx * 4))
    k.label(l)
def endpgm(k):
    c = k.c
    if env('DBG', 0): dbgstamp(k, 1 + c.kidx, 512 if c.name == 'pre' else 0, '')
    if STAMP:
        k.e("""
        s_waitcnt vmcnt(0) lgkmcnt(0)
        s_memtime s[92:93]
        s_memrealtime s[94:95]
        s_mov_b64 exec, 1
        s_add_u32 s80, s28, 0x%x
        s_addc_u32 s81, s29, 0
        s_and_b32 s81, s81, 0xffff
        s_mov_b32 s82, 0x100000
        s_mov_b32 s83, 0x20000
        s_lshl_b32 s86, s2, 4
        s_add_u32 s86, s86, s3
        s_lshl_b32 s86, s86, 5
        s_waitcnt lgkmcnt(0)
        v_mov_b32 v4, s90
        v_mov_b32 v5, s94
        v_mov_b32 v6, s88
        v_mov_b32 v7, s92
        v_mov_b32 v8, s72
        v_mov_b32 v9, s74
        v_mov_b32 v10, s76
        v_mov_b32 v11, s78
        v_mov_b32 v2, s86
        buffer_store_dwordx4 v[4:7], v2, s[80:83], 0 offen
        buffer_store_dwordx4 v[8:11], v2, s[80:83], 0 offen offset:16
        s_waitcnt vmcnt(0)
        """ % (WS_STAMP + c.kidx * (1 << 20)))
    if c.last and env('PADTO', 0):
        l = k.newlabel('pad')
        k.label(l)
        k.e('s_memrealtime s[92:93]\ns_waitcnt lgkmcnt(0)\ns_sub_u32 s92, s92, s90\ns_cmp_lt_u32 s92, %d\ns_cbranch_scc1 %s' % (env('PADTO', 0) * 100, l))
    if c.last: k.e('s_endpgm')
    else:
        k.e('s_mov_b64 exec, -1')
        k.e('s_setprio 0')
        k.e('s_branch L_%s_entry' % c.nxt)
def mark(k, i=0):
    if STAMP:
        k.e('s_memtime s[%d:%d]' % (72 + 2 * i, 73 + 2 * i))
        k.e('s_waitcnt lgkmcnt(0)')

def set_flag(k, setup):
    if not k.c.last:
        k.e(setup)
        k.e('s_lshl_b32 s87, s100, 5')
def OWNF(n): return n in os.environ.get('OWN', 'none').split(',')
ZF32 = env('ZF32', 1)
W22 = env('W22', 1)
LPW = env('LPW', 0)
ZOWN = env('ZOWN', 1)
FV = 252
def flag_store(k, soff):
    k.e('s_mov_b64 exec, 1')
    k.e('buffer_store_dwordx2 %s, v%d, s[96:99], %s offen sc1' % (vr(FV, 2), FV + 2, soff))
    k.e('s_mov_b64 exec, -1')
def flag_prep(k):
    srd(k, 96, 'ws', WS_FL, FLSZ)
    k.e('v_mov_b32 v%d, s84' % FV); k.e('v_mov_b32 v%d, s85' % (FV + 1)); k.e('v_mov_b32 v%d, 0' % (FV + 2))
    k.need(FV + 3, 0)
def signal(k, role='L', keep=0):
    if k.c.last: return
    if role in ('C', 'S'): flag_prep(k)
    if role == 'C':
        k.e('s_and_b32 s100, s3, 3')
        k.e('s_lshl_b32 s100, s100, 7')
        k.e('s_add_u32 s100, s100, s87')
    if role == 'C' and env('SM', 0): mark(k, 3)
    k.e('s_waitcnt vmcnt(%d)' % keep)
    if role == 'C' and env('SM', 0): mark(k, 0)
    if role == 'C':
        flag_store(k, 's100')
        if OWNF(k.c.nxt): k.e('s_barrier')
    elif role == 'A' and OWNF(k.c.nxt) and k.c.nxt == 'wout':
        l = k.newlabel('sg')
        k.e('s_cmp_lt_u32 s3, 4'); k.e('s_cbranch_scc1 %s' % l); k.e('s_barrier'); k.label(l)
    elif role == 'S':
        l = k.newlabel('sg')
        k.e('s_barrier')
        k.e('s_cmp_lg_u32 s3, 7'); k.e('s_cbranch_scc1 %s' % l)
        flag_store(k, 's87')
        k.label(l)
POLLW = env('POLLW', 4)
def handoff(k, setup, n, role='L', force=False, slp=None):
    if (k.c.first and not force) or not n: return
    if role in 'AW' or (role == 'C') == (POLLW >= 4):
        ld = k.newlabel('wd')
        if role == 'W': pass
        elif n <= 64:
            k.e('s_cmp_lg_u32 s3, %d' % POLLW)
            k.e('s_cbranch_scc1 %s' % ld)
        else:
            assert n == 128
            k.e('s_sub_u32 s101, s3, %d' % POLLW)
            k.e('s_cmp_gt_u32 s101, 1')
            k.e('s_cbranch_scc1 %s' % ld)
        srd(k, 96, 'ws', WS_FL, FLSZ)
        k.e(setup)
        k.e('s_lshl_b32 s100, s100, 5')
        if n > 64:
            k.e('s_lshl_b32 s101, s101, 13')
            k.e('s_add_u32 s100, s100, s101')
        k.e('v_lshlrev_b32 v%d, 7, v1' % (FV + 2))
        k.e('s_mov_b32 s101, 0x100000')
        if n < 64: k.e('s_bfm_b64 exec, %d, 0' % n)
        k.need(FV + 3, 0)
        PP = env('PPIPE', 0)
        if PP:
            lp = k.newlabel('wf'); le = k.newlabel('we')
            B = [FV, FV - 2, FV - 4][:PP]
            ldp = lambda b: 'buffer_load_dwordx2 %s, v%d, s[96:99], s100 offen sc1' % (vr(b, 2), FV + 2)
            for b in B[:-1]:
                k.e(ldp(b)); k.e('s_sleep %d' % env('PGAP', 5))
            k.label(lp)
            for i_ in range(PP):
                k.e(ldp(B[i_ - 1]))
                k.e('s_waitcnt vmcnt(%d)' % (PP - 1))
                k.e('v_cmp_ne_u64 vcc, s[84:85], %s' % vr(B[i_], 2))
                k.e('s_nop 4')
                k.e('s_cbranch_vccz %s' % le)
            k.e('s_sub_u32 s101, s101, 1')
            k.e('s_cmp_lg_u32 s101, 0')
            k.e('s_cbranch_scc1 %s' % lp)
        else:
            lp = k.newlabel('wf'); le = k.newlabel('we')
            k.label(lp)
            k.e('buffer_load_dwordx2 %s, v%d, s[96:99], s100 offen sc1' % (vr(FV, 2), FV + 2))
            k.e('s_waitcnt vmcnt(0)')
            k.e('v_cmp_ne_u64 vcc, s[84:85], %s' % vr(FV, 2))
            k.e('s_sub_u32 s101, s101, 1')
            k.e('s_nop 3')
            k.e('s_cbranch_vccz %s' % le)
            if env('PMASK', 1): k.e('s_mov_b64 exec, vcc')
            if slp is None: slp = env('PSLEEP', 1)
            if slp: k.e('s_sleep %d' % slp)
            k.e('s_cmp_lg_u32 s101, 0')
            k.e('s_cbranch_scc1 %s' % lp)
        k.label(le)
        k.e('s_mov_b64 exec, -1')
        k.label(ld)
    if role != 'W': k.e('s_barrier')

def handoff_multi(k, polls):
    ld = k.newlabel('wd'); lgo = k.newlabel('wg')
    srd(k, 96, 'ws', WS_FL, FLSZ)
    for w, setup, n in polls:
        ln = k.newlabel('wn')
        k.e('s_cmp_lg_u32 s3, %d' % w)
        k.e('s_cbranch_scc1 %s' % ln)
        k.e(setup)
        k.e('v_min_u32 v%d, %d, v1' % (FV + 2, n - 1))
        k.e('s_branch %s' % lgo)
        k.label(ln)
    k.e('s_branch %s' % ld)
    k.label(lgo)
    k.e('s_lshl_b32 s100, s100, 5')
    k.e('v_lshlrev_b32 v%d, 7, v%d' % (FV + 2, FV + 2))
    k.e('s_mov_b32 s101, 0x100000')
    lp = k.newlabel('wf')
    k.label(lp)
    k.e('buffer_load_dwordx2 %s, v%d, s[96:99], s100 offen sc1' % (vr(FV, 2), FV + 2))
    k.e('s_waitcnt vmcnt(0)')
    k.e('v_cmp_ne_u64 vcc, s[84:85], %s' % vr(FV, 2))
    k.e('s_sub_u32 s101, s101, 1')
    k.e('s_nop 3')
    k.e('s_cbranch_vccz %s' % ld)
    k.e('s_sleep %d' % env('P0SLEEP', 2))
    k.e('s_cmp_lg_u32 s101, 0')
    k.e('s_cbranch_scc1 %s' % lp)
    k.label(ld)
    k.e('s_barrier')

def mod_table(k, R, between=None, nb=0):
    srd(k, 40, 'ws', 0, 256 * KB)
    k.e('v_lshlrev_b32 v%d, 4, v0' % (R + 16))
    for q in range(4):
        k.e('s_mov_b32 s48, %d' % (WS_MODP + q * 8192))
        k.e('buffer_load_dwordx4 %s, v%d, s[40:43], s48 offen sc1' % (vr(R + 4 * q, 4), R + 16))
    if between: between()
    k.e('s_cmp_lt_u32 s3, 4')
    k.e('s_cselect_b32 s49, 0, 1.0')
    k.e('v_add_u32 v%d, %d, v%d' % (R + 16, AUX_A, R + 16))
    k.e('s_waitcnt vmcnt(%d)' % nb)
    k.e(pk('add', R, R, R + 4)); k.e(pk('add', R + 2, R + 2, R + 6)); k.e(pk('add', R + 8, R + 8, R + 12)); k.e(pk('add', R + 10, R + 10, R + 14))
    k.e(pk('add', R, R, R + 8)); k.e(pk('add', R + 2, R + 2, R + 10))
    for d in range(2): round_bf16_pair(k, R + 2 * d, R + 2 * d + 1, R + 4)
    for q in range(4): k.e('v_add_f32 v%d, s49, v%d' % (R + q, R + q))
    for d in range(2): round_bf16_pair(k, R + 2 * d, R + 2 * d + 1, R + 4)
    k.e('ds_write_b128 v%d, %s' % (R + 16, vr(R, 4)))
    k.e('s_waitcnt lgkmcnt(0)')
    k.e('s_barrier')

def poll_back(k, lp):
    l = k.newlabel('pd')
    k.e('s_sub_u32 s101, s101, 1')
    k.e('s_nop 3')
    k.e('s_cbranch_vccz %s' % l)
    k.e('s_cmp_lg_u32 s101, 0')
    k.e('s_cbranch_scc1 %s' % lp)
    k.label(l)
def poll_init(k): k.e('s_mov_b32 s101, 0x100000')

def srd(k, d, what, off=0, size=None, soff=None):
    p = PTR[what]
    if what == 'ws': off += env('WSB', 0) * MB
    if size is None: size = SIZES[what]
    if off or soff:
        k.e('s_add_u32 s%d, s%d, 0x%x' % (d, p, off))
        k.e('s_addc_u32 s%d, s%d, 0' % (d + 1, p + 1))
        if soff:
            k.e('s_add_u32 s%d, s%d, %s' % (d, d, soff))
            k.e('s_addc_u32 s%d, s%d, 0' % (d + 1, d + 1))
        k.e('s_and_b32 s%d, s%d, 0xffff' % (d + 1, d + 1))
    else:
        k.e('s_mov_b32 s%d, s%d' % (d, p))
        k.e('s_and_b32 s%d, s%d, 0xffff' % (d + 1, p + 1))
    k.e('s_mov_b32 s%d, 0x%x' % (d + 2, size))
    k.e('s_mov_b32 s%d, 0x20000' % (d + 3))

def finish(k):
    endpgm(k)

XT = env('XT', 0)
AOWN = env('AOWN', 3)
AT2 = env('AT2', 1)
MP0 = env('MP0', 1)
CPF = env('CPF', 1)
def code_pf(k, start, end, maxbytes, lane=1, vt=6, vd=7, sb=84):
    if not CPF: return 0
    h = k.newlabel('pc')
    k.e('s_getpc_b64 s[%d:%d]' % (sb, sb + 1))
    k.label(h)
    k.e('s_add_u32 s%d, s%d, %s-%s' % (sb, sb, start, h))
    k.e('s_addc_u32 s%d, s%d, 0' % (sb + 1, sb + 1))
    n = (maxbytes + 8191) // 8192
    for i in range(n):
        k.e('v_lshlrev_b32 v%d, 7, v%d' % (vt, lane))
        if i: k.e('v_add_u32 v%d, %d, v%d' % (vt, i * 8192, vt))
        k.e('v_min_u32 v%d, %s-%s-4, v%d' % (vt, end, start, vt))
        k.e('global_load_dword v%d, v%d, s[%d:%d]' % (vd, vt, sb, sb + 1))
    return n

def vr(b, n): return 'v[%d:%d]' % (b, b + n - 1)
def sr(b): return 's[%d:%d]' % (b, b + 3)

def round_bf16_pair(k, a, b, tmp):
    k.e('v_cvt_pk_bf16_f32 v%d, v%d, v%d' % (tmp, a, b))
    k.e('v_lshlrev_b32 v%d, 16, v%d' % (a, tmp))
    k.e('v_and_b32 v%d, 0xffff0000, v%d' % (b, tmp))

def red_lanes(k, regs, tmp, rors=(8,)):
    for ro in rors:
        k.e('s_nop 1')
        for r in regs:
            k.e('v_add_f32_dpp v%d, v%d, v%d row_ror:%d row_mask:0xf bank_mask:0xf' % (r, r, r, ro))
    for op in ('v_permlane16_swap_b32', 'v_permlane32_swap_b32'):
        for r, t in zip(regs, tmp): k.e('v_mov_b32 v%d, v%d' % (t, r))
        k.e('s_nop 1')
        for r, t in zip(regs, tmp): k.e('%s v%d, v%d' % (op, r, t))
        k.e('s_nop 1')
        for r, t in zip(regs, tmp): k.e('v_add_f32 v%d, v%d, v%d' % (r, r, t))

def unpack(k, lo, hi, src):
    k.e('v_lshlrev_b32 v%d, 16, v%d' % (lo, src))
    k.e('v_and_b32 v%d, 0xffff0000, v%d' % (hi, src))

def k_p0(k, c):
    phase_begin(k, c)
    KIDX[0] += 1
    assert c.first and not c.last
    lst = 'L_p0_stats'
    def rest_issue():
        srd(k, 52, 'w_mod'); srd(k, 56, 'c')
        k.e("""
        v_lshrrev_b32 v164, 3, v0
        v_lshlrev_b32 v165, 4, v164        ; c byte offset = g*16
        v_mul_u32_u24 v164, %d, v164
        v_and_b32 v166, 7, v0
        v_lshl_add_u32 v164, v166, 4, v164
        s_lshr_b32 s60, s30, 1             ; col block
        s_and_b32 s61, s30, 1              ; k half
        s_lshl_b32 s62, s60, 7
        s_mul_i32 s63, s61, %d
        s_add_u32 s62, s62, s63
        s_add_u32 s62, s62, 4096
        s_lshl_b32 s63, s61, 10
        buffer_load_dwordx4 v[128:131], v165, s[56:59], s63 offen
        """ % (8 * 12288, 512 * 12288))
        if env('PWAIT', 2) == 2: k.e('s_waitcnt vmcnt(0)')
        for j in range(8):
            k.e('buffer_load_dwordx4 %s, v164, s[52:55], s62 offen' % vr(132 + 4 * j, 4))
            k.e('s_add_u32 s62, s62, 12288')
        k.need(192, 0)
    def rest_compute(newer):
        S_ = 168; T_ = 176; A_ = 184
        k.e('s_waitcnt vmcnt(%d)' % (8 + newer))
        for j in range(4): unpack(k, S_ + 2 * j, S_ + 1 + 2 * j, 128 + j)
        for j in range(8): k.e('v_mul_f32 v%d, %s, v%d' % (T_ + j, hx(-LOG2E), S_ + j))
        for j in range(8): k.e('v_exp_f32 v%d, v%d' % (T_ + j, T_ + j))
        for j in range(8): k.e('v_add_f32 v%d, 1.0, v%d' % (T_ + j, T_ + j))
        for j in range(8): k.e('v_rcp_f32 v%d, v%d' % (T_ + j, T_ + j))
        for j in range(8): k.e('v_mul_f32 v%d, v%d, v%d' % (S_ + j, S_ + j, T_ + j))
        for j in range(4): round_bf16_pair(k, S_ + 2 * j, S_ + 1 + 2 * j, T_)
        for j in range(8):
            k.e('s_waitcnt vmcnt(%d)' % (7 - j + newer))
            for d in range(4):
                unpack(k, T_, T_ + 1, 132 + 4 * j + d)
                op = 'v_mul_f32' if j == 0 else 'v_fmac_f32'
                k.e('%s v%d, v%d, v%d' % (op, A_ + 2 * d, T_, S_ + j))
                k.e('%s v%d, v%d, v%d' % (op, A_ + 1 + 2 * d, T_ + 1, S_ + j))
        k.e('s_nop 1')
        for e in range(4): k.e('v_permlane32_swap_b32 v%d, v%d' % (A_ + e, A_ + 4 + e))
        k.e('s_nop 1')
        for e in range(4): k.e('v_add_f32 v%d, v%d, v%d' % (A_ + e, A_ + e, A_ + 4 + e))
        k.e('s_nop 1')
        for e in range(2): k.e('v_permlane16_swap_b32 v%d, v%d' % (A_ + e, A_ + 2 + e))
        k.e('s_nop 1')
        for e in range(2): k.e('v_add_f32 v%d, v%d, v%d' % (A_ + e, A_ + e, A_ + 2 + e))
        k.e('s_nop 1')
        for e in range(2): k.e('v_add_f32_dpp v%d, v%d, v%d row_ror:8 row_mask:0xf bank_mask:0xf' % (A_ + e, A_ + e, A_ + e))
        lw2 = k.newlabel('nw')
        k.e("""
        v_lshlrev_b32 v164, 5, v166
        v_lshrrev_b32 v165, 4, v1
        v_lshl_add_u32 v164, v165, 3, v164
        s_lshl_b32 s62, s3, 8
        s_add_u32 s62, s62, %d
        v_add_u32 v164, s62, v164
        ds_write_b64 v164, v[184:185]
        s_waitcnt lgkmcnt(0)
        s_barrier
        s_cmp_lg_u32 s3, 7
        s_cbranch_scc1 %s
        v_lshlrev_b32 v164, 2, v1
        v_add_u32 v165, %d, v164
        """ % (AUX_A + 8192, lw2, AUX_A + 8192))
        for w in range(8): k.e('ds_read_b32 v%d, v165 offset:%d' % (T_ + w, w * 256))
        k.e("""
        s_lshl_b32 s62, s60, 8
        s_lshl_b32 s63, s61, 14
        s_add_u32 s62, s62, s63
        s_add_u32 s62, s62, %d
        s_waitcnt lgkmcnt(0)
        """ % WS_MODQ)
        for w in range(0, 8, 2): k.e('v_add_f32 v%d, v%d, v%d' % (T_ + w, T_ + w, T_ + w + 1))
        k.e('v_add_f32 v%d, v%d, v%d' % (T_, T_, T_ + 2))
        k.e('v_add_f32 v%d, v%d, v%d' % (T_ + 4, T_ + 4, T_ + 6))
        k.e('v_add_f32 v%d, v%d, v%d' % (T_, T_, T_ + 4))
        k.e('buffer_store_dword v%d, v164, s[40:43], s62 offen%s' % (T_, WT))
        k.label(lw2)
    k.e("""
    v_and_b32 v1, 63, v0               ; lane
    v_lshlrev_b32 v6, 4, v0            ; tid*16
    s_lshr_b32 s30, s2, 4
    s_lshl_b32 s30, s30, 3
    s_and_b32 s47, s2, 7
    s_add_u32 s30, s30, s47            ; index within role (0..127)
    s_bitcmp1_b32 s2, 3
    s_cbranch_scc1 %s
    s_lshr_b32 s48, s30, 2             ; col block
    s_and_b32 s49, s30, 3              ; k quarter
    v_lshrrev_b32 v2, 3, v0            ; row group (0..63): rows 4g..4g+3 (+256*q)
    v_and_b32 v3, 7, v0                ; chunk
    v_lshlrev_b32 v4, 3, v2            ; c byte offset = g*8
    v_mul_u32_u24 v5, %d, v2
    v_lshl_add_u32 v5, v3, 4, v5
    s_lshl_b32 s31, s48, 7
    s_mul_i32 s44, s49, %d
    s_add_u32 s31, s31, s44
    s_lshl_b32 s45, s49, 9
    s_waitcnt lgkmcnt(0)
    s_load_dwordx2 s[84:85], s[28:29], 0x%x
    """ % (lst, 4 * 12288, 256 * 12288, WS_EPOCH + env('WSB', 0) * MB))
    mark(k, 0)
    srd(k, 36, 'w_mod'); srd(k, 32, 'c')
    CL = env('CLAST', 0)
    if not CL: k.e('buffer_load_dwordx2 v[8:9], v4, s[32:35], s45 offen')
    for j in range(4):
        k.e('buffer_load_dwordx4 %s, v5, s[36:39], s31 offen' % vr(12 + 4 * j, 4))
        k.e('s_add_u32 s31, s31, 12288')
    if CL: k.e('buffer_load_dwordx2 v[8:9], v4, s[32:35], s45 offen')
    lnc = k.newlabel('nc')
    def resets(R, wait):
        lnr = k.newlabel('nr')
        k.e('s_cmp_gt_u32 s3, 3')
        k.e('s_cbranch_scc1 %s' % lnr)
        for r in range(4): k.e('v_mov_b32 v%d, -1' % (R + r))
        for off, size in (((WS_G2, 512 * KB) if W22 else (WS_G, 256 * KB)), (WS_MOD, 64 * KB)) + (() if MP0 else ((WS_MODQ, 64 * KB),)):
            per = size // 128
            srd(k, 52, 'ws', off, size)
            k.e('s_mul_i32 s50, s30, %d' % per)
            k.e('v_cmp_gt_u32 vcc, %d, v0' % (per // 16))
            k.e('s_and_saveexec_b64 s[46:47], vcc')
            k.e('buffer_store_dwordx4 %s, v6, s[52:55], s50 offen%s' % (vr(R, 4), WT))
            k.e('s_mov_b64 exec, s[46:47]')
        if wait: k.e('s_waitcnt vmcnt(0)')
        k.label(lnr)
    RLN = env('RLN', 1)
    if not RLN: resets(40, True)
    srd(k, 40, 'ws', 0, 256 * KB)
    if CL == 2:
        k.e('s_waitcnt vmcnt(1)'); mark(k, 0)
    k.e('s_waitcnt vmcnt(%d)' % (0 if CL else 4))
    mark(k, 1)
    for j in range(2): unpack(k, 44 + 2 * j, 45 + 2 * j, 8 + j)
    for j in range(4): k.e('v_mul_f32 v%d, %s, v%d' % (52 + j, hx(-LOG2E), 44 + j))
    for j in range(4): k.e('v_exp_f32 v%d, v%d' % (52 + j, 52 + j))
    for j in range(4): k.e('v_add_f32 v%d, 1.0, v%d' % (52 + j, 52 + j))
    for j in range(4): k.e('v_rcp_f32 v%d, v%d' % (52 + j, 52 + j))
    for j in range(4): k.e('v_mul_f32 v%d, v%d, v%d' % (44 + j, 44 + j, 52 + j))
    for j in range(2): round_bf16_pair(k, 44 + 2 * j, 45 + 2 * j, 52)
    lns = k.newlabel('nosc')
    if not MP0: k.e("""
    s_cmp_lg_u32 s48, 0
    s_cbranch_scc1 %s
    v_lshlrev_b32 v7, 4, v2
    s_lshl_b32 s44, s49, 10
    s_add_u32 s44, s44, %d
    buffer_store_dwordx4 v[44:47], v7, s[40:43], s44 offen%s
    s_waitcnt vmcnt(0)
    """ % (lns, WS_SC, WT))
    k.label(lns)
    A = 56
    for j in range(4):
        k.e('s_waitcnt vmcnt(%d)' % (3 - j))
        for d in range(4):
            unpack(k, 52, 53, 12 + 4 * j + d)
            op = 'v_mul_f32' if j == 0 else 'v_fmac_f32'
            k.e('%s v%d, v52, v%d' % (op, A + 2 * d, 44 + j))
            k.e('%s v%d, v53, v%d' % (op, A + 1 + 2 * d, 44 + j))
    mark(k, 2)
    if MP0 == 4: rest_issue()
    k.e('s_nop 1')
    for e in range(4): k.e('v_permlane32_swap_b32 v%d, v%d' % (A + e, A + 4 + e))
    k.e('s_nop 1')
    for e in range(4): k.e('v_add_f32 v%d, v%d, v%d' % (A + e, A + e, A + 4 + e))
    k.e('s_nop 1')
    for e in range(2): k.e('v_permlane16_swap_b32 v%d, v%d' % (A + e, A + 2 + e))
    k.e('s_nop 1')
    for e in range(2): k.e('v_add_f32 v%d, v%d, v%d' % (A + e, A + e, A + 2 + e))
    k.e('s_nop 1')
    for e in range(2): k.e('v_add_f32_dpp v%d, v%d, v%d row_ror:8 row_mask:0xf bank_mask:0xf' % (A + e, A + e, A + e))
    lw = k.newlabel('nw')
    k.e("""
    v_lshlrev_b32 v2, 5, v3
    v_lshrrev_b32 v7, 4, v1
    v_lshl_add_u32 v2, v7, 3, v2
    s_lshl_b32 s44, s3, 8
    s_add_u32 s44, s44, %d
    v_add_u32 v2, s44, v2
    ds_write_b64 v2, v[56:57]
    s_waitcnt lgkmcnt(0)
    s_add_u32 s84, s84, 1
    s_barrier
    s_cmp_lg_u32 s3, 0
    s_cbranch_scc1 %s
    v_lshlrev_b32 v2, 2, v1
    v_add_u32 v7, %d, v2
    """ % (AUX_A, lw, AUX_A))
    for w in range(8): k.e('ds_read_b32 v%d, v7 offset:%d' % (12 + w, w * 256))
    flag_prep(k)
    k.e("""
    s_lshl_b32 s31, s48, 8
    s_lshl_b32 s44, s49, 13
    s_add_u32 s31, s31, s44
    s_add_u32 s31, s31, %d
    s_lshl_b32 s100, s30, 7
    s_add_u32 s100, s100, %d
    s_waitcnt lgkmcnt(0)
    """ % (WS_MODP, FL_MOD * 32))
    for w in range(0, 8, 2): k.e('v_add_f32 v%d, v%d, v%d' % (12 + w, 12 + w, 13 + w))
    k.e('v_add_f32 v12, v12, v14')
    k.e('v_add_f32 v16, v16, v18')
    k.e('v_add_f32 v12, v12, v16')
    if TAGP:
        srd(k, 96, 'ws', WS_MODT, 64 * KB)
        k.e("""
        v_mov_b32 v14, s84
        v_mov_b32 v15, s85
        v_mov_b32_dpp v13, v12 quad_perm:[1,1,3,3] row_mask:0xf bank_mask:0xf
        v_lshlrev_b32 v2, 3, v1
        s_lshl_b32 s31, s48, 9
        s_lshl_b32 s44, s49, 14
        s_add_u32 s31, s31, s44
        s_mov_b32 exec_lo, 0x55555555
        s_mov_b32 exec_hi, 0x55555555
        buffer_store_dwordx4 v[12:15], v2, s[96:99], s31 offen sc1
        s_mov_b64 exec, -1
        """)
        if env('PWAIT', 2): k.e('s_waitcnt vmcnt(0)')
    else:
        k.e('buffer_store_dword v12, v2, s[40:43], s31 offen' + WT)
        k.e('s_waitcnt vmcnt(0)')
        flag_store(k, 's100')
    k.label(lw)
    k.e('s_barrier')
    mark(k, 3)
    if env('TLBW', 0):
        lt = k.newlabel('tl')
        for w, (nm, sz) in enumerate((('ws', 64 * MB), ('w_mod', None), ('w_sp', None), ('w_in', None), ('w_out', None), ('wo', None), ('out', None), ('x', None))):
            ln = k.newlabel('tn')
            k.e('s_cmp_lg_u32 s3, %d' % w)
            k.e('s_cbranch_scc1 %s' % ln)
            srd(k, 36, nm, 0, sz)
            k.e('s_branch %s' % lt)
            k.label(ln)
        k.label(lt)
        k.e('s_lshr_b32 s51, s30, 3')
        k.e('s_lshl_b32 s51, s51, 22')
        k.e('s_add_u32 s51, s51, %d' % (65536 - 128))
        k.e('v_lshlrev_b32 v36, 16, v1')
        k.e('buffer_load_dword v37, v36, s[36:39], s51 offen')
    srd(k, 36, 'wqkv')
    k.e('s_lshl_b32 s51, s30, 13')
    k.e('s_add_u32 s51, s51, %d' % (env('NPFE', 0) * MB))
    for p in range(env('NPFQ', 0) - env('NPFE', 0)):
        k.e('buffer_load_dwordx4 v[8:11], v6, s[36:39], s51 offen')
        k.e('s_add_u32 s51, s51, %d' % MB)
    if CPF:
        h = k.newlabel('pc')
        k.e('s_cmp_lg_u32 s3, 2')
        k.e('s_cbranch_scc1 %s' % lnc)
        k.e('s_cmp_ge_u32 s30, 64')
        k.e('s_cbranch_scc1 %s' % lnc)
        k.e('s_getpc_b64 s[64:65]')
        k.label(h)
        k.e('s_add_u32 s64, s64, L_qkv_entry-%s' % h)
        k.e('s_addc_u32 s65, s65, 0')
        k.e('s_lshr_b32 s44, s30, 3')
        k.e('s_lshl_b32 s44, s44, 13')
        k.e('v_lshl_add_u32 v38, v1, 7, s44')
        k.e('v_min_u32 v38, L_text_end-L_qkv_entry-4, v38')
        k.e('global_load_dword v39, v38, s[64:65]')
        k.label(lnc)
    if MP0 == 1:
        rest_issue(); rest_compute(0)
    if MP0 == 4: rest_compute(0)
    k.e('s_waitcnt vmcnt(0)')
    endpgm(k)
    k.label(lst)
    k.e("""
    s_lshl_b32 s44, s3, 12
    v_lshl_add_u32 v3, v1, 4, s44      ; wave*4096 + lane*16
    s_lshl_b32 s31, s30, 15            ; 16 rows * 2048
    s_waitcnt lgkmcnt(0)
    s_load_dwordx2 s[84:85], s[28:29], 0x%x
    """ % (WS_EPOCH + env('WSB', 0) * MB))
    srd(k, 32, 'x')
    if env('XDELAY', 0): k.e('s_waitcnt lgkmcnt(0)')
    for q in range(4): k.e('buffer_load_dwordx4 %s, v3, s[32:35], s31 offen offset:%d' % (vr(8 + 4 * q, 4), q * 1024))
    if MP0 == 2: rest_issue()
    NE = env('NPFE', 0)
    if NE:
        srd(k, 36, 'wqkv')
        k.e('s_lshl_b32 s51, s30, 13')
        for p in range(NE):
            k.e('buffer_load_dwordx4 v[128:131], v6, s[36:39], s51 offen')
            k.e('s_add_u32 s51, s51, %d' % MB)
    srd(k, 36, 'ws', WS_H, 4 * MB); srd(k, 40, 'ws', 0, 256 * KB)
    if env('HTOUCH', 0):
        srd(k, 96, 'ws', WS_FL, FLSZ)
        k.e('v_mov_b32 v126, 0')
        k.e('s_mov_b64 exec, 1')
        k.e('buffer_load_dword v127, v126, s[36:39], s31 offen')
        k.e('buffer_load_dword v127, v126, s[96:99], 0 offen offset:64')
        k.e('s_mov_b64 exec, -1')
        NE += 2
    set_flag(k, 's_lshr_b32 s100, s30, 3\ns_lshl_b32 s100, s100, 8\ns_and_b32 s101, s30, 7\ns_lshl_b32 s101, s101, 2\ns_add_u32 s100, s100, s101\ns_add_u32 s100, s100, %d' % FL_LN1)
    mark(k, 0)
    k.e('s_waitcnt vmcnt(%d) lgkmcnt(0)' % (NE + (9 if MP0 == 2 else 0)))
    k.e('s_add_u32 s84, s84, 1')
    if MP0 == 3: rest_issue()
    X = 24
    for d in range(16): unpack(k, X + 2 * d, X + 2 * d + 1, 8 + d)
    MU = [56, 58]; VA = [60, 62]
    for r in range(2):
        k.e(pk('add', 8 + 2 * r, X + 16 * r, X + 16 * r + 2))
        for e in range(4, 16, 2): k.e(pk('add', 8 + 2 * r, 8 + 2 * r, X + 16 * r + e))
        k.e('v_add_f32 v%d, v%d, v%d' % (MU[r], 8 + 2 * r, 9 + 2 * r))
    red_lanes(k, MU, [8, 9], rors=(8, 4, 2, 1))
    for r in range(2):
        k.e('v_mul_f32 v%d, %s, v%d' % (MU[r], hx(-1.0 / 1024), MU[r]))
        for e in range(0, 16, 2):
            k.e(pk('add', 8, X + 16 * r + e, (MU[r],)))
            k.e(pk('mul', 10, 8, 8) if e == 0 else pk('fma', 10, 8, 8, 10))
        k.e('v_add_f32 v%d, v10, v11' % VA[r])
    red_lanes(k, VA, [8, 9], rors=(8, 4, 2, 1))
    for r in range(2):
        k.e('v_mul_f32 v%d, %s, v%d' % (VA[r], hx(1.0 / 1024), VA[r]))
        round_bf16_pair(k, MU[r], VA[r], 8)
        k.e('v_add_f32 v%d, %s, v%d' % (VA[r], hx(1e-5), VA[r]))
    round_bf16_pair(k, VA[0], VA[1], 8)
    for r in range(2): k.e('v_sqrt_f32 v%d, v%d' % (VA[r], VA[r]))
    k.e('s_nop 0')
    round_bf16_pair(k, VA[0], VA[1], 8)
    for r in range(2): k.e('v_rcp_f32 v%d, v%d' % (VA[r], VA[r]))
    def tag_setup():
        srd(k, 96, 'ws', WS_MODT, 64 * KB)
        k.e('v_lshlrev_b32 v81, 4, v1')
        k.e('s_lshl_b32 s100, s3, 11')
        k.e('v_add_u32 v81, s100, v81')
        k.e('v_lshlrev_b32 v80, 3, v1')
        k.e('s_lshl_b32 s100, s3, 10')
        k.e('s_add_u32 s100, s100, %d' % AUX_A)
        k.e('v_add_u32 v80, s100, v80')
        k.e('s_mov_b32 s101, 0x100000')
    def tag_loads():
        for q in range(4):
            k.e('s_mov_b32 s56, %d' % (q * 16384))
            for hh in range(2): k.e('buffer_load_dwordx4 %s, v81, s[96:99], s56 offen offset:%d sc1' % (vr(96 + 8 * q + 4 * hh, 4), hh * 1024))
    ET = env('ET', 0)
    if ET == 1:
        if RLN: resets(132, False)
        tag_setup(); tag_loads()
    k.e("""
    v_lshrrev_b32 v5, 1, v1
    v_mul_u32_u24 v5, 544, v5          ; cb*2*272
    v_and_b32 v7, 1, v1
    v_lshl_add_u32 v5, v7, 3, v5
    s_lshl_b32 s44, s3, 5
    v_add_u32 v5, s44, v5
    """)
    for r in range(2):
        x = X + 16 * r; pin = 8 + 8 * r
        for d in range(8): k.e(pk('add', x + 2 * d, x + 2 * d, (MU[r],)))
        for d in range(8): round_bf16_pair(k, x + 2 * d, x + 2 * d + 1, pin + d)
        for d in range(8): k.e(pk('mul', x + 2 * d, x + 2 * d, (VA[r],)))
        for d in range(8): k.e('v_cvt_pk_bf16_f32 v%d, v%d, v%d' % (pin + d, x + 2 * d, x + 2 * d + 1))
        for q, o in enumerate((0, 272, 64 * 272, 65 * 272)):
            k.e('ds_write_b64 v5, %s offset:%d' % (vr(pin + 2 * q, 2), o + 16 * r))
    k.e("""
    v_lshrrev_b32 v5, 4, v0            ; gi (p=0)
    v_and_b32 v7, 15, v0               ; row
    v_mul_u32_u24 v2, 272, v5
    v_lshl_add_u32 v2, v7, 4, v2       ; granule lds address
    v_lshlrev_b32 v4, 9, v5
    v_lshl_add_u32 v4, v7, 4, v4       ; global offset
    v_lshrrev_b32 v3, 1, v5
    v_lshlrev_b32 v3, 6, v3
    v_and_b32 v5, 1, v5
    v_lshl_add_u32 v3, v5, 4, v3
    v_add_u32 v3, %d, v3               ; table address: cb*64 + h*16
    s_lshr_b32 s44, s30, 1
    s_lshl_b32 s44, s44, 16
    s_and_b32 s45, s30, 1
    s_lshl_b32 s45, s45, 8
    s_add_u32 s44, s44, s45
    s_mov_b32 s48, %d
    s_cmp_lt_u32 s3, 4
    s_cselect_b32 s49, 0, 1.0
    s_waitcnt lgkmcnt(0)
    """ % (AUX_A, WS_MODP))
    if MP0 in (2, 3): rest_compute(0)
    if RLN and ET != 1: resets(132, False)
    if ET == 2: tag_setup(); tag_loads()
    mark(k, 1)
    if XT:
        srd(k, 36, 'ws', WS_N, 4 * MB)
        k.e('s_barrier')
        for p in range(4): k.e('ds_read_b128 %s, v2 offset:%d' % (vr(8 + 4 * p, 4), p * 32 * 272))
        for p in range(4):
            k.e('s_waitcnt lgkmcnt(%d)' % (3 - p))
            k.e('buffer_store_dwordx4 %s, v4, s[36:39], s44 offen%s' % (vr(8 + 4 * p, 4), WT))
            k.e('s_add_u32 s44, s44, 16384')
        mark(k, 3)
        signal(k, 'S')
        finish(k)
        k.need(128, AUX_A + 8192)
        return
    X = 24
    k.e('s_barrier')
    for p in range(4): k.e('ds_read_b128 %s, v2 offset:%d' % (vr(8 + 4 * p, 4), p * 32 * 272))
    for p in range(4):
        k.e('s_waitcnt lgkmcnt(%d)' % (3 - p))
        for d in range(4): unpack(k, X + 8 * p + 2 * d, X + 8 * p + 2 * d + 1, 8 + 4 * p + d)
    if TAGP:
        lp = k.newlabel('wf'); le = k.newlabel('we')
        if ET:
            k.e('s_branch %sc' % lp)
        else: tag_setup()
        k.label(lp)
        tag_loads()
        k.label(lp + 'c')
        k.e('s_mov_b64 s[50:51], 0')
        for n in range(8):
            k.e('s_waitcnt vmcnt(%d)' % (7 - n))
            k.e('v_cmp_ne_u64 vcc, s[84:85], %s' % vr(98 + 4 * n, 2))
            k.e('s_or_b64 s[50:51], s[50:51], vcc')
        k.e('s_cbranch_scc0 %s' % le)
        k.e('s_sub_u32 s101, s101, 1')
        k.e('s_sleep %d' % env('P0SLEEP', 1))
        k.e('s_cmp_lg_u32 s101, 0')
        k.e('s_cbranch_scc1 %s' % lp)
        k.label(le)
        mark(k, 2)
        for hh in range(2):
            b = 96 + 4 * hh
            k.e(pk('add', b, b, b + 8)); k.e(pk('add', b + 16, b + 16, b + 24)); k.e(pk('add', 64 + 2 * hh, b, b + 16))
    else:
        srd(k, 96, 'ws', WS_FL, FLSZ)
        lp = k.newlabel('wf'); le = k.newlabel('we')
        k.e("""
        s_lshl_b32 s100, s3, 11
        s_add_u32 s100, s100, %d
        v_lshlrev_b32 v%d, 7, v1
        v_add_u32 v80, %d, v6
        s_mov_b32 s101, 0x100000
        s_mov_b64 exec, 0xffff
        %s:
        buffer_load_dwordx2 %s, v%d, s[96:99], s100 offen sc1
        s_waitcnt vmcnt(0)
        v_cmp_ne_u64 vcc, s[84:85], %s
        s_sub_u32 s101, s101, 1
        s_nop 3
        s_cbranch_vccz %s
        s_mov_b64 exec, vcc
        s_sleep %d
        s_cmp_lg_u32 s101, 0
        s_cbranch_scc1 %s
        %s:
        s_mov_b64 exec, -1
        """ % (FL_MOD * 32, FV + 2, AUX_A, lp, vr(FV, 2), FV + 2, vr(FV, 2), le, env('P0SLEEP', 1), lp, le))
        mark(k, 2)
        for q in range(4):
            k.e('buffer_load_dwordx4 %s, v6, s[40:43], s48 offen sc1' % vr(64 + 4 * q, 4))
            k.e('s_add_u32 s48, s48, 8192')
        k.e('s_waitcnt vmcnt(0)')
        k.e(pk('add', 64, 64, 68)); k.e(pk('add', 66, 66, 70)); k.e(pk('add', 72, 72, 76)); k.e(pk('add', 74, 74, 78))
        k.e(pk('add', 64, 64, 72)); k.e(pk('add', 66, 66, 74))
    for d in range(2): round_bf16_pair(k, 64 + 2 * d, 65 + 2 * d, 68)
    for q in range(4): k.e('v_add_f32 v%d, s49, v%d' % (64 + q, 64 + q))
    for d in range(2): round_bf16_pair(k, 64 + 2 * d, 65 + 2 * d, 68)
    if TAGP:
        k.e('ds_write_b64 v80, v[64:65]')
        k.e('ds_write_b64 v80, v[66:67] offset:512')
    else: k.e('ds_write_b128 v80, v[64:67]')
    k.e('s_waitcnt lgkmcnt(0)')
    k.e('s_barrier')
    SC = 64; SH = 96
    for p in range(4):
        for sub in range(2):
            k.e('ds_read_b128 %s, v3 offset:%d' % (vr(SC + 8 * p + 4 * sub, 4), 4096 + p * 1024 + sub * 32))
            k.e('ds_read_b128 %s, v3 offset:%d' % (vr(SH + 8 * p + 4 * sub, 4), p * 1024 + sub * 32))
    for p in range(4):
        pin = 8 + 4 * p; x = X + 8 * p
        k.e('s_waitcnt lgkmcnt(%d)' % (12 - 4 * p))
        if env('NORND', 0):
            for d in range(4): k.e(pk('fma', x + 2 * d, x + 2 * d, SC + 8 * p + 2 * d, SH + 8 * p + 2 * d))
        else:
            for d in range(4): k.e(pk('mul', x + 2 * d, x + 2 * d, SC + 8 * p + 2 * d))
            for d in range(4): round_bf16_pair(k, x + 2 * d, x + 2 * d + 1, pin + d)
            for d in range(4): k.e(pk('add', x + 2 * d, x + 2 * d, SH + 8 * p + 2 * d))
        for d in range(4): k.e('v_cvt_pk_bf16_f32 v%d, v%d, v%d' % (pin + d, x + 2 * d, x + 2 * d + 1))
        k.e('buffer_store_dwordx4 %s, v4, s[36:39], s44 offen%s' % (vr(pin, 4), WT))
        k.e('s_add_u32 s44, s44, 16384')
    mark(k, 3)
    signal(k, 'S')
    finish(k)
    k.need(128, AUX_A + 10240)

def log2(n):
    l = n.bit_length() - 1
    assert 1 << l == n
    return l
class G: pass

def k_gemm(k, c, GM, GN, bm_log2, xm_log2, bn, TM, TN, WM, WN, K, KS, NS, X, Y, pre, pre2, epi, swap=(), aux=None, auxsz=0, auxbase=None,
           pf=None, aux_end=None, side=None, wait=None, sig=None, dep='X', GU=1, RWD=1, post=None, frbase=None, selfsig=False, RR=0, early=None, JG=1, lazyfix=False, SOFT=0, own=None, ownlim=None, altmap=False, prelast=None, DEFER=0, dcols=None, auxpre=None, mid=None, accmap=None, cinit=False):
    g = G()
    name = c.name
    xt = X[0] == 'xt'
    M16 = name in os.environ.get('M16', 'qkv,wo,win,wsp,wout').split(',')
    if xt: X = ('xf',) + X[1:]
    ROLL = env('ROLL_' + name, env('ROLL', 0 if name == 'qkv' else 1))
    LAG = 2 if ROLL else 1
    NS = env('NS_' + name, NS + LAG - 1)
    mb = TM // WM // 32; nb = TN // WN // 32
    S = KS // 16
    xb = TM * KS * 2; yb = TN * KS * 2; STAGE = xb + yb
    nst = K // KS
    solo = c.first and c.last
    g.k = k; g.mb = mb; g.nb = nb; g.TM = TM; g.TN = TN; g.AUX = NS * STAGE if solo or auxbase is None else auxbase
    assert NS * STAGE <= g.AUX
    phase_begin(k, c)
    k.e('''
    v_and_b32 v1, 63, v0               ; lane
    s_mov_b32 s46, s3
    s_and_b32 s47, s2, 7               ; xcd
    s_lshr_b32 s48, s2, 3              ; idx
    s_and_b32 s30, s47, %d
    s_lshl_b32 s30, s30, %d
    s_and_b32 s49, s48, %d
    s_add_u32 s30, s30, s49            ; tm
    s_lshr_b32 s31, s47, %d
    s_mul_i32 s31, s31, %d
    s_lshr_b32 s49, s48, %d
    s_add_u32 s31, s31, s49            ; tn
    ''' % ((1 << xm_log2) - 1, bm_log2, (1 << bm_log2) - 1, xm_log2, bn, bm_log2))
    if altmap:
        k.e('''
        s_and_b32 s30, s47, 3
        s_lshl_b32 s30, s30, 3
        s_and_b32 s49, s48, 3
        s_lshl_b32 s49, s49, 1
        s_add_u32 s30, s30, s49
        s_bfe_u32 s49, s48, 0x10002
        s_add_u32 s30, s30, s49
        ''')
    if env('MAP_' + name, 0):
        k.e('''
        s_lshr_b32 s31, s47, 1
        s_mul_i32 s31, s31, 28
        s_add_u32 s31, s31, s48
        s_and_b32 s30, s47, 1
        s_lshl_b32 s30, s30, 3
        s_and_b32 s49, s31, 7
        s_add_u32 s30, s30, s49
        s_lshr_b32 s31, s31, 3
        ''')
    lcomp = 'L_%s_comp' % name
    set_flag(k, sig)
    if pf or side:
        k.e('s_cmp_ge_u32 s2, %d' % (GM * GN))
        k.e('s_cbranch_scc1 L_%s_pf' % name)
    k.e('s_cmp_ge_u32 s46, 4')
    k.e('s_cbranch_scc1 %s' % lcomp)
    nx = xb // 1024 // 4; ny = yb // 1024 // 4
    assert nx * 4096 == xb and ny * 4096 == yb
    VX = 8; VY = VX + nx
    g.LV = VY + ny
    if X[0] == 'xf':
        C = X[2]; ncb = C // 16
        assert S % nx == 0 or nx % S == 0
        k.e('s_mul_i32 s50, s30, %d' % (TM // 32 * ncb * 1024))
        k.e('s_mul_i32 s51, s46, %d' % nx)
        k.e('s_lshr_b32 s52, s51, %d' % log2(S))
        k.e('s_and_b32 s51, s51, %d' % (S - 1))
        k.e('s_mul_i32 s52, s52, %d' % (ncb * 1024))
        k.e('s_lshl_b32 s51, s51, 10')
        k.e('s_add_u32 s50, s50, s52')
        k.e('s_add_u32 s50, s50, s51')
        k.e('v_lshl_add_u32 v%d, v1, 4, s50' % VX)
        for j in range(1, nx):
            k.e('v_add_u32 v%d, %d, v%d' % (VX + j, (j // S) * ncb * 1024 + (j % S) * 1024, VX))
        xadv = S * 1024
    else:
        ld = X[2]
        assert nx % 2 == 0
        k.e('s_mul_i32 s50, s30, %d' % (TM * ld))
        k.e('s_mul_i32 s51, s46, %d' % (nx * 8 * ld))
        k.e('s_add_u32 s50, s50, s51')
        k.e('v_lshrrev_b32 v2, 3, v1')
        k.e('v_lshl_add_u32 v2, v2, %d, s50' % log2(ld))
        k.e('v_and_b32 v3, 7, v1')
        k.e('v_lshrrev_b32 v4, 4, v1')
        k.e('v_xor_b32 v5, v4, v3')
        k.e('v_lshl_add_u32 v%d, v5, 4, v2' % VX)
        k.e('v_xor_b32 v5, 64, v%d' % VX)
        k.e('v_add_u32 v%d, %d, v5' % (VX + 1, 8 * ld))
        for j in range(2, nx):
            k.e('v_add_u32 v%d, %d, v%d' % (VX + j, (j - j % 2) * 8 * ld, VX + j % 2))
        xadv = KS * 2
    k.e('''
    v_lshrrev_b32 v2, 4, v1            ; u
    v_bfe_u32 v3, v1, 2, 2             ; (i>>2)&3
    v_and_b32 v4, 3, v1                ; i&3
    ''')
    if Y[0] == 'w':
        ld = Y[2]
        NP = TN // 64
        assert ny % NP == 0
        if M16:
            k.e('v_and_b32 v5, 2, v2')
            k.e('v_xor_b32 v4, v4, v5')
        k.e('v_lshrrev_b32 v5, 1, v2')
        k.e('v_lshl_add_u32 v5, v5, 2, v3')
        k.e('v_mul_u32_u24 v5, %d, v5' % ld)
        k.e('v_and_b32 v6, 1, v2')
        k.e('v_lshl_add_u32 v5, v6, 6, v5')
        k.e('v_lshl_add_u32 v5, v4, 4, v5')
        if Y[3] == 'qkv': tstride, segs = 128, [0, 2048, 4096]
        elif Y[3]: tstride, segs = Y[3]
        else: tstride, segs = TN * 2, [p * 128 for p in range(NP)]
        k.e('s_mul_i32 s50, s46, %d' % (ny // NP * 8 * ld))
        k.e('s_mul_i32 s51, s31, %d' % tstride)
        k.e('s_add_u32 s50, s50, s51')
        k.e('v_add_u32 v5, s50, v5')
        for j in range(ny):
            k.e('v_add_u32 v%d, %d, v5' % (VY + j, (j // NP) * 8 * ld + segs[j % NP]))
        yadv = KS * ld
    else:
        C = Y[2]; ncb = C // 16
        NB = TN // 32
        assert ny == NB and S == 4
        if M16:
            k.e('v_and_b32 v5, 2, v2')
            k.e('v_xor_b32 v3, v3, v5')
        k.e('v_lshl_add_u32 v5, v2, 2, v4')
        k.e('v_lshlrev_b32 v5, 4, v5')
        k.e('v_lshl_add_u32 v5, v3, 9, v5')
        k.e('s_lshr_b32 s50, s46, 1')
        k.e('s_mul_i32 s50, s50, %d' % (ncb * 1024))
        k.e('s_and_b32 s51, s46, 1')
        k.e('s_lshl_b32 s51, s51, 8')
        k.e('s_add_u32 s50, s50, s51')
        k.e('s_mul_i32 s51, s31, %d' % (TN // 16 * 1024))
        k.e('s_add_u32 s50, s50, s51')
        k.e('v_add_u32 v%d, s50, v5' % VY)
        for j in range(1, ny):
            k.e('v_add_u32 v%d, %d, v%d' % (VY + j, j * 2048, VY))
        yadv = 2 * ncb * 1024
    k.e('s_mul_i32 s55, s46, %d' % (nx * 1024))
    k.e('s_mul_i32 s56, s46, %d' % (ny * 1024))
    k.e('s_add_u32 s56, s56, %d' % xb)
    per = nx + ny
    assert per * NS <= 55 and nst >= 2 * NS
    k.e('s_waitcnt lgkmcnt(0)')
    mark(k, 0)
    if Y[0] == 'w': srd(k, 36, Y[1])
    else: srd(k, 36, 'ws', Y[1], 2048 * Y[2] * 2)
    if X[0] == 'xf': srd(k, 32, 'ws', X[1], 2048 * X[2] * 2)
    else: srd(k, 32, X[1])
    xfl = ' sc1' if X[0] == 'xf' else ''
    yfl = ' sc1' if Y[0] == 'z' else ''
    ntf = os.environ.get('NT_' + name, os.environ.get('NT', ''))
    if 'X' in ntf: xfl += ' nt'
    if 'Y' in ntf: yfl += ' nt'
    ownlds = name == 'wsp' and ZOWN and c.prev == 'win'
    OWN = own if (own and not c.first and (OWNF(name) or ownlds)) else None
    RW = env('RW_' + name, min(RWD, 2) if OWN else RWD); RC = env('RC_' + name, 1)
    assert nst % RW == 0
    if RW > 1:
        k.e('s_mul_i32 s54, s31, %d' % RC)
        k.e('s_add_u32 s54, s54, s30')
    if OWN:
        assert RW <= 2
        k.e(OWN)
        k.e('s_and_b32 s54, s54, 1' if RW > 1 else 's_mov_b32 s54, 0')
    out = []
    RB = 48
    dyn = [None]
    def soff(st, adv):
        if OWN:
            if st < 2: k.e('s_add_u32 s57, s68, %d' % st)
            else:
                k.e('s_cmp_le_u32 s68, %d' % (st - 2))
                k.e('s_cselect_b32 s57, %d, %d' % (st, st - 2))
                k.e('s_xor_b32 s57, s57, s54')
            k.e('s_mul_i32 s57, s57, %d' % adv)
        elif dyn[0] is not None:
            assert RW in (1, 2, 4)
            if RW > 1:
                k.e('s_add_u32 s57, s54, %d' % st)
                k.e('s_and_b32 s57, s57, %d' % (RW - 1))
                k.e('s_add_u32 s57, s57, s59')
                k.e('s_add_u32 s57, s57, %d' % (st // RW * RW))
            else: k.e('s_add_u32 s57, s59, %d' % st)
            k.e('s_mul_i32 s57, s57, %d' % adv)
        elif RW > 1:
            k.e('s_add_u32 s57, s54, %d' % st)
            k.e('s_and_b32 s57, s57, %d' % (RW - 1))
            k.e('s_mul_i32 s57, s57, %d' % adv)
            if st // RW: k.e('s_add_u32 s57, s57, %d' % (st // RW * RW * adv))
        else: k.e('s_mov_b32 s57, %d' % (st * adv))
    def opinfo(op): return (nx, 's55', VX, 32, xadv, xfl) if op == 'X' else (ny, 's56', VY, 36, yadv, yfl)
    def throttle(n):
        if len(out) + n > 60:
            k.e('s_waitcnt vmcnt(40)'); del out[:len(out) - 40]
    def iss(op, st):
        slot = (st % NS) * STAGE
        n, base, V, sd, adv, fl = opinfo(op)
        if op == ind and st in Rset:
            if ('r', st) in out:
                last = max(i for i, t in enumerate(out) if t == ('r', st))
                k.e('s_waitcnt vmcnt(%d)' % (len(out) - 1 - last)); del out[:last + 1]
            r0 = RB + Rset.index(st) * n * 4
            for j in range(n):
                o = slot + j * 1024
                k.e('ds_write_b128 v%d, %s offset:%d' % (44 + o // 65536, vr(r0 + 4 * j, 4), o % 65536))
            return
        throttle(n)
        soff(st, adv)
        for j in range(n):
            k.e('s_add_u32 m0, %s, %d' % (base, slot + j * 1024))
            k.e('s_nop 0')
            k.e('buffer_load_dwordx4 v%d, %s, s57 offen%s lds' % (V + j, sr(sd), fl))
            out.append(st)
    def issr(st):
        n, base, V, sd, adv, fl = opinfo(ind)
        throttle(n)
        soff(st, adv)
        r0 = RB + Rset.index(st) * n * 4
        for j in range(n):
            k.e('buffer_load_dwordx4 %s, v%d, %s, s57 offen' % (vr(r0 + 4 * j, 4), V + j, sr(sd)))
            out.append(('r', st))
    def wait_stage(st):
        lg = ' lgkmcnt(%d)' % min(15, opinfo(ind)[0] * len([r_ for r_ in Rset if st < r_ < st + NS - LAG])) if st in Rset else ''
        if st in out:
            last = max(i for i, t in enumerate(out) if t == st)
            k.e('s_waitcnt vmcnt(%d)%s' % (len(out) - 1 - last, lg))
            del out[:last + 1]
        elif lg: k.e('s_waitcnt' + lg)
    I0 = env('I0_' + name, 2)
    ind = 'Y' if dep == 'X' else 'X'
    fusedw = wait and not c.first and not env('WLATE_' + name, 0)
    R = env('RR_' + name, RR) if fusedw else 0
    Rset = sorted(set(NS + (2 * i + 1) * (nst - NS) // (2 * R) for i in range(R))) if R else []
    if Rset:
        assert RB + len(Rset) * opinfo(ind)[0] * 4 <= 256
        k.need(RB + len(Rset) * opinfo(ind)[0] * 4, 0)
        k.e('v_lshl_add_u32 v44, v1, 4, %s' % opinfo(ind)[1])
        k.e('v_add_u32 v45, 0x10000, v44')
    if xt:
        DX = env('DX', 4); NR = 64; TB = NR + DX * 8; TX = TB + 32
        assert nx == 2 and S == 2
        k.need(TX + 16, 0)
        k.e('v_lshl_add_u32 v44, v1, 4, s55')
        k.e('v_add_u32 v45, 0x10000, v44')
        k.e('v_lshrrev_b32 v46, 5, v1')
        k.e('v_lshlrev_b32 v46, 4, v46')
        k.e('v_add_u32 v46, %d, v46' % AUX_A)
        def ldn(st):
            soff(st, xadv)
            for j in range(2):
                k.e('buffer_load_dwordx4 %s, v%d, s[32:35], s57 offen sc1' % (vr(NR + (st % DX) * 8 + 4 * j, 4), VX + j))
                out.append(('n', st))
        TW = TX + 16
        k.need(TW + 8, 0)
        def tabrd(st):
            soff(st, 128)
            k.e('v_add_u32 v47, s57, v46')
            for j in range(2):
                for sub in range(2):
                    k.e('ds_read_b128 %s, v47 offset:%d' % (vr(TB + 16 * j + 4 * sub, 4), 4096 + j * 64 + sub * 32))
                    k.e('ds_read_b128 %s, v47 offset:%d' % (vr(TB + 16 * j + 8 + 4 * sub, 4), j * 64 + sub * 32))
        def xform(st):
            if ('n', st) in out:
                last = max(i for i, t in enumerate(out) if t == ('n', st))
                k.e('s_waitcnt vmcnt(%d)' % (len(out) - 1 - last)); del out[:last + 1]
            r0 = NR + (st % DX) * 8
            for d in range(8): unpack(k, TX + 2 * d, TX + 2 * d + 1, r0 + d)
            if st + DX < nst: ldn(st + DX)
            k.e('s_waitcnt lgkmcnt(0)')
            for j in range(2):
                for e in range(8): k.e('v_fma_f32 v%d, v%d, v%d, v%d' % (TX + 8 * j + e, TX + 8 * j + e, TB + 16 * j + e, TB + 16 * j + 8 + e))
            for j in range(2):
                for d in range(4): k.e('v_cvt_pk_bf16_f32 v%d, v%d, v%d' % (TW + 4 * j + d, TX + 8 * j + 2 * d, TX + 8 * j + 2 * d + 1))
                o = (st % NS) * STAGE + j * 1024
                k.e('ds_write_b128 v%d, %s offset:%d' % (44 + o // 65536, vr(TW + 4 * j, 4), o % 65536))
            if st + 1 < nst: tabrd(st + 1)
        for st in range(NS): iss('Y', st)
        k.e('s_barrier')
        mark(k, 1)
        out.extend(['p'] * 4)
        mod_table(k, 24, between=lambda: [ldn(st) for st in range(DX)], nb=2 * DX)
        del out[:len(out) - 2 * DX]
        if env('XPRIO', 0): k.e('s_setprio %d' % env('XPRIO', 0))
        XL = env('XL', 2)
        assert XL >= 2
        tabrd(0)
        for st in range(XL): xform(st)
        def capture(fn):
            n0 = len(k.lines); fn(); got = k.lines[n0:]; del k.lines[n0:]
            return got
        def step(st):
            lg = ' lgkmcnt(0)' if st + XL > nst else ''
            if st in out:
                last = max(i for i, t in enumerate(out) if t == st)
                k.e('s_waitcnt vmcnt(%d)%s' % (len(out) - 1 - last, lg)); del out[:last + 1]
            elif lg: k.e('s_waitcnt' + lg)
            if st == 0: mark(k, 2)
            k.e('s_barrier')
            sx = st + XL; sy = st + NS - LAG
            doy = st >= LAG and sy < nst
            if sx >= nst:
                if doy: iss('Y', sy)
                return
            if ('n', sx) in out:
                last = max(i for i, t in enumerate(out) if t == ('n', sx))
                nw = 's_waitcnt vmcnt(%d)' % (len(out) - 1 - last + (1 if doy else 0)); del out[:last + 1]
            else: nw = None
            yl = capture(lambda: iss('Y', sy)) if doy else []
            yp = []; cur = []
            for l in yl:
                if 's_nop' in l: continue
                cur.append(l)
                if 'buffer_load' in l: yp.append(cur); cur = []
            nl = capture(lambda: ldn(sx + DX)) if (sx + DX < nst or dyn[0] is not None) else []
            nl = [l.replace('s57', 's58') for l in nl]
            npc = [nl[:-1], nl[-1:]] if nl else [[], []]
            r0 = NR + (sx % DX) * 8
            un = capture(lambda: [unpack(k, TX + 2 * d, TX + 2 * d + 1, r0 + d) for d in range(8)])
            fm = ['    v_fma_f32 v%d, v%d, v%d, v%d' % (TX + 8 * j + e, TX + 8 * j + e, TB + 16 * j + e, TB + 16 * j + 8 + e) for j in range(2) for e in range(8)]
            def put(piece):
                if len(piece) >= 2 and 'm0' in piece[-2]: piece = piece[:-1] + ['    s_nop 0', piece[-1]]
                k.lines.extend(piece)
            if yp: put(yp[0])
            if nw: k.e(nw)
            k.lines.extend(un[:8])
            if yp: put(yp[1])
            k.lines.extend(un[8:])
            if yp: put(yp[2])
            k.e('s_waitcnt lgkmcnt(0)')
            k.lines.extend(fm[:10])
            k.lines.extend(npc[0])
            k.lines.extend(fm[10:])
            if sx + 1 < nst: tabrd(sx + 1)
            k.lines.extend(npc[1])
            for j in range(2):
                for d in range(4): k.e('v_cvt_pk_bf16_f32 v%d, v%d, v%d' % (TW + 4 * j + d, TX + 8 * j + 2 * d, TX + 8 * j + 2 * d + 1))
                o = (sx % NS) * STAGE + j * 1024
                k.e('ds_write_b128 v%d, %s offset:%d' % (44 + o // 65536, vr(TW + 4 * j, 4), o % 65536))
        assert NS == 4 and DX == 4 and XL == 2 and LAG == 1 and nst == 32
        for st in range(5): step(st)
        k.e('s_mov_b32 s59, 0')
        k.label('L_%s_xl' % name)
        dyn[0] = 0
        before = list(out)
        for st in range(5, 9): step(st)
        dyn[0] = None
        sh = lambda t, d: (t[0], t[1] + d) if isinstance(t, tuple) else t + d
        assert [sh(t, 4) for t in before] == out, (before, out)
        k.e('s_add_u32 s59, s59, 4')
        k.e('s_cmp_lt_u32 s59, 24')
        k.e('s_cbranch_scc1 L_%s_xl' % name)
        out[:] = [sh(t, 20) for t in out]
        for st in range(29, 32): step(st)
    elif wait and not c.first and env('WLATE_' + name, 0):
        handoff(k, wait[0], wait[1])
    if xt: pass
    elif fusedw:
        WPRE = env('WPRE_' + name, 2 if name == 'win' else NS)
        iss0 = iss
        def iss(op, st):
            if op == dep and WPRE <= st < NS: iss0(ind, st)
            iss0(op, st)
        for st in range(WPRE): iss(ind, st)
        for st in Rset: issr(st)
        if auxpre: out.extend(['aux'] * auxpre(g))
        if ownlds and LPW:
            k.e('s_barrier')
            handoff(k, wait[0], wait[1], role='W')
            mark(k, 1)
            for st in range(2, NS): iss(dep, st)
            wait_stage(0); mark(k, 2); k.e('s_barrier')
        elif ownlds:
            handoff(k, wait[0], wait[1])
            mark(k, 1)
            I1 = env('I1_' + name, 3)
            for st in range(2, I1): iss(dep, st)
            wait_stage(0); mark(k, 2); k.e('s_barrier')
            for st in range(I1, NS): iss(dep, st)
        elif OWN:
            l1 = k.newlabel('no'); l2 = k.newlabel('no')
            k.e('s_barrier')
            if ownlim:
                k.e('s_cmp_ge_u32 s2, %d' % ownlim); k.e('s_cbranch_scc1 %s' % l1)
            n0 = len(k.lines)
            iss(dep, 0); iss(dep, 1)
            dup = k.lines[n0:]
            k.label(l1)
            handoff(k, wait[0], wait[1])
            mark(k, 1)
            if ownlim:
                k.e('s_cmp_lt_u32 s2, %d' % ownlim); k.e('s_cbranch_scc1 %s' % l2)
                k.lines.extend(dup)
                k.label(l2)
            I1 = env('I1_' + name, 3)
            for st in range(2, I1): iss(dep, st)
            wait_stage(0); mark(k, 2); k.e('s_barrier')
            for st in range(I1, NS): iss(dep, st)
        else:
            handoff(k, wait[0], wait[1])
            mark(k, 1)
            for st in range(I0): iss(dep, st)
            wait_stage(0); mark(k, 2); k.e('s_barrier')
            for st in range(I0, NS): iss(dep, st)
    else:
        for st in range(I0): iss(ind, st); iss(dep, st)
        mark(k, 1)
        wait_stage(0); mark(k, 2); k.e('s_barrier')
        for st in range(I0, NS): iss(ind, st); iss(dep, st)
    FS = bool(Rset) or env('STATIC', 0) or xt
    if FS and not xt:
        for st in range(1, nst):
            if st == nst - 1: k.e('s_waitcnt vmcnt(0) lgkmcnt(0)')
            else: wait_stage(st)
            if st == nst - 1 and aux_end: aux_end(g)
            k.e('s_barrier')
            nx_st = st + NS - LAG
            if st >= LAG and nx_st < nst:
                iss(dep, nx_st); iss(ind, nx_st)
                if nx_st == nst - 1 and aux:
                    out.extend(['aux'] * aux(g))
    for st in range(1, NS if not FS else 0):
        wait_stage(st); k.e('s_barrier')
        if st >= LAG: iss('Y', st + NS - LAG); iss('X', st + NS - LAG)
    if not FS:
        s0 = 2 * NS - LAG
        k.e('s_add_u32 s60, s55, %d' % (NS * STAGE))
        k.e('s_add_u32 s55, s55, %d' % ((s0 % NS) * STAGE))
        k.e('s_add_u32 s56, s56, %d' % ((s0 % NS) * STAGE))
        k.e('s_mov_b32 s57, %d' % (s0 * xadv))
        k.e('s_mov_b32 s58, %d' % (s0 * yadv))
        k.e('s_mov_b32 s59, %d' % s0)
        ll = 'L_%s_lloop' % name
        k.label(ll)
        if OWN:
            k.e('s_sub_u32 s57, s59, 2')
            k.e('s_cmp_le_u32 s68, s57')
            k.e('s_cselect_b32 s57, s59, s57')
            k.e('s_xor_b32 s57, s57, s54')
            k.e('s_mul_i32 s58, s57, %d' % yadv)
            k.e('s_mul_i32 s57, s57, %d' % xadv)
        elif RW > 1:
            k.e('s_add_u32 s57, s54, s59')
            k.e('s_and_b32 s57, s57, %d' % (RW - 1))
            k.e('s_andn2_b32 s58, s59, %d' % (RW - 1))
            k.e('s_or_b32 s57, s57, s58')
            k.e('s_mul_i32 s58, s57, %d' % yadv)
            k.e('s_mul_i32 s57, s57, %d' % xadv)
        k.e('s_waitcnt vmcnt(%d)' % (per * (NS - 1 - LAG)))
        k.e('s_barrier')
        for j in range(ny):
            k.e('s_add_u32 m0, s56, %d' % (j * 1024))
            k.e('s_nop 0')
            k.e('buffer_load_dwordx4 v%d, s[36:39], s58 offen%s lds' % (VY + j, yfl))
        for j in range(nx):
            k.e('s_add_u32 m0, s55, %d' % (j * 1024))
            k.e('s_nop 0')
            k.e('buffer_load_dwordx4 v%d, s[32:35], s57 offen%s lds' % (VX + j, xfl))
        k.e('s_add_u32 s57, s57, %d' % xadv)
        k.e('s_add_u32 s58, s58, %d' % yadv)
        k.e('s_add_u32 s55, s55, %d' % STAGE)
        k.e('s_add_u32 s56, s56, %d' % STAGE)
        k.e('s_cmp_eq_u32 s55, s60')
        k.e('s_cselect_b32 s61, %d, 0' % (NS * STAGE))
        k.e('s_sub_u32 s55, s55, s61')
        k.e('s_sub_u32 s56, s56, s61')
        k.e('s_add_u32 s59, s59, 1')
        k.e('s_cmp_lt_u32 s59, %d' % nst)
        k.e('s_cbranch_scc1 %s' % ll)
        naux = aux(g) if aux else 0
        NXT = dict(qkv=('attn', 1), wo=('win', 1), win=('wsp', 2), wsp=('wout', 1))
        if CPF >= 2:
            if name in NXT: naux += code_pf(k, 'L_%s_epi' % name, 'L_%s_epi' % NXT[name][0], NXT[name][1] * 8192, vt=22, vd=23)
            else: naux += code_pf(k, 'L_%s_epi' % name, 'L_text_end', 8192, vt=22, vd=23)
        for st in range(nst - NS + LAG, nst):
            k.e('s_waitcnt vmcnt(%d)' % (per * (nst - st - 1) + naux if st < nst - 1 else 0))
            if st == nst - 1 and aux_end: aux_end(g)
            k.e('s_barrier')
    LE = env('LE_' + name, 2 if name in ('wo', 'wsp') else 0)
    g.LE = 0 if c.last else LE
    if mid: mid(g)
    if not c.last and not LE: k.e('s_barrier')
    if post: post(g)
    if not c.last and LE: k.e('s_barrier')
    signal(k)
    endpgm(k)
    k.label(lcomp)
    k.e('s_setprio 1')
    k.e('s_sub_u32 s46, s46, 4')
    k.e('s_lshr_b32 s50, s46, %d' % log2(WN))
    k.e('s_and_b32 s51, s46, %d' % (WN - 1))
    ACC = 8
    nacc = mb * nb * 16
    FR = frbase if frbase else ACC + nacc
    GU = env('GU_' + name, GU)
    g.acc = lambda i, j: ACC + (accmap(i, j) if accmap else i * nb + j) * 16
    g.M16 = M16
    k.e('v_and_b32 v3, 31, v1')
    k.e('v_lshrrev_b32 v4, 5, v1')
    if M16:
        JG = env('JG_' + name, JG)
        KSN = KS // 32; NU = KSN * JG; nbj = nb // JG
        XA = FR + max(16 * mb + 16 * nbj, 72 if name == 'win' else 0)
        nxa = KSN if X[0] == 'rm' else 1
        nya = 2
    else:
        NU = S // GU
        assert NU % 2 == 0
        fs1 = (mb + nb) * 4
        fsz = fs1 * GU
        XA = FR + 2 * fsz
        nxa = S if X[0] == 'rm' else 1
        nya = 1
    XB = XA; XC = XA + nxa; YB = XC + nxa; YC = YB + nya
    g.free = YC + nya
    g.FR = FR
    NP = TN // 64; NB = TN // 32
    if Y[0] == 'w':
        if Y[3] == 'qkv': ywave = 's_lshl_b32 s52, s51, 8'
        else:
            assert nb % 2 == 0
            ywave = 's_mul_i32 s52, s51, %d' % (nb // 2 * 1024)
        def yblk(j): return j * 1024 if Y[3] == 'qkv' else (j // 2) * 1024 + (j % 2) * 256
    else: ywave = 's_mul_i32 s52, s51, %d' % (nb * 1024)
    if M16:
        k.e('v_and_b32 v5, 15, v1')
        k.e('v_lshrrev_b32 v6, 4, v1')
        if X[0] == 'xf':
            k.e('s_mul_i32 s52, s50, %d' % (mb * S * 1024))
            k.e('v_lshl_add_u32 v7, v5, 4, s52')
            k.e('v_lshl_add_u32 v%d, v6, 9, v7' % XB)
        else:
            k.e('s_mul_i32 s52, s50, %d' % (mb * 4096))
            k.e('v_lshl_add_u32 v2, v5, 7, s52')
            k.e('v_lshrrev_b32 v5, 1, v5')
            for ks in range(KSN):
                k.e('v_add_u32 v7, %d, v6' % (4 * ks))
                k.e('v_xor_b32 v7, v7, v5')
                k.e('v_lshl_add_u32 v%d, v7, 4, v2' % (XB + ks))
        k.e('v_mul_u32_u24 v5, %d, v4' % (2 * NP * 1024 if Y[0] == 'w' else NB * 1024))
        k.e('v_and_b32 v6, 1, v6')
        k.e('v_lshl_add_u32 v5, v6, 9, v5')
        k.e('v_lshl_add_u32 v5, v6, %d, v5' % (5 if Y[0] == 'w' else 7))
        k.e('v_bfe_u32 v6, v1, 2, 2')
        k.e('v_lshl_add_u32 v5, v6, %d, v5' % (6 if Y[0] == 'w' else 4))
        k.e('v_bfe_u32 v6, v1, 1, 1')
        k.e('v_lshl_add_u32 v5, v6, %d, v5' % (3 if Y[0] == 'w' else 6))
        k.e('v_and_b32 v6, 1, v1')
        k.e('v_lshl_add_u32 v5, v6, %d, v5' % (4 if Y[0] == 'w' else 3))
        k.e(ywave)
        k.e('s_add_u32 s52, s52, %d' % xb)
        k.e('v_add_u32 v%d, s52, v5' % YB)
        k.e('v_xor_b32 v%d, %d, v%d' % (YB + 1, 32 if Y[0] == 'w' else 128, YB))
    else:
        if X[0] == 'xf':
            k.e('s_mul_i32 s52, s50, %d' % (mb * S * 1024))
            k.e('v_lshl_add_u32 v%d, v1, 4, s52' % XB)
        else:
            assert KS == 64
            k.e('s_mul_i32 s52, s50, %d' % (mb * 4096))
            k.e('v_bfe_u32 v5, v3, 1, 3')
            k.e('v_lshl_add_u32 v6, v3, 7, s52')
            for ss in range(S):
                k.e('v_add_u32 v7, %d, v4' % (2 * ss))
                k.e('v_xor_b32 v7, v7, v5')
                k.e('v_lshl_add_u32 v%d, v7, 4, v6' % (XB + ss))
        k.e("""
        v_lshlrev_b32 v5, 9, v4            ; h*512
        v_bfe_u32 v6, v1, 2, 2             ; r
        v_lshl_add_u32 v5, v6, %d, v5
        v_bfe_u32 v6, v1, 4, 1             ; G&1
        v_lshl_add_u32 v5, v6, %d, v5
        v_bfe_u32 v6, v1, 1, 1             ; c>>1
        v_and_b32 v7, 1, v1                ; c&1
        """ % ((6, 5) if Y[0] == 'w' else (4, 7)))
        if Y[0] == 'w':
            k.e('v_lshl_add_u32 v5, v6, 4, v5')
            k.e('v_lshl_add_u32 v5, v7, 3, v5')
        else:
            k.e('v_lshl_add_u32 v5, v7, 6, v5')
            k.e('v_lshl_add_u32 v5, v6, 3, v5')
        k.e(ywave)
        k.e('s_add_u32 s52, s52, %d' % xb)
        k.e('v_add_u32 v%d, s52, v5' % YB)
    k.e('s_waitcnt lgkmcnt(0)')
    mark(k, 0)
    pre(g)
    if M16:
        def xr16(sp, ks, i, rh): return FR + (sp[0] if isinstance(sp, tuple) else (sp * KSN + ks) % 2) * 8 * mb + (2 * i + rh) * 4
        def yr16(sp, u, j, t): return FR + 16 * mb + (sp[1] if isinstance(sp, tuple) else (sp * NU + u) % 2) * 8 * nbj + ((j % nbj) * 2 + t) * 4
        def cols(jg, sp): return sp[2] if isinstance(sp, tuple) else range(jg * nbj, (jg + 1) * nbj)
        def reads(u, sp=0):
            ks = u // JG; jg = u % JG
            xr = []; yr = []
            if jg == 0 or isinstance(sp, tuple):
                for i in range(mb):
                    for rh in range(2):
                        if X[0] == 'xf': xr.append('ds_read_b128 %s, v%d offset:%d' % (vr(xr16(sp, ks, i, rh), 4), XC, (i * S + 2 * ks) * 1024 + rh * 256))
                        else: xr.append('ds_read_b128 %s, v%d offset:%d' % (vr(xr16(sp, ks, i, rh), 4), XC + ks, i * 4096 + rh * 2048))
            for j in cols(jg, sp):
                for t in range(2):
                    for rd in range(2):
                        o = (4 * ks + rd) * NP * 1024 + yblk(j) if Y[0] == 'w' else (2 * ks * NB + j) * 1024 + rd * 256
                        yr.append('ds_read_b64_tr_b16 %s, v%d offset:%d' % (vr(yr16(sp, u, j, t) + 2 * rd, 2), YC + t, o))
            return xr[:1] + yr[:2] + xr[1:] + yr[2:]
        def mfmas(u, first, sp=0):
            ks = u // JG; jg = u % JG
            out = []
            for j in cols(jg, sp):
                for t in range(2):
                    for i in range(mb):
                        for rh in range(2):
                            x_ = xr16(sp, ks, i, rh); y_ = yr16(sp, u, j, t)
                            if j in swap: a = g.acc(i, j) + 8 * rh + 4 * t; p, q = x_, y_
                            else: a = g.acc(i, j) + 8 * t + 4 * rh; p, q = y_, x_
                            out.append('v_mfma_f32_16x16x32_bf16 %s, %s, %s, %s' % (vr(a, 4), vr(p, 4), vr(q, 4), '0' if first and ks == 0 and not cinit else vr(a, 4)))
            return out
        def fix(i, j):
            a = g.acc(i, j)
            for hb in range(2):
                for e in range(4):
                    k.e('%s v%d, v%d' % ('v_permlane32_swap_b32' if j in swap else 'v_permlane16_swap_b32', a + 8 * hb + e, a + 8 * hb + 4 + e))
    else:
        def yoff(j, ss, rd):
            return (2 * ss + rd) * NP * 1024 + yblk(j) if Y[0] == 'w' else (ss * NB + j) * 1024 + rd * 256
        def xf(ss, i): return FR + ((ss // GU) % 2) * fsz + (ss % GU) * fs1 + i * 4
        def yf(ss, j): return FR + ((ss // GU) % 2) * fsz + (ss % GU) * fs1 + (mb + j) * 4
        def reads1(ss):
            xr = []; yr = []
            for i in range(mb):
                if X[0] == 'xf':
                    xr.append('ds_read_b128 %s, v%d offset:%d' % (vr(xf(ss, i), 4), XC, (i * S + ss) * 1024))
                else:
                    xr.append('ds_read_b128 %s, v%d offset:%d' % (vr(xf(ss, i), 4), XC + ss, i * 4096))
            for j in range(nb):
                for rd in range(2):
                    yr.append('ds_read_b64_tr_b16 %s, v%d offset:%d' % (vr(yf(ss, j) + 2 * rd, 2), YC, yoff(j, ss, rd)))
            return [xr[0]] + yr[:2] + xr[1:] + yr[2:]
        def reads(u, sp=0): return [r for ss in range(u * GU, (u + 1) * GU) for r in reads1(ss)]
        def mfmas(u, first, sp=0):
            out = []
            for ss in range(u * GU, (u + 1) * GU):
                for j in range(nb):
                    for i in range(mb):
                        a = g.acc(i, j)
                        c_ = '0' if first and ss == 0 else vr(a, 16)
                        p, q = (xf(ss, i), yf(ss, j)) if j in swap else (yf(ss, j), xf(ss, i))
                        out.append('v_mfma_f32_32x32x16_bf16 %s, %s, %s, %s' % (vr(a, 16), vr(p, 4), vr(q, 4), c_))
            return out
        def fix(i, j): pass
    g.fix = fix
    def setaddr():
        for t in range(nxa): k.e('v_add_u32 v%d, s53, v%d' % (XC + t, XB + t))
        for t in range(nya): k.e('v_add_u32 v%d, s53, v%d' % (YC + t, YB + t))
    RPGV = [env('RPG2_' + name, (5 if mb * nb == 2 else (2 if name == 'qkv' else 3)) * (1 if M16 else 2))]
    import re
    def regs_of(txt):
        return [(int(a_), int(b_)) for a_, b_ in re.findall(r'v\[(\d+):(\d+)\]', txt)]
    def advance():
        n0 = len(k.lines)
        k.e('s_add_u32 s53, s53, %d' % STAGE)
        k.e('s_cmp_eq_u32 s53, %d' % (NS * STAGE))
        k.e('s_cselect_b32 s53, 0, s53')
        setaddr()
        got = [l.strip() for l in k.lines[n0:]]; del k.lines[n0:]
        return got
    EARLY = env('EARLYADV', 1)
    RM = [ROLL]
    def unit(u, first, rs, sp, extra):
        ms = mfmas(u, first, sp)
        prev = reads(u, sp)
        dst = [regs_of(r)[0] for r in prev]
        ROLL = RM[0]
        covered = -1 if ROLL else len(prev); issued = 0; xi = 0
        WMAX = env('WMAX_' + name, env('WMAX', 9))
        nspread = len(ms) - (min(len(extra) // 2 + 1, len(ms) // 3) if extra else 0)
        for mi, m in enumerate(ms):
            ops = regs_of(m)[1:3]
            need = max(i for i, d in enumerate(dst) if any(o[0] <= d[0] <= o[1] for o in ops))
            if need > covered:
                n = min(len(prev) - 1 - need + issued, WMAX)
                k.e('s_waitcnt lgkmcnt(%d)' % n)
                covered = len(prev) - 1 - (n - issued) if n >= issued else len(prev) - 1
            k.e(m)
            e = min(len(rs), -(-len(rs) * (mi + 1) // nspread) if ROLL == 1 else -(-RPGV[0] * (mi + 1) // 2))
            if issued == len(rs):
                for _ in range(2):
                    if xi < len(extra): k.e(extra[xi]); xi += 1
            while issued < e: k.e(rs[issued]); issued += 1
        while issued < len(rs): k.e(rs[issued]); issued += 1
        while xi < len(extra): k.e(extra[xi]); xi += 1
    def stage(first, last, sp, tail=()):
        for u in range(NU):
            if u == NU - 1 and not last and not EARLY:
                for x in advance(): k.e(x)
            if u < NU - 1: rs = reads(u + 1, sp)
            elif last: rs = []
            else: rs = reads(0, sp ^ 1)
            extra = []
            if EARLY and not last and u == (NU - 2) % NU: extra = advance()
            if u == NU - 1: extra = extra + list(tail)
            if not RM[0] or (last and u == NU - 1 and not c.last and not LE): k.e('s_waitcnt lgkmcnt(0)')
            if u == NU - 1 and not (last and (c.last or LE)): k.e('s_barrier')
            unit(u, first, rs, sp, extra)
    k.e('s_mov_b32 s53, 0')
    setaddr()
    if xt:
        handoff_multi(k, [(4, 's_mov_b32 s100, %d' % FL_MOD, 64), (5, 's_mov_b32 s100, %d' % (FL_MOD + 256), 64), (6, wait[0], wait[1])])
        mod_table(k, FR)
    elif wait and not (ownlds and LPW): handoff(k, wait[0], wait[1], role='C')
    if early: early(g)
    k.e('s_barrier')
    mark(k, 1)
    for r in reads(0): k.e(r)
    if EARLY and NU == 1:
        for x in advance(): k.e(x)
    DEFER = env('DEFER_' + name, DEFER)
    npair = (nst - 1 - max(DEFER, 1)) // 2
    assert nst % 2 == 0 and (DEFER == 0 or (DEFER % 2 == 1 and M16 and KSN == 1 and not LE and DEFER <= NS))
    soft = env('SOFT_' + name, SOFT)
    srp = env('SRP_' + name, 1 if name == 'qkv' else 2)
    segs_ = [(npair, RPGV[0], ROLL)] if not soft else [(soft, srp, 0), (npair - soft, RPGV[0], ROLL)]
    RPGV[0] = segs_[0][1]; RM[0] = segs_[0][2]
    stage(True, False, 0)
    pre2(g)
    for si, (cnt_, rp_, rm_) in enumerate(segs_):
        RPGV[0] = rp_; RM[0] = rm_
        k.e('s_mov_b32 s54, %d' % cnt_)
        lp = 'L_%s_loop%s' % (name, si or '')
        k.label(lp)
        stage(False, False, 1); stage(False, False, 0, tail=['s_sub_u32 s54, s54, 1', 's_cmp_lg_u32 s54, 0'])
        k.e('s_cbranch_scc1 %s' % lp)
    k.label('L_%s_epi' % name)
    if prelast: prelast(g)
    def addr_for(st):
        o = (st % NS) * STAGE
        return ['v_add_u32 v%d, %d, v%d' % (XC, o, XB)] + ['v_add_u32 v%d, %d, v%d' % (YC + t, o, YB + t) for t in range(nya)]
    if DEFER:
        s0_ = nst - DEFER
        c0, c1 = dcols
        y0 = NU % 2
        for n_ in range(DEFER):
            par = ((1 + n_) % 2, (y0 + n_) % 2, c0)
            if n_ < DEFER - 1:
                for x in addr_for(s0_ + n_ + 1): k.e(x)
                rs = reads(0, (par[0] ^ 1, par[1] ^ 1, c0))
            else: rs = []
            if not RM[0] or (n_ == 0 and JG == 1): k.e('s_waitcnt lgkmcnt(0)')
            if n_ < DEFER - 1: k.e('s_barrier')
            unit(0, False, rs, par, [])
        def deferred():
            for x in addr_for(s0_): k.e(x)
            for r in reads(0, (0, 0, c1)): k.e(r)
            for n_ in range(DEFER):
                par = (n_ % 2, n_ % 2, c1)
                if n_ < DEFER - 1:
                    for x in addr_for(s0_ + n_ + 1): k.e(x)
                    rs = reads(0, (par[0] ^ 1, par[1] ^ 1, c1))
                else: rs = []
                if not RM[0] or n_ == DEFER - 1: k.e('s_waitcnt lgkmcnt(0)')
                if n_ == DEFER - 1: k.e('s_barrier')
                unit(0, False, rs, par, [])
            k.e('s_nop 7')
        g.deferred = deferred
    else:
        g.deferred = None
        stage(False, True, 1)
    mark(k, 2)
    if M16:
        k.e('s_nop 7')
        if not lazyfix:
            for j in range(nb):
                for i in range(mb): fix(i, j)
            k.e('s_nop 1')
    epi(g)
    if not selfsig:
        if g.LE == 1 and not getattr(g, 'ended', 0): k.e('s_barrier')
        signal(k, 'C')
        if g.LE == 2: k.e('s_barrier')
    if side:
        endpgm(k)
        k.label('L_%s_pf' % name)
        k.e('s_sub_u32 s30, s2, %d' % (GM * GN))
        k.e('s_cmp_ge_u32 s30, %d' % side[0])
        k.e('s_cbranch_scc1 L_%s_pfe' % name)
        side[1](k, 0 if solo else AUX_B + 4096)
        k.label('L_%s_pfe' % name)
        signal(k, 'A')
    if pf:
        endpgm(k)
        k.label('L_%s_pf' % name)
        npf = 256 - GM * GN
        per_wg = SIZES[pf] // npf
        assert per_wg % (8192 * 2) == 0
        k.e('s_sub_u32 s30, s2, %d' % (GM * GN))
        k.e('s_mul_i32 s30, s30, %d' % per_wg)
        if env('PFOFF', 0): k.e('s_mov_b32 s30, 0x40000000')
        k.e('v_lshlrev_b32 v2, 4, v0')
        k.e('s_mov_b32 s31, %d' % (per_wg // 16384))
        k.e('s_waitcnt lgkmcnt(0)')
        srd(k, 32, pf)
        k.label('L_%s_pfl' % name)
        k.e('buffer_load_dwordx4 v[8:11], v2, s[32:35], s30 offen')
        k.e('s_add_u32 s30, s30, 8192')
        k.e('buffer_load_dwordx4 v[12:15], v2, s[32:35], s30 offen')
        k.e('s_add_u32 s30, s30, 8192')
        k.e('s_waitcnt vmcnt(6)')
        k.e('s_sub_u32 s31, s31, 1')
        k.e('s_cmp_lg_u32 s31, 0')
        k.e('s_cbranch_scc1 L_%s_pfl' % name)
        signal(k, 'A')
    finish(k)
    assert g.free <= 256, g.free
    k.need(g.free, max(NS * STAGE, g.AUX + auxsz, (AUX_B + 12288) if side and not solo else 0))

def alloc(g, n, align=4):
    b = (g.free + align - 1) // align * align
    g.free = b + n
    return b
def nop(g): pass

def store_xf_tile(g, a, T, voff, srdn, soff, imm):
    k = g.k
    for d in range(8):
        k.e('v_cvt_pk_bf16_f32 v%d, v%d, v%d' % (T + d, a + 2 * d, a + 2 * d + 1))
    if os.environ.get('SDATA') == 'zero' and k.c.name == 'qkv':
        for d in range(8): k.e('v_mov_b32 v%d, 0' % (T + d))
    if os.environ.get('SDATA') == 'rand' and k.c.name == 'qkv':
        import random
        for d in range(8):
            k.e('s_mul_i32 s68, s2, %d' % (random.getrandbits(31) | 1))
            k.e('v_add_u32 v%d, s68, v0' % (T + d))
            k.e('s_mov_b32 s69, %d' % (random.getrandbits(31) | 1))
            k.e('v_mul_lo_u32 v%d, v%d, s69' % (T + d, T + d))
            k.e('v_and_b32 v%d, 0xbfffbfff, v%d' % (T + d, T + d))
    if env('PACE', -1) >= 0: k.e('s_waitcnt vmcnt(%d)' % env('PACE', -1))
    k.e('buffer_store_dwordx4 %s, v%d, %s, %s offen offset:%d%s' % (vr(T, 4), voff, sr(srdn), soff, imm, WT))
    k.e('buffer_store_dwordx4 %s, v%d, %s, %s offen offset:%d%s' % (vr(T + 4, 4), voff, sr(srdn), soff, imm + 1024, WT))

def pk(op, d, *src, sel=None):
    s = 'v_pk_%s_f32 %s' % (op, vr(d, 2))
    hi = []
    for x in src:
        if isinstance(x, int): s += ', ' + vr(x, 2); hi.append(1)
        elif isinstance(x, tuple): s += ', ' + vr(x[0], 2); hi.append(0)
        elif x.startswith('s['): s += ', ' + x; hi.append(1)
        else: s += ', ' + x; hi.append(0)
    if 0 in hi: s += ' op_sel_hi:[%s]' % ','.join(map(str, hi))
    return s

def k_qkv(k, c):
    def pre(g):
        k = g.k
        srd(k, 32, 'ws', WS_Q, 4 * MB); srd(k, 36, 'ws', WS_KV, 8 * MB)
        g.L16 = alloc(g, 1, 1); g.LV16 = alloc(g, 1, 1)
        k.e('v_lshlrev_b32 v%d, 4, v1' % g.L16)
        if g.M16:
            k.e('v_and_b32 v5, 3, v1')
            k.e('v_lshl_add_u32 v5, v4, 4, v5')
            k.e('v_bfe_u32 v6, v1, 2, 1')
            k.e('v_lshl_add_u32 v5, v6, 3, v5')
            k.e('v_bfe_u32 v6, v1, 3, 1')
            k.e('v_lshl_add_u32 v5, v6, 2, v5')
            k.e('v_bfe_u32 v6, v1, 4, 1')
            k.e('v_lshl_add_u32 v5, v6, 5, v5')
            k.e('v_lshlrev_b32 v%d, 4, v5' % g.LV16)
        else: k.e('v_mov_b32 v%d, v%d' % (g.LV16, g.L16))
        k.e('''
        s_lshl_b32 s60, s31, 1
        s_add_u32 s60, s60, s51
        s_lshl_b32 s60, s60, 6
        s_lshl_b32 s61, s30, 2
        s_add_u32 s60, s60, s61
        s_lshl_b32 s61, s50, 1
        s_add_u32 s60, s60, s61           ; head*64 + rb0
        s_lshl_b32 s61, s60, 11           ; Q offset
        s_lshl_b32 s62, s60, 12           ; KV offset
        s_add_u32 s63, s62, 4096
        s_mov_b32 s66, %s
        s_mov_b32 s67, %s
        ''' % ((hx(32 ** -0.5 * LOG2E * float(os.environ.get('QERR', '1'))),) * 2))
    def epi(g):
        k = g.k
        T = g.FR
        k.e('s_nop 7')
        n = 0
        for i in range(2):
            a = g.acc(i, 0)
            for r in range(0, 16, 2): k.e(pk('mul', a + r, a + r, 's[66:67]'))
            store_xf_tile(g, a, T + 8 * n, g.L16, 32, 's61', i * 2048); n += 1
        for j in (1, 2):
            for i in range(2):
                store_xf_tile(g, g.acc(i, j), T + 8 * (n % 5), g.L16 if j == 1 else g.LV16, 36, 's62' if i == 0 else 's63', (j - 1) * 2048); n += 1
    QSP = env('QSP', 0)
    def epi2(g):
        k = g.k
        T = g.FR
        KP = [g.acc(0, 1), g.acc(1, 1)]; VP = [g.acc(0, 2), g.acc(1, 2)]; QP = [g.acc(0, 0), g.acc(1, 0)]
        for j in (1, 2):
            for i in range(2):
                g.fix(i, j)
                k.e('s_nop 0')
                store_xf_tile(g, g.acc(i, j), g.acc(i, j), g.L16 if j == 1 else g.LV16, 36, 's62' if i == 0 else 's63', (j - 1) * 2048)
        if g.deferred:
            g.deferred()
            if env('QSIG', 1): signal(k, 'C')
        for i in range(2):
            a = g.acc(i, 0)
            g.fix(i, 0)
            k.e('s_nop 0')
            for r in range(0, 16, 2): k.e(pk('mul', a + r, a + r, 's[66:67]'))
            for d in range(8): k.e('v_cvt_pk_bf16_f32 v%d, v%d, v%d' % (a + d, a + 2 * d, a + 2 * d + 1))
        if QSP == 1: signal(k, 'C')
        k.e('s_mul_i32 s68, s46, 5120')
        k.e('s_add_u32 s68, s68, %d' % AUX_A)
        k.e('v_add_u32 v5, s68, v%d' % g.L16)
        Sreg = [T, T + 16, T + 32, T + 48]
        for qi in range(2):
            for ki in range(2):
                S_ = Sreg[2 * qi + ki]
                k.e('v_mfma_f32_32x32x16_bf16 %s, %s, %s, 0' % (vr(S_, 16), vr(KP[ki], 4), vr(QP[qi], 4)))
                k.e('v_mfma_f32_32x32x16_bf16 %s, %s, %s, %s' % (vr(S_, 16), vr(KP[ki] + 4, 4), vr(QP[qi] + 4, 4), vr(S_, 16)))
        for q in range(4): k.e('ds_write_b128 v5, %s offset:%d' % (vr(QP[q // 2] + 4 * (q % 2), 4), q * 1024))
        if AOWN:
            k.e('s_lshl_b32 s69, s46, 15')
            k.e('v_add_u32 v6, s69, v%d' % g.L16)
            k.e('v_add_u32 v7, s69, v%d' % g.LV16)
            for i in range(2):
                for hh in range(2):
                    k.e('ds_write_b128 v6, %s offset:%d' % (vr(KP[i] + 4 * hh, 4), i * 4096 + hh * 1024))
                    k.e('ds_write_b128 v7, %s offset:%d' % (vr(VP[i] + 4 * hh, 4), i * 4096 + 2048 + hh * 1024))
        k.e('v_lshl_add_u32 v5, v1, 3, s68')
        if QSP == 2: signal(k, 'C')
        k.e('s_nop 7')
        MM = T + 64
        for qi in range(2):
            a0, a1 = Sreg[2 * qi], Sreg[2 * qi + 1]
            k.e('v_max_f32 v%d, v%d, v%d' % (MM + qi, a0, a1))
            for r in range(1, 16): k.e('v_max3_f32 v%d, v%d, v%d, v%d' % (MM + qi, MM + qi, a0 + r, a1 + r))
        for qi in range(2): k.e('v_mov_b32 v%d, v%d' % (MM + 2 + qi, MM + qi))
        k.e('s_nop 1')
        for qi in range(2): k.e('v_permlane32_swap_b32 v%d, v%d' % (MM + qi, MM + 2 + qi))
        k.e('s_nop 1')
        for qi in range(2): k.e('v_max_f32 v%d, v%d, v%d' % (MM + qi, MM + qi, MM + 2 + qi))
        for qi in range(2): k.e('v_sub_f32 v%d, %s, v%d' % (MM + qi, hx(-40.0), MM + qi))
        k.e('ds_write_b64 v5, %s offset:4096' % vr(MM, 2))
        k.e('s_waitcnt lgkmcnt(0)')
    sig = 's_lshl_b32 s100, s31, 8\ns_lshl_b32 s101, s30, 4\ns_add_u32 s100, s100, s101\ns_add_u32 s100, s100, %d' % FL_QKV
    wait = ('s_lshl_b32 s100, s30, 8\ns_add_u32 s100, s100, %d' % FL_LN1, 8)
    k_gemm(k, c, 16, 16, 3, 1, 4, 128, 192, 2, 2, 1024, 32, 4, ('xt', WS_N, 1024) if XT else ('xf', WS_H, 1024), ('w', 'wqkv', 6144, 'qkv'), pre, nop, epi2 if AT2 else epi, selfsig=bool(AT2 and (QSP or AOWN == 1 or (env('DEFER_qkv', 0) and env('QSIG', 1)))), lazyfix=bool(AT2), DEFER=0, dcols=([1, 2], [0]), swap=(2,), wait=wait, sig=sig, RWD=4, SOFT=4)

def k_proj(k, c, K, X, wname, final):
    NQ = 2 if MP0 else 4
    EARLYV = MP0 and env('EARLYV', 1)
    def modq_loads(k):
        for q in range(NQ):
            k.e('s_add_u32 s62, s69, %d' % (q * 16384))
            k.e('s_add_u32 s63, s70, %d' % (q * 16384))
            k.e('buffer_load_dwordx4 %s, v7, s[64:67], s62 offen sc1' % vr(24 + 4 * q, 4))
            k.e('buffer_load_dword v%d, v6, s[64:67], s63 offen sc1' % (40 + q))
    def aux(g):
        k = g.k
        if final:
            srd(k, 40, 'ws', WS_MOD, 6144 * 4)
            k.e('''
            v_and_b32 v7, 31, v1
            v_lshlrev_b32 v7, 4, v7
            s_lshl_b32 s62, s31, 9
            s_add_u32 s62, s62, %d
            buffer_load_dwordx4 v[24:27], v7, s[40:43], s62 offen sc1
            ''' % (5 * 4096))
            return 1
        srd(k, 64, 'ws', 0, 256 * KB)
        k.e('''
        v_and_b32 v2, 31, v1
        v_lshrrev_b32 v3, 5, v1
        v_lshlrev_b32 v2, 4, v2
        v_lshl_add_u32 v2, v3, 13, v2
        s_lshl_b32 s62, s31, 9
        s_add_u32 s62, s62, %d
        v_and_b32 v6, 15, v1
        v_lshlrev_b32 v6, 2, v6
        s_lshl_b32 s68, s2, 6
        s_add_u32 s63, s68, %d
        s_mov_b32 s69, s62
        s_mov_b32 s70, s63
        v_mov_b32 v7, v2
        ''' % (WS_MODQ, WS_MODQ))
        modq_loads(k)
        return xtile(g) + 2 * NQ
    def xtile(g):
        k = g.k
        srd(k, 40, 'x')
        k.e('''
        v_lshrrev_b32 v2, 4, v1
        v_and_b32 v3, 15, v1
        s_lshl_b32 s62, s30, 17            ; tm*64*2048
        s_lshl_b32 s63, s31, 8
        s_add_u32 s62, s62, s63
        s_lshl_b32 s63, s46, 15            ; lw*16 rows
        s_add_u32 s62, s62, s63
        s_lshl_b32 s63, s46, 12
        s_add_u32 s63, s63, %d
        ''' % g.AUX)
        for j in range(4):
            k.e('v_add_u32 v4, %d, v2' % (4 * j))
            k.e('v_xor_b32 v5, v4, v3')
            k.e('v_lshlrev_b32 v5, 4, v5')
            k.e('v_lshl_add_u32 v5, v4, 11, v5')
            k.e('s_add_u32 m0, s63, %d' % (j * 1024))
            k.e('s_nop 0')
            k.e('buffer_load_dwordx4 v5, s[40:43], s62 offen lds')
        return 4
    def aux_end(g):
        k = g.k
        lp = k.newlabel('mqp'); lc = k.newlabel('mqc')
        if final:
            poll_init(k)
            k.e('s_branch %s' % lc)
            k.label(lp)
            k.e('buffer_load_dwordx4 v[24:27], v7, s[40:43], s62 offen sc1')
            k.e('s_waitcnt vmcnt(0)')
            k.label(lc)
            k.e('v_max3_u32 v2, v24, v25, v26')
            k.e('v_max_u32 v2, v2, v27')
            k.e('v_cmp_eq_u32 vcc, -1, v2')
            poll_back(k, lp)
            k.e('v_add_u32 v2, %d, v7' % (g.AUX + 16 * KB))
            k.e('ds_write_b128 v2, v[24:27]')
            k.e('s_waitcnt lgkmcnt(0)')
            return
        if MP0:
            k.e('v_cmp_lt_u32 vcc, 31, v1')
            k.e(pk('add', 24, 24, 28)); k.e(pk('add', 26, 26, 30))
            k.e('v_add_f32 v40, v40, v41')
        else:
            poll_init(k)
            k.e('s_branch %s' % lc)
            k.label(lp)
            modq_loads(k)
            k.e('s_waitcnt vmcnt(0)')
            k.label(lc)
            k.e('v_max_u32 v2, v24, v25')
            for r in range(26, 44, 2): k.e('v_max3_u32 v2, v2, v%d, v%d' % (r, r + 1))
            k.e('v_cmp_eq_u32 vcc, -1, v2')
            poll_back(k, lp)
            k.e(pk('add', 24, 24, 28)); k.e(pk('add', 26, 26, 30)); k.e(pk('add', 32, 32, 36)); k.e(pk('add', 34, 34, 38))
            k.e(pk('add', 24, 24, 32)); k.e(pk('add', 26, 26, 34))
            k.e('v_cmp_lt_u32 vcc, 31, v1')
            k.e('v_add_f32 v40, v40, v41')
            k.e('v_add_f32 v42, v42, v43')
            k.e('v_add_f32 v40, v40, v42')
        k.e('v_cndmask_b32 v7, 0, 1.0, vcc')
        for d in range(2): round_bf16_pair(k, 24 + 2 * d, 25 + 2 * d, 28)
        for e in range(4): k.e('v_add_f32 v%d, v7, v%d' % (24 + e, 24 + e))
        for d in range(2): round_bf16_pair(k, 24 + 2 * d, 25 + 2 * d, 28)
        k.e('v_lshlrev_b32 v2, 4, v1')
        k.e('v_add_u32 v2, %d, v2' % (g.AUX + 16 * KB))
        k.e('ds_write_b128 v2, v[24:27]')
        k.e("""
        s_lshr_b32 s62, s2, 6
        s_cmp_eq_u32 s62, 2
        s_cselect_b32 s62, 1.0, 0
        v_cvt_pk_bf16_f32 v40, v40, v40
        v_lshlrev_b32 v40, 16, v40
        v_add_f32 v40, s62, v40
        v_cvt_pk_bf16_f32 v40, v40, v40
        v_lshlrev_b32 v40, 16, v40
        s_add_u32 s68, s68, 8192
        v_cmp_gt_u32 vcc, 16, v0
        s_and_saveexec_b64 s[62:63], vcc
        buffer_store_dword v40, v6, s[64:67], s68 offen%s
        s_mov_b64 exec, s[62:63]
        s_waitcnt lgkmcnt(0)
        """ % WT)
    def pre(g):
        k = g.k
        g.L16 = alloc(g, 1, 1); g.RA = alloc(g, 1, 1); g.CA = alloc(g, 1, 1); g.TA = alloc(g, 1, 1)
        g.RES = alloc(g, 16); g.GA = alloc(g, 32); g.G2 = alloc(g, 32) if not final else None
        srd(k, 36, 'ws', WS_X1, 8 * MB)
        if final: srd(k, 32, 'out')
        else: srd(k, 32, 'ws', WS_ST1, 256 * KB)
        k.e('v_lshlrev_b32 v%d, 4, v1' % g.L16)
        k.e('''
        s_lshl_b32 s60, s31, 7
        s_lshl_b32 s61, s51, 6
        s_add_u32 s60, s60, s61           ; col0
        s_lshl_b32 s61, s30, 1
        s_add_u32 s61, s61, s50           ; rb
        s_lshl_b32 s62, s61, 16
        s_lshl_b32 s63, s60, 1
        s_add_u32 s63, s63, s62           ; row-major byte offset of (row0,col0)
        s_lshl_b32 s64, s60, 6
        s_add_u32 s64, s64, s62           ; XF offset
        s_add_u32 s65, s64, %d            ; X1S offset
        ; tile image address: row*256 + ((wn*8) ^ (row%%16))*16 + h*8
        s_lshl_b32 s66, s50, 13
        s_add_u32 s66, s66, %d
        v_and_b32 v5, 15, v3
        s_lshl_b32 s67, s51, 3
        v_xor_b32 v5, s67, v5
        v_lshlrev_b32 v5, 4, v5
        v_lshl_add_u32 v5, v3, 8, v5
        v_lshl_add_u32 v5, v4, 3, v5
        v_add_u32 v%d, s66, v5
        ; column vector address: wn*256 + h*16
        s_lshl_b32 s67, s51, 8
        s_add_u32 s67, s67, %d
        v_lshl_add_u32 v%d, v4, 4, s67
        ''' % (4 * MB, g.AUX, g.RA, g.AUX + 16 * KB, g.CA))
    KX = same_kernel('wo', 'wout') and env('KEEPX', 1)
    def early(g):
        k = g.k
        if EARLYV:
            A_ = g.GA; V_ = g.RES
            l = k.newlabel('ev')
            k.e('s_cmp_lg_u32 s46, 1'); k.e('s_cbranch_scc1 %s' % l)
            srd(k, 80, 'ws', 0, 256 * KB)
            k.e('''
            v_lshlrev_b32 v%d, 4, v3
            v_lshl_add_u32 v%d, v4, 13, v%d
            s_lshl_b32 s68, s31, 9
            s_add_u32 s68, s68, %d
            s_add_u32 s69, s68, 16384
            buffer_load_dwordx4 %s, v%d, s[80:83], s68 offen sc1
            buffer_load_dwordx4 %s, v%d, s[80:83], s69 offen sc1
            ''' % (V_, V_, V_, WS_MODQ + (3 * 4096 if final else 0), vr(A_, 4), V_, vr(A_ + 4, 4), V_))
            if not final:
                k.e('''
                v_and_b32 v%d, 15, v1
                v_lshlrev_b32 v%d, 2, v%d
                s_lshl_b32 s70, s2, 6
                s_add_u32 s68, s70, %d
                s_add_u32 s69, s68, 16384
                buffer_load_dword v%d, v%d, s[80:83], s68 offen sc1
                buffer_load_dword v%d, v%d, s[80:83], s69 offen sc1
                ''' % (V_ + 1, V_ + 1, V_ + 1, WS_MODQ, A_ + 8, V_ + 1, A_ + 9, V_ + 1))
            k.e('v_cvt_f32_u32 v%d, v4' % (V_ + 2))
            k.e('v_add_u32 v%d, %d, v%d' % (V_ + 3, g.AUX + 16 * KB, g.L16))
            k.e('s_waitcnt vmcnt(0)')
            k.e(pk('add', A_, A_, A_ + 4)); k.e(pk('add', A_ + 2, A_ + 2, A_ + 6))
            for d in range(2): round_bf16_pair(k, A_ + 2 * d, A_ + 1 + 2 * d, A_ + 4)
            for e in range(4): k.e('v_add_f32 v%d, v%d, v%d' % (A_ + e, V_ + 2, A_ + e))
            for d in range(2): round_bf16_pair(k, A_ + 2 * d, A_ + 1 + 2 * d, A_ + 4)
            k.e('ds_write_b128 v%d, %s' % (V_ + 3, vr(A_, 4)))
            if not final:
                F = A_ + 8
                k.e('''
                s_lshr_b32 s68, s2, 6
                s_cmp_eq_u32 s68, 2
                s_cselect_b32 s68, 1.0, 0
                v_add_f32 v%d, v%d, v%d
                v_cvt_pk_bf16_f32 v%d, v%d, v%d
                v_lshlrev_b32 v%d, 16, v%d
                v_add_f32 v%d, s68, v%d
                v_cvt_pk_bf16_f32 v%d, v%d, v%d
                v_lshlrev_b32 v%d, 16, v%d
                s_add_u32 s70, s70, 8192
                s_mov_b64 exec, 0xffff
                buffer_store_dword v%d, v%d, s[80:83], s70 offen%s
                s_mov_b64 exec, -1
                ''' % (F, F, F + 1, F, F, F, F, F, F, F, F, F, F, F, F, F, V_ + 1, WT))
            k.e('s_waitcnt lgkmcnt(0)')
            k.label(l)
            return
        if final or MP0: return
        D = g.GA; MC = g.RES; MT = g.RES + 8
        k.e('s_lshl_b32 s68, s46, 13')
        k.e('s_add_u32 s68, s68, %d' % AUX_A)
        k.e('v_add_u32 v%d, s68, v%d' % (MT, g.L16))
        for j in range(8): k.e('ds_read_b128 %s, v%d offset:%d' % (vr(D + 4 * j, 4), MT, j * 1024))
        for j in range(8):
            k.e('s_waitcnt lgkmcnt(%d)' % (7 - j))
            for d in range(4):
                unpack(k, MT, MT + 1, D + 4 * j + d)
                op = 'v_mul_f32' if j == 0 else 'v_fmac_f32'
                k.e('%s v%d, v%d, v%d' % (op, MC + 2 * d, MT, MSV + j))
                k.e('%s v%d, v%d, v%d' % (op, MC + 2 * d + 1, MT + 1, MSV + j))
        k.e('s_nop 1')
        for e in range(4): k.e('v_permlane32_swap_b32 v%d, v%d' % (MC + e, MC + 4 + e))
        k.e('s_nop 1')
        for e in range(4): k.e('v_add_f32 v%d, v%d, v%d' % (MC + e, MC + e, MC + 4 + e))
        k.e('s_nop 1')
        for e in range(2): k.e('v_permlane16_swap_b32 v%d, v%d' % (MC + e, MC + 2 + e))
        k.e('s_nop 1')
        for e in range(2): k.e('v_add_f32 v%d, v%d, v%d' % (MC + e, MC + e, MC + 2 + e))
        k.e('s_nop 1')
        for e in range(2): k.e('v_add_f32_dpp v%d, v%d, v%d row_ror:8 row_mask:0xf bank_mask:0xf' % (MC + e, MC + e, MC + e))
        k.e('''
        v_and_b32 v%d, 7, v1
        v_lshlrev_b32 v%d, 5, v%d
        v_lshrrev_b32 v%d, 4, v1
        v_lshl_add_u32 v%d, v%d, 3, v%d
        v_add_u32 v%d, s68, v%d
        ds_write_b64 v%d, %s
        s_waitcnt lgkmcnt(0)
        ''' % (MT, MT, MT, MT + 1, MT, MT + 1, MT, MT, MT, MT, vr(MC, 2)))
    def pre2(g):
        k = g.k
        if not final and not MP0:
            MC = g.RES; MT = g.RES + 8
            l = k.newlabel('noC')
            k.e('s_cmp_lg_u32 s46, 1')
            k.e('s_cbranch_scc1 %s' % l)
            srd(k, 80, 'ws', 0, 256 * KB)
            k.e('v_lshlrev_b32 v%d, 2, v1' % (MT + 1))
            k.e('v_add_u32 v%d, %d, v%d' % (MT, AUX_A, MT + 1))
            for w in range(4): k.e('ds_read_b32 v%d, v%d offset:%d' % (MC + w, MT, w * 8192))
            k.e('''
            s_and_b32 s68, s2, 3
            s_lshl_b32 s68, s68, 14
            s_lshr_b32 s69, s2, 2
            s_lshl_b32 s69, s69, 8
            s_add_u32 s68, s68, s69
            s_add_u32 s68, s68, %d
            s_waitcnt lgkmcnt(0)
            v_add_f32 v%d, v%d, v%d
            v_add_f32 v%d, v%d, v%d
            v_add_f32 v%d, v%d, v%d
            v_min_u32 v%d, -2, v%d
            buffer_store_dword v%d, v%d, s[80:83], s68 offen sc1
            ''' % (WS_MODQ, MC, MC, MC + 1, MC + 2, MC + 2, MC + 3, MC, MC, MC + 2, MC, MC, MC, MT + 1))
            k.label(l)
        if final and not KX:
            for j in range(2):
                for t in range(2):
                    k.e('buffer_load_dwordx4 %s, v%d, s[36:39], s64 offen offset:%d sc1' % (vr(g.RES + 8 * j + 4 * t, 4), g.L16, (2 * j + t) * 1024))
    PL = env('PRELAST', 1)
    def operands(g):
        k = g.k
        for j in range(2):
            for q in range(4):
                k.e('ds_read_b128 %s, v%d offset:%d' % (vr(g.GA + 16 * j + 4 * q, 4), g.CA, j * 128 + q * 32))
        if not final or KX:
            for j in range(2):
                for q in range(4):
                    k.e('v_xor_b32 v%d, %d, v%d' % (g.TA, (j * 4 + q) * 16, g.RA))
                    k.e('ds_read_b64 %s, v%d' % (vr(g.RES + 8 * j + 2 * q, 2), g.TA))
        if not final:
            for j in range(2):
                for q in range(4):
                    k.e('ds_read_b128 %s, v%d offset:%d' % (vr(g.G2 + 16 * j + 4 * q, 4), g.CA, 512 + j * 128 + q * 32))
    def epi(g):
        k = g.k
        assert g.M16
        if not PL: operands(g)
        k.e('s_waitcnt lgkmcnt(0)' if (KX or not final) else 's_waitcnt vmcnt(0) lgkmcnt(0)')
        T = g.FR
        for j in range(2):
            a = g.acc(0, j)
            for d in range(8):
                unpack(k, T + 2 * (d % 4), T + 2 * (d % 4) + 1, g.RES + 8 * j + d)
                k.e(pk('fma', a + 2 * d, a + 2 * d, g.GA + 16 * j + 2 * d, T + 2 * (d % 4)))
            if not final:
                if j == 0: k.e('s_waitcnt lgkmcnt(0)')
                for d in range(8): k.e(pk('mul', g.G2 + 16 * j + 2 * d, a + 2 * d, g.G2 + 16 * j + 2 * d))
                store_xf_tile(g, g.G2 + 16 * j, g.GA + 16 * j, g.L16, 36, 's65', j * 2048)
        def keep():
            for j in range(2):
                a = g.acc(0, j)
                if final or KX:
                    for d in range(8):
                        k.e('v_cvt_pk_bf16_f32 v%d, v%d, v%d' % (g.RES + 8 * j + d, a + 2 * d, a + 2 * d + 1))
                    for q in range(4):
                        k.e('v_xor_b32 v%d, %d, v%d' % (g.TA, (j * 4 + q) * 16, g.RA))
                        k.e('ds_write_b64 v%d, %s' % (g.TA, vr(g.RES + 8 * j + 2 * q, 2)))
                else:
                    store_xf_tile(g, a, g.RES + 8 * j, g.L16, 36, 's64', j * 2048)
        if final: keep()
        if final:
            k.e('''
            v_lshrrev_b32 v5, 3, v1
            v_and_b32 v6, 7, v1
            s_lshl_b32 s67, s51, 3
            v_or_b32 v7, s67, v6
            v_xor_b32 v7, v7, v5
            v_lshlrev_b32 v7, 4, v7
            v_lshl_add_u32 v7, v5, 8, v7
            v_add_u32 v7, s66, v7              ; b=0 address
            v_xor_b32 v%d, 128, v7             ; rows 8..15: slot ^ 8
            v_lshlrev_b32 v5, 11, v5
            v_lshl_add_u32 v5, v6, 4, v5       ; global: row*2048 + c*16
            s_waitcnt lgkmcnt(0)
            ''' % g.TA)
            for b in range(4):
                k.e('ds_read_b128 %s, v%d offset:%d' % (vr(g.GA + 4 * b, 4), 7 if b % 2 == 0 else g.TA, b * 2048))
            for b in range(4):
                k.e('s_waitcnt lgkmcnt(%d)' % (3 - b))
                k.e('buffer_store_dwordx4 %s, v5, s[32:35], s63 offen%s' % (vr(g.GA + 4 * b, 4), os.environ.get('OUTFLAG', ' sc1')))
                k.e('s_add_u32 s63, s63, %d' % (8 * 2048))
            l = k.newlabel('ep')
            k.e('s_or_b32 s67, s2, s46')
            k.e('s_cbranch_scc1 %s' % l)
            srd(k, 96, 'ws', WS_EPOCH, 8)
            k.e('v_mov_b32 v%d, s84' % FV); k.e('v_mov_b32 v%d, s85' % (FV + 1)); k.e('v_mov_b32 v%d, 0' % (FV + 2))
            flag_store(k, '0')
            k.label(l)
        else:
            S1 = T + 8; S2 = T + 10
            a0 = g.acc(0, 0)
            k.e(pk('add', S1, a0, a0 + 2))
            k.e(pk('mul', S2, a0, a0))
            k.e(pk('fma', S2, a0 + 2, a0 + 2, S2))
            for r in range(4, 32, 2):
                k.e(pk('add', S1, S1, a0 + r))
                k.e(pk('fma', S2, a0 + r, a0 + r, S2))
            k.e('v_add_f32 v%d, v%d, v%d' % (S1, S1, S1 + 1))
            k.e('v_add_f32 v%d, v%d, v%d' % (S1 + 1, S2, S2 + 1))
            k.e('v_mov_b32 v%d, v%d' % (S2, S1))
            k.e('v_mov_b32 v%d, v%d' % (S2 + 1, S1 + 1))
            k.e('''
            s_lshl_b32 s66, s30, 4
            s_lshl_b32 s67, s31, 1
            s_add_u32 s66, s66, s67
            s_add_u32 s66, s66, s51
            s_lshl_b32 s66, s66, 9             ; (tm*16+part)*512
            s_lshl_b32 s67, s50, 8
            s_add_u32 s66, s66, s67
            v_lshlrev_b32 v5, 3, v3
            ''')
            k.e('v_permlane32_swap_b32 v%d, v%d' % (S1, S2))
            k.e('v_permlane32_swap_b32 v%d, v%d' % (S1 + 1, S2 + 1))
            k.e('s_nop 1')
            k.e(pk('add', S1, S1, S2))
            k.e('s_mov_b32 exec_hi, 0')
            k.e('buffer_store_dwordx2 %s, v5, s[32:35], s66 offen%s' % (vr(S1, 2), WT))
            k.e('s_mov_b32 exec_hi, -1')
            if g.LE == 1 and KX:
                k.e('s_barrier'); g.ended = 1
            keep()
            k.e('s_waitcnt lgkmcnt(0)')
    if final:
        sig = None
        wait = ('s_lshr_b32 s100, s30, 1\ns_lshl_b32 s100, s100, 8\ns_add_u32 s100, s100, %d' % FL_WSP, 56)
    else:
        sig = 's_lshr_b32 s100, s30, 1\ns_lshl_b32 s100, s100, 8\ns_and_b32 s101, s30, 1\ns_lshl_b32 s101, s101, 7\ns_add_u32 s100, s100, s101\ns_lshl_b32 s101, s31, 4\ns_add_u32 s100, s100, s101\ns_add_u32 s100, s100, %d' % FL_WO
        wait = ('s_lshr_b32 s100, s30, %d\ns_lshl_b32 s100, s100, 8\ns_add_u32 s100, s100, %d' % (1 if AT2 else 2, FL_ATT), 16 if AT2 else 32)
    k_gemm(k, c, 32, 8, 3, 2, 4, 64, 128, 2, 2, K, 64, 4, X, ('w', wname, 2048, None), pre, pre2, epi, aux=None if EARLYV else aux, auxsz=17 * KB, auxbase=AUX_A, aux_end=None if EARLYV else aux_end,
           auxpre=xtile if EARLYV and not final else None, wait=wait, sig=sig, GU=2, RWD=4, early=early, altmap=True, prelast=operands if PL else None,
           own='s_lshr_b32 s68, s47, 2\ns_mul_i32 s68, s68, 7\ns_lshr_b32 s69, s48, 2\ns_add_u32 s68, s68, s69\ns_min_u32 s68, s68, 13\ns_lshl_b32 s68, s68, 1' if final else None, ownlim=224)

ZKEEP = 72
BSV = 244
MSV = 240
def stats_finish(k, S, n, R, M, T):
    k.e('v_mov_b32 v%d, v%d' % (T, S))
    k.e('v_mov_b32 v%d, v%d' % (T + 1, S + 1))
    k.e('s_nop 1')
    k.e('v_permlane32_swap_b32 v%d, v%d' % (S, T))
    k.e('v_permlane32_swap_b32 v%d, v%d' % (S + 1, T + 1))
    k.e('s_nop 1')
    k.e(pk('add', S, S, T))
    k.e('v_mul_f32 v%d, %s, v%d' % (S, hx(1.0 / n), S))
    k.e('v_mul_f32 v%d, v%d, v%d' % (T, S, S))
    k.e('v_mov_b32 v%d, %s' % (T + 1, hx(1.0 / n)))
    k.e('v_fma_f32 v%d, v%d, v%d, -v%d' % (S + 1, S + 1, T + 1, T))
    k.e('v_max_f32 v%d, 0, v%d' % (S + 1, S + 1))
    k.e('v_add_f32 v%d, %s, v%d' % (S + 1, hx(1e-5), S + 1))
    k.e('v_rsq_f32 v%d, v%d' % (R, S + 1))
    k.e('s_nop 0')
    k.e('v_mul_f32_e64 v%d, -v%d, v%d' % (M, S, R))

def uw_job(k, LB):
    k.e("""
    v_lshrrev_b32 v2, 3, v0
    v_and_b32 v3, 7, v0
    v_lshlrev_b32 v4, 6, v2
    s_mov_b32 s31, %d
    v_mul_lo_u32 v5, v2, s31
    v_lshl_add_u32 v5, v3, 4, v5
    s_movk_i32 s44, %d
    s_movk_i32 s45, %d
    s_lshl_b32 s30, s30, 1
    s_waitcnt lgkmcnt(0)
    """ % (16 * 7168, 4 * 4096, 3 * 4096))
    srd(k, 36, 'w_in'); srd(k, 40, 'ws', 0, 64 * KB)
    AV = 72; SV = 88; UA = 104; WA = 112
    lq = k.newlabel('uwq')
    poll_init(k)
    k.label(lq)
    for q in range(4): k.e('buffer_load_dwordx4 %s, v4, s[40:43], s44 offen offset:%d sc1' % (vr(AV + 4 * q, 4), q * 16))
    for q in range(4): k.e('buffer_load_dwordx4 %s, v4, s[40:43], s45 offen offset:%d sc1' % (vr(SV + 4 * q, 4), q * 16))
    if not k.c.first:
        k.e('s_waitcnt vmcnt(0)')
        k.e('v_max_u32 v6, v%d, v%d' % (AV, AV + 1))
        for r in range(AV + 2, AV + 32, 2): k.e('v_max3_u32 v6, v6, v%d, v%d' % (r, r + 1))
        k.e('v_cmp_eq_u32 vcc, -1, v6')
        poll_back(k, lq)
    k.e('s_mov_b32 s50, %d' % LB)
    lp = k.newlabel('uw')
    k.label(lp)
    k.e('s_lshl_b32 s31, s30, 7')
    for j in range(16):
        k.e('buffer_load_dwordx4 %s, v5, s[36:39], s31 offen' % vr(8 + 4 * j, 4))
        k.e('s_add_u32 s31, s31, 7168')
    for j in range(16):
        k.e('s_waitcnt vmcnt(%d)' % (15 - j))
        for d in range(4):
            unpack(k, 6, 7, 8 + 4 * j + d)
            for acc, cf in ((UA, AV), (WA, SV)):
                op = 'v_mul_f32' if j == 0 else 'v_fmac_f32'
                k.e('%s v%d, v6, v%d' % (op, acc + 2 * d, cf + j))
                k.e('%s v%d, v7, v%d' % (op, acc + 2 * d + 1, cf + j))
    red_lanes(k, list(range(UA, UA + 16)), list(range(8, 24)))
    lskip = k.newlabel('uwskip')
    k.e("""
    s_lshl_b32 s47, s46, 9
    s_add_u32 s47, s47, s50
    v_lshl_add_u32 v2, v3, 5, s47      ; pass*4096 + wave*512 + chunk*32
    v_cmp_gt_u32 vcc, 8, v1
    s_and_saveexec_b64 s[48:49], vcc
    ds_write_b128 v2, v[104:107]
    ds_write_b128 v2, v[108:111] offset:16
    ds_write_b128 v2, v[112:115] offset:256
    ds_write_b128 v2, v[116:119] offset:272
    s_mov_b64 exec, s[48:49]
    s_waitcnt lgkmcnt(0)
    s_barrier
    s_cmp_ge_u32 s46, 2
    s_cbranch_scc1 %s
    v_lshl_add_u32 v2, v0, 2, s50      ; wave0: u cols, wave1: w0 cols
    """ % lskip)
    for w in range(8): k.e('ds_read_b32 v%d, v2 offset:%d' % (8 + w, w * 512))
    k.e('s_waitcnt lgkmcnt(0)')
    for w in range(1, 8): k.e('v_add_f32 v8, v8, v%d' % (8 + w))
    k.e("""
    v_min_u32 v8, -2, v8
    v_lshlrev_b32 v2, 2, v1
    s_lshl_b32 s31, s30, 8
    s_lshl_b32 s47, s46, 14
    s_add_u32 s31, s31, s47
    s_add_u32 s31, s31, %d
    buffer_store_dword v8, v2, s[40:43], s31 offen sc1
    s_waitcnt vmcnt(0)
    """ % WS_UW)
    k.label(lskip)
    k.e("""
    s_add_u32 s30, s30, 1
    s_add_u32 s50, s50, 4096
    s_cmp_lt_u32 s50, %d
    s_cbranch_scc1 %s
    """ % (LB + 8192, lp))

GC1 = -2.0 * 0.7978845608028654 * LOG2E
def gelu_ops(k, a, U, W0, T, R, M, after_t=None):
    for r in range(0, 16, 2): k.e(pk('fma', T + r, U + r, (M,), W0 + r))
    if after_t: after_t()
    for r in range(0, 16, 2): k.e(pk('fma', a + r, a + r, (R,), T + r))
    for r in range(0, 16, 2): k.e(pk('mul', T + r, a + r, a + r))
    for r in range(0, 16, 2): k.e(pk('fma', T + r, T + r, 's[70:71]', (6,)))
    for r in range(0, 16, 2): k.e(pk('mul', T + r, T + r, a + r))
    for r in range(16): k.e('v_exp_f32 v%d, v%d' % (T + r, T + r))
    for r in range(0, 16, 2): k.e(pk('add', T + r, T + r, '1.0'))
    for r in range(16): k.e('v_rcp_f32 v%d, v%d' % (T + r, T + r))
    for r in range(0, 16, 2): k.e(pk('mul', a + r, a + r, T + r))
def stat_ops(k, a, S1, S2, first):
    for r in range(0, 16, 2):
        if first and r == 0:
            k.e(pk('add', S1, a, a + 2)); k.e(pk('mul', S2, a, a))
        else:
            if not (first and r == 2): k.e(pk('add', S1, S1, a + r))
            k.e(pk('fma', S2, a + r, a + r, S2))

def k_win(k, c):
    SPLIT = env('SPLIT', 0)
    XFER = 48 * KB
    def mid(g):
        k = g.k
        Z = 64; U = 96; T = 160; S = 176; RM_ = 180
        k.e("""
        s_lshl_b32 s67, s46, 13
        s_add_u32 s67, s67, %d
        v_lshl_add_u32 v44, v1, 4, s67     ; transfer area
        s_lshl_b32 s67, s46, 9
        s_add_u32 s67, s67, %d
        v_lshl_add_u32 v45, v1, 3, s67     ; (R,M) / stats slot
        v_lshrrev_b32 v46, 5, v1
        v_lshlrev_b32 v46, 4, v46
        v_add_u32 v46, %d, v46
        s_mov_b32 s70, %s
        s_mov_b32 s71, s70
        v_mov_b32 v6, %s
        ds_read_b64 v[%d:%d], v45
        """ % (XFER, g.AUX + 2048, g.AUX, hx(GC1 * 0.044715), hx(GC1), RM_, RM_ + 1))
        for b in range(2):
            for q in range(4):
                k.e('ds_read_b128 %s, v46 offset:%d' % (vr(U + 32 * b + 4 * q, 4), (2 + b) * 128 + q * 32))
                k.e('ds_read_b128 %s, v46 offset:%d' % (vr(U + 32 * b + 16 + 4 * q, 4), 1024 + (2 + b) * 128 + q * 32))
        k.e('s_setprio 1')
        k.e('s_waitcnt lgkmcnt(0)')
        k.e('v_mov_b32 v%d, v%d' % (RM_ + 2, RM_ + 1))
        k.e('s_barrier')
        for q in range(8): k.e('ds_read_b128 %s, v44 offset:%d' % (vr(Z + 4 * q, 4), q * 1024))
        for b in range(2):
            a = Z + 16 * b
            k.e('s_waitcnt lgkmcnt(%d)' % (4 - 4 * b))
            for hb in range(2):
                for e in range(4): k.e('v_permlane16_swap_b32 v%d, v%d' % (a + 8 * hb + e, a + 8 * hb + 4 + e))
            gelu_ops(k, a, U + 32 * b, U + 32 * b + 16, T, RM_, RM_ + 2)
            stat_ops(k, a, S, S + 2, b == 0)
        k.e('v_add_f32 v%d, v%d, v%d' % (S, S, S + 1))
        k.e('v_add_f32 v%d, v%d, v%d' % (S + 1, S + 2, S + 3))
        k.e('ds_write_b64 v45, %s' % vr(S, 2))
        k.e('s_waitcnt lgkmcnt(0)')
        k.e('s_barrier')
        for q in range(8): k.e('ds_write_b128 v44, %s offset:%d' % (vr(Z + 4 * q, 4), q * 1024))
        k.e('s_waitcnt lgkmcnt(0)')
    LP = 1; LPJ = env('LPJ', 3)
    KZ = c.nxt == 'wsp' and env('KEEPZ', 1)
    def post(g):
        if not LP: return
        k = g.k
        srd(k, 36, 'ws', WS_G, 256 * KB)
        k.e("""
        s_lshl_b32 s65, s30, 2
        s_add_u32 s65, s65, s46
        s_lshl_b32 s65, s65, 12            ; rb32*4096
        v_and_b32 v2, 31, v1
        v_lshrrev_b32 v3, 5, v1
        v_mul_u32_u24 v3, %d, v3
        v_lshl_add_u32 v2, v2, 3, v3
        s_lshl_b32 s67, s46, 9
        s_add_u32 s67, s67, %d
        v_lshl_add_u32 v3, v1, 3, s67
        s_setprio 2
        s_barrier
        """ % (7 * 256, g.AUX + 2048))
        lp = k.newlabel('lpoll')
        poll_init(k)
        k.label(lp)
        for p in range(7):
            k.e('buffer_load_dwordx2 %s, v2, s[36:39], s65 offen offset:%d sc1' % (vr(24 + 2 * p, 2), p * 256))
        k.e('s_waitcnt vmcnt(0)')
        k.e('v_max_u32 v5, v24, v25')
        for p in range(1, 7): k.e('v_max3_u32 v5, v5, v%d, v%d' % (24 + 2 * p, 25 + 2 * p))
        k.e('v_cmp_eq_u32 vcc, -1, v5')
        poll_back(k, lp)
        for p in range(1, 7): k.e(pk('add', 24, 24, 24 + 2 * p))
        stats_finish(k, 24, 1792, 40, 41, 26)
        k.e('ds_write_b64 v3, v[40:41]')
        k.e('s_waitcnt lgkmcnt(0)')
        k.e('s_barrier')
    def uw_loads(g):
        g.k.e('buffer_load_dwordx4 v[24:27], v2, s[40:43], s62 offen sc1')
        g.k.e('buffer_load_dwordx4 v[28:31], v2, s[40:43], s63 offen sc1')
    def aux(g):
        k = g.k
        srd(k, 40, 'ws', WS_UW, 32 * KB)
        k.e("""
        v_and_b32 v2, 31, v1
        v_lshlrev_b32 v2, 4, v2
        v_add_u32 v3, 7168, v2
        v_cmp_gt_u32 vcc, 32, v1
        s_lshl_b32 s62, s31, 9
        s_add_u32 s63, s62, %d
        v_cndmask_b32 v2, v2, v3, vcc
        v_lshlrev_b32 v3, 4, v1
        v_add_u32 v3, %d, v3
        """ % (16 * KB, g.AUX))
        uw_loads(g)
        return 2
    def aux_end(g):
        k = g.k
        lp = k.newlabel('uwp'); lc = k.newlabel('uwc')
        poll_init(k)
        k.e('s_branch %s' % lc)
        k.label(lp)
        uw_loads(g)
        k.e('s_waitcnt vmcnt(0)')
        k.label(lc)
        k.e("""
        v_max3_u32 v4, v24, v25, v26
        v_max3_u32 v4, v4, v27, v28
        v_max3_u32 v4, v4, v29, v30
        v_max_u32 v4, v4, v31
        v_cmp_eq_u32 vcc, -1, v4
        """)
        poll_back(k, lp)
        k.e("""
        ds_write_b128 v3, v[24:27]
        ds_write_b128 v3, v[28:31] offset:1024
        s_waitcnt lgkmcnt(0)
        """)
    def pre(g):
        k = g.k
        g.L16 = alloc(g, 1, 1); g.SA = alloc(g, 1, 1); g.GA = alloc(g, 1, 1); g.CA = alloc(g, 1, 1)
        g.R = alloc(g, 2, 2); g.M = alloc(g, 2, 2); g.P = alloc(g, 16)
        srd(k, 32, 'ws', ZB, max(WS_Z, WS_Z2N) - ZB + ZSZ); srd(k, 36, 'ws', WS_ST1, 512 * KB)
        k.e('v_lshlrev_b32 v%d, 4, v1' % g.L16)
        k.e("""
        s_lshl_b32 s61, s30, 2
        s_add_u32 s61, s61, s46           ; rb32
        s_lshr_b32 s64, s61, 1
        s_lshl_b32 s64, s64, 13           ; rb64*8192
        s_and_b32 s65, s61, 1
        s_lshl_b32 s65, s65, 8
        s_add_u32 s64, s64, s65           ; x1 stats offset
        s_lshl_b32 s65, s61, 12
        s_add_u32 s65, s65, %d            ; granule offset (row block)
        s_lshl_b32 s66, s31, 8
        s_add_u32 s66, s66, s65           ; own granule
        s_mul_i32 s60, s61, %d
        s_lshl_b32 s61, s31, 13
        s_add_u32 s60, s60, s61           ; Z1 offset
        v_lshlrev_b32 v5, 3, v3
        v_lshl_add_u32 v%d, v4, 12, v5    ; h*8*512 + row*8
        v_mul_u32_u24 v6, %d, v4
        v_add_u32 v%d, v6, v5             ; h*7*256 + row*8
        v_lshlrev_b32 v%d, 4, v4
        v_add_u32 v%d, %d, v%d
        """ % (WS_G - WS_ST1, 112 * 1024, g.SA, 7 * 256, g.GA, g.CA, g.CA, g.AUX, g.CA))
    def early(g):
        k = g.k
        for p in range(8):
            k.e('buffer_load_dwordx2 %s, v%d, s[36:39], s64 offen offset:%d sc1' % (vr(g.P + 2 * p, 2), g.SA, p * 512))
        k.e('s_waitcnt vmcnt(0)')
        for p in range(1, 8): k.e(pk('add', g.P, g.P, g.P + 2 * p))
        stats_finish(k, g.P, 1024, g.R, g.M, g.P + 2)
        if SPLIT:
            k.e('s_lshl_b32 s67, s46, 9')
            k.e('s_add_u32 s67, s67, %d' % (g.AUX + 2048))
            k.e('v_lshl_add_u32 v%d, v1, 3, s67' % g.SA)
            k.e('s_lshl_b32 s67, s46, 13')
            k.e('s_add_u32 s67, s67, %d' % XFER)
            k.e('v_lshl_add_u32 v%d, v1, 4, s67' % g.GA)
            k.e('v_mov_b32 v%d, v%d' % (g.R + 1, g.M))
            k.e('ds_write_b64 v%d, %s' % (g.SA, vr(g.R, 2)))
            k.e('s_waitcnt lgkmcnt(0)')
    def pre2(g): pass
    def epi(g):
        k = g.k
        c1 = -2.0 * 0.7978845608028654 * LOG2E
        U = g.FR; W0 = g.FR + 16; T = g.FR + 32; PS = g.FR + 48
        def rd_uw(j):
            for q in range(4):
                k.e('ds_read_b128 %s, v%d offset:%d' % (vr(U + 4 * q, 4), g.CA, j * 128 + q * 32))
                k.e('ds_read_b128 %s, v%d offset:%d' % (vr(W0 + 4 * q, 4), g.CA, 1024 + j * 128 + q * 32))
        k.e('s_nop 7')
        rd_uw(0)
        k.e('s_mov_b32 s70, %s' % hx(c1 * 0.044715)); k.e('s_mov_b32 s71, s70')
        k.e('v_mov_b32 v6, %s' % hx(c1))
        S1 = g.P; S2 = g.P + 2
        GR = g.P + 2
        n = 0
        def poll_loads():
            for p in range(7):
                k.e('buffer_load_dwordx2 %s, v%d, s[36:39], s65 offen offset:%d sc1' % (vr(GR + 2 * p, 2), g.GA, p * 256))
        cnt = [0]
        def block(j):
            a = g.acc(0, j)
            g.fix(0, j)
            k.e('s_waitcnt lgkmcnt(0)')
            lastz2 = 1 if SPLIT else 3
            gelu_ops(k, a, U, W0, T, g.R, g.M, after_t=(lambda: rd_uw(j + 1)) if (j < 7 and not (j == lastz2 and g.deferred)) else None)
            if j >= 4:
                if KZ:
                    for d in range(8): k.e('v_cvt_pk_bf16_f32 v%d, v%d, v%d' % (ZKEEP + 8 * (j - 4) + d, a + 2 * d, a + 2 * d + 1))
                else:
                    k.e('s_add_u32 s61, s60, %d' % (WS_Z - ZB + (j - 4) * 2048))
                    store_xf_tile(g, a, PS + 8 * (cnt[0] % 3), g.L16, 32, 's61', 0); cnt[0] += 1
            else: stat_ops(k, a, S1, S2, j == 0)
        if SPLIT:
            assert g.deferred and LPJ == 3
            for q in range(8): k.e('ds_write_b128 v%d, %s offset:%d' % (g.GA, vr(g.acc(0, 2) + 4 * q, 4), q * 1024))
            k.e('s_waitcnt lgkmcnt(0)')
            k.e('s_barrier')
        for j in range(2 if SPLIT else 4): block(j)
        k.e('v_add_f32 v%d, v%d, v%d' % (S1, S1, S1 + 1))
        k.e('v_add_f32 v%d, v%d, v%d' % (S1 + 1, S2, S2 + 1))
        if SPLIT:
            k.e('s_barrier')
            k.e('ds_read_b64 %s, v%d' % (vr(S2, 2), g.SA))
            k.e('s_waitcnt lgkmcnt(0)')
            k.e(pk('add', S1, S1, S2))
        k.e('v_mov_b32 v%d, v%d' % (S2, S1))
        k.e('v_mov_b32 v%d, v%d' % (S2 + 1, S1 + 1))
        k.e('v_lshlrev_b32 v5, 3, v3')
        k.e('s_nop 0')
        k.e('v_permlane32_swap_b32 v%d, v%d' % (S1, S2))
        k.e('v_permlane32_swap_b32 v%d, v%d' % (S1 + 1, S2 + 1))
        k.e('s_nop 1')
        k.e(pk('add', S1, S1, S2))
        k.e('v_min_u32 v%d, -2, v%d' % (S1, S1))
        k.e('v_min_u32 v%d, -2, v%d' % (S1 + 1, S1 + 1))
        k.e('s_mov_b32 exec_hi, 0')
        k.e('buffer_store_dwordx2 %s, v5, s[36:39], s66 offen sc1' % vr(S1, 2))
        k.e('s_mov_b32 exec_hi, -1')
        if env('WM', 0): mark(k, 0)
        NB4 = env('NB4', 1) if KZ else 4
        if g.deferred:
            g.deferred()
            rd_uw(4)
        if LPJ == 3: k.e('s_barrier')
        if SPLIT:
            assert NB4 >= 1
            for q in range(8): k.e('ds_read_b128 %s, v%d offset:%d' % (vr(g.acc(0, 2) + 4 * q, 4), g.GA, q * 1024))
        for j in range(4, 4 + NB4):
            block(j)
            if j == LPJ: k.e('s_barrier')
        if env('WM', 0): mark(k, 1)
        R2 = g.P + 4; M2 = g.P + 6
        k.e('s_lshl_b32 s67, s46, 9')
        k.e('s_add_u32 s67, s67, %d' % (g.AUX + 2048))
        k.e('v_lshl_add_u32 v5, v1, 3, s67')
        k.e('s_barrier')
        k.e('ds_read_b64 %s, v5' % vr(R2, 2))
        k.e('s_waitcnt lgkmcnt(0)')
        mark(k, 3)
        k.e('v_mov_b32 v%d, v%d' % (M2, R2 + 1))
        zo = ZOWN and c.nxt == 'wsp'
        if zo:
            assert g.M16
            ZA = g.P + 8
            k.e('''
            s_lshr_b32 s67, s46, 1
            s_lshl_b32 s67, s67, 15
            s_and_b32 s68, s46, 1
            s_lshl_b32 s68, s68, 13
            s_add_u32 s67, s67, s68
            s_add_u32 s67, s67, 16384
            v_bfe_u32 v5, v1, 4, 1
            v_lshl_add_u32 v%d, v5, 12, s67
            v_bfe_u32 v5, v1, 2, 2
            v_lshl_add_u32 v%d, v5, 8, v%d
            v_and_b32 v5, 2, v5
            v_or_b32 v5, v5, v4
            v_lshl_add_u32 v%d, v5, 6, v%d
            v_and_b32 v5, 3, v1
            v_lshl_add_u32 v%d, v5, 4, v%d
            v_xor_b32 v%d, 128, v%d
            ''' % (ZA, ZA, ZA, ZA, ZA, ZA, ZA, ZA + 1, ZA))
        for j in range(4):
            a = g.acc(0, j)
            for r in range(0, 16, 2): k.e(pk('fma', a + r, a + r, (R2,), (M2,)))
            k.e('s_add_u32 s61, s60, %d' % (WS_Z2N - ZB + j * 2048))
            if zo:
                store_xf_tile(g, a, a, g.L16, 32, 's61', 0)
            else:
                store_xf_tile(g, a, PS + 8 * (cnt[0] % 3), g.L16, 32, 's61', 0); cnt[0] += 1
        if zo:
            for j in range(4):
                for t in range(2): k.e('ds_write_b128 v%d, %s offset:%d' % (ZA + t, vr(g.acc(0, j) + 4 * t, 4), j * 1024))
        if g.LE: k.e('s_barrier')
        rest = list(range(4 + NB4, 8))
        NBS = env('NBS', 2)
        for j in rest[:NBS]: block(j)
        signal(k, 'C')
        if zo and LPW: k.e('s_barrier')
        for j in rest[NBS:]: block(j)
        k.e('s_waitcnt lgkmcnt(0)')
    sig = 's_lshl_b32 s100, s31, 8\ns_lshl_b32 s101, s30, 4\ns_add_u32 s100, s100, s101\ns_add_u32 s100, s100, %d' % FL_WIN
    wait = ('s_lshl_b32 s100, s30, 8\ns_add_u32 s100, s100, %d' % FL_WO, 64)
    H22 = env('H22', 0)
    k_gemm(k, c, 16, 14, 2, 2, 7, 128, 256, 2 if H22 else 4, 2 if H22 else 1, 1024, 32, 4, ('xf', WS_X1S, 1024), ('w', 'w_in', 7168, (256, [3584, 3584 + 128, 0, 128])),
           pre, pre2, epi, aux=aux, auxsz=4 * KB, auxbase=AUX_B, aux_end=aux_end, post=post, mid=mid if SPLIT else None, selfsig=True, early=early, SOFT=3, DEFER=3, dcols=([0, 1], [2, 3]) if H22 else ([0, 1, 2, 3], [4, 5, 6, 7]), JG=2, lazyfix=True, side=(28, uw_job), wait=wait, sig=sig)

def k_win2(k, c):
    assert c.nxt == 'wsp' and ZOWN
    def post(g):
        k = g.k
        srd(k, 36, 'ws', WS_G2, 512 * KB)
        k.e("""
        s_lshl_b32 s65, s30, 1
        s_lshr_b32 s66, s46, 1
        s_add_u32 s65, s65, s66
        s_lshl_b32 s65, s65, 14            ; rb64*16K
        s_and_b32 s66, s46, 1
        s_lshl_b32 s66, s66, 8
        s_add_u32 s65, s65, s66
        s_add_u32 s66, s65, 3584
        v_and_b32 v2, 31, v1
        v_lshrrev_b32 v3, 5, v1
        v_mul_u32_u24 v3, %d, v3
        v_lshl_add_u32 v2, v2, 3, v3
        s_lshl_b32 s67, s46, 9
        s_add_u32 s67, s67, %d
        v_lshl_add_u32 v3, v1, 3, s67
        s_setprio 2
        s_barrier
        """ % (14 * 512, g.AUX + 2048))
        lp = k.newlabel('lpoll')
        poll_init(k)
        k.label(lp)
        for p in range(14):
            k.e('buffer_load_dwordx2 %s, v2, s[36:39], s%d offen offset:%d sc1' % (vr(24 + 2 * p, 2), 65 + p // 7, (p % 7) * 512))
        k.e('s_waitcnt vmcnt(0)')
        k.e('v_max_u32 v5, v24, v25')
        for p in range(1, 14): k.e('v_max3_u32 v5, v5, v%d, v%d' % (24 + 2 * p, 25 + 2 * p))
        k.e('v_cmp_eq_u32 vcc, -1, v5')
        poll_back(k, lp)
        for p in range(1, 14): k.e(pk('add', 24, 24, 24 + 2 * p))
        stats_finish(k, 24, 1792, 56, 57, 26)
        k.e('ds_write_b64 v3, v[56:57]')
        k.e('s_waitcnt lgkmcnt(0)')
        k.e('s_barrier')
        if env('WLE', 2): k.e('s_barrier')
    def uw_loads(g):
        g.k.e('buffer_load_dwordx4 v[24:27], v2, s[40:43], s62 offen sc1')
        g.k.e('buffer_load_dwordx4 v[28:31], v2, s[40:43], s63 offen sc1')
    def aux(g):
        k = g.k
        srd(k, 40, 'ws', WS_UW, 32 * KB)
        k.e("""
        v_and_b32 v2, 31, v1
        v_lshlrev_b32 v2, 4, v2
        v_add_u32 v3, 7168, v2
        v_cmp_gt_u32 vcc, 32, v1
        s_lshl_b32 s62, s31, 9
        s_add_u32 s63, s62, %d
        v_cndmask_b32 v2, v2, v3, vcc
        v_lshlrev_b32 v3, 4, v1
        v_add_u32 v3, %d, v3
        """ % (16 * KB, g.AUX))
        uw_loads(g)
        return 2
    def aux_end(g):
        k = g.k
        lp = k.newlabel('uwp'); lc = k.newlabel('uwc')
        poll_init(k)
        k.e('s_branch %s' % lc)
        k.label(lp)
        uw_loads(g)
        k.e('s_waitcnt vmcnt(0)')
        k.label(lc)
        k.e("""
        v_max3_u32 v4, v24, v25, v26
        v_max3_u32 v4, v4, v27, v28
        v_max3_u32 v4, v4, v29, v30
        v_max_u32 v4, v4, v31
        v_cmp_eq_u32 vcc, -1, v4
        """)
        poll_back(k, lp)
        k.e("""
        ds_write_b128 v3, v[24:27]
        ds_write_b128 v3, v[28:31] offset:1024
        s_waitcnt lgkmcnt(0)
        """)
    def pre(g):
        k = g.k
        g.L16 = alloc(g, 1, 1); g.L8 = alloc(g, 1, 1); g.CA = alloc(g, 1, 1)
        g.R = alloc(g, 4); g.M = alloc(g, 4); g.P = alloc(g, 16)
        srd(k, 32, 'ws', WS_Z2N, ZSZ); srd(k, 36, 'ws', WS_ST1, 256 * KB); srd(k, 40, 'ws', WS_G2, 512 * KB)
        k.e('v_lshlrev_b32 v%d, 4, v1' % g.L16)
        k.e('v_lshlrev_b32 v%d, 3, v1' % g.L8)
        k.e("""
        s_lshl_b32 s61, s30, 1
        s_add_u32 s61, s61, s50           ; rb64
        s_lshl_b32 s64, s61, 13           ; x1 stats offset
        s_add_u32 s65, s64, 4096
        s_lshl_b32 s66, s31, 1
        s_add_u32 s66, s66, s51
        s_lshl_b32 s66, s66, 9
        s_lshl_b32 s67, s61, 14
        s_add_u32 s66, s66, s67           ; own granule
        s_mul_i32 s60, s61, %d
        s_lshl_b32 s61, s31, 13
        s_add_u32 s60, s60, s61
        s_lshl_b32 s61, s51, 12
        s_add_u32 s60, s60, s61           ; Z2N offset of block (0,0)
        s_add_u32 s61, s60, %d
        s_lshl_b32 s67, s51, 8
        s_add_u32 s67, s67, %d
        v_lshl_add_u32 v%d, v4, 4, s67
        """ % (2 * 112 * 1024, 112 * 1024, g.AUX, g.CA))
    def early(g):
        k = g.k
        if ZF32:
            assert g.free <= BSV
            srd(k, 80, 'b_sp')
            k.e('s_lshr_b32 s67, s64, 6')
            k.e('v_and_b32 v5, 15, v1')
            k.e('v_lshlrev_b32 v5, 1, v5')
            for q in range(4): k.e('buffer_load_ushort v%d, v5, s[80:83], s67 offen offset:%d' % (BSV + q, q * 32))
        Pp = g.FR
        for p in range(16):
            k.e('buffer_load_dwordx2 %s, v%d, s[36:39], s%d offen offset:%d sc1' % (vr(Pp + 2 * p, 2), g.L8, 64 + p // 8, (p % 8) * 512))
        k.e('s_waitcnt vmcnt(0)')
        for p in range(1, 16): k.e(pk('add', Pp, Pp, Pp + 2 * p))
        T_ = Pp + 2
        k.e('v_mul_f32 v%d, %s, v%d' % (Pp, hx(1.0 / 1024), Pp))
        k.e('v_mul_f32 v%d, v%d, v%d' % (T_, Pp, Pp))
        k.e('v_mov_b32 v%d, %s' % (T_ + 1, hx(1.0 / 1024)))
        k.e('v_fma_f32 v%d, v%d, v%d, -v%d' % (Pp + 1, Pp + 1, T_ + 1, T_))
        k.e('v_max_f32 v%d, 0, v%d' % (Pp + 1, Pp + 1))
        k.e('v_add_f32 v%d, %s, v%d' % (Pp + 1, hx(1e-5), Pp + 1))
        k.e('v_rsq_f32 v%d, v%d' % (g.R, Pp + 1))
        k.e('s_nop 0')
        k.e('v_mul_f32_e64 v%d, -v%d, v%d' % (g.M, Pp, g.R))
        k.e('v_mov_b32 v%d, v%d' % (g.R + 2, g.R))
        k.e('v_mov_b32 v%d, v%d' % (g.M + 2, g.M))
        k.e('s_nop 1')
        k.e('v_permlane32_swap_b32 v%d, v%d' % (g.R, g.R + 2))
        k.e('v_permlane32_swap_b32 v%d, v%d' % (g.M, g.M + 2))
    def epi(g):
        k = g.k
        U = g.FR; W0 = g.FR + 16; T = g.FR + 32
        def rd_uw(j):
            o = (j // 2) * 512 + (j % 2) * 128
            for q in range(4):
                k.e('ds_read_b128 %s, v%d offset:%d' % (vr(U + 4 * q, 4), g.CA, o + q * 32))
                k.e('ds_read_b128 %s, v%d offset:%d' % (vr(W0 + 4 * q, 4), g.CA, 1024 + o + q * 32))
        rd_uw(0)
        k.e('s_mov_b32 s70, %s' % hx(GC1 * 0.044715)); k.e('s_mov_b32 s71, s70')
        k.e('v_mov_b32 v6, %s' % hx(GC1))
        SS = g.P
        def block(n):
            j, i = n // 2, n % 2
            a = g.acc(i, j)
            g.fix(i, j)
            if i == 0: k.e('s_waitcnt lgkmcnt(0)')
            gelu_ops(k, a, U, W0, T, g.R + 2 * i, g.M + 2 * i, after_t=(lambda: rd_uw(j + 1)) if (i == 1 and j in (0, 2)) else None)
            if j >= 2:
                if not ZF32:
                    for d in range(8): k.e('v_cvt_pk_bf16_f32 v%d, v%d, v%d' % (a + d, a + 2 * d, a + 2 * d + 1))
            else: stat_ops(k, a, SS + 4 * i, SS + 4 * i + 2, j == 0)
        for n in range(4): block(n)
        for i in range(2):
            k.e('v_add_f32 v%d, v%d, v%d' % (SS + 4 * i, SS + 4 * i, SS + 4 * i + 1))
            k.e('v_add_f32 v%d, v%d, v%d' % (SS + 4 * i + 1, SS + 4 * i + 2, SS + 4 * i + 3))
        k.e('s_nop 1')
        k.e('v_permlane32_swap_b32 v%d, v%d' % (SS, SS + 4))
        k.e('v_permlane32_swap_b32 v%d, v%d' % (SS + 1, SS + 5))
        k.e('s_nop 1')
        k.e(pk('add', SS, SS, SS + 4))
        k.e('v_min_u32 v%d, -2, v%d' % (SS, SS))
        k.e('v_min_u32 v%d, -2, v%d' % (SS + 1, SS + 1))
        k.e('buffer_store_dwordx2 %s, v%d, s[40:43], s66 offen sc1' % (vr(SS, 2), g.L8))
        if env('WM', 0): mark(k, 0)
        NB4 = env('NB4', 1)
        g.deferred()
        rd_uw(2)
        k.e('s_barrier')
        for n in range(4, 4 + NB4): block(n)
        if env('WM', 0): mark(k, 1)
        R2 = g.P + 4; ZA = g.P + 12
        k.e("""
        s_lshl_b32 s67, s50, 10
        s_add_u32 s67, s67, %d
        v_add_u32 v7, s67, v%d
        s_lshl_b32 s67, s50, 15
        s_lshl_b32 s68, s51, 11
        s_add_u32 s67, s67, s68
        s_add_u32 s67, s67, 16384
        v_bfe_u32 v5, v1, 4, 1
        v_lshl_add_u32 v%d, v5, 12, s67
        v_bfe_u32 v5, v1, 2, 2
        v_lshl_add_u32 v%d, v5, 8, v%d
        v_and_b32 v5, 2, v5
        v_or_b32 v5, v5, v4
        v_lshl_add_u32 v%d, v5, 6, v%d
        v_and_b32 v5, 3, v1
        v_lshl_add_u32 v%d, v5, 4, v%d
        v_xor_b32 v%d, 128, v%d
        s_barrier
        ds_read_b64 %s, v7
        ds_read_b64 %s, v7 offset:512
        s_waitcnt lgkmcnt(0)
        """ % (g.AUX + 2048, g.L8, ZA, ZA, ZA, ZA, ZA, ZA, ZA, ZA + 1, ZA, vr(R2, 2), vr(R2 + 4, 2)))
        mark(k, 3)
        for i in range(2): k.e('v_mov_b32 v%d, v%d' % (R2 + 4 * i + 2, R2 + 4 * i + 1))
        for i in range(2):
            for j in range(2):
                a = g.acc(i, j)
                for r in range(0, 16, 2): k.e(pk('fma', a + r, a + r, (R2 + 4 * i,), (R2 + 4 * i + 2,)))
                store_xf_tile(g, a, a, g.L16, 32, 's%d' % (60 + i), j * 2048)
        if env('WLE', 2) == 1: k.e('s_barrier')
        for i in range(2):
            for j in range(2):
                for t in range(2): k.e('ds_write_b128 v%d, %s offset:%d' % (ZA + t, vr(g.acc(i, j) + 4 * t, 4), i * 8192 + j * 1024))
        rest = list(range(4 + NB4, 8))
        NBS = env('NBS', 2)
        for n in rest[:NBS]: block(n)
        signal(k, 'C')
        if env('WLE', 2) == 2: k.e('s_barrier')
        for n in rest[NBS:]: block(n)
        k.e('s_waitcnt lgkmcnt(0)')
    sig = 's_lshl_b32 s100, s31, 8\ns_lshl_b32 s101, s30, 4\ns_add_u32 s100, s100, s101\ns_add_u32 s100, s100, %d' % FL_WIN
    wait = ('s_lshl_b32 s100, s30, 8\ns_add_u32 s100, s100, %d' % FL_WO, 64)
    k_gemm(k, c, 16, 14, 2, 2, 7, 128, 256, 2, 2, 1024, 32, 4, ('xf', WS_X1S, 1024), ('w', 'w_in', 7168, (256, [3584, 0, 3584 + 128, 128])),
           pre, nop, epi, aux=aux, auxsz=4 * KB, auxbase=AUX_B, aux_end=aux_end, post=post, selfsig=True, early=early, SOFT=3, DEFER=3,
           dcols=([0, 1], [2, 3]), JG=2, lazyfix=True, side=(28, uw_job), wait=wait, sig=sig, accmap=lambda i, j: (j // 2) * 4 + i * 2 + j % 2)

def k_wsp(k, c):
    def pre(g):
        k = g.k
        g.L16 = alloc(g, 1, 1); g.L2 = alloc(g, 1, 1); g.B = alloc(g, 4); g.Z = alloc(g, 32)
        srd(k, 32, 'ws', WS_Z, ZSZ); srd(k, 36, 'ws', WS_U2, ZSZ); srd(k, 40, 'b_sp')
        k.e('v_lshlrev_b32 v%d, 4, v1' % g.L16)
        k.e('''
        s_lshl_b32 s60, s31, 13
        s_lshl_b32 s61, s51, 12
        s_add_u32 s60, s60, s61
        s_lshl_b32 s61, s30, 2
        s_lshl_b32 s62, s50, 1
        s_add_u32 s61, s61, s62           ; rb0
        s_lshl_b32 s63, s61, 6
        s_mul_i32 s61, s61, %d
        s_add_u32 s60, s60, s61
        s_add_u32 s61, s60, %d
        v_lshlrev_b32 v%d, 1, v3
        ''' % (112 * 1024, 112 * 1024, g.L2))
    def pre2(g):
        k = g.k
        for i in range(2):
            k.e('buffer_load_ushort v%d, v%d, s[40:43], s63 offen offset:%d' % (g.B + 2 * i, g.L2, i * 64))
        for i in range(2):
            for j in range(2):
                for t in range(2):
                    k.e('buffer_load_dwordx4 %s, v%d, s[32:35], s%d offen offset:%d sc1' % (vr(g.Z + 16 * i + 8 * j + 4 * t, 4), g.L16, 60 + i, (2 * j + t) * 1024))
    def epi(g):
        k = g.k
        T = g.FR
        k.e('s_waitcnt vmcnt(0)')
        for i in range(2): k.e('v_lshlrev_b32 v%d, 16, v%d' % (g.B + 2 * i, g.B + 2 * i))
        k.e('s_nop 7')
        for j in range(2):
            for i in range(2):
                a = g.acc(i, j); z = g.Z + 16 * i + 8 * j
                for d in range(8): unpack(k, T + 2 * d, T + 2 * d + 1, z + d)
                for d in range(8): k.e(pk('add', a + 2 * d, a + 2 * d, (g.B + 2 * i,)))
                for d in range(8): k.e(pk('mul', a + 2 * d, a + 2 * d, T + 2 * d))
                store_xf_tile(g, a, z, g.L16, 36, 's%d' % (60 + i), j * 2048)
    KZ = c.prev == 'win' and env('KEEPZ', 1)
    def preK(g):
        k = g.k
        g.L16 = alloc(g, 1, 1); g.L2 = alloc(g, 1, 1); g.B = alloc(g, 2, 2)
        srd(k, 36, 'ws', WS_U2, ZSZ); srd(k, 40, 'b_sp')
        k.e('v_lshlrev_b32 v%d, 4, v1' % g.L16)
        k.e('''
        s_lshl_b32 s60, s31, 13
        s_lshl_b32 s61, s30, 2
        s_add_u32 s61, s61, s46           ; rb32
        s_lshl_b32 s63, s61, 6
        s_mul_i32 s61, s61, %d
        s_add_u32 s60, s60, s61
        s_add_u32 s61, s60, 4096
        v_lshlrev_b32 v%d, 1, v3
        ''' % (112 * 1024, g.L2))
    def pre2K(g):
        g.k.e('buffer_load_ushort v%d, v%d, s[40:43], s63 offen' % (g.B, g.L2))
    def epiK(g):
        k = g.k
        T = g.FR
        k.e('s_waitcnt vmcnt(0)')
        k.e('v_lshlrev_b32 v%d, 16, v%d' % (g.B, g.B))
        for j in range(4):
            a = g.acc(0, j); z = ZKEEP + 8 * j
            for d in range(8): unpack(k, T + 2 * d, T + 2 * d + 1, z + d)
            for d in range(8): k.e(pk('add', a + 2 * d, a + 2 * d, (g.B,)))
            for d in range(8): k.e(pk('mul', a + 2 * d, a + 2 * d, T + 2 * d))
            store_xf_tile(g, a, z, g.L16, 36, 's%d' % (60 + j // 2), (j % 2) * 2048)
    sig = 's_lshl_b32 s100, s30, 8\ns_lshl_b32 s101, s31, 4\ns_add_u32 s100, s100, s101\ns_add_u32 s100, s100, %d' % FL_WSP
    wait = ('s_lshl_b32 s100, s31, 8\ns_add_u32 s100, s100, %d' % FL_WIN, 64)
    def pre22(g):
        k = g.k
        g.L16 = alloc(g, 1, 1); g.L2 = alloc(g, 1, 1); g.B = alloc(g, 4)
        srd(k, 36, 'ws', WS_U2, ZSZ); srd(k, 40, 'b_sp')
        k.e('v_lshlrev_b32 v%d, 4, v1' % g.L16)
        k.e('''
        s_lshl_b32 s60, s31, 13
        s_lshl_b32 s61, s51, 12
        s_add_u32 s60, s60, s61
        s_lshl_b32 s61, s30, 2
        s_lshl_b32 s62, s50, 1
        s_add_u32 s61, s61, s62           ; rb0
        s_lshl_b32 s63, s61, 6
        s_mul_i32 s61, s61, %d
        s_add_u32 s60, s60, s61
        s_add_u32 s61, s60, %d
        v_lshlrev_b32 v%d, 1, v3
        ''' % (112 * 1024, 112 * 1024, g.L2))
    def pre22f(g):
        pre22(g)
        k = g.k
        for q in range(4): k.e('v_lshlrev_b32 v%d, 16, v%d' % (BSV + q, BSV + q))
        for i in range(2):
            for j in range(2):
                for r in range(16): k.e('v_mov_b32 v%d, v%d' % (g.acc(i, j) + r, BSV + 2 * i + (r // 4) % 2))
    def epi22f(g):
        k = g.k
        for j in range(2):
            for i in range(2):
                a = g.acc(i, j); z = ZKEEP + 16 * (2 * i + j)
                g.fix(i, j)
                k.e('s_nop 0')
                for d in range(8): k.e(pk('mul', a + 2 * d, a + 2 * d, z + 2 * d))
                store_xf_tile(g, a, a, g.L16, 36, 's%d' % (60 + i), j * 2048)
    def pre222(g):
        for i in range(2): g.k.e('buffer_load_ushort v%d, v%d, s[40:43], s63 offen offset:%d' % (g.B + 2 * i, g.L2, i * 64))
    def epi22(g):
        k = g.k
        T = g.FR
        k.e('s_waitcnt vmcnt(0)')
        for i in range(2): k.e('v_lshlrev_b32 v%d, 16, v%d' % (g.B + 2 * i, g.B + 2 * i))
        for j in range(2):
            for i in range(2):
                a = g.acc(i, j); z = ZKEEP + 16 * (2 * i + j)
                for d in range(8): unpack(k, T + 2 * d, T + 2 * d + 1, z + d)
                for d in range(8): k.e(pk('add', a + 2 * d, a + 2 * d, (g.B + 2 * i,)))
                for d in range(8): k.e(pk('mul', a + 2 * d, a + 2 * d, T + 2 * d))
                store_xf_tile(g, a, z, g.L16, 36, 's%d' % (60 + i), j * 2048)
    if W22 and ZF32: k_gemm(k, c, 16, 14, 2, 2, 7, 128, 128, 2, 2, 2048, 64, 3, ('rm', 'w_sp', 4096), ('z', WS_Z2N, 1792), pre22f, nop, epi22f, pf='w_out', wait=wait, sig=sig, dep='Y', GU=2, RWD=2, frbase=ZKEEP + 64, own='s_lshl_b32 s68, s30, 1', cinit=True, lazyfix=True)
    elif W22: k_gemm(k, c, 16, 14, 2, 2, 7, 128, 128, 2, 2, 2048, 64, 3, ('rm', 'w_sp', 4096), ('z', WS_Z2N, 1792), pre22, pre222, epi22, pf='w_out', wait=wait, sig=sig, dep='Y', GU=2, RWD=2, frbase=ZKEEP + 64, own='s_lshl_b32 s68, s30, 1')
    elif KZ: k_gemm(k, c, 16, 14, 2, 2, 7, 128, 128, 2 if env('H22', 0) else 4, 2 if env('H22', 0) else 1, 2048, 64, 3, ('rm', 'w_sp', 4096), ('z', WS_Z2N, 1792), preK, pre2K, epiK, pf='w_out', wait=wait, sig=sig, dep='Y', GU=2, RWD=2, frbase=ZKEEP + 32, own='s_lshl_b32 s68, s30, 1')
    else: k_gemm(k, c, 16, 14, 2, 2, 7, 128, 128, 2, 2, 2048, 64, 3, ('rm', 'w_sp', 4096), ('z', WS_Z2N, 1792), pre, pre2, epi, pf='w_out', wait=wait, sig=sig, dep='Y', GU=2, RWD=2, own='s_lshl_b32 s68, s30, 1')

def k_attn(k, c):
    NS = 4; STG = 32768; NST = 8
    phase_begin(k, c)
    SA, SB, O, NEGM = 8, 24, 40, 56
    L, ONES, Q, KF, VF, P = 72, 76, 80, 88, 96, 104
    A0 = 112; AC = 113; AO = 114; M = 115; T = 116; T2 = 117; PFA = 118; MA = 119; PFD = 120; MT = 124
    assert c.nxt == 'wo'
    k.e("""
    v_and_b32 v1, 63, v0
    s_mov_b32 s46, s3
    s_and_b32 s47, s2, 7
    s_lshr_b32 s48, s2, 3
    s_lshl_b32 s30, s47, 2
    s_lshr_b32 s49, s48, 3
    s_add_u32 s30, s30, s49            ; head
    s_and_b32 s31, s48, 7              ; q block (256 rows)
    v_lshlrev_b32 v%d, 4, v1
    s_lshl_b32 s50, s31, 3
    s_add_u32 s50, s50, s46            ; rb of this wave's queries
    s_lshl_b32 s51, s30, 6
    s_add_u32 s51, s51, s50
    s_lshl_b32 s51, s51, 11            ; Q offset
    s_lshl_b32 s52, s30, 18            ; KV head base
    s_lshl_b32 s53, s46, 12            ; wave part (4KB = one tile)
    s_lshl_b32 s62, s2, 13
    v_lshl_add_u32 v%d, v0, 4, s62     ; prefetch offset wg*8K + tid*16
    s_mov_b32 s62, %d
    s_waitcnt lgkmcnt(0)
    """ % (A0, PFA, 0x40000000 if env('PFOFF', 0) else 0))
    mark(k, 0)
    srd(k, 36, 'ws', WS_KV, 256 * KB, soff='s52'); srd(k, 32, 'ws', WS_Q, 4 * MB)
    set_flag(k, 's_lshl_b32 s100, s31, 8\ns_lshl_b32 s101, s30, 2\ns_add_u32 s100, s100, s101\ns_add_u32 s100, s100, %d' % FL_ATT)
    handoff(k, 's_lshr_b32 s100, s30, 1\ns_lshl_b32 s100, s100, 8\ns_add_u32 s100, s100, %d' % FL_QKV, 64, role='A')
    def dma(slot_expr):
        return ['s_add_u32 m0, s53, %s' % slot_expr] + \
               ['buffer_load_dwordx4 v%d, s[36:39], s56 offen offset:%d sc1 lds' % (A0, q * 1024) for q in range(4)] + \
               ['s_add_u32 s56, s56, %d' % STG]
    def pfl(n): return 'buffer_load_dwordx4 %s, v%d, %s, s62 offen' % (vr(PFD, 4), PFA, sr(n))
    def emit_dma(slot_expr):
        d = dma(slot_expr); k.e(d[0]); k.e('s_nop 0')
        for x in d[1:]: k.e(x)
    AST = env('AST', 1)
    if AST:
        k.e('s_lshl_b32 s56, s46, 10')
        k.e('s_mov_b32 m0, s56')
        k.e('s_mul_i32 s58, s46, 3072')
        k.e('buffer_load_dwordx4 v%d, s[36:39], s56 offen sc1 lds' % A0)
    else:
        k.e('s_mov_b32 s56, s53')
        emit_dma('0')
    k.e('buffer_load_dwordx4 %s, v%d, s[32:35], s51 offen sc1' % (vr(Q, 4), A0))
    k.e('buffer_load_dwordx4 %s, v%d, s[32:35], s51 offen offset:1024 sc1' % (vr(Q + 4, 4), A0))
    if AST:
        k.e('s_add_u32 s56, s58, 8192')
        k.e('s_mov_b32 m0, s56')
        k.e('s_nop 0')
        for q in range(3): k.e('buffer_load_dwordx4 v%d, s[36:39], s56 offen offset:%d sc1 lds' % (A0, q * 1024))
        k.e('s_add_u32 s56, s53, %d' % STG)
        emit_dma(str(STG))
    srd(k, 64, 'w_in'); srd(k, 68, 'w_sp'); srd(k, 32, 'wo')
    srd(k, 40, 'ws', WS_O, 4 * MB)
    k.e("""
    s_lshl_b32 s54, s50, 16
    s_lshl_b32 s55, s30, 11
    s_add_u32 s54, s54, s55            ; O offset
    v_and_b32 v3, 3, v1
    v_bfe_u32 v4, v1, 2, 1
    v_bfe_u32 v5, v1, 4, 1
    v_xor_b32 v4, v4, v5
    v_or_b32 v3, v3, v4
    v_cmp_eq_u32 vcc, 0, v3
    v_mov_b32 v4, 0x3f803f80
    s_nop 1
    v_cndmask_b32 v%d, 0, v4, vcc
    v_mov_b32 v%d, v%d
    v_mov_b32 v%d, v%d
    v_mov_b32 v%d, v%d
    """ % (ONES, ONES + 1, ONES, ONES + 2, ONES, ONES + 3, ONES))
    def adr(t): return (AC if t < 16 else AO), (t % 16) * 4096
    def rdK(t):
        a, o = adr(t)
        return ['ds_read_b128 %s, v%d offset:%d' % (vr(KF, 4), a, o), 'ds_read_b128 %s, v%d offset:%d' % (vr(KF + 4, 4), a, o + 1024)]
    def rdV(t):
        a, o = adr(t)
        return ['ds_read_b128 %s, v%d offset:%d' % (vr(VF, 4), a, o + 2048), 'ds_read_b128 %s, v%d offset:%d' % (vr(VF + 4, 4), a, o + 3072)]
    def qk(S, c):
        return ['v_mfma_f32_32x32x16_bf16 %s, %s, %s, %s' % (vr(S, 16), vr(KF, 4), vr(Q, 4), c),
                'v_mfma_f32_32x32x16_bf16 %s, %s, %s, %s' % (vr(S, 16), vr(KF + 4, 4), vr(Q + 4, 4), vr(S, 16))]
    def maxtile(S, first):
        st = 0
        if first:
            k.e('v_max3_f32 v%d, v%d, v%d, v%d' % (M, S, S + 1, S + 2))
            k.e('v_max_f32 v%d, v%d, v%d' % (M, M, S + 3))
            st = 4
        for r in range(st, 16, 2): k.e('v_max3_f32 v%d, v%d, v%d, v%d' % (M, M, S + r, S + r + 1))
    def set_negm(bias):
        k.e('v_mov_b32 v%d, v%d' % (T, M))
        k.e('s_nop 1')
        k.e('v_permlane32_swap_b32 v%d, v%d' % (M, T))
        k.e('s_nop 1')
        k.e('v_max_f32 v%d, v%d, v%d' % (M, M, T))
        k.e('v_sub_f32 v%d, %s, v%d' % (NEGM, hx(-bias), M))
        for r in range(1, 16): k.e('v_mov_b32 v%d, v%d' % (NEGM + r, NEGM))
    def zero_state():
        for r in range(16): k.e('v_mov_b32 v%d, 0' % (O + r))
        for r in range(4):
            k.e('v_mov_b32 v%d, 0' % (L + r))
            k.e('v_mov_b32 v%d, 0' % (P + 4 + r))
            k.e('v_mov_b32 v%d, 0' % (VF + 4 + r))
        k.e('v_mov_b32 v%d, v%d' % (AC, A0))
        k.e('v_add_u32 v%d, 0x10000, v%d' % (AO, A0))
        k.e('s_mov_b32 s57, 0')
    zero_state()
    if not MP0: srd(k, 80, 'ws', 0, 256 * KB)
    if not MP0: k.e("""
    s_and_b32 s49, s2, 3               ; k quarter
    s_lshl_b32 s49, s49, 3
    s_add_u32 s49, s49, s46            ; 32-row group
    s_mul_i32 s60, s49, %d
    s_lshr_b32 s63, s2, 2              ; col block
    s_lshl_b32 s63, s63, 7
    s_add_u32 s60, s60, s63
    s_add_u32 s60, s60, 4096
    s_add_u32 s61, s60, 12288
    s_and_b32 s49, s2, 3
    s_lshl_b32 s49, s49, 2
    s_and_b32 s63, s46, 3
    s_add_u32 s49, s49, s63
    s_lshl_b32 s49, s49, 8             ; silu offset of row groups 2(w&3), +1
    s_add_u32 s49, s49, %d
    v_lshrrev_b32 v%d, 3, v1
    v_mul_u32_u24 v%d, %d, v%d
    v_and_b32 v%d, 7, v1
    v_lshl_add_u32 v%d, v%d, 4, v%d
    v_lshlrev_b32 v%d, 4, v%d
    """ % (32 * 12288, WS_SC, MT, MA, 4 * 12288, MT, MT + 1, MA, MT + 1, MA, MT, MT))
    def mld(j): return ['s_add_u32 m0, s53, %d' % (AUX_A + j * 1024), 'buffer_load_dwordx4 v%d, s[80:83], s%d offen lds' % (MA, (60, 61, 63, 49)[j])]
    k.e('s_waitcnt vmcnt(%d)' % (7 if AST else 0))
    k.e('s_barrier')
    mark(k, 1)
    for r in rdK(1): k.e(r)
    k.e('s_waitcnt lgkmcnt(0)')
    for m in qk(SB, '0'): k.e(m)
    for r in rdK(0): k.e(r)
    k.e('s_waitcnt lgkmcnt(0)')
    for m in qk(SA, '0'): k.e(m)
    def extras():
        if MP0: return
        k.e(pfl(32))
        k.e('buffer_load_dwordx4 %s, v%d, s[80:83], s49 offen' % (vr(MSV, 4), MT))
        k.e('buffer_load_dwordx4 %s, v%d, s[80:83], s49 offen offset:128' % (vr(MSV + 4, 4), MT))
        srd(k, 80, 'w_mod')
        k.e('s_mov_b32 s49, 0x40000000')
        k.e('s_mov_b32 s63, 0x40000000')
    if AST: k.e('s_nop 7')
    else:
        emit_dma(str(STG)); extras()
    maxtile(SB, True)
    maxtile(SA, False)
    set_negm(40.0)
    if AST:
        k.e('s_waitcnt vmcnt(4)')
        k.e('s_barrier')
        extras()
    mark(k, 2)
    if env('APRIO', 0):
        k.e('s_cmp_ge_u32 s46, 4')
        k.e('s_cbranch_scc0 L_attn_noprio')
        k.e('s_setprio 1')
        k.label('L_attn_noprio')
    k.e('s_mov_b32 s59, %d' % (NST // 2))
    k.e('s_nop 0')
    for m in qk(SA, vr(NEGM, 16)): k.e(m)
    k.e(rdK(1)[0])
    k.e('ds_read_b32 v%d, v%d' % (T, A0))
    k.e(rdK(1)[1])
    k.e(rdV(0)[0])
    k.e('s_nop 7')
    lp = 'L_attn_loop'
    def pv(h): return 'v_mfma_f32_32x32x16_bf16 %s, %s, %s, %s' % (vr(O, 16), vr(VF + 4 * h, 4), vr(P + 4 * h, 4), vr(O, 16))
    def ls(h): return 'v_mfma_f32_16x16x32_bf16 %s, %s, %s, %s' % (vr(L, 4), vr(ONES, 4), vr(P + 4 * h, 4), vr(L, 4))
    def iteration(nsoft, pat0):
        for t in range(16):
            cur, nxt = (SA, SB) if t % 2 == 0 else (SB, SA)
            m_qk = qk(nxt, vr(NEGM, 16))
            kn = rdK(t + 2); v0n = rdV(t + 1)[0]; v1n = rdV(t)[1]
            ex = ['v_exp_f32 v%d, v%d' % (cur + r, cur + r) for r in range(16)]
            cv = ['v_cvt_pk_bf16_f32 v%d, v%d, v%d' % (P + d, cur + 2 * d, cur + 2 * d + 1) for d in range(8)]
            W = 's_waitcnt lgkmcnt(2)'
            head = []; xs = []
            if t % 8 == 6: head = ['s_waitcnt vmcnt(%d)' % (9 if not MP0 else (6 if t == 6 else 7)), 's_barrier']
            if t == 14 and not c.last and not nsoft: head = ['s_cmp_eq_u32 s59, 1', 's_cbranch_scc0 L_attn_nd', 's_waitcnt vmcnt(0)', 'L_attn_nd:'] + head
            d = dma('s58')
            if t % 8 == 0: xs = ['s_xor_b32 s58, s57, 0x%x' % (0x10000 if t == 0 else 0x18000), d[0], d[1]]
            elif t % 8 < 3: xs = [d[1 + t % 8]]
            elif t % 8 == 3: xs = [d[4], d[5]]
            elif t == 4: xs = [pfl(64)]
            elif t == 5: xs = [pfl(68)]
            elif MP0 and t == 7: xs = [pfl(32)]
            elif MP0 and t == 12: xs = ['s_add_u32 s62, s62, %d' % (2 * MB)]
            elif MP0 and t == 13: xs = []
            elif MP0 and t == 15: xs = ['s_xor_b32 s57, s57, 0x10000']
            elif t == 7: xs = mld(0)
            elif t == 12: xs = ['s_add_u32 s62, s62, %d' % (2 * MB)] + mld(2)
            elif t == 13: xs = mld(1)
            elif t == 15: xs = ['s_xor_b32 s57, s57, 0x10000'] + mld(3) + ['s_add_u32 s63, s60, %d' % (2 * 12288), 's_add_u32 s49, s60, %d' % (3 * 12288)]
            tail = ['v_swap_b32 v%d, v%d' % (AC, AO), 's_sub_u32 s59, s59, 1', 's_cmp_lg_u32 s59, 0'] if t == 15 else []
            pat = pat0 if t < nsoft else os.environ.get('APAT', 'eeeQeeePeeccLcc')
            body = []
            for hh in range(2):
                ei = 8 * hh; ci = 4 * hh
                for ch in pat:
                    if ch == 'e': body.append(ex[ei]); ei += 1
                    elif ch == 'c': body.append(cv[ci]); ci += 1
                    elif ch == 'Q': body += [W, m_qk[hh], kn[hh]]
                    elif ch == 'P': body += [pv(1 - hh), v1n if hh == 0 else v0n]
                    elif ch == 'L': body.append(ls(1 - hh))
                assert ei == 8 * hh + 8 and ci == 4 * hh + 4
            if tail:
                last_ds = max(i for i, x in enumerate(body) if x.startswith('ds_') or x.startswith('v_exp'))
                body = body[:last_ds + 1] + tail + body[last_ds + 1:]
            iq = max(i for i, x in enumerate(body) if x == m_qk[1])
            first_e = min(i for i, x in enumerate(body) if x.startswith('v_exp'))
            assert len(body) - 1 - iq + first_e >= 12, 'qk->exp distance'
            seq = list(head)
            for x in body:
                seq.append(x)
                if xs and x.startswith('v_exp'): seq.append(xs.pop(0))
            assert not xs
            AX = os.environ.get('AX', '')
            if 'p' in AX: seq = [x for x in seq if 's62 offen' not in x]
            for x in seq: k.e(x)
    if env('ASOFT', 8): iteration(env('ASOFT', 8), os.environ.get('APAT0', 'eQPLeeeeeeecccc'))
    k.label(lp)
    iteration(0, None)
    k.e('s_cbranch_scc1 %s' % lp)
    k.label('L_attn_epi')
    mark(k, 3)
    k.e('s_waitcnt lgkmcnt(0)')
    k.e(pv(1)); k.e(ls(1))
    k.e('s_nop 15')
    lstore = 'L_attn_store'; lsafe = 'L_attn_safe'
    k.e('v_max3_f32 v%d, |v%d|, |v%d|, |v%d|' % (T, O, O + 1, L))
    for r in range(2, 16, 2): k.e('v_max3_f32 v%d, |v%d|, |v%d|, v%d' % (T, O + r, O + r + 1, T))
    k.e('v_mul_f32 v%d, 0, v%d' % (T2, L))
    for r in range(16): k.e('v_fma_f32 v%d, 0, v%d, v%d' % (T2, O + r, T2))
    k.e('v_add_f32 v%d, v%d, v%d' % (T, T, T2))
    k.e('v_mov_b32 v3, %s' % hx(2.0 ** 120))
    k.e('v_cmp_nlt_f32 vcc, v%d, v3' % T)
    k.e('s_nop 4')
    k.e('s_cbranch_vccnz %s' % lsafe)
    k.label(lstore)
    k.e('v_rcp_f32 v%d, v%d' % (T, L))
    k.e('s_nop 0')
    for r in range(16): k.e('v_mul_f32 v%d, v%d, v%d' % (O + r, O + r, T))
    for d in range(8): k.e('v_cvt_pk_bf16_f32 v%d, v%d, v%d' % (P + d, O + 2 * d, O + 2 * d + 1))
    k.e('buffer_store_dwordx4 %s, v%d, s[40:43], s54 offen%s' % (vr(P, 4), A0, WT))
    k.e('buffer_store_dwordx4 %s, v%d, s[40:43], s54 offen offset:1024%s' % (vr(P + 4, 4), A0, WT))
    signal(k, 'S')
    endpgm(k)
    k.label(lsafe)
    def gl(dst, off): return 'buffer_load_dwordx4 %s, v%d, s[36:39], s56 offen offset:%d sc1' % (vr(dst, 4), A0, off)
    k.e('s_waitcnt vmcnt(0)')
    k.e('s_mov_b32 s56, 0')
    k.e('v_mov_b32 v%d, 0xff800000' % M)
    k.label(lsafe + '1')
    k.e(gl(KF, 0)); k.e(gl(KF + 4, 1024))
    k.e('s_waitcnt vmcnt(0)')
    for m in qk(SA, '0'): k.e(m)
    k.e('s_nop 15')
    maxtile(SA, False)
    k.e('s_add_u32 s56, s56, 4096')
    k.e('s_cmp_lt_u32 s56, %d' % (256 * KB))
    k.e('s_cbranch_scc1 %s1' % lsafe)
    set_negm(0.0)
    zero_state()
    k.e('s_mov_b32 s56, 0')
    k.label(lsafe + '2')
    k.e(gl(KF, 0)); k.e(gl(KF + 4, 1024)); k.e(gl(VF, 2048)); k.e(gl(VF + 4, 3072))
    k.e('s_waitcnt vmcnt(0)')
    for m in qk(SA, vr(NEGM, 16)): k.e(m)
    k.e('s_nop 15')
    for r in range(16): k.e('v_exp_f32 v%d, v%d' % (SA + r, SA + r))
    k.e('s_nop 0')
    for d in range(8): k.e('v_cvt_pk_bf16_f32 v%d, v%d, v%d' % (P + d, SA + 2 * d, SA + 2 * d + 1))
    k.e('s_nop 1')
    k.e(pv(0)); k.e(ls(0)); k.e(pv(1)); k.e(ls(1))
    k.e('s_add_u32 s56, s56, 4096')
    k.e('s_nop 7')
    k.e('s_cmp_lt_u32 s56, %d' % (256 * KB))
    k.e('s_cbranch_scc1 %s2' % lsafe)
    k.e('s_nop 15')
    k.e('s_branch %s' % lstore)
    k.need(MSV + 8, 160 * KB)

def k_attn2(k, c):
    phase_begin(k, c)
    assert c.prev == 'qkv' and c.nxt == 'wo' and not (MP0 and AOWN != 3)
    S2 = (8, 24); O2 = (40, 56); N2 = (72, 88); L2 = (104, 108); Q2 = (112, 120)
    ONES, KF, VF, P = 128, 132, 140, 148
    A0 = 156; AR = 157; M = 158; T = 159; T2 = 160; PFA = 161; MA = 162; MT = 164; PFD = 168
    k.e("""
    v_and_b32 v1, 63, v0
    s_mov_b32 s46, s3
    s_and_b32 s47, s3, 1               ; wn
    s_bfe_u32 s48, s3, 0x10001         ; wm
    s_lshr_b32 s49, s3, 2              ; kh
    s_lshl_b32 s50, s31, 1
    s_add_u32 s50, s50, s47            ; head
    s_lshl_b32 s52, s50, 18
    s_lshl_b32 s51, s49, 17
    s_add_u32 s51, s51, s52            ; stream base in KV
    s_lshl_b32 s55, s49, 1
    s_add_u32 s55, s55, s47
    s_lshl_b32 s55, s55, 15            ; stream ring base in LDS
    s_lshl_b32 s56, s48, 12            ; next global offset: own tile of stage 0
    s_add_u32 s57, s55, s56            ; LDS address of own tile in slot 0
    s_lshl_b32 s53, s3, 12             ; wave*4KB (mod slice staging)
    v_lshlrev_b32 v%d, 4, v1
    v_add_u32 v%d, s55, v%d
    s_lshl_b32 s54, s30, 2
    s_lshl_b32 s58, s48, 1
    s_add_u32 s54, s54, s58
    s_add_u32 s54, s54, s49            ; rb of the tile this wave finalises
    s_lshl_b32 s54, s54, 16
    s_lshl_b32 s58, s50, 11
    s_add_u32 s54, s54, s58            ; O offset
    s_lshl_b32 s62, s2, 13
    v_lshl_add_u32 v%d, v0, 4, s62     ; prefetch offset wg*8K + tid*16
    s_mov_b32 s62, 0
    v_and_b32 v3, 3, v1
    v_bfe_u32 v4, v1, 2, 1
    v_bfe_u32 v5, v1, 4, 1
    v_xor_b32 v4, v4, v5
    v_or_b32 v3, v3, v4
    v_cmp_eq_u32 vcc, 0, v3
    v_mov_b32 v4, 0x3f803f80
    s_nop 1
    v_cndmask_b32 v%d, 0, v4, vcc
    v_mov_b32 v%d, v%d
    v_mov_b32 v%d, v%d
    v_mov_b32 v%d, v%d
    """ % (A0, AR, A0, PFA, ONES, ONES + 1, ONES, ONES + 2, ONES, ONES + 3, ONES))
    mark(k, 0)
    if AOWN:
        srd(k, 36, 'ws', WS_KV, 256 * KB, soff='s52')
        k.e('''
        s_mov_b32 s86, s87                 ; qkv flag the compute waves still have to publish
        s_lshl_b32 s51, s30, 14
        s_add_u32 s51, s51, s56            ; offset of the own pairs (skipped in the stream)
        s_mul_i32 s58, s49, %d
        s_add_u32 s56, s56, s58
        s_cmp_ge_u32 s56, s51
        s_cselect_b32 s58, 16384, 0
        s_add_u32 s56, s56, s58
        ''' % (15 * 8192))
    else: srd(k, 36, 'ws', WS_KV, 128 * KB, soff='s51')
    srd(k, 80, 'ws', 0, 256 * KB)
    srd(k, 64, 'w_in'); srd(k, 68, 'w_sp'); srd(k, 32, 'wo')
    for r in range(16):
        k.e('v_mov_b32 v%d, 0' % (O2[0] + r)); k.e('v_mov_b32 v%d, 0' % (O2[1] + r))
    for r in range(4):
        for b in (L2[0], L2[1], P + 4, VF + 4): k.e('v_mov_b32 v%d, 0' % (b + r))
    k.e("""
    s_and_b32 s58, s2, 3               ; k quarter
    s_lshl_b32 s58, s58, 3
    s_add_u32 s58, s58, s46            ; 32-row group
    s_mul_i32 s60, s58, %d
    s_lshr_b32 s63, s2, 2              ; col block
    s_lshl_b32 s63, s63, 7
    s_add_u32 s60, s60, s63
    s_add_u32 s60, s60, 4096
    s_add_u32 s61, s60, 12288
    s_and_b32 s44, s2, 3
    s_lshl_b32 s44, s44, 2
    s_and_b32 s63, s46, 3
    s_add_u32 s44, s44, s63
    s_lshl_b32 s44, s44, 8             ; silu offset of row groups 2(w&3), +1
    s_add_u32 s44, s44, %d
    v_lshrrev_b32 v%d, 3, v1
    v_mul_u32_u24 v%d, %d, v%d
    v_and_b32 v%d, 7, v1
    v_lshl_add_u32 v%d, v%d, 4, v%d
    v_lshlrev_b32 v%d, 4, v%d
    ; Q / stand-in exchange area: tile A of this wave = tile kh
    s_and_b32 s58, s3, 3
    s_mul_i32 s58, s58, 5120
    s_add_u32 s58, s58, %d
    s_lshl_b32 s63, s49, 11
    s_add_u32 s63, s63, s58
    v_add_u32 v2, s63, v%d             ; Q of tile kh
    v_xor_b32 v3, 1, v2
    s_xor_b32 s63, s49, 1
    s_lshl_b32 s63, s63, 11
    s_add_u32 s63, s63, s58
    v_add_u32 v3, s63, v%d             ; Q of the other tile
    s_lshl_b32 s63, s49, 2
    s_add_u32 s63, s63, s58
    v_lshl_add_u32 v4, v1, 3, s63
    v_xor_b32 v5, 4, v4
    """ % (32 * 12288, WS_SC, MT, MA, 4 * 12288, MT, MT + 1, MA, MT + 1, MA, MT, MT, AUX_A, A0, A0))
    set_flag(k, 's_lshl_b32 s100, s30, 8\ns_lshl_b32 s101, s31, 2\ns_add_u32 s100, s100, s101\ns_add_u32 s100, s100, %d' % FL_ATT)
    def hand(): handoff(k, 's_lshl_b32 s100, s31, 8\ns_add_u32 s100, s100, %d' % FL_QKV, 64, role='A')
    if AOWN: k.e('s_barrier')
    else: hand()
    def dma(slot):
        return ['s_add_u32 m0, s57, %d' % (slot * 8192)] + \
               ['buffer_load_dwordx4 v%d, s[36:39], s56 offen offset:%d sc1 lds' % (A0, q * 1024) for q in range(4)] + \
               ['s_add_u32 s56, s56, 8192' + ('\ns_cmp_eq_u32 s56, s51\ns_cselect_b32 s58, 16384, 0\ns_add_u32 s56, s56, s58' if AOWN else '')]
    def emit_dma(slot):
        d = dma(slot); k.e(d[0]); k.e('s_nop 0')
        for x in d[1:]: k.e(x)
    def pfl(n): return 'buffer_load_dwordx4 %s, v%d, %s, s62 offen' % (vr(PFD, 4), PFA, sr(n))
    def mld(j): return [] if MP0 else ['s_add_u32 m0, s53, %d' % (AUX_A + j * 1024), 'buffer_load_dwordx4 v%d, s[80:83], s%d offen lds' % (MA, (60, 61, 63, 45)[j])]
    if not AOWN: emit_dma(0); emit_dma(1)
    for q in range(2):
        k.e('ds_read_b128 %s, v%d' % (vr(Q2[q], 4), 2 + q))
        k.e('ds_read_b128 %s, v%d offset:1024' % (vr(Q2[q] + 4, 4), 2 + q))
        k.e('ds_read_b32 v%d, v%d offset:4096' % (N2[q], 4 + q))
    k.e('s_waitcnt lgkmcnt(0)')
    for r in range(1, 16):
        for q in range(2): k.e('v_mov_b32 v%d, v%d' % (N2[q] + r, N2[q]))
    if not AOWN:
        k.e('s_waitcnt vmcnt(4)')
        k.e('s_barrier')
        mark(k, 1)
    def rd(dst, t, part): return 'ds_read_b128 %s, v%d offset:%d' % (vr(dst, 4), AR, (t % 8) * 4096 + part * 1024)
    def qk(q, hh, c0=None):
        S_ = S2[q]
        return 'v_mfma_f32_32x32x16_bf16 %s, %s, %s, %s' % (vr(S_, 16), vr(KF + 4 * hh, 4), vr(Q2[q] + 4 * hh, 4), (c0 or vr(N2[q], 16)) if hh == 0 else vr(S_, 16))
    def pv(q, h): return 'v_mfma_f32_32x32x16_bf16 %s, %s, %s, %s' % (vr(O2[q], 16), vr(VF + 4 * h, 4), vr(P + 4 * h, 4), vr(O2[q], 16))
    def ls(q, h): return 'v_mfma_f32_16x16x32_bf16 %s, %s, %s, %s' % (vr(L2[q], 4), vr(ONES, 4), vr(P + 4 * h, 4), vr(L2[q], 4))
    k.e(rd(KF, 0, 0)); k.e(rd(KF + 4, 0, 1)); k.e(rd(VF, 0, 2))
    def silu_loads():
        if MP0: return
        k.e('buffer_load_dwordx4 %s, v%d, s[80:83], s44 offen sc1' % (vr(MSV, 4), MT))
        k.e('buffer_load_dwordx4 %s, v%d, s[80:83], s44 offen offset:128 sc1' % (vr(MSV + 4, 4), MT))
    def wmod():
        if MP0: return
        srd(k, 80, 'w_mod')
        k.e('s_add_u32 s63, s60, %d' % (2 * 12288))
        k.e('s_add_u32 s45, s60, %d' % (3 * 12288))
    if not AOWN: silu_loads()
    k.e('s_waitcnt lgkmcnt(1)')
    k.e(qk(0, 0)); k.e(qk(0, 1))
    if AOWN: k.e('s_nop 11')
    else:
        emit_dma(2); wmod()
    OD = env('OD', 0) and AOWN == 3
    ool = []
    def late_start():
        if AOWN == 1:
            l = k.newlabel('ls')
            k.e('s_cmp_lt_u32 s3, 4'); k.e('s_cbranch_scc1 %s' % l)
            flag_prep(k)
            k.e('s_and_b32 s100, s3, 3\ns_lshl_b32 s100, s100, 7\ns_add_u32 s100, s100, s86')
            k.e('s_waitcnt vmcnt(0)')
            flag_store(k, 's100')
            k.label(l)
        hand()
        mark(k, 1)
        if OD:
            emit_dma(1); silu_loads(); wmod()
            k.e('''
            s_lshl_b32 s43, s48, 12
            s_add_u32 s43, s43, %d
            s_cmp_ge_u32 s43, s51
            s_cselect_b32 s58, 16384, 0
            s_add_u32 s43, s43, s58
            s_cmp_lt_u32 s3, 4
            s_cselect_b64 vcc, -1, 0
            s_cbranch_scc0 L_attn_np
            s_setprio 1
            L_attn_np:
            ''' % (16 * 8192))
        else:
            emit_dma(1); silu_loads(); emit_dma(2); wmod()
    k.e('s_mov_b32 s59, %d' % (3 if env('LASTB', 1) and not OD else 4))
    mark(k, 2)
    lp = 'L_attn_loop'
    LASTB = env('LASTB', 1) and not OD
    def iteration(first, nsoft, pat0, last=False):
        for u in range(16):
            t = u // 2; q = u % 2; st = u // 4; us = u % 4
            cur = S2[q]
            ex = ['v_exp_f32 v%d, v%d' % (cur + r, cur + r) for r in range(16)]
            cv = ['v_cvt_pk_bf16_f32 v%d, v%d, v%d' % (P + d, cur + 2 * d, cur + 2 * d + 1) for d in range(8)]
            if q == 0:
                Qs = [[qk(1, 0), rd(KF, t + 1, 0)], [qk(1, 1), rd(KF + 4, t + 1, 1)]]
                Ps = [[pv(1, 1), rd(VF + 4, t, 3)], ['WAITV', pv(0, 0)]]
            else:
                Qs = [['s_waitcnt lgkmcnt(0)', qk(0, 0)], [qk(0, 1)]]
                Ps = [[pv(0, 1)], [pv(1, 0), rd(VF, t + 1, 2)]]
            Ls = [ls(1 - q, 1), ls(q, 0)]
            peel = first and AOWN == 4 and u in (2, 3)
            if peel and u == 2:
                Qs = [[qk(1, 0)], [qk(1, 1)]]; Ps = [[pv(1, 1), rd(VF + 4, t, 3)], ['s_waitcnt lgkmcnt(1)', pv(0, 0)]]
            if peel and u == 3:
                Qs = [['s_waitcnt lgkmcnt(0)'], ['s_nop 0']]; Ps = [[pv(0, 1)], [pv(1, 0)]]
            inc = ['s_add_u32 s62, s62, %d' % (2 * MB)]
            NOPF = env('NOPF', 0)
            if first and AOWN: extra = [[], [], mld(0) + [pfl(32)], [pfl(64)], mld(1), mld(2), mld(3), [pfl(68)] + inc]
            elif first: extra = [[], [pfl(32)], mld(0), [pfl(64)], mld(1), mld(2), mld(3), [pfl(68)] + inc]
            else: extra = [[], [], [pfl(64)], [], [], [], [pfl(68)] + inc, []]
            if NOPF: extra = [[y for y in x if 's62' not in y] for x in extra]
            cnt = lambda e: [sum('buffer_load' in y for y in e[2 * i] + e[2 * i + 1]) for i in range(4)]
            nx_ = cnt(extra)
            prevx = ((0 if MP0 else 2) if first else nx_[3]) if st == 0 else nx_[st - 1]
            head = ['s_waitcnt vmcnt(%d)' % (prevx + 4 + nx_[st]), 's_barrier'] if us == 2 else []
            if last and us == 2 and st >= 2: head = (['s_waitcnt vmcnt(%d)' % (prevx + nx_[st])] if st == 2 else []) + ['s_barrier']
            if peel: head = []
            d = dma((st + 3) % 4)
            if OD and us == 2:
                lb = 'L_attn_fd%d_%d' % (first, st)
                d0 = dma((st + 2) % 4)
                d1 = [x.replace('s56', 's43').replace('s57, %d' % (((st + 2) % 4) * 8192), 's57, %d' % (((st + 2) % 4) * 8192 + 65536)) for x in d0]
                nw = 8 + nx_[st] + (2 if first and st == 0 else 0)
                ool.append([lb + ':', d0[0], 's_nop 0'] + d0[1:5] + [d1[0], 's_nop 0'] + d1[1:5] + [d0[5], d1[5], 's_waitcnt vmcnt(%d)' % nw, 's_branch %sr' % lb])
                head = ['s_cbranch_vccnz %s' % lb] + (['s_waitcnt vmcnt(2)'] if first and st == 0 else []) + [lb + 'r:', 's_barrier']
            if (OD or (last and st >= 1)) and us >= 2: xs = []
            elif us == 2: xs = [d[0], d[1], None, None, None, None, None, None, None, d[2]]
            elif us == 3: xs = [d[3], None, None, None, None, None, None, None, d[4], d[5]]
            else: xs = list(extra[2 * st + us])
            pat = pat0 if u < nsoft else os.environ.get('APAT', 'eeeQeeePeeccLcc')
            assert pat.index('Q') < pat.index('P')
            body = []
            for hh in range(2):
                ei = 8 * hh; ci = 4 * hh
                for ch in pat:
                    if ch == 'e': body.append(ex[ei]); ei += 1
                    elif ch == 'c': body.append(cv[ci]); ci += 1
                    elif ch == 'Q': body += Qs[hh]
                    elif ch == 'P': body += Ps[hh]
                    elif ch == 'L': body.append(Ls[hh])
            body = ['s_waitcnt lgkmcnt(3)' if x == 'WAITV' else x for x in body]
            if u == 15 and not last:
                le = max(i for i, x in enumerate(body) if x.startswith('v_exp'))
                body = body[:le + 1] + ['s_sub_u32 s59, s59, 1', 's_cmp_lg_u32 s59, 0'] + body[le + 1:]
            if peel and u == 3:
                body += ['s_waitcnt vmcnt(10)', 's_barrier', rd(KF, 2, 0), rd(KF + 4, 2, 1), rd(VF, 2, 2), 's_waitcnt lgkmcnt(1)', qk(0, 0), qk(0, 1)]
            iq = body.index(qk(1 - q, 1))
            first_e = min(i for i, x in enumerate(body) if x.startswith('v_exp'))
            gap = len(body) - 1 - iq + first_e
            if gap < 12: body.append('s_nop %d' % (11 - gap))
            if first and AOWN and u == (0 if AOWN == 3 else 2): late_start()
            seq = list(head)
            for x in body:
                seq.append(x)
                if xs and x.startswith('v_exp'):
                    y = xs.pop(0)
                    if y: seq.append(y)
            assert not xs
            AX = os.environ.get('AX', '')
            if 'b' in AX: seq = [x for x in seq if x != 's_barrier']
            if 'p' in AX: seq = [x for x in seq if 's62 offen' not in x and 's[80:83]' not in x]
            if 'v' in AX: seq = [x for x in seq if 'buffer_load' not in x]
            if 'd' in AX: seq = [x for x in seq if not x.startswith('ds_read') and 'lgkmcnt' not in x]
            if 'l' in AX: seq = [x for x in seq if '16x16x32' not in x]
            for x in seq: k.e(x)
    iteration(True, env('ASOFT', 8), os.environ.get('APAT0', 'eQPLeeeeeeecccc'))
    k.label(lp)
    iteration(False, 0, None)
    k.e('s_cbranch_scc1 %s' % lp)
    if LASTB:
        iteration(False, 0, None, last=True)
        k.e('s_nop 0')
    k.label('L_attn_epi')
    if 'b' in os.environ.get('AX', ''): k.e('s_barrier')
    mark(k, 3)
    k.e('s_nop 0')
    k.e(pv(1, 1)); k.e(ls(1, 1))
    if LASTB:
        k.e("""
        s_lshl_b32 s58, s48, 13
        s_add_u32 s58, s58, s55
        s_add_u32 s58, s58, 8192
        v_add_u32 v2, s58, v%d
        v_lshl_add_u32 v4, v1, 2, s58
        s_xor_b32 s58, s58, 0x10000
        v_add_u32 v3, s58, v%d
        v_lshl_add_u32 v5, v1, 2, s58
        s_nop 3
        """ % (A0, A0))
    else:
        k.e("""
        s_mul_i32 s58, s3, 5120
        v_add_u32 v2, s58, v%d
        v_lshl_add_u32 v4, v1, 2, s58
        s_xor_b32 s58, s3, 4
        s_mul_i32 s58, s58, 5120
        v_add_u32 v3, s58, v%d
        v_lshl_add_u32 v5, v1, 2, s58
        s_waitcnt vmcnt(0) lgkmcnt(0)
        s_barrier
        s_nop 3
        """ % (A0, A0))
    for r in range(4): k.e('ds_write_b128 v2, %s offset:%d' % (vr(O2[1] + 4 * r, 4), r * 1024))
    k.e('ds_write_b32 v4, v%d offset:4096' % L2[1])
    srd(k, 40, 'ws', WS_O, 4 * MB)
    k.e('s_waitcnt lgkmcnt(0)')
    k.e('s_barrier')
    for r in range(4): k.e('ds_read_b128 %s, v3 offset:%d' % (vr(S2[0] + 4 * r, 4), r * 1024))
    k.e('ds_read_b32 v%d, v5 offset:4096' % T)
    k.e('s_waitcnt lgkmcnt(0)')
    O = O2[0]; L = L2[0]; SA = S2[0]; NEGM = N2[0]
    for r in range(0, 16, 2): k.e(pk('add', O + r, O + r, SA + r))
    k.e('v_add_f32 v%d, v%d, v%d' % (L, L, T))
    lstore = 'L_attn_store'; lsafe = 'L_attn_safe'
    k.e('v_max3_f32 v%d, |v%d|, |v%d|, |v%d|' % (T, O, O + 1, L))
    for r in range(2, 16, 2): k.e('v_max3_f32 v%d, |v%d|, |v%d|, v%d' % (T, O + r, O + r + 1, T))
    k.e('v_mul_f32 v%d, 0, v%d' % (T2, L))
    for r in range(16): k.e('v_fma_f32 v%d, 0, v%d, v%d' % (T2, O + r, T2))
    k.e('v_add_f32 v%d, v%d, v%d' % (T, T, T2))
    k.e('v_mov_b32 v3, %s' % hx(2.0 ** 120))
    k.e('v_cmp_nlt_f32 vcc, v%d, v3' % T)
    k.e('s_nop 4')
    k.e('s_cbranch_vccnz %s' % lsafe)
    k.label(lstore)
    k.e('v_rcp_f32 v%d, v%d' % (T2, L))
    k.e('s_nop 0')
    for r in range(0, 16, 2): k.e(pk('mul', O + r, O + r, (T2,)))
    for d in range(8): k.e('v_cvt_pk_bf16_f32 v%d, v%d, v%d' % (P + d, O + 2 * d, O + 2 * d + 1))
    k.e('buffer_store_dwordx4 %s, v%d, s[40:43], s54 offen%s' % (vr(P, 4), A0, WT))
    k.e('buffer_store_dwordx4 %s, v%d, s[40:43], s54 offen offset:1024%s' % (vr(P + 4, 4), A0, WT))
    signal(k, 'S')
    endpgm(k)
    for blk in ool:
        for x in blk: k.e(x)
    k.label(lsafe)
    srd(k, 36, 'ws', WS_KV, 256 * KB, soff='s52')
    def gl(dst, off): return 'buffer_load_dwordx4 %s, v%d, s[36:39], s56 offen offset:%d sc1' % (vr(dst, 4), A0, off)
    k.e('s_mov_b32 s56, 0')
    k.e('v_mov_b32 v%d, 0xff800000' % M)
    k.label(lsafe + '1')
    k.e(gl(KF, 0)); k.e(gl(KF + 4, 1024))
    k.e('s_waitcnt vmcnt(0)')
    k.e(qk(0, 0, '0')); k.e(qk(0, 1))
    k.e('s_nop 15')
    for r in range(0, 16, 2): k.e('v_max3_f32 v%d, v%d, v%d, v%d' % (M, M, SA + r, SA + r + 1))
    k.e('s_add_u32 s56, s56, 4096')
    k.e('s_cmp_lt_u32 s56, %d' % (256 * KB))
    k.e('s_cbranch_scc1 %s1' % lsafe)
    k.e('v_mov_b32 v%d, v%d' % (T, M))
    k.e('s_nop 1')
    k.e('v_permlane32_swap_b32 v%d, v%d' % (M, T))
    k.e('s_nop 1')
    k.e('v_max_f32 v%d, v%d, v%d' % (M, M, T))
    k.e('v_sub_f32 v%d, 0, v%d' % (NEGM, M))
    for r in range(1, 16): k.e('v_mov_b32 v%d, v%d' % (NEGM + r, NEGM))
    for r in range(16): k.e('v_mov_b32 v%d, 0' % (O + r))
    for r in range(4): k.e('v_mov_b32 v%d, 0' % (L + r))
    k.e('s_mov_b32 s56, 0')
    k.label(lsafe + '2')
    k.e(gl(KF, 0)); k.e(gl(KF + 4, 1024)); k.e(gl(VF, 2048)); k.e(gl(VF + 4, 3072))
    k.e('s_waitcnt vmcnt(0)')
    k.e(qk(0, 0)); k.e(qk(0, 1))
    k.e('s_nop 15')
    for r in range(16): k.e('v_exp_f32 v%d, v%d' % (SA + r, SA + r))
    k.e('s_nop 0')
    for d in range(8): k.e('v_cvt_pk_bf16_f32 v%d, v%d, v%d' % (P + d, SA + 2 * d, SA + 2 * d + 1))
    k.e('s_nop 1')
    k.e(pv(0, 0)); k.e(ls(0, 0)); k.e(pv(0, 1)); k.e(ls(0, 1))
    k.e('s_add_u32 s56, s56, 4096')
    k.e('s_nop 7')
    k.e('s_cmp_lt_u32 s56, %d' % (256 * KB))
    k.e('s_cbranch_scc1 %s2' % lsafe)
    k.e('s_nop 15')
    k.e('s_branch %s' % lstore)
    k.need(MSV + 8, 160 * KB)

PHASES = dict(p0=k_p0, qkv=k_qkv, attn=k_attn2 if AT2 else k_attn,
              wo=lambda k, c: k_proj(k, c, 1024, ('xf', WS_O, 1024), 'wo', False),
              win=k_win2 if W22 else k_win, wsp=k_wsp,
              wout=lambda k, c: k_proj(k, c, 1792, ('xf', WS_U2, 1792), 'w_out', True))
GROUPS = [g.split('+') for g in os.environ.get('GRP', 'p0+qkv+attn+wo+win+wsp+wout').split(',')]
def same_kernel(a, b): return any(a in g_ and b in g_ for g_ in GROUPS)
def build():
    ks = []
    for grp in GROUPS:
        k = Kern(grp[0] if len(grp) == 1 else 'm' + grp[0], 256, 1024 if grp[0] == 'pre' else 512, 0)
        prologue(k)
        for i, ph in enumerate(grp):
            c = Ctx(); c.name = ph; c.first = i == 0; c.last = i == len(grp) - 1; c.nxt = None if c.last else grp[i + 1]; c.prev = grp[i - 1] if i else None
            PHASES[ph](k, c)
        k.label(k.endl)
        k.e('s_endpgm')
        assert k.lds <= 160 * KB
        ks.append(k)
    s = '; adaLN + softmax MHA + gMLP block, generated by gen.py (hand-written generator)\n'
    for k in ks: s += k.launch()
    s += '.amdgcn_target "amdgcn-amd-amdhsa--gfx950"\n.text\n'
    for k in ks: s += k.text()
    s += 'L_text_end:\n    s_endpgm\n'
    s += '.section .rodata,"a"\n'
    for k in ks: s += k.desc()
    if len(ks) == 1 and env('SINGLE', 0):
        s = s.replace('; @launch kernel=%s_kernel ' % ks[0].name, '; @launch ')
        s = s.replace(ks[0].name + '_kernel', 'adaLN_cond__softmax_full_mha__mixer_gmlp__prompt_kernel')
    return s

PROMO = ('v_exp_f32', 'v_rcp_f32', 'v_mov_b32', 'v_add_f32', 'v_mul_f32', 'v_sub_f32', 'v_max_f32', 'v_lshlrev_b32', 'v_lshrrev_b32',
         'v_and_b32', 'v_xor_b32', 'v_or_b32', 'v_add_u32', 'v_fmac_f32', 'v_min_u32', 'v_max_u32', 'v_rsq_f32', 'v_sqrt_f32')
def align8(text):
    import subprocess, tempfile, re
    lines = text.split('\n')
    i0 = next(i for i, l in enumerate(lines) if l.endswith('_kernel:')); i1 = next(i for i, l in enumerate(lines) if l.startswith('.section'))
    idx = [i for i in range(i0, i1) if lines[i].strip() and not lines[i].strip().startswith((';', '.')) and not lines[i].strip().endswith(':')]
    with tempfile.TemporaryDirectory() as d:
        open(d + '/a.s', 'w').write(text)
        subprocess.check_call(['clang', '-x', 'assembler', '-target', 'amdgcn-amd-amdhsa', '-mcpu=gfx950', '-c', d + '/a.s', '-o', d + '/a.o'])
        dis = subprocess.check_output(['llvm-objdump', '-d', '--mcpu=gfx950', d + '/a.o'], text=True)
    sz = [4 * len(m.group(1).split()) for m in re.finditer(r'// [0-9A-F]{12}: ([0-9A-F ]+)', dis)]
    assert len(sz) == len(idx), (len(sz), len(idx))
    off = 0; ins = {}; npro = nnop = 0
    MINRUN = env('MINRUN', 8)
    for n, i in enumerate(idx):
        if sz[n] == 8 and off % 8 == 4:
            p = n - 1; done = False
            while p >= 0 and sz[p] == 4:
                op = lines[idx[p]].split()[0]
                if op in PROMO:
                    lines[idx[p]] = lines[idx[p]].replace(op, op + '_e64', 1); sz[p] = 8; off += 4; done = True; npro += 1
                    break
                p -= 1
            if not done:
                r = 0
                while n + r < len(sz) and sz[n + r] == 8: r += 1
                prev = lines[idx[n - 1]].split()[0]
                if r >= MINRUN and prev != 's_getpc_b64':
                    ins[i] = '    s_nop 0'; off += 4; nnop += 1
        off += sz[n]
    out = []
    for i, l in enumerate(lines):
        if i in ins: out.append(ins[i])
        out.append(l)
    print('align8: %d widened, %d nops' % (npro, nnop))
    return '\n'.join(out)

if __name__ == '__main__':
    out = sys.argv[1] if len(sys.argv) > 1 else 'adaLN_cond__softmax_full_mha__mixer_gmlp__prompt.s'
    txt = build()
    if env('AL8', 1): txt = align8(txt)
    open(out, 'w').write(txt)
    print('wrote', out)
```

```python
import sys, struct, os
STAMP = int(os.environ.get('STAMP', '0'))
WS_STAMP = 128 << 20
KIDX = [0]
def env(n, d): return int(os.environ.get(n, d))

MB = 1 << 20
KB = 1024
WS_MOD = 0
WS_UW  = 32 * KB
WS_ST0 = 64 * KB
WS_MODP = 128 * KB
WS_MODT = 768 * KB
TAGP = env('TAGP', 1)
WS_SC = 96 * KB
WS_MODQ = 160 * KB
WS_ST1 = 256 * KB
WS_G   = 512 * KB
WS_FL  = 58 * MB
FLSZ = 2 * MB
FL_LN1, FL_QKV, FL_ATT, FL_WO, FL_WIN, FL_WSP, FL_MOD = [i * 8 * KB for i in range(7)]
WS_EPOCH = 240 * KB
AUX_A = 128 * KB; AUX_B = 148 * KB
WS_H   = 1 * MB
WS_Q   = 5 * MB
WS_KV  = 9 * MB
WS_G2  = 57 * MB
WS_N   = 60 * MB
WS_O   = 17 * MB
WS_X1  = 21 * MB
WS_X1S = 25 * MB
WS_Z   = 29 * MB
ZSZ = 2048 * 1792 * 2
WS_Z2N = WS_Z + ZSZ
WS_U2  = 50 * MB
if env('ALIAS', 0):
    WS_Q = 1 * MB; WS_KV = 5 * MB; WS_H = 13 * MB
    WS_O = WS_H; WS_X1 = WS_Q; WS_X1S = WS_KV
    WS_Z2N = 9 * MB; WS_Z = 17 * MB; WS_U2 = WS_Z
ZB = min(WS_Z, WS_Z2N)

ROLES = {'pre': [('mod', 0, 128, 0, 16), ('stats', 128, 256, 0, 16)], 'ln1': [('pf', 0, 256, 0, 4), ('ln', 0, 256, 4, 8)],
         'attn': [('main', 0, 256, 0, 8)]}
for _n in ('qkv', 'wo', 'wout'): ROLES[_n] = [('load', 0, 256, 0, 4), ('comp', 0, 256, 4, 8)]
for _n in ('win', 'wsp'): ROLES[_n] = [('load', 0, 224, 0, 4), ('comp', 0, 224, 4, 8), ('pf', 224, 256, 0, 8)]
def f2u(f): return struct.unpack('<I', struct.pack('<f', f))[0]
def hx(f): return '0x%08x' % f2u(f)
LOG2E = 1.4426950408889634
WT = os.environ.get('WTF', ' sc1')

class Kern:
    def __init__(self, name, grid, block, lds):
        self.name = name; self.grid = grid; self.block = block; self.lds = lds
        self.lines = []; self.vgpr = 0; self.nlab = 0
    def e(self, s):
        for l in s.strip('\n').split('\n'):
            l = l.strip()
            if l: self.lines.append('    ' + l)
    def label(self, l):
        if env('ALIGN', 0) and ('_loop' in l or '_lloop' in l):
            self.lines.append('.p2align %d' % env('ALIGN', 0))
            for _ in range(env('ALOFF', 0)): self.lines.append('    s_nop 0')
        self.lines.append(l + ':')
    def newlabel(self, base):
        self.nlab += 1
        return 'L_%s_%s%d' % (self.name, base, self.nlab)
    def need(self, vgpr, lds):
        self.vgpr = max(self.vgpr, vgpr); self.lds = max(self.lds, lds)
    def text(self):
        GX = os.environ.get('GX', '')
        if self.name != 'pre':
            if 'm' in GX: self.lines = [l for l in self.lines if 'v_mfma' not in l]
            if 'l' in GX: self.lines = [l for l in self.lines if not (' lds' in l and 'buffer_load' in l and ('s57' in l or 's58' in l))]
            if 'r' in GX: self.lines = [l for l in self.lines if not ('ds_read_b64_tr' in l)]
        if os.environ.get('NOLDSC'):
            self.lines = [l.replace(' sc1 lds', ' lds') for l in self.lines]
        n = self.name + '_kernel'
        return '.globl %s\n.p2align 8\n.type %s,@function\n%s:\n' % (n, n, n) + '\n'.join(self.lines) + '\n'
    def desc(self):
        n = self.name + '_kernel'
        v = self.vgpr
        acc = (v + 3) // 4 * 4
        return ('.p2align 6\n.amdhsa_kernel %s\n  .amdhsa_next_free_vgpr %d\n  .amdhsa_next_free_sgpr 102\n'
                '  .amdhsa_accum_offset %d\n  .amdhsa_group_segment_fixed_size 0\n  .amdhsa_kernarg_size 104\n'
                '  .amdhsa_user_sgpr_count 2\n  .amdhsa_user_sgpr_kernarg_segment_ptr 1\n'
                '  .amdhsa_system_sgpr_workgroup_id_x 1\n.end_amdhsa_kernel\n' % (n, v, acc))
    def launch(self):
        return '; @launch kernel=%s_kernel grid=(%d,1,1) block=(%d,1,1) lds=%d\n' % (self.name, self.grid, self.block, self.lds)

PTR = dict(x=4, wqkv=6, wo=8, bx=10, w_in=12, w_sp=14, b_sp=16, w_out=18, c=20, w_mod=22, out=24, dbg=26, ws=28)
SIZES = dict(x=2048*1024*2, wqkv=1024*3072*2, wo=1024*1024*2, w_in=1024*3584*2, w_sp=2048*2048*2, b_sp=2048*2,
             w_out=1792*1024*2, c=2048, w_mod=1024*6144*2, out=2048*1024*2, dbg=256)

class Ctx: pass
PHIDX = {}
def prologue(k):
    k.endl = 'L_%s_end' % k.name
    k.e("""
    s_load_dwordx16 s[4:19], s[0:1], 0
    s_load_dwordx8 s[20:27], s[0:1], 64
    s_load_dwordx2 s[28:29], s[0:1], 96
    s_cmp_ge_u32 s2, %d
    s_cbranch_scc1 %s
    v_lshrrev_b32 v1, 6, v0
    s_nop 0
    v_readfirstlane_b32 s3, v1
    """ % (k.grid, k.endl))

def phase_begin(k, c):
    k.c = c
    k.label('L_%s_entry' % c.name)
    if env('IDLE_' + c.name, 0):
        for _ in range(env('IDLE_' + c.name, 0)): k.e('s_sleep 36')
    c.kidx = KIDX[0]; KIDX[0] += 1
    PHIDX[c.name] = c.kidx
    if env('PADTO', 0) and c.first: k.e('s_memrealtime s[90:91]')
    if env('DBG', 0) and c.first: dbgstamp(k, 0 if c.name == 'pre' else 10, 512 if c.name == 'pre' else 0, '')
    if STAMP:
        k.e('s_memtime s[88:89]')
        k.e('s_memrealtime s[90:91]')
        for i in range(4): k.e('s_mov_b64 s[%d:%d], 0' % (72 + 2 * i, 73 + 2 * i))

def dbgstamp(k, idx, off, op):
    l = k.newlabel('dbg')
    k.e('''
    s_lshl_b32 s80, s2, 4
    s_add_u32 s80, s80, s3
    s_cmp_lg_u32 s80, %d
    s_cbranch_scc1 %s
    s_waitcnt lgkmcnt(0)
    s_memrealtime s[92:93]
    s_add_u32 s80, s26, %d
    s_addc_u32 s81, s27, 0
    s_and_b32 s81, s81, 0xffff
    s_mov_b32 s82, 256
    s_mov_b32 s83, 0x20000
    s_mov_b64 exec, 1
    s_waitcnt lgkmcnt(0)
    v_mov_b32 v2, s92
    v_mov_b32 v5, %d
    buffer_store_dword v2, v5, s[80:83], 0 offen
    s_mov_b64 exec, -1
    ''' % (5 * 16 + 4, l, off, idx * 4))
    k.label(l)
def endpgm(k):
    c = k.c
    if env('DBG', 0): dbgstamp(k, 1 + c.kidx, 512 if c.name == 'pre' else 0, '')
    if STAMP:
        k.e("""
        s_waitcnt vmcnt(0) lgkmcnt(0)
        s_memtime s[92:93]
        s_memrealtime s[94:95]
        s_mov_b64 exec, 1
        s_add_u32 s80, s28, 0x%x
        s_addc_u32 s81, s29, 0
        s_and_b32 s81, s81, 0xffff
        s_mov_b32 s82, 0x100000
        s_mov_b32 s83, 0x20000
        s_lshl_b32 s86, s2, 4
        s_add_u32 s86, s86, s3
        s_lshl_b32 s86, s86, 5
        s_waitcnt lgkmcnt(0)
        v_mov_b32 v4, s90
        v_mov_b32 v5, s94
        v_mov_b32 v6, s88
        v_mov_b32 v7, s92
        v_mov_b32 v8, s72
        v_mov_b32 v9, s74
        v_mov_b32 v10, s76
        v_mov_b32 v11, s78
        v_mov_b32 v2, s86
        buffer_store_dwordx4 v[4:7], v2, s[80:83], 0 offen
        buffer_store_dwordx4 v[8:11], v2, s[80:83], 0 offen offset:16
        s_waitcnt vmcnt(0)
        """ % (WS_STAMP + c.kidx * (1 << 20)))
    if c.last and env('PADTO', 0):
        l = k.newlabel('pad')
        k.label(l)
        k.e('s_memrealtime s[92:93]\ns_waitcnt lgkmcnt(0)\ns_sub_u32 s92, s92, s90\ns_cmp_lt_u32 s92, %d\ns_cbranch_scc1 %s' % (env('PADTO', 0) * 100, l))
    if c.last: k.e('s_endpgm')
    else:
        k.e('s_mov_b64 exec, -1')
        k.e('s_setprio 0')
        k.e('s_branch L_%s_entry' % c.nxt)
def mark(k, i=0):
    if STAMP:
        k.e('s_memtime s[%d:%d]' % (72 + 2 * i, 73 + 2 * i))
        k.e('s_waitcnt lgkmcnt(0)')

def set_flag(k, setup):
    if not k.c.last:
        k.e(setup)
        k.e('s_lshl_b32 s87, s100, 5')
def OWNF(n): return n in os.environ.get('OWN', 'none').split(',')
ZF32 = env('ZF32', 1)
GEO = env('GEO', 0); TPRE = env('TPRE', 4) if GEO else 0; APRE = env('APRE', 0) if GEO else 0
W22 = env('W22', 1)
LPW = env('LPW', 0)
ZOWN = env('ZOWN', 1)
FV = 252
def flag_store(k, soff):
    k.e('s_mov_b64 exec, 1')
    k.e('buffer_store_dwordx2 %s, v%d, s[96:99], %s offen sc1' % (vr(FV, 2), FV + 2, soff))
    k.e('s_mov_b64 exec, -1')
def flag_prep(k):
    srd(k, 96, 'ws', WS_FL, FLSZ)
    k.e('v_mov_b32 v%d, s84' % FV); k.e('v_mov_b32 v%d, s85' % (FV + 1)); k.e('v_mov_b32 v%d, 0' % (FV + 2))
    k.need(FV + 3, 0)
def signal(k, role='L', keep=0):
    if k.c.last: return
    if role in ('C', 'S'): flag_prep(k)
    if role == 'C':
        k.e('s_and_b32 s100, s3, 3')
        k.e('s_lshl_b32 s100, s100, 7')
        k.e('s_add_u32 s100, s100, s87')
    if role == 'C' and env('SM', 0): mark(k, 3)
    k.e('s_waitcnt vmcnt(%d)' % keep)
    if role == 'C' and env('SM', 0): mark(k, 0)
    if role == 'C':
        flag_store(k, 's100')
        if OWNF(k.c.nxt): k.e('s_barrier')
    elif role == 'A' and OWNF(k.c.nxt) and k.c.nxt == 'wout':
        l = k.newlabel('sg')
        k.e('s_cmp_lt_u32 s3, 4'); k.e('s_cbranch_scc1 %s' % l); k.e('s_barrier'); k.label(l)
    elif role == 'S':
        l = k.newlabel('sg')
        k.e('s_barrier')
        k.e('s_cmp_lg_u32 s3, 7'); k.e('s_cbranch_scc1 %s' % l)
        flag_store(k, 's87')
        k.label(l)
POLLW = env('POLLW', 4)
def handoff(k, setup, n, role='L', force=False, slp=None):
    if (k.c.first and not force) or not n: return
    if role in 'AW' or (role == 'C') == (POLLW >= 4):
        ld = k.newlabel('wd')
        if role == 'W': pass
        elif n <= 64:
            k.e('s_cmp_lg_u32 s3, %d' % POLLW)
            k.e('s_cbranch_scc1 %s' % ld)
        else:
            assert n == 128
            k.e('s_sub_u32 s101, s3, %d' % POLLW)
            k.e('s_cmp_gt_u32 s101, 1')
            k.e('s_cbranch_scc1 %s' % ld)
        srd(k, 96, 'ws', WS_FL, FLSZ)
        k.e(setup)
        k.e('s_lshl_b32 s100, s100, 5')
        if n > 64:
            k.e('s_lshl_b32 s101, s101, 13')
            k.e('s_add_u32 s100, s100, s101')
        k.e('v_lshlrev_b32 v%d, 7, v1' % (FV + 2))
        k.e('s_mov_b32 s101, 0x100000')
        if n < 64: k.e('s_bfm_b64 exec, %d, 0' % n)
        k.need(FV + 3, 0)
        PP = env('PPIPE', 0)
        if PP:
            lp = k.newlabel('wf'); le = k.newlabel('we')
            B = [FV, FV - 2, FV - 4][:PP]
            ldp = lambda b: 'buffer_load_dwordx2 %s, v%d, s[96:99], s100 offen sc1' % (vr(b, 2), FV + 2)
            for b in B[:-1]:
                k.e(ldp(b)); k.e('s_sleep %d' % env('PGAP', 5))
            k.label(lp)
            for i_ in range(PP):
                k.e(ldp(B[i_ - 1]))
                k.e('s_waitcnt vmcnt(%d)' % (PP - 1))
                k.e('v_cmp_ne_u64 vcc, s[84:85], %s' % vr(B[i_], 2))
                k.e('s_nop 4')
                k.e('s_cbranch_vccz %s' % le)
            k.e('s_sub_u32 s101, s101, 1')
            k.e('s_cmp_lg_u32 s101, 0')
            k.e('s_cbranch_scc1 %s' % lp)
        else:
            lp = k.newlabel('wf'); le = k.newlabel('we')
            k.label(lp)
            k.e('buffer_load_dwordx2 %s, v%d, s[96:99], s100 offen sc1' % (vr(FV, 2), FV + 2))
            k.e('s_waitcnt vmcnt(0)')
            k.e('v_cmp_ne_u64 vcc, s[84:85], %s' % vr(FV, 2))
            k.e('s_sub_u32 s101, s101, 1')
            k.e('s_nop 3')
            k.e('s_cbranch_vccz %s' % le)
            if env('PMASK', 1): k.e('s_mov_b64 exec, vcc')
            if slp is None: slp = env('PSLEEP', 1)
            if slp: k.e('s_sleep %d' % slp)
            k.e('s_cmp_lg_u32 s101, 0')
            k.e('s_cbranch_scc1 %s' % lp)
        k.label(le)
        k.e('s_mov_b64 exec, -1')
        k.label(ld)
    if role != 'W': k.e('s_barrier')

def handoff_multi(k, polls):
    ld = k.newlabel('wd'); lgo = k.newlabel('wg')
    srd(k, 96, 'ws', WS_FL, FLSZ)
    for w, setup, n in polls:
        ln = k.newlabel('wn')
        k.e('s_cmp_lg_u32 s3, %d' % w)
        k.e('s_cbranch_scc1 %s' % ln)
        k.e(setup)
        k.e('v_min_u32 v%d, %d, v1' % (FV + 2, n - 1))
        k.e('s_branch %s' % lgo)
        k.label(ln)
    k.e('s_branch %s' % ld)
    k.label(lgo)
    k.e('s_lshl_b32 s100, s100, 5')
    k.e('v_lshlrev_b32 v%d, 7, v%d' % (FV + 2, FV + 2))
    k.e('s_mov_b32 s101, 0x100000')
    lp = k.newlabel('wf')
    k.label(lp)
    k.e('buffer_load_dwordx2 %s, v%d, s[96:99], s100 offen sc1' % (vr(FV, 2), FV + 2))
    k.e('s_waitcnt vmcnt(0)')
    k.e('v_cmp_ne_u64 vcc, s[84:85], %s' % vr(FV, 2))
    k.e('s_sub_u32 s101, s101, 1')
    k.e('s_nop 3')
    k.e('s_cbranch_vccz %s' % ld)
    k.e('s_sleep %d' % env('P0SLEEP', 2))
    k.e('s_cmp_lg_u32 s101, 0')
    k.e('s_cbranch_scc1 %s' % lp)
    k.label(ld)
    k.e('s_barrier')

def mod_table(k, R, between=None, nb=0):
    srd(k, 40, 'ws', 0, 256 * KB)
    k.e('v_lshlrev_b32 v%d, 4, v0' % (R + 16))
    for q in range(4):
        k.e('s_mov_b32 s48, %d' % (WS_MODP + q * 8192))
        k.e('buffer_load_dwordx4 %s, v%d, s[40:43], s48 offen sc1' % (vr(R + 4 * q, 4), R + 16))
    if between: between()
    k.e('s_cmp_lt_u32 s3, 4')
    k.e('s_cselect_b32 s49, 0, 1.0')
    k.e('v_add_u32 v%d, %d, v%d' % (R + 16, AUX_A, R + 16))
    k.e('s_waitcnt vmcnt(%d)' % nb)
    k.e(pk('add', R, R, R + 4)); k.e(pk('add', R + 2, R + 2, R + 6)); k.e(pk('add', R + 8, R + 8, R + 12)); k.e(pk('add', R + 10, R + 10, R + 14))
    k.e(pk('add', R, R, R + 8)); k.e(pk('add', R + 2, R + 2, R + 10))
    for d in range(2): round_bf16_pair(k, R + 2 * d, R + 2 * d + 1, R + 4)
    for q in range(4): k.e('v_add_f32 v%d, s49, v%d' % (R + q, R + q))
    for d in range(2): round_bf16_pair(k, R + 2 * d, R + 2 * d + 1, R + 4)
    k.e('ds_write_b128 v%d, %s' % (R + 16, vr(R, 4)))
    k.e('s_waitcnt lgkmcnt(0)')
    k.e('s_barrier')

def poll_back(k, lp):
    l = k.newlabel('pd')
    k.e('s_sub_u32 s101, s101, 1')
    k.e('s_nop 3')
    k.e('s_cbranch_vccz %s' % l)
    k.e('s_cmp_lg_u32 s101, 0')
    k.e('s_cbranch_scc1 %s' % lp)
    k.label(l)
def poll_init(k): k.e('s_mov_b32 s101, 0x100000')

def srd(k, d, what, off=0, size=None, soff=None):
    p = PTR[what]
    if what == 'ws': off += env('WSB', 0) * MB
    if size is None: size = SIZES[what]
    if off or soff:
        k.e('s_add_u32 s%d, s%d, 0x%x' % (d, p, off))
        k.e('s_addc_u32 s%d, s%d, 0' % (d + 1, p + 1))
        if soff:
            k.e('s_add_u32 s%d, s%d, %s' % (d, d, soff))
            k.e('s_addc_u32 s%d, s%d, 0' % (d + 1, d + 1))
        k.e('s_and_b32 s%d, s%d, 0xffff' % (d + 1, d + 1))
    else:
        k.e('s_mov_b32 s%d, s%d' % (d, p))
        k.e('s_and_b32 s%d, s%d, 0xffff' % (d + 1, p + 1))
    k.e('s_mov_b32 s%d, 0x%x' % (d + 2, size))
    k.e('s_mov_b32 s%d, 0x20000' % (d + 3))

def finish(k):
    endpgm(k)

XT = env('XT', 0)
AOWN = env('AOWN', 3)
AT2 = env('AT2', 1)
MP0 = env('MP0', 1)
CPF = env('CPF', 1)
def code_pf(k, start, end, maxbytes, lane=1, vt=6, vd=7, sb=84):
    if not CPF: return 0
    h = k.newlabel('pc')
    k.e('s_getpc_b64 s[%d:%d]' % (sb, sb + 1))
    k.label(h)
    k.e('s_add_u32 s%d, s%d, %s-%s' % (sb, sb, start, h))
    k.e('s_addc_u32 s%d, s%d, 0' % (sb + 1, sb + 1))
    n = (maxbytes + 8191) // 8192
    for i in range(n):
        k.e('v_lshlrev_b32 v%d, 7, v%d' % (vt, lane))
        if i: k.e('v_add_u32 v%d, %d, v%d' % (vt, i * 8192, vt))
        k.e('v_min_u32 v%d, %s-%s-4, v%d' % (vt, end, start, vt))
        k.e('global_load_dword v%d, v%d, s[%d:%d]' % (vd, vt, sb, sb + 1))
    return n

def vr(b, n): return 'v[%d:%d]' % (b, b + n - 1)
def sr(b): return 's[%d:%d]' % (b, b + 3)

def round_bf16_pair(k, a, b, tmp):
    k.e('v_cvt_pk_bf16_f32 v%d, v%d, v%d' % (tmp, a, b))
    k.e('v_lshlrev_b32 v%d, 16, v%d' % (a, tmp))
    k.e('v_and_b32 v%d, 0xffff0000, v%d' % (b, tmp))

def red_lanes(k, regs, tmp, rors=(8,)):
    for ro in rors:
        k.e('s_nop 1')
        for r in regs:
            k.e('v_add_f32_dpp v%d, v%d, v%d row_ror:%d row_mask:0xf bank_mask:0xf' % (r, r, r, ro))
    for op in ('v_permlane16_swap_b32', 'v_permlane32_swap_b32'):
        for r, t in zip(regs, tmp): k.e('v_mov_b32 v%d, v%d' % (t, r))
        k.e('s_nop 1')
        for r, t in zip(regs, tmp): k.e('%s v%d, v%d' % (op, r, t))
        k.e('s_nop 1')
        for r, t in zip(regs, tmp): k.e('v_add_f32 v%d, v%d, v%d' % (r, r, t))

def unpack(k, lo, hi, src):
    k.e('v_lshlrev_b32 v%d, 16, v%d' % (lo, src))
    k.e('v_and_b32 v%d, 0xffff0000, v%d' % (hi, src))

def k_p0(k, c):
    phase_begin(k, c)
    KIDX[0] += 1
    assert c.first and not c.last
    lst = 'L_p0_stats'
    def rest_issue():
        srd(k, 52, 'w_mod'); srd(k, 56, 'c')
        k.e("""
        v_lshrrev_b32 v164, 3, v0
        v_lshlrev_b32 v165, 4, v164        ; c byte offset = g*16
        v_mul_u32_u24 v164, %d, v164
        v_and_b32 v166, 7, v0
        v_lshl_add_u32 v164, v166, 4, v164
        s_lshr_b32 s60, s30, 1             ; col block
        s_and_b32 s61, s30, 1              ; k half
        s_lshl_b32 s62, s60, 7
        s_mul_i32 s63, s61, %d
        s_add_u32 s62, s62, s63
        s_add_u32 s62, s62, 4096
        s_lshl_b32 s63, s61, 10
        buffer_load_dwordx4 v[128:131], v165, s[56:59], s63 offen
        """ % (8 * 12288, 512 * 12288))
        if env('PWAIT', 2) == 2: k.e('s_waitcnt vmcnt(0)')
        for j in range(8):
            k.e('buffer_load_dwordx4 %s, v164, s[52:55], s62 offen' % vr(132 + 4 * j, 4))
            k.e('s_add_u32 s62, s62, 12288')
        k.need(192, 0)
    def rest_compute(newer):
        S_ = 168; T_ = 176; A_ = 184
        k.e('s_waitcnt vmcnt(%d)' % (8 + newer))
        for j in range(4): unpack(k, S_ + 2 * j, S_ + 1 + 2 * j, 128 + j)
        for j in range(8): k.e('v_mul_f32 v%d, %s, v%d' % (T_ + j, hx(-LOG2E), S_ + j))
        for j in range(8): k.e('v_exp_f32 v%d, v%d' % (T_ + j, T_ + j))
        for j in range(8): k.e('v_add_f32 v%d, 1.0, v%d' % (T_ + j, T_ + j))
        for j in range(8): k.e('v_rcp_f32 v%d, v%d' % (T_ + j, T_ + j))
        for j in range(8): k.e('v_mul_f32 v%d, v%d, v%d' % (S_ + j, S_ + j, T_ + j))
        for j in range(4): round_bf16_pair(k, S_ + 2 * j, S_ + 1 + 2 * j, T_)
        for j in range(8):
            k.e('s_waitcnt vmcnt(%d)' % (7 - j + newer))
            for d in range(4):
                unpack(k, T_, T_ + 1, 132 + 4 * j + d)
                op = 'v_mul_f32' if j == 0 else 'v_fmac_f32'
                k.e('%s v%d, v%d, v%d' % (op, A_ + 2 * d, T_, S_ + j))
                k.e('%s v%d, v%d, v%d' % (op, A_ + 1 + 2 * d, T_ + 1, S_ + j))
        k.e('s_nop 1')
        for e in range(4): k.e('v_permlane32_swap_b32 v%d, v%d' % (A_ + e, A_ + 4 + e))
        k.e('s_nop 1')
        for e in range(4): k.e('v_add_f32 v%d, v%d, v%d' % (A_ + e, A_ + e, A_ + 4 + e))
        k.e('s_nop 1')
        for e in range(2): k.e('v_permlane16_swap_b32 v%d, v%d' % (A_ + e, A_ + 2 + e))
        k.e('s_nop 1')
        for e in range(2): k.e('v_add_f32 v%d, v%d, v%d' % (A_ + e, A_ + e, A_ + 2 + e))
        k.e('s_nop 1')
        for e in range(2): k.e('v_add_f32_dpp v%d, v%d, v%d row_ror:8 row_mask:0xf bank_mask:0xf' % (A_ + e, A_ + e, A_ + e))
        lw2 = k.newlabel('nw')
        k.e("""
        v_lshlrev_b32 v164, 5, v166
        v_lshrrev_b32 v165, 4, v1
        v_lshl_add_u32 v164, v165, 3, v164
        s_lshl_b32 s62, s3, 8
        s_add_u32 s62, s62, %d
        v_add_u32 v164, s62, v164
        ds_write_b64 v164, v[184:185]
        s_waitcnt lgkmcnt(0)
        s_barrier
        s_cmp_lg_u32 s3, 7
        s_cbranch_scc1 %s
        v_lshlrev_b32 v164, 2, v1
        v_add_u32 v165, %d, v164
        """ % (AUX_A + 8192, lw2, AUX_A + 8192))
        for w in range(8): k.e('ds_read_b32 v%d, v165 offset:%d' % (T_ + w, w * 256))
        k.e("""
        s_lshl_b32 s62, s60, 8
        s_lshl_b32 s63, s61, 14
        s_add_u32 s62, s62, s63
        s_add_u32 s62, s62, %d
        s_waitcnt lgkmcnt(0)
        """ % WS_MODQ)
        for w in range(0, 8, 2): k.e('v_add_f32 v%d, v%d, v%d' % (T_ + w, T_ + w, T_ + w + 1))
        k.e('v_add_f32 v%d, v%d, v%d' % (T_, T_, T_ + 2))
        k.e('v_add_f32 v%d, v%d, v%d' % (T_ + 4, T_ + 4, T_ + 6))
        k.e('v_add_f32 v%d, v%d, v%d' % (T_, T_, T_ + 4))
        k.e('buffer_store_dword v%d, v164, s[40:43], s62 offen%s' % (T_, WT))
        k.label(lw2)
    k.e("""
    v_and_b32 v1, 63, v0               ; lane
    v_lshlrev_b32 v6, 4, v0            ; tid*16
    s_lshr_b32 s30, s2, 4
    s_lshl_b32 s30, s30, 3
    s_and_b32 s47, s2, 7
    s_add_u32 s30, s30, s47            ; index within role (0..127)
    s_bitcmp1_b32 s2, 3
    s_cbranch_scc1 %s
    s_lshr_b32 s48, s30, 2             ; col block
    s_and_b32 s49, s30, 3              ; k quarter
    v_lshrrev_b32 v2, 3, v0            ; row group (0..63): rows 4g..4g+3 (+256*q)
    v_and_b32 v3, 7, v0                ; chunk
    v_lshlrev_b32 v4, 3, v2            ; c byte offset = g*8
    v_mul_u32_u24 v5, %d, v2
    v_lshl_add_u32 v5, v3, 4, v5
    s_lshl_b32 s31, s48, 7
    s_mul_i32 s44, s49, %d
    s_add_u32 s31, s31, s44
    s_lshl_b32 s45, s49, 9
    s_waitcnt lgkmcnt(0)
    s_load_dwordx2 s[84:85], s[28:29], 0x%x
    """ % (lst, 4 * 12288, 256 * 12288, WS_EPOCH + env('WSB', 0) * MB))
    mark(k, 0)
    srd(k, 36, 'w_mod'); srd(k, 32, 'c')
    CL = env('CLAST', 0)
    if not CL: k.e('buffer_load_dwordx2 v[8:9], v4, s[32:35], s45 offen')
    for j in range(4):
        k.e('buffer_load_dwordx4 %s, v5, s[36:39], s31 offen' % vr(12 + 4 * j, 4))
        k.e('s_add_u32 s31, s31, 12288')
    if CL: k.e('buffer_load_dwordx2 v[8:9], v4, s[32:35], s45 offen')
    lnc = k.newlabel('nc')
    def resets(R, wait):
        lnr = k.newlabel('nr')
        k.e('s_cmp_gt_u32 s3, 3')
        k.e('s_cbranch_scc1 %s' % lnr)
        for r in range(4): k.e('v_mov_b32 v%d, -1' % (R + r))
        for off, size in (((WS_G2, 512 * KB) if W22 else (WS_G, 256 * KB)), (WS_MOD, 64 * KB)) + (() if MP0 else ((WS_MODQ, 64 * KB),)):
            per = size // 128
            srd(k, 52, 'ws', off, size)
            k.e('s_mul_i32 s50, s30, %d' % per)
            k.e('v_cmp_gt_u32 vcc, %d, v0' % (per // 16))
            k.e('s_and_saveexec_b64 s[46:47], vcc')
            k.e('buffer_store_dwordx4 %s, v6, s[52:55], s50 offen%s' % (vr(R, 4), WT))
            k.e('s_mov_b64 exec, s[46:47]')
        if wait: k.e('s_waitcnt vmcnt(0)')
        k.label(lnr)
    RLN = env('RLN', 1)
    if not RLN: resets(40, True)
    srd(k, 40, 'ws', 0, 256 * KB)
    if CL == 2:
        k.e('s_waitcnt vmcnt(1)'); mark(k, 0)
    k.e('s_waitcnt vmcnt(%d)' % (0 if CL else 4))
    mark(k, 1)
    for j in range(2): unpack(k, 44 + 2 * j, 45 + 2 * j, 8 + j)
    for j in range(4): k.e('v_mul_f32 v%d, %s, v%d' % (52 + j, hx(-LOG2E), 44 + j))
    for j in range(4): k.e('v_exp_f32 v%d, v%d' % (52 + j, 52 + j))
    for j in range(4): k.e('v_add_f32 v%d, 1.0, v%d' % (52 + j, 52 + j))
    for j in range(4): k.e('v_rcp_f32 v%d, v%d' % (52 + j, 52 + j))
    for j in range(4): k.e('v_mul_f32 v%d, v%d, v%d' % (44 + j, 44 + j, 52 + j))
    for j in range(2): round_bf16_pair(k, 44 + 2 * j, 45 + 2 * j, 52)
    lns = k.newlabel('nosc')
    if not MP0: k.e("""
    s_cmp_lg_u32 s48, 0
    s_cbranch_scc1 %s
    v_lshlrev_b32 v7, 4, v2
    s_lshl_b32 s44, s49, 10
    s_add_u32 s44, s44, %d
    buffer_store_dwordx4 v[44:47], v7, s[40:43], s44 offen%s
    s_waitcnt vmcnt(0)
    """ % (lns, WS_SC, WT))
    k.label(lns)
    A = 56
    for j in range(4):
        k.e('s_waitcnt vmcnt(%d)' % (3 - j))
        for d in range(4):
            unpack(k, 52, 53, 12 + 4 * j + d)
            op = 'v_mul_f32' if j == 0 else 'v_fmac_f32'
            k.e('%s v%d, v52, v%d' % (op, A + 2 * d, 44 + j))
            k.e('%s v%d, v53, v%d' % (op, A + 1 + 2 * d, 44 + j))
    mark(k, 2)
    if MP0 == 4: rest_issue()
    k.e('s_nop 1')
    for e in range(4): k.e('v_permlane32_swap_b32 v%d, v%d' % (A + e, A + 4 + e))
    k.e('s_nop 1')
    for e in range(4): k.e('v_add_f32 v%d, v%d, v%d' % (A + e, A + e, A + 4 + e))
    k.e('s_nop 1')
    for e in range(2): k.e('v_permlane16_swap_b32 v%d, v%d' % (A + e, A + 2 + e))
    k.e('s_nop 1')
    for e in range(2): k.e('v_add_f32 v%d, v%d, v%d' % (A + e, A + e, A + 2 + e))
    k.e('s_nop 1')
    for e in range(2): k.e('v_add_f32_dpp v%d, v%d, v%d row_ror:8 row_mask:0xf bank_mask:0xf' % (A + e, A + e, A + e))
    lw = k.newlabel('nw')
    k.e("""
    v_lshlrev_b32 v2, 5, v3
    v_lshrrev_b32 v7, 4, v1
    v_lshl_add_u32 v2, v7, 3, v2
    s_lshl_b32 s44, s3, 8
    s_add_u32 s44, s44, %d
    v_add_u32 v2, s44, v2
    ds_write_b64 v2, v[56:57]
    s_waitcnt lgkmcnt(0)
    s_add_u32 s84, s84, 1
    s_barrier
    s_cmp_lg_u32 s3, 0
    s_cbranch_scc1 %s
    v_lshlrev_b32 v2, 2, v1
    v_add_u32 v7, %d, v2
    """ % (AUX_A, lw, AUX_A))
    for w in range(8): k.e('ds_read_b32 v%d, v7 offset:%d' % (12 + w, w * 256))
    flag_prep(k)
    k.e("""
    s_lshl_b32 s31, s48, 8
    s_lshl_b32 s44, s49, 13
    s_add_u32 s31, s31, s44
    s_add_u32 s31, s31, %d
    s_lshl_b32 s100, s30, 7
    s_add_u32 s100, s100, %d
    s_waitcnt lgkmcnt(0)
    """ % (WS_MODP, FL_MOD * 32))
    for w in range(0, 8, 2): k.e('v_add_f32 v%d, v%d, v%d' % (12 + w, 12 + w, 13 + w))
    k.e('v_add_f32 v12, v12, v14')
    k.e('v_add_f32 v16, v16, v18')
    k.e('v_add_f32 v12, v12, v16')
    if TAGP:
        srd(k, 96, 'ws', WS_MODT, 64 * KB)
        k.e("""
        v_mov_b32 v14, s84
        v_mov_b32 v15, s85
        v_mov_b32_dpp v13, v12 quad_perm:[1,1,3,3] row_mask:0xf bank_mask:0xf
        v_lshlrev_b32 v2, 3, v1
        s_lshl_b32 s31, s48, 9
        s_lshl_b32 s44, s49, 14
        s_add_u32 s31, s31, s44
        s_mov_b32 exec_lo, 0x55555555
        s_mov_b32 exec_hi, 0x55555555
        buffer_store_dwordx4 v[12:15], v2, s[96:99], s31 offen sc1
        s_mov_b64 exec, -1
        """)
        if env('PWAIT', 2): k.e('s_waitcnt vmcnt(0)')
    else:
        k.e('buffer_store_dword v12, v2, s[40:43], s31 offen' + WT)
        k.e('s_waitcnt vmcnt(0)')
        flag_store(k, 's100')
    k.label(lw)
    k.e('s_barrier')
    mark(k, 3)
    if env('TLBW', 0):
        lt = k.newlabel('tl')
        for w, (nm, sz) in enumerate((('ws', 64 * MB), ('w_mod', None), ('w_sp', None), ('w_in', None), ('w_out', None), ('wo', None), ('out', None), ('x', None))):
            ln = k.newlabel('tn')
            k.e('s_cmp_lg_u32 s3, %d' % w)
            k.e('s_cbranch_scc1 %s' % ln)
            srd(k, 36, nm, 0, sz)
            k.e('s_branch %s' % lt)
            k.label(ln)
        k.label(lt)
        k.e('s_lshr_b32 s51, s30, 3')
        k.e('s_lshl_b32 s51, s51, 22')
        k.e('s_add_u32 s51, s51, %d' % (65536 - 128))
        k.e('v_lshlrev_b32 v36, 16, v1')
        k.e('buffer_load_dword v37, v36, s[36:39], s51 offen')
    srd(k, 36, 'wqkv')
    k.e('s_lshl_b32 s51, s30, 13')
    k.e('s_add_u32 s51, s51, %d' % (env('NPFE', 0) * MB))
    for p in range(env('NPFQ', 0) - env('NPFE', 0)):
        k.e('buffer_load_dwordx4 v[8:11], v6, s[36:39], s51 offen')
        k.e('s_add_u32 s51, s51, %d' % MB)
    if CPF:
        h = k.newlabel('pc')
        k.e('s_cmp_lg_u32 s3, 2')
        k.e('s_cbranch_scc1 %s' % lnc)
        k.e('s_cmp_ge_u32 s30, 64')
        k.e('s_cbranch_scc1 %s' % lnc)
        k.e('s_getpc_b64 s[64:65]')
        k.label(h)
        k.e('s_add_u32 s64, s64, L_qkv_entry-%s' % h)
        k.e('s_addc_u32 s65, s65, 0')
        k.e('s_lshr_b32 s44, s30, 3')
        k.e('s_lshl_b32 s44, s44, 13')
        k.e('v_lshl_add_u32 v38, v1, 7, s44')
        k.e('v_min_u32 v38, L_text_end-L_qkv_entry-4, v38')
        k.e('global_load_dword v39, v38, s[64:65]')
        k.label(lnc)
    if MP0 == 1:
        rest_issue(); rest_compute(0)
    if MP0 == 4: rest_compute(0)
    k.e('s_waitcnt vmcnt(0)')
    endpgm(k)
    k.label(lst)
    k.e("""
    s_lshl_b32 s44, s3, 12
    v_lshl_add_u32 v3, v1, 4, s44      ; wave*4096 + lane*16
    s_lshl_b32 s31, s30, 15            ; 16 rows * 2048
    s_waitcnt lgkmcnt(0)
    s_load_dwordx2 s[84:85], s[28:29], 0x%x
    """ % (WS_EPOCH + env('WSB', 0) * MB))
    srd(k, 32, 'x')
    if env('XDELAY', 0): k.e('s_waitcnt lgkmcnt(0)')
    for q in range(4): k.e('buffer_load_dwordx4 %s, v3, s[32:35], s31 offen offset:%d' % (vr(8 + 4 * q, 4), q * 1024))
    if MP0 == 2: rest_issue()
    NE = env('NPFE', 0)
    if NE:
        srd(k, 36, 'wqkv')
        k.e('s_lshl_b32 s51, s30, 13')
        for p in range(NE):
            k.e('buffer_load_dwordx4 v[128:131], v6, s[36:39], s51 offen')
            k.e('s_add_u32 s51, s51, %d' % MB)
    srd(k, 36, 'ws', WS_H, 4 * MB); srd(k, 40, 'ws', 0, 256 * KB)
    if env('HTOUCH', 0):
        srd(k, 96, 'ws', WS_FL, FLSZ)
        k.e('v_mov_b32 v126, 0')
        k.e('s_mov_b64 exec, 1')
        k.e('buffer_load_dword v127, v126, s[36:39], s31 offen')
        k.e('buffer_load_dword v127, v126, s[96:99], 0 offen offset:64')
        k.e('s_mov_b64 exec, -1')
        NE += 2
    set_flag(k, 's_lshr_b32 s100, s30, 3\ns_lshl_b32 s100, s100, 8\ns_and_b32 s101, s30, 7\ns_lshl_b32 s101, s101, 2\ns_add_u32 s100, s100, s101\ns_add_u32 s100, s100, %d' % FL_LN1)
    mark(k, 0)
    if RLN == 2: resets(132, True)
    k.e('s_waitcnt vmcnt(%d) lgkmcnt(0)' % (NE + (9 if MP0 == 2 else 0)))
    k.e('s_add_u32 s84, s84, 1')
    if MP0 == 3: rest_issue()
    X = 24
    for d in range(16): unpack(k, X + 2 * d, X + 2 * d + 1, 8 + d)
    MU = [56, 58]; VA = [60, 62]
    if env('SP1', 1):
        for r in range(2):
            stat_ops(k, X + 16 * r, 8 + 4 * r, 10 + 4 * r, True)
            k.e('v_add_f32 v%d, v%d, v%d' % (MU[r], 8 + 4 * r, 9 + 4 * r))
            k.e('v_add_f32 v%d, v%d, v%d' % (VA[r], 10 + 4 * r, 11 + 4 * r))
        red_lanes(k, MU + VA, [8, 9, 10, 11], rors=(8, 4, 2, 1))
        for r in range(2):
            k.e('v_mul_f32 v%d, %s, v%d' % (MU[r], hx(-1.0 / 1024), MU[r]))
            k.e('v_mul_f32 v%d, %s, v%d' % (VA[r], hx(1.0 / 1024), VA[r]))
            k.e('v_fma_f32 v%d, -v%d, v%d, v%d' % (VA[r], MU[r], MU[r], VA[r]))
            k.e('v_max_f32 v%d, 0, v%d' % (VA[r], VA[r]))
    else:
        for r in range(2):
            k.e(pk('add', 8 + 2 * r, X + 16 * r, X + 16 * r + 2))
            for e in range(4, 16, 2): k.e(pk('add', 8 + 2 * r, 8 + 2 * r, X + 16 * r + e))
            k.e('v_add_f32 v%d, v%d, v%d' % (MU[r], 8 + 2 * r, 9 + 2 * r))
        red_lanes(k, MU, [8, 9], rors=(8, 4, 2, 1))
        for r in range(2):
            k.e('v_mul_f32 v%d, %s, v%d' % (MU[r], hx(-1.0 / 1024), MU[r]))
            for e in range(0, 16, 2):
                k.e(pk('add', 8, X + 16 * r + e, (MU[r],)))
                k.e(pk('mul', 10, 8, 8) if e == 0 else pk('fma', 10, 8, 8, 10))
            k.e('v_add_f32 v%d, v10, v11' % VA[r])
        red_lanes(k, VA, [8, 9], rors=(8, 4, 2, 1))
        for r in range(2):
            k.e('v_mul_f32 v%d, %s, v%d' % (VA[r], hx(1.0 / 1024), VA[r]))
    for r in range(2):
        round_bf16_pair(k, MU[r], VA[r], 8)
        k.e('v_add_f32 v%d, %s, v%d' % (VA[r], hx(1e-5), VA[r]))
    round_bf16_pair(k, VA[0], VA[1], 8)
    for r in range(2): k.e('v_sqrt_f32 v%d, v%d' % (VA[r], VA[r]))
    k.e('s_nop 0')
    round_bf16_pair(k, VA[0], VA[1], 8)
    for r in range(2): k.e('v_rcp_f32 v%d, v%d' % (VA[r], VA[r]))
    def tag_setup():
        srd(k, 96, 'ws', WS_MODT, 64 * KB)
        k.e('v_lshlrev_b32 v81, 4, v1')
        k.e('s_lshl_b32 s100, s3, 11')
        k.e('v_add_u32 v81, s100, v81')
        k.e('v_lshlrev_b32 v80, 3, v1')
        k.e('s_lshl_b32 s100, s3, 10')
        k.e('s_add_u32 s100, s100, %d' % AUX_A)
        k.e('v_add_u32 v80, s100, v80')
        k.e('s_mov_b32 s101, 0x100000')
    def tag_loads():
        for q in range(4):
            k.e('s_mov_b32 s56, %d' % (q * 16384))
            for hh in range(2): k.e('buffer_load_dwordx4 %s, v81, s[96:99], s56 offen offset:%d sc1' % (vr(96 + 8 * q + 4 * hh, 4), hh * 1024))
    ET = env('ET', 0)
    if ET == 1:
        if RLN: resets(132, False)
        tag_setup(); tag_loads()
    k.e("""
    v_lshrrev_b32 v5, 1, v1
    v_mul_u32_u24 v5, 544, v5          ; cb*2*272
    v_and_b32 v7, 1, v1
    v_lshl_add_u32 v5, v7, 3, v5
    s_lshl_b32 s44, s3, 5
    v_add_u32 v5, s44, v5
    """)
    for r in range(2):
        x = X + 16 * r; pin = 8 + 8 * r
        for d in range(8): k.e(pk('add', x + 2 * d, x + 2 * d, (MU[r],)))
        for d in range(8): round_bf16_pair(k, x + 2 * d, x + 2 * d + 1, pin + d)
        for d in range(8): k.e(pk('mul', x + 2 * d, x + 2 * d, (VA[r],)))
        for d in range(8): k.e('v_cvt_pk_bf16_f32 v%d, v%d, v%d' % (pin + d, x + 2 * d, x + 2 * d + 1))
        for q, o in enumerate((0, 272, 64 * 272, 65 * 272)):
            k.e('ds_write_b64 v5, %s offset:%d' % (vr(pin + 2 * q, 2), o + 16 * r))
    k.e("""
    v_lshrrev_b32 v5, 4, v0            ; gi (p=0)
    v_and_b32 v7, 15, v0               ; row
    v_mul_u32_u24 v2, 272, v5
    v_lshl_add_u32 v2, v7, 4, v2       ; granule lds address
    v_lshlrev_b32 v4, 9, v5
    v_lshl_add_u32 v4, v7, 4, v4       ; global offset
    v_lshrrev_b32 v3, 1, v5
    v_lshlrev_b32 v3, 6, v3
    v_and_b32 v5, 1, v5
    v_lshl_add_u32 v3, v5, 4, v3
    v_add_u32 v3, %d, v3               ; table address: cb*64 + h*16
    s_lshr_b32 s44, s30, 1
    s_lshl_b32 s44, s44, 16
    s_and_b32 s45, s30, 1
    s_lshl_b32 s45, s45, 8
    s_add_u32 s44, s44, s45
    s_mov_b32 s48, %d
    s_cmp_lt_u32 s3, 4
    s_cselect_b32 s49, 0, 1.0
    s_waitcnt lgkmcnt(0)
    """ % (AUX_A, WS_MODP))
    if MP0 in (2, 3): rest_compute(0)
    if RLN == 1 and ET != 1: resets(132, False)
    if ET == 2: tag_setup(); tag_loads()
    mark(k, 1)
    if XT:
        srd(k, 36, 'ws', WS_N, 4 * MB)
        k.e('s_barrier')
        for p in range(4): k.e('ds_read_b128 %s, v2 offset:%d' % (vr(8 + 4 * p, 4), p * 32 * 272))
        for p in range(4):
            k.e('s_waitcnt lgkmcnt(%d)' % (3 - p))
            k.e('buffer_store_dwordx4 %s, v4, s[36:39], s44 offen%s' % (vr(8 + 4 * p, 4), WT))
            k.e('s_add_u32 s44, s44, 16384')
        mark(k, 3)
        signal(k, 'S')
        finish(k)
        k.need(128, AUX_A + 8192)
        return
    X = 24
    k.e('s_barrier')
    for p in range(4): k.e('ds_read_b128 %s, v2 offset:%d' % (vr(8 + 4 * p, 4), p * 32 * 272))
    for p in range(4):
        k.e('s_waitcnt lgkmcnt(%d)' % (3 - p))
        for d in range(4): unpack(k, X + 8 * p + 2 * d, X + 8 * p + 2 * d + 1, 8 + 4 * p + d)
    if TAGP:
        lp = k.newlabel('wf'); le = k.newlabel('we')
        if ET:
            k.e('s_branch %sc' % lp)
        else: tag_setup()
        k.label(lp)
        tag_loads()
        k.label(lp + 'c')
        k.e('s_mov_b64 s[50:51], 0')
        for n in range(8):
            k.e('s_waitcnt vmcnt(%d)' % (7 - n))
            k.e('v_cmp_ne_u64 vcc, s[84:85], %s' % vr(98 + 4 * n, 2))
            k.e('s_or_b64 s[50:51], s[50:51], vcc')
        k.e('s_cbranch_scc0 %s' % le)
        k.e('s_sub_u32 s101, s101, 1')
        k.e('s_sleep %d' % env('P0SLEEP', 1))
        k.e('s_cmp_lg_u32 s101, 0')
        k.e('s_cbranch_scc1 %s' % lp)
        k.label(le)
        mark(k, 2)
        for hh in range(2):
            b = 96 + 4 * hh
            k.e(pk('add', b, b, b + 8)); k.e(pk('add', b + 16, b + 16, b + 24)); k.e(pk('add', 64 + 2 * hh, b, b + 16))
    else:
        srd(k, 96, 'ws', WS_FL, FLSZ)
        lp = k.newlabel('wf'); le = k.newlabel('we')
        k.e("""
        s_lshl_b32 s100, s3, 11
        s_add_u32 s100, s100, %d
        v_lshlrev_b32 v%d, 7, v1
        v_add_u32 v80, %d, v6
        s_mov_b32 s101, 0x100000
        s_mov_b64 exec, 0xffff
        %s:
        buffer_load_dwordx2 %s, v%d, s[96:99], s100 offen sc1
        s_waitcnt vmcnt(0)
        v_cmp_ne_u64 vcc, s[84:85], %s
        s_sub_u32 s101, s101, 1
        s_nop 3
        s_cbranch_vccz %s
        s_mov_b64 exec, vcc
        s_sleep %d
        s_cmp_lg_u32 s101, 0
        s_cbranch_scc1 %s
        %s:
        s_mov_b64 exec, -1
        """ % (FL_MOD * 32, FV + 2, AUX_A, lp, vr(FV, 2), FV + 2, vr(FV, 2), le, env('P0SLEEP', 1), lp, le))
        mark(k, 2)
        for q in range(4):
            k.e('buffer_load_dwordx4 %s, v6, s[40:43], s48 offen sc1' % vr(64 + 4 * q, 4))
            k.e('s_add_u32 s48, s48, 8192')
        k.e('s_waitcnt vmcnt(0)')
        k.e(pk('add', 64, 64, 68)); k.e(pk('add', 66, 66, 70)); k.e(pk('add', 72, 72, 76)); k.e(pk('add', 74, 74, 78))
        k.e(pk('add', 64, 64, 72)); k.e(pk('add', 66, 66, 74))
    for d in range(2): round_bf16_pair(k, 64 + 2 * d, 65 + 2 * d, 68)
    for q in range(4): k.e('v_add_f32 v%d, s49, v%d' % (64 + q, 64 + q))
    for d in range(2): round_bf16_pair(k, 64 + 2 * d, 65 + 2 * d, 68)
    if TAGP:
        k.e('ds_write_b64 v80, v[64:65]')
        k.e('ds_write_b64 v80, v[66:67] offset:512')
    else: k.e('ds_write_b128 v80, v[64:67]')
    k.e('s_waitcnt lgkmcnt(0)')
    k.e('s_barrier')
    SC = 64; SH = 96
    for p in range(4):
        for sub in range(2):
            k.e('ds_read_b128 %s, v3 offset:%d' % (vr(SC + 8 * p + 4 * sub, 4), 4096 + p * 1024 + sub * 32))
            k.e('ds_read_b128 %s, v3 offset:%d' % (vr(SH + 8 * p + 4 * sub, 4), p * 1024 + sub * 32))
    for p in range(4):
        pin = 8 + 4 * p; x = X + 8 * p
        k.e('s_waitcnt lgkmcnt(%d)' % (12 - 4 * p))
        if env('NORND', 0):
            for d in range(4): k.e(pk('fma', x + 2 * d, x + 2 * d, SC + 8 * p + 2 * d, SH + 8 * p + 2 * d))
        else:
            for d in range(4): k.e(pk('mul', x + 2 * d, x + 2 * d, SC + 8 * p + 2 * d))
            for d in range(4): round_bf16_pair(k, x + 2 * d, x + 2 * d + 1, pin + d)
            for d in range(4): k.e(pk('add', x + 2 * d, x + 2 * d, SH + 8 * p + 2 * d))
        for d in range(4): k.e('v_cvt_pk_bf16_f32 v%d, v%d, v%d' % (pin + d, x + 2 * d, x + 2 * d + 1))
        k.e('buffer_store_dwordx4 %s, v4, s[36:39], s44 offen%s' % (vr(pin, 4), WT))
        k.e('s_add_u32 s44, s44, 16384')
    if RLN == 3: resets(132, False)
    mark(k, 3)
    signal(k, 'S')
    finish(k)
    k.need(128, AUX_A + 10240)

def log2(n):
    l = n.bit_length() - 1
    assert 1 << l == n
    return l
class G: pass

def k_gemm(k, c, GM, GN, bm_log2, xm_log2, bn, TM, TN, WM, WN, K, KS, NS, X, Y, pre, pre2, epi, swap=(), aux=None, auxsz=0, auxbase=None,
           pf=None, aux_end=None, side=None, wait=None, sig=None, dep='X', GU=1, RWD=1, post=None, frbase=None, selfsig=False, RR=0, early=None, JG=1, lazyfix=False, SOFT=0, own=None, ownlim=None, altmap=False, prelast=None, DEFER=0, dcols=None, auxpre=None, mid=None, accmap=None, cinit=False, geo=None, tailpre=None):
    g = G()
    name = c.name
    xt = X[0] == 'xt'
    M16 = name in os.environ.get('M16', 'qkv,wo,win,wsp,wout').split(',')
    if xt: X = ('xf',) + X[1:]
    ROLL = env('ROLL_' + name, env('ROLL', 0 if name == 'qkv' else 1))
    LAG = 2 if ROLL else 1
    NS = env('NS_' + name, NS + LAG - 1)
    mb = TM // WM // 32; nb = TN // WN // 32
    S = KS // 16
    xb = TM * KS * 2; yb = TN * KS * 2; STAGE = xb + yb
    nst = K // KS
    solo = c.first and c.last
    g.k = k; g.mb = mb; g.nb = nb; g.TM = TM; g.TN = TN; g.AUX = NS * STAGE if solo or auxbase is None else auxbase
    assert NS * STAGE <= g.AUX
    phase_begin(k, c)
    k.e('''
    v_and_b32 v1, 63, v0               ; lane
    s_mov_b32 s46, s3
    s_and_b32 s47, s2, 7               ; xcd
    s_lshr_b32 s48, s2, 3              ; idx
    s_and_b32 s30, s47, %d
    s_lshl_b32 s30, s30, %d
    s_and_b32 s49, s48, %d
    s_add_u32 s30, s30, s49            ; tm
    s_lshr_b32 s31, s47, %d
    s_mul_i32 s31, s31, %d
    s_lshr_b32 s49, s48, %d
    s_add_u32 s31, s31, s49            ; tn
    ''' % ((1 << xm_log2) - 1, bm_log2, (1 << bm_log2) - 1, xm_log2, bn, bm_log2))
    if altmap:
        k.e('''
        s_and_b32 s30, s47, 3
        s_lshl_b32 s30, s30, 3
        s_and_b32 s49, s48, 3
        s_lshl_b32 s49, s49, 1
        s_add_u32 s30, s30, s49
        s_bfe_u32 s49, s48, 0x10002
        s_add_u32 s30, s30, s49
        ''')
    if env('MAP_' + name, 0):
        k.e('''
        s_lshr_b32 s31, s47, 1
        s_mul_i32 s31, s31, 28
        s_add_u32 s31, s31, s48
        s_and_b32 s30, s47, 1
        s_lshl_b32 s30, s30, 3
        s_and_b32 s49, s31, 7
        s_add_u32 s30, s30, s49
        s_lshr_b32 s31, s31, 3
        ''')
    lcomp = 'L_%s_comp' % name
    set_flag(k, sig)
    if pf or side:
        k.e('s_cmp_ge_u32 s2, %d' % (GM * GN))
        k.e('s_cbranch_scc1 L_%s_pf' % name)
    k.e('s_cmp_ge_u32 s46, 4')
    k.e('s_cbranch_scc1 %s' % lcomp)
    nx = xb // 1024 // 4; ny = yb // 1024 // 4
    assert nx * 4096 == xb and ny * 4096 == yb
    VX = 8; VY = VX + nx
    g.LV = VY + ny
    if X[0] == 'xf':
        C = X[2]; ncb = C // 16
        assert S % nx == 0 or nx % S == 0
        k.e('s_mul_i32 s50, s30, %d' % (TM // 32 * ncb * 1024))
        k.e('s_mul_i32 s51, s46, %d' % nx)
        k.e('s_lshr_b32 s52, s51, %d' % log2(S))
        k.e('s_and_b32 s51, s51, %d' % (S - 1))
        k.e('s_mul_i32 s52, s52, %d' % (ncb * 1024))
        k.e('s_lshl_b32 s51, s51, 10')
        k.e('s_add_u32 s50, s50, s52')
        k.e('s_add_u32 s50, s50, s51')
        k.e('v_lshl_add_u32 v%d, v1, 4, s50' % VX)
        for j in range(1, nx):
            k.e('v_add_u32 v%d, %d, v%d' % (VX + j, (j // S) * ncb * 1024 + (j % S) * 1024, VX))
        xadv = S * 1024
    else:
        ld = X[2]
        assert nx % 2 == 0
        k.e('s_mul_i32 s50, s30, %d' % (TM * ld))
        k.e('s_mul_i32 s51, s46, %d' % (nx * 8 * ld))
        k.e('s_add_u32 s50, s50, s51')
        k.e('v_lshrrev_b32 v2, 3, v1')
        k.e('v_lshl_add_u32 v2, v2, %d, s50' % log2(ld))
        k.e('v_and_b32 v3, 7, v1')
        k.e('v_lshrrev_b32 v4, 4, v1')
        k.e('v_xor_b32 v5, v4, v3')
        k.e('v_lshl_add_u32 v%d, v5, 4, v2' % VX)
        k.e('v_xor_b32 v5, 64, v%d' % VX)
        k.e('v_add_u32 v%d, %d, v5' % (VX + 1, 8 * ld))
        for j in range(2, nx):
            k.e('v_add_u32 v%d, %d, v%d' % (VX + j, (j - j % 2) * 8 * ld, VX + j % 2))
        xadv = KS * 2
    k.e('''
    v_lshrrev_b32 v2, 4, v1            ; u
    v_bfe_u32 v3, v1, 2, 2             ; (i>>2)&3
    v_and_b32 v4, 3, v1                ; i&3
    ''')
    if Y[0] == 'w':
        ld = Y[2]
        NP = TN // 64
        assert ny % NP == 0
        if M16:
            k.e('v_and_b32 v5, 2, v2')
            k.e('v_xor_b32 v4, v4, v5')
        k.e('v_lshrrev_b32 v5, 1, v2')
        k.e('v_lshl_add_u32 v5, v5, 2, v3')
        k.e('v_mul_u32_u24 v5, %d, v5' % ld)
        k.e('v_and_b32 v6, 1, v2')
        k.e('v_lshl_add_u32 v5, v6, 6, v5')
        k.e('v_lshl_add_u32 v5, v4, 4, v5')
        if Y[3] == 'qkv': tstride, segs = 128, [0, 2048, 4096]
        elif Y[3]: tstride, segs = Y[3]
        else: tstride, segs = TN * 2, [p * 128 for p in range(NP)]
        k.e('s_mul_i32 s50, s46, %d' % (ny // NP * 8 * ld))
        k.e('s_mul_i32 s51, s31, %d' % tstride)
        k.e('s_add_u32 s50, s50, s51')
        k.e('v_add_u32 v5, s50, v5')
        for j in range(ny):
            k.e('v_add_u32 v%d, %d, v5' % (VY + j, (j // NP) * 8 * ld + segs[j % NP]))
        yadv = KS * ld
    else:
        C = Y[2]; ncb = C // 16
        NB = TN // 32
        assert ny == NB and S == 4
        if M16:
            k.e('v_and_b32 v5, 2, v2')
            k.e('v_xor_b32 v3, v3, v5')
        k.e('v_lshl_add_u32 v5, v2, 2, v4')
        k.e('v_lshlrev_b32 v5, 4, v5')
        k.e('v_lshl_add_u32 v5, v3, 9, v5')
        k.e('s_lshr_b32 s50, s46, 1')
        k.e('s_mul_i32 s50, s50, %d' % (ncb * 1024))
        k.e('s_and_b32 s51, s46, 1')
        k.e('s_lshl_b32 s51, s51, 8')
        k.e('s_add_u32 s50, s50, s51')
        k.e('s_mul_i32 s51, s31, %d' % (TN // 16 * 1024))
        k.e('s_add_u32 s50, s50, s51')
        k.e('v_add_u32 v%d, s50, v5' % VY)
        for j in range(1, ny):
            k.e('v_add_u32 v%d, %d, v%d' % (VY + j, j * 2048, VY))
        yadv = 2 * ncb * 1024
    k.e('s_mul_i32 s55, s46, %d' % (nx * 1024))
    k.e('s_mul_i32 s56, s46, %d' % (ny * 1024))
    if geo:
        k.e('s_add_u32 s55, s55, %d' % geo[2])
        if geo[0]: k.e('s_add_u32 s56, s56, %d' % geo[0])
    else: k.e('s_add_u32 s56, s56, %d' % xb)
    per = nx + ny
    assert per * NS <= 55 and nst >= 2 * NS
    k.e('s_waitcnt lgkmcnt(0)')
    mark(k, 0)
    if Y[0] == 'w': srd(k, 36, Y[1])
    else: srd(k, 36, 'ws', Y[1], 2048 * Y[2] * 2)
    if X[0] == 'xf': srd(k, 32, 'ws', X[1], 2048 * X[2] * 2)
    else: srd(k, 32, X[1])
    xfl = ' sc1' if X[0] == 'xf' else ''
    yfl = ' sc1' if Y[0] == 'z' else ''
    ntf = os.environ.get('NT_' + name, os.environ.get('NT', ''))
    if 'X' in ntf: xfl += ' nt'
    if 'Y' in ntf: yfl += ' nt'
    ownlds = name == 'wsp' and ZOWN and c.prev == 'win'
    OWN = own if (own and not c.first and (OWNF(name) or ownlds)) else None
    RW = env('RW_' + name, min(RWD, 2) if OWN else RWD); RC = env('RC_' + name, 1)
    assert nst % RW == 0
    if RW > 1:
        k.e('s_mul_i32 s54, s31, %d' % RC)
        k.e('s_add_u32 s54, s54, s30')
    if OWN:
        assert RW <= 2
        k.e(OWN)
        k.e('s_and_b32 s54, s54, 1' if RW > 1 else 's_mov_b32 s54, 0')
    out = []
    RB = 48
    dyn = [None]
    def soff(st, adv):
        if OWN:
            if st < 2: k.e('s_add_u32 s57, s68, %d' % st)
            else:
                k.e('s_cmp_le_u32 s68, %d' % (st - 2))
                k.e('s_cselect_b32 s57, %d, %d' % (st, st - 2))
                k.e('s_xor_b32 s57, s57, s54')
            k.e('s_mul_i32 s57, s57, %d' % adv)
        elif dyn[0] is not None:
            assert RW in (1, 2, 4)
            if RW > 1:
                k.e('s_add_u32 s57, s54, %d' % st)
                k.e('s_and_b32 s57, s57, %d' % (RW - 1))
                k.e('s_add_u32 s57, s57, s59')
                k.e('s_add_u32 s57, s57, %d' % (st // RW * RW))
            else: k.e('s_add_u32 s57, s59, %d' % st)
            k.e('s_mul_i32 s57, s57, %d' % adv)
        elif RW > 1:
            k.e('s_add_u32 s57, s54, %d' % st)
            k.e('s_and_b32 s57, s57, %d' % (RW - 1))
            k.e('s_mul_i32 s57, s57, %d' % adv)
            if st // RW: k.e('s_add_u32 s57, s57, %d' % (st // RW * RW * adv))
        else: k.e('s_mov_b32 s57, %d' % (st * adv))
    def opinfo(op): return (nx, 's55', VX, 32, xadv, xfl) if op == 'X' else (ny, 's56', VY, 36, yadv, yfl)
    def throttle(n):
        if len(out) + n > 60:
            k.e('s_waitcnt vmcnt(40)'); del out[:len(out) - 40]
    def iss(op, st):
        slot = (st % NS) * STAGE
        if geo: slot = (st % geo[3]) * xb if op == 'X' else (st % geo[1]) * yb
        n, base, V, sd, adv, fl = opinfo(op)
        if op == ind and st in Rset:
            if ('r', st) in out:
                last = max(i for i, t in enumerate(out) if t == ('r', st))
                k.e('s_waitcnt vmcnt(%d)' % (len(out) - 1 - last)); del out[:last + 1]
            r0 = RB + Rset.index(st) * n * 4
            for j in range(n):
                o = slot + j * 1024
                k.e('ds_write_b128 v%d, %s offset:%d' % (44 + o // 65536, vr(r0 + 4 * j, 4), o % 65536))
            return
        throttle(n)
        soff(st, adv)
        for j in range(n):
            k.e('s_add_u32 m0, %s, %d' % (base, slot + j * 1024))
            k.e('s_nop 0')
            k.e('buffer_load_dwordx4 v%d, %s, s57 offen%s lds' % (V + j, sr(sd), fl))
            out.append(st)
    def issr(st):
        n, base, V, sd, adv, fl = opinfo(ind)
        throttle(n)
        soff(st, adv)
        r0 = RB + Rset.index(st) * n * 4
        for j in range(n):
            k.e('buffer_load_dwordx4 %s, v%d, %s, s57 offen' % (vr(r0 + 4 * j, 4), V + j, sr(sd)))
            out.append(('r', st))
    def wait_stage(st):
        lg = ' lgkmcnt(%d)' % min(15, opinfo(ind)[0] * len([r_ for r_ in Rset if st < r_ < st + NS - LAG])) if st in Rset else ''
        if st in out:
            last = max(i for i, t in enumerate(out) if t == st)
            k.e('s_waitcnt vmcnt(%d)%s' % (len(out) - 1 - last, lg))
            del out[:last + 1]
        elif lg: k.e('s_waitcnt' + lg)
    I0 = env('I0_' + name, 2)
    ind = 'Y' if dep == 'X' else 'X'
    fusedw = wait and not c.first and not env('WLATE_' + name, 0)
    R = env('RR_' + name, RR) if fusedw else 0
    Rset = sorted(set(NS + (2 * i + 1) * (nst - NS) // (2 * R) for i in range(R))) if R else []
    if Rset:
        assert RB + len(Rset) * opinfo(ind)[0] * 4 <= 256
        k.need(RB + len(Rset) * opinfo(ind)[0] * 4, 0)
        k.e('v_lshl_add_u32 v44, v1, 4, %s' % opinfo(ind)[1])
        k.e('v_add_u32 v45, 0x10000, v44')
    if xt:
        DX = env('DX', 4); NR = 64; TB = NR + DX * 8; TX = TB + 32
        assert nx == 2 and S == 2
        k.need(TX + 16, 0)
        k.e('v_lshl_add_u32 v44, v1, 4, s55')
        k.e('v_add_u32 v45, 0x10000, v44')
        k.e('v_lshrrev_b32 v46, 5, v1')
        k.e('v_lshlrev_b32 v46, 4, v46')
        k.e('v_add_u32 v46, %d, v46' % AUX_A)
        def ldn(st):
            soff(st, xadv)
            for j in range(2):
                k.e('buffer_load_dwordx4 %s, v%d, s[32:35], s57 offen sc1' % (vr(NR + (st % DX) * 8 + 4 * j, 4), VX + j))
                out.append(('n', st))
        TW = TX + 16
        k.need(TW + 8, 0)
        def tabrd(st):
            soff(st, 128)
            k.e('v_add_u32 v47, s57, v46')
            for j in range(2):
                for sub in range(2):
                    k.e('ds_read_b128 %s, v47 offset:%d' % (vr(TB + 16 * j + 4 * sub, 4), 4096 + j * 64 + sub * 32))
                    k.e('ds_read_b128 %s, v47 offset:%d' % (vr(TB + 16 * j + 8 + 4 * sub, 4), j * 64 + sub * 32))
        def xform(st):
            if ('n', st) in out:
                last = max(i for i, t in enumerate(out) if t == ('n', st))
                k.e('s_waitcnt vmcnt(%d)' % (len(out) - 1 - last)); del out[:last + 1]
            r0 = NR + (st % DX) * 8
            for d in range(8): unpack(k, TX + 2 * d, TX + 2 * d + 1, r0 + d)
            if st + DX < nst: ldn(st + DX)
            k.e('s_waitcnt lgkmcnt(0)')
            for j in range(2):
                for e in range(8): k.e('v_fma_f32 v%d, v%d, v%d, v%d' % (TX + 8 * j + e, TX + 8 * j + e, TB + 16 * j + e, TB + 16 * j + 8 + e))
            for j in range(2):
                for d in range(4): k.e('v_cvt_pk_bf16_f32 v%d, v%d, v%d' % (TW + 4 * j + d, TX + 8 * j + 2 * d, TX + 8 * j + 2 * d + 1))
                o = (st % NS) * STAGE + j * 1024
                k.e('ds_write_b128 v%d, %s offset:%d' % (44 + o // 65536, vr(TW + 4 * j, 4), o % 65536))
            if st + 1 < nst: tabrd(st + 1)
        for st in range(NS): iss('Y', st)
        k.e('s_barrier')
        mark(k, 1)
        out.extend(['p'] * 4)
        mod_table(k, 24, between=lambda: [ldn(st) for st in range(DX)], nb=2 * DX)
        del out[:len(out) - 2 * DX]
        if env('XPRIO', 0): k.e('s_setprio %d' % env('XPRIO', 0))
        XL = env('XL', 2)
        assert XL >= 2
        tabrd(0)
        for st in range(XL): xform(st)
        def capture(fn):
            n0 = len(k.lines); fn(); got = k.lines[n0:]; del k.lines[n0:]
            return got
        def step(st):
            lg = ' lgkmcnt(0)' if st + XL > nst else ''
            if st in out:
                last = max(i for i, t in enumerate(out) if t == st)
                k.e('s_waitcnt vmcnt(%d)%s' % (len(out) - 1 - last, lg)); del out[:last + 1]
            elif lg: k.e('s_waitcnt' + lg)
            if st == 0: mark(k, 2)
            k.e('s_barrier')
            sx = st + XL; sy = st + NS - LAG
            doy = st >= LAG and sy < nst
            if sx >= nst:
                if doy: iss('Y', sy)
                return
            if ('n', sx) in out:
                last = max(i for i, t in enumerate(out) if t == ('n', sx))
                nw = 's_waitcnt vmcnt(%d)' % (len(out) - 1 - last + (1 if doy else 0)); del out[:last + 1]
            else: nw = None
            yl = capture(lambda: iss('Y', sy)) if doy else []
            yp = []; cur = []
            for l in yl:
                if 's_nop' in l: continue
                cur.append(l)
                if 'buffer_load' in l: yp.append(cur); cur = []
            nl = capture(lambda: ldn(sx + DX)) if (sx + DX < nst or dyn[0] is not None) else []
            nl = [l.replace('s57', 's58') for l in nl]
            npc = [nl[:-1], nl[-1:]] if nl else [[], []]
            r0 = NR + (sx % DX) * 8
            un = capture(lambda: [unpack(k, TX + 2 * d, TX + 2 * d + 1, r0 + d) for d in range(8)])
            fm = ['    v_fma_f32 v%d, v%d, v%d, v%d' % (TX + 8 * j + e, TX + 8 * j + e, TB + 16 * j + e, TB + 16 * j + 8 + e) for j in range(2) for e in range(8)]
            def put(piece):
                if len(piece) >= 2 and 'm0' in piece[-2]: piece = piece[:-1] + ['    s_nop 0', piece[-1]]
                k.lines.extend(piece)
            if yp: put(yp[0])
            if nw: k.e(nw)
            k.lines.extend(un[:8])
            if yp: put(yp[1])
            k.lines.extend(un[8:])
            if yp: put(yp[2])
            k.e('s_waitcnt lgkmcnt(0)')
            k.lines.extend(fm[:10])
            k.lines.extend(npc[0])
            k.lines.extend(fm[10:])
            if sx + 1 < nst: tabrd(sx + 1)
            k.lines.extend(npc[1])
            for j in range(2):
                for d in range(4): k.e('v_cvt_pk_bf16_f32 v%d, v%d, v%d' % (TW + 4 * j + d, TX + 8 * j + 2 * d, TX + 8 * j + 2 * d + 1))
                o = (sx % NS) * STAGE + j * 1024
                k.e('ds_write_b128 v%d, %s offset:%d' % (44 + o // 65536, vr(TW + 4 * j, 4), o % 65536))
        assert NS == 4 and DX == 4 and XL == 2 and LAG == 1 and nst == 32
        for st in range(5): step(st)
        k.e('s_mov_b32 s59, 0')
        k.label('L_%s_xl' % name)
        dyn[0] = 0
        before = list(out)
        for st in range(5, 9): step(st)
        dyn[0] = None
        sh = lambda t, d: (t[0], t[1] + d) if isinstance(t, tuple) else t + d
        assert [sh(t, 4) for t in before] == out, (before, out)
        k.e('s_add_u32 s59, s59, 4')
        k.e('s_cmp_lt_u32 s59, 24')
        k.e('s_cbranch_scc1 L_%s_xl' % name)
        out[:] = [sh(t, 20) for t in out]
        for st in range(29, 32): step(st)
    elif wait and not c.first and env('WLATE_' + name, 0):
        handoff(k, wait[0], wait[1])
    if xt: pass
    elif geo:
        yb0, NSY, xb0, NSX, NPRE, prelim = geo
        assert fusedw and dep == 'X' and not aux and not aux_end and not OWN
        if NPRE and prelim:
            l = k.newlabel('hp')
            k.e('s_cmp_lt_u32 s2, %d' % prelim); k.e('s_cbranch_scc1 %s' % l)
            for st in range(NPRE): iss('Y', st)
            k.label(l)
        WP = env('WPRE_' + name, NSY)
        for st in range(NPRE, WP): iss('Y', st)
        if auxpre: out.extend(['aux'] * auxpre(g))
        handoff(k, wait[0], wait[1])
        mark(k, 1)
        for st in range(I0): iss('X', st)
        wait_stage(0); mark(k, 2); k.e('s_barrier')
        for st in range(I0, NSX): iss('X', st)
        for st in range(max(WP, NPRE), NSY): iss('Y', st)
        for st in range(1, nst):
            wait_stage(st); k.e('s_barrier')
            if st >= LAG:
                if st + NSX - LAG < nst: iss('X', st + NSX - LAG)
                if st + NSY - LAG < nst: iss('Y', st + NSY - LAG)
    elif fusedw:
        WPRE = env('WPRE_' + name, 2 if name == 'win' else NS)
        iss0 = iss
        def iss(op, st):
            if op == dep and WPRE <= st < NS: iss0(ind, st)
            iss0(op, st)
        for st in range(WPRE): iss(ind, st)
        for st in Rset: issr(st)
        if auxpre: out.extend(['aux'] * auxpre(g))
        if ownlds and LPW:
            k.e('s_barrier')
            handoff(k, wait[0], wait[1], role='W')
            mark(k, 1)
            for st in range(2, NS): iss(dep, st)
            wait_stage(0); mark(k, 2); k.e('s_barrier')
        elif ownlds:
            handoff(k, wait[0], wait[1])
            mark(k, 1)
            I1 = env('I1_' + name, 3)
            for st in range(2, I1): iss(dep, st)
            wait_stage(0); mark(k, 2); k.e('s_barrier')
            for st in range(I1, NS): iss(dep, st)
        elif OWN:
            l1 = k.newlabel('no'); l2 = k.newlabel('no')
            k.e('s_barrier')
            if ownlim:
                k.e('s_cmp_ge_u32 s2, %d' % ownlim); k.e('s_cbranch_scc1 %s' % l1)
            n0 = len(k.lines)
            iss(dep, 0); iss(dep, 1)
            dup = k.lines[n0:]
            k.label(l1)
            handoff(k, wait[0], wait[1])
            mark(k, 1)
            if ownlim:
                k.e('s_cmp_lt_u32 s2, %d' % ownlim); k.e('s_cbranch_scc1 %s' % l2)
                k.lines.extend(dup)
                k.label(l2)
            I1 = env('I1_' + name, 3)
            for st in range(2, I1): iss(dep, st)
            wait_stage(0); mark(k, 2); k.e('s_barrier')
            for st in range(I1, NS): iss(dep, st)
        else:
            handoff(k, wait[0], wait[1])
            mark(k, 1)
            for st in range(I0): iss(dep, st)
            wait_stage(0); mark(k, 2); k.e('s_barrier')
            for st in range(I0, NS): iss(dep, st)
    else:
        for st in range(I0): iss(ind, st); iss(dep, st)
        mark(k, 1)
        wait_stage(0); mark(k, 2); k.e('s_barrier')
        for st in range(I0, NS): iss(ind, st); iss(dep, st)
    FS = bool(Rset) or env('STATIC', 0) or xt or geo
    if FS and not xt and not geo:
        for st in range(1, nst):
            if st == nst - 1: k.e('s_waitcnt vmcnt(0) lgkmcnt(0)')
            else: wait_stage(st)
            if st == nst - 1 and aux_end: aux_end(g)
            k.e('s_barrier')
            nx_st = st + NS - LAG
            if st >= LAG and nx_st < nst:
                iss(dep, nx_st); iss(ind, nx_st)
                if nx_st == nst - 1 and aux:
                    out.extend(['aux'] * aux(g))
    for st in range(1, NS if not FS else 0):
        wait_stage(st); k.e('s_barrier')
        if st >= LAG: iss('Y', st + NS - LAG); iss('X', st + NS - LAG)
    if not FS:
        s0 = 2 * NS - LAG
        k.e('s_add_u32 s60, s55, %d' % (NS * STAGE))
        k.e('s_add_u32 s55, s55, %d' % ((s0 % NS) * STAGE))
        k.e('s_add_u32 s56, s56, %d' % ((s0 % NS) * STAGE))
        k.e('s_mov_b32 s57, %d' % (s0 * xadv))
        k.e('s_mov_b32 s58, %d' % (s0 * yadv))
        k.e('s_mov_b32 s59, %d' % s0)
        ll = 'L_%s_lloop' % name
        k.label(ll)
        if OWN:
            k.e('s_sub_u32 s57, s59, 2')
            k.e('s_cmp_le_u32 s68, s57')
            k.e('s_cselect_b32 s57, s59, s57')
            k.e('s_xor_b32 s57, s57, s54')
            k.e('s_mul_i32 s58, s57, %d' % yadv)
            k.e('s_mul_i32 s57, s57, %d' % xadv)
        elif RW > 1:
            k.e('s_add_u32 s57, s54, s59')
            k.e('s_and_b32 s57, s57, %d' % (RW - 1))
            k.e('s_andn2_b32 s58, s59, %d' % (RW - 1))
            k.e('s_or_b32 s57, s57, s58')
            k.e('s_mul_i32 s58, s57, %d' % yadv)
            k.e('s_mul_i32 s57, s57, %d' % xadv)
        k.e('s_waitcnt vmcnt(%d)' % (per * (NS - 1 - LAG)))
        k.e('s_barrier')
        for j in range(ny):
            k.e('s_add_u32 m0, s56, %d' % (j * 1024))
            k.e('s_nop 0')
            k.e('buffer_load_dwordx4 v%d, s[36:39], s58 offen%s lds' % (VY + j, yfl))
        for j in range(nx):
            k.e('s_add_u32 m0, s55, %d' % (j * 1024))
            k.e('s_nop 0')
            k.e('buffer_load_dwordx4 v%d, s[32:35], s57 offen%s lds' % (VX + j, xfl))
        k.e('s_add_u32 s57, s57, %d' % xadv)
        k.e('s_add_u32 s58, s58, %d' % yadv)
        k.e('s_add_u32 s55, s55, %d' % STAGE)
        k.e('s_add_u32 s56, s56, %d' % STAGE)
        k.e('s_cmp_eq_u32 s55, s60')
        k.e('s_cselect_b32 s61, %d, 0' % (NS * STAGE))
        k.e('s_sub_u32 s55, s55, s61')
        k.e('s_sub_u32 s56, s56, s61')
        k.e('s_add_u32 s59, s59, 1')
        k.e('s_cmp_lt_u32 s59, %d' % nst)
        k.e('s_cbranch_scc1 %s' % ll)
        naux = aux(g) if aux else 0
        NXT = dict(qkv=('attn', 1), wo=('win', 1), win=('wsp', 2), wsp=('wout', 1))
        if CPF >= 2:
            if name in NXT: naux += code_pf(k, 'L_%s_epi' % name, 'L_%s_epi' % NXT[name][0], NXT[name][1] * 8192, vt=22, vd=23)
            else: naux += code_pf(k, 'L_%s_epi' % name, 'L_text_end', 8192, vt=22, vd=23)
        if tailpre: tailpre[0](k)
        for st in range(nst - NS + LAG, nst):
            k.e('s_waitcnt vmcnt(%d)' % (per * (nst - st - 1) + naux if (st < nst - 1 or tailpre) else 0))
            if st == nst - 1 and aux_end: aux_end(g)
            k.e('s_barrier')
            if tailpre: naux += tailpre[1](k, st - (nst - NS + LAG))
    LE = env('LE_' + name, 2 if name in ('wo', 'wsp') else 0)
    g.LE = 0 if c.last else LE
    if mid: mid(g)
    if not c.last and not LE: k.e('s_barrier')
    if post: post(g)
    if not c.last and LE: k.e('s_barrier')
    signal(k)
    endpgm(k)
    k.label(lcomp)
    k.e('s_setprio 1')
    k.e('s_sub_u32 s46, s46, 4')
    k.e('s_lshr_b32 s50, s46, %d' % log2(WN))
    k.e('s_and_b32 s51, s46, %d' % (WN - 1))
    ACC = 8
    nacc = mb * nb * 16
    FR = frbase if frbase else ACC + nacc
    GU = env('GU_' + name, GU)
    g.acc = lambda i, j: ACC + (accmap(i, j) if accmap else i * nb + j) * 16
    g.M16 = M16
    k.e('v_and_b32 v3, 31, v1')
    k.e('v_lshrrev_b32 v4, 5, v1')
    if M16:
        JG = env('JG_' + name, JG)
        KSN = KS // 32; NU = KSN * JG; nbj = nb // JG
        XA = FR + max(16 * mb + 16 * nbj, 72 if name == 'win' else 0)
        nxa = KSN if X[0] == 'rm' else 1
        nya = 2
    else:
        NU = S // GU
        assert NU % 2 == 0
        fs1 = (mb + nb) * 4
        fsz = fs1 * GU
        XA = FR + 2 * fsz
        nxa = S if X[0] == 'rm' else 1
        nya = 1
    XB = XA; XC = XA + nxa; YB = XC + nxa; YC = YB + nya
    g.free = YC + nya
    g.FR = FR
    NP = TN // 64; NB = TN // 32
    if Y[0] == 'w':
        if Y[3] == 'qkv': ywave = 's_lshl_b32 s52, s51, 8'
        else:
            assert nb % 2 == 0
            ywave = 's_mul_i32 s52, s51, %d' % (nb // 2 * 1024)
        def yblk(j): return j * 1024 if Y[3] == 'qkv' else (j // 2) * 1024 + (j % 2) * 256
    else: ywave = 's_mul_i32 s52, s51, %d' % (nb * 1024)
    if M16:
        k.e('v_and_b32 v5, 15, v1')
        k.e('v_lshrrev_b32 v6, 4, v1')
        if X[0] == 'xf':
            k.e('s_mul_i32 s52, s50, %d' % (mb * S * 1024))
            if geo: k.e('s_add_u32 s52, s52, %d' % geo[2])
            k.e('v_lshl_add_u32 v7, v5, 4, s52')
            k.e('v_lshl_add_u32 v%d, v6, 9, v7' % XB)
        else:
            k.e('s_mul_i32 s52, s50, %d' % (mb * 4096))
            k.e('v_lshl_add_u32 v2, v5, 7, s52')
            k.e('v_lshrrev_b32 v5, 1, v5')
            for ks in range(KSN):
                k.e('v_add_u32 v7, %d, v6' % (4 * ks))
                k.e('v_xor_b32 v7, v7, v5')
                k.e('v_lshl_add_u32 v%d, v7, 4, v2' % (XB + ks))
        k.e('v_mul_u32_u24 v5, %d, v4' % (2 * NP * 1024 if Y[0] == 'w' else NB * 1024))
        k.e('v_and_b32 v6, 1, v6')
        k.e('v_lshl_add_u32 v5, v6, 9, v5')
        k.e('v_lshl_add_u32 v5, v6, %d, v5' % (5 if Y[0] == 'w' else 7))
        k.e('v_bfe_u32 v6, v1, 2, 2')
        k.e('v_lshl_add_u32 v5, v6, %d, v5' % (6 if Y[0] == 'w' else 4))
        k.e('v_bfe_u32 v6, v1, 1, 1')
        k.e('v_lshl_add_u32 v5, v6, %d, v5' % (3 if Y[0] == 'w' else 6))
        k.e('v_and_b32 v6, 1, v1')
        k.e('v_lshl_add_u32 v5, v6, %d, v5' % (4 if Y[0] == 'w' else 3))
        k.e(ywave)
        k.e('s_add_u32 s52, s52, %d' % (geo[0] if geo else xb))
        k.e('v_add_u32 v%d, s52, v5' % YB)
        k.e('v_xor_b32 v%d, %d, v%d' % (YB + 1, 32 if Y[0] == 'w' else 128, YB))
    else:
        if X[0] == 'xf':
            k.e('s_mul_i32 s52, s50, %d' % (mb * S * 1024))
            k.e('v_lshl_add_u32 v%d, v1, 4, s52' % XB)
        else:
            assert KS == 64
            k.e('s_mul_i32 s52, s50, %d' % (mb * 4096))
            k.e('v_bfe_u32 v5, v3, 1, 3')
            k.e('v_lshl_add_u32 v6, v3, 7, s52')
            for ss in range(S):
                k.e('v_add_u32 v7, %d, v4' % (2 * ss))
                k.e('v_xor_b32 v7, v7, v5')
                k.e('v_lshl_add_u32 v%d, v7, 4, v6' % (XB + ss))
        k.e("""
        v_lshlrev_b32 v5, 9, v4            ; h*512
        v_bfe_u32 v6, v1, 2, 2             ; r
        v_lshl_add_u32 v5, v6, %d, v5
        v_bfe_u32 v6, v1, 4, 1             ; G&1
        v_lshl_add_u32 v5, v6, %d, v5
        v_bfe_u32 v6, v1, 1, 1             ; c>>1
        v_and_b32 v7, 1, v1                ; c&1
        """ % ((6, 5) if Y[0] == 'w' else (4, 7)))
        if Y[0] == 'w':
            k.e('v_lshl_add_u32 v5, v6, 4, v5')
            k.e('v_lshl_add_u32 v5, v7, 3, v5')
        else:
            k.e('v_lshl_add_u32 v5, v7, 6, v5')
            k.e('v_lshl_add_u32 v5, v6, 3, v5')
        k.e(ywave)
        k.e('s_add_u32 s52, s52, %d' % xb)
        k.e('v_add_u32 v%d, s52, v5' % YB)
    k.e('s_waitcnt lgkmcnt(0)')
    mark(k, 0)
    pre(g)
    if M16:
        def xr16(sp, ks, i, rh): return FR + (sp[0] if isinstance(sp, tuple) else (sp * KSN + ks) % 2) * 8 * mb + (2 * i + rh) * 4
        def yr16(sp, u, j, t): return FR + 16 * mb + (sp[1] if isinstance(sp, tuple) else (sp * NU + u) % 2) * 8 * nbj + ((j % nbj) * 2 + t) * 4
        def cols(jg, sp): return sp[2] if isinstance(sp, tuple) else range(jg * nbj, (jg + 1) * nbj)
        def reads(u, sp=0):
            ks = u // JG; jg = u % JG
            xr = []; yr = []
            if jg == 0 or isinstance(sp, tuple):
                for i in range(mb):
                    for rh in range(2):
                        if X[0] == 'xf': xr.append('ds_read_b128 %s, v%d offset:%d' % (vr(xr16(sp, ks, i, rh), 4), XC, (i * S + 2 * ks) * 1024 + rh * 256))
                        else: xr.append('ds_read_b128 %s, v%d offset:%d' % (vr(xr16(sp, ks, i, rh), 4), XC + ks, i * 4096 + rh * 2048))
            for j in cols(jg, sp):
                for t in range(2):
                    for rd in range(2):
                        o = (4 * ks + rd) * NP * 1024 + yblk(j) if Y[0] == 'w' else (2 * ks * NB + j) * 1024 + rd * 256
                        yr.append('ds_read_b64_tr_b16 %s, v%d offset:%d' % (vr(yr16(sp, u, j, t) + 2 * rd, 2), YC + t, o))
            return xr[:1] + yr[:2] + xr[1:] + yr[2:]
        def mfmas(u, first, sp=0):
            ks = u // JG; jg = u % JG
            out = []
            for j in cols(jg, sp):
                for t in range(2):
                    for i in range(mb):
                        for rh in range(2):
                            x_ = xr16(sp, ks, i, rh); y_ = yr16(sp, u, j, t)
                            if j in swap: a = g.acc(i, j) + 8 * rh + 4 * t; p, q = x_, y_
                            else: a = g.acc(i, j) + 8 * t + 4 * rh; p, q = y_, x_
                            out.append('v_mfma_f32_16x16x32_bf16 %s, %s, %s, %s' % (vr(a, 4), vr(p, 4), vr(q, 4), '0' if first and ks == 0 and not cinit else vr(a, 4)))
            return out
        def fix(i, j):
            a = g.acc(i, j)
            for hb in range(2):
                for e in range(4):
                    k.e('%s v%d, v%d' % ('v_permlane32_swap_b32' if j in swap else 'v_permlane16_swap_b32', a + 8 * hb + e, a + 8 * hb + 4 + e))
    else:
        def yoff(j, ss, rd):
            return (2 * ss + rd) * NP * 1024 + yblk(j) if Y[0] == 'w' else (ss * NB + j) * 1024 + rd * 256
        def xf(ss, i): return FR + ((ss // GU) % 2) * fsz + (ss % GU) * fs1 + i * 4
        def yf(ss, j): return FR + ((ss // GU) % 2) * fsz + (ss % GU) * fs1 + (mb + j) * 4
        def reads1(ss):
            xr = []; yr = []
            for i in range(mb):
                if X[0] == 'xf':
                    xr.append('ds_read_b128 %s, v%d offset:%d' % (vr(xf(ss, i), 4), XC, (i * S + ss) * 1024))
                else:
                    xr.append('ds_read_b128 %s, v%d offset:%d' % (vr(xf(ss, i), 4), XC + ss, i * 4096))
            for j in range(nb):
                for rd in range(2):
                    yr.append('ds_read_b64_tr_b16 %s, v%d offset:%d' % (vr(yf(ss, j) + 2 * rd, 2), YC, yoff(j, ss, rd)))
            return [xr[0]] + yr[:2] + xr[1:] + yr[2:]
        def reads(u, sp=0): return [r for ss in range(u * GU, (u + 1) * GU) for r in reads1(ss)]
        def mfmas(u, first, sp=0):
            out = []
            for ss in range(u * GU, (u + 1) * GU):
                for j in range(nb):
                    for i in range(mb):
                        a = g.acc(i, j)
                        c_ = '0' if first and ss == 0 else vr(a, 16)
                        p, q = (xf(ss, i), yf(ss, j)) if j in swap else (yf(ss, j), xf(ss, i))
                        out.append('v_mfma_f32_32x32x16_bf16 %s, %s, %s, %s' % (vr(a, 16), vr(p, 4), vr(q, 4), c_))
            return out
        def fix(i, j): pass
    g.fix = fix
    def setaddr():
        for t in range(nxa): k.e('v_add_u32 v%d, s53, v%d' % (XC + t, XB + t))
        for t in range(nya): k.e('v_add_u32 v%d, s%d, v%d' % (YC + t, 52 if geo else 53, YB + t))
    RPGV = [env('RPG2_' + name, (5 if mb * nb == 2 else (2 if name == 'qkv' else 3)) * (1 if M16 else 2))]
    import re
    def regs_of(txt):
        return [(int(a_), int(b_)) for a_, b_ in re.findall(r'v\[(\d+):(\d+)\]', txt)]
    def advance():
        n0 = len(k.lines)
        if geo:
            k.e('s_add_u32 s53, s53, %d' % xb)
            k.e('s_and_b32 s53, s53, %d' % (geo[3] * xb - 1))
            k.e('s_add_u32 s52, s52, %d' % yb)
            k.e('s_cmp_eq_u32 s52, %d' % (geo[1] * yb))
            k.e('s_cselect_b32 s52, 0, s52')
        else:
            k.e('s_add_u32 s53, s53, %d' % STAGE)
            k.e('s_cmp_eq_u32 s53, %d' % (NS * STAGE))
            k.e('s_cselect_b32 s53, 0, s53')
        setaddr()
        got = [l.strip() for l in k.lines[n0:]]; del k.lines[n0:]
        return got
    EARLY = env('EARLYADV', 1)
    RM = [ROLL]
    def unit(u, first, rs, sp, extra):
        ms = mfmas(u, first, sp)
        prev = reads(u, sp)
        dst = [regs_of(r)[0] for r in prev]
        ROLL = RM[0]
        covered = -1 if ROLL else len(prev); issued = 0; xi = 0
        WMAX = env('WMAX_' + name, env('WMAX', 9))
        nspread = len(ms) - (min(len(extra) // 2 + 1, len(ms) // 3) if extra else 0)
        for mi, m in enumerate(ms):
            ops = regs_of(m)[1:3]
            need = max(i for i, d in enumerate(dst) if any(o[0] <= d[0] <= o[1] for o in ops))
            if need > covered:
                n = min(len(prev) - 1 - need + issued, WMAX)
                k.e('s_waitcnt lgkmcnt(%d)' % n)
                covered = len(prev) - 1 - (n - issued) if n >= issued else len(prev) - 1
            k.e(m)
            e = min(len(rs), -(-len(rs) * (mi + 1) // nspread) if ROLL == 1 else -(-RPGV[0] * (mi + 1) // 2))
            if issued == len(rs):
                for _ in range(2):
                    if xi < len(extra): k.e(extra[xi]); xi += 1
            while issued < e: k.e(rs[issued]); issued += 1
        while issued < len(rs): k.e(rs[issued]); issued += 1
        while xi < len(extra): k.e(extra[xi]); xi += 1
    def stage(first, last, sp, tail=()):
        for u in range(NU):
            if u == NU - 1 and not last and not EARLY:
                for x in advance(): k.e(x)
            if u < NU - 1: rs = reads(u + 1, sp)
            elif last: rs = []
            else: rs = reads(0, sp ^ 1)
            extra = []
            if EARLY and not last and u == (NU - 2) % NU: extra = advance()
            if u == NU - 1: extra = extra + list(tail)
            if not RM[0] or (last and u == NU - 1 and not c.last and not LE): k.e('s_waitcnt lgkmcnt(0)')
            if u == NU - 1 and not (last and (c.last or LE)): k.e('s_barrier')
            unit(u, first, rs, sp, extra)
    k.e('s_mov_b32 s53, 0')
    if geo: k.e('s_mov_b32 s52, 0')
    setaddr()
    if xt:
        handoff_multi(k, [(4, 's_mov_b32 s100, %d' % FL_MOD, 64), (5, 's_mov_b32 s100, %d' % (FL_MOD + 256), 64), (6, wait[0], wait[1])])
        mod_table(k, FR)
    elif wait and not (ownlds and LPW): handoff(k, wait[0], wait[1], role='C')
    if early: early(g)
    k.e('s_barrier')
    mark(k, 1)
    for r in reads(0): k.e(r)
    if EARLY and NU == 1:
        for x in advance(): k.e(x)
    DEFER = env('DEFER_' + name, DEFER)
    npair = (nst - 1 - max(DEFER, 1)) // 2
    assert nst % 2 == 0 and (DEFER == 0 or (DEFER % 2 == 1 and M16 and KSN == 1 and not LE and DEFER <= NS))
    soft = env('SOFT_' + name, SOFT)
    srp = env('SRP_' + name, 1 if name == 'qkv' else 2)
    segs_ = [(npair, RPGV[0], ROLL)] if not soft else [(soft, srp, 0), (npair - soft, RPGV[0], ROLL)]
    RPGV[0] = segs_[0][1]; RM[0] = segs_[0][2]
    stage(True, False, 0)
    pre2(g)
    for si, (cnt_, rp_, rm_) in enumerate(segs_):
        RPGV[0] = rp_; RM[0] = rm_
        k.e('s_mov_b32 s54, %d' % cnt_)
        lp = 'L_%s_loop%s' % (name, si or '')
        k.label(lp)
        stage(False, False, 1); stage(False, False, 0, tail=['s_sub_u32 s54, s54, 1', 's_cmp_lg_u32 s54, 0'])
        k.e('s_cbranch_scc1 %s' % lp)
    k.label('L_%s_epi' % name)
    if prelast: prelast(g)
    def addr_for(st):
        o = (st % NS) * STAGE
        return ['v_add_u32 v%d, %d, v%d' % (XC, o, XB)] + ['v_add_u32 v%d, %d, v%d' % (YC + t, o, YB + t) for t in range(nya)]
    if DEFER:
        s0_ = nst - DEFER
        c0, c1 = dcols
        y0 = NU % 2
        for n_ in range(DEFER):
            par = ((1 + n_) % 2, (y0 + n_) % 2, c0)
            if n_ < DEFER - 1:
                for x in addr_for(s0_ + n_ + 1): k.e(x)
                rs = reads(0, (par[0] ^ 1, par[1] ^ 1, c0))
            else: rs = []
            if not RM[0] or (n_ == 0 and JG == 1): k.e('s_waitcnt lgkmcnt(0)')
            if n_ < DEFER - 1: k.e('s_barrier')
            unit(0, False, rs, par, [])
        def deferred():
            for x in addr_for(s0_): k.e(x)
            for r in reads(0, (0, 0, c1)): k.e(r)
            for n_ in range(DEFER):
                par = (n_ % 2, n_ % 2, c1)
                if n_ < DEFER - 1:
                    for x in addr_for(s0_ + n_ + 1): k.e(x)
                    rs = reads(0, (par[0] ^ 1, par[1] ^ 1, c1))
                else: rs = []
                if not RM[0] or n_ == DEFER - 1: k.e('s_waitcnt lgkmcnt(0)')
                if n_ == DEFER - 1: k.e('s_barrier')
                unit(0, False, rs, par, [])
            k.e('s_nop 7')
        g.deferred = deferred
    else:
        g.deferred = None
        stage(False, True, 1)
    mark(k, 2)
    if M16:
        k.e('s_nop 7')
        if not lazyfix:
            for j in range(nb):
                for i in range(mb): fix(i, j)
            k.e('s_nop 1')
    epi(g)
    if not selfsig:
        if g.LE == 1 and not getattr(g, 'ended', 0): k.e('s_barrier')
        signal(k, 'C')
        if g.LE == 2: k.e('s_barrier')
    if side:
        endpgm(k)
        k.label('L_%s_pf' % name)
        k.e('s_sub_u32 s30, s2, %d' % (GM * GN))
        k.e('s_cmp_ge_u32 s30, %d' % side[0])
        k.e('s_cbranch_scc1 L_%s_pfe' % name)
        side[1](k, 0 if solo else AUX_B + 4096)
        k.label('L_%s_pfe' % name)
        signal(k, 'A')
    if pf:
        endpgm(k)
        k.label('L_%s_pf' % name)
        npf = 256 - GM * GN
        per_wg = SIZES[pf] // npf
        assert per_wg % (8192 * 2) == 0
        k.e('s_sub_u32 s30, s2, %d' % (GM * GN))
        k.e('s_mul_i32 s30, s30, %d' % per_wg)
        if env('PFOFF', 0): k.e('s_mov_b32 s30, 0x40000000')
        k.e('v_lshlrev_b32 v2, 4, v0')
        k.e('s_mov_b32 s31, %d' % (per_wg // 16384))
        k.e('s_waitcnt lgkmcnt(0)')
        srd(k, 32, pf)
        k.label('L_%s_pfl' % name)
        k.e('buffer_load_dwordx4 v[8:11], v2, s[32:35], s30 offen')
        k.e('s_add_u32 s30, s30, 8192')
        k.e('buffer_load_dwordx4 v[12:15], v2, s[32:35], s30 offen')
        k.e('s_add_u32 s30, s30, 8192')
        k.e('s_waitcnt vmcnt(6)')
        k.e('s_sub_u32 s31, s31, 1')
        k.e('s_cmp_lg_u32 s31, 0')
        k.e('s_cbranch_scc1 L_%s_pfl' % name)
        if env('L2W', 0): l2warm(k)
        signal(k, 'A')
    finish(k)
    assert g.free <= 256, g.free
    k.need(g.free, max(NS * STAGE, g.AUX + auxsz, (AUX_B + 12288) if side and not solo else 0))

def l2warm(k):
    k.e("""
    s_sub_u32 s30, s2, 224
    s_lshr_b32 s30, s30, 3             ; helper index
    s_and_b32 s31, s2, 3
    s_lshl_b32 s31, s31, 2
    s_add_u32 s31, s31, s30
    s_lshl_b32 s31, s31, 19            ; 128 rows * 4KB
    s_mov_b32 s44, %d
    """ % 32)
    if env('L2W', 0) & 1:
        srd(k, 32, 'w_sp')
        k.label('L_l2x')
        k.e("""
        buffer_load_dwordx4 v[8:11], v2, s[32:35], s31 offen
        s_add_u32 s31, s31, 8192
        buffer_load_dwordx4 v[12:15], v2, s[32:35], s31 offen
        s_add_u32 s31, s31, 8192
        s_waitcnt vmcnt(6)
        s_sub_u32 s44, s44, 1
        s_cmp_lg_u32 s44, 0
        s_cbranch_scc1 L_l2x
        """)
    if env('L2W', 0) & 2:
        handoff(k, 's_bfe_u32 s100, s2, 0x10002\ns_mul_i32 s100, s100, 7\ns_min_u32 s101, s3, 6\ns_add_u32 s100, s100, s101\ns_lshl_b32 s100, s100, 8\ns_add_u32 s100, s100, %d' % FL_WIN, 64, role='W', slp=8)
        k.e('s_barrier')
        srd(k, 32, 'ws', WS_Z2N, ZSZ)
        k.e("""
        s_add_u32 s44, s30, %d             ; first row block
        s_mul_i32 s31, s44, %d
        s_bfe_u32 s45, s2, 0x10002
        s_mul_i32 s45, s45, %d
        s_add_u32 s31, s31, s45
        L_l2y:
        """ % (2 * env('L2S', 3), 112 * KB, 56 * KB))
        for q in range(7):
            k.e('s_add_u32 s45, s31, %d' % (q * 8192))
            k.e('buffer_load_dwordx4 v[8:11], v2, s[32:35], s45 offen sc1')
        k.e("""
        s_waitcnt vmcnt(7)
        s_add_u32 s31, s31, %d
        s_add_u32 s44, s44, 4
        s_cmp_lt_u32 s44, 64
        s_cbranch_scc1 L_l2y
        """ % (4 * 112 * KB))

def alloc(g, n, align=4):
    b = (g.free + align - 1) // align * align
    g.free = b + n
    return b
def nop(g): pass

def store_xf_tile(g, a, T, voff, srdn, soff, imm):
    k = g.k
    for d in range(8):
        k.e('v_cvt_pk_bf16_f32 v%d, v%d, v%d' % (T + d, a + 2 * d, a + 2 * d + 1))
    if os.environ.get('SDATA') == 'zero' and k.c.name == 'qkv':
        for d in range(8): k.e('v_mov_b32 v%d, 0' % (T + d))
    if os.environ.get('SDATA') == 'rand' and k.c.name == 'qkv':
        import random
        for d in range(8):
            k.e('s_mul_i32 s68, s2, %d' % (random.getrandbits(31) | 1))
            k.e('v_add_u32 v%d, s68, v0' % (T + d))
            k.e('s_mov_b32 s69, %d' % (random.getrandbits(31) | 1))
            k.e('v_mul_lo_u32 v%d, v%d, s69' % (T + d, T + d))
            k.e('v_and_b32 v%d, 0xbfffbfff, v%d' % (T + d, T + d))
    if env('PACE', -1) >= 0: k.e('s_waitcnt vmcnt(%d)' % env('PACE', -1))
    k.e('buffer_store_dwordx4 %s, v%d, %s, %s offen offset:%d%s' % (vr(T, 4), voff, sr(srdn), soff, imm, WT))
    k.e('buffer_store_dwordx4 %s, v%d, %s, %s offen offset:%d%s' % (vr(T + 4, 4), voff, sr(srdn), soff, imm + 1024, WT))

def pk(op, d, *src, sel=None):
    s = 'v_pk_%s_f32 %s' % (op, vr(d, 2))
    hi = []
    for x in src:
        if isinstance(x, int): s += ', ' + vr(x, 2); hi.append(1)
        elif isinstance(x, tuple): s += ', ' + vr(x[0], 2); hi.append(0)
        elif x.startswith('s['): s += ', ' + x; hi.append(1)
        else: s += ', ' + x; hi.append(0)
    if 0 in hi: s += ' op_sel_hi:[%s]' % ','.join(map(str, hi))
    return s

def proj_wpre(wname, V, nw, wave):
    n = 16 // nw
    def setup(k):
        srd(k, 64, wname)
        k.e("""
        s_and_b32 s68, s2, 3
        s_lshl_b32 s68, s68, 3
        s_bfe_u32 s69, s2, 0x20003
        s_lshl_b32 s69, s69, 1
        s_add_u32 s68, s68, s69
        s_bfe_u32 s69, s2, 0x10005
        s_add_u32 s68, s68, s69            ; tm
        s_bfe_u32 s69, s2, 0x10002
        s_lshl_b32 s69, s69, 2
        s_lshr_b32 s70, s2, 6
        s_add_u32 s69, s69, s70            ; tn
        s_add_u32 s68, s68, s69            ; rotation
        s_lshl_b32 s69, s69, 8
        s_mul_i32 s70, %s, %d
        s_add_u32 s69, s69, s70
        s_mul_i32 s70, %s, %d              ; LDS offset of this wave's pieces
        v_lshrrev_b32 v%d, 5, v1
        v_lshlrev_b32 v%d, 13, v%d
        v_bfe_u32 v%d, v1, 2, 2
        v_lshl_add_u32 v%d, v%d, 11, v%d
        v_bfe_u32 v%d, v1, 4, 1
        v_lshl_add_u32 v%d, v%d, 6, v%d
        v_lshrrev_b32 v%d, 4, v1
        v_and_b32 v%d, 2, v%d
        v_xor_b32 v%d, v1, v%d
        v_and_b32 v%d, 3, v%d
        v_lshl_add_u32 v%d, v%d, 4, v%d
        v_add_u32 v%d, s69, v%d
        """ % (wave, n // 2 * 8 * 2048, wave, n * 1024, V, V, V, V + 1, V, V + 1, V, V + 1, V, V + 1, V, V + 1, V + 1, V + 1, V + 1, V + 1, V + 1, V + 1, V, V + 1, V, V, V))
        for j in range(1, n): k.e('v_add_u32 v%d, %d, v%d' % (V + j, (j // 2) * 8 * 2048 + (j % 2) * 128, V))
    def pieces(st):
        o = ['s_add_u32 s71, s68, %d\ns_and_b32 s71, s71, 3\ns_add_u32 s71, s71, %d\ns_lshl_b32 s71, s71, 17' % (st, st // 4 * 4)]
        for j in range(n):
            o.append('s_add_u32 m0, s70, %d' % (st * 16384 + j * 1024))
            o.append('buffer_load_dwordx4 v%d, s[64:67], s71 offen lds' % (V + j))
        return o
    return setup, pieces

def k_qkv(k, c):
    def pre(g):
        k = g.k
        srd(k, 32, 'ws', WS_Q, 4 * MB); srd(k, 36, 'ws', WS_KV, 8 * MB)
        g.L16 = alloc(g, 1, 1); g.LV16 = alloc(g, 1, 1)
        k.e('v_lshlrev_b32 v%d, 4, v1' % g.L16)
        if g.M16:
            k.e('v_and_b32 v5, 3, v1')
            k.e('v_lshl_add_u32 v5, v4, 4, v5')
            k.e('v_bfe_u32 v6, v1, 2, 1')
            k.e('v_lshl_add_u32 v5, v6, 3, v5')
            k.e('v_bfe_u32 v6, v1, 3, 1')
            k.e('v_lshl_add_u32 v5, v6, 2, v5')
            k.e('v_bfe_u32 v6, v1, 4, 1')
            k.e('v_lshl_add_u32 v5, v6, 5, v5')
            k.e('v_lshlrev_b32 v%d, 4, v5' % g.LV16)
        else: k.e('v_mov_b32 v%d, v%d' % (g.LV16, g.L16))
        k.e('''
        s_lshl_b32 s60, s31, 1
        s_add_u32 s60, s60, s51
        s_lshl_b32 s60, s60, 6
        s_lshl_b32 s61, s30, 2
        s_add_u32 s60, s60, s61
        s_lshl_b32 s61, s50, 1
        s_add_u32 s60, s60, s61           ; head*64 + rb0
        s_lshl_b32 s61, s60, 11           ; Q offset
        s_lshl_b32 s62, s60, 12           ; KV offset
        s_add_u32 s63, s62, 4096
        s_mov_b32 s66, %s
        s_mov_b32 s67, %s
        ''' % ((hx(32 ** -0.5 * LOG2E * float(os.environ.get('QERR', '1'))),) * 2))
    def epi(g):
        k = g.k
        T = g.FR
        k.e('s_nop 7')
        n = 0
        for i in range(2):
            a = g.acc(i, 0)
            for r in range(0, 16, 2): k.e(pk('mul', a + r, a + r, 's[66:67]'))
            store_xf_tile(g, a, T + 8 * n, g.L16, 32, 's61', i * 2048); n += 1
        for j in (1, 2):
            for i in range(2):
                store_xf_tile(g, g.acc(i, j), T + 8 * (n % 5), g.L16 if j == 1 else g.LV16, 36, 's62' if i == 0 else 's63', (j - 1) * 2048); n += 1
    QSP = env('QSP', 0)
    def epi2(g):
        k = g.k
        T = g.FR
        KP = [g.acc(0, 1), g.acc(1, 1)]; VP = [g.acc(0, 2), g.acc(1, 2)]; QP = [g.acc(0, 0), g.acc(1, 0)]
        for j in (1, 2):
            for i in range(2):
                g.fix(i, j)
                k.e('s_nop 0')
                store_xf_tile(g, g.acc(i, j), g.acc(i, j), g.L16 if j == 1 else g.LV16, 36, 's62' if i == 0 else 's63', (j - 1) * 2048)
        if g.deferred:
            g.deferred()
            if env('QSIG', 1): signal(k, 'C')
        for i in range(2):
            a = g.acc(i, 0)
            g.fix(i, 0)
            k.e('s_nop 0')
            for r in range(0, 16, 2): k.e(pk('mul', a + r, a + r, 's[66:67]'))
            for d in range(8): k.e('v_cvt_pk_bf16_f32 v%d, v%d, v%d' % (a + d, a + 2 * d, a + 2 * d + 1))
        if QSP == 1: signal(k, 'C')
        k.e('s_mul_i32 s68, s46, 5120')
        k.e('s_add_u32 s68, s68, %d' % AUX_A)
        k.e('v_add_u32 v5, s68, v%d' % g.L16)
        Sreg = [T, T + 16, T + 32, T + 48]
        for qi in range(2):
            for ki in range(2):
                S_ = Sreg[2 * qi + ki]
                k.e('v_mfma_f32_32x32x16_bf16 %s, %s, %s, 0' % (vr(S_, 16), vr(KP[ki], 4), vr(QP[qi], 4)))
                k.e('v_mfma_f32_32x32x16_bf16 %s, %s, %s, %s' % (vr(S_, 16), vr(KP[ki] + 4, 4), vr(QP[qi] + 4, 4), vr(S_, 16)))
        for q in range(4): k.e('ds_write_b128 v5, %s offset:%d' % (vr(QP[q // 2] + 4 * (q % 2), 4), q * 1024))
        if AOWN:
            k.e('s_lshl_b32 s69, s46, 15')
            k.e('v_add_u32 v6, s69, v%d' % g.L16)
            k.e('v_add_u32 v7, s69, v%d' % g.LV16)
            for i in range(2):
                for hh in range(2):
                    k.e('ds_write_b128 v6, %s offset:%d' % (vr(KP[i] + 4 * hh, 4), i * 4096 + hh * 1024))
                    k.e('ds_write_b128 v7, %s offset:%d' % (vr(VP[i] + 4 * hh, 4), i * 4096 + 2048 + hh * 1024))
        k.e('v_lshl_add_u32 v5, v1, 3, s68')
        if QSP == 2: signal(k, 'C')
        k.e('s_nop 7')
        MM = T + 64
        for qi in range(2):
            a0, a1 = Sreg[2 * qi], Sreg[2 * qi + 1]
            k.e('v_max_f32 v%d, v%d, v%d' % (MM + qi, a0, a1))
            for r in range(1, 16): k.e('v_max3_f32 v%d, v%d, v%d, v%d' % (MM + qi, MM + qi, a0 + r, a1 + r))
        for qi in range(2): k.e('v_mov_b32 v%d, v%d' % (MM + 2 + qi, MM + qi))
        k.e('s_nop 1')
        for qi in range(2): k.e('v_permlane32_swap_b32 v%d, v%d' % (MM + qi, MM + 2 + qi))
        k.e('s_nop 1')
        for qi in range(2): k.e('v_max_f32 v%d, v%d, v%d' % (MM + qi, MM + qi, MM + 2 + qi))
        for qi in range(2): k.e('v_sub_f32 v%d, %s, v%d' % (MM + qi, hx(-40.0), MM + qi))
        k.e('ds_write_b64 v5, %s offset:4096' % vr(MM, 2))
        k.e('s_waitcnt lgkmcnt(0)')
    sig = 's_lshl_b32 s100, s31, 8\ns_lshl_b32 s101, s30, 4\ns_add_u32 s100, s100, s101\ns_add_u32 s100, s100, %d' % FL_QKV
    wait = ('s_lshl_b32 s100, s30, 8\ns_add_u32 s100, s100, %d' % FL_LN1, 8)
    k_gemm(k, c, 16, 16, 3, 1, 4, 128, 192, 2, 2, 1024, 32, 4, ('xt', WS_N, 1024) if XT else ('xf', WS_H, 1024), ('w', 'wqkv', 6144, 'qkv'), pre, nop, epi2 if AT2 else epi, selfsig=bool(AT2 and (QSP or AOWN == 1 or (env('DEFER_qkv', 0) and env('QSIG', 1)))), lazyfix=bool(AT2), DEFER=0, dcols=([1, 2], [0]), swap=(2,), wait=wait, sig=sig, RWD=4, SOFT=4)

def k_proj(k, c, K, X, wname, final):
    NQ = 2 if MP0 else 4
    EARLYV = MP0 and env('EARLYV', 1)
    def modq_loads(k):
        for q in range(NQ):
            k.e('s_add_u32 s62, s69, %d' % (q * 16384))
            k.e('s_add_u32 s63, s70, %d' % (q * 16384))
            k.e('buffer_load_dwordx4 %s, v7, s[64:67], s62 offen sc1' % vr(24 + 4 * q, 4))
            k.e('buffer_load_dword v%d, v6, s[64:67], s63 offen sc1' % (40 + q))
    def aux(g):
        k = g.k
        if final:
            srd(k, 40, 'ws', WS_MOD, 6144 * 4)
            k.e('''
            v_and_b32 v7, 31, v1
            v_lshlrev_b32 v7, 4, v7
            s_lshl_b32 s62, s31, 9
            s_add_u32 s62, s62, %d
            buffer_load_dwordx4 v[24:27], v7, s[40:43], s62 offen sc1
            ''' % (5 * 4096))
            return 1
        srd(k, 64, 'ws', 0, 256 * KB)
        k.e('''
        v_and_b32 v2, 31, v1
        v_lshrrev_b32 v3, 5, v1
        v_lshlrev_b32 v2, 4, v2
        v_lshl_add_u32 v2, v3, 13, v2
        s_lshl_b32 s62, s31, 9
        s_add_u32 s62, s62, %d
        v_and_b32 v6, 15, v1
        v_lshlrev_b32 v6, 2, v6
        s_lshl_b32 s68, s2, 6
        s_add_u32 s63, s68, %d
        s_mov_b32 s69, s62
        s_mov_b32 s70, s63
        v_mov_b32 v7, v2
        ''' % (WS_MODQ, WS_MODQ))
        modq_loads(k)
        return xtile(g) + 2 * NQ
    def xtile(g):
        k = g.k
        srd(k, 40, 'x')
        k.e('''
        v_lshrrev_b32 v2, 4, v1
        v_and_b32 v3, 15, v1
        s_lshl_b32 s62, s30, 17            ; tm*64*2048
        s_lshl_b32 s63, s31, 8
        s_add_u32 s62, s62, s63
        s_lshl_b32 s63, s46, 15            ; lw*16 rows
        s_add_u32 s62, s62, s63
        s_lshl_b32 s63, s46, 12
        s_add_u32 s63, s63, %d
        ''' % g.AUX)
        for j in range(4):
            k.e('v_add_u32 v4, %d, v2' % (4 * j))
            k.e('v_xor_b32 v5, v4, v3')
            k.e('v_lshlrev_b32 v5, 4, v5')
            k.e('v_lshl_add_u32 v5, v4, 11, v5')
            k.e('s_add_u32 m0, s63, %d' % (j * 1024))
            k.e('s_nop 0')
            k.e('buffer_load_dwordx4 v5, s[40:43], s62 offen lds')
        return 4
    def aux_end(g):
        k = g.k
        lp = k.newlabel('mqp'); lc = k.newlabel('mqc')
        if final:
            poll_init(k)
            k.e('s_branch %s' % lc)
            k.label(lp)
            k.e('buffer_load_dwordx4 v[24:27], v7, s[40:43], s62 offen sc1')
            k.e('s_waitcnt vmcnt(0)')
            k.label(lc)
            k.e('v_max3_u32 v2, v24, v25, v26')
            k.e('v_max_u32 v2, v2, v27')
            k.e('v_cmp_eq_u32 vcc, -1, v2')
            poll_back(k, lp)
            k.e('v_add_u32 v2, %d, v7' % (g.AUX + 16 * KB))
            k.e('ds_write_b128 v2, v[24:27]')
            k.e('s_waitcnt lgkmcnt(0)')
            return
        if MP0:
            k.e('v_cmp_lt_u32 vcc, 31, v1')
            k.e(pk('add', 24, 24, 28)); k.e(pk('add', 26, 26, 30))
            k.e('v_add_f32 v40, v40, v41')
        else:
            poll_init(k)
            k.e('s_branch %s' % lc)
            k.label(lp)
            modq_loads(k)
            k.e('s_waitcnt vmcnt(0)')
            k.label(lc)
            k.e('v_max_u32 v2, v24, v25')
            for r in range(26, 44, 2): k.e('v_max3_u32 v2, v2, v%d, v%d' % (r, r + 1))
            k.e('v_cmp_eq_u32 vcc, -1, v2')
            poll_back(k, lp)
            k.e(pk('add', 24, 24, 28)); k.e(pk('add', 26, 26, 30)); k.e(pk('add', 32, 32, 36)); k.e(pk('add', 34, 34, 38))
            k.e(pk('add', 24, 24, 32)); k.e(pk('add', 26, 26, 34))
            k.e('v_cmp_lt_u32 vcc, 31, v1')
            k.e('v_add_f32 v40, v40, v41')
            k.e('v_add_f32 v42, v42, v43')
            k.e('v_add_f32 v40, v40, v42')
        k.e('v_cndmask_b32 v7, 0, 1.0, vcc')
        for d in range(2): round_bf16_pair(k, 24 + 2 * d, 25 + 2 * d, 28)
        for e in range(4): k.e('v_add_f32 v%d, v7, v%d' % (24 + e, 24 + e))
        for d in range(2): round_bf16_pair(k, 24 + 2 * d, 25 + 2 * d, 28)
        k.e('v_lshlrev_b32 v2, 4, v1')
        k.e('v_add_u32 v2, %d, v2' % (g.AUX + 16 * KB))
        k.e('ds_write_b128 v2, v[24:27]')
        k.e("""
        s_lshr_b32 s62, s2, 6
        s_cmp_eq_u32 s62, 2
        s_cselect_b32 s62, 1.0, 0
        v_cvt_pk_bf16_f32 v40, v40, v40
        v_lshlrev_b32 v40, 16, v40
        v_add_f32 v40, s62, v40
        v_cvt_pk_bf16_f32 v40, v40, v40
        v_lshlrev_b32 v40, 16, v40
        s_add_u32 s68, s68, 8192
        v_cmp_gt_u32 vcc, 16, v0
        s_and_saveexec_b64 s[62:63], vcc
        buffer_store_dword v40, v6, s[64:67], s68 offen%s
        s_mov_b64 exec, s[62:63]
        s_waitcnt lgkmcnt(0)
        """ % WT)
    def pre(g):
        k = g.k
        g.L16 = alloc(g, 1, 1); g.RA = alloc(g, 1, 1); g.CA = alloc(g, 1, 1); g.TA = alloc(g, 1, 1)
        g.RES = alloc(g, 16); g.GA = alloc(g, 32); g.G2 = alloc(g, 32) if not final else None
        srd(k, 36, 'ws', WS_X1, 8 * MB)
        if final: srd(k, 32, 'out')
        else: srd(k, 32, 'ws', WS_ST1, 256 * KB)
        k.e('v_lshlrev_b32 v%d, 4, v1' % g.L16)
        k.e('''
        s_lshl_b32 s60, s31, 7
        s_lshl_b32 s61, s51, 6
        s_add_u32 s60, s60, s61           ; col0
        s_lshl_b32 s61, s30, 1
        s_add_u32 s61, s61, s50           ; rb
        s_lshl_b32 s62, s61, 16
        s_lshl_b32 s63, s60, 1
        s_add_u32 s63, s63, s62           ; row-major byte offset of (row0,col0)
        s_lshl_b32 s64, s60, 6
        s_add_u32 s64, s64, s62           ; XF offset
        s_add_u32 s65, s64, %d            ; X1S offset
        ; tile image address: row*256 + ((wn*8) ^ (row%%16))*16 + h*8
        s_lshl_b32 s66, s50, 13
        s_add_u32 s66, s66, %d
        v_and_b32 v5, 15, v3
        s_lshl_b32 s67, s51, 3
        v_xor_b32 v5, s67, v5
        v_lshlrev_b32 v5, 4, v5
        v_lshl_add_u32 v5, v3, 8, v5
        v_lshl_add_u32 v5, v4, 3, v5
        v_add_u32 v%d, s66, v5
        ; column vector address: wn*256 + h*16
        s_lshl_b32 s67, s51, 8
        s_add_u32 s67, s67, %d
        v_lshl_add_u32 v%d, v4, 4, s67
        ''' % (4 * MB, g.AUX, g.RA, g.AUX + 16 * KB, g.CA))
    KX = same_kernel('wo', 'wout') and env('KEEPX', 1)
    def early(g):
        k = g.k
        if EARLYV:
            A_ = g.GA; V_ = g.RES
            l = k.newlabel('ev')
            k.e('s_cmp_lg_u32 s46, 1'); k.e('s_cbranch_scc1 %s' % l)
            srd(k, 80, 'ws', 0, 256 * KB)
            k.e('''
            v_lshlrev_b32 v%d, 4, v3
            v_lshl_add_u32 v%d, v4, 13, v%d
            s_lshl_b32 s68, s31, 9
            s_add_u32 s68, s68, %d
            s_add_u32 s69, s68, 16384
            buffer_load_dwordx4 %s, v%d, s[80:83], s68 offen sc1
            buffer_load_dwordx4 %s, v%d, s[80:83], s69 offen sc1
            ''' % (V_, V_, V_, WS_MODQ + (3 * 4096 if final else 0), vr(A_, 4), V_, vr(A_ + 4, 4), V_))
            if not final:
                k.e('''
                v_and_b32 v%d, 15, v1
                v_lshlrev_b32 v%d, 2, v%d
                s_lshl_b32 s70, s2, 6
                s_add_u32 s68, s70, %d
                s_add_u32 s69, s68, 16384
                buffer_load_dword v%d, v%d, s[80:83], s68 offen sc1
                buffer_load_dword v%d, v%d, s[80:83], s69 offen sc1
                ''' % (V_ + 1, V_ + 1, V_ + 1, WS_MODQ, A_ + 8, V_ + 1, A_ + 9, V_ + 1))
            k.e('v_cvt_f32_u32 v%d, v4' % (V_ + 2))
            k.e('v_add_u32 v%d, %d, v%d' % (V_ + 3, g.AUX + 16 * KB, g.L16))
            k.e('s_waitcnt vmcnt(0)')
            k.e(pk('add', A_, A_, A_ + 4)); k.e(pk('add', A_ + 2, A_ + 2, A_ + 6))
            for d in range(2): round_bf16_pair(k, A_ + 2 * d, A_ + 1 + 2 * d, A_ + 4)
            for e in range(4): k.e('v_add_f32 v%d, v%d, v%d' % (A_ + e, V_ + 2, A_ + e))
            for d in range(2): round_bf16_pair(k, A_ + 2 * d, A_ + 1 + 2 * d, A_ + 4)
            k.e('ds_write_b128 v%d, %s' % (V_ + 3, vr(A_, 4)))
            if not final:
                F = A_ + 8
                k.e('''
                s_lshr_b32 s68, s2, 6
                s_cmp_eq_u32 s68, 2
                s_cselect_b32 s68, 1.0, 0
                v_add_f32 v%d, v%d, v%d
                v_cvt_pk_bf16_f32 v%d, v%d, v%d
                v_lshlrev_b32 v%d, 16, v%d
                v_add_f32 v%d, s68, v%d
                v_cvt_pk_bf16_f32 v%d, v%d, v%d
                v_lshlrev_b32 v%d, 16, v%d
                s_add_u32 s70, s70, 8192
                s_mov_b64 exec, 0xffff
                buffer_store_dword v%d, v%d, s[80:83], s70 offen%s
                s_mov_b64 exec, -1
                ''' % (F, F, F + 1, F, F, F, F, F, F, F, F, F, F, F, F, F, V_ + 1, WT))
            k.e('s_waitcnt lgkmcnt(0)')
            k.label(l)
            return
        if final or MP0: return
        D = g.GA; MC = g.RES; MT = g.RES + 8
        k.e('s_lshl_b32 s68, s46, 13')
        k.e('s_add_u32 s68, s68, %d' % AUX_A)
        k.e('v_add_u32 v%d, s68, v%d' % (MT, g.L16))
        for j in range(8): k.e('ds_read_b128 %s, v%d offset:%d' % (vr(D + 4 * j, 4), MT, j * 1024))
        for j in range(8):
            k.e('s_waitcnt lgkmcnt(%d)' % (7 - j))
            for d in range(4):
                unpack(k, MT, MT + 1, D + 4 * j + d)
                op = 'v_mul_f32' if j == 0 else 'v_fmac_f32'
                k.e('%s v%d, v%d, v%d' % (op, MC + 2 * d, MT, MSV + j))
                k.e('%s v%d, v%d, v%d' % (op, MC + 2 * d + 1, MT + 1, MSV + j))
        k.e('s_nop 1')
        for e in range(4): k.e('v_permlane32_swap_b32 v%d, v%d' % (MC + e, MC + 4 + e))
        k.e('s_nop 1')
        for e in range(4): k.e('v_add_f32 v%d, v%d, v%d' % (MC + e, MC + e, MC + 4 + e))
        k.e('s_nop 1')
        for e in range(2): k.e('v_permlane16_swap_b32 v%d, v%d' % (MC + e, MC + 2 + e))
        k.e('s_nop 1')
        for e in range(2): k.e('v_add_f32 v%d, v%d, v%d' % (MC + e, MC + e, MC + 2 + e))
        k.e('s_nop 1')
        for e in range(2): k.e('v_add_f32_dpp v%d, v%d, v%d row_ror:8 row_mask:0xf bank_mask:0xf' % (MC + e, MC + e, MC + e))
        k.e('''
        v_and_b32 v%d, 7, v1
        v_lshlrev_b32 v%d, 5, v%d
        v_lshrrev_b32 v%d, 4, v1
        v_lshl_add_u32 v%d, v%d, 3, v%d
        v_add_u32 v%d, s68, v%d
        ds_write_b64 v%d, %s
        s_waitcnt lgkmcnt(0)
        ''' % (MT, MT, MT, MT + 1, MT, MT + 1, MT, MT, MT, MT, vr(MC, 2)))
    def pre2(g):
        k = g.k
        if not final and not MP0:
            MC = g.RES; MT = g.RES + 8
            l = k.newlabel('noC')
            k.e('s_cmp_lg_u32 s46, 1')
            k.e('s_cbranch_scc1 %s' % l)
            srd(k, 80, 'ws', 0, 256 * KB)
            k.e('v_lshlrev_b32 v%d, 2, v1' % (MT + 1))
            k.e('v_add_u32 v%d, %d, v%d' % (MT, AUX_A, MT + 1))
            for w in range(4): k.e('ds_read_b32 v%d, v%d offset:%d' % (MC + w, MT, w * 8192))
            k.e('''
            s_and_b32 s68, s2, 3
            s_lshl_b32 s68, s68, 14
            s_lshr_b32 s69, s2, 2
            s_lshl_b32 s69, s69, 8
            s_add_u32 s68, s68, s69
            s_add_u32 s68, s68, %d
            s_waitcnt lgkmcnt(0)
            v_add_f32 v%d, v%d, v%d
            v_add_f32 v%d, v%d, v%d
            v_add_f32 v%d, v%d, v%d
            v_min_u32 v%d, -2, v%d
            buffer_store_dword v%d, v%d, s[80:83], s68 offen sc1
            ''' % (WS_MODQ, MC, MC, MC + 1, MC + 2, MC + 2, MC + 3, MC, MC, MC + 2, MC, MC, MC, MT + 1))
            k.label(l)
        if final and not KX:
            for j in range(2):
                for t in range(2):
                    k.e('buffer_load_dwordx4 %s, v%d, s[36:39], s64 offen offset:%d sc1' % (vr(g.RES + 8 * j + 4 * t, 4), g.L16, (2 * j + t) * 1024))
    PL = env('PRELAST', 1)
    def operands(g):
        k = g.k
        for j in range(2):
            for q in range(4):
                k.e('ds_read_b128 %s, v%d offset:%d' % (vr(g.GA + 16 * j + 4 * q, 4), g.CA, j * 128 + q * 32))
        if not final or KX:
            for j in range(2):
                for q in range(4):
                    k.e('v_xor_b32 v%d, %d, v%d' % (g.TA, (j * 4 + q) * 16, g.RA))
                    k.e('ds_read_b64 %s, v%d' % (vr(g.RES + 8 * j + 2 * q, 2), g.TA))
        if not final:
            for j in range(2):
                for q in range(4):
                    k.e('ds_read_b128 %s, v%d offset:%d' % (vr(g.G2 + 16 * j + 4 * q, 4), g.CA, 512 + j * 128 + q * 32))
    def epi(g):
        k = g.k
        assert g.M16
        if not PL: operands(g)
        k.e('s_waitcnt lgkmcnt(0)' if (KX or not final) else 's_waitcnt vmcnt(0) lgkmcnt(0)')
        T = g.FR
        for j in range(2):
            a = g.acc(0, j)
            for d in range(8):
                unpack(k, T + 2 * (d % 4), T + 2 * (d % 4) + 1, g.RES + 8 * j + d)
                k.e(pk('fma', a + 2 * d, a + 2 * d, g.GA + 16 * j + 2 * d, T + 2 * (d % 4)))
            if not final:
                if j == 0: k.e('s_waitcnt lgkmcnt(0)')
                for d in range(8): k.e(pk('mul', g.G2 + 16 * j + 2 * d, a + 2 * d, g.G2 + 16 * j + 2 * d))
                store_xf_tile(g, g.G2 + 16 * j, g.GA + 16 * j, g.L16, 36, 's65', j * 2048)
        def keep():
            for j in range(2):
                a = g.acc(0, j)
                if final or KX:
                    for d in range(8):
                        k.e('v_cvt_pk_bf16_f32 v%d, v%d, v%d' % (g.RES + 8 * j + d, a + 2 * d, a + 2 * d + 1))
                    for q in range(4):
                        k.e('v_xor_b32 v%d, %d, v%d' % (g.TA, (j * 4 + q) * 16, g.RA))
                        k.e('ds_write_b64 v%d, %s' % (g.TA, vr(g.RES + 8 * j + 2 * q, 2)))
                else:
                    store_xf_tile(g, a, g.RES + 8 * j, g.L16, 36, 's64', j * 2048)
        if final: keep()
        if final:
            k.e('''
            v_lshrrev_b32 v5, 3, v1
            v_and_b32 v6, 7, v1
            s_lshl_b32 s67, s51, 3
            v_or_b32 v7, s67, v6
            v_xor_b32 v7, v7, v5
            v_lshlrev_b32 v7, 4, v7
            v_lshl_add_u32 v7, v5, 8, v7
            v_add_u32 v7, s66, v7              ; b=0 address
            v_xor_b32 v%d, 128, v7             ; rows 8..15: slot ^ 8
            v_lshlrev_b32 v5, 11, v5
            v_lshl_add_u32 v5, v6, 4, v5       ; global: row*2048 + c*16
            s_waitcnt lgkmcnt(0)
            ''' % g.TA)
            for b in range(4):
                k.e('ds_read_b128 %s, v%d offset:%d' % (vr(g.GA + 4 * b, 4), 7 if b % 2 == 0 else g.TA, b * 2048))
            for b in range(4):
                k.e('s_waitcnt lgkmcnt(%d)' % (3 - b))
                k.e('buffer_store_dwordx4 %s, v5, s[32:35], s63 offen%s' % (vr(g.GA + 4 * b, 4), os.environ.get('OUTFLAG', ' sc1')))
                k.e('s_add_u32 s63, s63, %d' % (8 * 2048))
            l = k.newlabel('ep')
            k.e('s_or_b32 s67, s2, s46')
            k.e('s_cbranch_scc1 %s' % l)
            srd(k, 96, 'ws', WS_EPOCH, 8)
            k.e('v_mov_b32 v%d, s84' % FV); k.e('v_mov_b32 v%d, s85' % (FV + 1)); k.e('v_mov_b32 v%d, 0' % (FV + 2))
            flag_store(k, '0')
            k.label(l)
        else:
            S1 = T + 8; S2 = T + 10
            a0 = g.acc(0, 0)
            k.e(pk('add', S1, a0, a0 + 2))
            k.e(pk('mul', S2, a0, a0))
            k.e(pk('fma', S2, a0 + 2, a0 + 2, S2))
            for r in range(4, 32, 2):
                k.e(pk('add', S1, S1, a0 + r))
                k.e(pk('fma', S2, a0 + r, a0 + r, S2))
            k.e('v_add_f32 v%d, v%d, v%d' % (S1, S1, S1 + 1))
            k.e('v_add_f32 v%d, v%d, v%d' % (S1 + 1, S2, S2 + 1))
            k.e('v_mov_b32 v%d, v%d' % (S2, S1))
            k.e('v_mov_b32 v%d, v%d' % (S2 + 1, S1 + 1))
            k.e('''
            s_lshl_b32 s66, s30, 4
            s_lshl_b32 s67, s31, 1
            s_add_u32 s66, s66, s67
            s_add_u32 s66, s66, s51
            s_lshl_b32 s66, s66, 9             ; (tm*16+part)*512
            s_lshl_b32 s67, s50, 8
            s_add_u32 s66, s66, s67
            v_lshlrev_b32 v5, 3, v3
            ''')
            k.e('v_permlane32_swap_b32 v%d, v%d' % (S1, S2))
            k.e('v_permlane32_swap_b32 v%d, v%d' % (S1 + 1, S2 + 1))
            k.e('s_nop 1')
            k.e(pk('add', S1, S1, S2))
            k.e('s_mov_b32 exec_hi, 0')
            k.e('buffer_store_dwordx2 %s, v5, s[32:35], s66 offen%s' % (vr(S1, 2), WT))
            k.e('s_mov_b32 exec_hi, -1')
            if g.LE == 1 and KX:
                k.e('s_barrier'); g.ended = 1
            keep()
            k.e('s_waitcnt lgkmcnt(0)')
    if final:
        sig = None
        wait = ('s_lshr_b32 s100, s30, 1\ns_lshl_b32 s100, s100, 8\ns_add_u32 s100, s100, %d' % FL_WSP, 56)
    else:
        sig = 's_lshr_b32 s100, s30, 1\ns_lshl_b32 s100, s100, 8\ns_and_b32 s101, s30, 1\ns_lshl_b32 s101, s101, 7\ns_add_u32 s100, s100, s101\ns_lshl_b32 s101, s31, 4\ns_add_u32 s100, s100, s101\ns_add_u32 s100, s100, %d' % FL_WO
        wait = ('s_lshr_b32 s100, s30, %d\ns_lshl_b32 s100, s100, 8\ns_add_u32 s100, s100, %d' % (1 if AT2 else 2, FL_ATT), 16 if AT2 else 32)
    geo = None
    if GEO: geo = (0, 6, 96 * KB, 4, (TPRE if final else APRE), 224 if final else 0)
    k_gemm(k, c, 32, 8, 3, 2, 4, 64, 128, 2, 2, K, 64, 4, X, ('w', wname, 2048, None), pre, pre2, epi, aux=None if EARLYV else aux, auxsz=17 * KB, auxbase=AUX_A, aux_end=None if EARLYV else aux_end,
           auxpre=xtile if EARLYV and not final else None, geo=geo, wait=wait, sig=sig, GU=2, RWD=4, early=early, altmap=True, prelast=operands if PL else None,
           own='s_lshr_b32 s68, s47, 2\ns_mul_i32 s68, s68, 7\ns_lshr_b32 s69, s48, 2\ns_add_u32 s68, s68, s69\ns_min_u32 s68, s68, 13\ns_lshl_b32 s68, s68, 1' if final else None, ownlim=224)

ZKEEP = 72
BSV = 244
MSV = 240
def stats_finish(k, S, n, R, M, T):
    k.e('v_mov_b32 v%d, v%d' % (T, S))
    k.e('v_mov_b32 v%d, v%d' % (T + 1, S + 1))
    k.e('s_nop 1')
    k.e('v_permlane32_swap_b32 v%d, v%d' % (S, T))
    k.e('v_permlane32_swap_b32 v%d, v%d' % (S + 1, T + 1))
    k.e('s_nop 1')
    k.e(pk('add', S, S, T))
    k.e('v_mul_f32 v%d, %s, v%d' % (S, hx(1.0 / n), S))
    k.e('v_mul_f32 v%d, v%d, v%d' % (T, S, S))
    k.e('v_mov_b32 v%d, %s' % (T + 1, hx(1.0 / n)))
    k.e('v_fma_f32 v%d, v%d, v%d, -v%d' % (S + 1, S + 1, T + 1, T))
    k.e('v_max_f32 v%d, 0, v%d' % (S + 1, S + 1))
    k.e('v_add_f32 v%d, %s, v%d' % (S + 1, hx(1e-5), S + 1))
    k.e('v_rsq_f32 v%d, v%d' % (R, S + 1))
    k.e('s_nop 0')
    k.e('v_mul_f32_e64 v%d, -v%d, v%d' % (M, S, R))

def uw_job(k, LB):
    k.e("""
    v_lshrrev_b32 v2, 3, v0
    v_and_b32 v3, 7, v0
    v_lshlrev_b32 v4, 6, v2
    s_mov_b32 s31, %d
    v_mul_lo_u32 v5, v2, s31
    v_lshl_add_u32 v5, v3, 4, v5
    s_movk_i32 s44, %d
    s_movk_i32 s45, %d
    s_lshl_b32 s30, s30, 1
    s_waitcnt lgkmcnt(0)
    """ % (16 * 7168, 4 * 4096, 3 * 4096))
    srd(k, 36, 'w_in'); srd(k, 40, 'ws', 0, 64 * KB)
    AV = 72; SV = 88; UA = 104; WA = 112
    lq = k.newlabel('uwq')
    poll_init(k)
    k.label(lq)
    for q in range(4): k.e('buffer_load_dwordx4 %s, v4, s[40:43], s44 offen offset:%d sc1' % (vr(AV + 4 * q, 4), q * 16))
    for q in range(4): k.e('buffer_load_dwordx4 %s, v4, s[40:43], s45 offen offset:%d sc1' % (vr(SV + 4 * q, 4), q * 16))
    if not k.c.first:
        k.e('s_waitcnt vmcnt(0)')
        k.e('v_max_u32 v6, v%d, v%d' % (AV, AV + 1))
        for r in range(AV + 2, AV + 32, 2): k.e('v_max3_u32 v6, v6, v%d, v%d' % (r, r + 1))
        k.e('v_cmp_eq_u32 vcc, -1, v6')
        poll_back(k, lq)
    k.e('s_mov_b32 s50, %d' % LB)
    lp = k.newlabel('uw')
    k.label(lp)
    k.e('s_lshl_b32 s31, s30, 7')
    for j in range(16):
        k.e('buffer_load_dwordx4 %s, v5, s[36:39], s31 offen' % vr(8 + 4 * j, 4))
        k.e('s_add_u32 s31, s31, 7168')
    for j in range(16):
        k.e('s_waitcnt vmcnt(%d)' % (15 - j))
        for d in range(4):
            unpack(k, 6, 7, 8 + 4 * j + d)
            for acc, cf in ((UA, AV), (WA, SV)):
                op = 'v_mul_f32' if j == 0 else 'v_fmac_f32'
                k.e('%s v%d, v6, v%d' % (op, acc + 2 * d, cf + j))
                k.e('%s v%d, v7, v%d' % (op, acc + 2 * d + 1, cf + j))
    red_lanes(k, list(range(UA, UA + 16)), list(range(8, 24)))
    lskip = k.newlabel('uwskip')
    k.e("""
    s_lshl_b32 s47, s46, 9
    s_add_u32 s47, s47, s50
    v_lshl_add_u32 v2, v3, 5, s47      ; pass*4096 + wave*512 + chunk*32
    v_cmp_gt_u32 vcc, 8, v1
    s_and_saveexec_b64 s[48:49], vcc
    ds_write_b128 v2, v[104:107]
    ds_write_b128 v2, v[108:111] offset:16
    ds_write_b128 v2, v[112:115] offset:256
    ds_write_b128 v2, v[116:119] offset:272
    s_mov_b64 exec, s[48:49]
    s_waitcnt lgkmcnt(0)
    s_barrier
    s_cmp_ge_u32 s46, 2
    s_cbranch_scc1 %s
    v_lshl_add_u32 v2, v0, 2, s50      ; wave0: u cols, wave1: w0 cols
    """ % lskip)
    for w in range(8): k.e('ds_read_b32 v%d, v2 offset:%d' % (8 + w, w * 512))
    k.e('s_waitcnt lgkmcnt(0)')
    for w in range(1, 8): k.e('v_add_f32 v8, v8, v%d' % (8 + w))
    k.e("""
    v_min_u32 v8, -2, v8
    v_lshlrev_b32 v2, 2, v1
    s_lshl_b32 s31, s30, 8
    s_lshl_b32 s47, s46, 14
    s_add_u32 s31, s31, s47
    s_add_u32 s31, s31, %d
    buffer_store_dword v8, v2, s[40:43], s31 offen sc1
    s_waitcnt vmcnt(0)
    """ % WS_UW)
    k.label(lskip)
    k.e("""
    s_add_u32 s30, s30, 1
    s_add_u32 s50, s50, 4096
    s_cmp_lt_u32 s50, %d
    s_cbranch_scc1 %s
    """ % (LB + 8192, lp))

GC1 = -2.0 * 0.7978845608028654 * LOG2E
def gelu_ops(k, a, U, W0, T, R, M, after_t=None):
    for r in range(0, 16, 2): k.e(pk('fma', T + r, U + r, (M,), W0 + r))
    if after_t: after_t()
    for r in range(0, 16, 2): k.e(pk('fma', a + r, a + r, (R,), T + r))
    for r in range(0, 16, 2): k.e(pk('mul', T + r, a + r, a + r))
    for r in range(0, 16, 2): k.e(pk('fma', T + r, T + r, 's[70:71]', (6,)))
    for r in range(0, 16, 2): k.e(pk('mul', T + r, T + r, a + r))
    for r in range(16): k.e('v_exp_f32 v%d, v%d' % (T + r, T + r))
    for r in range(0, 16, 2): k.e(pk('add', T + r, T + r, '1.0'))
    for r in range(16): k.e('v_rcp_f32 v%d, v%d' % (T + r, T + r))
    for r in range(0, 16, 2): k.e(pk('mul', a + r, a + r, T + r))
def stat_ops(k, a, S1, S2, first):
    for r in range(0, 16, 2):
        if first and r == 0:
            k.e(pk('add', S1, a, a + 2)); k.e(pk('mul', S2, a, a))
        else:
            if not (first and r == 2): k.e(pk('add', S1, S1, a + r))
            k.e(pk('fma', S2, a + r, a + r, S2))

def k_win(k, c):
    SPLIT = env('SPLIT', 0)
    XFER = 48 * KB
    def mid(g):
        k = g.k
        Z = 64; U = 96; T = 160; S = 176; RM_ = 180
        k.e("""
        s_lshl_b32 s67, s46, 13
        s_add_u32 s67, s67, %d
        v_lshl_add_u32 v44, v1, 4, s67     ; transfer area
        s_lshl_b32 s67, s46, 9
        s_add_u32 s67, s67, %d
        v_lshl_add_u32 v45, v1, 3, s67     ; (R,M) / stats slot
        v_lshrrev_b32 v46, 5, v1
        v_lshlrev_b32 v46, 4, v46
        v_add_u32 v46, %d, v46
        s_mov_b32 s70, %s
        s_mov_b32 s71, s70
        v_mov_b32 v6, %s
        ds_read_b64 v[%d:%d], v45
        """ % (XFER, g.AUX + 2048, g.AUX, hx(GC1 * 0.044715), hx(GC1), RM_, RM_ + 1))
        for b in range(2):
            for q in range(4):
                k.e('ds_read_b128 %s, v46 offset:%d' % (vr(U + 32 * b + 4 * q, 4), (2 + b) * 128 + q * 32))
                k.e('ds_read_b128 %s, v46 offset:%d' % (vr(U + 32 * b + 16 + 4 * q, 4), 1024 + (2 + b) * 128 + q * 32))
        k.e('s_setprio 1')
        k.e('s_waitcnt lgkmcnt(0)')
        k.e('v_mov_b32 v%d, v%d' % (RM_ + 2, RM_ + 1))
        k.e('s_barrier')
        for q in range(8): k.e('ds_read_b128 %s, v44 offset:%d' % (vr(Z + 4 * q, 4), q * 1024))
        for b in range(2):
            a = Z + 16 * b
            k.e('s_waitcnt lgkmcnt(%d)' % (4 - 4 * b))
            for hb in range(2):
                for e in range(4): k.e('v_permlane16_swap_b32 v%d, v%d' % (a + 8 * hb + e, a + 8 * hb + 4 + e))
            gelu_ops(k, a, U + 32 * b, U + 32 * b + 16, T, RM_, RM_ + 2)
            stat_ops(k, a, S, S + 2, b == 0)
        k.e('v_add_f32 v%d, v%d, v%d' % (S, S, S + 1))
        k.e('v_add_f32 v%d, v%d, v%d' % (S + 1, S + 2, S + 3))
        k.e('ds_write_b64 v45, %s' % vr(S, 2))
        k.e('s_waitcnt lgkmcnt(0)')
        k.e('s_barrier')
        for q in range(8): k.e('ds_write_b128 v44, %s offset:%d' % (vr(Z + 4 * q, 4), q * 1024))
        k.e('s_waitcnt lgkmcnt(0)')
    LP = 1; LPJ = env('LPJ', 3)
    KZ = c.nxt == 'wsp' and env('KEEPZ', 1)
    def post(g):
        if not LP: return
        k = g.k
        srd(k, 36, 'ws', WS_G, 256 * KB)
        k.e("""
        s_lshl_b32 s65, s30, 2
        s_add_u32 s65, s65, s46
        s_lshl_b32 s65, s65, 12            ; rb32*4096
        v_and_b32 v2, 31, v1
        v_lshrrev_b32 v3, 5, v1
        v_mul_u32_u24 v3, %d, v3
        v_lshl_add_u32 v2, v2, 3, v3
        s_lshl_b32 s67, s46, 9
        s_add_u32 s67, s67, %d
        v_lshl_add_u32 v3, v1, 3, s67
        s_setprio 2
        s_barrier
        """ % (7 * 256, g.AUX + 2048))
        lp = k.newlabel('lpoll')
        poll_init(k)
        k.label(lp)
        for p in range(7):
            k.e('buffer_load_dwordx2 %s, v2, s[36:39], s65 offen offset:%d sc1' % (vr(24 + 2 * p, 2), p * 256))
        k.e('s_waitcnt vmcnt(0)')
        k.e('v_max_u32 v5, v24, v25')
        for p in range(1, 7): k.e('v_max3_u32 v5, v5, v%d, v%d' % (24 + 2 * p, 25 + 2 * p))
        k.e('v_cmp_eq_u32 vcc, -1, v5')
        poll_back(k, lp)
        for p in range(1, 7): k.e(pk('add', 24, 24, 24 + 2 * p))
        stats_finish(k, 24, 1792, 40, 41, 26)
        k.e('ds_write_b64 v3, v[40:41]')
        k.e('s_waitcnt lgkmcnt(0)')
        k.e('s_barrier')
    def uw_loads(g):
        g.k.e('buffer_load_dwordx4 v[24:27], v2, s[40:43], s62 offen sc1')
        g.k.e('buffer_load_dwordx4 v[28:31], v2, s[40:43], s63 offen sc1')
    def aux(g):
        k = g.k
        srd(k, 40, 'ws', WS_UW, 32 * KB)
        k.e("""
        v_and_b32 v2, 31, v1
        v_lshlrev_b32 v2, 4, v2
        v_add_u32 v3, 7168, v2
        v_cmp_gt_u32 vcc, 32, v1
        s_lshl_b32 s62, s31, 9
        s_add_u32 s63, s62, %d
        v_cndmask_b32 v2, v2, v3, vcc
        v_lshlrev_b32 v3, 4, v1
        v_add_u32 v3, %d, v3
        """ % (16 * KB, g.AUX))
        uw_loads(g)
        return 2
    def aux_end(g):
        k = g.k
        lp = k.newlabel('uwp'); lc = k.newlabel('uwc')
        poll_init(k)
        k.e('s_branch %s' % lc)
        k.label(lp)
        uw_loads(g)
        k.e('s_waitcnt vmcnt(0)')
        k.label(lc)
        k.e("""
        v_max3_u32 v4, v24, v25, v26
        v_max3_u32 v4, v4, v27, v28
        v_max3_u32 v4, v4, v29, v30
        v_max_u32 v4, v4, v31
        v_cmp_eq_u32 vcc, -1, v4
        """)
        poll_back(k, lp)
        k.e("""
        ds_write_b128 v3, v[24:27]
        ds_write_b128 v3, v[28:31] offset:1024
        s_waitcnt lgkmcnt(0)
        """)
    def pre(g):
        k = g.k
        g.L16 = alloc(g, 1, 1); g.SA = alloc(g, 1, 1); g.GA = alloc(g, 1, 1); g.CA = alloc(g, 1, 1)
        g.R = alloc(g, 2, 2); g.M = alloc(g, 2, 2); g.P = alloc(g, 16)
        srd(k, 32, 'ws', ZB, max(WS_Z, WS_Z2N) - ZB + ZSZ); srd(k, 36, 'ws', WS_ST1, 512 * KB)
        k.e('v_lshlrev_b32 v%d, 4, v1' % g.L16)
        k.e("""
        s_lshl_b32 s61, s30, 2
        s_add_u32 s61, s61, s46           ; rb32
        s_lshr_b32 s64, s61, 1
        s_lshl_b32 s64, s64, 13           ; rb64*8192
        s_and_b32 s65, s61, 1
        s_lshl_b32 s65, s65, 8
        s_add_u32 s64, s64, s65           ; x1 stats offset
        s_lshl_b32 s65, s61, 12
        s_add_u32 s65, s65, %d            ; granule offset (row block)
        s_lshl_b32 s66, s31, 8
        s_add_u32 s66, s66, s65           ; own granule
        s_mul_i32 s60, s61, %d
        s_lshl_b32 s61, s31, 13
        s_add_u32 s60, s60, s61           ; Z1 offset
        v_lshlrev_b32 v5, 3, v3
        v_lshl_add_u32 v%d, v4, 12, v5    ; h*8*512 + row*8
        v_mul_u32_u24 v6, %d, v4
        v_add_u32 v%d, v6, v5             ; h*7*256 + row*8
        v_lshlrev_b32 v%d, 4, v4
        v_add_u32 v%d, %d, v%d
        """ % (WS_G - WS_ST1, 112 * 1024, g.SA, 7 * 256, g.GA, g.CA, g.CA, g.AUX, g.CA))
    def early(g):
        k = g.k
        for p in range(8):
            k.e('buffer_load_dwordx2 %s, v%d, s[36:39], s64 offen offset:%d sc1' % (vr(g.P + 2 * p, 2), g.SA, p * 512))
        k.e('s_waitcnt vmcnt(0)')
        for p in range(1, 8): k.e(pk('add', g.P, g.P, g.P + 2 * p))
        stats_finish(k, g.P, 1024, g.R, g.M, g.P + 2)
        if SPLIT:
            k.e('s_lshl_b32 s67, s46, 9')
            k.e('s_add_u32 s67, s67, %d' % (g.AUX + 2048))
            k.e('v_lshl_add_u32 v%d, v1, 3, s67' % g.SA)
            k.e('s_lshl_b32 s67, s46, 13')
            k.e('s_add_u32 s67, s67, %d' % XFER)
            k.e('v_lshl_add_u32 v%d, v1, 4, s67' % g.GA)
            k.e('v_mov_b32 v%d, v%d' % (g.R + 1, g.M))
            k.e('ds_write_b64 v%d, %s' % (g.SA, vr(g.R, 2)))
            k.e('s_waitcnt lgkmcnt(0)')
    def pre2(g): pass
    def epi(g):
        k = g.k
        c1 = -2.0 * 0.7978845608028654 * LOG2E
        U = g.FR; W0 = g.FR + 16; T = g.FR + 32; PS = g.FR + 48
        def rd_uw(j):
            for q in range(4):
                k.e('ds_read_b128 %s, v%d offset:%d' % (vr(U + 4 * q, 4), g.CA, j * 128 + q * 32))
                k.e('ds_read_b128 %s, v%d offset:%d' % (vr(W0 + 4 * q, 4), g.CA, 1024 + j * 128 + q * 32))
        k.e('s_nop 7')
        rd_uw(0)
        k.e('s_mov_b32 s70, %s' % hx(c1 * 0.044715)); k.e('s_mov_b32 s71, s70')
        k.e('v_mov_b32 v6, %s' % hx(c1))
        S1 = g.P; S2 = g.P + 2
        GR = g.P + 2
        n = 0
        def poll_loads():
            for p in range(7):
                k.e('buffer_load_dwordx2 %s, v%d, s[36:39], s65 offen offset:%d sc1' % (vr(GR + 2 * p, 2), g.GA, p * 256))
        cnt = [0]
        def block(j):
            a = g.acc(0, j)
            g.fix(0, j)
            k.e('s_waitcnt lgkmcnt(0)')
            lastz2 = 1 if SPLIT else 3
            gelu_ops(k, a, U, W0, T, g.R, g.M, after_t=(lambda: rd_uw(j + 1)) if (j < 7 and not (j == lastz2 and g.deferred)) else None)
            if j >= 4:
                if KZ:
                    for d in range(8): k.e('v_cvt_pk_bf16_f32 v%d, v%d, v%d' % (ZKEEP + 8 * (j - 4) + d, a + 2 * d, a + 2 * d + 1))
                else:
                    k.e('s_add_u32 s61, s60, %d' % (WS_Z - ZB + (j - 4) * 2048))
                    store_xf_tile(g, a, PS + 8 * (cnt[0] % 3), g.L16, 32, 's61', 0); cnt[0] += 1
            else: stat_ops(k, a, S1, S2, j == 0)
        if SPLIT:
            assert g.deferred and LPJ == 3
            for q in range(8): k.e('ds_write_b128 v%d, %s offset:%d' % (g.GA, vr(g.acc(0, 2) + 4 * q, 4), q * 1024))
            k.e('s_waitcnt lgkmcnt(0)')
            k.e('s_barrier')
        for j in range(2 if SPLIT else 4): block(j)
        k.e('v_add_f32 v%d, v%d, v%d' % (S1, S1, S1 + 1))
        k.e('v_add_f32 v%d, v%d, v%d' % (S1 + 1, S2, S2 + 1))
        if SPLIT:
            k.e('s_barrier')
            k.e('ds_read_b64 %s, v%d' % (vr(S2, 2), g.SA))
            k.e('s_waitcnt lgkmcnt(0)')
            k.e(pk('add', S1, S1, S2))
        k.e('v_mov_b32 v%d, v%d' % (S2, S1))
        k.e('v_mov_b32 v%d, v%d' % (S2 + 1, S1 + 1))
        k.e('v_lshlrev_b32 v5, 3, v3')
        k.e('s_nop 0')
        k.e('v_permlane32_swap_b32 v%d, v%d' % (S1, S2))
        k.e('v_permlane32_swap_b32 v%d, v%d' % (S1 + 1, S2 + 1))
        k.e('s_nop 1')
        k.e(pk('add', S1, S1, S2))
        k.e('v_min_u32 v%d, -2, v%d' % (S1, S1))
        k.e('v_min_u32 v%d, -2, v%d' % (S1 + 1, S1 + 1))
        k.e('s_mov_b32 exec_hi, 0')
        k.e('buffer_store_dwordx2 %s, v5, s[36:39], s66 offen sc1' % vr(S1, 2))
        k.e('s_mov_b32 exec_hi, -1')
        if env('WM', 0): mark(k, 0)
        NB4 = env('NB4', 1) if KZ else 4
        if g.deferred:
            g.deferred()
            rd_uw(4)
        if LPJ == 3: k.e('s_barrier')
        if SPLIT:
            assert NB4 >= 1
            for q in range(8): k.e('ds_read_b128 %s, v%d offset:%d' % (vr(g.acc(0, 2) + 4 * q, 4), g.GA, q * 1024))
        for j in range(4, 4 + NB4):
            block(j)
            if j == LPJ: k.e('s_barrier')
        if env('WM', 0): mark(k, 1)
        R2 = g.P + 4; M2 = g.P + 6
        k.e('s_lshl_b32 s67, s46, 9')
        k.e('s_add_u32 s67, s67, %d' % (g.AUX + 2048))
        k.e('v_lshl_add_u32 v5, v1, 3, s67')
        k.e('s_barrier')
        k.e('ds_read_b64 %s, v5' % vr(R2, 2))
        k.e('s_waitcnt lgkmcnt(0)')
        mark(k, 3)
        k.e('v_mov_b32 v%d, v%d' % (M2, R2 + 1))
        zo = ZOWN and c.nxt == 'wsp'
        if zo:
            assert g.M16
            ZA = g.P + 8
            k.e('''
            s_lshr_b32 s67, s46, 1
            s_lshl_b32 s67, s67, 15
            s_and_b32 s68, s46, 1
            s_lshl_b32 s68, s68, 13
            s_add_u32 s67, s67, s68
            s_add_u32 s67, s67, 16384
            v_bfe_u32 v5, v1, 4, 1
            v_lshl_add_u32 v%d, v5, 12, s67
            v_bfe_u32 v5, v1, 2, 2
            v_lshl_add_u32 v%d, v5, 8, v%d
            v_and_b32 v5, 2, v5
            v_or_b32 v5, v5, v4
            v_lshl_add_u32 v%d, v5, 6, v%d
            v_and_b32 v5, 3, v1
            v_lshl_add_u32 v%d, v5, 4, v%d
            v_xor_b32 v%d, 128, v%d
            ''' % (ZA, ZA, ZA, ZA, ZA, ZA, ZA, ZA + 1, ZA))
        for j in range(4):
            a = g.acc(0, j)
            for r in range(0, 16, 2): k.e(pk('fma', a + r, a + r, (R2,), (M2,)))
            k.e('s_add_u32 s61, s60, %d' % (WS_Z2N - ZB + j * 2048))
            if zo:
                store_xf_tile(g, a, a, g.L16, 32, 's61', 0)
            else:
                store_xf_tile(g, a, PS + 8 * (cnt[0] % 3), g.L16, 32, 's61', 0); cnt[0] += 1
        if zo:
            for j in range(4):
                for t in range(2): k.e('ds_write_b128 v%d, %s offset:%d' % (ZA + t, vr(g.acc(0, j) + 4 * t, 4), j * 1024))
        if g.LE: k.e('s_barrier')
        rest = list(range(4 + NB4, 8))
        NBS = env('NBS', 2)
        for j in rest[:NBS]: block(j)
        signal(k, 'C')
        if zo and LPW: k.e('s_barrier')
        for j in rest[NBS:]: block(j)
        k.e('s_waitcnt lgkmcnt(0)')
    sig = 's_lshl_b32 s100, s31, 8\ns_lshl_b32 s101, s30, 4\ns_add_u32 s100, s100, s101\ns_add_u32 s100, s100, %d' % FL_WIN
    wait = ('s_lshl_b32 s100, s30, 8\ns_add_u32 s100, s100, %d' % FL_WO, 64)
    H22 = env('H22', 0)
    k_gemm(k, c, 16, 14, 2, 2, 7, 128, 256, 2 if H22 else 4, 2 if H22 else 1, 1024, 32, 4, ('xf', WS_X1S, 1024), ('w', 'w_in', 7168, (256, [3584, 3584 + 128, 0, 128])),
           pre, pre2, epi, aux=aux, auxsz=4 * KB, auxbase=AUX_B, aux_end=aux_end, post=post, mid=mid if SPLIT else None, selfsig=True, early=early, SOFT=3, DEFER=3, dcols=([0, 1], [2, 3]) if H22 else ([0, 1, 2, 3], [4, 5, 6, 7]), JG=2, lazyfix=True, side=(28, uw_job), wait=wait, sig=sig)

def k_win2(k, c):
    assert c.nxt == 'wsp' and ZOWN
    def post(g):
        k = g.k
        srd(k, 36, 'ws', WS_G2, 512 * KB)
        k.e("""
        s_lshl_b32 s65, s30, 1
        s_lshr_b32 s66, s46, 1
        s_add_u32 s65, s65, s66
        s_lshl_b32 s65, s65, 14            ; rb64*16K
        s_and_b32 s66, s46, 1
        s_lshl_b32 s66, s66, 8
        s_add_u32 s65, s65, s66
        s_add_u32 s66, s65, 3584
        v_and_b32 v2, 31, v1
        v_lshrrev_b32 v3, 5, v1
        v_mul_u32_u24 v3, %d, v3
        v_lshl_add_u32 v2, v2, 3, v3
        s_lshl_b32 s67, s46, 9
        s_add_u32 s67, s67, %d
        v_lshl_add_u32 v3, v1, 3, s67
        s_setprio 2
        s_barrier
        """ % (14 * 512, g.AUX + 2048))
        lp = k.newlabel('lpoll')
        poll_init(k)
        k.label(lp)
        for p in range(14):
            k.e('buffer_load_dwordx2 %s, v2, s[36:39], s%d offen offset:%d sc1' % (vr(24 + 2 * p, 2), 65 + p // 7, (p % 7) * 512))
        k.e('s_waitcnt vmcnt(0)')
        k.e('v_max_u32 v5, v24, v25')
        for p in range(1, 14): k.e('v_max3_u32 v5, v5, v%d, v%d' % (24 + 2 * p, 25 + 2 * p))
        k.e('v_cmp_eq_u32 vcc, -1, v5')
        poll_back(k, lp)
        for p in range(1, 14): k.e(pk('add', 24, 24, 24 + 2 * p))
        stats_finish(k, 24, 1792, 56, 57, 26)
        k.e('ds_write_b64 v3, v[56:57]')
        k.e('s_waitcnt lgkmcnt(0)')
        k.e('s_barrier')
        if env('WLE', 2): k.e('s_barrier')
    def uw_loads(g):
        g.k.e('buffer_load_dwordx4 v[24:27], v2, s[40:43], s62 offen sc1')
        g.k.e('buffer_load_dwordx4 v[28:31], v2, s[40:43], s63 offen sc1')
    def aux(g):
        k = g.k
        srd(k, 40, 'ws', WS_UW, 32 * KB)
        k.e("""
        v_and_b32 v2, 31, v1
        v_lshlrev_b32 v2, 4, v2
        v_add_u32 v3, 7168, v2
        v_cmp_gt_u32 vcc, 32, v1
        s_lshl_b32 s62, s31, 9
        s_add_u32 s63, s62, %d
        v_cndmask_b32 v2, v2, v3, vcc
        v_lshlrev_b32 v3, 4, v1
        v_add_u32 v3, %d, v3
        """ % (16 * KB, g.AUX))
        uw_loads(g)
        return 2
    def aux_end(g):
        k = g.k
        lp = k.newlabel('uwp'); lc = k.newlabel('uwc')
        poll_init(k)
        k.e('s_branch %s' % lc)
        k.label(lp)
        uw_loads(g)
        k.e('s_waitcnt vmcnt(0)')
        k.label(lc)
        k.e("""
        v_max3_u32 v4, v24, v25, v26
        v_max3_u32 v4, v4, v27, v28
        v_max3_u32 v4, v4, v29, v30
        v_max_u32 v4, v4, v31
        v_cmp_eq_u32 vcc, -1, v4
        """)
        poll_back(k, lp)
        k.e("""
        ds_write_b128 v3, v[24:27]
        ds_write_b128 v3, v[28:31] offset:1024
        s_waitcnt lgkmcnt(0)
        """)
    def pre(g):
        k = g.k
        g.L16 = alloc(g, 1, 1); g.L8 = alloc(g, 1, 1); g.CA = alloc(g, 1, 1)
        g.R = alloc(g, 4); g.M = alloc(g, 4); g.P = alloc(g, 16)
        srd(k, 32, 'ws', WS_Z2N, ZSZ); srd(k, 36, 'ws', WS_ST1, 256 * KB); srd(k, 40, 'ws', WS_G2, 512 * KB)
        k.e('v_lshlrev_b32 v%d, 4, v1' % g.L16)
        k.e('v_lshlrev_b32 v%d, 3, v1' % g.L8)
        k.e("""
        s_lshl_b32 s61, s30, 1
        s_add_u32 s61, s61, s50           ; rb64
        s_lshl_b32 s64, s61, 13           ; x1 stats offset
        s_add_u32 s65, s64, 4096
        s_lshl_b32 s66, s31, 1
        s_add_u32 s66, s66, s51
        s_lshl_b32 s66, s66, 9
        s_lshl_b32 s67, s61, 14
        s_add_u32 s66, s66, s67           ; own granule
        s_mul_i32 s60, s61, %d
        s_lshl_b32 s61, s31, 13
        s_add_u32 s60, s60, s61
        s_lshl_b32 s61, s51, 12
        s_add_u32 s60, s60, s61           ; Z2N offset of block (0,0)
        s_add_u32 s61, s60, %d
        s_lshl_b32 s67, s51, 8
        s_add_u32 s67, s67, %d
        v_lshl_add_u32 v%d, v4, 4, s67
        """ % (2 * 112 * 1024, 112 * 1024, g.AUX, g.CA))
    def early(g):
        k = g.k
        if ZF32:
            assert g.free <= BSV
            srd(k, 80, 'b_sp')
            k.e('s_lshr_b32 s67, s64, 6')
            k.e('v_and_b32 v5, 15, v1')
            k.e('v_lshlrev_b32 v5, 1, v5')
            for q in range(4): k.e('buffer_load_ushort v%d, v5, s[80:83], s67 offen offset:%d' % (BSV + q, q * 32))
        Pp = g.FR
        for p in range(16):
            k.e('buffer_load_dwordx2 %s, v%d, s[36:39], s%d offen offset:%d sc1' % (vr(Pp + 2 * p, 2), g.L8, 64 + p // 8, (p % 8) * 512))
        k.e('s_waitcnt vmcnt(0)')
        for p in range(1, 16): k.e(pk('add', Pp, Pp, Pp + 2 * p))
        T_ = Pp + 2
        k.e('v_mul_f32 v%d, %s, v%d' % (Pp, hx(1.0 / 1024), Pp))
        k.e('v_mul_f32 v%d, v%d, v%d' % (T_, Pp, Pp))
        k.e('v_mov_b32 v%d, %s' % (T_ + 1, hx(1.0 / 1024)))
        k.e('v_fma_f32 v%d, v%d, v%d, -v%d' % (Pp + 1, Pp + 1, T_ + 1, T_))
        k.e('v_max_f32 v%d, 0, v%d' % (Pp + 1, Pp + 1))
        k.e('v_add_f32 v%d, %s, v%d' % (Pp + 1, hx(1e-5), Pp + 1))
        k.e('v_rsq_f32 v%d, v%d' % (g.R, Pp + 1))
        k.e('s_nop 0')
        k.e('v_mul_f32_e64 v%d, -v%d, v%d' % (g.M, Pp, g.R))
        k.e('v_mov_b32 v%d, v%d' % (g.R + 2, g.R))
        k.e('v_mov_b32 v%d, v%d' % (g.M + 2, g.M))
        k.e('s_nop 1')
        k.e('v_permlane32_swap_b32 v%d, v%d' % (g.R, g.R + 2))
        k.e('v_permlane32_swap_b32 v%d, v%d' % (g.M, g.M + 2))
    def epi(g):
        k = g.k
        U = g.FR; W0 = g.FR + 16; T = g.FR + 32
        def rd_uw(j):
            o = (j // 2) * 512 + (j % 2) * 128
            for q in range(4):
                k.e('ds_read_b128 %s, v%d offset:%d' % (vr(U + 4 * q, 4), g.CA, o + q * 32))
                k.e('ds_read_b128 %s, v%d offset:%d' % (vr(W0 + 4 * q, 4), g.CA, 1024 + o + q * 32))
        rd_uw(0)
        k.e('s_mov_b32 s70, %s' % hx(GC1 * 0.044715)); k.e('s_mov_b32 s71, s70')
        k.e('v_mov_b32 v6, %s' % hx(GC1))
        SS = g.P
        def block(n):
            j, i = n // 2, n % 2
            a = g.acc(i, j)
            g.fix(i, j)
            if i == 0: k.e('s_waitcnt lgkmcnt(0)')
            gelu_ops(k, a, U, W0, T, g.R + 2 * i, g.M + 2 * i, after_t=(lambda: rd_uw(j + 1)) if (i == 1 and j in (0, 2)) else None)
            if j >= 2:
                if not ZF32:
                    for d in range(8): k.e('v_cvt_pk_bf16_f32 v%d, v%d, v%d' % (a + d, a + 2 * d, a + 2 * d + 1))
            else: stat_ops(k, a, SS + 4 * i, SS + 4 * i + 2, j == 0)
        for n in range(4): block(n)
        for i in range(2):
            k.e('v_add_f32 v%d, v%d, v%d' % (SS + 4 * i, SS + 4 * i, SS + 4 * i + 1))
            k.e('v_add_f32 v%d, v%d, v%d' % (SS + 4 * i + 1, SS + 4 * i + 2, SS + 4 * i + 3))
        k.e('s_nop 1')
        k.e('v_permlane32_swap_b32 v%d, v%d' % (SS, SS + 4))
        k.e('v_permlane32_swap_b32 v%d, v%d' % (SS + 1, SS + 5))
        k.e('s_nop 1')
        k.e(pk('add', SS, SS, SS + 4))
        k.e('v_min_u32 v%d, -2, v%d' % (SS, SS))
        k.e('v_min_u32 v%d, -2, v%d' % (SS + 1, SS + 1))
        k.e('buffer_store_dwordx2 %s, v%d, s[40:43], s66 offen sc1' % (vr(SS, 2), g.L8))
        if env('WM', 0): mark(k, 0)
        NB4 = env('NB4', 1)
        g.deferred()
        rd_uw(2)
        k.e('s_barrier')
        for n in range(4, 4 + NB4): block(n)
        if env('WM', 0): mark(k, 1)
        R2 = g.P + 4; ZA = g.P + 12
        k.e("""
        s_lshl_b32 s67, s50, 10
        s_add_u32 s67, s67, %d
        v_add_u32 v7, s67, v%d
        s_lshl_b32 s67, s50, 15
        s_lshl_b32 s68, s51, 11
        s_add_u32 s67, s67, s68
        s_add_u32 s67, s67, 16384
        v_bfe_u32 v5, v1, 4, 1
        v_lshl_add_u32 v%d, v5, 12, s67
        v_bfe_u32 v5, v1, 2, 2
        v_lshl_add_u32 v%d, v5, 8, v%d
        v_and_b32 v5, 2, v5
        v_or_b32 v5, v5, v4
        v_lshl_add_u32 v%d, v5, 6, v%d
        v_and_b32 v5, 3, v1
        v_lshl_add_u32 v%d, v5, 4, v%d
        v_xor_b32 v%d, 128, v%d
        s_barrier
        ds_read_b64 %s, v7
        ds_read_b64 %s, v7 offset:512
        s_waitcnt lgkmcnt(0)
        """ % (g.AUX + 2048, g.L8, ZA, ZA, ZA, ZA, ZA, ZA, ZA, ZA + 1, ZA, vr(R2, 2), vr(R2 + 4, 2)))
        mark(k, 3)
        for i in range(2): k.e('v_mov_b32 v%d, v%d' % (R2 + 4 * i + 2, R2 + 4 * i + 1))
        for i in range(2):
            for j in range(2):
                a = g.acc(i, j)
                for r in range(0, 16, 2): k.e(pk('fma', a + r, a + r, (R2 + 4 * i,), (R2 + 4 * i + 2,)))
                store_xf_tile(g, a, a, g.L16, 32, 's%d' % (60 + i), j * 2048)
        if env('WLE', 2) == 1: k.e('s_barrier')
        for i in range(2):
            for j in range(2):
                for t in range(2): k.e('ds_write_b128 v%d, %s offset:%d' % (ZA + t, vr(g.acc(i, j) + 4 * t, 4), i * 8192 + j * 1024))
        rest = list(range(4 + NB4, 8))
        NBS = env('NBS', 2)
        for n in rest[:NBS]: block(n)
        signal(k, 'C')
        if env('WLE', 2) == 2: k.e('s_barrier')
        for n in rest[NBS:]: block(n)
        k.e('s_waitcnt lgkmcnt(0)')
    sig = 's_lshl_b32 s100, s31, 8\ns_lshl_b32 s101, s30, 4\ns_add_u32 s100, s100, s101\ns_add_u32 s100, s100, %d' % FL_WIN
    wait = ('s_lshl_b32 s100, s30, 8\ns_add_u32 s100, s100, %d' % FL_WO, 64)
    k_gemm(k, c, 16, 14, 2, 2, 7, 128, 256, 2, 2, 1024, 32, 4, ('xf', WS_X1S, 1024), ('w', 'w_in', 7168, (256, [3584, 0, 3584 + 128, 128])),
           pre, nop, epi, aux=aux, auxsz=4 * KB, auxbase=AUX_B, aux_end=aux_end, post=post, selfsig=True, early=early, SOFT=3, DEFER=3,
           dcols=([0, 1], [2, 3]), JG=2, lazyfix=True, side=(28, uw_job), wait=wait, sig=sig, accmap=lambda i, j: (j // 2) * 4 + i * 2 + j % 2)

def k_wsp(k, c):
    def pre(g):
        k = g.k
        g.L16 = alloc(g, 1, 1); g.L2 = alloc(g, 1, 1); g.B = alloc(g, 4); g.Z = alloc(g, 32)
        srd(k, 32, 'ws', WS_Z, ZSZ); srd(k, 36, 'ws', WS_U2, ZSZ); srd(k, 40, 'b_sp')
        k.e('v_lshlrev_b32 v%d, 4, v1' % g.L16)
        k.e('''
        s_lshl_b32 s60, s31, 13
        s_lshl_b32 s61, s51, 12
        s_add_u32 s60, s60, s61
        s_lshl_b32 s61, s30, 2
        s_lshl_b32 s62, s50, 1
        s_add_u32 s61, s61, s62           ; rb0
        s_lshl_b32 s63, s61, 6
        s_mul_i32 s61, s61, %d
        s_add_u32 s60, s60, s61
        s_add_u32 s61, s60, %d
        v_lshlrev_b32 v%d, 1, v3
        ''' % (112 * 1024, 112 * 1024, g.L2))
    def pre2(g):
        k = g.k
        for i in range(2):
            k.e('buffer_load_ushort v%d, v%d, s[40:43], s63 offen offset:%d' % (g.B + 2 * i, g.L2, i * 64))
        for i in range(2):
            for j in range(2):
                for t in range(2):
                    k.e('buffer_load_dwordx4 %s, v%d, s[32:35], s%d offen offset:%d sc1' % (vr(g.Z + 16 * i + 8 * j + 4 * t, 4), g.L16, 60 + i, (2 * j + t) * 1024))
    def epi(g):
        k = g.k
        T = g.FR
        k.e('s_waitcnt vmcnt(0)')
        for i in range(2): k.e('v_lshlrev_b32 v%d, 16, v%d' % (g.B + 2 * i, g.B + 2 * i))
        k.e('s_nop 7')
        for j in range(2):
            for i in range(2):
                a = g.acc(i, j); z = g.Z + 16 * i + 8 * j
                for d in range(8): unpack(k, T + 2 * d, T + 2 * d + 1, z + d)
                for d in range(8): k.e(pk('add', a + 2 * d, a + 2 * d, (g.B + 2 * i,)))
                for d in range(8): k.e(pk('mul', a + 2 * d, a + 2 * d, T + 2 * d))
                store_xf_tile(g, a, z, g.L16, 36, 's%d' % (60 + i), j * 2048)
    KZ = c.prev == 'win' and env('KEEPZ', 1)
    def preK(g):
        k = g.k
        g.L16 = alloc(g, 1, 1); g.L2 = alloc(g, 1, 1); g.B = alloc(g, 2, 2)
        srd(k, 36, 'ws', WS_U2, ZSZ); srd(k, 40, 'b_sp')
        k.e('v_lshlrev_b32 v%d, 4, v1' % g.L16)
        k.e('''
        s_lshl_b32 s60, s31, 13
        s_lshl_b32 s61, s30, 2
        s_add_u32 s61, s61, s46           ; rb32
        s_lshl_b32 s63, s61, 6
        s_mul_i32 s61, s61, %d
        s_add_u32 s60, s60, s61
        s_add_u32 s61, s60, 4096
        v_lshlrev_b32 v%d, 1, v3
        ''' % (112 * 1024, g.L2))
    def pre2K(g):
        g.k.e('buffer_load_ushort v%d, v%d, s[40:43], s63 offen' % (g.B, g.L2))
    def epiK(g):
        k = g.k
        T = g.FR
        k.e('s_waitcnt vmcnt(0)')
        k.e('v_lshlrev_b32 v%d, 16, v%d' % (g.B, g.B))
        for j in range(4):
            a = g.acc(0, j); z = ZKEEP + 8 * j
            for d in range(8): unpack(k, T + 2 * d, T + 2 * d + 1, z + d)
            for d in range(8): k.e(pk('add', a + 2 * d, a + 2 * d, (g.B,)))
            for d in range(8): k.e(pk('mul', a + 2 * d, a + 2 * d, T + 2 * d))
            store_xf_tile(g, a, z, g.L16, 36, 's%d' % (60 + j // 2), (j % 2) * 2048)
    sig = 's_lshl_b32 s100, s30, 8\ns_lshl_b32 s101, s31, 4\ns_add_u32 s100, s100, s101\ns_add_u32 s100, s100, %d' % FL_WSP
    wait = ('s_lshl_b32 s100, s31, 8\ns_add_u32 s100, s100, %d' % FL_WIN, 64)
    def pre22(g):
        k = g.k
        g.L16 = alloc(g, 1, 1); g.L2 = alloc(g, 1, 1); g.B = alloc(g, 4)
        srd(k, 36, 'ws', WS_U2, ZSZ); srd(k, 40, 'b_sp')
        k.e('v_lshlrev_b32 v%d, 4, v1' % g.L16)
        k.e('''
        s_lshl_b32 s60, s31, 13
        s_lshl_b32 s61, s51, 12
        s_add_u32 s60, s60, s61
        s_lshl_b32 s61, s30, 2
        s_lshl_b32 s62, s50, 1
        s_add_u32 s61, s61, s62           ; rb0
        s_lshl_b32 s63, s61, 6
        s_mul_i32 s61, s61, %d
        s_add_u32 s60, s60, s61
        s_add_u32 s61, s60, %d
        v_lshlrev_b32 v%d, 1, v3
        ''' % (112 * 1024, 112 * 1024, g.L2))
    def pre22f(g):
        pre22(g)
        k = g.k
        for q in range(4): k.e('v_lshlrev_b32 v%d, 16, v%d' % (BSV + q, BSV + q))
        for i in range(2):
            for j in range(2):
                for r in range(16): k.e('v_mov_b32 v%d, v%d' % (g.acc(i, j) + r, BSV + 2 * i + (r // 4) % 2))
    def epi22f(g):
        k = g.k
        for j in range(2):
            for i in range(2):
                a = g.acc(i, j); z = ZKEEP + 16 * (2 * i + j)
                g.fix(i, j)
                k.e('s_nop 0')
                for d in range(8): k.e(pk('mul', a + 2 * d, a + 2 * d, z + 2 * d))
                store_xf_tile(g, a, a, g.L16, 36, 's%d' % (60 + i), j * 2048)
    def pre222(g):
        for i in range(2): g.k.e('buffer_load_ushort v%d, v%d, s[40:43], s63 offen offset:%d' % (g.B + 2 * i, g.L2, i * 64))
    def epi22(g):
        k = g.k
        T = g.FR
        k.e('s_waitcnt vmcnt(0)')
        for i in range(2): k.e('v_lshlrev_b32 v%d, 16, v%d' % (g.B + 2 * i, g.B + 2 * i))
        for j in range(2):
            for i in range(2):
                a = g.acc(i, j); z = ZKEEP + 16 * (2 * i + j)
                for d in range(8): unpack(k, T + 2 * d, T + 2 * d + 1, z + d)
                for d in range(8): k.e(pk('add', a + 2 * d, a + 2 * d, (g.B + 2 * i,)))
                for d in range(8): k.e(pk('mul', a + 2 * d, a + 2 * d, T + 2 * d))
                store_xf_tile(g, a, z, g.L16, 36, 's%d' % (60 + i), j * 2048)
    tailpre = None
    if TPRE:
        su, pcs = proj_wpre('w_out', 24, 4, 's46')
        def tp(k, n):
            cnt = 0
            for st in (2 * n, 2 * n + 1):
                if st < TPRE:
                    for x in pcs(st):
                        k.e(x)
                        if 'm0' in x: k.e('s_nop 0')
                    cnt += 4
            return cnt
        tailpre = (su, tp)
    if W22 and ZF32: k_gemm(k, c, 16, 14, 2, 2, 7, 128, 128, 2, 2, 2048, 64, 3, ('rm', 'w_sp', 4096), ('z', WS_Z2N, 1792), pre22f, nop, epi22f, pf='w_out', wait=wait, sig=sig, dep='Y', GU=2, RWD=2, frbase=ZKEEP + 64, own='s_lshl_b32 s68, s30, 1', cinit=True, lazyfix=True, tailpre=tailpre)
    elif W22: k_gemm(k, c, 16, 14, 2, 2, 7, 128, 128, 2, 2, 2048, 64, 3, ('rm', 'w_sp', 4096), ('z', WS_Z2N, 1792), pre22, pre222, epi22, pf='w_out', wait=wait, sig=sig, dep='Y', GU=2, RWD=2, frbase=ZKEEP + 64, own='s_lshl_b32 s68, s30, 1')
    elif KZ: k_gemm(k, c, 16, 14, 2, 2, 7, 128, 128, 2 if env('H22', 0) else 4, 2 if env('H22', 0) else 1, 2048, 64, 3, ('rm', 'w_sp', 4096), ('z', WS_Z2N, 1792), preK, pre2K, epiK, pf='w_out', wait=wait, sig=sig, dep='Y', GU=2, RWD=2, frbase=ZKEEP + 32, own='s_lshl_b32 s68, s30, 1')
    else: k_gemm(k, c, 16, 14, 2, 2, 7, 128, 128, 2, 2, 2048, 64, 3, ('rm', 'w_sp', 4096), ('z', WS_Z2N, 1792), pre, pre2, epi, pf='w_out', wait=wait, sig=sig, dep='Y', GU=2, RWD=2, own='s_lshl_b32 s68, s30, 1')

def k_attn(k, c):
    NS = 4; STG = 32768; NST = 8
    phase_begin(k, c)
    SA, SB, O, NEGM = 8, 24, 40, 56
    L, ONES, Q, KF, VF, P = 72, 76, 80, 88, 96, 104
    A0 = 112; AC = 113; AO = 114; M = 115; T = 116; T2 = 117; PFA = 118; MA = 119; PFD = 120; MT = 124
    assert c.nxt == 'wo'
    k.e("""
    v_and_b32 v1, 63, v0
    s_mov_b32 s46, s3
    s_and_b32 s47, s2, 7
    s_lshr_b32 s48, s2, 3
    s_lshl_b32 s30, s47, 2
    s_lshr_b32 s49, s48, 3
    s_add_u32 s30, s30, s49            ; head
    s_and_b32 s31, s48, 7              ; q block (256 rows)
    v_lshlrev_b32 v%d, 4, v1
    s_lshl_b32 s50, s31, 3
    s_add_u32 s50, s50, s46            ; rb of this wave's queries
    s_lshl_b32 s51, s30, 6
    s_add_u32 s51, s51, s50
    s_lshl_b32 s51, s51, 11            ; Q offset
    s_lshl_b32 s52, s30, 18            ; KV head base
    s_lshl_b32 s53, s46, 12            ; wave part (4KB = one tile)
    s_lshl_b32 s62, s2, 13
    v_lshl_add_u32 v%d, v0, 4, s62     ; prefetch offset wg*8K + tid*16
    s_mov_b32 s62, %d
    s_waitcnt lgkmcnt(0)
    """ % (A0, PFA, 0x40000000 if env('PFOFF', 0) else 0))
    mark(k, 0)
    srd(k, 36, 'ws', WS_KV, 256 * KB, soff='s52'); srd(k, 32, 'ws', WS_Q, 4 * MB)
    set_flag(k, 's_lshl_b32 s100, s31, 8\ns_lshl_b32 s101, s30, 2\ns_add_u32 s100, s100, s101\ns_add_u32 s100, s100, %d' % FL_ATT)
    handoff(k, 's_lshr_b32 s100, s30, 1\ns_lshl_b32 s100, s100, 8\ns_add_u32 s100, s100, %d' % FL_QKV, 64, role='A')
    def dma(slot_expr):
        return ['s_add_u32 m0, s53, %s' % slot_expr] + \
               ['buffer_load_dwordx4 v%d, s[36:39], s56 offen offset:%d sc1 lds' % (A0, q * 1024) for q in range(4)] + \
               ['s_add_u32 s56, s56, %d' % STG]
    def pfl(n): return 'buffer_load_dwordx4 %s, v%d, %s, s62 offen' % (vr(PFD, 4), PFA, sr(n))
    def emit_dma(slot_expr):
        d = dma(slot_expr); k.e(d[0]); k.e('s_nop 0')
        for x in d[1:]: k.e(x)
    AST = env('AST', 1)
    if AST:
        k.e('s_lshl_b32 s56, s46, 10')
        k.e('s_mov_b32 m0, s56')
        k.e('s_mul_i32 s58, s46, 3072')
        k.e('buffer_load_dwordx4 v%d, s[36:39], s56 offen sc1 lds' % A0)
    else:
        k.e('s_mov_b32 s56, s53')
        emit_dma('0')
    k.e('buffer_load_dwordx4 %s, v%d, s[32:35], s51 offen sc1' % (vr(Q, 4), A0))
    k.e('buffer_load_dwordx4 %s, v%d, s[32:35], s51 offen offset:1024 sc1' % (vr(Q + 4, 4), A0))
    if AST:
        k.e('s_add_u32 s56, s58, 8192')
        k.e('s_mov_b32 m0, s56')
        k.e('s_nop 0')
        for q in range(3): k.e('buffer_load_dwordx4 v%d, s[36:39], s56 offen offset:%d sc1 lds' % (A0, q * 1024))
        k.e('s_add_u32 s56, s53, %d' % STG)
        emit_dma(str(STG))
    srd(k, 64, 'w_in'); srd(k, 68, 'w_sp'); srd(k, 32, 'wo')
    srd(k, 40, 'ws', WS_O, 4 * MB)
    k.e("""
    s_lshl_b32 s54, s50, 16
    s_lshl_b32 s55, s30, 11
    s_add_u32 s54, s54, s55            ; O offset
    v_and_b32 v3, 3, v1
    v_bfe_u32 v4, v1, 2, 1
    v_bfe_u32 v5, v1, 4, 1
    v_xor_b32 v4, v4, v5
    v_or_b32 v3, v3, v4
    v_cmp_eq_u32 vcc, 0, v3
    v_mov_b32 v4, 0x3f803f80
    s_nop 1
    v_cndmask_b32 v%d, 0, v4, vcc
    v_mov_b32 v%d, v%d
    v_mov_b32 v%d, v%d
    v_mov_b32 v%d, v%d
    """ % (ONES, ONES + 1, ONES, ONES + 2, ONES, ONES + 3, ONES))
    def adr(t): return (AC if t < 16 else AO), (t % 16) * 4096
    def rdK(t):
        a, o = adr(t)
        return ['ds_read_b128 %s, v%d offset:%d' % (vr(KF, 4), a, o), 'ds_read_b128 %s, v%d offset:%d' % (vr(KF + 4, 4), a, o + 1024)]
    def rdV(t):
        a, o = adr(t)
        return ['ds_read_b128 %s, v%d offset:%d' % (vr(VF, 4), a, o + 2048), 'ds_read_b128 %s, v%d offset:%d' % (vr(VF + 4, 4), a, o + 3072)]
    def qk(S, c):
        return ['v_mfma_f32_32x32x16_bf16 %s, %s, %s, %s' % (vr(S, 16), vr(KF, 4), vr(Q, 4), c),
                'v_mfma_f32_32x32x16_bf16 %s, %s, %s, %s' % (vr(S, 16), vr(KF + 4, 4), vr(Q + 4, 4), vr(S, 16))]
    def maxtile(S, first):
        st = 0
        if first:
            k.e('v_max3_f32 v%d, v%d, v%d, v%d' % (M, S, S + 1, S + 2))
            k.e('v_max_f32 v%d, v%d, v%d' % (M, M, S + 3))
            st = 4
        for r in range(st, 16, 2): k.e('v_max3_f32 v%d, v%d, v%d, v%d' % (M, M, S + r, S + r + 1))
    def set_negm(bias):
        k.e('v_mov_b32 v%d, v%d' % (T, M))
        k.e('s_nop 1')
        k.e('v_permlane32_swap_b32 v%d, v%d' % (M, T))
        k.e('s_nop 1')
        k.e('v_max_f32 v%d, v%d, v%d' % (M, M, T))
        k.e('v_sub_f32 v%d, %s, v%d' % (NEGM, hx(-bias), M))
        for r in range(1, 16): k.e('v_mov_b32 v%d, v%d' % (NEGM + r, NEGM))
    def zero_state():
        for r in range(16): k.e('v_mov_b32 v%d, 0' % (O + r))
        for r in range(4):
            k.e('v_mov_b32 v%d, 0' % (L + r))
            k.e('v_mov_b32 v%d, 0' % (P + 4 + r))
            k.e('v_mov_b32 v%d, 0' % (VF + 4 + r))
        k.e('v_mov_b32 v%d, v%d' % (AC, A0))
        k.e('v_add_u32 v%d, 0x10000, v%d' % (AO, A0))
        k.e('s_mov_b32 s57, 0')
    zero_state()
    if not MP0: srd(k, 80, 'ws', 0, 256 * KB)
    if not MP0: k.e("""
    s_and_b32 s49, s2, 3               ; k quarter
    s_lshl_b32 s49, s49, 3
    s_add_u32 s49, s49, s46            ; 32-row group
    s_mul_i32 s60, s49, %d
    s_lshr_b32 s63, s2, 2              ; col block
    s_lshl_b32 s63, s63, 7
    s_add_u32 s60, s60, s63
    s_add_u32 s60, s60, 4096
    s_add_u32 s61, s60, 12288
    s_and_b32 s49, s2, 3
    s_lshl_b32 s49, s49, 2
    s_and_b32 s63, s46, 3
    s_add_u32 s49, s49, s63
    s_lshl_b32 s49, s49, 8             ; silu offset of row groups 2(w&3), +1
    s_add_u32 s49, s49, %d
    v_lshrrev_b32 v%d, 3, v1
    v_mul_u32_u24 v%d, %d, v%d
    v_and_b32 v%d, 7, v1
    v_lshl_add_u32 v%d, v%d, 4, v%d
    v_lshlrev_b32 v%d, 4, v%d
    """ % (32 * 12288, WS_SC, MT, MA, 4 * 12288, MT, MT + 1, MA, MT + 1, MA, MT, MT))
    def mld(j): return ['s_add_u32 m0, s53, %d' % (AUX_A + j * 1024), 'buffer_load_dwordx4 v%d, s[80:83], s%d offen lds' % (MA, (60, 61, 63, 49)[j])]
    k.e('s_waitcnt vmcnt(%d)' % (7 if AST else 0))
    k.e('s_barrier')
    mark(k, 1)
    for r in rdK(1): k.e(r)
    k.e('s_waitcnt lgkmcnt(0)')
    for m in qk(SB, '0'): k.e(m)
    for r in rdK(0): k.e(r)
    k.e('s_waitcnt lgkmcnt(0)')
    for m in qk(SA, '0'): k.e(m)
    def extras():
        if MP0: return
        k.e(pfl(32))
        k.e('buffer_load_dwordx4 %s, v%d, s[80:83], s49 offen' % (vr(MSV, 4), MT))
        k.e('buffer_load_dwordx4 %s, v%d, s[80:83], s49 offen offset:128' % (vr(MSV + 4, 4), MT))
        srd(k, 80, 'w_mod')
        k.e('s_mov_b32 s49, 0x40000000')
        k.e('s_mov_b32 s63, 0x40000000')
    if AST: k.e('s_nop 7')
    else:
        emit_dma(str(STG)); extras()
    maxtile(SB, True)
    maxtile(SA, False)
    set_negm(40.0)
    if AST:
        k.e('s_waitcnt vmcnt(4)')
        k.e('s_barrier')
        extras()
    mark(k, 2)
    if env('APRIO', 0):
        k.e('s_cmp_ge_u32 s46, 4')
        k.e('s_cbranch_scc0 L_attn_noprio')
        k.e('s_setprio 1')
        k.label('L_attn_noprio')
    k.e('s_mov_b32 s59, %d' % (NST // 2))
    k.e('s_nop 0')
    for m in qk(SA, vr(NEGM, 16)): k.e(m)
    k.e(rdK(1)[0])
    k.e('ds_read_b32 v%d, v%d' % (T, A0))
    k.e(rdK(1)[1])
    k.e(rdV(0)[0])
    k.e('s_nop 7')
    lp = 'L_attn_loop'
    def pv(h): return 'v_mfma_f32_32x32x16_bf16 %s, %s, %s, %s' % (vr(O, 16), vr(VF + 4 * h, 4), vr(P + 4 * h, 4), vr(O, 16))
    def ls(h): return 'v_mfma_f32_16x16x32_bf16 %s, %s, %s, %s' % (vr(L, 4), vr(ONES, 4), vr(P + 4 * h, 4), vr(L, 4))
    def iteration(nsoft, pat0):
        for t in range(16):
            cur, nxt = (SA, SB) if t % 2 == 0 else (SB, SA)
            m_qk = qk(nxt, vr(NEGM, 16))
            kn = rdK(t + 2); v0n = rdV(t + 1)[0]; v1n = rdV(t)[1]
            ex = ['v_exp_f32 v%d, v%d' % (cur + r, cur + r) for r in range(16)]
            cv = ['v_cvt_pk_bf16_f32 v%d, v%d, v%d' % (P + d, cur + 2 * d, cur + 2 * d + 1) for d in range(8)]
            W = 's_waitcnt lgkmcnt(2)'
            head = []; xs = []
            if t % 8 == 6: head = ['s_waitcnt vmcnt(%d)' % (9 if not MP0 else (6 if t == 6 else 7)), 's_barrier']
            if t == 14 and not c.last and not nsoft: head = ['s_cmp_eq_u32 s59, 1', 's_cbranch_scc0 L_attn_nd', 's_waitcnt vmcnt(0)', 'L_attn_nd:'] + head
            d = dma('s58')
            if t % 8 == 0: xs = ['s_xor_b32 s58, s57, 0x%x' % (0x10000 if t == 0 else 0x18000), d[0], d[1]]
            elif t % 8 < 3: xs = [d[1 + t % 8]]
            elif t % 8 == 3: xs = [d[4], d[5]]
            elif t == 4: xs = [pfl(64)]
            elif t == 5: xs = [pfl(68)]
            elif MP0 and t == 7: xs = [pfl(32)]
            elif MP0 and t == 12: xs = ['s_add_u32 s62, s62, %d' % (2 * MB)]
            elif MP0 and t == 13: xs = []
            elif MP0 and t == 15: xs = ['s_xor_b32 s57, s57, 0x10000']
            elif t == 7: xs = mld(0)
            elif t == 12: xs = ['s_add_u32 s62, s62, %d' % (2 * MB)] + mld(2)
            elif t == 13: xs = mld(1)
            elif t == 15: xs = ['s_xor_b32 s57, s57, 0x10000'] + mld(3) + ['s_add_u32 s63, s60, %d' % (2 * 12288), 's_add_u32 s49, s60, %d' % (3 * 12288)]
            tail = ['v_swap_b32 v%d, v%d' % (AC, AO), 's_sub_u32 s59, s59, 1', 's_cmp_lg_u32 s59, 0'] if t == 15 else []
            pat = pat0 if t < nsoft else os.environ.get('APAT', 'eeeQeeePeeccLcc')
            body = []
            for hh in range(2):
                ei = 8 * hh; ci = 4 * hh
                for ch in pat:
                    if ch == 'e': body.append(ex[ei]); ei += 1
                    elif ch == 'c': body.append(cv[ci]); ci += 1
                    elif ch == 'Q': body += [W, m_qk[hh], kn[hh]]
                    elif ch == 'P': body += [pv(1 - hh), v1n if hh == 0 else v0n]
                    elif ch == 'L': body.append(ls(1 - hh))
                assert ei == 8 * hh + 8 and ci == 4 * hh + 4
            if tail:
                last_ds = max(i for i, x in enumerate(body) if x.startswith('ds_') or x.startswith('v_exp'))
                body = body[:last_ds + 1] + tail + body[last_ds + 1:]
            iq = max(i for i, x in enumerate(body) if x == m_qk[1])
            first_e = min(i for i, x in enumerate(body) if x.startswith('v_exp'))
            assert len(body) - 1 - iq + first_e >= 12, 'qk->exp distance'
            seq = list(head)
            for x in body:
                seq.append(x)
                if xs and x.startswith('v_exp'): seq.append(xs.pop(0))
            assert not xs
            AX = os.environ.get('AX', '')
            if 'p' in AX: seq = [x for x in seq if 's62 offen' not in x]
            for x in seq: k.e(x)
    if env('ASOFT', 8): iteration(env('ASOFT', 8), os.environ.get('APAT0', 'eQPLeeeeeeecccc'))
    k.label(lp)
    iteration(0, None)
    k.e('s_cbranch_scc1 %s' % lp)
    k.label('L_attn_epi')
    mark(k, 3)
    k.e('s_waitcnt lgkmcnt(0)')
    k.e(pv(1)); k.e(ls(1))
    k.e('s_nop 15')
    lstore = 'L_attn_store'; lsafe = 'L_attn_safe'
    k.e('v_max3_f32 v%d, |v%d|, |v%d|, |v%d|' % (T, O, O + 1, L))
    for r in range(2, 16, 2): k.e('v_max3_f32 v%d, |v%d|, |v%d|, v%d' % (T, O + r, O + r + 1, T))
    k.e('v_mul_f32 v%d, 0, v%d' % (T2, L))
    for r in range(16): k.e('v_fma_f32 v%d, 0, v%d, v%d' % (T2, O + r, T2))
    k.e('v_add_f32 v%d, v%d, v%d' % (T, T, T2))
    k.e('v_mov_b32 v3, %s' % hx(2.0 ** 120))
    k.e('v_cmp_nlt_f32 vcc, v%d, v3' % T)
    k.e('s_nop 4')
    k.e('s_cbranch_vccnz %s' % lsafe)
    k.label(lstore)
    k.e('v_rcp_f32 v%d, v%d' % (T, L))
    k.e('s_nop 0')
    for r in range(16): k.e('v_mul_f32 v%d, v%d, v%d' % (O + r, O + r, T))
    for d in range(8): k.e('v_cvt_pk_bf16_f32 v%d, v%d, v%d' % (P + d, O + 2 * d, O + 2 * d + 1))
    k.e('buffer_store_dwordx4 %s, v%d, s[40:43], s54 offen%s' % (vr(P, 4), A0, WT))
    k.e('buffer_store_dwordx4 %s, v%d, s[40:43], s54 offen offset:1024%s' % (vr(P + 4, 4), A0, WT))
    signal(k, 'S')
    endpgm(k)
    k.label(lsafe)
    def gl(dst, off): return 'buffer_load_dwordx4 %s, v%d, s[36:39], s56 offen offset:%d sc1' % (vr(dst, 4), A0, off)
    k.e('s_waitcnt vmcnt(0)')
    k.e('s_mov_b32 s56, 0')
    k.e('v_mov_b32 v%d, 0xff800000' % M)
    k.label(lsafe + '1')
    k.e(gl(KF, 0)); k.e(gl(KF + 4, 1024))
    k.e('s_waitcnt vmcnt(0)')
    for m in qk(SA, '0'): k.e(m)
    k.e('s_nop 15')
    maxtile(SA, False)
    k.e('s_add_u32 s56, s56, 4096')
    k.e('s_cmp_lt_u32 s56, %d' % (256 * KB))
    k.e('s_cbranch_scc1 %s1' % lsafe)
    set_negm(0.0)
    zero_state()
    k.e('s_mov_b32 s56, 0')
    k.label(lsafe + '2')
    k.e(gl(KF, 0)); k.e(gl(KF + 4, 1024)); k.e(gl(VF, 2048)); k.e(gl(VF + 4, 3072))
    k.e('s_waitcnt vmcnt(0)')
    for m in qk(SA, vr(NEGM, 16)): k.e(m)
    k.e('s_nop 15')
    for r in range(16): k.e('v_exp_f32 v%d, v%d' % (SA + r, SA + r))
    k.e('s_nop 0')
    for d in range(8): k.e('v_cvt_pk_bf16_f32 v%d, v%d, v%d' % (P + d, SA + 2 * d, SA + 2 * d + 1))
    k.e('s_nop 1')
    k.e(pv(0)); k.e(ls(0)); k.e(pv(1)); k.e(ls(1))
    k.e('s_add_u32 s56, s56, 4096')
    k.e('s_nop 7')
    k.e('s_cmp_lt_u32 s56, %d' % (256 * KB))
    k.e('s_cbranch_scc1 %s2' % lsafe)
    k.e('s_nop 15')
    k.e('s_branch %s' % lstore)
    k.need(MSV + 8, 160 * KB)

def k_attn2(k, c):
    phase_begin(k, c)
    assert c.prev == 'qkv' and c.nxt == 'wo' and not (MP0 and AOWN != 3)
    S2 = (8, 24); O2 = (40, 56); N2 = (72, 88); L2 = (104, 108); Q2 = (112, 120)
    ONES, KF, VF, P = 128, 132, 140, 148
    A0 = 156; AR = 157; M = 158; T = 159; T2 = 160; PFA = 161; MA = 162; MT = 164; PFD = 168
    k.e("""
    v_and_b32 v1, 63, v0
    s_mov_b32 s46, s3
    s_and_b32 s47, s3, 1               ; wn
    s_bfe_u32 s48, s3, 0x10001         ; wm
    s_lshr_b32 s49, s3, 2              ; kh
    s_lshl_b32 s50, s31, 1
    s_add_u32 s50, s50, s47            ; head
    s_lshl_b32 s52, s50, 18
    s_lshl_b32 s51, s49, 17
    s_add_u32 s51, s51, s52            ; stream base in KV
    s_lshl_b32 s55, s49, 1
    s_add_u32 s55, s55, s47
    s_lshl_b32 s55, s55, 15            ; stream ring base in LDS
    s_lshl_b32 s56, s48, 12            ; next global offset: own tile of stage 0
    s_add_u32 s57, s55, s56            ; LDS address of own tile in slot 0
    s_lshl_b32 s53, s3, 12             ; wave*4KB (mod slice staging)
    v_lshlrev_b32 v%d, 4, v1
    v_add_u32 v%d, s55, v%d
    s_lshl_b32 s54, s30, 2
    s_lshl_b32 s58, s48, 1
    s_add_u32 s54, s54, s58
    s_add_u32 s54, s54, s49            ; rb of the tile this wave finalises
    s_lshl_b32 s54, s54, 16
    s_lshl_b32 s58, s50, 11
    s_add_u32 s54, s54, s58            ; O offset
    s_lshl_b32 s62, s2, 13
    v_lshl_add_u32 v%d, v0, 4, s62     ; prefetch offset wg*8K + tid*16
    s_mov_b32 s62, 0
    v_and_b32 v3, 3, v1
    v_bfe_u32 v4, v1, 2, 1
    v_bfe_u32 v5, v1, 4, 1
    v_xor_b32 v4, v4, v5
    v_or_b32 v3, v3, v4
    v_cmp_eq_u32 vcc, 0, v3
    v_mov_b32 v4, 0x3f803f80
    s_nop 1
    v_cndmask_b32 v%d, 0, v4, vcc
    v_mov_b32 v%d, v%d
    v_mov_b32 v%d, v%d
    v_mov_b32 v%d, v%d
    """ % (A0, AR, A0, PFA, ONES, ONES + 1, ONES, ONES + 2, ONES, ONES + 3, ONES))
    mark(k, 0)
    if AOWN:
        srd(k, 36, 'ws', WS_KV, 256 * KB, soff='s52')
        k.e('''
        s_mov_b32 s86, s87                 ; qkv flag the compute waves still have to publish
        s_lshl_b32 s51, s30, 14
        s_add_u32 s51, s51, s56            ; offset of the own pairs (skipped in the stream)
        s_mul_i32 s58, s49, %d
        s_add_u32 s56, s56, s58
        s_cmp_ge_u32 s56, s51
        s_cselect_b32 s58, 16384, 0
        s_add_u32 s56, s56, s58
        ''' % (15 * 8192))
    else: srd(k, 36, 'ws', WS_KV, 128 * KB, soff='s51')
    srd(k, 80, 'ws', 0, 256 * KB)
    srd(k, 64, 'w_in'); srd(k, 68, 'w_sp'); srd(k, 32, 'wo')
    for r in range(16):
        k.e('v_mov_b32 v%d, 0' % (O2[0] + r)); k.e('v_mov_b32 v%d, 0' % (O2[1] + r))
    for r in range(4):
        for b in (L2[0], L2[1], P + 4, VF + 4): k.e('v_mov_b32 v%d, 0' % (b + r))
    k.e("""
    s_and_b32 s58, s2, 3               ; k quarter
    s_lshl_b32 s58, s58, 3
    s_add_u32 s58, s58, s46            ; 32-row group
    s_mul_i32 s60, s58, %d
    s_lshr_b32 s63, s2, 2              ; col block
    s_lshl_b32 s63, s63, 7
    s_add_u32 s60, s60, s63
    s_add_u32 s60, s60, 4096
    s_add_u32 s61, s60, 12288
    s_and_b32 s44, s2, 3
    s_lshl_b32 s44, s44, 2
    s_and_b32 s63, s46, 3
    s_add_u32 s44, s44, s63
    s_lshl_b32 s44, s44, 8             ; silu offset of row groups 2(w&3), +1
    s_add_u32 s44, s44, %d
    v_lshrrev_b32 v%d, 3, v1
    v_mul_u32_u24 v%d, %d, v%d
    v_and_b32 v%d, 7, v1
    v_lshl_add_u32 v%d, v%d, 4, v%d
    v_lshlrev_b32 v%d, 4, v%d
    ; Q / stand-in exchange area: tile A of this wave = tile kh
    s_and_b32 s58, s3, 3
    s_mul_i32 s58, s58, 5120
    s_add_u32 s58, s58, %d
    s_lshl_b32 s63, s49, 11
    s_add_u32 s63, s63, s58
    v_add_u32 v2, s63, v%d             ; Q of tile kh
    v_xor_b32 v3, 1, v2
    s_xor_b32 s63, s49, 1
    s_lshl_b32 s63, s63, 11
    s_add_u32 s63, s63, s58
    v_add_u32 v3, s63, v%d             ; Q of the other tile
    s_lshl_b32 s63, s49, 2
    s_add_u32 s63, s63, s58
    v_lshl_add_u32 v4, v1, 3, s63
    v_xor_b32 v5, 4, v4
    """ % (32 * 12288, WS_SC, MT, MA, 4 * 12288, MT, MT + 1, MA, MT + 1, MA, MT, MT, AUX_A, A0, A0))
    set_flag(k, 's_lshl_b32 s100, s30, 8\ns_lshl_b32 s101, s31, 2\ns_add_u32 s100, s100, s101\ns_add_u32 s100, s100, %d' % FL_ATT)
    def hand(): handoff(k, 's_lshl_b32 s100, s31, 8\ns_add_u32 s100, s100, %d' % FL_QKV, 64, role='A')
    if AOWN: k.e('s_barrier')
    else: hand()
    def dma(slot):
        return ['s_add_u32 m0, s57, %d' % (slot * 8192)] + \
               ['buffer_load_dwordx4 v%d, s[36:39], s56 offen offset:%d sc1 lds' % (A0, q * 1024) for q in range(4)] + \
               ['s_add_u32 s56, s56, 8192' + ('\ns_cmp_eq_u32 s56, s51\ns_cselect_b32 s58, 16384, 0\ns_add_u32 s56, s56, s58' if AOWN else '')]
    def emit_dma(slot):
        d = dma(slot); k.e(d[0]); k.e('s_nop 0')
        for x in d[1:]: k.e(x)
    def pfl(n): return 'buffer_load_dwordx4 %s, v%d, %s, s62 offen' % (vr(PFD, 4), PFA, sr(n))
    def mld(j): return [] if MP0 else ['s_add_u32 m0, s53, %d' % (AUX_A + j * 1024), 'buffer_load_dwordx4 v%d, s[80:83], s%d offen lds' % (MA, (60, 61, 63, 45)[j])]
    if not AOWN: emit_dma(0); emit_dma(1)
    for q in range(2):
        k.e('ds_read_b128 %s, v%d' % (vr(Q2[q], 4), 2 + q))
        k.e('ds_read_b128 %s, v%d offset:1024' % (vr(Q2[q] + 4, 4), 2 + q))
        k.e('ds_read_b32 v%d, v%d offset:4096' % (N2[q], 4 + q))
    k.e('s_waitcnt lgkmcnt(0)')
    for r in range(1, 16):
        for q in range(2): k.e('v_mov_b32 v%d, v%d' % (N2[q] + r, N2[q]))
    if not AOWN:
        k.e('s_waitcnt vmcnt(4)')
        k.e('s_barrier')
        mark(k, 1)
    def rd(dst, t, part): return 'ds_read_b128 %s, v%d offset:%d' % (vr(dst, 4), AR, (t % 8) * 4096 + part * 1024)
    def qk(q, hh, c0=None):
        S_ = S2[q]
        return 'v_mfma_f32_32x32x16_bf16 %s, %s, %s, %s' % (vr(S_, 16), vr(KF + 4 * hh, 4), vr(Q2[q] + 4 * hh, 4), (c0 or vr(N2[q], 16)) if hh == 0 else vr(S_, 16))
    def pv(q, h): return 'v_mfma_f32_32x32x16_bf16 %s, %s, %s, %s' % (vr(O2[q], 16), vr(VF + 4 * h, 4), vr(P + 4 * h, 4), vr(O2[q], 16))
    def ls(q, h): return 'v_mfma_f32_16x16x32_bf16 %s, %s, %s, %s' % (vr(L2[q], 4), vr(ONES, 4), vr(P + 4 * h, 4), vr(L2[q], 4))
    k.e(rd(KF, 0, 0)); k.e(rd(KF + 4, 0, 1)); k.e(rd(VF, 0, 2))
    def silu_loads():
        if MP0: return
        k.e('buffer_load_dwordx4 %s, v%d, s[80:83], s44 offen sc1' % (vr(MSV, 4), MT))
        k.e('buffer_load_dwordx4 %s, v%d, s[80:83], s44 offen offset:128 sc1' % (vr(MSV + 4, 4), MT))
    def wmod():
        if MP0: return
        srd(k, 80, 'w_mod')
        k.e('s_add_u32 s63, s60, %d' % (2 * 12288))
        k.e('s_add_u32 s45, s60, %d' % (3 * 12288))
    if not AOWN: silu_loads()
    k.e('s_waitcnt lgkmcnt(1)')
    k.e(qk(0, 0)); k.e(qk(0, 1))
    if AOWN: k.e('s_nop 11')
    else:
        emit_dma(2); wmod()
    OD = env('OD', 0) and AOWN == 3
    ool = []
    def late_start():
        if AOWN == 1:
            l = k.newlabel('ls')
            k.e('s_cmp_lt_u32 s3, 4'); k.e('s_cbranch_scc1 %s' % l)
            flag_prep(k)
            k.e('s_and_b32 s100, s3, 3\ns_lshl_b32 s100, s100, 7\ns_add_u32 s100, s100, s86')
            k.e('s_waitcnt vmcnt(0)')
            flag_store(k, 's100')
            k.label(l)
        hand()
        mark(k, 1)
        if OD:
            emit_dma(1); silu_loads(); wmod()
            k.e('''
            s_lshl_b32 s43, s48, 12
            s_add_u32 s43, s43, %d
            s_cmp_ge_u32 s43, s51
            s_cselect_b32 s58, 16384, 0
            s_add_u32 s43, s43, s58
            s_cmp_lt_u32 s3, 4
            s_cselect_b64 vcc, -1, 0
            s_cbranch_scc0 L_attn_np
            s_setprio 1
            L_attn_np:
            ''' % (16 * 8192))
        else:
            emit_dma(1); silu_loads(); emit_dma(2); wmod()
    k.e('s_mov_b32 s59, %d' % (3 if env('LASTB', 1) and not OD else 4))
    mark(k, 2)
    lp = 'L_attn_loop'
    LASTB = env('LASTB', 1) and not OD
    def iteration(first, nsoft, pat0, last=False):
        for u in range(16):
            t = u // 2; q = u % 2; st = u // 4; us = u % 4
            cur = S2[q]
            ex = ['v_exp_f32 v%d, v%d' % (cur + r, cur + r) for r in range(16)]
            cv = ['v_cvt_pk_bf16_f32 v%d, v%d, v%d' % (P + d, cur + 2 * d, cur + 2 * d + 1) for d in range(8)]
            if q == 0:
                Qs = [[qk(1, 0), rd(KF, t + 1, 0)], [qk(1, 1), rd(KF + 4, t + 1, 1)]]
                Ps = [[pv(1, 1), rd(VF + 4, t, 3)], ['WAITV', pv(0, 0)]]
            else:
                Qs = [['s_waitcnt lgkmcnt(0)', qk(0, 0)], [qk(0, 1)]]
                Ps = [[pv(0, 1)], [pv(1, 0), rd(VF, t + 1, 2)]]
            Ls = [ls(1 - q, 1), ls(q, 0)]
            peel = first and AOWN == 4 and u in (2, 3)
            if peel and u == 2:
                Qs = [[qk(1, 0)], [qk(1, 1)]]; Ps = [[pv(1, 1), rd(VF + 4, t, 3)], ['s_waitcnt lgkmcnt(1)', pv(0, 0)]]
            if peel and u == 3:
                Qs = [['s_waitcnt lgkmcnt(0)'], ['s_nop 0']]; Ps = [[pv(0, 1)], [pv(1, 0)]]
            inc = ['s_add_u32 s62, s62, %d' % (2 * MB)]
            NOPF = env('NOPF', 0)
            if first and AOWN: extra = [[], [], mld(0) + [pfl(32)], [pfl(64)], mld(1), mld(2), mld(3), [pfl(68)] + inc]
            elif first: extra = [[], [pfl(32)], mld(0), [pfl(64)], mld(1), mld(2), mld(3), [pfl(68)] + inc]
            else: extra = [[], [], [pfl(64)], [], [], [], [pfl(68)] + inc, []]
            if NOPF: extra = [[y for y in x if 's62' not in y] for x in extra]
            cnt = lambda e: [sum('buffer_load' in y for y in e[2 * i] + e[2 * i + 1]) for i in range(4)]
            nx_ = cnt(extra)
            prevx = ((0 if MP0 else 2) if first else nx_[3]) if st == 0 else nx_[st - 1]
            head = ['s_waitcnt vmcnt(%d)' % (prevx + 4 + nx_[st]), 's_barrier'] if us == 2 else []
            if last and us == 2 and st >= 2: head = (['s_waitcnt vmcnt(%d)' % (prevx + nx_[st])] if st == 2 else []) + ['s_barrier']
            if peel: head = []
            d = dma((st + 3) % 4)
            if OD and us == 2:
                lb = 'L_attn_fd%d_%d' % (first, st)
                d0 = dma((st + 2) % 4)
                d1 = [x.replace('s56', 's43').replace('s57, %d' % (((st + 2) % 4) * 8192), 's57, %d' % (((st + 2) % 4) * 8192 + 65536)) for x in d0]
                nw = 8 + nx_[st] + (2 if first and st == 0 else 0)
                ool.append([lb + ':', d0[0], 's_nop 0'] + d0[1:5] + [d1[0], 's_nop 0'] + d1[1:5] + [d0[5], d1[5], 's_waitcnt vmcnt(%d)' % nw, 's_branch %sr' % lb])
                head = ['s_cbranch_vccnz %s' % lb] + (['s_waitcnt vmcnt(2)'] if first and st == 0 else []) + [lb + 'r:', 's_barrier']
            if (OD or (last and st >= 1)) and us >= 2: xs = []
            elif us == 2: xs = [d[0], d[1], None, None, None, None, None, None, None, d[2]]
            elif us == 3: xs = [d[3], None, None, None, None, None, None, None, d[4], d[5]]
            else: xs = list(extra[2 * st + us])
            pat = pat0 if u < nsoft else os.environ.get('APAT', 'eeeQeeePeeccLcc')
            assert pat.index('Q') < pat.index('P')
            body = []
            for hh in range(2):
                ei = 8 * hh; ci = 4 * hh
                for ch in pat:
                    if ch == 'e': body.append(ex[ei]); ei += 1
                    elif ch == 'c': body.append(cv[ci]); ci += 1
                    elif ch == 'Q': body += Qs[hh]
                    elif ch == 'P': body += Ps[hh]
                    elif ch == 'L': body.append(Ls[hh])
            body = ['s_waitcnt lgkmcnt(3)' if x == 'WAITV' else x for x in body]
            if u == 15 and not last:
                le = max(i for i, x in enumerate(body) if x.startswith('v_exp'))
                body = body[:le + 1] + ['s_sub_u32 s59, s59, 1', 's_cmp_lg_u32 s59, 0'] + body[le + 1:]
            if peel and u == 3:
                body += ['s_waitcnt vmcnt(10)', 's_barrier', rd(KF, 2, 0), rd(KF + 4, 2, 1), rd(VF, 2, 2), 's_waitcnt lgkmcnt(1)', qk(0, 0), qk(0, 1)]
            iq = body.index(qk(1 - q, 1))
            first_e = min(i for i, x in enumerate(body) if x.startswith('v_exp'))
            gap = len(body) - 1 - iq + first_e
            if gap < 12: body.append('s_nop %d' % (11 - gap))
            if first and AOWN and u == (0 if AOWN == 3 else 2): late_start()
            seq = list(head)
            for x in body:
                seq.append(x)
                if xs and x.startswith('v_exp'):
                    y = xs.pop(0)
                    if y: seq.append(y)
            assert not xs
            AX = os.environ.get('AX', '')
            if 'b' in AX: seq = [x for x in seq if x != 's_barrier']
            if 'p' in AX: seq = [x for x in seq if 's62 offen' not in x and 's[80:83]' not in x]
            if 'v' in AX: seq = [x for x in seq if 'buffer_load' not in x]
            if 'd' in AX: seq = [x for x in seq if not x.startswith('ds_read') and 'lgkmcnt' not in x]
            if 'l' in AX: seq = [x for x in seq if '16x16x32' not in x]
            for x in seq: k.e(x)
    iteration(True, env('ASOFT', 8), os.environ.get('APAT0', 'eQPLeeeeeeecccc'))
    k.label(lp)
    iteration(False, 0, None)
    k.e('s_cbranch_scc1 %s' % lp)
    if LASTB:
        iteration(False, 0, None, last=True)
        k.e('s_nop 0')
    k.label('L_attn_epi')
    if 'b' in os.environ.get('AX', ''): k.e('s_barrier')
    mark(k, 3)
    k.e('s_nop 0')
    k.e(pv(1, 1)); k.e(ls(1, 1))
    if LASTB:
        k.e("""
        s_lshl_b32 s58, s48, 13
        s_add_u32 s58, s58, s55
        s_add_u32 s58, s58, 8192
        v_add_u32 v2, s58, v%d
        v_lshl_add_u32 v4, v1, 2, s58
        s_xor_b32 s58, s58, 0x10000
        v_add_u32 v3, s58, v%d
        v_lshl_add_u32 v5, v1, 2, s58
        s_nop 3
        """ % (A0, A0))
    else:
        k.e("""
        s_mul_i32 s58, s3, 5120
        v_add_u32 v2, s58, v%d
        v_lshl_add_u32 v4, v1, 2, s58
        s_xor_b32 s58, s3, 4
        s_mul_i32 s58, s58, 5120
        v_add_u32 v3, s58, v%d
        v_lshl_add_u32 v5, v1, 2, s58
        s_waitcnt vmcnt(0) lgkmcnt(0)
        s_barrier
        s_nop 3
        """ % (A0, A0))
    for r in range(4): k.e('ds_write_b128 v2, %s offset:%d' % (vr(O2[1] + 4 * r, 4), r * 1024))
    k.e('ds_write_b32 v4, v%d offset:4096' % L2[1])
    srd(k, 40, 'ws', WS_O, 4 * MB)
    k.e('s_waitcnt lgkmcnt(0)')
    k.e('s_barrier')
    for r in range(4): k.e('ds_read_b128 %s, v3 offset:%d' % (vr(S2[0] + 4 * r, 4), r * 1024))
    k.e('ds_read_b32 v%d, v5 offset:4096' % T)
    k.e('s_waitcnt lgkmcnt(0)')
    O = O2[0]; L = L2[0]; SA = S2[0]; NEGM = N2[0]
    for r in range(0, 16, 2): k.e(pk('add', O + r, O + r, SA + r))
    k.e('v_add_f32 v%d, v%d, v%d' % (L, L, T))
    lstore = 'L_attn_store'; lsafe = 'L_attn_safe'
    k.e('v_max3_f32 v%d, |v%d|, |v%d|, |v%d|' % (T, O, O + 1, L))
    for r in range(2, 16, 2): k.e('v_max3_f32 v%d, |v%d|, |v%d|, v%d' % (T, O + r, O + r + 1, T))
    k.e('v_mul_f32 v%d, 0, v%d' % (T2, L))
    for r in range(16): k.e('v_fma_f32 v%d, 0, v%d, v%d' % (T2, O + r, T2))
    k.e('v_add_f32 v%d, v%d, v%d' % (T, T, T2))
    k.e('v_mov_b32 v3, %s' % hx(2.0 ** 120))
    k.e('v_cmp_nlt_f32 vcc, v%d, v3' % T)
    k.e('s_nop 4')
    k.e('s_cbranch_vccnz %s' % lsafe)
    k.label(lstore)
    k.e('v_rcp_f32 v%d, v%d' % (T2, L))
    k.e('s_nop 0')
    for r in range(0, 16, 2): k.e(pk('mul', O + r, O + r, (T2,)))
    for d in range(8): k.e('v_cvt_pk_bf16_f32 v%d, v%d, v%d' % (P + d, O + 2 * d, O + 2 * d + 1))
    k.e('buffer_store_dwordx4 %s, v%d, s[40:43], s54 offen%s' % (vr(P, 4), A0, WT))
    k.e('buffer_store_dwordx4 %s, v%d, s[40:43], s54 offen offset:1024%s' % (vr(P + 4, 4), A0, WT))
    signal(k, 'S')
    endpgm(k)
    for blk in ool:
        for x in blk: k.e(x)
    k.label(lsafe)
    srd(k, 36, 'ws', WS_KV, 256 * KB, soff='s52')
    def gl(dst, off): return 'buffer_load_dwordx4 %s, v%d, s[36:39], s56 offen offset:%d sc1' % (vr(dst, 4), A0, off)
    k.e('s_mov_b32 s56, 0')
    k.e('v_mov_b32 v%d, 0xff800000' % M)
    k.label(lsafe + '1')
    k.e(gl(KF, 0)); k.e(gl(KF + 4, 1024))
    k.e('s_waitcnt vmcnt(0)')
    k.e(qk(0, 0, '0')); k.e(qk(0, 1))
    k.e('s_nop 15')
    for r in range(0, 16, 2): k.e('v_max3_f32 v%d, v%d, v%d, v%d' % (M, M, SA + r, SA + r + 1))
    k.e('s_add_u32 s56, s56, 4096')
    k.e('s_cmp_lt_u32 s56, %d' % (256 * KB))
    k.e('s_cbranch_scc1 %s1' % lsafe)
    k.e('v_mov_b32 v%d, v%d' % (T, M))
    k.e('s_nop 1')
    k.e('v_permlane32_swap_b32 v%d, v%d' % (M, T))
    k.e('s_nop 1')
    k.e('v_max_f32 v%d, v%d, v%d' % (M, M, T))
    k.e('v_sub_f32 v%d, 0, v%d' % (NEGM, M))
    for r in range(1, 16): k.e('v_mov_b32 v%d, v%d' % (NEGM + r, NEGM))
    for r in range(16): k.e('v_mov_b32 v%d, 0' % (O + r))
    for r in range(4): k.e('v_mov_b32 v%d, 0' % (L + r))
    k.e('s_mov_b32 s56, 0')
    k.label(lsafe + '2')
    k.e(gl(KF, 0)); k.e(gl(KF + 4, 1024)); k.e(gl(VF, 2048)); k.e(gl(VF + 4, 3072))
    k.e('s_waitcnt vmcnt(0)')
    k.e(qk(0, 0)); k.e(qk(0, 1))
    k.e('s_nop 15')
    for r in range(16): k.e('v_exp_f32 v%d, v%d' % (SA + r, SA + r))
    k.e('s_nop 0')
    for d in range(8): k.e('v_cvt_pk_bf16_f32 v%d, v%d, v%d' % (P + d, SA + 2 * d, SA + 2 * d + 1))
    k.e('s_nop 1')
    k.e(pv(0, 0)); k.e(ls(0, 0)); k.e(pv(0, 1)); k.e(ls(0, 1))
    k.e('s_add_u32 s56, s56, 4096')
    k.e('s_nop 7')
    k.e('s_cmp_lt_u32 s56, %d' % (256 * KB))
    k.e('s_cbranch_scc1 %s2' % lsafe)
    k.e('s_nop 15')
    k.e('s_branch %s' % lstore)
    k.need(MSV + 8, 160 * KB)

PHASES = dict(p0=k_p0, qkv=k_qkv, attn=k_attn2 if AT2 else k_attn,
              wo=lambda k, c: k_proj(k, c, 1024, ('xf', WS_O, 1024), 'wo', False),
              win=k_win2 if W22 else k_win, wsp=k_wsp,
              wout=lambda k, c: k_proj(k, c, 1792, ('xf', WS_U2, 1792), 'w_out', True))
GROUPS = [g.split('+') for g in os.environ.get('GRP', 'p0+qkv+attn+wo+win+wsp+wout').split(',')]
def same_kernel(a, b): return any(a in g_ and b in g_ for g_ in GROUPS)
def build():
    ks = []
    for grp in GROUPS:
        k = Kern(grp[0] if len(grp) == 1 else 'm' + grp[0], 256, 1024 if grp[0] == 'pre' else 512, 0)
        prologue(k)
        for i, ph in enumerate(grp):
            c = Ctx(); c.name = ph; c.first = i == 0; c.last = i == len(grp) - 1; c.nxt = None if c.last else grp[i + 1]; c.prev = grp[i - 1] if i else None
            PHASES[ph](k, c)
        k.label(k.endl)
        k.e('s_endpgm')
        assert k.lds <= 160 * KB
        ks.append(k)
    s = '; adaLN + softmax MHA + gMLP block, generated by gen.py (hand-written generator)\n'
    for k in ks: s += k.launch()
    s += '.amdgcn_target "amdgcn-amd-amdhsa--gfx950"\n.text\n'
    for k in ks: s += k.text()
    s += 'L_text_end:\n    s_endpgm\n'
    s += '.section .rodata,"a"\n'
    for k in ks: s += k.desc()
    if len(ks) == 1 and env('SINGLE', 0):
        s = s.replace('; @launch kernel=%s_kernel ' % ks[0].name, '; @launch ')
        s = s.replace(ks[0].name + '_kernel', 'adaLN_cond__softmax_full_mha__mixer_gmlp__prompt_kernel')
    return s

PROMO = ('v_exp_f32', 'v_rcp_f32', 'v_mov_b32', 'v_add_f32', 'v_mul_f32', 'v_sub_f32', 'v_max_f32', 'v_lshlrev_b32', 'v_lshrrev_b32',
         'v_and_b32', 'v_xor_b32', 'v_or_b32', 'v_add_u32', 'v_fmac_f32', 'v_min_u32', 'v_max_u32', 'v_rsq_f32', 'v_sqrt_f32')
def align8(text):
    import subprocess, tempfile, re
    lines = text.split('\n')
    i0 = next(i for i, l in enumerate(lines) if l.endswith('_kernel:')); i1 = next(i for i, l in enumerate(lines) if l.startswith('.section'))
    idx = [i for i in range(i0, i1) if lines[i].strip() and not lines[i].strip().startswith((';', '.')) and not lines[i].strip().endswith(':')]
    with tempfile.TemporaryDirectory() as d:
        open(d + '/a.s', 'w').write(text)
        subprocess.check_call(['clang', '-x', 'assembler', '-target', 'amdgcn-amd-amdhsa', '-mcpu=gfx950', '-c', d + '/a.s', '-o', d + '/a.o'])
        dis = subprocess.check_output(['llvm-objdump', '-d', '--mcpu=gfx950', d + '/a.o'], text=True)
    sz = [4 * len(m.group(1).split()) for m in re.finditer(r'// [0-9A-F]{12}: ([0-9A-F ]+)', dis)]
    assert len(sz) == len(idx), (len(sz), len(idx))
    off = 0; ins = {}; npro = nnop = 0
    MINRUN = env('MINRUN', 8)
    for n, i in enumerate(idx):
        if sz[n] == 8 and off % 8 == 4:
            p = n - 1; done = False
            while p >= 0 and sz[p] == 4:
                op = lines[idx[p]].split()[0]
                if op in PROMO:
                    lines[idx[p]] = lines[idx[p]].replace(op, op + '_e64', 1); sz[p] = 8; off += 4; done = True; npro += 1
                    break
                p -= 1
            if not done:
                r = 0
                while n + r < len(sz) and sz[n + r] == 8: r += 1
                prev = lines[idx[n - 1]].split()[0]
                if r >= MINRUN and prev != 's_getpc_b64':
                    ins[i] = '    s_nop 0'; off += 4; nnop += 1
        off += sz[n]
    out = []
    for i, l in enumerate(lines):
        if i in ins: out.append(ins[i])
        out.append(l)
    print('align8: %d widened, %d nops' % (npro, nnop))
    return '\n'.join(out)

if __name__ == '__main__':
    out = sys.argv[1] if len(sys.argv) > 1 else 'adaLN_cond__softmax_full_mha__mixer_gmlp__prompt.s'
    txt = build()
    if env('AL8', 1): txt = align8(txt)
    open(out, 'w').write(txt)
    print('wrote', out)
```

```python
import sys, struct, os
STAMP = int(os.environ.get('STAMP', '0'))
WS_STAMP = 128 << 20
KIDX = [0]
def env(n, d): return int(os.environ.get(n, d))

MB = 1 << 20
KB = 1024
WS_MOD = 0
WS_UW  = 32 * KB
WS_ST0 = 64 * KB
WS_MODP = 128 * KB
WS_MODT = 768 * KB
TAGP = env('TAGP', 1)
WS_SC = 96 * KB
WS_MODQ = 160 * KB
WS_ST1 = 256 * KB
WS_G   = 512 * KB
WS_FL  = 58 * MB
FLSZ = 2 * MB
FL_LN1, FL_QKV, FL_ATT, FL_WO, FL_WIN, FL_WSP, FL_MOD = [i * 8 * KB for i in range(7)]
WS_EPOCH = 240 * KB
AUX_A = 128 * KB; AUX_B = 148 * KB
WS_H   = 1 * MB
WS_Q   = 5 * MB
WS_KV  = 9 * MB
WS_G2  = 57 * MB
WS_N   = 60 * MB
WS_O   = 17 * MB
WS_X1  = 21 * MB
WS_X1S = 25 * MB
WS_Z   = 29 * MB
ZSZ = 2048 * 1792 * 2
WS_Z2N = WS_Z + ZSZ
WS_U2  = 50 * MB
if env('ALIAS', 0):
    WS_Q = 1 * MB; WS_KV = 5 * MB; WS_H = 13 * MB
    WS_O = WS_H; WS_X1 = WS_Q; WS_X1S = WS_KV
    WS_Z2N = 9 * MB; WS_Z = 17 * MB; WS_U2 = WS_Z
ZB = min(WS_Z, WS_Z2N)

ROLES = {'pre': [('mod', 0, 128, 0, 16), ('stats', 128, 256, 0, 16)], 'ln1': [('pf', 0, 256, 0, 4), ('ln', 0, 256, 4, 8)],
         'attn': [('main', 0, 256, 0, 8)]}
for _n in ('qkv', 'wo', 'wout'): ROLES[_n] = [('load', 0, 256, 0, 4), ('comp', 0, 256, 4, 8)]
for _n in ('win', 'wsp'): ROLES[_n] = [('load', 0, 224, 0, 4), ('comp', 0, 224, 4, 8), ('pf', 224, 256, 0, 8)]
def f2u(f): return struct.unpack('<I', struct.pack('<f', f))[0]
def hx(f): return '0x%08x' % f2u(f)
LOG2E = 1.4426950408889634
WT = os.environ.get('WTF', ' sc1')

class Kern:
    def __init__(self, name, grid, block, lds):
        self.name = name; self.grid = grid; self.block = block; self.lds = lds
        self.lines = []; self.vgpr = 0; self.nlab = 0
    def e(self, s):
        for l in s.strip('\n').split('\n'):
            l = l.strip()
            if l: self.lines.append('    ' + l)
    def label(self, l):
        if env('ALIGN', 0) and ('_loop' in l or '_lloop' in l):
            self.lines.append('.p2align %d' % env('ALIGN', 0))
            for _ in range(env('ALOFF', 0)): self.lines.append('    s_nop 0')
        self.lines.append(l + ':')
    def newlabel(self, base):
        self.nlab += 1
        return 'L_%s_%s%d' % (self.name, base, self.nlab)
    def need(self, vgpr, lds):
        self.vgpr = max(self.vgpr, vgpr); self.lds = max(self.lds, lds)
    def text(self):
        GX = os.environ.get('GX', '')
        if self.name != 'pre':
            if 'm' in GX: self.lines = [l for l in self.lines if 'v_mfma' not in l]
            if 'l' in GX: self.lines = [l for l in self.lines if not (' lds' in l and 'buffer_load' in l and ('s57' in l or 's58' in l))]
            if 'r' in GX: self.lines = [l for l in self.lines if not ('ds_read_b64_tr' in l)]
        if os.environ.get('NOLDSC'):
            self.lines = [l.replace(' sc1 lds', ' lds') for l in self.lines]
        n = self.name + '_kernel'
        return '.globl %s\n.p2align 8\n.type %s,@function\n%s:\n' % (n, n, n) + '\n'.join(self.lines) + '\n'
    def desc(self):
        n = self.name + '_kernel'
        v = self.vgpr
        acc = (v + 3) // 4 * 4
        return ('.p2align 6\n.amdhsa_kernel %s\n  .amdhsa_next_free_vgpr %d\n  .amdhsa_next_free_sgpr 102\n'
                '  .amdhsa_accum_offset %d\n  .amdhsa_group_segment_fixed_size 0\n  .amdhsa_kernarg_size 104\n'
                '  .amdhsa_user_sgpr_count 2\n  .amdhsa_user_sgpr_kernarg_segment_ptr 1\n'
                '  .amdhsa_system_sgpr_workgroup_id_x 1\n.end_amdhsa_kernel\n' % (n, v, acc))
    def launch(self):
        return '; @launch kernel=%s_kernel grid=(%d,1,1) block=(%d,1,1) lds=%d\n' % (self.name, self.grid, self.block, self.lds)

PTR = dict(x=4, wqkv=6, wo=8, bx=10, w_in=12, w_sp=14, b_sp=16, w_out=18, c=20, w_mod=22, out=24, dbg=26, ws=28)
SIZES = dict(x=2048*1024*2, wqkv=1024*3072*2, wo=1024*1024*2, w_in=1024*3584*2, w_sp=2048*2048*2, b_sp=2048*2,
             w_out=1792*1024*2, c=2048, w_mod=1024*6144*2, out=2048*1024*2, dbg=256)

class Ctx: pass
PHIDX = {}
def prologue(k):
    k.endl = 'L_%s_end' % k.name
    k.e("""
    s_load_dwordx16 s[4:19], s[0:1], 0
    s_load_dwordx8 s[20:27], s[0:1], 64
    s_load_dwordx2 s[28:29], s[0:1], 96
    s_cmp_ge_u32 s2, %d
    s_cbranch_scc1 %s
    v_lshrrev_b32 v1, 6, v0
    s_nop 0
    v_readfirstlane_b32 s3, v1
    """ % (k.grid, k.endl))

def phase_begin(k, c):
    k.c = c
    k.label('L_%s_entry' % c.name)
    if env('IDLE_' + c.name, 0):
        for _ in range(env('IDLE_' + c.name, 0)): k.e('s_sleep 36')
    c.kidx = KIDX[0]; KIDX[0] += 1
    PHIDX[c.name] = c.kidx
    if env('PADTO', 0) and c.first: k.e('s_memrealtime s[90:91]')
    if env('DBG', 0) and c.first: dbgstamp(k, 0 if c.name == 'pre' else 10, 512 if c.name == 'pre' else 0, '')
    if STAMP:
        k.e('s_memtime s[88:89]')
        k.e('s_memrealtime s[90:91]')
        for i in range(4): k.e('s_mov_b64 s[%d:%d], 0' % (72 + 2 * i, 73 + 2 * i))

def dbgstamp(k, idx, off, op):
    l = k.newlabel('dbg')
    k.e('''
    s_lshl_b32 s80, s2, 4
    s_add_u32 s80, s80, s3
    s_cmp_lg_u32 s80, %d
    s_cbranch_scc1 %s
    s_waitcnt lgkmcnt(0)
    s_memrealtime s[92:93]
    s_add_u32 s80, s26, %d
    s_addc_u32 s81, s27, 0
    s_and_b32 s81, s81, 0xffff
    s_mov_b32 s82, 256
    s_mov_b32 s83, 0x20000
    s_mov_b64 exec, 1
    s_waitcnt lgkmcnt(0)
    v_mov_b32 v2, s92
    v_mov_b32 v5, %d
    buffer_store_dword v2, v5, s[80:83], 0 offen
    s_mov_b64 exec, -1
    ''' % (5 * 16 + 4, l, off, idx * 4))
    k.label(l)
def endpgm(k):
    c = k.c
    if env('DBG', 0): dbgstamp(k, 1 + c.kidx, 512 if c.name == 'pre' else 0, '')
    if STAMP:
        k.e("""
        s_waitcnt vmcnt(0) lgkmcnt(0)
        s_memtime s[92:93]
        s_memrealtime s[94:95]
        s_mov_b64 exec, 1
        s_add_u32 s80, s28, 0x%x
        s_addc_u32 s81, s29, 0
        s_and_b32 s81, s81, 0xffff
        s_mov_b32 s82, 0x100000
        s_mov_b32 s83, 0x20000
        s_lshl_b32 s86, s2, 4
        s_add_u32 s86, s86, s3
        s_lshl_b32 s86, s86, 5
        s_waitcnt lgkmcnt(0)
        v_mov_b32 v4, s90
        v_mov_b32 v5, s94
        v_mov_b32 v6, s88
        v_mov_b32 v7, s92
        v_mov_b32 v8, s72
        v_mov_b32 v9, s74
        v_mov_b32 v10, s76
        v_mov_b32 v11, s78
        v_mov_b32 v2, s86
        buffer_store_dwordx4 v[4:7], v2, s[80:83], 0 offen
        buffer_store_dwordx4 v[8:11], v2, s[80:83], 0 offen offset:16
        s_waitcnt vmcnt(0)
        """ % (WS_STAMP + c.kidx * (1 << 20)))
    if c.last and env('PADTO', 0):
        l = k.newlabel('pad')
        k.label(l)
        k.e('s_memrealtime s[92:93]\ns_waitcnt lgkmcnt(0)\ns_sub_u32 s92, s92, s90\ns_cmp_lt_u32 s92, %d\ns_cbranch_scc1 %s' % (env('PADTO', 0) * 100, l))
    if c.last: k.e('s_endpgm')
    else:
        k.e('s_mov_b64 exec, -1')
        k.e('s_setprio 0')
        k.e('s_branch L_%s_entry' % c.nxt)
def mark(k, i=0):
    if STAMP:
        k.e('s_memtime s[%d:%d]' % (72 + 2 * i, 73 + 2 * i))
        k.e('s_waitcnt lgkmcnt(0)')

def set_flag(k, setup):
    if not k.c.last:
        k.e(setup)
        k.e('s_lshl_b32 s87, s100, 5')
def OWNF(n): return n in os.environ.get('OWN', 'none').split(',')
ZF32 = env('ZF32', 1)
GEO = env('GEO', 0); TPRE = env('TPRE', 4) if GEO else 0; APRE = env('APRE', 0) if GEO else 0
W22 = env('W22', 1)
LPW = env('LPW', 0)
ZOWN = env('ZOWN', 1)
FV = 252
def flag_store(k, soff):
    k.e('s_mov_b64 exec, 1')
    k.e('buffer_store_dwordx2 %s, v%d, s[96:99], %s offen sc1' % (vr(FV, 2), FV + 2, soff))
    k.e('s_mov_b64 exec, -1')
def flag_prep(k):
    srd(k, 96, 'ws', WS_FL, FLSZ)
    k.e('v_mov_b32 v%d, s84' % FV); k.e('v_mov_b32 v%d, s85' % (FV + 1)); k.e('v_mov_b32 v%d, 0' % (FV + 2))
    k.need(FV + 3, 0)
def signal(k, role='L', keep=0):
    if k.c.last: return
    if role in ('C', 'S'): flag_prep(k)
    if role == 'C':
        k.e('s_and_b32 s100, s3, 3')
        k.e('s_lshl_b32 s100, s100, 7')
        k.e('s_add_u32 s100, s100, s87')
    if role == 'C' and env('SM', 0): mark(k, 3)
    k.e('s_waitcnt vmcnt(%d)' % keep)
    if role == 'C' and env('SM', 0): mark(k, 0)
    if role == 'C':
        flag_store(k, 's100')
        if OWNF(k.c.nxt): k.e('s_barrier')
    elif role == 'A' and OWNF(k.c.nxt) and k.c.nxt == 'wout':
        l = k.newlabel('sg')
        k.e('s_cmp_lt_u32 s3, 4'); k.e('s_cbranch_scc1 %s' % l); k.e('s_barrier'); k.label(l)
    elif role == 'S':
        l = k.newlabel('sg')
        k.e('s_barrier')
        k.e('s_cmp_lg_u32 s3, 7'); k.e('s_cbranch_scc1 %s' % l)
        flag_store(k, 's87')
        k.label(l)
POLLW = env('POLLW', 4)
def handoff(k, setup, n, role='L', force=False, slp=None):
    if (k.c.first and not force) or not n: return
    if role in 'AW' or (role == 'C') == (POLLW >= 4):
        ld = k.newlabel('wd')
        if role == 'W': pass
        elif n <= 64:
            k.e('s_cmp_lg_u32 s3, %d' % POLLW)
            k.e('s_cbranch_scc1 %s' % ld)
        else:
            assert n == 128
            k.e('s_sub_u32 s101, s3, %d' % POLLW)
            k.e('s_cmp_gt_u32 s101, 1')
            k.e('s_cbranch_scc1 %s' % ld)
        srd(k, 96, 'ws', WS_FL, FLSZ)
        k.e(setup)
        k.e('s_lshl_b32 s100, s100, 5')
        if n > 64:
            k.e('s_lshl_b32 s101, s101, 13')
            k.e('s_add_u32 s100, s100, s101')
        k.e('v_lshlrev_b32 v%d, 7, v1' % (FV + 2))
        k.e('s_mov_b32 s101, 0x100000')
        if n < 64: k.e('s_bfm_b64 exec, %d, 0' % n)
        k.need(FV + 3, 0)
        PP = env('PPIPE', 0)
        if PP:
            lp = k.newlabel('wf'); le = k.newlabel('we')
            B = [FV, FV - 2, FV - 4][:PP]
            ldp = lambda b: 'buffer_load_dwordx2 %s, v%d, s[96:99], s100 offen sc1' % (vr(b, 2), FV + 2)
            for b in B[:-1]:
                k.e(ldp(b)); k.e('s_sleep %d' % env('PGAP', 5))
            k.label(lp)
            for i_ in range(PP):
                k.e(ldp(B[i_ - 1]))
                k.e('s_waitcnt vmcnt(%d)' % (PP - 1))
                k.e('v_cmp_ne_u64 vcc, s[84:85], %s' % vr(B[i_], 2))
                k.e('s_nop 4')
                k.e('s_cbranch_vccz %s' % le)
            k.e('s_sub_u32 s101, s101, 1')
            k.e('s_cmp_lg_u32 s101, 0')
            k.e('s_cbranch_scc1 %s' % lp)
        else:
            lp = k.newlabel('wf'); le = k.newlabel('we')
            k.label(lp)
            k.e('buffer_load_dwordx2 %s, v%d, s[96:99], s100 offen sc1' % (vr(FV, 2), FV + 2))
            k.e('s_waitcnt vmcnt(0)')
            k.e('v_cmp_ne_u64 vcc, s[84:85], %s' % vr(FV, 2))
            k.e('s_sub_u32 s101, s101, 1')
            k.e('s_nop 3')
            k.e('s_cbranch_vccz %s' % le)
            if env('PMASK', 1): k.e('s_mov_b64 exec, vcc')
            if slp is None: slp = env('PSLEEP', 1)
            if slp: k.e('s_sleep %d' % slp)
            k.e('s_cmp_lg_u32 s101, 0')
            k.e('s_cbranch_scc1 %s' % lp)
        k.label(le)
        k.e('s_mov_b64 exec, -1')
        k.label(ld)
    if role != 'W': k.e('s_barrier')

def handoff_multi(k, polls):
    ld = k.newlabel('wd'); lgo = k.newlabel('wg')
    srd(k, 96, 'ws', WS_FL, FLSZ)
    for w, setup, n in polls:
        ln = k.newlabel('wn')
        k.e('s_cmp_lg_u32 s3, %d' % w)
        k.e('s_cbranch_scc1 %s' % ln)
        k.e(setup)
        k.e('v_min_u32 v%d, %d, v1' % (FV + 2, n - 1))
        k.e('s_branch %s' % lgo)
        k.label(ln)
    k.e('s_branch %s' % ld)
    k.label(lgo)
    k.e('s_lshl_b32 s100, s100, 5')
    k.e('v_lshlrev_b32 v%d, 7, v%d' % (FV + 2, FV + 2))
    k.e('s_mov_b32 s101, 0x100000')
    lp = k.newlabel('wf')
    k.label(lp)
    k.e('buffer_load_dwordx2 %s, v%d, s[96:99], s100 offen sc1' % (vr(FV, 2), FV + 2))
    k.e('s_waitcnt vmcnt(0)')
    k.e('v_cmp_ne_u64 vcc, s[84:85], %s' % vr(FV, 2))
    k.e('s_sub_u32 s101, s101, 1')
    k.e('s_nop 3')
    k.e('s_cbranch_vccz %s' % ld)
    k.e('s_sleep %d' % env('P0SLEEP', 2))
    k.e('s_cmp_lg_u32 s101, 0')
    k.e('s_cbranch_scc1 %s' % lp)
    k.label(ld)
    k.e('s_barrier')

def mod_table(k, R, between=None, nb=0):
    srd(k, 40, 'ws', 0, 256 * KB)
    k.e('v_lshlrev_b32 v%d, 4, v0' % (R + 16))
    for q in range(4):
        k.e('s_mov_b32 s48, %d' % (WS_MODP + q * 8192))
        k.e('buffer_load_dwordx4 %s, v%d, s[40:43], s48 offen sc1' % (vr(R + 4 * q, 4), R + 16))
    if between: between()
    k.e('s_cmp_lt_u32 s3, 4')
    k.e('s_cselect_b32 s49, 0, 1.0')
    k.e('v_add_u32 v%d, %d, v%d' % (R + 16, AUX_A, R + 16))
    k.e('s_waitcnt vmcnt(%d)' % nb)
    k.e(pk('add', R, R, R + 4)); k.e(pk('add', R + 2, R + 2, R + 6)); k.e(pk('add', R + 8, R + 8, R + 12)); k.e(pk('add', R + 10, R + 10, R + 14))
    k.e(pk('add', R, R, R + 8)); k.e(pk('add', R + 2, R + 2, R + 10))
    for d in range(2): round_bf16_pair(k, R + 2 * d, R + 2 * d + 1, R + 4)
    for q in range(4): k.e('v_add_f32 v%d, s49, v%d' % (R + q, R + q))
    for d in range(2): round_bf16_pair(k, R + 2 * d, R + 2 * d + 1, R + 4)
    k.e('ds_write_b128 v%d, %s' % (R + 16, vr(R, 4)))
    k.e('s_waitcnt lgkmcnt(0)')
    k.e('s_barrier')

def poll_back(k, lp):
    l = k.newlabel('pd')
    k.e('s_sub_u32 s101, s101, 1')
    k.e('s_nop 3')
    k.e('s_cbranch_vccz %s' % l)
    k.e('s_cmp_lg_u32 s101, 0')
    k.e('s_cbranch_scc1 %s' % lp)
    k.label(l)
def poll_init(k): k.e('s_mov_b32 s101, 0x100000')

def srd(k, d, what, off=0, size=None, soff=None):
    p = PTR[what]
    if what == 'ws': off += env('WSB', 0) * MB
    if size is None: size = SIZES[what]
    if off or soff:
        k.e('s_add_u32 s%d, s%d, 0x%x' % (d, p, off))
        k.e('s_addc_u32 s%d, s%d, 0' % (d + 1, p + 1))
        if soff:
            k.e('s_add_u32 s%d, s%d, %s' % (d, d, soff))
            k.e('s_addc_u32 s%d, s%d, 0' % (d + 1, d + 1))
        k.e('s_and_b32 s%d, s%d, 0xffff' % (d + 1, d + 1))
    else:
        k.e('s_mov_b32 s%d, s%d' % (d, p))
        k.e('s_and_b32 s%d, s%d, 0xffff' % (d + 1, p + 1))
    k.e('s_mov_b32 s%d, 0x%x' % (d + 2, size))
    k.e('s_mov_b32 s%d, 0x20000' % (d + 3))

def finish(k):
    endpgm(k)

XT = env('XT', 0)
AOWN = env('AOWN', 3)
AT2 = env('AT2', 1)
MP0 = env('MP0', 1)
CPF = env('CPF', 1)
def code_pf(k, start, end, maxbytes, lane=1, vt=6, vd=7, sb=84):
    if not CPF: return 0
    h = k.newlabel('pc')
    k.e('s_getpc_b64 s[%d:%d]' % (sb, sb + 1))
    k.label(h)
    k.e('s_add_u32 s%d, s%d, %s-%s' % (sb, sb, start, h))
    k.e('s_addc_u32 s%d, s%d, 0' % (sb + 1, sb + 1))
    n = (maxbytes + 8191) // 8192
    for i in range(n):
        k.e('v_lshlrev_b32 v%d, 7, v%d' % (vt, lane))
        if i: k.e('v_add_u32 v%d, %d, v%d' % (vt, i * 8192, vt))
        k.e('v_min_u32 v%d, %s-%s-4, v%d' % (vt, end, start, vt))
        k.e('global_load_dword v%d, v%d, s[%d:%d]' % (vd, vt, sb, sb + 1))
    return n

def code_touch(k, start, end, soff, V):
    h = k.newlabel('pc')
    k.e('s_getpc_b64 s[64:65]')
    k.label(h)
    k.e('s_add_u32 s64, s64, %s-%s' % (start, h))
    k.e('s_addc_u32 s65, s65, 0')
    k.e('v_and_b32 v%d, 63, v0' % V)
    k.e('v_lshl_add_u32 v%d, v%d, 7, %s' % (V, V, soff))
    k.e('v_min_u32 v%d, %s-%s-4, v%d' % (V, end, start, V))
    k.e('v_mov_b32 v%d, s65' % (V + 1))
    k.e('v_add_co_u32 v%d, vcc, s64, v%d' % (V, V))
    k.e('s_nop 1')
    k.e('v_addc_co_u32 v%d, vcc, 0, v%d, vcc' % (V + 1, V + 1))
    k.e('global_load_dword v%d, v[%d:%d], off' % (V + 2, V, V + 1))

def vr(b, n): return 'v[%d:%d]' % (b, b + n - 1)
def sr(b): return 's[%d:%d]' % (b, b + 3)

def round_bf16_pair(k, a, b, tmp):
    k.e('v_cvt_pk_bf16_f32 v%d, v%d, v%d' % (tmp, a, b))
    k.e('v_lshlrev_b32 v%d, 16, v%d' % (a, tmp))
    k.e('v_and_b32 v%d, 0xffff0000, v%d' % (b, tmp))

def red_lanes(k, regs, tmp, rors=(8,)):
    for ro in rors:
        k.e('s_nop 1')
        for r in regs:
            k.e('v_add_f32_dpp v%d, v%d, v%d row_ror:%d row_mask:0xf bank_mask:0xf' % (r, r, r, ro))
    for op in ('v_permlane16_swap_b32', 'v_permlane32_swap_b32'):
        for r, t in zip(regs, tmp): k.e('v_mov_b32 v%d, v%d' % (t, r))
        k.e('s_nop 1')
        for r, t in zip(regs, tmp): k.e('%s v%d, v%d' % (op, r, t))
        k.e('s_nop 1')
        for r, t in zip(regs, tmp): k.e('v_add_f32 v%d, v%d, v%d' % (r, r, t))

def unpack(k, lo, hi, src):
    k.e('v_lshlrev_b32 v%d, 16, v%d' % (lo, src))
    k.e('v_and_b32 v%d, 0xffff0000, v%d' % (hi, src))

def k_p0(k, c):
    phase_begin(k, c)
    KIDX[0] += 1
    assert c.first and not c.last
    lst = 'L_p0_stats'
    if env('CPF0', 0):
        l0 = k.newlabel('c0')
        k.e('s_lshr_b32 s44, s2, %d' % env('CPF0S', 4))
        k.e('s_or_b32 s44, s44, s3')
        k.e('s_cbranch_scc1 %s' % l0)
        code_touch(k, l0, 'L_text_end', '0', 196)
        k.label(l0)
    def rest_issue():
        srd(k, 52, 'w_mod'); srd(k, 56, 'c')
        k.e("""
        v_lshrrev_b32 v164, 3, v0
        v_lshlrev_b32 v165, 4, v164        ; c byte offset = g*16
        v_mul_u32_u24 v164, %d, v164
        v_and_b32 v166, 7, v0
        v_lshl_add_u32 v164, v166, 4, v164
        s_lshr_b32 s60, s30, 1             ; col block
        s_and_b32 s61, s30, 1              ; k half
        s_lshl_b32 s62, s60, 7
        s_mul_i32 s63, s61, %d
        s_add_u32 s62, s62, s63
        s_add_u32 s62, s62, 4096
        s_lshl_b32 s63, s61, 10
        buffer_load_dwordx4 v[128:131], v165, s[56:59], s63 offen
        """ % (8 * 12288, 512 * 12288))
        if env('PWAIT', 2) == 2: k.e('s_waitcnt vmcnt(0)')
        for j in range(8):
            k.e('buffer_load_dwordx4 %s, v164, s[52:55], s62 offen' % vr(132 + 4 * j, 4))
            k.e('s_add_u32 s62, s62, 12288')
        k.need(192, 0)
    def rest_compute(newer):
        S_ = 168; T_ = 176; A_ = 184
        k.e('s_waitcnt vmcnt(%d)' % (8 + newer))
        for j in range(4): unpack(k, S_ + 2 * j, S_ + 1 + 2 * j, 128 + j)
        for j in range(8): k.e('v_mul_f32 v%d, %s, v%d' % (T_ + j, hx(-LOG2E), S_ + j))
        for j in range(8): k.e('v_exp_f32 v%d, v%d' % (T_ + j, T_ + j))
        for j in range(8): k.e('v_add_f32 v%d, 1.0, v%d' % (T_ + j, T_ + j))
        for j in range(8): k.e('v_rcp_f32 v%d, v%d' % (T_ + j, T_ + j))
        for j in range(8): k.e('v_mul_f32 v%d, v%d, v%d' % (S_ + j, S_ + j, T_ + j))
        for j in range(4): round_bf16_pair(k, S_ + 2 * j, S_ + 1 + 2 * j, T_)
        for j in range(8):
            k.e('s_waitcnt vmcnt(%d)' % (7 - j + newer))
            for d in range(4):
                unpack(k, T_, T_ + 1, 132 + 4 * j + d)
                op = 'v_mul_f32' if j == 0 else 'v_fmac_f32'
                k.e('%s v%d, v%d, v%d' % (op, A_ + 2 * d, T_, S_ + j))
                k.e('%s v%d, v%d, v%d' % (op, A_ + 1 + 2 * d, T_ + 1, S_ + j))
        k.e('s_nop 1')
        for e in range(4): k.e('v_permlane32_swap_b32 v%d, v%d' % (A_ + e, A_ + 4 + e))
        k.e('s_nop 1')
        for e in range(4): k.e('v_add_f32 v%d, v%d, v%d' % (A_ + e, A_ + e, A_ + 4 + e))
        k.e('s_nop 1')
        for e in range(2): k.e('v_permlane16_swap_b32 v%d, v%d' % (A_ + e, A_ + 2 + e))
        k.e('s_nop 1')
        for e in range(2): k.e('v_add_f32 v%d, v%d, v%d' % (A_ + e, A_ + e, A_ + 2 + e))
        k.e('s_nop 1')
        for e in range(2): k.e('v_add_f32_dpp v%d, v%d, v%d row_ror:8 row_mask:0xf bank_mask:0xf' % (A_ + e, A_ + e, A_ + e))
        lw2 = k.newlabel('nw')
        k.e("""
        v_lshlrev_b32 v164, 5, v166
        v_lshrrev_b32 v165, 4, v1
        v_lshl_add_u32 v164, v165, 3, v164
        s_lshl_b32 s62, s3, 8
        s_add_u32 s62, s62, %d
        v_add_u32 v164, s62, v164
        ds_write_b64 v164, v[184:185]
        s_waitcnt lgkmcnt(0)
        s_barrier
        s_cmp_lg_u32 s3, 7
        s_cbranch_scc1 %s
        v_lshlrev_b32 v164, 2, v1
        v_add_u32 v165, %d, v164
        """ % (AUX_A + 8192, lw2, AUX_A + 8192))
        for w in range(8): k.e('ds_read_b32 v%d, v165 offset:%d' % (T_ + w, w * 256))
        k.e("""
        s_lshl_b32 s62, s60, 8
        s_lshl_b32 s63, s61, 14
        s_add_u32 s62, s62, s63
        s_add_u32 s62, s62, %d
        s_waitcnt lgkmcnt(0)
        """ % WS_MODQ)
        for w in range(0, 8, 2): k.e('v_add_f32 v%d, v%d, v%d' % (T_ + w, T_ + w, T_ + w + 1))
        k.e('v_add_f32 v%d, v%d, v%d' % (T_, T_, T_ + 2))
        k.e('v_add_f32 v%d, v%d, v%d' % (T_ + 4, T_ + 4, T_ + 6))
        k.e('v_add_f32 v%d, v%d, v%d' % (T_, T_, T_ + 4))
        k.e('buffer_store_dword v%d, v164, s[40:43], s62 offen%s' % (T_, WT))
        k.label(lw2)
    k.e("""
    v_and_b32 v1, 63, v0               ; lane
    v_lshlrev_b32 v6, 4, v0            ; tid*16
    s_lshr_b32 s30, s2, 4
    s_lshl_b32 s30, s30, 3
    s_and_b32 s47, s2, 7
    s_add_u32 s30, s30, s47            ; index within role (0..127)
    s_bitcmp1_b32 s2, 3
    s_cbranch_scc1 %s
    s_lshr_b32 s48, s30, 2             ; col block
    s_and_b32 s49, s30, 3              ; k quarter
    v_lshrrev_b32 v2, 3, v0            ; row group (0..63): rows 4g..4g+3 (+256*q)
    v_and_b32 v3, 7, v0                ; chunk
    v_lshlrev_b32 v4, 3, v2            ; c byte offset = g*8
    v_mul_u32_u24 v5, %d, v2
    v_lshl_add_u32 v5, v3, 4, v5
    s_lshl_b32 s31, s48, 7
    s_mul_i32 s44, s49, %d
    s_add_u32 s31, s31, s44
    s_lshl_b32 s45, s49, 9
    s_waitcnt lgkmcnt(0)
    s_load_dwordx2 s[84:85], s[28:29], 0x%x
    """ % (lst, 4 * 12288, 256 * 12288, WS_EPOCH + env('WSB', 0) * MB))
    mark(k, 0)
    srd(k, 36, 'w_mod'); srd(k, 32, 'c')
    CL = env('CLAST', 0)
    if not CL: k.e('buffer_load_dwordx2 v[8:9], v4, s[32:35], s45 offen')
    for j in range(4):
        k.e('buffer_load_dwordx4 %s, v5, s[36:39], s31 offen' % vr(12 + 4 * j, 4))
        k.e('s_add_u32 s31, s31, 12288')
    if CL: k.e('buffer_load_dwordx2 v[8:9], v4, s[32:35], s45 offen')
    lnc = k.newlabel('nc')
    def resets(R, wait):
        lnr = k.newlabel('nr')
        k.e('s_cmp_gt_u32 s3, 3')
        k.e('s_cbranch_scc1 %s' % lnr)
        for r in range(4): k.e('v_mov_b32 v%d, -1' % (R + r))
        for off, size in (((WS_G2, 512 * KB) if W22 else (WS_G, 256 * KB)), (WS_MOD, 64 * KB)) + (() if MP0 else ((WS_MODQ, 64 * KB),)):
            per = size // 128
            srd(k, 52, 'ws', off, size)
            k.e('s_mul_i32 s50, s30, %d' % per)
            k.e('v_cmp_gt_u32 vcc, %d, v0' % (per // 16))
            k.e('s_and_saveexec_b64 s[46:47], vcc')
            k.e('buffer_store_dwordx4 %s, v6, s[52:55], s50 offen%s' % (vr(R, 4), WT))
            k.e('s_mov_b64 exec, s[46:47]')
        if wait: k.e('s_waitcnt vmcnt(0)')
        k.label(lnr)
    RLN = env('RLN', 1)
    if not RLN: resets(40, True)
    srd(k, 40, 'ws', 0, 256 * KB)
    if CL == 2:
        k.e('s_waitcnt vmcnt(1)'); mark(k, 0)
    k.e('s_waitcnt vmcnt(%d)' % (0 if CL else 4))
    mark(k, 1)
    for j in range(2): unpack(k, 44 + 2 * j, 45 + 2 * j, 8 + j)
    for j in range(4): k.e('v_mul_f32 v%d, %s, v%d' % (52 + j, hx(-LOG2E), 44 + j))
    for j in range(4): k.e('v_exp_f32 v%d, v%d' % (52 + j, 52 + j))
    for j in range(4): k.e('v_add_f32 v%d, 1.0, v%d' % (52 + j, 52 + j))
    for j in range(4): k.e('v_rcp_f32 v%d, v%d' % (52 + j, 52 + j))
    for j in range(4): k.e('v_mul_f32 v%d, v%d, v%d' % (44 + j, 44 + j, 52 + j))
    for j in range(2): round_bf16_pair(k, 44 + 2 * j, 45 + 2 * j, 52)
    lns = k.newlabel('nosc')
    if not MP0: k.e("""
    s_cmp_lg_u32 s48, 0
    s_cbranch_scc1 %s
    v_lshlrev_b32 v7, 4, v2
    s_lshl_b32 s44, s49, 10
    s_add_u32 s44, s44, %d
    buffer_store_dwordx4 v[44:47], v7, s[40:43], s44 offen%s
    s_waitcnt vmcnt(0)
    """ % (lns, WS_SC, WT))
    k.label(lns)
    A = 56
    for j in range(4):
        k.e('s_waitcnt vmcnt(%d)' % (3 - j))
        for d in range(4):
            unpack(k, 52, 53, 12 + 4 * j + d)
            op = 'v_mul_f32' if j == 0 else 'v_fmac_f32'
            k.e('%s v%d, v52, v%d' % (op, A + 2 * d, 44 + j))
            k.e('%s v%d, v53, v%d' % (op, A + 1 + 2 * d, 44 + j))
    mark(k, 2)
    if MP0 == 4: rest_issue()
    k.e('s_nop 1')
    for e in range(4): k.e('v_permlane32_swap_b32 v%d, v%d' % (A + e, A + 4 + e))
    k.e('s_nop 1')
    for e in range(4): k.e('v_add_f32 v%d, v%d, v%d' % (A + e, A + e, A + 4 + e))
    k.e('s_nop 1')
    for e in range(2): k.e('v_permlane16_swap_b32 v%d, v%d' % (A + e, A + 2 + e))
    k.e('s_nop 1')
    for e in range(2): k.e('v_add_f32 v%d, v%d, v%d' % (A + e, A + e, A + 2 + e))
    k.e('s_nop 1')
    for e in range(2): k.e('v_add_f32_dpp v%d, v%d, v%d row_ror:8 row_mask:0xf bank_mask:0xf' % (A + e, A + e, A + e))
    lw = k.newlabel('nw')
    k.e("""
    v_lshlrev_b32 v2, 5, v3
    v_lshrrev_b32 v7, 4, v1
    v_lshl_add_u32 v2, v7, 3, v2
    s_lshl_b32 s44, s3, 8
    s_add_u32 s44, s44, %d
    v_add_u32 v2, s44, v2
    ds_write_b64 v2, v[56:57]
    s_waitcnt lgkmcnt(0)
    s_add_u32 s84, s84, 1
    s_barrier
    s_cmp_lg_u32 s3, 0
    s_cbranch_scc1 %s
    v_lshlrev_b32 v2, 2, v1
    v_add_u32 v7, %d, v2
    """ % (AUX_A, lw, AUX_A))
    for w in range(8): k.e('ds_read_b32 v%d, v7 offset:%d' % (12 + w, w * 256))
    flag_prep(k)
    k.e("""
    s_lshl_b32 s31, s48, 8
    s_lshl_b32 s44, s49, 13
    s_add_u32 s31, s31, s44
    s_add_u32 s31, s31, %d
    s_lshl_b32 s100, s30, 7
    s_add_u32 s100, s100, %d
    s_waitcnt lgkmcnt(0)
    """ % (WS_MODP, FL_MOD * 32))
    for w in range(0, 8, 2): k.e('v_add_f32 v%d, v%d, v%d' % (12 + w, 12 + w, 13 + w))
    k.e('v_add_f32 v12, v12, v14')
    k.e('v_add_f32 v16, v16, v18')
    k.e('v_add_f32 v12, v12, v16')
    if TAGP:
        srd(k, 96, 'ws', WS_MODT, 64 * KB)
        k.e("""
        v_mov_b32 v14, s84
        v_mov_b32 v15, s85
        v_mov_b32_dpp v13, v12 quad_perm:[1,1,3,3] row_mask:0xf bank_mask:0xf
        v_lshlrev_b32 v2, 3, v1
        s_lshl_b32 s31, s48, 9
        s_lshl_b32 s44, s49, 14
        s_add_u32 s31, s31, s44
        s_mov_b32 exec_lo, 0x55555555
        s_mov_b32 exec_hi, 0x55555555
        buffer_store_dwordx4 v[12:15], v2, s[96:99], s31 offen sc1
        s_mov_b64 exec, -1
        """)
        if env('PWAIT', 2): k.e('s_waitcnt vmcnt(0)')
    else:
        k.e('buffer_store_dword v12, v2, s[40:43], s31 offen' + WT)
        k.e('s_waitcnt vmcnt(0)')
        flag_store(k, 's100')
    k.label(lw)
    k.e('s_barrier')
    mark(k, 3)
    if env('TLBW', 0):
        lt = k.newlabel('tl')
        for w, (nm, sz) in enumerate((('ws', 64 * MB), ('w_mod', None), ('w_sp', None), ('w_in', None), ('w_out', None), ('wo', None), ('out', None), ('x', None))):
            ln = k.newlabel('tn')
            k.e('s_cmp_lg_u32 s3, %d' % w)
            k.e('s_cbranch_scc1 %s' % ln)
            srd(k, 36, nm, 0, sz)
            k.e('s_branch %s' % lt)
            k.label(ln)
        k.label(lt)
        k.e('s_lshr_b32 s51, s30, 3')
        k.e('s_lshl_b32 s51, s51, 22')
        k.e('s_add_u32 s51, s51, %d' % (65536 - 128))
        k.e('v_lshlrev_b32 v36, 16, v1')
        k.e('buffer_load_dword v37, v36, s[36:39], s51 offen')
    srd(k, 36, 'wqkv')
    k.e('s_lshl_b32 s51, s30, 13')
    k.e('s_add_u32 s51, s51, %d' % (env('NPFE', 0) * MB))
    for p in range(env('NPFQ', 0) - env('NPFE', 0)):
        k.e('buffer_load_dwordx4 v[8:11], v6, s[36:39], s51 offen')
        k.e('s_add_u32 s51, s51, %d' % MB)
    if CPF:
        h = k.newlabel('pc')
        k.e('s_cmp_lg_u32 s3, 2')
        k.e('s_cbranch_scc1 %s' % lnc)
        k.e('s_cmp_ge_u32 s30, 64')
        k.e('s_cbranch_scc1 %s' % lnc)
        k.e('s_lshr_b32 s44, s30, 3')
        k.e('s_lshl_b32 s44, s44, 13')
        code_touch(k, 'L_qkv_entry', 'L_text_end', 's44', 36)
        k.label(lnc)
    if MP0 == 1:
        rest_issue(); rest_compute(0)
    if MP0 == 4: rest_compute(0)
    k.e('s_waitcnt vmcnt(0)')
    endpgm(k)
    k.label(lst)
    k.e("""
    s_lshl_b32 s44, s3, 12
    v_lshl_add_u32 v3, v1, 4, s44      ; wave*4096 + lane*16
    s_lshl_b32 s31, s30, 15            ; 16 rows * 2048
    s_waitcnt lgkmcnt(0)
    s_load_dwordx2 s[84:85], s[28:29], 0x%x
    """ % (WS_EPOCH + env('WSB', 0) * MB))
    srd(k, 32, 'x')
    if env('XDELAY', 0): k.e('s_waitcnt lgkmcnt(0)')
    for q in range(4): k.e('buffer_load_dwordx4 %s, v3, s[32:35], s31 offen offset:%d' % (vr(8 + 4 * q, 4), q * 1024))
    if MP0 == 2: rest_issue()
    NE = env('NPFE', 0)
    if NE:
        srd(k, 36, 'wqkv')
        k.e('s_lshl_b32 s51, s30, 13')
        for p in range(NE):
            k.e('buffer_load_dwordx4 v[128:131], v6, s[36:39], s51 offen')
            k.e('s_add_u32 s51, s51, %d' % MB)
    srd(k, 36, 'ws', WS_H, 4 * MB); srd(k, 40, 'ws', 0, 256 * KB)
    if env('HTOUCH', 0):
        srd(k, 96, 'ws', WS_FL, FLSZ)
        k.e('v_mov_b32 v126, 0')
        k.e('s_mov_b64 exec, 1')
        k.e('buffer_load_dword v127, v126, s[36:39], s31 offen')
        k.e('buffer_load_dword v127, v126, s[96:99], 0 offen offset:64')
        k.e('s_mov_b64 exec, -1')
        NE += 2
    set_flag(k, 's_lshr_b32 s100, s30, 3\ns_lshl_b32 s100, s100, 8\ns_and_b32 s101, s30, 7\ns_lshl_b32 s101, s101, 2\ns_add_u32 s100, s100, s101\ns_add_u32 s100, s100, %d' % FL_LN1)
    mark(k, 0)
    if RLN == 2: resets(132, True)
    k.e('s_waitcnt vmcnt(%d) lgkmcnt(0)' % (NE + (9 if MP0 == 2 else 0)))
    k.e('s_add_u32 s84, s84, 1')
    if MP0 == 3: rest_issue()
    X = 24
    for d in range(16): unpack(k, X + 2 * d, X + 2 * d + 1, 8 + d)
    MU = [56, 58]; VA = [60, 62]
    if env('SP1', 1):
        for r in range(2):
            stat_ops(k, X + 16 * r, 8 + 4 * r, 10 + 4 * r, True)
            k.e('v_add_f32 v%d, v%d, v%d' % (MU[r], 8 + 4 * r, 9 + 4 * r))
            k.e('v_add_f32 v%d, v%d, v%d' % (VA[r], 10 + 4 * r, 11 + 4 * r))
        red_lanes(k, MU + VA, [8, 9, 10, 11], rors=(8, 4, 2, 1))
        for r in range(2):
            k.e('v_mul_f32 v%d, %s, v%d' % (MU[r], hx(-1.0 / 1024), MU[r]))
            k.e('v_mul_f32 v%d, %s, v%d' % (VA[r], hx(1.0 / 1024), VA[r]))
            k.e('v_fma_f32 v%d, -v%d, v%d, v%d' % (VA[r], MU[r], MU[r], VA[r]))
            k.e('v_max_f32 v%d, 0, v%d' % (VA[r], VA[r]))
    else:
        for r in range(2):
            k.e(pk('add', 8 + 2 * r, X + 16 * r, X + 16 * r + 2))
            for e in range(4, 16, 2): k.e(pk('add', 8 + 2 * r, 8 + 2 * r, X + 16 * r + e))
            k.e('v_add_f32 v%d, v%d, v%d' % (MU[r], 8 + 2 * r, 9 + 2 * r))
        red_lanes(k, MU, [8, 9], rors=(8, 4, 2, 1))
        for r in range(2):
            k.e('v_mul_f32 v%d, %s, v%d' % (MU[r], hx(-1.0 / 1024), MU[r]))
            for e in range(0, 16, 2):
                k.e(pk('add', 8, X + 16 * r + e, (MU[r],)))
                k.e(pk('mul', 10, 8, 8) if e == 0 else pk('fma', 10, 8, 8, 10))
            k.e('v_add_f32 v%d, v10, v11' % VA[r])
        red_lanes(k, VA, [8, 9], rors=(8, 4, 2, 1))
        for r in range(2):
            k.e('v_mul_f32 v%d, %s, v%d' % (VA[r], hx(1.0 / 1024), VA[r]))
    for r in range(2):
        round_bf16_pair(k, MU[r], VA[r], 8)
        k.e('v_add_f32 v%d, %s, v%d' % (VA[r], hx(1e-5), VA[r]))
    round_bf16_pair(k, VA[0], VA[1], 8)
    for r in range(2): k.e('v_sqrt_f32 v%d, v%d' % (VA[r], VA[r]))
    k.e('s_nop 0')
    round_bf16_pair(k, VA[0], VA[1], 8)
    for r in range(2): k.e('v_rcp_f32 v%d, v%d' % (VA[r], VA[r]))
    def tag_setup():
        srd(k, 96, 'ws', WS_MODT, 64 * KB)
        k.e('v_lshlrev_b32 v81, 4, v1')
        k.e('s_lshl_b32 s100, s3, 11')
        k.e('v_add_u32 v81, s100, v81')
        k.e('v_lshlrev_b32 v80, 3, v1')
        k.e('s_lshl_b32 s100, s3, 10')
        k.e('s_add_u32 s100, s100, %d' % AUX_A)
        k.e('v_add_u32 v80, s100, v80')
        k.e('s_mov_b32 s101, 0x100000')
    def tag_loads():
        for q in range(4):
            k.e('s_mov_b32 s56, %d' % (q * 16384))
            for hh in range(2): k.e('buffer_load_dwordx4 %s, v81, s[96:99], s56 offen offset:%d sc1' % (vr(96 + 8 * q + 4 * hh, 4), hh * 1024))
    ET = env('ET', 0)
    if ET == 1:
        if RLN: resets(132, False)
        tag_setup(); tag_loads()
    k.e("""
    v_lshrrev_b32 v5, 1, v1
    v_mul_u32_u24 v5, 544, v5          ; cb*2*272
    v_and_b32 v7, 1, v1
    v_lshl_add_u32 v5, v7, 3, v5
    s_lshl_b32 s44, s3, 5
    v_add_u32 v5, s44, v5
    """)
    for r in range(2):
        x = X + 16 * r; pin = 8 + 8 * r
        for d in range(8): k.e(pk('add', x + 2 * d, x + 2 * d, (MU[r],)))
        for d in range(8): round_bf16_pair(k, x + 2 * d, x + 2 * d + 1, pin + d)
        for d in range(8): k.e(pk('mul', x + 2 * d, x + 2 * d, (VA[r],)))
        for d in range(8): k.e('v_cvt_pk_bf16_f32 v%d, v%d, v%d' % (pin + d, x + 2 * d, x + 2 * d + 1))
        for q, o in enumerate((0, 272, 64 * 272, 65 * 272)):
            k.e('ds_write_b64 v5, %s offset:%d' % (vr(pin + 2 * q, 2), o + 16 * r))
    k.e("""
    v_lshrrev_b32 v5, 4, v0            ; gi (p=0)
    v_and_b32 v7, 15, v0               ; row
    v_mul_u32_u24 v2, 272, v5
    v_lshl_add_u32 v2, v7, 4, v2       ; granule lds address
    v_lshlrev_b32 v4, 9, v5
    v_lshl_add_u32 v4, v7, 4, v4       ; global offset
    v_lshrrev_b32 v3, 1, v5
    v_lshlrev_b32 v3, 6, v3
    v_and_b32 v5, 1, v5
    v_lshl_add_u32 v3, v5, 4, v3
    v_add_u32 v3, %d, v3               ; table address: cb*64 + h*16
    s_lshr_b32 s44, s30, 1
    s_lshl_b32 s44, s44, 16
    s_and_b32 s45, s30, 1
    s_lshl_b32 s45, s45, 8
    s_add_u32 s44, s44, s45
    s_mov_b32 s48, %d
    s_cmp_lt_u32 s3, 4
    s_cselect_b32 s49, 0, 1.0
    s_waitcnt lgkmcnt(0)
    """ % (AUX_A, WS_MODP))
    if MP0 in (2, 3): rest_compute(0)
    if RLN == 1 and ET != 1: resets(132, False)
    if ET == 2: tag_setup(); tag_loads()
    mark(k, 1)
    if XT:
        srd(k, 36, 'ws', WS_N, 4 * MB)
        k.e('s_barrier')
        for p in range(4): k.e('ds_read_b128 %s, v2 offset:%d' % (vr(8 + 4 * p, 4), p * 32 * 272))
        for p in range(4):
            k.e('s_waitcnt lgkmcnt(%d)' % (3 - p))
            k.e('buffer_store_dwordx4 %s, v4, s[36:39], s44 offen%s' % (vr(8 + 4 * p, 4), WT))
            k.e('s_add_u32 s44, s44, 16384')
        mark(k, 3)
        signal(k, 'S')
        finish(k)
        k.need(128, AUX_A + 8192)
        return
    X = 24
    k.e('s_barrier')
    for p in range(4): k.e('ds_read_b128 %s, v2 offset:%d' % (vr(8 + 4 * p, 4), p * 32 * 272))
    for p in range(4):
        k.e('s_waitcnt lgkmcnt(%d)' % (3 - p))
        for d in range(4): unpack(k, X + 8 * p + 2 * d, X + 8 * p + 2 * d + 1, 8 + 4 * p + d)
    if TAGP:
        lp = k.newlabel('wf'); le = k.newlabel('we')
        if ET:
            k.e('s_branch %sc' % lp)
        else: tag_setup()
        k.label(lp)
        tag_loads()
        k.label(lp + 'c')
        k.e('s_mov_b64 s[50:51], 0')
        for n in range(8):
            k.e('s_waitcnt vmcnt(%d)' % (7 - n))
            k.e('v_cmp_ne_u64 vcc, s[84:85], %s' % vr(98 + 4 * n, 2))
            k.e('s_or_b64 s[50:51], s[50:51], vcc')
        k.e('s_cbranch_scc0 %s' % le)
        k.e('s_sub_u32 s101, s101, 1')
        k.e('s_sleep %d' % env('P0SLEEP', 1))
        k.e('s_cmp_lg_u32 s101, 0')
        k.e('s_cbranch_scc1 %s' % lp)
        k.label(le)
        mark(k, 2)
        for hh in range(2):
            b = 96 + 4 * hh
            k.e(pk('add', b, b, b + 8)); k.e(pk('add', b + 16, b + 16, b + 24)); k.e(pk('add', 64 + 2 * hh, b, b + 16))
    else:
        srd(k, 96, 'ws', WS_FL, FLSZ)
        lp = k.newlabel('wf'); le = k.newlabel('we')
        k.e("""
        s_lshl_b32 s100, s3, 11
        s_add_u32 s100, s100, %d
        v_lshlrev_b32 v%d, 7, v1
        v_add_u32 v80, %d, v6
        s_mov_b32 s101, 0x100000
        s_mov_b64 exec, 0xffff
        %s:
        buffer_load_dwordx2 %s, v%d, s[96:99], s100 offen sc1
        s_waitcnt vmcnt(0)
        v_cmp_ne_u64 vcc, s[84:85], %s
        s_sub_u32 s101, s101, 1
        s_nop 3
        s_cbranch_vccz %s
        s_mov_b64 exec, vcc
        s_sleep %d
        s_cmp_lg_u32 s101, 0
        s_cbranch_scc1 %s
        %s:
        s_mov_b64 exec, -1
        """ % (FL_MOD * 32, FV + 2, AUX_A, lp, vr(FV, 2), FV + 2, vr(FV, 2), le, env('P0SLEEP', 1), lp, le))
        mark(k, 2)
        for q in range(4):
            k.e('buffer_load_dwordx4 %s, v6, s[40:43], s48 offen sc1' % vr(64 + 4 * q, 4))
            k.e('s_add_u32 s48, s48, 8192')
        k.e('s_waitcnt vmcnt(0)')
        k.e(pk('add', 64, 64, 68)); k.e(pk('add', 66, 66, 70)); k.e(pk('add', 72, 72, 76)); k.e(pk('add', 74, 74, 78))
        k.e(pk('add', 64, 64, 72)); k.e(pk('add', 66, 66, 74))
    for d in range(2): round_bf16_pair(k, 64 + 2 * d, 65 + 2 * d, 68)
    for q in range(4): k.e('v_add_f32 v%d, s49, v%d' % (64 + q, 64 + q))
    for d in range(2): round_bf16_pair(k, 64 + 2 * d, 65 + 2 * d, 68)
    if TAGP:
        k.e('ds_write_b64 v80, v[64:65]')
        k.e('ds_write_b64 v80, v[66:67] offset:512')
    else: k.e('ds_write_b128 v80, v[64:67]')
    k.e('s_waitcnt lgkmcnt(0)')
    k.e('s_barrier')
    SC = 64; SH = 96
    for p in range(4):
        for sub in range(2):
            k.e('ds_read_b128 %s, v3 offset:%d' % (vr(SC + 8 * p + 4 * sub, 4), 4096 + p * 1024 + sub * 32))
            k.e('ds_read_b128 %s, v3 offset:%d' % (vr(SH + 8 * p + 4 * sub, 4), p * 1024 + sub * 32))
    for p in range(4):
        pin = 8 + 4 * p; x = X + 8 * p
        k.e('s_waitcnt lgkmcnt(%d)' % (12 - 4 * p))
        if env('NORND', 0):
            for d in range(4): k.e(pk('fma', x + 2 * d, x + 2 * d, SC + 8 * p + 2 * d, SH + 8 * p + 2 * d))
        else:
            for d in range(4): k.e(pk('mul', x + 2 * d, x + 2 * d, SC + 8 * p + 2 * d))
            for d in range(4): round_bf16_pair(k, x + 2 * d, x + 2 * d + 1, pin + d)
            for d in range(4): k.e(pk('add', x + 2 * d, x + 2 * d, SH + 8 * p + 2 * d))
        for d in range(4): k.e('v_cvt_pk_bf16_f32 v%d, v%d, v%d' % (pin + d, x + 2 * d, x + 2 * d + 1))
        k.e('buffer_store_dwordx4 %s, v4, s[36:39], s44 offen%s' % (vr(pin, 4), WT))
        k.e('s_add_u32 s44, s44, 16384')
    if RLN == 3: resets(132, False)
    mark(k, 3)
    signal(k, 'S')
    finish(k)
    k.need(128, AUX_A + 10240)

def log2(n):
    l = n.bit_length() - 1
    assert 1 << l == n
    return l
class G: pass

def k_gemm(k, c, GM, GN, bm_log2, xm_log2, bn, TM, TN, WM, WN, K, KS, NS, X, Y, pre, pre2, epi, swap=(), aux=None, auxsz=0, auxbase=None,
           pf=None, aux_end=None, side=None, wait=None, sig=None, dep='X', GU=1, RWD=1, post=None, frbase=None, selfsig=False, RR=0, early=None, JG=1, lazyfix=False, SOFT=0, own=None, ownlim=None, altmap=False, prelast=None, DEFER=0, dcols=None, auxpre=None, mid=None, accmap=None, cinit=False, geo=None, tailpre=None):
    g = G()
    name = c.name
    xt = X[0] == 'xt'
    M16 = name in os.environ.get('M16', 'qkv,wo,win,wsp,wout').split(',')
    if xt: X = ('xf',) + X[1:]
    ROLL = env('ROLL_' + name, env('ROLL', 0 if name == 'qkv' else 1))
    LAG = 2 if ROLL else 1
    NS = env('NS_' + name, NS + LAG - 1)
    mb = TM // WM // 32; nb = TN // WN // 32
    S = KS // 16
    xb = TM * KS * 2; yb = TN * KS * 2; STAGE = xb + yb
    nst = K // KS
    solo = c.first and c.last
    g.k = k; g.mb = mb; g.nb = nb; g.TM = TM; g.TN = TN; g.AUX = NS * STAGE if solo or auxbase is None else auxbase
    assert NS * STAGE <= g.AUX
    phase_begin(k, c)
    k.e('''
    v_and_b32 v1, 63, v0               ; lane
    s_mov_b32 s46, s3
    s_and_b32 s47, s2, 7               ; xcd
    s_lshr_b32 s48, s2, 3              ; idx
    s_and_b32 s30, s47, %d
    s_lshl_b32 s30, s30, %d
    s_and_b32 s49, s48, %d
    s_add_u32 s30, s30, s49            ; tm
    s_lshr_b32 s31, s47, %d
    s_mul_i32 s31, s31, %d
    s_lshr_b32 s49, s48, %d
    s_add_u32 s31, s31, s49            ; tn
    ''' % ((1 << xm_log2) - 1, bm_log2, (1 << bm_log2) - 1, xm_log2, bn, bm_log2))
    if altmap:
        k.e('''
        s_and_b32 s30, s47, 3
        s_lshl_b32 s30, s30, 3
        s_and_b32 s49, s48, 3
        s_lshl_b32 s49, s49, 1
        s_add_u32 s30, s30, s49
        s_bfe_u32 s49, s48, 0x10002
        s_add_u32 s30, s30, s49
        ''')
    if env('MAP_' + name, 0):
        k.e('''
        s_lshr_b32 s31, s47, 1
        s_mul_i32 s31, s31, 28
        s_add_u32 s31, s31, s48
        s_and_b32 s30, s47, 1
        s_lshl_b32 s30, s30, 3
        s_and_b32 s49, s31, 7
        s_add_u32 s30, s30, s49
        s_lshr_b32 s31, s31, 3
        ''')
    lcomp = 'L_%s_comp' % name
    set_flag(k, sig)
    if pf or side:
        k.e('s_cmp_ge_u32 s2, %d' % (GM * GN))
        k.e('s_cbranch_scc1 L_%s_pf' % name)
    k.e('s_cmp_ge_u32 s46, 4')
    k.e('s_cbranch_scc1 %s' % lcomp)
    nx = xb // 1024 // 4; ny = yb // 1024 // 4
    assert nx * 4096 == xb and ny * 4096 == yb
    VX = 8; VY = VX + nx
    g.LV = VY + ny
    if X[0] == 'xf':
        C = X[2]; ncb = C // 16
        assert S % nx == 0 or nx % S == 0
        k.e('s_mul_i32 s50, s30, %d' % (TM // 32 * ncb * 1024))
        k.e('s_mul_i32 s51, s46, %d' % nx)
        k.e('s_lshr_b32 s52, s51, %d' % log2(S))
        k.e('s_and_b32 s51, s51, %d' % (S - 1))
        k.e('s_mul_i32 s52, s52, %d' % (ncb * 1024))
        k.e('s_lshl_b32 s51, s51, 10')
        k.e('s_add_u32 s50, s50, s52')
        k.e('s_add_u32 s50, s50, s51')
        k.e('v_lshl_add_u32 v%d, v1, 4, s50' % VX)
        for j in range(1, nx):
            k.e('v_add_u32 v%d, %d, v%d' % (VX + j, (j // S) * ncb * 1024 + (j % S) * 1024, VX))
        xadv = S * 1024
    else:
        ld = X[2]
        assert nx % 2 == 0
        k.e('s_mul_i32 s50, s30, %d' % (TM * ld))
        k.e('s_mul_i32 s51, s46, %d' % (nx * 8 * ld))
        k.e('s_add_u32 s50, s50, s51')
        k.e('v_lshrrev_b32 v2, 3, v1')
        k.e('v_lshl_add_u32 v2, v2, %d, s50' % log2(ld))
        k.e('v_and_b32 v3, 7, v1')
        k.e('v_lshrrev_b32 v4, 4, v1')
        k.e('v_xor_b32 v5, v4, v3')
        k.e('v_lshl_add_u32 v%d, v5, 4, v2' % VX)
        k.e('v_xor_b32 v5, 64, v%d' % VX)
        k.e('v_add_u32 v%d, %d, v5' % (VX + 1, 8 * ld))
        for j in range(2, nx):
            k.e('v_add_u32 v%d, %d, v%d' % (VX + j, (j - j % 2) * 8 * ld, VX + j % 2))
        xadv = KS * 2
    k.e('''
    v_lshrrev_b32 v2, 4, v1            ; u
    v_bfe_u32 v3, v1, 2, 2             ; (i>>2)&3
    v_and_b32 v4, 3, v1                ; i&3
    ''')
    if Y[0] == 'w':
        ld = Y[2]
        NP = TN // 64
        assert ny % NP == 0
        if M16:
            k.e('v_and_b32 v5, 2, v2')
            k.e('v_xor_b32 v4, v4, v5')
        k.e('v_lshrrev_b32 v5, 1, v2')
        k.e('v_lshl_add_u32 v5, v5, 2, v3')
        k.e('v_mul_u32_u24 v5, %d, v5' % ld)
        k.e('v_and_b32 v6, 1, v2')
        k.e('v_lshl_add_u32 v5, v6, 6, v5')
        k.e('v_lshl_add_u32 v5, v4, 4, v5')
        if Y[3] == 'qkv': tstride, segs = 128, [0, 2048, 4096]
        elif Y[3]: tstride, segs = Y[3]
        else: tstride, segs = TN * 2, [p * 128 for p in range(NP)]
        k.e('s_mul_i32 s50, s46, %d' % (ny // NP * 8 * ld))
        k.e('s_mul_i32 s51, s31, %d' % tstride)
        k.e('s_add_u32 s50, s50, s51')
        k.e('v_add_u32 v5, s50, v5')
        for j in range(ny):
            k.e('v_add_u32 v%d, %d, v5' % (VY + j, (j // NP) * 8 * ld + segs[j % NP]))
        yadv = KS * ld
    else:
        C = Y[2]; ncb = C // 16
        NB = TN // 32
        assert ny == NB and S == 4
        if M16:
            k.e('v_and_b32 v5, 2, v2')
            k.e('v_xor_b32 v3, v3, v5')
        k.e('v_lshl_add_u32 v5, v2, 2, v4')
        k.e('v_lshlrev_b32 v5, 4, v5')
        k.e('v_lshl_add_u32 v5, v3, 9, v5')
        k.e('s_lshr_b32 s50, s46, 1')
        k.e('s_mul_i32 s50, s50, %d' % (ncb * 1024))
        k.e('s_and_b32 s51, s46, 1')
        k.e('s_lshl_b32 s51, s51, 8')
        k.e('s_add_u32 s50, s50, s51')
        k.e('s_mul_i32 s51, s31, %d' % (TN // 16 * 1024))
        k.e('s_add_u32 s50, s50, s51')
        k.e('v_add_u32 v%d, s50, v5' % VY)
        for j in range(1, ny):
            k.e('v_add_u32 v%d, %d, v%d' % (VY + j, j * 2048, VY))
        yadv = 2 * ncb * 1024
    k.e('s_mul_i32 s55, s46, %d' % (nx * 1024))
    k.e('s_mul_i32 s56, s46, %d' % (ny * 1024))
    if geo:
        k.e('s_add_u32 s55, s55, %d' % geo[2])
        if geo[0]: k.e('s_add_u32 s56, s56, %d' % geo[0])
    else: k.e('s_add_u32 s56, s56, %d' % xb)
    per = nx + ny
    assert per * NS <= 55 and nst >= 2 * NS
    k.e('s_waitcnt lgkmcnt(0)')
    mark(k, 0)
    if Y[0] == 'w': srd(k, 36, Y[1])
    else: srd(k, 36, 'ws', Y[1], 2048 * Y[2] * 2)
    if X[0] == 'xf': srd(k, 32, 'ws', X[1], 2048 * X[2] * 2)
    else: srd(k, 32, X[1])
    xfl = ' sc1' if X[0] == 'xf' else ''
    yfl = ' sc1' if Y[0] == 'z' else ''
    ntf = os.environ.get('NT_' + name, os.environ.get('NT', ''))
    if 'X' in ntf: xfl += ' nt'
    if 'Y' in ntf: yfl += ' nt'
    ownlds = name == 'wsp' and ZOWN and c.prev == 'win'
    OWN = own if (own and not c.first and (OWNF(name) or ownlds)) else None
    RW = env('RW_' + name, min(RWD, 2) if OWN else RWD); RC = env('RC_' + name, 1)
    assert nst % RW == 0
    if RW > 1:
        k.e('s_mul_i32 s54, s31, %d' % RC)
        k.e('s_add_u32 s54, s54, s30')
    if OWN:
        assert RW <= 2
        k.e(OWN)
        k.e('s_and_b32 s54, s54, 1' if RW > 1 else 's_mov_b32 s54, 0')
    out = []
    RB = 48
    dyn = [None]
    def soff(st, adv):
        if OWN:
            if st < 2: k.e('s_add_u32 s57, s68, %d' % st)
            else:
                k.e('s_cmp_le_u32 s68, %d' % (st - 2))
                k.e('s_cselect_b32 s57, %d, %d' % (st, st - 2))
                k.e('s_xor_b32 s57, s57, s54')
            k.e('s_mul_i32 s57, s57, %d' % adv)
        elif dyn[0] is not None:
            assert RW in (1, 2, 4)
            if RW > 1:
                k.e('s_add_u32 s57, s54, %d' % st)
                k.e('s_and_b32 s57, s57, %d' % (RW - 1))
                k.e('s_add_u32 s57, s57, s59')
                k.e('s_add_u32 s57, s57, %d' % (st // RW * RW))
            else: k.e('s_add_u32 s57, s59, %d' % st)
            k.e('s_mul_i32 s57, s57, %d' % adv)
        elif RW > 1:
            k.e('s_add_u32 s57, s54, %d' % st)
            k.e('s_and_b32 s57, s57, %d' % (RW - 1))
            k.e('s_mul_i32 s57, s57, %d' % adv)
            if st // RW: k.e('s_add_u32 s57, s57, %d' % (st // RW * RW * adv))
        else: k.e('s_mov_b32 s57, %d' % (st * adv))
    def opinfo(op): return (nx, 's55', VX, 32, xadv, xfl) if op == 'X' else (ny, 's56', VY, 36, yadv, yfl)
    def throttle(n):
        if len(out) + n > 60:
            k.e('s_waitcnt vmcnt(40)'); del out[:len(out) - 40]
    def iss(op, st):
        slot = (st % NS) * STAGE
        if geo: slot = (st % geo[3]) * xb if op == 'X' else (st % geo[1]) * yb
        n, base, V, sd, adv, fl = opinfo(op)
        if op == ind and st in Rset:
            if ('r', st) in out:
                last = max(i for i, t in enumerate(out) if t == ('r', st))
                k.e('s_waitcnt vmcnt(%d)' % (len(out) - 1 - last)); del out[:last + 1]
            r0 = RB + Rset.index(st) * n * 4
            for j in range(n):
                o = slot + j * 1024
                k.e('ds_write_b128 v%d, %s offset:%d' % (44 + o // 65536, vr(r0 + 4 * j, 4), o % 65536))
            return
        throttle(n)
        soff(st, adv)
        for j in range(n):
            k.e('s_add_u32 m0, %s, %d' % (base, slot + j * 1024))
            k.e('s_nop 0')
            k.e('buffer_load_dwordx4 v%d, %s, s57 offen%s lds' % (V + j, sr(sd), fl))
            out.append(st)
    def issr(st):
        n, base, V, sd, adv, fl = opinfo(ind)
        throttle(n)
        soff(st, adv)
        r0 = RB + Rset.index(st) * n * 4
        for j in range(n):
            k.e('buffer_load_dwordx4 %s, v%d, %s, s57 offen' % (vr(r0 + 4 * j, 4), V + j, sr(sd)))
            out.append(('r', st))
    def wait_stage(st):
        lg = ' lgkmcnt(%d)' % min(15, opinfo(ind)[0] * len([r_ for r_ in Rset if st < r_ < st + NS - LAG])) if st in Rset else ''
        if st in out:
            last = max(i for i, t in enumerate(out) if t == st)
            k.e('s_waitcnt vmcnt(%d)%s' % (len(out) - 1 - last, lg))
            del out[:last + 1]
        elif lg: k.e('s_waitcnt' + lg)
    I0 = env('I0_' + name, 2)
    ind = 'Y' if dep == 'X' else 'X'
    fusedw = wait and not c.first and not env('WLATE_' + name, 0)
    R = env('RR_' + name, RR) if fusedw else 0
    Rset = sorted(set(NS + (2 * i + 1) * (nst - NS) // (2 * R) for i in range(R))) if R else []
    if Rset:
        assert RB + len(Rset) * opinfo(ind)[0] * 4 <= 256
        k.need(RB + len(Rset) * opinfo(ind)[0] * 4, 0)
        k.e('v_lshl_add_u32 v44, v1, 4, %s' % opinfo(ind)[1])
        k.e('v_add_u32 v45, 0x10000, v44')
    if xt:
        DX = env('DX', 4); NR = 64; TB = NR + DX * 8; TX = TB + 32
        assert nx == 2 and S == 2
        k.need(TX + 16, 0)
        k.e('v_lshl_add_u32 v44, v1, 4, s55')
        k.e('v_add_u32 v45, 0x10000, v44')
        k.e('v_lshrrev_b32 v46, 5, v1')
        k.e('v_lshlrev_b32 v46, 4, v46')
        k.e('v_add_u32 v46, %d, v46' % AUX_A)
        def ldn(st):
            soff(st, xadv)
            for j in range(2):
                k.e('buffer_load_dwordx4 %s, v%d, s[32:35], s57 offen sc1' % (vr(NR + (st % DX) * 8 + 4 * j, 4), VX + j))
                out.append(('n', st))
        TW = TX + 16
        k.need(TW + 8, 0)
        def tabrd(st):
            soff(st, 128)
            k.e('v_add_u32 v47, s57, v46')
            for j in range(2):
                for sub in range(2):
                    k.e('ds_read_b128 %s, v47 offset:%d' % (vr(TB + 16 * j + 4 * sub, 4), 4096 + j * 64 + sub * 32))
                    k.e('ds_read_b128 %s, v47 offset:%d' % (vr(TB + 16 * j + 8 + 4 * sub, 4), j * 64 + sub * 32))
        def xform(st):
            if ('n', st) in out:
                last = max(i for i, t in enumerate(out) if t == ('n', st))
                k.e('s_waitcnt vmcnt(%d)' % (len(out) - 1 - last)); del out[:last + 1]
            r0 = NR + (st % DX) * 8
            for d in range(8): unpack(k, TX + 2 * d, TX + 2 * d + 1, r0 + d)
            if st + DX < nst: ldn(st + DX)
            k.e('s_waitcnt lgkmcnt(0)')
            for j in range(2):
                for e in range(8): k.e('v_fma_f32 v%d, v%d, v%d, v%d' % (TX + 8 * j + e, TX + 8 * j + e, TB + 16 * j + e, TB + 16 * j + 8 + e))
            for j in range(2):
                for d in range(4): k.e('v_cvt_pk_bf16_f32 v%d, v%d, v%d' % (TW + 4 * j + d, TX + 8 * j + 2 * d, TX + 8 * j + 2 * d + 1))
                o = (st % NS) * STAGE + j * 1024
                k.e('ds_write_b128 v%d, %s offset:%d' % (44 + o // 65536, vr(TW + 4 * j, 4), o % 65536))
            if st + 1 < nst: tabrd(st + 1)
        for st in range(NS): iss('Y', st)
        k.e('s_barrier')
        mark(k, 1)
        out.extend(['p'] * 4)
        mod_table(k, 24, between=lambda: [ldn(st) for st in range(DX)], nb=2 * DX)
        del out[:len(out) - 2 * DX]
        if env('XPRIO', 0): k.e('s_setprio %d' % env('XPRIO', 0))
        XL = env('XL', 2)
        assert XL >= 2
        tabrd(0)
        for st in range(XL): xform(st)
        def capture(fn):
            n0 = len(k.lines); fn(); got = k.lines[n0:]; del k.lines[n0:]
            return got
        def step(st):
            lg = ' lgkmcnt(0)' if st + XL > nst else ''
            if st in out:
                last = max(i for i, t in enumerate(out) if t == st)
                k.e('s_waitcnt vmcnt(%d)%s' % (len(out) - 1 - last, lg)); del out[:last + 1]
            elif lg: k.e('s_waitcnt' + lg)
            if st == 0: mark(k, 2)
            k.e('s_barrier')
            sx = st + XL; sy = st + NS - LAG
            doy = st >= LAG and sy < nst
            if sx >= nst:
                if doy: iss('Y', sy)
                return
            if ('n', sx) in out:
                last = max(i for i, t in enumerate(out) if t == ('n', sx))
                nw = 's_waitcnt vmcnt(%d)' % (len(out) - 1 - last + (1 if doy else 0)); del out[:last + 1]
            else: nw = None
            yl = capture(lambda: iss('Y', sy)) if doy else []
            yp = []; cur = []
            for l in yl:
                if 's_nop' in l: continue
                cur.append(l)
                if 'buffer_load' in l: yp.append(cur); cur = []
            nl = capture(lambda: ldn(sx + DX)) if (sx + DX < nst or dyn[0] is not None) else []
            nl = [l.replace('s57', 's58') for l in nl]
            npc = [nl[:-1], nl[-1:]] if nl else [[], []]
            r0 = NR + (sx % DX) * 8
            un = capture(lambda: [unpack(k, TX + 2 * d, TX + 2 * d + 1, r0 + d) for d in range(8)])
            fm = ['    v_fma_f32 v%d, v%d, v%d, v%d' % (TX + 8 * j + e, TX + 8 * j + e, TB + 16 * j + e, TB + 16 * j + 8 + e) for j in range(2) for e in range(8)]
            def put(piece):
                if len(piece) >= 2 and 'm0' in piece[-2]: piece = piece[:-1] + ['    s_nop 0', piece[-1]]
                k.lines.extend(piece)
            if yp: put(yp[0])
            if nw: k.e(nw)
            k.lines.extend(un[:8])
            if yp: put(yp[1])
            k.lines.extend(un[8:])
            if yp: put(yp[2])
            k.e('s_waitcnt lgkmcnt(0)')
            k.lines.extend(fm[:10])
            k.lines.extend(npc[0])
            k.lines.extend(fm[10:])
            if sx + 1 < nst: tabrd(sx + 1)
            k.lines.extend(npc[1])
            for j in range(2):
                for d in range(4): k.e('v_cvt_pk_bf16_f32 v%d, v%d, v%d' % (TW + 4 * j + d, TX + 8 * j + 2 * d, TX + 8 * j + 2 * d + 1))
                o = (sx % NS) * STAGE + j * 1024
                k.e('ds_write_b128 v%d, %s offset:%d' % (44 + o // 65536, vr(TW + 4 * j, 4), o % 65536))
        assert NS == 4 and DX == 4 and XL == 2 and LAG == 1 and nst == 32
        for st in range(5): step(st)
        k.e('s_mov_b32 s59, 0')
        k.label('L_%s_xl' % name)
        dyn[0] = 0
        before = list(out)
        for st in range(5, 9): step(st)
        dyn[0] = None
        sh = lambda t, d: (t[0], t[1] + d) if isinstance(t, tuple) else t + d
        assert [sh(t, 4) for t in before] == out, (before, out)
        k.e('s_add_u32 s59, s59, 4')
        k.e('s_cmp_lt_u32 s59, 24')
        k.e('s_cbranch_scc1 L_%s_xl' % name)
        out[:] = [sh(t, 20) for t in out]
        for st in range(29, 32): step(st)
    elif wait and not c.first and env('WLATE_' + name, 0):
        handoff(k, wait[0], wait[1])
    if xt: pass
    elif geo:
        yb0, NSY, xb0, NSX, NPRE, prelim = geo
        assert fusedw and dep == 'X' and not aux and not aux_end and not OWN
        if NPRE and prelim:
            l = k.newlabel('hp')
            k.e('s_cmp_lt_u32 s2, %d' % prelim); k.e('s_cbranch_scc1 %s' % l)
            for st in range(NPRE): iss('Y', st)
            k.label(l)
        WP = env('WPRE_' + name, NSY)
        for st in range(NPRE, WP): iss('Y', st)
        if auxpre: out.extend(['aux'] * auxpre(g))
        handoff(k, wait[0], wait[1])
        mark(k, 1)
        for st in range(I0): iss('X', st)
        wait_stage(0); mark(k, 2); k.e('s_barrier')
        for st in range(I0, NSX): iss('X', st)
        for st in range(max(WP, NPRE), NSY): iss('Y', st)
        for st in range(1, nst):
            wait_stage(st); k.e('s_barrier')
            if st >= LAG:
                if st + NSX - LAG < nst: iss('X', st + NSX - LAG)
                if st + NSY - LAG < nst: iss('Y', st + NSY - LAG)
    elif fusedw:
        WPRE = env('WPRE_' + name, 2 if name == 'win' else NS)
        iss0 = iss
        def iss(op, st):
            if op == dep and WPRE <= st < NS: iss0(ind, st)
            iss0(op, st)
        for st in range(WPRE): iss(ind, st)
        for st in Rset: issr(st)
        if auxpre: out.extend(['aux'] * auxpre(g))
        if ownlds and LPW:
            k.e('s_barrier')
            handoff(k, wait[0], wait[1], role='W')
            mark(k, 1)
            for st in range(2, NS): iss(dep, st)
            wait_stage(0); mark(k, 2); k.e('s_barrier')
        elif ownlds:
            handoff(k, wait[0], wait[1])
            mark(k, 1)
            I1 = env('I1_' + name, 3)
            for st in range(2, I1): iss(dep, st)
            wait_stage(0); mark(k, 2); k.e('s_barrier')
            for st in range(I1, NS): iss(dep, st)
        elif OWN:
            l1 = k.newlabel('no'); l2 = k.newlabel('no')
            k.e('s_barrier')
            if ownlim:
                k.e('s_cmp_ge_u32 s2, %d' % ownlim); k.e('s_cbranch_scc1 %s' % l1)
            n0 = len(k.lines)
            iss(dep, 0); iss(dep, 1)
            dup = k.lines[n0:]
            k.label(l1)
            handoff(k, wait[0], wait[1])
            mark(k, 1)
            if ownlim:
                k.e('s_cmp_lt_u32 s2, %d' % ownlim); k.e('s_cbranch_scc1 %s' % l2)
                k.lines.extend(dup)
                k.label(l2)
            I1 = env('I1_' + name, 3)
            for st in range(2, I1): iss(dep, st)
            wait_stage(0); mark(k, 2); k.e('s_barrier')
            for st in range(I1, NS): iss(dep, st)
        else:
            handoff(k, wait[0], wait[1])
            mark(k, 1)
            for st in range(I0): iss(dep, st)
            wait_stage(0); mark(k, 2); k.e('s_barrier')
            for st in range(I0, NS): iss(dep, st)
    else:
        for st in range(I0): iss(ind, st); iss(dep, st)
        mark(k, 1)
        wait_stage(0); mark(k, 2); k.e('s_barrier')
        for st in range(I0, NS): iss(ind, st); iss(dep, st)
    FS = bool(Rset) or env('STATIC', 0) or xt or geo
    if FS and not xt and not geo:
        for st in range(1, nst):
            if st == nst - 1: k.e('s_waitcnt vmcnt(0) lgkmcnt(0)')
            else: wait_stage(st)
            if st == nst - 1 and aux_end: aux_end(g)
            k.e('s_barrier')
            nx_st = st + NS - LAG
            if st >= LAG and nx_st < nst:
                iss(dep, nx_st); iss(ind, nx_st)
                if nx_st == nst - 1 and aux:
                    out.extend(['aux'] * aux(g))
    for st in range(1, NS if not FS else 0):
        wait_stage(st); k.e('s_barrier')
        if st >= LAG: iss('Y', st + NS - LAG); iss('X', st + NS - LAG)
    if not FS:
        s0 = 2 * NS - LAG
        k.e('s_add_u32 s60, s55, %d' % (NS * STAGE))
        k.e('s_add_u32 s55, s55, %d' % ((s0 % NS) * STAGE))
        k.e('s_add_u32 s56, s56, %d' % ((s0 % NS) * STAGE))
        k.e('s_mov_b32 s57, %d' % (s0 * xadv))
        k.e('s_mov_b32 s58, %d' % (s0 * yadv))
        k.e('s_mov_b32 s59, %d' % s0)
        ll = 'L_%s_lloop' % name
        k.label(ll)
        if OWN:
            k.e('s_sub_u32 s57, s59, 2')
            k.e('s_cmp_le_u32 s68, s57')
            k.e('s_cselect_b32 s57, s59, s57')
            k.e('s_xor_b32 s57, s57, s54')
            k.e('s_mul_i32 s58, s57, %d' % yadv)
            k.e('s_mul_i32 s57, s57, %d' % xadv)
        elif RW > 1:
            k.e('s_add_u32 s57, s54, s59')
            k.e('s_and_b32 s57, s57, %d' % (RW - 1))
            k.e('s_andn2_b32 s58, s59, %d' % (RW - 1))
            k.e('s_or_b32 s57, s57, s58')
            k.e('s_mul_i32 s58, s57, %d' % yadv)
            k.e('s_mul_i32 s57, s57, %d' % xadv)
        k.e('s_waitcnt vmcnt(%d)' % (per * (NS - 1 - LAG)))
        k.e('s_barrier')
        for j in range(ny):
            k.e('s_add_u32 m0, s56, %d' % (j * 1024))
            k.e('s_nop 0')
            k.e('buffer_load_dwordx4 v%d, s[36:39], s58 offen%s lds' % (VY + j, yfl))
        for j in range(nx):
            k.e('s_add_u32 m0, s55, %d' % (j * 1024))
            k.e('s_nop 0')
            k.e('buffer_load_dwordx4 v%d, s[32:35], s57 offen%s lds' % (VX + j, xfl))
        k.e('s_add_u32 s57, s57, %d' % xadv)
        k.e('s_add_u32 s58, s58, %d' % yadv)
        k.e('s_add_u32 s55, s55, %d' % STAGE)
        k.e('s_add_u32 s56, s56, %d' % STAGE)
        k.e('s_cmp_eq_u32 s55, s60')
        k.e('s_cselect_b32 s61, %d, 0' % (NS * STAGE))
        k.e('s_sub_u32 s55, s55, s61')
        k.e('s_sub_u32 s56, s56, s61')
        k.e('s_add_u32 s59, s59, 1')
        k.e('s_cmp_lt_u32 s59, %d' % nst)
        k.e('s_cbranch_scc1 %s' % ll)
        naux = aux(g) if aux else 0
        NXT = dict(qkv=('attn', 1), wo=('win', 1), win=('wsp', 2), wsp=('wout', 1))
        if CPF >= 2:
            if name in NXT: naux += code_pf(k, 'L_%s_epi' % name, 'L_%s_epi' % NXT[name][0], NXT[name][1] * 8192, vt=22, vd=23)
            else: naux += code_pf(k, 'L_%s_epi' % name, 'L_text_end', 8192, vt=22, vd=23)
        if tailpre: tailpre[0](k)
        for st in range(nst - NS + LAG, nst):
            k.e('s_waitcnt vmcnt(%d)' % (per * (nst - st - 1) + naux if (st < nst - 1 or tailpre) else 0))
            if st == nst - 1 and aux_end: aux_end(g)
            k.e('s_barrier')
            if tailpre: naux += tailpre[1](k, st - (nst - NS + LAG))
    LE = env('LE_' + name, 2 if name in ('wo', 'wsp') else 0)
    g.LE = 0 if c.last else LE
    if mid: mid(g)
    if not c.last and not LE: k.e('s_barrier')
    if post: post(g)
    if not c.last and LE: k.e('s_barrier')
    signal(k)
    endpgm(k)
    k.label(lcomp)
    k.e('s_setprio 1')
    k.e('s_sub_u32 s46, s46, 4')
    k.e('s_lshr_b32 s50, s46, %d' % log2(WN))
    k.e('s_and_b32 s51, s46, %d' % (WN - 1))
    ACC = 8
    nacc = mb * nb * 16
    FR = frbase if frbase else ACC + nacc
    GU = env('GU_' + name, GU)
    g.acc = lambda i, j: ACC + (accmap(i, j) if accmap else i * nb + j) * 16
    g.M16 = M16
    k.e('v_and_b32 v3, 31, v1')
    k.e('v_lshrrev_b32 v4, 5, v1')
    if M16:
        JG = env('JG_' + name, JG)
        KSN = KS // 32; NU = KSN * JG; nbj = nb // JG
        XA = FR + max(16 * mb + 16 * nbj, 72 if name == 'win' else 0)
        nxa = KSN if X[0] == 'rm' else 1
        nya = 2
    else:
        NU = S // GU
        assert NU % 2 == 0
        fs1 = (mb + nb) * 4
        fsz = fs1 * GU
        XA = FR + 2 * fsz
        nxa = S if X[0] == 'rm' else 1
        nya = 1
    XB = XA; XC = XA + nxa; YB = XC + nxa; YC = YB + nya
    g.free = YC + nya
    g.FR = FR
    NP = TN // 64; NB = TN // 32
    if Y[0] == 'w':
        if Y[3] == 'qkv': ywave = 's_lshl_b32 s52, s51, 8'
        else:
            assert nb % 2 == 0
            ywave = 's_mul_i32 s52, s51, %d' % (nb // 2 * 1024)
        def yblk(j): return j * 1024 if Y[3] == 'qkv' else (j // 2) * 1024 + (j % 2) * 256
    else: ywave = 's_mul_i32 s52, s51, %d' % (nb * 1024)
    if M16:
        k.e('v_and_b32 v5, 15, v1')
        k.e('v_lshrrev_b32 v6, 4, v1')
        if X[0] == 'xf':
            k.e('s_mul_i32 s52, s50, %d' % (mb * S * 1024))
            if geo: k.e('s_add_u32 s52, s52, %d' % geo[2])
            k.e('v_lshl_add_u32 v7, v5, 4, s52')
            k.e('v_lshl_add_u32 v%d, v6, 9, v7' % XB)
        else:
            k.e('s_mul_i32 s52, s50, %d' % (mb * 4096))
            k.e('v_lshl_add_u32 v2, v5, 7, s52')
            k.e('v_lshrrev_b32 v5, 1, v5')
            for ks in range(KSN):
                k.e('v_add_u32 v7, %d, v6' % (4 * ks))
                k.e('v_xor_b32 v7, v7, v5')
                k.e('v_lshl_add_u32 v%d, v7, 4, v2' % (XB + ks))
        k.e('v_mul_u32_u24 v5, %d, v4' % (2 * NP * 1024 if Y[0] == 'w' else NB * 1024))
        k.e('v_and_b32 v6, 1, v6')
        k.e('v_lshl_add_u32 v5, v6, 9, v5')
        k.e('v_lshl_add_u32 v5, v6, %d, v5' % (5 if Y[0] == 'w' else 7))
        k.e('v_bfe_u32 v6, v1, 2, 2')
        k.e('v_lshl_add_u32 v5, v6, %d, v5' % (6 if Y[0] == 'w' else 4))
        k.e('v_bfe_u32 v6, v1, 1, 1')
        k.e('v_lshl_add_u32 v5, v6, %d, v5' % (3 if Y[0] == 'w' else 6))
        k.e('v_and_b32 v6, 1, v1')
        k.e('v_lshl_add_u32 v5, v6, %d, v5' % (4 if Y[0] == 'w' else 3))
        k.e(ywave)
        k.e('s_add_u32 s52, s52, %d' % (geo[0] if geo else xb))
        k.e('v_add_u32 v%d, s52, v5' % YB)
        k.e('v_xor_b32 v%d, %d, v%d' % (YB + 1, 32 if Y[0] == 'w' else 128, YB))
    else:
        if X[0] == 'xf':
            k.e('s_mul_i32 s52, s50, %d' % (mb * S * 1024))
            k.e('v_lshl_add_u32 v%d, v1, 4, s52' % XB)
        else:
            assert KS == 64
            k.e('s_mul_i32 s52, s50, %d' % (mb * 4096))
            k.e('v_bfe_u32 v5, v3, 1, 3')
            k.e('v_lshl_add_u32 v6, v3, 7, s52')
            for ss in range(S):
                k.e('v_add_u32 v7, %d, v4' % (2 * ss))
                k.e('v_xor_b32 v7, v7, v5')
                k.e('v_lshl_add_u32 v%d, v7, 4, v6' % (XB + ss))
        k.e("""
        v_lshlrev_b32 v5, 9, v4            ; h*512
        v_bfe_u32 v6, v1, 2, 2             ; r
        v_lshl_add_u32 v5, v6, %d, v5
        v_bfe_u32 v6, v1, 4, 1             ; G&1
        v_lshl_add_u32 v5, v6, %d, v5
        v_bfe_u32 v6, v1, 1, 1             ; c>>1
        v_and_b32 v7, 1, v1                ; c&1
        """ % ((6, 5) if Y[0] == 'w' else (4, 7)))
        if Y[0] == 'w':
            k.e('v_lshl_add_u32 v5, v6, 4, v5')
            k.e('v_lshl_add_u32 v5, v7, 3, v5')
        else:
            k.e('v_lshl_add_u32 v5, v7, 6, v5')
            k.e('v_lshl_add_u32 v5, v6, 3, v5')
        k.e(ywave)
        k.e('s_add_u32 s52, s52, %d' % xb)
        k.e('v_add_u32 v%d, s52, v5' % YB)
    k.e('s_waitcnt lgkmcnt(0)')
    mark(k, 0)
    pre(g)
    if M16:
        def xr16(sp, ks, i, rh): return FR + (sp[0] if isinstance(sp, tuple) else (sp * KSN + ks) % 2) * 8 * mb + (2 * i + rh) * 4
        def yr16(sp, u, j, t): return FR + 16 * mb + (sp[1] if isinstance(sp, tuple) else (sp * NU + u) % 2) * 8 * nbj + ((j % nbj) * 2 + t) * 4
        def cols(jg, sp): return sp[2] if isinstance(sp, tuple) else range(jg * nbj, (jg + 1) * nbj)
        def reads(u, sp=0):
            ks = u // JG; jg = u % JG
            xr = []; yr = []
            if jg == 0 or isinstance(sp, tuple):
                for i in range(mb):
                    for rh in range(2):
                        if X[0] == 'xf': xr.append('ds_read_b128 %s, v%d offset:%d' % (vr(xr16(sp, ks, i, rh), 4), XC, (i * S + 2 * ks) * 1024 + rh * 256))
                        else: xr.append('ds_read_b128 %s, v%d offset:%d' % (vr(xr16(sp, ks, i, rh), 4), XC + ks, i * 4096 + rh * 2048))
            for j in cols(jg, sp):
                for t in range(2):
                    for rd in range(2):
                        o = (4 * ks + rd) * NP * 1024 + yblk(j) if Y[0] == 'w' else (2 * ks * NB + j) * 1024 + rd * 256
                        yr.append('ds_read_b64_tr_b16 %s, v%d offset:%d' % (vr(yr16(sp, u, j, t) + 2 * rd, 2), YC + t, o))
            return xr[:1] + yr[:2] + xr[1:] + yr[2:]
        def mfmas(u, first, sp=0):
            ks = u // JG; jg = u % JG
            out = []
            for j in cols(jg, sp):
                for t in range(2):
                    for i in range(mb):
                        for rh in range(2):
                            x_ = xr16(sp, ks, i, rh); y_ = yr16(sp, u, j, t)
                            if j in swap: a = g.acc(i, j) + 8 * rh + 4 * t; p, q = x_, y_
                            else: a = g.acc(i, j) + 8 * t + 4 * rh; p, q = y_, x_
                            out.append('v_mfma_f32_16x16x32_bf16 %s, %s, %s, %s' % (vr(a, 4), vr(p, 4), vr(q, 4), '0' if first and ks == 0 and not cinit else vr(a, 4)))
            return out
        def fix(i, j):
            a = g.acc(i, j)
            for hb in range(2):
                for e in range(4):
                    k.e('%s v%d, v%d' % ('v_permlane32_swap_b32' if j in swap else 'v_permlane16_swap_b32', a + 8 * hb + e, a + 8 * hb + 4 + e))
    else:
        def yoff(j, ss, rd):
            return (2 * ss + rd) * NP * 1024 + yblk(j) if Y[0] == 'w' else (ss * NB + j) * 1024 + rd * 256
        def xf(ss, i): return FR + ((ss // GU) % 2) * fsz + (ss % GU) * fs1 + i * 4
        def yf(ss, j): return FR + ((ss // GU) % 2) * fsz + (ss % GU) * fs1 + (mb + j) * 4
        def reads1(ss):
            xr = []; yr = []
            for i in range(mb):
                if X[0] == 'xf':
                    xr.append('ds_read_b128 %s, v%d offset:%d' % (vr(xf(ss, i), 4), XC, (i * S + ss) * 1024))
                else:
                    xr.append('ds_read_b128 %s, v%d offset:%d' % (vr(xf(ss, i), 4), XC + ss, i * 4096))
            for j in range(nb):
                for rd in range(2):
                    yr.append('ds_read_b64_tr_b16 %s, v%d offset:%d' % (vr(yf(ss, j) + 2 * rd, 2), YC, yoff(j, ss, rd)))
            return [xr[0]] + yr[:2] + xr[1:] + yr[2:]
        def reads(u, sp=0): return [r for ss in range(u * GU, (u + 1) * GU) for r in reads1(ss)]
        def mfmas(u, first, sp=0):
            out = []
            for ss in range(u * GU, (u + 1) * GU):
                for j in range(nb):
                    for i in range(mb):
                        a = g.acc(i, j)
                        c_ = '0' if first and ss == 0 else vr(a, 16)
                        p, q = (xf(ss, i), yf(ss, j)) if j in swap else (yf(ss, j), xf(ss, i))
                        out.append('v_mfma_f32_32x32x16_bf16 %s, %s, %s, %s' % (vr(a, 16), vr(p, 4), vr(q, 4), c_))
            return out
        def fix(i, j): pass
    g.fix = fix
    def setaddr():
        for t in range(nxa): k.e('v_add_u32 v%d, s53, v%d' % (XC + t, XB + t))
        for t in range(nya): k.e('v_add_u32 v%d, s%d, v%d' % (YC + t, 52 if geo else 53, YB + t))
    RPGV = [env('RPG2_' + name, (5 if mb * nb == 2 else (2 if name == 'qkv' else 3)) * (1 if M16 else 2))]
    import re
    def regs_of(txt):
        return [(int(a_), int(b_)) for a_, b_ in re.findall(r'v\[(\d+):(\d+)\]', txt)]
    def advance():
        n0 = len(k.lines)
        if geo:
            k.e('s_add_u32 s53, s53, %d' % xb)
            k.e('s_and_b32 s53, s53, %d' % (geo[3] * xb - 1))
            k.e('s_add_u32 s52, s52, %d' % yb)
            k.e('s_cmp_eq_u32 s52, %d' % (geo[1] * yb))
            k.e('s_cselect_b32 s52, 0, s52')
        else:
            k.e('s_add_u32 s53, s53, %d' % STAGE)
            k.e('s_cmp_eq_u32 s53, %d' % (NS * STAGE))
            k.e('s_cselect_b32 s53, 0, s53')
        setaddr()
        got = [l.strip() for l in k.lines[n0:]]; del k.lines[n0:]
        return got
    EARLY = env('EARLYADV', 1)
    RM = [ROLL]
    def unit(u, first, rs, sp, extra):
        ms = mfmas(u, first, sp)
        prev = reads(u, sp)
        dst = [regs_of(r)[0] for r in prev]
        ROLL = RM[0]
        covered = -1 if ROLL else len(prev); issued = 0; xi = 0
        WMAX = env('WMAX_' + name, env('WMAX', 9))
        nspread = len(ms) - (min(len(extra) // 2 + 1, len(ms) // 3) if extra else 0)
        for mi, m in enumerate(ms):
            ops = regs_of(m)[1:3]
            need = max(i for i, d in enumerate(dst) if any(o[0] <= d[0] <= o[1] for o in ops))
            if need > covered:
                n = min(len(prev) - 1 - need + issued, WMAX)
                k.e('s_waitcnt lgkmcnt(%d)' % n)
                covered = len(prev) - 1 - (n - issued) if n >= issued else len(prev) - 1
            k.e(m)
            e = min(len(rs), -(-len(rs) * (mi + 1) // nspread) if ROLL == 1 else -(-RPGV[0] * (mi + 1) // 2))
            if issued == len(rs):
                for _ in range(2):
                    if xi < len(extra): k.e(extra[xi]); xi += 1
            while issued < e: k.e(rs[issued]); issued += 1
        while issued < len(rs): k.e(rs[issued]); issued += 1
        while xi < len(extra): k.e(extra[xi]); xi += 1
    def stage(first, last, sp, tail=()):
        for u in range(NU):
            if u == NU - 1 and not last and not EARLY:
                for x in advance(): k.e(x)
            if u < NU - 1: rs = reads(u + 1, sp)
            elif last: rs = []
            else: rs = reads(0, sp ^ 1)
            extra = []
            if EARLY and not last and u == (NU - 2) % NU: extra = advance()
            if u == NU - 1: extra = extra + list(tail)
            if not RM[0] or (last and u == NU - 1 and not c.last and not LE): k.e('s_waitcnt lgkmcnt(0)')
            if u == NU - 1 and not (last and (c.last or LE)): k.e('s_barrier')
            unit(u, first, rs, sp, extra)
    k.e('s_mov_b32 s53, 0')
    if geo: k.e('s_mov_b32 s52, 0')
    setaddr()
    if xt:
        handoff_multi(k, [(4, 's_mov_b32 s100, %d' % FL_MOD, 64), (5, 's_mov_b32 s100, %d' % (FL_MOD + 256), 64), (6, wait[0], wait[1])])
        mod_table(k, FR)
    elif wait and not (ownlds and LPW): handoff(k, wait[0], wait[1], role='C')
    if early: early(g)
    k.e('s_barrier')
    mark(k, 1)
    for r in reads(0): k.e(r)
    if EARLY and NU == 1:
        for x in advance(): k.e(x)
    DEFER = env('DEFER_' + name, DEFER)
    npair = (nst - 1 - max(DEFER, 1)) // 2
    assert nst % 2 == 0 and (DEFER == 0 or (DEFER % 2 == 1 and M16 and KSN == 1 and not LE and DEFER <= NS))
    soft = env('SOFT_' + name, SOFT)
    srp = env('SRP_' + name, 1 if name == 'qkv' else 2)
    segs_ = [(npair, RPGV[0], ROLL)] if not soft else [(soft, srp, 0), (npair - soft, RPGV[0], ROLL)]
    RPGV[0] = segs_[0][1]; RM[0] = segs_[0][2]
    stage(True, False, 0)
    pre2(g)
    for si, (cnt_, rp_, rm_) in enumerate(segs_):
        RPGV[0] = rp_; RM[0] = rm_
        k.e('s_mov_b32 s54, %d' % cnt_)
        lp = 'L_%s_loop%s' % (name, si or '')
        k.label(lp)
        stage(False, False, 1); stage(False, False, 0, tail=['s_sub_u32 s54, s54, 1', 's_cmp_lg_u32 s54, 0'])
        k.e('s_cbranch_scc1 %s' % lp)
    k.label('L_%s_epi' % name)
    if prelast: prelast(g)
    def addr_for(st):
        o = (st % NS) * STAGE
        return ['v_add_u32 v%d, %d, v%d' % (XC, o, XB)] + ['v_add_u32 v%d, %d, v%d' % (YC + t, o, YB + t) for t in range(nya)]
    if DEFER:
        s0_ = nst - DEFER
        c0, c1 = dcols
        y0 = NU % 2
        for n_ in range(DEFER):
            par = ((1 + n_) % 2, (y0 + n_) % 2, c0)
            if n_ < DEFER - 1:
                for x in addr_for(s0_ + n_ + 1): k.e(x)
                rs = reads(0, (par[0] ^ 1, par[1] ^ 1, c0))
            else: rs = []
            if not RM[0] or (n_ == 0 and JG == 1): k.e('s_waitcnt lgkmcnt(0)')
            if n_ < DEFER - 1: k.e('s_barrier')
            unit(0, False, rs, par, [])
        def deferred():
            for x in addr_for(s0_): k.e(x)
            for r in reads(0, (0, 0, c1)): k.e(r)
            for n_ in range(DEFER):
                par = (n_ % 2, n_ % 2, c1)
                if n_ < DEFER - 1:
                    for x in addr_for(s0_ + n_ + 1): k.e(x)
                    rs = reads(0, (par[0] ^ 1, par[1] ^ 1, c1))
                else: rs = []
                if not RM[0] or n_ == DEFER - 1: k.e('s_waitcnt lgkmcnt(0)')
                if n_ == DEFER - 1: k.e('s_barrier')
                unit(0, False, rs, par, [])
            k.e('s_nop 7')
        g.deferred = deferred
    else:
        g.deferred = None
        stage(False, True, 1)
    mark(k, 2)
    if M16:
        k.e('s_nop 7')
        if not lazyfix:
            for j in range(nb):
                for i in range(mb): fix(i, j)
            k.e('s_nop 1')
    epi(g)
    if not selfsig:
        if g.LE == 1 and not getattr(g, 'ended', 0): k.e('s_barrier')
        signal(k, 'C')
        if g.LE == 2: k.e('s_barrier')
    if side:
        endpgm(k)
        k.label('L_%s_pf' % name)
        k.e('s_sub_u32 s30, s2, %d' % (GM * GN))
        k.e('s_cmp_ge_u32 s30, %d' % side[0])
        k.e('s_cbranch_scc1 L_%s_pfe' % name)
        side[1](k, 0 if solo else AUX_B + 4096)
        k.label('L_%s_pfe' % name)
        signal(k, 'A')
    if pf:
        endpgm(k)
        k.label('L_%s_pf' % name)
        npf = 256 - GM * GN
        per_wg = SIZES[pf] // npf
        assert per_wg % (8192 * 2) == 0
        k.e('s_sub_u32 s30, s2, %d' % (GM * GN))
        k.e('s_mul_i32 s30, s30, %d' % per_wg)
        if env('PFOFF', 0): k.e('s_mov_b32 s30, 0x40000000')
        k.e('v_lshlrev_b32 v2, 4, v0')
        k.e('s_mov_b32 s31, %d' % (per_wg // 16384))
        k.e('s_waitcnt lgkmcnt(0)')
        srd(k, 32, pf)
        k.label('L_%s_pfl' % name)
        k.e('buffer_load_dwordx4 v[8:11], v2, s[32:35], s30 offen')
        k.e('s_add_u32 s30, s30, 8192')
        k.e('buffer_load_dwordx4 v[12:15], v2, s[32:35], s30 offen')
        k.e('s_add_u32 s30, s30, 8192')
        k.e('s_waitcnt vmcnt(6)')
        k.e('s_sub_u32 s31, s31, 1')
        k.e('s_cmp_lg_u32 s31, 0')
        k.e('s_cbranch_scc1 L_%s_pfl' % name)
        if env('L2W', 0): l2warm(k)
        signal(k, 'A')
    finish(k)
    assert g.free <= 256, g.free
    k.need(g.free, max(NS * STAGE, g.AUX + auxsz, (AUX_B + 12288) if side and not solo else 0))

def l2warm(k):
    k.e("""
    s_sub_u32 s30, s2, 224
    s_lshr_b32 s30, s30, 3             ; helper index
    s_and_b32 s31, s2, 3
    s_lshl_b32 s31, s31, 2
    s_add_u32 s31, s31, s30
    s_lshl_b32 s31, s31, 19            ; 128 rows * 4KB
    s_mov_b32 s44, %d
    """ % 32)
    if env('L2W', 0) & 1:
        srd(k, 32, 'w_sp')
        k.label('L_l2x')
        k.e("""
        buffer_load_dwordx4 v[8:11], v2, s[32:35], s31 offen
        s_add_u32 s31, s31, 8192
        buffer_load_dwordx4 v[12:15], v2, s[32:35], s31 offen
        s_add_u32 s31, s31, 8192
        s_waitcnt vmcnt(6)
        s_sub_u32 s44, s44, 1
        s_cmp_lg_u32 s44, 0
        s_cbranch_scc1 L_l2x
        """)
    if env('L2W', 0) & 2:
        handoff(k, 's_bfe_u32 s100, s2, 0x10002\ns_mul_i32 s100, s100, 7\ns_min_u32 s101, s3, 6\ns_add_u32 s100, s100, s101\ns_lshl_b32 s100, s100, 8\ns_add_u32 s100, s100, %d' % FL_WIN, 64, role='W', slp=8)
        k.e('s_barrier')
        srd(k, 32, 'ws', WS_Z2N, ZSZ)
        k.e("""
        s_add_u32 s44, s30, %d             ; first row block
        s_mul_i32 s31, s44, %d
        s_bfe_u32 s45, s2, 0x10002
        s_mul_i32 s45, s45, %d
        s_add_u32 s31, s31, s45
        L_l2y:
        """ % (2 * env('L2S', 3), 112 * KB, 56 * KB))
        for q in range(7):
            k.e('s_add_u32 s45, s31, %d' % (q * 8192))
            k.e('buffer_load_dwordx4 v[8:11], v2, s[32:35], s45 offen sc1')
        k.e("""
        s_waitcnt vmcnt(7)
        s_add_u32 s31, s31, %d
        s_add_u32 s44, s44, 4
        s_cmp_lt_u32 s44, 64
        s_cbranch_scc1 L_l2y
        """ % (4 * 112 * KB))

def alloc(g, n, align=4):
    b = (g.free + align - 1) // align * align
    g.free = b + n
    return b
def nop(g): pass

def store_xf_tile(g, a, T, voff, srdn, soff, imm):
    k = g.k
    for d in range(8):
        k.e('v_cvt_pk_bf16_f32 v%d, v%d, v%d' % (T + d, a + 2 * d, a + 2 * d + 1))
    if os.environ.get('SDATA') == 'zero' and k.c.name == 'qkv':
        for d in range(8): k.e('v_mov_b32 v%d, 0' % (T + d))
    if os.environ.get('SDATA') == 'rand' and k.c.name == 'qkv':
        import random
        for d in range(8):
            k.e('s_mul_i32 s68, s2, %d' % (random.getrandbits(31) | 1))
            k.e('v_add_u32 v%d, s68, v0' % (T + d))
            k.e('s_mov_b32 s69, %d' % (random.getrandbits(31) | 1))
            k.e('v_mul_lo_u32 v%d, v%d, s69' % (T + d, T + d))
            k.e('v_and_b32 v%d, 0xbfffbfff, v%d' % (T + d, T + d))
    if env('PACE', -1) >= 0: k.e('s_waitcnt vmcnt(%d)' % env('PACE', -1))
    k.e('buffer_store_dwordx4 %s, v%d, %s, %s offen offset:%d%s' % (vr(T, 4), voff, sr(srdn), soff, imm, WT))
    k.e('buffer_store_dwordx4 %s, v%d, %s, %s offen offset:%d%s' % (vr(T + 4, 4), voff, sr(srdn), soff, imm + 1024, WT))

def pk(op, d, *src, sel=None):
    s = 'v_pk_%s_f32 %s' % (op, vr(d, 2))
    hi = []
    for x in src:
        if isinstance(x, int): s += ', ' + vr(x, 2); hi.append(1)
        elif isinstance(x, tuple): s += ', ' + vr(x[0], 2); hi.append(0)
        elif x.startswith('s['): s += ', ' + x; hi.append(1)
        else: s += ', ' + x; hi.append(0)
    if 0 in hi: s += ' op_sel_hi:[%s]' % ','.join(map(str, hi))
    return s

def proj_wpre(wname, V, nw, wave):
    n = 16 // nw
    def setup(k):
        srd(k, 64, wname)
        k.e("""
        s_and_b32 s68, s2, 3
        s_lshl_b32 s68, s68, 3
        s_bfe_u32 s69, s2, 0x20003
        s_lshl_b32 s69, s69, 1
        s_add_u32 s68, s68, s69
        s_bfe_u32 s69, s2, 0x10005
        s_add_u32 s68, s68, s69            ; tm
        s_bfe_u32 s69, s2, 0x10002
        s_lshl_b32 s69, s69, 2
        s_lshr_b32 s70, s2, 6
        s_add_u32 s69, s69, s70            ; tn
        s_add_u32 s68, s68, s69            ; rotation
        s_lshl_b32 s69, s69, 8
        s_mul_i32 s70, %s, %d
        s_add_u32 s69, s69, s70
        s_mul_i32 s70, %s, %d              ; LDS offset of this wave's pieces
        v_lshrrev_b32 v%d, 5, v1
        v_lshlrev_b32 v%d, 13, v%d
        v_bfe_u32 v%d, v1, 2, 2
        v_lshl_add_u32 v%d, v%d, 11, v%d
        v_bfe_u32 v%d, v1, 4, 1
        v_lshl_add_u32 v%d, v%d, 6, v%d
        v_lshrrev_b32 v%d, 4, v1
        v_and_b32 v%d, 2, v%d
        v_xor_b32 v%d, v1, v%d
        v_and_b32 v%d, 3, v%d
        v_lshl_add_u32 v%d, v%d, 4, v%d
        v_add_u32 v%d, s69, v%d
        """ % (wave, n // 2 * 8 * 2048, wave, n * 1024, V, V, V, V + 1, V, V + 1, V, V + 1, V, V + 1, V, V + 1, V + 1, V + 1, V + 1, V + 1, V + 1, V + 1, V, V + 1, V, V, V))
        for j in range(1, n): k.e('v_add_u32 v%d, %d, v%d' % (V + j, (j // 2) * 8 * 2048 + (j % 2) * 128, V))
    def pieces(st):
        o = ['s_add_u32 s71, s68, %d\ns_and_b32 s71, s71, 3\ns_add_u32 s71, s71, %d\ns_lshl_b32 s71, s71, 17' % (st, st // 4 * 4)]
        for j in range(n):
            o.append('s_add_u32 m0, s70, %d' % (st * 16384 + j * 1024))
            o.append('buffer_load_dwordx4 v%d, s[64:67], s71 offen lds' % (V + j))
        return o
    return setup, pieces

def k_qkv(k, c):
    def pre(g):
        k = g.k
        srd(k, 32, 'ws', WS_Q, 4 * MB); srd(k, 36, 'ws', WS_KV, 8 * MB)
        g.L16 = alloc(g, 1, 1); g.LV16 = alloc(g, 1, 1)
        k.e('v_lshlrev_b32 v%d, 4, v1' % g.L16)
        if g.M16:
            k.e('v_and_b32 v5, 3, v1')
            k.e('v_lshl_add_u32 v5, v4, 4, v5')
            k.e('v_bfe_u32 v6, v1, 2, 1')
            k.e('v_lshl_add_u32 v5, v6, 3, v5')
            k.e('v_bfe_u32 v6, v1, 3, 1')
            k.e('v_lshl_add_u32 v5, v6, 2, v5')
            k.e('v_bfe_u32 v6, v1, 4, 1')
            k.e('v_lshl_add_u32 v5, v6, 5, v5')
            k.e('v_lshlrev_b32 v%d, 4, v5' % g.LV16)
        else: k.e('v_mov_b32 v%d, v%d' % (g.LV16, g.L16))
        k.e('''
        s_lshl_b32 s60, s31, 1
        s_add_u32 s60, s60, s51
        s_lshl_b32 s60, s60, 6
        s_lshl_b32 s61, s30, 2
        s_add_u32 s60, s60, s61
        s_lshl_b32 s61, s50, 1
        s_add_u32 s60, s60, s61           ; head*64 + rb0
        s_lshl_b32 s61, s60, 11           ; Q offset
        s_lshl_b32 s62, s60, 12           ; KV offset
        s_add_u32 s63, s62, 4096
        s_mov_b32 s66, %s
        s_mov_b32 s67, %s
        ''' % ((hx(32 ** -0.5 * LOG2E * float(os.environ.get('QERR', '1'))),) * 2))
    def epi(g):
        k = g.k
        T = g.FR
        k.e('s_nop 7')
        n = 0
        for i in range(2):
            a = g.acc(i, 0)
            for r in range(0, 16, 2): k.e(pk('mul', a + r, a + r, 's[66:67]'))
            store_xf_tile(g, a, T + 8 * n, g.L16, 32, 's61', i * 2048); n += 1
        for j in (1, 2):
            for i in range(2):
                store_xf_tile(g, g.acc(i, j), T + 8 * (n % 5), g.L16 if j == 1 else g.LV16, 36, 's62' if i == 0 else 's63', (j - 1) * 2048); n += 1
    QSP = env('QSP', 0)
    def epi2(g):
        k = g.k
        T = g.FR
        KP = [g.acc(0, 1), g.acc(1, 1)]; VP = [g.acc(0, 2), g.acc(1, 2)]; QP = [g.acc(0, 0), g.acc(1, 0)]
        for j in (1, 2):
            for i in range(2):
                g.fix(i, j)
                k.e('s_nop 0')
                store_xf_tile(g, g.acc(i, j), g.acc(i, j), g.L16 if j == 1 else g.LV16, 36, 's62' if i == 0 else 's63', (j - 1) * 2048)
        if g.deferred:
            g.deferred()
            if env('QSIG', 1): signal(k, 'C')
        for i in range(2):
            a = g.acc(i, 0)
            g.fix(i, 0)
            k.e('s_nop 0')
            for r in range(0, 16, 2): k.e(pk('mul', a + r, a + r, 's[66:67]'))
            for d in range(8): k.e('v_cvt_pk_bf16_f32 v%d, v%d, v%d' % (a + d, a + 2 * d, a + 2 * d + 1))
        if QSP == 1: signal(k, 'C')
        k.e('s_mul_i32 s68, s46, 5120')
        k.e('s_add_u32 s68, s68, %d' % AUX_A)
        k.e('v_add_u32 v5, s68, v%d' % g.L16)
        Sreg = [T, T + 16, T + 32, T + 48]
        for qi in range(2):
            for ki in range(2):
                S_ = Sreg[2 * qi + ki]
                k.e('v_mfma_f32_32x32x16_bf16 %s, %s, %s, 0' % (vr(S_, 16), vr(KP[ki], 4), vr(QP[qi], 4)))
                k.e('v_mfma_f32_32x32x16_bf16 %s, %s, %s, %s' % (vr(S_, 16), vr(KP[ki] + 4, 4), vr(QP[qi] + 4, 4), vr(S_, 16)))
        for q in range(4): k.e('ds_write_b128 v5, %s offset:%d' % (vr(QP[q // 2] + 4 * (q % 2), 4), q * 1024))
        if AOWN:
            k.e('s_lshl_b32 s69, s46, 15')
            k.e('v_add_u32 v6, s69, v%d' % g.L16)
            k.e('v_add_u32 v7, s69, v%d' % g.LV16)
            for i in range(2):
                for hh in range(2):
                    k.e('ds_write_b128 v6, %s offset:%d' % (vr(KP[i] + 4 * hh, 4), i * 4096 + hh * 1024))
                    k.e('ds_write_b128 v7, %s offset:%d' % (vr(VP[i] + 4 * hh, 4), i * 4096 + 2048 + hh * 1024))
        k.e('v_lshl_add_u32 v5, v1, 3, s68')
        if QSP == 2: signal(k, 'C')
        k.e('s_nop 7')
        MM = T + 64
        for qi in range(2):
            a0, a1 = Sreg[2 * qi], Sreg[2 * qi + 1]
            k.e('v_max_f32 v%d, v%d, v%d' % (MM + qi, a0, a1))
            for r in range(1, 16): k.e('v_max3_f32 v%d, v%d, v%d, v%d' % (MM + qi, MM + qi, a0 + r, a1 + r))
        for qi in range(2): k.e('v_mov_b32 v%d, v%d' % (MM + 2 + qi, MM + qi))
        k.e('s_nop 1')
        for qi in range(2): k.e('v_permlane32_swap_b32 v%d, v%d' % (MM + qi, MM + 2 + qi))
        k.e('s_nop 1')
        for qi in range(2): k.e('v_max_f32 v%d, v%d, v%d' % (MM + qi, MM + qi, MM + 2 + qi))
        for qi in range(2): k.e('v_sub_f32 v%d, %s, v%d' % (MM + qi, hx(-40.0), MM + qi))
        k.e('ds_write_b64 v5, %s offset:4096' % vr(MM, 2))
        k.e('s_waitcnt lgkmcnt(0)')
    sig = 's_lshl_b32 s100, s31, 8\ns_lshl_b32 s101, s30, 4\ns_add_u32 s100, s100, s101\ns_add_u32 s100, s100, %d' % FL_QKV
    wait = ('s_lshl_b32 s100, s30, 8\ns_add_u32 s100, s100, %d' % FL_LN1, 8)
    k_gemm(k, c, 16, 16, 3, 1, 4, 128, 192, 2, 2, 1024, 32, 4, ('xt', WS_N, 1024) if XT else ('xf', WS_H, 1024), ('w', 'wqkv', 6144, 'qkv'), pre, nop, epi2 if AT2 else epi, selfsig=bool(AT2 and (QSP or AOWN == 1 or (env('DEFER_qkv', 0) and env('QSIG', 1)))), lazyfix=bool(AT2), DEFER=0, dcols=([1, 2], [0]), swap=(2,), wait=wait, sig=sig, RWD=4, SOFT=4)

def k_proj(k, c, K, X, wname, final):
    NQ = 2 if MP0 else 4
    EARLYV = MP0 and env('EARLYV', 1)
    def modq_loads(k):
        for q in range(NQ):
            k.e('s_add_u32 s62, s69, %d' % (q * 16384))
            k.e('s_add_u32 s63, s70, %d' % (q * 16384))
            k.e('buffer_load_dwordx4 %s, v7, s[64:67], s62 offen sc1' % vr(24 + 4 * q, 4))
            k.e('buffer_load_dword v%d, v6, s[64:67], s63 offen sc1' % (40 + q))
    def aux(g):
        k = g.k
        if final:
            srd(k, 40, 'ws', WS_MOD, 6144 * 4)
            k.e('''
            v_and_b32 v7, 31, v1
            v_lshlrev_b32 v7, 4, v7
            s_lshl_b32 s62, s31, 9
            s_add_u32 s62, s62, %d
            buffer_load_dwordx4 v[24:27], v7, s[40:43], s62 offen sc1
            ''' % (5 * 4096))
            return 1
        srd(k, 64, 'ws', 0, 256 * KB)
        k.e('''
        v_and_b32 v2, 31, v1
        v_lshrrev_b32 v3, 5, v1
        v_lshlrev_b32 v2, 4, v2
        v_lshl_add_u32 v2, v3, 13, v2
        s_lshl_b32 s62, s31, 9
        s_add_u32 s62, s62, %d
        v_and_b32 v6, 15, v1
        v_lshlrev_b32 v6, 2, v6
        s_lshl_b32 s68, s2, 6
        s_add_u32 s63, s68, %d
        s_mov_b32 s69, s62
        s_mov_b32 s70, s63
        v_mov_b32 v7, v2
        ''' % (WS_MODQ, WS_MODQ))
        modq_loads(k)
        return xtile(g) + 2 * NQ
    def xtile(g):
        k = g.k
        srd(k, 40, 'x')
        k.e('''
        v_lshrrev_b32 v2, 4, v1
        v_and_b32 v3, 15, v1
        s_lshl_b32 s62, s30, 17            ; tm*64*2048
        s_lshl_b32 s63, s31, 8
        s_add_u32 s62, s62, s63
        s_lshl_b32 s63, s46, 15            ; lw*16 rows
        s_add_u32 s62, s62, s63
        s_lshl_b32 s63, s46, 12
        s_add_u32 s63, s63, %d
        ''' % g.AUX)
        for j in range(4):
            k.e('v_add_u32 v4, %d, v2' % (4 * j))
            k.e('v_xor_b32 v5, v4, v3')
            k.e('v_lshlrev_b32 v5, 4, v5')
            k.e('v_lshl_add_u32 v5, v4, 11, v5')
            k.e('s_add_u32 m0, s63, %d' % (j * 1024))
            k.e('s_nop 0')
            k.e('buffer_load_dwordx4 v5, s[40:43], s62 offen lds')
        return 4
    def aux_end(g):
        k = g.k
        lp = k.newlabel('mqp'); lc = k.newlabel('mqc')
        if final:
            poll_init(k)
            k.e('s_branch %s' % lc)
            k.label(lp)
            k.e('buffer_load_dwordx4 v[24:27], v7, s[40:43], s62 offen sc1')
            k.e('s_waitcnt vmcnt(0)')
            k.label(lc)
            k.e('v_max3_u32 v2, v24, v25, v26')
            k.e('v_max_u32 v2, v2, v27')
            k.e('v_cmp_eq_u32 vcc, -1, v2')
            poll_back(k, lp)
            k.e('v_add_u32 v2, %d, v7' % (g.AUX + 16 * KB))
            k.e('ds_write_b128 v2, v[24:27]')
            k.e('s_waitcnt lgkmcnt(0)')
            return
        if MP0:
            k.e('v_cmp_lt_u32 vcc, 31, v1')
            k.e(pk('add', 24, 24, 28)); k.e(pk('add', 26, 26, 30))
            k.e('v_add_f32 v40, v40, v41')
        else:
            poll_init(k)
            k.e('s_branch %s' % lc)
            k.label(lp)
            modq_loads(k)
            k.e('s_waitcnt vmcnt(0)')
            k.label(lc)
            k.e('v_max_u32 v2, v24, v25')
            for r in range(26, 44, 2): k.e('v_max3_u32 v2, v2, v%d, v%d' % (r, r + 1))
            k.e('v_cmp_eq_u32 vcc, -1, v2')
            poll_back(k, lp)
            k.e(pk('add', 24, 24, 28)); k.e(pk('add', 26, 26, 30)); k.e(pk('add', 32, 32, 36)); k.e(pk('add', 34, 34, 38))
            k.e(pk('add', 24, 24, 32)); k.e(pk('add', 26, 26, 34))
            k.e('v_cmp_lt_u32 vcc, 31, v1')
            k.e('v_add_f32 v40, v40, v41')
            k.e('v_add_f32 v42, v42, v43')
            k.e('v_add_f32 v40, v40, v42')
        k.e('v_cndmask_b32 v7, 0, 1.0, vcc')
        for d in range(2): round_bf16_pair(k, 24 + 2 * d, 25 + 2 * d, 28)
        for e in range(4): k.e('v_add_f32 v%d, v7, v%d' % (24 + e, 24 + e))
        for d in range(2): round_bf16_pair(k, 24 + 2 * d, 25 + 2 * d, 28)
        k.e('v_lshlrev_b32 v2, 4, v1')
        k.e('v_add_u32 v2, %d, v2' % (g.AUX + 16 * KB))
        k.e('ds_write_b128 v2, v[24:27]')
        k.e("""
        s_lshr_b32 s62, s2, 6
        s_cmp_eq_u32 s62, 2
        s_cselect_b32 s62, 1.0, 0
        v_cvt_pk_bf16_f32 v40, v40, v40
        v_lshlrev_b32 v40, 16, v40
        v_add_f32 v40, s62, v40
        v_cvt_pk_bf16_f32 v40, v40, v40
        v_lshlrev_b32 v40, 16, v40
        s_add_u32 s68, s68, 8192
        v_cmp_gt_u32 vcc, 16, v0
        s_and_saveexec_b64 s[62:63], vcc
        buffer_store_dword v40, v6, s[64:67], s68 offen%s
        s_mov_b64 exec, s[62:63]
        s_waitcnt lgkmcnt(0)
        """ % WT)
    def pre(g):
        k = g.k
        g.L16 = alloc(g, 1, 1); g.RA = alloc(g, 1, 1); g.CA = alloc(g, 1, 1); g.TA = alloc(g, 1, 1)
        g.RES = alloc(g, 16); g.GA = alloc(g, 32); g.G2 = alloc(g, 32) if not final else None
        srd(k, 36, 'ws', WS_X1, 8 * MB)
        if final: srd(k, 32, 'out')
        else: srd(k, 32, 'ws', WS_ST1, 256 * KB)
        k.e('v_lshlrev_b32 v%d, 4, v1' % g.L16)
        k.e('''
        s_lshl_b32 s60, s31, 7
        s_lshl_b32 s61, s51, 6
        s_add_u32 s60, s60, s61           ; col0
        s_lshl_b32 s61, s30, 1
        s_add_u32 s61, s61, s50           ; rb
        s_lshl_b32 s62, s61, 16
        s_lshl_b32 s63, s60, 1
        s_add_u32 s63, s63, s62           ; row-major byte offset of (row0,col0)
        s_lshl_b32 s64, s60, 6
        s_add_u32 s64, s64, s62           ; XF offset
        s_add_u32 s65, s64, %d            ; X1S offset
        ; tile image address: row*256 + ((wn*8) ^ (row%%16))*16 + h*8
        s_lshl_b32 s66, s50, 13
        s_add_u32 s66, s66, %d
        v_and_b32 v5, 15, v3
        s_lshl_b32 s67, s51, 3
        v_xor_b32 v5, s67, v5
        v_lshlrev_b32 v5, 4, v5
        v_lshl_add_u32 v5, v3, 8, v5
        v_lshl_add_u32 v5, v4, 3, v5
        v_add_u32 v%d, s66, v5
        ; column vector address: wn*256 + h*16
        s_lshl_b32 s67, s51, 8
        s_add_u32 s67, s67, %d
        v_lshl_add_u32 v%d, v4, 4, s67
        ''' % (4 * MB, g.AUX, g.RA, g.AUX + 16 * KB, g.CA))
    KX = same_kernel('wo', 'wout') and env('KEEPX', 1)
    def early(g):
        k = g.k
        if EARLYV:
            A_ = g.GA; V_ = g.RES
            l = k.newlabel('ev')
            k.e('s_cmp_lg_u32 s46, 1'); k.e('s_cbranch_scc1 %s' % l)
            srd(k, 80, 'ws', 0, 256 * KB)
            k.e('''
            v_lshlrev_b32 v%d, 4, v3
            v_lshl_add_u32 v%d, v4, 13, v%d
            s_lshl_b32 s68, s31, 9
            s_add_u32 s68, s68, %d
            s_add_u32 s69, s68, 16384
            buffer_load_dwordx4 %s, v%d, s[80:83], s68 offen sc1
            buffer_load_dwordx4 %s, v%d, s[80:83], s69 offen sc1
            ''' % (V_, V_, V_, WS_MODQ + (3 * 4096 if final else 0), vr(A_, 4), V_, vr(A_ + 4, 4), V_))
            if not final:
                k.e('''
                v_and_b32 v%d, 15, v1
                v_lshlrev_b32 v%d, 2, v%d
                s_lshl_b32 s70, s2, 6
                s_add_u32 s68, s70, %d
                s_add_u32 s69, s68, 16384
                buffer_load_dword v%d, v%d, s[80:83], s68 offen sc1
                buffer_load_dword v%d, v%d, s[80:83], s69 offen sc1
                ''' % (V_ + 1, V_ + 1, V_ + 1, WS_MODQ, A_ + 8, V_ + 1, A_ + 9, V_ + 1))
            k.e('v_cvt_f32_u32 v%d, v4' % (V_ + 2))
            k.e('v_add_u32 v%d, %d, v%d' % (V_ + 3, g.AUX + 16 * KB, g.L16))
            k.e('s_waitcnt vmcnt(0)')
            k.e(pk('add', A_, A_, A_ + 4)); k.e(pk('add', A_ + 2, A_ + 2, A_ + 6))
            for d in range(2): round_bf16_pair(k, A_ + 2 * d, A_ + 1 + 2 * d, A_ + 4)
            for e in range(4): k.e('v_add_f32 v%d, v%d, v%d' % (A_ + e, V_ + 2, A_ + e))
            for d in range(2): round_bf16_pair(k, A_ + 2 * d, A_ + 1 + 2 * d, A_ + 4)
            k.e('ds_write_b128 v%d, %s' % (V_ + 3, vr(A_, 4)))
            if not final:
                F = A_ + 8
                k.e('''
                s_lshr_b32 s68, s2, 6
                s_cmp_eq_u32 s68, 2
                s_cselect_b32 s68, 1.0, 0
                v_add_f32 v%d, v%d, v%d
                v_cvt_pk_bf16_f32 v%d, v%d, v%d
                v_lshlrev_b32 v%d, 16, v%d
                v_add_f32 v%d, s68, v%d
                v_cvt_pk_bf16_f32 v%d, v%d, v%d
                v_lshlrev_b32 v%d, 16, v%d
                s_add_u32 s70, s70, 8192
                s_mov_b64 exec, 0xffff
                buffer_store_dword v%d, v%d, s[80:83], s70 offen%s
                s_mov_b64 exec, -1
                ''' % (F, F, F + 1, F, F, F, F, F, F, F, F, F, F, F, F, F, V_ + 1, WT))
            k.e('s_waitcnt lgkmcnt(0)')
            k.label(l)
            return
        if final or MP0: return
        D = g.GA; MC = g.RES; MT = g.RES + 8
        k.e('s_lshl_b32 s68, s46, 13')
        k.e('s_add_u32 s68, s68, %d' % AUX_A)
        k.e('v_add_u32 v%d, s68, v%d' % (MT, g.L16))
        for j in range(8): k.e('ds_read_b128 %s, v%d offset:%d' % (vr(D + 4 * j, 4), MT, j * 1024))
        for j in range(8):
            k.e('s_waitcnt lgkmcnt(%d)' % (7 - j))
            for d in range(4):
                unpack(k, MT, MT + 1, D + 4 * j + d)
                op = 'v_mul_f32' if j == 0 else 'v_fmac_f32'
                k.e('%s v%d, v%d, v%d' % (op, MC + 2 * d, MT, MSV + j))
                k.e('%s v%d, v%d, v%d' % (op, MC + 2 * d + 1, MT + 1, MSV + j))
        k.e('s_nop 1')
        for e in range(4): k.e('v_permlane32_swap_b32 v%d, v%d' % (MC + e, MC + 4 + e))
        k.e('s_nop 1')
        for e in range(4): k.e('v_add_f32 v%d, v%d, v%d' % (MC + e, MC + e, MC + 4 + e))
        k.e('s_nop 1')
        for e in range(2): k.e('v_permlane16_swap_b32 v%d, v%d' % (MC + e, MC + 2 + e))
        k.e('s_nop 1')
        for e in range(2): k.e('v_add_f32 v%d, v%d, v%d' % (MC + e, MC + e, MC + 2 + e))
        k.e('s_nop 1')
        for e in range(2): k.e('v_add_f32_dpp v%d, v%d, v%d row_ror:8 row_mask:0xf bank_mask:0xf' % (MC + e, MC + e, MC + e))
        k.e('''
        v_and_b32 v%d, 7, v1
        v_lshlrev_b32 v%d, 5, v%d
        v_lshrrev_b32 v%d, 4, v1
        v_lshl_add_u32 v%d, v%d, 3, v%d
        v_add_u32 v%d, s68, v%d
        ds_write_b64 v%d, %s
        s_waitcnt lgkmcnt(0)
        ''' % (MT, MT, MT, MT + 1, MT, MT + 1, MT, MT, MT, MT, vr(MC, 2)))
    def pre2(g):
        k = g.k
        if not final and not MP0:
            MC = g.RES; MT = g.RES + 8
            l = k.newlabel('noC')
            k.e('s_cmp_lg_u32 s46, 1')
            k.e('s_cbranch_scc1 %s' % l)
            srd(k, 80, 'ws', 0, 256 * KB)
            k.e('v_lshlrev_b32 v%d, 2, v1' % (MT + 1))
            k.e('v_add_u32 v%d, %d, v%d' % (MT, AUX_A, MT + 1))
            for w in range(4): k.e('ds_read_b32 v%d, v%d offset:%d' % (MC + w, MT, w * 8192))
            k.e('''
            s_and_b32 s68, s2, 3
            s_lshl_b32 s68, s68, 14
            s_lshr_b32 s69, s2, 2
            s_lshl_b32 s69, s69, 8
            s_add_u32 s68, s68, s69
            s_add_u32 s68, s68, %d
            s_waitcnt lgkmcnt(0)
            v_add_f32 v%d, v%d, v%d
            v_add_f32 v%d, v%d, v%d
            v_add_f32 v%d, v%d, v%d
            v_min_u32 v%d, -2, v%d
            buffer_store_dword v%d, v%d, s[80:83], s68 offen sc1
            ''' % (WS_MODQ, MC, MC, MC + 1, MC + 2, MC + 2, MC + 3, MC, MC, MC + 2, MC, MC, MC, MT + 1))
            k.label(l)
        if final and not KX:
            for j in range(2):
                for t in range(2):
                    k.e('buffer_load_dwordx4 %s, v%d, s[36:39], s64 offen offset:%d sc1' % (vr(g.RES + 8 * j + 4 * t, 4), g.L16, (2 * j + t) * 1024))
    PL = env('PRELAST', 1)
    def operands(g):
        k = g.k
        for j in range(2):
            for q in range(4):
                k.e('ds_read_b128 %s, v%d offset:%d' % (vr(g.GA + 16 * j + 4 * q, 4), g.CA, j * 128 + q * 32))
        if not final or KX:
            for j in range(2):
                for q in range(4):
                    k.e('v_xor_b32 v%d, %d, v%d' % (g.TA, (j * 4 + q) * 16, g.RA))
                    k.e('ds_read_b64 %s, v%d' % (vr(g.RES + 8 * j + 2 * q, 2), g.TA))
        if not final:
            for j in range(2):
                for q in range(4):
                    k.e('ds_read_b128 %s, v%d offset:%d' % (vr(g.G2 + 16 * j + 4 * q, 4), g.CA, 512 + j * 128 + q * 32))
    def epi(g):
        k = g.k
        assert g.M16
        if not PL: operands(g)
        k.e('s_waitcnt lgkmcnt(0)' if (KX or not final) else 's_waitcnt vmcnt(0) lgkmcnt(0)')
        T = g.FR
        for j in range(2):
            a = g.acc(0, j)
            for d in range(8):
                unpack(k, T + 2 * (d % 4), T + 2 * (d % 4) + 1, g.RES + 8 * j + d)
                k.e(pk('fma', a + 2 * d, a + 2 * d, g.GA + 16 * j + 2 * d, T + 2 * (d % 4)))
            if not final:
                if j == 0: k.e('s_waitcnt lgkmcnt(0)')
                for d in range(8): k.e(pk('mul', g.G2 + 16 * j + 2 * d, a + 2 * d, g.G2 + 16 * j + 2 * d))
                store_xf_tile(g, g.G2 + 16 * j, g.GA + 16 * j, g.L16, 36, 's65', j * 2048)
        def keep():
            for j in range(2):
                a = g.acc(0, j)
                if final or KX:
                    for d in range(8):
                        k.e('v_cvt_pk_bf16_f32 v%d, v%d, v%d' % (g.RES + 8 * j + d, a + 2 * d, a + 2 * d + 1))
                    for q in range(4):
                        k.e('v_xor_b32 v%d, %d, v%d' % (g.TA, (j * 4 + q) * 16, g.RA))
                        k.e('ds_write_b64 v%d, %s' % (g.TA, vr(g.RES + 8 * j + 2 * q, 2)))
                else:
                    store_xf_tile(g, a, g.RES + 8 * j, g.L16, 36, 's64', j * 2048)
        if final: keep()
        if final:
            k.e('''
            v_lshrrev_b32 v5, 3, v1
            v_and_b32 v6, 7, v1
            s_lshl_b32 s67, s51, 3
            v_or_b32 v7, s67, v6
            v_xor_b32 v7, v7, v5
            v_lshlrev_b32 v7, 4, v7
            v_lshl_add_u32 v7, v5, 8, v7
            v_add_u32 v7, s66, v7              ; b=0 address
            v_xor_b32 v%d, 128, v7             ; rows 8..15: slot ^ 8
            v_lshlrev_b32 v5, 11, v5
            v_lshl_add_u32 v5, v6, 4, v5       ; global: row*2048 + c*16
            s_waitcnt lgkmcnt(0)
            ''' % g.TA)
            for b in range(4):
                k.e('ds_read_b128 %s, v%d offset:%d' % (vr(g.GA + 4 * b, 4), 7 if b % 2 == 0 else g.TA, b * 2048))
            for b in range(4):
                k.e('s_waitcnt lgkmcnt(%d)' % (3 - b))
                k.e('buffer_store_dwordx4 %s, v5, s[32:35], s63 offen%s' % (vr(g.GA + 4 * b, 4), os.environ.get('OUTFLAG', ' sc1')))
                k.e('s_add_u32 s63, s63, %d' % (8 * 2048))
            l = k.newlabel('ep')
            k.e('s_or_b32 s67, s2, s46')
            k.e('s_cbranch_scc1 %s' % l)
            srd(k, 96, 'ws', WS_EPOCH, 8)
            k.e('v_mov_b32 v%d, s84' % FV); k.e('v_mov_b32 v%d, s85' % (FV + 1)); k.e('v_mov_b32 v%d, 0' % (FV + 2))
            flag_store(k, '0')
            k.label(l)
        else:
            S1 = T + 8; S2 = T + 10
            a0 = g.acc(0, 0)
            k.e(pk('add', S1, a0, a0 + 2))
            k.e(pk('mul', S2, a0, a0))
            k.e(pk('fma', S2, a0 + 2, a0 + 2, S2))
            for r in range(4, 32, 2):
                k.e(pk('add', S1, S1, a0 + r))
                k.e(pk('fma', S2, a0 + r, a0 + r, S2))
            k.e('v_add_f32 v%d, v%d, v%d' % (S1, S1, S1 + 1))
            k.e('v_add_f32 v%d, v%d, v%d' % (S1 + 1, S2, S2 + 1))
            k.e('v_mov_b32 v%d, v%d' % (S2, S1))
            k.e('v_mov_b32 v%d, v%d' % (S2 + 1, S1 + 1))
            k.e('''
            s_lshl_b32 s66, s30, 4
            s_lshl_b32 s67, s31, 1
            s_add_u32 s66, s66, s67
            s_add_u32 s66, s66, s51
            s_lshl_b32 s66, s66, 9             ; (tm*16+part)*512
            s_lshl_b32 s67, s50, 8
            s_add_u32 s66, s66, s67
            v_lshlrev_b32 v5, 3, v3
            ''')
            k.e('v_permlane32_swap_b32 v%d, v%d' % (S1, S2))
            k.e('v_permlane32_swap_b32 v%d, v%d' % (S1 + 1, S2 + 1))
            k.e('s_nop 1')
            k.e(pk('add', S1, S1, S2))
            k.e('s_mov_b32 exec_hi, 0')
            k.e('buffer_store_dwordx2 %s, v5, s[32:35], s66 offen%s' % (vr(S1, 2), WT))
            k.e('s_mov_b32 exec_hi, -1')
            if g.LE == 1 and KX:
                k.e('s_barrier'); g.ended = 1
            keep()
            k.e('s_waitcnt lgkmcnt(0)')
    if final:
        sig = None
        wait = ('s_lshr_b32 s100, s30, 1\ns_lshl_b32 s100, s100, 8\ns_add_u32 s100, s100, %d' % FL_WSP, 56)
    else:
        sig = 's_lshr_b32 s100, s30, 1\ns_lshl_b32 s100, s100, 8\ns_and_b32 s101, s30, 1\ns_lshl_b32 s101, s101, 7\ns_add_u32 s100, s100, s101\ns_lshl_b32 s101, s31, 4\ns_add_u32 s100, s100, s101\ns_add_u32 s100, s100, %d' % FL_WO
        wait = ('s_lshr_b32 s100, s30, %d\ns_lshl_b32 s100, s100, 8\ns_add_u32 s100, s100, %d' % (1 if AT2 else 2, FL_ATT), 16 if AT2 else 32)
    geo = None
    if GEO: geo = (0, 6, 96 * KB, 4, (TPRE if final else APRE), 224 if final else 0)
    k_gemm(k, c, 32, 8, 3, 2, 4, 64, 128, 2, 2, K, 64, 4, X, ('w', wname, 2048, None), pre, pre2, epi, aux=None if EARLYV else aux, auxsz=17 * KB, auxbase=AUX_A, aux_end=None if EARLYV else aux_end,
           auxpre=xtile if EARLYV and not final else None, geo=geo, wait=wait, sig=sig, GU=2, RWD=4, early=early, altmap=True, prelast=operands if PL else None,
           own='s_lshr_b32 s68, s47, 2\ns_mul_i32 s68, s68, 7\ns_lshr_b32 s69, s48, 2\ns_add_u32 s68, s68, s69\ns_min_u32 s68, s68, 13\ns_lshl_b32 s68, s68, 1' if final else None, ownlim=224)

ZKEEP = 72
BSV = 244
MSV = 240
def stats_finish(k, S, n, R, M, T):
    k.e('v_mov_b32 v%d, v%d' % (T, S))
    k.e('v_mov_b32 v%d, v%d' % (T + 1, S + 1))
    k.e('s_nop 1')
    k.e('v_permlane32_swap_b32 v%d, v%d' % (S, T))
    k.e('v_permlane32_swap_b32 v%d, v%d' % (S + 1, T + 1))
    k.e('s_nop 1')
    k.e(pk('add', S, S, T))
    k.e('v_mul_f32 v%d, %s, v%d' % (S, hx(1.0 / n), S))
    k.e('v_mul_f32 v%d, v%d, v%d' % (T, S, S))
    k.e('v_mov_b32 v%d, %s' % (T + 1, hx(1.0 / n)))
    k.e('v_fma_f32 v%d, v%d, v%d, -v%d' % (S + 1, S + 1, T + 1, T))
    k.e('v_max_f32 v%d, 0, v%d' % (S + 1, S + 1))
    k.e('v_add_f32 v%d, %s, v%d' % (S + 1, hx(1e-5), S + 1))
    k.e('v_rsq_f32 v%d, v%d' % (R, S + 1))
    k.e('s_nop 0')
    k.e('v_mul_f32_e64 v%d, -v%d, v%d' % (M, S, R))

def uw_job(k, LB):
    k.e("""
    v_lshrrev_b32 v2, 3, v0
    v_and_b32 v3, 7, v0
    v_lshlrev_b32 v4, 6, v2
    s_mov_b32 s31, %d
    v_mul_lo_u32 v5, v2, s31
    v_lshl_add_u32 v5, v3, 4, v5
    s_movk_i32 s44, %d
    s_movk_i32 s45, %d
    s_lshl_b32 s30, s30, 1
    s_waitcnt lgkmcnt(0)
    """ % (16 * 7168, 4 * 4096, 3 * 4096))
    srd(k, 36, 'w_in'); srd(k, 40, 'ws', 0, 64 * KB)
    AV = 72; SV = 88; UA = 104; WA = 112
    lq = k.newlabel('uwq')
    poll_init(k)
    k.label(lq)
    for q in range(4): k.e('buffer_load_dwordx4 %s, v4, s[40:43], s44 offen offset:%d sc1' % (vr(AV + 4 * q, 4), q * 16))
    for q in range(4): k.e('buffer_load_dwordx4 %s, v4, s[40:43], s45 offen offset:%d sc1' % (vr(SV + 4 * q, 4), q * 16))
    if not k.c.first:
        k.e('s_waitcnt vmcnt(0)')
        k.e('v_max_u32 v6, v%d, v%d' % (AV, AV + 1))
        for r in range(AV + 2, AV + 32, 2): k.e('v_max3_u32 v6, v6, v%d, v%d' % (r, r + 1))
        k.e('v_cmp_eq_u32 vcc, -1, v6')
        poll_back(k, lq)
    k.e('s_mov_b32 s50, %d' % LB)
    lp = k.newlabel('uw')
    k.label(lp)
    k.e('s_lshl_b32 s31, s30, 7')
    for j in range(16):
        k.e('buffer_load_dwordx4 %s, v5, s[36:39], s31 offen' % vr(8 + 4 * j, 4))
        k.e('s_add_u32 s31, s31, 7168')
    for j in range(16):
        k.e('s_waitcnt vmcnt(%d)' % (15 - j))
        for d in range(4):
            unpack(k, 6, 7, 8 + 4 * j + d)
            for acc, cf in ((UA, AV), (WA, SV)):
                op = 'v_mul_f32' if j == 0 else 'v_fmac_f32'
                k.e('%s v%d, v6, v%d' % (op, acc + 2 * d, cf + j))
                k.e('%s v%d, v7, v%d' % (op, acc + 2 * d + 1, cf + j))
    red_lanes(k, list(range(UA, UA + 16)), list(range(8, 24)))
    lskip = k.newlabel('uwskip')
    k.e("""
    s_lshl_b32 s47, s46, 9
    s_add_u32 s47, s47, s50
    v_lshl_add_u32 v2, v3, 5, s47      ; pass*4096 + wave*512 + chunk*32
    v_cmp_gt_u32 vcc, 8, v1
    s_and_saveexec_b64 s[48:49], vcc
    ds_write_b128 v2, v[104:107]
    ds_write_b128 v2, v[108:111] offset:16
    ds_write_b128 v2, v[112:115] offset:256
    ds_write_b128 v2, v[116:119] offset:272
    s_mov_b64 exec, s[48:49]
    s_waitcnt lgkmcnt(0)
    s_barrier
    s_cmp_ge_u32 s46, 2
    s_cbranch_scc1 %s
    v_lshl_add_u32 v2, v0, 2, s50      ; wave0: u cols, wave1: w0 cols
    """ % lskip)
    for w in range(8): k.e('ds_read_b32 v%d, v2 offset:%d' % (8 + w, w * 512))
    k.e('s_waitcnt lgkmcnt(0)')
    for w in range(1, 8): k.e('v_add_f32 v8, v8, v%d' % (8 + w))
    k.e("""
    v_min_u32 v8, -2, v8
    v_lshlrev_b32 v2, 2, v1
    s_lshl_b32 s31, s30, 8
    s_lshl_b32 s47, s46, 14
    s_add_u32 s31, s31, s47
    s_add_u32 s31, s31, %d
    buffer_store_dword v8, v2, s[40:43], s31 offen sc1
    s_waitcnt vmcnt(0)
    """ % WS_UW)
    k.label(lskip)
    k.e("""
    s_add_u32 s30, s30, 1
    s_add_u32 s50, s50, 4096
    s_cmp_lt_u32 s50, %d
    s_cbranch_scc1 %s
    """ % (LB + 8192, lp))

GC1 = -2.0 * 0.7978845608028654 * LOG2E
def gelu_ops(k, a, U, W0, T, R, M, after_t=None):
    for r in range(0, 16, 2): k.e(pk('fma', T + r, U + r, (M,), W0 + r))
    if after_t: after_t()
    for r in range(0, 16, 2): k.e(pk('fma', a + r, a + r, (R,), T + r))
    for r in range(0, 16, 2): k.e(pk('mul', T + r, a + r, a + r))
    for r in range(0, 16, 2): k.e(pk('fma', T + r, T + r, 's[70:71]', (6,)))
    for r in range(0, 16, 2): k.e(pk('mul', T + r, T + r, a + r))
    for r in range(16): k.e('v_exp_f32 v%d, v%d' % (T + r, T + r))
    for r in range(0, 16, 2): k.e(pk('add', T + r, T + r, '1.0'))
    for r in range(16): k.e('v_rcp_f32 v%d, v%d' % (T + r, T + r))
    for r in range(0, 16, 2): k.e(pk('mul', a + r, a + r, T + r))
def stat_ops(k, a, S1, S2, first):
    for r in range(0, 16, 2):
        if first and r == 0:
            k.e(pk('add', S1, a, a + 2)); k.e(pk('mul', S2, a, a))
        else:
            if not (first and r == 2): k.e(pk('add', S1, S1, a + r))
            k.e(pk('fma', S2, a + r, a + r, S2))

def k_win(k, c):
    SPLIT = env('SPLIT', 0)
    XFER = 48 * KB
    def mid(g):
        k = g.k
        Z = 64; U = 96; T = 160; S = 176; RM_ = 180
        k.e("""
        s_lshl_b32 s67, s46, 13
        s_add_u32 s67, s67, %d
        v_lshl_add_u32 v44, v1, 4, s67     ; transfer area
        s_lshl_b32 s67, s46, 9
        s_add_u32 s67, s67, %d
        v_lshl_add_u32 v45, v1, 3, s67     ; (R,M) / stats slot
        v_lshrrev_b32 v46, 5, v1
        v_lshlrev_b32 v46, 4, v46
        v_add_u32 v46, %d, v46
        s_mov_b32 s70, %s
        s_mov_b32 s71, s70
        v_mov_b32 v6, %s
        ds_read_b64 v[%d:%d], v45
        """ % (XFER, g.AUX + 2048, g.AUX, hx(GC1 * 0.044715), hx(GC1), RM_, RM_ + 1))
        for b in range(2):
            for q in range(4):
                k.e('ds_read_b128 %s, v46 offset:%d' % (vr(U + 32 * b + 4 * q, 4), (2 + b) * 128 + q * 32))
                k.e('ds_read_b128 %s, v46 offset:%d' % (vr(U + 32 * b + 16 + 4 * q, 4), 1024 + (2 + b) * 128 + q * 32))
        k.e('s_setprio 1')
        k.e('s_waitcnt lgkmcnt(0)')
        k.e('v_mov_b32 v%d, v%d' % (RM_ + 2, RM_ + 1))
        k.e('s_barrier')
        for q in range(8): k.e('ds_read_b128 %s, v44 offset:%d' % (vr(Z + 4 * q, 4), q * 1024))
        for b in range(2):
            a = Z + 16 * b
            k.e('s_waitcnt lgkmcnt(%d)' % (4 - 4 * b))
            for hb in range(2):
                for e in range(4): k.e('v_permlane16_swap_b32 v%d, v%d' % (a + 8 * hb + e, a + 8 * hb + 4 + e))
            gelu_ops(k, a, U + 32 * b, U + 32 * b + 16, T, RM_, RM_ + 2)
            stat_ops(k, a, S, S + 2, b == 0)
        k.e('v_add_f32 v%d, v%d, v%d' % (S, S, S + 1))
        k.e('v_add_f32 v%d, v%d, v%d' % (S + 1, S + 2, S + 3))
        k.e('ds_write_b64 v45, %s' % vr(S, 2))
        k.e('s_waitcnt lgkmcnt(0)')
        k.e('s_barrier')
        for q in range(8): k.e('ds_write_b128 v44, %s offset:%d' % (vr(Z + 4 * q, 4), q * 1024))
        k.e('s_waitcnt lgkmcnt(0)')
    LP = 1; LPJ = env('LPJ', 3)
    KZ = c.nxt == 'wsp' and env('KEEPZ', 1)
    def post(g):
        if not LP: return
        k = g.k
        srd(k, 36, 'ws', WS_G, 256 * KB)
        k.e("""
        s_lshl_b32 s65, s30, 2
        s_add_u32 s65, s65, s46
        s_lshl_b32 s65, s65, 12            ; rb32*4096
        v_and_b32 v2, 31, v1
        v_lshrrev_b32 v3, 5, v1
        v_mul_u32_u24 v3, %d, v3
        v_lshl_add_u32 v2, v2, 3, v3
        s_lshl_b32 s67, s46, 9
        s_add_u32 s67, s67, %d
        v_lshl_add_u32 v3, v1, 3, s67
        s_setprio 2
        s_barrier
        """ % (7 * 256, g.AUX + 2048))
        lp = k.newlabel('lpoll')
        poll_init(k)
        k.label(lp)
        for p in range(7):
            k.e('buffer_load_dwordx2 %s, v2, s[36:39], s65 offen offset:%d sc1' % (vr(24 + 2 * p, 2), p * 256))
        k.e('s_waitcnt vmcnt(0)')
        k.e('v_max_u32 v5, v24, v25')
        for p in range(1, 7): k.e('v_max3_u32 v5, v5, v%d, v%d' % (24 + 2 * p, 25 + 2 * p))
        k.e('v_cmp_eq_u32 vcc, -1, v5')
        poll_back(k, lp)
        for p in range(1, 7): k.e(pk('add', 24, 24, 24 + 2 * p))
        stats_finish(k, 24, 1792, 40, 41, 26)
        k.e('ds_write_b64 v3, v[40:41]')
        k.e('s_waitcnt lgkmcnt(0)')
        k.e('s_barrier')
    def uw_loads(g):
        g.k.e('buffer_load_dwordx4 v[24:27], v2, s[40:43], s62 offen sc1')
        g.k.e('buffer_load_dwordx4 v[28:31], v2, s[40:43], s63 offen sc1')
    def aux(g):
        k = g.k
        srd(k, 40, 'ws', WS_UW, 32 * KB)
        k.e("""
        v_and_b32 v2, 31, v1
        v_lshlrev_b32 v2, 4, v2
        v_add_u32 v3, 7168, v2
        v_cmp_gt_u32 vcc, 32, v1
        s_lshl_b32 s62, s31, 9
        s_add_u32 s63, s62, %d
        v_cndmask_b32 v2, v2, v3, vcc
        v_lshlrev_b32 v3, 4, v1
        v_add_u32 v3, %d, v3
        """ % (16 * KB, g.AUX))
        uw_loads(g)
        return 2
    def aux_end(g):
        k = g.k
        lp = k.newlabel('uwp'); lc = k.newlabel('uwc')
        poll_init(k)
        k.e('s_branch %s' % lc)
        k.label(lp)
        uw_loads(g)
        k.e('s_waitcnt vmcnt(0)')
        k.label(lc)
        k.e("""
        v_max3_u32 v4, v24, v25, v26
        v_max3_u32 v4, v4, v27, v28
        v_max3_u32 v4, v4, v29, v30
        v_max_u32 v4, v4, v31
        v_cmp_eq_u32 vcc, -1, v4
        """)
        poll_back(k, lp)
        k.e("""
        ds_write_b128 v3, v[24:27]
        ds_write_b128 v3, v[28:31] offset:1024
        s_waitcnt lgkmcnt(0)
        """)
    def pre(g):
        k = g.k
        g.L16 = alloc(g, 1, 1); g.SA = alloc(g, 1, 1); g.GA = alloc(g, 1, 1); g.CA = alloc(g, 1, 1)
        g.R = alloc(g, 2, 2); g.M = alloc(g, 2, 2); g.P = alloc(g, 16)
        srd(k, 32, 'ws', ZB, max(WS_Z, WS_Z2N) - ZB + ZSZ); srd(k, 36, 'ws', WS_ST1, 512 * KB)
        k.e('v_lshlrev_b32 v%d, 4, v1' % g.L16)
        k.e("""
        s_lshl_b32 s61, s30, 2
        s_add_u32 s61, s61, s46           ; rb32
        s_lshr_b32 s64, s61, 1
        s_lshl_b32 s64, s64, 13           ; rb64*8192
        s_and_b32 s65, s61, 1
        s_lshl_b32 s65, s65, 8
        s_add_u32 s64, s64, s65           ; x1 stats offset
        s_lshl_b32 s65, s61, 12
        s_add_u32 s65, s65, %d            ; granule offset (row block)
        s_lshl_b32 s66, s31, 8
        s_add_u32 s66, s66, s65           ; own granule
        s_mul_i32 s60, s61, %d
        s_lshl_b32 s61, s31, 13
        s_add_u32 s60, s60, s61           ; Z1 offset
        v_lshlrev_b32 v5, 3, v3
        v_lshl_add_u32 v%d, v4, 12, v5    ; h*8*512 + row*8
        v_mul_u32_u24 v6, %d, v4
        v_add_u32 v%d, v6, v5             ; h*7*256 + row*8
        v_lshlrev_b32 v%d, 4, v4
        v_add_u32 v%d, %d, v%d
        """ % (WS_G - WS_ST1, 112 * 1024, g.SA, 7 * 256, g.GA, g.CA, g.CA, g.AUX, g.CA))
    def early(g):
        k = g.k
        for p in range(8):
            k.e('buffer_load_dwordx2 %s, v%d, s[36:39], s64 offen offset:%d sc1' % (vr(g.P + 2 * p, 2), g.SA, p * 512))
        k.e('s_waitcnt vmcnt(0)')
        for p in range(1, 8): k.e(pk('add', g.P, g.P, g.P + 2 * p))
        stats_finish(k, g.P, 1024, g.R, g.M, g.P + 2)
        if SPLIT:
            k.e('s_lshl_b32 s67, s46, 9')
            k.e('s_add_u32 s67, s67, %d' % (g.AUX + 2048))
            k.e('v_lshl_add_u32 v%d, v1, 3, s67' % g.SA)
            k.e('s_lshl_b32 s67, s46, 13')
            k.e('s_add_u32 s67, s67, %d' % XFER)
            k.e('v_lshl_add_u32 v%d, v1, 4, s67' % g.GA)
            k.e('v_mov_b32 v%d, v%d' % (g.R + 1, g.M))
            k.e('ds_write_b64 v%d, %s' % (g.SA, vr(g.R, 2)))
            k.e('s_waitcnt lgkmcnt(0)')
    def pre2(g): pass
    def epi(g):
        k = g.k
        c1 = -2.0 * 0.7978845608028654 * LOG2E
        U = g.FR; W0 = g.FR + 16; T = g.FR + 32; PS = g.FR + 48
        def rd_uw(j):
            for q in range(4):
                k.e('ds_read_b128 %s, v%d offset:%d' % (vr(U + 4 * q, 4), g.CA, j * 128 + q * 32))
                k.e('ds_read_b128 %s, v%d offset:%d' % (vr(W0 + 4 * q, 4), g.CA, 1024 + j * 128 + q * 32))
        k.e('s_nop 7')
        rd_uw(0)
        k.e('s_mov_b32 s70, %s' % hx(c1 * 0.044715)); k.e('s_mov_b32 s71, s70')
        k.e('v_mov_b32 v6, %s' % hx(c1))
        S1 = g.P; S2 = g.P + 2
        GR = g.P + 2
        n = 0
        def poll_loads():
            for p in range(7):
                k.e('buffer_load_dwordx2 %s, v%d, s[36:39], s65 offen offset:%d sc1' % (vr(GR + 2 * p, 2), g.GA, p * 256))
        cnt = [0]
        def block(j):
            a = g.acc(0, j)
            g.fix(0, j)
            k.e('s_waitcnt lgkmcnt(0)')
            lastz2 = 1 if SPLIT else 3
            gelu_ops(k, a, U, W0, T, g.R, g.M, after_t=(lambda: rd_uw(j + 1)) if (j < 7 and not (j == lastz2 and g.deferred)) else None)
            if j >= 4:
                if KZ:
                    for d in range(8): k.e('v_cvt_pk_bf16_f32 v%d, v%d, v%d' % (ZKEEP + 8 * (j - 4) + d, a + 2 * d, a + 2 * d + 1))
                else:
                    k.e('s_add_u32 s61, s60, %d' % (WS_Z - ZB + (j - 4) * 2048))
                    store_xf_tile(g, a, PS + 8 * (cnt[0] % 3), g.L16, 32, 's61', 0); cnt[0] += 1
            else: stat_ops(k, a, S1, S2, j == 0)
        if SPLIT:
            assert g.deferred and LPJ == 3
            for q in range(8): k.e('ds_write_b128 v%d, %s offset:%d' % (g.GA, vr(g.acc(0, 2) + 4 * q, 4), q * 1024))
            k.e('s_waitcnt lgkmcnt(0)')
            k.e('s_barrier')
        for j in range(2 if SPLIT else 4): block(j)
        k.e('v_add_f32 v%d, v%d, v%d' % (S1, S1, S1 + 1))
        k.e('v_add_f32 v%d, v%d, v%d' % (S1 + 1, S2, S2 + 1))
        if SPLIT:
            k.e('s_barrier')
            k.e('ds_read_b64 %s, v%d' % (vr(S2, 2), g.SA))
            k.e('s_waitcnt lgkmcnt(0)')
            k.e(pk('add', S1, S1, S2))
        k.e('v_mov_b32 v%d, v%d' % (S2, S1))
        k.e('v_mov_b32 v%d, v%d' % (S2 + 1, S1 + 1))
        k.e('v_lshlrev_b32 v5, 3, v3')
        k.e('s_nop 0')
        k.e('v_permlane32_swap_b32 v%d, v%d' % (S1, S2))
        k.e('v_permlane32_swap_b32 v%d, v%d' % (S1 + 1, S2 + 1))
        k.e('s_nop 1')
        k.e(pk('add', S1, S1, S2))
        k.e('v_min_u32 v%d, -2, v%d' % (S1, S1))
        k.e('v_min_u32 v%d, -2, v%d' % (S1 + 1, S1 + 1))
        k.e('s_mov_b32 exec_hi, 0')
        k.e('buffer_store_dwordx2 %s, v5, s[36:39], s66 offen sc1' % vr(S1, 2))
        k.e('s_mov_b32 exec_hi, -1')
        if env('WM', 0): mark(k, 0)
        NB4 = env('NB4', 1) if KZ else 4
        if g.deferred:
            g.deferred()
            rd_uw(4)
        if LPJ == 3: k.e('s_barrier')
        if SPLIT:
            assert NB4 >= 1
            for q in range(8): k.e('ds_read_b128 %s, v%d offset:%d' % (vr(g.acc(0, 2) + 4 * q, 4), g.GA, q * 1024))
        for j in range(4, 4 + NB4):
            block(j)
            if j == LPJ: k.e('s_barrier')
        if env('WM', 0): mark(k, 1)
        R2 = g.P + 4; M2 = g.P + 6
        k.e('s_lshl_b32 s67, s46, 9')
        k.e('s_add_u32 s67, s67, %d' % (g.AUX + 2048))
        k.e('v_lshl_add_u32 v5, v1, 3, s67')
        k.e('s_barrier')
        k.e('ds_read_b64 %s, v5' % vr(R2, 2))
        k.e('s_waitcnt lgkmcnt(0)')
        mark(k, 3)
        k.e('v_mov_b32 v%d, v%d' % (M2, R2 + 1))
        zo = ZOWN and c.nxt == 'wsp'
        if zo:
            assert g.M16
            ZA = g.P + 8
            k.e('''
            s_lshr_b32 s67, s46, 1
            s_lshl_b32 s67, s67, 15
            s_and_b32 s68, s46, 1
            s_lshl_b32 s68, s68, 13
            s_add_u32 s67, s67, s68
            s_add_u32 s67, s67, 16384
            v_bfe_u32 v5, v1, 4, 1
            v_lshl_add_u32 v%d, v5, 12, s67
            v_bfe_u32 v5, v1, 2, 2
            v_lshl_add_u32 v%d, v5, 8, v%d
            v_and_b32 v5, 2, v5
            v_or_b32 v5, v5, v4
            v_lshl_add_u32 v%d, v5, 6, v%d
            v_and_b32 v5, 3, v1
            v_lshl_add_u32 v%d, v5, 4, v%d
            v_xor_b32 v%d, 128, v%d
            ''' % (ZA, ZA, ZA, ZA, ZA, ZA, ZA, ZA + 1, ZA))
        for j in range(4):
            a = g.acc(0, j)
            for r in range(0, 16, 2): k.e(pk('fma', a + r, a + r, (R2,), (M2,)))
            k.e('s_add_u32 s61, s60, %d' % (WS_Z2N - ZB + j * 2048))
            if zo:
                store_xf_tile(g, a, a, g.L16, 32, 's61', 0)
            else:
                store_xf_tile(g, a, PS + 8 * (cnt[0] % 3), g.L16, 32, 's61', 0); cnt[0] += 1
        if zo:
            for j in range(4):
                for t in range(2): k.e('ds_write_b128 v%d, %s offset:%d' % (ZA + t, vr(g.acc(0, j) + 4 * t, 4), j * 1024))
        if g.LE: k.e('s_barrier')
        rest = list(range(4 + NB4, 8))
        NBS = env('NBS', 2)
        for j in rest[:NBS]: block(j)
        signal(k, 'C')
        if zo and LPW: k.e('s_barrier')
        for j in rest[NBS:]: block(j)
        k.e('s_waitcnt lgkmcnt(0)')
    sig = 's_lshl_b32 s100, s31, 8\ns_lshl_b32 s101, s30, 4\ns_add_u32 s100, s100, s101\ns_add_u32 s100, s100, %d' % FL_WIN
    wait = ('s_lshl_b32 s100, s30, 8\ns_add_u32 s100, s100, %d' % FL_WO, 64)
    H22 = env('H22', 0)
    k_gemm(k, c, 16, 14, 2, 2, 7, 128, 256, 2 if H22 else 4, 2 if H22 else 1, 1024, 32, 4, ('xf', WS_X1S, 1024), ('w', 'w_in', 7168, (256, [3584, 3584 + 128, 0, 128])),
           pre, pre2, epi, aux=aux, auxsz=4 * KB, auxbase=AUX_B, aux_end=aux_end, post=post, mid=mid if SPLIT else None, selfsig=True, early=early, SOFT=3, DEFER=3, dcols=([0, 1], [2, 3]) if H22 else ([0, 1, 2, 3], [4, 5, 6, 7]), JG=2, lazyfix=True, side=(28, uw_job), wait=wait, sig=sig)

def k_win2(k, c):
    assert c.nxt == 'wsp' and ZOWN
    def post(g):
        k = g.k
        srd(k, 36, 'ws', WS_G2, 512 * KB)
        k.e("""
        s_lshl_b32 s65, s30, 1
        s_lshr_b32 s66, s46, 1
        s_add_u32 s65, s65, s66
        s_lshl_b32 s65, s65, 14            ; rb64*16K
        s_and_b32 s66, s46, 1
        s_lshl_b32 s66, s66, 8
        s_add_u32 s65, s65, s66
        s_add_u32 s66, s65, 3584
        v_and_b32 v2, 31, v1
        v_lshrrev_b32 v3, 5, v1
        v_mul_u32_u24 v3, %d, v3
        v_lshl_add_u32 v2, v2, 3, v3
        s_lshl_b32 s67, s46, 9
        s_add_u32 s67, s67, %d
        v_lshl_add_u32 v3, v1, 3, s67
        s_setprio 2
        s_barrier
        """ % (14 * 512, g.AUX + 2048))
        lp = k.newlabel('lpoll')
        poll_init(k)
        k.label(lp)
        for p in range(14):
            k.e('buffer_load_dwordx2 %s, v2, s[36:39], s%d offen offset:%d sc1' % (vr(24 + 2 * p, 2), 65 + p // 7, (p % 7) * 512))
        k.e('s_waitcnt vmcnt(0)')
        k.e('v_max_u32 v5, v24, v25')
        for p in range(1, 14): k.e('v_max3_u32 v5, v5, v%d, v%d' % (24 + 2 * p, 25 + 2 * p))
        k.e('v_cmp_eq_u32 vcc, -1, v5')
        poll_back(k, lp)
        for p in range(1, 14): k.e(pk('add', 24, 24, 24 + 2 * p))
        stats_finish(k, 24, 1792, 56, 57, 26)
        k.e('ds_write_b64 v3, v[56:57]')
        k.e('s_waitcnt lgkmcnt(0)')
        k.e('s_barrier')
        if env('WLE', 2): k.e('s_barrier')
    def uw_loads(g):
        g.k.e('buffer_load_dwordx4 v[24:27], v2, s[40:43], s62 offen sc1')
        g.k.e('buffer_load_dwordx4 v[28:31], v2, s[40:43], s63 offen sc1')
    def aux(g):
        k = g.k
        srd(k, 40, 'ws', WS_UW, 32 * KB)
        k.e("""
        v_and_b32 v2, 31, v1
        v_lshlrev_b32 v2, 4, v2
        v_add_u32 v3, 7168, v2
        v_cmp_gt_u32 vcc, 32, v1
        s_lshl_b32 s62, s31, 9
        s_add_u32 s63, s62, %d
        v_cndmask_b32 v2, v2, v3, vcc
        v_lshlrev_b32 v3, 4, v1
        v_add_u32 v3, %d, v3
        """ % (16 * KB, g.AUX))
        uw_loads(g)
        return 2
    def aux_end(g):
        k = g.k
        lp = k.newlabel('uwp'); lc = k.newlabel('uwc')
        poll_init(k)
        k.e('s_branch %s' % lc)
        k.label(lp)
        uw_loads(g)
        k.e('s_waitcnt vmcnt(0)')
        k.label(lc)
        k.e("""
        v_max3_u32 v4, v24, v25, v26
        v_max3_u32 v4, v4, v27, v28
        v_max3_u32 v4, v4, v29, v30
        v_max_u32 v4, v4, v31
        v_cmp_eq_u32 vcc, -1, v4
        """)
        poll_back(k, lp)
        k.e("""
        ds_write_b128 v3, v[24:27]
        ds_write_b128 v3, v[28:31] offset:1024
        s_waitcnt lgkmcnt(0)
        """)
    def pre(g):
        k = g.k
        g.L16 = alloc(g, 1, 1); g.L8 = alloc(g, 1, 1); g.CA = alloc(g, 1, 1)
        g.R = alloc(g, 4); g.M = alloc(g, 4); g.P = alloc(g, 16)
        srd(k, 32, 'ws', WS_Z2N, ZSZ); srd(k, 36, 'ws', WS_ST1, 256 * KB); srd(k, 40, 'ws', WS_G2, 512 * KB)
        k.e('v_lshlrev_b32 v%d, 4, v1' % g.L16)
        k.e('v_lshlrev_b32 v%d, 3, v1' % g.L8)
        k.e("""
        s_lshl_b32 s61, s30, 1
        s_add_u32 s61, s61, s50           ; rb64
        s_lshl_b32 s64, s61, 13           ; x1 stats offset
        s_add_u32 s65, s64, 4096
        s_lshl_b32 s66, s31, 1
        s_add_u32 s66, s66, s51
        s_lshl_b32 s66, s66, 9
        s_lshl_b32 s67, s61, 14
        s_add_u32 s66, s66, s67           ; own granule
        s_mul_i32 s60, s61, %d
        s_lshl_b32 s61, s31, 13
        s_add_u32 s60, s60, s61
        s_lshl_b32 s61, s51, 12
        s_add_u32 s60, s60, s61           ; Z2N offset of block (0,0)
        s_add_u32 s61, s60, %d
        s_lshl_b32 s67, s51, 8
        s_add_u32 s67, s67, %d
        v_lshl_add_u32 v%d, v4, 4, s67
        """ % (2 * 112 * 1024, 112 * 1024, g.AUX, g.CA))
    def early(g):
        k = g.k
        if ZF32:
            assert g.free <= BSV
            srd(k, 80, 'b_sp')
            k.e('s_lshr_b32 s67, s64, 6')
            k.e('v_and_b32 v5, 15, v1')
            k.e('v_lshlrev_b32 v5, 1, v5')
            for q in range(4): k.e('buffer_load_ushort v%d, v5, s[80:83], s67 offen offset:%d' % (BSV + q, q * 32))
        Pp = g.FR
        for p in range(16):
            k.e('buffer_load_dwordx2 %s, v%d, s[36:39], s%d offen offset:%d sc1' % (vr(Pp + 2 * p, 2), g.L8, 64 + p // 8, (p % 8) * 512))
        k.e('s_waitcnt vmcnt(0)')
        for p in range(1, 16): k.e(pk('add', Pp, Pp, Pp + 2 * p))
        T_ = Pp + 2
        k.e('v_mul_f32 v%d, %s, v%d' % (Pp, hx(1.0 / 1024), Pp))
        k.e('v_mul_f32 v%d, v%d, v%d' % (T_, Pp, Pp))
        k.e('v_mov_b32 v%d, %s' % (T_ + 1, hx(1.0 / 1024)))
        k.e('v_fma_f32 v%d, v%d, v%d, -v%d' % (Pp + 1, Pp + 1, T_ + 1, T_))
        k.e('v_max_f32 v%d, 0, v%d' % (Pp + 1, Pp + 1))
        k.e('v_add_f32 v%d, %s, v%d' % (Pp + 1, hx(1e-5), Pp + 1))
        k.e('v_rsq_f32 v%d, v%d' % (g.R, Pp + 1))
        k.e('s_nop 0')
        k.e('v_mul_f32_e64 v%d, -v%d, v%d' % (g.M, Pp, g.R))
        k.e('v_mov_b32 v%d, v%d' % (g.R + 2, g.R))
        k.e('v_mov_b32 v%d, v%d' % (g.M + 2, g.M))
        k.e('s_nop 1')
        k.e('v_permlane32_swap_b32 v%d, v%d' % (g.R, g.R + 2))
        k.e('v_permlane32_swap_b32 v%d, v%d' % (g.M, g.M + 2))
    def epi(g):
        k = g.k
        U = g.FR; W0 = g.FR + 16; T = g.FR + 32
        def rd_uw(j):
            o = (j // 2) * 512 + (j % 2) * 128
            for q in range(4):
                k.e('ds_read_b128 %s, v%d offset:%d' % (vr(U + 4 * q, 4), g.CA, o + q * 32))
                k.e('ds_read_b128 %s, v%d offset:%d' % (vr(W0 + 4 * q, 4), g.CA, 1024 + o + q * 32))
        rd_uw(0)
        k.e('s_mov_b32 s70, %s' % hx(GC1 * 0.044715)); k.e('s_mov_b32 s71, s70')
        k.e('v_mov_b32 v6, %s' % hx(GC1))
        SS = g.P
        def block(n):
            j, i = n // 2, n % 2
            a = g.acc(i, j)
            g.fix(i, j)
            if i == 0: k.e('s_waitcnt lgkmcnt(0)')
            gelu_ops(k, a, U, W0, T, g.R + 2 * i, g.M + 2 * i, after_t=(lambda: rd_uw(j + 1)) if (i == 1 and j in (0, 2)) else None)
            if j >= 2:
                if not ZF32:
                    for d in range(8): k.e('v_cvt_pk_bf16_f32 v%d, v%d, v%d' % (a + d, a + 2 * d, a + 2 * d + 1))
            else: stat_ops(k, a, SS + 4 * i, SS + 4 * i + 2, j == 0)
        for n in range(4): block(n)
        for i in range(2):
            k.e('v_add_f32 v%d, v%d, v%d' % (SS + 4 * i, SS + 4 * i, SS + 4 * i + 1))
            k.e('v_add_f32 v%d, v%d, v%d' % (SS + 4 * i + 1, SS + 4 * i + 2, SS + 4 * i + 3))
        k.e('s_nop 1')
        k.e('v_permlane32_swap_b32 v%d, v%d' % (SS, SS + 4))
        k.e('v_permlane32_swap_b32 v%d, v%d' % (SS + 1, SS + 5))
        k.e('s_nop 1')
        k.e(pk('add', SS, SS, SS + 4))
        k.e('v_min_u32 v%d, -2, v%d' % (SS, SS))
        k.e('v_min_u32 v%d, -2, v%d' % (SS + 1, SS + 1))
        k.e('buffer_store_dwordx2 %s, v%d, s[40:43], s66 offen sc1' % (vr(SS, 2), g.L8))
        if env('WM', 0): mark(k, 0)
        NB4 = env('NB4', 1)
        g.deferred()
        rd_uw(2)
        k.e('s_barrier')
        for n in range(4, 4 + NB4): block(n)
        if env('WM', 0): mark(k, 1)
        R2 = g.P + 4; ZA = g.P + 12
        k.e("""
        s_lshl_b32 s67, s50, 10
        s_add_u32 s67, s67, %d
        v_add_u32 v7, s67, v%d
        s_lshl_b32 s67, s50, 15
        s_lshl_b32 s68, s51, 11
        s_add_u32 s67, s67, s68
        s_add_u32 s67, s67, 16384
        v_bfe_u32 v5, v1, 4, 1
        v_lshl_add_u32 v%d, v5, 12, s67
        v_bfe_u32 v5, v1, 2, 2
        v_lshl_add_u32 v%d, v5, 8, v%d
        v_and_b32 v5, 2, v5
        v_or_b32 v5, v5, v4
        v_lshl_add_u32 v%d, v5, 6, v%d
        v_and_b32 v5, 3, v1
        v_lshl_add_u32 v%d, v5, 4, v%d
        v_xor_b32 v%d, 128, v%d
        s_barrier
        ds_read_b64 %s, v7
        ds_read_b64 %s, v7 offset:512
        s_waitcnt lgkmcnt(0)
        """ % (g.AUX + 2048, g.L8, ZA, ZA, ZA, ZA, ZA, ZA, ZA, ZA + 1, ZA, vr(R2, 2), vr(R2 + 4, 2)))
        mark(k, 3)
        for i in range(2): k.e('v_mov_b32 v%d, v%d' % (R2 + 4 * i + 2, R2 + 4 * i + 1))
        for i in range(2):
            for j in range(2):
                a = g.acc(i, j)
                for r in range(0, 16, 2): k.e(pk('fma', a + r, a + r, (R2 + 4 * i,), (R2 + 4 * i + 2,)))
                store_xf_tile(g, a, a, g.L16, 32, 's%d' % (60 + i), j * 2048)
        if env('WLE', 2) == 1: k.e('s_barrier')
        for i in range(2):
            for j in range(2):
                for t in range(2): k.e('ds_write_b128 v%d, %s offset:%d' % (ZA + t, vr(g.acc(i, j) + 4 * t, 4), i * 8192 + j * 1024))
        rest = list(range(4 + NB4, 8))
        NBS = env('NBS', 2)
        for n in rest[:NBS]: block(n)
        signal(k, 'C')
        if env('WLE', 2) == 2: k.e('s_barrier')
        for n in rest[NBS:]: block(n)
        k.e('s_waitcnt lgkmcnt(0)')
    sig = 's_lshl_b32 s100, s31, 8\ns_lshl_b32 s101, s30, 4\ns_add_u32 s100, s100, s101\ns_add_u32 s100, s100, %d' % FL_WIN
    wait = ('s_lshl_b32 s100, s30, 8\ns_add_u32 s100, s100, %d' % FL_WO, 64)
    k_gemm(k, c, 16, 14, 2, 2, 7, 128, 256, 2, 2, 1024, 32, 4, ('xf', WS_X1S, 1024), ('w', 'w_in', 7168, (256, [3584, 0, 3584 + 128, 128])),
           pre, nop, epi, aux=aux, auxsz=4 * KB, auxbase=AUX_B, aux_end=aux_end, post=post, selfsig=True, early=early, SOFT=3, DEFER=3,
           dcols=([0, 1], [2, 3]), JG=2, lazyfix=True, side=(28, uw_job), wait=wait, sig=sig, accmap=lambda i, j: (j // 2) * 4 + i * 2 + j % 2)

def k_wsp(k, c):
    def pre(g):
        k = g.k
        g.L16 = alloc(g, 1, 1); g.L2 = alloc(g, 1, 1); g.B = alloc(g, 4); g.Z = alloc(g, 32)
        srd(k, 32, 'ws', WS_Z, ZSZ); srd(k, 36, 'ws', WS_U2, ZSZ); srd(k, 40, 'b_sp')
        k.e('v_lshlrev_b32 v%d, 4, v1' % g.L16)
        k.e('''
        s_lshl_b32 s60, s31, 13
        s_lshl_b32 s61, s51, 12
        s_add_u32 s60, s60, s61
        s_lshl_b32 s61, s30, 2
        s_lshl_b32 s62, s50, 1
        s_add_u32 s61, s61, s62           ; rb0
        s_lshl_b32 s63, s61, 6
        s_mul_i32 s61, s61, %d
        s_add_u32 s60, s60, s61
        s_add_u32 s61, s60, %d
        v_lshlrev_b32 v%d, 1, v3
        ''' % (112 * 1024, 112 * 1024, g.L2))
    def pre2(g):
        k = g.k
        for i in range(2):
            k.e('buffer_load_ushort v%d, v%d, s[40:43], s63 offen offset:%d' % (g.B + 2 * i, g.L2, i * 64))
        for i in range(2):
            for j in range(2):
                for t in range(2):
                    k.e('buffer_load_dwordx4 %s, v%d, s[32:35], s%d offen offset:%d sc1' % (vr(g.Z + 16 * i + 8 * j + 4 * t, 4), g.L16, 60 + i, (2 * j + t) * 1024))
    def epi(g):
        k = g.k
        T = g.FR
        k.e('s_waitcnt vmcnt(0)')
        for i in range(2): k.e('v_lshlrev_b32 v%d, 16, v%d' % (g.B + 2 * i, g.B + 2 * i))
        k.e('s_nop 7')
        for j in range(2):
            for i in range(2):
                a = g.acc(i, j); z = g.Z + 16 * i + 8 * j
                for d in range(8): unpack(k, T + 2 * d, T + 2 * d + 1, z + d)
                for d in range(8): k.e(pk('add', a + 2 * d, a + 2 * d, (g.B + 2 * i,)))
                for d in range(8): k.e(pk('mul', a + 2 * d, a + 2 * d, T + 2 * d))
                store_xf_tile(g, a, z, g.L16, 36, 's%d' % (60 + i), j * 2048)
    KZ = c.prev == 'win' and env('KEEPZ', 1)
    def preK(g):
        k = g.k
        g.L16 = alloc(g, 1, 1); g.L2 = alloc(g, 1, 1); g.B = alloc(g, 2, 2)
        srd(k, 36, 'ws', WS_U2, ZSZ); srd(k, 40, 'b_sp')
        k.e('v_lshlrev_b32 v%d, 4, v1' % g.L16)
        k.e('''
        s_lshl_b32 s60, s31, 13
        s_lshl_b32 s61, s30, 2
        s_add_u32 s61, s61, s46           ; rb32
        s_lshl_b32 s63, s61, 6
        s_mul_i32 s61, s61, %d
        s_add_u32 s60, s60, s61
        s_add_u32 s61, s60, 4096
        v_lshlrev_b32 v%d, 1, v3
        ''' % (112 * 1024, g.L2))
    def pre2K(g):
        g.k.e('buffer_load_ushort v%d, v%d, s[40:43], s63 offen' % (g.B, g.L2))
    def epiK(g):
        k = g.k
        T = g.FR
        k.e('s_waitcnt vmcnt(0)')
        k.e('v_lshlrev_b32 v%d, 16, v%d' % (g.B, g.B))
        for j in range(4):
            a = g.acc(0, j); z = ZKEEP + 8 * j
            for d in range(8): unpack(k, T + 2 * d, T + 2 * d + 1, z + d)
            for d in range(8): k.e(pk('add', a + 2 * d, a + 2 * d, (g.B,)))
            for d in range(8): k.e(pk('mul', a + 2 * d, a + 2 * d, T + 2 * d))
            store_xf_tile(g, a, z, g.L16, 36, 's%d' % (60 + j // 2), (j % 2) * 2048)
    sig = 's_lshl_b32 s100, s30, 8\ns_lshl_b32 s101, s31, 4\ns_add_u32 s100, s100, s101\ns_add_u32 s100, s100, %d' % FL_WSP
    wait = ('s_lshl_b32 s100, s31, 8\ns_add_u32 s100, s100, %d' % FL_WIN, 64)
    def pre22(g):
        k = g.k
        g.L16 = alloc(g, 1, 1); g.L2 = alloc(g, 1, 1); g.B = alloc(g, 4)
        srd(k, 36, 'ws', WS_U2, ZSZ); srd(k, 40, 'b_sp')
        k.e('v_lshlrev_b32 v%d, 4, v1' % g.L16)
        k.e('''
        s_lshl_b32 s60, s31, 13
        s_lshl_b32 s61, s51, 12
        s_add_u32 s60, s60, s61
        s_lshl_b32 s61, s30, 2
        s_lshl_b32 s62, s50, 1
        s_add_u32 s61, s61, s62           ; rb0
        s_lshl_b32 s63, s61, 6
        s_mul_i32 s61, s61, %d
        s_add_u32 s60, s60, s61
        s_add_u32 s61, s60, %d
        v_lshlrev_b32 v%d, 1, v3
        ''' % (112 * 1024, 112 * 1024, g.L2))
    def pre22f(g):
        pre22(g)
        k = g.k
        for q in range(4): k.e('v_lshlrev_b32 v%d, 16, v%d' % (BSV + q, BSV + q))
        for i in range(2):
            for j in range(2):
                for r in range(16): k.e('v_mov_b32 v%d, v%d' % (g.acc(i, j) + r, BSV + 2 * i + (r // 4) % 2))
    def epi22f(g):
        k = g.k
        for j in range(2):
            for i in range(2):
                a = g.acc(i, j); z = ZKEEP + 16 * (2 * i + j)
                g.fix(i, j)
                k.e('s_nop 0')
                for d in range(8): k.e(pk('mul', a + 2 * d, a + 2 * d, z + 2 * d))
                store_xf_tile(g, a, a, g.L16, 36, 's%d' % (60 + i), j * 2048)
    def pre222(g):
        for i in range(2): g.k.e('buffer_load_ushort v%d, v%d, s[40:43], s63 offen offset:%d' % (g.B + 2 * i, g.L2, i * 64))
    def epi22(g):
        k = g.k
        T = g.FR
        k.e('s_waitcnt vmcnt(0)')
        for i in range(2): k.e('v_lshlrev_b32 v%d, 16, v%d' % (g.B + 2 * i, g.B + 2 * i))
        for j in range(2):
            for i in range(2):
                a = g.acc(i, j); z = ZKEEP + 16 * (2 * i + j)
                for d in range(8): unpack(k, T + 2 * d, T + 2 * d + 1, z + d)
                for d in range(8): k.e(pk('add', a + 2 * d, a + 2 * d, (g.B + 2 * i,)))
                for d in range(8): k.e(pk('mul', a + 2 * d, a + 2 * d, T + 2 * d))
                store_xf_tile(g, a, z, g.L16, 36, 's%d' % (60 + i), j * 2048)
    tailpre = None
    if TPRE:
        su, pcs = proj_wpre('w_out', 24, 4, 's46')
        def tp(k, n):
            cnt = 0
            for st in (2 * n, 2 * n + 1):
                if st < TPRE:
                    for x in pcs(st):
                        k.e(x)
                        if 'm0' in x: k.e('s_nop 0')
                    cnt += 4
            return cnt
        tailpre = (su, tp)
    if W22 and ZF32: k_gemm(k, c, 16, 14, 2, 2, 7, 128, 128, 2, 2, 2048, 64, 3, ('rm', 'w_sp', 4096), ('z', WS_Z2N, 1792), pre22f, nop, epi22f, pf='w_out', wait=wait, sig=sig, dep='Y', GU=2, RWD=2, frbase=ZKEEP + 64, own='s_lshl_b32 s68, s30, 1', cinit=True, lazyfix=True, tailpre=tailpre)
    elif W22: k_gemm(k, c, 16, 14, 2, 2, 7, 128, 128, 2, 2, 2048, 64, 3, ('rm', 'w_sp', 4096), ('z', WS_Z2N, 1792), pre22, pre222, epi22, pf='w_out', wait=wait, sig=sig, dep='Y', GU=2, RWD=2, frbase=ZKEEP + 64, own='s_lshl_b32 s68, s30, 1')
    elif KZ: k_gemm(k, c, 16, 14, 2, 2, 7, 128, 128, 2 if env('H22', 0) else 4, 2 if env('H22', 0) else 1, 2048, 64, 3, ('rm', 'w_sp', 4096), ('z', WS_Z2N, 1792), preK, pre2K, epiK, pf='w_out', wait=wait, sig=sig, dep='Y', GU=2, RWD=2, frbase=ZKEEP + 32, own='s_lshl_b32 s68, s30, 1')
    else: k_gemm(k, c, 16, 14, 2, 2, 7, 128, 128, 2, 2, 2048, 64, 3, ('rm', 'w_sp', 4096), ('z', WS_Z2N, 1792), pre, pre2, epi, pf='w_out', wait=wait, sig=sig, dep='Y', GU=2, RWD=2, own='s_lshl_b32 s68, s30, 1')

def k_attn(k, c):
    NS = 4; STG = 32768; NST = 8
    phase_begin(k, c)
    SA, SB, O, NEGM = 8, 24, 40, 56
    L, ONES, Q, KF, VF, P = 72, 76, 80, 88, 96, 104
    A0 = 112; AC = 113; AO = 114; M = 115; T = 116; T2 = 117; PFA = 118; MA = 119; PFD = 120; MT = 124
    assert c.nxt == 'wo'
    k.e("""
    v_and_b32 v1, 63, v0
    s_mov_b32 s46, s3
    s_and_b32 s47, s2, 7
    s_lshr_b32 s48, s2, 3
    s_lshl_b32 s30, s47, 2
    s_lshr_b32 s49, s48, 3
    s_add_u32 s30, s30, s49            ; head
    s_and_b32 s31, s48, 7              ; q block (256 rows)
    v_lshlrev_b32 v%d, 4, v1
    s_lshl_b32 s50, s31, 3
    s_add_u32 s50, s50, s46            ; rb of this wave's queries
    s_lshl_b32 s51, s30, 6
    s_add_u32 s51, s51, s50
    s_lshl_b32 s51, s51, 11            ; Q offset
    s_lshl_b32 s52, s30, 18            ; KV head base
    s_lshl_b32 s53, s46, 12            ; wave part (4KB = one tile)
    s_lshl_b32 s62, s2, 13
    v_lshl_add_u32 v%d, v0, 4, s62     ; prefetch offset wg*8K + tid*16
    s_mov_b32 s62, %d
    s_waitcnt lgkmcnt(0)
    """ % (A0, PFA, 0x40000000 if env('PFOFF', 0) else 0))
    mark(k, 0)
    srd(k, 36, 'ws', WS_KV, 256 * KB, soff='s52'); srd(k, 32, 'ws', WS_Q, 4 * MB)
    set_flag(k, 's_lshl_b32 s100, s31, 8\ns_lshl_b32 s101, s30, 2\ns_add_u32 s100, s100, s101\ns_add_u32 s100, s100, %d' % FL_ATT)
    handoff(k, 's_lshr_b32 s100, s30, 1\ns_lshl_b32 s100, s100, 8\ns_add_u32 s100, s100, %d' % FL_QKV, 64, role='A')
    def dma(slot_expr):
        return ['s_add_u32 m0, s53, %s' % slot_expr] + \
               ['buffer_load_dwordx4 v%d, s[36:39], s56 offen offset:%d sc1 lds' % (A0, q * 1024) for q in range(4)] + \
               ['s_add_u32 s56, s56, %d' % STG]
    def pfl(n): return 'buffer_load_dwordx4 %s, v%d, %s, s62 offen' % (vr(PFD, 4), PFA, sr(n))
    def emit_dma(slot_expr):
        d = dma(slot_expr); k.e(d[0]); k.e('s_nop 0')
        for x in d[1:]: k.e(x)
    AST = env('AST', 1)
    if AST:
        k.e('s_lshl_b32 s56, s46, 10')
        k.e('s_mov_b32 m0, s56')
        k.e('s_mul_i32 s58, s46, 3072')
        k.e('buffer_load_dwordx4 v%d, s[36:39], s56 offen sc1 lds' % A0)
    else:
        k.e('s_mov_b32 s56, s53')
        emit_dma('0')
    k.e('buffer_load_dwordx4 %s, v%d, s[32:35], s51 offen sc1' % (vr(Q, 4), A0))
    k.e('buffer_load_dwordx4 %s, v%d, s[32:35], s51 offen offset:1024 sc1' % (vr(Q + 4, 4), A0))
    if AST:
        k.e('s_add_u32 s56, s58, 8192')
        k.e('s_mov_b32 m0, s56')
        k.e('s_nop 0')
        for q in range(3): k.e('buffer_load_dwordx4 v%d, s[36:39], s56 offen offset:%d sc1 lds' % (A0, q * 1024))
        k.e('s_add_u32 s56, s53, %d' % STG)
        emit_dma(str(STG))
    srd(k, 64, 'w_in'); srd(k, 68, 'w_sp'); srd(k, 32, 'wo')
    srd(k, 40, 'ws', WS_O, 4 * MB)
    k.e("""
    s_lshl_b32 s54, s50, 16
    s_lshl_b32 s55, s30, 11
    s_add_u32 s54, s54, s55            ; O offset
    v_and_b32 v3, 3, v1
    v_bfe_u32 v4, v1, 2, 1
    v_bfe_u32 v5, v1, 4, 1
    v_xor_b32 v4, v4, v5
    v_or_b32 v3, v3, v4
    v_cmp_eq_u32 vcc, 0, v3
    v_mov_b32 v4, 0x3f803f80
    s_nop 1
    v_cndmask_b32 v%d, 0, v4, vcc
    v_mov_b32 v%d, v%d
    v_mov_b32 v%d, v%d
    v_mov_b32 v%d, v%d
    """ % (ONES, ONES + 1, ONES, ONES + 2, ONES, ONES + 3, ONES))
    def adr(t): return (AC if t < 16 else AO), (t % 16) * 4096
    def rdK(t):
        a, o = adr(t)
        return ['ds_read_b128 %s, v%d offset:%d' % (vr(KF, 4), a, o), 'ds_read_b128 %s, v%d offset:%d' % (vr(KF + 4, 4), a, o + 1024)]
    def rdV(t):
        a, o = adr(t)
        return ['ds_read_b128 %s, v%d offset:%d' % (vr(VF, 4), a, o + 2048), 'ds_read_b128 %s, v%d offset:%d' % (vr(VF + 4, 4), a, o + 3072)]
    def qk(S, c):
        return ['v_mfma_f32_32x32x16_bf16 %s, %s, %s, %s' % (vr(S, 16), vr(KF, 4), vr(Q, 4), c),
                'v_mfma_f32_32x32x16_bf16 %s, %s, %s, %s' % (vr(S, 16), vr(KF + 4, 4), vr(Q + 4, 4), vr(S, 16))]
    def maxtile(S, first):
        st = 0
        if first:
            k.e('v_max3_f32 v%d, v%d, v%d, v%d' % (M, S, S + 1, S + 2))
            k.e('v_max_f32 v%d, v%d, v%d' % (M, M, S + 3))
            st = 4
        for r in range(st, 16, 2): k.e('v_max3_f32 v%d, v%d, v%d, v%d' % (M, M, S + r, S + r + 1))
    def set_negm(bias):
        k.e('v_mov_b32 v%d, v%d' % (T, M))
        k.e('s_nop 1')
        k.e('v_permlane32_swap_b32 v%d, v%d' % (M, T))
        k.e('s_nop 1')
        k.e('v_max_f32 v%d, v%d, v%d' % (M, M, T))
        k.e('v_sub_f32 v%d, %s, v%d' % (NEGM, hx(-bias), M))
        for r in range(1, 16): k.e('v_mov_b32 v%d, v%d' % (NEGM + r, NEGM))
    def zero_state():
        for r in range(16): k.e('v_mov_b32 v%d, 0' % (O + r))
        for r in range(4):
            k.e('v_mov_b32 v%d, 0' % (L + r))
            k.e('v_mov_b32 v%d, 0' % (P + 4 + r))
            k.e('v_mov_b32 v%d, 0' % (VF + 4 + r))
        k.e('v_mov_b32 v%d, v%d' % (AC, A0))
        k.e('v_add_u32 v%d, 0x10000, v%d' % (AO, A0))
        k.e('s_mov_b32 s57, 0')
    zero_state()
    if not MP0: srd(k, 80, 'ws', 0, 256 * KB)
    if not MP0: k.e("""
    s_and_b32 s49, s2, 3               ; k quarter
    s_lshl_b32 s49, s49, 3
    s_add_u32 s49, s49, s46            ; 32-row group
    s_mul_i32 s60, s49, %d
    s_lshr_b32 s63, s2, 2              ; col block
    s_lshl_b32 s63, s63, 7
    s_add_u32 s60, s60, s63
    s_add_u32 s60, s60, 4096
    s_add_u32 s61, s60, 12288
    s_and_b32 s49, s2, 3
    s_lshl_b32 s49, s49, 2
    s_and_b32 s63, s46, 3
    s_add_u32 s49, s49, s63
    s_lshl_b32 s49, s49, 8             ; silu offset of row groups 2(w&3), +1
    s_add_u32 s49, s49, %d
    v_lshrrev_b32 v%d, 3, v1
    v_mul_u32_u24 v%d, %d, v%d
    v_and_b32 v%d, 7, v1
    v_lshl_add_u32 v%d, v%d, 4, v%d
    v_lshlrev_b32 v%d, 4, v%d
    """ % (32 * 12288, WS_SC, MT, MA, 4 * 12288, MT, MT + 1, MA, MT + 1, MA, MT, MT))
    def mld(j): return ['s_add_u32 m0, s53, %d' % (AUX_A + j * 1024), 'buffer_load_dwordx4 v%d, s[80:83], s%d offen lds' % (MA, (60, 61, 63, 49)[j])]
    k.e('s_waitcnt vmcnt(%d)' % (7 if AST else 0))
    k.e('s_barrier')
    mark(k, 1)
    for r in rdK(1): k.e(r)
    k.e('s_waitcnt lgkmcnt(0)')
    for m in qk(SB, '0'): k.e(m)
    for r in rdK(0): k.e(r)
    k.e('s_waitcnt lgkmcnt(0)')
    for m in qk(SA, '0'): k.e(m)
    def extras():
        if MP0: return
        k.e(pfl(32))
        k.e('buffer_load_dwordx4 %s, v%d, s[80:83], s49 offen' % (vr(MSV, 4), MT))
        k.e('buffer_load_dwordx4 %s, v%d, s[80:83], s49 offen offset:128' % (vr(MSV + 4, 4), MT))
        srd(k, 80, 'w_mod')
        k.e('s_mov_b32 s49, 0x40000000')
        k.e('s_mov_b32 s63, 0x40000000')
    if AST: k.e('s_nop 7')
    else:
        emit_dma(str(STG)); extras()
    maxtile(SB, True)
    maxtile(SA, False)
    set_negm(40.0)
    if AST:
        k.e('s_waitcnt vmcnt(4)')
        k.e('s_barrier')
        extras()
    mark(k, 2)
    if env('APRIO', 0):
        k.e('s_cmp_ge_u32 s46, 4')
        k.e('s_cbranch_scc0 L_attn_noprio')
        k.e('s_setprio 1')
        k.label('L_attn_noprio')
    k.e('s_mov_b32 s59, %d' % (NST // 2))
    k.e('s_nop 0')
    for m in qk(SA, vr(NEGM, 16)): k.e(m)
    k.e(rdK(1)[0])
    k.e('ds_read_b32 v%d, v%d' % (T, A0))
    k.e(rdK(1)[1])
    k.e(rdV(0)[0])
    k.e('s_nop 7')
    lp = 'L_attn_loop'
    def pv(h): return 'v_mfma_f32_32x32x16_bf16 %s, %s, %s, %s' % (vr(O, 16), vr(VF + 4 * h, 4), vr(P + 4 * h, 4), vr(O, 16))
    def ls(h): return 'v_mfma_f32_16x16x32_bf16 %s, %s, %s, %s' % (vr(L, 4), vr(ONES, 4), vr(P + 4 * h, 4), vr(L, 4))
    def iteration(nsoft, pat0):
        for t in range(16):
            cur, nxt = (SA, SB) if t % 2 == 0 else (SB, SA)
            m_qk = qk(nxt, vr(NEGM, 16))
            kn = rdK(t + 2); v0n = rdV(t + 1)[0]; v1n = rdV(t)[1]
            ex = ['v_exp_f32 v%d, v%d' % (cur + r, cur + r) for r in range(16)]
            cv = ['v_cvt_pk_bf16_f32 v%d, v%d, v%d' % (P + d, cur + 2 * d, cur + 2 * d + 1) for d in range(8)]
            W = 's_waitcnt lgkmcnt(2)'
            head = []; xs = []
            if t % 8 == 6: head = ['s_waitcnt vmcnt(%d)' % (9 if not MP0 else (6 if t == 6 else 7)), 's_barrier']
            if t == 14 and not c.last and not nsoft: head = ['s_cmp_eq_u32 s59, 1', 's_cbranch_scc0 L_attn_nd', 's_waitcnt vmcnt(0)', 'L_attn_nd:'] + head
            d = dma('s58')
            if t % 8 == 0: xs = ['s_xor_b32 s58, s57, 0x%x' % (0x10000 if t == 0 else 0x18000), d[0], d[1]]
            elif t % 8 < 3: xs = [d[1 + t % 8]]
            elif t % 8 == 3: xs = [d[4], d[5]]
            elif t == 4: xs = [pfl(64)]
            elif t == 5: xs = [pfl(68)]
            elif MP0 and t == 7: xs = [pfl(32)]
            elif MP0 and t == 12: xs = ['s_add_u32 s62, s62, %d' % (2 * MB)]
            elif MP0 and t == 13: xs = []
            elif MP0 and t == 15: xs = ['s_xor_b32 s57, s57, 0x10000']
            elif t == 7: xs = mld(0)
            elif t == 12: xs = ['s_add_u32 s62, s62, %d' % (2 * MB)] + mld(2)
            elif t == 13: xs = mld(1)
            elif t == 15: xs = ['s_xor_b32 s57, s57, 0x10000'] + mld(3) + ['s_add_u32 s63, s60, %d' % (2 * 12288), 's_add_u32 s49, s60, %d' % (3 * 12288)]
            tail = ['v_swap_b32 v%d, v%d' % (AC, AO), 's_sub_u32 s59, s59, 1', 's_cmp_lg_u32 s59, 0'] if t == 15 else []
            pat = pat0 if t < nsoft else os.environ.get('APAT', 'eeeQeeePeeccLcc')
            body = []
            for hh in range(2):
                ei = 8 * hh; ci = 4 * hh
                for ch in pat:
                    if ch == 'e': body.append(ex[ei]); ei += 1
                    elif ch == 'c': body.append(cv[ci]); ci += 1
                    elif ch == 'Q': body += [W, m_qk[hh], kn[hh]]
                    elif ch == 'P': body += [pv(1 - hh), v1n if hh == 0 else v0n]
                    elif ch == 'L': body.append(ls(1 - hh))
                assert ei == 8 * hh + 8 and ci == 4 * hh + 4
            if tail:
                last_ds = max(i for i, x in enumerate(body) if x.startswith('ds_') or x.startswith('v_exp'))
                body = body[:last_ds + 1] + tail + body[last_ds + 1:]
            iq = max(i for i, x in enumerate(body) if x == m_qk[1])
            first_e = min(i for i, x in enumerate(body) if x.startswith('v_exp'))
            assert len(body) - 1 - iq + first_e >= 12, 'qk->exp distance'
            seq = list(head)
            for x in body:
                seq.append(x)
                if xs and x.startswith('v_exp'): seq.append(xs.pop(0))
            assert not xs
            AX = os.environ.get('AX', '')
            if 'p' in AX: seq = [x for x in seq if 's62 offen' not in x]
            for x in seq: k.e(x)
    if env('ASOFT', 8): iteration(env('ASOFT', 8), os.environ.get('APAT0', 'eQPLeeeeeeecccc'))
    k.label(lp)
    iteration(0, None)
    k.e('s_cbranch_scc1 %s' % lp)
    k.label('L_attn_epi')
    mark(k, 3)
    k.e('s_waitcnt lgkmcnt(0)')
    k.e(pv(1)); k.e(ls(1))
    k.e('s_nop 15')
    lstore = 'L_attn_store'; lsafe = 'L_attn_safe'
    k.e('v_max3_f32 v%d, |v%d|, |v%d|, |v%d|' % (T, O, O + 1, L))
    for r in range(2, 16, 2): k.e('v_max3_f32 v%d, |v%d|, |v%d|, v%d' % (T, O + r, O + r + 1, T))
    k.e('v_mul_f32 v%d, 0, v%d' % (T2, L))
    for r in range(16): k.e('v_fma_f32 v%d, 0, v%d, v%d' % (T2, O + r, T2))
    k.e('v_add_f32 v%d, v%d, v%d' % (T, T, T2))
    k.e('v_mov_b32 v3, %s' % hx(2.0 ** 120))
    k.e('v_cmp_nlt_f32 vcc, v%d, v3' % T)
    k.e('s_nop 4')
    k.e('s_cbranch_vccnz %s' % lsafe)
    k.label(lstore)
    k.e('v_rcp_f32 v%d, v%d' % (T, L))
    k.e('s_nop 0')
    for r in range(16): k.e('v_mul_f32 v%d, v%d, v%d' % (O + r, O + r, T))
    for d in range(8): k.e('v_cvt_pk_bf16_f32 v%d, v%d, v%d' % (P + d, O + 2 * d, O + 2 * d + 1))
    k.e('buffer_store_dwordx4 %s, v%d, s[40:43], s54 offen%s' % (vr(P, 4), A0, WT))
    k.e('buffer_store_dwordx4 %s, v%d, s[40:43], s54 offen offset:1024%s' % (vr(P + 4, 4), A0, WT))
    signal(k, 'S')
    endpgm(k)
    k.label(lsafe)
    def gl(dst, off): return 'buffer_load_dwordx4 %s, v%d, s[36:39], s56 offen offset:%d sc1' % (vr(dst, 4), A0, off)
    k.e('s_waitcnt vmcnt(0)')
    k.e('s_mov_b32 s56, 0')
    k.e('v_mov_b32 v%d, 0xff800000' % M)
    k.label(lsafe + '1')
    k.e(gl(KF, 0)); k.e(gl(KF + 4, 1024))
    k.e('s_waitcnt vmcnt(0)')
    for m in qk(SA, '0'): k.e(m)
    k.e('s_nop 15')
    maxtile(SA, False)
    k.e('s_add_u32 s56, s56, 4096')
    k.e('s_cmp_lt_u32 s56, %d' % (256 * KB))
    k.e('s_cbranch_scc1 %s1' % lsafe)
    set_negm(0.0)
    zero_state()
    k.e('s_mov_b32 s56, 0')
    k.label(lsafe + '2')
    k.e(gl(KF, 0)); k.e(gl(KF + 4, 1024)); k.e(gl(VF, 2048)); k.e(gl(VF + 4, 3072))
    k.e('s_waitcnt vmcnt(0)')
    for m in qk(SA, vr(NEGM, 16)): k.e(m)
    k.e('s_nop 15')
    for r in range(16): k.e('v_exp_f32 v%d, v%d' % (SA + r, SA + r))
    k.e('s_nop 0')
    for d in range(8): k.e('v_cvt_pk_bf16_f32 v%d, v%d, v%d' % (P + d, SA + 2 * d, SA + 2 * d + 1))
    k.e('s_nop 1')
    k.e(pv(0)); k.e(ls(0)); k.e(pv(1)); k.e(ls(1))
    k.e('s_add_u32 s56, s56, 4096')
    k.e('s_nop 7')
    k.e('s_cmp_lt_u32 s56, %d' % (256 * KB))
    k.e('s_cbranch_scc1 %s2' % lsafe)
    k.e('s_nop 15')
    k.e('s_branch %s' % lstore)
    k.need(MSV + 8, 160 * KB)

def k_attn2(k, c):
    phase_begin(k, c)
    assert c.prev == 'qkv' and c.nxt == 'wo' and not (MP0 and AOWN != 3)
    S2 = (8, 24); O2 = (40, 56); N2 = (72, 88); L2 = (104, 108); Q2 = (112, 120)
    ONES, KF, VF, P = 128, 132, 140, 148
    A0 = 156; AR = 157; M = 158; T = 159; T2 = 160; PFA = 161; MA = 162; MT = 164; PFD = 168
    k.e("""
    v_and_b32 v1, 63, v0
    s_mov_b32 s46, s3
    s_and_b32 s47, s3, 1               ; wn
    s_bfe_u32 s48, s3, 0x10001         ; wm
    s_lshr_b32 s49, s3, 2              ; kh
    s_lshl_b32 s50, s31, 1
    s_add_u32 s50, s50, s47            ; head
    s_lshl_b32 s52, s50, 18
    s_lshl_b32 s51, s49, 17
    s_add_u32 s51, s51, s52            ; stream base in KV
    s_lshl_b32 s55, s49, 1
    s_add_u32 s55, s55, s47
    s_lshl_b32 s55, s55, 15            ; stream ring base in LDS
    s_lshl_b32 s56, s48, 12            ; next global offset: own tile of stage 0
    s_add_u32 s57, s55, s56            ; LDS address of own tile in slot 0
    s_lshl_b32 s53, s3, 12             ; wave*4KB (mod slice staging)
    v_lshlrev_b32 v%d, 4, v1
    v_add_u32 v%d, s55, v%d
    s_lshl_b32 s54, s30, 2
    s_lshl_b32 s58, s48, 1
    s_add_u32 s54, s54, s58
    s_add_u32 s54, s54, s49            ; rb of the tile this wave finalises
    s_lshl_b32 s54, s54, 16
    s_lshl_b32 s58, s50, 11
    s_add_u32 s54, s54, s58            ; O offset
    s_lshl_b32 s62, s2, 13
    v_lshl_add_u32 v%d, v0, 4, s62     ; prefetch offset wg*8K + tid*16
    s_mov_b32 s62, 0
    v_and_b32 v3, 3, v1
    v_bfe_u32 v4, v1, 2, 1
    v_bfe_u32 v5, v1, 4, 1
    v_xor_b32 v4, v4, v5
    v_or_b32 v3, v3, v4
    v_cmp_eq_u32 vcc, 0, v3
    v_mov_b32 v4, 0x3f803f80
    s_nop 1
    v_cndmask_b32 v%d, 0, v4, vcc
    v_mov_b32 v%d, v%d
    v_mov_b32 v%d, v%d
    v_mov_b32 v%d, v%d
    """ % (A0, AR, A0, PFA, ONES, ONES + 1, ONES, ONES + 2, ONES, ONES + 3, ONES))
    mark(k, 0)
    if AOWN:
        srd(k, 36, 'ws', WS_KV, 256 * KB, soff='s52')
        k.e('''
        s_mov_b32 s86, s87                 ; qkv flag the compute waves still have to publish
        s_lshl_b32 s51, s30, 14
        s_add_u32 s51, s51, s56            ; offset of the own pairs (skipped in the stream)
        s_mul_i32 s58, s49, %d
        s_add_u32 s56, s56, s58
        s_cmp_ge_u32 s56, s51
        s_cselect_b32 s58, 16384, 0
        s_add_u32 s56, s56, s58
        ''' % (15 * 8192))
    else: srd(k, 36, 'ws', WS_KV, 128 * KB, soff='s51')
    srd(k, 80, 'ws', 0, 256 * KB)
    srd(k, 64, 'w_in'); srd(k, 68, 'w_sp'); srd(k, 32, 'wo')
    for r in range(16):
        k.e('v_mov_b32 v%d, 0' % (O2[0] + r)); k.e('v_mov_b32 v%d, 0' % (O2[1] + r))
    for r in range(4):
        for b in (L2[0], L2[1], P + 4, VF + 4): k.e('v_mov_b32 v%d, 0' % (b + r))
    k.e("""
    s_and_b32 s58, s2, 3               ; k quarter
    s_lshl_b32 s58, s58, 3
    s_add_u32 s58, s58, s46            ; 32-row group
    s_mul_i32 s60, s58, %d
    s_lshr_b32 s63, s2, 2              ; col block
    s_lshl_b32 s63, s63, 7
    s_add_u32 s60, s60, s63
    s_add_u32 s60, s60, 4096
    s_add_u32 s61, s60, 12288
    s_and_b32 s44, s2, 3
    s_lshl_b32 s44, s44, 2
    s_and_b32 s63, s46, 3
    s_add_u32 s44, s44, s63
    s_lshl_b32 s44, s44, 8             ; silu offset of row groups 2(w&3), +1
    s_add_u32 s44, s44, %d
    v_lshrrev_b32 v%d, 3, v1
    v_mul_u32_u24 v%d, %d, v%d
    v_and_b32 v%d, 7, v1
    v_lshl_add_u32 v%d, v%d, 4, v%d
    v_lshlrev_b32 v%d, 4, v%d
    ; Q / stand-in exchange area: tile A of this wave = tile kh
    s_and_b32 s58, s3, 3
    s_mul_i32 s58, s58, 5120
    s_add_u32 s58, s58, %d
    s_lshl_b32 s63, s49, 11
    s_add_u32 s63, s63, s58
    v_add_u32 v2, s63, v%d             ; Q of tile kh
    v_xor_b32 v3, 1, v2
    s_xor_b32 s63, s49, 1
    s_lshl_b32 s63, s63, 11
    s_add_u32 s63, s63, s58
    v_add_u32 v3, s63, v%d             ; Q of the other tile
    s_lshl_b32 s63, s49, 2
    s_add_u32 s63, s63, s58
    v_lshl_add_u32 v4, v1, 3, s63
    v_xor_b32 v5, 4, v4
    """ % (32 * 12288, WS_SC, MT, MA, 4 * 12288, MT, MT + 1, MA, MT + 1, MA, MT, MT, AUX_A, A0, A0))
    set_flag(k, 's_lshl_b32 s100, s30, 8\ns_lshl_b32 s101, s31, 2\ns_add_u32 s100, s100, s101\ns_add_u32 s100, s100, %d' % FL_ATT)
    def hand(): handoff(k, 's_lshl_b32 s100, s31, 8\ns_add_u32 s100, s100, %d' % FL_QKV, 64, role='A')
    if AOWN: k.e('s_barrier')
    else: hand()
    def dma(slot):
        return ['s_add_u32 m0, s57, %d' % (slot * 8192)] + \
               ['buffer_load_dwordx4 v%d, s[36:39], s56 offen offset:%d sc1 lds' % (A0, q * 1024) for q in range(4)] + \
               ['s_add_u32 s56, s56, 8192' + ('\ns_cmp_eq_u32 s56, s51\ns_cselect_b32 s58, 16384, 0\ns_add_u32 s56, s56, s58' if AOWN else '')]
    def emit_dma(slot):
        d = dma(slot); k.e(d[0]); k.e('s_nop 0')
        for x in d[1:]: k.e(x)
    def pfl(n): return 'buffer_load_dwordx4 %s, v%d, %s, s62 offen' % (vr(PFD, 4), PFA, sr(n))
    def mld(j): return [] if MP0 else ['s_add_u32 m0, s53, %d' % (AUX_A + j * 1024), 'buffer_load_dwordx4 v%d, s[80:83], s%d offen lds' % (MA, (60, 61, 63, 45)[j])]
    if not AOWN: emit_dma(0); emit_dma(1)
    for q in range(2):
        k.e('ds_read_b128 %s, v%d' % (vr(Q2[q], 4), 2 + q))
        k.e('ds_read_b128 %s, v%d offset:1024' % (vr(Q2[q] + 4, 4), 2 + q))
        k.e('ds_read_b32 v%d, v%d offset:4096' % (N2[q], 4 + q))
    k.e('s_waitcnt lgkmcnt(0)')
    for r in range(1, 16):
        for q in range(2): k.e('v_mov_b32 v%d, v%d' % (N2[q] + r, N2[q]))
    if not AOWN:
        k.e('s_waitcnt vmcnt(4)')
        k.e('s_barrier')
        mark(k, 1)
    def rd(dst, t, part): return 'ds_read_b128 %s, v%d offset:%d' % (vr(dst, 4), AR, (t % 8) * 4096 + part * 1024)
    def qk(q, hh, c0=None):
        S_ = S2[q]
        return 'v_mfma_f32_32x32x16_bf16 %s, %s, %s, %s' % (vr(S_, 16), vr(KF + 4 * hh, 4), vr(Q2[q] + 4 * hh, 4), (c0 or vr(N2[q], 16)) if hh == 0 else vr(S_, 16))
    def pv(q, h): return 'v_mfma_f32_32x32x16_bf16 %s, %s, %s, %s' % (vr(O2[q], 16), vr(VF + 4 * h, 4), vr(P + 4 * h, 4), vr(O2[q], 16))
    def ls(q, h): return 'v_mfma_f32_16x16x32_bf16 %s, %s, %s, %s' % (vr(L2[q], 4), vr(ONES, 4), vr(P + 4 * h, 4), vr(L2[q], 4))
    k.e(rd(KF, 0, 0)); k.e(rd(KF + 4, 0, 1)); k.e(rd(VF, 0, 2))
    def silu_loads():
        if MP0: return
        k.e('buffer_load_dwordx4 %s, v%d, s[80:83], s44 offen sc1' % (vr(MSV, 4), MT))
        k.e('buffer_load_dwordx4 %s, v%d, s[80:83], s44 offen offset:128 sc1' % (vr(MSV + 4, 4), MT))
    def wmod():
        if MP0: return
        srd(k, 80, 'w_mod')
        k.e('s_add_u32 s63, s60, %d' % (2 * 12288))
        k.e('s_add_u32 s45, s60, %d' % (3 * 12288))
    if not AOWN: silu_loads()
    k.e('s_waitcnt lgkmcnt(1)')
    k.e(qk(0, 0)); k.e(qk(0, 1))
    if AOWN: k.e('s_nop 11')
    else:
        emit_dma(2); wmod()
    OD = env('OD', 0) and AOWN == 3
    ool = []
    def late_start():
        if AOWN == 1:
            l = k.newlabel('ls')
            k.e('s_cmp_lt_u32 s3, 4'); k.e('s_cbranch_scc1 %s' % l)
            flag_prep(k)
            k.e('s_and_b32 s100, s3, 3\ns_lshl_b32 s100, s100, 7\ns_add_u32 s100, s100, s86')
            k.e('s_waitcnt vmcnt(0)')
            flag_store(k, 's100')
            k.label(l)
        hand()
        mark(k, 1)
        if OD:
            emit_dma(1); silu_loads(); wmod()
            k.e('''
            s_lshl_b32 s43, s48, 12
            s_add_u32 s43, s43, %d
            s_cmp_ge_u32 s43, s51
            s_cselect_b32 s58, 16384, 0
            s_add_u32 s43, s43, s58
            s_cmp_lt_u32 s3, 4
            s_cselect_b64 vcc, -1, 0
            s_cbranch_scc0 L_attn_np
            s_setprio 1
            L_attn_np:
            ''' % (16 * 8192))
        else:
            emit_dma(1); silu_loads(); emit_dma(2); wmod()
    k.e('s_mov_b32 s59, %d' % (3 if env('LASTB', 1) and not OD else 4))
    mark(k, 2)
    lp = 'L_attn_loop'
    LASTB = env('LASTB', 1) and not OD
    def iteration(first, nsoft, pat0, last=False):
        for u in range(16):
            t = u // 2; q = u % 2; st = u // 4; us = u % 4
            cur = S2[q]
            ex = ['v_exp_f32 v%d, v%d' % (cur + r, cur + r) for r in range(16)]
            cv = ['v_cvt_pk_bf16_f32 v%d, v%d, v%d' % (P + d, cur + 2 * d, cur + 2 * d + 1) for d in range(8)]
            if q == 0:
                Qs = [[qk(1, 0), rd(KF, t + 1, 0)], [qk(1, 1), rd(KF + 4, t + 1, 1)]]
                Ps = [[pv(1, 1), rd(VF + 4, t, 3)], ['WAITV', pv(0, 0)]]
            else:
                Qs = [['s_waitcnt lgkmcnt(0)', qk(0, 0)], [qk(0, 1)]]
                Ps = [[pv(0, 1)], [pv(1, 0), rd(VF, t + 1, 2)]]
            Ls = [ls(1 - q, 1), ls(q, 0)]
            peel = first and AOWN == 4 and u in (2, 3)
            if peel and u == 2:
                Qs = [[qk(1, 0)], [qk(1, 1)]]; Ps = [[pv(1, 1), rd(VF + 4, t, 3)], ['s_waitcnt lgkmcnt(1)', pv(0, 0)]]
            if peel and u == 3:
                Qs = [['s_waitcnt lgkmcnt(0)'], ['s_nop 0']]; Ps = [[pv(0, 1)], [pv(1, 0)]]
            inc = ['s_add_u32 s62, s62, %d' % (2 * MB)]
            NOPF = env('NOPF', 0)
            if first and AOWN: extra = [[], [], mld(0) + [pfl(32)], [pfl(64)], mld(1), mld(2), mld(3), [pfl(68)] + inc]
            elif first: extra = [[], [pfl(32)], mld(0), [pfl(64)], mld(1), mld(2), mld(3), [pfl(68)] + inc]
            else: extra = [[], [], [pfl(64)], [], [], [], [pfl(68)] + inc, []]
            if NOPF: extra = [[y for y in x if 's62' not in y] for x in extra]
            cnt = lambda e: [sum('buffer_load' in y for y in e[2 * i] + e[2 * i + 1]) for i in range(4)]
            nx_ = cnt(extra)
            prevx = ((0 if MP0 else 2) if first else nx_[3]) if st == 0 else nx_[st - 1]
            head = ['s_waitcnt vmcnt(%d)' % (prevx + 4 + nx_[st]), 's_barrier'] if us == 2 else []
            if last and us == 2 and st >= 2: head = (['s_waitcnt vmcnt(%d)' % (prevx + nx_[st])] if st == 2 else []) + ['s_barrier']
            if peel: head = []
            d = dma((st + 3) % 4)
            if OD and us == 2:
                lb = 'L_attn_fd%d_%d' % (first, st)
                d0 = dma((st + 2) % 4)
                d1 = [x.replace('s56', 's43').replace('s57, %d' % (((st + 2) % 4) * 8192), 's57, %d' % (((st + 2) % 4) * 8192 + 65536)) for x in d0]
                nw = 8 + nx_[st] + (2 if first and st == 0 else 0)
                ool.append([lb + ':', d0[0], 's_nop 0'] + d0[1:5] + [d1[0], 's_nop 0'] + d1[1:5] + [d0[5], d1[5], 's_waitcnt vmcnt(%d)' % nw, 's_branch %sr' % lb])
                head = ['s_cbranch_vccnz %s' % lb] + (['s_waitcnt vmcnt(2)'] if first and st == 0 else []) + [lb + 'r:', 's_barrier']
            if (OD or (last and st >= 1)) and us >= 2: xs = []
            elif us == 2: xs = [d[0], d[1], None, None, None, None, None, None, None, d[2]]
            elif us == 3: xs = [d[3], None, None, None, None, None, None, None, d[4], d[5]]
            else: xs = list(extra[2 * st + us])
            pat = pat0 if u < nsoft else os.environ.get('APAT', 'eeeQeeePeeccLcc')
            assert pat.index('Q') < pat.index('P')
            body = []
            for hh in range(2):
                ei = 8 * hh; ci = 4 * hh
                for ch in pat:
                    if ch == 'e': body.append(ex[ei]); ei += 1
                    elif ch == 'c': body.append(cv[ci]); ci += 1
                    elif ch == 'Q': body += Qs[hh]
                    elif ch == 'P': body += Ps[hh]
                    elif ch == 'L': body.append(Ls[hh])
            body = ['s_waitcnt lgkmcnt(3)' if x == 'WAITV' else x for x in body]
            if u == 15 and not last:
                le = max(i for i, x in enumerate(body) if x.startswith('v_exp'))
                body = body[:le + 1] + ['s_sub_u32 s59, s59, 1', 's_cmp_lg_u32 s59, 0'] + body[le + 1:]
            if peel and u == 3:
                body += ['s_waitcnt vmcnt(10)', 's_barrier', rd(KF, 2, 0), rd(KF + 4, 2, 1), rd(VF, 2, 2), 's_waitcnt lgkmcnt(1)', qk(0, 0), qk(0, 1)]
            iq = body.index(qk(1 - q, 1))
            first_e = min(i for i, x in enumerate(body) if x.startswith('v_exp'))
            gap = len(body) - 1 - iq + first_e
            if gap < 12: body.append('s_nop %d' % (11 - gap))
            if first and AOWN and u == (0 if AOWN == 3 else 2): late_start()
            seq = list(head)
            for x in body:
                seq.append(x)
                if xs and x.startswith('v_exp'):
                    y = xs.pop(0)
                    if y: seq.append(y)
            assert not xs
            AX = os.environ.get('AX', '')
            if 'b' in AX: seq = [x for x in seq if x != 's_barrier']
            if 'p' in AX: seq = [x for x in seq if 's62 offen' not in x and 's[80:83]' not in x]
            if 'v' in AX: seq = [x for x in seq if 'buffer_load' not in x]
            if 'd' in AX: seq = [x for x in seq if not x.startswith('ds_read') and 'lgkmcnt' not in x]
            if 'l' in AX: seq = [x for x in seq if '16x16x32' not in x]
            for x in seq: k.e(x)
    iteration(True, env('ASOFT', 8), os.environ.get('APAT0', 'eQPLeeeeeeecccc'))
    k.label(lp)
    iteration(False, 0, None)
    k.e('s_cbranch_scc1 %s' % lp)
    if LASTB:
        iteration(False, 0, None, last=True)
        k.e('s_nop 0')
    k.label('L_attn_epi')
    if 'b' in os.environ.get('AX', ''): k.e('s_barrier')
    mark(k, 3)
    k.e('s_nop 0')
    k.e(pv(1, 1)); k.e(ls(1, 1))
    if LASTB:
        k.e("""
        s_lshl_b32 s58, s48, 13
        s_add_u32 s58, s58, s55
        s_add_u32 s58, s58, 8192
        v_add_u32 v2, s58, v%d
        v_lshl_add_u32 v4, v1, 2, s58
        s_xor_b32 s58, s58, 0x10000
        v_add_u32 v3, s58, v%d
        v_lshl_add_u32 v5, v1, 2, s58
        s_nop 3
        """ % (A0, A0))
    else:
        k.e("""
        s_mul_i32 s58, s3, 5120
        v_add_u32 v2, s58, v%d
        v_lshl_add_u32 v4, v1, 2, s58
        s_xor_b32 s58, s3, 4
        s_mul_i32 s58, s58, 5120
        v_add_u32 v3, s58, v%d
        v_lshl_add_u32 v5, v1, 2, s58
        s_waitcnt vmcnt(0) lgkmcnt(0)
        s_barrier
        s_nop 3
        """ % (A0, A0))
    for r in range(4): k.e('ds_write_b128 v2, %s offset:%d' % (vr(O2[1] + 4 * r, 4), r * 1024))
    k.e('ds_write_b32 v4, v%d offset:4096' % L2[1])
    srd(k, 40, 'ws', WS_O, 4 * MB)
    k.e('s_waitcnt lgkmcnt(0)')
    k.e('s_barrier')
    for r in range(4): k.e('ds_read_b128 %s, v3 offset:%d' % (vr(S2[0] + 4 * r, 4), r * 1024))
    k.e('ds_read_b32 v%d, v5 offset:4096' % T)
    k.e('s_waitcnt lgkmcnt(0)')
    O = O2[0]; L = L2[0]; SA = S2[0]; NEGM = N2[0]
    for r in range(0, 16, 2): k.e(pk('add', O + r, O + r, SA + r))
    k.e('v_add_f32 v%d, v%d, v%d' % (L, L, T))
    lstore = 'L_attn_store'; lsafe = 'L_attn_safe'
    k.e('v_max3_f32 v%d, |v%d|, |v%d|, |v%d|' % (T, O, O + 1, L))
    for r in range(2, 16, 2): k.e('v_max3_f32 v%d, |v%d|, |v%d|, v%d' % (T, O + r, O + r + 1, T))
    k.e('v_mul_f32 v%d, 0, v%d' % (T2, L))
    for r in range(16): k.e('v_fma_f32 v%d, 0, v%d, v%d' % (T2, O + r, T2))
    k.e('v_add_f32 v%d, v%d, v%d' % (T, T, T2))
    k.e('v_mov_b32 v3, %s' % hx(2.0 ** 120))
    k.e('v_cmp_nlt_f32 vcc, v%d, v3' % T)
    k.e('s_nop 4')
    k.e('s_cbranch_vccnz %s' % lsafe)
    k.label(lstore)
    k.e('v_rcp_f32 v%d, v%d' % (T2, L))
    k.e('s_nop 0')
    for r in range(0, 16, 2): k.e(pk('mul', O + r, O + r, (T2,)))
    for d in range(8): k.e('v_cvt_pk_bf16_f32 v%d, v%d, v%d' % (P + d, O + 2 * d, O + 2 * d + 1))
    k.e('buffer_store_dwordx4 %s, v%d, s[40:43], s54 offen%s' % (vr(P, 4), A0, WT))
    k.e('buffer_store_dwordx4 %s, v%d, s[40:43], s54 offen offset:1024%s' % (vr(P + 4, 4), A0, WT))
    signal(k, 'S')
    endpgm(k)
    for blk in ool:
        for x in blk: k.e(x)
    k.label(lsafe)
    srd(k, 36, 'ws', WS_KV, 256 * KB, soff='s52')
    def gl(dst, off): return 'buffer_load_dwordx4 %s, v%d, s[36:39], s56 offen offset:%d sc1' % (vr(dst, 4), A0, off)
    k.e('s_mov_b32 s56, 0')
    k.e('v_mov_b32 v%d, 0xff800000' % M)
    k.label(lsafe + '1')
    k.e(gl(KF, 0)); k.e(gl(KF + 4, 1024))
    k.e('s_waitcnt vmcnt(0)')
    k.e(qk(0, 0, '0')); k.e(qk(0, 1))
    k.e('s_nop 15')
    for r in range(0, 16, 2): k.e('v_max3_f32 v%d, v%d, v%d, v%d' % (M, M, SA + r, SA + r + 1))
    k.e('s_add_u32 s56, s56, 4096')
    k.e('s_cmp_lt_u32 s56, %d' % (256 * KB))
    k.e('s_cbranch_scc1 %s1' % lsafe)
    k.e('v_mov_b32 v%d, v%d' % (T, M))
    k.e('s_nop 1')
    k.e('v_permlane32_swap_b32 v%d, v%d' % (M, T))
    k.e('s_nop 1')
    k.e('v_max_f32 v%d, v%d, v%d' % (M, M, T))
    k.e('v_sub_f32 v%d, 0, v%d' % (NEGM, M))
    for r in range(1, 16): k.e('v_mov_b32 v%d, v%d' % (NEGM + r, NEGM))
    for r in range(16): k.e('v_mov_b32 v%d, 0' % (O + r))
    for r in range(4): k.e('v_mov_b32 v%d, 0' % (L + r))
    k.e('s_mov_b32 s56, 0')
    k.label(lsafe + '2')
    k.e(gl(KF, 0)); k.e(gl(KF + 4, 1024)); k.e(gl(VF, 2048)); k.e(gl(VF + 4, 3072))
    k.e('s_waitcnt vmcnt(0)')
    k.e(qk(0, 0)); k.e(qk(0, 1))
    k.e('s_nop 15')
    for r in range(16): k.e('v_exp_f32 v%d, v%d' % (SA + r, SA + r))
    k.e('s_nop 0')
    for d in range(8): k.e('v_cvt_pk_bf16_f32 v%d, v%d, v%d' % (P + d, SA + 2 * d, SA + 2 * d + 1))
    k.e('s_nop 1')
    k.e(pv(0, 0)); k.e(ls(0, 0)); k.e(pv(0, 1)); k.e(ls(0, 1))
    k.e('s_add_u32 s56, s56, 4096')
    k.e('s_nop 7')
    k.e('s_cmp_lt_u32 s56, %d' % (256 * KB))
    k.e('s_cbranch_scc1 %s2' % lsafe)
    k.e('s_nop 15')
    k.e('s_branch %s' % lstore)
    k.need(MSV + 8, 160 * KB)

PHASES = dict(p0=k_p0, qkv=k_qkv, attn=k_attn2 if AT2 else k_attn,
              wo=lambda k, c: k_proj(k, c, 1024, ('xf', WS_O, 1024), 'wo', False),
              win=k_win2 if W22 else k_win, wsp=k_wsp,
              wout=lambda k, c: k_proj(k, c, 1792, ('xf', WS_U2, 1792), 'w_out', True))
GROUPS = [g.split('+') for g in os.environ.get('GRP', 'p0+qkv+attn+wo+win+wsp+wout').split(',')]
def same_kernel(a, b): return any(a in g_ and b in g_ for g_ in GROUPS)
def build():
    ks = []
    for grp in GROUPS:
        k = Kern(grp[0] if len(grp) == 1 else 'm' + grp[0], 256, 1024 if grp[0] == 'pre' else 512, 0)
        prologue(k)
        for i, ph in enumerate(grp):
            c = Ctx(); c.name = ph; c.first = i == 0; c.last = i == len(grp) - 1; c.nxt = None if c.last else grp[i + 1]; c.prev = grp[i - 1] if i else None
            PHASES[ph](k, c)
        k.label(k.endl)
        k.e('s_endpgm')
        assert k.lds <= 160 * KB
        ks.append(k)
    s = '; adaLN + softmax MHA + gMLP block, generated by gen.py (hand-written generator)\n'
    for k in ks: s += k.launch()
    s += '.amdgcn_target "amdgcn-amd-amdhsa--gfx950"\n.text\n'
    for k in ks: s += k.text()
    s += 'L_text_end:\n    s_endpgm\n'
    s += '.section .rodata,"a"\n'
    for k in ks: s += k.desc()
    if len(ks) == 1 and env('SINGLE', 0):
        s = s.replace('; @launch kernel=%s_kernel ' % ks[0].name, '; @launch ')
        s = s.replace(ks[0].name + '_kernel', 'adaLN_cond__softmax_full_mha__mixer_gmlp__prompt_kernel')
    return s

PROMO = ('v_exp_f32', 'v_rcp_f32', 'v_mov_b32', 'v_add_f32', 'v_mul_f32', 'v_sub_f32', 'v_max_f32', 'v_lshlrev_b32', 'v_lshrrev_b32',
         'v_and_b32', 'v_xor_b32', 'v_or_b32', 'v_add_u32', 'v_fmac_f32', 'v_min_u32', 'v_max_u32', 'v_rsq_f32', 'v_sqrt_f32')
def align8(text):
    import subprocess, tempfile, re
    lines = text.split('\n')
    i0 = next(i for i, l in enumerate(lines) if l.endswith('_kernel:')); i1 = next(i for i, l in enumerate(lines) if l.startswith('.section'))
    idx = [i for i in range(i0, i1) if lines[i].strip() and not lines[i].strip().startswith((';', '.')) and not lines[i].strip().endswith(':')]
    with tempfile.TemporaryDirectory() as d:
        open(d + '/a.s', 'w').write(text)
        subprocess.check_call(['clang', '-x', 'assembler', '-target', 'amdgcn-amd-amdhsa', '-mcpu=gfx950', '-c', d + '/a.s', '-o', d + '/a.o'])
        dis = subprocess.check_output(['llvm-objdump', '-d', '--mcpu=gfx950', d + '/a.o'], text=True)
    sz = [4 * len(m.group(1).split()) for m in re.finditer(r'// [0-9A-F]{12}: ([0-9A-F ]+)', dis)]
    assert len(sz) == len(idx), (len(sz), len(idx))
    off = 0; ins = {}; npro = nnop = 0
    MINRUN = env('MINRUN', 8)
    for n, i in enumerate(idx):
        if sz[n] == 8 and off % 8 == 4:
            p = n - 1; done = False
            while p >= 0 and sz[p] == 4:
                op = lines[idx[p]].split()[0]
                if op in PROMO:
                    lines[idx[p]] = lines[idx[p]].replace(op, op + '_e64', 1); sz[p] = 8; off += 4; done = True; npro += 1
                    break
                p -= 1
            if not done:
                r = 0
                while n + r < len(sz) and sz[n + r] == 8: r += 1
                prev = lines[idx[n - 1]].split()[0]
                if r >= MINRUN and prev != 's_getpc_b64':
                    ins[i] = '    s_nop 0'; off += 4; nnop += 1
        off += sz[n]
    out = []
    for i, l in enumerate(lines):
        if i in ins: out.append(ins[i])
        out.append(l)
    print('align8: %d widened, %d nops' % (npro, nnop))
    return '\n'.join(out)

if __name__ == '__main__':
    out = sys.argv[1] if len(sys.argv) > 1 else 'adaLN_cond__softmax_full_mha__mixer_gmlp__prompt.s'
    txt = build()
    if env('AL8', 1): txt = align8(txt)
    open(out, 'w').write(txt)
    print('wrote', out)
```

```python
import sys, struct, os
STAMP = int(os.environ.get('STAMP', '0'))
WS_STAMP = 128 << 20
KIDX = [0]
def env(n, d): return int(os.environ.get(n, d))

MB = 1 << 20
KB = 1024
WS_MOD = 0
WS_UW  = 32 * KB
WS_ST0 = 64 * KB
WS_MODP = 128 * KB
WS_MODT = 768 * KB
TAGP = env('TAGP', 1)
WS_SC = 96 * KB
WS_MODQ = 160 * KB
WS_ST1 = 256 * KB
WS_G   = 512 * KB
WS_FL  = 58 * MB
FLSZ = 2 * MB
FL_LN1, FL_QKV, FL_ATT, FL_WO, FL_WIN, FL_WSP, FL_MOD = [i * 8 * KB for i in range(7)]
WS_EPOCH = 240 * KB
AUX_A = 128 * KB; AUX_B = 148 * KB
WS_H   = 1 * MB
WS_Q   = 5 * MB
WS_KV  = 9 * MB
WS_G2  = 57 * MB
WS_N   = 60 * MB
WS_O   = 17 * MB
WS_X1  = 21 * MB
WS_X1S = 25 * MB
WS_Z   = 29 * MB
ZSZ = 2048 * 1792 * 2
WS_Z2N = WS_Z + ZSZ
WS_U2  = 50 * MB
if env('ALIAS', 0):
    WS_Q = 1 * MB; WS_KV = 5 * MB; WS_H = 13 * MB
    WS_O = WS_H; WS_X1 = WS_Q; WS_X1S = WS_KV
    WS_Z2N = 9 * MB; WS_Z = 17 * MB; WS_U2 = WS_Z
ZB = min(WS_Z, WS_Z2N)

ROLES = {'pre': [('mod', 0, 128, 0, 16), ('stats', 128, 256, 0, 16)], 'ln1': [('pf', 0, 256, 0, 4), ('ln', 0, 256, 4, 8)],
         'attn': [('main', 0, 256, 0, 8)]}
for _n in ('qkv', 'wo', 'wout'): ROLES[_n] = [('load', 0, 256, 0, 4), ('comp', 0, 256, 4, 8)]
for _n in ('win', 'wsp'): ROLES[_n] = [('load', 0, 224, 0, 4), ('comp', 0, 224, 4, 8), ('pf', 224, 256, 0, 8)]
def f2u(f): return struct.unpack('<I', struct.pack('<f', f))[0]
def hx(f): return '0x%08x' % f2u(f)
LOG2E = 1.4426950408889634
WT = os.environ.get('WTF', ' sc1')

class Kern:
    def __init__(self, name, grid, block, lds):
        self.name = name; self.grid = grid; self.block = block; self.lds = lds
        self.lines = []; self.vgpr = 0; self.nlab = 0
    def e(self, s):
        for l in s.strip('\n').split('\n'):
            l = l.strip()
            if l: self.lines.append('    ' + l)
    def label(self, l):
        if env('ALIGN', 0) and ('_loop' in l or '_lloop' in l):
            self.lines.append('.p2align %d' % env('ALIGN', 0))
            for _ in range(env('ALOFF', 0)): self.lines.append('    s_nop 0')
        self.lines.append(l + ':')
    def newlabel(self, base):
        self.nlab += 1
        return 'L_%s_%s%d' % (self.name, base, self.nlab)
    def need(self, vgpr, lds):
        self.vgpr = max(self.vgpr, vgpr); self.lds = max(self.lds, lds)
    def text(self):
        GX = os.environ.get('GX', '')
        if self.name != 'pre':
            if 'm' in GX: self.lines = [l for l in self.lines if 'v_mfma' not in l]
            if 'l' in GX: self.lines = [l for l in self.lines if not (' lds' in l and 'buffer_load' in l and ('s57' in l or 's58' in l))]
            if 'r' in GX: self.lines = [l for l in self.lines if not ('ds_read_b64_tr' in l)]
        if os.environ.get('NOLDSC'):
            self.lines = [l.replace(' sc1 lds', ' lds') for l in self.lines]
        n = self.name + '_kernel'
        return '.globl %s\n.p2align 8\n.type %s,@function\n%s:\n' % (n, n, n) + '\n'.join(self.lines) + '\n'
    def desc(self):
        n = self.name + '_kernel'
        v = self.vgpr
        acc = (v + 3) // 4 * 4
        return ('.p2align 6\n.amdhsa_kernel %s\n  .amdhsa_next_free_vgpr %d\n  .amdhsa_next_free_sgpr 102\n'
                '  .amdhsa_accum_offset %d\n  .amdhsa_group_segment_fixed_size 0\n  .amdhsa_kernarg_size 104\n'
                '  .amdhsa_user_sgpr_count 2\n  .amdhsa_user_sgpr_kernarg_segment_ptr 1\n'
                '  .amdhsa_system_sgpr_workgroup_id_x 1\n.end_amdhsa_kernel\n' % (n, v, acc))
    def launch(self):
        return '; @launch kernel=%s_kernel grid=(%d,1,1) block=(%d,1,1) lds=%d\n' % (self.name, self.grid, self.block, self.lds)

PTR = dict(x=4, wqkv=6, wo=8, bx=10, w_in=12, w_sp=14, b_sp=16, w_out=18, c=20, w_mod=22, out=24, dbg=26, ws=28)
SIZES = dict(x=2048*1024*2, wqkv=1024*3072*2, wo=1024*1024*2, w_in=1024*3584*2, w_sp=2048*2048*2, b_sp=2048*2,
             w_out=1792*1024*2, c=2048, w_mod=1024*6144*2, out=2048*1024*2, dbg=256)

class Ctx: pass
PHIDX = {}
def prologue(k):
    k.endl = 'L_%s_end' % k.name
    k.e("""
    s_load_dwordx16 s[4:19], s[0:1], 0
    s_load_dwordx8 s[20:27], s[0:1], 64
    s_load_dwordx2 s[28:29], s[0:1], 96
    s_cmp_ge_u32 s2, %d
    s_cbranch_scc1 %s
    v_lshrrev_b32 v1, 6, v0
    s_nop 0
    v_readfirstlane_b32 s3, v1
    """ % (k.grid, k.endl))

def phase_begin(k, c):
    k.c = c
    k.label('L_%s_entry' % c.name)
    if env('IDLE_' + c.name, 0):
        for _ in range(env('IDLE_' + c.name, 0)): k.e('s_sleep 36')
    c.kidx = KIDX[0]; KIDX[0] += 1
    PHIDX[c.name] = c.kidx
    if env('PADTO', 0) and c.first: k.e('s_memrealtime s[90:91]')
    if env('DBG', 0) and c.first: dbgstamp(k, 0 if c.name == 'pre' else 10, 512 if c.name == 'pre' else 0, '')
    if STAMP:
        k.e('s_memtime s[88:89]')
        k.e('s_memrealtime s[90:91]')
        for i in range(4): k.e('s_mov_b64 s[%d:%d], 0' % (72 + 2 * i, 73 + 2 * i))

def dbgstamp(k, idx, off, op):
    l = k.newlabel('dbg')
    k.e('''
    s_lshl_b32 s80, s2, 4
    s_add_u32 s80, s80, s3
    s_cmp_lg_u32 s80, %d
    s_cbranch_scc1 %s
    s_waitcnt lgkmcnt(0)
    s_memrealtime s[92:93]
    s_add_u32 s80, s26, %d
    s_addc_u32 s81, s27, 0
    s_and_b32 s81, s81, 0xffff
    s_mov_b32 s82, 256
    s_mov_b32 s83, 0x20000
    s_mov_b64 exec, 1
    s_waitcnt lgkmcnt(0)
    v_mov_b32 v2, s92
    v_mov_b32 v5, %d
    buffer_store_dword v2, v5, s[80:83], 0 offen
    s_mov_b64 exec, -1
    ''' % (5 * 16 + 4, l, off, idx * 4))
    k.label(l)
def endpgm(k):
    c = k.c
    if env('DBG', 0): dbgstamp(k, 1 + c.kidx, 512 if c.name == 'pre' else 0, '')
    if STAMP:
        k.e("""
        s_waitcnt vmcnt(0) lgkmcnt(0)
        s_memtime s[92:93]
        s_memrealtime s[94:95]
        s_mov_b64 exec, 1
        s_add_u32 s80, s28, 0x%x
        s_addc_u32 s81, s29, 0
        s_and_b32 s81, s81, 0xffff
        s_mov_b32 s82, 0x100000
        s_mov_b32 s83, 0x20000
        s_lshl_b32 s86, s2, 4
        s_add_u32 s86, s86, s3
        s_lshl_b32 s86, s86, 5
        s_waitcnt lgkmcnt(0)
        v_mov_b32 v4, s90
        v_mov_b32 v5, s94
        v_mov_b32 v6, s88
        v_mov_b32 v7, s92
        v_mov_b32 v8, s72
        v_mov_b32 v9, s74
        v_mov_b32 v10, s76
        v_mov_b32 v11, s78
        v_mov_b32 v2, s86
        buffer_store_dwordx4 v[4:7], v2, s[80:83], 0 offen
        buffer_store_dwordx4 v[8:11], v2, s[80:83], 0 offen offset:16
        s_waitcnt vmcnt(0)
        """ % (WS_STAMP + c.kidx * (1 << 20)))
    if c.last and env('PADTO', 0):
        l = k.newlabel('pad')
        k.label(l)
        k.e('s_memrealtime s[92:93]\ns_waitcnt lgkmcnt(0)\ns_sub_u32 s92, s92, s90\ns_cmp_lt_u32 s92, %d\ns_cbranch_scc1 %s' % (env('PADTO', 0) * 100, l))
    if c.last: k.e('s_endpgm')
    else:
        k.e('s_mov_b64 exec, -1')
        k.e('s_setprio 0')
        k.e('s_branch L_%s_entry' % c.nxt)
def mark(k, i=0):
    if STAMP:
        k.e('s_memtime s[%d:%d]' % (72 + 2 * i, 73 + 2 * i))
        k.e('s_waitcnt lgkmcnt(0)')

def set_flag(k, setup):
    if not k.c.last:
        k.e(setup)
        k.e('s_lshl_b32 s87, s100, 5')
def OWNF(n): return n in os.environ.get('OWN', 'none').split(',')
ZF32 = env('ZF32', 1)
GEO = env('GEO', 0); TPRE = env('TPRE', 4) if GEO else 0; APRE = env('APRE', 0) if GEO else 0
W22 = env('W22', 1)
LPW = env('LPW', 0)
ZOWN = env('ZOWN', 1)
FV = 252
def flag_store(k, soff):
    k.e('s_mov_b64 exec, 1')
    k.e('buffer_store_dwordx2 %s, v%d, s[96:99], %s offen sc1' % (vr(FV, 2), FV + 2, soff))
    k.e('s_mov_b64 exec, -1')
def flag_prep(k):
    srd(k, 96, 'ws', WS_FL, FLSZ)
    k.e('v_mov_b32 v%d, s84' % FV); k.e('v_mov_b32 v%d, s85' % (FV + 1)); k.e('v_mov_b32 v%d, 0' % (FV + 2))
    k.need(FV + 3, 0)
def signal(k, role='L', keep=0):
    if k.c.last: return
    if role in ('C', 'S'): flag_prep(k)
    if role == 'C':
        k.e('s_and_b32 s100, s3, 3')
        k.e('s_lshl_b32 s100, s100, 7')
        k.e('s_add_u32 s100, s100, s87')
    if role == 'C' and env('SM', 0): mark(k, 3)
    k.e('s_waitcnt vmcnt(%d)' % keep)
    if role == 'C' and env('SM', 0): mark(k, 0)
    if role == 'C':
        flag_store(k, 's100')
        if OWNF(k.c.nxt): k.e('s_barrier')
    elif role == 'A' and OWNF(k.c.nxt) and k.c.nxt == 'wout':
        l = k.newlabel('sg')
        k.e('s_cmp_lt_u32 s3, 4'); k.e('s_cbranch_scc1 %s' % l); k.e('s_barrier'); k.label(l)
    elif role == 'S':
        l = k.newlabel('sg')
        k.e('s_barrier')
        k.e('s_cmp_lg_u32 s3, 7'); k.e('s_cbranch_scc1 %s' % l)
        flag_store(k, 's87')
        k.label(l)
POLLW = env('POLLW', 4)
def handoff(k, setup, n, role='L', force=False, slp=None):
    if (k.c.first and not force) or not n: return
    if role in 'AW' or (role == 'C') == (POLLW >= 4):
        ld = k.newlabel('wd')
        if role == 'W': pass
        elif n <= 64:
            k.e('s_cmp_lg_u32 s3, %d' % POLLW)
            k.e('s_cbranch_scc1 %s' % ld)
        else:
            assert n == 128
            k.e('s_sub_u32 s101, s3, %d' % POLLW)
            k.e('s_cmp_gt_u32 s101, 1')
            k.e('s_cbranch_scc1 %s' % ld)
        srd(k, 96, 'ws', WS_FL, FLSZ)
        k.e(setup)
        k.e('s_lshl_b32 s100, s100, 5')
        if n > 64:
            k.e('s_lshl_b32 s101, s101, 13')
            k.e('s_add_u32 s100, s100, s101')
        k.e('v_lshlrev_b32 v%d, 7, v1' % (FV + 2))
        k.e('s_mov_b32 s101, 0x100000')
        if n < 64: k.e('s_bfm_b64 exec, %d, 0' % n)
        k.need(FV + 3, 0)
        PP = env('PPIPE', 0)
        if PP:
            lp = k.newlabel('wf'); le = k.newlabel('we')
            B = [FV, FV - 2, FV - 4][:PP]
            ldp = lambda b: 'buffer_load_dwordx2 %s, v%d, s[96:99], s100 offen sc1' % (vr(b, 2), FV + 2)
            for b in B[:-1]:
                k.e(ldp(b)); k.e('s_sleep %d' % env('PGAP', 5))
            k.label(lp)
            for i_ in range(PP):
                k.e(ldp(B[i_ - 1]))
                k.e('s_waitcnt vmcnt(%d)' % (PP - 1))
                k.e('v_cmp_ne_u64 vcc, s[84:85], %s' % vr(B[i_], 2))
                k.e('s_nop 4')
                k.e('s_cbranch_vccz %s' % le)
            k.e('s_sub_u32 s101, s101, 1')
            k.e('s_cmp_lg_u32 s101, 0')
            k.e('s_cbranch_scc1 %s' % lp)
        else:
            lp = k.newlabel('wf'); le = k.newlabel('we')
            k.label(lp)
            k.e('buffer_load_dwordx2 %s, v%d, s[96:99], s100 offen sc1' % (vr(FV, 2), FV + 2))
            k.e('s_waitcnt vmcnt(0)')
            k.e('v_cmp_ne_u64 vcc, s[84:85], %s' % vr(FV, 2))
            k.e('s_sub_u32 s101, s101, 1')
            k.e('s_nop 3')
            k.e('s_cbranch_vccz %s' % le)
            if env('PMASK', 1): k.e('s_mov_b64 exec, vcc')
            if slp is None: slp = env('PSLEEP', 1)
            if slp: k.e('s_sleep %d' % slp)
            k.e('s_cmp_lg_u32 s101, 0')
            k.e('s_cbranch_scc1 %s' % lp)
        k.label(le)
        k.e('s_mov_b64 exec, -1')
        k.label(ld)
    if role != 'W': k.e('s_barrier')

def handoff_multi(k, polls):
    ld = k.newlabel('wd'); lgo = k.newlabel('wg')
    srd(k, 96, 'ws', WS_FL, FLSZ)
    for w, setup, n in polls:
        ln = k.newlabel('wn')
        k.e('s_cmp_lg_u32 s3, %d' % w)
        k.e('s_cbranch_scc1 %s' % ln)
        k.e(setup)
        k.e('v_min_u32 v%d, %d, v1' % (FV + 2, n - 1))
        k.e('s_branch %s' % lgo)
        k.label(ln)
    k.e('s_branch %s' % ld)
    k.label(lgo)
    k.e('s_lshl_b32 s100, s100, 5')
    k.e('v_lshlrev_b32 v%d, 7, v%d' % (FV + 2, FV + 2))
    k.e('s_mov_b32 s101, 0x100000')
    lp = k.newlabel('wf')
    k.label(lp)
    k.e('buffer_load_dwordx2 %s, v%d, s[96:99], s100 offen sc1' % (vr(FV, 2), FV + 2))
    k.e('s_waitcnt vmcnt(0)')
    k.e('v_cmp_ne_u64 vcc, s[84:85], %s' % vr(FV, 2))
    k.e('s_sub_u32 s101, s101, 1')
    k.e('s_nop 3')
    k.e('s_cbranch_vccz %s' % ld)
    k.e('s_sleep %d' % env('P0SLEEP', 2))
    k.e('s_cmp_lg_u32 s101, 0')
    k.e('s_cbranch_scc1 %s' % lp)
    k.label(ld)
    k.e('s_barrier')

def mod_table(k, R, between=None, nb=0):
    srd(k, 40, 'ws', 0, 256 * KB)
    k.e('v_lshlrev_b32 v%d, 4, v0' % (R + 16))
    for q in range(4):
        k.e('s_mov_b32 s48, %d' % (WS_MODP + q * 8192))
        k.e('buffer_load_dwordx4 %s, v%d, s[40:43], s48 offen sc1' % (vr(R + 4 * q, 4), R + 16))
    if between: between()
    k.e('s_cmp_lt_u32 s3, 4')
    k.e('s_cselect_b32 s49, 0, 1.0')
    k.e('v_add_u32 v%d, %d, v%d' % (R + 16, AUX_A, R + 16))
    k.e('s_waitcnt vmcnt(%d)' % nb)
    k.e(pk('add', R, R, R + 4)); k.e(pk('add', R + 2, R + 2, R + 6)); k.e(pk('add', R + 8, R + 8, R + 12)); k.e(pk('add', R + 10, R + 10, R + 14))
    k.e(pk('add', R, R, R + 8)); k.e(pk('add', R + 2, R + 2, R + 10))
    for d in range(2): round_bf16_pair(k, R + 2 * d, R + 2 * d + 1, R + 4)
    for q in range(4): k.e('v_add_f32 v%d, s49, v%d' % (R + q, R + q))
    for d in range(2): round_bf16_pair(k, R + 2 * d, R + 2 * d + 1, R + 4)
    k.e('ds_write_b128 v%d, %s' % (R + 16, vr(R, 4)))
    k.e('s_waitcnt lgkmcnt(0)')
    k.e('s_barrier')

def poll_back(k, lp):
    l = k.newlabel('pd')
    k.e('s_sub_u32 s101, s101, 1')
    k.e('s_nop 3')
    k.e('s_cbranch_vccz %s' % l)
    k.e('s_cmp_lg_u32 s101, 0')
    k.e('s_cbranch_scc1 %s' % lp)
    k.label(l)
def poll_init(k): k.e('s_mov_b32 s101, 0x100000')

def srd(k, d, what, off=0, size=None, soff=None):
    p = PTR[what]
    if what == 'ws': off += env('WSB', 0) * MB
    if size is None: size = SIZES[what]
    if off or soff:
        k.e('s_add_u32 s%d, s%d, 0x%x' % (d, p, off))
        k.e('s_addc_u32 s%d, s%d, 0' % (d + 1, p + 1))
        if soff:
            k.e('s_add_u32 s%d, s%d, %s' % (d, d, soff))
            k.e('s_addc_u32 s%d, s%d, 0' % (d + 1, d + 1))
        k.e('s_and_b32 s%d, s%d, 0xffff' % (d + 1, d + 1))
    else:
        k.e('s_mov_b32 s%d, s%d' % (d, p))
        k.e('s_and_b32 s%d, s%d, 0xffff' % (d + 1, p + 1))
    k.e('s_mov_b32 s%d, 0x%x' % (d + 2, size))
    k.e('s_mov_b32 s%d, 0x20000' % (d + 3))

def finish(k):
    endpgm(k)

XT = env('XT', 0)
AOWN = env('AOWN', 3)
AT2 = env('AT2', 1)
MP0 = env('MP0', 1)
CPF = env('CPF', 1)
def code_pf(k, start, end, maxbytes, lane=1, vt=6, vd=7, sb=84):
    if not CPF: return 0
    h = k.newlabel('pc')
    k.e('s_getpc_b64 s[%d:%d]' % (sb, sb + 1))
    k.label(h)
    k.e('s_add_u32 s%d, s%d, %s-%s' % (sb, sb, start, h))
    k.e('s_addc_u32 s%d, s%d, 0' % (sb + 1, sb + 1))
    n = (maxbytes + 8191) // 8192
    for i in range(n):
        k.e('v_lshlrev_b32 v%d, 7, v%d' % (vt, lane))
        if i: k.e('v_add_u32 v%d, %d, v%d' % (vt, i * 8192, vt))
        k.e('v_min_u32 v%d, %s-%s-4, v%d' % (vt, end, start, vt))
        k.e('global_load_dword v%d, v%d, s[%d:%d]' % (vd, vt, sb, sb + 1))
    return n

def code_touch(k, start, end, soff, V):
    h = k.newlabel('pc')
    k.e('s_getpc_b64 s[64:65]')
    k.label(h)
    k.e('s_add_u32 s64, s64, %s-%s' % (start, h))
    k.e('s_addc_u32 s65, s65, 0')
    k.e('v_and_b32 v%d, 63, v0' % V)
    k.e('v_lshl_add_u32 v%d, v%d, 7, %s' % (V, V, soff))
    k.e('v_min_u32 v%d, %s-%s-4, v%d' % (V, end, start, V))
    k.e('v_mov_b32 v%d, s65' % (V + 1))
    k.e('v_add_co_u32 v%d, vcc, s64, v%d' % (V, V))
    k.e('s_nop 1')
    k.e('v_addc_co_u32 v%d, vcc, 0, v%d, vcc' % (V + 1, V + 1))
    k.e('global_load_dword v%d, v[%d:%d], off' % (V + 2, V, V + 1))

def vr(b, n): return 'v[%d:%d]' % (b, b + n - 1)
def sr(b): return 's[%d:%d]' % (b, b + 3)

def round_bf16_pair(k, a, b, tmp):
    k.e('v_cvt_pk_bf16_f32 v%d, v%d, v%d' % (tmp, a, b))
    k.e('v_lshlrev_b32 v%d, 16, v%d' % (a, tmp))
    k.e('v_and_b32 v%d, 0xffff0000, v%d' % (b, tmp))

def red_lanes(k, regs, tmp, rors=(8,)):
    for ro in rors:
        k.e('s_nop 1')
        for r in regs:
            k.e('v_add_f32_dpp v%d, v%d, v%d row_ror:%d row_mask:0xf bank_mask:0xf' % (r, r, r, ro))
    for op in ('v_permlane16_swap_b32', 'v_permlane32_swap_b32'):
        for r, t in zip(regs, tmp): k.e('v_mov_b32 v%d, v%d' % (t, r))
        k.e('s_nop 1')
        for r, t in zip(regs, tmp): k.e('%s v%d, v%d' % (op, r, t))
        k.e('s_nop 1')
        for r, t in zip(regs, tmp): k.e('v_add_f32 v%d, v%d, v%d' % (r, r, t))

def unpack(k, lo, hi, src):
    k.e('v_lshlrev_b32 v%d, 16, v%d' % (lo, src))
    k.e('v_and_b32 v%d, 0xffff0000, v%d' % (hi, src))

def k_p0(k, c):
    phase_begin(k, c)
    KIDX[0] += 1
    assert c.first and not c.last
    lst = 'L_p0_stats'
    if env('CPF0', 1):
        l0 = k.newlabel('c0')
        k.e('s_cmp_ge_u32 s3, %d' % env('CPF0', 1))
        k.e('s_cbranch_scc1 %s' % l0)
        k.e('s_lshl_b32 s44, s3, 13')
        code_touch(k, l0, 'L_text_end', 's44', 196)
        k.label(l0)
    def rest_issue():
        srd(k, 52, 'w_mod'); srd(k, 56, 'c')
        k.e("""
        v_lshrrev_b32 v164, 3, v0
        v_lshlrev_b32 v165, 4, v164        ; c byte offset = g*16
        v_mul_u32_u24 v164, %d, v164
        v_and_b32 v166, 7, v0
        v_lshl_add_u32 v164, v166, 4, v164
        s_lshr_b32 s60, s30, 1             ; col block
        s_and_b32 s61, s30, 1              ; k half
        s_lshl_b32 s62, s60, 7
        s_mul_i32 s63, s61, %d
        s_add_u32 s62, s62, s63
        s_add_u32 s62, s62, 4096
        s_lshl_b32 s63, s61, 10
        buffer_load_dwordx4 v[128:131], v165, s[56:59], s63 offen
        """ % (8 * 12288, 512 * 12288))
        if env('PWAIT', 2) == 2: k.e('s_waitcnt vmcnt(0)')
        for j in range(8):
            k.e('buffer_load_dwordx4 %s, v164, s[52:55], s62 offen' % vr(132 + 4 * j, 4))
            k.e('s_add_u32 s62, s62, 12288')
        k.need(192, 0)
    def rest_compute(newer):
        S_ = 168; T_ = 176; A_ = 184
        k.e('s_waitcnt vmcnt(%d)' % (8 + newer))
        for j in range(4): unpack(k, S_ + 2 * j, S_ + 1 + 2 * j, 128 + j)
        for j in range(8): k.e('v_mul_f32 v%d, %s, v%d' % (T_ + j, hx(-LOG2E), S_ + j))
        for j in range(8): k.e('v_exp_f32 v%d, v%d' % (T_ + j, T_ + j))
        for j in range(8): k.e('v_add_f32 v%d, 1.0, v%d' % (T_ + j, T_ + j))
        for j in range(8): k.e('v_rcp_f32 v%d, v%d' % (T_ + j, T_ + j))
        for j in range(8): k.e('v_mul_f32 v%d, v%d, v%d' % (S_ + j, S_ + j, T_ + j))
        for j in range(4): round_bf16_pair(k, S_ + 2 * j, S_ + 1 + 2 * j, T_)
        for j in range(8):
            k.e('s_waitcnt vmcnt(%d)' % (7 - j + newer))
            for d in range(4):
                unpack(k, T_, T_ + 1, 132 + 4 * j + d)
                op = 'v_mul_f32' if j == 0 else 'v_fmac_f32'
                k.e('%s v%d, v%d, v%d' % (op, A_ + 2 * d, T_, S_ + j))
                k.e('%s v%d, v%d, v%d' % (op, A_ + 1 + 2 * d, T_ + 1, S_ + j))
        k.e('s_nop 1')
        for e in range(4): k.e('v_permlane32_swap_b32 v%d, v%d' % (A_ + e, A_ + 4 + e))
        k.e('s_nop 1')
        for e in range(4): k.e('v_add_f32 v%d, v%d, v%d' % (A_ + e, A_ + e, A_ + 4 + e))
        k.e('s_nop 1')
        for e in range(2): k.e('v_permlane16_swap_b32 v%d, v%d' % (A_ + e, A_ + 2 + e))
        k.e('s_nop 1')
        for e in range(2): k.e('v_add_f32 v%d, v%d, v%d' % (A_ + e, A_ + e, A_ + 2 + e))
        k.e('s_nop 1')
        for e in range(2): k.e('v_add_f32_dpp v%d, v%d, v%d row_ror:8 row_mask:0xf bank_mask:0xf' % (A_ + e, A_ + e, A_ + e))
        lw2 = k.newlabel('nw')
        k.e("""
        v_lshlrev_b32 v164, 5, v166
        v_lshrrev_b32 v165, 4, v1
        v_lshl_add_u32 v164, v165, 3, v164
        s_lshl_b32 s62, s3, 8
        s_add_u32 s62, s62, %d
        v_add_u32 v164, s62, v164
        ds_write_b64 v164, v[184:185]
        s_waitcnt lgkmcnt(0)
        s_barrier
        s_cmp_lg_u32 s3, 7
        s_cbranch_scc1 %s
        v_lshlrev_b32 v164, 2, v1
        v_add_u32 v165, %d, v164
        """ % (AUX_A + 8192, lw2, AUX_A + 8192))
        for w in range(8): k.e('ds_read_b32 v%d, v165 offset:%d' % (T_ + w, w * 256))
        k.e("""
        s_lshl_b32 s62, s60, 8
        s_lshl_b32 s63, s61, 14
        s_add_u32 s62, s62, s63
        s_add_u32 s62, s62, %d
        s_waitcnt lgkmcnt(0)
        """ % WS_MODQ)
        for w in range(0, 8, 2): k.e('v_add_f32 v%d, v%d, v%d' % (T_ + w, T_ + w, T_ + w + 1))
        k.e('v_add_f32 v%d, v%d, v%d' % (T_, T_, T_ + 2))
        k.e('v_add_f32 v%d, v%d, v%d' % (T_ + 4, T_ + 4, T_ + 6))
        k.e('v_add_f32 v%d, v%d, v%d' % (T_, T_, T_ + 4))
        k.e('buffer_store_dword v%d, v164, s[40:43], s62 offen%s' % (T_, WT))
        k.label(lw2)
    k.e("""
    v_and_b32 v1, 63, v0               ; lane
    v_lshlrev_b32 v6, 4, v0            ; tid*16
    s_lshr_b32 s30, s2, 4
    s_lshl_b32 s30, s30, 3
    s_and_b32 s47, s2, 7
    s_add_u32 s30, s30, s47            ; index within role (0..127)
    s_bitcmp1_b32 s2, 3
    s_cbranch_scc1 %s
    s_lshr_b32 s48, s30, 2             ; col block
    s_and_b32 s49, s30, 3              ; k quarter
    v_lshrrev_b32 v2, 3, v0            ; row group (0..63): rows 4g..4g+3 (+256*q)
    v_and_b32 v3, 7, v0                ; chunk
    v_lshlrev_b32 v4, 3, v2            ; c byte offset = g*8
    v_mul_u32_u24 v5, %d, v2
    v_lshl_add_u32 v5, v3, 4, v5
    s_lshl_b32 s31, s48, 7
    s_mul_i32 s44, s49, %d
    s_add_u32 s31, s31, s44
    s_lshl_b32 s45, s49, 9
    s_waitcnt lgkmcnt(0)
    s_load_dwordx2 s[84:85], s[28:29], 0x%x
    """ % (lst, 4 * 12288, 256 * 12288, WS_EPOCH + env('WSB', 0) * MB))
    mark(k, 0)
    srd(k, 36, 'w_mod'); srd(k, 32, 'c')
    CL = env('CLAST', 0)
    if not CL: k.e('buffer_load_dwordx2 v[8:9], v4, s[32:35], s45 offen')
    for j in range(4):
        k.e('buffer_load_dwordx4 %s, v5, s[36:39], s31 offen' % vr(12 + 4 * j, 4))
        k.e('s_add_u32 s31, s31, 12288')
    if CL: k.e('buffer_load_dwordx2 v[8:9], v4, s[32:35], s45 offen')
    lnc = k.newlabel('nc')
    def resets(R, wait):
        lnr = k.newlabel('nr')
        k.e('s_cmp_gt_u32 s3, 3')
        k.e('s_cbranch_scc1 %s' % lnr)
        for r in range(4): k.e('v_mov_b32 v%d, -1' % (R + r))
        for off, size in (((WS_G2, 512 * KB) if W22 else (WS_G, 256 * KB)), (WS_MOD, 64 * KB)) + (() if MP0 else ((WS_MODQ, 64 * KB),)):
            per = size // 128
            srd(k, 52, 'ws', off, size)
            k.e('s_mul_i32 s50, s30, %d' % per)
            k.e('v_cmp_gt_u32 vcc, %d, v0' % (per // 16))
            k.e('s_and_saveexec_b64 s[46:47], vcc')
            k.e('buffer_store_dwordx4 %s, v6, s[52:55], s50 offen%s' % (vr(R, 4), WT))
            k.e('s_mov_b64 exec, s[46:47]')
        if wait: k.e('s_waitcnt vmcnt(0)')
        k.label(lnr)
    RLN = env('RLN', 1)
    if not RLN: resets(40, True)
    srd(k, 40, 'ws', 0, 256 * KB)
    if CL == 2:
        k.e('s_waitcnt vmcnt(1)'); mark(k, 0)
    k.e('s_waitcnt vmcnt(%d)' % (0 if CL else 4))
    mark(k, 1)
    for j in range(2): unpack(k, 44 + 2 * j, 45 + 2 * j, 8 + j)
    for j in range(4): k.e('v_mul_f32 v%d, %s, v%d' % (52 + j, hx(-LOG2E), 44 + j))
    for j in range(4): k.e('v_exp_f32 v%d, v%d' % (52 + j, 52 + j))
    for j in range(4): k.e('v_add_f32 v%d, 1.0, v%d' % (52 + j, 52 + j))
    for j in range(4): k.e('v_rcp_f32 v%d, v%d' % (52 + j, 52 + j))
    for j in range(4): k.e('v_mul_f32 v%d, v%d, v%d' % (44 + j, 44 + j, 52 + j))
    for j in range(2): round_bf16_pair(k, 44 + 2 * j, 45 + 2 * j, 52)
    lns = k.newlabel('nosc')
    if not MP0: k.e("""
    s_cmp_lg_u32 s48, 0
    s_cbranch_scc1 %s
    v_lshlrev_b32 v7, 4, v2
    s_lshl_b32 s44, s49, 10
    s_add_u32 s44, s44, %d
    buffer_store_dwordx4 v[44:47], v7, s[40:43], s44 offen%s
    s_waitcnt vmcnt(0)
    """ % (lns, WS_SC, WT))
    k.label(lns)
    A = 56
    for j in range(4):
        k.e('s_waitcnt vmcnt(%d)' % (3 - j))
        for d in range(4):
            unpack(k, 52, 53, 12 + 4 * j + d)
            op = 'v_mul_f32' if j == 0 else 'v_fmac_f32'
            k.e('%s v%d, v52, v%d' % (op, A + 2 * d, 44 + j))
            k.e('%s v%d, v53, v%d' % (op, A + 1 + 2 * d, 44 + j))
    mark(k, 2)
    if MP0 == 4: rest_issue()
    k.e('s_nop 1')
    for e in range(4): k.e('v_permlane32_swap_b32 v%d, v%d' % (A + e, A + 4 + e))
    k.e('s_nop 1')
    for e in range(4): k.e('v_add_f32 v%d, v%d, v%d' % (A + e, A + e, A + 4 + e))
    k.e('s_nop 1')
    for e in range(2): k.e('v_permlane16_swap_b32 v%d, v%d' % (A + e, A + 2 + e))
    k.e('s_nop 1')
    for e in range(2): k.e('v_add_f32 v%d, v%d, v%d' % (A + e, A + e, A + 2 + e))
    k.e('s_nop 1')
    for e in range(2): k.e('v_add_f32_dpp v%d, v%d, v%d row_ror:8 row_mask:0xf bank_mask:0xf' % (A + e, A + e, A + e))
    lw = k.newlabel('nw')
    k.e("""
    v_lshlrev_b32 v2, 5, v3
    v_lshrrev_b32 v7, 4, v1
    v_lshl_add_u32 v2, v7, 3, v2
    s_lshl_b32 s44, s3, 8
    s_add_u32 s44, s44, %d
    v_add_u32 v2, s44, v2
    ds_write_b64 v2, v[56:57]
    s_waitcnt lgkmcnt(0)
    s_add_u32 s84, s84, 1
    s_barrier
    s_cmp_lg_u32 s3, 0
    s_cbranch_scc1 %s
    v_lshlrev_b32 v2, 2, v1
    v_add_u32 v7, %d, v2
    """ % (AUX_A, lw, AUX_A))
    for w in range(8): k.e('ds_read_b32 v%d, v7 offset:%d' % (12 + w, w * 256))
    flag_prep(k)
    k.e("""
    s_lshl_b32 s31, s48, 8
    s_lshl_b32 s44, s49, 13
    s_add_u32 s31, s31, s44
    s_add_u32 s31, s31, %d
    s_lshl_b32 s100, s30, 7
    s_add_u32 s100, s100, %d
    s_waitcnt lgkmcnt(0)
    """ % (WS_MODP, FL_MOD * 32))
    for w in range(0, 8, 2): k.e('v_add_f32 v%d, v%d, v%d' % (12 + w, 12 + w, 13 + w))
    k.e('v_add_f32 v12, v12, v14')
    k.e('v_add_f32 v16, v16, v18')
    k.e('v_add_f32 v12, v12, v16')
    if TAGP:
        srd(k, 96, 'ws', WS_MODT, 64 * KB)
        k.e("""
        v_mov_b32 v14, s84
        v_mov_b32 v15, s85
        v_mov_b32_dpp v13, v12 quad_perm:[1,1,3,3] row_mask:0xf bank_mask:0xf
        v_lshlrev_b32 v2, 3, v1
        s_lshl_b32 s31, s48, 9
        s_lshl_b32 s44, s49, 14
        s_add_u32 s31, s31, s44
        s_mov_b32 exec_lo, 0x55555555
        s_mov_b32 exec_hi, 0x55555555
        buffer_store_dwordx4 v[12:15], v2, s[96:99], s31 offen sc1
        s_mov_b64 exec, -1
        """)
        if env('PWAIT', 2): k.e('s_waitcnt vmcnt(0)')
    else:
        k.e('buffer_store_dword v12, v2, s[40:43], s31 offen' + WT)
        k.e('s_waitcnt vmcnt(0)')
        flag_store(k, 's100')
    k.label(lw)
    k.e('s_barrier')
    mark(k, 3)
    if env('TLBW', 0):
        lt = k.newlabel('tl')
        for w, (nm, sz) in enumerate((('ws', 64 * MB), ('w_mod', None), ('w_sp', None), ('w_in', None), ('w_out', None), ('wo', None), ('out', None), ('x', None))):
            ln = k.newlabel('tn')
            k.e('s_cmp_lg_u32 s3, %d' % w)
            k.e('s_cbranch_scc1 %s' % ln)
            srd(k, 36, nm, 0, sz)
            k.e('s_branch %s' % lt)
            k.label(ln)
        k.label(lt)
        k.e('s_lshr_b32 s51, s30, 3')
        k.e('s_lshl_b32 s51, s51, 22')
        k.e('s_add_u32 s51, s51, %d' % (65536 - 128))
        k.e('v_lshlrev_b32 v36, 16, v1')
        k.e('buffer_load_dword v37, v36, s[36:39], s51 offen')
    srd(k, 36, 'wqkv')
    k.e('s_lshl_b32 s51, s30, 13')
    k.e('s_add_u32 s51, s51, %d' % (env('NPFE', 0) * MB))
    for p in range(env('NPFQ', 0) - env('NPFE', 0)):
        k.e('buffer_load_dwordx4 v[8:11], v6, s[36:39], s51 offen')
        k.e('s_add_u32 s51, s51, %d' % MB)
    if CPF:
        h = k.newlabel('pc')
        k.e('s_cmp_lg_u32 s3, 2')
        k.e('s_cbranch_scc1 %s' % lnc)
        k.e('s_cmp_ge_u32 s30, 64')
        k.e('s_cbranch_scc1 %s' % lnc)
        k.e('s_lshr_b32 s44, s30, 3')
        k.e('s_lshl_b32 s44, s44, 13')
        code_touch(k, 'L_qkv_entry', 'L_text_end', 's44', 36)
        k.label(lnc)
    if MP0 == 1:
        rest_issue(); rest_compute(0)
    if MP0 == 4: rest_compute(0)
    k.e('s_waitcnt vmcnt(0)')
    endpgm(k)
    k.label(lst)
    k.e("""
    s_lshl_b32 s44, s3, 12
    v_lshl_add_u32 v3, v1, 4, s44      ; wave*4096 + lane*16
    s_lshl_b32 s31, s30, 15            ; 16 rows * 2048
    s_waitcnt lgkmcnt(0)
    s_load_dwordx2 s[84:85], s[28:29], 0x%x
    """ % (WS_EPOCH + env('WSB', 0) * MB))
    srd(k, 32, 'x')
    if env('XDELAY', 0): k.e('s_waitcnt lgkmcnt(0)')
    for q in range(4): k.e('buffer_load_dwordx4 %s, v3, s[32:35], s31 offen offset:%d' % (vr(8 + 4 * q, 4), q * 1024))
    if MP0 == 2: rest_issue()
    NE = env('NPFE', 0)
    if NE:
        srd(k, 36, 'wqkv')
        k.e('s_lshl_b32 s51, s30, 13')
        for p in range(NE):
            k.e('buffer_load_dwordx4 v[128:131], v6, s[36:39], s51 offen')
            k.e('s_add_u32 s51, s51, %d' % MB)
    srd(k, 36, 'ws', WS_H, 4 * MB); srd(k, 40, 'ws', 0, 256 * KB)
    if env('HTOUCH', 0):
        srd(k, 96, 'ws', WS_FL, FLSZ)
        k.e('v_mov_b32 v126, 0')
        k.e('s_mov_b64 exec, 1')
        k.e('buffer_load_dword v127, v126, s[36:39], s31 offen')
        k.e('buffer_load_dword v127, v126, s[96:99], 0 offen offset:64')
        k.e('s_mov_b64 exec, -1')
        NE += 2
    set_flag(k, 's_lshr_b32 s100, s30, 3\ns_lshl_b32 s100, s100, 8\ns_and_b32 s101, s30, 7\ns_lshl_b32 s101, s101, 2\ns_add_u32 s100, s100, s101\ns_add_u32 s100, s100, %d' % FL_LN1)
    mark(k, 0)
    if RLN == 2: resets(132, True)
    k.e('s_waitcnt vmcnt(%d) lgkmcnt(0)' % (NE + (9 if MP0 == 2 else 0)))
    k.e('s_add_u32 s84, s84, 1')
    if MP0 == 3: rest_issue()
    X = 24
    for d in range(16): unpack(k, X + 2 * d, X + 2 * d + 1, 8 + d)
    MU = [56, 58]; VA = [60, 62]
    if env('SP1', 1):
        for r in range(2):
            stat_ops(k, X + 16 * r, 8 + 4 * r, 10 + 4 * r, True)
            k.e('v_add_f32 v%d, v%d, v%d' % (MU[r], 8 + 4 * r, 9 + 4 * r))
            k.e('v_add_f32 v%d, v%d, v%d' % (VA[r], 10 + 4 * r, 11 + 4 * r))
        red_lanes(k, MU + VA, [8, 9, 10, 11], rors=(8, 4, 2, 1))
        for r in range(2):
            k.e('v_mul_f32 v%d, %s, v%d' % (MU[r], hx(-1.0 / 1024), MU[r]))
            k.e('v_mul_f32 v%d, %s, v%d' % (VA[r], hx(1.0 / 1024), VA[r]))
            k.e('v_fma_f32 v%d, -v%d, v%d, v%d' % (VA[r], MU[r], MU[r], VA[r]))
            k.e('v_max_f32 v%d, 0, v%d' % (VA[r], VA[r]))
    else:
        for r in range(2):
            k.e(pk('add', 8 + 2 * r, X + 16 * r, X + 16 * r + 2))
            for e in range(4, 16, 2): k.e(pk('add', 8 + 2 * r, 8 + 2 * r, X + 16 * r + e))
            k.e('v_add_f32 v%d, v%d, v%d' % (MU[r], 8 + 2 * r, 9 + 2 * r))
        red_lanes(k, MU, [8, 9], rors=(8, 4, 2, 1))
        for r in range(2):
            k.e('v_mul_f32 v%d, %s, v%d' % (MU[r], hx(-1.0 / 1024), MU[r]))
            for e in range(0, 16, 2):
                k.e(pk('add', 8, X + 16 * r + e, (MU[r],)))
                k.e(pk('mul', 10, 8, 8) if e == 0 else pk('fma', 10, 8, 8, 10))
            k.e('v_add_f32 v%d, v10, v11' % VA[r])
        red_lanes(k, VA, [8, 9], rors=(8, 4, 2, 1))
        for r in range(2):
            k.e('v_mul_f32 v%d, %s, v%d' % (VA[r], hx(1.0 / 1024), VA[r]))
    for r in range(2):
        round_bf16_pair(k, MU[r], VA[r], 8)
        k.e('v_add_f32 v%d, %s, v%d' % (VA[r], hx(1e-5), VA[r]))
    round_bf16_pair(k, VA[0], VA[1], 8)
    for r in range(2): k.e('v_sqrt_f32 v%d, v%d' % (VA[r], VA[r]))
    k.e('s_nop 0')
    round_bf16_pair(k, VA[0], VA[1], 8)
    for r in range(2): k.e('v_rcp_f32 v%d, v%d' % (VA[r], VA[r]))
    def tag_setup():
        srd(k, 96, 'ws', WS_MODT, 64 * KB)
        k.e('v_lshlrev_b32 v81, 4, v1')
        k.e('s_lshl_b32 s100, s3, 11')
        k.e('v_add_u32 v81, s100, v81')
        k.e('v_lshlrev_b32 v80, 3, v1')
        k.e('s_lshl_b32 s100, s3, 10')
        k.e('s_add_u32 s100, s100, %d' % AUX_A)
        k.e('v_add_u32 v80, s100, v80')
        k.e('s_mov_b32 s101, 0x100000')
    def tag_loads():
        for q in range(4):
            k.e('s_mov_b32 s56, %d' % (q * 16384))
            for hh in range(2): k.e('buffer_load_dwordx4 %s, v81, s[96:99], s56 offen offset:%d sc1' % (vr(96 + 8 * q + 4 * hh, 4), hh * 1024))
    ET = env('ET', 0)
    if ET == 1:
        if RLN: resets(132, False)
        tag_setup(); tag_loads()
    k.e("""
    v_lshrrev_b32 v5, 1, v1
    v_mul_u32_u24 v5, 544, v5          ; cb*2*272
    v_and_b32 v7, 1, v1
    v_lshl_add_u32 v5, v7, 3, v5
    s_lshl_b32 s44, s3, 5
    v_add_u32 v5, s44, v5
    """)
    for r in range(2):
        x = X + 16 * r; pin = 8 + 8 * r
        for d in range(8): k.e(pk('add', x + 2 * d, x + 2 * d, (MU[r],)))
        for d in range(8): round_bf16_pair(k, x + 2 * d, x + 2 * d + 1, pin + d)
        for d in range(8): k.e(pk('mul', x + 2 * d, x + 2 * d, (VA[r],)))
        for d in range(8): k.e('v_cvt_pk_bf16_f32 v%d, v%d, v%d' % (pin + d, x + 2 * d, x + 2 * d + 1))
        for q, o in enumerate((0, 272, 64 * 272, 65 * 272)):
            k.e('ds_write_b64 v5, %s offset:%d' % (vr(pin + 2 * q, 2), o + 16 * r))
    k.e("""
    v_lshrrev_b32 v5, 4, v0            ; gi (p=0)
    v_and_b32 v7, 15, v0               ; row
    v_mul_u32_u24 v2, 272, v5
    v_lshl_add_u32 v2, v7, 4, v2       ; granule lds address
    v_lshlrev_b32 v4, 9, v5
    v_lshl_add_u32 v4, v7, 4, v4       ; global offset
    v_lshrrev_b32 v3, 1, v5
    v_lshlrev_b32 v3, 6, v3
    v_and_b32 v5, 1, v5
    v_lshl_add_u32 v3, v5, 4, v3
    v_add_u32 v3, %d, v3               ; table address: cb*64 + h*16
    s_lshr_b32 s44, s30, 1
    s_lshl_b32 s44, s44, 16
    s_and_b32 s45, s30, 1
    s_lshl_b32 s45, s45, 8
    s_add_u32 s44, s44, s45
    s_mov_b32 s48, %d
    s_cmp_lt_u32 s3, 4
    s_cselect_b32 s49, 0, 1.0
    s_waitcnt lgkmcnt(0)
    """ % (AUX_A, WS_MODP))
    if MP0 in (2, 3): rest_compute(0)
    if RLN == 1 and ET != 1: resets(132, False)
    if ET == 2: tag_setup(); tag_loads()
    mark(k, 1)
    if XT:
        srd(k, 36, 'ws', WS_N, 4 * MB)
        k.e('s_barrier')
        for p in range(4): k.e('ds_read_b128 %s, v2 offset:%d' % (vr(8 + 4 * p, 4), p * 32 * 272))
        for p in range(4):
            k.e('s_waitcnt lgkmcnt(%d)' % (3 - p))
            k.e('buffer_store_dwordx4 %s, v4, s[36:39], s44 offen%s' % (vr(8 + 4 * p, 4), WT))
            k.e('s_add_u32 s44, s44, 16384')
        mark(k, 3)
        signal(k, 'S')
        finish(k)
        k.need(128, AUX_A + 8192)
        return
    X = 24
    k.e('s_barrier')
    for p in range(4): k.e('ds_read_b128 %s, v2 offset:%d' % (vr(8 + 4 * p, 4), p * 32 * 272))
    for p in range(4):
        k.e('s_waitcnt lgkmcnt(%d)' % (3 - p))
        for d in range(4): unpack(k, X + 8 * p + 2 * d, X + 8 * p + 2 * d + 1, 8 + 4 * p + d)
    if TAGP:
        lp = k.newlabel('wf'); le = k.newlabel('we')
        if ET:
            k.e('s_branch %sc' % lp)
        else: tag_setup()
        k.label(lp)
        tag_loads()
        k.label(lp + 'c')
        k.e('s_mov_b64 s[50:51], 0')
        for n in range(8):
            k.e('s_waitcnt vmcnt(%d)' % (7 - n))
            k.e('v_cmp_ne_u64 vcc, s[84:85], %s' % vr(98 + 4 * n, 2))
            k.e('s_or_b64 s[50:51], s[50:51], vcc')
        k.e('s_cbranch_scc0 %s' % le)
        k.e('s_sub_u32 s101, s101, 1')
        k.e('s_sleep %d' % env('P0SLEEP', 1))
        k.e('s_cmp_lg_u32 s101, 0')
        k.e('s_cbranch_scc1 %s' % lp)
        k.label(le)
        mark(k, 2)
        for hh in range(2):
            b = 96 + 4 * hh
            k.e(pk('add', b, b, b + 8)); k.e(pk('add', b + 16, b + 16, b + 24)); k.e(pk('add', 64 + 2 * hh, b, b + 16))
    else:
        srd(k, 96, 'ws', WS_FL, FLSZ)
        lp = k.newlabel('wf'); le = k.newlabel('we')
        k.e("""
        s_lshl_b32 s100, s3, 11
        s_add_u32 s100, s100, %d
        v_lshlrev_b32 v%d, 7, v1
        v_add_u32 v80, %d, v6
        s_mov_b32 s101, 0x100000
        s_mov_b64 exec, 0xffff
        %s:
        buffer_load_dwordx2 %s, v%d, s[96:99], s100 offen sc1
        s_waitcnt vmcnt(0)
        v_cmp_ne_u64 vcc, s[84:85], %s
        s_sub_u32 s101, s101, 1
        s_nop 3
        s_cbranch_vccz %s
        s_mov_b64 exec, vcc
        s_sleep %d
        s_cmp_lg_u32 s101, 0
        s_cbranch_scc1 %s
        %s:
        s_mov_b64 exec, -1
        """ % (FL_MOD * 32, FV + 2, AUX_A, lp, vr(FV, 2), FV + 2, vr(FV, 2), le, env('P0SLEEP', 1), lp, le))
        mark(k, 2)
        for q in range(4):
            k.e('buffer_load_dwordx4 %s, v6, s[40:43], s48 offen sc1' % vr(64 + 4 * q, 4))
            k.e('s_add_u32 s48, s48, 8192')
        k.e('s_waitcnt vmcnt(0)')
        k.e(pk('add', 64, 64, 68)); k.e(pk('add', 66, 66, 70)); k.e(pk('add', 72, 72, 76)); k.e(pk('add', 74, 74, 78))
        k.e(pk('add', 64, 64, 72)); k.e(pk('add', 66, 66, 74))
    for d in range(2): round_bf16_pair(k, 64 + 2 * d, 65 + 2 * d, 68)
    for q in range(4): k.e('v_add_f32 v%d, s49, v%d' % (64 + q, 64 + q))
    for d in range(2): round_bf16_pair(k, 64 + 2 * d, 65 + 2 * d, 68)
    if TAGP:
        k.e('ds_write_b64 v80, v[64:65]')
        k.e('ds_write_b64 v80, v[66:67] offset:512')
    else: k.e('ds_write_b128 v80, v[64:67]')
    k.e('s_waitcnt lgkmcnt(0)')
    k.e('s_barrier')
    SC = 64; SH = 96
    for p in range(4):
        for sub in range(2):
            k.e('ds_read_b128 %s, v3 offset:%d' % (vr(SC + 8 * p + 4 * sub, 4), 4096 + p * 1024 + sub * 32))
            k.e('ds_read_b128 %s, v3 offset:%d' % (vr(SH + 8 * p + 4 * sub, 4), p * 1024 + sub * 32))
    for p in range(4):
        pin = 8 + 4 * p; x = X + 8 * p
        k.e('s_waitcnt lgkmcnt(%d)' % (12 - 4 * p))
        if env('NORND', 0):
            for d in range(4): k.e(pk('fma', x + 2 * d, x + 2 * d, SC + 8 * p + 2 * d, SH + 8 * p + 2 * d))
        else:
            for d in range(4): k.e(pk('mul', x + 2 * d, x + 2 * d, SC + 8 * p + 2 * d))
            for d in range(4): round_bf16_pair(k, x + 2 * d, x + 2 * d + 1, pin + d)
            for d in range(4): k.e(pk('add', x + 2 * d, x + 2 * d, SH + 8 * p + 2 * d))
        for d in range(4): k.e('v_cvt_pk_bf16_f32 v%d, v%d, v%d' % (pin + d, x + 2 * d, x + 2 * d + 1))
        k.e('buffer_store_dwordx4 %s, v4, s[36:39], s44 offen%s' % (vr(pin, 4), WT))
        k.e('s_add_u32 s44, s44, 16384')
    if RLN == 3: resets(132, False)
    mark(k, 3)
    signal(k, 'S')
    finish(k)
    k.need(128, AUX_A + 10240)

def log2(n):
    l = n.bit_length() - 1
    assert 1 << l == n
    return l
class G: pass

def k_gemm(k, c, GM, GN, bm_log2, xm_log2, bn, TM, TN, WM, WN, K, KS, NS, X, Y, pre, pre2, epi, swap=(), aux=None, auxsz=0, auxbase=None,
           pf=None, aux_end=None, side=None, wait=None, sig=None, dep='X', GU=1, RWD=1, post=None, frbase=None, selfsig=False, RR=0, early=None, JG=1, lazyfix=False, SOFT=0, own=None, ownlim=None, altmap=False, prelast=None, DEFER=0, dcols=None, auxpre=None, mid=None, accmap=None, cinit=False, geo=None, tailpre=None):
    g = G()
    name = c.name
    xt = X[0] == 'xt'
    M16 = name in os.environ.get('M16', 'qkv,wo,win,wsp,wout').split(',')
    if xt: X = ('xf',) + X[1:]
    ROLL = env('ROLL_' + name, env('ROLL', 0 if name == 'qkv' else 1))
    LAG = 2 if ROLL else 1
    NS = env('NS_' + name, NS + LAG - 1)
    mb = TM // WM // 32; nb = TN // WN // 32
    S = KS // 16
    xb = TM * KS * 2; yb = TN * KS * 2; STAGE = xb + yb
    nst = K // KS
    solo = c.first and c.last
    g.k = k; g.mb = mb; g.nb = nb; g.TM = TM; g.TN = TN; g.AUX = NS * STAGE if solo or auxbase is None else auxbase
    assert NS * STAGE <= g.AUX
    phase_begin(k, c)
    k.e('''
    v_and_b32 v1, 63, v0               ; lane
    s_mov_b32 s46, s3
    s_and_b32 s47, s2, 7               ; xcd
    s_lshr_b32 s48, s2, 3              ; idx
    s_and_b32 s30, s47, %d
    s_lshl_b32 s30, s30, %d
    s_and_b32 s49, s48, %d
    s_add_u32 s30, s30, s49            ; tm
    s_lshr_b32 s31, s47, %d
    s_mul_i32 s31, s31, %d
    s_lshr_b32 s49, s48, %d
    s_add_u32 s31, s31, s49            ; tn
    ''' % ((1 << xm_log2) - 1, bm_log2, (1 << bm_log2) - 1, xm_log2, bn, bm_log2))
    if altmap:
        k.e('''
        s_and_b32 s30, s47, 3
        s_lshl_b32 s30, s30, 3
        s_and_b32 s49, s48, 3
        s_lshl_b32 s49, s49, 1
        s_add_u32 s30, s30, s49
        s_bfe_u32 s49, s48, 0x10002
        s_add_u32 s30, s30, s49
        ''')
    if env('MAP_' + name, 0):
        k.e('''
        s_lshr_b32 s31, s47, 1
        s_mul_i32 s31, s31, 28
        s_add_u32 s31, s31, s48
        s_and_b32 s30, s47, 1
        s_lshl_b32 s30, s30, 3
        s_and_b32 s49, s31, 7
        s_add_u32 s30, s30, s49
        s_lshr_b32 s31, s31, 3
        ''')
    lcomp = 'L_%s_comp' % name
    set_flag(k, sig)
    if pf or side:
        k.e('s_cmp_ge_u32 s2, %d' % (GM * GN))
        k.e('s_cbranch_scc1 L_%s_pf' % name)
    k.e('s_cmp_ge_u32 s46, 4')
    k.e('s_cbranch_scc1 %s' % lcomp)
    nx = xb // 1024 // 4; ny = yb // 1024 // 4
    assert nx * 4096 == xb and ny * 4096 == yb
    VX = 8; VY = VX + nx
    g.LV = VY + ny
    if X[0] == 'xf':
        C = X[2]; ncb = C // 16
        assert S % nx == 0 or nx % S == 0
        k.e('s_mul_i32 s50, s30, %d' % (TM // 32 * ncb * 1024))
        k.e('s_mul_i32 s51, s46, %d' % nx)
        k.e('s_lshr_b32 s52, s51, %d' % log2(S))
        k.e('s_and_b32 s51, s51, %d' % (S - 1))
        k.e('s_mul_i32 s52, s52, %d' % (ncb * 1024))
        k.e('s_lshl_b32 s51, s51, 10')
        k.e('s_add_u32 s50, s50, s52')
        k.e('s_add_u32 s50, s50, s51')
        k.e('v_lshl_add_u32 v%d, v1, 4, s50' % VX)
        for j in range(1, nx):
            k.e('v_add_u32 v%d, %d, v%d' % (VX + j, (j // S) * ncb * 1024 + (j % S) * 1024, VX))
        xadv = S * 1024
    else:
        ld = X[2]
        assert nx % 2 == 0
        k.e('s_mul_i32 s50, s30, %d' % (TM * ld))
        k.e('s_mul_i32 s51, s46, %d' % (nx * 8 * ld))
        k.e('s_add_u32 s50, s50, s51')
        k.e('v_lshrrev_b32 v2, 3, v1')
        k.e('v_lshl_add_u32 v2, v2, %d, s50' % log2(ld))
        k.e('v_and_b32 v3, 7, v1')
        k.e('v_lshrrev_b32 v4, 4, v1')
        k.e('v_xor_b32 v5, v4, v3')
        k.e('v_lshl_add_u32 v%d, v5, 4, v2' % VX)
        k.e('v_xor_b32 v5, 64, v%d' % VX)
        k.e('v_add_u32 v%d, %d, v5' % (VX + 1, 8 * ld))
        for j in range(2, nx):
            k.e('v_add_u32 v%d, %d, v%d' % (VX + j, (j - j % 2) * 8 * ld, VX + j % 2))
        xadv = KS * 2
    k.e('''
    v_lshrrev_b32 v2, 4, v1            ; u
    v_bfe_u32 v3, v1, 2, 2             ; (i>>2)&3
    v_and_b32 v4, 3, v1                ; i&3
    ''')
    if Y[0] == 'w':
        ld = Y[2]
        NP = TN // 64
        assert ny % NP == 0
        if M16:
            k.e('v_and_b32 v5, 2, v2')
            k.e('v_xor_b32 v4, v4, v5')
        k.e('v_lshrrev_b32 v5, 1, v2')
        k.e('v_lshl_add_u32 v5, v5, 2, v3')
        k.e('v_mul_u32_u24 v5, %d, v5' % ld)
        k.e('v_and_b32 v6, 1, v2')
        k.e('v_lshl_add_u32 v5, v6, 6, v5')
        k.e('v_lshl_add_u32 v5, v4, 4, v5')
        if Y[3] == 'qkv': tstride, segs = 128, [0, 2048, 4096]
        elif Y[3]: tstride, segs = Y[3]
        else: tstride, segs = TN * 2, [p * 128 for p in range(NP)]
        k.e('s_mul_i32 s50, s46, %d' % (ny // NP * 8 * ld))
        k.e('s_mul_i32 s51, s31, %d' % tstride)
        k.e('s_add_u32 s50, s50, s51')
        k.e('v_add_u32 v5, s50, v5')
        for j in range(ny):
            k.e('v_add_u32 v%d, %d, v5' % (VY + j, (j // NP) * 8 * ld + segs[j % NP]))
        yadv = KS * ld
    else:
        C = Y[2]; ncb = C // 16
        NB = TN // 32
        assert ny == NB and S == 4
        if M16:
            k.e('v_and_b32 v5, 2, v2')
            k.e('v_xor_b32 v3, v3, v5')
        k.e('v_lshl_add_u32 v5, v2, 2, v4')
        k.e('v_lshlrev_b32 v5, 4, v5')
        k.e('v_lshl_add_u32 v5, v3, 9, v5')
        k.e('s_lshr_b32 s50, s46, 1')
        k.e('s_mul_i32 s50, s50, %d' % (ncb * 1024))
        k.e('s_and_b32 s51, s46, 1')
        k.e('s_lshl_b32 s51, s51, 8')
        k.e('s_add_u32 s50, s50, s51')
        k.e('s_mul_i32 s51, s31, %d' % (TN // 16 * 1024))
        k.e('s_add_u32 s50, s50, s51')
        k.e('v_add_u32 v%d, s50, v5' % VY)
        for j in range(1, ny):
            k.e('v_add_u32 v%d, %d, v%d' % (VY + j, j * 2048, VY))
        yadv = 2 * ncb * 1024
    k.e('s_mul_i32 s55, s46, %d' % (nx * 1024))
    k.e('s_mul_i32 s56, s46, %d' % (ny * 1024))
    if geo:
        k.e('s_add_u32 s55, s55, %d' % geo[2])
        if geo[0]: k.e('s_add_u32 s56, s56, %d' % geo[0])
    else: k.e('s_add_u32 s56, s56, %d' % xb)
    per = nx + ny
    assert per * NS <= 55 and nst >= 2 * NS
    k.e('s_waitcnt lgkmcnt(0)')
    mark(k, 0)
    if Y[0] == 'w': srd(k, 36, Y[1])
    else: srd(k, 36, 'ws', Y[1], 2048 * Y[2] * 2)
    if X[0] == 'xf': srd(k, 32, 'ws', X[1], 2048 * X[2] * 2)
    else: srd(k, 32, X[1])
    xfl = ' sc1' if X[0] == 'xf' else ''
    yfl = ' sc1' if Y[0] == 'z' else ''
    ntf = os.environ.get('NT_' + name, os.environ.get('NT', ''))
    if 'X' in ntf: xfl += ' nt'
    if 'Y' in ntf: yfl += ' nt'
    ownlds = name == 'wsp' and ZOWN and c.prev == 'win'
    OWN = own if (own and not c.first and (OWNF(name) or ownlds)) else None
    RW = env('RW_' + name, min(RWD, 2) if OWN else RWD); RC = env('RC_' + name, 1)
    assert nst % RW == 0
    if RW > 1:
        k.e('s_mul_i32 s54, s31, %d' % RC)
        k.e('s_add_u32 s54, s54, s30')
    if OWN:
        assert RW <= 2
        k.e(OWN)
        k.e('s_and_b32 s54, s54, 1' if RW > 1 else 's_mov_b32 s54, 0')
    out = []
    RB = 48
    dyn = [None]
    def soff(st, adv):
        if OWN:
            if st < 2: k.e('s_add_u32 s57, s68, %d' % st)
            else:
                k.e('s_cmp_le_u32 s68, %d' % (st - 2))
                k.e('s_cselect_b32 s57, %d, %d' % (st, st - 2))
                k.e('s_xor_b32 s57, s57, s54')
            k.e('s_mul_i32 s57, s57, %d' % adv)
        elif dyn[0] is not None:
            assert RW in (1, 2, 4)
            if RW > 1:
                k.e('s_add_u32 s57, s54, %d' % st)
                k.e('s_and_b32 s57, s57, %d' % (RW - 1))
                k.e('s_add_u32 s57, s57, s59')
                k.e('s_add_u32 s57, s57, %d' % (st // RW * RW))
            else: k.e('s_add_u32 s57, s59, %d' % st)
            k.e('s_mul_i32 s57, s57, %d' % adv)
        elif RW > 1:
            k.e('s_add_u32 s57, s54, %d' % st)
            k.e('s_and_b32 s57, s57, %d' % (RW - 1))
            k.e('s_mul_i32 s57, s57, %d' % adv)
            if st // RW: k.e('s_add_u32 s57, s57, %d' % (st // RW * RW * adv))
        else: k.e('s_mov_b32 s57, %d' % (st * adv))
    def opinfo(op): return (nx, 's55', VX, 32, xadv, xfl) if op == 'X' else (ny, 's56', VY, 36, yadv, yfl)
    def throttle(n):
        if len(out) + n > 60:
            k.e('s_waitcnt vmcnt(40)'); del out[:len(out) - 40]
    def iss(op, st):
        slot = (st % NS) * STAGE
        if geo: slot = (st % geo[3]) * xb if op == 'X' else (st % geo[1]) * yb
        n, base, V, sd, adv, fl = opinfo(op)
        if op == ind and st in Rset:
            if ('r', st) in out:
                last = max(i for i, t in enumerate(out) if t == ('r', st))
                k.e('s_waitcnt vmcnt(%d)' % (len(out) - 1 - last)); del out[:last + 1]
            r0 = RB + Rset.index(st) * n * 4
            for j in range(n):
                o = slot + j * 1024
                k.e('ds_write_b128 v%d, %s offset:%d' % (44 + o // 65536, vr(r0 + 4 * j, 4), o % 65536))
            return
        throttle(n)
        soff(st, adv)
        for j in range(n):
            k.e('s_add_u32 m0, %s, %d' % (base, slot + j * 1024))
            k.e('s_nop 0')
            k.e('buffer_load_dwordx4 v%d, %s, s57 offen%s lds' % (V + j, sr(sd), fl))
            out.append(st)
    def issr(st):
        n, base, V, sd, adv, fl = opinfo(ind)
        throttle(n)
        soff(st, adv)
        r0 = RB + Rset.index(st) * n * 4
        for j in range(n):
            k.e('buffer_load_dwordx4 %s, v%d, %s, s57 offen' % (vr(r0 + 4 * j, 4), V + j, sr(sd)))
            out.append(('r', st))
    def wait_stage(st):
        lg = ' lgkmcnt(%d)' % min(15, opinfo(ind)[0] * len([r_ for r_ in Rset if st < r_ < st + NS - LAG])) if st in Rset else ''
        if st in out:
            last = max(i for i, t in enumerate(out) if t == st)
            k.e('s_waitcnt vmcnt(%d)%s' % (len(out) - 1 - last, lg))
            del out[:last + 1]
        elif lg: k.e('s_waitcnt' + lg)
    I0 = env('I0_' + name, 2)
    ind = 'Y' if dep == 'X' else 'X'
    fusedw = wait and not c.first and not env('WLATE_' + name, 0)
    R = env('RR_' + name, RR) if fusedw else 0
    Rset = sorted(set(NS + (2 * i + 1) * (nst - NS) // (2 * R) for i in range(R))) if R else []
    if Rset:
        assert RB + len(Rset) * opinfo(ind)[0] * 4 <= 256
        k.need(RB + len(Rset) * opinfo(ind)[0] * 4, 0)
        k.e('v_lshl_add_u32 v44, v1, 4, %s' % opinfo(ind)[1])
        k.e('v_add_u32 v45, 0x10000, v44')
    if xt:
        DX = env('DX', 4); NR = 64; TB = NR + DX * 8; TX = TB + 32
        assert nx == 2 and S == 2
        k.need(TX + 16, 0)
        k.e('v_lshl_add_u32 v44, v1, 4, s55')
        k.e('v_add_u32 v45, 0x10000, v44')
        k.e('v_lshrrev_b32 v46, 5, v1')
        k.e('v_lshlrev_b32 v46, 4, v46')
        k.e('v_add_u32 v46, %d, v46' % AUX_A)
        def ldn(st):
            soff(st, xadv)
            for j in range(2):
                k.e('buffer_load_dwordx4 %s, v%d, s[32:35], s57 offen sc1' % (vr(NR + (st % DX) * 8 + 4 * j, 4), VX + j))
                out.append(('n', st))
        TW = TX + 16
        k.need(TW + 8, 0)
        def tabrd(st):
            soff(st, 128)
            k.e('v_add_u32 v47, s57, v46')
            for j in range(2):
                for sub in range(2):
                    k.e('ds_read_b128 %s, v47 offset:%d' % (vr(TB + 16 * j + 4 * sub, 4), 4096 + j * 64 + sub * 32))
                    k.e('ds_read_b128 %s, v47 offset:%d' % (vr(TB + 16 * j + 8 + 4 * sub, 4), j * 64 + sub * 32))
        def xform(st):
            if ('n', st) in out:
                last = max(i for i, t in enumerate(out) if t == ('n', st))
                k.e('s_waitcnt vmcnt(%d)' % (len(out) - 1 - last)); del out[:last + 1]
            r0 = NR + (st % DX) * 8
            for d in range(8): unpack(k, TX + 2 * d, TX + 2 * d + 1, r0 + d)
            if st + DX < nst: ldn(st + DX)
            k.e('s_waitcnt lgkmcnt(0)')
            for j in range(2):
                for e in range(8): k.e('v_fma_f32 v%d, v%d, v%d, v%d' % (TX + 8 * j + e, TX + 8 * j + e, TB + 16 * j + e, TB + 16 * j + 8 + e))
            for j in range(2):
                for d in range(4): k.e('v_cvt_pk_bf16_f32 v%d, v%d, v%d' % (TW + 4 * j + d, TX + 8 * j + 2 * d, TX + 8 * j + 2 * d + 1))
                o = (st % NS) * STAGE + j * 1024
                k.e('ds_write_b128 v%d, %s offset:%d' % (44 + o // 65536, vr(TW + 4 * j, 4), o % 65536))
            if st + 1 < nst: tabrd(st + 1)
        for st in range(NS): iss('Y', st)
        k.e('s_barrier')
        mark(k, 1)
        out.extend(['p'] * 4)
        mod_table(k, 24, between=lambda: [ldn(st) for st in range(DX)], nb=2 * DX)
        del out[:len(out) - 2 * DX]
        if env('XPRIO', 0): k.e('s_setprio %d' % env('XPRIO', 0))
        XL = env('XL', 2)
        assert XL >= 2
        tabrd(0)
        for st in range(XL): xform(st)
        def capture(fn):
            n0 = len(k.lines); fn(); got = k.lines[n0:]; del k.lines[n0:]
            return got
        def step(st):
            lg = ' lgkmcnt(0)' if st + XL > nst else ''
            if st in out:
                last = max(i for i, t in enumerate(out) if t == st)
                k.e('s_waitcnt vmcnt(%d)%s' % (len(out) - 1 - last, lg)); del out[:last + 1]
            elif lg: k.e('s_waitcnt' + lg)
            if st == 0: mark(k, 2)
            k.e('s_barrier')
            sx = st + XL; sy = st + NS - LAG
            doy = st >= LAG and sy < nst
            if sx >= nst:
                if doy: iss('Y', sy)
                return
            if ('n', sx) in out:
                last = max(i for i, t in enumerate(out) if t == ('n', sx))
                nw = 's_waitcnt vmcnt(%d)' % (len(out) - 1 - last + (1 if doy else 0)); del out[:last + 1]
            else: nw = None
            yl = capture(lambda: iss('Y', sy)) if doy else []
            yp = []; cur = []
            for l in yl:
                if 's_nop' in l: continue
                cur.append(l)
                if 'buffer_load' in l: yp.append(cur); cur = []
            nl = capture(lambda: ldn(sx + DX)) if (sx + DX < nst or dyn[0] is not None) else []
            nl = [l.replace('s57', 's58') for l in nl]
            npc = [nl[:-1], nl[-1:]] if nl else [[], []]
            r0 = NR + (sx % DX) * 8
            un = capture(lambda: [unpack(k, TX + 2 * d, TX + 2 * d + 1, r0 + d) for d in range(8)])
            fm = ['    v_fma_f32 v%d, v%d, v%d, v%d' % (TX + 8 * j + e, TX + 8 * j + e, TB + 16 * j + e, TB + 16 * j + 8 + e) for j in range(2) for e in range(8)]
            def put(piece):
                if len(piece) >= 2 and 'm0' in piece[-2]: piece = piece[:-1] + ['    s_nop 0', piece[-1]]
                k.lines.extend(piece)
            if yp: put(yp[0])
            if nw: k.e(nw)
            k.lines.extend(un[:8])
            if yp: put(yp[1])
            k.lines.extend(un[8:])
            if yp: put(yp[2])
            k.e('s_waitcnt lgkmcnt(0)')
            k.lines.extend(fm[:10])
            k.lines.extend(npc[0])
            k.lines.extend(fm[10:])
            if sx + 1 < nst: tabrd(sx + 1)
            k.lines.extend(npc[1])
            for j in range(2):
                for d in range(4): k.e('v_cvt_pk_bf16_f32 v%d, v%d, v%d' % (TW + 4 * j + d, TX + 8 * j + 2 * d, TX + 8 * j + 2 * d + 1))
                o = (sx % NS) * STAGE + j * 1024
                k.e('ds_write_b128 v%d, %s offset:%d' % (44 + o // 65536, vr(TW + 4 * j, 4), o % 65536))
        assert NS == 4 and DX == 4 and XL == 2 and LAG == 1 and nst == 32
        for st in range(5): step(st)
        k.e('s_mov_b32 s59, 0')
        k.label('L_%s_xl' % name)
        dyn[0] = 0
        before = list(out)
        for st in range(5, 9): step(st)
        dyn[0] = None
        sh = lambda t, d: (t[0], t[1] + d) if isinstance(t, tuple) else t + d
        assert [sh(t, 4) for t in before] == out, (before, out)
        k.e('s_add_u32 s59, s59, 4')
        k.e('s_cmp_lt_u32 s59, 24')
        k.e('s_cbranch_scc1 L_%s_xl' % name)
        out[:] = [sh(t, 20) for t in out]
        for st in range(29, 32): step(st)
    elif wait and not c.first and env('WLATE_' + name, 0):
        handoff(k, wait[0], wait[1])
    if xt: pass
    elif geo:
        yb0, NSY, xb0, NSX, NPRE, prelim = geo
        assert fusedw and dep == 'X' and not aux and not aux_end and not OWN
        if NPRE and prelim:
            l = k.newlabel('hp')
            k.e('s_cmp_lt_u32 s2, %d' % prelim); k.e('s_cbranch_scc1 %s' % l)
            for st in range(NPRE): iss('Y', st)
            k.label(l)
        WP = env('WPRE_' + name, NSY)
        for st in range(NPRE, WP): iss('Y', st)
        if auxpre: out.extend(['aux'] * auxpre(g))
        handoff(k, wait[0], wait[1])
        mark(k, 1)
        for st in range(I0): iss('X', st)
        wait_stage(0); mark(k, 2); k.e('s_barrier')
        for st in range(I0, NSX): iss('X', st)
        for st in range(max(WP, NPRE), NSY): iss('Y', st)
        for st in range(1, nst):
            wait_stage(st); k.e('s_barrier')
            if st >= LAG:
                if st + NSX - LAG < nst: iss('X', st + NSX - LAG)
                if st + NSY - LAG < nst: iss('Y', st + NSY - LAG)
    elif fusedw:
        WPRE = env('WPRE_' + name, 2 if name == 'win' else NS)
        iss0 = iss
        def iss(op, st):
            if op == dep and WPRE <= st < NS: iss0(ind, st)
            iss0(op, st)
        for st in range(WPRE): iss(ind, st)
        for st in Rset: issr(st)
        if auxpre: out.extend(['aux'] * auxpre(g))
        if ownlds and LPW:
            k.e('s_barrier')
            handoff(k, wait[0], wait[1], role='W')
            mark(k, 1)
            for st in range(2, NS): iss(dep, st)
            wait_stage(0); mark(k, 2); k.e('s_barrier')
        elif ownlds:
            handoff(k, wait[0], wait[1])
            mark(k, 1)
            I1 = env('I1_' + name, 3)
            for st in range(2, I1): iss(dep, st)
            wait_stage(0); mark(k, 2); k.e('s_barrier')
            for st in range(I1, NS): iss(dep, st)
        elif OWN:
            l1 = k.newlabel('no'); l2 = k.newlabel('no')
            k.e('s_barrier')
            if ownlim:
                k.e('s_cmp_ge_u32 s2, %d' % ownlim); k.e('s_cbranch_scc1 %s' % l1)
            n0 = len(k.lines)
            iss(dep, 0); iss(dep, 1)
            dup = k.lines[n0:]
            k.label(l1)
            handoff(k, wait[0], wait[1])
            mark(k, 1)
            if ownlim:
                k.e('s_cmp_lt_u32 s2, %d' % ownlim); k.e('s_cbranch_scc1 %s' % l2)
                k.lines.extend(dup)
                k.label(l2)
            I1 = env('I1_' + name, 3)
            for st in range(2, I1): iss(dep, st)
            wait_stage(0); mark(k, 2); k.e('s_barrier')
            for st in range(I1, NS): iss(dep, st)
        else:
            handoff(k, wait[0], wait[1])
            mark(k, 1)
            for st in range(I0): iss(dep, st)
            wait_stage(0); mark(k, 2); k.e('s_barrier')
            for st in range(I0, NS): iss(dep, st)
    else:
        for st in range(I0): iss(ind, st); iss(dep, st)
        mark(k, 1)
        wait_stage(0); mark(k, 2); k.e('s_barrier')
        for st in range(I0, NS): iss(ind, st); iss(dep, st)
    FS = bool(Rset) or env('STATIC', 0) or xt or geo
    if FS and not xt and not geo:
        for st in range(1, nst):
            if st == nst - 1: k.e('s_waitcnt vmcnt(0) lgkmcnt(0)')
            else: wait_stage(st)
            if st == nst - 1 and aux_end: aux_end(g)
            k.e('s_barrier')
            nx_st = st + NS - LAG
            if st >= LAG and nx_st < nst:
                iss(dep, nx_st); iss(ind, nx_st)
                if nx_st == nst - 1 and aux:
                    out.extend(['aux'] * aux(g))
    for st in range(1, NS if not FS else 0):
        wait_stage(st); k.e('s_barrier')
        if st >= LAG: iss('Y', st + NS - LAG); iss('X', st + NS - LAG)
    if not FS:
        s0 = 2 * NS - LAG
        k.e('s_add_u32 s60, s55, %d' % (NS * STAGE))
        k.e('s_add_u32 s55, s55, %d' % ((s0 % NS) * STAGE))
        k.e('s_add_u32 s56, s56, %d' % ((s0 % NS) * STAGE))
        k.e('s_mov_b32 s57, %d' % (s0 * xadv))
        k.e('s_mov_b32 s58, %d' % (s0 * yadv))
        k.e('s_mov_b32 s59, %d' % s0)
        ll = 'L_%s_lloop' % name
        k.label(ll)
        if OWN:
            k.e('s_sub_u32 s57, s59, 2')
            k.e('s_cmp_le_u32 s68, s57')
            k.e('s_cselect_b32 s57, s59, s57')
            k.e('s_xor_b32 s57, s57, s54')
            k.e('s_mul_i32 s58, s57, %d' % yadv)
            k.e('s_mul_i32 s57, s57, %d' % xadv)
        elif RW > 1:
            k.e('s_add_u32 s57, s54, s59')
            k.e('s_and_b32 s57, s57, %d' % (RW - 1))
            k.e('s_andn2_b32 s58, s59, %d' % (RW - 1))
            k.e('s_or_b32 s57, s57, s58')
            k.e('s_mul_i32 s58, s57, %d' % yadv)
            k.e('s_mul_i32 s57, s57, %d' % xadv)
        k.e('s_waitcnt vmcnt(%d)' % (per * (NS - 1 - LAG)))
        k.e('s_barrier')
        for j in range(ny):
            k.e('s_add_u32 m0, s56, %d' % (j * 1024))
            k.e('s_nop 0')
            k.e('buffer_load_dwordx4 v%d, s[36:39], s58 offen%s lds' % (VY + j, yfl))
        for j in range(nx):
            k.e('s_add_u32 m0, s55, %d' % (j * 1024))
            k.e('s_nop 0')
            k.e('buffer_load_dwordx4 v%d, s[32:35], s57 offen%s lds' % (VX + j, xfl))
        k.e('s_add_u32 s57, s57, %d' % xadv)
        k.e('s_add_u32 s58, s58, %d' % yadv)
        k.e('s_add_u32 s55, s55, %d' % STAGE)
        k.e('s_add_u32 s56, s56, %d' % STAGE)
        k.e('s_cmp_eq_u32 s55, s60')
        k.e('s_cselect_b32 s61, %d, 0' % (NS * STAGE))
        k.e('s_sub_u32 s55, s55, s61')
        k.e('s_sub_u32 s56, s56, s61')
        k.e('s_add_u32 s59, s59, 1')
        k.e('s_cmp_lt_u32 s59, %d' % nst)
        k.e('s_cbranch_scc1 %s' % ll)
        naux = aux(g) if aux else 0
        if CPF >= 2:
            k.e('s_and_b32 s44, s46, %d' % (env('CPW', 2) - 1))
            k.e('s_lshl_b32 s44, s44, 13')
            code_touch(k, 'L_%s_epi' % name, 'L_text_end', 's44', 60)
            naux += 1
        if tailpre: tailpre[0](k)
        for st in range(nst - NS + LAG, nst):
            k.e('s_waitcnt vmcnt(%d)' % (per * (nst - st - 1) + naux if (st < nst - 1 or tailpre) else 0))
            if st == nst - 1 and aux_end: aux_end(g)
            k.e('s_barrier')
            if tailpre: naux += tailpre[1](k, st - (nst - NS + LAG))
    LE = env('LE_' + name, 2 if name in ('wo', 'wsp') else 0)
    g.LE = 0 if c.last else LE
    if mid: mid(g)
    if not c.last and not LE: k.e('s_barrier')
    if post: post(g)
    if not c.last and LE: k.e('s_barrier')
    signal(k)
    endpgm(k)
    k.label(lcomp)
    k.e('s_setprio 1')
    k.e('s_sub_u32 s46, s46, 4')
    k.e('s_lshr_b32 s50, s46, %d' % log2(WN))
    k.e('s_and_b32 s51, s46, %d' % (WN - 1))
    ACC = 8
    nacc = mb * nb * 16
    FR = frbase if frbase else ACC + nacc
    GU = env('GU_' + name, GU)
    g.acc = lambda i, j: ACC + (accmap(i, j) if accmap else i * nb + j) * 16
    g.M16 = M16
    k.e('v_and_b32 v3, 31, v1')
    k.e('v_lshrrev_b32 v4, 5, v1')
    if M16:
        JG = env('JG_' + name, JG)
        KSN = KS // 32; NU = KSN * JG; nbj = nb // JG
        XA = FR + max(16 * mb + 16 * nbj, 72 if name == 'win' else 0)
        nxa = KSN if X[0] == 'rm' else 1
        nya = 2
    else:
        NU = S // GU
        assert NU % 2 == 0
        fs1 = (mb + nb) * 4
        fsz = fs1 * GU
        XA = FR + 2 * fsz
        nxa = S if X[0] == 'rm' else 1
        nya = 1
    XB = XA; XC = XA + nxa; YB = XC + nxa; YC = YB + nya
    g.free = YC + nya
    g.FR = FR
    NP = TN // 64; NB = TN // 32
    if Y[0] == 'w':
        if Y[3] == 'qkv': ywave = 's_lshl_b32 s52, s51, 8'
        else:
            assert nb % 2 == 0
            ywave = 's_mul_i32 s52, s51, %d' % (nb // 2 * 1024)
        def yblk(j): return j * 1024 if Y[3] == 'qkv' else (j // 2) * 1024 + (j % 2) * 256
    else: ywave = 's_mul_i32 s52, s51, %d' % (nb * 1024)
    if M16:
        k.e('v_and_b32 v5, 15, v1')
        k.e('v_lshrrev_b32 v6, 4, v1')
        if X[0] == 'xf':
            k.e('s_mul_i32 s52, s50, %d' % (mb * S * 1024))
            if geo: k.e('s_add_u32 s52, s52, %d' % geo[2])
            k.e('v_lshl_add_u32 v7, v5, 4, s52')
            k.e('v_lshl_add_u32 v%d, v6, 9, v7' % XB)
        else:
            k.e('s_mul_i32 s52, s50, %d' % (mb * 4096))
            k.e('v_lshl_add_u32 v2, v5, 7, s52')
            k.e('v_lshrrev_b32 v5, 1, v5')
            for ks in range(KSN):
                k.e('v_add_u32 v7, %d, v6' % (4 * ks))
                k.e('v_xor_b32 v7, v7, v5')
                k.e('v_lshl_add_u32 v%d, v7, 4, v2' % (XB + ks))
        k.e('v_mul_u32_u24 v5, %d, v4' % (2 * NP * 1024 if Y[0] == 'w' else NB * 1024))
        k.e('v_and_b32 v6, 1, v6')
        k.e('v_lshl_add_u32 v5, v6, 9, v5')
        k.e('v_lshl_add_u32 v5, v6, %d, v5' % (5 if Y[0] == 'w' else 7))
        k.e('v_bfe_u32 v6, v1, 2, 2')
        k.e('v_lshl_add_u32 v5, v6, %d, v5' % (6 if Y[0] == 'w' else 4))
        k.e('v_bfe_u32 v6, v1, 1, 1')
        k.e('v_lshl_add_u32 v5, v6, %d, v5' % (3 if Y[0] == 'w' else 6))
        k.e('v_and_b32 v6, 1, v1')
        k.e('v_lshl_add_u32 v5, v6, %d, v5' % (4 if Y[0] == 'w' else 3))
        k.e(ywave)
        k.e('s_add_u32 s52, s52, %d' % (geo[0] if geo else xb))
        k.e('v_add_u32 v%d, s52, v5' % YB)
        k.e('v_xor_b32 v%d, %d, v%d' % (YB + 1, 32 if Y[0] == 'w' else 128, YB))
    else:
        if X[0] == 'xf':
            k.e('s_mul_i32 s52, s50, %d' % (mb * S * 1024))
            k.e('v_lshl_add_u32 v%d, v1, 4, s52' % XB)
        else:
            assert KS == 64
            k.e('s_mul_i32 s52, s50, %d' % (mb * 4096))
            k.e('v_bfe_u32 v5, v3, 1, 3')
            k.e('v_lshl_add_u32 v6, v3, 7, s52')
            for ss in range(S):
                k.e('v_add_u32 v7, %d, v4' % (2 * ss))
                k.e('v_xor_b32 v7, v7, v5')
                k.e('v_lshl_add_u32 v%d, v7, 4, v6' % (XB + ss))
        k.e("""
        v_lshlrev_b32 v5, 9, v4            ; h*512
        v_bfe_u32 v6, v1, 2, 2             ; r
        v_lshl_add_u32 v5, v6, %d, v5
        v_bfe_u32 v6, v1, 4, 1             ; G&1
        v_lshl_add_u32 v5, v6, %d, v5
        v_bfe_u32 v6, v1, 1, 1             ; c>>1
        v_and_b32 v7, 1, v1                ; c&1
        """ % ((6, 5) if Y[0] == 'w' else (4, 7)))
        if Y[0] == 'w':
            k.e('v_lshl_add_u32 v5, v6, 4, v5')
            k.e('v_lshl_add_u32 v5, v7, 3, v5')
        else:
            k.e('v_lshl_add_u32 v5, v7, 6, v5')
            k.e('v_lshl_add_u32 v5, v6, 3, v5')
        k.e(ywave)
        k.e('s_add_u32 s52, s52, %d' % xb)
        k.e('v_add_u32 v%d, s52, v5' % YB)
    k.e('s_waitcnt lgkmcnt(0)')
    mark(k, 0)
    pre(g)
    if M16:
        def xr16(sp, ks, i, rh): return FR + (sp[0] if isinstance(sp, tuple) else (sp * KSN + ks) % 2) * 8 * mb + (2 * i + rh) * 4
        def yr16(sp, u, j, t): return FR + 16 * mb + (sp[1] if isinstance(sp, tuple) else (sp * NU + u) % 2) * 8 * nbj + ((j % nbj) * 2 + t) * 4
        def cols(jg, sp): return sp[2] if isinstance(sp, tuple) else range(jg * nbj, (jg + 1) * nbj)
        def reads(u, sp=0):
            ks = u // JG; jg = u % JG
            xr = []; yr = []
            if jg == 0 or isinstance(sp, tuple):
                for i in range(mb):
                    for rh in range(2):
                        if X[0] == 'xf': xr.append('ds_read_b128 %s, v%d offset:%d' % (vr(xr16(sp, ks, i, rh), 4), XC, (i * S + 2 * ks) * 1024 + rh * 256))
                        else: xr.append('ds_read_b128 %s, v%d offset:%d' % (vr(xr16(sp, ks, i, rh), 4), XC + ks, i * 4096 + rh * 2048))
            for j in cols(jg, sp):
                for t in range(2):
                    for rd in range(2):
                        o = (4 * ks + rd) * NP * 1024 + yblk(j) if Y[0] == 'w' else (2 * ks * NB + j) * 1024 + rd * 256
                        yr.append('ds_read_b64_tr_b16 %s, v%d offset:%d' % (vr(yr16(sp, u, j, t) + 2 * rd, 2), YC + t, o))
            return xr[:1] + yr[:2] + xr[1:] + yr[2:]
        def mfmas(u, first, sp=0):
            ks = u // JG; jg = u % JG
            out = []
            for j in cols(jg, sp):
                for t in range(2):
                    for i in range(mb):
                        for rh in range(2):
                            x_ = xr16(sp, ks, i, rh); y_ = yr16(sp, u, j, t)
                            if j in swap: a = g.acc(i, j) + 8 * rh + 4 * t; p, q = x_, y_
                            else: a = g.acc(i, j) + 8 * t + 4 * rh; p, q = y_, x_
                            out.append('v_mfma_f32_16x16x32_bf16 %s, %s, %s, %s' % (vr(a, 4), vr(p, 4), vr(q, 4), '0' if first and ks == 0 and not cinit else vr(a, 4)))
            return out
        def fix(i, j):
            a = g.acc(i, j)
            for hb in range(2):
                for e in range(4):
                    k.e('%s v%d, v%d' % ('v_permlane32_swap_b32' if j in swap else 'v_permlane16_swap_b32', a + 8 * hb + e, a + 8 * hb + 4 + e))
    else:
        def yoff(j, ss, rd):
            return (2 * ss + rd) * NP * 1024 + yblk(j) if Y[0] == 'w' else (ss * NB + j) * 1024 + rd * 256
        def xf(ss, i): return FR + ((ss // GU) % 2) * fsz + (ss % GU) * fs1 + i * 4
        def yf(ss, j): return FR + ((ss // GU) % 2) * fsz + (ss % GU) * fs1 + (mb + j) * 4
        def reads1(ss):
            xr = []; yr = []
            for i in range(mb):
                if X[0] == 'xf':
                    xr.append('ds_read_b128 %s, v%d offset:%d' % (vr(xf(ss, i), 4), XC, (i * S + ss) * 1024))
                else:
                    xr.append('ds_read_b128 %s, v%d offset:%d' % (vr(xf(ss, i), 4), XC + ss, i * 4096))
            for j in range(nb):
                for rd in range(2):
                    yr.append('ds_read_b64_tr_b16 %s, v%d offset:%d' % (vr(yf(ss, j) + 2 * rd, 2), YC, yoff(j, ss, rd)))
            return [xr[0]] + yr[:2] + xr[1:] + yr[2:]
        def reads(u, sp=0): return [r for ss in range(u * GU, (u + 1) * GU) for r in reads1(ss)]
        def mfmas(u, first, sp=0):
            out = []
            for ss in range(u * GU, (u + 1) * GU):
                for j in range(nb):
                    for i in range(mb):
                        a = g.acc(i, j)
                        c_ = '0' if first and ss == 0 else vr(a, 16)
                        p, q = (xf(ss, i), yf(ss, j)) if j in swap else (yf(ss, j), xf(ss, i))
                        out.append('v_mfma_f32_32x32x16_bf16 %s, %s, %s, %s' % (vr(a, 16), vr(p, 4), vr(q, 4), c_))
            return out
        def fix(i, j): pass
    g.fix = fix
    def setaddr():
        for t in range(nxa): k.e('v_add_u32 v%d, s53, v%d' % (XC + t, XB + t))
        for t in range(nya): k.e('v_add_u32 v%d, s%d, v%d' % (YC + t, 52 if geo else 53, YB + t))
    RPGV = [env('RPG2_' + name, (5 if mb * nb == 2 else (2 if name == 'qkv' else 3)) * (1 if M16 else 2))]
    import re
    def regs_of(txt):
        return [(int(a_), int(b_)) for a_, b_ in re.findall(r'v\[(\d+):(\d+)\]', txt)]
    def advance():
        n0 = len(k.lines)
        if geo:
            k.e('s_add_u32 s53, s53, %d' % xb)
            k.e('s_and_b32 s53, s53, %d' % (geo[3] * xb - 1))
            k.e('s_add_u32 s52, s52, %d' % yb)
            k.e('s_cmp_eq_u32 s52, %d' % (geo[1] * yb))
            k.e('s_cselect_b32 s52, 0, s52')
        else:
            k.e('s_add_u32 s53, s53, %d' % STAGE)
            k.e('s_cmp_eq_u32 s53, %d' % (NS * STAGE))
            k.e('s_cselect_b32 s53, 0, s53')
        setaddr()
        got = [l.strip() for l in k.lines[n0:]]; del k.lines[n0:]
        return got
    EARLY = env('EARLYADV', 1)
    RM = [ROLL]
    def unit(u, first, rs, sp, extra):
        ms = mfmas(u, first, sp)
        prev = reads(u, sp)
        dst = [regs_of(r)[0] for r in prev]
        ROLL = RM[0]
        covered = -1 if ROLL else len(prev); issued = 0; xi = 0
        WMAX = env('WMAX_' + name, env('WMAX', 9))
        nspread = len(ms) - (min(len(extra) // 2 + 1, len(ms) // 3) if extra else 0)
        for mi, m in enumerate(ms):
            ops = regs_of(m)[1:3]
            need = max(i for i, d in enumerate(dst) if any(o[0] <= d[0] <= o[1] for o in ops))
            if need > covered:
                n = min(len(prev) - 1 - need + issued, WMAX)
                k.e('s_waitcnt lgkmcnt(%d)' % n)
                covered = len(prev) - 1 - (n - issued) if n >= issued else len(prev) - 1
            k.e(m)
            e = min(len(rs), -(-len(rs) * (mi + 1) // nspread) if ROLL == 1 else -(-RPGV[0] * (mi + 1) // 2))
            if issued == len(rs):
                for _ in range(2):
                    if xi < len(extra): k.e(extra[xi]); xi += 1
            while issued < e: k.e(rs[issued]); issued += 1
        while issued < len(rs): k.e(rs[issued]); issued += 1
        while xi < len(extra): k.e(extra[xi]); xi += 1
    def stage(first, last, sp, tail=()):
        for u in range(NU):
            if u == NU - 1 and not last and not EARLY:
                for x in advance(): k.e(x)
            if u < NU - 1: rs = reads(u + 1, sp)
            elif last: rs = []
            else: rs = reads(0, sp ^ 1)
            extra = []
            if EARLY and not last and u == (NU - 2) % NU: extra = advance()
            if u == NU - 1: extra = extra + list(tail)
            if not RM[0] or (last and u == NU - 1 and not c.last and not LE): k.e('s_waitcnt lgkmcnt(0)')
            if u == NU - 1 and not (last and (c.last or LE)): k.e('s_barrier')
            unit(u, first, rs, sp, extra)
    k.e('s_mov_b32 s53, 0')
    if geo: k.e('s_mov_b32 s52, 0')
    setaddr()
    if xt:
        handoff_multi(k, [(4, 's_mov_b32 s100, %d' % FL_MOD, 64), (5, 's_mov_b32 s100, %d' % (FL_MOD + 256), 64), (6, wait[0], wait[1])])
        mod_table(k, FR)
    elif wait and not (ownlds and LPW): handoff(k, wait[0], wait[1], role='C')
    if early: early(g)
    k.e('s_barrier')
    mark(k, 1)
    for r in reads(0): k.e(r)
    if EARLY and NU == 1:
        for x in advance(): k.e(x)
    DEFER = env('DEFER_' + name, DEFER)
    npair = (nst - 1 - max(DEFER, 1)) // 2
    assert nst % 2 == 0 and (DEFER == 0 or (DEFER % 2 == 1 and M16 and KSN == 1 and not LE and DEFER <= NS))
    soft = env('SOFT_' + name, SOFT)
    srp = env('SRP_' + name, 1 if name == 'qkv' else 2)
    segs_ = [(npair, RPGV[0], ROLL)] if not soft else [(soft, srp, 0), (npair - soft, RPGV[0], ROLL)]
    RPGV[0] = segs_[0][1]; RM[0] = segs_[0][2]
    stage(True, False, 0)
    pre2(g)
    for si, (cnt_, rp_, rm_) in enumerate(segs_):
        RPGV[0] = rp_; RM[0] = rm_
        k.e('s_mov_b32 s54, %d' % cnt_)
        lp = 'L_%s_loop%s' % (name, si or '')
        k.label(lp)
        stage(False, False, 1); stage(False, False, 0, tail=['s_sub_u32 s54, s54, 1', 's_cmp_lg_u32 s54, 0'])
        k.e('s_cbranch_scc1 %s' % lp)
    k.label('L_%s_epi' % name)
    if prelast: prelast(g)
    def addr_for(st):
        o = (st % NS) * STAGE
        return ['v_add_u32 v%d, %d, v%d' % (XC, o, XB)] + ['v_add_u32 v%d, %d, v%d' % (YC + t, o, YB + t) for t in range(nya)]
    if DEFER:
        s0_ = nst - DEFER
        c0, c1 = dcols
        y0 = NU % 2
        for n_ in range(DEFER):
            par = ((1 + n_) % 2, (y0 + n_) % 2, c0)
            if n_ < DEFER - 1:
                for x in addr_for(s0_ + n_ + 1): k.e(x)
                rs = reads(0, (par[0] ^ 1, par[1] ^ 1, c0))
            else: rs = []
            if not RM[0] or (n_ == 0 and JG == 1): k.e('s_waitcnt lgkmcnt(0)')
            if n_ < DEFER - 1: k.e('s_barrier')
            unit(0, False, rs, par, [])
        def deferred():
            for x in addr_for(s0_): k.e(x)
            for r in reads(0, (0, 0, c1)): k.e(r)
            for n_ in range(DEFER):
                par = (n_ % 2, n_ % 2, c1)
                if n_ < DEFER - 1:
                    for x in addr_for(s0_ + n_ + 1): k.e(x)
                    rs = reads(0, (par[0] ^ 1, par[1] ^ 1, c1))
                else: rs = []
                if not RM[0] or n_ == DEFER - 1: k.e('s_waitcnt lgkmcnt(0)')
                if n_ == DEFER - 1: k.e('s_barrier')
                unit(0, False, rs, par, [])
            k.e('s_nop 7')
        g.deferred = deferred
    else:
        g.deferred = None
        stage(False, True, 1)
    mark(k, 2)
    if M16:
        k.e('s_nop 7')
        if not lazyfix:
            for j in range(nb):
                for i in range(mb): fix(i, j)
            k.e('s_nop 1')
    epi(g)
    if not selfsig:
        if g.LE == 1 and not getattr(g, 'ended', 0): k.e('s_barrier')
        signal(k, 'C')
        if g.LE == 2: k.e('s_barrier')
    if side:
        endpgm(k)
        k.label('L_%s_pf' % name)
        k.e('s_sub_u32 s30, s2, %d' % (GM * GN))
        k.e('s_cmp_ge_u32 s30, %d' % side[0])
        k.e('s_cbranch_scc1 L_%s_pfe' % name)
        side[1](k, 0 if solo else AUX_B + 4096)
        k.label('L_%s_pfe' % name)
        signal(k, 'A')
    if pf:
        endpgm(k)
        k.label('L_%s_pf' % name)
        npf = 256 - GM * GN
        per_wg = SIZES[pf] // npf
        assert per_wg % (8192 * 2) == 0
        k.e('s_sub_u32 s30, s2, %d' % (GM * GN))
        k.e('s_mul_i32 s30, s30, %d' % per_wg)
        if env('PFOFF', 0): k.e('s_mov_b32 s30, 0x40000000')
        k.e('v_lshlrev_b32 v2, 4, v0')
        k.e('s_mov_b32 s31, %d' % (per_wg // 16384))
        k.e('s_waitcnt lgkmcnt(0)')
        srd(k, 32, pf)
        k.label('L_%s_pfl' % name)
        k.e('buffer_load_dwordx4 v[8:11], v2, s[32:35], s30 offen')
        k.e('s_add_u32 s30, s30, 8192')
        k.e('buffer_load_dwordx4 v[12:15], v2, s[32:35], s30 offen')
        k.e('s_add_u32 s30, s30, 8192')
        k.e('s_waitcnt vmcnt(6)')
        k.e('s_sub_u32 s31, s31, 1')
        k.e('s_cmp_lg_u32 s31, 0')
        k.e('s_cbranch_scc1 L_%s_pfl' % name)
        if env('L2W', 0): l2warm(k)
        signal(k, 'A')
    finish(k)
    assert g.free <= 256, g.free
    k.need(g.free, max(NS * STAGE, g.AUX + auxsz, (AUX_B + 12288) if side and not solo else 0))

def l2warm(k):
    k.e("""
    s_sub_u32 s30, s2, 224
    s_lshr_b32 s30, s30, 3             ; helper index
    s_and_b32 s31, s2, 3
    s_lshl_b32 s31, s31, 2
    s_add_u32 s31, s31, s30
    s_lshl_b32 s31, s31, 19            ; 128 rows * 4KB
    s_mov_b32 s44, %d
    """ % 32)
    if env('L2W', 0) & 1:
        srd(k, 32, 'w_sp')
        k.label('L_l2x')
        k.e("""
        buffer_load_dwordx4 v[8:11], v2, s[32:35], s31 offen
        s_add_u32 s31, s31, 8192
        buffer_load_dwordx4 v[12:15], v2, s[32:35], s31 offen
        s_add_u32 s31, s31, 8192
        s_waitcnt vmcnt(6)
        s_sub_u32 s44, s44, 1
        s_cmp_lg_u32 s44, 0
        s_cbranch_scc1 L_l2x
        """)
    if env('L2W', 0) & 2:
        handoff(k, 's_bfe_u32 s100, s2, 0x10002\ns_mul_i32 s100, s100, 7\ns_min_u32 s101, s3, 6\ns_add_u32 s100, s100, s101\ns_lshl_b32 s100, s100, 8\ns_add_u32 s100, s100, %d' % FL_WIN, 64, role='W', slp=8)
        k.e('s_barrier')
        srd(k, 32, 'ws', WS_Z2N, ZSZ)
        k.e("""
        s_add_u32 s44, s30, %d             ; first row block
        s_mul_i32 s31, s44, %d
        s_bfe_u32 s45, s2, 0x10002
        s_mul_i32 s45, s45, %d
        s_add_u32 s31, s31, s45
        L_l2y:
        """ % (2 * env('L2S', 3), 112 * KB, 56 * KB))
        for q in range(7):
            k.e('s_add_u32 s45, s31, %d' % (q * 8192))
            k.e('buffer_load_dwordx4 v[8:11], v2, s[32:35], s45 offen sc1')
        k.e("""
        s_waitcnt vmcnt(7)
        s_add_u32 s31, s31, %d
        s_add_u32 s44, s44, 4
        s_cmp_lt_u32 s44, 64
        s_cbranch_scc1 L_l2y
        """ % (4 * 112 * KB))

def alloc(g, n, align=4):
    b = (g.free + align - 1) // align * align
    g.free = b + n
    return b
def nop(g): pass

def store_xf_tile(g, a, T, voff, srdn, soff, imm):
    k = g.k
    for d in range(8):
        k.e('v_cvt_pk_bf16_f32 v%d, v%d, v%d' % (T + d, a + 2 * d, a + 2 * d + 1))
    if os.environ.get('SDATA') == 'zero' and k.c.name == 'qkv':
        for d in range(8): k.e('v_mov_b32 v%d, 0' % (T + d))
    if os.environ.get('SDATA') == 'rand' and k.c.name == 'qkv':
        import random
        for d in range(8):
            k.e('s_mul_i32 s68, s2, %d' % (random.getrandbits(31) | 1))
            k.e('v_add_u32 v%d, s68, v0' % (T + d))
            k.e('s_mov_b32 s69, %d' % (random.getrandbits(31) | 1))
            k.e('v_mul_lo_u32 v%d, v%d, s69' % (T + d, T + d))
            k.e('v_and_b32 v%d, 0xbfffbfff, v%d' % (T + d, T + d))
    if env('PACE', -1) >= 0: k.e('s_waitcnt vmcnt(%d)' % env('PACE', -1))
    k.e('buffer_store_dwordx4 %s, v%d, %s, %s offen offset:%d%s' % (vr(T, 4), voff, sr(srdn), soff, imm, WT))
    k.e('buffer_store_dwordx4 %s, v%d, %s, %s offen offset:%d%s' % (vr(T + 4, 4), voff, sr(srdn), soff, imm + 1024, WT))

def pk(op, d, *src, sel=None):
    s = 'v_pk_%s_f32 %s' % (op, vr(d, 2))
    hi = []
    for x in src:
        if isinstance(x, int): s += ', ' + vr(x, 2); hi.append(1)
        elif isinstance(x, tuple): s += ', ' + vr(x[0], 2); hi.append(0)
        elif x.startswith('s['): s += ', ' + x; hi.append(1)
        else: s += ', ' + x; hi.append(0)
    if 0 in hi: s += ' op_sel_hi:[%s]' % ','.join(map(str, hi))
    return s

def proj_wpre(wname, V, nw, wave):
    n = 16 // nw
    def setup(k):
        srd(k, 64, wname)
        k.e("""
        s_and_b32 s68, s2, 3
        s_lshl_b32 s68, s68, 3
        s_bfe_u32 s69, s2, 0x20003
        s_lshl_b32 s69, s69, 1
        s_add_u32 s68, s68, s69
        s_bfe_u32 s69, s2, 0x10005
        s_add_u32 s68, s68, s69            ; tm
        s_bfe_u32 s69, s2, 0x10002
        s_lshl_b32 s69, s69, 2
        s_lshr_b32 s70, s2, 6
        s_add_u32 s69, s69, s70            ; tn
        s_add_u32 s68, s68, s69            ; rotation
        s_lshl_b32 s69, s69, 8
        s_mul_i32 s70, %s, %d
        s_add_u32 s69, s69, s70
        s_mul_i32 s70, %s, %d              ; LDS offset of this wave's pieces
        v_lshrrev_b32 v%d, 5, v1
        v_lshlrev_b32 v%d, 13, v%d
        v_bfe_u32 v%d, v1, 2, 2
        v_lshl_add_u32 v%d, v%d, 11, v%d
        v_bfe_u32 v%d, v1, 4, 1
        v_lshl_add_u32 v%d, v%d, 6, v%d
        v_lshrrev_b32 v%d, 4, v1
        v_and_b32 v%d, 2, v%d
        v_xor_b32 v%d, v1, v%d
        v_and_b32 v%d, 3, v%d
        v_lshl_add_u32 v%d, v%d, 4, v%d
        v_add_u32 v%d, s69, v%d
        """ % (wave, n // 2 * 8 * 2048, wave, n * 1024, V, V, V, V + 1, V, V + 1, V, V + 1, V, V + 1, V, V + 1, V + 1, V + 1, V + 1, V + 1, V + 1, V + 1, V, V + 1, V, V, V))
        for j in range(1, n): k.e('v_add_u32 v%d, %d, v%d' % (V + j, (j // 2) * 8 * 2048 + (j % 2) * 128, V))
    def pieces(st):
        o = ['s_add_u32 s71, s68, %d\ns_and_b32 s71, s71, 3\ns_add_u32 s71, s71, %d\ns_lshl_b32 s71, s71, 17' % (st, st // 4 * 4)]
        for j in range(n):
            o.append('s_add_u32 m0, s70, %d' % (st * 16384 + j * 1024))
            o.append('buffer_load_dwordx4 v%d, s[64:67], s71 offen lds' % (V + j))
        return o
    return setup, pieces

def k_qkv(k, c):
    def pre(g):
        k = g.k
        srd(k, 32, 'ws', WS_Q, 4 * MB); srd(k, 36, 'ws', WS_KV, 8 * MB)
        g.L16 = alloc(g, 1, 1); g.LV16 = alloc(g, 1, 1)
        k.e('v_lshlrev_b32 v%d, 4, v1' % g.L16)
        if g.M16:
            k.e('v_and_b32 v5, 3, v1')
            k.e('v_lshl_add_u32 v5, v4, 4, v5')
            k.e('v_bfe_u32 v6, v1, 2, 1')
            k.e('v_lshl_add_u32 v5, v6, 3, v5')
            k.e('v_bfe_u32 v6, v1, 3, 1')
            k.e('v_lshl_add_u32 v5, v6, 2, v5')
            k.e('v_bfe_u32 v6, v1, 4, 1')
            k.e('v_lshl_add_u32 v5, v6, 5, v5')
            k.e('v_lshlrev_b32 v%d, 4, v5' % g.LV16)
        else: k.e('v_mov_b32 v%d, v%d' % (g.LV16, g.L16))
        k.e('''
        s_lshl_b32 s60, s31, 1
        s_add_u32 s60, s60, s51
        s_lshl_b32 s60, s60, 6
        s_lshl_b32 s61, s30, 2
        s_add_u32 s60, s60, s61
        s_lshl_b32 s61, s50, 1
        s_add_u32 s60, s60, s61           ; head*64 + rb0
        s_lshl_b32 s61, s60, 11           ; Q offset
        s_lshl_b32 s62, s60, 12           ; KV offset
        s_add_u32 s63, s62, 4096
        s_mov_b32 s66, %s
        s_mov_b32 s67, %s
        ''' % ((hx(32 ** -0.5 * LOG2E * float(os.environ.get('QERR', '1'))),) * 2))
    def epi(g):
        k = g.k
        T = g.FR
        k.e('s_nop 7')
        n = 0
        for i in range(2):
            a = g.acc(i, 0)
            for r in range(0, 16, 2): k.e(pk('mul', a + r, a + r, 's[66:67]'))
            store_xf_tile(g, a, T + 8 * n, g.L16, 32, 's61', i * 2048); n += 1
        for j in (1, 2):
            for i in range(2):
                store_xf_tile(g, g.acc(i, j), T + 8 * (n % 5), g.L16 if j == 1 else g.LV16, 36, 's62' if i == 0 else 's63', (j - 1) * 2048); n += 1
    QSP = env('QSP', 0)
    def epi2(g):
        k = g.k
        T = g.FR
        KP = [g.acc(0, 1), g.acc(1, 1)]; VP = [g.acc(0, 2), g.acc(1, 2)]; QP = [g.acc(0, 0), g.acc(1, 0)]
        for j in (1, 2):
            for i in range(2):
                g.fix(i, j)
                k.e('s_nop 0')
                store_xf_tile(g, g.acc(i, j), g.acc(i, j), g.L16 if j == 1 else g.LV16, 36, 's62' if i == 0 else 's63', (j - 1) * 2048)
        if g.deferred:
            g.deferred()
            if env('QSIG', 1): signal(k, 'C')
        for i in range(2):
            a = g.acc(i, 0)
            g.fix(i, 0)
            k.e('s_nop 0')
            for r in range(0, 16, 2): k.e(pk('mul', a + r, a + r, 's[66:67]'))
            for d in range(8): k.e('v_cvt_pk_bf16_f32 v%d, v%d, v%d' % (a + d, a + 2 * d, a + 2 * d + 1))
        if QSP == 1: signal(k, 'C')
        k.e('s_mul_i32 s68, s46, 5120')
        k.e('s_add_u32 s68, s68, %d' % AUX_A)
        k.e('v_add_u32 v5, s68, v%d' % g.L16)
        Sreg = [T, T + 16, T + 32, T + 48]
        for qi in range(2):
            for ki in range(2):
                S_ = Sreg[2 * qi + ki]
                k.e('v_mfma_f32_32x32x16_bf16 %s, %s, %s, 0' % (vr(S_, 16), vr(KP[ki], 4), vr(QP[qi], 4)))
                k.e('v_mfma_f32_32x32x16_bf16 %s, %s, %s, %s' % (vr(S_, 16), vr(KP[ki] + 4, 4), vr(QP[qi] + 4, 4), vr(S_, 16)))
        for q in range(4): k.e('ds_write_b128 v5, %s offset:%d' % (vr(QP[q // 2] + 4 * (q % 2), 4), q * 1024))
        if AOWN:
            k.e('s_lshl_b32 s69, s46, 15')
            k.e('v_add_u32 v6, s69, v%d' % g.L16)
            k.e('v_add_u32 v7, s69, v%d' % g.LV16)
            for i in range(2):
                for hh in range(2):
                    k.e('ds_write_b128 v6, %s offset:%d' % (vr(KP[i] + 4 * hh, 4), i * 4096 + hh * 1024))
                    k.e('ds_write_b128 v7, %s offset:%d' % (vr(VP[i] + 4 * hh, 4), i * 4096 + 2048 + hh * 1024))
        k.e('v_lshl_add_u32 v5, v1, 3, s68')
        if QSP == 2: signal(k, 'C')
        k.e('s_nop 7')
        MM = T + 64
        for qi in range(2):
            a0, a1 = Sreg[2 * qi], Sreg[2 * qi + 1]
            k.e('v_max_f32 v%d, v%d, v%d' % (MM + qi, a0, a1))
            for r in range(1, 16): k.e('v_max3_f32 v%d, v%d, v%d, v%d' % (MM + qi, MM + qi, a0 + r, a1 + r))
        for qi in range(2): k.e('v_mov_b32 v%d, v%d' % (MM + 2 + qi, MM + qi))
        k.e('s_nop 1')
        for qi in range(2): k.e('v_permlane32_swap_b32 v%d, v%d' % (MM + qi, MM + 2 + qi))
        k.e('s_nop 1')
        for qi in range(2): k.e('v_max_f32 v%d, v%d, v%d' % (MM + qi, MM + qi, MM + 2 + qi))
        for qi in range(2): k.e('v_sub_f32 v%d, %s, v%d' % (MM + qi, hx(-40.0), MM + qi))
        k.e('ds_write_b64 v5, %s offset:4096' % vr(MM, 2))
        k.e('s_waitcnt lgkmcnt(0)')
    sig = 's_lshl_b32 s100, s31, 8\ns_lshl_b32 s101, s30, 4\ns_add_u32 s100, s100, s101\ns_add_u32 s100, s100, %d' % FL_QKV
    wait = ('s_lshl_b32 s100, s30, 8\ns_add_u32 s100, s100, %d' % FL_LN1, 8)
    k_gemm(k, c, 16, 16, 3, 1, 4, 128, 192, 2, 2, 1024, 32, 4, ('xt', WS_N, 1024) if XT else ('xf', WS_H, 1024), ('w', 'wqkv', 6144, 'qkv'), pre, nop, epi2 if AT2 else epi, selfsig=bool(AT2 and (QSP or AOWN == 1 or (env('DEFER_qkv', 0) and env('QSIG', 1)))), lazyfix=bool(AT2), DEFER=0, dcols=([1, 2], [0]), swap=(2,), wait=wait, sig=sig, RWD=4, SOFT=4)

def k_proj(k, c, K, X, wname, final):
    NQ = 2 if MP0 else 4
    EARLYV = MP0 and env('EARLYV', 1)
    def modq_loads(k):
        for q in range(NQ):
            k.e('s_add_u32 s62, s69, %d' % (q * 16384))
            k.e('s_add_u32 s63, s70, %d' % (q * 16384))
            k.e('buffer_load_dwordx4 %s, v7, s[64:67], s62 offen sc1' % vr(24 + 4 * q, 4))
            k.e('buffer_load_dword v%d, v6, s[64:67], s63 offen sc1' % (40 + q))
    def aux(g):
        k = g.k
        if final:
            srd(k, 40, 'ws', WS_MOD, 6144 * 4)
            k.e('''
            v_and_b32 v7, 31, v1
            v_lshlrev_b32 v7, 4, v7
            s_lshl_b32 s62, s31, 9
            s_add_u32 s62, s62, %d
            buffer_load_dwordx4 v[24:27], v7, s[40:43], s62 offen sc1
            ''' % (5 * 4096))
            return 1
        srd(k, 64, 'ws', 0, 256 * KB)
        k.e('''
        v_and_b32 v2, 31, v1
        v_lshrrev_b32 v3, 5, v1
        v_lshlrev_b32 v2, 4, v2
        v_lshl_add_u32 v2, v3, 13, v2
        s_lshl_b32 s62, s31, 9
        s_add_u32 s62, s62, %d
        v_and_b32 v6, 15, v1
        v_lshlrev_b32 v6, 2, v6
        s_lshl_b32 s68, s2, 6
        s_add_u32 s63, s68, %d
        s_mov_b32 s69, s62
        s_mov_b32 s70, s63
        v_mov_b32 v7, v2
        ''' % (WS_MODQ, WS_MODQ))
        modq_loads(k)
        return xtile(g) + 2 * NQ
    def xtile(g):
        k = g.k
        srd(k, 40, 'x')
        k.e('''
        v_lshrrev_b32 v2, 4, v1
        v_and_b32 v3, 15, v1
        s_lshl_b32 s62, s30, 17            ; tm*64*2048
        s_lshl_b32 s63, s31, 8
        s_add_u32 s62, s62, s63
        s_lshl_b32 s63, s46, 15            ; lw*16 rows
        s_add_u32 s62, s62, s63
        s_lshl_b32 s63, s46, 12
        s_add_u32 s63, s63, %d
        ''' % g.AUX)
        for j in range(4):
            k.e('v_add_u32 v4, %d, v2' % (4 * j))
            k.e('v_xor_b32 v5, v4, v3')
            k.e('v_lshlrev_b32 v5, 4, v5')
            k.e('v_lshl_add_u32 v5, v4, 11, v5')
            k.e('s_add_u32 m0, s63, %d' % (j * 1024))
            k.e('s_nop 0')
            k.e('buffer_load_dwordx4 v5, s[40:43], s62 offen lds')
        return 4
    def aux_end(g):
        k = g.k
        lp = k.newlabel('mqp'); lc = k.newlabel('mqc')
        if final:
            poll_init(k)
            k.e('s_branch %s' % lc)
            k.label(lp)
            k.e('buffer_load_dwordx4 v[24:27], v7, s[40:43], s62 offen sc1')
            k.e('s_waitcnt vmcnt(0)')
            k.label(lc)
            k.e('v_max3_u32 v2, v24, v25, v26')
            k.e('v_max_u32 v2, v2, v27')
            k.e('v_cmp_eq_u32 vcc, -1, v2')
            poll_back(k, lp)
            k.e('v_add_u32 v2, %d, v7' % (g.AUX + 16 * KB))
            k.e('ds_write_b128 v2, v[24:27]')
            k.e('s_waitcnt lgkmcnt(0)')
            return
        if MP0:
            k.e('v_cmp_lt_u32 vcc, 31, v1')
            k.e(pk('add', 24, 24, 28)); k.e(pk('add', 26, 26, 30))
            k.e('v_add_f32 v40, v40, v41')
        else:
            poll_init(k)
            k.e('s_branch %s' % lc)
            k.label(lp)
            modq_loads(k)
            k.e('s_waitcnt vmcnt(0)')
            k.label(lc)
            k.e('v_max_u32 v2, v24, v25')
            for r in range(26, 44, 2): k.e('v_max3_u32 v2, v2, v%d, v%d' % (r, r + 1))
            k.e('v_cmp_eq_u32 vcc, -1, v2')
            poll_back(k, lp)
            k.e(pk('add', 24, 24, 28)); k.e(pk('add', 26, 26, 30)); k.e(pk('add', 32, 32, 36)); k.e(pk('add', 34, 34, 38))
            k.e(pk('add', 24, 24, 32)); k.e(pk('add', 26, 26, 34))
            k.e('v_cmp_lt_u32 vcc, 31, v1')
            k.e('v_add_f32 v40, v40, v41')
            k.e('v_add_f32 v42, v42, v43')
            k.e('v_add_f32 v40, v40, v42')
        k.e('v_cndmask_b32 v7, 0, 1.0, vcc')
        for d in range(2): round_bf16_pair(k, 24 + 2 * d, 25 + 2 * d, 28)
        for e in range(4): k.e('v_add_f32 v%d, v7, v%d' % (24 + e, 24 + e))
        for d in range(2): round_bf16_pair(k, 24 + 2 * d, 25 + 2 * d, 28)
        k.e('v_lshlrev_b32 v2, 4, v1')
        k.e('v_add_u32 v2, %d, v2' % (g.AUX + 16 * KB))
        k.e('ds_write_b128 v2, v[24:27]')
        k.e("""
        s_lshr_b32 s62, s2, 6
        s_cmp_eq_u32 s62, 2
        s_cselect_b32 s62, 1.0, 0
        v_cvt_pk_bf16_f32 v40, v40, v40
        v_lshlrev_b32 v40, 16, v40
        v_add_f32 v40, s62, v40
        v_cvt_pk_bf16_f32 v40, v40, v40
        v_lshlrev_b32 v40, 16, v40
        s_add_u32 s68, s68, 8192
        v_cmp_gt_u32 vcc, 16, v0
        s_and_saveexec_b64 s[62:63], vcc
        buffer_store_dword v40, v6, s[64:67], s68 offen%s
        s_mov_b64 exec, s[62:63]
        s_waitcnt lgkmcnt(0)
        """ % WT)
    def pre(g):
        k = g.k
        g.L16 = alloc(g, 1, 1); g.RA = alloc(g, 1, 1); g.CA = alloc(g, 1, 1); g.TA = alloc(g, 1, 1)
        g.RES = alloc(g, 16); g.GA = alloc(g, 32); g.G2 = alloc(g, 32) if not final else None
        srd(k, 36, 'ws', WS_X1, 8 * MB)
        if final: srd(k, 32, 'out')
        else: srd(k, 32, 'ws', WS_ST1, 256 * KB)
        k.e('v_lshlrev_b32 v%d, 4, v1' % g.L16)
        k.e('''
        s_lshl_b32 s60, s31, 7
        s_lshl_b32 s61, s51, 6
        s_add_u32 s60, s60, s61           ; col0
        s_lshl_b32 s61, s30, 1
        s_add_u32 s61, s61, s50           ; rb
        s_lshl_b32 s62, s61, 16
        s_lshl_b32 s63, s60, 1
        s_add_u32 s63, s63, s62           ; row-major byte offset of (row0,col0)
        s_lshl_b32 s64, s60, 6
        s_add_u32 s64, s64, s62           ; XF offset
        s_add_u32 s65, s64, %d            ; X1S offset
        ; tile image address: row*256 + ((wn*8) ^ (row%%16))*16 + h*8
        s_lshl_b32 s66, s50, 13
        s_add_u32 s66, s66, %d
        v_and_b32 v5, 15, v3
        s_lshl_b32 s67, s51, 3
        v_xor_b32 v5, s67, v5
        v_lshlrev_b32 v5, 4, v5
        v_lshl_add_u32 v5, v3, 8, v5
        v_lshl_add_u32 v5, v4, 3, v5
        v_add_u32 v%d, s66, v5
        ; column vector address: wn*256 + h*16
        s_lshl_b32 s67, s51, 8
        s_add_u32 s67, s67, %d
        v_lshl_add_u32 v%d, v4, 4, s67
        ''' % (4 * MB, g.AUX, g.RA, g.AUX + 16 * KB, g.CA))
    KX = same_kernel('wo', 'wout') and env('KEEPX', 1)
    def early(g):
        k = g.k
        if EARLYV:
            A_ = g.GA; V_ = g.RES
            l = k.newlabel('ev')
            k.e('s_cmp_lg_u32 s46, 1'); k.e('s_cbranch_scc1 %s' % l)
            srd(k, 80, 'ws', 0, 256 * KB)
            k.e('''
            v_lshlrev_b32 v%d, 4, v3
            v_lshl_add_u32 v%d, v4, 13, v%d
            s_lshl_b32 s68, s31, 9
            s_add_u32 s68, s68, %d
            s_add_u32 s69, s68, 16384
            buffer_load_dwordx4 %s, v%d, s[80:83], s68 offen sc1
            buffer_load_dwordx4 %s, v%d, s[80:83], s69 offen sc1
            ''' % (V_, V_, V_, WS_MODQ + (3 * 4096 if final else 0), vr(A_, 4), V_, vr(A_ + 4, 4), V_))
            if not final:
                k.e('''
                v_and_b32 v%d, 15, v1
                v_lshlrev_b32 v%d, 2, v%d
                s_lshl_b32 s70, s2, 6
                s_add_u32 s68, s70, %d
                s_add_u32 s69, s68, 16384
                buffer_load_dword v%d, v%d, s[80:83], s68 offen sc1
                buffer_load_dword v%d, v%d, s[80:83], s69 offen sc1
                ''' % (V_ + 1, V_ + 1, V_ + 1, WS_MODQ, A_ + 8, V_ + 1, A_ + 9, V_ + 1))
            k.e('v_cvt_f32_u32 v%d, v4' % (V_ + 2))
            k.e('v_add_u32 v%d, %d, v%d' % (V_ + 3, g.AUX + 16 * KB, g.L16))
            k.e('s_waitcnt vmcnt(0)')
            k.e(pk('add', A_, A_, A_ + 4)); k.e(pk('add', A_ + 2, A_ + 2, A_ + 6))
            for d in range(2): round_bf16_pair(k, A_ + 2 * d, A_ + 1 + 2 * d, A_ + 4)
            for e in range(4): k.e('v_add_f32 v%d, v%d, v%d' % (A_ + e, V_ + 2, A_ + e))
            for d in range(2): round_bf16_pair(k, A_ + 2 * d, A_ + 1 + 2 * d, A_ + 4)
            k.e('ds_write_b128 v%d, %s' % (V_ + 3, vr(A_, 4)))
            if not final:
                F = A_ + 8
                k.e('''
                s_lshr_b32 s68, s2, 6
                s_cmp_eq_u32 s68, 2
                s_cselect_b32 s68, 1.0, 0
                v_add_f32 v%d, v%d, v%d
                v_cvt_pk_bf16_f32 v%d, v%d, v%d
                v_lshlrev_b32 v%d, 16, v%d
                v_add_f32 v%d, s68, v%d
                v_cvt_pk_bf16_f32 v%d, v%d, v%d
                v_lshlrev_b32 v%d, 16, v%d
                s_add_u32 s70, s70, 8192
                s_mov_b64 exec, 0xffff
                buffer_store_dword v%d, v%d, s[80:83], s70 offen%s
                s_mov_b64 exec, -1
                ''' % (F, F, F + 1, F, F, F, F, F, F, F, F, F, F, F, F, F, V_ + 1, WT))
            k.e('s_waitcnt lgkmcnt(0)')
            k.label(l)
            return
        if final or MP0: return
        D = g.GA; MC = g.RES; MT = g.RES + 8
        k.e('s_lshl_b32 s68, s46, 13')
        k.e('s_add_u32 s68, s68, %d' % AUX_A)
        k.e('v_add_u32 v%d, s68, v%d' % (MT, g.L16))
        for j in range(8): k.e('ds_read_b128 %s, v%d offset:%d' % (vr(D + 4 * j, 4), MT, j * 1024))
        for j in range(8):
            k.e('s_waitcnt lgkmcnt(%d)' % (7 - j))
            for d in range(4):
                unpack(k, MT, MT + 1, D + 4 * j + d)
                op = 'v_mul_f32' if j == 0 else 'v_fmac_f32'
                k.e('%s v%d, v%d, v%d' % (op, MC + 2 * d, MT, MSV + j))
                k.e('%s v%d, v%d, v%d' % (op, MC + 2 * d + 1, MT + 1, MSV + j))
        k.e('s_nop 1')
        for e in range(4): k.e('v_permlane32_swap_b32 v%d, v%d' % (MC + e, MC + 4 + e))
        k.e('s_nop 1')
        for e in range(4): k.e('v_add_f32 v%d, v%d, v%d' % (MC + e, MC + e, MC + 4 + e))
        k.e('s_nop 1')
        for e in range(2): k.e('v_permlane16_swap_b32 v%d, v%d' % (MC + e, MC + 2 + e))
        k.e('s_nop 1')
        for e in range(2): k.e('v_add_f32 v%d, v%d, v%d' % (MC + e, MC + e, MC + 2 + e))
        k.e('s_nop 1')
        for e in range(2): k.e('v_add_f32_dpp v%d, v%d, v%d row_ror:8 row_mask:0xf bank_mask:0xf' % (MC + e, MC + e, MC + e))
        k.e('''
        v_and_b32 v%d, 7, v1
        v_lshlrev_b32 v%d, 5, v%d
        v_lshrrev_b32 v%d, 4, v1
        v_lshl_add_u32 v%d, v%d, 3, v%d
        v_add_u32 v%d, s68, v%d
        ds_write_b64 v%d, %s
        s_waitcnt lgkmcnt(0)
        ''' % (MT, MT, MT, MT + 1, MT, MT + 1, MT, MT, MT, MT, vr(MC, 2)))
    def pre2(g):
        k = g.k
        if not final and not MP0:
            MC = g.RES; MT = g.RES + 8
            l = k.newlabel('noC')
            k.e('s_cmp_lg_u32 s46, 1')
            k.e('s_cbranch_scc1 %s' % l)
            srd(k, 80, 'ws', 0, 256 * KB)
            k.e('v_lshlrev_b32 v%d, 2, v1' % (MT + 1))
            k.e('v_add_u32 v%d, %d, v%d' % (MT, AUX_A, MT + 1))
            for w in range(4): k.e('ds_read_b32 v%d, v%d offset:%d' % (MC + w, MT, w * 8192))
            k.e('''
            s_and_b32 s68, s2, 3
            s_lshl_b32 s68, s68, 14
            s_lshr_b32 s69, s2, 2
            s_lshl_b32 s69, s69, 8
            s_add_u32 s68, s68, s69
            s_add_u32 s68, s68, %d
            s_waitcnt lgkmcnt(0)
            v_add_f32 v%d, v%d, v%d
            v_add_f32 v%d, v%d, v%d
            v_add_f32 v%d, v%d, v%d
            v_min_u32 v%d, -2, v%d
            buffer_store_dword v%d, v%d, s[80:83], s68 offen sc1
            ''' % (WS_MODQ, MC, MC, MC + 1, MC + 2, MC + 2, MC + 3, MC, MC, MC + 2, MC, MC, MC, MT + 1))
            k.label(l)
        if final and not KX:
            for j in range(2):
                for t in range(2):
                    k.e('buffer_load_dwordx4 %s, v%d, s[36:39], s64 offen offset:%d sc1' % (vr(g.RES + 8 * j + 4 * t, 4), g.L16, (2 * j + t) * 1024))
    PL = env('PRELAST', 1)
    def operands(g):
        k = g.k
        for j in range(2):
            for q in range(4):
                k.e('ds_read_b128 %s, v%d offset:%d' % (vr(g.GA + 16 * j + 4 * q, 4), g.CA, j * 128 + q * 32))
        if not final or KX:
            for j in range(2):
                for q in range(4):
                    k.e('v_xor_b32 v%d, %d, v%d' % (g.TA, (j * 4 + q) * 16, g.RA))
                    k.e('ds_read_b64 %s, v%d' % (vr(g.RES + 8 * j + 2 * q, 2), g.TA))
        if not final:
            for j in range(2):
                for q in range(4):
                    k.e('ds_read_b128 %s, v%d offset:%d' % (vr(g.G2 + 16 * j + 4 * q, 4), g.CA, 512 + j * 128 + q * 32))
    def epi(g):
        k = g.k
        assert g.M16
        if not PL: operands(g)
        k.e('s_waitcnt lgkmcnt(0)' if (KX or not final) else 's_waitcnt vmcnt(0) lgkmcnt(0)')
        T = g.FR
        for j in range(2):
            a = g.acc(0, j)
            for d in range(8):
                unpack(k, T + 2 * (d % 4), T + 2 * (d % 4) + 1, g.RES + 8 * j + d)
                k.e(pk('fma', a + 2 * d, a + 2 * d, g.GA + 16 * j + 2 * d, T + 2 * (d % 4)))
            if not final:
                if j == 0: k.e('s_waitcnt lgkmcnt(0)')
                for d in range(8): k.e(pk('mul', g.G2 + 16 * j + 2 * d, a + 2 * d, g.G2 + 16 * j + 2 * d))
                store_xf_tile(g, g.G2 + 16 * j, g.GA + 16 * j, g.L16, 36, 's65', j * 2048)
        def keep():
            for j in range(2):
                a = g.acc(0, j)
                if final or KX:
                    for d in range(8):
                        k.e('v_cvt_pk_bf16_f32 v%d, v%d, v%d' % (g.RES + 8 * j + d, a + 2 * d, a + 2 * d + 1))
                    for q in range(4):
                        k.e('v_xor_b32 v%d, %d, v%d' % (g.TA, (j * 4 + q) * 16, g.RA))
                        k.e('ds_write_b64 v%d, %s' % (g.TA, vr(g.RES + 8 * j + 2 * q, 2)))
                else:
                    store_xf_tile(g, a, g.RES + 8 * j, g.L16, 36, 's64', j * 2048)
        if final: keep()
        if final:
            k.e('''
            v_lshrrev_b32 v5, 3, v1
            v_and_b32 v6, 7, v1
            s_lshl_b32 s67, s51, 3
            v_or_b32 v7, s67, v6
            v_xor_b32 v7, v7, v5
            v_lshlrev_b32 v7, 4, v7
            v_lshl_add_u32 v7, v5, 8, v7
            v_add_u32 v7, s66, v7              ; b=0 address
            v_xor_b32 v%d, 128, v7             ; rows 8..15: slot ^ 8
            v_lshlrev_b32 v5, 11, v5
            v_lshl_add_u32 v5, v6, 4, v5       ; global: row*2048 + c*16
            s_waitcnt lgkmcnt(0)
            ''' % g.TA)
            for b in range(4):
                k.e('ds_read_b128 %s, v%d offset:%d' % (vr(g.GA + 4 * b, 4), 7 if b % 2 == 0 else g.TA, b * 2048))
            for b in range(4):
                k.e('s_waitcnt lgkmcnt(%d)' % (3 - b))
                k.e('buffer_store_dwordx4 %s, v5, s[32:35], s63 offen%s' % (vr(g.GA + 4 * b, 4), os.environ.get('OUTFLAG', ' sc1')))
                k.e('s_add_u32 s63, s63, %d' % (8 * 2048))
            l = k.newlabel('ep')
            k.e('s_or_b32 s67, s2, s46')
            k.e('s_cbranch_scc1 %s' % l)
            srd(k, 96, 'ws', WS_EPOCH, 8)
            k.e('v_mov_b32 v%d, s84' % FV); k.e('v_mov_b32 v%d, s85' % (FV + 1)); k.e('v_mov_b32 v%d, 0' % (FV + 2))
            flag_store(k, '0')
            k.label(l)
        else:
            S1 = T + 8; S2 = T + 10
            a0 = g.acc(0, 0)
            k.e(pk('add', S1, a0, a0 + 2))
            k.e(pk('mul', S2, a0, a0))
            k.e(pk('fma', S2, a0 + 2, a0 + 2, S2))
            for r in range(4, 32, 2):
                k.e(pk('add', S1, S1, a0 + r))
                k.e(pk('fma', S2, a0 + r, a0 + r, S2))
            k.e('v_add_f32 v%d, v%d, v%d' % (S1, S1, S1 + 1))
            k.e('v_add_f32 v%d, v%d, v%d' % (S1 + 1, S2, S2 + 1))
            k.e('v_mov_b32 v%d, v%d' % (S2, S1))
            k.e('v_mov_b32 v%d, v%d' % (S2 + 1, S1 + 1))
            k.e('''
            s_lshl_b32 s66, s30, 4
            s_lshl_b32 s67, s31, 1
            s_add_u32 s66, s66, s67
            s_add_u32 s66, s66, s51
            s_lshl_b32 s66, s66, 9             ; (tm*16+part)*512
            s_lshl_b32 s67, s50, 8
            s_add_u32 s66, s66, s67
            v_lshlrev_b32 v5, 3, v3
            ''')
            k.e('v_permlane32_swap_b32 v%d, v%d' % (S1, S2))
            k.e('v_permlane32_swap_b32 v%d, v%d' % (S1 + 1, S2 + 1))
            k.e('s_nop 1')
            k.e(pk('add', S1, S1, S2))
            k.e('s_mov_b32 exec_hi, 0')
            k.e('buffer_store_dwordx2 %s, v5, s[32:35], s66 offen%s' % (vr(S1, 2), WT))
            k.e('s_mov_b32 exec_hi, -1')
            if g.LE == 1 and KX:
                k.e('s_barrier'); g.ended = 1
            keep()
            k.e('s_waitcnt lgkmcnt(0)')
    if final:
        sig = None
        wait = ('s_lshr_b32 s100, s30, 1\ns_lshl_b32 s100, s100, 8\ns_add_u32 s100, s100, %d' % FL_WSP, 56)
    else:
        sig = 's_lshr_b32 s100, s30, 1\ns_lshl_b32 s100, s100, 8\ns_and_b32 s101, s30, 1\ns_lshl_b32 s101, s101, 7\ns_add_u32 s100, s100, s101\ns_lshl_b32 s101, s31, 4\ns_add_u32 s100, s100, s101\ns_add_u32 s100, s100, %d' % FL_WO
        wait = ('s_lshr_b32 s100, s30, %d\ns_lshl_b32 s100, s100, 8\ns_add_u32 s100, s100, %d' % (1 if AT2 else 2, FL_ATT), 16 if AT2 else 32)
    geo = None
    if GEO: geo = (0, 6, 96 * KB, 4, (TPRE if final else APRE), 224 if final else 0)
    k_gemm(k, c, 32, 8, 3, 2, 4, 64, 128, 2, 2, K, 64, 4, X, ('w', wname, 2048, None), pre, pre2, epi, aux=None if EARLYV else aux, auxsz=17 * KB, auxbase=AUX_A, aux_end=None if EARLYV else aux_end,
           auxpre=xtile if EARLYV and not final else None, geo=geo, wait=wait, sig=sig, GU=2, RWD=4, early=early, altmap=True, prelast=operands if PL else None,
           own='s_lshr_b32 s68, s47, 2\ns_mul_i32 s68, s68, 7\ns_lshr_b32 s69, s48, 2\ns_add_u32 s68, s68, s69\ns_min_u32 s68, s68, 13\ns_lshl_b32 s68, s68, 1' if final else None, ownlim=224)

ZKEEP = 72
BSV = 244
MSV = 240
def stats_finish(k, S, n, R, M, T):
    k.e('v_mov_b32 v%d, v%d' % (T, S))
    k.e('v_mov_b32 v%d, v%d' % (T + 1, S + 1))
    k.e('s_nop 1')
    k.e('v_permlane32_swap_b32 v%d, v%d' % (S, T))
    k.e('v_permlane32_swap_b32 v%d, v%d' % (S + 1, T + 1))
    k.e('s_nop 1')
    k.e(pk('add', S, S, T))
    k.e('v_mul_f32 v%d, %s, v%d' % (S, hx(1.0 / n), S))
    k.e('v_mul_f32 v%d, v%d, v%d' % (T, S, S))
    k.e('v_mov_b32 v%d, %s' % (T + 1, hx(1.0 / n)))
    k.e('v_fma_f32 v%d, v%d, v%d, -v%d' % (S + 1, S + 1, T + 1, T))
    k.e('v_max_f32 v%d, 0, v%d' % (S + 1, S + 1))
    k.e('v_add_f32 v%d, %s, v%d' % (S + 1, hx(1e-5), S + 1))
    k.e('v_rsq_f32 v%d, v%d' % (R, S + 1))
    k.e('s_nop 0')
    k.e('v_mul_f32_e64 v%d, -v%d, v%d' % (M, S, R))

def uw_job(k, LB):
    k.e("""
    v_lshrrev_b32 v2, 3, v0
    v_and_b32 v3, 7, v0
    v_lshlrev_b32 v4, 6, v2
    s_mov_b32 s31, %d
    v_mul_lo_u32 v5, v2, s31
    v_lshl_add_u32 v5, v3, 4, v5
    s_movk_i32 s44, %d
    s_movk_i32 s45, %d
    s_lshl_b32 s30, s30, 1
    s_waitcnt lgkmcnt(0)
    """ % (16 * 7168, 4 * 4096, 3 * 4096))
    srd(k, 36, 'w_in'); srd(k, 40, 'ws', 0, 64 * KB)
    AV = 72; SV = 88; UA = 104; WA = 112
    lq = k.newlabel('uwq')
    poll_init(k)
    k.label(lq)
    for q in range(4): k.e('buffer_load_dwordx4 %s, v4, s[40:43], s44 offen offset:%d sc1' % (vr(AV + 4 * q, 4), q * 16))
    for q in range(4): k.e('buffer_load_dwordx4 %s, v4, s[40:43], s45 offen offset:%d sc1' % (vr(SV + 4 * q, 4), q * 16))
    if not k.c.first:
        k.e('s_waitcnt vmcnt(0)')
        k.e('v_max_u32 v6, v%d, v%d' % (AV, AV + 1))
        for r in range(AV + 2, AV + 32, 2): k.e('v_max3_u32 v6, v6, v%d, v%d' % (r, r + 1))
        k.e('v_cmp_eq_u32 vcc, -1, v6')
        poll_back(k, lq)
    k.e('s_mov_b32 s50, %d' % LB)
    lp = k.newlabel('uw')
    k.label(lp)
    k.e('s_lshl_b32 s31, s30, 7')
    for j in range(16):
        k.e('buffer_load_dwordx4 %s, v5, s[36:39], s31 offen' % vr(8 + 4 * j, 4))
        k.e('s_add_u32 s31, s31, 7168')
    for j in range(16):
        k.e('s_waitcnt vmcnt(%d)' % (15 - j))
        for d in range(4):
            unpack(k, 6, 7, 8 + 4 * j + d)
            for acc, cf in ((UA, AV), (WA, SV)):
                op = 'v_mul_f32' if j == 0 else 'v_fmac_f32'
                k.e('%s v%d, v6, v%d' % (op, acc + 2 * d, cf + j))
                k.e('%s v%d, v7, v%d' % (op, acc + 2 * d + 1, cf + j))
    red_lanes(k, list(range(UA, UA + 16)), list(range(8, 24)))
    lskip = k.newlabel('uwskip')
    k.e("""
    s_lshl_b32 s47, s46, 9
    s_add_u32 s47, s47, s50
    v_lshl_add_u32 v2, v3, 5, s47      ; pass*4096 + wave*512 + chunk*32
    v_cmp_gt_u32 vcc, 8, v1
    s_and_saveexec_b64 s[48:49], vcc
    ds_write_b128 v2, v[104:107]
    ds_write_b128 v2, v[108:111] offset:16
    ds_write_b128 v2, v[112:115] offset:256
    ds_write_b128 v2, v[116:119] offset:272
    s_mov_b64 exec, s[48:49]
    s_waitcnt lgkmcnt(0)
    s_barrier
    s_cmp_ge_u32 s46, 2
    s_cbranch_scc1 %s
    v_lshl_add_u32 v2, v0, 2, s50      ; wave0: u cols, wave1: w0 cols
    """ % lskip)
    for w in range(8): k.e('ds_read_b32 v%d, v2 offset:%d' % (8 + w, w * 512))
    k.e('s_waitcnt lgkmcnt(0)')
    for w in range(1, 8): k.e('v_add_f32 v8, v8, v%d' % (8 + w))
    k.e("""
    v_min_u32 v8, -2, v8
    v_lshlrev_b32 v2, 2, v1
    s_lshl_b32 s31, s30, 8
    s_lshl_b32 s47, s46, 14
    s_add_u32 s31, s31, s47
    s_add_u32 s31, s31, %d
    buffer_store_dword v8, v2, s[40:43], s31 offen sc1
    s_waitcnt vmcnt(0)
    """ % WS_UW)
    k.label(lskip)
    k.e("""
    s_add_u32 s30, s30, 1
    s_add_u32 s50, s50, 4096
    s_cmp_lt_u32 s50, %d
    s_cbranch_scc1 %s
    """ % (LB + 8192, lp))

GC1 = -2.0 * 0.7978845608028654 * LOG2E
def gelu_ops(k, a, U, W0, T, R, M, after_t=None):
    for r in range(0, 16, 2): k.e(pk('fma', T + r, U + r, (M,), W0 + r))
    if after_t: after_t()
    for r in range(0, 16, 2): k.e(pk('fma', a + r, a + r, (R,), T + r))
    for r in range(0, 16, 2): k.e(pk('mul', T + r, a + r, a + r))
    for r in range(0, 16, 2): k.e(pk('fma', T + r, T + r, 's[70:71]', (6,)))
    for r in range(0, 16, 2): k.e(pk('mul', T + r, T + r, a + r))
    for r in range(16): k.e('v_exp_f32 v%d, v%d' % (T + r, T + r))
    for r in range(0, 16, 2): k.e(pk('add', T + r, T + r, '1.0'))
    for r in range(16): k.e('v_rcp_f32 v%d, v%d' % (T + r, T + r))
    for r in range(0, 16, 2): k.e(pk('mul', a + r, a + r, T + r))
def stat_ops(k, a, S1, S2, first):
    for r in range(0, 16, 2):
        if first and r == 0:
            k.e(pk('add', S1, a, a + 2)); k.e(pk('mul', S2, a, a))
        else:
            if not (first and r == 2): k.e(pk('add', S1, S1, a + r))
            k.e(pk('fma', S2, a + r, a + r, S2))

def k_win(k, c):
    SPLIT = env('SPLIT', 0)
    XFER = 48 * KB
    def mid(g):
        k = g.k
        Z = 64; U = 96; T = 160; S = 176; RM_ = 180
        k.e("""
        s_lshl_b32 s67, s46, 13
        s_add_u32 s67, s67, %d
        v_lshl_add_u32 v44, v1, 4, s67     ; transfer area
        s_lshl_b32 s67, s46, 9
        s_add_u32 s67, s67, %d
        v_lshl_add_u32 v45, v1, 3, s67     ; (R,M) / stats slot
        v_lshrrev_b32 v46, 5, v1
        v_lshlrev_b32 v46, 4, v46
        v_add_u32 v46, %d, v46
        s_mov_b32 s70, %s
        s_mov_b32 s71, s70
        v_mov_b32 v6, %s
        ds_read_b64 v[%d:%d], v45
        """ % (XFER, g.AUX + 2048, g.AUX, hx(GC1 * 0.044715), hx(GC1), RM_, RM_ + 1))
        for b in range(2):
            for q in range(4):
                k.e('ds_read_b128 %s, v46 offset:%d' % (vr(U + 32 * b + 4 * q, 4), (2 + b) * 128 + q * 32))
                k.e('ds_read_b128 %s, v46 offset:%d' % (vr(U + 32 * b + 16 + 4 * q, 4), 1024 + (2 + b) * 128 + q * 32))
        k.e('s_setprio 1')
        k.e('s_waitcnt lgkmcnt(0)')
        k.e('v_mov_b32 v%d, v%d' % (RM_ + 2, RM_ + 1))
        k.e('s_barrier')
        for q in range(8): k.e('ds_read_b128 %s, v44 offset:%d' % (vr(Z + 4 * q, 4), q * 1024))
        for b in range(2):
            a = Z + 16 * b
            k.e('s_waitcnt lgkmcnt(%d)' % (4 - 4 * b))
            for hb in range(2):
                for e in range(4): k.e('v_permlane16_swap_b32 v%d, v%d' % (a + 8 * hb + e, a + 8 * hb + 4 + e))
            gelu_ops(k, a, U + 32 * b, U + 32 * b + 16, T, RM_, RM_ + 2)
            stat_ops(k, a, S, S + 2, b == 0)
        k.e('v_add_f32 v%d, v%d, v%d' % (S, S, S + 1))
        k.e('v_add_f32 v%d, v%d, v%d' % (S + 1, S + 2, S + 3))
        k.e('ds_write_b64 v45, %s' % vr(S, 2))
        k.e('s_waitcnt lgkmcnt(0)')
        k.e('s_barrier')
        for q in range(8): k.e('ds_write_b128 v44, %s offset:%d' % (vr(Z + 4 * q, 4), q * 1024))
        k.e('s_waitcnt lgkmcnt(0)')
    LP = 1; LPJ = env('LPJ', 3)
    KZ = c.nxt == 'wsp' and env('KEEPZ', 1)
    def post(g):
        if not LP: return
        k = g.k
        srd(k, 36, 'ws', WS_G, 256 * KB)
        k.e("""
        s_lshl_b32 s65, s30, 2
        s_add_u32 s65, s65, s46
        s_lshl_b32 s65, s65, 12            ; rb32*4096
        v_and_b32 v2, 31, v1
        v_lshrrev_b32 v3, 5, v1
        v_mul_u32_u24 v3, %d, v3
        v_lshl_add_u32 v2, v2, 3, v3
        s_lshl_b32 s67, s46, 9
        s_add_u32 s67, s67, %d
        v_lshl_add_u32 v3, v1, 3, s67
        s_setprio 2
        s_barrier
        """ % (7 * 256, g.AUX + 2048))
        lp = k.newlabel('lpoll')
        poll_init(k)
        k.label(lp)
        for p in range(7):
            k.e('buffer_load_dwordx2 %s, v2, s[36:39], s65 offen offset:%d sc1' % (vr(24 + 2 * p, 2), p * 256))
        k.e('s_waitcnt vmcnt(0)')
        k.e('v_max_u32 v5, v24, v25')
        for p in range(1, 7): k.e('v_max3_u32 v5, v5, v%d, v%d' % (24 + 2 * p, 25 + 2 * p))
        k.e('v_cmp_eq_u32 vcc, -1, v5')
        poll_back(k, lp)
        for p in range(1, 7): k.e(pk('add', 24, 24, 24 + 2 * p))
        stats_finish(k, 24, 1792, 40, 41, 26)
        k.e('ds_write_b64 v3, v[40:41]')
        k.e('s_waitcnt lgkmcnt(0)')
        k.e('s_barrier')
    def uw_loads(g):
        g.k.e('buffer_load_dwordx4 v[24:27], v2, s[40:43], s62 offen sc1')
        g.k.e('buffer_load_dwordx4 v[28:31], v2, s[40:43], s63 offen sc1')
    def aux(g):
        k = g.k
        srd(k, 40, 'ws', WS_UW, 32 * KB)
        k.e("""
        v_and_b32 v2, 31, v1
        v_lshlrev_b32 v2, 4, v2
        v_add_u32 v3, 7168, v2
        v_cmp_gt_u32 vcc, 32, v1
        s_lshl_b32 s62, s31, 9
        s_add_u32 s63, s62, %d
        v_cndmask_b32 v2, v2, v3, vcc
        v_lshlrev_b32 v3, 4, v1
        v_add_u32 v3, %d, v3
        """ % (16 * KB, g.AUX))
        uw_loads(g)
        return 2
    def aux_end(g):
        k = g.k
        lp = k.newlabel('uwp'); lc = k.newlabel('uwc')
        poll_init(k)
        k.e('s_branch %s' % lc)
        k.label(lp)
        uw_loads(g)
        k.e('s_waitcnt vmcnt(0)')
        k.label(lc)
        k.e("""
        v_max3_u32 v4, v24, v25, v26
        v_max3_u32 v4, v4, v27, v28
        v_max3_u32 v4, v4, v29, v30
        v_max_u32 v4, v4, v31
        v_cmp_eq_u32 vcc, -1, v4
        """)
        poll_back(k, lp)
        k.e("""
        ds_write_b128 v3, v[24:27]
        ds_write_b128 v3, v[28:31] offset:1024
        s_waitcnt lgkmcnt(0)
        """)
    def pre(g):
        k = g.k
        g.L16 = alloc(g, 1, 1); g.SA = alloc(g, 1, 1); g.GA = alloc(g, 1, 1); g.CA = alloc(g, 1, 1)
        g.R = alloc(g, 2, 2); g.M = alloc(g, 2, 2); g.P = alloc(g, 16)
        srd(k, 32, 'ws', ZB, max(WS_Z, WS_Z2N) - ZB + ZSZ); srd(k, 36, 'ws', WS_ST1, 512 * KB)
        k.e('v_lshlrev_b32 v%d, 4, v1' % g.L16)
        k.e("""
        s_lshl_b32 s61, s30, 2
        s_add_u32 s61, s61, s46           ; rb32
        s_lshr_b32 s64, s61, 1
        s_lshl_b32 s64, s64, 13           ; rb64*8192
        s_and_b32 s65, s61, 1
        s_lshl_b32 s65, s65, 8
        s_add_u32 s64, s64, s65           ; x1 stats offset
        s_lshl_b32 s65, s61, 12
        s_add_u32 s65, s65, %d            ; granule offset (row block)
        s_lshl_b32 s66, s31, 8
        s_add_u32 s66, s66, s65           ; own granule
        s_mul_i32 s60, s61, %d
        s_lshl_b32 s61, s31, 13
        s_add_u32 s60, s60, s61           ; Z1 offset
        v_lshlrev_b32 v5, 3, v3
        v_lshl_add_u32 v%d, v4, 12, v5    ; h*8*512 + row*8
        v_mul_u32_u24 v6, %d, v4
        v_add_u32 v%d, v6, v5             ; h*7*256 + row*8
        v_lshlrev_b32 v%d, 4, v4
        v_add_u32 v%d, %d, v%d
        """ % (WS_G - WS_ST1, 112 * 1024, g.SA, 7 * 256, g.GA, g.CA, g.CA, g.AUX, g.CA))
    def early(g):
        k = g.k
        for p in range(8):
            k.e('buffer_load_dwordx2 %s, v%d, s[36:39], s64 offen offset:%d sc1' % (vr(g.P + 2 * p, 2), g.SA, p * 512))
        k.e('s_waitcnt vmcnt(0)')
        for p in range(1, 8): k.e(pk('add', g.P, g.P, g.P + 2 * p))
        stats_finish(k, g.P, 1024, g.R, g.M, g.P + 2)
        if SPLIT:
            k.e('s_lshl_b32 s67, s46, 9')
            k.e('s_add_u32 s67, s67, %d' % (g.AUX + 2048))
            k.e('v_lshl_add_u32 v%d, v1, 3, s67' % g.SA)
            k.e('s_lshl_b32 s67, s46, 13')
            k.e('s_add_u32 s67, s67, %d' % XFER)
            k.e('v_lshl_add_u32 v%d, v1, 4, s67' % g.GA)
            k.e('v_mov_b32 v%d, v%d' % (g.R + 1, g.M))
            k.e('ds_write_b64 v%d, %s' % (g.SA, vr(g.R, 2)))
            k.e('s_waitcnt lgkmcnt(0)')
    def pre2(g): pass
    def epi(g):
        k = g.k
        c1 = -2.0 * 0.7978845608028654 * LOG2E
        U = g.FR; W0 = g.FR + 16; T = g.FR + 32; PS = g.FR + 48
        def rd_uw(j):
            for q in range(4):
                k.e('ds_read_b128 %s, v%d offset:%d' % (vr(U + 4 * q, 4), g.CA, j * 128 + q * 32))
                k.e('ds_read_b128 %s, v%d offset:%d' % (vr(W0 + 4 * q, 4), g.CA, 1024 + j * 128 + q * 32))
        k.e('s_nop 7')
        rd_uw(0)
        k.e('s_mov_b32 s70, %s' % hx(c1 * 0.044715)); k.e('s_mov_b32 s71, s70')
        k.e('v_mov_b32 v6, %s' % hx(c1))
        S1 = g.P; S2 = g.P + 2
        GR = g.P + 2
        n = 0
        def poll_loads():
            for p in range(7):
                k.e('buffer_load_dwordx2 %s, v%d, s[36:39], s65 offen offset:%d sc1' % (vr(GR + 2 * p, 2), g.GA, p * 256))
        cnt = [0]
        def block(j):
            a = g.acc(0, j)
            g.fix(0, j)
            k.e('s_waitcnt lgkmcnt(0)')
            lastz2 = 1 if SPLIT else 3
            gelu_ops(k, a, U, W0, T, g.R, g.M, after_t=(lambda: rd_uw(j + 1)) if (j < 7 and not (j == lastz2 and g.deferred)) else None)
            if j >= 4:
                if KZ:
                    for d in range(8): k.e('v_cvt_pk_bf16_f32 v%d, v%d, v%d' % (ZKEEP + 8 * (j - 4) + d, a + 2 * d, a + 2 * d + 1))
                else:
                    k.e('s_add_u32 s61, s60, %d' % (WS_Z - ZB + (j - 4) * 2048))
                    store_xf_tile(g, a, PS + 8 * (cnt[0] % 3), g.L16, 32, 's61', 0); cnt[0] += 1
            else: stat_ops(k, a, S1, S2, j == 0)
        if SPLIT:
            assert g.deferred and LPJ == 3
            for q in range(8): k.e('ds_write_b128 v%d, %s offset:%d' % (g.GA, vr(g.acc(0, 2) + 4 * q, 4), q * 1024))
            k.e('s_waitcnt lgkmcnt(0)')
            k.e('s_barrier')
        for j in range(2 if SPLIT else 4): block(j)
        k.e('v_add_f32 v%d, v%d, v%d' % (S1, S1, S1 + 1))
        k.e('v_add_f32 v%d, v%d, v%d' % (S1 + 1, S2, S2 + 1))
        if SPLIT:
            k.e('s_barrier')
            k.e('ds_read_b64 %s, v%d' % (vr(S2, 2), g.SA))
            k.e('s_waitcnt lgkmcnt(0)')
            k.e(pk('add', S1, S1, S2))
        k.e('v_mov_b32 v%d, v%d' % (S2, S1))
        k.e('v_mov_b32 v%d, v%d' % (S2 + 1, S1 + 1))
        k.e('v_lshlrev_b32 v5, 3, v3')
        k.e('s_nop 0')
        k.e('v_permlane32_swap_b32 v%d, v%d' % (S1, S2))
        k.e('v_permlane32_swap_b32 v%d, v%d' % (S1 + 1, S2 + 1))
        k.e('s_nop 1')
        k.e(pk('add', S1, S1, S2))
        k.e('v_min_u32 v%d, -2, v%d' % (S1, S1))
        k.e('v_min_u32 v%d, -2, v%d' % (S1 + 1, S1 + 1))
        k.e('s_mov_b32 exec_hi, 0')
        k.e('buffer_store_dwordx2 %s, v5, s[36:39], s66 offen sc1' % vr(S1, 2))
        k.e('s_mov_b32 exec_hi, -1')
        if env('WM', 0): mark(k, 0)
        NB4 = env('NB4', 1) if KZ else 4
        if g.deferred:
            g.deferred()
            rd_uw(4)
        if LPJ == 3: k.e('s_barrier')
        if SPLIT:
            assert NB4 >= 1
            for q in range(8): k.e('ds_read_b128 %s, v%d offset:%d' % (vr(g.acc(0, 2) + 4 * q, 4), g.GA, q * 1024))
        for j in range(4, 4 + NB4):
            block(j)
            if j == LPJ: k.e('s_barrier')
        if env('WM', 0): mark(k, 1)
        R2 = g.P + 4; M2 = g.P + 6
        k.e('s_lshl_b32 s67, s46, 9')
        k.e('s_add_u32 s67, s67, %d' % (g.AUX + 2048))
        k.e('v_lshl_add_u32 v5, v1, 3, s67')
        k.e('s_barrier')
        k.e('ds_read_b64 %s, v5' % vr(R2, 2))
        k.e('s_waitcnt lgkmcnt(0)')
        mark(k, 3)
        k.e('v_mov_b32 v%d, v%d' % (M2, R2 + 1))
        zo = ZOWN and c.nxt == 'wsp'
        if zo:
            assert g.M16
            ZA = g.P + 8
            k.e('''
            s_lshr_b32 s67, s46, 1
            s_lshl_b32 s67, s67, 15
            s_and_b32 s68, s46, 1
            s_lshl_b32 s68, s68, 13
            s_add_u32 s67, s67, s68
            s_add_u32 s67, s67, 16384
            v_bfe_u32 v5, v1, 4, 1
            v_lshl_add_u32 v%d, v5, 12, s67
            v_bfe_u32 v5, v1, 2, 2
            v_lshl_add_u32 v%d, v5, 8, v%d
            v_and_b32 v5, 2, v5
            v_or_b32 v5, v5, v4
            v_lshl_add_u32 v%d, v5, 6, v%d
            v_and_b32 v5, 3, v1
            v_lshl_add_u32 v%d, v5, 4, v%d
            v_xor_b32 v%d, 128, v%d
            ''' % (ZA, ZA, ZA, ZA, ZA, ZA, ZA, ZA + 1, ZA))
        for j in range(4):
            a = g.acc(0, j)
            for r in range(0, 16, 2): k.e(pk('fma', a + r, a + r, (R2,), (M2,)))
            k.e('s_add_u32 s61, s60, %d' % (WS_Z2N - ZB + j * 2048))
            if zo:
                store_xf_tile(g, a, a, g.L16, 32, 's61', 0)
            else:
                store_xf_tile(g, a, PS + 8 * (cnt[0] % 3), g.L16, 32, 's61', 0); cnt[0] += 1
        if zo:
            for j in range(4):
                for t in range(2): k.e('ds_write_b128 v%d, %s offset:%d' % (ZA + t, vr(g.acc(0, j) + 4 * t, 4), j * 1024))
        if g.LE: k.e('s_barrier')
        rest = list(range(4 + NB4, 8))
        NBS = env('NBS', 2)
        for j in rest[:NBS]: block(j)
        signal(k, 'C')
        if zo and LPW: k.e('s_barrier')
        for j in rest[NBS:]: block(j)
        k.e('s_waitcnt lgkmcnt(0)')
    sig = 's_lshl_b32 s100, s31, 8\ns_lshl_b32 s101, s30, 4\ns_add_u32 s100, s100, s101\ns_add_u32 s100, s100, %d' % FL_WIN
    wait = ('s_lshl_b32 s100, s30, 8\ns_add_u32 s100, s100, %d' % FL_WO, 64)
    H22 = env('H22', 0)
    k_gemm(k, c, 16, 14, 2, 2, 7, 128, 256, 2 if H22 else 4, 2 if H22 else 1, 1024, 32, 4, ('xf', WS_X1S, 1024), ('w', 'w_in', 7168, (256, [3584, 3584 + 128, 0, 128])),
           pre, pre2, epi, aux=aux, auxsz=4 * KB, auxbase=AUX_B, aux_end=aux_end, post=post, mid=mid if SPLIT else None, selfsig=True, early=early, SOFT=3, DEFER=3, dcols=([0, 1], [2, 3]) if H22 else ([0, 1, 2, 3], [4, 5, 6, 7]), JG=2, lazyfix=True, side=(28, uw_job), wait=wait, sig=sig)

def k_win2(k, c):
    assert c.nxt == 'wsp' and ZOWN
    def post(g):
        k = g.k
        srd(k, 36, 'ws', WS_G2, 512 * KB)
        k.e("""
        s_lshl_b32 s65, s30, 1
        s_lshr_b32 s66, s46, 1
        s_add_u32 s65, s65, s66
        s_lshl_b32 s65, s65, 14            ; rb64*16K
        s_and_b32 s66, s46, 1
        s_lshl_b32 s66, s66, 8
        s_add_u32 s65, s65, s66
        s_add_u32 s66, s65, 3584
        v_and_b32 v2, 31, v1
        v_lshrrev_b32 v3, 5, v1
        v_mul_u32_u24 v3, %d, v3
        v_lshl_add_u32 v2, v2, 3, v3
        s_lshl_b32 s67, s46, 9
        s_add_u32 s67, s67, %d
        v_lshl_add_u32 v3, v1, 3, s67
        s_setprio 2
        s_barrier
        """ % (14 * 512, g.AUX + 2048))
        lp = k.newlabel('lpoll')
        poll_init(k)
        k.label(lp)
        for p in range(14):
            k.e('buffer_load_dwordx2 %s, v2, s[36:39], s%d offen offset:%d sc1' % (vr(24 + 2 * p, 2), 65 + p // 7, (p % 7) * 512))
        k.e('s_waitcnt vmcnt(0)')
        k.e('v_max_u32 v5, v24, v25')
        for p in range(1, 14): k.e('v_max3_u32 v5, v5, v%d, v%d' % (24 + 2 * p, 25 + 2 * p))
        k.e('v_cmp_eq_u32 vcc, -1, v5')
        poll_back(k, lp)
        for p in range(1, 14): k.e(pk('add', 24, 24, 24 + 2 * p))
        stats_finish(k, 24, 1792, 56, 57, 26)
        k.e('ds_write_b64 v3, v[56:57]')
        k.e('s_waitcnt lgkmcnt(0)')
        k.e('s_barrier')
        if env('WLE', 2): k.e('s_barrier')
    def uw_loads(g):
        g.k.e('buffer_load_dwordx4 v[24:27], v2, s[40:43], s62 offen sc1')
        g.k.e('buffer_load_dwordx4 v[28:31], v2, s[40:43], s63 offen sc1')
    def aux(g):
        k = g.k
        srd(k, 40, 'ws', WS_UW, 32 * KB)
        k.e("""
        v_and_b32 v2, 31, v1
        v_lshlrev_b32 v2, 4, v2
        v_add_u32 v3, 7168, v2
        v_cmp_gt_u32 vcc, 32, v1
        s_lshl_b32 s62, s31, 9
        s_add_u32 s63, s62, %d
        v_cndmask_b32 v2, v2, v3, vcc
        v_lshlrev_b32 v3, 4, v1
        v_add_u32 v3, %d, v3
        """ % (16 * KB, g.AUX))
        uw_loads(g)
        return 2
    def aux_end(g):
        k = g.k
        lp = k.newlabel('uwp'); lc = k.newlabel('uwc')
        poll_init(k)
        k.e('s_branch %s' % lc)
        k.label(lp)
        uw_loads(g)
        k.e('s_waitcnt vmcnt(0)')
        k.label(lc)
        k.e("""
        v_max3_u32 v4, v24, v25, v26
        v_max3_u32 v4, v4, v27, v28
        v_max3_u32 v4, v4, v29, v30
        v_max_u32 v4, v4, v31
        v_cmp_eq_u32 vcc, -1, v4
        """)
        poll_back(k, lp)
        k.e("""
        ds_write_b128 v3, v[24:27]
        ds_write_b128 v3, v[28:31] offset:1024
        s_waitcnt lgkmcnt(0)
        """)
    def pre(g):
        k = g.k
        g.L16 = alloc(g, 1, 1); g.L8 = alloc(g, 1, 1); g.CA = alloc(g, 1, 1)
        g.R = alloc(g, 4); g.M = alloc(g, 4); g.P = alloc(g, 16)
        srd(k, 32, 'ws', WS_Z2N, ZSZ); srd(k, 36, 'ws', WS_ST1, 256 * KB); srd(k, 40, 'ws', WS_G2, 512 * KB)
        k.e('v_lshlrev_b32 v%d, 4, v1' % g.L16)
        k.e('v_lshlrev_b32 v%d, 3, v1' % g.L8)
        k.e("""
        s_lshl_b32 s61, s30, 1
        s_add_u32 s61, s61, s50           ; rb64
        s_lshl_b32 s64, s61, 13           ; x1 stats offset
        s_add_u32 s65, s64, 4096
        s_lshl_b32 s66, s31, 1
        s_add_u32 s66, s66, s51
        s_lshl_b32 s66, s66, 9
        s_lshl_b32 s67, s61, 14
        s_add_u32 s66, s66, s67           ; own granule
        s_mul_i32 s60, s61, %d
        s_lshl_b32 s61, s31, 13
        s_add_u32 s60, s60, s61
        s_lshl_b32 s61, s51, 12
        s_add_u32 s60, s60, s61           ; Z2N offset of block (0,0)
        s_add_u32 s61, s60, %d
        s_lshl_b32 s67, s51, 8
        s_add_u32 s67, s67, %d
        v_lshl_add_u32 v%d, v4, 4, s67
        """ % (2 * 112 * 1024, 112 * 1024, g.AUX, g.CA))
    def early(g):
        k = g.k
        if ZF32:
            assert g.free <= BSV
            srd(k, 80, 'b_sp')
            k.e('s_lshr_b32 s67, s64, 6')
            k.e('v_and_b32 v5, 15, v1')
            k.e('v_lshlrev_b32 v5, 1, v5')
            for q in range(4): k.e('buffer_load_ushort v%d, v5, s[80:83], s67 offen offset:%d' % (BSV + q, q * 32))
        Pp = g.FR
        for p in range(16):
            k.e('buffer_load_dwordx2 %s, v%d, s[36:39], s%d offen offset:%d sc1' % (vr(Pp + 2 * p, 2), g.L8, 64 + p // 8, (p % 8) * 512))
        k.e('s_waitcnt vmcnt(0)')
        for p in range(1, 16): k.e(pk('add', Pp, Pp, Pp + 2 * p))
        T_ = Pp + 2
        k.e('v_mul_f32 v%d, %s, v%d' % (Pp, hx(1.0 / 1024), Pp))
        k.e('v_mul_f32 v%d, v%d, v%d' % (T_, Pp, Pp))
        k.e('v_mov_b32 v%d, %s' % (T_ + 1, hx(1.0 / 1024)))
        k.e('v_fma_f32 v%d, v%d, v%d, -v%d' % (Pp + 1, Pp + 1, T_ + 1, T_))
        k.e('v_max_f32 v%d, 0, v%d' % (Pp + 1, Pp + 1))
        k.e('v_add_f32 v%d, %s, v%d' % (Pp + 1, hx(1e-5), Pp + 1))
        k.e('v_rsq_f32 v%d, v%d' % (g.R, Pp + 1))
        k.e('s_nop 0')
        k.e('v_mul_f32_e64 v%d, -v%d, v%d' % (g.M, Pp, g.R))
        k.e('v_mov_b32 v%d, v%d' % (g.R + 2, g.R))
        k.e('v_mov_b32 v%d, v%d' % (g.M + 2, g.M))
        k.e('s_nop 1')
        k.e('v_permlane32_swap_b32 v%d, v%d' % (g.R, g.R + 2))
        k.e('v_permlane32_swap_b32 v%d, v%d' % (g.M, g.M + 2))
    def epi(g):
        k = g.k
        U = g.FR; W0 = g.FR + 16; T = g.FR + 32
        def rd_uw(j):
            o = (j // 2) * 512 + (j % 2) * 128
            for q in range(4):
                k.e('ds_read_b128 %s, v%d offset:%d' % (vr(U + 4 * q, 4), g.CA, o + q * 32))
                k.e('ds_read_b128 %s, v%d offset:%d' % (vr(W0 + 4 * q, 4), g.CA, 1024 + o + q * 32))
        rd_uw(0)
        k.e('s_mov_b32 s70, %s' % hx(GC1 * 0.044715)); k.e('s_mov_b32 s71, s70')
        k.e('v_mov_b32 v6, %s' % hx(GC1))
        SS = g.P
        def block(n):
            j, i = n // 2, n % 2
            a = g.acc(i, j)
            g.fix(i, j)
            if i == 0: k.e('s_waitcnt lgkmcnt(0)')
            gelu_ops(k, a, U, W0, T, g.R + 2 * i, g.M + 2 * i, after_t=(lambda: rd_uw(j + 1)) if (i == 1 and j in (0, 2)) else None)
            if j >= 2:
                if not ZF32:
                    for d in range(8): k.e('v_cvt_pk_bf16_f32 v%d, v%d, v%d' % (a + d, a + 2 * d, a + 2 * d + 1))
            else: stat_ops(k, a, SS + 4 * i, SS + 4 * i + 2, j == 0)
        for n in range(4): block(n)
        for i in range(2):
            k.e('v_add_f32 v%d, v%d, v%d' % (SS + 4 * i, SS + 4 * i, SS + 4 * i + 1))
            k.e('v_add_f32 v%d, v%d, v%d' % (SS + 4 * i + 1, SS + 4 * i + 2, SS + 4 * i + 3))
        k.e('s_nop 1')
        k.e('v_permlane32_swap_b32 v%d, v%d' % (SS, SS + 4))
        k.e('v_permlane32_swap_b32 v%d, v%d' % (SS + 1, SS + 5))
        k.e('s_nop 1')
        k.e(pk('add', SS, SS, SS + 4))
        k.e('v_min_u32 v%d, -2, v%d' % (SS, SS))
        k.e('v_min_u32 v%d, -2, v%d' % (SS + 1, SS + 1))
        k.e('buffer_store_dwordx2 %s, v%d, s[40:43], s66 offen sc1' % (vr(SS, 2), g.L8))
        if env('WM', 0): mark(k, 0)
        NB4 = env('NB4', 1)
        g.deferred()
        rd_uw(2)
        k.e('s_barrier')
        for n in range(4, 4 + NB4): block(n)
        if env('WM', 0): mark(k, 1)
        R2 = g.P + 4; ZA = g.P + 12
        k.e("""
        s_lshl_b32 s67, s50, 10
        s_add_u32 s67, s67, %d
        v_add_u32 v7, s67, v%d
        s_lshl_b32 s67, s50, 15
        s_lshl_b32 s68, s51, 11
        s_add_u32 s67, s67, s68
        s_add_u32 s67, s67, 16384
        v_bfe_u32 v5, v1, 4, 1
        v_lshl_add_u32 v%d, v5, 12, s67
        v_bfe_u32 v5, v1, 2, 2
        v_lshl_add_u32 v%d, v5, 8, v%d
        v_and_b32 v5, 2, v5
        v_or_b32 v5, v5, v4
        v_lshl_add_u32 v%d, v5, 6, v%d
        v_and_b32 v5, 3, v1
        v_lshl_add_u32 v%d, v5, 4, v%d
        v_xor_b32 v%d, 128, v%d
        s_barrier
        ds_read_b64 %s, v7
        ds_read_b64 %s, v7 offset:512
        s_waitcnt lgkmcnt(0)
        """ % (g.AUX + 2048, g.L8, ZA, ZA, ZA, ZA, ZA, ZA, ZA, ZA + 1, ZA, vr(R2, 2), vr(R2 + 4, 2)))
        mark(k, 3)
        for i in range(2): k.e('v_mov_b32 v%d, v%d' % (R2 + 4 * i + 2, R2 + 4 * i + 1))
        for i in range(2):
            for j in range(2):
                a = g.acc(i, j)
                for r in range(0, 16, 2): k.e(pk('fma', a + r, a + r, (R2 + 4 * i,), (R2 + 4 * i + 2,)))
                store_xf_tile(g, a, a, g.L16, 32, 's%d' % (60 + i), j * 2048)
        if env('WLE', 2) == 1: k.e('s_barrier')
        for i in range(2):
            for j in range(2):
                for t in range(2): k.e('ds_write_b128 v%d, %s offset:%d' % (ZA + t, vr(g.acc(i, j) + 4 * t, 4), i * 8192 + j * 1024))
        rest = list(range(4 + NB4, 8))
        NBS = env('NBS', 2)
        for n in rest[:NBS]: block(n)
        signal(k, 'C')
        if env('WLE', 2) == 2: k.e('s_barrier')
        for n in rest[NBS:]: block(n)
        k.e('s_waitcnt lgkmcnt(0)')
    sig = 's_lshl_b32 s100, s31, 8\ns_lshl_b32 s101, s30, 4\ns_add_u32 s100, s100, s101\ns_add_u32 s100, s100, %d' % FL_WIN
    wait = ('s_lshl_b32 s100, s30, 8\ns_add_u32 s100, s100, %d' % FL_WO, 64)
    k_gemm(k, c, 16, 14, 2, 2, 7, 128, 256, 2, 2, 1024, 32, 4, ('xf', WS_X1S, 1024), ('w', 'w_in', 7168, (256, [3584, 0, 3584 + 128, 128])),
           pre, nop, epi, aux=aux, auxsz=4 * KB, auxbase=AUX_B, aux_end=aux_end, post=post, selfsig=True, early=early, SOFT=3, DEFER=3,
           dcols=([0, 1], [2, 3]), JG=2, lazyfix=True, side=(28, uw_job), wait=wait, sig=sig, accmap=lambda i, j: (j // 2) * 4 + i * 2 + j % 2)

def k_wsp(k, c):
    def pre(g):
        k = g.k
        g.L16 = alloc(g, 1, 1); g.L2 = alloc(g, 1, 1); g.B = alloc(g, 4); g.Z = alloc(g, 32)
        srd(k, 32, 'ws', WS_Z, ZSZ); srd(k, 36, 'ws', WS_U2, ZSZ); srd(k, 40, 'b_sp')
        k.e('v_lshlrev_b32 v%d, 4, v1' % g.L16)
        k.e('''
        s_lshl_b32 s60, s31, 13
        s_lshl_b32 s61, s51, 12
        s_add_u32 s60, s60, s61
        s_lshl_b32 s61, s30, 2
        s_lshl_b32 s62, s50, 1
        s_add_u32 s61, s61, s62           ; rb0
        s_lshl_b32 s63, s61, 6
        s_mul_i32 s61, s61, %d
        s_add_u32 s60, s60, s61
        s_add_u32 s61, s60, %d
        v_lshlrev_b32 v%d, 1, v3
        ''' % (112 * 1024, 112 * 1024, g.L2))
    def pre2(g):
        k = g.k
        for i in range(2):
            k.e('buffer_load_ushort v%d, v%d, s[40:43], s63 offen offset:%d' % (g.B + 2 * i, g.L2, i * 64))
        for i in range(2):
            for j in range(2):
                for t in range(2):
                    k.e('buffer_load_dwordx4 %s, v%d, s[32:35], s%d offen offset:%d sc1' % (vr(g.Z + 16 * i + 8 * j + 4 * t, 4), g.L16, 60 + i, (2 * j + t) * 1024))
    def epi(g):
        k = g.k
        T = g.FR
        k.e('s_waitcnt vmcnt(0)')
        for i in range(2): k.e('v_lshlrev_b32 v%d, 16, v%d' % (g.B + 2 * i, g.B + 2 * i))
        k.e('s_nop 7')
        for j in range(2):
            for i in range(2):
                a = g.acc(i, j); z = g.Z + 16 * i + 8 * j
                for d in range(8): unpack(k, T + 2 * d, T + 2 * d + 1, z + d)
                for d in range(8): k.e(pk('add', a + 2 * d, a + 2 * d, (g.B + 2 * i,)))
                for d in range(8): k.e(pk('mul', a + 2 * d, a + 2 * d, T + 2 * d))
                store_xf_tile(g, a, z, g.L16, 36, 's%d' % (60 + i), j * 2048)
    KZ = c.prev == 'win' and env('KEEPZ', 1)
    def preK(g):
        k = g.k
        g.L16 = alloc(g, 1, 1); g.L2 = alloc(g, 1, 1); g.B = alloc(g, 2, 2)
        srd(k, 36, 'ws', WS_U2, ZSZ); srd(k, 40, 'b_sp')
        k.e('v_lshlrev_b32 v%d, 4, v1' % g.L16)
        k.e('''
        s_lshl_b32 s60, s31, 13
        s_lshl_b32 s61, s30, 2
        s_add_u32 s61, s61, s46           ; rb32
        s_lshl_b32 s63, s61, 6
        s_mul_i32 s61, s61, %d
        s_add_u32 s60, s60, s61
        s_add_u32 s61, s60, 4096
        v_lshlrev_b32 v%d, 1, v3
        ''' % (112 * 1024, g.L2))
    def pre2K(g):
        g.k.e('buffer_load_ushort v%d, v%d, s[40:43], s63 offen' % (g.B, g.L2))
    def epiK(g):
        k = g.k
        T = g.FR
        k.e('s_waitcnt vmcnt(0)')
        k.e('v_lshlrev_b32 v%d, 16, v%d' % (g.B, g.B))
        for j in range(4):
            a = g.acc(0, j); z = ZKEEP + 8 * j
            for d in range(8): unpack(k, T + 2 * d, T + 2 * d + 1, z + d)
            for d in range(8): k.e(pk('add', a + 2 * d, a + 2 * d, (g.B,)))
            for d in range(8): k.e(pk('mul', a + 2 * d, a + 2 * d, T + 2 * d))
            store_xf_tile(g, a, z, g.L16, 36, 's%d' % (60 + j // 2), (j % 2) * 2048)
    sig = 's_lshl_b32 s100, s30, 8\ns_lshl_b32 s101, s31, 4\ns_add_u32 s100, s100, s101\ns_add_u32 s100, s100, %d' % FL_WSP
    wait = ('s_lshl_b32 s100, s31, 8\ns_add_u32 s100, s100, %d' % FL_WIN, 64)
    def pre22(g):
        k = g.k
        g.L16 = alloc(g, 1, 1); g.L2 = alloc(g, 1, 1); g.B = alloc(g, 4)
        srd(k, 36, 'ws', WS_U2, ZSZ); srd(k, 40, 'b_sp')
        k.e('v_lshlrev_b32 v%d, 4, v1' % g.L16)
        k.e('''
        s_lshl_b32 s60, s31, 13
        s_lshl_b32 s61, s51, 12
        s_add_u32 s60, s60, s61
        s_lshl_b32 s61, s30, 2
        s_lshl_b32 s62, s50, 1
        s_add_u32 s61, s61, s62           ; rb0
        s_lshl_b32 s63, s61, 6
        s_mul_i32 s61, s61, %d
        s_add_u32 s60, s60, s61
        s_add_u32 s61, s60, %d
        v_lshlrev_b32 v%d, 1, v3
        ''' % (112 * 1024, 112 * 1024, g.L2))
    def pre22f(g):
        pre22(g)
        k = g.k
        for q in range(4): k.e('v_lshlrev_b32 v%d, 16, v%d' % (BSV + q, BSV + q))
        for i in range(2):
            for j in range(2):
                for r in range(16): k.e('v_mov_b32 v%d, v%d' % (g.acc(i, j) + r, BSV + 2 * i + (r // 4) % 2))
    def epi22f(g):
        k = g.k
        for j in range(2):
            for i in range(2):
                a = g.acc(i, j); z = ZKEEP + 16 * (2 * i + j)
                g.fix(i, j)
                k.e('s_nop 0')
                for d in range(8): k.e(pk('mul', a + 2 * d, a + 2 * d, z + 2 * d))
                store_xf_tile(g, a, a, g.L16, 36, 's%d' % (60 + i), j * 2048)
    def pre222(g):
        for i in range(2): g.k.e('buffer_load_ushort v%d, v%d, s[40:43], s63 offen offset:%d' % (g.B + 2 * i, g.L2, i * 64))
    def epi22(g):
        k = g.k
        T = g.FR
        k.e('s_waitcnt vmcnt(0)')
        for i in range(2): k.e('v_lshlrev_b32 v%d, 16, v%d' % (g.B + 2 * i, g.B + 2 * i))
        for j in range(2):
            for i in range(2):
                a = g.acc(i, j); z = ZKEEP + 16 * (2 * i + j)
                for d in range(8): unpack(k, T + 2 * d, T + 2 * d + 1, z + d)
                for d in range(8): k.e(pk('add', a + 2 * d, a + 2 * d, (g.B + 2 * i,)))
                for d in range(8): k.e(pk('mul', a + 2 * d, a + 2 * d, T + 2 * d))
                store_xf_tile(g, a, z, g.L16, 36, 's%d' % (60 + i), j * 2048)
    tailpre = None
    if TPRE:
        su, pcs = proj_wpre('w_out', 24, 4, 's46')
        def tp(k, n):
            cnt = 0
            for st in (2 * n, 2 * n + 1):
                if st < TPRE:
                    for x in pcs(st):
                        k.e(x)
                        if 'm0' in x: k.e('s_nop 0')
                    cnt += 4
            return cnt
        tailpre = (su, tp)
    if W22 and ZF32: k_gemm(k, c, 16, 14, 2, 2, 7, 128, 128, 2, 2, 2048, 64, 3, ('rm', 'w_sp', 4096), ('z', WS_Z2N, 1792), pre22f, nop, epi22f, pf='w_out', wait=wait, sig=sig, dep='Y', GU=2, RWD=2, frbase=ZKEEP + 64, own='s_lshl_b32 s68, s30, 1', cinit=True, lazyfix=True, tailpre=tailpre)
    elif W22: k_gemm(k, c, 16, 14, 2, 2, 7, 128, 128, 2, 2, 2048, 64, 3, ('rm', 'w_sp', 4096), ('z', WS_Z2N, 1792), pre22, pre222, epi22, pf='w_out', wait=wait, sig=sig, dep='Y', GU=2, RWD=2, frbase=ZKEEP + 64, own='s_lshl_b32 s68, s30, 1')
    elif KZ: k_gemm(k, c, 16, 14, 2, 2, 7, 128, 128, 2 if env('H22', 0) else 4, 2 if env('H22', 0) else 1, 2048, 64, 3, ('rm', 'w_sp', 4096), ('z', WS_Z2N, 1792), preK, pre2K, epiK, pf='w_out', wait=wait, sig=sig, dep='Y', GU=2, RWD=2, frbase=ZKEEP + 32, own='s_lshl_b32 s68, s30, 1')
    else: k_gemm(k, c, 16, 14, 2, 2, 7, 128, 128, 2, 2, 2048, 64, 3, ('rm', 'w_sp', 4096), ('z', WS_Z2N, 1792), pre, pre2, epi, pf='w_out', wait=wait, sig=sig, dep='Y', GU=2, RWD=2, own='s_lshl_b32 s68, s30, 1')

def k_attn(k, c):
    NS = 4; STG = 32768; NST = 8
    phase_begin(k, c)
    SA, SB, O, NEGM = 8, 24, 40, 56
    L, ONES, Q, KF, VF, P = 72, 76, 80, 88, 96, 104
    A0 = 112; AC = 113; AO = 114; M = 115; T = 116; T2 = 117; PFA = 118; MA = 119; PFD = 120; MT = 124
    assert c.nxt == 'wo'
    k.e("""
    v_and_b32 v1, 63, v0
    s_mov_b32 s46, s3
    s_and_b32 s47, s2, 7
    s_lshr_b32 s48, s2, 3
    s_lshl_b32 s30, s47, 2
    s_lshr_b32 s49, s48, 3
    s_add_u32 s30, s30, s49            ; head
    s_and_b32 s31, s48, 7              ; q block (256 rows)
    v_lshlrev_b32 v%d, 4, v1
    s_lshl_b32 s50, s31, 3
    s_add_u32 s50, s50, s46            ; rb of this wave's queries
    s_lshl_b32 s51, s30, 6
    s_add_u32 s51, s51, s50
    s_lshl_b32 s51, s51, 11            ; Q offset
    s_lshl_b32 s52, s30, 18            ; KV head base
    s_lshl_b32 s53, s46, 12            ; wave part (4KB = one tile)
    s_lshl_b32 s62, s2, 13
    v_lshl_add_u32 v%d, v0, 4, s62     ; prefetch offset wg*8K + tid*16
    s_mov_b32 s62, %d
    s_waitcnt lgkmcnt(0)
    """ % (A0, PFA, 0x40000000 if env('PFOFF', 0) else 0))
    mark(k, 0)
    srd(k, 36, 'ws', WS_KV, 256 * KB, soff='s52'); srd(k, 32, 'ws', WS_Q, 4 * MB)
    set_flag(k, 's_lshl_b32 s100, s31, 8\ns_lshl_b32 s101, s30, 2\ns_add_u32 s100, s100, s101\ns_add_u32 s100, s100, %d' % FL_ATT)
    handoff(k, 's_lshr_b32 s100, s30, 1\ns_lshl_b32 s100, s100, 8\ns_add_u32 s100, s100, %d' % FL_QKV, 64, role='A')
    def dma(slot_expr):
        return ['s_add_u32 m0, s53, %s' % slot_expr] + \
               ['buffer_load_dwordx4 v%d, s[36:39], s56 offen offset:%d sc1 lds' % (A0, q * 1024) for q in range(4)] + \
               ['s_add_u32 s56, s56, %d' % STG]
    def pfl(n): return 'buffer_load_dwordx4 %s, v%d, %s, s62 offen' % (vr(PFD, 4), PFA, sr(n))
    def emit_dma(slot_expr):
        d = dma(slot_expr); k.e(d[0]); k.e('s_nop 0')
        for x in d[1:]: k.e(x)
    AST = env('AST', 1)
    if AST:
        k.e('s_lshl_b32 s56, s46, 10')
        k.e('s_mov_b32 m0, s56')
        k.e('s_mul_i32 s58, s46, 3072')
        k.e('buffer_load_dwordx4 v%d, s[36:39], s56 offen sc1 lds' % A0)
    else:
        k.e('s_mov_b32 s56, s53')
        emit_dma('0')
    k.e('buffer_load_dwordx4 %s, v%d, s[32:35], s51 offen sc1' % (vr(Q, 4), A0))
    k.e('buffer_load_dwordx4 %s, v%d, s[32:35], s51 offen offset:1024 sc1' % (vr(Q + 4, 4), A0))
    if AST:
        k.e('s_add_u32 s56, s58, 8192')
        k.e('s_mov_b32 m0, s56')
        k.e('s_nop 0')
        for q in range(3): k.e('buffer_load_dwordx4 v%d, s[36:39], s56 offen offset:%d sc1 lds' % (A0, q * 1024))
        k.e('s_add_u32 s56, s53, %d' % STG)
        emit_dma(str(STG))
    srd(k, 64, 'w_in'); srd(k, 68, 'w_sp'); srd(k, 32, 'wo')
    srd(k, 40, 'ws', WS_O, 4 * MB)
    k.e("""
    s_lshl_b32 s54, s50, 16
    s_lshl_b32 s55, s30, 11
    s_add_u32 s54, s54, s55            ; O offset
    v_and_b32 v3, 3, v1
    v_bfe_u32 v4, v1, 2, 1
    v_bfe_u32 v5, v1, 4, 1
    v_xor_b32 v4, v4, v5
    v_or_b32 v3, v3, v4
    v_cmp_eq_u32 vcc, 0, v3
    v_mov_b32 v4, 0x3f803f80
    s_nop 1
    v_cndmask_b32 v%d, 0, v4, vcc
    v_mov_b32 v%d, v%d
    v_mov_b32 v%d, v%d
    v_mov_b32 v%d, v%d
    """ % (ONES, ONES + 1, ONES, ONES + 2, ONES, ONES + 3, ONES))
    def adr(t): return (AC if t < 16 else AO), (t % 16) * 4096
    def rdK(t):
        a, o = adr(t)
        return ['ds_read_b128 %s, v%d offset:%d' % (vr(KF, 4), a, o), 'ds_read_b128 %s, v%d offset:%d' % (vr(KF + 4, 4), a, o + 1024)]
    def rdV(t):
        a, o = adr(t)
        return ['ds_read_b128 %s, v%d offset:%d' % (vr(VF, 4), a, o + 2048), 'ds_read_b128 %s, v%d offset:%d' % (vr(VF + 4, 4), a, o + 3072)]
    def qk(S, c):
        return ['v_mfma_f32_32x32x16_bf16 %s, %s, %s, %s' % (vr(S, 16), vr(KF, 4), vr(Q, 4), c),
                'v_mfma_f32_32x32x16_bf16 %s, %s, %s, %s' % (vr(S, 16), vr(KF + 4, 4), vr(Q + 4, 4), vr(S, 16))]
    def maxtile(S, first):
        st = 0
        if first:
            k.e('v_max3_f32 v%d, v%d, v%d, v%d' % (M, S, S + 1, S + 2))
            k.e('v_max_f32 v%d, v%d, v%d' % (M, M, S + 3))
            st = 4
        for r in range(st, 16, 2): k.e('v_max3_f32 v%d, v%d, v%d, v%d' % (M, M, S + r, S + r + 1))
    def set_negm(bias):
        k.e('v_mov_b32 v%d, v%d' % (T, M))
        k.e('s_nop 1')
        k.e('v_permlane32_swap_b32 v%d, v%d' % (M, T))
        k.e('s_nop 1')
        k.e('v_max_f32 v%d, v%d, v%d' % (M, M, T))
        k.e('v_sub_f32 v%d, %s, v%d' % (NEGM, hx(-bias), M))
        for r in range(1, 16): k.e('v_mov_b32 v%d, v%d' % (NEGM + r, NEGM))
    def zero_state():
        for r in range(16): k.e('v_mov_b32 v%d, 0' % (O + r))
        for r in range(4):
            k.e('v_mov_b32 v%d, 0' % (L + r))
            k.e('v_mov_b32 v%d, 0' % (P + 4 + r))
            k.e('v_mov_b32 v%d, 0' % (VF + 4 + r))
        k.e('v_mov_b32 v%d, v%d' % (AC, A0))
        k.e('v_add_u32 v%d, 0x10000, v%d' % (AO, A0))
        k.e('s_mov_b32 s57, 0')
    zero_state()
    if not MP0: srd(k, 80, 'ws', 0, 256 * KB)
    if not MP0: k.e("""
    s_and_b32 s49, s2, 3               ; k quarter
    s_lshl_b32 s49, s49, 3
    s_add_u32 s49, s49, s46            ; 32-row group
    s_mul_i32 s60, s49, %d
    s_lshr_b32 s63, s2, 2              ; col block
    s_lshl_b32 s63, s63, 7
    s_add_u32 s60, s60, s63
    s_add_u32 s60, s60, 4096
    s_add_u32 s61, s60, 12288
    s_and_b32 s49, s2, 3
    s_lshl_b32 s49, s49, 2
    s_and_b32 s63, s46, 3
    s_add_u32 s49, s49, s63
    s_lshl_b32 s49, s49, 8             ; silu offset of row groups 2(w&3), +1
    s_add_u32 s49, s49, %d
    v_lshrrev_b32 v%d, 3, v1
    v_mul_u32_u24 v%d, %d, v%d
    v_and_b32 v%d, 7, v1
    v_lshl_add_u32 v%d, v%d, 4, v%d
    v_lshlrev_b32 v%d, 4, v%d
    """ % (32 * 12288, WS_SC, MT, MA, 4 * 12288, MT, MT + 1, MA, MT + 1, MA, MT, MT))
    def mld(j): return ['s_add_u32 m0, s53, %d' % (AUX_A + j * 1024), 'buffer_load_dwordx4 v%d, s[80:83], s%d offen lds' % (MA, (60, 61, 63, 49)[j])]
    k.e('s_waitcnt vmcnt(%d)' % (7 if AST else 0))
    k.e('s_barrier')
    mark(k, 1)
    for r in rdK(1): k.e(r)
    k.e('s_waitcnt lgkmcnt(0)')
    for m in qk(SB, '0'): k.e(m)
    for r in rdK(0): k.e(r)
    k.e('s_waitcnt lgkmcnt(0)')
    for m in qk(SA, '0'): k.e(m)
    def extras():
        if MP0: return
        k.e(pfl(32))
        k.e('buffer_load_dwordx4 %s, v%d, s[80:83], s49 offen' % (vr(MSV, 4), MT))
        k.e('buffer_load_dwordx4 %s, v%d, s[80:83], s49 offen offset:128' % (vr(MSV + 4, 4), MT))
        srd(k, 80, 'w_mod')
        k.e('s_mov_b32 s49, 0x40000000')
        k.e('s_mov_b32 s63, 0x40000000')
    if AST: k.e('s_nop 7')
    else:
        emit_dma(str(STG)); extras()
    maxtile(SB, True)
    maxtile(SA, False)
    set_negm(40.0)
    if AST:
        k.e('s_waitcnt vmcnt(4)')
        k.e('s_barrier')
        extras()
    mark(k, 2)
    if env('APRIO', 0):
        k.e('s_cmp_ge_u32 s46, 4')
        k.e('s_cbranch_scc0 L_attn_noprio')
        k.e('s_setprio 1')
        k.label('L_attn_noprio')
    k.e('s_mov_b32 s59, %d' % (NST // 2))
    k.e('s_nop 0')
    for m in qk(SA, vr(NEGM, 16)): k.e(m)
    k.e(rdK(1)[0])
    k.e('ds_read_b32 v%d, v%d' % (T, A0))
    k.e(rdK(1)[1])
    k.e(rdV(0)[0])
    k.e('s_nop 7')
    lp = 'L_attn_loop'
    def pv(h): return 'v_mfma_f32_32x32x16_bf16 %s, %s, %s, %s' % (vr(O, 16), vr(VF + 4 * h, 4), vr(P + 4 * h, 4), vr(O, 16))
    def ls(h): return 'v_mfma_f32_16x16x32_bf16 %s, %s, %s, %s' % (vr(L, 4), vr(ONES, 4), vr(P + 4 * h, 4), vr(L, 4))
    def iteration(nsoft, pat0):
        for t in range(16):
            cur, nxt = (SA, SB) if t % 2 == 0 else (SB, SA)
            m_qk = qk(nxt, vr(NEGM, 16))
            kn = rdK(t + 2); v0n = rdV(t + 1)[0]; v1n = rdV(t)[1]
            ex = ['v_exp_f32 v%d, v%d' % (cur + r, cur + r) for r in range(16)]
            cv = ['v_cvt_pk_bf16_f32 v%d, v%d, v%d' % (P + d, cur + 2 * d, cur + 2 * d + 1) for d in range(8)]
            W = 's_waitcnt lgkmcnt(2)'
            head = []; xs = []
            if t % 8 == 6: head = ['s_waitcnt vmcnt(%d)' % (9 if not MP0 else (6 if t == 6 else 7)), 's_barrier']
            if t == 14 and not c.last and not nsoft: head = ['s_cmp_eq_u32 s59, 1', 's_cbranch_scc0 L_attn_nd', 's_waitcnt vmcnt(0)', 'L_attn_nd:'] + head
            d = dma('s58')
            if t % 8 == 0: xs = ['s_xor_b32 s58, s57, 0x%x' % (0x10000 if t == 0 else 0x18000), d[0], d[1]]
            elif t % 8 < 3: xs = [d[1 + t % 8]]
            elif t % 8 == 3: xs = [d[4], d[5]]
            elif t == 4: xs = [pfl(64)]
            elif t == 5: xs = [pfl(68)]
            elif MP0 and t == 7: xs = [pfl(32)]
            elif MP0 and t == 12: xs = ['s_add_u32 s62, s62, %d' % (2 * MB)]
            elif MP0 and t == 13: xs = []
            elif MP0 and t == 15: xs = ['s_xor_b32 s57, s57, 0x10000']
            elif t == 7: xs = mld(0)
            elif t == 12: xs = ['s_add_u32 s62, s62, %d' % (2 * MB)] + mld(2)
            elif t == 13: xs = mld(1)
            elif t == 15: xs = ['s_xor_b32 s57, s57, 0x10000'] + mld(3) + ['s_add_u32 s63, s60, %d' % (2 * 12288), 's_add_u32 s49, s60, %d' % (3 * 12288)]
            tail = ['v_swap_b32 v%d, v%d' % (AC, AO), 's_sub_u32 s59, s59, 1', 's_cmp_lg_u32 s59, 0'] if t == 15 else []
            pat = pat0 if t < nsoft else os.environ.get('APAT', 'eeeQeeePeeccLcc')
            body = []
            for hh in range(2):
                ei = 8 * hh; ci = 4 * hh
                for ch in pat:
                    if ch == 'e': body.append(ex[ei]); ei += 1
                    elif ch == 'c': body.append(cv[ci]); ci += 1
                    elif ch == 'Q': body += [W, m_qk[hh], kn[hh]]
                    elif ch == 'P': body += [pv(1 - hh), v1n if hh == 0 else v0n]
                    elif ch == 'L': body.append(ls(1 - hh))
                assert ei == 8 * hh + 8 and ci == 4 * hh + 4
            if tail:
                last_ds = max(i for i, x in enumerate(body) if x.startswith('ds_') or x.startswith('v_exp'))
                body = body[:last_ds + 1] + tail + body[last_ds + 1:]
            iq = max(i for i, x in enumerate(body) if x == m_qk[1])
            first_e = min(i for i, x in enumerate(body) if x.startswith('v_exp'))
            assert len(body) - 1 - iq + first_e >= 12, 'qk->exp distance'
            seq = list(head)
            for x in body:
                seq.append(x)
                if xs and x.startswith('v_exp'): seq.append(xs.pop(0))
            assert not xs
            AX = os.environ.get('AX', '')
            if 'p' in AX: seq = [x for x in seq if 's62 offen' not in x]
            for x in seq: k.e(x)
    if env('ASOFT', 8): iteration(env('ASOFT', 8), os.environ.get('APAT0', 'eQPLeeeeeeecccc'))
    k.label(lp)
    iteration(0, None)
    k.e('s_cbranch_scc1 %s' % lp)
    k.label('L_attn_epi')
    mark(k, 3)
    k.e('s_waitcnt lgkmcnt(0)')
    k.e(pv(1)); k.e(ls(1))
    k.e('s_nop 15')
    lstore = 'L_attn_store'; lsafe = 'L_attn_safe'
    k.e('v_max3_f32 v%d, |v%d|, |v%d|, |v%d|' % (T, O, O + 1, L))
    for r in range(2, 16, 2): k.e('v_max3_f32 v%d, |v%d|, |v%d|, v%d' % (T, O + r, O + r + 1, T))
    k.e('v_mul_f32 v%d, 0, v%d' % (T2, L))
    for r in range(16): k.e('v_fma_f32 v%d, 0, v%d, v%d' % (T2, O + r, T2))
    k.e('v_add_f32 v%d, v%d, v%d' % (T, T, T2))
    k.e('v_mov_b32 v3, %s' % hx(2.0 ** 120))
    k.e('v_cmp_nlt_f32 vcc, v%d, v3' % T)
    k.e('s_nop 4')
    k.e('s_cbranch_vccnz %s' % lsafe)
    k.label(lstore)
    k.e('v_rcp_f32 v%d, v%d' % (T, L))
    k.e('s_nop 0')
    for r in range(16): k.e('v_mul_f32 v%d, v%d, v%d' % (O + r, O + r, T))
    for d in range(8): k.e('v_cvt_pk_bf16_f32 v%d, v%d, v%d' % (P + d, O + 2 * d, O + 2 * d + 1))
    k.e('buffer_store_dwordx4 %s, v%d, s[40:43], s54 offen%s' % (vr(P, 4), A0, WT))
    k.e('buffer_store_dwordx4 %s, v%d, s[40:43], s54 offen offset:1024%s' % (vr(P + 4, 4), A0, WT))
    signal(k, 'S')
    endpgm(k)
    k.label(lsafe)
    def gl(dst, off): return 'buffer_load_dwordx4 %s, v%d, s[36:39], s56 offen offset:%d sc1' % (vr(dst, 4), A0, off)
    k.e('s_waitcnt vmcnt(0)')
    k.e('s_mov_b32 s56, 0')
    k.e('v_mov_b32 v%d, 0xff800000' % M)
    k.label(lsafe + '1')
    k.e(gl(KF, 0)); k.e(gl(KF + 4, 1024))
    k.e('s_waitcnt vmcnt(0)')
    for m in qk(SA, '0'): k.e(m)
    k.e('s_nop 15')
    maxtile(SA, False)
    k.e('s_add_u32 s56, s56, 4096')
    k.e('s_cmp_lt_u32 s56, %d' % (256 * KB))
    k.e('s_cbranch_scc1 %s1' % lsafe)
    set_negm(0.0)
    zero_state()
    k.e('s_mov_b32 s56, 0')
    k.label(lsafe + '2')
    k.e(gl(KF, 0)); k.e(gl(KF + 4, 1024)); k.e(gl(VF, 2048)); k.e(gl(VF + 4, 3072))
    k.e('s_waitcnt vmcnt(0)')
    for m in qk(SA, vr(NEGM, 16)): k.e(m)
    k.e('s_nop 15')
    for r in range(16): k.e('v_exp_f32 v%d, v%d' % (SA + r, SA + r))
    k.e('s_nop 0')
    for d in range(8): k.e('v_cvt_pk_bf16_f32 v%d, v%d, v%d' % (P + d, SA + 2 * d, SA + 2 * d + 1))
    k.e('s_nop 1')
    k.e(pv(0)); k.e(ls(0)); k.e(pv(1)); k.e(ls(1))
    k.e('s_add_u32 s56, s56, 4096')
    k.e('s_nop 7')
    k.e('s_cmp_lt_u32 s56, %d' % (256 * KB))
    k.e('s_cbranch_scc1 %s2' % lsafe)
    k.e('s_nop 15')
    k.e('s_branch %s' % lstore)
    k.need(MSV + 8, 160 * KB)

def k_attn2(k, c):
    phase_begin(k, c)
    assert c.prev == 'qkv' and c.nxt == 'wo' and not (MP0 and AOWN != 3)
    S2 = (8, 24); O2 = (40, 56); N2 = (72, 88); L2 = (104, 108); Q2 = (112, 120)
    ONES, KF, VF, P = 128, 132, 140, 148
    A0 = 156; AR = 157; M = 158; T = 159; T2 = 160; PFA = 161; MA = 162; MT = 164; PFD = 168
    k.e("""
    v_and_b32 v1, 63, v0
    s_mov_b32 s46, s3
    s_and_b32 s47, s3, 1               ; wn
    s_bfe_u32 s48, s3, 0x10001         ; wm
    s_lshr_b32 s49, s3, 2              ; kh
    s_lshl_b32 s50, s31, 1
    s_add_u32 s50, s50, s47            ; head
    s_lshl_b32 s52, s50, 18
    s_lshl_b32 s51, s49, 17
    s_add_u32 s51, s51, s52            ; stream base in KV
    s_lshl_b32 s55, s49, 1
    s_add_u32 s55, s55, s47
    s_lshl_b32 s55, s55, 15            ; stream ring base in LDS
    s_lshl_b32 s56, s48, 12            ; next global offset: own tile of stage 0
    s_add_u32 s57, s55, s56            ; LDS address of own tile in slot 0
    s_lshl_b32 s53, s3, 12             ; wave*4KB (mod slice staging)
    v_lshlrev_b32 v%d, 4, v1
    v_add_u32 v%d, s55, v%d
    s_lshl_b32 s54, s30, 2
    s_lshl_b32 s58, s48, 1
    s_add_u32 s54, s54, s58
    s_add_u32 s54, s54, s49            ; rb of the tile this wave finalises
    s_lshl_b32 s54, s54, 16
    s_lshl_b32 s58, s50, 11
    s_add_u32 s54, s54, s58            ; O offset
    s_lshl_b32 s62, s2, 13
    v_lshl_add_u32 v%d, v0, 4, s62     ; prefetch offset wg*8K + tid*16
    s_mov_b32 s62, 0
    v_and_b32 v3, 3, v1
    v_bfe_u32 v4, v1, 2, 1
    v_bfe_u32 v5, v1, 4, 1
    v_xor_b32 v4, v4, v5
    v_or_b32 v3, v3, v4
    v_cmp_eq_u32 vcc, 0, v3
    v_mov_b32 v4, 0x3f803f80
    s_nop 1
    v_cndmask_b32 v%d, 0, v4, vcc
    v_mov_b32 v%d, v%d
    v_mov_b32 v%d, v%d
    v_mov_b32 v%d, v%d
    """ % (A0, AR, A0, PFA, ONES, ONES + 1, ONES, ONES + 2, ONES, ONES + 3, ONES))
    mark(k, 0)
    if AOWN:
        srd(k, 36, 'ws', WS_KV, 256 * KB, soff='s52')
        k.e('''
        s_mov_b32 s86, s87                 ; qkv flag the compute waves still have to publish
        s_lshl_b32 s51, s30, 14
        s_add_u32 s51, s51, s56            ; offset of the own pairs (skipped in the stream)
        s_mul_i32 s58, s49, %d
        s_add_u32 s56, s56, s58
        s_cmp_ge_u32 s56, s51
        s_cselect_b32 s58, 16384, 0
        s_add_u32 s56, s56, s58
        ''' % (15 * 8192))
    else: srd(k, 36, 'ws', WS_KV, 128 * KB, soff='s51')
    srd(k, 80, 'ws', 0, 256 * KB)
    srd(k, 64, 'w_in'); srd(k, 68, 'w_sp'); srd(k, 32, 'wo')
    for r in range(16):
        k.e('v_mov_b32 v%d, 0' % (O2[0] + r)); k.e('v_mov_b32 v%d, 0' % (O2[1] + r))
    for r in range(4):
        for b in (L2[0], L2[1], P + 4, VF + 4): k.e('v_mov_b32 v%d, 0' % (b + r))
    k.e("""
    s_and_b32 s58, s2, 3               ; k quarter
    s_lshl_b32 s58, s58, 3
    s_add_u32 s58, s58, s46            ; 32-row group
    s_mul_i32 s60, s58, %d
    s_lshr_b32 s63, s2, 2              ; col block
    s_lshl_b32 s63, s63, 7
    s_add_u32 s60, s60, s63
    s_add_u32 s60, s60, 4096
    s_add_u32 s61, s60, 12288
    s_and_b32 s44, s2, 3
    s_lshl_b32 s44, s44, 2
    s_and_b32 s63, s46, 3
    s_add_u32 s44, s44, s63
    s_lshl_b32 s44, s44, 8             ; silu offset of row groups 2(w&3), +1
    s_add_u32 s44, s44, %d
    v_lshrrev_b32 v%d, 3, v1
    v_mul_u32_u24 v%d, %d, v%d
    v_and_b32 v%d, 7, v1
    v_lshl_add_u32 v%d, v%d, 4, v%d
    v_lshlrev_b32 v%d, 4, v%d
    ; Q / stand-in exchange area: tile A of this wave = tile kh
    s_and_b32 s58, s3, 3
    s_mul_i32 s58, s58, 5120
    s_add_u32 s58, s58, %d
    s_lshl_b32 s63, s49, 11
    s_add_u32 s63, s63, s58
    v_add_u32 v2, s63, v%d             ; Q of tile kh
    v_xor_b32 v3, 1, v2
    s_xor_b32 s63, s49, 1
    s_lshl_b32 s63, s63, 11
    s_add_u32 s63, s63, s58
    v_add_u32 v3, s63, v%d             ; Q of the other tile
    s_lshl_b32 s63, s49, 2
    s_add_u32 s63, s63, s58
    v_lshl_add_u32 v4, v1, 3, s63
    v_xor_b32 v5, 4, v4
    """ % (32 * 12288, WS_SC, MT, MA, 4 * 12288, MT, MT + 1, MA, MT + 1, MA, MT, MT, AUX_A, A0, A0))
    set_flag(k, 's_lshl_b32 s100, s30, 8\ns_lshl_b32 s101, s31, 2\ns_add_u32 s100, s100, s101\ns_add_u32 s100, s100, %d' % FL_ATT)
    def hand(): handoff(k, 's_lshl_b32 s100, s31, 8\ns_add_u32 s100, s100, %d' % FL_QKV, 64, role='A')
    if AOWN: k.e('s_barrier')
    else: hand()
    def dma(slot):
        return ['s_add_u32 m0, s57, %d' % (slot * 8192)] + \
               ['buffer_load_dwordx4 v%d, s[36:39], s56 offen offset:%d sc1 lds' % (A0, q * 1024) for q in range(4)] + \
               ['s_add_u32 s56, s56, 8192' + ('\ns_cmp_eq_u32 s56, s51\ns_cselect_b32 s58, 16384, 0\ns_add_u32 s56, s56, s58' if AOWN else '')]
    def emit_dma(slot):
        d = dma(slot); k.e(d[0]); k.e('s_nop 0')
        for x in d[1:]: k.e(x)
    def pfl(n): return 'buffer_load_dwordx4 %s, v%d, %s, s62 offen' % (vr(PFD, 4), PFA, sr(n))
    def mld(j): return [] if MP0 else ['s_add_u32 m0, s53, %d' % (AUX_A + j * 1024), 'buffer_load_dwordx4 v%d, s[80:83], s%d offen lds' % (MA, (60, 61, 63, 45)[j])]
    if not AOWN: emit_dma(0); emit_dma(1)
    for q in range(2):
        k.e('ds_read_b128 %s, v%d' % (vr(Q2[q], 4), 2 + q))
        k.e('ds_read_b128 %s, v%d offset:1024' % (vr(Q2[q] + 4, 4), 2 + q))
        k.e('ds_read_b32 v%d, v%d offset:4096' % (N2[q], 4 + q))
    k.e('s_waitcnt lgkmcnt(0)')
    for r in range(1, 16):
        for q in range(2): k.e('v_mov_b32 v%d, v%d' % (N2[q] + r, N2[q]))
    if not AOWN:
        k.e('s_waitcnt vmcnt(4)')
        k.e('s_barrier')
        mark(k, 1)
    def rd(dst, t, part): return 'ds_read_b128 %s, v%d offset:%d' % (vr(dst, 4), AR, (t % 8) * 4096 + part * 1024)
    def qk(q, hh, c0=None):
        S_ = S2[q]
        return 'v_mfma_f32_32x32x16_bf16 %s, %s, %s, %s' % (vr(S_, 16), vr(KF + 4 * hh, 4), vr(Q2[q] + 4 * hh, 4), (c0 or vr(N2[q], 16)) if hh == 0 else vr(S_, 16))
    def pv(q, h): return 'v_mfma_f32_32x32x16_bf16 %s, %s, %s, %s' % (vr(O2[q], 16), vr(VF + 4 * h, 4), vr(P + 4 * h, 4), vr(O2[q], 16))
    def ls(q, h): return 'v_mfma_f32_16x16x32_bf16 %s, %s, %s, %s' % (vr(L2[q], 4), vr(ONES, 4), vr(P + 4 * h, 4), vr(L2[q], 4))
    k.e(rd(KF, 0, 0)); k.e(rd(KF + 4, 0, 1)); k.e(rd(VF, 0, 2))
    def silu_loads():
        if MP0: return
        k.e('buffer_load_dwordx4 %s, v%d, s[80:83], s44 offen sc1' % (vr(MSV, 4), MT))
        k.e('buffer_load_dwordx4 %s, v%d, s[80:83], s44 offen offset:128 sc1' % (vr(MSV + 4, 4), MT))
    def wmod():
        if MP0: return
        srd(k, 80, 'w_mod')
        k.e('s_add_u32 s63, s60, %d' % (2 * 12288))
        k.e('s_add_u32 s45, s60, %d' % (3 * 12288))
    if not AOWN: silu_loads()
    k.e('s_waitcnt lgkmcnt(1)')
    k.e(qk(0, 0)); k.e(qk(0, 1))
    if AOWN: k.e('s_nop 11')
    else:
        emit_dma(2); wmod()
    OD = env('OD', 0) and AOWN == 3
    ool = []
    def late_start():
        if AOWN == 1:
            l = k.newlabel('ls')
            k.e('s_cmp_lt_u32 s3, 4'); k.e('s_cbranch_scc1 %s' % l)
            flag_prep(k)
            k.e('s_and_b32 s100, s3, 3\ns_lshl_b32 s100, s100, 7\ns_add_u32 s100, s100, s86')
            k.e('s_waitcnt vmcnt(0)')
            flag_store(k, 's100')
            k.label(l)
        hand()
        mark(k, 1)
        if OD:
            emit_dma(1); silu_loads(); wmod()
            k.e('''
            s_lshl_b32 s43, s48, 12
            s_add_u32 s43, s43, %d
            s_cmp_ge_u32 s43, s51
            s_cselect_b32 s58, 16384, 0
            s_add_u32 s43, s43, s58
            s_cmp_lt_u32 s3, 4
            s_cselect_b64 vcc, -1, 0
            s_cbranch_scc0 L_attn_np
            s_setprio 1
            L_attn_np:
            ''' % (16 * 8192))
        else:
            emit_dma(1); silu_loads(); emit_dma(2); wmod()
    k.e('s_mov_b32 s59, %d' % (3 if env('LASTB', 1) and not OD else 4))
    mark(k, 2)
    lp = 'L_attn_loop'
    LASTB = env('LASTB', 1) and not OD
    def iteration(first, nsoft, pat0, last=False):
        for u in range(16):
            t = u // 2; q = u % 2; st = u // 4; us = u % 4
            cur = S2[q]
            ex = ['v_exp_f32 v%d, v%d' % (cur + r, cur + r) for r in range(16)]
            cv = ['v_cvt_pk_bf16_f32 v%d, v%d, v%d' % (P + d, cur + 2 * d, cur + 2 * d + 1) for d in range(8)]
            if q == 0:
                Qs = [[qk(1, 0), rd(KF, t + 1, 0)], [qk(1, 1), rd(KF + 4, t + 1, 1)]]
                Ps = [[pv(1, 1), rd(VF + 4, t, 3)], ['WAITV', pv(0, 0)]]
            else:
                Qs = [['s_waitcnt lgkmcnt(0)', qk(0, 0)], [qk(0, 1)]]
                Ps = [[pv(0, 1)], [pv(1, 0), rd(VF, t + 1, 2)]]
            Ls = [ls(1 - q, 1), ls(q, 0)]
            peel = first and AOWN == 4 and u in (2, 3)
            if peel and u == 2:
                Qs = [[qk(1, 0)], [qk(1, 1)]]; Ps = [[pv(1, 1), rd(VF + 4, t, 3)], ['s_waitcnt lgkmcnt(1)', pv(0, 0)]]
            if peel and u == 3:
                Qs = [['s_waitcnt lgkmcnt(0)'], ['s_nop 0']]; Ps = [[pv(0, 1)], [pv(1, 0)]]
            inc = ['s_add_u32 s62, s62, %d' % (2 * MB)]
            NOPF = env('NOPF', 0)
            if first and AOWN: extra = [[], [], mld(0) + [pfl(32)], [pfl(64)], mld(1), mld(2), mld(3), [pfl(68)] + inc]
            elif first: extra = [[], [pfl(32)], mld(0), [pfl(64)], mld(1), mld(2), mld(3), [pfl(68)] + inc]
            else: extra = [[], [], [pfl(64)], [], [], [], [pfl(68)] + inc, []]
            if NOPF: extra = [[y for y in x if 's62' not in y] for x in extra]
            cnt = lambda e: [sum('buffer_load' in y for y in e[2 * i] + e[2 * i + 1]) for i in range(4)]
            nx_ = cnt(extra)
            prevx = ((0 if MP0 else 2) if first else nx_[3]) if st == 0 else nx_[st - 1]
            head = ['s_waitcnt vmcnt(%d)' % (prevx + 4 + nx_[st]), 's_barrier'] if us == 2 else []
            if last and us == 2 and st >= 2: head = (['s_waitcnt vmcnt(%d)' % (prevx + nx_[st])] if st == 2 else []) + ['s_barrier']
            if peel: head = []
            d = dma((st + 3) % 4)
            if OD and us == 2:
                lb = 'L_attn_fd%d_%d' % (first, st)
                d0 = dma((st + 2) % 4)
                d1 = [x.replace('s56', 's43').replace('s57, %d' % (((st + 2) % 4) * 8192), 's57, %d' % (((st + 2) % 4) * 8192 + 65536)) for x in d0]
                nw = 8 + nx_[st] + (2 if first and st == 0 else 0)
                ool.append([lb + ':', d0[0], 's_nop 0'] + d0[1:5] + [d1[0], 's_nop 0'] + d1[1:5] + [d0[5], d1[5], 's_waitcnt vmcnt(%d)' % nw, 's_branch %sr' % lb])
                head = ['s_cbranch_vccnz %s' % lb] + (['s_waitcnt vmcnt(2)'] if first and st == 0 else []) + [lb + 'r:', 's_barrier']
            if (OD or (last and st >= 1)) and us >= 2: xs = []
            elif us == 2: xs = [d[0], d[1], None, None, None, None, None, None, None, d[2]]
            elif us == 3: xs = [d[3], None, None, None, None, None, None, None, d[4], d[5]]
            else: xs = list(extra[2 * st + us])
            pat = pat0 if u < nsoft else os.environ.get('APAT', 'eeeQeeePeeccLcc')
            assert pat.index('Q') < pat.index('P')
            body = []
            for hh in range(2):
                ei = 8 * hh; ci = 4 * hh
                for ch in pat:
                    if ch == 'e': body.append(ex[ei]); ei += 1
                    elif ch == 'c': body.append(cv[ci]); ci += 1
                    elif ch == 'Q': body += Qs[hh]
                    elif ch == 'P': body += Ps[hh]
                    elif ch == 'L': body.append(Ls[hh])
            body = ['s_waitcnt lgkmcnt(3)' if x == 'WAITV' else x for x in body]
            if u == 15 and not last:
                le = max(i for i, x in enumerate(body) if x.startswith('v_exp'))
                body = body[:le + 1] + ['s_sub_u32 s59, s59, 1', 's_cmp_lg_u32 s59, 0'] + body[le + 1:]
            if peel and u == 3:
                body += ['s_waitcnt vmcnt(10)', 's_barrier', rd(KF, 2, 0), rd(KF + 4, 2, 1), rd(VF, 2, 2), 's_waitcnt lgkmcnt(1)', qk(0, 0), qk(0, 1)]
            iq = body.index(qk(1 - q, 1))
            first_e = min(i for i, x in enumerate(body) if x.startswith('v_exp'))
            gap = len(body) - 1 - iq + first_e
            if gap < 12: body.append('s_nop %d' % (11 - gap))
            if first and AOWN and u == (0 if AOWN == 3 else 2): late_start()
            seq = list(head)
            for x in body:
                seq.append(x)
                if xs and x.startswith('v_exp'):
                    y = xs.pop(0)
                    if y: seq.append(y)
            assert not xs
            AX = os.environ.get('AX', '')
            if 'b' in AX: seq = [x for x in seq if x != 's_barrier']
            if 'p' in AX: seq = [x for x in seq if 's62 offen' not in x and 's[80:83]' not in x]
            if 'v' in AX: seq = [x for x in seq if 'buffer_load' not in x]
            if 'd' in AX: seq = [x for x in seq if not x.startswith('ds_read') and 'lgkmcnt' not in x]
            if 'l' in AX: seq = [x for x in seq if '16x16x32' not in x]
            for x in seq: k.e(x)
    iteration(True, env('ASOFT', 8), os.environ.get('APAT0', 'eQPLeeeeeeecccc'))
    k.label(lp)
    iteration(False, 0, None)
    k.e('s_cbranch_scc1 %s' % lp)
    if LASTB:
        if CPF >= 2:
            l = k.newlabel('ct')
            k.e('s_cmp_lg_u32 s3, 0'); k.e('s_cbranch_scc1 %s' % l)
            k.e('s_mov_b64 s[60:61], s[64:65]')
            code_touch(k, 'L_attn_epi', 'L_text_end', '0', 172)
            k.e('s_mov_b64 s[64:65], s[60:61]')
            k.label(l)
        iteration(False, 0, None, last=True)
        k.e('s_nop 0')
    k.label('L_attn_epi')
    if 'b' in os.environ.get('AX', ''): k.e('s_barrier')
    mark(k, 3)
    k.e('s_nop 0')
    k.e(pv(1, 1)); k.e(ls(1, 1))
    if LASTB:
        k.e("""
        s_lshl_b32 s58, s48, 13
        s_add_u32 s58, s58, s55
        s_add_u32 s58, s58, 8192
        v_add_u32 v2, s58, v%d
        v_lshl_add_u32 v4, v1, 2, s58
        s_xor_b32 s58, s58, 0x10000
        v_add_u32 v3, s58, v%d
        v_lshl_add_u32 v5, v1, 2, s58
        s_nop 3
        """ % (A0, A0))
    else:
        k.e("""
        s_mul_i32 s58, s3, 5120
        v_add_u32 v2, s58, v%d
        v_lshl_add_u32 v4, v1, 2, s58
        s_xor_b32 s58, s3, 4
        s_mul_i32 s58, s58, 5120
        v_add_u32 v3, s58, v%d
        v_lshl_add_u32 v5, v1, 2, s58
        s_waitcnt vmcnt(0) lgkmcnt(0)
        s_barrier
        s_nop 3
        """ % (A0, A0))
    for r in range(4): k.e('ds_write_b128 v2, %s offset:%d' % (vr(O2[1] + 4 * r, 4), r * 1024))
    k.e('ds_write_b32 v4, v%d offset:4096' % L2[1])
    srd(k, 40, 'ws', WS_O, 4 * MB)
    k.e('s_waitcnt lgkmcnt(0)')
    k.e('s_barrier')
    for r in range(4): k.e('ds_read_b128 %s, v3 offset:%d' % (vr(S2[0] + 4 * r, 4), r * 1024))
    k.e('ds_read_b32 v%d, v5 offset:4096' % T)
    k.e('s_waitcnt lgkmcnt(0)')
    O = O2[0]; L = L2[0]; SA = S2[0]; NEGM = N2[0]
    for r in range(0, 16, 2): k.e(pk('add', O + r, O + r, SA + r))
    k.e('v_add_f32 v%d, v%d, v%d' % (L, L, T))
    lstore = 'L_attn_store'; lsafe = 'L_attn_safe'
    k.e('v_max3_f32 v%d, |v%d|, |v%d|, |v%d|' % (T, O, O + 1, L))
    for r in range(2, 16, 2): k.e('v_max3_f32 v%d, |v%d|, |v%d|, v%d' % (T, O + r, O + r + 1, T))
    k.e('v_mul_f32 v%d, 0, v%d' % (T2, L))
    for r in range(16): k.e('v_fma_f32 v%d, 0, v%d, v%d' % (T2, O + r, T2))
    k.e('v_add_f32 v%d, v%d, v%d' % (T, T, T2))
    k.e('v_mov_b32 v3, %s' % hx(2.0 ** 120))
    k.e('v_cmp_nlt_f32 vcc, v%d, v3' % T)
    k.e('s_nop 4')
    k.e('s_cbranch_vccnz %s' % lsafe)
    k.label(lstore)
    k.e('v_rcp_f32 v%d, v%d' % (T2, L))
    k.e('s_nop 0')
    for r in range(0, 16, 2): k.e(pk('mul', O + r, O + r, (T2,)))
    for d in range(8): k.e('v_cvt_pk_bf16_f32 v%d, v%d, v%d' % (P + d, O + 2 * d, O + 2 * d + 1))
    k.e('buffer_store_dwordx4 %s, v%d, s[40:43], s54 offen%s' % (vr(P, 4), A0, WT))
    k.e('buffer_store_dwordx4 %s, v%d, s[40:43], s54 offen offset:1024%s' % (vr(P + 4, 4), A0, WT))
    signal(k, 'S')
    endpgm(k)
    for blk in ool:
        for x in blk: k.e(x)
    k.label(lsafe)
    srd(k, 36, 'ws', WS_KV, 256 * KB, soff='s52')
    def gl(dst, off): return 'buffer_load_dwordx4 %s, v%d, s[36:39], s56 offen offset:%d sc1' % (vr(dst, 4), A0, off)
    k.e('s_mov_b32 s56, 0')
    k.e('v_mov_b32 v%d, 0xff800000' % M)
    k.label(lsafe + '1')
    k.e(gl(KF, 0)); k.e(gl(KF + 4, 1024))
    k.e('s_waitcnt vmcnt(0)')
    k.e(qk(0, 0, '0')); k.e(qk(0, 1))
    k.e('s_nop 15')
    for r in range(0, 16, 2): k.e('v_max3_f32 v%d, v%d, v%d, v%d' % (M, M, SA + r, SA + r + 1))
    k.e('s_add_u32 s56, s56, 4096')
    k.e('s_cmp_lt_u32 s56, %d' % (256 * KB))
    k.e('s_cbranch_scc1 %s1' % lsafe)
    k.e('v_mov_b32 v%d, v%d' % (T, M))
    k.e('s_nop 1')
    k.e('v_permlane32_swap_b32 v%d, v%d' % (M, T))
    k.e('s_nop 1')
    k.e('v_max_f32 v%d, v%d, v%d' % (M, M, T))
    k.e('v_sub_f32 v%d, 0, v%d' % (NEGM, M))
    for r in range(1, 16): k.e('v_mov_b32 v%d, v%d' % (NEGM + r, NEGM))
    for r in range(16): k.e('v_mov_b32 v%d, 0' % (O + r))
    for r in range(4): k.e('v_mov_b32 v%d, 0' % (L + r))
    k.e('s_mov_b32 s56, 0')
    k.label(lsafe + '2')
    k.e(gl(KF, 0)); k.e(gl(KF + 4, 1024)); k.e(gl(VF, 2048)); k.e(gl(VF + 4, 3072))
    k.e('s_waitcnt vmcnt(0)')
    k.e(qk(0, 0)); k.e(qk(0, 1))
    k.e('s_nop 15')
    for r in range(16): k.e('v_exp_f32 v%d, v%d' % (SA + r, SA + r))
    k.e('s_nop 0')
    for d in range(8): k.e('v_cvt_pk_bf16_f32 v%d, v%d, v%d' % (P + d, SA + 2 * d, SA + 2 * d + 1))
    k.e('s_nop 1')
    k.e(pv(0, 0)); k.e(ls(0, 0)); k.e(pv(0, 1)); k.e(ls(0, 1))
    k.e('s_add_u32 s56, s56, 4096')
    k.e('s_nop 7')
    k.e('s_cmp_lt_u32 s56, %d' % (256 * KB))
    k.e('s_cbranch_scc1 %s2' % lsafe)
    k.e('s_nop 15')
    k.e('s_branch %s' % lstore)
    k.need(MSV + 8, 160 * KB)

PHASES = dict(p0=k_p0, qkv=k_qkv, attn=k_attn2 if AT2 else k_attn,
              wo=lambda k, c: k_proj(k, c, 1024, ('xf', WS_O, 1024), 'wo', False),
              win=k_win2 if W22 else k_win, wsp=k_wsp,
              wout=lambda k, c: k_proj(k, c, 1792, ('xf', WS_U2, 1792), 'w_out', True))
GROUPS = [g.split('+') for g in os.environ.get('GRP', 'p0+qkv+attn+wo+win+wsp+wout').split(',')]
def same_kernel(a, b): return any(a in g_ and b in g_ for g_ in GROUPS)
def build():
    ks = []
    for grp in GROUPS:
        k = Kern(grp[0] if len(grp) == 1 else 'm' + grp[0], 256, 1024 if grp[0] == 'pre' else 512, 0)
        prologue(k)
        for i, ph in enumerate(grp):
            c = Ctx(); c.name = ph; c.first = i == 0; c.last = i == len(grp) - 1; c.nxt = None if c.last else grp[i + 1]; c.prev = grp[i - 1] if i else None
            PHASES[ph](k, c)
        k.label(k.endl)
        k.e('s_endpgm')
        assert k.lds <= 160 * KB
        ks.append(k)
    s = '; adaLN + softmax MHA + gMLP block, generated by gen.py (hand-written generator)\n'
    for k in ks: s += k.launch()
    s += '.amdgcn_target "amdgcn-amd-amdhsa--gfx950"\n.text\n'
    for k in ks: s += k.text()
    s += 'L_text_end:\n    s_endpgm\n'
    s += '.section .rodata,"a"\n'
    for k in ks: s += k.desc()
    if len(ks) == 1 and env('SINGLE', 0):
        s = s.replace('; @launch kernel=%s_kernel ' % ks[0].name, '; @launch ')
        s = s.replace(ks[0].name + '_kernel', 'adaLN_cond__softmax_full_mha__mixer_gmlp__prompt_kernel')
    return s

PROMO = ('v_exp_f32', 'v_rcp_f32', 'v_mov_b32', 'v_add_f32', 'v_mul_f32', 'v_sub_f32', 'v_max_f32', 'v_lshlrev_b32', 'v_lshrrev_b32',
         'v_and_b32', 'v_xor_b32', 'v_or_b32', 'v_add_u32', 'v_fmac_f32', 'v_min_u32', 'v_max_u32', 'v_rsq_f32', 'v_sqrt_f32')
def align8(text):
    import subprocess, tempfile, re
    lines = text.split('\n')
    i0 = next(i for i, l in enumerate(lines) if l.endswith('_kernel:')); i1 = next(i for i, l in enumerate(lines) if l.startswith('.section'))
    idx = [i for i in range(i0, i1) if lines[i].strip() and not lines[i].strip().startswith((';', '.')) and not lines[i].strip().endswith(':')]
    with tempfile.TemporaryDirectory() as d:
        open(d + '/a.s', 'w').write(text)
        subprocess.check_call(['clang', '-x', 'assembler', '-target', 'amdgcn-amd-amdhsa', '-mcpu=gfx950', '-c', d + '/a.s', '-o', d + '/a.o'])
        dis = subprocess.check_output(['llvm-objdump', '-d', '--mcpu=gfx950', d + '/a.o'], text=True)
    sz = [4 * len(m.group(1).split()) for m in re.finditer(r'// [0-9A-F]{12}: ([0-9A-F ]+)', dis)]
    assert len(sz) == len(idx), (len(sz), len(idx))
    off = 0; ins = {}; npro = nnop = 0
    MINRUN = env('MINRUN', 8)
    for n, i in enumerate(idx):
        if sz[n] == 8 and off % 8 == 4:
            p = n - 1; done = False
            while p >= 0 and sz[p] == 4:
                op = lines[idx[p]].split()[0]
                if op in PROMO:
                    lines[idx[p]] = lines[idx[p]].replace(op, op + '_e64', 1); sz[p] = 8; off += 4; done = True; npro += 1
                    break
                p -= 1
            if not done:
                r = 0
                while n + r < len(sz) and sz[n + r] == 8: r += 1
                prev = lines[idx[n - 1]].split()[0]
                if r >= MINRUN and prev != 's_getpc_b64':
                    ins[i] = '    s_nop 0'; off += 4; nnop += 1
        off += sz[n]
    out = []
    for i, l in enumerate(lines):
        if i in ins: out.append(ins[i])
        out.append(l)
    print('align8: %d widened, %d nops' % (npro, nnop))
    return '\n'.join(out)

if __name__ == '__main__':
    out = sys.argv[1] if len(sys.argv) > 1 else 'adaLN_cond__softmax_full_mha__mixer_gmlp__prompt.s'
    txt = build()
    if env('AL8', 1): txt = align8(txt)
    open(out, 'w').write(txt)
    print('wrote', out)
```

```python
import sys, struct, os
STAMP = int(os.environ.get('STAMP', '0'))
WS_STAMP = 128 << 20
KIDX = [0]
def env(n, d): return int(os.environ.get(n, d))

MB = 1 << 20
KB = 1024
WS_MOD = 0
WS_UW  = 32 * KB
WS_ST0 = 64 * KB
WS_MODP = 128 * KB
WS_MODT = 768 * KB
TAGP = env('TAGP', 1)
WS_SC = 96 * KB
WS_MODQ = 160 * KB
WS_ST1 = 256 * KB
WS_G   = 512 * KB
WS_FL  = 58 * MB
FLSZ = 2 * MB
FL_LN1, FL_QKV, FL_ATT, FL_WO, FL_WIN, FL_WSP, FL_MOD = [i * 8 * KB for i in range(7)]
WS_EPOCH = 240 * KB
AUX_A = 128 * KB; AUX_B = 148 * KB
WS_H   = 1 * MB
WS_Q   = 5 * MB
WS_KV  = 9 * MB
WS_G2  = 57 * MB
WS_N   = 60 * MB
WS_O   = 17 * MB
WS_X1  = 21 * MB
WS_X1S = 25 * MB
WS_Z   = 29 * MB
ZSZ = 2048 * 1792 * 2
WS_Z2N = WS_Z + ZSZ
WS_U2  = 50 * MB
if env('ALIAS', 0):
    WS_Q = 1 * MB; WS_KV = 5 * MB; WS_H = 13 * MB
    WS_O = WS_H; WS_X1 = WS_Q; WS_X1S = WS_KV
    WS_Z2N = 9 * MB; WS_Z = 17 * MB; WS_U2 = WS_Z
ZB = min(WS_Z, WS_Z2N)

ROLES = {'pre': [('mod', 0, 128, 0, 16), ('stats', 128, 256, 0, 16)], 'ln1': [('pf', 0, 256, 0, 4), ('ln', 0, 256, 4, 8)],
         'attn': [('main', 0, 256, 0, 8)]}
for _n in ('qkv', 'wo', 'wout'): ROLES[_n] = [('load', 0, 256, 0, 4), ('comp', 0, 256, 4, 8)]
for _n in ('win', 'wsp'): ROLES[_n] = [('load', 0, 224, 0, 4), ('comp', 0, 224, 4, 8), ('pf', 224, 256, 0, 8)]
def f2u(f): return struct.unpack('<I', struct.pack('<f', f))[0]
def hx(f): return '0x%08x' % f2u(f)
LOG2E = 1.4426950408889634
WT = os.environ.get('WTF', ' sc1')

class Kern:
    def __init__(self, name, grid, block, lds):
        self.name = name; self.grid = grid; self.block = block; self.lds = lds
        self.lines = []; self.vgpr = 0; self.nlab = 0
    def e(self, s):
        for l in s.strip('\n').split('\n'):
            l = l.strip()
            if l: self.lines.append('    ' + l)
    def label(self, l):
        if env('ALIGN', 0) and ('_loop' in l or '_lloop' in l):
            self.lines.append('.p2align %d' % env('ALIGN', 0))
            for _ in range(env('ALOFF', 0)): self.lines.append('    s_nop 0')
        self.lines.append(l + ':')
    def newlabel(self, base):
        self.nlab += 1
        return 'L_%s_%s%d' % (self.name, base, self.nlab)
    def need(self, vgpr, lds):
        self.vgpr = max(self.vgpr, vgpr); self.lds = max(self.lds, lds)
    def text(self):
        GX = os.environ.get('GX', '')
        if self.name != 'pre':
            if 'm' in GX: self.lines = [l for l in self.lines if 'v_mfma' not in l]
            if 'l' in GX: self.lines = [l for l in self.lines if not (' lds' in l and 'buffer_load' in l and ('s57' in l or 's58' in l))]
            if 'r' in GX: self.lines = [l for l in self.lines if not ('ds_read_b64_tr' in l)]
        if os.environ.get('NOLDSC'):
            self.lines = [l.replace(' sc1 lds', ' lds') for l in self.lines]
        n = self.name + '_kernel'
        return '.globl %s\n.p2align 8\n.type %s,@function\n%s:\n' % (n, n, n) + '\n'.join(self.lines) + '\n'
    def desc(self):
        n = self.name + '_kernel'
        v = self.vgpr
        acc = (v + 3) // 4 * 4
        return ('.p2align 6\n.amdhsa_kernel %s\n  .amdhsa_next_free_vgpr %d\n  .amdhsa_next_free_sgpr 102\n'
                '  .amdhsa_accum_offset %d\n  .amdhsa_group_segment_fixed_size 0\n  .amdhsa_kernarg_size 104\n'
                '  .amdhsa_user_sgpr_count 2\n  .amdhsa_user_sgpr_kernarg_segment_ptr 1\n'
                '  .amdhsa_system_sgpr_workgroup_id_x 1\n.end_amdhsa_kernel\n' % (n, v, acc))
    def launch(self):
        return '; @launch kernel=%s_kernel grid=(%d,1,1) block=(%d,1,1) lds=%d\n' % (self.name, self.grid, self.block, self.lds)

PTR = dict(x=4, wqkv=6, wo=8, bx=10, w_in=12, w_sp=14, b_sp=16, w_out=18, c=20, w_mod=22, out=24, dbg=26, ws=28)
SIZES = dict(x=2048*1024*2, wqkv=1024*3072*2, wo=1024*1024*2, w_in=1024*3584*2, w_sp=2048*2048*2, b_sp=2048*2,
             w_out=1792*1024*2, c=2048, w_mod=1024*6144*2, out=2048*1024*2, dbg=256)

class Ctx: pass
PHIDX = {}
def prologue(k):
    k.endl = 'L_%s_end' % k.name
    k.e("""
    s_load_dwordx16 s[4:19], s[0:1], 0
    s_load_dwordx8 s[20:27], s[0:1], 64
    s_load_dwordx2 s[28:29], s[0:1], 96
    s_cmp_ge_u32 s2, %d
    s_cbranch_scc1 %s
    v_lshrrev_b32 v1, 6, v0
    s_nop 0
    v_readfirstlane_b32 s3, v1
    """ % (k.grid, k.endl))

def phase_begin(k, c):
    k.c = c
    k.label('L_%s_entry' % c.name)
    if env('IDLE_' + c.name, 0):
        for _ in range(env('IDLE_' + c.name, 0)): k.e('s_sleep 36')
    c.kidx = KIDX[0]; KIDX[0] += 1
    PHIDX[c.name] = c.kidx
    if env('PADTO', 0) and c.first: k.e('s_memrealtime s[90:91]')
    if env('DBG', 0) and c.first: dbgstamp(k, 0 if c.name == 'pre' else 10, 512 if c.name == 'pre' else 0, '')
    if STAMP:
        k.e('s_memtime s[88:89]')
        k.e('s_memrealtime s[90:91]')
        for i in range(4): k.e('s_mov_b64 s[%d:%d], 0' % (72 + 2 * i, 73 + 2 * i))

def dbgstamp(k, idx, off, op):
    l = k.newlabel('dbg')
    k.e('''
    s_lshl_b32 s80, s2, 4
    s_add_u32 s80, s80, s3
    s_cmp_lg_u32 s80, %d
    s_cbranch_scc1 %s
    s_waitcnt lgkmcnt(0)
    s_memrealtime s[92:93]
    s_add_u32 s80, s26, %d
    s_addc_u32 s81, s27, 0
    s_and_b32 s81, s81, 0xffff
    s_mov_b32 s82, 256
    s_mov_b32 s83, 0x20000
    s_mov_b64 exec, 1
    s_waitcnt lgkmcnt(0)
    v_mov_b32 v2, s92
    v_mov_b32 v5, %d
    buffer_store_dword v2, v5, s[80:83], 0 offen
    s_mov_b64 exec, -1
    ''' % (5 * 16 + 4, l, off, idx * 4))
    k.label(l)
def endpgm(k):
    c = k.c
    if env('DBG', 0): dbgstamp(k, 1 + c.kidx, 512 if c.name == 'pre' else 0, '')
    if STAMP:
        k.e("""
        s_waitcnt vmcnt(0) lgkmcnt(0)
        s_memtime s[92:93]
        s_memrealtime s[94:95]
        s_mov_b64 exec, 1
        s_add_u32 s80, s28, 0x%x
        s_addc_u32 s81, s29, 0
        s_and_b32 s81, s81, 0xffff
        s_mov_b32 s82, 0x100000
        s_mov_b32 s83, 0x20000
        s_lshl_b32 s86, s2, 4
        s_add_u32 s86, s86, s3
        s_lshl_b32 s86, s86, 5
        s_waitcnt lgkmcnt(0)
        v_mov_b32 v4, s90
        v_mov_b32 v5, s94
        v_mov_b32 v6, s88
        v_mov_b32 v7, s92
        v_mov_b32 v8, s72
        v_mov_b32 v9, s74
        v_mov_b32 v10, s76
        v_mov_b32 v11, s78
        v_mov_b32 v2, s86
        buffer_store_dwordx4 v[4:7], v2, s[80:83], 0 offen
        buffer_store_dwordx4 v[8:11], v2, s[80:83], 0 offen offset:16
        s_waitcnt vmcnt(0)
        """ % (WS_STAMP + c.kidx * (1 << 20)))
    if c.last and env('PADTO', 0):
        l = k.newlabel('pad')
        k.label(l)
        k.e('s_memrealtime s[92:93]\ns_waitcnt lgkmcnt(0)\ns_sub_u32 s92, s92, s90\ns_cmp_lt_u32 s92, %d\ns_cbranch_scc1 %s' % (env('PADTO', 0) * 100, l))
    if c.last: k.e('s_endpgm')
    else:
        k.e('s_mov_b64 exec, -1')
        k.e('s_setprio 0')
        k.e('s_branch L_%s_entry' % c.nxt)
def mark(k, i=0):
    if STAMP:
        k.e('s_memtime s[%d:%d]' % (72 + 2 * i, 73 + 2 * i))
        k.e('s_waitcnt lgkmcnt(0)')

def set_flag(k, setup):
    if not k.c.last:
        k.e(setup)
        k.e('s_lshl_b32 s87, s100, 5')
def OWNF(n): return n in os.environ.get('OWN', 'none').split(',')
ZF32 = env('ZF32', 1)
GEO = env('GEO', 0); TPRE = env('TPRE', 4) if GEO else 0; APRE = env('APRE', 0) if GEO else 0
W22 = env('W22', 1)
LPW = env('LPW', 0)
ZOWN = env('ZOWN', 1)
FV = 252
def flag_store(k, soff):
    k.e('s_mov_b64 exec, 1')
    k.e('buffer_store_dwordx2 %s, v%d, s[96:99], %s offen sc1' % (vr(FV, 2), FV + 2, soff))
    k.e('s_mov_b64 exec, -1')
def flag_prep(k):
    srd(k, 96, 'ws', WS_FL, FLSZ)
    k.e('v_mov_b32 v%d, s84' % FV); k.e('v_mov_b32 v%d, s85' % (FV + 1)); k.e('v_mov_b32 v%d, 0' % (FV + 2))
    k.need(FV + 3, 0)
def signal(k, role='L', keep=0):
    if k.c.last: return
    if role in ('C', 'S'): flag_prep(k)
    if role == 'C':
        k.e('s_and_b32 s100, s3, 3')
        k.e('s_lshl_b32 s100, s100, 7')
        k.e('s_add_u32 s100, s100, s87')
    if role == 'C' and env('SM', 0): mark(k, 3)
    k.e('s_waitcnt vmcnt(%d)' % keep)
    if role == 'C' and env('SM', 0): mark(k, 0)
    if role == 'C':
        flag_store(k, 's100')
        if OWNF(k.c.nxt): k.e('s_barrier')
    elif role == 'A' and OWNF(k.c.nxt) and k.c.nxt == 'wout':
        l = k.newlabel('sg')
        k.e('s_cmp_lt_u32 s3, 4'); k.e('s_cbranch_scc1 %s' % l); k.e('s_barrier'); k.label(l)
    elif role == 'S':
        l = k.newlabel('sg')
        k.e('s_barrier')
        k.e('s_cmp_lg_u32 s3, 7'); k.e('s_cbranch_scc1 %s' % l)
        flag_store(k, 's87')
        k.label(l)
POLLW = env('POLLW', 4)
def handoff(k, setup, n, role='L', force=False, slp=None):
    if (k.c.first and not force) or not n: return
    if role in 'AW' or (role == 'C') == (POLLW >= 4):
        ld = k.newlabel('wd')
        if role == 'W': pass
        elif n <= 64:
            k.e('s_cmp_lg_u32 s3, %d' % POLLW)
            k.e('s_cbranch_scc1 %s' % ld)
        else:
            assert n == 128
            k.e('s_sub_u32 s101, s3, %d' % POLLW)
            k.e('s_cmp_gt_u32 s101, 1')
            k.e('s_cbranch_scc1 %s' % ld)
        srd(k, 96, 'ws', WS_FL, FLSZ)
        k.e(setup)
        k.e('s_lshl_b32 s100, s100, 5')
        if n > 64:
            k.e('s_lshl_b32 s101, s101, 13')
            k.e('s_add_u32 s100, s100, s101')
        k.e('v_lshlrev_b32 v%d, 7, v1' % (FV + 2))
        k.e('s_mov_b32 s101, 0x100000')
        if n < 64: k.e('s_bfm_b64 exec, %d, 0' % n)
        k.need(FV + 3, 0)
        if env('PDELAY', 0): k.e('s_waitcnt vmcnt(0)')
        PP = env('PPIPE', 0)
        if PP:
            lp = k.newlabel('wf'); le = k.newlabel('we')
            B = [FV, FV - 2, FV - 4][:PP]
            ldp = lambda b: 'buffer_load_dwordx2 %s, v%d, s[96:99], s100 offen sc1' % (vr(b, 2), FV + 2)
            for b in B[:-1]:
                k.e(ldp(b)); k.e('s_sleep %d' % env('PGAP', 5))
            k.label(lp)
            for i_ in range(PP):
                k.e(ldp(B[i_ - 1]))
                k.e('s_waitcnt vmcnt(%d)' % (PP - 1))
                k.e('v_cmp_ne_u64 vcc, s[84:85], %s' % vr(B[i_], 2))
                k.e('s_nop 4')
                k.e('s_cbranch_vccz %s' % le)
            k.e('s_sub_u32 s101, s101, 1')
            k.e('s_cmp_lg_u32 s101, 0')
            k.e('s_cbranch_scc1 %s' % lp)
        else:
            lp = k.newlabel('wf'); le = k.newlabel('we')
            k.label(lp)
            k.e('buffer_load_dwordx2 %s, v%d, s[96:99], s100 offen sc1' % (vr(FV, 2), FV + 2))
            k.e('s_waitcnt vmcnt(0)')
            k.e('v_cmp_ne_u64 vcc, s[84:85], %s' % vr(FV, 2))
            k.e('s_sub_u32 s101, s101, 1')
            k.e('s_nop 3')
            k.e('s_cbranch_vccz %s' % le)
            if env('PMASK', 1): k.e('s_mov_b64 exec, vcc')
            if slp is None: slp = env('PSLEEP', 1)
            if slp: k.e('s_sleep %d' % slp)
            k.e('s_cmp_lg_u32 s101, 0')
            k.e('s_cbranch_scc1 %s' % lp)
        k.label(le)
        k.e('s_mov_b64 exec, -1')
        k.label(ld)
    if role != 'W': k.e('s_barrier')

def handoff_multi(k, polls):
    ld = k.newlabel('wd'); lgo = k.newlabel('wg')
    srd(k, 96, 'ws', WS_FL, FLSZ)
    for w, setup, n in polls:
        ln = k.newlabel('wn')
        k.e('s_cmp_lg_u32 s3, %d' % w)
        k.e('s_cbranch_scc1 %s' % ln)
        k.e(setup)
        k.e('v_min_u32 v%d, %d, v1' % (FV + 2, n - 1))
        k.e('s_branch %s' % lgo)
        k.label(ln)
    k.e('s_branch %s' % ld)
    k.label(lgo)
    k.e('s_lshl_b32 s100, s100, 5')
    k.e('v_lshlrev_b32 v%d, 7, v%d' % (FV + 2, FV + 2))
    k.e('s_mov_b32 s101, 0x100000')
    lp = k.newlabel('wf')
    k.label(lp)
    k.e('buffer_load_dwordx2 %s, v%d, s[96:99], s100 offen sc1' % (vr(FV, 2), FV + 2))
    k.e('s_waitcnt vmcnt(0)')
    k.e('v_cmp_ne_u64 vcc, s[84:85], %s' % vr(FV, 2))
    k.e('s_sub_u32 s101, s101, 1')
    k.e('s_nop 3')
    k.e('s_cbranch_vccz %s' % ld)
    k.e('s_sleep %d' % env('P0SLEEP', 2))
    k.e('s_cmp_lg_u32 s101, 0')
    k.e('s_cbranch_scc1 %s' % lp)
    k.label(ld)
    k.e('s_barrier')

def mod_table(k, R, between=None, nb=0):
    srd(k, 40, 'ws', 0, 256 * KB)
    k.e('v_lshlrev_b32 v%d, 4, v0' % (R + 16))
    for q in range(4):
        k.e('s_mov_b32 s48, %d' % (WS_MODP + q * 8192))
        k.e('buffer_load_dwordx4 %s, v%d, s[40:43], s48 offen sc1' % (vr(R + 4 * q, 4), R + 16))
    if between: between()
    k.e('s_cmp_lt_u32 s3, 4')
    k.e('s_cselect_b32 s49, 0, 1.0')
    k.e('v_add_u32 v%d, %d, v%d' % (R + 16, AUX_A, R + 16))
    k.e('s_waitcnt vmcnt(%d)' % nb)
    k.e(pk('add', R, R, R + 4)); k.e(pk('add', R + 2, R + 2, R + 6)); k.e(pk('add', R + 8, R + 8, R + 12)); k.e(pk('add', R + 10, R + 10, R + 14))
    k.e(pk('add', R, R, R + 8)); k.e(pk('add', R + 2, R + 2, R + 10))
    for d in range(2): round_bf16_pair(k, R + 2 * d, R + 2 * d + 1, R + 4)
    for q in range(4): k.e('v_add_f32 v%d, s49, v%d' % (R + q, R + q))
    for d in range(2): round_bf16_pair(k, R + 2 * d, R + 2 * d + 1, R + 4)
    k.e('ds_write_b128 v%d, %s' % (R + 16, vr(R, 4)))
    k.e('s_waitcnt lgkmcnt(0)')
    k.e('s_barrier')

def poll_back(k, lp):
    l = k.newlabel('pd')
    k.e('s_sub_u32 s101, s101, 1')
    k.e('s_nop 3')
    k.e('s_cbranch_vccz %s' % l)
    k.e('s_cmp_lg_u32 s101, 0')
    k.e('s_cbranch_scc1 %s' % lp)
    k.label(l)
def poll_init(k): k.e('s_mov_b32 s101, 0x100000')

def srd(k, d, what, off=0, size=None, soff=None):
    p = PTR[what]
    if what == 'ws': off += env('WSB', 0) * MB
    if size is None: size = SIZES[what]
    if off or soff:
        k.e('s_add_u32 s%d, s%d, 0x%x' % (d, p, off))
        k.e('s_addc_u32 s%d, s%d, 0' % (d + 1, p + 1))
        if soff:
            k.e('s_add_u32 s%d, s%d, %s' % (d, d, soff))
            k.e('s_addc_u32 s%d, s%d, 0' % (d + 1, d + 1))
        k.e('s_and_b32 s%d, s%d, 0xffff' % (d + 1, d + 1))
    else:
        k.e('s_mov_b32 s%d, s%d' % (d, p))
        k.e('s_and_b32 s%d, s%d, 0xffff' % (d + 1, p + 1))
    k.e('s_mov_b32 s%d, 0x%x' % (d + 2, size))
    k.e('s_mov_b32 s%d, 0x20000' % (d + 3))

def finish(k):
    endpgm(k)

XT = env('XT', 0)
AOWN = env('AOWN', 3)
AT2 = env('AT2', 1)
MP0 = env('MP0', 1)
CPF = env('CPF', 2)
def code_pf(k, start, end, maxbytes, lane=1, vt=6, vd=7, sb=84):
    if not CPF: return 0
    h = k.newlabel('pc')
    k.e('s_getpc_b64 s[%d:%d]' % (sb, sb + 1))
    k.label(h)
    k.e('s_add_u32 s%d, s%d, %s-%s' % (sb, sb, start, h))
    k.e('s_addc_u32 s%d, s%d, 0' % (sb + 1, sb + 1))
    n = (maxbytes + 8191) // 8192
    for i in range(n):
        k.e('v_lshlrev_b32 v%d, 7, v%d' % (vt, lane))
        if i: k.e('v_add_u32 v%d, %d, v%d' % (vt, i * 8192, vt))
        k.e('v_min_u32 v%d, %s-%s-4, v%d' % (vt, end, start, vt))
        k.e('global_load_dword v%d, v%d, s[%d:%d]' % (vd, vt, sb, sb + 1))
    return n

def code_touch(k, start, end, soff, V):
    h = k.newlabel('pc')
    k.e('s_getpc_b64 s[64:65]')
    k.label(h)
    k.e('s_add_u32 s64, s64, %s-%s' % (start, h))
    k.e('s_addc_u32 s65, s65, 0')
    k.e('v_and_b32 v%d, 63, v0' % V)
    k.e('v_lshl_add_u32 v%d, v%d, 7, %s' % (V, V, soff))
    k.e('v_min_u32 v%d, %s-%s-4, v%d' % (V, end, start, V))
    k.e('v_mov_b32 v%d, s65' % (V + 1))
    k.e('v_add_co_u32 v%d, vcc, s64, v%d' % (V, V))
    k.e('s_nop 1')
    k.e('v_addc_co_u32 v%d, vcc, 0, v%d, vcc' % (V + 1, V + 1))
    k.e('global_load_dword v%d, v[%d:%d], off' % (V + 2, V, V + 1))

def vr(b, n): return 'v[%d:%d]' % (b, b + n - 1)
def sr(b): return 's[%d:%d]' % (b, b + 3)

def round_bf16_pair(k, a, b, tmp):
    k.e('v_cvt_pk_bf16_f32 v%d, v%d, v%d' % (tmp, a, b))
    k.e('v_lshlrev_b32 v%d, 16, v%d' % (a, tmp))
    k.e('v_and_b32 v%d, 0xffff0000, v%d' % (b, tmp))

def red_lanes(k, regs, tmp, rors=(8,)):
    for ro in rors:
        k.e('s_nop 1')
        for r in regs:
            k.e('v_add_f32_dpp v%d, v%d, v%d row_ror:%d row_mask:0xf bank_mask:0xf' % (r, r, r, ro))
    for op in ('v_permlane16_swap_b32', 'v_permlane32_swap_b32'):
        for r, t in zip(regs, tmp): k.e('v_mov_b32 v%d, v%d' % (t, r))
        k.e('s_nop 1')
        for r, t in zip(regs, tmp): k.e('%s v%d, v%d' % (op, r, t))
        k.e('s_nop 1')
        for r, t in zip(regs, tmp): k.e('v_add_f32 v%d, v%d, v%d' % (r, r, t))

def unpack(k, lo, hi, src):
    k.e('v_lshlrev_b32 v%d, 16, v%d' % (lo, src))
    k.e('v_and_b32 v%d, 0xffff0000, v%d' % (hi, src))

def k_p0(k, c):
    phase_begin(k, c)
    KIDX[0] += 1
    assert c.first and not c.last
    lst = 'L_p0_stats'
    if env('CPF0', 1):
        l0 = k.newlabel('c0')
        k.e('s_cmp_ge_u32 s3, %d' % env('CPF0', 1))
        k.e('s_cbranch_scc1 %s' % l0)
        k.e('s_lshl_b32 s44, s3, 13')
        code_touch(k, l0, 'L_text_end', 's44', 196)
        k.label(l0)
    def rest_issue():
        srd(k, 52, 'w_mod'); srd(k, 56, 'c')
        k.e("""
        v_lshrrev_b32 v164, 3, v0
        v_lshlrev_b32 v165, 4, v164        ; c byte offset = g*16
        v_mul_u32_u24 v164, %d, v164
        v_and_b32 v166, 7, v0
        v_lshl_add_u32 v164, v166, 4, v164
        s_lshr_b32 s60, s30, 1             ; col block
        s_and_b32 s61, s30, 1              ; k half
        s_lshl_b32 s62, s60, 7
        s_mul_i32 s63, s61, %d
        s_add_u32 s62, s62, s63
        s_add_u32 s62, s62, 4096
        s_lshl_b32 s63, s61, 10
        buffer_load_dwordx4 v[128:131], v165, s[56:59], s63 offen
        """ % (8 * 12288, 512 * 12288))
        if env('PWAIT', 2) == 2: k.e('s_waitcnt vmcnt(0)')
        for j in range(8):
            k.e('buffer_load_dwordx4 %s, v164, s[52:55], s62 offen' % vr(132 + 4 * j, 4))
            k.e('s_add_u32 s62, s62, 12288')
        k.need(192, 0)
    def rest_compute(newer):
        S_ = 168; T_ = 176; A_ = 184
        k.e('s_waitcnt vmcnt(%d)' % (8 + newer))
        for j in range(4): unpack(k, S_ + 2 * j, S_ + 1 + 2 * j, 128 + j)
        for j in range(8): k.e('v_mul_f32 v%d, %s, v%d' % (T_ + j, hx(-LOG2E), S_ + j))
        for j in range(8): k.e('v_exp_f32 v%d, v%d' % (T_ + j, T_ + j))
        for j in range(8): k.e('v_add_f32 v%d, 1.0, v%d' % (T_ + j, T_ + j))
        for j in range(8): k.e('v_rcp_f32 v%d, v%d' % (T_ + j, T_ + j))
        for j in range(8): k.e('v_mul_f32 v%d, v%d, v%d' % (S_ + j, S_ + j, T_ + j))
        for j in range(4): round_bf16_pair(k, S_ + 2 * j, S_ + 1 + 2 * j, T_)
        for j in range(8):
            k.e('s_waitcnt vmcnt(%d)' % (7 - j + newer))
            for d in range(4):
                unpack(k, T_, T_ + 1, 132 + 4 * j + d)
                op = 'v_mul_f32' if j == 0 else 'v_fmac_f32'
                k.e('%s v%d, v%d, v%d' % (op, A_ + 2 * d, T_, S_ + j))
                k.e('%s v%d, v%d, v%d' % (op, A_ + 1 + 2 * d, T_ + 1, S_ + j))
        k.e('s_nop 1')
        for e in range(4): k.e('v_permlane32_swap_b32 v%d, v%d' % (A_ + e, A_ + 4 + e))
        k.e('s_nop 1')
        for e in range(4): k.e('v_add_f32 v%d, v%d, v%d' % (A_ + e, A_ + e, A_ + 4 + e))
        k.e('s_nop 1')
        for e in range(2): k.e('v_permlane16_swap_b32 v%d, v%d' % (A_ + e, A_ + 2 + e))
        k.e('s_nop 1')
        for e in range(2): k.e('v_add_f32 v%d, v%d, v%d' % (A_ + e, A_ + e, A_ + 2 + e))
        k.e('s_nop 1')
        for e in range(2): k.e('v_add_f32_dpp v%d, v%d, v%d row_ror:8 row_mask:0xf bank_mask:0xf' % (A_ + e, A_ + e, A_ + e))
        lw2 = k.newlabel('nw')
        k.e("""
        v_lshlrev_b32 v164, 5, v166
        v_lshrrev_b32 v165, 4, v1
        v_lshl_add_u32 v164, v165, 3, v164
        s_lshl_b32 s62, s3, 8
        s_add_u32 s62, s62, %d
        v_add_u32 v164, s62, v164
        ds_write_b64 v164, v[184:185]
        s_waitcnt lgkmcnt(0)
        s_barrier
        s_cmp_lg_u32 s3, 7
        s_cbranch_scc1 %s
        v_lshlrev_b32 v164, 2, v1
        v_add_u32 v165, %d, v164
        """ % (AUX_A + 8192, lw2, AUX_A + 8192))
        for w in range(8): k.e('ds_read_b32 v%d, v165 offset:%d' % (T_ + w, w * 256))
        k.e("""
        s_lshl_b32 s62, s60, 8
        s_lshl_b32 s63, s61, 14
        s_add_u32 s62, s62, s63
        s_add_u32 s62, s62, %d
        s_waitcnt lgkmcnt(0)
        """ % WS_MODQ)
        for w in range(0, 8, 2): k.e('v_add_f32 v%d, v%d, v%d' % (T_ + w, T_ + w, T_ + w + 1))
        k.e('v_add_f32 v%d, v%d, v%d' % (T_, T_, T_ + 2))
        k.e('v_add_f32 v%d, v%d, v%d' % (T_ + 4, T_ + 4, T_ + 6))
        k.e('v_add_f32 v%d, v%d, v%d' % (T_, T_, T_ + 4))
        k.e('buffer_store_dword v%d, v164, s[40:43], s62 offen%s' % (T_, WT))
        k.label(lw2)
    k.e("""
    v_and_b32 v1, 63, v0               ; lane
    v_lshlrev_b32 v6, 4, v0            ; tid*16
    s_lshr_b32 s30, s2, 4
    s_lshl_b32 s30, s30, 3
    s_and_b32 s47, s2, 7
    s_add_u32 s30, s30, s47            ; index within role (0..127)
    s_bitcmp1_b32 s2, 3
    s_cbranch_scc1 %s
    s_lshr_b32 s48, s30, 2             ; col block
    s_and_b32 s49, s30, 3              ; k quarter
    v_lshrrev_b32 v2, 3, v0            ; row group (0..63): rows 4g..4g+3 (+256*q)
    v_and_b32 v3, 7, v0                ; chunk
    v_lshlrev_b32 v4, 3, v2            ; c byte offset = g*8
    v_mul_u32_u24 v5, %d, v2
    v_lshl_add_u32 v5, v3, 4, v5
    s_lshl_b32 s31, s48, 7
    s_mul_i32 s44, s49, %d
    s_add_u32 s31, s31, s44
    s_lshl_b32 s45, s49, 9
    s_waitcnt lgkmcnt(0)
    s_load_dwordx2 s[84:85], s[28:29], 0x%x
    """ % (lst, 4 * 12288, 256 * 12288, WS_EPOCH + env('WSB', 0) * MB))
    mark(k, 0)
    srd(k, 36, 'w_mod'); srd(k, 32, 'c')
    CL = env('CLAST', 0)
    if not CL: k.e('buffer_load_dwordx2 v[8:9], v4, s[32:35], s45 offen')
    for j in range(4):
        k.e('buffer_load_dwordx4 %s, v5, s[36:39], s31 offen' % vr(12 + 4 * j, 4))
        k.e('s_add_u32 s31, s31, 12288')
    if CL: k.e('buffer_load_dwordx2 v[8:9], v4, s[32:35], s45 offen')
    lnc = k.newlabel('nc')
    def resets(R, wait):
        lnr = k.newlabel('nr')
        k.e('s_cmp_gt_u32 s3, 3')
        k.e('s_cbranch_scc1 %s' % lnr)
        for r in range(4): k.e('v_mov_b32 v%d, -1' % (R + r))
        for off, size in (((WS_G2, 512 * KB) if W22 else (WS_G, 256 * KB)), (WS_MOD, 64 * KB)) + (() if MP0 else ((WS_MODQ, 64 * KB),)):
            per = size // 128
            srd(k, 52, 'ws', off, size)
            k.e('s_mul_i32 s50, s30, %d' % per)
            k.e('v_cmp_gt_u32 vcc, %d, v0' % (per // 16))
            k.e('s_and_saveexec_b64 s[46:47], vcc')
            k.e('buffer_store_dwordx4 %s, v6, s[52:55], s50 offen%s' % (vr(R, 4), WT))
            k.e('s_mov_b64 exec, s[46:47]')
        if wait: k.e('s_waitcnt vmcnt(0)')
        k.label(lnr)
    RLN = env('RLN', 1)
    if not RLN: resets(40, True)
    srd(k, 40, 'ws', 0, 256 * KB)
    if CL == 2:
        k.e('s_waitcnt vmcnt(1)'); mark(k, 0)
    k.e('s_waitcnt vmcnt(%d)' % (0 if CL else 4))
    mark(k, 1)
    for j in range(2): unpack(k, 44 + 2 * j, 45 + 2 * j, 8 + j)
    for j in range(4): k.e('v_mul_f32 v%d, %s, v%d' % (52 + j, hx(-LOG2E), 44 + j))
    for j in range(4): k.e('v_exp_f32 v%d, v%d' % (52 + j, 52 + j))
    for j in range(4): k.e('v_add_f32 v%d, 1.0, v%d' % (52 + j, 52 + j))
    for j in range(4): k.e('v_rcp_f32 v%d, v%d' % (52 + j, 52 + j))
    for j in range(4): k.e('v_mul_f32 v%d, v%d, v%d' % (44 + j, 44 + j, 52 + j))
    for j in range(2): round_bf16_pair(k, 44 + 2 * j, 45 + 2 * j, 52)
    lns = k.newlabel('nosc')
    if not MP0: k.e("""
    s_cmp_lg_u32 s48, 0
    s_cbranch_scc1 %s
    v_lshlrev_b32 v7, 4, v2
    s_lshl_b32 s44, s49, 10
    s_add_u32 s44, s44, %d
    buffer_store_dwordx4 v[44:47], v7, s[40:43], s44 offen%s
    s_waitcnt vmcnt(0)
    """ % (lns, WS_SC, WT))
    k.label(lns)
    A = 56
    for j in range(4):
        k.e('s_waitcnt vmcnt(%d)' % (3 - j))
        for d in range(4):
            unpack(k, 52, 53, 12 + 4 * j + d)
            op = 'v_mul_f32' if j == 0 else 'v_fmac_f32'
            k.e('%s v%d, v52, v%d' % (op, A + 2 * d, 44 + j))
            k.e('%s v%d, v53, v%d' % (op, A + 1 + 2 * d, 44 + j))
    mark(k, 2)
    if MP0 == 4: rest_issue()
    k.e('s_nop 1')
    for e in range(4): k.e('v_permlane32_swap_b32 v%d, v%d' % (A + e, A + 4 + e))
    k.e('s_nop 1')
    for e in range(4): k.e('v_add_f32 v%d, v%d, v%d' % (A + e, A + e, A + 4 + e))
    k.e('s_nop 1')
    for e in range(2): k.e('v_permlane16_swap_b32 v%d, v%d' % (A + e, A + 2 + e))
    k.e('s_nop 1')
    for e in range(2): k.e('v_add_f32 v%d, v%d, v%d' % (A + e, A + e, A + 2 + e))
    k.e('s_nop 1')
    for e in range(2): k.e('v_add_f32_dpp v%d, v%d, v%d row_ror:8 row_mask:0xf bank_mask:0xf' % (A + e, A + e, A + e))
    lw = k.newlabel('nw')
    k.e("""
    v_lshlrev_b32 v2, 5, v3
    v_lshrrev_b32 v7, 4, v1
    v_lshl_add_u32 v2, v7, 3, v2
    s_lshl_b32 s44, s3, 8
    s_add_u32 s44, s44, %d
    v_add_u32 v2, s44, v2
    ds_write_b64 v2, v[56:57]
    s_waitcnt lgkmcnt(0)
    s_add_u32 s84, s84, 1
    s_barrier
    s_cmp_lg_u32 s3, 0
    s_cbranch_scc1 %s
    v_lshlrev_b32 v2, 2, v1
    v_add_u32 v7, %d, v2
    """ % (AUX_A, lw, AUX_A))
    for w in range(8): k.e('ds_read_b32 v%d, v7 offset:%d' % (12 + w, w * 256))
    flag_prep(k)
    k.e("""
    s_lshl_b32 s31, s48, 8
    s_lshl_b32 s44, s49, 13
    s_add_u32 s31, s31, s44
    s_add_u32 s31, s31, %d
    s_lshl_b32 s100, s30, 7
    s_add_u32 s100, s100, %d
    s_waitcnt lgkmcnt(0)
    """ % (WS_MODP, FL_MOD * 32))
    for w in range(0, 8, 2): k.e('v_add_f32 v%d, v%d, v%d' % (12 + w, 12 + w, 13 + w))
    k.e('v_add_f32 v12, v12, v14')
    k.e('v_add_f32 v16, v16, v18')
    k.e('v_add_f32 v12, v12, v16')
    if TAGP:
        srd(k, 96, 'ws', WS_MODT, 64 * KB)
        k.e("""
        v_mov_b32 v14, s84
        v_mov_b32 v15, s85
        v_mov_b32_dpp v13, v12 quad_perm:[1,1,3,3] row_mask:0xf bank_mask:0xf
        v_lshlrev_b32 v2, 3, v1
        s_lshl_b32 s31, s48, 9
        s_lshl_b32 s44, s49, 14
        s_add_u32 s31, s31, s44
        s_mov_b32 exec_lo, 0x55555555
        s_mov_b32 exec_hi, 0x55555555
        buffer_store_dwordx4 v[12:15], v2, s[96:99], s31 offen sc1
        s_mov_b64 exec, -1
        """)
        if env('PWAIT', 2): k.e('s_waitcnt vmcnt(0)')
    else:
        k.e('buffer_store_dword v12, v2, s[40:43], s31 offen' + WT)
        k.e('s_waitcnt vmcnt(0)')
        flag_store(k, 's100')
    k.label(lw)
    k.e('s_barrier')
    mark(k, 3)
    if env('TLBW', 0):
        lt = k.newlabel('tl')
        for w, (nm, sz) in enumerate((('ws', 64 * MB), ('w_mod', None), ('w_sp', None), ('w_in', None), ('w_out', None), ('wo', None), ('out', None), ('x', None))):
            ln = k.newlabel('tn')
            k.e('s_cmp_lg_u32 s3, %d' % w)
            k.e('s_cbranch_scc1 %s' % ln)
            srd(k, 36, nm, 0, sz)
            k.e('s_branch %s' % lt)
            k.label(ln)
        k.label(lt)
        k.e('s_lshr_b32 s51, s30, 3')
        k.e('s_lshl_b32 s51, s51, 22')
        k.e('s_add_u32 s51, s51, %d' % (65536 - 128))
        k.e('v_lshlrev_b32 v36, 16, v1')
        k.e('buffer_load_dword v37, v36, s[36:39], s51 offen')
    srd(k, 36, 'wqkv')
    k.e('s_lshl_b32 s51, s30, 13')
    k.e('s_add_u32 s51, s51, %d' % (env('NPFE', 0) * MB))
    for p in range(env('NPFQ', 0) - env('NPFE', 0)):
        k.e('buffer_load_dwordx4 v[8:11], v6, s[36:39], s51 offen')
        k.e('s_add_u32 s51, s51, %d' % MB)
    if CPF:
        h = k.newlabel('pc')
        k.e('s_cmp_lg_u32 s3, 2')
        k.e('s_cbranch_scc1 %s' % lnc)
        k.e('s_cmp_ge_u32 s30, 64')
        k.e('s_cbranch_scc1 %s' % lnc)
        k.e('s_lshr_b32 s44, s30, 3')
        k.e('s_lshl_b32 s44, s44, 13')
        code_touch(k, 'L_qkv_entry', 'L_text_end', 's44', 36)
        k.label(lnc)
    if MP0 == 1:
        rest_issue(); rest_compute(0)
    if MP0 == 4: rest_compute(0)
    k.e('s_waitcnt vmcnt(0)')
    endpgm(k)
    k.label(lst)
    k.e("""
    s_lshl_b32 s44, s3, 12
    v_lshl_add_u32 v3, v1, 4, s44      ; wave*4096 + lane*16
    s_lshl_b32 s31, s30, 15            ; 16 rows * 2048
    s_waitcnt lgkmcnt(0)
    s_load_dwordx2 s[84:85], s[28:29], 0x%x
    """ % (WS_EPOCH + env('WSB', 0) * MB))
    srd(k, 32, 'x')
    if env('XDELAY', 0): k.e('s_waitcnt lgkmcnt(0)')
    for q in range(4): k.e('buffer_load_dwordx4 %s, v3, s[32:35], s31 offen offset:%d' % (vr(8 + 4 * q, 4), q * 1024))
    if MP0 == 2: rest_issue()
    NE = env('NPFE', 0)
    if NE:
        srd(k, 36, 'wqkv')
        k.e('s_lshl_b32 s51, s30, 13')
        for p in range(NE):
            k.e('buffer_load_dwordx4 v[128:131], v6, s[36:39], s51 offen')
            k.e('s_add_u32 s51, s51, %d' % MB)
    srd(k, 36, 'ws', WS_H, 4 * MB); srd(k, 40, 'ws', 0, 256 * KB)
    if env('HTOUCH', 0):
        srd(k, 96, 'ws', WS_FL, FLSZ)
        k.e('v_mov_b32 v126, 0')
        k.e('s_mov_b64 exec, 1')
        k.e('buffer_load_dword v127, v126, s[36:39], s31 offen')
        k.e('buffer_load_dword v127, v126, s[96:99], 0 offen offset:64')
        k.e('s_mov_b64 exec, -1')
        NE += 2
    set_flag(k, 's_lshr_b32 s100, s30, 3\ns_lshl_b32 s100, s100, 8\ns_and_b32 s101, s30, 7\ns_lshl_b32 s101, s101, 2\ns_add_u32 s100, s100, s101\ns_add_u32 s100, s100, %d' % FL_LN1)
    mark(k, 0)
    if RLN == 2: resets(132, True)
    k.e('s_waitcnt vmcnt(%d) lgkmcnt(0)' % (NE + (9 if MP0 == 2 else 0)))
    k.e('s_add_u32 s84, s84, 1')
    if MP0 == 3: rest_issue()
    X = 24
    for d in range(16): unpack(k, X + 2 * d, X + 2 * d + 1, 8 + d)
    MU = [56, 58]; VA = [60, 62]
    if env('SP1', 1):
        for r in range(2):
            stat_ops(k, X + 16 * r, 8 + 4 * r, 10 + 4 * r, True)
            k.e('v_add_f32 v%d, v%d, v%d' % (MU[r], 8 + 4 * r, 9 + 4 * r))
            k.e('v_add_f32 v%d, v%d, v%d' % (VA[r], 10 + 4 * r, 11 + 4 * r))
        red_lanes(k, MU + VA, [8, 9, 10, 11], rors=(8, 4, 2, 1))
        for r in range(2):
            k.e('v_mul_f32 v%d, %s, v%d' % (MU[r], hx(-1.0 / 1024), MU[r]))
            k.e('v_mul_f32 v%d, %s, v%d' % (VA[r], hx(1.0 / 1024), VA[r]))
            k.e('v_fma_f32 v%d, -v%d, v%d, v%d' % (VA[r], MU[r], MU[r], VA[r]))
            k.e('v_max_f32 v%d, 0, v%d' % (VA[r], VA[r]))
    else:
        for r in range(2):
            k.e(pk('add', 8 + 2 * r, X + 16 * r, X + 16 * r + 2))
            for e in range(4, 16, 2): k.e(pk('add', 8 + 2 * r, 8 + 2 * r, X + 16 * r + e))
            k.e('v_add_f32 v%d, v%d, v%d' % (MU[r], 8 + 2 * r, 9 + 2 * r))
        red_lanes(k, MU, [8, 9], rors=(8, 4, 2, 1))
        for r in range(2):
            k.e('v_mul_f32 v%d, %s, v%d' % (MU[r], hx(-1.0 / 1024), MU[r]))
            for e in range(0, 16, 2):
                k.e(pk('add', 8, X + 16 * r + e, (MU[r],)))
                k.e(pk('mul', 10, 8, 8) if e == 0 else pk('fma', 10, 8, 8, 10))
            k.e('v_add_f32 v%d, v10, v11' % VA[r])
        red_lanes(k, VA, [8, 9], rors=(8, 4, 2, 1))
        for r in range(2):
            k.e('v_mul_f32 v%d, %s, v%d' % (VA[r], hx(1.0 / 1024), VA[r]))
    for r in range(2):
        round_bf16_pair(k, MU[r], VA[r], 8)
        k.e('v_add_f32 v%d, %s, v%d' % (VA[r], hx(1e-5), VA[r]))
    round_bf16_pair(k, VA[0], VA[1], 8)
    for r in range(2): k.e('v_sqrt_f32 v%d, v%d' % (VA[r], VA[r]))
    k.e('s_nop 0')
    round_bf16_pair(k, VA[0], VA[1], 8)
    for r in range(2): k.e('v_rcp_f32 v%d, v%d' % (VA[r], VA[r]))
    def tag_setup():
        srd(k, 96, 'ws', WS_MODT, 64 * KB)
        k.e('v_lshlrev_b32 v81, 4, v1')
        k.e('s_lshl_b32 s100, s3, 11')
        k.e('v_add_u32 v81, s100, v81')
        k.e('v_lshlrev_b32 v80, 3, v1')
        k.e('s_lshl_b32 s100, s3, 10')
        k.e('s_add_u32 s100, s100, %d' % AUX_A)
        k.e('v_add_u32 v80, s100, v80')
        k.e('s_mov_b32 s101, 0x100000')
    def tag_loads():
        for q in range(4):
            k.e('s_mov_b32 s56, %d' % (q * 16384))
            for hh in range(2): k.e('buffer_load_dwordx4 %s, v81, s[96:99], s56 offen offset:%d sc1' % (vr(96 + 8 * q + 4 * hh, 4), hh * 1024))
    ET = env('ET', 0)
    if ET == 1:
        if RLN: resets(132, False)
        tag_setup(); tag_loads()
    k.e("""
    v_lshrrev_b32 v5, 1, v1
    v_mul_u32_u24 v5, 544, v5          ; cb*2*272
    v_and_b32 v7, 1, v1
    v_lshl_add_u32 v5, v7, 3, v5
    s_lshl_b32 s44, s3, 5
    v_add_u32 v5, s44, v5
    """)
    for r in range(2):
        x = X + 16 * r; pin = 8 + 8 * r
        for d in range(8): k.e(pk('add', x + 2 * d, x + 2 * d, (MU[r],)))
        for d in range(8): round_bf16_pair(k, x + 2 * d, x + 2 * d + 1, pin + d)
        for d in range(8): k.e(pk('mul', x + 2 * d, x + 2 * d, (VA[r],)))
        for d in range(8): k.e('v_cvt_pk_bf16_f32 v%d, v%d, v%d' % (pin + d, x + 2 * d, x + 2 * d + 1))
        for q, o in enumerate((0, 272, 64 * 272, 65 * 272)):
            k.e('ds_write_b64 v5, %s offset:%d' % (vr(pin + 2 * q, 2), o + 16 * r))
    k.e("""
    v_lshrrev_b32 v5, 4, v0            ; gi (p=0)
    v_and_b32 v7, 15, v0               ; row
    v_mul_u32_u24 v2, 272, v5
    v_lshl_add_u32 v2, v7, 4, v2       ; granule lds address
    v_lshlrev_b32 v4, 9, v5
    v_lshl_add_u32 v4, v7, 4, v4       ; global offset
    v_lshrrev_b32 v3, 1, v5
    v_lshlrev_b32 v3, 6, v3
    v_and_b32 v5, 1, v5
    v_lshl_add_u32 v3, v5, 4, v3
    v_add_u32 v3, %d, v3               ; table address: cb*64 + h*16
    s_lshr_b32 s44, s30, 1
    s_lshl_b32 s44, s44, 16
    s_and_b32 s45, s30, 1
    s_lshl_b32 s45, s45, 8
    s_add_u32 s44, s44, s45
    s_mov_b32 s48, %d
    s_cmp_lt_u32 s3, 4
    s_cselect_b32 s49, 0, 1.0
    s_waitcnt lgkmcnt(0)
    """ % (AUX_A, WS_MODP))
    if MP0 in (2, 3): rest_compute(0)
    if RLN == 1 and ET != 1: resets(132, False)
    if ET == 2: tag_setup(); tag_loads()
    mark(k, 1)
    if XT:
        srd(k, 36, 'ws', WS_N, 4 * MB)
        k.e('s_barrier')
        for p in range(4): k.e('ds_read_b128 %s, v2 offset:%d' % (vr(8 + 4 * p, 4), p * 32 * 272))
        for p in range(4):
            k.e('s_waitcnt lgkmcnt(%d)' % (3 - p))
            k.e('buffer_store_dwordx4 %s, v4, s[36:39], s44 offen%s' % (vr(8 + 4 * p, 4), WT))
            k.e('s_add_u32 s44, s44, 16384')
        mark(k, 3)
        signal(k, 'S')
        finish(k)
        k.need(128, AUX_A + 8192)
        return
    X = 24
    k.e('s_barrier')
    for p in range(4): k.e('ds_read_b128 %s, v2 offset:%d' % (vr(8 + 4 * p, 4), p * 32 * 272))
    for p in range(4):
        k.e('s_waitcnt lgkmcnt(%d)' % (3 - p))
        for d in range(4): unpack(k, X + 8 * p + 2 * d, X + 8 * p + 2 * d + 1, 8 + 4 * p + d)
    if TAGP:
        lp = k.newlabel('wf'); le = k.newlabel('we')
        if ET:
            k.e('s_branch %sc' % lp)
        else: tag_setup()
        k.label(lp)
        tag_loads()
        k.label(lp + 'c')
        k.e('s_mov_b64 s[50:51], 0')
        for n in range(8):
            k.e('s_waitcnt vmcnt(%d)' % (7 - n))
            k.e('v_cmp_ne_u64 vcc, s[84:85], %s' % vr(98 + 4 * n, 2))
            k.e('s_or_b64 s[50:51], s[50:51], vcc')
        k.e('s_cbranch_scc0 %s' % le)
        k.e('s_sub_u32 s101, s101, 1')
        k.e('s_sleep %d' % env('P0SLEEP', 1))
        k.e('s_cmp_lg_u32 s101, 0')
        k.e('s_cbranch_scc1 %s' % lp)
        k.label(le)
        mark(k, 2)
        for hh in range(2):
            b = 96 + 4 * hh
            k.e(pk('add', b, b, b + 8)); k.e(pk('add', b + 16, b + 16, b + 24)); k.e(pk('add', 64 + 2 * hh, b, b + 16))
    else:
        srd(k, 96, 'ws', WS_FL, FLSZ)
        lp = k.newlabel('wf'); le = k.newlabel('we')
        k.e("""
        s_lshl_b32 s100, s3, 11
        s_add_u32 s100, s100, %d
        v_lshlrev_b32 v%d, 7, v1
        v_add_u32 v80, %d, v6
        s_mov_b32 s101, 0x100000
        s_mov_b64 exec, 0xffff
        %s:
        buffer_load_dwordx2 %s, v%d, s[96:99], s100 offen sc1
        s_waitcnt vmcnt(0)
        v_cmp_ne_u64 vcc, s[84:85], %s
        s_sub_u32 s101, s101, 1
        s_nop 3
        s_cbranch_vccz %s
        s_mov_b64 exec, vcc
        s_sleep %d
        s_cmp_lg_u32 s101, 0
        s_cbranch_scc1 %s
        %s:
        s_mov_b64 exec, -1
        """ % (FL_MOD * 32, FV + 2, AUX_A, lp, vr(FV, 2), FV + 2, vr(FV, 2), le, env('P0SLEEP', 1), lp, le))
        mark(k, 2)
        for q in range(4):
            k.e('buffer_load_dwordx4 %s, v6, s[40:43], s48 offen sc1' % vr(64 + 4 * q, 4))
            k.e('s_add_u32 s48, s48, 8192')
        k.e('s_waitcnt vmcnt(0)')
        k.e(pk('add', 64, 64, 68)); k.e(pk('add', 66, 66, 70)); k.e(pk('add', 72, 72, 76)); k.e(pk('add', 74, 74, 78))
        k.e(pk('add', 64, 64, 72)); k.e(pk('add', 66, 66, 74))
    for d in range(2): round_bf16_pair(k, 64 + 2 * d, 65 + 2 * d, 68)
    for q in range(4): k.e('v_add_f32 v%d, s49, v%d' % (64 + q, 64 + q))
    for d in range(2): round_bf16_pair(k, 64 + 2 * d, 65 + 2 * d, 68)
    if TAGP:
        k.e('ds_write_b64 v80, v[64:65]')
        k.e('ds_write_b64 v80, v[66:67] offset:512')
    else: k.e('ds_write_b128 v80, v[64:67]')
    k.e('s_waitcnt lgkmcnt(0)')
    k.e('s_barrier')
    SC = 64; SH = 96
    for p in range(4):
        for sub in range(2):
            k.e('ds_read_b128 %s, v3 offset:%d' % (vr(SC + 8 * p + 4 * sub, 4), 4096 + p * 1024 + sub * 32))
            k.e('ds_read_b128 %s, v3 offset:%d' % (vr(SH + 8 * p + 4 * sub, 4), p * 1024 + sub * 32))
    for p in range(4):
        pin = 8 + 4 * p; x = X + 8 * p
        k.e('s_waitcnt lgkmcnt(%d)' % (12 - 4 * p))
        if env('NORND', 0):
            for d in range(4): k.e(pk('fma', x + 2 * d, x + 2 * d, SC + 8 * p + 2 * d, SH + 8 * p + 2 * d))
        else:
            for d in range(4): k.e(pk('mul', x + 2 * d, x + 2 * d, SC + 8 * p + 2 * d))
            for d in range(4): round_bf16_pair(k, x + 2 * d, x + 2 * d + 1, pin + d)
            for d in range(4): k.e(pk('add', x + 2 * d, x + 2 * d, SH + 8 * p + 2 * d))
        for d in range(4): k.e('v_cvt_pk_bf16_f32 v%d, v%d, v%d' % (pin + d, x + 2 * d, x + 2 * d + 1))
        k.e('buffer_store_dwordx4 %s, v4, s[36:39], s44 offen%s' % (vr(pin, 4), WT))
        k.e('s_add_u32 s44, s44, 16384')
    if RLN == 3: resets(132, False)
    mark(k, 3)
    signal(k, 'S')
    finish(k)
    k.need(128, AUX_A + 10240)

def log2(n):
    l = n.bit_length() - 1
    assert 1 << l == n
    return l
class G: pass

def k_gemm(k, c, GM, GN, bm_log2, xm_log2, bn, TM, TN, WM, WN, K, KS, NS, X, Y, pre, pre2, epi, swap=(), aux=None, auxsz=0, auxbase=None,
           pf=None, aux_end=None, side=None, wait=None, sig=None, dep='X', GU=1, RWD=1, post=None, frbase=None, selfsig=False, RR=0, early=None, JG=1, lazyfix=False, SOFT=0, own=None, ownlim=None, altmap=False, prelast=None, DEFER=0, dcols=None, auxpre=None, mid=None, accmap=None, cinit=False, geo=None, tailpre=None):
    g = G()
    name = c.name
    xt = X[0] == 'xt'
    M16 = name in os.environ.get('M16', 'qkv,wo,win,wsp,wout').split(',')
    if xt: X = ('xf',) + X[1:]
    ROLL = env('ROLL_' + name, env('ROLL', 0 if name == 'qkv' else 1))
    LAG = 2 if ROLL else 1
    NS = env('NS_' + name, NS + LAG - 1)
    mb = TM // WM // 32; nb = TN // WN // 32
    S = KS // 16
    xb = TM * KS * 2; yb = TN * KS * 2; STAGE = xb + yb
    nst = K // KS
    solo = c.first and c.last
    g.k = k; g.mb = mb; g.nb = nb; g.TM = TM; g.TN = TN; g.AUX = NS * STAGE if solo or auxbase is None else auxbase
    assert NS * STAGE <= g.AUX
    phase_begin(k, c)
    k.e('''
    v_and_b32 v1, 63, v0               ; lane
    s_mov_b32 s46, s3
    s_and_b32 s47, s2, 7               ; xcd
    s_lshr_b32 s48, s2, 3              ; idx
    s_and_b32 s30, s47, %d
    s_lshl_b32 s30, s30, %d
    s_and_b32 s49, s48, %d
    s_add_u32 s30, s30, s49            ; tm
    s_lshr_b32 s31, s47, %d
    s_mul_i32 s31, s31, %d
    s_lshr_b32 s49, s48, %d
    s_add_u32 s31, s31, s49            ; tn
    ''' % ((1 << xm_log2) - 1, bm_log2, (1 << bm_log2) - 1, xm_log2, bn, bm_log2))
    if altmap:
        k.e('''
        s_and_b32 s30, s47, 3
        s_lshl_b32 s30, s30, 3
        s_and_b32 s49, s48, 3
        s_lshl_b32 s49, s49, 1
        s_add_u32 s30, s30, s49
        s_bfe_u32 s49, s48, 0x10002
        s_add_u32 s30, s30, s49
        ''')
    if env('MAP_' + name, 0):
        k.e('''
        s_lshr_b32 s31, s47, 1
        s_mul_i32 s31, s31, 28
        s_add_u32 s31, s31, s48
        s_and_b32 s30, s47, 1
        s_lshl_b32 s30, s30, 3
        s_and_b32 s49, s31, 7
        s_add_u32 s30, s30, s49
        s_lshr_b32 s31, s31, 3
        ''')
    lcomp = 'L_%s_comp' % name
    set_flag(k, sig)
    if pf or side:
        k.e('s_cmp_ge_u32 s2, %d' % (GM * GN))
        k.e('s_cbranch_scc1 L_%s_pf' % name)
    k.e('s_cmp_ge_u32 s46, 4')
    k.e('s_cbranch_scc1 %s' % lcomp)
    nx = xb // 1024 // 4; ny = yb // 1024 // 4
    assert nx * 4096 == xb and ny * 4096 == yb
    VX = 8; VY = VX + nx
    g.LV = VY + ny
    if X[0] == 'xf':
        C = X[2]; ncb = C // 16
        assert S % nx == 0 or nx % S == 0
        k.e('s_mul_i32 s50, s30, %d' % (TM // 32 * ncb * 1024))
        k.e('s_mul_i32 s51, s46, %d' % nx)
        k.e('s_lshr_b32 s52, s51, %d' % log2(S))
        k.e('s_and_b32 s51, s51, %d' % (S - 1))
        k.e('s_mul_i32 s52, s52, %d' % (ncb * 1024))
        k.e('s_lshl_b32 s51, s51, 10')
        k.e('s_add_u32 s50, s50, s52')
        k.e('s_add_u32 s50, s50, s51')
        k.e('v_lshl_add_u32 v%d, v1, 4, s50' % VX)
        for j in range(1, nx):
            k.e('v_add_u32 v%d, %d, v%d' % (VX + j, (j // S) * ncb * 1024 + (j % S) * 1024, VX))
        xadv = S * 1024
    else:
        ld = X[2]
        assert nx % 2 == 0
        k.e('s_mul_i32 s50, s30, %d' % (TM * ld))
        k.e('s_mul_i32 s51, s46, %d' % (nx * 8 * ld))
        k.e('s_add_u32 s50, s50, s51')
        k.e('v_lshrrev_b32 v2, 3, v1')
        k.e('v_lshl_add_u32 v2, v2, %d, s50' % log2(ld))
        k.e('v_and_b32 v3, 7, v1')
        k.e('v_lshrrev_b32 v4, 4, v1')
        k.e('v_xor_b32 v5, v4, v3')
        k.e('v_lshl_add_u32 v%d, v5, 4, v2' % VX)
        k.e('v_xor_b32 v5, 64, v%d' % VX)
        k.e('v_add_u32 v%d, %d, v5' % (VX + 1, 8 * ld))
        for j in range(2, nx):
            k.e('v_add_u32 v%d, %d, v%d' % (VX + j, (j - j % 2) * 8 * ld, VX + j % 2))
        xadv = KS * 2
    k.e('''
    v_lshrrev_b32 v2, 4, v1            ; u
    v_bfe_u32 v3, v1, 2, 2             ; (i>>2)&3
    v_and_b32 v4, 3, v1                ; i&3
    ''')
    if Y[0] == 'w':
        ld = Y[2]
        NP = TN // 64
        assert ny % NP == 0
        if M16:
            k.e('v_and_b32 v5, 2, v2')
            k.e('v_xor_b32 v4, v4, v5')
        k.e('v_lshrrev_b32 v5, 1, v2')
        k.e('v_lshl_add_u32 v5, v5, 2, v3')
        k.e('v_mul_u32_u24 v5, %d, v5' % ld)
        k.e('v_and_b32 v6, 1, v2')
        k.e('v_lshl_add_u32 v5, v6, 6, v5')
        k.e('v_lshl_add_u32 v5, v4, 4, v5')
        if Y[3] == 'qkv': tstride, segs = 128, [0, 2048, 4096]
        elif Y[3]: tstride, segs = Y[3]
        else: tstride, segs = TN * 2, [p * 128 for p in range(NP)]
        k.e('s_mul_i32 s50, s46, %d' % (ny // NP * 8 * ld))
        k.e('s_mul_i32 s51, s31, %d' % tstride)
        k.e('s_add_u32 s50, s50, s51')
        k.e('v_add_u32 v5, s50, v5')
        for j in range(ny):
            k.e('v_add_u32 v%d, %d, v5' % (VY + j, (j // NP) * 8 * ld + segs[j % NP]))
        yadv = KS * ld
    else:
        C = Y[2]; ncb = C // 16
        NB = TN // 32
        assert ny == NB and S == 4
        if M16:
            k.e('v_and_b32 v5, 2, v2')
            k.e('v_xor_b32 v3, v3, v5')
        k.e('v_lshl_add_u32 v5, v2, 2, v4')
        k.e('v_lshlrev_b32 v5, 4, v5')
        k.e('v_lshl_add_u32 v5, v3, 9, v5')
        k.e('s_lshr_b32 s50, s46, 1')
        k.e('s_mul_i32 s50, s50, %d' % (ncb * 1024))
        k.e('s_and_b32 s51, s46, 1')
        k.e('s_lshl_b32 s51, s51, 8')
        k.e('s_add_u32 s50, s50, s51')
        k.e('s_mul_i32 s51, s31, %d' % (TN // 16 * 1024))
        k.e('s_add_u32 s50, s50, s51')
        k.e('v_add_u32 v%d, s50, v5' % VY)
        for j in range(1, ny):
            k.e('v_add_u32 v%d, %d, v%d' % (VY + j, j * 2048, VY))
        yadv = 2 * ncb * 1024
    k.e('s_mul_i32 s55, s46, %d' % (nx * 1024))
    k.e('s_mul_i32 s56, s46, %d' % (ny * 1024))
    if geo:
        k.e('s_add_u32 s55, s55, %d' % geo[2])
        if geo[0]: k.e('s_add_u32 s56, s56, %d' % geo[0])
    else: k.e('s_add_u32 s56, s56, %d' % xb)
    per = nx + ny
    assert per * NS <= 55 and nst >= 2 * NS
    k.e('s_waitcnt lgkmcnt(0)')
    mark(k, 0)
    if Y[0] == 'w': srd(k, 36, Y[1])
    else: srd(k, 36, 'ws', Y[1], 2048 * Y[2] * 2)
    if X[0] == 'xf': srd(k, 32, 'ws', X[1], 2048 * X[2] * 2)
    else: srd(k, 32, X[1])
    xfl = ' sc1' if X[0] == 'xf' else ''
    yfl = ' sc1' if Y[0] == 'z' else ''
    ntf = os.environ.get('NT_' + name, os.environ.get('NT', ''))
    if 'X' in ntf: xfl += ' nt'
    if 'Y' in ntf: yfl += ' nt'
    ownlds = name == 'wsp' and ZOWN and c.prev == 'win'
    OWN = own if (own and not c.first and (OWNF(name) or ownlds)) else None
    RW = env('RW_' + name, min(RWD, 2) if OWN else RWD); RC = env('RC_' + name, 1)
    assert nst % RW == 0
    if RW > 1:
        k.e('s_mul_i32 s54, s31, %d' % RC)
        k.e('s_add_u32 s54, s54, s30')
    if OWN:
        assert RW <= 2
        k.e(OWN)
        k.e('s_and_b32 s54, s54, 1' if RW > 1 else 's_mov_b32 s54, 0')
    out = []
    RB = 48
    dyn = [None]
    def soff(st, adv):
        if OWN:
            if st < 2: k.e('s_add_u32 s57, s68, %d' % st)
            else:
                k.e('s_cmp_le_u32 s68, %d' % (st - 2))
                k.e('s_cselect_b32 s57, %d, %d' % (st, st - 2))
                k.e('s_xor_b32 s57, s57, s54')
            k.e('s_mul_i32 s57, s57, %d' % adv)
        elif dyn[0] is not None:
            assert RW in (1, 2, 4)
            if RW > 1:
                k.e('s_add_u32 s57, s54, %d' % st)
                k.e('s_and_b32 s57, s57, %d' % (RW - 1))
                k.e('s_add_u32 s57, s57, s59')
                k.e('s_add_u32 s57, s57, %d' % (st // RW * RW))
            else: k.e('s_add_u32 s57, s59, %d' % st)
            k.e('s_mul_i32 s57, s57, %d' % adv)
        elif RW > 1:
            k.e('s_add_u32 s57, s54, %d' % st)
            k.e('s_and_b32 s57, s57, %d' % (RW - 1))
            k.e('s_mul_i32 s57, s57, %d' % adv)
            if st // RW: k.e('s_add_u32 s57, s57, %d' % (st // RW * RW * adv))
        else: k.e('s_mov_b32 s57, %d' % (st * adv))
    def opinfo(op): return (nx, 's55', VX, 32, xadv, xfl) if op == 'X' else (ny, 's56', VY, 36, yadv, yfl)
    def throttle(n):
        if len(out) + n > 60:
            k.e('s_waitcnt vmcnt(40)'); del out[:len(out) - 40]
    def iss(op, st):
        slot = (st % NS) * STAGE
        if geo: slot = (st % geo[3]) * xb if op == 'X' else (st % geo[1]) * yb
        n, base, V, sd, adv, fl = opinfo(op)
        if op == ind and st in Rset:
            if ('r', st) in out:
                last = max(i for i, t in enumerate(out) if t == ('r', st))
                k.e('s_waitcnt vmcnt(%d)' % (len(out) - 1 - last)); del out[:last + 1]
            r0 = RB + Rset.index(st) * n * 4
            for j in range(n):
                o = slot + j * 1024
                k.e('ds_write_b128 v%d, %s offset:%d' % (44 + o // 65536, vr(r0 + 4 * j, 4), o % 65536))
            return
        throttle(n)
        soff(st, adv)
        for j in range(n):
            k.e('s_add_u32 m0, %s, %d' % (base, slot + j * 1024))
            k.e('s_nop 0')
            k.e('buffer_load_dwordx4 v%d, %s, s57 offen%s lds' % (V + j, sr(sd), fl))
            out.append(st)
    def issr(st):
        n, base, V, sd, adv, fl = opinfo(ind)
        throttle(n)
        soff(st, adv)
        r0 = RB + Rset.index(st) * n * 4
        for j in range(n):
            k.e('buffer_load_dwordx4 %s, v%d, %s, s57 offen' % (vr(r0 + 4 * j, 4), V + j, sr(sd)))
            out.append(('r', st))
    def wait_stage(st):
        lg = ' lgkmcnt(%d)' % min(15, opinfo(ind)[0] * len([r_ for r_ in Rset if st < r_ < st + NS - LAG])) if st in Rset else ''
        if st in out:
            last = max(i for i, t in enumerate(out) if t == st)
            k.e('s_waitcnt vmcnt(%d)%s' % (len(out) - 1 - last, lg))
            del out[:last + 1]
        elif lg: k.e('s_waitcnt' + lg)
    I0 = env('I0_' + name, 2)
    ind = 'Y' if dep == 'X' else 'X'
    fusedw = wait and not c.first and not env('WLATE_' + name, 0)
    R = env('RR_' + name, RR) if fusedw else 0
    Rset = sorted(set(NS + (2 * i + 1) * (nst - NS) // (2 * R) for i in range(R))) if R else []
    if Rset:
        assert RB + len(Rset) * opinfo(ind)[0] * 4 <= 256
        k.need(RB + len(Rset) * opinfo(ind)[0] * 4, 0)
        k.e('v_lshl_add_u32 v44, v1, 4, %s' % opinfo(ind)[1])
        k.e('v_add_u32 v45, 0x10000, v44')
    if xt:
        DX = env('DX', 4); NR = 64; TB = NR + DX * 8; TX = TB + 32
        assert nx == 2 and S == 2
        k.need(TX + 16, 0)
        k.e('v_lshl_add_u32 v44, v1, 4, s55')
        k.e('v_add_u32 v45, 0x10000, v44')
        k.e('v_lshrrev_b32 v46, 5, v1')
        k.e('v_lshlrev_b32 v46, 4, v46')
        k.e('v_add_u32 v46, %d, v46' % AUX_A)
        def ldn(st):
            soff(st, xadv)
            for j in range(2):
                k.e('buffer_load_dwordx4 %s, v%d, s[32:35], s57 offen sc1' % (vr(NR + (st % DX) * 8 + 4 * j, 4), VX + j))
                out.append(('n', st))
        TW = TX + 16
        k.need(TW + 8, 0)
        def tabrd(st):
            soff(st, 128)
            k.e('v_add_u32 v47, s57, v46')
            for j in range(2):
                for sub in range(2):
                    k.e('ds_read_b128 %s, v47 offset:%d' % (vr(TB + 16 * j + 4 * sub, 4), 4096 + j * 64 + sub * 32))
                    k.e('ds_read_b128 %s, v47 offset:%d' % (vr(TB + 16 * j + 8 + 4 * sub, 4), j * 64 + sub * 32))
        def xform(st):
            if ('n', st) in out:
                last = max(i for i, t in enumerate(out) if t == ('n', st))
                k.e('s_waitcnt vmcnt(%d)' % (len(out) - 1 - last)); del out[:last + 1]
            r0 = NR + (st % DX) * 8
            for d in range(8): unpack(k, TX + 2 * d, TX + 2 * d + 1, r0 + d)
            if st + DX < nst: ldn(st + DX)
            k.e('s_waitcnt lgkmcnt(0)')
            for j in range(2):
                for e in range(8): k.e('v_fma_f32 v%d, v%d, v%d, v%d' % (TX + 8 * j + e, TX + 8 * j + e, TB + 16 * j + e, TB + 16 * j + 8 + e))
            for j in range(2):
                for d in range(4): k.e('v_cvt_pk_bf16_f32 v%d, v%d, v%d' % (TW + 4 * j + d, TX + 8 * j + 2 * d, TX + 8 * j + 2 * d + 1))
                o = (st % NS) * STAGE + j * 1024
                k.e('ds_write_b128 v%d, %s offset:%d' % (44 + o // 65536, vr(TW + 4 * j, 4), o % 65536))
            if st + 1 < nst: tabrd(st + 1)
        for st in range(NS): iss('Y', st)
        k.e('s_barrier')
        mark(k, 1)
        out.extend(['p'] * 4)
        mod_table(k, 24, between=lambda: [ldn(st) for st in range(DX)], nb=2 * DX)
        del out[:len(out) - 2 * DX]
        if env('XPRIO', 0): k.e('s_setprio %d' % env('XPRIO', 0))
        XL = env('XL', 2)
        assert XL >= 2
        tabrd(0)
        for st in range(XL): xform(st)
        def capture(fn):
            n0 = len(k.lines); fn(); got = k.lines[n0:]; del k.lines[n0:]
            return got
        def step(st):
            lg = ' lgkmcnt(0)' if st + XL > nst else ''
            if st in out:
                last = max(i for i, t in enumerate(out) if t == st)
                k.e('s_waitcnt vmcnt(%d)%s' % (len(out) - 1 - last, lg)); del out[:last + 1]
            elif lg: k.e('s_waitcnt' + lg)
            if st == 0: mark(k, 2)
            k.e('s_barrier')
            sx = st + XL; sy = st + NS - LAG
            doy = st >= LAG and sy < nst
            if sx >= nst:
                if doy: iss('Y', sy)
                return
            if ('n', sx) in out:
                last = max(i for i, t in enumerate(out) if t == ('n', sx))
                nw = 's_waitcnt vmcnt(%d)' % (len(out) - 1 - last + (1 if doy else 0)); del out[:last + 1]
            else: nw = None
            yl = capture(lambda: iss('Y', sy)) if doy else []
            yp = []; cur = []
            for l in yl:
                if 's_nop' in l: continue
                cur.append(l)
                if 'buffer_load' in l: yp.append(cur); cur = []
            nl = capture(lambda: ldn(sx + DX)) if (sx + DX < nst or dyn[0] is not None) else []
            nl = [l.replace('s57', 's58') for l in nl]
            npc = [nl[:-1], nl[-1:]] if nl else [[], []]
            r0 = NR + (sx % DX) * 8
            un = capture(lambda: [unpack(k, TX + 2 * d, TX + 2 * d + 1, r0 + d) for d in range(8)])
            fm = ['    v_fma_f32 v%d, v%d, v%d, v%d' % (TX + 8 * j + e, TX + 8 * j + e, TB + 16 * j + e, TB + 16 * j + 8 + e) for j in range(2) for e in range(8)]
            def put(piece):
                if len(piece) >= 2 and 'm0' in piece[-2]: piece = piece[:-1] + ['    s_nop 0', piece[-1]]
                k.lines.extend(piece)
            if yp: put(yp[0])
            if nw: k.e(nw)
            k.lines.extend(un[:8])
            if yp: put(yp[1])
            k.lines.extend(un[8:])
            if yp: put(yp[2])
            k.e('s_waitcnt lgkmcnt(0)')
            k.lines.extend(fm[:10])
            k.lines.extend(npc[0])
            k.lines.extend(fm[10:])
            if sx + 1 < nst: tabrd(sx + 1)
            k.lines.extend(npc[1])
            for j in range(2):
                for d in range(4): k.e('v_cvt_pk_bf16_f32 v%d, v%d, v%d' % (TW + 4 * j + d, TX + 8 * j + 2 * d, TX + 8 * j + 2 * d + 1))
                o = (sx % NS) * STAGE + j * 1024
                k.e('ds_write_b128 v%d, %s offset:%d' % (44 + o // 65536, vr(TW + 4 * j, 4), o % 65536))
        assert NS == 4 and DX == 4 and XL == 2 and LAG == 1 and nst == 32
        for st in range(5): step(st)
        k.e('s_mov_b32 s59, 0')
        k.label('L_%s_xl' % name)
        dyn[0] = 0
        before = list(out)
        for st in range(5, 9): step(st)
        dyn[0] = None
        sh = lambda t, d: (t[0], t[1] + d) if isinstance(t, tuple) else t + d
        assert [sh(t, 4) for t in before] == out, (before, out)
        k.e('s_add_u32 s59, s59, 4')
        k.e('s_cmp_lt_u32 s59, 24')
        k.e('s_cbranch_scc1 L_%s_xl' % name)
        out[:] = [sh(t, 20) for t in out]
        for st in range(29, 32): step(st)
    elif wait and not c.first and env('WLATE_' + name, 0):
        handoff(k, wait[0], wait[1])
    if xt: pass
    elif geo:
        yb0, NSY, xb0, NSX, NPRE, prelim = geo
        assert fusedw and dep == 'X' and not aux and not aux_end and not OWN
        if NPRE and prelim:
            l = k.newlabel('hp')
            k.e('s_cmp_lt_u32 s2, %d' % prelim); k.e('s_cbranch_scc1 %s' % l)
            for st in range(NPRE): iss('Y', st)
            k.label(l)
        WP = env('WPRE_' + name, NSY)
        for st in range(NPRE, WP): iss('Y', st)
        if auxpre: out.extend(['aux'] * auxpre(g))
        handoff(k, wait[0], wait[1])
        mark(k, 1)
        for st in range(I0): iss('X', st)
        wait_stage(0); mark(k, 2); k.e('s_barrier')
        for st in range(I0, NSX): iss('X', st)
        for st in range(max(WP, NPRE), NSY): iss('Y', st)
        for st in range(1, nst):
            wait_stage(st); k.e('s_barrier')
            if st >= LAG:
                if st + NSX - LAG < nst: iss('X', st + NSX - LAG)
                if st + NSY - LAG < nst: iss('Y', st + NSY - LAG)
    elif fusedw:
        WPRE = env('WPRE_' + name, 2 if name == 'win' else NS)
        iss0 = iss
        def iss(op, st):
            if op == dep and WPRE <= st < NS: iss0(ind, st)
            iss0(op, st)
        for st in range(WPRE): iss(ind, st)
        for st in Rset: issr(st)
        if auxpre: out.extend(['aux'] * auxpre(g))
        if ownlds and LPW:
            k.e('s_barrier')
            handoff(k, wait[0], wait[1], role='W')
            mark(k, 1)
            for st in range(2, NS): iss(dep, st)
            wait_stage(0); mark(k, 2); k.e('s_barrier')
        elif ownlds:
            handoff(k, wait[0], wait[1])
            mark(k, 1)
            I1 = env('I1_' + name, 3)
            for st in range(2, I1): iss(dep, st)
            wait_stage(0); mark(k, 2); k.e('s_barrier')
            for st in range(I1, NS): iss(dep, st)
        elif OWN:
            l1 = k.newlabel('no'); l2 = k.newlabel('no')
            k.e('s_barrier')
            if ownlim:
                k.e('s_cmp_ge_u32 s2, %d' % ownlim); k.e('s_cbranch_scc1 %s' % l1)
            n0 = len(k.lines)
            iss(dep, 0); iss(dep, 1)
            dup = k.lines[n0:]
            k.label(l1)
            handoff(k, wait[0], wait[1])
            mark(k, 1)
            if ownlim:
                k.e('s_cmp_lt_u32 s2, %d' % ownlim); k.e('s_cbranch_scc1 %s' % l2)
                k.lines.extend(dup)
                k.label(l2)
            I1 = env('I1_' + name, 3)
            for st in range(2, I1): iss(dep, st)
            wait_stage(0); mark(k, 2); k.e('s_barrier')
            for st in range(I1, NS): iss(dep, st)
        else:
            handoff(k, wait[0], wait[1])
            mark(k, 1)
            for st in range(I0): iss(dep, st)
            wait_stage(0); mark(k, 2); k.e('s_barrier')
            for st in range(I0, NS): iss(dep, st)
    else:
        for st in range(I0): iss(ind, st); iss(dep, st)
        mark(k, 1)
        wait_stage(0); mark(k, 2); k.e('s_barrier')
        for st in range(I0, NS): iss(ind, st); iss(dep, st)
    FS = bool(Rset) or env('STATIC', 0) or xt or geo
    if FS and not xt and not geo:
        for st in range(1, nst):
            if st == nst - 1: k.e('s_waitcnt vmcnt(0) lgkmcnt(0)')
            else: wait_stage(st)
            if st == nst - 1 and aux_end: aux_end(g)
            k.e('s_barrier')
            nx_st = st + NS - LAG
            if st >= LAG and nx_st < nst:
                iss(dep, nx_st); iss(ind, nx_st)
                if nx_st == nst - 1 and aux:
                    out.extend(['aux'] * aux(g))
    for st in range(1, NS if not FS else 0):
        wait_stage(st); k.e('s_barrier')
        if st >= LAG: iss('Y', st + NS - LAG); iss('X', st + NS - LAG)
    if not FS:
        s0 = 2 * NS - LAG
        k.e('s_add_u32 s60, s55, %d' % (NS * STAGE))
        k.e('s_add_u32 s55, s55, %d' % ((s0 % NS) * STAGE))
        k.e('s_add_u32 s56, s56, %d' % ((s0 % NS) * STAGE))
        k.e('s_mov_b32 s57, %d' % (s0 * xadv))
        k.e('s_mov_b32 s58, %d' % (s0 * yadv))
        k.e('s_mov_b32 s59, %d' % s0)
        ll = 'L_%s_lloop' % name
        k.label(ll)
        if OWN:
            k.e('s_sub_u32 s57, s59, 2')
            k.e('s_cmp_le_u32 s68, s57')
            k.e('s_cselect_b32 s57, s59, s57')
            k.e('s_xor_b32 s57, s57, s54')
            k.e('s_mul_i32 s58, s57, %d' % yadv)
            k.e('s_mul_i32 s57, s57, %d' % xadv)
        elif RW > 1:
            k.e('s_add_u32 s57, s54, s59')
            k.e('s_and_b32 s57, s57, %d' % (RW - 1))
            k.e('s_andn2_b32 s58, s59, %d' % (RW - 1))
            k.e('s_or_b32 s57, s57, s58')
            k.e('s_mul_i32 s58, s57, %d' % yadv)
            k.e('s_mul_i32 s57, s57, %d' % xadv)
        k.e('s_waitcnt vmcnt(%d)' % (per * (NS - 1 - LAG)))
        k.e('s_barrier')
        for j in range(ny):
            k.e('s_add_u32 m0, s56, %d' % (j * 1024))
            k.e('s_nop 0')
            k.e('buffer_load_dwordx4 v%d, s[36:39], s58 offen%s lds' % (VY + j, yfl))
        for j in range(nx):
            k.e('s_add_u32 m0, s55, %d' % (j * 1024))
            k.e('s_nop 0')
            k.e('buffer_load_dwordx4 v%d, s[32:35], s57 offen%s lds' % (VX + j, xfl))
        k.e('s_add_u32 s57, s57, %d' % xadv)
        k.e('s_add_u32 s58, s58, %d' % yadv)
        k.e('s_add_u32 s55, s55, %d' % STAGE)
        k.e('s_add_u32 s56, s56, %d' % STAGE)
        k.e('s_cmp_eq_u32 s55, s60')
        k.e('s_cselect_b32 s61, %d, 0' % (NS * STAGE))
        k.e('s_sub_u32 s55, s55, s61')
        k.e('s_sub_u32 s56, s56, s61')
        k.e('s_add_u32 s59, s59, 1')
        k.e('s_cmp_lt_u32 s59, %d' % nst)
        k.e('s_cbranch_scc1 %s' % ll)
        naux = aux(g) if aux else 0
        if CPF >= 2:
            k.e('s_and_b32 s44, s46, %d' % (env('CPW', 2) - 1))
            k.e('s_lshl_b32 s44, s44, 13')
            if env('CPN', 4):
                l = k.newlabel('ct')
                k.e('s_cmp_ge_u32 s2, %d' % (8 * env('CPN', 4))); k.e('s_cbranch_scc1 %s' % l)
                code_touch(k, 'L_%s_epi' % name, 'L_text_end', 's44', 60)
                k.label(l)
            else:
                code_touch(k, 'L_%s_epi' % name, 'L_text_end', 's44', 60)
                naux += 1
        if tailpre: tailpre[0](k)
        for st in range(nst - NS + LAG, nst):
            k.e('s_waitcnt vmcnt(%d)' % (per * (nst - st - 1) + naux if (st < nst - 1 or tailpre) else 0))
            if st == nst - 1 and aux_end: aux_end(g)
            k.e('s_barrier')
            if tailpre: naux += tailpre[1](k, st - (nst - NS + LAG))
    LE = env('LE_' + name, 2 if name in ('wo', 'wsp') else 0)
    g.LE = 0 if c.last else LE
    if mid: mid(g)
    if not c.last and not LE: k.e('s_barrier')
    if post: post(g)
    if not c.last and LE: k.e('s_barrier')
    signal(k)
    endpgm(k)
    k.label(lcomp)
    HF = env('HFIRST', 0) and wait and not xt and not (ownlds and LPW)
    if HF: handoff(k, wait[0], wait[1], role='C')
    k.e('s_setprio 1')
    k.e('s_sub_u32 s46, s46, 4')
    k.e('s_lshr_b32 s50, s46, %d' % log2(WN))
    k.e('s_and_b32 s51, s46, %d' % (WN - 1))
    ACC = 8
    nacc = mb * nb * 16
    FR = frbase if frbase else ACC + nacc
    GU = env('GU_' + name, GU)
    g.acc = lambda i, j: ACC + (accmap(i, j) if accmap else i * nb + j) * 16
    g.M16 = M16
    k.e('v_and_b32 v3, 31, v1')
    k.e('v_lshrrev_b32 v4, 5, v1')
    if M16:
        JG = env('JG_' + name, JG)
        KSN = KS // 32; NU = KSN * JG; nbj = nb // JG
        XA = FR + max(16 * mb + 16 * nbj, 72 if name == 'win' else 0)
        nxa = KSN if X[0] == 'rm' else 1
        nya = 2
    else:
        NU = S // GU
        assert NU % 2 == 0
        fs1 = (mb + nb) * 4
        fsz = fs1 * GU
        XA = FR + 2 * fsz
        nxa = S if X[0] == 'rm' else 1
        nya = 1
    XB = XA; XC = XA + nxa; YB = XC + nxa; YC = YB + nya
    g.free = YC + nya
    g.FR = FR
    NP = TN // 64; NB = TN // 32
    if Y[0] == 'w':
        if Y[3] == 'qkv': ywave = 's_lshl_b32 s52, s51, 8'
        else:
            assert nb % 2 == 0
            ywave = 's_mul_i32 s52, s51, %d' % (nb // 2 * 1024)
        def yblk(j): return j * 1024 if Y[3] == 'qkv' else (j // 2) * 1024 + (j % 2) * 256
    else: ywave = 's_mul_i32 s52, s51, %d' % (nb * 1024)
    if M16:
        k.e('v_and_b32 v5, 15, v1')
        k.e('v_lshrrev_b32 v6, 4, v1')
        if X[0] == 'xf':
            k.e('s_mul_i32 s52, s50, %d' % (mb * S * 1024))
            if geo: k.e('s_add_u32 s52, s52, %d' % geo[2])
            k.e('v_lshl_add_u32 v7, v5, 4, s52')
            k.e('v_lshl_add_u32 v%d, v6, 9, v7' % XB)
        else:
            k.e('s_mul_i32 s52, s50, %d' % (mb * 4096))
            k.e('v_lshl_add_u32 v2, v5, 7, s52')
            k.e('v_lshrrev_b32 v5, 1, v5')
            for ks in range(KSN):
                k.e('v_add_u32 v7, %d, v6' % (4 * ks))
                k.e('v_xor_b32 v7, v7, v5')
                k.e('v_lshl_add_u32 v%d, v7, 4, v2' % (XB + ks))
        k.e('v_mul_u32_u24 v5, %d, v4' % (2 * NP * 1024 if Y[0] == 'w' else NB * 1024))
        k.e('v_and_b32 v6, 1, v6')
        k.e('v_lshl_add_u32 v5, v6, 9, v5')
        k.e('v_lshl_add_u32 v5, v6, %d, v5' % (5 if Y[0] == 'w' else 7))
        k.e('v_bfe_u32 v6, v1, 2, 2')
        k.e('v_lshl_add_u32 v5, v6, %d, v5' % (6 if Y[0] == 'w' else 4))
        k.e('v_bfe_u32 v6, v1, 1, 1')
        k.e('v_lshl_add_u32 v5, v6, %d, v5' % (3 if Y[0] == 'w' else 6))
        k.e('v_and_b32 v6, 1, v1')
        k.e('v_lshl_add_u32 v5, v6, %d, v5' % (4 if Y[0] == 'w' else 3))
        k.e(ywave)
        k.e('s_add_u32 s52, s52, %d' % (geo[0] if geo else xb))
        k.e('v_add_u32 v%d, s52, v5' % YB)
        k.e('v_xor_b32 v%d, %d, v%d' % (YB + 1, 32 if Y[0] == 'w' else 128, YB))
    else:
        if X[0] == 'xf':
            k.e('s_mul_i32 s52, s50, %d' % (mb * S * 1024))
            k.e('v_lshl_add_u32 v%d, v1, 4, s52' % XB)
        else:
            assert KS == 64
            k.e('s_mul_i32 s52, s50, %d' % (mb * 4096))
            k.e('v_bfe_u32 v5, v3, 1, 3')
            k.e('v_lshl_add_u32 v6, v3, 7, s52')
            for ss in range(S):
                k.e('v_add_u32 v7, %d, v4' % (2 * ss))
                k.e('v_xor_b32 v7, v7, v5')
                k.e('v_lshl_add_u32 v%d, v7, 4, v6' % (XB + ss))
        k.e("""
        v_lshlrev_b32 v5, 9, v4            ; h*512
        v_bfe_u32 v6, v1, 2, 2             ; r
        v_lshl_add_u32 v5, v6, %d, v5
        v_bfe_u32 v6, v1, 4, 1             ; G&1
        v_lshl_add_u32 v5, v6, %d, v5
        v_bfe_u32 v6, v1, 1, 1             ; c>>1
        v_and_b32 v7, 1, v1                ; c&1
        """ % ((6, 5) if Y[0] == 'w' else (4, 7)))
        if Y[0] == 'w':
            k.e('v_lshl_add_u32 v5, v6, 4, v5')
            k.e('v_lshl_add_u32 v5, v7, 3, v5')
        else:
            k.e('v_lshl_add_u32 v5, v7, 6, v5')
            k.e('v_lshl_add_u32 v5, v6, 3, v5')
        k.e(ywave)
        k.e('s_add_u32 s52, s52, %d' % xb)
        k.e('v_add_u32 v%d, s52, v5' % YB)
    k.e('s_waitcnt lgkmcnt(0)')
    mark(k, 0)
    pre(g)
    if M16:
        def xr16(sp, ks, i, rh): return FR + (sp[0] if isinstance(sp, tuple) else (sp * KSN + ks) % 2) * 8 * mb + (2 * i + rh) * 4
        def yr16(sp, u, j, t): return FR + 16 * mb + (sp[1] if isinstance(sp, tuple) else (sp * NU + u) % 2) * 8 * nbj + ((j % nbj) * 2 + t) * 4
        def cols(jg, sp): return sp[2] if isinstance(sp, tuple) else range(jg * nbj, (jg + 1) * nbj)
        def reads(u, sp=0):
            ks = u // JG; jg = u % JG
            xr = []; yr = []
            if jg == 0 or isinstance(sp, tuple):
                for i in range(mb):
                    for rh in range(2):
                        if X[0] == 'xf': xr.append('ds_read_b128 %s, v%d offset:%d' % (vr(xr16(sp, ks, i, rh), 4), XC, (i * S + 2 * ks) * 1024 + rh * 256))
                        else: xr.append('ds_read_b128 %s, v%d offset:%d' % (vr(xr16(sp, ks, i, rh), 4), XC + ks, i * 4096 + rh * 2048))
            for j in cols(jg, sp):
                for t in range(2):
                    for rd in range(2):
                        o = (4 * ks + rd) * NP * 1024 + yblk(j) if Y[0] == 'w' else (2 * ks * NB + j) * 1024 + rd * 256
                        yr.append('ds_read_b64_tr_b16 %s, v%d offset:%d' % (vr(yr16(sp, u, j, t) + 2 * rd, 2), YC + t, o))
            return xr[:1] + yr[:2] + xr[1:] + yr[2:]
        def mfmas(u, first, sp=0):
            ks = u // JG; jg = u % JG
            out = []
            for j in cols(jg, sp):
                for t in range(2):
                    for i in range(mb):
                        for rh in range(2):
                            x_ = xr16(sp, ks, i, rh); y_ = yr16(sp, u, j, t)
                            if j in swap: a = g.acc(i, j) + 8 * rh + 4 * t; p, q = x_, y_
                            else: a = g.acc(i, j) + 8 * t + 4 * rh; p, q = y_, x_
                            out.append('v_mfma_f32_16x16x32_bf16 %s, %s, %s, %s' % (vr(a, 4), vr(p, 4), vr(q, 4), '0' if first and ks == 0 and not cinit else vr(a, 4)))
            return out
        def fix(i, j):
            a = g.acc(i, j)
            for hb in range(2):
                for e in range(4):
                    k.e('%s v%d, v%d' % ('v_permlane32_swap_b32' if j in swap else 'v_permlane16_swap_b32', a + 8 * hb + e, a + 8 * hb + 4 + e))
    else:
        def yoff(j, ss, rd):
            return (2 * ss + rd) * NP * 1024 + yblk(j) if Y[0] == 'w' else (ss * NB + j) * 1024 + rd * 256
        def xf(ss, i): return FR + ((ss // GU) % 2) * fsz + (ss % GU) * fs1 + i * 4
        def yf(ss, j): return FR + ((ss // GU) % 2) * fsz + (ss % GU) * fs1 + (mb + j) * 4
        def reads1(ss):
            xr = []; yr = []
            for i in range(mb):
                if X[0] == 'xf':
                    xr.append('ds_read_b128 %s, v%d offset:%d' % (vr(xf(ss, i), 4), XC, (i * S + ss) * 1024))
                else:
                    xr.append('ds_read_b128 %s, v%d offset:%d' % (vr(xf(ss, i), 4), XC + ss, i * 4096))
            for j in range(nb):
                for rd in range(2):
                    yr.append('ds_read_b64_tr_b16 %s, v%d offset:%d' % (vr(yf(ss, j) + 2 * rd, 2), YC, yoff(j, ss, rd)))
            return [xr[0]] + yr[:2] + xr[1:] + yr[2:]
        def reads(u, sp=0): return [r for ss in range(u * GU, (u + 1) * GU) for r in reads1(ss)]
        def mfmas(u, first, sp=0):
            out = []
            for ss in range(u * GU, (u + 1) * GU):
                for j in range(nb):
                    for i in range(mb):
                        a = g.acc(i, j)
                        c_ = '0' if first and ss == 0 else vr(a, 16)
                        p, q = (xf(ss, i), yf(ss, j)) if j in swap else (yf(ss, j), xf(ss, i))
                        out.append('v_mfma_f32_32x32x16_bf16 %s, %s, %s, %s' % (vr(a, 16), vr(p, 4), vr(q, 4), c_))
            return out
        def fix(i, j): pass
    g.fix = fix
    def setaddr():
        for t in range(nxa): k.e('v_add_u32 v%d, s53, v%d' % (XC + t, XB + t))
        for t in range(nya): k.e('v_add_u32 v%d, s%d, v%d' % (YC + t, 52 if geo else 53, YB + t))
    RPGV = [env('RPG2_' + name, (5 if mb * nb == 2 else (2 if name == 'qkv' else 3)) * (1 if M16 else 2))]
    import re
    def regs_of(txt):
        return [(int(a_), int(b_)) for a_, b_ in re.findall(r'v\[(\d+):(\d+)\]', txt)]
    def advance():
        n0 = len(k.lines)
        if geo:
            k.e('s_add_u32 s53, s53, %d' % xb)
            k.e('s_and_b32 s53, s53, %d' % (geo[3] * xb - 1))
            k.e('s_add_u32 s52, s52, %d' % yb)
            k.e('s_cmp_eq_u32 s52, %d' % (geo[1] * yb))
            k.e('s_cselect_b32 s52, 0, s52')
        else:
            k.e('s_add_u32 s53, s53, %d' % STAGE)
            k.e('s_cmp_eq_u32 s53, %d' % (NS * STAGE))
            k.e('s_cselect_b32 s53, 0, s53')
        setaddr()
        got = [l.strip() for l in k.lines[n0:]]; del k.lines[n0:]
        return got
    EARLY = env('EARLYADV', 1)
    RM = [ROLL]
    def unit(u, first, rs, sp, extra):
        ms = mfmas(u, first, sp)
        prev = reads(u, sp)
        dst = [regs_of(r)[0] for r in prev]
        ROLL = RM[0]
        covered = -1 if ROLL else len(prev); issued = 0; xi = 0
        WMAX = env('WMAX_' + name, env('WMAX', 9))
        nspread = len(ms) - (min(len(extra) // 2 + 1, len(ms) // 3) if extra else 0)
        for mi, m in enumerate(ms):
            ops = regs_of(m)[1:3]
            need = max(i for i, d in enumerate(dst) if any(o[0] <= d[0] <= o[1] for o in ops))
            if need > covered:
                n = min(len(prev) - 1 - need + issued, WMAX)
                k.e('s_waitcnt lgkmcnt(%d)' % n)
                covered = len(prev) - 1 - (n - issued) if n >= issued else len(prev) - 1
            k.e(m)
            e = min(len(rs), -(-len(rs) * (mi + 1) // nspread) if ROLL == 1 else -(-RPGV[0] * (mi + 1) // 2))
            if issued == len(rs):
                for _ in range(2):
                    if xi < len(extra): k.e(extra[xi]); xi += 1
            while issued < e: k.e(rs[issued]); issued += 1
        while issued < len(rs): k.e(rs[issued]); issued += 1
        while xi < len(extra): k.e(extra[xi]); xi += 1
    def stage(first, last, sp, tail=()):
        for u in range(NU):
            if u == NU - 1 and not last and not EARLY:
                for x in advance(): k.e(x)
            if u < NU - 1: rs = reads(u + 1, sp)
            elif last: rs = []
            else: rs = reads(0, sp ^ 1)
            extra = []
            if EARLY and not last and u == (NU - 2) % NU: extra = advance()
            if u == NU - 1: extra = extra + list(tail)
            if not RM[0] or (last and u == NU - 1 and not c.last and not LE): k.e('s_waitcnt lgkmcnt(0)')
            if u == NU - 1 and not (last and (c.last or LE)): k.e('s_barrier')
            unit(u, first, rs, sp, extra)
    k.e('s_mov_b32 s53, 0')
    if geo: k.e('s_mov_b32 s52, 0')
    setaddr()
    if xt:
        handoff_multi(k, [(4, 's_mov_b32 s100, %d' % FL_MOD, 64), (5, 's_mov_b32 s100, %d' % (FL_MOD + 256), 64), (6, wait[0], wait[1])])
        mod_table(k, FR)
    elif wait and not (ownlds and LPW) and not HF: handoff(k, wait[0], wait[1], role='C')
    if early: early(g)
    k.e('s_barrier')
    mark(k, 1)
    for r in reads(0): k.e(r)
    if EARLY and NU == 1:
        for x in advance(): k.e(x)
    DEFER = env('DEFER_' + name, DEFER)
    npair = (nst - 1 - max(DEFER, 1)) // 2
    assert nst % 2 == 0 and (DEFER == 0 or (DEFER % 2 == 1 and M16 and KSN == 1 and not LE and DEFER <= NS))
    soft = env('SOFT_' + name, SOFT)
    srp = env('SRP_' + name, 1 if name == 'qkv' else 2)
    segs_ = [(npair, RPGV[0], ROLL)] if not soft else [(soft, srp, 0), (npair - soft, RPGV[0], ROLL)]
    RPGV[0] = segs_[0][1]; RM[0] = segs_[0][2]
    stage(True, False, 0)
    pre2(g)
    for si, (cnt_, rp_, rm_) in enumerate(segs_):
        RPGV[0] = rp_; RM[0] = rm_
        k.e('s_mov_b32 s54, %d' % cnt_)
        lp = 'L_%s_loop%s' % (name, si or '')
        k.label(lp)
        stage(False, False, 1); stage(False, False, 0, tail=['s_sub_u32 s54, s54, 1', 's_cmp_lg_u32 s54, 0'])
        k.e('s_cbranch_scc1 %s' % lp)
    k.label('L_%s_epi' % name)
    if prelast: prelast(g)
    def addr_for(st):
        o = (st % NS) * STAGE
        return ['v_add_u32 v%d, %d, v%d' % (XC, o, XB)] + ['v_add_u32 v%d, %d, v%d' % (YC + t, o, YB + t) for t in range(nya)]
    if DEFER:
        s0_ = nst - DEFER
        c0, c1 = dcols
        y0 = NU % 2
        for n_ in range(DEFER):
            par = ((1 + n_) % 2, (y0 + n_) % 2, c0)
            if n_ < DEFER - 1:
                for x in addr_for(s0_ + n_ + 1): k.e(x)
                rs = reads(0, (par[0] ^ 1, par[1] ^ 1, c0))
            else: rs = []
            if not RM[0] or (n_ == 0 and JG == 1): k.e('s_waitcnt lgkmcnt(0)')
            if n_ < DEFER - 1: k.e('s_barrier')
            unit(0, False, rs, par, [])
        def deferred():
            for x in addr_for(s0_): k.e(x)
            for r in reads(0, (0, 0, c1)): k.e(r)
            for n_ in range(DEFER):
                par = (n_ % 2, n_ % 2, c1)
                if n_ < DEFER - 1:
                    for x in addr_for(s0_ + n_ + 1): k.e(x)
                    rs = reads(0, (par[0] ^ 1, par[1] ^ 1, c1))
                else: rs = []
                if not RM[0] or n_ == DEFER - 1: k.e('s_waitcnt lgkmcnt(0)')
                if n_ == DEFER - 1: k.e('s_barrier')
                unit(0, False, rs, par, [])
            k.e('s_nop 7')
        g.deferred = deferred
    else:
        g.deferred = None
        stage(False, True, 1)
    mark(k, 2)
    if M16:
        k.e('s_nop 7')
        if not lazyfix:
            for j in range(nb):
                for i in range(mb): fix(i, j)
            k.e('s_nop 1')
    epi(g)
    if not selfsig:
        if g.LE == 1 and not getattr(g, 'ended', 0): k.e('s_barrier')
        signal(k, 'C')
        if g.LE == 2: k.e('s_barrier')
    if side:
        endpgm(k)
        k.label('L_%s_pf' % name)
        k.e('s_sub_u32 s30, s2, %d' % (GM * GN))
        k.e('s_cmp_ge_u32 s30, %d' % side[0])
        k.e('s_cbranch_scc1 L_%s_pfe' % name)
        side[1](k, 0 if solo else AUX_B + 4096)
        k.label('L_%s_pfe' % name)
        signal(k, 'A')
    if pf:
        endpgm(k)
        k.label('L_%s_pf' % name)
        npf = 256 - GM * GN
        per_wg = SIZES[pf] // npf
        assert per_wg % (8192 * 2) == 0
        k.e('s_sub_u32 s30, s2, %d' % (GM * GN))
        k.e('s_mul_i32 s30, s30, %d' % per_wg)
        if env('PFOFF', 0): k.e('s_mov_b32 s30, 0x40000000')
        k.e('v_lshlrev_b32 v2, 4, v0')
        k.e('s_mov_b32 s31, %d' % (per_wg // 16384))
        k.e('s_waitcnt lgkmcnt(0)')
        srd(k, 32, pf)
        k.label('L_%s_pfl' % name)
        k.e('buffer_load_dwordx4 v[8:11], v2, s[32:35], s30 offen')
        k.e('s_add_u32 s30, s30, 8192')
        k.e('buffer_load_dwordx4 v[12:15], v2, s[32:35], s30 offen')
        k.e('s_add_u32 s30, s30, 8192')
        k.e('s_waitcnt vmcnt(6)')
        k.e('s_sub_u32 s31, s31, 1')
        k.e('s_cmp_lg_u32 s31, 0')
        k.e('s_cbranch_scc1 L_%s_pfl' % name)
        if env('L2W', 0): l2warm(k)
        signal(k, 'A')
    finish(k)
    assert g.free <= 256, g.free
    k.need(g.free, max(NS * STAGE, g.AUX + auxsz, (AUX_B + 12288) if side and not solo else 0))

def l2warm(k):
    k.e("""
    s_sub_u32 s30, s2, 224
    s_lshr_b32 s30, s30, 3             ; helper index
    s_and_b32 s31, s2, 3
    s_lshl_b32 s31, s31, 2
    s_add_u32 s31, s31, s30
    s_lshl_b32 s31, s31, 19            ; 128 rows * 4KB
    s_mov_b32 s44, %d
    """ % 32)
    if env('L2W', 0) & 1:
        srd(k, 32, 'w_sp')
        k.label('L_l2x')
        k.e("""
        buffer_load_dwordx4 v[8:11], v2, s[32:35], s31 offen
        s_add_u32 s31, s31, 8192
        buffer_load_dwordx4 v[12:15], v2, s[32:35], s31 offen
        s_add_u32 s31, s31, 8192
        s_waitcnt vmcnt(6)
        s_sub_u32 s44, s44, 1
        s_cmp_lg_u32 s44, 0
        s_cbranch_scc1 L_l2x
        """)
    if env('L2W', 0) & 2:
        handoff(k, 's_bfe_u32 s100, s2, 0x10002\ns_mul_i32 s100, s100, 7\ns_min_u32 s101, s3, 6\ns_add_u32 s100, s100, s101\ns_lshl_b32 s100, s100, 8\ns_add_u32 s100, s100, %d' % FL_WIN, 64, role='W', slp=8)
        k.e('s_barrier')
        srd(k, 32, 'ws', WS_Z2N, ZSZ)
        k.e("""
        s_add_u32 s44, s30, %d             ; first row block
        s_mul_i32 s31, s44, %d
        s_bfe_u32 s45, s2, 0x10002
        s_mul_i32 s45, s45, %d
        s_add_u32 s31, s31, s45
        L_l2y:
        """ % (2 * env('L2S', 3), 112 * KB, 56 * KB))
        for q in range(7):
            k.e('s_add_u32 s45, s31, %d' % (q * 8192))
            k.e('buffer_load_dwordx4 v[8:11], v2, s[32:35], s45 offen sc1')
        k.e("""
        s_waitcnt vmcnt(7)
        s_add_u32 s31, s31, %d
        s_add_u32 s44, s44, 4
        s_cmp_lt_u32 s44, 64
        s_cbranch_scc1 L_l2y
        """ % (4 * 112 * KB))

def alloc(g, n, align=4):
    b = (g.free + align - 1) // align * align
    g.free = b + n
    return b
def nop(g): pass

def store_xf_tile(g, a, T, voff, srdn, soff, imm):
    k = g.k
    for d in range(8):
        k.e('v_cvt_pk_bf16_f32 v%d, v%d, v%d' % (T + d, a + 2 * d, a + 2 * d + 1))
    if os.environ.get('SDATA') == 'zero' and k.c.name == 'qkv':
        for d in range(8): k.e('v_mov_b32 v%d, 0' % (T + d))
    if os.environ.get('SDATA') == 'rand' and k.c.name == 'qkv':
        import random
        for d in range(8):
            k.e('s_mul_i32 s68, s2, %d' % (random.getrandbits(31) | 1))
            k.e('v_add_u32 v%d, s68, v0' % (T + d))
            k.e('s_mov_b32 s69, %d' % (random.getrandbits(31) | 1))
            k.e('v_mul_lo_u32 v%d, v%d, s69' % (T + d, T + d))
            k.e('v_and_b32 v%d, 0xbfffbfff, v%d' % (T + d, T + d))
    if env('PACE', -1) >= 0: k.e('s_waitcnt vmcnt(%d)' % env('PACE', -1))
    k.e('buffer_store_dwordx4 %s, v%d, %s, %s offen offset:%d%s' % (vr(T, 4), voff, sr(srdn), soff, imm, WT))
    k.e('buffer_store_dwordx4 %s, v%d, %s, %s offen offset:%d%s' % (vr(T + 4, 4), voff, sr(srdn), soff, imm + 1024, WT))

def pk(op, d, *src, sel=None):
    s = 'v_pk_%s_f32 %s' % (op, vr(d, 2))
    hi = []
    for x in src:
        if isinstance(x, int): s += ', ' + vr(x, 2); hi.append(1)
        elif isinstance(x, tuple): s += ', ' + vr(x[0], 2); hi.append(0)
        elif x.startswith('s['): s += ', ' + x; hi.append(1)
        else: s += ', ' + x; hi.append(0)
    if 0 in hi: s += ' op_sel_hi:[%s]' % ','.join(map(str, hi))
    return s

def proj_wpre(wname, V, nw, wave):
    n = 16 // nw
    def setup(k):
        srd(k, 64, wname)
        k.e("""
        s_and_b32 s68, s2, 3
        s_lshl_b32 s68, s68, 3
        s_bfe_u32 s69, s2, 0x20003
        s_lshl_b32 s69, s69, 1
        s_add_u32 s68, s68, s69
        s_bfe_u32 s69, s2, 0x10005
        s_add_u32 s68, s68, s69            ; tm
        s_bfe_u32 s69, s2, 0x10002
        s_lshl_b32 s69, s69, 2
        s_lshr_b32 s70, s2, 6
        s_add_u32 s69, s69, s70            ; tn
        s_add_u32 s68, s68, s69            ; rotation
        s_lshl_b32 s69, s69, 8
        s_mul_i32 s70, %s, %d
        s_add_u32 s69, s69, s70
        s_mul_i32 s70, %s, %d              ; LDS offset of this wave's pieces
        v_lshrrev_b32 v%d, 5, v1
        v_lshlrev_b32 v%d, 13, v%d
        v_bfe_u32 v%d, v1, 2, 2
        v_lshl_add_u32 v%d, v%d, 11, v%d
        v_bfe_u32 v%d, v1, 4, 1
        v_lshl_add_u32 v%d, v%d, 6, v%d
        v_lshrrev_b32 v%d, 4, v1
        v_and_b32 v%d, 2, v%d
        v_xor_b32 v%d, v1, v%d
        v_and_b32 v%d, 3, v%d
        v_lshl_add_u32 v%d, v%d, 4, v%d
        v_add_u32 v%d, s69, v%d
        """ % (wave, n // 2 * 8 * 2048, wave, n * 1024, V, V, V, V + 1, V, V + 1, V, V + 1, V, V + 1, V, V + 1, V + 1, V + 1, V + 1, V + 1, V + 1, V + 1, V, V + 1, V, V, V))
        for j in range(1, n): k.e('v_add_u32 v%d, %d, v%d' % (V + j, (j // 2) * 8 * 2048 + (j % 2) * 128, V))
    def pieces(st):
        o = ['s_add_u32 s71, s68, %d\ns_and_b32 s71, s71, 3\ns_add_u32 s71, s71, %d\ns_lshl_b32 s71, s71, 17' % (st, st // 4 * 4)]
        for j in range(n):
            o.append('s_add_u32 m0, s70, %d' % (st * 16384 + j * 1024))
            o.append('buffer_load_dwordx4 v%d, s[64:67], s71 offen lds' % (V + j))
        return o
    return setup, pieces

def k_qkv(k, c):
    def pre(g):
        k = g.k
        srd(k, 32, 'ws', WS_Q, 4 * MB); srd(k, 36, 'ws', WS_KV, 8 * MB)
        g.L16 = alloc(g, 1, 1); g.LV16 = alloc(g, 1, 1)
        k.e('v_lshlrev_b32 v%d, 4, v1' % g.L16)
        if g.M16:
            k.e('v_and_b32 v5, 3, v1')
            k.e('v_lshl_add_u32 v5, v4, 4, v5')
            k.e('v_bfe_u32 v6, v1, 2, 1')
            k.e('v_lshl_add_u32 v5, v6, 3, v5')
            k.e('v_bfe_u32 v6, v1, 3, 1')
            k.e('v_lshl_add_u32 v5, v6, 2, v5')
            k.e('v_bfe_u32 v6, v1, 4, 1')
            k.e('v_lshl_add_u32 v5, v6, 5, v5')
            k.e('v_lshlrev_b32 v%d, 4, v5' % g.LV16)
        else: k.e('v_mov_b32 v%d, v%d' % (g.LV16, g.L16))
        k.e('''
        s_lshl_b32 s60, s31, 1
        s_add_u32 s60, s60, s51
        s_lshl_b32 s60, s60, 6
        s_lshl_b32 s61, s30, 2
        s_add_u32 s60, s60, s61
        s_lshl_b32 s61, s50, 1
        s_add_u32 s60, s60, s61           ; head*64 + rb0
        s_lshl_b32 s61, s60, 11           ; Q offset
        s_lshl_b32 s62, s60, 12           ; KV offset
        s_add_u32 s63, s62, 4096
        s_mov_b32 s66, %s
        s_mov_b32 s67, %s
        ''' % ((hx(32 ** -0.5 * LOG2E * float(os.environ.get('QERR', '1'))),) * 2))
    def epi(g):
        k = g.k
        T = g.FR
        k.e('s_nop 7')
        n = 0
        for i in range(2):
            a = g.acc(i, 0)
            for r in range(0, 16, 2): k.e(pk('mul', a + r, a + r, 's[66:67]'))
            store_xf_tile(g, a, T + 8 * n, g.L16, 32, 's61', i * 2048); n += 1
        for j in (1, 2):
            for i in range(2):
                store_xf_tile(g, g.acc(i, j), T + 8 * (n % 5), g.L16 if j == 1 else g.LV16, 36, 's62' if i == 0 else 's63', (j - 1) * 2048); n += 1
    QSP = env('QSP', 0)
    def epi2(g):
        k = g.k
        T = g.FR
        KP = [g.acc(0, 1), g.acc(1, 1)]; VP = [g.acc(0, 2), g.acc(1, 2)]; QP = [g.acc(0, 0), g.acc(1, 0)]
        for j in (1, 2):
            for i in range(2):
                g.fix(i, j)
                k.e('s_nop 0')
                store_xf_tile(g, g.acc(i, j), g.acc(i, j), g.L16 if j == 1 else g.LV16, 36, 's62' if i == 0 else 's63', (j - 1) * 2048)
        if g.deferred:
            g.deferred()
            if env('QSIG', 1): signal(k, 'C')
        for i in range(2):
            a = g.acc(i, 0)
            g.fix(i, 0)
            k.e('s_nop 0')
            for r in range(0, 16, 2): k.e(pk('mul', a + r, a + r, 's[66:67]'))
            for d in range(8): k.e('v_cvt_pk_bf16_f32 v%d, v%d, v%d' % (a + d, a + 2 * d, a + 2 * d + 1))
        if QSP == 1: signal(k, 'C')
        k.e('s_mul_i32 s68, s46, 5120')
        k.e('s_add_u32 s68, s68, %d' % AUX_A)
        k.e('v_add_u32 v5, s68, v%d' % g.L16)
        Sreg = [T, T + 16, T + 32, T + 48]
        for qi in range(2):
            for ki in range(2):
                S_ = Sreg[2 * qi + ki]
                k.e('v_mfma_f32_32x32x16_bf16 %s, %s, %s, 0' % (vr(S_, 16), vr(KP[ki], 4), vr(QP[qi], 4)))
                k.e('v_mfma_f32_32x32x16_bf16 %s, %s, %s, %s' % (vr(S_, 16), vr(KP[ki] + 4, 4), vr(QP[qi] + 4, 4), vr(S_, 16)))
        for q in range(4): k.e('ds_write_b128 v5, %s offset:%d' % (vr(QP[q // 2] + 4 * (q % 2), 4), q * 1024))
        if AOWN:
            k.e('s_lshl_b32 s69, s46, 15')
            k.e('v_add_u32 v6, s69, v%d' % g.L16)
            k.e('v_add_u32 v7, s69, v%d' % g.LV16)
            for i in range(2):
                for hh in range(2):
                    k.e('ds_write_b128 v6, %s offset:%d' % (vr(KP[i] + 4 * hh, 4), i * 4096 + hh * 1024))
                    k.e('ds_write_b128 v7, %s offset:%d' % (vr(VP[i] + 4 * hh, 4), i * 4096 + 2048 + hh * 1024))
        k.e('v_lshl_add_u32 v5, v1, 3, s68')
        if QSP == 2: signal(k, 'C')
        k.e('s_nop 7')
        MM = T + 64
        for qi in range(2):
            a0, a1 = Sreg[2 * qi], Sreg[2 * qi + 1]
            k.e('v_max_f32 v%d, v%d, v%d' % (MM + qi, a0, a1))
            for r in range(1, 16): k.e('v_max3_f32 v%d, v%d, v%d, v%d' % (MM + qi, MM + qi, a0 + r, a1 + r))
        for qi in range(2): k.e('v_mov_b32 v%d, v%d' % (MM + 2 + qi, MM + qi))
        k.e('s_nop 1')
        for qi in range(2): k.e('v_permlane32_swap_b32 v%d, v%d' % (MM + qi, MM + 2 + qi))
        k.e('s_nop 1')
        for qi in range(2): k.e('v_max_f32 v%d, v%d, v%d' % (MM + qi, MM + qi, MM + 2 + qi))
        for qi in range(2): k.e('v_sub_f32 v%d, %s, v%d' % (MM + qi, hx(-40.0), MM + qi))
        k.e('ds_write_b64 v5, %s offset:4096' % vr(MM, 2))
        k.e('s_waitcnt lgkmcnt(0)')
    sig = 's_lshl_b32 s100, s31, 8\ns_lshl_b32 s101, s30, 4\ns_add_u32 s100, s100, s101\ns_add_u32 s100, s100, %d' % FL_QKV
    wait = ('s_lshl_b32 s100, s30, 8\ns_add_u32 s100, s100, %d' % FL_LN1, 8)
    k_gemm(k, c, 16, 16, 3, 1, 4, 128, 192, 2, 2, 1024, 32, 4, ('xt', WS_N, 1024) if XT else ('xf', WS_H, 1024), ('w', 'wqkv', 6144, 'qkv'), pre, nop, epi2 if AT2 else epi, selfsig=bool(AT2 and (QSP or AOWN == 1 or (env('DEFER_qkv', 0) and env('QSIG', 1)))), lazyfix=bool(AT2), DEFER=0, dcols=([1, 2], [0]), swap=(2,), wait=wait, sig=sig, RWD=4, SOFT=4)

def k_proj(k, c, K, X, wname, final):
    NQ = 2 if MP0 else 4
    EARLYV = MP0 and env('EARLYV', 1)
    def modq_loads(k):
        for q in range(NQ):
            k.e('s_add_u32 s62, s69, %d' % (q * 16384))
            k.e('s_add_u32 s63, s70, %d' % (q * 16384))
            k.e('buffer_load_dwordx4 %s, v7, s[64:67], s62 offen sc1' % vr(24 + 4 * q, 4))
            k.e('buffer_load_dword v%d, v6, s[64:67], s63 offen sc1' % (40 + q))
    def aux(g):
        k = g.k
        if final:
            srd(k, 40, 'ws', WS_MOD, 6144 * 4)
            k.e('''
            v_and_b32 v7, 31, v1
            v_lshlrev_b32 v7, 4, v7
            s_lshl_b32 s62, s31, 9
            s_add_u32 s62, s62, %d
            buffer_load_dwordx4 v[24:27], v7, s[40:43], s62 offen sc1
            ''' % (5 * 4096))
            return 1
        srd(k, 64, 'ws', 0, 256 * KB)
        k.e('''
        v_and_b32 v2, 31, v1
        v_lshrrev_b32 v3, 5, v1
        v_lshlrev_b32 v2, 4, v2
        v_lshl_add_u32 v2, v3, 13, v2
        s_lshl_b32 s62, s31, 9
        s_add_u32 s62, s62, %d
        v_and_b32 v6, 15, v1
        v_lshlrev_b32 v6, 2, v6
        s_lshl_b32 s68, s2, 6
        s_add_u32 s63, s68, %d
        s_mov_b32 s69, s62
        s_mov_b32 s70, s63
        v_mov_b32 v7, v2
        ''' % (WS_MODQ, WS_MODQ))
        modq_loads(k)
        return xtile(g) + 2 * NQ
    def xtile(g):
        k = g.k
        srd(k, 40, 'x')
        k.e('''
        v_lshrrev_b32 v2, 4, v1
        v_and_b32 v3, 15, v1
        s_lshl_b32 s62, s30, 17            ; tm*64*2048
        s_lshl_b32 s63, s31, 8
        s_add_u32 s62, s62, s63
        s_lshl_b32 s63, s46, 15            ; lw*16 rows
        s_add_u32 s62, s62, s63
        s_lshl_b32 s63, s46, 12
        s_add_u32 s63, s63, %d
        ''' % g.AUX)
        for j in range(4):
            k.e('v_add_u32 v4, %d, v2' % (4 * j))
            k.e('v_xor_b32 v5, v4, v3')
            k.e('v_lshlrev_b32 v5, 4, v5')
            k.e('v_lshl_add_u32 v5, v4, 11, v5')
            k.e('s_add_u32 m0, s63, %d' % (j * 1024))
            k.e('s_nop 0')
            k.e('buffer_load_dwordx4 v5, s[40:43], s62 offen lds')
        return 4
    def aux_end(g):
        k = g.k
        lp = k.newlabel('mqp'); lc = k.newlabel('mqc')
        if final:
            poll_init(k)
            k.e('s_branch %s' % lc)
            k.label(lp)
            k.e('buffer_load_dwordx4 v[24:27], v7, s[40:43], s62 offen sc1')
            k.e('s_waitcnt vmcnt(0)')
            k.label(lc)
            k.e('v_max3_u32 v2, v24, v25, v26')
            k.e('v_max_u32 v2, v2, v27')
            k.e('v_cmp_eq_u32 vcc, -1, v2')
            poll_back(k, lp)
            k.e('v_add_u32 v2, %d, v7' % (g.AUX + 16 * KB))
            k.e('ds_write_b128 v2, v[24:27]')
            k.e('s_waitcnt lgkmcnt(0)')
            return
        if MP0:
            k.e('v_cmp_lt_u32 vcc, 31, v1')
            k.e(pk('add', 24, 24, 28)); k.e(pk('add', 26, 26, 30))
            k.e('v_add_f32 v40, v40, v41')
        else:
            poll_init(k)
            k.e('s_branch %s' % lc)
            k.label(lp)
            modq_loads(k)
            k.e('s_waitcnt vmcnt(0)')
            k.label(lc)
            k.e('v_max_u32 v2, v24, v25')
            for r in range(26, 44, 2): k.e('v_max3_u32 v2, v2, v%d, v%d' % (r, r + 1))
            k.e('v_cmp_eq_u32 vcc, -1, v2')
            poll_back(k, lp)
            k.e(pk('add', 24, 24, 28)); k.e(pk('add', 26, 26, 30)); k.e(pk('add', 32, 32, 36)); k.e(pk('add', 34, 34, 38))
            k.e(pk('add', 24, 24, 32)); k.e(pk('add', 26, 26, 34))
            k.e('v_cmp_lt_u32 vcc, 31, v1')
            k.e('v_add_f32 v40, v40, v41')
            k.e('v_add_f32 v42, v42, v43')
            k.e('v_add_f32 v40, v40, v42')
        k.e('v_cndmask_b32 v7, 0, 1.0, vcc')
        for d in range(2): round_bf16_pair(k, 24 + 2 * d, 25 + 2 * d, 28)
        for e in range(4): k.e('v_add_f32 v%d, v7, v%d' % (24 + e, 24 + e))
        for d in range(2): round_bf16_pair(k, 24 + 2 * d, 25 + 2 * d, 28)
        k.e('v_lshlrev_b32 v2, 4, v1')
        k.e('v_add_u32 v2, %d, v2' % (g.AUX + 16 * KB))
        k.e('ds_write_b128 v2, v[24:27]')
        k.e("""
        s_lshr_b32 s62, s2, 6
        s_cmp_eq_u32 s62, 2
        s_cselect_b32 s62, 1.0, 0
        v_cvt_pk_bf16_f32 v40, v40, v40
        v_lshlrev_b32 v40, 16, v40
        v_add_f32 v40, s62, v40
        v_cvt_pk_bf16_f32 v40, v40, v40
        v_lshlrev_b32 v40, 16, v40
        s_add_u32 s68, s68, 8192
        v_cmp_gt_u32 vcc, 16, v0
        s_and_saveexec_b64 s[62:63], vcc
        buffer_store_dword v40, v6, s[64:67], s68 offen%s
        s_mov_b64 exec, s[62:63]
        s_waitcnt lgkmcnt(0)
        """ % WT)
    def pre(g):
        k = g.k
        g.L16 = alloc(g, 1, 1); g.RA = alloc(g, 1, 1); g.CA = alloc(g, 1, 1); g.TA = alloc(g, 1, 1)
        g.RES = alloc(g, 16); g.GA = alloc(g, 32); g.G2 = alloc(g, 32) if not final else None
        srd(k, 36, 'ws', WS_X1, 8 * MB)
        if final: srd(k, 32, 'out')
        else: srd(k, 32, 'ws', WS_ST1, 256 * KB)
        k.e('v_lshlrev_b32 v%d, 4, v1' % g.L16)
        k.e('''
        s_lshl_b32 s60, s31, 7
        s_lshl_b32 s61, s51, 6
        s_add_u32 s60, s60, s61           ; col0
        s_lshl_b32 s61, s30, 1
        s_add_u32 s61, s61, s50           ; rb
        s_lshl_b32 s62, s61, 16
        s_lshl_b32 s63, s60, 1
        s_add_u32 s63, s63, s62           ; row-major byte offset of (row0,col0)
        s_lshl_b32 s64, s60, 6
        s_add_u32 s64, s64, s62           ; XF offset
        s_add_u32 s65, s64, %d            ; X1S offset
        ; tile image address: row*256 + ((wn*8) ^ (row%%16))*16 + h*8
        s_lshl_b32 s66, s50, 13
        s_add_u32 s66, s66, %d
        v_and_b32 v5, 15, v3
        s_lshl_b32 s67, s51, 3
        v_xor_b32 v5, s67, v5
        v_lshlrev_b32 v5, 4, v5
        v_lshl_add_u32 v5, v3, 8, v5
        v_lshl_add_u32 v5, v4, 3, v5
        v_add_u32 v%d, s66, v5
        ; column vector address: wn*256 + h*16
        s_lshl_b32 s67, s51, 8
        s_add_u32 s67, s67, %d
        v_lshl_add_u32 v%d, v4, 4, s67
        ''' % (4 * MB, g.AUX, g.RA, g.AUX + 16 * KB, g.CA))
    KX = same_kernel('wo', 'wout') and env('KEEPX', 1)
    def early(g):
        k = g.k
        if EARLYV:
            A_ = g.GA; V_ = g.RES
            l = k.newlabel('ev')
            k.e('s_cmp_lg_u32 s46, 1'); k.e('s_cbranch_scc1 %s' % l)
            srd(k, 80, 'ws', 0, 256 * KB)
            k.e('''
            v_lshlrev_b32 v%d, 4, v3
            v_lshl_add_u32 v%d, v4, 13, v%d
            s_lshl_b32 s68, s31, 9
            s_add_u32 s68, s68, %d
            s_add_u32 s69, s68, 16384
            buffer_load_dwordx4 %s, v%d, s[80:83], s68 offen sc1
            buffer_load_dwordx4 %s, v%d, s[80:83], s69 offen sc1
            ''' % (V_, V_, V_, WS_MODQ + (3 * 4096 if final else 0), vr(A_, 4), V_, vr(A_ + 4, 4), V_))
            if not final:
                k.e('''
                v_and_b32 v%d, 15, v1
                v_lshlrev_b32 v%d, 2, v%d
                s_lshl_b32 s70, s2, 6
                s_add_u32 s68, s70, %d
                s_add_u32 s69, s68, 16384
                buffer_load_dword v%d, v%d, s[80:83], s68 offen sc1
                buffer_load_dword v%d, v%d, s[80:83], s69 offen sc1
                ''' % (V_ + 1, V_ + 1, V_ + 1, WS_MODQ, A_ + 8, V_ + 1, A_ + 9, V_ + 1))
            k.e('v_cvt_f32_u32 v%d, v4' % (V_ + 2))
            k.e('v_add_u32 v%d, %d, v%d' % (V_ + 3, g.AUX + 16 * KB, g.L16))
            k.e('s_waitcnt vmcnt(0)')
            k.e(pk('add', A_, A_, A_ + 4)); k.e(pk('add', A_ + 2, A_ + 2, A_ + 6))
            for d in range(2): round_bf16_pair(k, A_ + 2 * d, A_ + 1 + 2 * d, A_ + 4)
            for e in range(4): k.e('v_add_f32 v%d, v%d, v%d' % (A_ + e, V_ + 2, A_ + e))
            for d in range(2): round_bf16_pair(k, A_ + 2 * d, A_ + 1 + 2 * d, A_ + 4)
            k.e('ds_write_b128 v%d, %s' % (V_ + 3, vr(A_, 4)))
            if not final:
                F = A_ + 8
                k.e('''
                s_lshr_b32 s68, s2, 6
                s_cmp_eq_u32 s68, 2
                s_cselect_b32 s68, 1.0, 0
                v_add_f32 v%d, v%d, v%d
                v_cvt_pk_bf16_f32 v%d, v%d, v%d
                v_lshlrev_b32 v%d, 16, v%d
                v_add_f32 v%d, s68, v%d
                v_cvt_pk_bf16_f32 v%d, v%d, v%d
                v_lshlrev_b32 v%d, 16, v%d
                s_add_u32 s70, s70, 8192
                s_mov_b64 exec, 0xffff
                buffer_store_dword v%d, v%d, s[80:83], s70 offen%s
                s_mov_b64 exec, -1
                ''' % (F, F, F + 1, F, F, F, F, F, F, F, F, F, F, F, F, F, V_ + 1, WT))
            k.e('s_waitcnt lgkmcnt(0)')
            k.label(l)
            return
        if final or MP0: return
        D = g.GA; MC = g.RES; MT = g.RES + 8
        k.e('s_lshl_b32 s68, s46, 13')
        k.e('s_add_u32 s68, s68, %d' % AUX_A)
        k.e('v_add_u32 v%d, s68, v%d' % (MT, g.L16))
        for j in range(8): k.e('ds_read_b128 %s, v%d offset:%d' % (vr(D + 4 * j, 4), MT, j * 1024))
        for j in range(8):
            k.e('s_waitcnt lgkmcnt(%d)' % (7 - j))
            for d in range(4):
                unpack(k, MT, MT + 1, D + 4 * j + d)
                op = 'v_mul_f32' if j == 0 else 'v_fmac_f32'
                k.e('%s v%d, v%d, v%d' % (op, MC + 2 * d, MT, MSV + j))
                k.e('%s v%d, v%d, v%d' % (op, MC + 2 * d + 1, MT + 1, MSV + j))
        k.e('s_nop 1')
        for e in range(4): k.e('v_permlane32_swap_b32 v%d, v%d' % (MC + e, MC + 4 + e))
        k.e('s_nop 1')
        for e in range(4): k.e('v_add_f32 v%d, v%d, v%d' % (MC + e, MC + e, MC + 4 + e))
        k.e('s_nop 1')
        for e in range(2): k.e('v_permlane16_swap_b32 v%d, v%d' % (MC + e, MC + 2 + e))
        k.e('s_nop 1')
        for e in range(2): k.e('v_add_f32 v%d, v%d, v%d' % (MC + e, MC + e, MC + 2 + e))
        k.e('s_nop 1')
        for e in range(2): k.e('v_add_f32_dpp v%d, v%d, v%d row_ror:8 row_mask:0xf bank_mask:0xf' % (MC + e, MC + e, MC + e))
        k.e('''
        v_and_b32 v%d, 7, v1
        v_lshlrev_b32 v%d, 5, v%d
        v_lshrrev_b32 v%d, 4, v1
        v_lshl_add_u32 v%d, v%d, 3, v%d
        v_add_u32 v%d, s68, v%d
        ds_write_b64 v%d, %s
        s_waitcnt lgkmcnt(0)
        ''' % (MT, MT, MT, MT + 1, MT, MT + 1, MT, MT, MT, MT, vr(MC, 2)))
    def pre2(g):
        k = g.k
        if not final and not MP0:
            MC = g.RES; MT = g.RES + 8
            l = k.newlabel('noC')
            k.e('s_cmp_lg_u32 s46, 1')
            k.e('s_cbranch_scc1 %s' % l)
            srd(k, 80, 'ws', 0, 256 * KB)
            k.e('v_lshlrev_b32 v%d, 2, v1' % (MT + 1))
            k.e('v_add_u32 v%d, %d, v%d' % (MT, AUX_A, MT + 1))
            for w in range(4): k.e('ds_read_b32 v%d, v%d offset:%d' % (MC + w, MT, w * 8192))
            k.e('''
            s_and_b32 s68, s2, 3
            s_lshl_b32 s68, s68, 14
            s_lshr_b32 s69, s2, 2
            s_lshl_b32 s69, s69, 8
            s_add_u32 s68, s68, s69
            s_add_u32 s68, s68, %d
            s_waitcnt lgkmcnt(0)
            v_add_f32 v%d, v%d, v%d
            v_add_f32 v%d, v%d, v%d
            v_add_f32 v%d, v%d, v%d
            v_min_u32 v%d, -2, v%d
            buffer_store_dword v%d, v%d, s[80:83], s68 offen sc1
            ''' % (WS_MODQ, MC, MC, MC + 1, MC + 2, MC + 2, MC + 3, MC, MC, MC + 2, MC, MC, MC, MT + 1))
            k.label(l)
        if final and not KX:
            for j in range(2):
                for t in range(2):
                    k.e('buffer_load_dwordx4 %s, v%d, s[36:39], s64 offen offset:%d sc1' % (vr(g.RES + 8 * j + 4 * t, 4), g.L16, (2 * j + t) * 1024))
    PL = env('PRELAST', 1)
    def operands(g):
        k = g.k
        for j in range(2):
            for q in range(4):
                k.e('ds_read_b128 %s, v%d offset:%d' % (vr(g.GA + 16 * j + 4 * q, 4), g.CA, j * 128 + q * 32))
        if not final or KX:
            for j in range(2):
                for q in range(4):
                    k.e('v_xor_b32 v%d, %d, v%d' % (g.TA, (j * 4 + q) * 16, g.RA))
                    k.e('ds_read_b64 %s, v%d' % (vr(g.RES + 8 * j + 2 * q, 2), g.TA))
        if not final:
            for j in range(2):
                for q in range(4):
                    k.e('ds_read_b128 %s, v%d offset:%d' % (vr(g.G2 + 16 * j + 4 * q, 4), g.CA, 512 + j * 128 + q * 32))
    def epi(g):
        k = g.k
        assert g.M16
        if not PL: operands(g)
        k.e('s_waitcnt lgkmcnt(0)' if (KX or not final) else 's_waitcnt vmcnt(0) lgkmcnt(0)')
        T = g.FR
        for j in range(2):
            a = g.acc(0, j)
            for d in range(8):
                unpack(k, T + 2 * (d % 4), T + 2 * (d % 4) + 1, g.RES + 8 * j + d)
                k.e(pk('fma', a + 2 * d, a + 2 * d, g.GA + 16 * j + 2 * d, T + 2 * (d % 4)))
            if not final:
                if j == 0: k.e('s_waitcnt lgkmcnt(0)')
                for d in range(8): k.e(pk('mul', g.G2 + 16 * j + 2 * d, a + 2 * d, g.G2 + 16 * j + 2 * d))
                store_xf_tile(g, g.G2 + 16 * j, g.GA + 16 * j, g.L16, 36, 's65', j * 2048)
        def keep():
            for j in range(2):
                a = g.acc(0, j)
                if final or KX:
                    for d in range(8):
                        k.e('v_cvt_pk_bf16_f32 v%d, v%d, v%d' % (g.RES + 8 * j + d, a + 2 * d, a + 2 * d + 1))
                    for q in range(4):
                        k.e('v_xor_b32 v%d, %d, v%d' % (g.TA, (j * 4 + q) * 16, g.RA))
                        k.e('ds_write_b64 v%d, %s' % (g.TA, vr(g.RES + 8 * j + 2 * q, 2)))
                else:
                    store_xf_tile(g, a, g.RES + 8 * j, g.L16, 36, 's64', j * 2048)
        if final: keep()
        if final:
            k.e('''
            v_lshrrev_b32 v5, 3, v1
            v_and_b32 v6, 7, v1
            s_lshl_b32 s67, s51, 3
            v_or_b32 v7, s67, v6
            v_xor_b32 v7, v7, v5
            v_lshlrev_b32 v7, 4, v7
            v_lshl_add_u32 v7, v5, 8, v7
            v_add_u32 v7, s66, v7              ; b=0 address
            v_xor_b32 v%d, 128, v7             ; rows 8..15: slot ^ 8
            v_lshlrev_b32 v5, 11, v5
            v_lshl_add_u32 v5, v6, 4, v5       ; global: row*2048 + c*16
            s_waitcnt lgkmcnt(0)
            ''' % g.TA)
            for b in range(4):
                k.e('ds_read_b128 %s, v%d offset:%d' % (vr(g.GA + 4 * b, 4), 7 if b % 2 == 0 else g.TA, b * 2048))
            for b in range(4):
                k.e('s_waitcnt lgkmcnt(%d)' % (3 - b))
                k.e('buffer_store_dwordx4 %s, v5, s[32:35], s63 offen%s' % (vr(g.GA + 4 * b, 4), os.environ.get('OUTFLAG', ' sc1')))
                k.e('s_add_u32 s63, s63, %d' % (8 * 2048))
            l = k.newlabel('ep')
            k.e('s_or_b32 s67, s2, s46')
            k.e('s_cbranch_scc1 %s' % l)
            srd(k, 96, 'ws', WS_EPOCH, 8)
            k.e('v_mov_b32 v%d, s84' % FV); k.e('v_mov_b32 v%d, s85' % (FV + 1)); k.e('v_mov_b32 v%d, 0' % (FV + 2))
            flag_store(k, '0')
            k.label(l)
        else:
            S1 = T + 8; S2 = T + 10
            a0 = g.acc(0, 0)
            k.e(pk('add', S1, a0, a0 + 2))
            k.e(pk('mul', S2, a0, a0))
            k.e(pk('fma', S2, a0 + 2, a0 + 2, S2))
            for r in range(4, 32, 2):
                k.e(pk('add', S1, S1, a0 + r))
                k.e(pk('fma', S2, a0 + r, a0 + r, S2))
            k.e('v_add_f32 v%d, v%d, v%d' % (S1, S1, S1 + 1))
            k.e('v_add_f32 v%d, v%d, v%d' % (S1 + 1, S2, S2 + 1))
            k.e('v_mov_b32 v%d, v%d' % (S2, S1))
            k.e('v_mov_b32 v%d, v%d' % (S2 + 1, S1 + 1))
            k.e('''
            s_lshl_b32 s66, s30, 4
            s_lshl_b32 s67, s31, 1
            s_add_u32 s66, s66, s67
            s_add_u32 s66, s66, s51
            s_lshl_b32 s66, s66, 9             ; (tm*16+part)*512
            s_lshl_b32 s67, s50, 8
            s_add_u32 s66, s66, s67
            v_lshlrev_b32 v5, 3, v3
            ''')
            k.e('v_permlane32_swap_b32 v%d, v%d' % (S1, S2))
            k.e('v_permlane32_swap_b32 v%d, v%d' % (S1 + 1, S2 + 1))
            k.e('s_nop 1')
            k.e(pk('add', S1, S1, S2))
            k.e('s_mov_b32 exec_hi, 0')
            k.e('buffer_store_dwordx2 %s, v5, s[32:35], s66 offen%s' % (vr(S1, 2), WT))
            k.e('s_mov_b32 exec_hi, -1')
            if g.LE == 1 and KX:
                k.e('s_barrier'); g.ended = 1
            keep()
            k.e('s_waitcnt lgkmcnt(0)')
    if final:
        sig = None
        wait = ('s_lshr_b32 s100, s30, 1\ns_lshl_b32 s100, s100, 8\ns_add_u32 s100, s100, %d' % FL_WSP, 56)
    else:
        sig = 's_lshr_b32 s100, s30, 1\ns_lshl_b32 s100, s100, 8\ns_and_b32 s101, s30, 1\ns_lshl_b32 s101, s101, 7\ns_add_u32 s100, s100, s101\ns_lshl_b32 s101, s31, 4\ns_add_u32 s100, s100, s101\ns_add_u32 s100, s100, %d' % FL_WO
        wait = ('s_lshr_b32 s100, s30, %d\ns_lshl_b32 s100, s100, 8\ns_add_u32 s100, s100, %d' % (1 if AT2 else 2, FL_ATT), 16 if AT2 else 32)
    geo = None
    if GEO: geo = (0, 6, 96 * KB, 4, (TPRE if final else APRE), 224 if final else 0)
    k_gemm(k, c, 32, 8, 3, 2, 4, 64, 128, 2, 2, K, 64, 4, X, ('w', wname, 2048, None), pre, pre2, epi, aux=None if EARLYV else aux, auxsz=17 * KB, auxbase=AUX_A, aux_end=None if EARLYV else aux_end,
           auxpre=xtile if EARLYV and not final else None, geo=geo, wait=wait, sig=sig, GU=2, RWD=4, early=early, altmap=True, prelast=operands if PL else None,
           own='s_lshr_b32 s68, s47, 2\ns_mul_i32 s68, s68, 7\ns_lshr_b32 s69, s48, 2\ns_add_u32 s68, s68, s69\ns_min_u32 s68, s68, 13\ns_lshl_b32 s68, s68, 1' if final else None, ownlim=224)

ZKEEP = 72
BSV = 244
MSV = 240
def stats_finish(k, S, n, R, M, T):
    k.e('v_mov_b32 v%d, v%d' % (T, S))
    k.e('v_mov_b32 v%d, v%d' % (T + 1, S + 1))
    k.e('s_nop 1')
    k.e('v_permlane32_swap_b32 v%d, v%d' % (S, T))
    k.e('v_permlane32_swap_b32 v%d, v%d' % (S + 1, T + 1))
    k.e('s_nop 1')
    k.e(pk('add', S, S, T))
    k.e('v_mul_f32 v%d, %s, v%d' % (S, hx(1.0 / n), S))
    k.e('v_mul_f32 v%d, v%d, v%d' % (T, S, S))
    k.e('v_mov_b32 v%d, %s' % (T + 1, hx(1.0 / n)))
    k.e('v_fma_f32 v%d, v%d, v%d, -v%d' % (S + 1, S + 1, T + 1, T))
    k.e('v_max_f32 v%d, 0, v%d' % (S + 1, S + 1))
    k.e('v_add_f32 v%d, %s, v%d' % (S + 1, hx(1e-5), S + 1))
    k.e('v_rsq_f32 v%d, v%d' % (R, S + 1))
    k.e('s_nop 0')
    k.e('v_mul_f32_e64 v%d, -v%d, v%d' % (M, S, R))

def uw_job(k, LB):
    k.e("""
    v_lshrrev_b32 v2, 3, v0
    v_and_b32 v3, 7, v0
    v_lshlrev_b32 v4, 6, v2
    s_mov_b32 s31, %d
    v_mul_lo_u32 v5, v2, s31
    v_lshl_add_u32 v5, v3, 4, v5
    s_movk_i32 s44, %d
    s_movk_i32 s45, %d
    s_lshl_b32 s30, s30, 1
    s_waitcnt lgkmcnt(0)
    """ % (16 * 7168, 4 * 4096, 3 * 4096))
    srd(k, 36, 'w_in'); srd(k, 40, 'ws', 0, 64 * KB)
    AV = 72; SV = 88; UA = 104; WA = 112
    lq = k.newlabel('uwq')
    poll_init(k)
    k.label(lq)
    for q in range(4): k.e('buffer_load_dwordx4 %s, v4, s[40:43], s44 offen offset:%d sc1' % (vr(AV + 4 * q, 4), q * 16))
    for q in range(4): k.e('buffer_load_dwordx4 %s, v4, s[40:43], s45 offen offset:%d sc1' % (vr(SV + 4 * q, 4), q * 16))
    if not k.c.first:
        k.e('s_waitcnt vmcnt(0)')
        k.e('v_max_u32 v6, v%d, v%d' % (AV, AV + 1))
        for r in range(AV + 2, AV + 32, 2): k.e('v_max3_u32 v6, v6, v%d, v%d' % (r, r + 1))
        k.e('v_cmp_eq_u32 vcc, -1, v6')
        poll_back(k, lq)
    k.e('s_mov_b32 s50, %d' % LB)
    lp = k.newlabel('uw')
    k.label(lp)
    k.e('s_lshl_b32 s31, s30, 7')
    for j in range(16):
        k.e('buffer_load_dwordx4 %s, v5, s[36:39], s31 offen' % vr(8 + 4 * j, 4))
        k.e('s_add_u32 s31, s31, 7168')
    for j in range(16):
        k.e('s_waitcnt vmcnt(%d)' % (15 - j))
        for d in range(4):
            unpack(k, 6, 7, 8 + 4 * j + d)
            for acc, cf in ((UA, AV), (WA, SV)):
                op = 'v_mul_f32' if j == 0 else 'v_fmac_f32'
                k.e('%s v%d, v6, v%d' % (op, acc + 2 * d, cf + j))
                k.e('%s v%d, v7, v%d' % (op, acc + 2 * d + 1, cf + j))
    red_lanes(k, list(range(UA, UA + 16)), list(range(8, 24)))
    lskip = k.newlabel('uwskip')
    k.e("""
    s_lshl_b32 s47, s46, 9
    s_add_u32 s47, s47, s50
    v_lshl_add_u32 v2, v3, 5, s47      ; pass*4096 + wave*512 + chunk*32
    v_cmp_gt_u32 vcc, 8, v1
    s_and_saveexec_b64 s[48:49], vcc
    ds_write_b128 v2, v[104:107]
    ds_write_b128 v2, v[108:111] offset:16
    ds_write_b128 v2, v[112:115] offset:256
    ds_write_b128 v2, v[116:119] offset:272
    s_mov_b64 exec, s[48:49]
    s_waitcnt lgkmcnt(0)
    s_barrier
    s_cmp_ge_u32 s46, 2
    s_cbranch_scc1 %s
    v_lshl_add_u32 v2, v0, 2, s50      ; wave0: u cols, wave1: w0 cols
    """ % lskip)
    for w in range(8): k.e('ds_read_b32 v%d, v2 offset:%d' % (8 + w, w * 512))
    k.e('s_waitcnt lgkmcnt(0)')
    for w in range(1, 8): k.e('v_add_f32 v8, v8, v%d' % (8 + w))
    k.e("""
    v_min_u32 v8, -2, v8
    v_lshlrev_b32 v2, 2, v1
    s_lshl_b32 s31, s30, 8
    s_lshl_b32 s47, s46, 14
    s_add_u32 s31, s31, s47
    s_add_u32 s31, s31, %d
    buffer_store_dword v8, v2, s[40:43], s31 offen sc1
    s_waitcnt vmcnt(0)
    """ % WS_UW)
    k.label(lskip)
    k.e("""
    s_add_u32 s30, s30, 1
    s_add_u32 s50, s50, 4096
    s_cmp_lt_u32 s50, %d
    s_cbranch_scc1 %s
    """ % (LB + 8192, lp))

GC1 = -2.0 * 0.7978845608028654 * LOG2E
def gelu_ops(k, a, U, W0, T, R, M, after_t=None):
    for r in range(0, 16, 2): k.e(pk('fma', T + r, U + r, (M,), W0 + r))
    if after_t: after_t()
    for r in range(0, 16, 2): k.e(pk('fma', a + r, a + r, (R,), T + r))
    for r in range(0, 16, 2): k.e(pk('mul', T + r, a + r, a + r))
    for r in range(0, 16, 2): k.e(pk('fma', T + r, T + r, 's[70:71]', (6,)))
    for r in range(0, 16, 2): k.e(pk('mul', T + r, T + r, a + r))
    for r in range(16): k.e('v_exp_f32 v%d, v%d' % (T + r, T + r))
    for r in range(0, 16, 2): k.e(pk('add', T + r, T + r, '1.0'))
    for r in range(16): k.e('v_rcp_f32 v%d, v%d' % (T + r, T + r))
    for r in range(0, 16, 2): k.e(pk('mul', a + r, a + r, T + r))
def stat_ops(k, a, S1, S2, first):
    for r in range(0, 16, 2):
        if first and r == 0:
            k.e(pk('add', S1, a, a + 2)); k.e(pk('mul', S2, a, a))
        else:
            if not (first and r == 2): k.e(pk('add', S1, S1, a + r))
            k.e(pk('fma', S2, a + r, a + r, S2))

def k_win(k, c):
    SPLIT = env('SPLIT', 0)
    XFER = 48 * KB
    def mid(g):
        k = g.k
        Z = 64; U = 96; T = 160; S = 176; RM_ = 180
        k.e("""
        s_lshl_b32 s67, s46, 13
        s_add_u32 s67, s67, %d
        v_lshl_add_u32 v44, v1, 4, s67     ; transfer area
        s_lshl_b32 s67, s46, 9
        s_add_u32 s67, s67, %d
        v_lshl_add_u32 v45, v1, 3, s67     ; (R,M) / stats slot
        v_lshrrev_b32 v46, 5, v1
        v_lshlrev_b32 v46, 4, v46
        v_add_u32 v46, %d, v46
        s_mov_b32 s70, %s
        s_mov_b32 s71, s70
        v_mov_b32 v6, %s
        ds_read_b64 v[%d:%d], v45
        """ % (XFER, g.AUX + 2048, g.AUX, hx(GC1 * 0.044715), hx(GC1), RM_, RM_ + 1))
        for b in range(2):
            for q in range(4):
                k.e('ds_read_b128 %s, v46 offset:%d' % (vr(U + 32 * b + 4 * q, 4), (2 + b) * 128 + q * 32))
                k.e('ds_read_b128 %s, v46 offset:%d' % (vr(U + 32 * b + 16 + 4 * q, 4), 1024 + (2 + b) * 128 + q * 32))
        k.e('s_setprio 1')
        k.e('s_waitcnt lgkmcnt(0)')
        k.e('v_mov_b32 v%d, v%d' % (RM_ + 2, RM_ + 1))
        k.e('s_barrier')
        for q in range(8): k.e('ds_read_b128 %s, v44 offset:%d' % (vr(Z + 4 * q, 4), q * 1024))
        for b in range(2):
            a = Z + 16 * b
            k.e('s_waitcnt lgkmcnt(%d)' % (4 - 4 * b))
            for hb in range(2):
                for e in range(4): k.e('v_permlane16_swap_b32 v%d, v%d' % (a + 8 * hb + e, a + 8 * hb + 4 + e))
            gelu_ops(k, a, U + 32 * b, U + 32 * b + 16, T, RM_, RM_ + 2)
            stat_ops(k, a, S, S + 2, b == 0)
        k.e('v_add_f32 v%d, v%d, v%d' % (S, S, S + 1))
        k.e('v_add_f32 v%d, v%d, v%d' % (S + 1, S + 2, S + 3))
        k.e('ds_write_b64 v45, %s' % vr(S, 2))
        k.e('s_waitcnt lgkmcnt(0)')
        k.e('s_barrier')
        for q in range(8): k.e('ds_write_b128 v44, %s offset:%d' % (vr(Z + 4 * q, 4), q * 1024))
        k.e('s_waitcnt lgkmcnt(0)')
    LP = 1; LPJ = env('LPJ', 3)
    KZ = c.nxt == 'wsp' and env('KEEPZ', 1)
    def post(g):
        if not LP: return
        k = g.k
        srd(k, 36, 'ws', WS_G, 256 * KB)
        k.e("""
        s_lshl_b32 s65, s30, 2
        s_add_u32 s65, s65, s46
        s_lshl_b32 s65, s65, 12            ; rb32*4096
        v_and_b32 v2, 31, v1
        v_lshrrev_b32 v3, 5, v1
        v_mul_u32_u24 v3, %d, v3
        v_lshl_add_u32 v2, v2, 3, v3
        s_lshl_b32 s67, s46, 9
        s_add_u32 s67, s67, %d
        v_lshl_add_u32 v3, v1, 3, s67
        s_setprio 2
        s_barrier
        """ % (7 * 256, g.AUX + 2048))
        lp = k.newlabel('lpoll')
        poll_init(k)
        k.label(lp)
        for p in range(7):
            k.e('buffer_load_dwordx2 %s, v2, s[36:39], s65 offen offset:%d sc1' % (vr(24 + 2 * p, 2), p * 256))
        k.e('s_waitcnt vmcnt(0)')
        k.e('v_max_u32 v5, v24, v25')
        for p in range(1, 7): k.e('v_max3_u32 v5, v5, v%d, v%d' % (24 + 2 * p, 25 + 2 * p))
        k.e('v_cmp_eq_u32 vcc, -1, v5')
        poll_back(k, lp)
        for p in range(1, 7): k.e(pk('add', 24, 24, 24 + 2 * p))
        stats_finish(k, 24, 1792, 40, 41, 26)
        k.e('ds_write_b64 v3, v[40:41]')
        k.e('s_waitcnt lgkmcnt(0)')
        k.e('s_barrier')
    def uw_loads(g):
        g.k.e('buffer_load_dwordx4 v[24:27], v2, s[40:43], s62 offen sc1')
        g.k.e('buffer_load_dwordx4 v[28:31], v2, s[40:43], s63 offen sc1')
    def aux(g):
        k = g.k
        srd(k, 40, 'ws', WS_UW, 32 * KB)
        k.e("""
        v_and_b32 v2, 31, v1
        v_lshlrev_b32 v2, 4, v2
        v_add_u32 v3, 7168, v2
        v_cmp_gt_u32 vcc, 32, v1
        s_lshl_b32 s62, s31, 9
        s_add_u32 s63, s62, %d
        v_cndmask_b32 v2, v2, v3, vcc
        v_lshlrev_b32 v3, 4, v1
        v_add_u32 v3, %d, v3
        """ % (16 * KB, g.AUX))
        uw_loads(g)
        return 2
    def aux_end(g):
        k = g.k
        lp = k.newlabel('uwp'); lc = k.newlabel('uwc')
        poll_init(k)
        k.e('s_branch %s' % lc)
        k.label(lp)
        uw_loads(g)
        k.e('s_waitcnt vmcnt(0)')
        k.label(lc)
        k.e("""
        v_max3_u32 v4, v24, v25, v26
        v_max3_u32 v4, v4, v27, v28
        v_max3_u32 v4, v4, v29, v30
        v_max_u32 v4, v4, v31
        v_cmp_eq_u32 vcc, -1, v4
        """)
        poll_back(k, lp)
        k.e("""
        ds_write_b128 v3, v[24:27]
        ds_write_b128 v3, v[28:31] offset:1024
        s_waitcnt lgkmcnt(0)
        """)
    def pre(g):
        k = g.k
        g.L16 = alloc(g, 1, 1); g.SA = alloc(g, 1, 1); g.GA = alloc(g, 1, 1); g.CA = alloc(g, 1, 1)
        g.R = alloc(g, 2, 2); g.M = alloc(g, 2, 2); g.P = alloc(g, 16)
        srd(k, 32, 'ws', ZB, max(WS_Z, WS_Z2N) - ZB + ZSZ); srd(k, 36, 'ws', WS_ST1, 512 * KB)
        k.e('v_lshlrev_b32 v%d, 4, v1' % g.L16)
        k.e("""
        s_lshl_b32 s61, s30, 2
        s_add_u32 s61, s61, s46           ; rb32
        s_lshr_b32 s64, s61, 1
        s_lshl_b32 s64, s64, 13           ; rb64*8192
        s_and_b32 s65, s61, 1
        s_lshl_b32 s65, s65, 8
        s_add_u32 s64, s64, s65           ; x1 stats offset
        s_lshl_b32 s65, s61, 12
        s_add_u32 s65, s65, %d            ; granule offset (row block)
        s_lshl_b32 s66, s31, 8
        s_add_u32 s66, s66, s65           ; own granule
        s_mul_i32 s60, s61, %d
        s_lshl_b32 s61, s31, 13
        s_add_u32 s60, s60, s61           ; Z1 offset
        v_lshlrev_b32 v5, 3, v3
        v_lshl_add_u32 v%d, v4, 12, v5    ; h*8*512 + row*8
        v_mul_u32_u24 v6, %d, v4
        v_add_u32 v%d, v6, v5             ; h*7*256 + row*8
        v_lshlrev_b32 v%d, 4, v4
        v_add_u32 v%d, %d, v%d
        """ % (WS_G - WS_ST1, 112 * 1024, g.SA, 7 * 256, g.GA, g.CA, g.CA, g.AUX, g.CA))
    def early(g):
        k = g.k
        for p in range(8):
            k.e('buffer_load_dwordx2 %s, v%d, s[36:39], s64 offen offset:%d sc1' % (vr(g.P + 2 * p, 2), g.SA, p * 512))
        k.e('s_waitcnt vmcnt(0)')
        for p in range(1, 8): k.e(pk('add', g.P, g.P, g.P + 2 * p))
        stats_finish(k, g.P, 1024, g.R, g.M, g.P + 2)
        if SPLIT:
            k.e('s_lshl_b32 s67, s46, 9')
            k.e('s_add_u32 s67, s67, %d' % (g.AUX + 2048))
            k.e('v_lshl_add_u32 v%d, v1, 3, s67' % g.SA)
            k.e('s_lshl_b32 s67, s46, 13')
            k.e('s_add_u32 s67, s67, %d' % XFER)
            k.e('v_lshl_add_u32 v%d, v1, 4, s67' % g.GA)
            k.e('v_mov_b32 v%d, v%d' % (g.R + 1, g.M))
            k.e('ds_write_b64 v%d, %s' % (g.SA, vr(g.R, 2)))
            k.e('s_waitcnt lgkmcnt(0)')
    def pre2(g): pass
    def epi(g):
        k = g.k
        c1 = -2.0 * 0.7978845608028654 * LOG2E
        U = g.FR; W0 = g.FR + 16; T = g.FR + 32; PS = g.FR + 48
        def rd_uw(j):
            for q in range(4):
                k.e('ds_read_b128 %s, v%d offset:%d' % (vr(U + 4 * q, 4), g.CA, j * 128 + q * 32))
                k.e('ds_read_b128 %s, v%d offset:%d' % (vr(W0 + 4 * q, 4), g.CA, 1024 + j * 128 + q * 32))
        k.e('s_nop 7')
        rd_uw(0)
        k.e('s_mov_b32 s70, %s' % hx(c1 * 0.044715)); k.e('s_mov_b32 s71, s70')
        k.e('v_mov_b32 v6, %s' % hx(c1))
        S1 = g.P; S2 = g.P + 2
        GR = g.P + 2
        n = 0
        def poll_loads():
            for p in range(7):
                k.e('buffer_load_dwordx2 %s, v%d, s[36:39], s65 offen offset:%d sc1' % (vr(GR + 2 * p, 2), g.GA, p * 256))
        cnt = [0]
        def block(j):
            a = g.acc(0, j)
            g.fix(0, j)
            k.e('s_waitcnt lgkmcnt(0)')
            lastz2 = 1 if SPLIT else 3
            gelu_ops(k, a, U, W0, T, g.R, g.M, after_t=(lambda: rd_uw(j + 1)) if (j < 7 and not (j == lastz2 and g.deferred)) else None)
            if j >= 4:
                if KZ:
                    for d in range(8): k.e('v_cvt_pk_bf16_f32 v%d, v%d, v%d' % (ZKEEP + 8 * (j - 4) + d, a + 2 * d, a + 2 * d + 1))
                else:
                    k.e('s_add_u32 s61, s60, %d' % (WS_Z - ZB + (j - 4) * 2048))
                    store_xf_tile(g, a, PS + 8 * (cnt[0] % 3), g.L16, 32, 's61', 0); cnt[0] += 1
            else: stat_ops(k, a, S1, S2, j == 0)
        if SPLIT:
            assert g.deferred and LPJ == 3
            for q in range(8): k.e('ds_write_b128 v%d, %s offset:%d' % (g.GA, vr(g.acc(0, 2) + 4 * q, 4), q * 1024))
            k.e('s_waitcnt lgkmcnt(0)')
            k.e('s_barrier')
        for j in range(2 if SPLIT else 4): block(j)
        k.e('v_add_f32 v%d, v%d, v%d' % (S1, S1, S1 + 1))
        k.e('v_add_f32 v%d, v%d, v%d' % (S1 + 1, S2, S2 + 1))
        if SPLIT:
            k.e('s_barrier')
            k.e('ds_read_b64 %s, v%d' % (vr(S2, 2), g.SA))
            k.e('s_waitcnt lgkmcnt(0)')
            k.e(pk('add', S1, S1, S2))
        k.e('v_mov_b32 v%d, v%d' % (S2, S1))
        k.e('v_mov_b32 v%d, v%d' % (S2 + 1, S1 + 1))
        k.e('v_lshlrev_b32 v5, 3, v3')
        k.e('s_nop 0')
        k.e('v_permlane32_swap_b32 v%d, v%d' % (S1, S2))
        k.e('v_permlane32_swap_b32 v%d, v%d' % (S1 + 1, S2 + 1))
        k.e('s_nop 1')
        k.e(pk('add', S1, S1, S2))
        k.e('v_min_u32 v%d, -2, v%d' % (S1, S1))
        k.e('v_min_u32 v%d, -2, v%d' % (S1 + 1, S1 + 1))
        k.e('s_mov_b32 exec_hi, 0')
        k.e('buffer_store_dwordx2 %s, v5, s[36:39], s66 offen sc1' % vr(S1, 2))
        k.e('s_mov_b32 exec_hi, -1')
        if env('WM', 0): mark(k, 0)
        NB4 = env('NB4', 1) if KZ else 4
        if g.deferred:
            g.deferred()
            rd_uw(4)
        if LPJ == 3: k.e('s_barrier')
        if SPLIT:
            assert NB4 >= 1
            for q in range(8): k.e('ds_read_b128 %s, v%d offset:%d' % (vr(g.acc(0, 2) + 4 * q, 4), g.GA, q * 1024))
        for j in range(4, 4 + NB4):
            block(j)
            if j == LPJ: k.e('s_barrier')
        if env('WM', 0): mark(k, 1)
        R2 = g.P + 4; M2 = g.P + 6
        k.e('s_lshl_b32 s67, s46, 9')
        k.e('s_add_u32 s67, s67, %d' % (g.AUX + 2048))
        k.e('v_lshl_add_u32 v5, v1, 3, s67')
        k.e('s_barrier')
        k.e('ds_read_b64 %s, v5' % vr(R2, 2))
        k.e('s_waitcnt lgkmcnt(0)')
        mark(k, 3)
        k.e('v_mov_b32 v%d, v%d' % (M2, R2 + 1))
        zo = ZOWN and c.nxt == 'wsp'
        if zo:
            assert g.M16
            ZA = g.P + 8
            k.e('''
            s_lshr_b32 s67, s46, 1
            s_lshl_b32 s67, s67, 15
            s_and_b32 s68, s46, 1
            s_lshl_b32 s68, s68, 13
            s_add_u32 s67, s67, s68
            s_add_u32 s67, s67, 16384
            v_bfe_u32 v5, v1, 4, 1
            v_lshl_add_u32 v%d, v5, 12, s67
            v_bfe_u32 v5, v1, 2, 2
            v_lshl_add_u32 v%d, v5, 8, v%d
            v_and_b32 v5, 2, v5
            v_or_b32 v5, v5, v4
            v_lshl_add_u32 v%d, v5, 6, v%d
            v_and_b32 v5, 3, v1
            v_lshl_add_u32 v%d, v5, 4, v%d
            v_xor_b32 v%d, 128, v%d
            ''' % (ZA, ZA, ZA, ZA, ZA, ZA, ZA, ZA + 1, ZA))
        for j in range(4):
            a = g.acc(0, j)
            for r in range(0, 16, 2): k.e(pk('fma', a + r, a + r, (R2,), (M2,)))
            k.e('s_add_u32 s61, s60, %d' % (WS_Z2N - ZB + j * 2048))
            if zo:
                store_xf_tile(g, a, a, g.L16, 32, 's61', 0)
            else:
                store_xf_tile(g, a, PS + 8 * (cnt[0] % 3), g.L16, 32, 's61', 0); cnt[0] += 1
        if zo:
            for j in range(4):
                for t in range(2): k.e('ds_write_b128 v%d, %s offset:%d' % (ZA + t, vr(g.acc(0, j) + 4 * t, 4), j * 1024))
        if g.LE: k.e('s_barrier')
        rest = list(range(4 + NB4, 8))
        NBS = env('NBS', 2)
        for j in rest[:NBS]: block(j)
        signal(k, 'C')
        if zo and LPW: k.e('s_barrier')
        for j in rest[NBS:]: block(j)
        k.e('s_waitcnt lgkmcnt(0)')
    sig = 's_lshl_b32 s100, s31, 8\ns_lshl_b32 s101, s30, 4\ns_add_u32 s100, s100, s101\ns_add_u32 s100, s100, %d' % FL_WIN
    wait = ('s_lshl_b32 s100, s30, 8\ns_add_u32 s100, s100, %d' % FL_WO, 64)
    H22 = env('H22', 0)
    k_gemm(k, c, 16, 14, 2, 2, 7, 128, 256, 2 if H22 else 4, 2 if H22 else 1, 1024, 32, 4, ('xf', WS_X1S, 1024), ('w', 'w_in', 7168, (256, [3584, 3584 + 128, 0, 128])),
           pre, pre2, epi, aux=aux, auxsz=4 * KB, auxbase=AUX_B, aux_end=aux_end, post=post, mid=mid if SPLIT else None, selfsig=True, early=early, SOFT=3, DEFER=3, dcols=([0, 1], [2, 3]) if H22 else ([0, 1, 2, 3], [4, 5, 6, 7]), JG=2, lazyfix=True, side=(28, uw_job), wait=wait, sig=sig)

def k_win2(k, c):
    assert c.nxt == 'wsp' and ZOWN
    def post(g):
        k = g.k
        srd(k, 36, 'ws', WS_G2, 512 * KB)
        k.e("""
        s_lshl_b32 s65, s30, 1
        s_lshr_b32 s66, s46, 1
        s_add_u32 s65, s65, s66
        s_lshl_b32 s65, s65, 14            ; rb64*16K
        s_and_b32 s66, s46, 1
        s_lshl_b32 s66, s66, 8
        s_add_u32 s65, s65, s66
        s_add_u32 s66, s65, 3584
        v_and_b32 v2, 31, v1
        v_lshrrev_b32 v3, 5, v1
        v_mul_u32_u24 v3, %d, v3
        v_lshl_add_u32 v2, v2, 3, v3
        s_lshl_b32 s67, s46, 9
        s_add_u32 s67, s67, %d
        v_lshl_add_u32 v3, v1, 3, s67
        s_setprio 2
        s_barrier
        """ % (14 * 512, g.AUX + 2048))
        lp = k.newlabel('lpoll')
        poll_init(k)
        k.label(lp)
        for p in range(14):
            k.e('buffer_load_dwordx2 %s, v2, s[36:39], s%d offen offset:%d sc1' % (vr(24 + 2 * p, 2), 65 + p // 7, (p % 7) * 512))
        k.e('s_waitcnt vmcnt(0)')
        k.e('v_max_u32 v5, v24, v25')
        for p in range(1, 14): k.e('v_max3_u32 v5, v5, v%d, v%d' % (24 + 2 * p, 25 + 2 * p))
        k.e('v_cmp_eq_u32 vcc, -1, v5')
        poll_back(k, lp)
        for p in range(1, 14): k.e(pk('add', 24, 24, 24 + 2 * p))
        stats_finish(k, 24, 1792, 56, 57, 26)
        k.e('ds_write_b64 v3, v[56:57]')
        k.e('s_waitcnt lgkmcnt(0)')
        k.e('s_barrier')
        if env('WLE', 2): k.e('s_barrier')
    def uw_loads(g):
        g.k.e('buffer_load_dwordx4 v[24:27], v2, s[40:43], s62 offen sc1')
        g.k.e('buffer_load_dwordx4 v[28:31], v2, s[40:43], s63 offen sc1')
    def aux(g):
        k = g.k
        srd(k, 40, 'ws', WS_UW, 32 * KB)
        k.e("""
        v_and_b32 v2, 31, v1
        v_lshlrev_b32 v2, 4, v2
        v_add_u32 v3, 7168, v2
        v_cmp_gt_u32 vcc, 32, v1
        s_lshl_b32 s62, s31, 9
        s_add_u32 s63, s62, %d
        v_cndmask_b32 v2, v2, v3, vcc
        v_lshlrev_b32 v3, 4, v1
        v_add_u32 v3, %d, v3
        """ % (16 * KB, g.AUX))
        uw_loads(g)
        return 2
    def aux_end(g):
        k = g.k
        lp = k.newlabel('uwp'); lc = k.newlabel('uwc')
        poll_init(k)
        k.e('s_branch %s' % lc)
        k.label(lp)
        uw_loads(g)
        k.e('s_waitcnt vmcnt(0)')
        k.label(lc)
        k.e("""
        v_max3_u32 v4, v24, v25, v26
        v_max3_u32 v4, v4, v27, v28
        v_max3_u32 v4, v4, v29, v30
        v_max_u32 v4, v4, v31
        v_cmp_eq_u32 vcc, -1, v4
        """)
        poll_back(k, lp)
        k.e("""
        ds_write_b128 v3, v[24:27]
        ds_write_b128 v3, v[28:31] offset:1024
        s_waitcnt lgkmcnt(0)
        """)
    def pre(g):
        k = g.k
        g.L16 = alloc(g, 1, 1); g.L8 = alloc(g, 1, 1); g.CA = alloc(g, 1, 1)
        g.R = alloc(g, 4); g.M = alloc(g, 4); g.P = alloc(g, 16)
        srd(k, 32, 'ws', WS_Z2N, ZSZ); srd(k, 36, 'ws', WS_ST1, 256 * KB); srd(k, 40, 'ws', WS_G2, 512 * KB)
        k.e('v_lshlrev_b32 v%d, 4, v1' % g.L16)
        k.e('v_lshlrev_b32 v%d, 3, v1' % g.L8)
        k.e("""
        s_lshl_b32 s61, s30, 1
        s_add_u32 s61, s61, s50           ; rb64
        s_lshl_b32 s64, s61, 13           ; x1 stats offset
        s_add_u32 s65, s64, 4096
        s_lshl_b32 s66, s31, 1
        s_add_u32 s66, s66, s51
        s_lshl_b32 s66, s66, 9
        s_lshl_b32 s67, s61, 14
        s_add_u32 s66, s66, s67           ; own granule
        s_mul_i32 s60, s61, %d
        s_lshl_b32 s61, s31, 13
        s_add_u32 s60, s60, s61
        s_lshl_b32 s61, s51, 12
        s_add_u32 s60, s60, s61           ; Z2N offset of block (0,0)
        s_add_u32 s61, s60, %d
        s_lshl_b32 s67, s51, 8
        s_add_u32 s67, s67, %d
        v_lshl_add_u32 v%d, v4, 4, s67
        """ % (2 * 112 * 1024, 112 * 1024, g.AUX, g.CA))
    def early(g):
        k = g.k
        if ZF32:
            assert g.free <= BSV
            srd(k, 80, 'b_sp')
            k.e('s_lshr_b32 s67, s64, 6')
            k.e('v_and_b32 v5, 15, v1')
            k.e('v_lshlrev_b32 v5, 1, v5')
            for q in range(4): k.e('buffer_load_ushort v%d, v5, s[80:83], s67 offen offset:%d' % (BSV + q, q * 32))
        Pp = g.FR
        for p in range(16):
            k.e('buffer_load_dwordx2 %s, v%d, s[36:39], s%d offen offset:%d sc1' % (vr(Pp + 2 * p, 2), g.L8, 64 + p // 8, (p % 8) * 512))
        k.e('s_waitcnt vmcnt(0)')
        for p in range(1, 16): k.e(pk('add', Pp, Pp, Pp + 2 * p))
        T_ = Pp + 2
        k.e('v_mul_f32 v%d, %s, v%d' % (Pp, hx(1.0 / 1024), Pp))
        k.e('v_mul_f32 v%d, v%d, v%d' % (T_, Pp, Pp))
        k.e('v_mov_b32 v%d, %s' % (T_ + 1, hx(1.0 / 1024)))
        k.e('v_fma_f32 v%d, v%d, v%d, -v%d' % (Pp + 1, Pp + 1, T_ + 1, T_))
        k.e('v_max_f32 v%d, 0, v%d' % (Pp + 1, Pp + 1))
        k.e('v_add_f32 v%d, %s, v%d' % (Pp + 1, hx(1e-5), Pp + 1))
        k.e('v_rsq_f32 v%d, v%d' % (g.R, Pp + 1))
        k.e('s_nop 0')
        k.e('v_mul_f32_e64 v%d, -v%d, v%d' % (g.M, Pp, g.R))
        k.e('v_mov_b32 v%d, v%d' % (g.R + 2, g.R))
        k.e('v_mov_b32 v%d, v%d' % (g.M + 2, g.M))
        k.e('s_nop 1')
        k.e('v_permlane32_swap_b32 v%d, v%d' % (g.R, g.R + 2))
        k.e('v_permlane32_swap_b32 v%d, v%d' % (g.M, g.M + 2))
    def epi(g):
        k = g.k
        U = g.FR; W0 = g.FR + 16; T = g.FR + 32
        def rd_uw(j):
            o = (j // 2) * 512 + (j % 2) * 128
            for q in range(4):
                k.e('ds_read_b128 %s, v%d offset:%d' % (vr(U + 4 * q, 4), g.CA, o + q * 32))
                k.e('ds_read_b128 %s, v%d offset:%d' % (vr(W0 + 4 * q, 4), g.CA, 1024 + o + q * 32))
        rd_uw(0)
        k.e('s_mov_b32 s70, %s' % hx(GC1 * 0.044715)); k.e('s_mov_b32 s71, s70')
        k.e('v_mov_b32 v6, %s' % hx(GC1))
        SS = g.P
        def block(n):
            j, i = n // 2, n % 2
            a = g.acc(i, j)
            g.fix(i, j)
            if i == 0: k.e('s_waitcnt lgkmcnt(0)')
            gelu_ops(k, a, U, W0, T, g.R + 2 * i, g.M + 2 * i, after_t=(lambda: rd_uw(j + 1)) if (i == 1 and j in (0, 2)) else None)
            if j >= 2:
                if not ZF32:
                    for d in range(8): k.e('v_cvt_pk_bf16_f32 v%d, v%d, v%d' % (a + d, a + 2 * d, a + 2 * d + 1))
            else: stat_ops(k, a, SS + 4 * i, SS + 4 * i + 2, j == 0)
        for n in range(4): block(n)
        for i in range(2):
            k.e('v_add_f32 v%d, v%d, v%d' % (SS + 4 * i, SS + 4 * i, SS + 4 * i + 1))
            k.e('v_add_f32 v%d, v%d, v%d' % (SS + 4 * i + 1, SS + 4 * i + 2, SS + 4 * i + 3))
        k.e('s_nop 1')
        k.e('v_permlane32_swap_b32 v%d, v%d' % (SS, SS + 4))
        k.e('v_permlane32_swap_b32 v%d, v%d' % (SS + 1, SS + 5))
        k.e('s_nop 1')
        k.e(pk('add', SS, SS, SS + 4))
        k.e('v_min_u32 v%d, -2, v%d' % (SS, SS))
        k.e('v_min_u32 v%d, -2, v%d' % (SS + 1, SS + 1))
        k.e('buffer_store_dwordx2 %s, v%d, s[40:43], s66 offen sc1' % (vr(SS, 2), g.L8))
        if env('WM', 0): mark(k, 0)
        NB4 = env('NB4', 1)
        g.deferred()
        rd_uw(2)
        k.e('s_barrier')
        for n in range(4, 4 + NB4): block(n)
        if env('WM', 0): mark(k, 1)
        R2 = g.P + 4; ZA = g.P + 12
        k.e("""
        s_lshl_b32 s67, s50, 10
        s_add_u32 s67, s67, %d
        v_add_u32 v7, s67, v%d
        s_lshl_b32 s67, s50, 15
        s_lshl_b32 s68, s51, 11
        s_add_u32 s67, s67, s68
        s_add_u32 s67, s67, 16384
        v_bfe_u32 v5, v1, 4, 1
        v_lshl_add_u32 v%d, v5, 12, s67
        v_bfe_u32 v5, v1, 2, 2
        v_lshl_add_u32 v%d, v5, 8, v%d
        v_and_b32 v5, 2, v5
        v_or_b32 v5, v5, v4
        v_lshl_add_u32 v%d, v5, 6, v%d
        v_and_b32 v5, 3, v1
        v_lshl_add_u32 v%d, v5, 4, v%d
        v_xor_b32 v%d, 128, v%d
        s_barrier
        ds_read_b64 %s, v7
        ds_read_b64 %s, v7 offset:512
        s_waitcnt lgkmcnt(0)
        """ % (g.AUX + 2048, g.L8, ZA, ZA, ZA, ZA, ZA, ZA, ZA, ZA + 1, ZA, vr(R2, 2), vr(R2 + 4, 2)))
        mark(k, 3)
        for i in range(2): k.e('v_mov_b32 v%d, v%d' % (R2 + 4 * i + 2, R2 + 4 * i + 1))
        for i in range(2):
            for j in range(2):
                a = g.acc(i, j)
                for r in range(0, 16, 2): k.e(pk('fma', a + r, a + r, (R2 + 4 * i,), (R2 + 4 * i + 2,)))
                store_xf_tile(g, a, a, g.L16, 32, 's%d' % (60 + i), j * 2048)
        if env('WLE', 2) == 1: k.e('s_barrier')
        for i in range(2):
            for j in range(2):
                for t in range(2): k.e('ds_write_b128 v%d, %s offset:%d' % (ZA + t, vr(g.acc(i, j) + 4 * t, 4), i * 8192 + j * 1024))
        rest = list(range(4 + NB4, 8))
        NBS = env('NBS', 2)
        for n in rest[:NBS]: block(n)
        signal(k, 'C')
        if env('WLE', 2) == 2: k.e('s_barrier')
        for n in rest[NBS:]: block(n)
        k.e('s_waitcnt lgkmcnt(0)')
    sig = 's_lshl_b32 s100, s31, 8\ns_lshl_b32 s101, s30, 4\ns_add_u32 s100, s100, s101\ns_add_u32 s100, s100, %d' % FL_WIN
    wait = ('s_lshl_b32 s100, s30, 8\ns_add_u32 s100, s100, %d' % FL_WO, 64)
    k_gemm(k, c, 16, 14, 2, 2, 7, 128, 256, 2, 2, 1024, 32, 4, ('xf', WS_X1S, 1024), ('w', 'w_in', 7168, (256, [3584, 0, 3584 + 128, 128])),
           pre, nop, epi, aux=aux, auxsz=4 * KB, auxbase=AUX_B, aux_end=aux_end, post=post, selfsig=True, early=early, SOFT=3, DEFER=3,
           dcols=([0, 1], [2, 3]), JG=2, lazyfix=True, side=(28, uw_job), wait=wait, sig=sig, accmap=lambda i, j: (j // 2) * 4 + i * 2 + j % 2)

def k_wsp(k, c):
    def pre(g):
        k = g.k
        g.L16 = alloc(g, 1, 1); g.L2 = alloc(g, 1, 1); g.B = alloc(g, 4); g.Z = alloc(g, 32)
        srd(k, 32, 'ws', WS_Z, ZSZ); srd(k, 36, 'ws', WS_U2, ZSZ); srd(k, 40, 'b_sp')
        k.e('v_lshlrev_b32 v%d, 4, v1' % g.L16)
        k.e('''
        s_lshl_b32 s60, s31, 13
        s_lshl_b32 s61, s51, 12
        s_add_u32 s60, s60, s61
        s_lshl_b32 s61, s30, 2
        s_lshl_b32 s62, s50, 1
        s_add_u32 s61, s61, s62           ; rb0
        s_lshl_b32 s63, s61, 6
        s_mul_i32 s61, s61, %d
        s_add_u32 s60, s60, s61
        s_add_u32 s61, s60, %d
        v_lshlrev_b32 v%d, 1, v3
        ''' % (112 * 1024, 112 * 1024, g.L2))
    def pre2(g):
        k = g.k
        for i in range(2):
            k.e('buffer_load_ushort v%d, v%d, s[40:43], s63 offen offset:%d' % (g.B + 2 * i, g.L2, i * 64))
        for i in range(2):
            for j in range(2):
                for t in range(2):
                    k.e('buffer_load_dwordx4 %s, v%d, s[32:35], s%d offen offset:%d sc1' % (vr(g.Z + 16 * i + 8 * j + 4 * t, 4), g.L16, 60 + i, (2 * j + t) * 1024))
    def epi(g):
        k = g.k
        T = g.FR
        k.e('s_waitcnt vmcnt(0)')
        for i in range(2): k.e('v_lshlrev_b32 v%d, 16, v%d' % (g.B + 2 * i, g.B + 2 * i))
        k.e('s_nop 7')
        for j in range(2):
            for i in range(2):
                a = g.acc(i, j); z = g.Z + 16 * i + 8 * j
                for d in range(8): unpack(k, T + 2 * d, T + 2 * d + 1, z + d)
                for d in range(8): k.e(pk('add', a + 2 * d, a + 2 * d, (g.B + 2 * i,)))
                for d in range(8): k.e(pk('mul', a + 2 * d, a + 2 * d, T + 2 * d))
                store_xf_tile(g, a, z, g.L16, 36, 's%d' % (60 + i), j * 2048)
    KZ = c.prev == 'win' and env('KEEPZ', 1)
    def preK(g):
        k = g.k
        g.L16 = alloc(g, 1, 1); g.L2 = alloc(g, 1, 1); g.B = alloc(g, 2, 2)
        srd(k, 36, 'ws', WS_U2, ZSZ); srd(k, 40, 'b_sp')
        k.e('v_lshlrev_b32 v%d, 4, v1' % g.L16)
        k.e('''
        s_lshl_b32 s60, s31, 13
        s_lshl_b32 s61, s30, 2
        s_add_u32 s61, s61, s46           ; rb32
        s_lshl_b32 s63, s61, 6
        s_mul_i32 s61, s61, %d
        s_add_u32 s60, s60, s61
        s_add_u32 s61, s60, 4096
        v_lshlrev_b32 v%d, 1, v3
        ''' % (112 * 1024, g.L2))
    def pre2K(g):
        g.k.e('buffer_load_ushort v%d, v%d, s[40:43], s63 offen' % (g.B, g.L2))
    def epiK(g):
        k = g.k
        T = g.FR
        k.e('s_waitcnt vmcnt(0)')
        k.e('v_lshlrev_b32 v%d, 16, v%d' % (g.B, g.B))
        for j in range(4):
            a = g.acc(0, j); z = ZKEEP + 8 * j
            for d in range(8): unpack(k, T + 2 * d, T + 2 * d + 1, z + d)
            for d in range(8): k.e(pk('add', a + 2 * d, a + 2 * d, (g.B,)))
            for d in range(8): k.e(pk('mul', a + 2 * d, a + 2 * d, T + 2 * d))
            store_xf_tile(g, a, z, g.L16, 36, 's%d' % (60 + j // 2), (j % 2) * 2048)
    sig = 's_lshl_b32 s100, s30, 8\ns_lshl_b32 s101, s31, 4\ns_add_u32 s100, s100, s101\ns_add_u32 s100, s100, %d' % FL_WSP
    wait = ('s_lshl_b32 s100, s31, 8\ns_add_u32 s100, s100, %d' % FL_WIN, 64)
    def pre22(g):
        k = g.k
        g.L16 = alloc(g, 1, 1); g.L2 = alloc(g, 1, 1); g.B = alloc(g, 4)
        srd(k, 36, 'ws', WS_U2, ZSZ); srd(k, 40, 'b_sp')
        k.e('v_lshlrev_b32 v%d, 4, v1' % g.L16)
        k.e('''
        s_lshl_b32 s60, s31, 13
        s_lshl_b32 s61, s51, 12
        s_add_u32 s60, s60, s61
        s_lshl_b32 s61, s30, 2
        s_lshl_b32 s62, s50, 1
        s_add_u32 s61, s61, s62           ; rb0
        s_lshl_b32 s63, s61, 6
        s_mul_i32 s61, s61, %d
        s_add_u32 s60, s60, s61
        s_add_u32 s61, s60, %d
        v_lshlrev_b32 v%d, 1, v3
        ''' % (112 * 1024, 112 * 1024, g.L2))
    def pre22f(g):
        pre22(g)
        k = g.k
        for q in range(4): k.e('v_lshlrev_b32 v%d, 16, v%d' % (BSV + q, BSV + q))
        for i in range(2):
            for j in range(2):
                for r in range(16): k.e('v_mov_b32 v%d, v%d' % (g.acc(i, j) + r, BSV + 2 * i + (r // 4) % 2))
    def epi22f(g):
        k = g.k
        for j in range(2):
            for i in range(2):
                a = g.acc(i, j); z = ZKEEP + 16 * (2 * i + j)
                g.fix(i, j)
                k.e('s_nop 0')
                for d in range(8): k.e(pk('mul', a + 2 * d, a + 2 * d, z + 2 * d))
                store_xf_tile(g, a, a, g.L16, 36, 's%d' % (60 + i), j * 2048)
    def pre222(g):
        for i in range(2): g.k.e('buffer_load_ushort v%d, v%d, s[40:43], s63 offen offset:%d' % (g.B + 2 * i, g.L2, i * 64))
    def epi22(g):
        k = g.k
        T = g.FR
        k.e('s_waitcnt vmcnt(0)')
        for i in range(2): k.e('v_lshlrev_b32 v%d, 16, v%d' % (g.B + 2 * i, g.B + 2 * i))
        for j in range(2):
            for i in range(2):
                a = g.acc(i, j); z = ZKEEP + 16 * (2 * i + j)
                for d in range(8): unpack(k, T + 2 * d, T + 2 * d + 1, z + d)
                for d in range(8): k.e(pk('add', a + 2 * d, a + 2 * d, (g.B + 2 * i,)))
                for d in range(8): k.e(pk('mul', a + 2 * d, a + 2 * d, T + 2 * d))
                store_xf_tile(g, a, z, g.L16, 36, 's%d' % (60 + i), j * 2048)
    tailpre = None
    if TPRE:
        su, pcs = proj_wpre('w_out', 24, 4, 's46')
        def tp(k, n):
            cnt = 0
            for st in (2 * n, 2 * n + 1):
                if st < TPRE:
                    for x in pcs(st):
                        k.e(x)
                        if 'm0' in x: k.e('s_nop 0')
                    cnt += 4
            return cnt
        tailpre = (su, tp)
    if W22 and ZF32: k_gemm(k, c, 16, 14, 2, 2, 7, 128, 128, 2, 2, 2048, 64, 3, ('rm', 'w_sp', 4096), ('z', WS_Z2N, 1792), pre22f, nop, epi22f, pf='w_out', wait=wait, sig=sig, dep='Y', GU=2, RWD=2, frbase=ZKEEP + 64, own='s_lshl_b32 s68, s30, 1', cinit=True, lazyfix=True, tailpre=tailpre)
    elif W22: k_gemm(k, c, 16, 14, 2, 2, 7, 128, 128, 2, 2, 2048, 64, 3, ('rm', 'w_sp', 4096), ('z', WS_Z2N, 1792), pre22, pre222, epi22, pf='w_out', wait=wait, sig=sig, dep='Y', GU=2, RWD=2, frbase=ZKEEP + 64, own='s_lshl_b32 s68, s30, 1')
    elif KZ: k_gemm(k, c, 16, 14, 2, 2, 7, 128, 128, 2 if env('H22', 0) else 4, 2 if env('H22', 0) else 1, 2048, 64, 3, ('rm', 'w_sp', 4096), ('z', WS_Z2N, 1792), preK, pre2K, epiK, pf='w_out', wait=wait, sig=sig, dep='Y', GU=2, RWD=2, frbase=ZKEEP + 32, own='s_lshl_b32 s68, s30, 1')
    else: k_gemm(k, c, 16, 14, 2, 2, 7, 128, 128, 2, 2, 2048, 64, 3, ('rm', 'w_sp', 4096), ('z', WS_Z2N, 1792), pre, pre2, epi, pf='w_out', wait=wait, sig=sig, dep='Y', GU=2, RWD=2, own='s_lshl_b32 s68, s30, 1')

def k_attn(k, c):
    NS = 4; STG = 32768; NST = 8
    phase_begin(k, c)
    SA, SB, O, NEGM = 8, 24, 40, 56
    L, ONES, Q, KF, VF, P = 72, 76, 80, 88, 96, 104
    A0 = 112; AC = 113; AO = 114; M = 115; T = 116; T2 = 117; PFA = 118; MA = 119; PFD = 120; MT = 124
    assert c.nxt == 'wo'
    k.e("""
    v_and_b32 v1, 63, v0
    s_mov_b32 s46, s3
    s_and_b32 s47, s2, 7
    s_lshr_b32 s48, s2, 3
    s_lshl_b32 s30, s47, 2
    s_lshr_b32 s49, s48, 3
    s_add_u32 s30, s30, s49            ; head
    s_and_b32 s31, s48, 7              ; q block (256 rows)
    v_lshlrev_b32 v%d, 4, v1
    s_lshl_b32 s50, s31, 3
    s_add_u32 s50, s50, s46            ; rb of this wave's queries
    s_lshl_b32 s51, s30, 6
    s_add_u32 s51, s51, s50
    s_lshl_b32 s51, s51, 11            ; Q offset
    s_lshl_b32 s52, s30, 18            ; KV head base
    s_lshl_b32 s53, s46, 12            ; wave part (4KB = one tile)
    s_lshl_b32 s62, s2, 13
    v_lshl_add_u32 v%d, v0, 4, s62     ; prefetch offset wg*8K + tid*16
    s_mov_b32 s62, %d
    s_waitcnt lgkmcnt(0)
    """ % (A0, PFA, 0x40000000 if env('PFOFF', 0) else 0))
    mark(k, 0)
    srd(k, 36, 'ws', WS_KV, 256 * KB, soff='s52'); srd(k, 32, 'ws', WS_Q, 4 * MB)
    set_flag(k, 's_lshl_b32 s100, s31, 8\ns_lshl_b32 s101, s30, 2\ns_add_u32 s100, s100, s101\ns_add_u32 s100, s100, %d' % FL_ATT)
    handoff(k, 's_lshr_b32 s100, s30, 1\ns_lshl_b32 s100, s100, 8\ns_add_u32 s100, s100, %d' % FL_QKV, 64, role='A')
    def dma(slot_expr):
        return ['s_add_u32 m0, s53, %s' % slot_expr] + \
               ['buffer_load_dwordx4 v%d, s[36:39], s56 offen offset:%d sc1 lds' % (A0, q * 1024) for q in range(4)] + \
               ['s_add_u32 s56, s56, %d' % STG]
    def pfl(n): return 'buffer_load_dwordx4 %s, v%d, %s, s62 offen' % (vr(PFD, 4), PFA, sr(n))
    def emit_dma(slot_expr):
        d = dma(slot_expr); k.e(d[0]); k.e('s_nop 0')
        for x in d[1:]: k.e(x)
    AST = env('AST', 1)
    if AST:
        k.e('s_lshl_b32 s56, s46, 10')
        k.e('s_mov_b32 m0, s56')
        k.e('s_mul_i32 s58, s46, 3072')
        k.e('buffer_load_dwordx4 v%d, s[36:39], s56 offen sc1 lds' % A0)
    else:
        k.e('s_mov_b32 s56, s53')
        emit_dma('0')
    k.e('buffer_load_dwordx4 %s, v%d, s[32:35], s51 offen sc1' % (vr(Q, 4), A0))
    k.e('buffer_load_dwordx4 %s, v%d, s[32:35], s51 offen offset:1024 sc1' % (vr(Q + 4, 4), A0))
    if AST:
        k.e('s_add_u32 s56, s58, 8192')
        k.e('s_mov_b32 m0, s56')
        k.e('s_nop 0')
        for q in range(3): k.e('buffer_load_dwordx4 v%d, s[36:39], s56 offen offset:%d sc1 lds' % (A0, q * 1024))
        k.e('s_add_u32 s56, s53, %d' % STG)
        emit_dma(str(STG))
    srd(k, 64, 'w_in'); srd(k, 68, 'w_sp'); srd(k, 32, 'wo')
    srd(k, 40, 'ws', WS_O, 4 * MB)
    k.e("""
    s_lshl_b32 s54, s50, 16
    s_lshl_b32 s55, s30, 11
    s_add_u32 s54, s54, s55            ; O offset
    v_and_b32 v3, 3, v1
    v_bfe_u32 v4, v1, 2, 1
    v_bfe_u32 v5, v1, 4, 1
    v_xor_b32 v4, v4, v5
    v_or_b32 v3, v3, v4
    v_cmp_eq_u32 vcc, 0, v3
    v_mov_b32 v4, 0x3f803f80
    s_nop 1
    v_cndmask_b32 v%d, 0, v4, vcc
    v_mov_b32 v%d, v%d
    v_mov_b32 v%d, v%d
    v_mov_b32 v%d, v%d
    """ % (ONES, ONES + 1, ONES, ONES + 2, ONES, ONES + 3, ONES))
    def adr(t): return (AC if t < 16 else AO), (t % 16) * 4096
    def rdK(t):
        a, o = adr(t)
        return ['ds_read_b128 %s, v%d offset:%d' % (vr(KF, 4), a, o), 'ds_read_b128 %s, v%d offset:%d' % (vr(KF + 4, 4), a, o + 1024)]
    def rdV(t):
        a, o = adr(t)
        return ['ds_read_b128 %s, v%d offset:%d' % (vr(VF, 4), a, o + 2048), 'ds_read_b128 %s, v%d offset:%d' % (vr(VF + 4, 4), a, o + 3072)]
    def qk(S, c):
        return ['v_mfma_f32_32x32x16_bf16 %s, %s, %s, %s' % (vr(S, 16), vr(KF, 4), vr(Q, 4), c),
                'v_mfma_f32_32x32x16_bf16 %s, %s, %s, %s' % (vr(S, 16), vr(KF + 4, 4), vr(Q + 4, 4), vr(S, 16))]
    def maxtile(S, first):
        st = 0
        if first:
            k.e('v_max3_f32 v%d, v%d, v%d, v%d' % (M, S, S + 1, S + 2))
            k.e('v_max_f32 v%d, v%d, v%d' % (M, M, S + 3))
            st = 4
        for r in range(st, 16, 2): k.e('v_max3_f32 v%d, v%d, v%d, v%d' % (M, M, S + r, S + r + 1))
    def set_negm(bias):
        k.e('v_mov_b32 v%d, v%d' % (T, M))
        k.e('s_nop 1')
        k.e('v_permlane32_swap_b32 v%d, v%d' % (M, T))
        k.e('s_nop 1')
        k.e('v_max_f32 v%d, v%d, v%d' % (M, M, T))
        k.e('v_sub_f32 v%d, %s, v%d' % (NEGM, hx(-bias), M))
        for r in range(1, 16): k.e('v_mov_b32 v%d, v%d' % (NEGM + r, NEGM))
    def zero_state():
        for r in range(16): k.e('v_mov_b32 v%d, 0' % (O + r))
        for r in range(4):
            k.e('v_mov_b32 v%d, 0' % (L + r))
            k.e('v_mov_b32 v%d, 0' % (P + 4 + r))
            k.e('v_mov_b32 v%d, 0' % (VF + 4 + r))
        k.e('v_mov_b32 v%d, v%d' % (AC, A0))
        k.e('v_add_u32 v%d, 0x10000, v%d' % (AO, A0))
        k.e('s_mov_b32 s57, 0')
    zero_state()
    if not MP0: srd(k, 80, 'ws', 0, 256 * KB)
    if not MP0: k.e("""
    s_and_b32 s49, s2, 3               ; k quarter
    s_lshl_b32 s49, s49, 3
    s_add_u32 s49, s49, s46            ; 32-row group
    s_mul_i32 s60, s49, %d
    s_lshr_b32 s63, s2, 2              ; col block
    s_lshl_b32 s63, s63, 7
    s_add_u32 s60, s60, s63
    s_add_u32 s60, s60, 4096
    s_add_u32 s61, s60, 12288
    s_and_b32 s49, s2, 3
    s_lshl_b32 s49, s49, 2
    s_and_b32 s63, s46, 3
    s_add_u32 s49, s49, s63
    s_lshl_b32 s49, s49, 8             ; silu offset of row groups 2(w&3), +1
    s_add_u32 s49, s49, %d
    v_lshrrev_b32 v%d, 3, v1
    v_mul_u32_u24 v%d, %d, v%d
    v_and_b32 v%d, 7, v1
    v_lshl_add_u32 v%d, v%d, 4, v%d
    v_lshlrev_b32 v%d, 4, v%d
    """ % (32 * 12288, WS_SC, MT, MA, 4 * 12288, MT, MT + 1, MA, MT + 1, MA, MT, MT))
    def mld(j): return ['s_add_u32 m0, s53, %d' % (AUX_A + j * 1024), 'buffer_load_dwordx4 v%d, s[80:83], s%d offen lds' % (MA, (60, 61, 63, 49)[j])]
    k.e('s_waitcnt vmcnt(%d)' % (7 if AST else 0))
    k.e('s_barrier')
    mark(k, 1)
    for r in rdK(1): k.e(r)
    k.e('s_waitcnt lgkmcnt(0)')
    for m in qk(SB, '0'): k.e(m)
    for r in rdK(0): k.e(r)
    k.e('s_waitcnt lgkmcnt(0)')
    for m in qk(SA, '0'): k.e(m)
    def extras():
        if MP0: return
        k.e(pfl(32))
        k.e('buffer_load_dwordx4 %s, v%d, s[80:83], s49 offen' % (vr(MSV, 4), MT))
        k.e('buffer_load_dwordx4 %s, v%d, s[80:83], s49 offen offset:128' % (vr(MSV + 4, 4), MT))
        srd(k, 80, 'w_mod')
        k.e('s_mov_b32 s49, 0x40000000')
        k.e('s_mov_b32 s63, 0x40000000')
    if AST: k.e('s_nop 7')
    else:
        emit_dma(str(STG)); extras()
    maxtile(SB, True)
    maxtile(SA, False)
    set_negm(40.0)
    if AST:
        k.e('s_waitcnt vmcnt(4)')
        k.e('s_barrier')
        extras()
    mark(k, 2)
    if env('APRIO', 0):
        k.e('s_cmp_ge_u32 s46, 4')
        k.e('s_cbranch_scc0 L_attn_noprio')
        k.e('s_setprio 1')
        k.label('L_attn_noprio')
    k.e('s_mov_b32 s59, %d' % (NST // 2))
    k.e('s_nop 0')
    for m in qk(SA, vr(NEGM, 16)): k.e(m)
    k.e(rdK(1)[0])
    k.e('ds_read_b32 v%d, v%d' % (T, A0))
    k.e(rdK(1)[1])
    k.e(rdV(0)[0])
    k.e('s_nop 7')
    lp = 'L_attn_loop'
    def pv(h): return 'v_mfma_f32_32x32x16_bf16 %s, %s, %s, %s' % (vr(O, 16), vr(VF + 4 * h, 4), vr(P + 4 * h, 4), vr(O, 16))
    def ls(h): return 'v_mfma_f32_16x16x32_bf16 %s, %s, %s, %s' % (vr(L, 4), vr(ONES, 4), vr(P + 4 * h, 4), vr(L, 4))
    def iteration(nsoft, pat0):
        for t in range(16):
            cur, nxt = (SA, SB) if t % 2 == 0 else (SB, SA)
            m_qk = qk(nxt, vr(NEGM, 16))
            kn = rdK(t + 2); v0n = rdV(t + 1)[0]; v1n = rdV(t)[1]
            ex = ['v_exp_f32 v%d, v%d' % (cur + r, cur + r) for r in range(16)]
            cv = ['v_cvt_pk_bf16_f32 v%d, v%d, v%d' % (P + d, cur + 2 * d, cur + 2 * d + 1) for d in range(8)]
            W = 's_waitcnt lgkmcnt(2)'
            head = []; xs = []
            if t % 8 == 6: head = ['s_waitcnt vmcnt(%d)' % (9 if not MP0 else (6 if t == 6 else 7)), 's_barrier']
            if t == 14 and not c.last and not nsoft: head = ['s_cmp_eq_u32 s59, 1', 's_cbranch_scc0 L_attn_nd', 's_waitcnt vmcnt(0)', 'L_attn_nd:'] + head
            d = dma('s58')
            if t % 8 == 0: xs = ['s_xor_b32 s58, s57, 0x%x' % (0x10000 if t == 0 else 0x18000), d[0], d[1]]
            elif t % 8 < 3: xs = [d[1 + t % 8]]
            elif t % 8 == 3: xs = [d[4], d[5]]
            elif t == 4: xs = [pfl(64)]
            elif t == 5: xs = [pfl(68)]
            elif MP0 and t == 7: xs = [pfl(32)]
            elif MP0 and t == 12: xs = ['s_add_u32 s62, s62, %d' % (2 * MB)]
            elif MP0 and t == 13: xs = []
            elif MP0 and t == 15: xs = ['s_xor_b32 s57, s57, 0x10000']
            elif t == 7: xs = mld(0)
            elif t == 12: xs = ['s_add_u32 s62, s62, %d' % (2 * MB)] + mld(2)
            elif t == 13: xs = mld(1)
            elif t == 15: xs = ['s_xor_b32 s57, s57, 0x10000'] + mld(3) + ['s_add_u32 s63, s60, %d' % (2 * 12288), 's_add_u32 s49, s60, %d' % (3 * 12288)]
            tail = ['v_swap_b32 v%d, v%d' % (AC, AO), 's_sub_u32 s59, s59, 1', 's_cmp_lg_u32 s59, 0'] if t == 15 else []
            pat = pat0 if t < nsoft else os.environ.get('APAT', 'eeeQeeePeeccLcc')
            body = []
            for hh in range(2):
                ei = 8 * hh; ci = 4 * hh
                for ch in pat:
                    if ch == 'e': body.append(ex[ei]); ei += 1
                    elif ch == 'c': body.append(cv[ci]); ci += 1
                    elif ch == 'Q': body += [W, m_qk[hh], kn[hh]]
                    elif ch == 'P': body += [pv(1 - hh), v1n if hh == 0 else v0n]
                    elif ch == 'L': body.append(ls(1 - hh))
                assert ei == 8 * hh + 8 and ci == 4 * hh + 4
            if tail:
                last_ds = max(i for i, x in enumerate(body) if x.startswith('ds_') or x.startswith('v_exp'))
                body = body[:last_ds + 1] + tail + body[last_ds + 1:]
            iq = max(i for i, x in enumerate(body) if x == m_qk[1])
            first_e = min(i for i, x in enumerate(body) if x.startswith('v_exp'))
            assert len(body) - 1 - iq + first_e >= 12, 'qk->exp distance'
            seq = list(head)
            for x in body:
                seq.append(x)
                if xs and x.startswith('v_exp'): seq.append(xs.pop(0))
            assert not xs
            AX = os.environ.get('AX', '')
            if 'p' in AX: seq = [x for x in seq if 's62 offen' not in x]
            for x in seq: k.e(x)
    if env('ASOFT', 8): iteration(env('ASOFT', 8), os.environ.get('APAT0', 'eQPLeeeeeeecccc'))
    k.label(lp)
    iteration(0, None)
    k.e('s_cbranch_scc1 %s' % lp)
    k.label('L_attn_epi')
    mark(k, 3)
    k.e('s_waitcnt lgkmcnt(0)')
    k.e(pv(1)); k.e(ls(1))
    k.e('s_nop 15')
    lstore = 'L_attn_store'; lsafe = 'L_attn_safe'
    k.e('v_max3_f32 v%d, |v%d|, |v%d|, |v%d|' % (T, O, O + 1, L))
    for r in range(2, 16, 2): k.e('v_max3_f32 v%d, |v%d|, |v%d|, v%d' % (T, O + r, O + r + 1, T))
    k.e('v_mul_f32 v%d, 0, v%d' % (T2, L))
    for r in range(16): k.e('v_fma_f32 v%d, 0, v%d, v%d' % (T2, O + r, T2))
    k.e('v_add_f32 v%d, v%d, v%d' % (T, T, T2))
    k.e('v_mov_b32 v3, %s' % hx(2.0 ** 120))
    k.e('v_cmp_nlt_f32 vcc, v%d, v3' % T)
    k.e('s_nop 4')
    k.e('s_cbranch_vccnz %s' % lsafe)
    k.label(lstore)
    k.e('v_rcp_f32 v%d, v%d' % (T, L))
    k.e('s_nop 0')
    for r in range(16): k.e('v_mul_f32 v%d, v%d, v%d' % (O + r, O + r, T))
    for d in range(8): k.e('v_cvt_pk_bf16_f32 v%d, v%d, v%d' % (P + d, O + 2 * d, O + 2 * d + 1))
    k.e('buffer_store_dwordx4 %s, v%d, s[40:43], s54 offen%s' % (vr(P, 4), A0, WT))
    k.e('buffer_store_dwordx4 %s, v%d, s[40:43], s54 offen offset:1024%s' % (vr(P + 4, 4), A0, WT))
    signal(k, 'S')
    endpgm(k)
    k.label(lsafe)
    def gl(dst, off): return 'buffer_load_dwordx4 %s, v%d, s[36:39], s56 offen offset:%d sc1' % (vr(dst, 4), A0, off)
    k.e('s_waitcnt vmcnt(0)')
    k.e('s_mov_b32 s56, 0')
    k.e('v_mov_b32 v%d, 0xff800000' % M)
    k.label(lsafe + '1')
    k.e(gl(KF, 0)); k.e(gl(KF + 4, 1024))
    k.e('s_waitcnt vmcnt(0)')
    for m in qk(SA, '0'): k.e(m)
    k.e('s_nop 15')
    maxtile(SA, False)
    k.e('s_add_u32 s56, s56, 4096')
    k.e('s_cmp_lt_u32 s56, %d' % (256 * KB))
    k.e('s_cbranch_scc1 %s1' % lsafe)
    set_negm(0.0)
    zero_state()
    k.e('s_mov_b32 s56, 0')
    k.label(lsafe + '2')
    k.e(gl(KF, 0)); k.e(gl(KF + 4, 1024)); k.e(gl(VF, 2048)); k.e(gl(VF + 4, 3072))
    k.e('s_waitcnt vmcnt(0)')
    for m in qk(SA, vr(NEGM, 16)): k.e(m)
    k.e('s_nop 15')
    for r in range(16): k.e('v_exp_f32 v%d, v%d' % (SA + r, SA + r))
    k.e('s_nop 0')
    for d in range(8): k.e('v_cvt_pk_bf16_f32 v%d, v%d, v%d' % (P + d, SA + 2 * d, SA + 2 * d + 1))
    k.e('s_nop 1')
    k.e(pv(0)); k.e(ls(0)); k.e(pv(1)); k.e(ls(1))
    k.e('s_add_u32 s56, s56, 4096')
    k.e('s_nop 7')
    k.e('s_cmp_lt_u32 s56, %d' % (256 * KB))
    k.e('s_cbranch_scc1 %s2' % lsafe)
    k.e('s_nop 15')
    k.e('s_branch %s' % lstore)
    k.need(MSV + 8, 160 * KB)

def k_attn2(k, c):
    phase_begin(k, c)
    assert c.prev == 'qkv' and c.nxt == 'wo' and not (MP0 and AOWN != 3)
    S2 = (8, 24); O2 = (40, 56); N2 = (72, 88); L2 = (104, 108); Q2 = (112, 120)
    ONES, KF, VF, P = 128, 132, 140, 148
    A0 = 156; AR = 157; M = 158; T = 159; T2 = 160; PFA = 161; MA = 162; MT = 164; PFD = 168
    k.e("""
    v_and_b32 v1, 63, v0
    s_mov_b32 s46, s3
    s_and_b32 s47, s3, 1               ; wn
    s_bfe_u32 s48, s3, 0x10001         ; wm
    s_lshr_b32 s49, s3, 2              ; kh
    s_lshl_b32 s50, s31, 1
    s_add_u32 s50, s50, s47            ; head
    s_lshl_b32 s52, s50, 18
    s_lshl_b32 s51, s49, 17
    s_add_u32 s51, s51, s52            ; stream base in KV
    s_lshl_b32 s55, s49, 1
    s_add_u32 s55, s55, s47
    s_lshl_b32 s55, s55, 15            ; stream ring base in LDS
    s_lshl_b32 s56, s48, 12            ; next global offset: own tile of stage 0
    s_add_u32 s57, s55, s56            ; LDS address of own tile in slot 0
    s_lshl_b32 s53, s3, 12             ; wave*4KB (mod slice staging)
    v_lshlrev_b32 v%d, 4, v1
    v_add_u32 v%d, s55, v%d
    s_lshl_b32 s54, s30, 2
    s_lshl_b32 s58, s48, 1
    s_add_u32 s54, s54, s58
    s_add_u32 s54, s54, s49            ; rb of the tile this wave finalises
    s_lshl_b32 s54, s54, 16
    s_lshl_b32 s58, s50, 11
    s_add_u32 s54, s54, s58            ; O offset
    s_lshl_b32 s62, s2, 13
    v_lshl_add_u32 v%d, v0, 4, s62     ; prefetch offset wg*8K + tid*16
    s_mov_b32 s62, 0
    v_and_b32 v3, 3, v1
    v_bfe_u32 v4, v1, 2, 1
    v_bfe_u32 v5, v1, 4, 1
    v_xor_b32 v4, v4, v5
    v_or_b32 v3, v3, v4
    v_cmp_eq_u32 vcc, 0, v3
    v_mov_b32 v4, 0x3f803f80
    s_nop 1
    v_cndmask_b32 v%d, 0, v4, vcc
    v_mov_b32 v%d, v%d
    v_mov_b32 v%d, v%d
    v_mov_b32 v%d, v%d
    """ % (A0, AR, A0, PFA, ONES, ONES + 1, ONES, ONES + 2, ONES, ONES + 3, ONES))
    mark(k, 0)
    if AOWN:
        srd(k, 36, 'ws', WS_KV, 256 * KB, soff='s52')
        k.e('''
        s_mov_b32 s86, s87                 ; qkv flag the compute waves still have to publish
        s_lshl_b32 s51, s30, 14
        s_add_u32 s51, s51, s56            ; offset of the own pairs (skipped in the stream)
        s_mul_i32 s58, s49, %d
        s_add_u32 s56, s56, s58
        s_cmp_ge_u32 s56, s51
        s_cselect_b32 s58, 16384, 0
        s_add_u32 s56, s56, s58
        ''' % (15 * 8192))
    else: srd(k, 36, 'ws', WS_KV, 128 * KB, soff='s51')
    srd(k, 80, 'ws', 0, 256 * KB)
    srd(k, 64, 'w_in'); srd(k, 68, 'w_sp'); srd(k, 32, 'wo')
    for r in range(16):
        k.e('v_mov_b32 v%d, 0' % (O2[0] + r)); k.e('v_mov_b32 v%d, 0' % (O2[1] + r))
    for r in range(4):
        for b in (L2[0], L2[1], P + 4, VF + 4): k.e('v_mov_b32 v%d, 0' % (b + r))
    k.e("""
    s_and_b32 s58, s2, 3               ; k quarter
    s_lshl_b32 s58, s58, 3
    s_add_u32 s58, s58, s46            ; 32-row group
    s_mul_i32 s60, s58, %d
    s_lshr_b32 s63, s2, 2              ; col block
    s_lshl_b32 s63, s63, 7
    s_add_u32 s60, s60, s63
    s_add_u32 s60, s60, 4096
    s_add_u32 s61, s60, 12288
    s_and_b32 s44, s2, 3
    s_lshl_b32 s44, s44, 2
    s_and_b32 s63, s46, 3
    s_add_u32 s44, s44, s63
    s_lshl_b32 s44, s44, 8             ; silu offset of row groups 2(w&3), +1
    s_add_u32 s44, s44, %d
    v_lshrrev_b32 v%d, 3, v1
    v_mul_u32_u24 v%d, %d, v%d
    v_and_b32 v%d, 7, v1
    v_lshl_add_u32 v%d, v%d, 4, v%d
    v_lshlrev_b32 v%d, 4, v%d
    ; Q / stand-in exchange area: tile A of this wave = tile kh
    s_and_b32 s58, s3, 3
    s_mul_i32 s58, s58, 5120
    s_add_u32 s58, s58, %d
    s_lshl_b32 s63, s49, 11
    s_add_u32 s63, s63, s58
    v_add_u32 v2, s63, v%d             ; Q of tile kh
    v_xor_b32 v3, 1, v2
    s_xor_b32 s63, s49, 1
    s_lshl_b32 s63, s63, 11
    s_add_u32 s63, s63, s58
    v_add_u32 v3, s63, v%d             ; Q of the other tile
    s_lshl_b32 s63, s49, 2
    s_add_u32 s63, s63, s58
    v_lshl_add_u32 v4, v1, 3, s63
    v_xor_b32 v5, 4, v4
    """ % (32 * 12288, WS_SC, MT, MA, 4 * 12288, MT, MT + 1, MA, MT + 1, MA, MT, MT, AUX_A, A0, A0))
    set_flag(k, 's_lshl_b32 s100, s30, 8\ns_lshl_b32 s101, s31, 2\ns_add_u32 s100, s100, s101\ns_add_u32 s100, s100, %d' % FL_ATT)
    def hand(): handoff(k, 's_lshl_b32 s100, s31, 8\ns_add_u32 s100, s100, %d' % FL_QKV, 64, role='A')
    if AOWN: k.e('s_barrier')
    else: hand()
    def dma(slot):
        return ['s_add_u32 m0, s57, %d' % (slot * 8192)] + \
               ['buffer_load_dwordx4 v%d, s[36:39], s56 offen offset:%d sc1 lds' % (A0, q * 1024) for q in range(4)] + \
               ['s_add_u32 s56, s56, 8192' + ('\ns_cmp_eq_u32 s56, s51\ns_cselect_b32 s58, 16384, 0\ns_add_u32 s56, s56, s58' if AOWN else '')]
    def emit_dma(slot):
        d = dma(slot); k.e(d[0]); k.e('s_nop 0')
        for x in d[1:]: k.e(x)
    def pfl(n): return 'buffer_load_dwordx4 %s, v%d, %s, s62 offen' % (vr(PFD, 4), PFA, sr(n))
    def mld(j): return [] if MP0 else ['s_add_u32 m0, s53, %d' % (AUX_A + j * 1024), 'buffer_load_dwordx4 v%d, s[80:83], s%d offen lds' % (MA, (60, 61, 63, 45)[j])]
    if not AOWN: emit_dma(0); emit_dma(1)
    for q in range(2):
        k.e('ds_read_b128 %s, v%d' % (vr(Q2[q], 4), 2 + q))
        k.e('ds_read_b128 %s, v%d offset:1024' % (vr(Q2[q] + 4, 4), 2 + q))
        k.e('ds_read_b32 v%d, v%d offset:4096' % (N2[q], 4 + q))
    k.e('s_waitcnt lgkmcnt(0)')
    for r in range(1, 16):
        for q in range(2): k.e('v_mov_b32 v%d, v%d' % (N2[q] + r, N2[q]))
    if not AOWN:
        k.e('s_waitcnt vmcnt(4)')
        k.e('s_barrier')
        mark(k, 1)
    def rd(dst, t, part): return 'ds_read_b128 %s, v%d offset:%d' % (vr(dst, 4), AR, (t % 8) * 4096 + part * 1024)
    def qk(q, hh, c0=None):
        S_ = S2[q]
        return 'v_mfma_f32_32x32x16_bf16 %s, %s, %s, %s' % (vr(S_, 16), vr(KF + 4 * hh, 4), vr(Q2[q] + 4 * hh, 4), (c0 or vr(N2[q], 16)) if hh == 0 else vr(S_, 16))
    def pv(q, h): return 'v_mfma_f32_32x32x16_bf16 %s, %s, %s, %s' % (vr(O2[q], 16), vr(VF + 4 * h, 4), vr(P + 4 * h, 4), vr(O2[q], 16))
    def ls(q, h): return 'v_mfma_f32_16x16x32_bf16 %s, %s, %s, %s' % (vr(L2[q], 4), vr(ONES, 4), vr(P + 4 * h, 4), vr(L2[q], 4))
    k.e(rd(KF, 0, 0)); k.e(rd(KF + 4, 0, 1)); k.e(rd(VF, 0, 2))
    def silu_loads():
        if MP0: return
        k.e('buffer_load_dwordx4 %s, v%d, s[80:83], s44 offen sc1' % (vr(MSV, 4), MT))
        k.e('buffer_load_dwordx4 %s, v%d, s[80:83], s44 offen offset:128 sc1' % (vr(MSV + 4, 4), MT))
    def wmod():
        if MP0: return
        srd(k, 80, 'w_mod')
        k.e('s_add_u32 s63, s60, %d' % (2 * 12288))
        k.e('s_add_u32 s45, s60, %d' % (3 * 12288))
    if not AOWN: silu_loads()
    k.e('s_waitcnt lgkmcnt(1)')
    k.e(qk(0, 0)); k.e(qk(0, 1))
    if AOWN: k.e('s_nop 11')
    else:
        emit_dma(2); wmod()
    OD = env('OD', 0) and AOWN == 3
    ool = []
    def late_start():
        if AOWN == 1:
            l = k.newlabel('ls')
            k.e('s_cmp_lt_u32 s3, 4'); k.e('s_cbranch_scc1 %s' % l)
            flag_prep(k)
            k.e('s_and_b32 s100, s3, 3\ns_lshl_b32 s100, s100, 7\ns_add_u32 s100, s100, s86')
            k.e('s_waitcnt vmcnt(0)')
            flag_store(k, 's100')
            k.label(l)
        hand()
        mark(k, 1)
        if OD:
            emit_dma(1); silu_loads(); wmod()
            k.e('''
            s_lshl_b32 s43, s48, 12
            s_add_u32 s43, s43, %d
            s_cmp_ge_u32 s43, s51
            s_cselect_b32 s58, 16384, 0
            s_add_u32 s43, s43, s58
            s_cmp_lt_u32 s3, 4
            s_cselect_b64 vcc, -1, 0
            s_cbranch_scc0 L_attn_np
            s_setprio 1
            L_attn_np:
            ''' % (16 * 8192))
        else:
            emit_dma(1); silu_loads(); emit_dma(2); wmod()
    k.e('s_mov_b32 s59, %d' % (3 if env('LASTB', 1) and not OD else 4))
    mark(k, 2)
    lp = 'L_attn_loop'
    LASTB = env('LASTB', 1) and not OD
    def iteration(first, nsoft, pat0, last=False):
        for u in range(16):
            t = u // 2; q = u % 2; st = u // 4; us = u % 4
            cur = S2[q]
            ex = ['v_exp_f32 v%d, v%d' % (cur + r, cur + r) for r in range(16)]
            cv = ['v_cvt_pk_bf16_f32 v%d, v%d, v%d' % (P + d, cur + 2 * d, cur + 2 * d + 1) for d in range(8)]
            if q == 0:
                Qs = [[qk(1, 0), rd(KF, t + 1, 0)], [qk(1, 1), rd(KF + 4, t + 1, 1)]]
                Ps = [[pv(1, 1), rd(VF + 4, t, 3)], ['WAITV', pv(0, 0)]]
            else:
                Qs = [['s_waitcnt lgkmcnt(0)', qk(0, 0)], [qk(0, 1)]]
                Ps = [[pv(0, 1)], [pv(1, 0), rd(VF, t + 1, 2)]]
            Ls = [ls(1 - q, 1), ls(q, 0)]
            peel = first and AOWN == 4 and u in (2, 3)
            if peel and u == 2:
                Qs = [[qk(1, 0)], [qk(1, 1)]]; Ps = [[pv(1, 1), rd(VF + 4, t, 3)], ['s_waitcnt lgkmcnt(1)', pv(0, 0)]]
            if peel and u == 3:
                Qs = [['s_waitcnt lgkmcnt(0)'], ['s_nop 0']]; Ps = [[pv(0, 1)], [pv(1, 0)]]
            inc = ['s_add_u32 s62, s62, %d' % (2 * MB)]
            NOPF = env('NOPF', 0)
            if first and AOWN: extra = [[], [], mld(0) + [pfl(32)], [pfl(64)], mld(1), mld(2), mld(3), [pfl(68)] + inc]
            elif first: extra = [[], [pfl(32)], mld(0), [pfl(64)], mld(1), mld(2), mld(3), [pfl(68)] + inc]
            else: extra = [[], [], [pfl(64)], [], [], [], [pfl(68)] + inc, []]
            if NOPF: extra = [[y for y in x if 's62' not in y] for x in extra]
            cnt = lambda e: [sum('buffer_load' in y for y in e[2 * i] + e[2 * i + 1]) for i in range(4)]
            nx_ = cnt(extra)
            prevx = ((0 if MP0 else 2) if first else nx_[3]) if st == 0 else nx_[st - 1]
            head = ['s_waitcnt vmcnt(%d)' % (prevx + 4 + nx_[st]), 's_barrier'] if us == 2 else []
            if last and us == 2 and st >= 2: head = (['s_waitcnt vmcnt(%d)' % (prevx + nx_[st])] if st == 2 else []) + ['s_barrier']
            if peel: head = []
            d = dma((st + 3) % 4)
            if OD and us == 2:
                lb = 'L_attn_fd%d_%d' % (first, st)
                d0 = dma((st + 2) % 4)
                d1 = [x.replace('s56', 's43').replace('s57, %d' % (((st + 2) % 4) * 8192), 's57, %d' % (((st + 2) % 4) * 8192 + 65536)) for x in d0]
                nw = 8 + nx_[st] + (2 if first and st == 0 else 0)
                ool.append([lb + ':', d0[0], 's_nop 0'] + d0[1:5] + [d1[0], 's_nop 0'] + d1[1:5] + [d0[5], d1[5], 's_waitcnt vmcnt(%d)' % nw, 's_branch %sr' % lb])
                head = ['s_cbranch_vccnz %s' % lb] + (['s_waitcnt vmcnt(2)'] if first and st == 0 else []) + [lb + 'r:', 's_barrier']
            if (OD or (last and st >= 1)) and us >= 2: xs = []
            elif us == 2: xs = [d[0], d[1], None, None, None, None, None, None, None, d[2]]
            elif us == 3: xs = [d[3], None, None, None, None, None, None, None, d[4], d[5]]
            else: xs = list(extra[2 * st + us])
            pat = pat0 if u < nsoft else os.environ.get('APAT', 'eeeQeeePeeccLcc')
            assert pat.index('Q') < pat.index('P')
            body = []
            for hh in range(2):
                ei = 8 * hh; ci = 4 * hh
                for ch in pat:
                    if ch == 'e': body.append(ex[ei]); ei += 1
                    elif ch == 'c': body.append(cv[ci]); ci += 1
                    elif ch == 'Q': body += Qs[hh]
                    elif ch == 'P': body += Ps[hh]
                    elif ch == 'L': body.append(Ls[hh])
            body = ['s_waitcnt lgkmcnt(3)' if x == 'WAITV' else x for x in body]
            if u == 15 and not last:
                le = max(i for i, x in enumerate(body) if x.startswith('v_exp'))
                body = body[:le + 1] + ['s_sub_u32 s59, s59, 1', 's_cmp_lg_u32 s59, 0'] + body[le + 1:]
            if peel and u == 3:
                body += ['s_waitcnt vmcnt(10)', 's_barrier', rd(KF, 2, 0), rd(KF + 4, 2, 1), rd(VF, 2, 2), 's_waitcnt lgkmcnt(1)', qk(0, 0), qk(0, 1)]
            iq = body.index(qk(1 - q, 1))
            first_e = min(i for i, x in enumerate(body) if x.startswith('v_exp'))
            gap = len(body) - 1 - iq + first_e
            if gap < 12: body.append('s_nop %d' % (11 - gap))
            if first and AOWN and u == (0 if AOWN == 3 else 2): late_start()
            seq = list(head)
            for x in body:
                seq.append(x)
                if xs and x.startswith('v_exp'):
                    y = xs.pop(0)
                    if y: seq.append(y)
            assert not xs
            AX = os.environ.get('AX', '')
            if 'b' in AX: seq = [x for x in seq if x != 's_barrier']
            if 'p' in AX: seq = [x for x in seq if 's62 offen' not in x and 's[80:83]' not in x]
            if 'v' in AX: seq = [x for x in seq if 'buffer_load' not in x]
            if 'd' in AX: seq = [x for x in seq if not x.startswith('ds_read') and 'lgkmcnt' not in x]
            if 'l' in AX: seq = [x for x in seq if '16x16x32' not in x]
            for x in seq: k.e(x)
    iteration(True, env('ASOFT', 8), os.environ.get('APAT0', 'eQPLeeeeeeecccc'))
    k.label(lp)
    iteration(False, 0, None)
    k.e('s_cbranch_scc1 %s' % lp)
    if LASTB:
        if CPF >= 2:
            l = k.newlabel('ct')
            k.e('s_cmp_lg_u32 s3, 0'); k.e('s_cbranch_scc1 %s' % l)
            k.e('s_mov_b64 s[60:61], s[64:65]')
            code_touch(k, 'L_attn_epi', 'L_text_end', '0', 172)
            k.e('s_mov_b64 s[64:65], s[60:61]')
            k.label(l)
        iteration(False, 0, None, last=True)
        k.e('s_nop 0')
    k.label('L_attn_epi')
    if 'b' in os.environ.get('AX', ''): k.e('s_barrier')
    mark(k, 3)
    k.e('s_nop 0')
    k.e(pv(1, 1)); k.e(ls(1, 1))
    if LASTB:
        k.e("""
        s_lshl_b32 s58, s48, 13
        s_add_u32 s58, s58, s55
        s_add_u32 s58, s58, 8192
        v_add_u32 v2, s58, v%d
        v_lshl_add_u32 v4, v1, 2, s58
        s_xor_b32 s58, s58, 0x10000
        v_add_u32 v3, s58, v%d
        v_lshl_add_u32 v5, v1, 2, s58
        s_nop 3
        """ % (A0, A0))
    else:
        k.e("""
        s_mul_i32 s58, s3, 5120
        v_add_u32 v2, s58, v%d
        v_lshl_add_u32 v4, v1, 2, s58
        s_xor_b32 s58, s3, 4
        s_mul_i32 s58, s58, 5120
        v_add_u32 v3, s58, v%d
        v_lshl_add_u32 v5, v1, 2, s58
        s_waitcnt vmcnt(0) lgkmcnt(0)
        s_barrier
        s_nop 3
        """ % (A0, A0))
    for r in range(4): k.e('ds_write_b128 v2, %s offset:%d' % (vr(O2[1] + 4 * r, 4), r * 1024))
    k.e('ds_write_b32 v4, v%d offset:4096' % L2[1])
    srd(k, 40, 'ws', WS_O, 4 * MB)
    k.e('s_waitcnt lgkmcnt(0)')
    k.e('s_barrier')
    for r in range(4): k.e('ds_read_b128 %s, v3 offset:%d' % (vr(S2[0] + 4 * r, 4), r * 1024))
    k.e('ds_read_b32 v%d, v5 offset:4096' % T)
    k.e('s_waitcnt lgkmcnt(0)')
    O = O2[0]; L = L2[0]; SA = S2[0]; NEGM = N2[0]
    for r in range(0, 16, 2): k.e(pk('add', O + r, O + r, SA + r))
    k.e('v_add_f32 v%d, v%d, v%d' % (L, L, T))
    lstore = 'L_attn_store'; lsafe = 'L_attn_safe'
    k.e('v_max3_f32 v%d, |v%d|, |v%d|, |v%d|' % (T, O, O + 1, L))
    for r in range(2, 16, 2): k.e('v_max3_f32 v%d, |v%d|, |v%d|, v%d' % (T, O + r, O + r + 1, T))
    k.e('v_mul_f32 v%d, 0, v%d' % (T2, L))
    for r in range(16): k.e('v_fma_f32 v%d, 0, v%d, v%d' % (T2, O + r, T2))
    k.e('v_add_f32 v%d, v%d, v%d' % (T, T, T2))
    k.e('v_mov_b32 v3, %s' % hx(2.0 ** 120))
    k.e('v_cmp_nlt_f32 vcc, v%d, v3' % T)
    k.e('s_nop 4')
    k.e('s_cbranch_vccnz %s' % lsafe)
    k.label(lstore)
    k.e('v_rcp_f32 v%d, v%d' % (T2, L))
    k.e('s_nop 0')
    for r in range(0, 16, 2): k.e(pk('mul', O + r, O + r, (T2,)))
    for d in range(8): k.e('v_cvt_pk_bf16_f32 v%d, v%d, v%d' % (P + d, O + 2 * d, O + 2 * d + 1))
    k.e('buffer_store_dwordx4 %s, v%d, s[40:43], s54 offen%s' % (vr(P, 4), A0, WT))
    k.e('buffer_store_dwordx4 %s, v%d, s[40:43], s54 offen offset:1024%s' % (vr(P + 4, 4), A0, WT))
    signal(k, 'S')
    endpgm(k)
    for blk in ool:
        for x in blk: k.e(x)
    k.label(lsafe)
    srd(k, 36, 'ws', WS_KV, 256 * KB, soff='s52')
    def gl(dst, off): return 'buffer_load_dwordx4 %s, v%d, s[36:39], s56 offen offset:%d sc1' % (vr(dst, 4), A0, off)
    k.e('s_mov_b32 s56, 0')
    k.e('v_mov_b32 v%d, 0xff800000' % M)
    k.label(lsafe + '1')
    k.e(gl(KF, 0)); k.e(gl(KF + 4, 1024))
    k.e('s_waitcnt vmcnt(0)')
    k.e(qk(0, 0, '0')); k.e(qk(0, 1))
    k.e('s_nop 15')
    for r in range(0, 16, 2): k.e('v_max3_f32 v%d, v%d, v%d, v%d' % (M, M, SA + r, SA + r + 1))
    k.e('s_add_u32 s56, s56, 4096')
    k.e('s_cmp_lt_u32 s56, %d' % (256 * KB))
    k.e('s_cbranch_scc1 %s1' % lsafe)
    k.e('v_mov_b32 v%d, v%d' % (T, M))
    k.e('s_nop 1')
    k.e('v_permlane32_swap_b32 v%d, v%d' % (M, T))
    k.e('s_nop 1')
    k.e('v_max_f32 v%d, v%d, v%d' % (M, M, T))
    k.e('v_sub_f32 v%d, 0, v%d' % (NEGM, M))
    for r in range(1, 16): k.e('v_mov_b32 v%d, v%d' % (NEGM + r, NEGM))
    for r in range(16): k.e('v_mov_b32 v%d, 0' % (O + r))
    for r in range(4): k.e('v_mov_b32 v%d, 0' % (L + r))
    k.e('s_mov_b32 s56, 0')
    k.label(lsafe + '2')
    k.e(gl(KF, 0)); k.e(gl(KF + 4, 1024)); k.e(gl(VF, 2048)); k.e(gl(VF + 4, 3072))
    k.e('s_waitcnt vmcnt(0)')
    k.e(qk(0, 0)); k.e(qk(0, 1))
    k.e('s_nop 15')
    for r in range(16): k.e('v_exp_f32 v%d, v%d' % (SA + r, SA + r))
    k.e('s_nop 0')
    for d in range(8): k.e('v_cvt_pk_bf16_f32 v%d, v%d, v%d' % (P + d, SA + 2 * d, SA + 2 * d + 1))
    k.e('s_nop 1')
    k.e(pv(0, 0)); k.e(ls(0, 0)); k.e(pv(0, 1)); k.e(ls(0, 1))
    k.e('s_add_u32 s56, s56, 4096')
    k.e('s_nop 7')
    k.e('s_cmp_lt_u32 s56, %d' % (256 * KB))
    k.e('s_cbranch_scc1 %s2' % lsafe)
    k.e('s_nop 15')
    k.e('s_branch %s' % lstore)
    k.need(MSV + 8, 160 * KB)

PHASES = dict(p0=k_p0, qkv=k_qkv, attn=k_attn2 if AT2 else k_attn,
              wo=lambda k, c: k_proj(k, c, 1024, ('xf', WS_O, 1024), 'wo', False),
              win=k_win2 if W22 else k_win, wsp=k_wsp,
              wout=lambda k, c: k_proj(k, c, 1792, ('xf', WS_U2, 1792), 'w_out', True))
GROUPS = [g.split('+') for g in os.environ.get('GRP', 'p0+qkv+attn+wo+win+wsp+wout').split(',')]
def same_kernel(a, b): return any(a in g_ and b in g_ for g_ in GROUPS)
def build():
    ks = []
    for grp in GROUPS:
        k = Kern(grp[0] if len(grp) == 1 else 'm' + grp[0], 256, 1024 if grp[0] == 'pre' else 512, 0)
        prologue(k)
        for i, ph in enumerate(grp):
            c = Ctx(); c.name = ph; c.first = i == 0; c.last = i == len(grp) - 1; c.nxt = None if c.last else grp[i + 1]; c.prev = grp[i - 1] if i else None
            PHASES[ph](k, c)
        k.label(k.endl)
        k.e('s_endpgm')
        assert k.lds <= 160 * KB
        ks.append(k)
    s = '; adaLN + softmax MHA + gMLP block, generated by gen.py (hand-written generator)\n'
    for k in ks: s += k.launch()
    s += '.amdgcn_target "amdgcn-amd-amdhsa--gfx950"\n.text\n'
    for k in ks: s += k.text()
    s += 'L_text_end:\n    s_endpgm\n'
    s += '.section .rodata,"a"\n'
    for k in ks: s += k.desc()
    if len(ks) == 1 and env('SINGLE', 0):
        s = s.replace('; @launch kernel=%s_kernel ' % ks[0].name, '; @launch ')
        s = s.replace(ks[0].name + '_kernel', 'adaLN_cond__softmax_full_mha__mixer_gmlp__prompt_kernel')
    return s

PROMO = ('v_exp_f32', 'v_rcp_f32', 'v_mov_b32', 'v_add_f32', 'v_mul_f32', 'v_sub_f32', 'v_max_f32', 'v_lshlrev_b32', 'v_lshrrev_b32',
         'v_and_b32', 'v_xor_b32', 'v_or_b32', 'v_add_u32', 'v_fmac_f32', 'v_min_u32', 'v_max_u32', 'v_rsq_f32', 'v_sqrt_f32')
def align8(text):
    import subprocess, tempfile, re
    lines = text.split('\n')
    i0 = next(i for i, l in enumerate(lines) if l.endswith('_kernel:')); i1 = next(i for i, l in enumerate(lines) if l.startswith('.section'))
    idx = [i for i in range(i0, i1) if lines[i].strip() and not lines[i].strip().startswith((';', '.')) and not lines[i].strip().endswith(':')]
    with tempfile.TemporaryDirectory() as d:
        open(d + '/a.s', 'w').write(text)
        subprocess.check_call(['clang', '-x', 'assembler', '-target', 'amdgcn-amd-amdhsa', '-mcpu=gfx950', '-c', d + '/a.s', '-o', d + '/a.o'])
        dis = subprocess.check_output(['llvm-objdump', '-d', '--mcpu=gfx950', d + '/a.o'], text=True)
    sz = [4 * len(m.group(1).split()) for m in re.finditer(r'// [0-9A-F]{12}: ([0-9A-F ]+)', dis)]
    assert len(sz) == len(idx), (len(sz), len(idx))
    off = 0; ins = {}; npro = nnop = 0
    MINRUN = env('MINRUN', 8)
    for n, i in enumerate(idx):
        if sz[n] == 8 and off % 8 == 4:
            p = n - 1; done = False
            while p >= 0 and sz[p] == 4:
                op = lines[idx[p]].split()[0]
                if op in PROMO:
                    lines[idx[p]] = lines[idx[p]].replace(op, op + '_e64', 1); sz[p] = 8; off += 4; done = True; npro += 1
                    break
                p -= 1
            if not done:
                r = 0
                while n + r < len(sz) and sz[n + r] == 8: r += 1
                prev = lines[idx[n - 1]].split()[0]
                if r >= MINRUN and prev != 's_getpc_b64':
                    ins[i] = '    s_nop 0'; off += 4; nnop += 1
        off += sz[n]
    out = []
    for i, l in enumerate(lines):
        if i in ins: out.append(ins[i])
        out.append(l)
    print('align8: %d widened, %d nops' % (npro, nnop))
    return '\n'.join(out)

if __name__ == '__main__':
    out = sys.argv[1] if len(sys.argv) > 1 else 'adaLN_cond__softmax_full_mha__mixer_gmlp__prompt.s'
    txt = build()
    if env('AL8', 1): txt = align8(txt)
    open(out, 'w').write(txt)
    print('wrote', out)
```

```python
import sys, struct, os
STAMP = int(os.environ.get('STAMP', '0'))
WS_STAMP = 128 << 20
KIDX = [0]
def env(n, d): return int(os.environ.get(n, d))

MB = 1 << 20
KB = 1024
WS_MOD = 0
WS_UW  = 32 * KB
WS_ST0 = 64 * KB
WS_MODP = 128 * KB
WS_MODT = 768 * KB
TAGP = env('TAGP', 1)
WS_SC = 96 * KB
WS_MODQ = 160 * KB
WS_ST1 = 256 * KB
WS_G   = 512 * KB
WS_FL  = 58 * MB
FLSZ = 2 * MB
FL_LN1, FL_QKV, FL_ATT, FL_WO, FL_WIN, FL_WSP, FL_MOD = [i * 8 * KB for i in range(7)]
WS_EPOCH = 240 * KB
AUX_A = 128 * KB; AUX_B = 148 * KB
WS_H   = 1 * MB
WS_Q   = 5 * MB
WS_KV  = 9 * MB
WS_G2  = 57 * MB
WS_N   = 60 * MB
WS_O   = 17 * MB
WS_X1  = 21 * MB
WS_X1S = 25 * MB
WS_Z   = 29 * MB
ZSZ = 2048 * 1792 * 2
WS_Z2N = WS_Z + ZSZ
WS_U2  = 50 * MB
if env('ALIAS', 0):
    WS_Q = 1 * MB; WS_KV = 5 * MB; WS_H = 13 * MB
    WS_O = WS_H; WS_X1 = WS_Q; WS_X1S = WS_KV
    WS_Z2N = 9 * MB; WS_Z = 17 * MB; WS_U2 = WS_Z
ZB = min(WS_Z, WS_Z2N)

ROLES = {'pre': [('mod', 0, 128, 0, 16), ('stats', 128, 256, 0, 16)], 'ln1': [('pf', 0, 256, 0, 4), ('ln', 0, 256, 4, 8)],
         'attn': [('main', 0, 256, 0, 8)]}
for _n in ('qkv', 'wo', 'wout'): ROLES[_n] = [('load', 0, 256, 0, 4), ('comp', 0, 256, 4, 8)]
for _n in ('win', 'wsp'): ROLES[_n] = [('load', 0, 224, 0, 4), ('comp', 0, 224, 4, 8), ('pf', 224, 256, 0, 8)]
def f2u(f): return struct.unpack('<I', struct.pack('<f', f))[0]
def hx(f): return '0x%08x' % f2u(f)
LOG2E = 1.4426950408889634
WT = os.environ.get('WTF', ' sc1')

class Kern:
    def __init__(self, name, grid, block, lds):
        self.name = name; self.grid = grid; self.block = block; self.lds = lds
        self.lines = []; self.vgpr = 0; self.nlab = 0
    def e(self, s):
        for l in s.strip('\n').split('\n'):
            l = l.strip()
            if l: self.lines.append('    ' + l)
    def label(self, l):
        if env('ALIGN', 0) and ('_loop' in l or '_lloop' in l):
            self.lines.append('.p2align %d' % env('ALIGN', 0))
            for _ in range(env('ALOFF', 0)): self.lines.append('    s_nop 0')
        self.lines.append(l + ':')
    def newlabel(self, base):
        self.nlab += 1
        return 'L_%s_%s%d' % (self.name, base, self.nlab)
    def need(self, vgpr, lds):
        self.vgpr = max(self.vgpr, vgpr); self.lds = max(self.lds, lds)
    def text(self):
        GX = os.environ.get('GX', '')
        if self.name != 'pre':
            if 'm' in GX: self.lines = [l for l in self.lines if 'v_mfma' not in l]
            if 'l' in GX: self.lines = [l for l in self.lines if not (' lds' in l and 'buffer_load' in l and ('s57' in l or 's58' in l))]
            if 'r' in GX: self.lines = [l for l in self.lines if not ('ds_read_b64_tr' in l)]
        if os.environ.get('NOLDSC'):
            self.lines = [l.replace(' sc1 lds', ' lds') for l in self.lines]
        n = self.name + '_kernel'
        return '.globl %s\n.p2align 8\n.type %s,@function\n%s:\n' % (n, n, n) + '\n'.join(self.lines) + '\n'
    def desc(self):
        n = self.name + '_kernel'
        v = self.vgpr
        acc = (v + 3) // 4 * 4
        return ('.p2align 6\n.amdhsa_kernel %s\n  .amdhsa_next_free_vgpr %d\n  .amdhsa_next_free_sgpr 102\n'
                '  .amdhsa_accum_offset %d\n  .amdhsa_group_segment_fixed_size 0\n  .amdhsa_kernarg_size 104\n'
                '  .amdhsa_user_sgpr_count 2\n  .amdhsa_user_sgpr_kernarg_segment_ptr 1\n'
                '  .amdhsa_system_sgpr_workgroup_id_x 1\n.end_amdhsa_kernel\n' % (n, v, acc))
    def launch(self):
        return '; @launch kernel=%s_kernel grid=(%d,1,1) block=(%d,1,1) lds=%d\n' % (self.name, self.grid, self.block, self.lds)

PTR = dict(x=4, wqkv=6, wo=8, bx=10, w_in=12, w_sp=14, b_sp=16, w_out=18, c=20, w_mod=22, out=24, dbg=26, ws=28)
SIZES = dict(x=2048*1024*2, wqkv=1024*3072*2, wo=1024*1024*2, w_in=1024*3584*2, w_sp=2048*2048*2, b_sp=2048*2,
             w_out=1792*1024*2, c=2048, w_mod=1024*6144*2, out=2048*1024*2, dbg=256)

class Ctx: pass
PHIDX = {}
def prologue(k):
    k.endl = 'L_%s_end' % k.name
    k.e("""
    s_load_dwordx16 s[4:19], s[0:1], 0
    s_load_dwordx8 s[20:27], s[0:1], 64
    s_load_dwordx2 s[28:29], s[0:1], 96
    s_cmp_ge_u32 s2, %d
    s_cbranch_scc1 %s
    v_lshrrev_b32 v1, 6, v0
    s_nop 0
    v_readfirstlane_b32 s3, v1
    """ % (k.grid, k.endl))

def phase_begin(k, c):
    k.c = c
    k.label('L_%s_entry' % c.name)
    if env('IDLE_' + c.name, 0):
        for _ in range(env('IDLE_' + c.name, 0)): k.e('s_sleep 36')
    c.kidx = KIDX[0]; KIDX[0] += 1
    PHIDX[c.name] = c.kidx
    if env('PADTO', 0) and c.first: k.e('s_memrealtime s[90:91]')
    if env('DBG', 0) and c.first: dbgstamp(k, 0 if c.name == 'pre' else 10, 512 if c.name == 'pre' else 0, '')
    if STAMP:
        k.e('s_memtime s[88:89]')
        k.e('s_memrealtime s[90:91]')
        for i in range(4): k.e('s_mov_b64 s[%d:%d], 0' % (72 + 2 * i, 73 + 2 * i))

def dbgstamp(k, idx, off, op):
    l = k.newlabel('dbg')
    k.e('''
    s_lshl_b32 s80, s2, 4
    s_add_u32 s80, s80, s3
    s_cmp_lg_u32 s80, %d
    s_cbranch_scc1 %s
    s_waitcnt lgkmcnt(0)
    s_memrealtime s[92:93]
    s_add_u32 s80, s26, %d
    s_addc_u32 s81, s27, 0
    s_and_b32 s81, s81, 0xffff
    s_mov_b32 s82, 256
    s_mov_b32 s83, 0x20000
    s_mov_b64 exec, 1
    s_waitcnt lgkmcnt(0)
    v_mov_b32 v2, s92
    v_mov_b32 v5, %d
    buffer_store_dword v2, v5, s[80:83], 0 offen
    s_mov_b64 exec, -1
    ''' % (5 * 16 + 4, l, off, idx * 4))
    k.label(l)
def endpgm(k):
    c = k.c
    if env('DBG', 0): dbgstamp(k, 1 + c.kidx, 512 if c.name == 'pre' else 0, '')
    if STAMP:
        k.e("""
        s_waitcnt vmcnt(0) lgkmcnt(0)
        s_memtime s[92:93]
        s_memrealtime s[94:95]
        s_mov_b64 exec, 1
        s_add_u32 s80, s28, 0x%x
        s_addc_u32 s81, s29, 0
        s_and_b32 s81, s81, 0xffff
        s_mov_b32 s82, 0x100000
        s_mov_b32 s83, 0x20000
        s_lshl_b32 s86, s2, 4
        s_add_u32 s86, s86, s3
        s_lshl_b32 s86, s86, 5
        s_waitcnt lgkmcnt(0)
        v_mov_b32 v4, s90
        v_mov_b32 v5, s94
        v_mov_b32 v6, s88
        v_mov_b32 v7, s92
        v_mov_b32 v8, s72
        v_mov_b32 v9, s74
        v_mov_b32 v10, s76
        v_mov_b32 v11, s78
        v_mov_b32 v2, s86
        buffer_store_dwordx4 v[4:7], v2, s[80:83], 0 offen
        buffer_store_dwordx4 v[8:11], v2, s[80:83], 0 offen offset:16
        s_waitcnt vmcnt(0)
        """ % (WS_STAMP + c.kidx * (1 << 20)))
    if c.last and env('PADTO', 0):
        l = k.newlabel('pad')
        k.label(l)
        k.e('s_memrealtime s[92:93]\ns_waitcnt lgkmcnt(0)\ns_sub_u32 s92, s92, s90\ns_cmp_lt_u32 s92, %d\ns_cbranch_scc1 %s' % (env('PADTO', 0) * 100, l))
    if c.last: k.e('s_endpgm')
    else:
        k.e('s_mov_b64 exec, -1')
        k.e('s_setprio 0')
        k.e('s_branch L_%s_entry' % c.nxt)
def mark(k, i=0):
    if STAMP:
        k.e('s_memtime s[%d:%d]' % (72 + 2 * i, 73 + 2 * i))
        k.e('s_waitcnt lgkmcnt(0)')

def set_flag(k, setup):
    if not k.c.last:
        k.e(setup)
        k.e('s_lshl_b32 s87, s100, 5')
def OWNF(n): return n in os.environ.get('OWN', 'none').split(',')
ZF32 = env('ZF32', 1)
GEO = env('GEO', 0); TPRE = env('TPRE', 4) if GEO else 0; APRE = env('APRE', 0) if GEO else 0
W22 = env('W22', 1)
LPW = env('LPW', 0)
ZOWN = env('ZOWN', 1)
FV = 252
def flag_store(k, soff):
    k.e('s_mov_b64 exec, 1')
    k.e('buffer_store_dwordx2 %s, v%d, s[96:99], %s offen sc1' % (vr(FV, 2), FV + 2, soff))
    k.e('s_mov_b64 exec, -1')
def flag_prep(k):
    srd(k, 96, 'ws', WS_FL, FLSZ)
    k.e('v_mov_b32 v%d, s84' % FV); k.e('v_mov_b32 v%d, s85' % (FV + 1)); k.e('v_mov_b32 v%d, 0' % (FV + 2))
    k.need(FV + 3, 0)
def signal(k, role='L', keep=0):
    if k.c.last: return
    if role in ('C', 'S'): flag_prep(k)
    if role == 'C':
        k.e('s_and_b32 s100, s3, 3')
        k.e('s_lshl_b32 s100, s100, 7')
        k.e('s_add_u32 s100, s100, s87')
    if role == 'C' and env('SM', 0): mark(k, 3)
    k.e('s_waitcnt vmcnt(%d)' % keep)
    if role == 'C' and env('SM', 0): mark(k, 0)
    if role == 'C':
        flag_store(k, 's100')
        if OWNF(k.c.nxt): k.e('s_barrier')
    elif role == 'A' and OWNF(k.c.nxt) and k.c.nxt == 'wout':
        l = k.newlabel('sg')
        k.e('s_cmp_lt_u32 s3, 4'); k.e('s_cbranch_scc1 %s' % l); k.e('s_barrier'); k.label(l)
    elif role == 'S':
        l = k.newlabel('sg')
        k.e('s_barrier')
        k.e('s_cmp_lg_u32 s3, 7'); k.e('s_cbranch_scc1 %s' % l)
        flag_store(k, 's87')
        k.label(l)
POLLW = env('POLLW', 4)
def handoff(k, setup, n, role='L', force=False, slp=None):
    if (k.c.first and not force) or not n: return
    if role in 'AW' or (role == 'C') == (POLLW >= 4):
        ld = k.newlabel('wd')
        if role == 'W': pass
        elif n <= 64:
            k.e('s_cmp_lg_u32 s3, %d' % POLLW)
            k.e('s_cbranch_scc1 %s' % ld)
        else:
            assert n == 128
            k.e('s_sub_u32 s101, s3, %d' % POLLW)
            k.e('s_cmp_gt_u32 s101, 1')
            k.e('s_cbranch_scc1 %s' % ld)
        srd(k, 96, 'ws', WS_FL, FLSZ)
        k.e(setup)
        k.e('s_lshl_b32 s100, s100, 5')
        if n > 64:
            k.e('s_lshl_b32 s101, s101, 13')
            k.e('s_add_u32 s100, s100, s101')
        k.e('v_lshlrev_b32 v%d, 7, v1' % (FV + 2))
        k.e('s_mov_b32 s101, 0x100000')
        if n < 64: k.e('s_bfm_b64 exec, %d, 0' % n)
        k.need(FV + 3, 0)
        if env('PDELAY', 0): k.e('s_waitcnt vmcnt(0)')
        PP = env('PPIPE', 0)
        if PP:
            lp = k.newlabel('wf'); le = k.newlabel('we')
            B = [FV, FV - 2, FV - 4][:PP]
            ldp = lambda b: 'buffer_load_dwordx2 %s, v%d, s[96:99], s100 offen sc1' % (vr(b, 2), FV + 2)
            for b in B[:-1]:
                k.e(ldp(b)); k.e('s_sleep %d' % env('PGAP', 5))
            k.label(lp)
            for i_ in range(PP):
                k.e(ldp(B[i_ - 1]))
                k.e('s_waitcnt vmcnt(%d)' % (PP - 1))
                k.e('v_cmp_ne_u64 vcc, s[84:85], %s' % vr(B[i_], 2))
                k.e('s_nop 4')
                k.e('s_cbranch_vccz %s' % le)
            k.e('s_sub_u32 s101, s101, 1')
            k.e('s_cmp_lg_u32 s101, 0')
            k.e('s_cbranch_scc1 %s' % lp)
        else:
            lp = k.newlabel('wf'); le = k.newlabel('we')
            k.label(lp)
            k.e('buffer_load_dwordx2 %s, v%d, s[96:99], s100 offen sc1' % (vr(FV, 2), FV + 2))
            k.e('s_waitcnt vmcnt(0)')
            k.e('v_cmp_ne_u64 vcc, s[84:85], %s' % vr(FV, 2))
            k.e('s_sub_u32 s101, s101, 1')
            k.e('s_nop 3')
            k.e('s_cbranch_vccz %s' % le)
            if env('PMASK', 1): k.e('s_mov_b64 exec, vcc')
            if slp is None: slp = env('PSLEEP', 1)
            if slp: k.e('s_sleep %d' % slp)
            k.e('s_cmp_lg_u32 s101, 0')
            k.e('s_cbranch_scc1 %s' % lp)
        k.label(le)
        k.e('s_mov_b64 exec, -1')
        k.label(ld)
    if role != 'W': k.e('s_barrier')

def handoff_multi(k, polls):
    ld = k.newlabel('wd'); lgo = k.newlabel('wg')
    srd(k, 96, 'ws', WS_FL, FLSZ)
    for w, setup, n in polls:
        ln = k.newlabel('wn')
        k.e('s_cmp_lg_u32 s3, %d' % w)
        k.e('s_cbranch_scc1 %s' % ln)
        k.e(setup)
        k.e('v_min_u32 v%d, %d, v1' % (FV + 2, n - 1))
        k.e('s_branch %s' % lgo)
        k.label(ln)
    k.e('s_branch %s' % ld)
    k.label(lgo)
    k.e('s_lshl_b32 s100, s100, 5')
    k.e('v_lshlrev_b32 v%d, 7, v%d' % (FV + 2, FV + 2))
    k.e('s_mov_b32 s101, 0x100000')
    lp = k.newlabel('wf')
    k.label(lp)
    k.e('buffer_load_dwordx2 %s, v%d, s[96:99], s100 offen sc1' % (vr(FV, 2), FV + 2))
    k.e('s_waitcnt vmcnt(0)')
    k.e('v_cmp_ne_u64 vcc, s[84:85], %s' % vr(FV, 2))
    k.e('s_sub_u32 s101, s101, 1')
    k.e('s_nop 3')
    k.e('s_cbranch_vccz %s' % ld)
    k.e('s_sleep %d' % env('P0SLEEP', 2))
    k.e('s_cmp_lg_u32 s101, 0')
    k.e('s_cbranch_scc1 %s' % lp)
    k.label(ld)
    k.e('s_barrier')

def mod_table(k, R, between=None, nb=0):
    srd(k, 40, 'ws', 0, 256 * KB)
    k.e('v_lshlrev_b32 v%d, 4, v0' % (R + 16))
    for q in range(4):
        k.e('s_mov_b32 s48, %d' % (WS_MODP + q * 8192))
        k.e('buffer_load_dwordx4 %s, v%d, s[40:43], s48 offen sc1' % (vr(R + 4 * q, 4), R + 16))
    if between: between()
    k.e('s_cmp_lt_u32 s3, 4')
    k.e('s_cselect_b32 s49, 0, 1.0')
    k.e('v_add_u32 v%d, %d, v%d' % (R + 16, AUX_A, R + 16))
    k.e('s_waitcnt vmcnt(%d)' % nb)
    k.e(pk('add', R, R, R + 4)); k.e(pk('add', R + 2, R + 2, R + 6)); k.e(pk('add', R + 8, R + 8, R + 12)); k.e(pk('add', R + 10, R + 10, R + 14))
    k.e(pk('add', R, R, R + 8)); k.e(pk('add', R + 2, R + 2, R + 10))
    for d in range(2): round_bf16_pair(k, R + 2 * d, R + 2 * d + 1, R + 4)
    for q in range(4): k.e('v_add_f32 v%d, s49, v%d' % (R + q, R + q))
    for d in range(2): round_bf16_pair(k, R + 2 * d, R + 2 * d + 1, R + 4)
    k.e('ds_write_b128 v%d, %s' % (R + 16, vr(R, 4)))
    k.e('s_waitcnt lgkmcnt(0)')
    k.e('s_barrier')

def poll_back(k, lp):
    l = k.newlabel('pd')
    k.e('s_sub_u32 s101, s101, 1')
    k.e('s_nop 3')
    k.e('s_cbranch_vccz %s' % l)
    k.e('s_cmp_lg_u32 s101, 0')
    k.e('s_cbranch_scc1 %s' % lp)
    k.label(l)
def poll_init(k): k.e('s_mov_b32 s101, 0x100000')

def srd(k, d, what, off=0, size=None, soff=None):
    p = PTR[what]
    if what == 'ws': off += env('WSB', 0) * MB
    if size is None: size = SIZES[what]
    if off or soff:
        k.e('s_add_u32 s%d, s%d, 0x%x' % (d, p, off))
        k.e('s_addc_u32 s%d, s%d, 0' % (d + 1, p + 1))
        if soff:
            k.e('s_add_u32 s%d, s%d, %s' % (d, d, soff))
            k.e('s_addc_u32 s%d, s%d, 0' % (d + 1, d + 1))
        k.e('s_and_b32 s%d, s%d, 0xffff' % (d + 1, d + 1))
    else:
        k.e('s_mov_b32 s%d, s%d' % (d, p))
        k.e('s_and_b32 s%d, s%d, 0xffff' % (d + 1, p + 1))
    k.e('s_mov_b32 s%d, 0x%x' % (d + 2, size))
    k.e('s_mov_b32 s%d, 0x20000' % (d + 3))

def finish(k):
    endpgm(k)

XT = env('XT', 0)
AOWN = env('AOWN', 3)
AT2 = env('AT2', 1)
MP0 = env('MP0', 1)
CPF = env('CPF', 2)
def code_pf(k, start, end, maxbytes, lane=1, vt=6, vd=7, sb=84):
    if not CPF: return 0
    h = k.newlabel('pc')
    k.e('s_getpc_b64 s[%d:%d]' % (sb, sb + 1))
    k.label(h)
    k.e('s_add_u32 s%d, s%d, %s-%s' % (sb, sb, start, h))
    k.e('s_addc_u32 s%d, s%d, 0' % (sb + 1, sb + 1))
    n = (maxbytes + 8191) // 8192
    for i in range(n):
        k.e('v_lshlrev_b32 v%d, 7, v%d' % (vt, lane))
        if i: k.e('v_add_u32 v%d, %d, v%d' % (vt, i * 8192, vt))
        k.e('v_min_u32 v%d, %s-%s-4, v%d' % (vt, end, start, vt))
        k.e('global_load_dword v%d, v%d, s[%d:%d]' % (vd, vt, sb, sb + 1))
    return n

def code_touch(k, start, end, soff, V):
    h = k.newlabel('pc')
    k.e('s_getpc_b64 s[64:65]')
    k.label(h)
    k.e('s_add_u32 s64, s64, %s-%s' % (start, h))
    k.e('s_addc_u32 s65, s65, 0')
    k.e('v_and_b32 v%d, 63, v0' % V)
    k.e('v_lshl_add_u32 v%d, v%d, 7, %s' % (V, V, soff))
    k.e('v_min_u32 v%d, %s-%s-4, v%d' % (V, end, start, V))
    k.e('v_mov_b32 v%d, s65' % (V + 1))
    k.e('v_add_co_u32 v%d, vcc, s64, v%d' % (V, V))
    k.e('s_nop 1')
    k.e('v_addc_co_u32 v%d, vcc, 0, v%d, vcc' % (V + 1, V + 1))
    k.e('global_load_dword v%d, v[%d:%d], off' % (V + 2, V, V + 1))

def vr(b, n): return 'v[%d:%d]' % (b, b + n - 1)
def sr(b): return 's[%d:%d]' % (b, b + 3)

def round_bf16_pair(k, a, b, tmp):
    k.e('v_cvt_pk_bf16_f32 v%d, v%d, v%d' % (tmp, a, b))
    k.e('v_lshlrev_b32 v%d, 16, v%d' % (a, tmp))
    k.e('v_and_b32 v%d, 0xffff0000, v%d' % (b, tmp))

def red_lanes(k, regs, tmp, rors=(8,)):
    for ro in rors:
        k.e('s_nop 1')
        for r in regs:
            k.e('v_add_f32_dpp v%d, v%d, v%d row_ror:%d row_mask:0xf bank_mask:0xf' % (r, r, r, ro))
    for op in ('v_permlane16_swap_b32', 'v_permlane32_swap_b32'):
        for r, t in zip(regs, tmp): k.e('v_mov_b32 v%d, v%d' % (t, r))
        k.e('s_nop 1')
        for r, t in zip(regs, tmp): k.e('%s v%d, v%d' % (op, r, t))
        k.e('s_nop 1')
        for r, t in zip(regs, tmp): k.e('v_add_f32 v%d, v%d, v%d' % (r, r, t))

def unpack(k, lo, hi, src):
    k.e('v_lshlrev_b32 v%d, 16, v%d' % (lo, src))
    k.e('v_and_b32 v%d, 0xffff0000, v%d' % (hi, src))

def k_p0(k, c):
    phase_begin(k, c)
    KIDX[0] += 1
    assert c.first and not c.last
    lst = 'L_p0_stats'
    if env('CPF0', 1):
        l0 = k.newlabel('c0')
        k.e('s_cmp_ge_u32 s3, %d' % env('CPF0', 1))
        k.e('s_cbranch_scc1 %s' % l0)
        k.e('s_lshl_b32 s44, s3, 13')
        code_touch(k, l0, 'L_text_end', 's44', 196)
        k.label(l0)
    def rest_issue():
        srd(k, 52, 'w_mod'); srd(k, 56, 'c')
        k.e("""
        v_lshrrev_b32 v164, 3, v0
        v_lshlrev_b32 v165, 4, v164        ; c byte offset = g*16
        v_mul_u32_u24 v164, %d, v164
        v_and_b32 v166, 7, v0
        v_lshl_add_u32 v164, v166, 4, v164
        s_lshr_b32 s60, s30, 1             ; col block
        s_and_b32 s61, s30, 1              ; k half
        s_lshl_b32 s62, s60, 7
        s_mul_i32 s63, s61, %d
        s_add_u32 s62, s62, s63
        s_add_u32 s62, s62, 4096
        s_lshl_b32 s63, s61, 10
        buffer_load_dwordx4 v[128:131], v165, s[56:59], s63 offen
        """ % (8 * 12288, 512 * 12288))
        if env('PWAIT', 2) == 2: k.e('s_waitcnt vmcnt(0)')
        for j in range(8):
            k.e('buffer_load_dwordx4 %s, v164, s[52:55], s62 offen' % vr(132 + 4 * j, 4))
            k.e('s_add_u32 s62, s62, 12288')
        k.need(192, 0)
    def rest_compute(newer):
        S_ = 168; T_ = 176; A_ = 184
        k.e('s_waitcnt vmcnt(%d)' % (8 + newer))
        for j in range(4): unpack(k, S_ + 2 * j, S_ + 1 + 2 * j, 128 + j)
        for j in range(8): k.e('v_mul_f32 v%d, %s, v%d' % (T_ + j, hx(-LOG2E), S_ + j))
        for j in range(8): k.e('v_exp_f32 v%d, v%d' % (T_ + j, T_ + j))
        for j in range(8): k.e('v_add_f32 v%d, 1.0, v%d' % (T_ + j, T_ + j))
        for j in range(8): k.e('v_rcp_f32 v%d, v%d' % (T_ + j, T_ + j))
        for j in range(8): k.e('v_mul_f32 v%d, v%d, v%d' % (S_ + j, S_ + j, T_ + j))
        for j in range(4): round_bf16_pair(k, S_ + 2 * j, S_ + 1 + 2 * j, T_)
        for j in range(8):
            k.e('s_waitcnt vmcnt(%d)' % (7 - j + newer))
            for d in range(4):
                unpack(k, T_, T_ + 1, 132 + 4 * j + d)
                op = 'v_mul_f32' if j == 0 else 'v_fmac_f32'
                k.e('%s v%d, v%d, v%d' % (op, A_ + 2 * d, T_, S_ + j))
                k.e('%s v%d, v%d, v%d' % (op, A_ + 1 + 2 * d, T_ + 1, S_ + j))
        k.e('s_nop 1')
        for e in range(4): k.e('v_permlane32_swap_b32 v%d, v%d' % (A_ + e, A_ + 4 + e))
        k.e('s_nop 1')
        for e in range(4): k.e('v_add_f32 v%d, v%d, v%d' % (A_ + e, A_ + e, A_ + 4 + e))
        k.e('s_nop 1')
        for e in range(2): k.e('v_permlane16_swap_b32 v%d, v%d' % (A_ + e, A_ + 2 + e))
        k.e('s_nop 1')
        for e in range(2): k.e('v_add_f32 v%d, v%d, v%d' % (A_ + e, A_ + e, A_ + 2 + e))
        k.e('s_nop 1')
        for e in range(2): k.e('v_add_f32_dpp v%d, v%d, v%d row_ror:8 row_mask:0xf bank_mask:0xf' % (A_ + e, A_ + e, A_ + e))
        lw2 = k.newlabel('nw')
        k.e("""
        v_lshlrev_b32 v164, 5, v166
        v_lshrrev_b32 v165, 4, v1
        v_lshl_add_u32 v164, v165, 3, v164
        s_lshl_b32 s62, s3, 8
        s_add_u32 s62, s62, %d
        v_add_u32 v164, s62, v164
        ds_write_b64 v164, v[184:185]
        s_waitcnt lgkmcnt(0)
        s_barrier
        s_cmp_lg_u32 s3, 7
        s_cbranch_scc1 %s
        v_lshlrev_b32 v164, 2, v1
        v_add_u32 v165, %d, v164
        """ % (AUX_A + 8192, lw2, AUX_A + 8192))
        for w in range(8): k.e('ds_read_b32 v%d, v165 offset:%d' % (T_ + w, w * 256))
        k.e("""
        s_lshl_b32 s62, s60, 8
        s_lshl_b32 s63, s61, 14
        s_add_u32 s62, s62, s63
        s_add_u32 s62, s62, %d
        s_waitcnt lgkmcnt(0)
        """ % WS_MODQ)
        for w in range(0, 8, 2): k.e('v_add_f32 v%d, v%d, v%d' % (T_ + w, T_ + w, T_ + w + 1))
        k.e('v_add_f32 v%d, v%d, v%d' % (T_, T_, T_ + 2))
        k.e('v_add_f32 v%d, v%d, v%d' % (T_ + 4, T_ + 4, T_ + 6))
        k.e('v_add_f32 v%d, v%d, v%d' % (T_, T_, T_ + 4))
        k.e('buffer_store_dword v%d, v164, s[40:43], s62 offen%s' % (T_, WT))
        k.label(lw2)
    k.e("""
    v_and_b32 v1, 63, v0               ; lane
    v_lshlrev_b32 v6, 4, v0            ; tid*16
    s_lshr_b32 s30, s2, 4
    s_lshl_b32 s30, s30, 3
    s_and_b32 s47, s2, 7
    s_add_u32 s30, s30, s47            ; index within role (0..127)
    s_bitcmp1_b32 s2, 3
    s_cbranch_scc1 %s
    s_lshr_b32 s48, s30, 2             ; col block
    s_and_b32 s49, s30, 3              ; k quarter
    v_lshrrev_b32 v2, 3, v0            ; row group (0..63): rows 4g..4g+3 (+256*q)
    v_and_b32 v3, 7, v0                ; chunk
    v_lshlrev_b32 v4, 3, v2            ; c byte offset = g*8
    v_mul_u32_u24 v5, %d, v2
    v_lshl_add_u32 v5, v3, 4, v5
    s_lshl_b32 s31, s48, 7
    s_mul_i32 s44, s49, %d
    s_add_u32 s31, s31, s44
    s_lshl_b32 s45, s49, 9
    s_waitcnt lgkmcnt(0)
    s_load_dwordx2 s[84:85], s[28:29], 0x%x
    """ % (lst, 4 * 12288, 256 * 12288, WS_EPOCH + env('WSB', 0) * MB))
    mark(k, 0)
    srd(k, 36, 'w_mod'); srd(k, 32, 'c')
    CL = env('CLAST', 0)
    if not CL: k.e('buffer_load_dwordx2 v[8:9], v4, s[32:35], s45 offen')
    for j in range(4):
        k.e('buffer_load_dwordx4 %s, v5, s[36:39], s31 offen' % vr(12 + 4 * j, 4))
        k.e('s_add_u32 s31, s31, 12288')
    if CL: k.e('buffer_load_dwordx2 v[8:9], v4, s[32:35], s45 offen')
    lnc = k.newlabel('nc')
    def resets(R, wait):
        lnr = k.newlabel('nr')
        k.e('s_cmp_gt_u32 s3, 3')
        k.e('s_cbranch_scc1 %s' % lnr)
        for r in range(4): k.e('v_mov_b32 v%d, -1' % (R + r))
        for off, size in (((WS_G2, 512 * KB) if W22 else (WS_G, 256 * KB)), (WS_MOD, 64 * KB)) + (() if MP0 else ((WS_MODQ, 64 * KB),)):
            per = size // 128
            srd(k, 52, 'ws', off, size)
            k.e('s_mul_i32 s50, s30, %d' % per)
            k.e('v_cmp_gt_u32 vcc, %d, v0' % (per // 16))
            k.e('s_and_saveexec_b64 s[46:47], vcc')
            k.e('buffer_store_dwordx4 %s, v6, s[52:55], s50 offen%s' % (vr(R, 4), WT))
            k.e('s_mov_b64 exec, s[46:47]')
        if wait: k.e('s_waitcnt vmcnt(0)')
        k.label(lnr)
    RLN = env('RLN', 1)
    if not RLN: resets(40, True)
    srd(k, 40, 'ws', 0, 256 * KB)
    if CL == 2:
        k.e('s_waitcnt vmcnt(1)'); mark(k, 0)
    k.e('s_waitcnt vmcnt(%d)' % (0 if CL else 4))
    mark(k, 1)
    for j in range(2): unpack(k, 44 + 2 * j, 45 + 2 * j, 8 + j)
    for j in range(4): k.e('v_mul_f32 v%d, %s, v%d' % (52 + j, hx(-LOG2E), 44 + j))
    for j in range(4): k.e('v_exp_f32 v%d, v%d' % (52 + j, 52 + j))
    for j in range(4): k.e('v_add_f32 v%d, 1.0, v%d' % (52 + j, 52 + j))
    for j in range(4): k.e('v_rcp_f32 v%d, v%d' % (52 + j, 52 + j))
    for j in range(4): k.e('v_mul_f32 v%d, v%d, v%d' % (44 + j, 44 + j, 52 + j))
    for j in range(2): round_bf16_pair(k, 44 + 2 * j, 45 + 2 * j, 52)
    lns = k.newlabel('nosc')
    if not MP0: k.e("""
    s_cmp_lg_u32 s48, 0
    s_cbranch_scc1 %s
    v_lshlrev_b32 v7, 4, v2
    s_lshl_b32 s44, s49, 10
    s_add_u32 s44, s44, %d
    buffer_store_dwordx4 v[44:47], v7, s[40:43], s44 offen%s
    s_waitcnt vmcnt(0)
    """ % (lns, WS_SC, WT))
    k.label(lns)
    A = 56
    for j in range(4):
        k.e('s_waitcnt vmcnt(%d)' % (3 - j))
        for d in range(4):
            unpack(k, 52, 53, 12 + 4 * j + d)
            op = 'v_mul_f32' if j == 0 else 'v_fmac_f32'
            k.e('%s v%d, v52, v%d' % (op, A + 2 * d, 44 + j))
            k.e('%s v%d, v53, v%d' % (op, A + 1 + 2 * d, 44 + j))
    mark(k, 2)
    if MP0 == 4: rest_issue()
    k.e('s_nop 1')
    for e in range(4): k.e('v_permlane32_swap_b32 v%d, v%d' % (A + e, A + 4 + e))
    k.e('s_nop 1')
    for e in range(4): k.e('v_add_f32 v%d, v%d, v%d' % (A + e, A + e, A + 4 + e))
    k.e('s_nop 1')
    for e in range(2): k.e('v_permlane16_swap_b32 v%d, v%d' % (A + e, A + 2 + e))
    k.e('s_nop 1')
    for e in range(2): k.e('v_add_f32 v%d, v%d, v%d' % (A + e, A + e, A + 2 + e))
    k.e('s_nop 1')
    for e in range(2): k.e('v_add_f32_dpp v%d, v%d, v%d row_ror:8 row_mask:0xf bank_mask:0xf' % (A + e, A + e, A + e))
    lw = k.newlabel('nw')
    k.e("""
    v_lshlrev_b32 v2, 5, v3
    v_lshrrev_b32 v7, 4, v1
    v_lshl_add_u32 v2, v7, 3, v2
    s_lshl_b32 s44, s3, 8
    s_add_u32 s44, s44, %d
    v_add_u32 v2, s44, v2
    ds_write_b64 v2, v[56:57]
    s_waitcnt lgkmcnt(0)
    s_add_u32 s84, s84, 1
    s_barrier
    s_cmp_lg_u32 s3, 0
    s_cbranch_scc1 %s
    v_lshlrev_b32 v2, 2, v1
    v_add_u32 v7, %d, v2
    """ % (AUX_A, lw, AUX_A))
    for w in range(8): k.e('ds_read_b32 v%d, v7 offset:%d' % (12 + w, w * 256))
    flag_prep(k)
    k.e("""
    s_lshl_b32 s31, s48, 8
    s_lshl_b32 s44, s49, 13
    s_add_u32 s31, s31, s44
    s_add_u32 s31, s31, %d
    s_lshl_b32 s100, s30, 7
    s_add_u32 s100, s100, %d
    s_waitcnt lgkmcnt(0)
    """ % (WS_MODP, FL_MOD * 32))
    for w in range(0, 8, 2): k.e('v_add_f32 v%d, v%d, v%d' % (12 + w, 12 + w, 13 + w))
    k.e('v_add_f32 v12, v12, v14')
    k.e('v_add_f32 v16, v16, v18')
    k.e('v_add_f32 v12, v12, v16')
    if TAGP:
        srd(k, 96, 'ws', WS_MODT, 64 * KB)
        k.e("""
        v_mov_b32 v14, s84
        v_mov_b32 v15, s85
        v_mov_b32_dpp v13, v12 quad_perm:[1,1,3,3] row_mask:0xf bank_mask:0xf
        v_lshlrev_b32 v2, 3, v1
        s_lshl_b32 s31, s48, 9
        s_lshl_b32 s44, s49, 14
        s_add_u32 s31, s31, s44
        s_mov_b32 exec_lo, 0x55555555
        s_mov_b32 exec_hi, 0x55555555
        buffer_store_dwordx4 v[12:15], v2, s[96:99], s31 offen sc1
        s_mov_b64 exec, -1
        """)
        if env('PWAIT', 2): k.e('s_waitcnt vmcnt(0)')
    else:
        k.e('buffer_store_dword v12, v2, s[40:43], s31 offen' + WT)
        k.e('s_waitcnt vmcnt(0)')
        flag_store(k, 's100')
    k.label(lw)
    k.e('s_barrier')
    mark(k, 3)
    if env('TLBW', 0):
        lt = k.newlabel('tl')
        for w, (nm, sz) in enumerate((('ws', 64 * MB), ('w_mod', None), ('w_sp', None), ('w_in', None), ('w_out', None), ('wo', None), ('out', None), ('x', None))):
            ln = k.newlabel('tn')
            k.e('s_cmp_lg_u32 s3, %d' % w)
            k.e('s_cbranch_scc1 %s' % ln)
            srd(k, 36, nm, 0, sz)
            k.e('s_branch %s' % lt)
            k.label(ln)
        k.label(lt)
        k.e('s_lshr_b32 s51, s30, 3')
        k.e('s_lshl_b32 s51, s51, 22')
        k.e('s_add_u32 s51, s51, %d' % (65536 - 128))
        k.e('v_lshlrev_b32 v36, 16, v1')
        k.e('buffer_load_dword v37, v36, s[36:39], s51 offen')
    srd(k, 36, 'wqkv')
    k.e('s_lshl_b32 s51, s30, 13')
    k.e('s_add_u32 s51, s51, %d' % (env('NPFE', 0) * MB))
    for p in range(env('NPFQ', 0) - env('NPFE', 0)):
        k.e('buffer_load_dwordx4 v[8:11], v6, s[36:39], s51 offen')
        k.e('s_add_u32 s51, s51, %d' % MB)
    if CPF:
        h = k.newlabel('pc')
        k.e('s_cmp_lg_u32 s3, 2')
        k.e('s_cbranch_scc1 %s' % lnc)
        k.e('s_cmp_ge_u32 s30, 64')
        k.e('s_cbranch_scc1 %s' % lnc)
        k.e('s_lshr_b32 s44, s30, 3')
        k.e('s_lshl_b32 s44, s44, 13')
        code_touch(k, 'L_qkv_entry', 'L_text_end', 's44', 36)
        k.label(lnc)
    if MP0 == 1:
        rest_issue(); rest_compute(0)
    if MP0 == 4: rest_compute(0)
    k.e('s_waitcnt vmcnt(0)')
    endpgm(k)
    k.label(lst)
    k.e("""
    s_lshl_b32 s44, s3, 12
    v_lshl_add_u32 v3, v1, 4, s44      ; wave*4096 + lane*16
    s_lshl_b32 s31, s30, 15            ; 16 rows * 2048
    s_waitcnt lgkmcnt(0)
    s_load_dwordx2 s[84:85], s[28:29], 0x%x
    """ % (WS_EPOCH + env('WSB', 0) * MB))
    srd(k, 32, 'x')
    if env('XDELAY', 0): k.e('s_waitcnt lgkmcnt(0)')
    for q in range(4): k.e('buffer_load_dwordx4 %s, v3, s[32:35], s31 offen offset:%d' % (vr(8 + 4 * q, 4), q * 1024))
    if MP0 == 2: rest_issue()
    NE = env('NPFE', 0)
    if NE:
        srd(k, 36, 'wqkv')
        k.e('s_lshl_b32 s51, s30, 13')
        for p in range(NE):
            k.e('buffer_load_dwordx4 v[128:131], v6, s[36:39], s51 offen')
            k.e('s_add_u32 s51, s51, %d' % MB)
    srd(k, 36, 'ws', WS_H, 4 * MB); srd(k, 40, 'ws', 0, 256 * KB)
    if env('HTOUCH', 0):
        srd(k, 96, 'ws', WS_FL, FLSZ)
        k.e('v_mov_b32 v126, 0')
        k.e('s_mov_b64 exec, 1')
        k.e('buffer_load_dword v127, v126, s[36:39], s31 offen')
        k.e('buffer_load_dword v127, v126, s[96:99], 0 offen offset:64')
        k.e('s_mov_b64 exec, -1')
        NE += 2
    set_flag(k, 's_lshr_b32 s100, s30, 3\ns_lshl_b32 s100, s100, 8\ns_and_b32 s101, s30, 7\ns_lshl_b32 s101, s101, 2\ns_add_u32 s100, s100, s101\ns_add_u32 s100, s100, %d' % FL_LN1)
    mark(k, 0)
    if RLN == 2: resets(132, True)
    k.e('s_waitcnt vmcnt(%d) lgkmcnt(0)' % (NE + (9 if MP0 == 2 else 0)))
    k.e('s_add_u32 s84, s84, 1')
    if MP0 == 3: rest_issue()
    X = 24
    for d in range(16): unpack(k, X + 2 * d, X + 2 * d + 1, 8 + d)
    MU = [56, 58]; VA = [60, 62]
    if env('SP1', 1):
        for r in range(2):
            stat_ops(k, X + 16 * r, 8 + 4 * r, 10 + 4 * r, True)
            k.e('v_add_f32 v%d, v%d, v%d' % (MU[r], 8 + 4 * r, 9 + 4 * r))
            k.e('v_add_f32 v%d, v%d, v%d' % (VA[r], 10 + 4 * r, 11 + 4 * r))
        red_lanes(k, MU + VA, [8, 9, 10, 11], rors=(8, 4, 2, 1))
        for r in range(2):
            k.e('v_mul_f32 v%d, %s, v%d' % (MU[r], hx(-1.0 / 1024), MU[r]))
            k.e('v_mul_f32 v%d, %s, v%d' % (VA[r], hx(1.0 / 1024), VA[r]))
            k.e('v_fma_f32 v%d, -v%d, v%d, v%d' % (VA[r], MU[r], MU[r], VA[r]))
            k.e('v_max_f32 v%d, 0, v%d' % (VA[r], VA[r]))
    else:
        for r in range(2):
            k.e(pk('add', 8 + 2 * r, X + 16 * r, X + 16 * r + 2))
            for e in range(4, 16, 2): k.e(pk('add', 8 + 2 * r, 8 + 2 * r, X + 16 * r + e))
            k.e('v_add_f32 v%d, v%d, v%d' % (MU[r], 8 + 2 * r, 9 + 2 * r))
        red_lanes(k, MU, [8, 9], rors=(8, 4, 2, 1))
        for r in range(2):
            k.e('v_mul_f32 v%d, %s, v%d' % (MU[r], hx(-1.0 / 1024), MU[r]))
            for e in range(0, 16, 2):
                k.e(pk('add', 8, X + 16 * r + e, (MU[r],)))
                k.e(pk('mul', 10, 8, 8) if e == 0 else pk('fma', 10, 8, 8, 10))
            k.e('v_add_f32 v%d, v10, v11' % VA[r])
        red_lanes(k, VA, [8, 9], rors=(8, 4, 2, 1))
        for r in range(2):
            k.e('v_mul_f32 v%d, %s, v%d' % (VA[r], hx(1.0 / 1024), VA[r]))
    for r in range(2):
        round_bf16_pair(k, MU[r], VA[r], 8)
        k.e('v_add_f32 v%d, %s, v%d' % (VA[r], hx(1e-5), VA[r]))
    round_bf16_pair(k, VA[0], VA[1], 8)
    for r in range(2): k.e('v_sqrt_f32 v%d, v%d' % (VA[r], VA[r]))
    k.e('s_nop 0')
    round_bf16_pair(k, VA[0], VA[1], 8)
    for r in range(2): k.e('v_rcp_f32 v%d, v%d' % (VA[r], VA[r]))
    def tag_setup():
        srd(k, 96, 'ws', WS_MODT, 64 * KB)
        k.e('v_lshlrev_b32 v81, 4, v1')
        k.e('s_lshl_b32 s100, s3, 11')
        k.e('v_add_u32 v81, s100, v81')
        k.e('v_lshlrev_b32 v80, 3, v1')
        k.e('s_lshl_b32 s100, s3, 10')
        k.e('s_add_u32 s100, s100, %d' % AUX_A)
        k.e('v_add_u32 v80, s100, v80')
        k.e('s_mov_b32 s101, 0x100000')
    def tag_loads():
        for q in range(4):
            k.e('s_mov_b32 s56, %d' % (q * 16384))
            for hh in range(2): k.e('buffer_load_dwordx4 %s, v81, s[96:99], s56 offen offset:%d sc1' % (vr(96 + 8 * q + 4 * hh, 4), hh * 1024))
    ET = env('ET', 0)
    if ET == 1:
        if RLN: resets(132, False)
        tag_setup(); tag_loads()
    k.e("""
    v_lshrrev_b32 v5, 1, v1
    v_mul_u32_u24 v5, 544, v5          ; cb*2*272
    v_and_b32 v7, 1, v1
    v_lshl_add_u32 v5, v7, 3, v5
    s_lshl_b32 s44, s3, 5
    v_add_u32 v5, s44, v5
    """)
    for r in range(2):
        x = X + 16 * r; pin = 8 + 8 * r
        for d in range(8): k.e(pk('add', x + 2 * d, x + 2 * d, (MU[r],)))
        for d in range(8): round_bf16_pair(k, x + 2 * d, x + 2 * d + 1, pin + d)
        for d in range(8): k.e(pk('mul', x + 2 * d, x + 2 * d, (VA[r],)))
        for d in range(8): k.e('v_cvt_pk_bf16_f32 v%d, v%d, v%d' % (pin + d, x + 2 * d, x + 2 * d + 1))
        for q, o in enumerate((0, 272, 64 * 272, 65 * 272)):
            k.e('ds_write_b64 v5, %s offset:%d' % (vr(pin + 2 * q, 2), o + 16 * r))
    k.e("""
    v_lshrrev_b32 v5, 4, v0            ; gi (p=0)
    v_and_b32 v7, 15, v0               ; row
    v_mul_u32_u24 v2, 272, v5
    v_lshl_add_u32 v2, v7, 4, v2       ; granule lds address
    v_lshlrev_b32 v4, 9, v5
    v_lshl_add_u32 v4, v7, 4, v4       ; global offset
    v_lshrrev_b32 v3, 1, v5
    v_lshlrev_b32 v3, 6, v3
    v_and_b32 v5, 1, v5
    v_lshl_add_u32 v3, v5, 4, v3
    v_add_u32 v3, %d, v3               ; table address: cb*64 + h*16
    s_lshr_b32 s44, s30, 1
    s_lshl_b32 s44, s44, 16
    s_and_b32 s45, s30, 1
    s_lshl_b32 s45, s45, 8
    s_add_u32 s44, s44, s45
    s_mov_b32 s48, %d
    s_cmp_lt_u32 s3, 4
    s_cselect_b32 s49, 0, 1.0
    s_waitcnt lgkmcnt(0)
    """ % (AUX_A, WS_MODP))
    if MP0 in (2, 3): rest_compute(0)
    if RLN == 1 and ET != 1: resets(132, False)
    if ET == 2: tag_setup(); tag_loads()
    mark(k, 1)
    if XT:
        srd(k, 36, 'ws', WS_N, 4 * MB)
        k.e('s_barrier')
        for p in range(4): k.e('ds_read_b128 %s, v2 offset:%d' % (vr(8 + 4 * p, 4), p * 32 * 272))
        for p in range(4):
            k.e('s_waitcnt lgkmcnt(%d)' % (3 - p))
            k.e('buffer_store_dwordx4 %s, v4, s[36:39], s44 offen%s' % (vr(8 + 4 * p, 4), WT))
            k.e('s_add_u32 s44, s44, 16384')
        mark(k, 3)
        signal(k, 'S')
        finish(k)
        k.need(128, AUX_A + 8192)
        return
    X = 24
    k.e('s_barrier')
    for p in range(4): k.e('ds_read_b128 %s, v2 offset:%d' % (vr(8 + 4 * p, 4), p * 32 * 272))
    for p in range(4):
        k.e('s_waitcnt lgkmcnt(%d)' % (3 - p))
        for d in range(4): unpack(k, X + 8 * p + 2 * d, X + 8 * p + 2 * d + 1, 8 + 4 * p + d)
    if TAGP:
        lp = k.newlabel('wf'); le = k.newlabel('we')
        if ET:
            k.e('s_branch %sc' % lp)
        else: tag_setup()
        k.label(lp)
        tag_loads()
        k.label(lp + 'c')
        k.e('s_mov_b64 s[50:51], 0')
        for n in range(8):
            k.e('s_waitcnt vmcnt(%d)' % (7 - n))
            k.e('v_cmp_ne_u64 vcc, s[84:85], %s' % vr(98 + 4 * n, 2))
            k.e('s_or_b64 s[50:51], s[50:51], vcc')
        k.e('s_cbranch_scc0 %s' % le)
        k.e('s_sub_u32 s101, s101, 1')
        k.e('s_sleep %d' % env('P0SLEEP', 1))
        k.e('s_cmp_lg_u32 s101, 0')
        k.e('s_cbranch_scc1 %s' % lp)
        k.label(le)
        mark(k, 2)
        for hh in range(2):
            b = 96 + 4 * hh
            k.e(pk('add', b, b, b + 8)); k.e(pk('add', b + 16, b + 16, b + 24)); k.e(pk('add', 64 + 2 * hh, b, b + 16))
    else:
        srd(k, 96, 'ws', WS_FL, FLSZ)
        lp = k.newlabel('wf'); le = k.newlabel('we')
        k.e("""
        s_lshl_b32 s100, s3, 11
        s_add_u32 s100, s100, %d
        v_lshlrev_b32 v%d, 7, v1
        v_add_u32 v80, %d, v6
        s_mov_b32 s101, 0x100000
        s_mov_b64 exec, 0xffff
        %s:
        buffer_load_dwordx2 %s, v%d, s[96:99], s100 offen sc1
        s_waitcnt vmcnt(0)
        v_cmp_ne_u64 vcc, s[84:85], %s
        s_sub_u32 s101, s101, 1
        s_nop 3
        s_cbranch_vccz %s
        s_mov_b64 exec, vcc
        s_sleep %d
        s_cmp_lg_u32 s101, 0
        s_cbranch_scc1 %s
        %s:
        s_mov_b64 exec, -1
        """ % (FL_MOD * 32, FV + 2, AUX_A, lp, vr(FV, 2), FV + 2, vr(FV, 2), le, env('P0SLEEP', 1), lp, le))
        mark(k, 2)
        for q in range(4):
            k.e('buffer_load_dwordx4 %s, v6, s[40:43], s48 offen sc1' % vr(64 + 4 * q, 4))
            k.e('s_add_u32 s48, s48, 8192')
        k.e('s_waitcnt vmcnt(0)')
        k.e(pk('add', 64, 64, 68)); k.e(pk('add', 66, 66, 70)); k.e(pk('add', 72, 72, 76)); k.e(pk('add', 74, 74, 78))
        k.e(pk('add', 64, 64, 72)); k.e(pk('add', 66, 66, 74))
    for d in range(2): round_bf16_pair(k, 64 + 2 * d, 65 + 2 * d, 68)
    for q in range(4): k.e('v_add_f32 v%d, s49, v%d' % (64 + q, 64 + q))
    for d in range(2): round_bf16_pair(k, 64 + 2 * d, 65 + 2 * d, 68)
    if TAGP:
        k.e('ds_write_b64 v80, v[64:65]')
        k.e('ds_write_b64 v80, v[66:67] offset:512')
    else: k.e('ds_write_b128 v80, v[64:67]')
    k.e('s_waitcnt lgkmcnt(0)')
    k.e('s_barrier')
    SC = 64; SH = 96
    for p in range(4):
        for sub in range(2):
            k.e('ds_read_b128 %s, v3 offset:%d' % (vr(SC + 8 * p + 4 * sub, 4), 4096 + p * 1024 + sub * 32))
            k.e('ds_read_b128 %s, v3 offset:%d' % (vr(SH + 8 * p + 4 * sub, 4), p * 1024 + sub * 32))
    for p in range(4):
        pin = 8 + 4 * p; x = X + 8 * p
        k.e('s_waitcnt lgkmcnt(%d)' % (12 - 4 * p))
        if env('NORND', 0):
            for d in range(4): k.e(pk('fma', x + 2 * d, x + 2 * d, SC + 8 * p + 2 * d, SH + 8 * p + 2 * d))
        else:
            for d in range(4): k.e(pk('mul', x + 2 * d, x + 2 * d, SC + 8 * p + 2 * d))
            for d in range(4): round_bf16_pair(k, x + 2 * d, x + 2 * d + 1, pin + d)
            for d in range(4): k.e(pk('add', x + 2 * d, x + 2 * d, SH + 8 * p + 2 * d))
        for d in range(4): k.e('v_cvt_pk_bf16_f32 v%d, v%d, v%d' % (pin + d, x + 2 * d, x + 2 * d + 1))
        k.e('buffer_store_dwordx4 %s, v4, s[36:39], s44 offen%s' % (vr(pin, 4), WT))
        k.e('s_add_u32 s44, s44, 16384')
    if RLN == 3: resets(132, False)
    mark(k, 3)
    signal(k, 'S')
    finish(k)
    k.need(128, AUX_A + 10240)

def log2(n):
    l = n.bit_length() - 1
    assert 1 << l == n
    return l
class G: pass

def k_gemm(k, c, GM, GN, bm_log2, xm_log2, bn, TM, TN, WM, WN, K, KS, NS, X, Y, pre, pre2, epi, swap=(), aux=None, auxsz=0, auxbase=None,
           pf=None, aux_end=None, side=None, wait=None, sig=None, dep='X', GU=1, RWD=1, post=None, frbase=None, selfsig=False, RR=0, early=None, JG=1, lazyfix=False, SOFT=0, own=None, ownlim=None, altmap=False, prelast=None, DEFER=0, dcols=None, auxpre=None, mid=None, accmap=None, cinit=False, geo=None, tailpre=None):
    g = G()
    name = c.name
    xt = X[0] == 'xt'
    M16 = name in os.environ.get('M16', 'qkv,wo,win,wsp,wout').split(',')
    if xt: X = ('xf',) + X[1:]
    ROLL = env('ROLL_' + name, env('ROLL', 0 if name == 'qkv' else 1))
    LAG = 2 if ROLL else 1
    NS = env('NS_' + name, NS + LAG - 1)
    mb = TM // WM // 32; nb = TN // WN // 32
    S = KS // 16
    xb = TM * KS * 2; yb = TN * KS * 2; STAGE = xb + yb
    nst = K // KS
    solo = c.first and c.last
    g.k = k; g.mb = mb; g.nb = nb; g.TM = TM; g.TN = TN; g.AUX = NS * STAGE if solo or auxbase is None else auxbase
    assert NS * STAGE <= g.AUX
    phase_begin(k, c)
    k.e('''
    v_and_b32 v1, 63, v0               ; lane
    s_mov_b32 s46, s3
    s_and_b32 s47, s2, 7               ; xcd
    s_lshr_b32 s48, s2, 3              ; idx
    s_and_b32 s30, s47, %d
    s_lshl_b32 s30, s30, %d
    s_and_b32 s49, s48, %d
    s_add_u32 s30, s30, s49            ; tm
    s_lshr_b32 s31, s47, %d
    s_mul_i32 s31, s31, %d
    s_lshr_b32 s49, s48, %d
    s_add_u32 s31, s31, s49            ; tn
    ''' % ((1 << xm_log2) - 1, bm_log2, (1 << bm_log2) - 1, xm_log2, bn, bm_log2))
    if altmap:
        k.e('''
        s_and_b32 s30, s47, 3
        s_lshl_b32 s30, s30, 3
        s_and_b32 s49, s48, 3
        s_lshl_b32 s49, s49, 1
        s_add_u32 s30, s30, s49
        s_bfe_u32 s49, s48, 0x10002
        s_add_u32 s30, s30, s49
        ''')
    if env('MAP_' + name, 0):
        k.e('''
        s_lshr_b32 s31, s47, 1
        s_mul_i32 s31, s31, 28
        s_add_u32 s31, s31, s48
        s_and_b32 s30, s47, 1
        s_lshl_b32 s30, s30, 3
        s_and_b32 s49, s31, 7
        s_add_u32 s30, s30, s49
        s_lshr_b32 s31, s31, 3
        ''')
    lcomp = 'L_%s_comp' % name
    set_flag(k, sig)
    if pf or side:
        k.e('s_cmp_ge_u32 s2, %d' % (GM * GN))
        k.e('s_cbranch_scc1 L_%s_pf' % name)
    k.e('s_cmp_ge_u32 s46, 4')
    k.e('s_cbranch_scc1 %s' % lcomp)
    nx = xb // 1024 // 4; ny = yb // 1024 // 4
    assert nx * 4096 == xb and ny * 4096 == yb
    VX = 8; VY = VX + nx
    g.LV = VY + ny
    if X[0] == 'xf':
        C = X[2]; ncb = C // 16
        assert S % nx == 0 or nx % S == 0
        k.e('s_mul_i32 s50, s30, %d' % (TM // 32 * ncb * 1024))
        k.e('s_mul_i32 s51, s46, %d' % nx)
        k.e('s_lshr_b32 s52, s51, %d' % log2(S))
        k.e('s_and_b32 s51, s51, %d' % (S - 1))
        k.e('s_mul_i32 s52, s52, %d' % (ncb * 1024))
        k.e('s_lshl_b32 s51, s51, 10')
        k.e('s_add_u32 s50, s50, s52')
        k.e('s_add_u32 s50, s50, s51')
        k.e('v_lshl_add_u32 v%d, v1, 4, s50' % VX)
        for j in range(1, nx):
            k.e('v_add_u32 v%d, %d, v%d' % (VX + j, (j // S) * ncb * 1024 + (j % S) * 1024, VX))
        xadv = S * 1024
    else:
        ld = X[2]
        assert nx % 2 == 0
        k.e('s_mul_i32 s50, s30, %d' % (TM * ld))
        k.e('s_mul_i32 s51, s46, %d' % (nx * 8 * ld))
        k.e('s_add_u32 s50, s50, s51')
        k.e('v_lshrrev_b32 v2, 3, v1')
        k.e('v_lshl_add_u32 v2, v2, %d, s50' % log2(ld))
        k.e('v_and_b32 v3, 7, v1')
        k.e('v_lshrrev_b32 v4, 4, v1')
        k.e('v_xor_b32 v5, v4, v3')
        k.e('v_lshl_add_u32 v%d, v5, 4, v2' % VX)
        k.e('v_xor_b32 v5, 64, v%d' % VX)
        k.e('v_add_u32 v%d, %d, v5' % (VX + 1, 8 * ld))
        for j in range(2, nx):
            k.e('v_add_u32 v%d, %d, v%d' % (VX + j, (j - j % 2) * 8 * ld, VX + j % 2))
        xadv = KS * 2
    k.e('''
    v_lshrrev_b32 v2, 4, v1            ; u
    v_bfe_u32 v3, v1, 2, 2             ; (i>>2)&3
    v_and_b32 v4, 3, v1                ; i&3
    ''')
    if Y[0] == 'w':
        ld = Y[2]
        NP = TN // 64
        assert ny % NP == 0
        if M16:
            k.e('v_and_b32 v5, 2, v2')
            k.e('v_xor_b32 v4, v4, v5')
        k.e('v_lshrrev_b32 v5, 1, v2')
        k.e('v_lshl_add_u32 v5, v5, 2, v3')
        k.e('v_mul_u32_u24 v5, %d, v5' % ld)
        k.e('v_and_b32 v6, 1, v2')
        k.e('v_lshl_add_u32 v5, v6, 6, v5')
        k.e('v_lshl_add_u32 v5, v4, 4, v5')
        if Y[3] == 'qkv': tstride, segs = 128, [0, 2048, 4096]
        elif Y[3]: tstride, segs = Y[3]
        else: tstride, segs = TN * 2, [p * 128 for p in range(NP)]
        k.e('s_mul_i32 s50, s46, %d' % (ny // NP * 8 * ld))
        k.e('s_mul_i32 s51, s31, %d' % tstride)
        k.e('s_add_u32 s50, s50, s51')
        k.e('v_add_u32 v5, s50, v5')
        for j in range(ny):
            k.e('v_add_u32 v%d, %d, v5' % (VY + j, (j // NP) * 8 * ld + segs[j % NP]))
        yadv = KS * ld
    else:
        C = Y[2]; ncb = C // 16
        NB = TN // 32
        assert ny == NB and S == 4
        if M16:
            k.e('v_and_b32 v5, 2, v2')
            k.e('v_xor_b32 v3, v3, v5')
        k.e('v_lshl_add_u32 v5, v2, 2, v4')
        k.e('v_lshlrev_b32 v5, 4, v5')
        k.e('v_lshl_add_u32 v5, v3, 9, v5')
        k.e('s_lshr_b32 s50, s46, 1')
        k.e('s_mul_i32 s50, s50, %d' % (ncb * 1024))
        k.e('s_and_b32 s51, s46, 1')
        k.e('s_lshl_b32 s51, s51, 8')
        k.e('s_add_u32 s50, s50, s51')
        k.e('s_mul_i32 s51, s31, %d' % (TN // 16 * 1024))
        k.e('s_add_u32 s50, s50, s51')
        k.e('v_add_u32 v%d, s50, v5' % VY)
        for j in range(1, ny):
            k.e('v_add_u32 v%d, %d, v%d' % (VY + j, j * 2048, VY))
        yadv = 2 * ncb * 1024
    k.e('s_mul_i32 s55, s46, %d' % (nx * 1024))
    k.e('s_mul_i32 s56, s46, %d' % (ny * 1024))
    if geo:
        k.e('s_add_u32 s55, s55, %d' % geo[2])
        if geo[0]: k.e('s_add_u32 s56, s56, %d' % geo[0])
    else: k.e('s_add_u32 s56, s56, %d' % xb)
    per = nx + ny
    assert per * NS <= 55 and nst >= 2 * NS
    k.e('s_waitcnt lgkmcnt(0)')
    mark(k, 0)
    if Y[0] == 'w': srd(k, 36, Y[1])
    else: srd(k, 36, 'ws', Y[1], 2048 * Y[2] * 2)
    if X[0] == 'xf': srd(k, 32, 'ws', X[1], 2048 * X[2] * 2)
    else: srd(k, 32, X[1])
    xfl = ' sc1' if X[0] == 'xf' else ''
    yfl = ' sc1' if Y[0] == 'z' else ''
    ntf = os.environ.get('NT_' + name, os.environ.get('NT', ''))
    if 'X' in ntf: xfl += ' nt'
    if 'Y' in ntf: yfl += ' nt'
    ownlds = name == 'wsp' and ZOWN and c.prev == 'win'
    OWN = own if (own and not c.first and (OWNF(name) or ownlds)) else None
    RW = env('RW_' + name, min(RWD, 2) if OWN else RWD); RC = env('RC_' + name, 1)
    assert nst % RW == 0
    if RW > 1:
        k.e('s_mul_i32 s54, s31, %d' % RC)
        k.e('s_add_u32 s54, s54, s30')
    if OWN:
        assert RW <= 2
        k.e(OWN)
        k.e('s_and_b32 s54, s54, 1' if RW > 1 else 's_mov_b32 s54, 0')
    out = []
    RB = 48
    dyn = [None]
    def soff(st, adv):
        if OWN:
            if st < 2: k.e('s_add_u32 s57, s68, %d' % st)
            else:
                k.e('s_cmp_le_u32 s68, %d' % (st - 2))
                k.e('s_cselect_b32 s57, %d, %d' % (st, st - 2))
                k.e('s_xor_b32 s57, s57, s54')
            k.e('s_mul_i32 s57, s57, %d' % adv)
        elif dyn[0] is not None:
            assert RW in (1, 2, 4)
            if RW > 1:
                k.e('s_add_u32 s57, s54, %d' % st)
                k.e('s_and_b32 s57, s57, %d' % (RW - 1))
                k.e('s_add_u32 s57, s57, s59')
                k.e('s_add_u32 s57, s57, %d' % (st // RW * RW))
            else: k.e('s_add_u32 s57, s59, %d' % st)
            k.e('s_mul_i32 s57, s57, %d' % adv)
        elif RW > 1:
            k.e('s_add_u32 s57, s54, %d' % st)
            k.e('s_and_b32 s57, s57, %d' % (RW - 1))
            k.e('s_mul_i32 s57, s57, %d' % adv)
            if st // RW: k.e('s_add_u32 s57, s57, %d' % (st // RW * RW * adv))
        else: k.e('s_mov_b32 s57, %d' % (st * adv))
    def opinfo(op): return (nx, 's55', VX, 32, xadv, xfl) if op == 'X' else (ny, 's56', VY, 36, yadv, yfl)
    def throttle(n):
        if len(out) + n > 60:
            k.e('s_waitcnt vmcnt(40)'); del out[:len(out) - 40]
    def iss(op, st):
        slot = (st % NS) * STAGE
        if geo: slot = (st % geo[3]) * xb if op == 'X' else (st % geo[1]) * yb
        n, base, V, sd, adv, fl = opinfo(op)
        if op == ind and st in Rset:
            if ('r', st) in out:
                last = max(i for i, t in enumerate(out) if t == ('r', st))
                k.e('s_waitcnt vmcnt(%d)' % (len(out) - 1 - last)); del out[:last + 1]
            r0 = RB + Rset.index(st) * n * 4
            for j in range(n):
                o = slot + j * 1024
                k.e('ds_write_b128 v%d, %s offset:%d' % (44 + o // 65536, vr(r0 + 4 * j, 4), o % 65536))
            return
        throttle(n)
        soff(st, adv)
        for j in range(n):
            k.e('s_add_u32 m0, %s, %d' % (base, slot + j * 1024))
            k.e('s_nop 0')
            k.e('buffer_load_dwordx4 v%d, %s, s57 offen%s lds' % (V + j, sr(sd), fl))
            out.append(st)
    def issr(st):
        n, base, V, sd, adv, fl = opinfo(ind)
        throttle(n)
        soff(st, adv)
        r0 = RB + Rset.index(st) * n * 4
        for j in range(n):
            k.e('buffer_load_dwordx4 %s, v%d, %s, s57 offen' % (vr(r0 + 4 * j, 4), V + j, sr(sd)))
            out.append(('r', st))
    def wait_stage(st):
        lg = ' lgkmcnt(%d)' % min(15, opinfo(ind)[0] * len([r_ for r_ in Rset if st < r_ < st + NS - LAG])) if st in Rset else ''
        if st in out:
            last = max(i for i, t in enumerate(out) if t == st)
            k.e('s_waitcnt vmcnt(%d)%s' % (len(out) - 1 - last, lg))
            del out[:last + 1]
        elif lg: k.e('s_waitcnt' + lg)
    I0 = env('I0_' + name, 2)
    ind = 'Y' if dep == 'X' else 'X'
    fusedw = wait and not c.first and not env('WLATE_' + name, 0)
    R = env('RR_' + name, RR) if fusedw else 0
    Rset = sorted(set(NS + (2 * i + 1) * (nst - NS) // (2 * R) for i in range(R))) if R else []
    if Rset:
        assert RB + len(Rset) * opinfo(ind)[0] * 4 <= 256
        k.need(RB + len(Rset) * opinfo(ind)[0] * 4, 0)
        k.e('v_lshl_add_u32 v44, v1, 4, %s' % opinfo(ind)[1])
        k.e('v_add_u32 v45, 0x10000, v44')
    if xt:
        DX = env('DX', 4); NR = 64; TB = NR + DX * 8; TX = TB + 32
        assert nx == 2 and S == 2
        k.need(TX + 16, 0)
        k.e('v_lshl_add_u32 v44, v1, 4, s55')
        k.e('v_add_u32 v45, 0x10000, v44')
        k.e('v_lshrrev_b32 v46, 5, v1')
        k.e('v_lshlrev_b32 v46, 4, v46')
        k.e('v_add_u32 v46, %d, v46' % AUX_A)
        def ldn(st):
            soff(st, xadv)
            for j in range(2):
                k.e('buffer_load_dwordx4 %s, v%d, s[32:35], s57 offen sc1' % (vr(NR + (st % DX) * 8 + 4 * j, 4), VX + j))
                out.append(('n', st))
        TW = TX + 16
        k.need(TW + 8, 0)
        def tabrd(st):
            soff(st, 128)
            k.e('v_add_u32 v47, s57, v46')
            for j in range(2):
                for sub in range(2):
                    k.e('ds_read_b128 %s, v47 offset:%d' % (vr(TB + 16 * j + 4 * sub, 4), 4096 + j * 64 + sub * 32))
                    k.e('ds_read_b128 %s, v47 offset:%d' % (vr(TB + 16 * j + 8 + 4 * sub, 4), j * 64 + sub * 32))
        def xform(st):
            if ('n', st) in out:
                last = max(i for i, t in enumerate(out) if t == ('n', st))
                k.e('s_waitcnt vmcnt(%d)' % (len(out) - 1 - last)); del out[:last + 1]
            r0 = NR + (st % DX) * 8
            for d in range(8): unpack(k, TX + 2 * d, TX + 2 * d + 1, r0 + d)
            if st + DX < nst: ldn(st + DX)
            k.e('s_waitcnt lgkmcnt(0)')
            for j in range(2):
                for e in range(8): k.e('v_fma_f32 v%d, v%d, v%d, v%d' % (TX + 8 * j + e, TX + 8 * j + e, TB + 16 * j + e, TB + 16 * j + 8 + e))
            for j in range(2):
                for d in range(4): k.e('v_cvt_pk_bf16_f32 v%d, v%d, v%d' % (TW + 4 * j + d, TX + 8 * j + 2 * d, TX + 8 * j + 2 * d + 1))
                o = (st % NS) * STAGE + j * 1024
                k.e('ds_write_b128 v%d, %s offset:%d' % (44 + o // 65536, vr(TW + 4 * j, 4), o % 65536))
            if st + 1 < nst: tabrd(st + 1)
        for st in range(NS): iss('Y', st)
        k.e('s_barrier')
        mark(k, 1)
        out.extend(['p'] * 4)
        mod_table(k, 24, between=lambda: [ldn(st) for st in range(DX)], nb=2 * DX)
        del out[:len(out) - 2 * DX]
        if env('XPRIO', 0): k.e('s_setprio %d' % env('XPRIO', 0))
        XL = env('XL', 2)
        assert XL >= 2
        tabrd(0)
        for st in range(XL): xform(st)
        def capture(fn):
            n0 = len(k.lines); fn(); got = k.lines[n0:]; del k.lines[n0:]
            return got
        def step(st):
            lg = ' lgkmcnt(0)' if st + XL > nst else ''
            if st in out:
                last = max(i for i, t in enumerate(out) if t == st)
                k.e('s_waitcnt vmcnt(%d)%s' % (len(out) - 1 - last, lg)); del out[:last + 1]
            elif lg: k.e('s_waitcnt' + lg)
            if st == 0: mark(k, 2)
            k.e('s_barrier')
            sx = st + XL; sy = st + NS - LAG
            doy = st >= LAG and sy < nst
            if sx >= nst:
                if doy: iss('Y', sy)
                return
            if ('n', sx) in out:
                last = max(i for i, t in enumerate(out) if t == ('n', sx))
                nw = 's_waitcnt vmcnt(%d)' % (len(out) - 1 - last + (1 if doy else 0)); del out[:last + 1]
            else: nw = None
            yl = capture(lambda: iss('Y', sy)) if doy else []
            yp = []; cur = []
            for l in yl:
                if 's_nop' in l: continue
                cur.append(l)
                if 'buffer_load' in l: yp.append(cur); cur = []
            nl = capture(lambda: ldn(sx + DX)) if (sx + DX < nst or dyn[0] is not None) else []
            nl = [l.replace('s57', 's58') for l in nl]
            npc = [nl[:-1], nl[-1:]] if nl else [[], []]
            r0 = NR + (sx % DX) * 8
            un = capture(lambda: [unpack(k, TX + 2 * d, TX + 2 * d + 1, r0 + d) for d in range(8)])
            fm = ['    v_fma_f32 v%d, v%d, v%d, v%d' % (TX + 8 * j + e, TX + 8 * j + e, TB + 16 * j + e, TB + 16 * j + 8 + e) for j in range(2) for e in range(8)]
            def put(piece):
                if len(piece) >= 2 and 'm0' in piece[-2]: piece = piece[:-1] + ['    s_nop 0', piece[-1]]
                k.lines.extend(piece)
            if yp: put(yp[0])
            if nw: k.e(nw)
            k.lines.extend(un[:8])
            if yp: put(yp[1])
            k.lines.extend(un[8:])
            if yp: put(yp[2])
            k.e('s_waitcnt lgkmcnt(0)')
            k.lines.extend(fm[:10])
            k.lines.extend(npc[0])
            k.lines.extend(fm[10:])
            if sx + 1 < nst: tabrd(sx + 1)
            k.lines.extend(npc[1])
            for j in range(2):
                for d in range(4): k.e('v_cvt_pk_bf16_f32 v%d, v%d, v%d' % (TW + 4 * j + d, TX + 8 * j + 2 * d, TX + 8 * j + 2 * d + 1))
                o = (sx % NS) * STAGE + j * 1024
                k.e('ds_write_b128 v%d, %s offset:%d' % (44 + o // 65536, vr(TW + 4 * j, 4), o % 65536))
        assert NS == 4 and DX == 4 and XL == 2 and LAG == 1 and nst == 32
        for st in range(5): step(st)
        k.e('s_mov_b32 s59, 0')
        k.label('L_%s_xl' % name)
        dyn[0] = 0
        before = list(out)
        for st in range(5, 9): step(st)
        dyn[0] = None
        sh = lambda t, d: (t[0], t[1] + d) if isinstance(t, tuple) else t + d
        assert [sh(t, 4) for t in before] == out, (before, out)
        k.e('s_add_u32 s59, s59, 4')
        k.e('s_cmp_lt_u32 s59, 24')
        k.e('s_cbranch_scc1 L_%s_xl' % name)
        out[:] = [sh(t, 20) for t in out]
        for st in range(29, 32): step(st)
    elif wait and not c.first and env('WLATE_' + name, 0):
        handoff(k, wait[0], wait[1])
    if xt: pass
    elif geo:
        yb0, NSY, xb0, NSX, NPRE, prelim = geo
        assert fusedw and dep == 'X' and not aux and not aux_end and not OWN
        if NPRE and prelim:
            l = k.newlabel('hp')
            k.e('s_cmp_lt_u32 s2, %d' % prelim); k.e('s_cbranch_scc1 %s' % l)
            for st in range(NPRE): iss('Y', st)
            k.label(l)
        WP = env('WPRE_' + name, NSY)
        for st in range(NPRE, WP): iss('Y', st)
        if auxpre: out.extend(['aux'] * auxpre(g))
        handoff(k, wait[0], wait[1])
        mark(k, 1)
        for st in range(I0): iss('X', st)
        wait_stage(0); mark(k, 2); k.e('s_barrier')
        for st in range(I0, NSX): iss('X', st)
        for st in range(max(WP, NPRE), NSY): iss('Y', st)
        for st in range(1, nst):
            wait_stage(st); k.e('s_barrier')
            if st >= LAG:
                if st + NSX - LAG < nst: iss('X', st + NSX - LAG)
                if st + NSY - LAG < nst: iss('Y', st + NSY - LAG)
    elif fusedw:
        WPRE = env('WPRE_' + name, 2 if name == 'win' else NS)
        iss0 = iss
        def iss(op, st):
            if op == dep and WPRE <= st < NS: iss0(ind, st)
            iss0(op, st)
        for st in range(WPRE): iss(ind, st)
        for st in Rset: issr(st)
        if auxpre: out.extend(['aux'] * auxpre(g))
        if ownlds and LPW:
            k.e('s_barrier')
            handoff(k, wait[0], wait[1], role='W')
            mark(k, 1)
            for st in range(2, NS): iss(dep, st)
            wait_stage(0); mark(k, 2); k.e('s_barrier')
        elif ownlds:
            handoff(k, wait[0], wait[1])
            mark(k, 1)
            I1 = env('I1_' + name, 3)
            for st in range(2, I1): iss(dep, st)
            wait_stage(0); mark(k, 2); k.e('s_barrier')
            for st in range(I1, NS): iss(dep, st)
        elif OWN:
            l1 = k.newlabel('no'); l2 = k.newlabel('no')
            k.e('s_barrier')
            if ownlim:
                k.e('s_cmp_ge_u32 s2, %d' % ownlim); k.e('s_cbranch_scc1 %s' % l1)
            n0 = len(k.lines)
            iss(dep, 0); iss(dep, 1)
            dup = k.lines[n0:]
            k.label(l1)
            handoff(k, wait[0], wait[1])
            mark(k, 1)
            if ownlim:
                k.e('s_cmp_lt_u32 s2, %d' % ownlim); k.e('s_cbranch_scc1 %s' % l2)
                k.lines.extend(dup)
                k.label(l2)
            I1 = env('I1_' + name, 3)
            for st in range(2, I1): iss(dep, st)
            wait_stage(0); mark(k, 2); k.e('s_barrier')
            for st in range(I1, NS): iss(dep, st)
        else:
            handoff(k, wait[0], wait[1])
            mark(k, 1)
            for st in range(I0): iss(dep, st)
            wait_stage(0); mark(k, 2); k.e('s_barrier')
            for st in range(I0, NS): iss(dep, st)
    else:
        for st in range(I0): iss(ind, st); iss(dep, st)
        mark(k, 1)
        wait_stage(0); mark(k, 2); k.e('s_barrier')
        for st in range(I0, NS): iss(ind, st); iss(dep, st)
    FS = bool(Rset) or env('STATIC', 0) or xt or geo
    if FS and not xt and not geo:
        for st in range(1, nst):
            if st == nst - 1: k.e('s_waitcnt vmcnt(0) lgkmcnt(0)')
            else: wait_stage(st)
            if st == nst - 1 and aux_end: aux_end(g)
            k.e('s_barrier')
            nx_st = st + NS - LAG
            if st >= LAG and nx_st < nst:
                iss(dep, nx_st); iss(ind, nx_st)
                if nx_st == nst - 1 and aux:
                    out.extend(['aux'] * aux(g))
    for st in range(1, NS if not FS else 0):
        wait_stage(st); k.e('s_barrier')
        if st >= LAG: iss('Y', st + NS - LAG); iss('X', st + NS - LAG)
    if not FS:
        s0 = 2 * NS - LAG
        k.e('s_add_u32 s60, s55, %d' % (NS * STAGE))
        k.e('s_add_u32 s55, s55, %d' % ((s0 % NS) * STAGE))
        k.e('s_add_u32 s56, s56, %d' % ((s0 % NS) * STAGE))
        k.e('s_mov_b32 s57, %d' % (s0 * xadv))
        k.e('s_mov_b32 s58, %d' % (s0 * yadv))
        k.e('s_mov_b32 s59, %d' % s0)
        ll = 'L_%s_lloop' % name
        k.label(ll)
        if OWN:
            k.e('s_sub_u32 s57, s59, 2')
            k.e('s_cmp_le_u32 s68, s57')
            k.e('s_cselect_b32 s57, s59, s57')
            k.e('s_xor_b32 s57, s57, s54')
            k.e('s_mul_i32 s58, s57, %d' % yadv)
            k.e('s_mul_i32 s57, s57, %d' % xadv)
        elif RW > 1:
            k.e('s_add_u32 s57, s54, s59')
            k.e('s_and_b32 s57, s57, %d' % (RW - 1))
            k.e('s_andn2_b32 s58, s59, %d' % (RW - 1))
            k.e('s_or_b32 s57, s57, s58')
            k.e('s_mul_i32 s58, s57, %d' % yadv)
            k.e('s_mul_i32 s57, s57, %d' % xadv)
        k.e('s_waitcnt vmcnt(%d)' % (per * (NS - 1 - LAG)))
        k.e('s_barrier')
        for j in range(ny):
            k.e('s_add_u32 m0, s56, %d' % (j * 1024))
            k.e('s_nop 0')
            k.e('buffer_load_dwordx4 v%d, s[36:39], s58 offen%s lds' % (VY + j, yfl))
        for j in range(nx):
            k.e('s_add_u32 m0, s55, %d' % (j * 1024))
            k.e('s_nop 0')
            k.e('buffer_load_dwordx4 v%d, s[32:35], s57 offen%s lds' % (VX + j, xfl))
        k.e('s_add_u32 s57, s57, %d' % xadv)
        k.e('s_add_u32 s58, s58, %d' % yadv)
        k.e('s_add_u32 s55, s55, %d' % STAGE)
        k.e('s_add_u32 s56, s56, %d' % STAGE)
        k.e('s_cmp_eq_u32 s55, s60')
        k.e('s_cselect_b32 s61, %d, 0' % (NS * STAGE))
        k.e('s_sub_u32 s55, s55, s61')
        k.e('s_sub_u32 s56, s56, s61')
        k.e('s_add_u32 s59, s59, 1')
        k.e('s_cmp_lt_u32 s59, %d' % nst)
        k.e('s_cbranch_scc1 %s' % ll)
        naux = aux(g) if aux else 0
        if CPF >= 2:
            k.e('s_and_b32 s44, s46, %d' % (env('CPW', 2) - 1))
            k.e('s_lshl_b32 s44, s44, 13')
            if env('CPN', 4):
                l = k.newlabel('ct')
                k.e('s_cmp_ge_u32 s2, %d' % (8 * env('CPN', 4))); k.e('s_cbranch_scc1 %s' % l)
                code_touch(k, 'L_%s_epi' % name, 'L_text_end', 's44', 60)
                k.label(l)
            else:
                code_touch(k, 'L_%s_epi' % name, 'L_text_end', 's44', 60)
                naux += 1
        if tailpre: tailpre[0](k)
        for st in range(nst - NS + LAG, nst):
            k.e('s_waitcnt vmcnt(%d)' % (per * (nst - st - 1) + naux if (st < nst - 1 or tailpre) else 0))
            if st == nst - 1 and aux_end: aux_end(g)
            k.e('s_barrier')
            if tailpre: naux += tailpre[1](k, st - (nst - NS + LAG))
    LE = env('LE_' + name, 2 if name in ('wo', 'wsp') else 0)
    g.LE = 0 if c.last else LE
    if mid: mid(g)
    if not c.last and not LE: k.e('s_barrier')
    if post: post(g)
    if not c.last and LE: k.e('s_barrier')
    signal(k)
    endpgm(k)
    k.label(lcomp)
    HF = env('HFIRST', 0) and wait and not xt and not (ownlds and LPW)
    if HF: handoff(k, wait[0], wait[1], role='C')
    k.e('s_setprio 1')
    k.e('s_sub_u32 s46, s46, 4')
    k.e('s_lshr_b32 s50, s46, %d' % log2(WN))
    k.e('s_and_b32 s51, s46, %d' % (WN - 1))
    ACC = 8
    nacc = mb * nb * 16
    FR = frbase if frbase else ACC + nacc
    GU = env('GU_' + name, GU)
    g.acc = lambda i, j: ACC + (accmap(i, j) if accmap else i * nb + j) * 16
    g.M16 = M16
    k.e('v_and_b32 v3, 31, v1')
    k.e('v_lshrrev_b32 v4, 5, v1')
    if M16:
        JG = env('JG_' + name, JG)
        KSN = KS // 32; NU = KSN * JG; nbj = nb // JG
        XA = FR + max(16 * mb + 16 * nbj, 72 if name == 'win' else 0)
        nxa = KSN if X[0] == 'rm' else 1
        nya = 2
    else:
        NU = S // GU
        assert NU % 2 == 0
        fs1 = (mb + nb) * 4
        fsz = fs1 * GU
        XA = FR + 2 * fsz
        nxa = S if X[0] == 'rm' else 1
        nya = 1
    XB = XA; XC = XA + nxa; YB = XC + nxa; YC = YB + nya
    g.free = YC + nya
    g.FR = FR
    NP = TN // 64; NB = TN // 32
    if Y[0] == 'w':
        if Y[3] == 'qkv': ywave = 's_lshl_b32 s52, s51, 8'
        else:
            assert nb % 2 == 0
            ywave = 's_mul_i32 s52, s51, %d' % (nb // 2 * 1024)
        def yblk(j): return j * 1024 if Y[3] == 'qkv' else (j // 2) * 1024 + (j % 2) * 256
    else: ywave = 's_mul_i32 s52, s51, %d' % (nb * 1024)
    if M16:
        k.e('v_and_b32 v5, 15, v1')
        k.e('v_lshrrev_b32 v6, 4, v1')
        if X[0] == 'xf':
            k.e('s_mul_i32 s52, s50, %d' % (mb * S * 1024))
            if geo: k.e('s_add_u32 s52, s52, %d' % geo[2])
            k.e('v_lshl_add_u32 v7, v5, 4, s52')
            k.e('v_lshl_add_u32 v%d, v6, 9, v7' % XB)
        else:
            k.e('s_mul_i32 s52, s50, %d' % (mb * 4096))
            k.e('v_lshl_add_u32 v2, v5, 7, s52')
            k.e('v_lshrrev_b32 v5, 1, v5')
            for ks in range(KSN):
                k.e('v_add_u32 v7, %d, v6' % (4 * ks))
                k.e('v_xor_b32 v7, v7, v5')
                k.e('v_lshl_add_u32 v%d, v7, 4, v2' % (XB + ks))
        k.e('v_mul_u32_u24 v5, %d, v4' % (2 * NP * 1024 if Y[0] == 'w' else NB * 1024))
        k.e('v_and_b32 v6, 1, v6')
        k.e('v_lshl_add_u32 v5, v6, 9, v5')
        k.e('v_lshl_add_u32 v5, v6, %d, v5' % (5 if Y[0] == 'w' else 7))
        k.e('v_bfe_u32 v6, v1, 2, 2')
        k.e('v_lshl_add_u32 v5, v6, %d, v5' % (6 if Y[0] == 'w' else 4))
        k.e('v_bfe_u32 v6, v1, 1, 1')
        k.e('v_lshl_add_u32 v5, v6, %d, v5' % (3 if Y[0] == 'w' else 6))
        k.e('v_and_b32 v6, 1, v1')
        k.e('v_lshl_add_u32 v5, v6, %d, v5' % (4 if Y[0] == 'w' else 3))
        k.e(ywave)
        k.e('s_add_u32 s52, s52, %d' % (geo[0] if geo else xb))
        k.e('v_add_u32 v%d, s52, v5' % YB)
        k.e('v_xor_b32 v%d, %d, v%d' % (YB + 1, 32 if Y[0] == 'w' else 128, YB))
    else:
        if X[0] == 'xf':
            k.e('s_mul_i32 s52, s50, %d' % (mb * S * 1024))
            k.e('v_lshl_add_u32 v%d, v1, 4, s52' % XB)
        else:
            assert KS == 64
            k.e('s_mul_i32 s52, s50, %d' % (mb * 4096))
            k.e('v_bfe_u32 v5, v3, 1, 3')
            k.e('v_lshl_add_u32 v6, v3, 7, s52')
            for ss in range(S):
                k.e('v_add_u32 v7, %d, v4' % (2 * ss))
                k.e('v_xor_b32 v7, v7, v5')
                k.e('v_lshl_add_u32 v%d, v7, 4, v6' % (XB + ss))
        k.e("""
        v_lshlrev_b32 v5, 9, v4            ; h*512
        v_bfe_u32 v6, v1, 2, 2             ; r
        v_lshl_add_u32 v5, v6, %d, v5
        v_bfe_u32 v6, v1, 4, 1             ; G&1
        v_lshl_add_u32 v5, v6, %d, v5
        v_bfe_u32 v6, v1, 1, 1             ; c>>1
        v_and_b32 v7, 1, v1                ; c&1
        """ % ((6, 5) if Y[0] == 'w' else (4, 7)))
        if Y[0] == 'w':
            k.e('v_lshl_add_u32 v5, v6, 4, v5')
            k.e('v_lshl_add_u32 v5, v7, 3, v5')
        else:
            k.e('v_lshl_add_u32 v5, v7, 6, v5')
            k.e('v_lshl_add_u32 v5, v6, 3, v5')
        k.e(ywave)
        k.e('s_add_u32 s52, s52, %d' % xb)
        k.e('v_add_u32 v%d, s52, v5' % YB)
    k.e('s_waitcnt lgkmcnt(0)')
    mark(k, 0)
    pre(g)
    if M16:
        def xr16(sp, ks, i, rh): return FR + (sp[0] if isinstance(sp, tuple) else (sp * KSN + ks) % 2) * 8 * mb + (2 * i + rh) * 4
        def yr16(sp, u, j, t): return FR + 16 * mb + (sp[1] if isinstance(sp, tuple) else (sp * NU + u) % 2) * 8 * nbj + ((j % nbj) * 2 + t) * 4
        def cols(jg, sp): return sp[2] if isinstance(sp, tuple) else range(jg * nbj, (jg + 1) * nbj)
        def reads(u, sp=0):
            ks = u // JG; jg = u % JG
            xr = []; yr = []
            if jg == 0 or isinstance(sp, tuple):
                for i in range(mb):
                    for rh in range(2):
                        if X[0] == 'xf': xr.append('ds_read_b128 %s, v%d offset:%d' % (vr(xr16(sp, ks, i, rh), 4), XC, (i * S + 2 * ks) * 1024 + rh * 256))
                        else: xr.append('ds_read_b128 %s, v%d offset:%d' % (vr(xr16(sp, ks, i, rh), 4), XC + ks, i * 4096 + rh * 2048))
            for j in cols(jg, sp):
                for t in range(2):
                    for rd in range(2):
                        o = (4 * ks + rd) * NP * 1024 + yblk(j) if Y[0] == 'w' else (2 * ks * NB + j) * 1024 + rd * 256
                        yr.append('ds_read_b64_tr_b16 %s, v%d offset:%d' % (vr(yr16(sp, u, j, t) + 2 * rd, 2), YC + t, o))
            return xr[:1] + yr[:2] + xr[1:] + yr[2:]
        def mfmas(u, first, sp=0):
            ks = u // JG; jg = u % JG
            out = []
            for j in cols(jg, sp):
                for t in range(2):
                    for i in range(mb):
                        for rh in range(2):
                            x_ = xr16(sp, ks, i, rh); y_ = yr16(sp, u, j, t)
                            if j in swap: a = g.acc(i, j) + 8 * rh + 4 * t; p, q = x_, y_
                            else: a = g.acc(i, j) + 8 * t + 4 * rh; p, q = y_, x_
                            out.append('v_mfma_f32_16x16x32_bf16 %s, %s, %s, %s' % (vr(a, 4), vr(p, 4), vr(q, 4), '0' if first and ks == 0 and not cinit else vr(a, 4)))
            return out
        def fix(i, j):
            a = g.acc(i, j)
            for hb in range(2):
                for e in range(4):
                    k.e('%s v%d, v%d' % ('v_permlane32_swap_b32' if j in swap else 'v_permlane16_swap_b32', a + 8 * hb + e, a + 8 * hb + 4 + e))
    else:
        def yoff(j, ss, rd):
            return (2 * ss + rd) * NP * 1024 + yblk(j) if Y[0] == 'w' else (ss * NB + j) * 1024 + rd * 256
        def xf(ss, i): return FR + ((ss // GU) % 2) * fsz + (ss % GU) * fs1 + i * 4
        def yf(ss, j): return FR + ((ss // GU) % 2) * fsz + (ss % GU) * fs1 + (mb + j) * 4
        def reads1(ss):
            xr = []; yr = []
            for i in range(mb):
                if X[0] == 'xf':
                    xr.append('ds_read_b128 %s, v%d offset:%d' % (vr(xf(ss, i), 4), XC, (i * S + ss) * 1024))
                else:
                    xr.append('ds_read_b128 %s, v%d offset:%d' % (vr(xf(ss, i), 4), XC + ss, i * 4096))
            for j in range(nb):
                for rd in range(2):
                    yr.append('ds_read_b64_tr_b16 %s, v%d offset:%d' % (vr(yf(ss, j) + 2 * rd, 2), YC, yoff(j, ss, rd)))
            return [xr[0]] + yr[:2] + xr[1:] + yr[2:]
        def reads(u, sp=0): return [r for ss in range(u * GU, (u + 1) * GU) for r in reads1(ss)]
        def mfmas(u, first, sp=0):
            out = []
            for ss in range(u * GU, (u + 1) * GU):
                for j in range(nb):
                    for i in range(mb):
                        a = g.acc(i, j)
                        c_ = '0' if first and ss == 0 else vr(a, 16)
                        p, q = (xf(ss, i), yf(ss, j)) if j in swap else (yf(ss, j), xf(ss, i))
                        out.append('v_mfma_f32_32x32x16_bf16 %s, %s, %s, %s' % (vr(a, 16), vr(p, 4), vr(q, 4), c_))
            return out
        def fix(i, j): pass
    g.fix = fix
    def setaddr():
        for t in range(nxa): k.e('v_add_u32 v%d, s53, v%d' % (XC + t, XB + t))
        for t in range(nya): k.e('v_add_u32 v%d, s%d, v%d' % (YC + t, 52 if geo else 53, YB + t))
    RPGV = [env('RPG2_' + name, (5 if mb * nb == 2 else (2 if name == 'qkv' else 3)) * (1 if M16 else 2))]
    import re
    def regs_of(txt):
        return [(int(a_), int(b_)) for a_, b_ in re.findall(r'v\[(\d+):(\d+)\]', txt)]
    def advance():
        n0 = len(k.lines)
        if geo:
            k.e('s_add_u32 s53, s53, %d' % xb)
            k.e('s_and_b32 s53, s53, %d' % (geo[3] * xb - 1))
            k.e('s_add_u32 s52, s52, %d' % yb)
            k.e('s_cmp_eq_u32 s52, %d' % (geo[1] * yb))
            k.e('s_cselect_b32 s52, 0, s52')
        else:
            k.e('s_add_u32 s53, s53, %d' % STAGE)
            k.e('s_cmp_eq_u32 s53, %d' % (NS * STAGE))
            k.e('s_cselect_b32 s53, 0, s53')
        setaddr()
        got = [l.strip() for l in k.lines[n0:]]; del k.lines[n0:]
        return got
    EARLY = env('EARLYADV', 1)
    RM = [ROLL]
    def unit(u, first, rs, sp, extra):
        ms = mfmas(u, first, sp)
        prev = reads(u, sp)
        dst = [regs_of(r)[0] for r in prev]
        ROLL = RM[0]
        covered = -1 if ROLL else len(prev); issued = 0; xi = 0
        WMAX = env('WMAX_' + name, env('WMAX', 9))
        nspread = len(ms) - (min(len(extra) // 2 + 1, len(ms) // 3) if extra else 0)
        for mi, m in enumerate(ms):
            ops = regs_of(m)[1:3]
            need = max(i for i, d in enumerate(dst) if any(o[0] <= d[0] <= o[1] for o in ops))
            if need > covered:
                n = min(len(prev) - 1 - need + issued, WMAX)
                k.e('s_waitcnt lgkmcnt(%d)' % n)
                covered = len(prev) - 1 - (n - issued) if n >= issued else len(prev) - 1
            k.e(m)
            e = min(len(rs), -(-len(rs) * (mi + 1) // nspread) if ROLL == 1 else -(-RPGV[0] * (mi + 1) // 2))
            if issued == len(rs):
                for _ in range(2):
                    if xi < len(extra): k.e(extra[xi]); xi += 1
            while issued < e: k.e(rs[issued]); issued += 1
        while issued < len(rs): k.e(rs[issued]); issued += 1
        while xi < len(extra): k.e(extra[xi]); xi += 1
    def stage(first, last, sp, tail=()):
        for u in range(NU):
            if u == NU - 1 and not last and not EARLY:
                for x in advance(): k.e(x)
            if u < NU - 1: rs = reads(u + 1, sp)
            elif last: rs = []
            else: rs = reads(0, sp ^ 1)
            extra = []
            if EARLY and not last and u == (NU - 2) % NU: extra = advance()
            if u == NU - 1: extra = extra + list(tail)
            if not RM[0] or (last and u == NU - 1 and not c.last and not LE): k.e('s_waitcnt lgkmcnt(0)')
            if u == NU - 1 and not (last and (c.last or LE)): k.e('s_barrier')
            unit(u, first, rs, sp, extra)
    k.e('s_mov_b32 s53, 0')
    if geo: k.e('s_mov_b32 s52, 0')
    setaddr()
    if xt:
        handoff_multi(k, [(4, 's_mov_b32 s100, %d' % FL_MOD, 64), (5, 's_mov_b32 s100, %d' % (FL_MOD + 256), 64), (6, wait[0], wait[1])])
        mod_table(k, FR)
    elif wait and not (ownlds and LPW) and not HF: handoff(k, wait[0], wait[1], role='C')
    if early: early(g)
    k.e('s_barrier')
    mark(k, 1)
    for r in reads(0): k.e(r)
    if EARLY and NU == 1:
        for x in advance(): k.e(x)
    DEFER = env('DEFER_' + name, DEFER)
    npair = (nst - 1 - max(DEFER, 1)) // 2
    assert nst % 2 == 0 and (DEFER == 0 or (DEFER % 2 == 1 and M16 and KSN == 1 and not LE and DEFER <= NS))
    soft = env('SOFT_' + name, SOFT)
    srp = env('SRP_' + name, 1 if name == 'qkv' else 2)
    segs_ = [(npair, RPGV[0], ROLL)] if not soft else [(soft, srp, 0), (npair - soft, RPGV[0], ROLL)]
    RPGV[0] = segs_[0][1]; RM[0] = segs_[0][2]
    stage(True, False, 0)
    pre2(g)
    for si, (cnt_, rp_, rm_) in enumerate(segs_):
        RPGV[0] = rp_; RM[0] = rm_
        k.e('s_mov_b32 s54, %d' % cnt_)
        lp = 'L_%s_loop%s' % (name, si or '')
        k.label(lp)
        stage(False, False, 1); stage(False, False, 0, tail=['s_sub_u32 s54, s54, 1', 's_cmp_lg_u32 s54, 0'])
        k.e('s_cbranch_scc1 %s' % lp)
    k.label('L_%s_epi' % name)
    if prelast: prelast(g)
    def addr_for(st):
        o = (st % NS) * STAGE
        return ['v_add_u32 v%d, %d, v%d' % (XC, o, XB)] + ['v_add_u32 v%d, %d, v%d' % (YC + t, o, YB + t) for t in range(nya)]
    if DEFER:
        s0_ = nst - DEFER
        c0, c1 = dcols
        y0 = NU % 2
        for n_ in range(DEFER):
            par = ((1 + n_) % 2, (y0 + n_) % 2, c0)
            if n_ < DEFER - 1:
                for x in addr_for(s0_ + n_ + 1): k.e(x)
                rs = reads(0, (par[0] ^ 1, par[1] ^ 1, c0))
            else: rs = []
            if not RM[0] or (n_ == 0 and JG == 1): k.e('s_waitcnt lgkmcnt(0)')
            if n_ < DEFER - 1: k.e('s_barrier')
            unit(0, False, rs, par, [])
        def deferred():
            for x in addr_for(s0_): k.e(x)
            for r in reads(0, (0, 0, c1)): k.e(r)
            for n_ in range(DEFER):
                par = (n_ % 2, n_ % 2, c1)
                if n_ < DEFER - 1:
                    for x in addr_for(s0_ + n_ + 1): k.e(x)
                    rs = reads(0, (par[0] ^ 1, par[1] ^ 1, c1))
                else: rs = []
                if not RM[0] or n_ == DEFER - 1: k.e('s_waitcnt lgkmcnt(0)')
                if n_ == DEFER - 1: k.e('s_barrier')
                unit(0, False, rs, par, [])
            k.e('s_nop 7')
        g.deferred = deferred
    else:
        g.deferred = None
        stage(False, True, 1)
    mark(k, 2)
    if M16:
        k.e('s_nop 7')
        if not lazyfix:
            for j in range(nb):
                for i in range(mb): fix(i, j)
            k.e('s_nop 1')
    epi(g)
    if not selfsig:
        if g.LE == 1 and not getattr(g, 'ended', 0): k.e('s_barrier')
        signal(k, 'C')
        if g.LE == 2: k.e('s_barrier')
    if side:
        endpgm(k)
        k.label('L_%s_pf' % name)
        k.e('s_sub_u32 s30, s2, %d' % (GM * GN))
        k.e('s_cmp_ge_u32 s30, %d' % side[0])
        k.e('s_cbranch_scc1 L_%s_pfe' % name)
        side[1](k, 0 if solo else AUX_B + 4096)
        k.label('L_%s_pfe' % name)
        signal(k, 'A')
    if pf:
        endpgm(k)
        k.label('L_%s_pf' % name)
        npf = 256 - GM * GN
        per_wg = SIZES[pf] // npf
        assert per_wg % (8192 * 2) == 0
        k.e('s_sub_u32 s30, s2, %d' % (GM * GN))
        k.e('s_mul_i32 s30, s30, %d' % per_wg)
        if env('PFOFF', 0): k.e('s_mov_b32 s30, 0x40000000')
        k.e('v_lshlrev_b32 v2, 4, v0')
        k.e('s_mov_b32 s31, %d' % (per_wg // 16384))
        k.e('s_waitcnt lgkmcnt(0)')
        srd(k, 32, pf)
        k.label('L_%s_pfl' % name)
        k.e('buffer_load_dwordx4 v[8:11], v2, s[32:35], s30 offen')
        k.e('s_add_u32 s30, s30, 8192')
        k.e('buffer_load_dwordx4 v[12:15], v2, s[32:35], s30 offen')
        k.e('s_add_u32 s30, s30, 8192')
        k.e('s_waitcnt vmcnt(6)')
        k.e('s_sub_u32 s31, s31, 1')
        k.e('s_cmp_lg_u32 s31, 0')
        k.e('s_cbranch_scc1 L_%s_pfl' % name)
        if env('L2W', 0): l2warm(k)
        signal(k, 'A')
    finish(k)
    assert g.free <= 256, g.free
    k.need(g.free, max(NS * STAGE, g.AUX + auxsz, (AUX_B + 12288) if side and not solo else 0))

def l2warm(k):
    k.e("""
    s_sub_u32 s30, s2, 224
    s_lshr_b32 s30, s30, 3             ; helper index
    s_and_b32 s31, s2, 3
    s_lshl_b32 s31, s31, 2
    s_add_u32 s31, s31, s30
    s_lshl_b32 s31, s31, 19            ; 128 rows * 4KB
    s_mov_b32 s44, %d
    """ % 32)
    if env('L2W', 0) & 1:
        srd(k, 32, 'w_sp')
        k.label('L_l2x')
        k.e("""
        buffer_load_dwordx4 v[8:11], v2, s[32:35], s31 offen
        s_add_u32 s31, s31, 8192
        buffer_load_dwordx4 v[12:15], v2, s[32:35], s31 offen
        s_add_u32 s31, s31, 8192
        s_waitcnt vmcnt(6)
        s_sub_u32 s44, s44, 1
        s_cmp_lg_u32 s44, 0
        s_cbranch_scc1 L_l2x
        """)
    if env('L2W', 0) & 2:
        handoff(k, 's_bfe_u32 s100, s2, 0x10002\ns_mul_i32 s100, s100, 7\ns_min_u32 s101, s3, 6\ns_add_u32 s100, s100, s101\ns_lshl_b32 s100, s100, 8\ns_add_u32 s100, s100, %d' % FL_WIN, 64, role='W', slp=8)
        k.e('s_barrier')
        srd(k, 32, 'ws', WS_Z2N, ZSZ)
        k.e("""
        s_add_u32 s44, s30, %d             ; first row block
        s_mul_i32 s31, s44, %d
        s_bfe_u32 s45, s2, 0x10002
        s_mul_i32 s45, s45, %d
        s_add_u32 s31, s31, s45
        L_l2y:
        """ % (2 * env('L2S', 3), 112 * KB, 56 * KB))
        for q in range(7):
            k.e('s_add_u32 s45, s31, %d' % (q * 8192))
            k.e('buffer_load_dwordx4 v[8:11], v2, s[32:35], s45 offen sc1')
        k.e("""
        s_waitcnt vmcnt(7)
        s_add_u32 s31, s31, %d
        s_add_u32 s44, s44, 4
        s_cmp_lt_u32 s44, 64
        s_cbranch_scc1 L_l2y
        """ % (4 * 112 * KB))

def alloc(g, n, align=4):
    b = (g.free + align - 1) // align * align
    g.free = b + n
    return b
def nop(g): pass

def store_xf_tile(g, a, T, voff, srdn, soff, imm):
    k = g.k
    for d in range(8):
        k.e('v_cvt_pk_bf16_f32 v%d, v%d, v%d' % (T + d, a + 2 * d, a + 2 * d + 1))
    if os.environ.get('SDATA') == 'zero' and k.c.name == 'qkv':
        for d in range(8): k.e('v_mov_b32 v%d, 0' % (T + d))
    if os.environ.get('SDATA') == 'rand' and k.c.name == 'qkv':
        import random
        for d in range(8):
            k.e('s_mul_i32 s68, s2, %d' % (random.getrandbits(31) | 1))
            k.e('v_add_u32 v%d, s68, v0' % (T + d))
            k.e('s_mov_b32 s69, %d' % (random.getrandbits(31) | 1))
            k.e('v_mul_lo_u32 v%d, v%d, s69' % (T + d, T + d))
            k.e('v_and_b32 v%d, 0xbfffbfff, v%d' % (T + d, T + d))
    if env('PACE', -1) >= 0: k.e('s_waitcnt vmcnt(%d)' % env('PACE', -1))
    k.e('buffer_store_dwordx4 %s, v%d, %s, %s offen offset:%d%s' % (vr(T, 4), voff, sr(srdn), soff, imm, WT))
    k.e('buffer_store_dwordx4 %s, v%d, %s, %s offen offset:%d%s' % (vr(T + 4, 4), voff, sr(srdn), soff, imm + 1024, WT))

def pk(op, d, *src, sel=None):
    s = 'v_pk_%s_f32 %s' % (op, vr(d, 2))
    hi = []
    for x in src:
        if isinstance(x, int): s += ', ' + vr(x, 2); hi.append(1)
        elif isinstance(x, tuple): s += ', ' + vr(x[0], 2); hi.append(0)
        elif x.startswith('s['): s += ', ' + x; hi.append(1)
        else: s += ', ' + x; hi.append(0)
    if 0 in hi: s += ' op_sel_hi:[%s]' % ','.join(map(str, hi))
    return s

def proj_wpre(wname, V, nw, wave):
    n = 16 // nw
    def setup(k):
        srd(k, 64, wname)
        k.e("""
        s_and_b32 s68, s2, 3
        s_lshl_b32 s68, s68, 3
        s_bfe_u32 s69, s2, 0x20003
        s_lshl_b32 s69, s69, 1
        s_add_u32 s68, s68, s69
        s_bfe_u32 s69, s2, 0x10005
        s_add_u32 s68, s68, s69            ; tm
        s_bfe_u32 s69, s2, 0x10002
        s_lshl_b32 s69, s69, 2
        s_lshr_b32 s70, s2, 6
        s_add_u32 s69, s69, s70            ; tn
        s_add_u32 s68, s68, s69            ; rotation
        s_lshl_b32 s69, s69, 8
        s_mul_i32 s70, %s, %d
        s_add_u32 s69, s69, s70
        s_mul_i32 s70, %s, %d              ; LDS offset of this wave's pieces
        v_lshrrev_b32 v%d, 5, v1
        v_lshlrev_b32 v%d, 13, v%d
        v_bfe_u32 v%d, v1, 2, 2
        v_lshl_add_u32 v%d, v%d, 11, v%d
        v_bfe_u32 v%d, v1, 4, 1
        v_lshl_add_u32 v%d, v%d, 6, v%d
        v_lshrrev_b32 v%d, 4, v1
        v_and_b32 v%d, 2, v%d
        v_xor_b32 v%d, v1, v%d
        v_and_b32 v%d, 3, v%d
        v_lshl_add_u32 v%d, v%d, 4, v%d
        v_add_u32 v%d, s69, v%d
        """ % (wave, n // 2 * 8 * 2048, wave, n * 1024, V, V, V, V + 1, V, V + 1, V, V + 1, V, V + 1, V, V + 1, V + 1, V + 1, V + 1, V + 1, V + 1, V + 1, V, V + 1, V, V, V))
        for j in range(1, n): k.e('v_add_u32 v%d, %d, v%d' % (V + j, (j // 2) * 8 * 2048 + (j % 2) * 128, V))
    def pieces(st):
        o = ['s_add_u32 s71, s68, %d\ns_and_b32 s71, s71, 3\ns_add_u32 s71, s71, %d\ns_lshl_b32 s71, s71, 17' % (st, st // 4 * 4)]
        for j in range(n):
            o.append('s_add_u32 m0, s70, %d' % (st * 16384 + j * 1024))
            o.append('buffer_load_dwordx4 v%d, s[64:67], s71 offen lds' % (V + j))
        return o
    return setup, pieces

def k_qkv(k, c):
    def pre(g):
        k = g.k
        srd(k, 32, 'ws', WS_Q, 4 * MB); srd(k, 36, 'ws', WS_KV, 8 * MB)
        g.L16 = alloc(g, 1, 1); g.LV16 = alloc(g, 1, 1)
        k.e('v_lshlrev_b32 v%d, 4, v1' % g.L16)
        if g.M16:
            k.e('v_and_b32 v5, 3, v1')
            k.e('v_lshl_add_u32 v5, v4, 4, v5')
            k.e('v_bfe_u32 v6, v1, 2, 1')
            k.e('v_lshl_add_u32 v5, v6, 3, v5')
            k.e('v_bfe_u32 v6, v1, 3, 1')
            k.e('v_lshl_add_u32 v5, v6, 2, v5')
            k.e('v_bfe_u32 v6, v1, 4, 1')
            k.e('v_lshl_add_u32 v5, v6, 5, v5')
            k.e('v_lshlrev_b32 v%d, 4, v5' % g.LV16)
        else: k.e('v_mov_b32 v%d, v%d' % (g.LV16, g.L16))
        k.e('''
        s_lshl_b32 s60, s31, 1
        s_add_u32 s60, s60, s51
        s_lshl_b32 s60, s60, 6
        s_lshl_b32 s61, s30, 2
        s_add_u32 s60, s60, s61
        s_lshl_b32 s61, s50, 1
        s_add_u32 s60, s60, s61           ; head*64 + rb0
        s_lshl_b32 s61, s60, 11           ; Q offset
        s_lshl_b32 s62, s60, 12           ; KV offset
        s_add_u32 s63, s62, 4096
        s_mov_b32 s66, %s
        s_mov_b32 s67, %s
        ''' % ((hx(32 ** -0.5 * LOG2E * float(os.environ.get('QERR', '1'))),) * 2))
    def epi(g):
        k = g.k
        T = g.FR
        k.e('s_nop 7')
        n = 0
        for i in range(2):
            a = g.acc(i, 0)
            for r in range(0, 16, 2): k.e(pk('mul', a + r, a + r, 's[66:67]'))
            store_xf_tile(g, a, T + 8 * n, g.L16, 32, 's61', i * 2048); n += 1
        for j in (1, 2):
            for i in range(2):
                store_xf_tile(g, g.acc(i, j), T + 8 * (n % 5), g.L16 if j == 1 else g.LV16, 36, 's62' if i == 0 else 's63', (j - 1) * 2048); n += 1
    QSP = env('QSP', 0)
    def epi2(g):
        k = g.k
        T = g.FR
        KP = [g.acc(0, 1), g.acc(1, 1)]; VP = [g.acc(0, 2), g.acc(1, 2)]; QP = [g.acc(0, 0), g.acc(1, 0)]
        for j in (1, 2):
            for i in range(2):
                g.fix(i, j)
                k.e('s_nop 0')
                store_xf_tile(g, g.acc(i, j), g.acc(i, j), g.L16 if j == 1 else g.LV16, 36, 's62' if i == 0 else 's63', (j - 1) * 2048)
        if g.deferred:
            g.deferred()
            if env('QSIG', 1): signal(k, 'C')
        for i in range(2):
            a = g.acc(i, 0)
            g.fix(i, 0)
            k.e('s_nop 0')
            for r in range(0, 16, 2): k.e(pk('mul', a + r, a + r, 's[66:67]'))
            for d in range(8): k.e('v_cvt_pk_bf16_f32 v%d, v%d, v%d' % (a + d, a + 2 * d, a + 2 * d + 1))
        if QSP == 1: signal(k, 'C')
        k.e('s_mul_i32 s68, s46, 5120')
        k.e('s_add_u32 s68, s68, %d' % AUX_A)
        k.e('v_add_u32 v5, s68, v%d' % g.L16)
        Sreg = [T, T + 16, T + 32, T + 48]
        for qi in range(2):
            for ki in range(2):
                S_ = Sreg[2 * qi + ki]
                k.e('v_mfma_f32_32x32x16_bf16 %s, %s, %s, 0' % (vr(S_, 16), vr(KP[ki], 4), vr(QP[qi], 4)))
                k.e('v_mfma_f32_32x32x16_bf16 %s, %s, %s, %s' % (vr(S_, 16), vr(KP[ki] + 4, 4), vr(QP[qi] + 4, 4), vr(S_, 16)))
        for q in range(4): k.e('ds_write_b128 v5, %s offset:%d' % (vr(QP[q // 2] + 4 * (q % 2), 4), q * 1024))
        if AOWN:
            k.e('s_lshl_b32 s69, s46, 15')
            k.e('v_add_u32 v6, s69, v%d' % g.L16)
            k.e('v_add_u32 v7, s69, v%d' % g.LV16)
            for i in range(2):
                for hh in range(2):
                    k.e('ds_write_b128 v6, %s offset:%d' % (vr(KP[i] + 4 * hh, 4), i * 4096 + hh * 1024))
                    k.e('ds_write_b128 v7, %s offset:%d' % (vr(VP[i] + 4 * hh, 4), i * 4096 + 2048 + hh * 1024))
        k.e('v_lshl_add_u32 v5, v1, 3, s68')
        if QSP == 2: signal(k, 'C')
        k.e('s_nop 7')
        MM = T + 64
        for qi in range(2):
            a0, a1 = Sreg[2 * qi], Sreg[2 * qi + 1]
            k.e('v_max_f32 v%d, v%d, v%d' % (MM + qi, a0, a1))
            for r in range(1, 16): k.e('v_max3_f32 v%d, v%d, v%d, v%d' % (MM + qi, MM + qi, a0 + r, a1 + r))
        for qi in range(2): k.e('v_mov_b32 v%d, v%d' % (MM + 2 + qi, MM + qi))
        k.e('s_nop 1')
        for qi in range(2): k.e('v_permlane32_swap_b32 v%d, v%d' % (MM + qi, MM + 2 + qi))
        k.e('s_nop 1')
        for qi in range(2): k.e('v_max_f32 v%d, v%d, v%d' % (MM + qi, MM + qi, MM + 2 + qi))
        for qi in range(2): k.e('v_sub_f32 v%d, %s, v%d' % (MM + qi, hx(-40.0), MM + qi))
        k.e('ds_write_b64 v5, %s offset:4096' % vr(MM, 2))
        k.e('s_waitcnt lgkmcnt(0)')
    sig = 's_lshl_b32 s100, s31, 8\ns_lshl_b32 s101, s30, 4\ns_add_u32 s100, s100, s101\ns_add_u32 s100, s100, %d' % FL_QKV
    wait = ('s_lshl_b32 s100, s30, 8\ns_add_u32 s100, s100, %d' % FL_LN1, 8)
    k_gemm(k, c, 16, 16, 3, 1, 4, 128, 192, 2, 2, 1024, 32, 4, ('xt', WS_N, 1024) if XT else ('xf', WS_H, 1024), ('w', 'wqkv', 6144, 'qkv'), pre, nop, epi2 if AT2 else epi, selfsig=bool(AT2 and (QSP or AOWN == 1 or (env('DEFER_qkv', 0) and env('QSIG', 1)))), lazyfix=bool(AT2), DEFER=0, dcols=([1, 2], [0]), swap=(2,), wait=wait, sig=sig, RWD=4, SOFT=4)

def k_proj(k, c, K, X, wname, final):
    NQ = 2 if MP0 else 4
    EARLYV = MP0 and env('EARLYV', 1)
    def modq_loads(k):
        for q in range(NQ):
            k.e('s_add_u32 s62, s69, %d' % (q * 16384))
            k.e('s_add_u32 s63, s70, %d' % (q * 16384))
            k.e('buffer_load_dwordx4 %s, v7, s[64:67], s62 offen sc1' % vr(24 + 4 * q, 4))
            k.e('buffer_load_dword v%d, v6, s[64:67], s63 offen sc1' % (40 + q))
    def aux(g):
        k = g.k
        if final:
            srd(k, 40, 'ws', WS_MOD, 6144 * 4)
            k.e('''
            v_and_b32 v7, 31, v1
            v_lshlrev_b32 v7, 4, v7
            s_lshl_b32 s62, s31, 9
            s_add_u32 s62, s62, %d
            buffer_load_dwordx4 v[24:27], v7, s[40:43], s62 offen sc1
            ''' % (5 * 4096))
            return 1
        srd(k, 64, 'ws', 0, 256 * KB)
        k.e('''
        v_and_b32 v2, 31, v1
        v_lshrrev_b32 v3, 5, v1
        v_lshlrev_b32 v2, 4, v2
        v_lshl_add_u32 v2, v3, 13, v2
        s_lshl_b32 s62, s31, 9
        s_add_u32 s62, s62, %d
        v_and_b32 v6, 15, v1
        v_lshlrev_b32 v6, 2, v6
        s_lshl_b32 s68, s2, 6
        s_add_u32 s63, s68, %d
        s_mov_b32 s69, s62
        s_mov_b32 s70, s63
        v_mov_b32 v7, v2
        ''' % (WS_MODQ, WS_MODQ))
        modq_loads(k)
        return xtile(g) + 2 * NQ
    def xtile(g):
        k = g.k
        srd(k, 40, 'x')
        k.e('''
        v_lshrrev_b32 v2, 4, v1
        v_and_b32 v3, 15, v1
        s_lshl_b32 s62, s30, 17            ; tm*64*2048
        s_lshl_b32 s63, s31, 8
        s_add_u32 s62, s62, s63
        s_lshl_b32 s63, s46, 15            ; lw*16 rows
        s_add_u32 s62, s62, s63
        s_lshl_b32 s63, s46, 12
        s_add_u32 s63, s63, %d
        ''' % g.AUX)
        for j in range(4):
            k.e('v_add_u32 v4, %d, v2' % (4 * j))
            k.e('v_xor_b32 v5, v4, v3')
            k.e('v_lshlrev_b32 v5, 4, v5')
            k.e('v_lshl_add_u32 v5, v4, 11, v5')
            k.e('s_add_u32 m0, s63, %d' % (j * 1024))
            k.e('s_nop 0')
            k.e('buffer_load_dwordx4 v5, s[40:43], s62 offen lds')
        return 4
    def aux_end(g):
        k = g.k
        lp = k.newlabel('mqp'); lc = k.newlabel('mqc')
        if final:
            poll_init(k)
            k.e('s_branch %s' % lc)
            k.label(lp)
            k.e('buffer_load_dwordx4 v[24:27], v7, s[40:43], s62 offen sc1')
            k.e('s_waitcnt vmcnt(0)')
            k.label(lc)
            k.e('v_max3_u32 v2, v24, v25, v26')
            k.e('v_max_u32 v2, v2, v27')
            k.e('v_cmp_eq_u32 vcc, -1, v2')
            poll_back(k, lp)
            k.e('v_add_u32 v2, %d, v7' % (g.AUX + 16 * KB))
            k.e('ds_write_b128 v2, v[24:27]')
            k.e('s_waitcnt lgkmcnt(0)')
            return
        if MP0:
            k.e('v_cmp_lt_u32 vcc, 31, v1')
            k.e(pk('add', 24, 24, 28)); k.e(pk('add', 26, 26, 30))
            k.e('v_add_f32 v40, v40, v41')
        else:
            poll_init(k)
            k.e('s_branch %s' % lc)
            k.label(lp)
            modq_loads(k)
            k.e('s_waitcnt vmcnt(0)')
            k.label(lc)
            k.e('v_max_u32 v2, v24, v25')
            for r in range(26, 44, 2): k.e('v_max3_u32 v2, v2, v%d, v%d' % (r, r + 1))
            k.e('v_cmp_eq_u32 vcc, -1, v2')
            poll_back(k, lp)
            k.e(pk('add', 24, 24, 28)); k.e(pk('add', 26, 26, 30)); k.e(pk('add', 32, 32, 36)); k.e(pk('add', 34, 34, 38))
            k.e(pk('add', 24, 24, 32)); k.e(pk('add', 26, 26, 34))
            k.e('v_cmp_lt_u32 vcc, 31, v1')
            k.e('v_add_f32 v40, v40, v41')
            k.e('v_add_f32 v42, v42, v43')
            k.e('v_add_f32 v40, v40, v42')
        k.e('v_cndmask_b32 v7, 0, 1.0, vcc')
        for d in range(2): round_bf16_pair(k, 24 + 2 * d, 25 + 2 * d, 28)
        for e in range(4): k.e('v_add_f32 v%d, v7, v%d' % (24 + e, 24 + e))
        for d in range(2): round_bf16_pair(k, 24 + 2 * d, 25 + 2 * d, 28)
        k.e('v_lshlrev_b32 v2, 4, v1')
        k.e('v_add_u32 v2, %d, v2' % (g.AUX + 16 * KB))
        k.e('ds_write_b128 v2, v[24:27]')
        k.e("""
        s_lshr_b32 s62, s2, 6
        s_cmp_eq_u32 s62, 2
        s_cselect_b32 s62, 1.0, 0
        v_cvt_pk_bf16_f32 v40, v40, v40
        v_lshlrev_b32 v40, 16, v40
        v_add_f32 v40, s62, v40
        v_cvt_pk_bf16_f32 v40, v40, v40
        v_lshlrev_b32 v40, 16, v40
        s_add_u32 s68, s68, 8192
        v_cmp_gt_u32 vcc, 16, v0
        s_and_saveexec_b64 s[62:63], vcc
        buffer_store_dword v40, v6, s[64:67], s68 offen%s
        s_mov_b64 exec, s[62:63]
        s_waitcnt lgkmcnt(0)
        """ % WT)
    def pre(g):
        k = g.k
        g.L16 = alloc(g, 1, 1); g.RA = alloc(g, 1, 1); g.CA = alloc(g, 1, 1); g.TA = alloc(g, 1, 1)
        g.RES = alloc(g, 16); g.GA = alloc(g, 32); g.G2 = alloc(g, 32) if not final else None
        srd(k, 36, 'ws', WS_X1, 8 * MB)
        if final: srd(k, 32, 'out')
        else: srd(k, 32, 'ws', WS_ST1, 256 * KB)
        k.e('v_lshlrev_b32 v%d, 4, v1' % g.L16)
        k.e('''
        s_lshl_b32 s60, s31, 7
        s_lshl_b32 s61, s51, 6
        s_add_u32 s60, s60, s61           ; col0
        s_lshl_b32 s61, s30, 1
        s_add_u32 s61, s61, s50           ; rb
        s_lshl_b32 s62, s61, 16
        s_lshl_b32 s63, s60, 1
        s_add_u32 s63, s63, s62           ; row-major byte offset of (row0,col0)
        s_lshl_b32 s64, s60, 6
        s_add_u32 s64, s64, s62           ; XF offset
        s_add_u32 s65, s64, %d            ; X1S offset
        ; tile image address: row*256 + ((wn*8) ^ (row%%16))*16 + h*8
        s_lshl_b32 s66, s50, 13
        s_add_u32 s66, s66, %d
        v_and_b32 v5, 15, v3
        s_lshl_b32 s67, s51, 3
        v_xor_b32 v5, s67, v5
        v_lshlrev_b32 v5, 4, v5
        v_lshl_add_u32 v5, v3, 8, v5
        v_lshl_add_u32 v5, v4, 3, v5
        v_add_u32 v%d, s66, v5
        ; column vector address: wn*256 + h*16
        s_lshl_b32 s67, s51, 8
        s_add_u32 s67, s67, %d
        v_lshl_add_u32 v%d, v4, 4, s67
        ''' % (4 * MB, g.AUX, g.RA, g.AUX + 16 * KB, g.CA))
    KX = same_kernel('wo', 'wout') and env('KEEPX', 1)
    def early(g):
        k = g.k
        if EARLYV:
            A_ = g.GA; V_ = g.RES
            l = k.newlabel('ev')
            k.e('s_cmp_lg_u32 s46, 1'); k.e('s_cbranch_scc1 %s' % l)
            srd(k, 80, 'ws', 0, 256 * KB)
            k.e('''
            v_lshlrev_b32 v%d, 4, v3
            v_lshl_add_u32 v%d, v4, 13, v%d
            s_lshl_b32 s68, s31, 9
            s_add_u32 s68, s68, %d
            s_add_u32 s69, s68, 16384
            buffer_load_dwordx4 %s, v%d, s[80:83], s68 offen sc1
            buffer_load_dwordx4 %s, v%d, s[80:83], s69 offen sc1
            ''' % (V_, V_, V_, WS_MODQ + (3 * 4096 if final else 0), vr(A_, 4), V_, vr(A_ + 4, 4), V_))
            if not final:
                k.e('''
                v_and_b32 v%d, 15, v1
                v_lshlrev_b32 v%d, 2, v%d
                s_lshl_b32 s70, s2, 6
                s_add_u32 s68, s70, %d
                s_add_u32 s69, s68, 16384
                buffer_load_dword v%d, v%d, s[80:83], s68 offen sc1
                buffer_load_dword v%d, v%d, s[80:83], s69 offen sc1
                ''' % (V_ + 1, V_ + 1, V_ + 1, WS_MODQ, A_ + 8, V_ + 1, A_ + 9, V_ + 1))
            k.e('v_cvt_f32_u32 v%d, v4' % (V_ + 2))
            k.e('v_add_u32 v%d, %d, v%d' % (V_ + 3, g.AUX + 16 * KB, g.L16))
            k.e('s_waitcnt vmcnt(0)')
            k.e(pk('add', A_, A_, A_ + 4)); k.e(pk('add', A_ + 2, A_ + 2, A_ + 6))
            for d in range(2): round_bf16_pair(k, A_ + 2 * d, A_ + 1 + 2 * d, A_ + 4)
            for e in range(4): k.e('v_add_f32 v%d, v%d, v%d' % (A_ + e, V_ + 2, A_ + e))
            for d in range(2): round_bf16_pair(k, A_ + 2 * d, A_ + 1 + 2 * d, A_ + 4)
            k.e('ds_write_b128 v%d, %s' % (V_ + 3, vr(A_, 4)))
            if not final:
                F = A_ + 8
                k.e('''
                s_lshr_b32 s68, s2, 6
                s_cmp_eq_u32 s68, 2
                s_cselect_b32 s68, 1.0, 0
                v_add_f32 v%d, v%d, v%d
                v_cvt_pk_bf16_f32 v%d, v%d, v%d
                v_lshlrev_b32 v%d, 16, v%d
                v_add_f32 v%d, s68, v%d
                v_cvt_pk_bf16_f32 v%d, v%d, v%d
                v_lshlrev_b32 v%d, 16, v%d
                s_add_u32 s70, s70, 8192
                s_mov_b64 exec, 0xffff
                buffer_store_dword v%d, v%d, s[80:83], s70 offen%s
                s_mov_b64 exec, -1
                ''' % (F, F, F + 1, F, F, F, F, F, F, F, F, F, F, F, F, F, V_ + 1, WT))
            k.e('s_waitcnt lgkmcnt(0)')
            k.label(l)
            return
        if final or MP0: return
        D = g.GA; MC = g.RES; MT = g.RES + 8
        k.e('s_lshl_b32 s68, s46, 13')
        k.e('s_add_u32 s68, s68, %d' % AUX_A)
        k.e('v_add_u32 v%d, s68, v%d' % (MT, g.L16))
        for j in range(8): k.e('ds_read_b128 %s, v%d offset:%d' % (vr(D + 4 * j, 4), MT, j * 1024))
        for j in range(8):
            k.e('s_waitcnt lgkmcnt(%d)' % (7 - j))
            for d in range(4):
                unpack(k, MT, MT + 1, D + 4 * j + d)
                op = 'v_mul_f32' if j == 0 else 'v_fmac_f32'
                k.e('%s v%d, v%d, v%d' % (op, MC + 2 * d, MT, MSV + j))
                k.e('%s v%d, v%d, v%d' % (op, MC + 2 * d + 1, MT + 1, MSV + j))
        k.e('s_nop 1')
        for e in range(4): k.e('v_permlane32_swap_b32 v%d, v%d' % (MC + e, MC + 4 + e))
        k.e('s_nop 1')
        for e in range(4): k.e('v_add_f32 v%d, v%d, v%d' % (MC + e, MC + e, MC + 4 + e))
        k.e('s_nop 1')
        for e in range(2): k.e('v_permlane16_swap_b32 v%d, v%d' % (MC + e, MC + 2 + e))
        k.e('s_nop 1')
        for e in range(2): k.e('v_add_f32 v%d, v%d, v%d' % (MC + e, MC + e, MC + 2 + e))
        k.e('s_nop 1')
        for e in range(2): k.e('v_add_f32_dpp v%d, v%d, v%d row_ror:8 row_mask:0xf bank_mask:0xf' % (MC + e, MC + e, MC + e))
        k.e('''
        v_and_b32 v%d, 7, v1
        v_lshlrev_b32 v%d, 5, v%d
        v_lshrrev_b32 v%d, 4, v1
        v_lshl_add_u32 v%d, v%d, 3, v%d
        v_add_u32 v%d, s68, v%d
        ds_write_b64 v%d, %s
        s_waitcnt lgkmcnt(0)
        ''' % (MT, MT, MT, MT + 1, MT, MT + 1, MT, MT, MT, MT, vr(MC, 2)))
    def pre2(g):
        k = g.k
        if not final and not MP0:
            MC = g.RES; MT = g.RES + 8
            l = k.newlabel('noC')
            k.e('s_cmp_lg_u32 s46, 1')
            k.e('s_cbranch_scc1 %s' % l)
            srd(k, 80, 'ws', 0, 256 * KB)
            k.e('v_lshlrev_b32 v%d, 2, v1' % (MT + 1))
            k.e('v_add_u32 v%d, %d, v%d' % (MT, AUX_A, MT + 1))
            for w in range(4): k.e('ds_read_b32 v%d, v%d offset:%d' % (MC + w, MT, w * 8192))
            k.e('''
            s_and_b32 s68, s2, 3
            s_lshl_b32 s68, s68, 14
            s_lshr_b32 s69, s2, 2
            s_lshl_b32 s69, s69, 8
            s_add_u32 s68, s68, s69
            s_add_u32 s68, s68, %d
            s_waitcnt lgkmcnt(0)
            v_add_f32 v%d, v%d, v%d
            v_add_f32 v%d, v%d, v%d
            v_add_f32 v%d, v%d, v%d
            v_min_u32 v%d, -2, v%d
            buffer_store_dword v%d, v%d, s[80:83], s68 offen sc1
            ''' % (WS_MODQ, MC, MC, MC + 1, MC + 2, MC + 2, MC + 3, MC, MC, MC + 2, MC, MC, MC, MT + 1))
            k.label(l)
        if final and not KX:
            for j in range(2):
                for t in range(2):
                    k.e('buffer_load_dwordx4 %s, v%d, s[36:39], s64 offen offset:%d sc1' % (vr(g.RES + 8 * j + 4 * t, 4), g.L16, (2 * j + t) * 1024))
    PL = env('PRELAST', 1)
    def operands(g):
        k = g.k
        for j in range(2):
            for q in range(4):
                k.e('ds_read_b128 %s, v%d offset:%d' % (vr(g.GA + 16 * j + 4 * q, 4), g.CA, j * 128 + q * 32))
        if not final or KX:
            for j in range(2):
                for q in range(4):
                    k.e('v_xor_b32 v%d, %d, v%d' % (g.TA, (j * 4 + q) * 16, g.RA))
                    k.e('ds_read_b64 %s, v%d' % (vr(g.RES + 8 * j + 2 * q, 2), g.TA))
        if not final:
            for j in range(2):
                for q in range(4):
                    k.e('ds_read_b128 %s, v%d offset:%d' % (vr(g.G2 + 16 * j + 4 * q, 4), g.CA, 512 + j * 128 + q * 32))
    def epi(g):
        k = g.k
        assert g.M16
        if not PL: operands(g)
        k.e('s_waitcnt lgkmcnt(0)' if (KX or not final) else 's_waitcnt vmcnt(0) lgkmcnt(0)')
        T = g.FR
        for j in range(2):
            a = g.acc(0, j)
            for d in range(8):
                unpack(k, T + 2 * (d % 4), T + 2 * (d % 4) + 1, g.RES + 8 * j + d)
                k.e(pk('fma', a + 2 * d, a + 2 * d, g.GA + 16 * j + 2 * d, T + 2 * (d % 4)))
            if not final:
                if j == 0: k.e('s_waitcnt lgkmcnt(0)')
                for d in range(8): k.e(pk('mul', g.G2 + 16 * j + 2 * d, a + 2 * d, g.G2 + 16 * j + 2 * d))
                store_xf_tile(g, g.G2 + 16 * j, g.GA + 16 * j, g.L16, 36, 's65', j * 2048)
        def keep():
            for j in range(2):
                a = g.acc(0, j)
                if final or KX:
                    for d in range(8):
                        k.e('v_cvt_pk_bf16_f32 v%d, v%d, v%d' % (g.RES + 8 * j + d, a + 2 * d, a + 2 * d + 1))
                    for q in range(4):
                        k.e('v_xor_b32 v%d, %d, v%d' % (g.TA, (j * 4 + q) * 16, g.RA))
                        k.e('ds_write_b64 v%d, %s' % (g.TA, vr(g.RES + 8 * j + 2 * q, 2)))
                else:
                    store_xf_tile(g, a, g.RES + 8 * j, g.L16, 36, 's64', j * 2048)
        if final: keep()
        if final:
            k.e('''
            v_lshrrev_b32 v5, 3, v1
            v_and_b32 v6, 7, v1
            s_lshl_b32 s67, s51, 3
            v_or_b32 v7, s67, v6
            v_xor_b32 v7, v7, v5
            v_lshlrev_b32 v7, 4, v7
            v_lshl_add_u32 v7, v5, 8, v7
            v_add_u32 v7, s66, v7              ; b=0 address
            v_xor_b32 v%d, 128, v7             ; rows 8..15: slot ^ 8
            v_lshlrev_b32 v5, 11, v5
            v_lshl_add_u32 v5, v6, 4, v5       ; global: row*2048 + c*16
            s_waitcnt lgkmcnt(0)
            ''' % g.TA)
            for b in range(4):
                k.e('ds_read_b128 %s, v%d offset:%d' % (vr(g.GA + 4 * b, 4), 7 if b % 2 == 0 else g.TA, b * 2048))
            for b in range(4):
                k.e('s_waitcnt lgkmcnt(%d)' % (3 - b))
                k.e('buffer_store_dwordx4 %s, v5, s[32:35], s63 offen%s' % (vr(g.GA + 4 * b, 4), os.environ.get('OUTFLAG', ' sc1')))
                k.e('s_add_u32 s63, s63, %d' % (8 * 2048))
            l = k.newlabel('ep')
            k.e('s_or_b32 s67, s2, s46')
            k.e('s_cbranch_scc1 %s' % l)
            srd(k, 96, 'ws', WS_EPOCH, 8)
            k.e('v_mov_b32 v%d, s84' % FV); k.e('v_mov_b32 v%d, s85' % (FV + 1)); k.e('v_mov_b32 v%d, 0' % (FV + 2))
            flag_store(k, '0')
            k.label(l)
        else:
            S1 = T + 8; S2 = T + 10
            a0 = g.acc(0, 0)
            k.e(pk('add', S1, a0, a0 + 2))
            k.e(pk('mul', S2, a0, a0))
            k.e(pk('fma', S2, a0 + 2, a0 + 2, S2))
            for r in range(4, 32, 2):
                k.e(pk('add', S1, S1, a0 + r))
                k.e(pk('fma', S2, a0 + r, a0 + r, S2))
            k.e('v_add_f32 v%d, v%d, v%d' % (S1, S1, S1 + 1))
            k.e('v_add_f32 v%d, v%d, v%d' % (S1 + 1, S2, S2 + 1))
            k.e('v_mov_b32 v%d, v%d' % (S2, S1))
            k.e('v_mov_b32 v%d, v%d' % (S2 + 1, S1 + 1))
            k.e('''
            s_lshl_b32 s66, s30, 4
            s_lshl_b32 s67, s31, 1
            s_add_u32 s66, s66, s67
            s_add_u32 s66, s66, s51
            s_lshl_b32 s66, s66, 9             ; (tm*16+part)*512
            s_lshl_b32 s67, s50, 8
            s_add_u32 s66, s66, s67
            v_lshlrev_b32 v5, 3, v3
            ''')
            k.e('v_permlane32_swap_b32 v%d, v%d' % (S1, S2))
            k.e('v_permlane32_swap_b32 v%d, v%d' % (S1 + 1, S2 + 1))
            k.e('s_nop 1')
            k.e(pk('add', S1, S1, S2))
            k.e('s_mov_b32 exec_hi, 0')
            k.e('buffer_store_dwordx2 %s, v5, s[32:35], s66 offen%s' % (vr(S1, 2), WT))
            k.e('s_mov_b32 exec_hi, -1')
            if g.LE == 1 and KX:
                k.e('s_barrier'); g.ended = 1
            keep()
            k.e('s_waitcnt lgkmcnt(0)')
    if final:
        sig = None
        wait = ('s_lshr_b32 s100, s30, 1\ns_lshl_b32 s100, s100, 8\ns_add_u32 s100, s100, %d' % FL_WSP, 56)
    else:
        sig = 's_lshr_b32 s100, s30, 1\ns_lshl_b32 s100, s100, 8\ns_and_b32 s101, s30, 1\ns_lshl_b32 s101, s101, 7\ns_add_u32 s100, s100, s101\ns_lshl_b32 s101, s31, 4\ns_add_u32 s100, s100, s101\ns_add_u32 s100, s100, %d' % FL_WO
        wait = ('s_lshr_b32 s100, s30, %d\ns_lshl_b32 s100, s100, 8\ns_add_u32 s100, s100, %d' % (1 if AT2 else 2, FL_ATT), 16 if AT2 else 32)
    geo = None
    if GEO: geo = (0, 6, 96 * KB, 4, (TPRE if final else APRE), 224 if final else 0)
    k_gemm(k, c, 32, 8, 3, 2, 4, 64, 128, 2, 2, K, 64, 4, X, ('w', wname, 2048, None), pre, pre2, epi, aux=None if EARLYV else aux, auxsz=17 * KB, auxbase=AUX_A, aux_end=None if EARLYV else aux_end,
           auxpre=xtile if EARLYV and not final else None, geo=geo, wait=wait, sig=sig, GU=2, RWD=4, early=early, altmap=True, prelast=operands if PL else None,
           own='s_lshr_b32 s68, s47, 2\ns_mul_i32 s68, s68, 7\ns_lshr_b32 s69, s48, 2\ns_add_u32 s68, s68, s69\ns_min_u32 s68, s68, 13\ns_lshl_b32 s68, s68, 1' if final else None, ownlim=224)

ZKEEP = 72
BSV = 244
MSV = 240
def stats_finish(k, S, n, R, M, T):
    k.e('v_mov_b32 v%d, v%d' % (T, S))
    k.e('v_mov_b32 v%d, v%d' % (T + 1, S + 1))
    k.e('s_nop 1')
    k.e('v_permlane32_swap_b32 v%d, v%d' % (S, T))
    k.e('v_permlane32_swap_b32 v%d, v%d' % (S + 1, T + 1))
    k.e('s_nop 1')
    k.e(pk('add', S, S, T))
    k.e('v_mul_f32 v%d, %s, v%d' % (S, hx(1.0 / n), S))
    k.e('v_mul_f32 v%d, v%d, v%d' % (T, S, S))
    k.e('v_mov_b32 v%d, %s' % (T + 1, hx(1.0 / n)))
    k.e('v_fma_f32 v%d, v%d, v%d, -v%d' % (S + 1, S + 1, T + 1, T))
    k.e('v_max_f32 v%d, 0, v%d' % (S + 1, S + 1))
    k.e('v_add_f32 v%d, %s, v%d' % (S + 1, hx(1e-5), S + 1))
    k.e('v_rsq_f32 v%d, v%d' % (R, S + 1))
    k.e('s_nop 0')
    k.e('v_mul_f32_e64 v%d, -v%d, v%d' % (M, S, R))

def uw_job(k, LB):
    k.e("""
    v_lshrrev_b32 v2, 3, v0
    v_and_b32 v3, 7, v0
    v_lshlrev_b32 v4, 6, v2
    s_mov_b32 s31, %d
    v_mul_lo_u32 v5, v2, s31
    v_lshl_add_u32 v5, v3, 4, v5
    s_movk_i32 s44, %d
    s_movk_i32 s45, %d
    s_lshl_b32 s30, s30, 1
    s_waitcnt lgkmcnt(0)
    """ % (16 * 7168, 4 * 4096, 3 * 4096))
    srd(k, 36, 'w_in'); srd(k, 40, 'ws', 0, 64 * KB)
    AV = 72; SV = 88; UA = 104; WA = 112
    lq = k.newlabel('uwq')
    poll_init(k)
    k.label(lq)
    for q in range(4): k.e('buffer_load_dwordx4 %s, v4, s[40:43], s44 offen offset:%d sc1' % (vr(AV + 4 * q, 4), q * 16))
    for q in range(4): k.e('buffer_load_dwordx4 %s, v4, s[40:43], s45 offen offset:%d sc1' % (vr(SV + 4 * q, 4), q * 16))
    if not k.c.first:
        k.e('s_waitcnt vmcnt(0)')
        k.e('v_max_u32 v6, v%d, v%d' % (AV, AV + 1))
        for r in range(AV + 2, AV + 32, 2): k.e('v_max3_u32 v6, v6, v%d, v%d' % (r, r + 1))
        k.e('v_cmp_eq_u32 vcc, -1, v6')
        poll_back(k, lq)
    k.e('s_mov_b32 s50, %d' % LB)
    lp = k.newlabel('uw')
    k.label(lp)
    k.e('s_lshl_b32 s31, s30, 7')
    for j in range(16):
        k.e('buffer_load_dwordx4 %s, v5, s[36:39], s31 offen' % vr(8 + 4 * j, 4))
        k.e('s_add_u32 s31, s31, 7168')
    for j in range(16):
        k.e('s_waitcnt vmcnt(%d)' % (15 - j))
        for d in range(4):
            unpack(k, 6, 7, 8 + 4 * j + d)
            for acc, cf in ((UA, AV), (WA, SV)):
                op = 'v_mul_f32' if j == 0 else 'v_fmac_f32'
                k.e('%s v%d, v6, v%d' % (op, acc + 2 * d, cf + j))
                k.e('%s v%d, v7, v%d' % (op, acc + 2 * d + 1, cf + j))
    red_lanes(k, list(range(UA, UA + 16)), list(range(8, 24)))
    lskip = k.newlabel('uwskip')
    k.e("""
    s_lshl_b32 s47, s46, 9
    s_add_u32 s47, s47, s50
    v_lshl_add_u32 v2, v3, 5, s47      ; pass*4096 + wave*512 + chunk*32
    v_cmp_gt_u32 vcc, 8, v1
    s_and_saveexec_b64 s[48:49], vcc
    ds_write_b128 v2, v[104:107]
    ds_write_b128 v2, v[108:111] offset:16
    ds_write_b128 v2, v[112:115] offset:256
    ds_write_b128 v2, v[116:119] offset:272
    s_mov_b64 exec, s[48:49]
    s_waitcnt lgkmcnt(0)
    s_barrier
    s_cmp_ge_u32 s46, 2
    s_cbranch_scc1 %s
    v_lshl_add_u32 v2, v0, 2, s50      ; wave0: u cols, wave1: w0 cols
    """ % lskip)
    for w in range(8): k.e('ds_read_b32 v%d, v2 offset:%d' % (8 + w, w * 512))
    k.e('s_waitcnt lgkmcnt(0)')
    for w in range(1, 8): k.e('v_add_f32 v8, v8, v%d' % (8 + w))
    k.e("""
    v_min_u32 v8, -2, v8
    v_lshlrev_b32 v2, 2, v1
    s_lshl_b32 s31, s30, 8
    s_lshl_b32 s47, s46, 14
    s_add_u32 s31, s31, s47
    s_add_u32 s31, s31, %d
    buffer_store_dword v8, v2, s[40:43], s31 offen sc1
    s_waitcnt vmcnt(0)
    """ % WS_UW)
    k.label(lskip)
    k.e("""
    s_add_u32 s30, s30, 1
    s_add_u32 s50, s50, 4096
    s_cmp_lt_u32 s50, %d
    s_cbranch_scc1 %s
    """ % (LB + 8192, lp))

GC1 = -2.0 * 0.7978845608028654 * LOG2E
def gelu_ops(k, a, U, W0, T, R, M, after_t=None):
    for r in range(0, 16, 2): k.e(pk('fma', T + r, U + r, (M,), W0 + r))
    if after_t: after_t()
    for r in range(0, 16, 2): k.e(pk('fma', a + r, a + r, (R,), T + r))
    for r in range(0, 16, 2): k.e(pk('mul', T + r, a + r, a + r))
    for r in range(0, 16, 2): k.e(pk('fma', T + r, T + r, 's[70:71]', (6,)))
    for r in range(0, 16, 2): k.e(pk('mul', T + r, T + r, a + r))
    for r in range(16): k.e('v_exp_f32 v%d, v%d' % (T + r, T + r))
    for r in range(0, 16, 2): k.e(pk('add', T + r, T + r, '1.0'))
    for r in range(16): k.e('v_rcp_f32 v%d, v%d' % (T + r, T + r))
    for r in range(0, 16, 2): k.e(pk('mul', a + r, a + r, T + r))
def stat_ops(k, a, S1, S2, first):
    for r in range(0, 16, 2):
        if first and r == 0:
            k.e(pk('add', S1, a, a + 2)); k.e(pk('mul', S2, a, a))
        else:
            if not (first and r == 2): k.e(pk('add', S1, S1, a + r))
            k.e(pk('fma', S2, a + r, a + r, S2))

def k_win(k, c):
    SPLIT = env('SPLIT', 0)
    XFER = 48 * KB
    def mid(g):
        k = g.k
        Z = 64; U = 96; T = 160; S = 176; RM_ = 180
        k.e("""
        s_lshl_b32 s67, s46, 13
        s_add_u32 s67, s67, %d
        v_lshl_add_u32 v44, v1, 4, s67     ; transfer area
        s_lshl_b32 s67, s46, 9
        s_add_u32 s67, s67, %d
        v_lshl_add_u32 v45, v1, 3, s67     ; (R,M) / stats slot
        v_lshrrev_b32 v46, 5, v1
        v_lshlrev_b32 v46, 4, v46
        v_add_u32 v46, %d, v46
        s_mov_b32 s70, %s
        s_mov_b32 s71, s70
        v_mov_b32 v6, %s
        ds_read_b64 v[%d:%d], v45
        """ % (XFER, g.AUX + 2048, g.AUX, hx(GC1 * 0.044715), hx(GC1), RM_, RM_ + 1))
        for b in range(2):
            for q in range(4):
                k.e('ds_read_b128 %s, v46 offset:%d' % (vr(U + 32 * b + 4 * q, 4), (2 + b) * 128 + q * 32))
                k.e('ds_read_b128 %s, v46 offset:%d' % (vr(U + 32 * b + 16 + 4 * q, 4), 1024 + (2 + b) * 128 + q * 32))
        k.e('s_setprio 1')
        k.e('s_waitcnt lgkmcnt(0)')
        k.e('v_mov_b32 v%d, v%d' % (RM_ + 2, RM_ + 1))
        k.e('s_barrier')
        for q in range(8): k.e('ds_read_b128 %s, v44 offset:%d' % (vr(Z + 4 * q, 4), q * 1024))
        for b in range(2):
            a = Z + 16 * b
            k.e('s_waitcnt lgkmcnt(%d)' % (4 - 4 * b))
            for hb in range(2):
                for e in range(4): k.e('v_permlane16_swap_b32 v%d, v%d' % (a + 8 * hb + e, a + 8 * hb + 4 + e))
            gelu_ops(k, a, U + 32 * b, U + 32 * b + 16, T, RM_, RM_ + 2)
            stat_ops(k, a, S, S + 2, b == 0)
        k.e('v_add_f32 v%d, v%d, v%d' % (S, S, S + 1))
        k.e('v_add_f32 v%d, v%d, v%d' % (S + 1, S + 2, S + 3))
        k.e('ds_write_b64 v45, %s' % vr(S, 2))
        k.e('s_waitcnt lgkmcnt(0)')
        k.e('s_barrier')
        for q in range(8): k.e('ds_write_b128 v44, %s offset:%d' % (vr(Z + 4 * q, 4), q * 1024))
        k.e('s_waitcnt lgkmcnt(0)')
    LP = 1; LPJ = env('LPJ', 3)
    KZ = c.nxt == 'wsp' and env('KEEPZ', 1)
    def post(g):
        if not LP: return
        k = g.k
        srd(k, 36, 'ws', WS_G, 256 * KB)
        k.e("""
        s_lshl_b32 s65, s30, 2
        s_add_u32 s65, s65, s46
        s_lshl_b32 s65, s65, 12            ; rb32*4096
        v_and_b32 v2, 31, v1
        v_lshrrev_b32 v3, 5, v1
        v_mul_u32_u24 v3, %d, v3
        v_lshl_add_u32 v2, v2, 3, v3
        s_lshl_b32 s67, s46, 9
        s_add_u32 s67, s67, %d
        v_lshl_add_u32 v3, v1, 3, s67
        s_setprio 2
        s_barrier
        """ % (7 * 256, g.AUX + 2048))
        lp = k.newlabel('lpoll')
        poll_init(k)
        k.label(lp)
        for p in range(7):
            k.e('buffer_load_dwordx2 %s, v2, s[36:39], s65 offen offset:%d sc1' % (vr(24 + 2 * p, 2), p * 256))
        k.e('s_waitcnt vmcnt(0)')
        k.e('v_max_u32 v5, v24, v25')
        for p in range(1, 7): k.e('v_max3_u32 v5, v5, v%d, v%d' % (24 + 2 * p, 25 + 2 * p))
        k.e('v_cmp_eq_u32 vcc, -1, v5')
        poll_back(k, lp)
        for p in range(1, 7): k.e(pk('add', 24, 24, 24 + 2 * p))
        stats_finish(k, 24, 1792, 40, 41, 26)
        k.e('ds_write_b64 v3, v[40:41]')
        k.e('s_waitcnt lgkmcnt(0)')
        k.e('s_barrier')
    def uw_loads(g):
        g.k.e('buffer_load_dwordx4 v[24:27], v2, s[40:43], s62 offen sc1')
        g.k.e('buffer_load_dwordx4 v[28:31], v2, s[40:43], s63 offen sc1')
    def aux(g):
        k = g.k
        srd(k, 40, 'ws', WS_UW, 32 * KB)
        k.e("""
        v_and_b32 v2, 31, v1
        v_lshlrev_b32 v2, 4, v2
        v_add_u32 v3, 7168, v2
        v_cmp_gt_u32 vcc, 32, v1
        s_lshl_b32 s62, s31, 9
        s_add_u32 s63, s62, %d
        v_cndmask_b32 v2, v2, v3, vcc
        v_lshlrev_b32 v3, 4, v1
        v_add_u32 v3, %d, v3
        """ % (16 * KB, g.AUX))
        uw_loads(g)
        return 2
    def aux_end(g):
        k = g.k
        lp = k.newlabel('uwp'); lc = k.newlabel('uwc')
        poll_init(k)
        k.e('s_branch %s' % lc)
        k.label(lp)
        uw_loads(g)
        k.e('s_waitcnt vmcnt(0)')
        k.label(lc)
        k.e("""
        v_max3_u32 v4, v24, v25, v26
        v_max3_u32 v4, v4, v27, v28
        v_max3_u32 v4, v4, v29, v30
        v_max_u32 v4, v4, v31
        v_cmp_eq_u32 vcc, -1, v4
        """)
        poll_back(k, lp)
        k.e("""
        ds_write_b128 v3, v[24:27]
        ds_write_b128 v3, v[28:31] offset:1024
        s_waitcnt lgkmcnt(0)
        """)
    def pre(g):
        k = g.k
        g.L16 = alloc(g, 1, 1); g.SA = alloc(g, 1, 1); g.GA = alloc(g, 1, 1); g.CA = alloc(g, 1, 1)
        g.R = alloc(g, 2, 2); g.M = alloc(g, 2, 2); g.P = alloc(g, 16)
        srd(k, 32, 'ws', ZB, max(WS_Z, WS_Z2N) - ZB + ZSZ); srd(k, 36, 'ws', WS_ST1, 512 * KB)
        k.e('v_lshlrev_b32 v%d, 4, v1' % g.L16)
        k.e("""
        s_lshl_b32 s61, s30, 2
        s_add_u32 s61, s61, s46           ; rb32
        s_lshr_b32 s64, s61, 1
        s_lshl_b32 s64, s64, 13           ; rb64*8192
        s_and_b32 s65, s61, 1
        s_lshl_b32 s65, s65, 8
        s_add_u32 s64, s64, s65           ; x1 stats offset
        s_lshl_b32 s65, s61, 12
        s_add_u32 s65, s65, %d            ; granule offset (row block)
        s_lshl_b32 s66, s31, 8
        s_add_u32 s66, s66, s65           ; own granule
        s_mul_i32 s60, s61, %d
        s_lshl_b32 s61, s31, 13
        s_add_u32 s60, s60, s61           ; Z1 offset
        v_lshlrev_b32 v5, 3, v3
        v_lshl_add_u32 v%d, v4, 12, v5    ; h*8*512 + row*8
        v_mul_u32_u24 v6, %d, v4
        v_add_u32 v%d, v6, v5             ; h*7*256 + row*8
        v_lshlrev_b32 v%d, 4, v4
        v_add_u32 v%d, %d, v%d
        """ % (WS_G - WS_ST1, 112 * 1024, g.SA, 7 * 256, g.GA, g.CA, g.CA, g.AUX, g.CA))
    def early(g):
        k = g.k
        for p in range(8):
            k.e('buffer_load_dwordx2 %s, v%d, s[36:39], s64 offen offset:%d sc1' % (vr(g.P + 2 * p, 2), g.SA, p * 512))
        k.e('s_waitcnt vmcnt(0)')
        for p in range(1, 8): k.e(pk('add', g.P, g.P, g.P + 2 * p))
        stats_finish(k, g.P, 1024, g.R, g.M, g.P + 2)
        if SPLIT:
            k.e('s_lshl_b32 s67, s46, 9')
            k.e('s_add_u32 s67, s67, %d' % (g.AUX + 2048))
            k.e('v_lshl_add_u32 v%d, v1, 3, s67' % g.SA)
            k.e('s_lshl_b32 s67, s46, 13')
            k.e('s_add_u32 s67, s67, %d' % XFER)
            k.e('v_lshl_add_u32 v%d, v1, 4, s67' % g.GA)
            k.e('v_mov_b32 v%d, v%d' % (g.R + 1, g.M))
            k.e('ds_write_b64 v%d, %s' % (g.SA, vr(g.R, 2)))
            k.e('s_waitcnt lgkmcnt(0)')
    def pre2(g): pass
    def epi(g):
        k = g.k
        c1 = -2.0 * 0.7978845608028654 * LOG2E
        U = g.FR; W0 = g.FR + 16; T = g.FR + 32; PS = g.FR + 48
        def rd_uw(j):
            for q in range(4):
                k.e('ds_read_b128 %s, v%d offset:%d' % (vr(U + 4 * q, 4), g.CA, j * 128 + q * 32))
                k.e('ds_read_b128 %s, v%d offset:%d' % (vr(W0 + 4 * q, 4), g.CA, 1024 + j * 128 + q * 32))
        k.e('s_nop 7')
        rd_uw(0)
        k.e('s_mov_b32 s70, %s' % hx(c1 * 0.044715)); k.e('s_mov_b32 s71, s70')
        k.e('v_mov_b32 v6, %s' % hx(c1))
        S1 = g.P; S2 = g.P + 2
        GR = g.P + 2
        n = 0
        def poll_loads():
            for p in range(7):
                k.e('buffer_load_dwordx2 %s, v%d, s[36:39], s65 offen offset:%d sc1' % (vr(GR + 2 * p, 2), g.GA, p * 256))
        cnt = [0]
        def block(j):
            a = g.acc(0, j)
            g.fix(0, j)
            k.e('s_waitcnt lgkmcnt(0)')
            lastz2 = 1 if SPLIT else 3
            gelu_ops(k, a, U, W0, T, g.R, g.M, after_t=(lambda: rd_uw(j + 1)) if (j < 7 and not (j == lastz2 and g.deferred)) else None)
            if j >= 4:
                if KZ:
                    for d in range(8): k.e('v_cvt_pk_bf16_f32 v%d, v%d, v%d' % (ZKEEP + 8 * (j - 4) + d, a + 2 * d, a + 2 * d + 1))
                else:
                    k.e('s_add_u32 s61, s60, %d' % (WS_Z - ZB + (j - 4) * 2048))
                    store_xf_tile(g, a, PS + 8 * (cnt[0] % 3), g.L16, 32, 's61', 0); cnt[0] += 1
            else: stat_ops(k, a, S1, S2, j == 0)
        if SPLIT:
            assert g.deferred and LPJ == 3
            for q in range(8): k.e('ds_write_b128 v%d, %s offset:%d' % (g.GA, vr(g.acc(0, 2) + 4 * q, 4), q * 1024))
            k.e('s_waitcnt lgkmcnt(0)')
            k.e('s_barrier')
        for j in range(2 if SPLIT else 4): block(j)
        k.e('v_add_f32 v%d, v%d, v%d' % (S1, S1, S1 + 1))
        k.e('v_add_f32 v%d, v%d, v%d' % (S1 + 1, S2, S2 + 1))
        if SPLIT:
            k.e('s_barrier')
            k.e('ds_read_b64 %s, v%d' % (vr(S2, 2), g.SA))
            k.e('s_waitcnt lgkmcnt(0)')
            k.e(pk('add', S1, S1, S2))
        k.e('v_mov_b32 v%d, v%d' % (S2, S1))
        k.e('v_mov_b32 v%d, v%d' % (S2 + 1, S1 + 1))
        k.e('v_lshlrev_b32 v5, 3, v3')
        k.e('s_nop 0')
        k.e('v_permlane32_swap_b32 v%d, v%d' % (S1, S2))
        k.e('v_permlane32_swap_b32 v%d, v%d' % (S1 + 1, S2 + 1))
        k.e('s_nop 1')
        k.e(pk('add', S1, S1, S2))
        k.e('v_min_u32 v%d, -2, v%d' % (S1, S1))
        k.e('v_min_u32 v%d, -2, v%d' % (S1 + 1, S1 + 1))
        k.e('s_mov_b32 exec_hi, 0')
        k.e('buffer_store_dwordx2 %s, v5, s[36:39], s66 offen sc1' % vr(S1, 2))
        k.e('s_mov_b32 exec_hi, -1')
        if env('WM', 0): mark(k, 0)
        NB4 = env('NB4', 1) if KZ else 4
        if g.deferred:
            g.deferred()
            rd_uw(4)
        if LPJ == 3: k.e('s_barrier')
        if SPLIT:
            assert NB4 >= 1
            for q in range(8): k.e('ds_read_b128 %s, v%d offset:%d' % (vr(g.acc(0, 2) + 4 * q, 4), g.GA, q * 1024))
        for j in range(4, 4 + NB4):
            block(j)
            if j == LPJ: k.e('s_barrier')
        if env('WM', 0): mark(k, 1)
        R2 = g.P + 4; M2 = g.P + 6
        k.e('s_lshl_b32 s67, s46, 9')
        k.e('s_add_u32 s67, s67, %d' % (g.AUX + 2048))
        k.e('v_lshl_add_u32 v5, v1, 3, s67')
        k.e('s_barrier')
        k.e('ds_read_b64 %s, v5' % vr(R2, 2))
        k.e('s_waitcnt lgkmcnt(0)')
        mark(k, 3)
        k.e('v_mov_b32 v%d, v%d' % (M2, R2 + 1))
        zo = ZOWN and c.nxt == 'wsp'
        if zo:
            assert g.M16
            ZA = g.P + 8
            k.e('''
            s_lshr_b32 s67, s46, 1
            s_lshl_b32 s67, s67, 15
            s_and_b32 s68, s46, 1
            s_lshl_b32 s68, s68, 13
            s_add_u32 s67, s67, s68
            s_add_u32 s67, s67, 16384
            v_bfe_u32 v5, v1, 4, 1
            v_lshl_add_u32 v%d, v5, 12, s67
            v_bfe_u32 v5, v1, 2, 2
            v_lshl_add_u32 v%d, v5, 8, v%d
            v_and_b32 v5, 2, v5
            v_or_b32 v5, v5, v4
            v_lshl_add_u32 v%d, v5, 6, v%d
            v_and_b32 v5, 3, v1
            v_lshl_add_u32 v%d, v5, 4, v%d
            v_xor_b32 v%d, 128, v%d
            ''' % (ZA, ZA, ZA, ZA, ZA, ZA, ZA, ZA + 1, ZA))
        for j in range(4):
            a = g.acc(0, j)
            for r in range(0, 16, 2): k.e(pk('fma', a + r, a + r, (R2,), (M2,)))
            k.e('s_add_u32 s61, s60, %d' % (WS_Z2N - ZB + j * 2048))
            if zo:
                store_xf_tile(g, a, a, g.L16, 32, 's61', 0)
            else:
                store_xf_tile(g, a, PS + 8 * (cnt[0] % 3), g.L16, 32, 's61', 0); cnt[0] += 1
        if zo:
            for j in range(4):
                for t in range(2): k.e('ds_write_b128 v%d, %s offset:%d' % (ZA + t, vr(g.acc(0, j) + 4 * t, 4), j * 1024))
        if g.LE: k.e('s_barrier')
        rest = list(range(4 + NB4, 8))
        NBS = env('NBS', 2)
        for j in rest[:NBS]: block(j)
        signal(k, 'C')
        if zo and LPW: k.e('s_barrier')
        for j in rest[NBS:]: block(j)
        k.e('s_waitcnt lgkmcnt(0)')
    sig = 's_lshl_b32 s100, s31, 8\ns_lshl_b32 s101, s30, 4\ns_add_u32 s100, s100, s101\ns_add_u32 s100, s100, %d' % FL_WIN
    wait = ('s_lshl_b32 s100, s30, 8\ns_add_u32 s100, s100, %d' % FL_WO, 64)
    H22 = env('H22', 0)
    k_gemm(k, c, 16, 14, 2, 2, 7, 128, 256, 2 if H22 else 4, 2 if H22 else 1, 1024, 32, 4, ('xf', WS_X1S, 1024), ('w', 'w_in', 7168, (256, [3584, 3584 + 128, 0, 128])),
           pre, pre2, epi, aux=aux, auxsz=4 * KB, auxbase=AUX_B, aux_end=aux_end, post=post, mid=mid if SPLIT else None, selfsig=True, early=early, SOFT=3, DEFER=3, dcols=([0, 1], [2, 3]) if H22 else ([0, 1, 2, 3], [4, 5, 6, 7]), JG=2, lazyfix=True, side=(28, uw_job), wait=wait, sig=sig)

def k_win2(k, c):
    assert c.nxt == 'wsp' and ZOWN
    def post(g):
        k = g.k
        srd(k, 36, 'ws', WS_G2, 512 * KB)
        k.e("""
        s_lshl_b32 s65, s30, 1
        s_lshr_b32 s66, s46, 1
        s_add_u32 s65, s65, s66
        s_lshl_b32 s65, s65, 14            ; rb64*16K
        s_and_b32 s66, s46, 1
        s_lshl_b32 s66, s66, 8
        s_add_u32 s65, s65, s66
        s_add_u32 s66, s65, 3584
        v_and_b32 v2, 31, v1
        v_lshrrev_b32 v3, 5, v1
        v_mul_u32_u24 v3, %d, v3
        v_lshl_add_u32 v2, v2, 3, v3
        s_lshl_b32 s67, s46, 9
        s_add_u32 s67, s67, %d
        v_lshl_add_u32 v3, v1, 3, s67
        s_setprio 2
        s_barrier
        """ % (14 * 512, g.AUX + 2048))
        lp = k.newlabel('lpoll')
        poll_init(k)
        k.label(lp)
        for p in range(14):
            k.e('buffer_load_dwordx2 %s, v2, s[36:39], s%d offen offset:%d sc1' % (vr(24 + 2 * p, 2), 65 + p // 7, (p % 7) * 512))
        k.e('s_waitcnt vmcnt(0)')
        k.e('v_max_u32 v5, v24, v25')
        for p in range(1, 14): k.e('v_max3_u32 v5, v5, v%d, v%d' % (24 + 2 * p, 25 + 2 * p))
        k.e('v_cmp_eq_u32 vcc, -1, v5')
        poll_back(k, lp)
        for p in range(1, 14): k.e(pk('add', 24, 24, 24 + 2 * p))
        stats_finish(k, 24, 1792, 56, 57, 26)
        k.e('ds_write_b64 v3, v[56:57]')
        k.e('s_waitcnt lgkmcnt(0)')
        k.e('s_barrier')
        if env('WLE', 2): k.e('s_barrier')
    def uw_loads(g):
        g.k.e('buffer_load_dwordx4 v[24:27], v2, s[40:43], s62 offen sc1')
        g.k.e('buffer_load_dwordx4 v[28:31], v2, s[40:43], s63 offen sc1')
    def aux(g):
        k = g.k
        srd(k, 40, 'ws', WS_UW, 32 * KB)
        k.e("""
        v_and_b32 v2, 31, v1
        v_lshlrev_b32 v2, 4, v2
        v_add_u32 v3, 7168, v2
        v_cmp_gt_u32 vcc, 32, v1
        s_lshl_b32 s62, s31, 9
        s_add_u32 s63, s62, %d
        v_cndmask_b32 v2, v2, v3, vcc
        v_lshlrev_b32 v3, 4, v1
        v_add_u32 v3, %d, v3
        """ % (16 * KB, g.AUX))
        uw_loads(g)
        return 2
    def aux_end(g):
        k = g.k
        lp = k.newlabel('uwp'); lc = k.newlabel('uwc')
        poll_init(k)
        k.e('s_branch %s' % lc)
        k.label(lp)
        uw_loads(g)
        k.e('s_waitcnt vmcnt(0)')
        k.label(lc)
        k.e("""
        v_max3_u32 v4, v24, v25, v26
        v_max3_u32 v4, v4, v27, v28
        v_max3_u32 v4, v4, v29, v30
        v_max_u32 v4, v4, v31
        v_cmp_eq_u32 vcc, -1, v4
        """)
        poll_back(k, lp)
        k.e("""
        ds_write_b128 v3, v[24:27]
        ds_write_b128 v3, v[28:31] offset:1024
        s_waitcnt lgkmcnt(0)
        """)
    def pre(g):
        k = g.k
        g.L16 = alloc(g, 1, 1); g.L8 = alloc(g, 1, 1); g.CA = alloc(g, 1, 1)
        g.R = alloc(g, 4); g.M = alloc(g, 4); g.P = alloc(g, 16)
        srd(k, 32, 'ws', WS_Z2N, ZSZ); srd(k, 36, 'ws', WS_ST1, 256 * KB); srd(k, 40, 'ws', WS_G2, 512 * KB)
        k.e('v_lshlrev_b32 v%d, 4, v1' % g.L16)
        k.e('v_lshlrev_b32 v%d, 3, v1' % g.L8)
        k.e("""
        s_lshl_b32 s61, s30, 1
        s_add_u32 s61, s61, s50           ; rb64
        s_lshl_b32 s64, s61, 13           ; x1 stats offset
        s_add_u32 s65, s64, 4096
        s_lshl_b32 s66, s31, 1
        s_add_u32 s66, s66, s51
        s_lshl_b32 s66, s66, 9
        s_lshl_b32 s67, s61, 14
        s_add_u32 s66, s66, s67           ; own granule
        s_mul_i32 s60, s61, %d
        s_lshl_b32 s61, s31, 13
        s_add_u32 s60, s60, s61
        s_lshl_b32 s61, s51, 12
        s_add_u32 s60, s60, s61           ; Z2N offset of block (0,0)
        s_add_u32 s61, s60, %d
        s_lshl_b32 s67, s51, 8
        s_add_u32 s67, s67, %d
        v_lshl_add_u32 v%d, v4, 4, s67
        """ % (2 * 112 * 1024, 112 * 1024, g.AUX, g.CA))
    def early(g):
        k = g.k
        if ZF32:
            assert g.free <= BSV
            srd(k, 80, 'b_sp')
            k.e('s_lshr_b32 s67, s64, 6')
            k.e('v_and_b32 v5, 15, v1')
            k.e('v_lshlrev_b32 v5, 1, v5')
            for q in range(4): k.e('buffer_load_ushort v%d, v5, s[80:83], s67 offen offset:%d' % (BSV + q, q * 32))
        Pp = g.FR
        for p in range(16):
            k.e('buffer_load_dwordx2 %s, v%d, s[36:39], s%d offen offset:%d sc1' % (vr(Pp + 2 * p, 2), g.L8, 64 + p // 8, (p % 8) * 512))
        k.e('s_waitcnt vmcnt(0)')
        for p in range(1, 16): k.e(pk('add', Pp, Pp, Pp + 2 * p))
        T_ = Pp + 2
        k.e('v_mul_f32 v%d, %s, v%d' % (Pp, hx(1.0 / 1024), Pp))
        k.e('v_mul_f32 v%d, v%d, v%d' % (T_, Pp, Pp))
        k.e('v_mov_b32 v%d, %s' % (T_ + 1, hx(1.0 / 1024)))
        k.e('v_fma_f32 v%d, v%d, v%d, -v%d' % (Pp + 1, Pp + 1, T_ + 1, T_))
        k.e('v_max_f32 v%d, 0, v%d' % (Pp + 1, Pp + 1))
        k.e('v_add_f32 v%d, %s, v%d' % (Pp + 1, hx(1e-5), Pp + 1))
        k.e('v_rsq_f32 v%d, v%d' % (g.R, Pp + 1))
        k.e('s_nop 0')
        k.e('v_mul_f32_e64 v%d, -v%d, v%d' % (g.M, Pp, g.R))
        k.e('v_mov_b32 v%d, v%d' % (g.R + 2, g.R))
        k.e('v_mov_b32 v%d, v%d' % (g.M + 2, g.M))
        k.e('s_nop 1')
        k.e('v_permlane32_swap_b32 v%d, v%d' % (g.R, g.R + 2))
        k.e('v_permlane32_swap_b32 v%d, v%d' % (g.M, g.M + 2))
    def epi(g):
        k = g.k
        U = g.FR; W0 = g.FR + 16; T = g.FR + 32
        def rd_uw(j):
            o = (j // 2) * 512 + (j % 2) * 128
            for q in range(4):
                k.e('ds_read_b128 %s, v%d offset:%d' % (vr(U + 4 * q, 4), g.CA, o + q * 32))
                k.e('ds_read_b128 %s, v%d offset:%d' % (vr(W0 + 4 * q, 4), g.CA, 1024 + o + q * 32))
        rd_uw(0)
        k.e('s_mov_b32 s70, %s' % hx(GC1 * 0.044715)); k.e('s_mov_b32 s71, s70')
        k.e('v_mov_b32 v6, %s' % hx(GC1))
        SS = g.P
        def block(n):
            j, i = n // 2, n % 2
            a = g.acc(i, j)
            g.fix(i, j)
            if i == 0: k.e('s_waitcnt lgkmcnt(0)')
            gelu_ops(k, a, U, W0, T, g.R + 2 * i, g.M + 2 * i, after_t=(lambda: rd_uw(j + 1)) if (i == 1 and j in (0, 2)) else None)
            if j >= 2:
                if not ZF32:
                    for d in range(8): k.e('v_cvt_pk_bf16_f32 v%d, v%d, v%d' % (a + d, a + 2 * d, a + 2 * d + 1))
            else: stat_ops(k, a, SS + 4 * i, SS + 4 * i + 2, j == 0)
        for n in range(4): block(n)
        for i in range(2):
            k.e('v_add_f32 v%d, v%d, v%d' % (SS + 4 * i, SS + 4 * i, SS + 4 * i + 1))
            k.e('v_add_f32 v%d, v%d, v%d' % (SS + 4 * i + 1, SS + 4 * i + 2, SS + 4 * i + 3))
        k.e('s_nop 1')
        k.e('v_permlane32_swap_b32 v%d, v%d' % (SS, SS + 4))
        k.e('v_permlane32_swap_b32 v%d, v%d' % (SS + 1, SS + 5))
        k.e('s_nop 1')
        k.e(pk('add', SS, SS, SS + 4))
        k.e('v_min_u32 v%d, -2, v%d' % (SS, SS))
        k.e('v_min_u32 v%d, -2, v%d' % (SS + 1, SS + 1))
        k.e('buffer_store_dwordx2 %s, v%d, s[40:43], s66 offen sc1' % (vr(SS, 2), g.L8))
        if env('WM', 0): mark(k, 0)
        NB4 = env('NB4', 1)
        g.deferred()
        rd_uw(2)
        k.e('s_barrier')
        for n in range(4, 4 + NB4): block(n)
        if env('WM', 0): mark(k, 1)
        R2 = g.P + 4; ZA = g.P + 12
        k.e("""
        s_lshl_b32 s67, s50, 10
        s_add_u32 s67, s67, %d
        v_add_u32 v7, s67, v%d
        s_lshl_b32 s67, s50, 15
        s_lshl_b32 s68, s51, 11
        s_add_u32 s67, s67, s68
        s_add_u32 s67, s67, 16384
        v_bfe_u32 v5, v1, 4, 1
        v_lshl_add_u32 v%d, v5, 12, s67
        v_bfe_u32 v5, v1, 2, 2
        v_lshl_add_u32 v%d, v5, 8, v%d
        v_and_b32 v5, 2, v5
        v_or_b32 v5, v5, v4
        v_lshl_add_u32 v%d, v5, 6, v%d
        v_and_b32 v5, 3, v1
        v_lshl_add_u32 v%d, v5, 4, v%d
        v_xor_b32 v%d, 128, v%d
        s_barrier
        ds_read_b64 %s, v7
        ds_read_b64 %s, v7 offset:512
        s_waitcnt lgkmcnt(0)
        """ % (g.AUX + 2048, g.L8, ZA, ZA, ZA, ZA, ZA, ZA, ZA, ZA + 1, ZA, vr(R2, 2), vr(R2 + 4, 2)))
        mark(k, 3)
        for i in range(2): k.e('v_mov_b32 v%d, v%d' % (R2 + 4 * i + 2, R2 + 4 * i + 1))
        for i in range(2):
            for j in range(2):
                a = g.acc(i, j)
                for r in range(0, 16, 2): k.e(pk('fma', a + r, a + r, (R2 + 4 * i,), (R2 + 4 * i + 2,)))
                store_xf_tile(g, a, a, g.L16, 32, 's%d' % (60 + i), j * 2048)
        if env('WLE', 2) == 1: k.e('s_barrier')
        for i in range(2):
            for j in range(2):
                for t in range(2): k.e('ds_write_b128 v%d, %s offset:%d' % (ZA + t, vr(g.acc(i, j) + 4 * t, 4), i * 8192 + j * 1024))
        rest = list(range(4 + NB4, 8))
        NBS = env('NBS', 2)
        for n in rest[:NBS]: block(n)
        signal(k, 'C')
        if env('WLE', 2) == 2: k.e('s_barrier')
        for n in rest[NBS:]: block(n)
        k.e('s_waitcnt lgkmcnt(0)')
    sig = 's_lshl_b32 s100, s31, 8\ns_lshl_b32 s101, s30, 4\ns_add_u32 s100, s100, s101\ns_add_u32 s100, s100, %d' % FL_WIN
    wait = ('s_lshl_b32 s100, s30, 8\ns_add_u32 s100, s100, %d' % FL_WO, 64)
    k_gemm(k, c, 16, 14, 2, 2, 7, 128, 256, 2, 2, 1024, 32, 4, ('xf', WS_X1S, 1024), ('w', 'w_in', 7168, (256, [3584, 0, 3584 + 128, 128])),
           pre, nop, epi, aux=aux, auxsz=4 * KB, auxbase=AUX_B, aux_end=aux_end, post=post, selfsig=True, early=early, SOFT=0, DEFER=3,
           dcols=([0, 1], [2, 3]), JG=2, lazyfix=True, side=(28, uw_job), wait=wait, sig=sig, accmap=lambda i, j: (j // 2) * 4 + i * 2 + j % 2)

def k_wsp(k, c):
    def pre(g):
        k = g.k
        g.L16 = alloc(g, 1, 1); g.L2 = alloc(g, 1, 1); g.B = alloc(g, 4); g.Z = alloc(g, 32)
        srd(k, 32, 'ws', WS_Z, ZSZ); srd(k, 36, 'ws', WS_U2, ZSZ); srd(k, 40, 'b_sp')
        k.e('v_lshlrev_b32 v%d, 4, v1' % g.L16)
        k.e('''
        s_lshl_b32 s60, s31, 13
        s_lshl_b32 s61, s51, 12
        s_add_u32 s60, s60, s61
        s_lshl_b32 s61, s30, 2
        s_lshl_b32 s62, s50, 1
        s_add_u32 s61, s61, s62           ; rb0
        s_lshl_b32 s63, s61, 6
        s_mul_i32 s61, s61, %d
        s_add_u32 s60, s60, s61
        s_add_u32 s61, s60, %d
        v_lshlrev_b32 v%d, 1, v3
        ''' % (112 * 1024, 112 * 1024, g.L2))
    def pre2(g):
        k = g.k
        for i in range(2):
            k.e('buffer_load_ushort v%d, v%d, s[40:43], s63 offen offset:%d' % (g.B + 2 * i, g.L2, i * 64))
        for i in range(2):
            for j in range(2):
                for t in range(2):
                    k.e('buffer_load_dwordx4 %s, v%d, s[32:35], s%d offen offset:%d sc1' % (vr(g.Z + 16 * i + 8 * j + 4 * t, 4), g.L16, 60 + i, (2 * j + t) * 1024))
    def epi(g):
        k = g.k
        T = g.FR
        k.e('s_waitcnt vmcnt(0)')
        for i in range(2): k.e('v_lshlrev_b32 v%d, 16, v%d' % (g.B + 2 * i, g.B + 2 * i))
        k.e('s_nop 7')
        for j in range(2):
            for i in range(2):
                a = g.acc(i, j); z = g.Z + 16 * i + 8 * j
                for d in range(8): unpack(k, T + 2 * d, T + 2 * d + 1, z + d)
                for d in range(8): k.e(pk('add', a + 2 * d, a + 2 * d, (g.B + 2 * i,)))
                for d in range(8): k.e(pk('mul', a + 2 * d, a + 2 * d, T + 2 * d))
                store_xf_tile(g, a, z, g.L16, 36, 's%d' % (60 + i), j * 2048)
    KZ = c.prev == 'win' and env('KEEPZ', 1)
    def preK(g):
        k = g.k
        g.L16 = alloc(g, 1, 1); g.L2 = alloc(g, 1, 1); g.B = alloc(g, 2, 2)
        srd(k, 36, 'ws', WS_U2, ZSZ); srd(k, 40, 'b_sp')
        k.e('v_lshlrev_b32 v%d, 4, v1' % g.L16)
        k.e('''
        s_lshl_b32 s60, s31, 13
        s_lshl_b32 s61, s30, 2
        s_add_u32 s61, s61, s46           ; rb32
        s_lshl_b32 s63, s61, 6
        s_mul_i32 s61, s61, %d
        s_add_u32 s60, s60, s61
        s_add_u32 s61, s60, 4096
        v_lshlrev_b32 v%d, 1, v3
        ''' % (112 * 1024, g.L2))
    def pre2K(g):
        g.k.e('buffer_load_ushort v%d, v%d, s[40:43], s63 offen' % (g.B, g.L2))
    def epiK(g):
        k = g.k
        T = g.FR
        k.e('s_waitcnt vmcnt(0)')
        k.e('v_lshlrev_b32 v%d, 16, v%d' % (g.B, g.B))
        for j in range(4):
            a = g.acc(0, j); z = ZKEEP + 8 * j
            for d in range(8): unpack(k, T + 2 * d, T + 2 * d + 1, z + d)
            for d in range(8): k.e(pk('add', a + 2 * d, a + 2 * d, (g.B,)))
            for d in range(8): k.e(pk('mul', a + 2 * d, a + 2 * d, T + 2 * d))
            store_xf_tile(g, a, z, g.L16, 36, 's%d' % (60 + j // 2), (j % 2) * 2048)
    sig = 's_lshl_b32 s100, s30, 8\ns_lshl_b32 s101, s31, 4\ns_add_u32 s100, s100, s101\ns_add_u32 s100, s100, %d' % FL_WSP
    wait = ('s_lshl_b32 s100, s31, 8\ns_add_u32 s100, s100, %d' % FL_WIN, 64)
    def pre22(g):
        k = g.k
        g.L16 = alloc(g, 1, 1); g.L2 = alloc(g, 1, 1); g.B = alloc(g, 4)
        srd(k, 36, 'ws', WS_U2, ZSZ); srd(k, 40, 'b_sp')
        k.e('v_lshlrev_b32 v%d, 4, v1' % g.L16)
        k.e('''
        s_lshl_b32 s60, s31, 13
        s_lshl_b32 s61, s51, 12
        s_add_u32 s60, s60, s61
        s_lshl_b32 s61, s30, 2
        s_lshl_b32 s62, s50, 1
        s_add_u32 s61, s61, s62           ; rb0
        s_lshl_b32 s63, s61, 6
        s_mul_i32 s61, s61, %d
        s_add_u32 s60, s60, s61
        s_add_u32 s61, s60, %d
        v_lshlrev_b32 v%d, 1, v3
        ''' % (112 * 1024, 112 * 1024, g.L2))
    def pre22f(g):
        pre22(g)
        k = g.k
        for q in range(4): k.e('v_lshlrev_b32 v%d, 16, v%d' % (BSV + q, BSV + q))
        for i in range(2):
            for j in range(2):
                for r in range(16): k.e('v_mov_b32 v%d, v%d' % (g.acc(i, j) + r, BSV + 2 * i + (r // 4) % 2))
    def epi22f(g):
        k = g.k
        for j in range(2):
            for i in range(2):
                a = g.acc(i, j); z = ZKEEP + 16 * (2 * i + j)
                g.fix(i, j)
                k.e('s_nop 0')
                for d in range(8): k.e(pk('mul', a + 2 * d, a + 2 * d, z + 2 * d))
                store_xf_tile(g, a, a, g.L16, 36, 's%d' % (60 + i), j * 2048)
    def pre222(g):
        for i in range(2): g.k.e('buffer_load_ushort v%d, v%d, s[40:43], s63 offen offset:%d' % (g.B + 2 * i, g.L2, i * 64))
    def epi22(g):
        k = g.k
        T = g.FR
        k.e('s_waitcnt vmcnt(0)')
        for i in range(2): k.e('v_lshlrev_b32 v%d, 16, v%d' % (g.B + 2 * i, g.B + 2 * i))
        for j in range(2):
            for i in range(2):
                a = g.acc(i, j); z = ZKEEP + 16 * (2 * i + j)
                for d in range(8): unpack(k, T + 2 * d, T + 2 * d + 1, z + d)
                for d in range(8): k.e(pk('add', a + 2 * d, a + 2 * d, (g.B + 2 * i,)))
                for d in range(8): k.e(pk('mul', a + 2 * d, a + 2 * d, T + 2 * d))
                store_xf_tile(g, a, z, g.L16, 36, 's%d' % (60 + i), j * 2048)
    tailpre = None
    if TPRE:
        su, pcs = proj_wpre('w_out', 24, 4, 's46')
        def tp(k, n):
            cnt = 0
            for st in (2 * n, 2 * n + 1):
                if st < TPRE:
                    for x in pcs(st):
                        k.e(x)
                        if 'm0' in x: k.e('s_nop 0')
                    cnt += 4
            return cnt
        tailpre = (su, tp)
    if W22 and ZF32: k_gemm(k, c, 16, 14, 2, 2, 7, 128, 128, 2, 2, 2048, 64, 3, ('rm', 'w_sp', 4096), ('z', WS_Z2N, 1792), pre22f, nop, epi22f, pf='w_out', wait=wait, sig=sig, dep='Y', GU=2, RWD=2, frbase=ZKEEP + 64, own='s_lshl_b32 s68, s30, 1', cinit=True, lazyfix=True, tailpre=tailpre)
    elif W22: k_gemm(k, c, 16, 14, 2, 2, 7, 128, 128, 2, 2, 2048, 64, 3, ('rm', 'w_sp', 4096), ('z', WS_Z2N, 1792), pre22, pre222, epi22, pf='w_out', wait=wait, sig=sig, dep='Y', GU=2, RWD=2, frbase=ZKEEP + 64, own='s_lshl_b32 s68, s30, 1')
    elif KZ: k_gemm(k, c, 16, 14, 2, 2, 7, 128, 128, 2 if env('H22', 0) else 4, 2 if env('H22', 0) else 1, 2048, 64, 3, ('rm', 'w_sp', 4096), ('z', WS_Z2N, 1792), preK, pre2K, epiK, pf='w_out', wait=wait, sig=sig, dep='Y', GU=2, RWD=2, frbase=ZKEEP + 32, own='s_lshl_b32 s68, s30, 1')
    else: k_gemm(k, c, 16, 14, 2, 2, 7, 128, 128, 2, 2, 2048, 64, 3, ('rm', 'w_sp', 4096), ('z', WS_Z2N, 1792), pre, pre2, epi, pf='w_out', wait=wait, sig=sig, dep='Y', GU=2, RWD=2, own='s_lshl_b32 s68, s30, 1')

def k_attn(k, c):
    NS = 4; STG = 32768; NST = 8
    phase_begin(k, c)
    SA, SB, O, NEGM = 8, 24, 40, 56
    L, ONES, Q, KF, VF, P = 72, 76, 80, 88, 96, 104
    A0 = 112; AC = 113; AO = 114; M = 115; T = 116; T2 = 117; PFA = 118; MA = 119; PFD = 120; MT = 124
    assert c.nxt == 'wo'
    k.e("""
    v_and_b32 v1, 63, v0
    s_mov_b32 s46, s3
    s_and_b32 s47, s2, 7
    s_lshr_b32 s48, s2, 3
    s_lshl_b32 s30, s47, 2
    s_lshr_b32 s49, s48, 3
    s_add_u32 s30, s30, s49            ; head
    s_and_b32 s31, s48, 7              ; q block (256 rows)
    v_lshlrev_b32 v%d, 4, v1
    s_lshl_b32 s50, s31, 3
    s_add_u32 s50, s50, s46            ; rb of this wave's queries
    s_lshl_b32 s51, s30, 6
    s_add_u32 s51, s51, s50
    s_lshl_b32 s51, s51, 11            ; Q offset
    s_lshl_b32 s52, s30, 18            ; KV head base
    s_lshl_b32 s53, s46, 12            ; wave part (4KB = one tile)
    s_lshl_b32 s62, s2, 13
    v_lshl_add_u32 v%d, v0, 4, s62     ; prefetch offset wg*8K + tid*16
    s_mov_b32 s62, %d
    s_waitcnt lgkmcnt(0)
    """ % (A0, PFA, 0x40000000 if env('PFOFF', 0) else 0))
    mark(k, 0)
    srd(k, 36, 'ws', WS_KV, 256 * KB, soff='s52'); srd(k, 32, 'ws', WS_Q, 4 * MB)
    set_flag(k, 's_lshl_b32 s100, s31, 8\ns_lshl_b32 s101, s30, 2\ns_add_u32 s100, s100, s101\ns_add_u32 s100, s100, %d' % FL_ATT)
    handoff(k, 's_lshr_b32 s100, s30, 1\ns_lshl_b32 s100, s100, 8\ns_add_u32 s100, s100, %d' % FL_QKV, 64, role='A')
    def dma(slot_expr):
        return ['s_add_u32 m0, s53, %s' % slot_expr] + \
               ['buffer_load_dwordx4 v%d, s[36:39], s56 offen offset:%d sc1 lds' % (A0, q * 1024) for q in range(4)] + \
               ['s_add_u32 s56, s56, %d' % STG]
    def pfl(n): return 'buffer_load_dwordx4 %s, v%d, %s, s62 offen' % (vr(PFD, 4), PFA, sr(n))
    def emit_dma(slot_expr):
        d = dma(slot_expr); k.e(d[0]); k.e('s_nop 0')
        for x in d[1:]: k.e(x)
    AST = env('AST', 1)
    if AST:
        k.e('s_lshl_b32 s56, s46, 10')
        k.e('s_mov_b32 m0, s56')
        k.e('s_mul_i32 s58, s46, 3072')
        k.e('buffer_load_dwordx4 v%d, s[36:39], s56 offen sc1 lds' % A0)
    else:
        k.e('s_mov_b32 s56, s53')
        emit_dma('0')
    k.e('buffer_load_dwordx4 %s, v%d, s[32:35], s51 offen sc1' % (vr(Q, 4), A0))
    k.e('buffer_load_dwordx4 %s, v%d, s[32:35], s51 offen offset:1024 sc1' % (vr(Q + 4, 4), A0))
    if AST:
        k.e('s_add_u32 s56, s58, 8192')
        k.e('s_mov_b32 m0, s56')
        k.e('s_nop 0')
        for q in range(3): k.e('buffer_load_dwordx4 v%d, s[36:39], s56 offen offset:%d sc1 lds' % (A0, q * 1024))
        k.e('s_add_u32 s56, s53, %d' % STG)
        emit_dma(str(STG))
    srd(k, 64, 'w_in'); srd(k, 68, 'w_sp'); srd(k, 32, 'wo')
    srd(k, 40, 'ws', WS_O, 4 * MB)
    k.e("""
    s_lshl_b32 s54, s50, 16
    s_lshl_b32 s55, s30, 11
    s_add_u32 s54, s54, s55            ; O offset
    v_and_b32 v3, 3, v1
    v_bfe_u32 v4, v1, 2, 1
    v_bfe_u32 v5, v1, 4, 1
    v_xor_b32 v4, v4, v5
    v_or_b32 v3, v3, v4
    v_cmp_eq_u32 vcc, 0, v3
    v_mov_b32 v4, 0x3f803f80
    s_nop 1
    v_cndmask_b32 v%d, 0, v4, vcc
    v_mov_b32 v%d, v%d
    v_mov_b32 v%d, v%d
    v_mov_b32 v%d, v%d
    """ % (ONES, ONES + 1, ONES, ONES + 2, ONES, ONES + 3, ONES))
    def adr(t): return (AC if t < 16 else AO), (t % 16) * 4096
    def rdK(t):
        a, o = adr(t)
        return ['ds_read_b128 %s, v%d offset:%d' % (vr(KF, 4), a, o), 'ds_read_b128 %s, v%d offset:%d' % (vr(KF + 4, 4), a, o + 1024)]
    def rdV(t):
        a, o = adr(t)
        return ['ds_read_b128 %s, v%d offset:%d' % (vr(VF, 4), a, o + 2048), 'ds_read_b128 %s, v%d offset:%d' % (vr(VF + 4, 4), a, o + 3072)]
    def qk(S, c):
        return ['v_mfma_f32_32x32x16_bf16 %s, %s, %s, %s' % (vr(S, 16), vr(KF, 4), vr(Q, 4), c),
                'v_mfma_f32_32x32x16_bf16 %s, %s, %s, %s' % (vr(S, 16), vr(KF + 4, 4), vr(Q + 4, 4), vr(S, 16))]
    def maxtile(S, first):
        st = 0
        if first:
            k.e('v_max3_f32 v%d, v%d, v%d, v%d' % (M, S, S + 1, S + 2))
            k.e('v_max_f32 v%d, v%d, v%d' % (M, M, S + 3))
            st = 4
        for r in range(st, 16, 2): k.e('v_max3_f32 v%d, v%d, v%d, v%d' % (M, M, S + r, S + r + 1))
    def set_negm(bias):
        k.e('v_mov_b32 v%d, v%d' % (T, M))
        k.e('s_nop 1')
        k.e('v_permlane32_swap_b32 v%d, v%d' % (M, T))
        k.e('s_nop 1')
        k.e('v_max_f32 v%d, v%d, v%d' % (M, M, T))
        k.e('v_sub_f32 v%d, %s, v%d' % (NEGM, hx(-bias), M))
        for r in range(1, 16): k.e('v_mov_b32 v%d, v%d' % (NEGM + r, NEGM))
    def zero_state():
        for r in range(16): k.e('v_mov_b32 v%d, 0' % (O + r))
        for r in range(4):
            k.e('v_mov_b32 v%d, 0' % (L + r))
            k.e('v_mov_b32 v%d, 0' % (P + 4 + r))
            k.e('v_mov_b32 v%d, 0' % (VF + 4 + r))
        k.e('v_mov_b32 v%d, v%d' % (AC, A0))
        k.e('v_add_u32 v%d, 0x10000, v%d' % (AO, A0))
        k.e('s_mov_b32 s57, 0')
    zero_state()
    if not MP0: srd(k, 80, 'ws', 0, 256 * KB)
    if not MP0: k.e("""
    s_and_b32 s49, s2, 3               ; k quarter
    s_lshl_b32 s49, s49, 3
    s_add_u32 s49, s49, s46            ; 32-row group
    s_mul_i32 s60, s49, %d
    s_lshr_b32 s63, s2, 2              ; col block
    s_lshl_b32 s63, s63, 7
    s_add_u32 s60, s60, s63
    s_add_u32 s60, s60, 4096
    s_add_u32 s61, s60, 12288
    s_and_b32 s49, s2, 3
    s_lshl_b32 s49, s49, 2
    s_and_b32 s63, s46, 3
    s_add_u32 s49, s49, s63
    s_lshl_b32 s49, s49, 8             ; silu offset of row groups 2(w&3), +1
    s_add_u32 s49, s49, %d
    v_lshrrev_b32 v%d, 3, v1
    v_mul_u32_u24 v%d, %d, v%d
    v_and_b32 v%d, 7, v1
    v_lshl_add_u32 v%d, v%d, 4, v%d
    v_lshlrev_b32 v%d, 4, v%d
    """ % (32 * 12288, WS_SC, MT, MA, 4 * 12288, MT, MT + 1, MA, MT + 1, MA, MT, MT))
    def mld(j): return ['s_add_u32 m0, s53, %d' % (AUX_A + j * 1024), 'buffer_load_dwordx4 v%d, s[80:83], s%d offen lds' % (MA, (60, 61, 63, 49)[j])]
    k.e('s_waitcnt vmcnt(%d)' % (7 if AST else 0))
    k.e('s_barrier')
    mark(k, 1)
    for r in rdK(1): k.e(r)
    k.e('s_waitcnt lgkmcnt(0)')
    for m in qk(SB, '0'): k.e(m)
    for r in rdK(0): k.e(r)
    k.e('s_waitcnt lgkmcnt(0)')
    for m in qk(SA, '0'): k.e(m)
    def extras():
        if MP0: return
        k.e(pfl(32))
        k.e('buffer_load_dwordx4 %s, v%d, s[80:83], s49 offen' % (vr(MSV, 4), MT))
        k.e('buffer_load_dwordx4 %s, v%d, s[80:83], s49 offen offset:128' % (vr(MSV + 4, 4), MT))
        srd(k, 80, 'w_mod')
        k.e('s_mov_b32 s49, 0x40000000')
        k.e('s_mov_b32 s63, 0x40000000')
    if AST: k.e('s_nop 7')
    else:
        emit_dma(str(STG)); extras()
    maxtile(SB, True)
    maxtile(SA, False)
    set_negm(40.0)
    if AST:
        k.e('s_waitcnt vmcnt(4)')
        k.e('s_barrier')
        extras()
    mark(k, 2)
    if env('APRIO', 0):
        k.e('s_cmp_ge_u32 s46, 4')
        k.e('s_cbranch_scc0 L_attn_noprio')
        k.e('s_setprio 1')
        k.label('L_attn_noprio')
    k.e('s_mov_b32 s59, %d' % (NST // 2))
    k.e('s_nop 0')
    for m in qk(SA, vr(NEGM, 16)): k.e(m)
    k.e(rdK(1)[0])
    k.e('ds_read_b32 v%d, v%d' % (T, A0))
    k.e(rdK(1)[1])
    k.e(rdV(0)[0])
    k.e('s_nop 7')
    lp = 'L_attn_loop'
    def pv(h): return 'v_mfma_f32_32x32x16_bf16 %s, %s, %s, %s' % (vr(O, 16), vr(VF + 4 * h, 4), vr(P + 4 * h, 4), vr(O, 16))
    def ls(h): return 'v_mfma_f32_16x16x32_bf16 %s, %s, %s, %s' % (vr(L, 4), vr(ONES, 4), vr(P + 4 * h, 4), vr(L, 4))
    def iteration(nsoft, pat0):
        for t in range(16):
            cur, nxt = (SA, SB) if t % 2 == 0 else (SB, SA)
            m_qk = qk(nxt, vr(NEGM, 16))
            kn = rdK(t + 2); v0n = rdV(t + 1)[0]; v1n = rdV(t)[1]
            ex = ['v_exp_f32 v%d, v%d' % (cur + r, cur + r) for r in range(16)]
            cv = ['v_cvt_pk_bf16_f32 v%d, v%d, v%d' % (P + d, cur + 2 * d, cur + 2 * d + 1) for d in range(8)]
            W = 's_waitcnt lgkmcnt(2)'
            head = []; xs = []
            if t % 8 == 6: head = ['s_waitcnt vmcnt(%d)' % (9 if not MP0 else (6 if t == 6 else 7)), 's_barrier']
            if t == 14 and not c.last and not nsoft: head = ['s_cmp_eq_u32 s59, 1', 's_cbranch_scc0 L_attn_nd', 's_waitcnt vmcnt(0)', 'L_attn_nd:'] + head
            d = dma('s58')
            if t % 8 == 0: xs = ['s_xor_b32 s58, s57, 0x%x' % (0x10000 if t == 0 else 0x18000), d[0], d[1]]
            elif t % 8 < 3: xs = [d[1 + t % 8]]
            elif t % 8 == 3: xs = [d[4], d[5]]
            elif t == 4: xs = [pfl(64)]
            elif t == 5: xs = [pfl(68)]
            elif MP0 and t == 7: xs = [pfl(32)]
            elif MP0 and t == 12: xs = ['s_add_u32 s62, s62, %d' % (2 * MB)]
            elif MP0 and t == 13: xs = []
            elif MP0 and t == 15: xs = ['s_xor_b32 s57, s57, 0x10000']
            elif t == 7: xs = mld(0)
            elif t == 12: xs = ['s_add_u32 s62, s62, %d' % (2 * MB)] + mld(2)
            elif t == 13: xs = mld(1)
            elif t == 15: xs = ['s_xor_b32 s57, s57, 0x10000'] + mld(3) + ['s_add_u32 s63, s60, %d' % (2 * 12288), 's_add_u32 s49, s60, %d' % (3 * 12288)]
            tail = ['v_swap_b32 v%d, v%d' % (AC, AO), 's_sub_u32 s59, s59, 1', 's_cmp_lg_u32 s59, 0'] if t == 15 else []
            pat = pat0 if t < nsoft else os.environ.get('APAT', 'eeeQeeePeeccLcc')
            body = []
            for hh in range(2):
                ei = 8 * hh; ci = 4 * hh
                for ch in pat:
                    if ch == 'e': body.append(ex[ei]); ei += 1
                    elif ch == 'c': body.append(cv[ci]); ci += 1
                    elif ch == 'Q': body += [W, m_qk[hh], kn[hh]]
                    elif ch == 'P': body += [pv(1 - hh), v1n if hh == 0 else v0n]
                    elif ch == 'L': body.append(ls(1 - hh))
                assert ei == 8 * hh + 8 and ci == 4 * hh + 4
            if tail:
                last_ds = max(i for i, x in enumerate(body) if x.startswith('ds_') or x.startswith('v_exp'))
                body = body[:last_ds + 1] + tail + body[last_ds + 1:]
            iq = max(i for i, x in enumerate(body) if x == m_qk[1])
            first_e = min(i for i, x in enumerate(body) if x.startswith('v_exp'))
            assert len(body) - 1 - iq + first_e >= 12, 'qk->exp distance'
            seq = list(head)
            for x in body:
                seq.append(x)
                if xs and x.startswith('v_exp'): seq.append(xs.pop(0))
            assert not xs
            AX = os.environ.get('AX', '')
            if 'p' in AX: seq = [x for x in seq if 's62 offen' not in x]
            for x in seq: k.e(x)
    if env('ASOFT', 0): iteration(env('ASOFT', 0), os.environ.get('APAT0', 'eQPLeeeeeeecccc'))
    k.label(lp)
    iteration(0, None)
    k.e('s_cbranch_scc1 %s' % lp)
    k.label('L_attn_epi')
    mark(k, 3)
    k.e('s_waitcnt lgkmcnt(0)')
    k.e(pv(1)); k.e(ls(1))
    k.e('s_nop 15')
    lstore = 'L_attn_store'; lsafe = 'L_attn_safe'
    k.e('v_max3_f32 v%d, |v%d|, |v%d|, |v%d|' % (T, O, O + 1, L))
    for r in range(2, 16, 2): k.e('v_max3_f32 v%d, |v%d|, |v%d|, v%d' % (T, O + r, O + r + 1, T))
    k.e('v_mul_f32 v%d, 0, v%d' % (T2, L))
    for r in range(16): k.e('v_fma_f32 v%d, 0, v%d, v%d' % (T2, O + r, T2))
    k.e('v_add_f32 v%d, v%d, v%d' % (T, T, T2))
    k.e('v_mov_b32 v3, %s' % hx(2.0 ** 120))
    k.e('v_cmp_nlt_f32 vcc, v%d, v3' % T)
    k.e('s_nop 4')
    k.e('s_cbranch_vccnz %s' % lsafe)
    k.label(lstore)
    k.e('v_rcp_f32 v%d, v%d' % (T, L))
    k.e('s_nop 0')
    for r in range(16): k.e('v_mul_f32 v%d, v%d, v%d' % (O + r, O + r, T))
    for d in range(8): k.e('v_cvt_pk_bf16_f32 v%d, v%d, v%d' % (P + d, O + 2 * d, O + 2 * d + 1))
    k.e('buffer_store_dwordx4 %s, v%d, s[40:43], s54 offen%s' % (vr(P, 4), A0, WT))
    k.e('buffer_store_dwordx4 %s, v%d, s[40:43], s54 offen offset:1024%s' % (vr(P + 4, 4), A0, WT))
    signal(k, 'S')
    endpgm(k)
    k.label(lsafe)
    def gl(dst, off): return 'buffer_load_dwordx4 %s, v%d, s[36:39], s56 offen offset:%d sc1' % (vr(dst, 4), A0, off)
    k.e('s_waitcnt vmcnt(0)')
    k.e('s_mov_b32 s56, 0')
    k.e('v_mov_b32 v%d, 0xff800000' % M)
    k.label(lsafe + '1')
    k.e(gl(KF, 0)); k.e(gl(KF + 4, 1024))
    k.e('s_waitcnt vmcnt(0)')
    for m in qk(SA, '0'): k.e(m)
    k.e('s_nop 15')
    maxtile(SA, False)
    k.e('s_add_u32 s56, s56, 4096')
    k.e('s_cmp_lt_u32 s56, %d' % (256 * KB))
    k.e('s_cbranch_scc1 %s1' % lsafe)
    set_negm(0.0)
    zero_state()
    k.e('s_mov_b32 s56, 0')
    k.label(lsafe + '2')
    k.e(gl(KF, 0)); k.e(gl(KF + 4, 1024)); k.e(gl(VF, 2048)); k.e(gl(VF + 4, 3072))
    k.e('s_waitcnt vmcnt(0)')
    for m in qk(SA, vr(NEGM, 16)): k.e(m)
    k.e('s_nop 15')
    for r in range(16): k.e('v_exp_f32 v%d, v%d' % (SA + r, SA + r))
    k.e('s_nop 0')
    for d in range(8): k.e('v_cvt_pk_bf16_f32 v%d, v%d, v%d' % (P + d, SA + 2 * d, SA + 2 * d + 1))
    k.e('s_nop 1')
    k.e(pv(0)); k.e(ls(0)); k.e(pv(1)); k.e(ls(1))
    k.e('s_add_u32 s56, s56, 4096')
    k.e('s_nop 7')
    k.e('s_cmp_lt_u32 s56, %d' % (256 * KB))
    k.e('s_cbranch_scc1 %s2' % lsafe)
    k.e('s_nop 15')
    k.e('s_branch %s' % lstore)
    k.need(MSV + 8, 160 * KB)

def k_attn2(k, c):
    phase_begin(k, c)
    assert c.prev == 'qkv' and c.nxt == 'wo' and not (MP0 and AOWN != 3)
    S2 = (8, 24); O2 = (40, 56); N2 = (72, 88); L2 = (104, 108); Q2 = (112, 120)
    ONES, KF, VF, P = 128, 132, 140, 148
    A0 = 156; AR = 157; M = 158; T = 159; T2 = 160; PFA = 161; MA = 162; MT = 164; PFD = 168
    k.e("""
    v_and_b32 v1, 63, v0
    s_mov_b32 s46, s3
    s_and_b32 s47, s3, 1               ; wn
    s_bfe_u32 s48, s3, 0x10001         ; wm
    s_lshr_b32 s49, s3, 2              ; kh
    s_lshl_b32 s50, s31, 1
    s_add_u32 s50, s50, s47            ; head
    s_lshl_b32 s52, s50, 18
    s_lshl_b32 s51, s49, 17
    s_add_u32 s51, s51, s52            ; stream base in KV
    s_lshl_b32 s55, s49, 1
    s_add_u32 s55, s55, s47
    s_lshl_b32 s55, s55, 15            ; stream ring base in LDS
    s_lshl_b32 s56, s48, 12            ; next global offset: own tile of stage 0
    s_add_u32 s57, s55, s56            ; LDS address of own tile in slot 0
    s_lshl_b32 s53, s3, 12             ; wave*4KB (mod slice staging)
    v_lshlrev_b32 v%d, 4, v1
    v_add_u32 v%d, s55, v%d
    s_lshl_b32 s54, s30, 2
    s_lshl_b32 s58, s48, 1
    s_add_u32 s54, s54, s58
    s_add_u32 s54, s54, s49            ; rb of the tile this wave finalises
    s_lshl_b32 s54, s54, 16
    s_lshl_b32 s58, s50, 11
    s_add_u32 s54, s54, s58            ; O offset
    s_lshl_b32 s62, s2, 13
    v_lshl_add_u32 v%d, v0, 4, s62     ; prefetch offset wg*8K + tid*16
    s_mov_b32 s62, 0
    v_and_b32 v3, 3, v1
    v_bfe_u32 v4, v1, 2, 1
    v_bfe_u32 v5, v1, 4, 1
    v_xor_b32 v4, v4, v5
    v_or_b32 v3, v3, v4
    v_cmp_eq_u32 vcc, 0, v3
    v_mov_b32 v4, 0x3f803f80
    s_nop 1
    v_cndmask_b32 v%d, 0, v4, vcc
    v_mov_b32 v%d, v%d
    v_mov_b32 v%d, v%d
    v_mov_b32 v%d, v%d
    """ % (A0, AR, A0, PFA, ONES, ONES + 1, ONES, ONES + 2, ONES, ONES + 3, ONES))
    mark(k, 0)
    if AOWN:
        srd(k, 36, 'ws', WS_KV, 256 * KB, soff='s52')
        k.e('''
        s_mov_b32 s86, s87                 ; qkv flag the compute waves still have to publish
        s_lshl_b32 s51, s30, 14
        s_add_u32 s51, s51, s56            ; offset of the own pairs (skipped in the stream)
        s_mul_i32 s58, s49, %d
        s_add_u32 s56, s56, s58
        s_cmp_ge_u32 s56, s51
        s_cselect_b32 s58, 16384, 0
        s_add_u32 s56, s56, s58
        ''' % (15 * 8192))
    else: srd(k, 36, 'ws', WS_KV, 128 * KB, soff='s51')
    srd(k, 80, 'ws', 0, 256 * KB)
    srd(k, 64, 'w_in'); srd(k, 68, 'w_sp'); srd(k, 32, 'wo')
    for r in range(16):
        k.e('v_mov_b32 v%d, 0' % (O2[0] + r)); k.e('v_mov_b32 v%d, 0' % (O2[1] + r))
    for r in range(4):
        for b in (L2[0], L2[1], P + 4, VF + 4): k.e('v_mov_b32 v%d, 0' % (b + r))
    k.e("""
    s_and_b32 s58, s2, 3               ; k quarter
    s_lshl_b32 s58, s58, 3
    s_add_u32 s58, s58, s46            ; 32-row group
    s_mul_i32 s60, s58, %d
    s_lshr_b32 s63, s2, 2              ; col block
    s_lshl_b32 s63, s63, 7
    s_add_u32 s60, s60, s63
    s_add_u32 s60, s60, 4096
    s_add_u32 s61, s60, 12288
    s_and_b32 s44, s2, 3
    s_lshl_b32 s44, s44, 2
    s_and_b32 s63, s46, 3
    s_add_u32 s44, s44, s63
    s_lshl_b32 s44, s44, 8             ; silu offset of row groups 2(w&3), +1
    s_add_u32 s44, s44, %d
    v_lshrrev_b32 v%d, 3, v1
    v_mul_u32_u24 v%d, %d, v%d
    v_and_b32 v%d, 7, v1
    v_lshl_add_u32 v%d, v%d, 4, v%d
    v_lshlrev_b32 v%d, 4, v%d
    ; Q / stand-in exchange area: tile A of this wave = tile kh
    s_and_b32 s58, s3, 3
    s_mul_i32 s58, s58, 5120
    s_add_u32 s58, s58, %d
    s_lshl_b32 s63, s49, 11
    s_add_u32 s63, s63, s58
    v_add_u32 v2, s63, v%d             ; Q of tile kh
    v_xor_b32 v3, 1, v2
    s_xor_b32 s63, s49, 1
    s_lshl_b32 s63, s63, 11
    s_add_u32 s63, s63, s58
    v_add_u32 v3, s63, v%d             ; Q of the other tile
    s_lshl_b32 s63, s49, 2
    s_add_u32 s63, s63, s58
    v_lshl_add_u32 v4, v1, 3, s63
    v_xor_b32 v5, 4, v4
    """ % (32 * 12288, WS_SC, MT, MA, 4 * 12288, MT, MT + 1, MA, MT + 1, MA, MT, MT, AUX_A, A0, A0))
    set_flag(k, 's_lshl_b32 s100, s30, 8\ns_lshl_b32 s101, s31, 2\ns_add_u32 s100, s100, s101\ns_add_u32 s100, s100, %d' % FL_ATT)
    def hand(): handoff(k, 's_lshl_b32 s100, s31, 8\ns_add_u32 s100, s100, %d' % FL_QKV, 64, role='A')
    if AOWN: k.e('s_barrier')
    else: hand()
    def dma(slot):
        return ['s_add_u32 m0, s57, %d' % (slot * 8192)] + \
               ['buffer_load_dwordx4 v%d, s[36:39], s56 offen offset:%d sc1 lds' % (A0, q * 1024) for q in range(4)] + \
               ['s_add_u32 s56, s56, 8192' + ('\ns_cmp_eq_u32 s56, s51\ns_cselect_b32 s58, 16384, 0\ns_add_u32 s56, s56, s58' if AOWN else '')]
    def emit_dma(slot):
        d = dma(slot); k.e(d[0]); k.e('s_nop 0')
        for x in d[1:]: k.e(x)
    def pfl(n): return 'buffer_load_dwordx4 %s, v%d, %s, s62 offen' % (vr(PFD, 4), PFA, sr(n))
    def mld(j): return [] if MP0 else ['s_add_u32 m0, s53, %d' % (AUX_A + j * 1024), 'buffer_load_dwordx4 v%d, s[80:83], s%d offen lds' % (MA, (60, 61, 63, 45)[j])]
    if not AOWN: emit_dma(0); emit_dma(1)
    for q in range(2):
        k.e('ds_read_b128 %s, v%d' % (vr(Q2[q], 4), 2 + q))
        k.e('ds_read_b128 %s, v%d offset:1024' % (vr(Q2[q] + 4, 4), 2 + q))
        k.e('ds_read_b32 v%d, v%d offset:4096' % (N2[q], 4 + q))
    k.e('s_waitcnt lgkmcnt(0)')
    for r in range(1, 16):
        for q in range(2): k.e('v_mov_b32 v%d, v%d' % (N2[q] + r, N2[q]))
    if not AOWN:
        k.e('s_waitcnt vmcnt(4)')
        k.e('s_barrier')
        mark(k, 1)
    def rd(dst, t, part): return 'ds_read_b128 %s, v%d offset:%d' % (vr(dst, 4), AR, (t % 8) * 4096 + part * 1024)
    def qk(q, hh, c0=None):
        S_ = S2[q]
        return 'v_mfma_f32_32x32x16_bf16 %s, %s, %s, %s' % (vr(S_, 16), vr(KF + 4 * hh, 4), vr(Q2[q] + 4 * hh, 4), (c0 or vr(N2[q], 16)) if hh == 0 else vr(S_, 16))
    def pv(q, h): return 'v_mfma_f32_32x32x16_bf16 %s, %s, %s, %s' % (vr(O2[q], 16), vr(VF + 4 * h, 4), vr(P + 4 * h, 4), vr(O2[q], 16))
    def ls(q, h): return 'v_mfma_f32_16x16x32_bf16 %s, %s, %s, %s' % (vr(L2[q], 4), vr(ONES, 4), vr(P + 4 * h, 4), vr(L2[q], 4))
    k.e(rd(KF, 0, 0)); k.e(rd(KF + 4, 0, 1)); k.e(rd(VF, 0, 2))
    def silu_loads():
        if MP0: return
        k.e('buffer_load_dwordx4 %s, v%d, s[80:83], s44 offen sc1' % (vr(MSV, 4), MT))
        k.e('buffer_load_dwordx4 %s, v%d, s[80:83], s44 offen offset:128 sc1' % (vr(MSV + 4, 4), MT))
    def wmod():
        if MP0: return
        srd(k, 80, 'w_mod')
        k.e('s_add_u32 s63, s60, %d' % (2 * 12288))
        k.e('s_add_u32 s45, s60, %d' % (3 * 12288))
    if not AOWN: silu_loads()
    k.e('s_waitcnt lgkmcnt(1)')
    k.e(qk(0, 0)); k.e(qk(0, 1))
    if AOWN: k.e('s_nop 11')
    else:
        emit_dma(2); wmod()
    OD = env('OD', 0) and AOWN == 3
    ool = []
    NOFIRST = MP0 and AOWN == 3 and not env('ASOFT', 0) and not OD and env('LASTB', 1) and env('NOFIRST', 0)
    def late_start():
        if AOWN == 1:
            l = k.newlabel('ls')
            k.e('s_cmp_lt_u32 s3, 4'); k.e('s_cbranch_scc1 %s' % l)
            flag_prep(k)
            k.e('s_and_b32 s100, s3, 3\ns_lshl_b32 s100, s100, 7\ns_add_u32 s100, s100, s86')
            k.e('s_waitcnt vmcnt(0)')
            flag_store(k, 's100')
            k.label(l)
        hand()
        mark(k, 1)
        if OD:
            emit_dma(1); silu_loads(); wmod()
            k.e('''
            s_lshl_b32 s43, s48, 12
            s_add_u32 s43, s43, %d
            s_cmp_ge_u32 s43, s51
            s_cselect_b32 s58, 16384, 0
            s_add_u32 s43, s43, s58
            s_cmp_lt_u32 s3, 4
            s_cselect_b64 vcc, -1, 0
            s_cbranch_scc0 L_attn_np
            s_setprio 1
            L_attn_np:
            ''' % (16 * 8192))
        else:
            emit_dma(1); silu_loads()
            if NOFIRST: k.e(pfl(32))
            emit_dma(2); wmod()
    k.e('s_mov_b32 s59, %d' % (3 if env('LASTB', 1) and not OD else 4))
    mark(k, 2)
    lp = 'L_attn_loop'
    LASTB = env('LASTB', 1) and not OD
    def iteration(first, nsoft, pat0, last=False):
        for u in range(16):
            t = u // 2; q = u % 2; st = u // 4; us = u % 4
            cur = S2[q]
            ex = ['v_exp_f32 v%d, v%d' % (cur + r, cur + r) for r in range(16)]
            cv = ['v_cvt_pk_bf16_f32 v%d, v%d, v%d' % (P + d, cur + 2 * d, cur + 2 * d + 1) for d in range(8)]
            if q == 0:
                Qs = [[qk(1, 0), rd(KF, t + 1, 0)], [qk(1, 1), rd(KF + 4, t + 1, 1)]]
                Ps = [[pv(1, 1), rd(VF + 4, t, 3)], ['WAITV', pv(0, 0)]]
            else:
                Qs = [['s_waitcnt lgkmcnt(0)', qk(0, 0)], [qk(0, 1)]]
                Ps = [[pv(0, 1)], [pv(1, 0), rd(VF, t + 1, 2)]]
            Ls = [ls(1 - q, 1), ls(q, 0)]
            peel = first and AOWN == 4 and u in (2, 3)
            if peel and u == 2:
                Qs = [[qk(1, 0)], [qk(1, 1)]]; Ps = [[pv(1, 1), rd(VF + 4, t, 3)], ['s_waitcnt lgkmcnt(1)', pv(0, 0)]]
            if peel and u == 3:
                Qs = [['s_waitcnt lgkmcnt(0)'], ['s_nop 0']]; Ps = [[pv(0, 1)], [pv(1, 0)]]
            inc = ['s_add_u32 s62, s62, %d' % (2 * MB)]
            NOPF = env('NOPF', 0)
            if first and AOWN: extra = [[], [], mld(0) + [pfl(32)], [pfl(64)], mld(1), mld(2), mld(3), [pfl(68)] + inc]
            elif first: extra = [[], [pfl(32)], mld(0), [pfl(64)], mld(1), mld(2), mld(3), [pfl(68)] + inc]
            else: extra = [[], [], [pfl(64)], [], [], [], [pfl(68)] + inc, []]
            if NOPF: extra = [[y for y in x if 's62' not in y] for x in extra]
            cnt = lambda e: [sum('buffer_load' in y for y in e[2 * i] + e[2 * i + 1]) for i in range(4)]
            nx_ = cnt(extra)
            prevx = ((0 if MP0 else 2) if first else nx_[3]) if st == 0 else nx_[st - 1]
            head = ['s_waitcnt vmcnt(%d)' % (prevx + 4 + nx_[st]), 's_barrier'] if us == 2 else []
            if last and us == 2 and st >= 2: head = (['s_waitcnt vmcnt(%d)' % (prevx + nx_[st])] if st == 2 else []) + ['s_barrier']
            if peel: head = []
            d = dma((st + 3) % 4)
            if OD and us == 2:
                lb = 'L_attn_fd%d_%d' % (first, st)
                d0 = dma((st + 2) % 4)
                d1 = [x.replace('s56', 's43').replace('s57, %d' % (((st + 2) % 4) * 8192), 's57, %d' % (((st + 2) % 4) * 8192 + 65536)) for x in d0]
                nw = 8 + nx_[st] + (2 if first and st == 0 else 0)
                ool.append([lb + ':', d0[0], 's_nop 0'] + d0[1:5] + [d1[0], 's_nop 0'] + d1[1:5] + [d0[5], d1[5], 's_waitcnt vmcnt(%d)' % nw, 's_branch %sr' % lb])
                head = ['s_cbranch_vccnz %s' % lb] + (['s_waitcnt vmcnt(2)'] if first and st == 0 else []) + [lb + 'r:', 's_barrier']
            if (OD or (last and st >= 1)) and us >= 2: xs = []
            elif us == 2: xs = [d[0], d[1], None, None, None, None, None, None, None, d[2]]
            elif us == 3: xs = [d[3], None, None, None, None, None, None, None, d[4], d[5]]
            else: xs = list(extra[2 * st + us])
            pat = pat0 if u < nsoft else os.environ.get('APAT', 'eeeQeeePeeccLcc')
            assert pat.index('Q') < pat.index('P')
            body = []
            for hh in range(2):
                ei = 8 * hh; ci = 4 * hh
                for ch in pat:
                    if ch == 'e': body.append(ex[ei]); ei += 1
                    elif ch == 'c': body.append(cv[ci]); ci += 1
                    elif ch == 'Q': body += Qs[hh]
                    elif ch == 'P': body += Ps[hh]
                    elif ch == 'L': body.append(Ls[hh])
            body = ['s_waitcnt lgkmcnt(3)' if x == 'WAITV' else x for x in body]
            if u == 15 and not last:
                le = max(i for i, x in enumerate(body) if x.startswith('v_exp'))
                body = body[:le + 1] + ['s_sub_u32 s59, s59, 1', 's_cmp_lg_u32 s59, 0'] + body[le + 1:]
            if peel and u == 3:
                body += ['s_waitcnt vmcnt(10)', 's_barrier', rd(KF, 2, 0), rd(KF + 4, 2, 1), rd(VF, 2, 2), 's_waitcnt lgkmcnt(1)', qk(0, 0), qk(0, 1)]
            iq = body.index(qk(1 - q, 1))
            first_e = min(i for i, x in enumerate(body) if x.startswith('v_exp'))
            gap = len(body) - 1 - iq + first_e
            if gap < 12: body.append('s_nop %d' % (11 - gap))
            if first and AOWN and u == (0 if AOWN == 3 else 2): late_start()
            seq = list(head)
            for x in body:
                seq.append(x)
                if xs and x.startswith('v_exp'):
                    y = xs.pop(0)
                    if y: seq.append(y)
            assert not xs
            AX = os.environ.get('AX', '')
            if 'b' in AX: seq = [x for x in seq if x != 's_barrier']
            if 'p' in AX: seq = [x for x in seq if 's62 offen' not in x and 's[80:83]' not in x]
            if 'v' in AX: seq = [x for x in seq if 'buffer_load' not in x]
            if 'd' in AX: seq = [x for x in seq if not x.startswith('ds_read') and 'lgkmcnt' not in x]
            if 'l' in AX: seq = [x for x in seq if '16x16x32' not in x]
            for x in seq: k.e(x)
    if NOFIRST: late_start()
    else: iteration(True, env('ASOFT', 0), os.environ.get('APAT0', 'eQPLeeeeeeecccc'))
    k.label(lp)
    iteration(False, 0, None)
    k.e('s_cbranch_scc1 %s' % lp)
    if LASTB:
        if CPF >= 2:
            l = k.newlabel('ct')
            k.e('s_cmp_lg_u32 s3, 0'); k.e('s_cbranch_scc1 %s' % l)
            k.e('s_mov_b64 s[60:61], s[64:65]')
            code_touch(k, 'L_attn_epi', 'L_text_end', '0', 172)
            k.e('s_mov_b64 s[64:65], s[60:61]')
            k.label(l)
        iteration(False, 0, None, last=True)
        k.e('s_nop 0')
    k.label('L_attn_epi')
    if 'b' in os.environ.get('AX', ''): k.e('s_barrier')
    mark(k, 3)
    k.e('s_nop 0')
    k.e(pv(1, 1)); k.e(ls(1, 1))
    if LASTB:
        k.e("""
        s_lshl_b32 s58, s48, 13
        s_add_u32 s58, s58, s55
        s_add_u32 s58, s58, 8192
        v_add_u32 v2, s58, v%d
        v_lshl_add_u32 v4, v1, 2, s58
        s_xor_b32 s58, s58, 0x10000
        v_add_u32 v3, s58, v%d
        v_lshl_add_u32 v5, v1, 2, s58
        s_nop 3
        """ % (A0, A0))
    else:
        k.e("""
        s_mul_i32 s58, s3, 5120
        v_add_u32 v2, s58, v%d
        v_lshl_add_u32 v4, v1, 2, s58
        s_xor_b32 s58, s3, 4
        s_mul_i32 s58, s58, 5120
        v_add_u32 v3, s58, v%d
        v_lshl_add_u32 v5, v1, 2, s58
        s_waitcnt vmcnt(0) lgkmcnt(0)
        s_barrier
        s_nop 3
        """ % (A0, A0))
    for r in range(4): k.e('ds_write_b128 v2, %s offset:%d' % (vr(O2[1] + 4 * r, 4), r * 1024))
    k.e('ds_write_b32 v4, v%d offset:4096' % L2[1])
    srd(k, 40, 'ws', WS_O, 4 * MB)
    k.e('s_waitcnt lgkmcnt(0)')
    k.e('s_barrier')
    for r in range(4): k.e('ds_read_b128 %s, v3 offset:%d' % (vr(S2[0] + 4 * r, 4), r * 1024))
    k.e('ds_read_b32 v%d, v5 offset:4096' % T)
    k.e('s_waitcnt lgkmcnt(0)')
    O = O2[0]; L = L2[0]; SA = S2[0]; NEGM = N2[0]
    for r in range(0, 16, 2): k.e(pk('add', O + r, O + r, SA + r))
    k.e('v_add_f32 v%d, v%d, v%d' % (L, L, T))
    lstore = 'L_attn_store'; lsafe = 'L_attn_safe'
    k.e('v_max3_f32 v%d, |v%d|, |v%d|, |v%d|' % (T, O, O + 1, L))
    for r in range(2, 16, 2): k.e('v_max3_f32 v%d, |v%d|, |v%d|, v%d' % (T, O + r, O + r + 1, T))
    k.e('v_mul_f32 v%d, 0, v%d' % (T2, L))
    for r in range(16): k.e('v_fma_f32 v%d, 0, v%d, v%d' % (T2, O + r, T2))
    k.e('v_add_f32 v%d, v%d, v%d' % (T, T, T2))
    k.e('v_mov_b32 v3, %s' % hx(2.0 ** 120))
    k.e('v_cmp_nlt_f32 vcc, v%d, v3' % T)
    k.e('s_nop 4')
    k.e('s_cbranch_vccnz %s' % lsafe)
    k.label(lstore)
    k.e('v_rcp_f32 v%d, v%d' % (T2, L))
    k.e('s_nop 0')
    for r in range(0, 16, 2): k.e(pk('mul', O + r, O + r, (T2,)))
    for d in range(8): k.e('v_cvt_pk_bf16_f32 v%d, v%d, v%d' % (P + d, O + 2 * d, O + 2 * d + 1))
    k.e('buffer_store_dwordx4 %s, v%d, s[40:43], s54 offen%s' % (vr(P, 4), A0, WT))
    k.e('buffer_store_dwordx4 %s, v%d, s[40:43], s54 offen offset:1024%s' % (vr(P + 4, 4), A0, WT))
    signal(k, 'S')
    endpgm(k)
    for blk in ool:
        for x in blk: k.e(x)
    k.label(lsafe)
    srd(k, 36, 'ws', WS_KV, 256 * KB, soff='s52')
    def gl(dst, off): return 'buffer_load_dwordx4 %s, v%d, s[36:39], s56 offen offset:%d sc1' % (vr(dst, 4), A0, off)
    k.e('s_mov_b32 s56, 0')
    k.e('v_mov_b32 v%d, 0xff800000' % M)
    k.label(lsafe + '1')
    k.e(gl(KF, 0)); k.e(gl(KF + 4, 1024))
    k.e('s_waitcnt vmcnt(0)')
    k.e(qk(0, 0, '0')); k.e(qk(0, 1))
    k.e('s_nop 15')
    for r in range(0, 16, 2): k.e('v_max3_f32 v%d, v%d, v%d, v%d' % (M, M, SA + r, SA + r + 1))
    k.e('s_add_u32 s56, s56, 4096')
    k.e('s_cmp_lt_u32 s56, %d' % (256 * KB))
    k.e('s_cbranch_scc1 %s1' % lsafe)
    k.e('v_mov_b32 v%d, v%d' % (T, M))
    k.e('s_nop 1')
    k.e('v_permlane32_swap_b32 v%d, v%d' % (M, T))
    k.e('s_nop 1')
    k.e('v_max_f32 v%d, v%d, v%d' % (M, M, T))
    k.e('v_sub_f32 v%d, 0, v%d' % (NEGM, M))
    for r in range(1, 16): k.e('v_mov_b32 v%d, v%d' % (NEGM + r, NEGM))
    for r in range(16): k.e('v_mov_b32 v%d, 0' % (O + r))
    for r in range(4): k.e('v_mov_b32 v%d, 0' % (L + r))
    k.e('s_mov_b32 s56, 0')
    k.label(lsafe + '2')
    k.e(gl(KF, 0)); k.e(gl(KF + 4, 1024)); k.e(gl(VF, 2048)); k.e(gl(VF + 4, 3072))
    k.e('s_waitcnt vmcnt(0)')
    k.e(qk(0, 0)); k.e(qk(0, 1))
    k.e('s_nop 15')
    for r in range(16): k.e('v_exp_f32 v%d, v%d' % (SA + r, SA + r))
    k.e('s_nop 0')
    for d in range(8): k.e('v_cvt_pk_bf16_f32 v%d, v%d, v%d' % (P + d, SA + 2 * d, SA + 2 * d + 1))
    k.e('s_nop 1')
    k.e(pv(0, 0)); k.e(ls(0, 0)); k.e(pv(0, 1)); k.e(ls(0, 1))
    k.e('s_add_u32 s56, s56, 4096')
    k.e('s_nop 7')
    k.e('s_cmp_lt_u32 s56, %d' % (256 * KB))
    k.e('s_cbranch_scc1 %s2' % lsafe)
    k.e('s_nop 15')
    k.e('s_branch %s' % lstore)
    k.need(MSV + 8, 160 * KB)

PHASES = dict(p0=k_p0, qkv=k_qkv, attn=k_attn2 if AT2 else k_attn,
              wo=lambda k, c: k_proj(k, c, 1024, ('xf', WS_O, 1024), 'wo', False),
              win=k_win2 if W22 else k_win, wsp=k_wsp,
              wout=lambda k, c: k_proj(k, c, 1792, ('xf', WS_U2, 1792), 'w_out', True))
GROUPS = [g.split('+') for g in os.environ.get('GRP', 'p0+qkv+attn+wo+win+wsp+wout').split(',')]
def same_kernel(a, b): return any(a in g_ and b in g_ for g_ in GROUPS)
def build():
    ks = []
    for grp in GROUPS:
        k = Kern(grp[0] if len(grp) == 1 else 'm' + grp[0], 256, 1024 if grp[0] == 'pre' else 512, 0)
        prologue(k)
        for i, ph in enumerate(grp):
            c = Ctx(); c.name = ph; c.first = i == 0; c.last = i == len(grp) - 1; c.nxt = None if c.last else grp[i + 1]; c.prev = grp[i - 1] if i else None
            PHASES[ph](k, c)
        k.label(k.endl)
        k.e('s_endpgm')
        assert k.lds <= 160 * KB
        ks.append(k)
    s = '; adaLN + softmax MHA + gMLP block, generated by gen.py (hand-written generator)\n'
    for k in ks: s += k.launch()
    s += '.amdgcn_target "amdgcn-amd-amdhsa--gfx950"\n.text\n'
    for k in ks: s += k.text()
    s += 'L_text_end:\n    s_endpgm\n'
    s += '.section .rodata,"a"\n'
    for k in ks: s += k.desc()
    if len(ks) == 1 and env('SINGLE', 0):
        s = s.replace('; @launch kernel=%s_kernel ' % ks[0].name, '; @launch ')
        s = s.replace(ks[0].name + '_kernel', 'adaLN_cond__softmax_full_mha__mixer_gmlp__prompt_kernel')
    return s

PROMO = ('v_exp_f32', 'v_rcp_f32', 'v_mov_b32', 'v_add_f32', 'v_mul_f32', 'v_sub_f32', 'v_max_f32', 'v_lshlrev_b32', 'v_lshrrev_b32',
         'v_and_b32', 'v_xor_b32', 'v_or_b32', 'v_add_u32', 'v_fmac_f32', 'v_min_u32', 'v_max_u32', 'v_rsq_f32', 'v_sqrt_f32')
def align8(text):
    import subprocess, tempfile, re
    lines = text.split('\n')
    i0 = next(i for i, l in enumerate(lines) if l.endswith('_kernel:')); i1 = next(i for i, l in enumerate(lines) if l.startswith('.section'))
    idx = [i for i in range(i0, i1) if lines[i].strip() and not lines[i].strip().startswith((';', '.')) and not lines[i].strip().endswith(':')]
    with tempfile.TemporaryDirectory() as d:
        open(d + '/a.s', 'w').write(text)
        subprocess.check_call(['clang', '-x', 'assembler', '-target', 'amdgcn-amd-amdhsa', '-mcpu=gfx950', '-c', d + '/a.s', '-o', d + '/a.o'])
        dis = subprocess.check_output(['llvm-objdump', '-d', '--mcpu=gfx950', d + '/a.o'], text=True)
    sz = [4 * len(m.group(1).split()) for m in re.finditer(r'// [0-9A-F]{12}: ([0-9A-F ]+)', dis)]
    assert len(sz) == len(idx), (len(sz), len(idx))
    off = 0; ins = {}; npro = nnop = 0
    MINRUN = env('MINRUN', 8)
    for n, i in enumerate(idx):
        if sz[n] == 8 and off % 8 == 4:
            p = n - 1; done = False
            while p >= 0 and sz[p] == 4:
                op = lines[idx[p]].split()[0]
                if op in PROMO:
                    lines[idx[p]] = lines[idx[p]].replace(op, op + '_e64', 1); sz[p] = 8; off += 4; done = True; npro += 1
                    break
                p -= 1
            if not done:
                r = 0
                while n + r < len(sz) and sz[n + r] == 8: r += 1
                prev = lines[idx[n - 1]].split()[0]
                if r >= MINRUN and prev != 's_getpc_b64':
                    ins[i] = '    s_nop 0'; off += 4; nnop += 1
        off += sz[n]
    out = []
    for i, l in enumerate(lines):
        if i in ins: out.append(ins[i])
        out.append(l)
    print('align8: %d widened, %d nops' % (npro, nnop))
    return '\n'.join(out)

if __name__ == '__main__':
    out = sys.argv[1] if len(sys.argv) > 1 else 'adaLN_cond__softmax_full_mha__mixer_gmlp__prompt.s'
    txt = build()
    if env('AL8', 1): txt = align8(txt)
    open(out, 'w').write(txt)
    print('wrote', out)
```

```python
import sys, struct, os
STAMP = int(os.environ.get('STAMP', '0'))
WS_STAMP = 128 << 20
KIDX = [0]
def env(n, d): return int(os.environ.get(n, d))

MB = 1 << 20
KB = 1024
WS_MOD = 0
WS_UW  = 32 * KB
WS_ST0 = 64 * KB
WS_MODP = 128 * KB
WS_MODT = 768 * KB
TAGP = env('TAGP', 1)
WS_SC = 96 * KB
WS_MODQ = 160 * KB
WS_ST1 = 256 * KB
WS_G   = 512 * KB
WS_FL  = 58 * MB
FLSZ = 2 * MB
FL_LN1, FL_QKV, FL_ATT, FL_WO, FL_WIN, FL_WSP, FL_MOD = [i * 8 * KB for i in range(7)]
WS_EPOCH = 240 * KB
AUX_A = 128 * KB; AUX_B = 148 * KB
WS_H   = 1 * MB
WS_Q   = 5 * MB
WS_KV  = 9 * MB
WS_G2  = 57 * MB
WS_N   = 60 * MB
WS_O   = 17 * MB
WS_X1  = 21 * MB
WS_X1S = 25 * MB
WS_Z   = 29 * MB
ZSZ = 2048 * 1792 * 2
WS_Z2N = WS_Z + ZSZ
WS_U2  = 50 * MB
if env('ALIAS', 0):
    WS_Q = 1 * MB; WS_KV = 5 * MB; WS_H = 13 * MB
    WS_O = WS_H; WS_X1 = WS_Q; WS_X1S = WS_KV
    WS_Z2N = 9 * MB; WS_Z = 17 * MB; WS_U2 = WS_Z
ZB = min(WS_Z, WS_Z2N)

ROLES = {'pre': [('mod', 0, 128, 0, 16), ('stats', 128, 256, 0, 16)], 'ln1': [('pf', 0, 256, 0, 4), ('ln', 0, 256, 4, 8)],
         'attn': [('main', 0, 256, 0, 8)]}
for _n in ('qkv', 'wo', 'wout'): ROLES[_n] = [('load', 0, 256, 0, 4), ('comp', 0, 256, 4, 8)]
for _n in ('win', 'wsp'): ROLES[_n] = [('load', 0, 224, 0, 4), ('comp', 0, 224, 4, 8), ('pf', 224, 256, 0, 8)]
def f2u(f): return struct.unpack('<I', struct.pack('<f', f))[0]
def hx(f): return '0x%08x' % f2u(f)
LOG2E = 1.4426950408889634
WT = os.environ.get('WTF', ' sc1')

class Kern:
    def __init__(self, name, grid, block, lds):
        self.name = name; self.grid = grid; self.block = block; self.lds = lds
        self.lines = []; self.vgpr = 0; self.nlab = 0
    def e(self, s):
        for l in s.strip('\n').split('\n'):
            l = l.strip()
            if l: self.lines.append('    ' + l)
    def label(self, l):
        if env('ALIGN', 0) and ('_loop' in l or '_lloop' in l):
            self.lines.append('.p2align %d' % env('ALIGN', 0))
            for _ in range(env('ALOFF', 0)): self.lines.append('    s_nop 0')
        self.lines.append(l + ':')
    def newlabel(self, base):
        self.nlab += 1
        return 'L_%s_%s%d' % (self.name, base, self.nlab)
    def need(self, vgpr, lds):
        self.vgpr = max(self.vgpr, vgpr); self.lds = max(self.lds, lds)
    def text(self):
        GX = os.environ.get('GX', '')
        if self.name != 'pre':
            if 'm' in GX: self.lines = [l for l in self.lines if 'v_mfma' not in l]
            if 'l' in GX: self.lines = [l for l in self.lines if not (' lds' in l and 'buffer_load' in l and ('s57' in l or 's58' in l))]
            if 'r' in GX: self.lines = [l for l in self.lines if not ('ds_read_b64_tr' in l)]
        if os.environ.get('NOLDSC'):
            self.lines = [l.replace(' sc1 lds', ' lds') for l in self.lines]
        n = self.name + '_kernel'
        return '.globl %s\n.p2align 8\n.type %s,@function\n%s:\n' % (n, n, n) + '\n'.join(self.lines) + '\n'
    def desc(self):
        n = self.name + '_kernel'
        v = self.vgpr
        acc = (v + 3) // 4 * 4
        return ('.p2align 6\n.amdhsa_kernel %s\n  .amdhsa_next_free_vgpr %d\n  .amdhsa_next_free_sgpr 102\n'
                '  .amdhsa_accum_offset %d\n  .amdhsa_group_segment_fixed_size 0\n  .amdhsa_kernarg_size 104\n'
                '  .amdhsa_user_sgpr_count 2\n  .amdhsa_user_sgpr_kernarg_segment_ptr 1\n'
                '  .amdhsa_system_sgpr_workgroup_id_x 1\n.end_amdhsa_kernel\n' % (n, v, acc))
    def launch(self):
        return '; @launch kernel=%s_kernel grid=(%d,1,1) block=(%d,1,1) lds=%d\n' % (self.name, self.grid, self.block, self.lds)

PTR = dict(x=4, wqkv=6, wo=8, bx=10, w_in=12, w_sp=14, b_sp=16, w_out=18, c=20, w_mod=22, out=24, dbg=26, ws=28)
SIZES = dict(x=2048*1024*2, wqkv=1024*3072*2, wo=1024*1024*2, w_in=1024*3584*2, w_sp=2048*2048*2, b_sp=2048*2,
             w_out=1792*1024*2, c=2048, w_mod=1024*6144*2, out=2048*1024*2, dbg=256)

class Ctx: pass
PHIDX = {}
def prologue(k):
    k.endl = 'L_%s_end' % k.name
    k.e("""
    s_load_dwordx16 s[4:19], s[0:1], 0
    s_load_dwordx8 s[20:27], s[0:1], 64
    s_load_dwordx2 s[28:29], s[0:1], 96
    s_cmp_ge_u32 s2, %d
    s_cbranch_scc1 %s
    v_lshrrev_b32 v1, 6, v0
    s_nop 0
    v_readfirstlane_b32 s3, v1
    """ % (k.grid, k.endl))

def phase_begin(k, c):
    k.c = c
    k.label('L_%s_entry' % c.name)
    if env('IDLE_' + c.name, 0):
        for _ in range(env('IDLE_' + c.name, 0)): k.e('s_sleep 36')
    c.kidx = KIDX[0]; KIDX[0] += 1
    PHIDX[c.name] = c.kidx
    if env('PADTO', 0) and c.first: k.e('s_memrealtime s[90:91]')
    if env('DBG', 0) and c.first: dbgstamp(k, 0 if c.name == 'pre' else 10, 512 if c.name == 'pre' else 0, '')
    if STAMP:
        k.e('s_memtime s[88:89]')
        k.e('s_memrealtime s[90:91]')
        for i in range(4): k.e('s_mov_b64 s[%d:%d], 0' % (72 + 2 * i, 73 + 2 * i))

def dbgstamp(k, idx, off, op):
    l = k.newlabel('dbg')
    k.e('''
    s_lshl_b32 s80, s2, 4
    s_add_u32 s80, s80, s3
    s_cmp_lg_u32 s80, %d
    s_cbranch_scc1 %s
    s_waitcnt lgkmcnt(0)
    s_memrealtime s[92:93]
    s_add_u32 s80, s26, %d
    s_addc_u32 s81, s27, 0
    s_and_b32 s81, s81, 0xffff
    s_mov_b32 s82, 256
    s_mov_b32 s83, 0x20000
    s_mov_b64 exec, 1
    s_waitcnt lgkmcnt(0)
    v_mov_b32 v2, s92
    v_mov_b32 v5, %d
    buffer_store_dword v2, v5, s[80:83], 0 offen
    s_mov_b64 exec, -1
    ''' % (5 * 16 + 4, l, off, idx * 4))
    k.label(l)
def endpgm(k):
    c = k.c
    if env('DBG', 0): dbgstamp(k, 1 + c.kidx, 512 if c.name == 'pre' else 0, '')
    if STAMP:
        k.e("""
        s_waitcnt vmcnt(0) lgkmcnt(0)
        s_memtime s[92:93]
        s_memrealtime s[94:95]
        s_mov_b64 exec, 1
        s_add_u32 s80, s28, 0x%x
        s_addc_u32 s81, s29, 0
        s_and_b32 s81, s81, 0xffff
        s_mov_b32 s82, 0x100000
        s_mov_b32 s83, 0x20000
        s_lshl_b32 s86, s2, 4
        s_add_u32 s86, s86, s3
        s_lshl_b32 s86, s86, 5
        s_waitcnt lgkmcnt(0)
        v_mov_b32 v4, s90
        v_mov_b32 v5, s94
        v_mov_b32 v6, s88
        v_mov_b32 v7, s92
        v_mov_b32 v8, s72
        v_mov_b32 v9, s74
        v_mov_b32 v10, s76
        v_mov_b32 v11, s78
        v_mov_b32 v2, s86
        buffer_store_dwordx4 v[4:7], v2, s[80:83], 0 offen
        buffer_store_dwordx4 v[8:11], v2, s[80:83], 0 offen offset:16
        s_waitcnt vmcnt(0)
        """ % (WS_STAMP + c.kidx * (1 << 20)))
    if c.last and env('PADTO', 0):
        l = k.newlabel('pad')
        k.label(l)
        k.e('s_memrealtime s[92:93]\ns_waitcnt lgkmcnt(0)\ns_sub_u32 s92, s92, s90\ns_cmp_lt_u32 s92, %d\ns_cbranch_scc1 %s' % (env('PADTO', 0) * 100, l))
    if c.last: k.e('s_endpgm')
    else:
        k.e('s_mov_b64 exec, -1')
        k.e('s_setprio 0')
        k.e('s_branch L_%s_entry' % c.nxt)
def mark(k, i=0):
    if STAMP:
        k.e('s_memtime s[%d:%d]' % (72 + 2 * i, 73 + 2 * i))
        k.e('s_waitcnt lgkmcnt(0)')

def set_flag(k, setup):
    if not k.c.last:
        k.e(setup)
        k.e('s_lshl_b32 s87, s100, 5')
def OWNF(n): return n in os.environ.get('OWN', 'none').split(',')
ZF32 = env('ZF32', 1)
GEO = env('GEO', 0); TPRE = env('TPRE', 4) if GEO else 0; APRE = env('APRE', 0) if GEO else 0
W22 = env('W22', 1)
LPW = env('LPW', 0)
ZOWN = env('ZOWN', 1)
FV = 252
def flag_store(k, soff):
    k.e('s_mov_b64 exec, 1')
    k.e('buffer_store_dwordx2 %s, v%d, s[96:99], %s offen sc1' % (vr(FV, 2), FV + 2, soff))
    k.e('s_mov_b64 exec, -1')
def flag_prep(k):
    srd(k, 96, 'ws', WS_FL, FLSZ)
    k.e('v_mov_b32 v%d, s84' % FV); k.e('v_mov_b32 v%d, s85' % (FV + 1)); k.e('v_mov_b32 v%d, 0' % (FV + 2))
    k.need(FV + 3, 0)
def signal(k, role='L', keep=0):
    if k.c.last: return
    if role in ('C', 'S'): flag_prep(k)
    if role == 'C':
        k.e('s_and_b32 s100, s3, 3')
        k.e('s_lshl_b32 s100, s100, 7')
        k.e('s_add_u32 s100, s100, s87')
    if role == 'C' and env('SM', 0): mark(k, 3)
    k.e('s_waitcnt vmcnt(%d)' % keep)
    if role == 'C' and env('SM', 0): mark(k, 0)
    if role == 'C':
        flag_store(k, 's100')
        if OWNF(k.c.nxt): k.e('s_barrier')
    elif role == 'A' and OWNF(k.c.nxt) and k.c.nxt == 'wout':
        l = k.newlabel('sg')
        k.e('s_cmp_lt_u32 s3, 4'); k.e('s_cbranch_scc1 %s' % l); k.e('s_barrier'); k.label(l)
    elif role == 'S':
        l = k.newlabel('sg')
        k.e('s_barrier')
        k.e('s_cmp_lg_u32 s3, 7'); k.e('s_cbranch_scc1 %s' % l)
        flag_store(k, 's87')
        k.label(l)
POLLW = env('POLLW', 4)
def handoff(k, setup, n, role='L', force=False, slp=None):
    if (k.c.first and not force) or not n: return
    if role in 'AW' or (role == 'C') == (POLLW >= 4):
        ld = k.newlabel('wd')
        if role == 'W': pass
        elif n <= 64:
            k.e('s_cmp_lg_u32 s3, %d' % POLLW)
            k.e('s_cbranch_scc1 %s' % ld)
        else:
            assert n == 128
            k.e('s_sub_u32 s101, s3, %d' % POLLW)
            k.e('s_cmp_gt_u32 s101, 1')
            k.e('s_cbranch_scc1 %s' % ld)
        srd(k, 96, 'ws', WS_FL, FLSZ)
        k.e(setup)
        k.e('s_lshl_b32 s100, s100, 5')
        if n > 64:
            k.e('s_lshl_b32 s101, s101, 13')
            k.e('s_add_u32 s100, s100, s101')
        k.e('v_lshlrev_b32 v%d, 7, v1' % (FV + 2))
        k.e('s_mov_b32 s101, 0x100000')
        if n < 64: k.e('s_bfm_b64 exec, %d, 0' % n)
        k.need(FV + 3, 0)
        if env('PDELAY', 0): k.e('s_waitcnt vmcnt(0)')
        PP = env('PPIPE', 0)
        if PP:
            lp = k.newlabel('wf'); le = k.newlabel('we')
            B = [FV, FV - 2, FV - 4][:PP]
            ldp = lambda b: 'buffer_load_dwordx2 %s, v%d, s[96:99], s100 offen sc1' % (vr(b, 2), FV + 2)
            for b in B[:-1]:
                k.e(ldp(b)); k.e('s_sleep %d' % env('PGAP', 5))
            k.label(lp)
            for i_ in range(PP):
                k.e(ldp(B[i_ - 1]))
                k.e('s_waitcnt vmcnt(%d)' % (PP - 1))
                k.e('v_cmp_ne_u64 vcc, s[84:85], %s' % vr(B[i_], 2))
                k.e('s_nop 4')
                k.e('s_cbranch_vccz %s' % le)
            k.e('s_sub_u32 s101, s101, 1')
            k.e('s_cmp_lg_u32 s101, 0')
            k.e('s_cbranch_scc1 %s' % lp)
        else:
            lp = k.newlabel('wf'); le = k.newlabel('we')
            k.label(lp)
            k.e('buffer_load_dwordx2 %s, v%d, s[96:99], s100 offen sc1' % (vr(FV, 2), FV + 2))
            k.e('s_waitcnt vmcnt(0)')
            k.e('v_cmp_ne_u64 vcc, s[84:85], %s' % vr(FV, 2))
            k.e('s_sub_u32 s101, s101, 1')
            k.e('s_nop 3')
            k.e('s_cbranch_vccz %s' % le)
            if env('PMASK', 1): k.e('s_mov_b64 exec, vcc')
            if slp is None: slp = env('PSLEEP', 1)
            if slp: k.e('s_sleep %d' % slp)
            k.e('s_cmp_lg_u32 s101, 0')
            k.e('s_cbranch_scc1 %s' % lp)
        k.label(le)
        k.e('s_mov_b64 exec, -1')
        k.label(ld)
    if role != 'W': k.e('s_barrier')

def handoff_multi(k, polls):
    ld = k.newlabel('wd'); lgo = k.newlabel('wg')
    srd(k, 96, 'ws', WS_FL, FLSZ)
    for w, setup, n in polls:
        ln = k.newlabel('wn')
        k.e('s_cmp_lg_u32 s3, %d' % w)
        k.e('s_cbranch_scc1 %s' % ln)
        k.e(setup)
        k.e('v_min_u32 v%d, %d, v1' % (FV + 2, n - 1))
        k.e('s_branch %s' % lgo)
        k.label(ln)
    k.e('s_branch %s' % ld)
    k.label(lgo)
    k.e('s_lshl_b32 s100, s100, 5')
    k.e('v_lshlrev_b32 v%d, 7, v%d' % (FV + 2, FV + 2))
    k.e('s_mov_b32 s101, 0x100000')
    lp = k.newlabel('wf')
    k.label(lp)
    k.e('buffer_load_dwordx2 %s, v%d, s[96:99], s100 offen sc1' % (vr(FV, 2), FV + 2))
    k.e('s_waitcnt vmcnt(0)')
    k.e('v_cmp_ne_u64 vcc, s[84:85], %s' % vr(FV, 2))
    k.e('s_sub_u32 s101, s101, 1')
    k.e('s_nop 3')
    k.e('s_cbranch_vccz %s' % ld)
    k.e('s_sleep %d' % env('P0SLEEP', 2))
    k.e('s_cmp_lg_u32 s101, 0')
    k.e('s_cbranch_scc1 %s' % lp)
    k.label(ld)
    k.e('s_barrier')

def mod_table(k, R, between=None, nb=0):
    srd(k, 40, 'ws', 0, 256 * KB)
    k.e('v_lshlrev_b32 v%d, 4, v0' % (R + 16))
    for q in range(4):
        k.e('s_mov_b32 s48, %d' % (WS_MODP + q * 8192))
        k.e('buffer_load_dwordx4 %s, v%d, s[40:43], s48 offen sc1' % (vr(R + 4 * q, 4), R + 16))
    if between: between()
    k.e('s_cmp_lt_u32 s3, 4')
    k.e('s_cselect_b32 s49, 0, 1.0')
    k.e('v_add_u32 v%d, %d, v%d' % (R + 16, AUX_A, R + 16))
    k.e('s_waitcnt vmcnt(%d)' % nb)
    k.e(pk('add', R, R, R + 4)); k.e(pk('add', R + 2, R + 2, R + 6)); k.e(pk('add', R + 8, R + 8, R + 12)); k.e(pk('add', R + 10, R + 10, R + 14))
    k.e(pk('add', R, R, R + 8)); k.e(pk('add', R + 2, R + 2, R + 10))
    for d in range(2): round_bf16_pair(k, R + 2 * d, R + 2 * d + 1, R + 4)
    for q in range(4): k.e('v_add_f32 v%d, s49, v%d' % (R + q, R + q))
    for d in range(2): round_bf16_pair(k, R + 2 * d, R + 2 * d + 1, R + 4)
    k.e('ds_write_b128 v%d, %s' % (R + 16, vr(R, 4)))
    k.e('s_waitcnt lgkmcnt(0)')
    k.e('s_barrier')

def poll_back(k, lp):
    l = k.newlabel('pd')
    k.e('s_sub_u32 s101, s101, 1')
    k.e('s_nop 3')
    k.e('s_cbranch_vccz %s' % l)
    k.e('s_cmp_lg_u32 s101, 0')
    k.e('s_cbranch_scc1 %s' % lp)
    k.label(l)
def poll_init(k): k.e('s_mov_b32 s101, 0x100000')

def srd(k, d, what, off=0, size=None, soff=None):
    p = PTR[what]
    if what == 'ws': off += env('WSB', 0) * MB
    if size is None: size = SIZES[what]
    if off or soff:
        k.e('s_add_u32 s%d, s%d, 0x%x' % (d, p, off))
        k.e('s_addc_u32 s%d, s%d, 0' % (d + 1, p + 1))
        if soff:
            k.e('s_add_u32 s%d, s%d, %s' % (d, d, soff))
            k.e('s_addc_u32 s%d, s%d, 0' % (d + 1, d + 1))
        k.e('s_and_b32 s%d, s%d, 0xffff' % (d + 1, d + 1))
    else:
        k.e('s_mov_b32 s%d, s%d' % (d, p))
        k.e('s_and_b32 s%d, s%d, 0xffff' % (d + 1, p + 1))
    k.e('s_mov_b32 s%d, 0x%x' % (d + 2, size))
    k.e('s_mov_b32 s%d, 0x20000' % (d + 3))

def finish(k):
    endpgm(k)

XT = env('XT', 0)
AOWN = env('AOWN', 3)
AT2 = env('AT2', 1)
MP0 = env('MP0', 1)
CPF = env('CPF', 2)
def code_pf(k, start, end, maxbytes, lane=1, vt=6, vd=7, sb=84):
    if not CPF: return 0
    h = k.newlabel('pc')
    k.e('s_getpc_b64 s[%d:%d]' % (sb, sb + 1))
    k.label(h)
    k.e('s_add_u32 s%d, s%d, %s-%s' % (sb, sb, start, h))
    k.e('s_addc_u32 s%d, s%d, 0' % (sb + 1, sb + 1))
    n = (maxbytes + 8191) // 8192
    for i in range(n):
        k.e('v_lshlrev_b32 v%d, 7, v%d' % (vt, lane))
        if i: k.e('v_add_u32 v%d, %d, v%d' % (vt, i * 8192, vt))
        k.e('v_min_u32 v%d, %s-%s-4, v%d' % (vt, end, start, vt))
        k.e('global_load_dword v%d, v%d, s[%d:%d]' % (vd, vt, sb, sb + 1))
    return n

def code_touch(k, start, end, soff, V):
    h = k.newlabel('pc')
    k.e('s_getpc_b64 s[64:65]')
    k.label(h)
    k.e('s_add_u32 s64, s64, %s-%s' % (start, h))
    k.e('s_addc_u32 s65, s65, 0')
    k.e('v_and_b32 v%d, 63, v0' % V)
    k.e('v_lshl_add_u32 v%d, v%d, 7, %s' % (V, V, soff))
    k.e('v_min_u32 v%d, %s-%s-4, v%d' % (V, end, start, V))
    k.e('v_mov_b32 v%d, s65' % (V + 1))
    k.e('v_add_co_u32 v%d, vcc, s64, v%d' % (V, V))
    k.e('s_nop 1')
    k.e('v_addc_co_u32 v%d, vcc, 0, v%d, vcc' % (V + 1, V + 1))
    k.e('global_load_dword v%d, v[%d:%d], off' % (V + 2, V, V + 1))

def vr(b, n): return 'v[%d:%d]' % (b, b + n - 1)
def sr(b): return 's[%d:%d]' % (b, b + 3)

def round_bf16_pair(k, a, b, tmp):
    k.e('v_cvt_pk_bf16_f32 v%d, v%d, v%d' % (tmp, a, b))
    k.e('v_lshlrev_b32 v%d, 16, v%d' % (a, tmp))
    k.e('v_and_b32 v%d, 0xffff0000, v%d' % (b, tmp))

def red_lanes(k, regs, tmp, rors=(8,)):
    for ro in rors:
        k.e('s_nop 1')
        for r in regs:
            k.e('v_add_f32_dpp v%d, v%d, v%d row_ror:%d row_mask:0xf bank_mask:0xf' % (r, r, r, ro))
    for op in ('v_permlane16_swap_b32', 'v_permlane32_swap_b32'):
        for r, t in zip(regs, tmp): k.e('v_mov_b32 v%d, v%d' % (t, r))
        k.e('s_nop 1')
        for r, t in zip(regs, tmp): k.e('%s v%d, v%d' % (op, r, t))
        k.e('s_nop 1')
        for r, t in zip(regs, tmp): k.e('v_add_f32 v%d, v%d, v%d' % (r, r, t))

def unpack(k, lo, hi, src):
    k.e('v_lshlrev_b32 v%d, 16, v%d' % (lo, src))
    k.e('v_and_b32 v%d, 0xffff0000, v%d' % (hi, src))

def k_p0(k, c):
    phase_begin(k, c)
    KIDX[0] += 1
    assert c.first and not c.last
    lst = 'L_p0_stats'
    if env('CPF0', 1):
        l0 = k.newlabel('c0')
        k.e('s_cmp_ge_u32 s3, %d' % env('CPF0', 1))
        k.e('s_cbranch_scc1 %s' % l0)
        k.e('s_lshl_b32 s44, s3, 13')
        code_touch(k, l0, 'L_text_end', 's44', 196)
        k.label(l0)
    def rest_issue():
        srd(k, 52, 'w_mod'); srd(k, 56, 'c')
        k.e("""
        v_lshrrev_b32 v164, 3, v0
        v_lshlrev_b32 v165, 4, v164        ; c byte offset = g*16
        v_mul_u32_u24 v164, %d, v164
        v_and_b32 v166, 7, v0
        v_lshl_add_u32 v164, v166, 4, v164
        s_lshr_b32 s60, s30, 1             ; col block
        s_and_b32 s61, s30, 1              ; k half
        s_lshl_b32 s62, s60, 7
        s_mul_i32 s63, s61, %d
        s_add_u32 s62, s62, s63
        s_add_u32 s62, s62, 4096
        s_lshl_b32 s63, s61, 10
        buffer_load_dwordx4 v[128:131], v165, s[56:59], s63 offen
        """ % (8 * 12288, 512 * 12288))
        if env('PWAIT', 2) == 2: k.e('s_waitcnt vmcnt(0)')
        for j in range(8):
            k.e('buffer_load_dwordx4 %s, v164, s[52:55], s62 offen' % vr(132 + 4 * j, 4))
            k.e('s_add_u32 s62, s62, 12288')
        k.need(192, 0)
    def rest_compute(newer):
        S_ = 168; T_ = 176; A_ = 184
        k.e('s_waitcnt vmcnt(%d)' % (8 + newer))
        for j in range(4): unpack(k, S_ + 2 * j, S_ + 1 + 2 * j, 128 + j)
        for j in range(8): k.e('v_mul_f32 v%d, %s, v%d' % (T_ + j, hx(-LOG2E), S_ + j))
        for j in range(8): k.e('v_exp_f32 v%d, v%d' % (T_ + j, T_ + j))
        for j in range(8): k.e('v_add_f32 v%d, 1.0, v%d' % (T_ + j, T_ + j))
        for j in range(8): k.e('v_rcp_f32 v%d, v%d' % (T_ + j, T_ + j))
        for j in range(8): k.e('v_mul_f32 v%d, v%d, v%d' % (S_ + j, S_ + j, T_ + j))
        for j in range(4): round_bf16_pair(k, S_ + 2 * j, S_ + 1 + 2 * j, T_)
        for j in range(8):
            k.e('s_waitcnt vmcnt(%d)' % (7 - j + newer))
            for d in range(4):
                unpack(k, T_, T_ + 1, 132 + 4 * j + d)
                op = 'v_mul_f32' if j == 0 else 'v_fmac_f32'
                k.e('%s v%d, v%d, v%d' % (op, A_ + 2 * d, T_, S_ + j))
                k.e('%s v%d, v%d, v%d' % (op, A_ + 1 + 2 * d, T_ + 1, S_ + j))
        k.e('s_nop 1')
        for e in range(4): k.e('v_permlane32_swap_b32 v%d, v%d' % (A_ + e, A_ + 4 + e))
        k.e('s_nop 1')
        for e in range(4): k.e('v_add_f32 v%d, v%d, v%d' % (A_ + e, A_ + e, A_ + 4 + e))
        k.e('s_nop 1')
        for e in range(2): k.e('v_permlane16_swap_b32 v%d, v%d' % (A_ + e, A_ + 2 + e))
        k.e('s_nop 1')
        for e in range(2): k.e('v_add_f32 v%d, v%d, v%d' % (A_ + e, A_ + e, A_ + 2 + e))
        k.e('s_nop 1')
        for e in range(2): k.e('v_add_f32_dpp v%d, v%d, v%d row_ror:8 row_mask:0xf bank_mask:0xf' % (A_ + e, A_ + e, A_ + e))
        lw2 = k.newlabel('nw')
        k.e("""
        v_lshlrev_b32 v164, 5, v166
        v_lshrrev_b32 v165, 4, v1
        v_lshl_add_u32 v164, v165, 3, v164
        s_lshl_b32 s62, s3, 8
        s_add_u32 s62, s62, %d
        v_add_u32 v164, s62, v164
        ds_write_b64 v164, v[184:185]
        s_waitcnt lgkmcnt(0)
        s_barrier
        s_cmp_lg_u32 s3, 7
        s_cbranch_scc1 %s
        v_lshlrev_b32 v164, 2, v1
        v_add_u32 v165, %d, v164
        """ % (AUX_A + 8192, lw2, AUX_A + 8192))
        for w in range(8): k.e('ds_read_b32 v%d, v165 offset:%d' % (T_ + w, w * 256))
        k.e("""
        s_lshl_b32 s62, s60, 8
        s_lshl_b32 s63, s61, 14
        s_add_u32 s62, s62, s63
        s_add_u32 s62, s62, %d
        s_waitcnt lgkmcnt(0)
        """ % WS_MODQ)
        for w in range(0, 8, 2): k.e('v_add_f32 v%d, v%d, v%d' % (T_ + w, T_ + w, T_ + w + 1))
        k.e('v_add_f32 v%d, v%d, v%d' % (T_, T_, T_ + 2))
        k.e('v_add_f32 v%d, v%d, v%d' % (T_ + 4, T_ + 4, T_ + 6))
        k.e('v_add_f32 v%d, v%d, v%d' % (T_, T_, T_ + 4))
        k.e('buffer_store_dword v%d, v164, s[40:43], s62 offen%s' % (T_, WT))
        k.label(lw2)
    LNF = env('LNF', 1)
    k.e("""
    v_and_b32 v1, 63, v0               ; lane
    v_lshlrev_b32 v6, 4, v0            ; tid*16
    s_lshr_b32 s30, s2, 4
    s_lshl_b32 s30, s30, 3
    s_and_b32 s47, s2, 7
    s_add_u32 s30, s30, s47
    s_bitcmp1_b32 s2, 3
    """)
    def ln_pre():
        k.e("""
        s_lshl_b32 s44, s3, 12
        v_lshl_add_u32 v3, v1, 4, s44
        s_lshl_b32 s31, s30, 15            ; 16 rows * 2048
        s_waitcnt lgkmcnt(0)
        """)
        srd(k, 32, 'x')
        for q in range(4): k.e('buffer_load_dwordx4 %s, v3, s[32:35], s31 offen offset:%d' % (vr(8 + 4 * q, 4), q * 1024))
        k.e('s_load_dwordx2 s[84:85], s[28:29], 0x%x' % (WS_EPOCH + env('WSB', 0) * MB))
    if LNF == 2: k.e('s_cbranch_scc1 L_p0_stub')
    elif LNF:
        k.e('s_cbranch_scc0 L_p0_mod')
        ln_pre()
        k.e('s_branch %s' % lst)
        k.label('L_p0_mod')
    else: k.e('s_cbranch_scc1 %s' % lst)
    k.e("""
    s_lshr_b32 s48, s30, 2             ; col block
    s_and_b32 s49, s30, 3              ; k quarter
    v_lshrrev_b32 v2, 3, v0            ; row group (0..63): rows 4g..4g+3 (+256*q)
    v_and_b32 v3, 7, v0                ; chunk
    v_lshlrev_b32 v4, 3, v2            ; c byte offset = g*8
    v_mul_u32_u24 v5, %d, v2
    v_lshl_add_u32 v5, v3, 4, v5
    s_lshl_b32 s31, s48, 7
    s_mul_i32 s44, s49, %d
    s_add_u32 s31, s31, s44
    s_lshl_b32 s45, s49, 9
    s_waitcnt lgkmcnt(0)
    s_load_dwordx2 s[84:85], s[28:29], 0x%x
    """ % (4 * 12288, 256 * 12288, WS_EPOCH + env('WSB', 0) * MB))
    mark(k, 0)
    srd(k, 36, 'w_mod'); srd(k, 32, 'c')
    CL = env('CLAST', 0)
    if not CL: k.e('buffer_load_dwordx2 v[8:9], v4, s[32:35], s45 offen')
    for j in range(4):
        k.e('buffer_load_dwordx4 %s, v5, s[36:39], s31 offen' % vr(12 + 4 * j, 4))
        k.e('s_add_u32 s31, s31, 12288')
    if CL: k.e('buffer_load_dwordx2 v[8:9], v4, s[32:35], s45 offen')
    if LNF == 2:
        k.e('s_branch L_p0_mod')
        k.label('L_p0_stub')
        ln_pre()
        k.e('s_branch %s' % lst)
        k.label('L_p0_mod')
    lnc = k.newlabel('nc')
    def resets(R, wait):
        lnr = k.newlabel('nr')
        k.e('s_cmp_gt_u32 s3, 3')
        k.e('s_cbranch_scc1 %s' % lnr)
        for r in range(4): k.e('v_mov_b32 v%d, -1' % (R + r))
        for off, size in (((WS_G2, 512 * KB) if W22 else (WS_G, 256 * KB)), (WS_MOD, 64 * KB)) + (() if MP0 else ((WS_MODQ, 64 * KB),)):
            per = size // 128
            srd(k, 52, 'ws', off, size)
            k.e('s_mul_i32 s50, s30, %d' % per)
            k.e('v_cmp_gt_u32 vcc, %d, v0' % (per // 16))
            k.e('s_and_saveexec_b64 s[46:47], vcc')
            k.e('buffer_store_dwordx4 %s, v6, s[52:55], s50 offen%s' % (vr(R, 4), WT))
            k.e('s_mov_b64 exec, s[46:47]')
        if wait: k.e('s_waitcnt vmcnt(0)')
        k.label(lnr)
    RLN = env('RLN', 1)
    if not RLN: resets(40, True)
    srd(k, 40, 'ws', 0, 256 * KB)
    if CL == 2:
        k.e('s_waitcnt vmcnt(1)'); mark(k, 0)
    k.e('s_waitcnt vmcnt(%d)' % (0 if CL else 4))
    mark(k, 1)
    for j in range(2): unpack(k, 44 + 2 * j, 45 + 2 * j, 8 + j)
    for j in range(4): k.e('v_mul_f32 v%d, %s, v%d' % (52 + j, hx(-LOG2E), 44 + j))
    for j in range(4): k.e('v_exp_f32 v%d, v%d' % (52 + j, 52 + j))
    for j in range(4): k.e('v_add_f32 v%d, 1.0, v%d' % (52 + j, 52 + j))
    for j in range(4): k.e('v_rcp_f32 v%d, v%d' % (52 + j, 52 + j))
    for j in range(4): k.e('v_mul_f32 v%d, v%d, v%d' % (44 + j, 44 + j, 52 + j))
    for j in range(2): round_bf16_pair(k, 44 + 2 * j, 45 + 2 * j, 52)
    lns = k.newlabel('nosc')
    if not MP0: k.e("""
    s_cmp_lg_u32 s48, 0
    s_cbranch_scc1 %s
    v_lshlrev_b32 v7, 4, v2
    s_lshl_b32 s44, s49, 10
    s_add_u32 s44, s44, %d
    buffer_store_dwordx4 v[44:47], v7, s[40:43], s44 offen%s
    s_waitcnt vmcnt(0)
    """ % (lns, WS_SC, WT))
    k.label(lns)
    A = 56
    for j in range(4):
        k.e('s_waitcnt vmcnt(%d)' % (3 - j))
        for d in range(4):
            unpack(k, 52, 53, 12 + 4 * j + d)
            op = 'v_mul_f32' if j == 0 else 'v_fmac_f32'
            k.e('%s v%d, v52, v%d' % (op, A + 2 * d, 44 + j))
            k.e('%s v%d, v53, v%d' % (op, A + 1 + 2 * d, 44 + j))
    mark(k, 2)
    if MP0 == 4: rest_issue()
    k.e('s_nop 1')
    for e in range(4): k.e('v_permlane32_swap_b32 v%d, v%d' % (A + e, A + 4 + e))
    k.e('s_nop 1')
    for e in range(4): k.e('v_add_f32 v%d, v%d, v%d' % (A + e, A + e, A + 4 + e))
    k.e('s_nop 1')
    for e in range(2): k.e('v_permlane16_swap_b32 v%d, v%d' % (A + e, A + 2 + e))
    k.e('s_nop 1')
    for e in range(2): k.e('v_add_f32 v%d, v%d, v%d' % (A + e, A + e, A + 2 + e))
    k.e('s_nop 1')
    for e in range(2): k.e('v_add_f32_dpp v%d, v%d, v%d row_ror:8 row_mask:0xf bank_mask:0xf' % (A + e, A + e, A + e))
    lw = k.newlabel('nw')
    k.e("""
    v_lshlrev_b32 v2, 5, v3
    v_lshrrev_b32 v7, 4, v1
    v_lshl_add_u32 v2, v7, 3, v2
    s_lshl_b32 s44, s3, 8
    s_add_u32 s44, s44, %d
    v_add_u32 v2, s44, v2
    ds_write_b64 v2, v[56:57]
    s_waitcnt lgkmcnt(0)
    s_add_u32 s84, s84, 1
    s_barrier
    s_cmp_lg_u32 s3, 0
    s_cbranch_scc1 %s
    v_lshlrev_b32 v2, 2, v1
    v_add_u32 v7, %d, v2
    """ % (AUX_A, lw, AUX_A))
    for w in range(8): k.e('ds_read_b32 v%d, v7 offset:%d' % (12 + w, w * 256))
    flag_prep(k)
    k.e("""
    s_lshl_b32 s31, s48, 8
    s_lshl_b32 s44, s49, 13
    s_add_u32 s31, s31, s44
    s_add_u32 s31, s31, %d
    s_lshl_b32 s100, s30, 7
    s_add_u32 s100, s100, %d
    s_waitcnt lgkmcnt(0)
    """ % (WS_MODP, FL_MOD * 32))
    for w in range(0, 8, 2): k.e('v_add_f32 v%d, v%d, v%d' % (12 + w, 12 + w, 13 + w))
    k.e('v_add_f32 v12, v12, v14')
    k.e('v_add_f32 v16, v16, v18')
    k.e('v_add_f32 v12, v12, v16')
    if TAGP:
        srd(k, 96, 'ws', WS_MODT, 64 * KB)
        k.e("""
        v_mov_b32 v14, s84
        v_mov_b32 v15, s85
        v_mov_b32_dpp v13, v12 quad_perm:[1,1,3,3] row_mask:0xf bank_mask:0xf
        v_lshlrev_b32 v2, 3, v1
        s_lshl_b32 s31, s48, 9
        s_lshl_b32 s44, s49, 14
        s_add_u32 s31, s31, s44
        s_mov_b32 exec_lo, 0x55555555
        s_mov_b32 exec_hi, 0x55555555
        buffer_store_dwordx4 v[12:15], v2, s[96:99], s31 offen sc1
        s_mov_b64 exec, -1
        """)
        if env('PWAIT', 2): k.e('s_waitcnt vmcnt(0)')
    else:
        k.e('buffer_store_dword v12, v2, s[40:43], s31 offen' + WT)
        k.e('s_waitcnt vmcnt(0)')
        flag_store(k, 's100')
    k.label(lw)
    k.e('s_barrier')
    mark(k, 3)
    if env('TLBW', 0):
        lt = k.newlabel('tl')
        for w, (nm, sz) in enumerate((('ws', 64 * MB), ('w_mod', None), ('w_sp', None), ('w_in', None), ('w_out', None), ('wo', None), ('out', None), ('x', None))):
            ln = k.newlabel('tn')
            k.e('s_cmp_lg_u32 s3, %d' % w)
            k.e('s_cbranch_scc1 %s' % ln)
            srd(k, 36, nm, 0, sz)
            k.e('s_branch %s' % lt)
            k.label(ln)
        k.label(lt)
        k.e('s_lshr_b32 s51, s30, 3')
        k.e('s_lshl_b32 s51, s51, 22')
        k.e('s_add_u32 s51, s51, %d' % (65536 - 128))
        k.e('v_lshlrev_b32 v36, 16, v1')
        k.e('buffer_load_dword v37, v36, s[36:39], s51 offen')
    srd(k, 36, 'wqkv')
    k.e('s_lshl_b32 s51, s30, 13')
    k.e('s_add_u32 s51, s51, %d' % (env('NPFE', 0) * MB))
    for p in range(env('NPFQ', 0) - env('NPFE', 0)):
        k.e('buffer_load_dwordx4 v[8:11], v6, s[36:39], s51 offen')
        k.e('s_add_u32 s51, s51, %d' % MB)
    if CPF:
        h = k.newlabel('pc')
        k.e('s_cmp_lg_u32 s3, 2')
        k.e('s_cbranch_scc1 %s' % lnc)
        k.e('s_cmp_ge_u32 s30, 64')
        k.e('s_cbranch_scc1 %s' % lnc)
        k.e('s_lshr_b32 s44, s30, 3')
        k.e('s_lshl_b32 s44, s44, 13')
        code_touch(k, 'L_qkv_entry', 'L_text_end', 's44', 36)
        k.label(lnc)
    if MP0 == 1:
        rest_issue(); rest_compute(0)
    if MP0 == 4: rest_compute(0)
    k.e('s_waitcnt vmcnt(0)')
    endpgm(k)
    k.label(lst)
    if not LNF: ln_pre()
    if MP0 == 2: rest_issue()
    NE = env('NPFE', 0)
    if NE:
        srd(k, 36, 'wqkv')
        k.e('s_lshl_b32 s51, s30, 13')
        for p in range(NE):
            k.e('buffer_load_dwordx4 v[128:131], v6, s[36:39], s51 offen')
            k.e('s_add_u32 s51, s51, %d' % MB)
    srd(k, 36, 'ws', WS_H, 4 * MB); srd(k, 40, 'ws', 0, 256 * KB)
    if env('HTOUCH', 0):
        srd(k, 96, 'ws', WS_FL, FLSZ)
        k.e('v_mov_b32 v126, 0')
        k.e('s_mov_b64 exec, 1')
        k.e('buffer_load_dword v127, v126, s[36:39], s31 offen')
        k.e('buffer_load_dword v127, v126, s[96:99], 0 offen offset:64')
        k.e('s_mov_b64 exec, -1')
        NE += 2
    set_flag(k, 's_lshr_b32 s100, s30, 3\ns_lshl_b32 s100, s100, 8\ns_and_b32 s101, s30, 7\ns_lshl_b32 s101, s101, 2\ns_add_u32 s100, s100, s101\ns_add_u32 s100, s100, %d' % FL_LN1)
    mark(k, 0)
    if RLN == 2: resets(132, True)
    k.e('s_waitcnt vmcnt(%d) lgkmcnt(0)' % (NE + (9 if MP0 == 2 else 0)))
    k.e('s_add_u32 s84, s84, 1')
    if MP0 == 3: rest_issue()
    X = 24
    for d in range(16): unpack(k, X + 2 * d, X + 2 * d + 1, 8 + d)
    MU = [56, 58]; VA = [60, 62]
    if env('SP1', 1):
        for r in range(2):
            stat_ops(k, X + 16 * r, 8 + 4 * r, 10 + 4 * r, True)
            k.e('v_add_f32 v%d, v%d, v%d' % (MU[r], 8 + 4 * r, 9 + 4 * r))
            k.e('v_add_f32 v%d, v%d, v%d' % (VA[r], 10 + 4 * r, 11 + 4 * r))
        red_lanes(k, MU + VA, [8, 9, 10, 11], rors=(8, 4, 2, 1))
        for r in range(2):
            k.e('v_mul_f32 v%d, %s, v%d' % (MU[r], hx(-1.0 / 1024), MU[r]))
            k.e('v_mul_f32 v%d, %s, v%d' % (VA[r], hx(1.0 / 1024), VA[r]))
            k.e('v_fma_f32 v%d, -v%d, v%d, v%d' % (VA[r], MU[r], MU[r], VA[r]))
            k.e('v_max_f32 v%d, 0, v%d' % (VA[r], VA[r]))
    else:
        for r in range(2):
            k.e(pk('add', 8 + 2 * r, X + 16 * r, X + 16 * r + 2))
            for e in range(4, 16, 2): k.e(pk('add', 8 + 2 * r, 8 + 2 * r, X + 16 * r + e))
            k.e('v_add_f32 v%d, v%d, v%d' % (MU[r], 8 + 2 * r, 9 + 2 * r))
        red_lanes(k, MU, [8, 9], rors=(8, 4, 2, 1))
        for r in range(2):
            k.e('v_mul_f32 v%d, %s, v%d' % (MU[r], hx(-1.0 / 1024), MU[r]))
            for e in range(0, 16, 2):
                k.e(pk('add', 8, X + 16 * r + e, (MU[r],)))
                k.e(pk('mul', 10, 8, 8) if e == 0 else pk('fma', 10, 8, 8, 10))
            k.e('v_add_f32 v%d, v10, v11' % VA[r])
        red_lanes(k, VA, [8, 9], rors=(8, 4, 2, 1))
        for r in range(2):
            k.e('v_mul_f32 v%d, %s, v%d' % (VA[r], hx(1.0 / 1024), VA[r]))
    for r in range(2):
        round_bf16_pair(k, MU[r], VA[r], 8)
        k.e('v_add_f32 v%d, %s, v%d' % (VA[r], hx(1e-5), VA[r]))
    round_bf16_pair(k, VA[0], VA[1], 8)
    for r in range(2): k.e('v_sqrt_f32 v%d, v%d' % (VA[r], VA[r]))
    k.e('s_nop 0')
    round_bf16_pair(k, VA[0], VA[1], 8)
    for r in range(2): k.e('v_rcp_f32 v%d, v%d' % (VA[r], VA[r]))
    def tag_setup():
        srd(k, 96, 'ws', WS_MODT, 64 * KB)
        k.e('v_lshlrev_b32 v81, 4, v1')
        k.e('s_lshl_b32 s100, s3, 11')
        k.e('v_add_u32 v81, s100, v81')
        k.e('v_lshlrev_b32 v80, 3, v1')
        k.e('s_lshl_b32 s100, s3, 10')
        k.e('s_add_u32 s100, s100, %d' % AUX_A)
        k.e('v_add_u32 v80, s100, v80')
        k.e('s_mov_b32 s101, 0x100000')
    def tag_loads():
        for q in range(4):
            k.e('s_mov_b32 s56, %d' % (q * 16384))
            for hh in range(2): k.e('buffer_load_dwordx4 %s, v81, s[96:99], s56 offen offset:%d sc1' % (vr(96 + 8 * q + 4 * hh, 4), hh * 1024))
    ET = env('ET', 0)
    if ET == 1:
        if RLN: resets(132, False)
        tag_setup(); tag_loads()
    k.e("""
    v_lshrrev_b32 v5, 1, v1
    v_mul_u32_u24 v5, 544, v5          ; cb*2*272
    v_and_b32 v7, 1, v1
    v_lshl_add_u32 v5, v7, 3, v5
    s_lshl_b32 s44, s3, 5
    v_add_u32 v5, s44, v5
    """)
    for r in range(2):
        x = X + 16 * r; pin = 8 + 8 * r
        for d in range(8): k.e(pk('add', x + 2 * d, x + 2 * d, (MU[r],)))
        for d in range(8): round_bf16_pair(k, x + 2 * d, x + 2 * d + 1, pin + d)
        for d in range(8): k.e(pk('mul', x + 2 * d, x + 2 * d, (VA[r],)))
        for d in range(8): k.e('v_cvt_pk_bf16_f32 v%d, v%d, v%d' % (pin + d, x + 2 * d, x + 2 * d + 1))
        for q, o in enumerate((0, 272, 64 * 272, 65 * 272)):
            k.e('ds_write_b64 v5, %s offset:%d' % (vr(pin + 2 * q, 2), o + 16 * r))
    k.e("""
    v_lshrrev_b32 v5, 4, v0            ; gi (p=0)
    v_and_b32 v7, 15, v0               ; row
    v_mul_u32_u24 v2, 272, v5
    v_lshl_add_u32 v2, v7, 4, v2       ; granule lds address
    v_lshlrev_b32 v4, 9, v5
    v_lshl_add_u32 v4, v7, 4, v4       ; global offset
    v_lshrrev_b32 v3, 1, v5
    v_lshlrev_b32 v3, 6, v3
    v_and_b32 v5, 1, v5
    v_lshl_add_u32 v3, v5, 4, v3
    v_add_u32 v3, %d, v3               ; table address: cb*64 + h*16
    s_lshr_b32 s44, s30, 1
    s_lshl_b32 s44, s44, 16
    s_and_b32 s45, s30, 1
    s_lshl_b32 s45, s45, 8
    s_add_u32 s44, s44, s45
    s_mov_b32 s48, %d
    s_cmp_lt_u32 s3, 4
    s_cselect_b32 s49, 0, 1.0
    s_waitcnt lgkmcnt(0)
    """ % (AUX_A, WS_MODP))
    if MP0 in (2, 3): rest_compute(0)
    if RLN == 1 and ET != 1: resets(132, False)
    if ET == 2: tag_setup(); tag_loads()
    mark(k, 1)
    if XT:
        srd(k, 36, 'ws', WS_N, 4 * MB)
        k.e('s_barrier')
        for p in range(4): k.e('ds_read_b128 %s, v2 offset:%d' % (vr(8 + 4 * p, 4), p * 32 * 272))
        for p in range(4):
            k.e('s_waitcnt lgkmcnt(%d)' % (3 - p))
            k.e('buffer_store_dwordx4 %s, v4, s[36:39], s44 offen%s' % (vr(8 + 4 * p, 4), WT))
            k.e('s_add_u32 s44, s44, 16384')
        mark(k, 3)
        signal(k, 'S')
        finish(k)
        k.need(128, AUX_A + 8192)
        return
    X = 24
    k.e('s_barrier')
    for p in range(4): k.e('ds_read_b128 %s, v2 offset:%d' % (vr(8 + 4 * p, 4), p * 32 * 272))
    for p in range(4):
        k.e('s_waitcnt lgkmcnt(%d)' % (3 - p))
        for d in range(4): unpack(k, X + 8 * p + 2 * d, X + 8 * p + 2 * d + 1, 8 + 4 * p + d)
    if TAGP:
        lp = k.newlabel('wf'); le = k.newlabel('we')
        if ET:
            k.e('s_branch %sc' % lp)
        else: tag_setup()
        k.label(lp)
        tag_loads()
        k.label(lp + 'c')
        k.e('s_mov_b64 s[50:51], 0')
        for n in range(8):
            k.e('s_waitcnt vmcnt(%d)' % (7 - n))
            k.e('v_cmp_ne_u64 vcc, s[84:85], %s' % vr(98 + 4 * n, 2))
            k.e('s_or_b64 s[50:51], s[50:51], vcc')
        k.e('s_cbranch_scc0 %s' % le)
        k.e('s_sub_u32 s101, s101, 1')
        k.e('s_sleep %d' % env('P0SLEEP', 1))
        k.e('s_cmp_lg_u32 s101, 0')
        k.e('s_cbranch_scc1 %s' % lp)
        k.label(le)
        mark(k, 2)
        for hh in range(2):
            b = 96 + 4 * hh
            k.e(pk('add', b, b, b + 8)); k.e(pk('add', b + 16, b + 16, b + 24)); k.e(pk('add', 64 + 2 * hh, b, b + 16))
    else:
        srd(k, 96, 'ws', WS_FL, FLSZ)
        lp = k.newlabel('wf'); le = k.newlabel('we')
        k.e("""
        s_lshl_b32 s100, s3, 11
        s_add_u32 s100, s100, %d
        v_lshlrev_b32 v%d, 7, v1
        v_add_u32 v80, %d, v6
        s_mov_b32 s101, 0x100000
        s_mov_b64 exec, 0xffff
        %s:
        buffer_load_dwordx2 %s, v%d, s[96:99], s100 offen sc1
        s_waitcnt vmcnt(0)
        v_cmp_ne_u64 vcc, s[84:85], %s
        s_sub_u32 s101, s101, 1
        s_nop 3
        s_cbranch_vccz %s
        s_mov_b64 exec, vcc
        s_sleep %d
        s_cmp_lg_u32 s101, 0
        s_cbranch_scc1 %s
        %s:
        s_mov_b64 exec, -1
        """ % (FL_MOD * 32, FV + 2, AUX_A, lp, vr(FV, 2), FV + 2, vr(FV, 2), le, env('P0SLEEP', 1), lp, le))
        mark(k, 2)
        for q in range(4):
            k.e('buffer_load_dwordx4 %s, v6, s[40:43], s48 offen sc1' % vr(64 + 4 * q, 4))
            k.e('s_add_u32 s48, s48, 8192')
        k.e('s_waitcnt vmcnt(0)')
        k.e(pk('add', 64, 64, 68)); k.e(pk('add', 66, 66, 70)); k.e(pk('add', 72, 72, 76)); k.e(pk('add', 74, 74, 78))
        k.e(pk('add', 64, 64, 72)); k.e(pk('add', 66, 66, 74))
    for d in range(2): round_bf16_pair(k, 64 + 2 * d, 65 + 2 * d, 68)
    for q in range(4): k.e('v_add_f32 v%d, s49, v%d' % (64 + q, 64 + q))
    for d in range(2): round_bf16_pair(k, 64 + 2 * d, 65 + 2 * d, 68)
    if TAGP:
        k.e('ds_write_b64 v80, v[64:65]')
        k.e('ds_write_b64 v80, v[66:67] offset:512')
    else: k.e('ds_write_b128 v80, v[64:67]')
    k.e('s_waitcnt lgkmcnt(0)')
    k.e('s_barrier')
    SC = 64; SH = 96
    for p in range(4):
        for sub in range(2):
            k.e('ds_read_b128 %s, v3 offset:%d' % (vr(SC + 8 * p + 4 * sub, 4), 4096 + p * 1024 + sub * 32))
            k.e('ds_read_b128 %s, v3 offset:%d' % (vr(SH + 8 * p + 4 * sub, 4), p * 1024 + sub * 32))
    for p in range(4):
        pin = 8 + 4 * p; x = X + 8 * p
        k.e('s_waitcnt lgkmcnt(%d)' % (12 - 4 * p))
        if env('NORND', 0):
            for d in range(4): k.e(pk('fma', x + 2 * d, x + 2 * d, SC + 8 * p + 2 * d, SH + 8 * p + 2 * d))
        else:
            for d in range(4): k.e(pk('mul', x + 2 * d, x + 2 * d, SC + 8 * p + 2 * d))
            for d in range(4): round_bf16_pair(k, x + 2 * d, x + 2 * d + 1, pin + d)
            for d in range(4): k.e(pk('add', x + 2 * d, x + 2 * d, SH + 8 * p + 2 * d))
        for d in range(4): k.e('v_cvt_pk_bf16_f32 v%d, v%d, v%d' % (pin + d, x + 2 * d, x + 2 * d + 1))
        k.e('buffer_store_dwordx4 %s, v4, s[36:39], s44 offen%s' % (vr(pin, 4), WT))
        k.e('s_add_u32 s44, s44, 16384')
    if RLN == 3: resets(132, False)
    mark(k, 3)
    signal(k, 'S')
    finish(k)
    k.need(128, AUX_A + 10240)

def log2(n):
    l = n.bit_length() - 1
    assert 1 << l == n
    return l
class G: pass

def k_gemm(k, c, GM, GN, bm_log2, xm_log2, bn, TM, TN, WM, WN, K, KS, NS, X, Y, pre, pre2, epi, swap=(), aux=None, auxsz=0, auxbase=None,
           pf=None, aux_end=None, side=None, wait=None, sig=None, dep='X', GU=1, RWD=1, post=None, frbase=None, selfsig=False, RR=0, early=None, JG=1, lazyfix=False, SOFT=0, own=None, ownlim=None, altmap=False, prelast=None, DEFER=0, dcols=None, auxpre=None, mid=None, accmap=None, cinit=False, geo=None, tailpre=None):
    g = G()
    name = c.name
    xt = X[0] == 'xt'
    M16 = name in os.environ.get('M16', 'qkv,wo,win,wsp,wout').split(',')
    if xt: X = ('xf',) + X[1:]
    ROLL = env('ROLL_' + name, env('ROLL', 0 if name == 'qkv' else 1))
    LAG = 2 if ROLL else 1
    NS = env('NS_' + name, NS + LAG - 1)
    mb = TM // WM // 32; nb = TN // WN // 32
    S = KS // 16
    xb = TM * KS * 2; yb = TN * KS * 2; STAGE = xb + yb
    nst = K // KS
    solo = c.first and c.last
    g.k = k; g.mb = mb; g.nb = nb; g.TM = TM; g.TN = TN; g.AUX = NS * STAGE if solo or auxbase is None else auxbase
    assert NS * STAGE <= g.AUX
    phase_begin(k, c)
    k.e('''
    v_and_b32 v1, 63, v0               ; lane
    s_mov_b32 s46, s3
    s_and_b32 s47, s2, 7               ; xcd
    s_lshr_b32 s48, s2, 3              ; idx
    s_and_b32 s30, s47, %d
    s_lshl_b32 s30, s30, %d
    s_and_b32 s49, s48, %d
    s_add_u32 s30, s30, s49            ; tm
    s_lshr_b32 s31, s47, %d
    s_mul_i32 s31, s31, %d
    s_lshr_b32 s49, s48, %d
    s_add_u32 s31, s31, s49            ; tn
    ''' % ((1 << xm_log2) - 1, bm_log2, (1 << bm_log2) - 1, xm_log2, bn, bm_log2))
    if altmap:
        k.e('''
        s_and_b32 s30, s47, 3
        s_lshl_b32 s30, s30, 3
        s_and_b32 s49, s48, 3
        s_lshl_b32 s49, s49, 1
        s_add_u32 s30, s30, s49
        s_bfe_u32 s49, s48, 0x10002
        s_add_u32 s30, s30, s49
        ''')
    if env('MAP_' + name, 0):
        k.e('''
        s_lshr_b32 s31, s47, 1
        s_mul_i32 s31, s31, 28
        s_add_u32 s31, s31, s48
        s_and_b32 s30, s47, 1
        s_lshl_b32 s30, s30, 3
        s_and_b32 s49, s31, 7
        s_add_u32 s30, s30, s49
        s_lshr_b32 s31, s31, 3
        ''')
    lcomp = 'L_%s_comp' % name
    set_flag(k, sig)
    if pf or side:
        k.e('s_cmp_ge_u32 s2, %d' % (GM * GN))
        k.e('s_cbranch_scc1 L_%s_pf' % name)
    k.e('s_cmp_ge_u32 s46, 4')
    k.e('s_cbranch_scc1 %s' % lcomp)
    nx = xb // 1024 // 4; ny = yb // 1024 // 4
    assert nx * 4096 == xb and ny * 4096 == yb
    VX = 8; VY = VX + nx
    g.LV = VY + ny
    if X[0] == 'xf':
        C = X[2]; ncb = C // 16
        assert S % nx == 0 or nx % S == 0
        k.e('s_mul_i32 s50, s30, %d' % (TM // 32 * ncb * 1024))
        k.e('s_mul_i32 s51, s46, %d' % nx)
        k.e('s_lshr_b32 s52, s51, %d' % log2(S))
        k.e('s_and_b32 s51, s51, %d' % (S - 1))
        k.e('s_mul_i32 s52, s52, %d' % (ncb * 1024))
        k.e('s_lshl_b32 s51, s51, 10')
        k.e('s_add_u32 s50, s50, s52')
        k.e('s_add_u32 s50, s50, s51')
        k.e('v_lshl_add_u32 v%d, v1, 4, s50' % VX)
        for j in range(1, nx):
            k.e('v_add_u32 v%d, %d, v%d' % (VX + j, (j // S) * ncb * 1024 + (j % S) * 1024, VX))
        xadv = S * 1024
    else:
        ld = X[2]
        assert nx % 2 == 0
        k.e('s_mul_i32 s50, s30, %d' % (TM * ld))
        k.e('s_mul_i32 s51, s46, %d' % (nx * 8 * ld))
        k.e('s_add_u32 s50, s50, s51')
        k.e('v_lshrrev_b32 v2, 3, v1')
        k.e('v_lshl_add_u32 v2, v2, %d, s50' % log2(ld))
        k.e('v_and_b32 v3, 7, v1')
        k.e('v_lshrrev_b32 v4, 4, v1')
        k.e('v_xor_b32 v5, v4, v3')
        k.e('v_lshl_add_u32 v%d, v5, 4, v2' % VX)
        k.e('v_xor_b32 v5, 64, v%d' % VX)
        k.e('v_add_u32 v%d, %d, v5' % (VX + 1, 8 * ld))
        for j in range(2, nx):
            k.e('v_add_u32 v%d, %d, v%d' % (VX + j, (j - j % 2) * 8 * ld, VX + j % 2))
        xadv = KS * 2
    k.e('''
    v_lshrrev_b32 v2, 4, v1            ; u
    v_bfe_u32 v3, v1, 2, 2             ; (i>>2)&3
    v_and_b32 v4, 3, v1                ; i&3
    ''')
    if Y[0] == 'w':
        ld = Y[2]
        NP = TN // 64
        assert ny % NP == 0
        if M16:
            k.e('v_and_b32 v5, 2, v2')
            k.e('v_xor_b32 v4, v4, v5')
        k.e('v_lshrrev_b32 v5, 1, v2')
        k.e('v_lshl_add_u32 v5, v5, 2, v3')
        k.e('v_mul_u32_u24 v5, %d, v5' % ld)
        k.e('v_and_b32 v6, 1, v2')
        k.e('v_lshl_add_u32 v5, v6, 6, v5')
        k.e('v_lshl_add_u32 v5, v4, 4, v5')
        if Y[3] == 'qkv': tstride, segs = 128, [0, 2048, 4096]
        elif Y[3]: tstride, segs = Y[3]
        else: tstride, segs = TN * 2, [p * 128 for p in range(NP)]
        k.e('s_mul_i32 s50, s46, %d' % (ny // NP * 8 * ld))
        k.e('s_mul_i32 s51, s31, %d' % tstride)
        k.e('s_add_u32 s50, s50, s51')
        k.e('v_add_u32 v5, s50, v5')
        for j in range(ny):
            k.e('v_add_u32 v%d, %d, v5' % (VY + j, (j // NP) * 8 * ld + segs[j % NP]))
        yadv = KS * ld
    else:
        C = Y[2]; ncb = C // 16
        NB = TN // 32
        assert ny == NB and S == 4
        if M16:
            k.e('v_and_b32 v5, 2, v2')
            k.e('v_xor_b32 v3, v3, v5')
        k.e('v_lshl_add_u32 v5, v2, 2, v4')
        k.e('v_lshlrev_b32 v5, 4, v5')
        k.e('v_lshl_add_u32 v5, v3, 9, v5')
        k.e('s_lshr_b32 s50, s46, 1')
        k.e('s_mul_i32 s50, s50, %d' % (ncb * 1024))
        k.e('s_and_b32 s51, s46, 1')
        k.e('s_lshl_b32 s51, s51, 8')
        k.e('s_add_u32 s50, s50, s51')
        k.e('s_mul_i32 s51, s31, %d' % (TN // 16 * 1024))
        k.e('s_add_u32 s50, s50, s51')
        k.e('v_add_u32 v%d, s50, v5' % VY)
        for j in range(1, ny):
            k.e('v_add_u32 v%d, %d, v%d' % (VY + j, j * 2048, VY))
        yadv = 2 * ncb * 1024
    k.e('s_mul_i32 s55, s46, %d' % (nx * 1024))
    k.e('s_mul_i32 s56, s46, %d' % (ny * 1024))
    if geo:
        k.e('s_add_u32 s55, s55, %d' % geo[2])
        if geo[0]: k.e('s_add_u32 s56, s56, %d' % geo[0])
    else: k.e('s_add_u32 s56, s56, %d' % xb)
    per = nx + ny
    assert per * NS <= 55 and nst >= 2 * NS
    k.e('s_waitcnt lgkmcnt(0)')
    mark(k, 0)
    if Y[0] == 'w': srd(k, 36, Y[1])
    else: srd(k, 36, 'ws', Y[1], 2048 * Y[2] * 2)
    if X[0] == 'xf': srd(k, 32, 'ws', X[1], 2048 * X[2] * 2)
    else: srd(k, 32, X[1])
    xfl = ' sc1' if X[0] == 'xf' else ''
    yfl = ' sc1' if Y[0] == 'z' else ''
    ntf = os.environ.get('NT_' + name, os.environ.get('NT', ''))
    if 'X' in ntf: xfl += ' nt'
    if 'Y' in ntf: yfl += ' nt'
    ownlds = name == 'wsp' and ZOWN and c.prev == 'win'
    OWN = own if (own and not c.first and (OWNF(name) or ownlds)) else None
    RW = env('RW_' + name, min(RWD, 2) if OWN else RWD); RC = env('RC_' + name, 1)
    assert nst % RW == 0
    if RW > 1:
        k.e('s_mul_i32 s54, s31, %d' % RC)
        k.e('s_add_u32 s54, s54, s30')
    if OWN:
        assert RW <= 2
        k.e(OWN)
        k.e('s_and_b32 s54, s54, 1' if RW > 1 else 's_mov_b32 s54, 0')
    out = []
    RB = 48
    dyn = [None]
    def soff(st, adv):
        if OWN:
            if st < 2: k.e('s_add_u32 s57, s68, %d' % st)
            else:
                k.e('s_cmp_le_u32 s68, %d' % (st - 2))
                k.e('s_cselect_b32 s57, %d, %d' % (st, st - 2))
                k.e('s_xor_b32 s57, s57, s54')
            k.e('s_mul_i32 s57, s57, %d' % adv)
        elif dyn[0] is not None:
            assert RW in (1, 2, 4)
            if RW > 1:
                k.e('s_add_u32 s57, s54, %d' % st)
                k.e('s_and_b32 s57, s57, %d' % (RW - 1))
                k.e('s_add_u32 s57, s57, s59')
                k.e('s_add_u32 s57, s57, %d' % (st // RW * RW))
            else: k.e('s_add_u32 s57, s59, %d' % st)
            k.e('s_mul_i32 s57, s57, %d' % adv)
        elif RW > 1:
            k.e('s_add_u32 s57, s54, %d' % st)
            k.e('s_and_b32 s57, s57, %d' % (RW - 1))
            k.e('s_mul_i32 s57, s57, %d' % adv)
            if st // RW: k.e('s_add_u32 s57, s57, %d' % (st // RW * RW * adv))
        else: k.e('s_mov_b32 s57, %d' % (st * adv))
    def opinfo(op): return (nx, 's55', VX, 32, xadv, xfl) if op == 'X' else (ny, 's56', VY, 36, yadv, yfl)
    def throttle(n):
        if len(out) + n > 60:
            k.e('s_waitcnt vmcnt(40)'); del out[:len(out) - 40]
    def iss(op, st):
        slot = (st % NS) * STAGE
        if geo: slot = (st % geo[3]) * xb if op == 'X' else (st % geo[1]) * yb
        n, base, V, sd, adv, fl = opinfo(op)
        if op == ind and st in Rset:
            if ('r', st) in out:
                last = max(i for i, t in enumerate(out) if t == ('r', st))
                k.e('s_waitcnt vmcnt(%d)' % (len(out) - 1 - last)); del out[:last + 1]
            r0 = RB + Rset.index(st) * n * 4
            for j in range(n):
                o = slot + j * 1024
                k.e('ds_write_b128 v%d, %s offset:%d' % (44 + o // 65536, vr(r0 + 4 * j, 4), o % 65536))
            return
        throttle(n)
        soff(st, adv)
        for j in range(n):
            k.e('s_add_u32 m0, %s, %d' % (base, slot + j * 1024))
            k.e('s_nop 0')
            k.e('buffer_load_dwordx4 v%d, %s, s57 offen%s lds' % (V + j, sr(sd), fl))
            out.append(st)
    def issr(st):
        n, base, V, sd, adv, fl = opinfo(ind)
        throttle(n)
        soff(st, adv)
        r0 = RB + Rset.index(st) * n * 4
        for j in range(n):
            k.e('buffer_load_dwordx4 %s, v%d, %s, s57 offen' % (vr(r0 + 4 * j, 4), V + j, sr(sd)))
            out.append(('r', st))
    def wait_stage(st):
        lg = ' lgkmcnt(%d)' % min(15, opinfo(ind)[0] * len([r_ for r_ in Rset if st < r_ < st + NS - LAG])) if st in Rset else ''
        if st in out:
            last = max(i for i, t in enumerate(out) if t == st)
            k.e('s_waitcnt vmcnt(%d)%s' % (len(out) - 1 - last, lg))
            del out[:last + 1]
        elif lg: k.e('s_waitcnt' + lg)
    I0 = env('I0_' + name, 2)
    ind = 'Y' if dep == 'X' else 'X'
    fusedw = wait and not c.first and not env('WLATE_' + name, 0)
    R = env('RR_' + name, RR) if fusedw else 0
    Rset = sorted(set(NS + (2 * i + 1) * (nst - NS) // (2 * R) for i in range(R))) if R else []
    if Rset:
        assert RB + len(Rset) * opinfo(ind)[0] * 4 <= 256
        k.need(RB + len(Rset) * opinfo(ind)[0] * 4, 0)
        k.e('v_lshl_add_u32 v44, v1, 4, %s' % opinfo(ind)[1])
        k.e('v_add_u32 v45, 0x10000, v44')
    if xt:
        DX = env('DX', 4); NR = 64; TB = NR + DX * 8; TX = TB + 32
        assert nx == 2 and S == 2
        k.need(TX + 16, 0)
        k.e('v_lshl_add_u32 v44, v1, 4, s55')
        k.e('v_add_u32 v45, 0x10000, v44')
        k.e('v_lshrrev_b32 v46, 5, v1')
        k.e('v_lshlrev_b32 v46, 4, v46')
        k.e('v_add_u32 v46, %d, v46' % AUX_A)
        def ldn(st):
            soff(st, xadv)
            for j in range(2):
                k.e('buffer_load_dwordx4 %s, v%d, s[32:35], s57 offen sc1' % (vr(NR + (st % DX) * 8 + 4 * j, 4), VX + j))
                out.append(('n', st))
        TW = TX + 16
        k.need(TW + 8, 0)
        def tabrd(st):
            soff(st, 128)
            k.e('v_add_u32 v47, s57, v46')
            for j in range(2):
                for sub in range(2):
                    k.e('ds_read_b128 %s, v47 offset:%d' % (vr(TB + 16 * j + 4 * sub, 4), 4096 + j * 64 + sub * 32))
                    k.e('ds_read_b128 %s, v47 offset:%d' % (vr(TB + 16 * j + 8 + 4 * sub, 4), j * 64 + sub * 32))
        def xform(st):
            if ('n', st) in out:
                last = max(i for i, t in enumerate(out) if t == ('n', st))
                k.e('s_waitcnt vmcnt(%d)' % (len(out) - 1 - last)); del out[:last + 1]
            r0 = NR + (st % DX) * 8
            for d in range(8): unpack(k, TX + 2 * d, TX + 2 * d + 1, r0 + d)
            if st + DX < nst: ldn(st + DX)
            k.e('s_waitcnt lgkmcnt(0)')
            for j in range(2):
                for e in range(8): k.e('v_fma_f32 v%d, v%d, v%d, v%d' % (TX + 8 * j + e, TX + 8 * j + e, TB + 16 * j + e, TB + 16 * j + 8 + e))
            for j in range(2):
                for d in range(4): k.e('v_cvt_pk_bf16_f32 v%d, v%d, v%d' % (TW + 4 * j + d, TX + 8 * j + 2 * d, TX + 8 * j + 2 * d + 1))
                o = (st % NS) * STAGE + j * 1024
                k.e('ds_write_b128 v%d, %s offset:%d' % (44 + o // 65536, vr(TW + 4 * j, 4), o % 65536))
            if st + 1 < nst: tabrd(st + 1)
        for st in range(NS): iss('Y', st)
        k.e('s_barrier')
        mark(k, 1)
        out.extend(['p'] * 4)
        mod_table(k, 24, between=lambda: [ldn(st) for st in range(DX)], nb=2 * DX)
        del out[:len(out) - 2 * DX]
        if env('XPRIO', 0): k.e('s_setprio %d' % env('XPRIO', 0))
        XL = env('XL', 2)
        assert XL >= 2
        tabrd(0)
        for st in range(XL): xform(st)
        def capture(fn):
            n0 = len(k.lines); fn(); got = k.lines[n0:]; del k.lines[n0:]
            return got
        def step(st):
            lg = ' lgkmcnt(0)' if st + XL > nst else ''
            if st in out:
                last = max(i for i, t in enumerate(out) if t == st)
                k.e('s_waitcnt vmcnt(%d)%s' % (len(out) - 1 - last, lg)); del out[:last + 1]
            elif lg: k.e('s_waitcnt' + lg)
            if st == 0: mark(k, 2)
            k.e('s_barrier')
            sx = st + XL; sy = st + NS - LAG
            doy = st >= LAG and sy < nst
            if sx >= nst:
                if doy: iss('Y', sy)
                return
            if ('n', sx) in out:
                last = max(i for i, t in enumerate(out) if t == ('n', sx))
                nw = 's_waitcnt vmcnt(%d)' % (len(out) - 1 - last + (1 if doy else 0)); del out[:last + 1]
            else: nw = None
            yl = capture(lambda: iss('Y', sy)) if doy else []
            yp = []; cur = []
            for l in yl:
                if 's_nop' in l: continue
                cur.append(l)
                if 'buffer_load' in l: yp.append(cur); cur = []
            nl = capture(lambda: ldn(sx + DX)) if (sx + DX < nst or dyn[0] is not None) else []
            nl = [l.replace('s57', 's58') for l in nl]
            npc = [nl[:-1], nl[-1:]] if nl else [[], []]
            r0 = NR + (sx % DX) * 8
            un = capture(lambda: [unpack(k, TX + 2 * d, TX + 2 * d + 1, r0 + d) for d in range(8)])
            fm = ['    v_fma_f32 v%d, v%d, v%d, v%d' % (TX + 8 * j + e, TX + 8 * j + e, TB + 16 * j + e, TB + 16 * j + 8 + e) for j in range(2) for e in range(8)]
            def put(piece):
                if len(piece) >= 2 and 'm0' in piece[-2]: piece = piece[:-1] + ['    s_nop 0', piece[-1]]
                k.lines.extend(piece)
            if yp: put(yp[0])
            if nw: k.e(nw)
            k.lines.extend(un[:8])
            if yp: put(yp[1])
            k.lines.extend(un[8:])
            if yp: put(yp[2])
            k.e('s_waitcnt lgkmcnt(0)')
            k.lines.extend(fm[:10])
            k.lines.extend(npc[0])
            k.lines.extend(fm[10:])
            if sx + 1 < nst: tabrd(sx + 1)
            k.lines.extend(npc[1])
            for j in range(2):
                for d in range(4): k.e('v_cvt_pk_bf16_f32 v%d, v%d, v%d' % (TW + 4 * j + d, TX + 8 * j + 2 * d, TX + 8 * j + 2 * d + 1))
                o = (sx % NS) * STAGE + j * 1024
                k.e('ds_write_b128 v%d, %s offset:%d' % (44 + o // 65536, vr(TW + 4 * j, 4), o % 65536))
        assert NS == 4 and DX == 4 and XL == 2 and LAG == 1 and nst == 32
        for st in range(5): step(st)
        k.e('s_mov_b32 s59, 0')
        k.label('L_%s_xl' % name)
        dyn[0] = 0
        before = list(out)
        for st in range(5, 9): step(st)
        dyn[0] = None
        sh = lambda t, d: (t[0], t[1] + d) if isinstance(t, tuple) else t + d
        assert [sh(t, 4) for t in before] == out, (before, out)
        k.e('s_add_u32 s59, s59, 4')
        k.e('s_cmp_lt_u32 s59, 24')
        k.e('s_cbranch_scc1 L_%s_xl' % name)
        out[:] = [sh(t, 20) for t in out]
        for st in range(29, 32): step(st)
    elif wait and not c.first and env('WLATE_' + name, 0):
        handoff(k, wait[0], wait[1])
    if xt: pass
    elif geo:
        yb0, NSY, xb0, NSX, NPRE, prelim = geo
        assert fusedw and dep == 'X' and not aux and not aux_end and not OWN
        if NPRE and prelim:
            l = k.newlabel('hp')
            k.e('s_cmp_lt_u32 s2, %d' % prelim); k.e('s_cbranch_scc1 %s' % l)
            for st in range(NPRE): iss('Y', st)
            k.label(l)
        WP = env('WPRE_' + name, NSY)
        for st in range(NPRE, WP): iss('Y', st)
        if auxpre: out.extend(['aux'] * auxpre(g))
        handoff(k, wait[0], wait[1])
        mark(k, 1)
        for st in range(I0): iss('X', st)
        wait_stage(0); mark(k, 2); k.e('s_barrier')
        for st in range(I0, NSX): iss('X', st)
        for st in range(max(WP, NPRE), NSY): iss('Y', st)
        for st in range(1, nst):
            wait_stage(st); k.e('s_barrier')
            if st >= LAG:
                if st + NSX - LAG < nst: iss('X', st + NSX - LAG)
                if st + NSY - LAG < nst: iss('Y', st + NSY - LAG)
    elif fusedw:
        WPRE = env('WPRE_' + name, 2 if name == 'win' else NS)
        iss0 = iss
        def iss(op, st):
            if op == dep and WPRE <= st < NS: iss0(ind, st)
            iss0(op, st)
        for st in range(WPRE): iss(ind, st)
        for st in Rset: issr(st)
        if auxpre: out.extend(['aux'] * auxpre(g))
        if ownlds and LPW:
            k.e('s_barrier')
            handoff(k, wait[0], wait[1], role='W')
            mark(k, 1)
            for st in range(2, NS): iss(dep, st)
            wait_stage(0); mark(k, 2); k.e('s_barrier')
        elif ownlds:
            handoff(k, wait[0], wait[1])
            mark(k, 1)
            I1 = env('I1_' + name, 3)
            for st in range(2, I1): iss(dep, st)
            wait_stage(0); mark(k, 2); k.e('s_barrier')
            for st in range(I1, NS): iss(dep, st)
        elif OWN:
            l1 = k.newlabel('no'); l2 = k.newlabel('no')
            k.e('s_barrier')
            if ownlim:
                k.e('s_cmp_ge_u32 s2, %d' % ownlim); k.e('s_cbranch_scc1 %s' % l1)
            n0 = len(k.lines)
            iss(dep, 0); iss(dep, 1)
            dup = k.lines[n0:]
            k.label(l1)
            handoff(k, wait[0], wait[1])
            mark(k, 1)
            if ownlim:
                k.e('s_cmp_lt_u32 s2, %d' % ownlim); k.e('s_cbranch_scc1 %s' % l2)
                k.lines.extend(dup)
                k.label(l2)
            I1 = env('I1_' + name, 3)
            for st in range(2, I1): iss(dep, st)
            wait_stage(0); mark(k, 2); k.e('s_barrier')
            for st in range(I1, NS): iss(dep, st)
        else:
            handoff(k, wait[0], wait[1])
            mark(k, 1)
            for st in range(I0): iss(dep, st)
            wait_stage(0); mark(k, 2); k.e('s_barrier')
            for st in range(I0, NS): iss(dep, st)
    else:
        for st in range(I0): iss(ind, st); iss(dep, st)
        mark(k, 1)
        wait_stage(0); mark(k, 2); k.e('s_barrier')
        for st in range(I0, NS): iss(ind, st); iss(dep, st)
    FS = bool(Rset) or env('STATIC', 0) or xt or geo
    if FS and not xt and not geo:
        for st in range(1, nst):
            if st == nst - 1: k.e('s_waitcnt vmcnt(0) lgkmcnt(0)')
            else: wait_stage(st)
            if st == nst - 1 and aux_end: aux_end(g)
            k.e('s_barrier')
            nx_st = st + NS - LAG
            if st >= LAG and nx_st < nst:
                iss(dep, nx_st); iss(ind, nx_st)
                if nx_st == nst - 1 and aux:
                    out.extend(['aux'] * aux(g))
    for st in range(1, NS if not FS else 0):
        wait_stage(st); k.e('s_barrier')
        if st >= LAG: iss('Y', st + NS - LAG); iss('X', st + NS - LAG)
    if not FS:
        s0 = 2 * NS - LAG
        k.e('s_add_u32 s60, s55, %d' % (NS * STAGE))
        k.e('s_add_u32 s55, s55, %d' % ((s0 % NS) * STAGE))
        k.e('s_add_u32 s56, s56, %d' % ((s0 % NS) * STAGE))
        k.e('s_mov_b32 s57, %d' % (s0 * xadv))
        k.e('s_mov_b32 s58, %d' % (s0 * yadv))
        k.e('s_mov_b32 s59, %d' % s0)
        ll = 'L_%s_lloop' % name
        k.label(ll)
        if OWN:
            k.e('s_sub_u32 s57, s59, 2')
            k.e('s_cmp_le_u32 s68, s57')
            k.e('s_cselect_b32 s57, s59, s57')
            k.e('s_xor_b32 s57, s57, s54')
            k.e('s_mul_i32 s58, s57, %d' % yadv)
            k.e('s_mul_i32 s57, s57, %d' % xadv)
        elif RW > 1:
            k.e('s_add_u32 s57, s54, s59')
            k.e('s_and_b32 s57, s57, %d' % (RW - 1))
            k.e('s_andn2_b32 s58, s59, %d' % (RW - 1))
            k.e('s_or_b32 s57, s57, s58')
            k.e('s_mul_i32 s58, s57, %d' % yadv)
            k.e('s_mul_i32 s57, s57, %d' % xadv)
        k.e('s_waitcnt vmcnt(%d)' % (per * (NS - 1 - LAG)))
        k.e('s_barrier')
        for j in range(ny):
            k.e('s_add_u32 m0, s56, %d' % (j * 1024))
            k.e('s_nop 0')
            k.e('buffer_load_dwordx4 v%d, s[36:39], s58 offen%s lds' % (VY + j, yfl))
        for j in range(nx):
            k.e('s_add_u32 m0, s55, %d' % (j * 1024))
            k.e('s_nop 0')
            k.e('buffer_load_dwordx4 v%d, s[32:35], s57 offen%s lds' % (VX + j, xfl))
        k.e('s_add_u32 s57, s57, %d' % xadv)
        k.e('s_add_u32 s58, s58, %d' % yadv)
        k.e('s_add_u32 s55, s55, %d' % STAGE)
        k.e('s_add_u32 s56, s56, %d' % STAGE)
        k.e('s_cmp_eq_u32 s55, s60')
        k.e('s_cselect_b32 s61, %d, 0' % (NS * STAGE))
        k.e('s_sub_u32 s55, s55, s61')
        k.e('s_sub_u32 s56, s56, s61')
        k.e('s_add_u32 s59, s59, 1')
        k.e('s_cmp_lt_u32 s59, %d' % nst)
        k.e('s_cbranch_scc1 %s' % ll)
        naux = aux(g) if aux else 0
        if CPF >= 2:
            k.e('s_and_b32 s44, s46, %d' % (env('CPW', 2) - 1))
            k.e('s_lshl_b32 s44, s44, 13')
            if env('CPN', 4):
                l = k.newlabel('ct')
                k.e('s_cmp_ge_u32 s2, %d' % (8 * env('CPN', 4))); k.e('s_cbranch_scc1 %s' % l)
                code_touch(k, 'L_%s_epi' % name, 'L_text_end', 's44', 60)
                k.label(l)
            else:
                code_touch(k, 'L_%s_epi' % name, 'L_text_end', 's44', 60)
                naux += 1
        if tailpre: tailpre[0](k)
        for st in range(nst - NS + LAG, nst):
            k.e('s_waitcnt vmcnt(%d)' % (per * (nst - st - 1) + naux if (st < nst - 1 or tailpre) else 0))
            if st == nst - 1 and aux_end: aux_end(g)
            k.e('s_barrier')
            if tailpre: naux += tailpre[1](k, st - (nst - NS + LAG))
    LE = env('LE_' + name, 2 if name in ('wo', 'wsp') else 0)
    g.LE = 0 if c.last else LE
    if mid: mid(g)
    if not c.last and not LE: k.e('s_barrier')
    if post: post(g)
    if not c.last and LE: k.e('s_barrier')
    signal(k)
    endpgm(k)
    k.label(lcomp)
    HF = env('HFIRST', 0) and wait and not xt and not (ownlds and LPW)
    if HF: handoff(k, wait[0], wait[1], role='C')
    k.e('s_setprio 1')
    k.e('s_sub_u32 s46, s46, 4')
    k.e('s_lshr_b32 s50, s46, %d' % log2(WN))
    k.e('s_and_b32 s51, s46, %d' % (WN - 1))
    ACC = 8
    nacc = mb * nb * 16
    FR = frbase if frbase else ACC + nacc
    GU = env('GU_' + name, GU)
    g.acc = lambda i, j: ACC + (accmap(i, j) if accmap else i * nb + j) * 16
    g.M16 = M16
    k.e('v_and_b32 v3, 31, v1')
    k.e('v_lshrrev_b32 v4, 5, v1')
    if M16:
        JG = env('JG_' + name, JG)
        KSN = KS // 32; NU = KSN * JG; nbj = nb // JG
        XA = FR + max(16 * mb + 16 * nbj, 72 if name == 'win' else 0)
        nxa = KSN if X[0] == 'rm' else 1
        nya = 2
    else:
        NU = S // GU
        assert NU % 2 == 0
        fs1 = (mb + nb) * 4
        fsz = fs1 * GU
        XA = FR + 2 * fsz
        nxa = S if X[0] == 'rm' else 1
        nya = 1
    XB = XA; XC = XA + nxa; YB = XC + nxa; YC = YB + nya
    g.free = YC + nya
    g.FR = FR
    NP = TN // 64; NB = TN // 32
    if Y[0] == 'w':
        if Y[3] == 'qkv': ywave = 's_lshl_b32 s52, s51, 8'
        else:
            assert nb % 2 == 0
            ywave = 's_mul_i32 s52, s51, %d' % (nb // 2 * 1024)
        def yblk(j): return j * 1024 if Y[3] == 'qkv' else (j // 2) * 1024 + (j % 2) * 256
    else: ywave = 's_mul_i32 s52, s51, %d' % (nb * 1024)
    if M16:
        k.e('v_and_b32 v5, 15, v1')
        k.e('v_lshrrev_b32 v6, 4, v1')
        if X[0] == 'xf':
            k.e('s_mul_i32 s52, s50, %d' % (mb * S * 1024))
            if geo: k.e('s_add_u32 s52, s52, %d' % geo[2])
            k.e('v_lshl_add_u32 v7, v5, 4, s52')
            k.e('v_lshl_add_u32 v%d, v6, 9, v7' % XB)
        else:
            k.e('s_mul_i32 s52, s50, %d' % (mb * 4096))
            k.e('v_lshl_add_u32 v2, v5, 7, s52')
            k.e('v_lshrrev_b32 v5, 1, v5')
            for ks in range(KSN):
                k.e('v_add_u32 v7, %d, v6' % (4 * ks))
                k.e('v_xor_b32 v7, v7, v5')
                k.e('v_lshl_add_u32 v%d, v7, 4, v2' % (XB + ks))
        k.e('v_mul_u32_u24 v5, %d, v4' % (2 * NP * 1024 if Y[0] == 'w' else NB * 1024))
        k.e('v_and_b32 v6, 1, v6')
        k.e('v_lshl_add_u32 v5, v6, 9, v5')
        k.e('v_lshl_add_u32 v5, v6, %d, v5' % (5 if Y[0] == 'w' else 7))
        k.e('v_bfe_u32 v6, v1, 2, 2')
        k.e('v_lshl_add_u32 v5, v6, %d, v5' % (6 if Y[0] == 'w' else 4))
        k.e('v_bfe_u32 v6, v1, 1, 1')
        k.e('v_lshl_add_u32 v5, v6, %d, v5' % (3 if Y[0] == 'w' else 6))
        k.e('v_and_b32 v6, 1, v1')
        k.e('v_lshl_add_u32 v5, v6, %d, v5' % (4 if Y[0] == 'w' else 3))
        k.e(ywave)
        k.e('s_add_u32 s52, s52, %d' % (geo[0] if geo else xb))
        k.e('v_add_u32 v%d, s52, v5' % YB)
        k.e('v_xor_b32 v%d, %d, v%d' % (YB + 1, 32 if Y[0] == 'w' else 128, YB))
    else:
        if X[0] == 'xf':
            k.e('s_mul_i32 s52, s50, %d' % (mb * S * 1024))
            k.e('v_lshl_add_u32 v%d, v1, 4, s52' % XB)
        else:
            assert KS == 64
            k.e('s_mul_i32 s52, s50, %d' % (mb * 4096))
            k.e('v_bfe_u32 v5, v3, 1, 3')
            k.e('v_lshl_add_u32 v6, v3, 7, s52')
            for ss in range(S):
                k.e('v_add_u32 v7, %d, v4' % (2 * ss))
                k.e('v_xor_b32 v7, v7, v5')
                k.e('v_lshl_add_u32 v%d, v7, 4, v6' % (XB + ss))
        k.e("""
        v_lshlrev_b32 v5, 9, v4            ; h*512
        v_bfe_u32 v6, v1, 2, 2             ; r
        v_lshl_add_u32 v5, v6, %d, v5
        v_bfe_u32 v6, v1, 4, 1             ; G&1
        v_lshl_add_u32 v5, v6, %d, v5
        v_bfe_u32 v6, v1, 1, 1             ; c>>1
        v_and_b32 v7, 1, v1                ; c&1
        """ % ((6, 5) if Y[0] == 'w' else (4, 7)))
        if Y[0] == 'w':
            k.e('v_lshl_add_u32 v5, v6, 4, v5')
            k.e('v_lshl_add_u32 v5, v7, 3, v5')
        else:
            k.e('v_lshl_add_u32 v5, v7, 6, v5')
            k.e('v_lshl_add_u32 v5, v6, 3, v5')
        k.e(ywave)
        k.e('s_add_u32 s52, s52, %d' % xb)
        k.e('v_add_u32 v%d, s52, v5' % YB)
    k.e('s_waitcnt lgkmcnt(0)')
    mark(k, 0)
    pre(g)
    if M16:
        def xr16(sp, ks, i, rh): return FR + (sp[0] if isinstance(sp, tuple) else (sp * KSN + ks) % 2) * 8 * mb + (2 * i + rh) * 4
        def yr16(sp, u, j, t): return FR + 16 * mb + (sp[1] if isinstance(sp, tuple) else (sp * NU + u) % 2) * 8 * nbj + ((j % nbj) * 2 + t) * 4
        def cols(jg, sp): return sp[2] if isinstance(sp, tuple) else range(jg * nbj, (jg + 1) * nbj)
        def reads(u, sp=0):
            ks = u // JG; jg = u % JG
            xr = []; yr = []
            if jg == 0 or isinstance(sp, tuple):
                for i in range(mb):
                    for rh in range(2):
                        if X[0] == 'xf': xr.append('ds_read_b128 %s, v%d offset:%d' % (vr(xr16(sp, ks, i, rh), 4), XC, (i * S + 2 * ks) * 1024 + rh * 256))
                        else: xr.append('ds_read_b128 %s, v%d offset:%d' % (vr(xr16(sp, ks, i, rh), 4), XC + ks, i * 4096 + rh * 2048))
            for j in cols(jg, sp):
                for t in range(2):
                    for rd in range(2):
                        o = (4 * ks + rd) * NP * 1024 + yblk(j) if Y[0] == 'w' else (2 * ks * NB + j) * 1024 + rd * 256
                        yr.append('ds_read_b64_tr_b16 %s, v%d offset:%d' % (vr(yr16(sp, u, j, t) + 2 * rd, 2), YC + t, o))
            return xr[:1] + yr[:2] + xr[1:] + yr[2:]
        def mfmas(u, first, sp=0):
            ks = u // JG; jg = u % JG
            out = []
            for j in cols(jg, sp):
                for t in range(2):
                    for i in range(mb):
                        for rh in range(2):
                            x_ = xr16(sp, ks, i, rh); y_ = yr16(sp, u, j, t)
                            if j in swap: a = g.acc(i, j) + 8 * rh + 4 * t; p, q = x_, y_
                            else: a = g.acc(i, j) + 8 * t + 4 * rh; p, q = y_, x_
                            out.append('v_mfma_f32_16x16x32_bf16 %s, %s, %s, %s' % (vr(a, 4), vr(p, 4), vr(q, 4), '0' if first and ks == 0 and not cinit else vr(a, 4)))
            return out
        def fix(i, j):
            a = g.acc(i, j)
            for hb in range(2):
                for e in range(4):
                    k.e('%s v%d, v%d' % ('v_permlane32_swap_b32' if j in swap else 'v_permlane16_swap_b32', a + 8 * hb + e, a + 8 * hb + 4 + e))
    else:
        def yoff(j, ss, rd):
            return (2 * ss + rd) * NP * 1024 + yblk(j) if Y[0] == 'w' else (ss * NB + j) * 1024 + rd * 256
        def xf(ss, i): return FR + ((ss // GU) % 2) * fsz + (ss % GU) * fs1 + i * 4
        def yf(ss, j): return FR + ((ss // GU) % 2) * fsz + (ss % GU) * fs1 + (mb + j) * 4
        def reads1(ss):
            xr = []; yr = []
            for i in range(mb):
                if X[0] == 'xf':
                    xr.append('ds_read_b128 %s, v%d offset:%d' % (vr(xf(ss, i), 4), XC, (i * S + ss) * 1024))
                else:
                    xr.append('ds_read_b128 %s, v%d offset:%d' % (vr(xf(ss, i), 4), XC + ss, i * 4096))
            for j in range(nb):
                for rd in range(2):
                    yr.append('ds_read_b64_tr_b16 %s, v%d offset:%d' % (vr(yf(ss, j) + 2 * rd, 2), YC, yoff(j, ss, rd)))
            return [xr[0]] + yr[:2] + xr[1:] + yr[2:]
        def reads(u, sp=0): return [r for ss in range(u * GU, (u + 1) * GU) for r in reads1(ss)]
        def mfmas(u, first, sp=0):
            out = []
            for ss in range(u * GU, (u + 1) * GU):
                for j in range(nb):
                    for i in range(mb):
                        a = g.acc(i, j)
                        c_ = '0' if first and ss == 0 else vr(a, 16)
                        p, q = (xf(ss, i), yf(ss, j)) if j in swap else (yf(ss, j), xf(ss, i))
                        out.append('v_mfma_f32_32x32x16_bf16 %s, %s, %s, %s' % (vr(a, 16), vr(p, 4), vr(q, 4), c_))
            return out
        def fix(i, j): pass
    g.fix = fix
    def setaddr():
        for t in range(nxa): k.e('v_add_u32 v%d, s53, v%d' % (XC + t, XB + t))
        for t in range(nya): k.e('v_add_u32 v%d, s%d, v%d' % (YC + t, 52 if geo else 53, YB + t))
    RPGV = [env('RPG2_' + name, (5 if mb * nb == 2 else (2 if name == 'qkv' else 3)) * (1 if M16 else 2))]
    import re
    def regs_of(txt):
        return [(int(a_), int(b_)) for a_, b_ in re.findall(r'v\[(\d+):(\d+)\]', txt)]
    def advance():
        n0 = len(k.lines)
        if geo:
            k.e('s_add_u32 s53, s53, %d' % xb)
            k.e('s_and_b32 s53, s53, %d' % (geo[3] * xb - 1))
            k.e('s_add_u32 s52, s52, %d' % yb)
            k.e('s_cmp_eq_u32 s52, %d' % (geo[1] * yb))
            k.e('s_cselect_b32 s52, 0, s52')
        else:
            k.e('s_add_u32 s53, s53, %d' % STAGE)
            k.e('s_cmp_eq_u32 s53, %d' % (NS * STAGE))
            k.e('s_cselect_b32 s53, 0, s53')
        setaddr()
        got = [l.strip() for l in k.lines[n0:]]; del k.lines[n0:]
        return got
    EARLY = env('EARLYADV', 1)
    RM = [ROLL]
    def unit(u, first, rs, sp, extra):
        ms = mfmas(u, first, sp)
        prev = reads(u, sp)
        dst = [regs_of(r)[0] for r in prev]
        ROLL = RM[0]
        covered = -1 if ROLL else len(prev); issued = 0; xi = 0
        WMAX = env('WMAX_' + name, env('WMAX', 9))
        nspread = len(ms) - (min(len(extra) // 2 + 1, len(ms) // 3) if extra else 0)
        for mi, m in enumerate(ms):
            ops = regs_of(m)[1:3]
            need = max(i for i, d in enumerate(dst) if any(o[0] <= d[0] <= o[1] for o in ops))
            if need > covered:
                n = min(len(prev) - 1 - need + issued, WMAX)
                k.e('s_waitcnt lgkmcnt(%d)' % n)
                covered = len(prev) - 1 - (n - issued) if n >= issued else len(prev) - 1
            k.e(m)
            e = min(len(rs), -(-len(rs) * (mi + 1) // nspread) if ROLL == 1 else -(-RPGV[0] * (mi + 1) // 2))
            if issued == len(rs):
                for _ in range(2):
                    if xi < len(extra): k.e(extra[xi]); xi += 1
            while issued < e: k.e(rs[issued]); issued += 1
        while issued < len(rs): k.e(rs[issued]); issued += 1
        while xi < len(extra): k.e(extra[xi]); xi += 1
    def stage(first, last, sp, tail=()):
        for u in range(NU):
            if u == NU - 1 and not last and not EARLY:
                for x in advance(): k.e(x)
            if u < NU - 1: rs = reads(u + 1, sp)
            elif last: rs = []
            else: rs = reads(0, sp ^ 1)
            extra = []
            if EARLY and not last and u == (NU - 2) % NU: extra = advance()
            if u == NU - 1: extra = extra + list(tail)
            if not RM[0] or (last and u == NU - 1 and not c.last and not LE): k.e('s_waitcnt lgkmcnt(0)')
            if u == NU - 1 and not (last and (c.last or LE)): k.e('s_barrier')
            unit(u, first, rs, sp, extra)
    k.e('s_mov_b32 s53, 0')
    if geo: k.e('s_mov_b32 s52, 0')
    setaddr()
    if xt:
        handoff_multi(k, [(4, 's_mov_b32 s100, %d' % FL_MOD, 64), (5, 's_mov_b32 s100, %d' % (FL_MOD + 256), 64), (6, wait[0], wait[1])])
        mod_table(k, FR)
    elif wait and not (ownlds and LPW) and not HF: handoff(k, wait[0], wait[1], role='C')
    if early: early(g)
    k.e('s_barrier')
    mark(k, 1)
    for r in reads(0): k.e(r)
    if EARLY and NU == 1:
        for x in advance(): k.e(x)
    DEFER = env('DEFER_' + name, DEFER)
    npair = (nst - 1 - max(DEFER, 1)) // 2
    assert nst % 2 == 0 and (DEFER == 0 or (DEFER % 2 == 1 and M16 and KSN == 1 and not LE and DEFER <= NS))
    soft = env('SOFT_' + name, SOFT)
    srp = env('SRP_' + name, 1 if name == 'qkv' else 2)
    segs_ = [(npair, RPGV[0], ROLL)] if not soft else [(soft, srp, 0), (npair - soft, RPGV[0], ROLL)]
    RPGV[0] = segs_[0][1]; RM[0] = segs_[0][2]
    stage(True, False, 0)
    pre2(g)
    for si, (cnt_, rp_, rm_) in enumerate(segs_):
        RPGV[0] = rp_; RM[0] = rm_
        k.e('s_mov_b32 s54, %d' % cnt_)
        lp = 'L_%s_loop%s' % (name, si or '')
        k.label(lp)
        stage(False, False, 1); stage(False, False, 0, tail=['s_sub_u32 s54, s54, 1', 's_cmp_lg_u32 s54, 0'])
        k.e('s_cbranch_scc1 %s' % lp)
    k.label('L_%s_epi' % name)
    if prelast: prelast(g)
    def addr_for(st):
        o = (st % NS) * STAGE
        return ['v_add_u32 v%d, %d, v%d' % (XC, o, XB)] + ['v_add_u32 v%d, %d, v%d' % (YC + t, o, YB + t) for t in range(nya)]
    if DEFER:
        s0_ = nst - DEFER
        c0, c1 = dcols
        y0 = NU % 2
        for n_ in range(DEFER):
            par = ((1 + n_) % 2, (y0 + n_) % 2, c0)
            if n_ < DEFER - 1:
                for x in addr_for(s0_ + n_ + 1): k.e(x)
                rs = reads(0, (par[0] ^ 1, par[1] ^ 1, c0))
            else: rs = []
            if not RM[0] or (n_ == 0 and JG == 1): k.e('s_waitcnt lgkmcnt(0)')
            if n_ < DEFER - 1: k.e('s_barrier')
            unit(0, False, rs, par, [])
        def deferred():
            for x in addr_for(s0_): k.e(x)
            for r in reads(0, (0, 0, c1)): k.e(r)
            for n_ in range(DEFER):
                par = (n_ % 2, n_ % 2, c1)
                if n_ < DEFER - 1:
                    for x in addr_for(s0_ + n_ + 1): k.e(x)
                    rs = reads(0, (par[0] ^ 1, par[1] ^ 1, c1))
                else: rs = []
                if not RM[0] or n_ == DEFER - 1: k.e('s_waitcnt lgkmcnt(0)')
                if n_ == DEFER - 1: k.e('s_barrier')
                unit(0, False, rs, par, [])
            k.e('s_nop 7')
        g.deferred = deferred
    else:
        g.deferred = None
        stage(False, True, 1)
    mark(k, 2)
    if M16:
        k.e('s_nop 7')
        if not lazyfix:
            for j in range(nb):
                for i in range(mb): fix(i, j)
            k.e('s_nop 1')
    epi(g)
    if not selfsig:
        if g.LE == 1 and not getattr(g, 'ended', 0): k.e('s_barrier')
        signal(k, 'C')
        if g.LE == 2: k.e('s_barrier')
    if side:
        endpgm(k)
        k.label('L_%s_pf' % name)
        k.e('s_sub_u32 s30, s2, %d' % (GM * GN))
        k.e('s_cmp_ge_u32 s30, %d' % side[0])
        k.e('s_cbranch_scc1 L_%s_pfe' % name)
        side[1](k, 0 if solo else AUX_B + 4096)
        k.label('L_%s_pfe' % name)
        signal(k, 'A')
    if pf:
        endpgm(k)
        k.label('L_%s_pf' % name)
        npf = 256 - GM * GN
        per_wg = SIZES[pf] // npf
        assert per_wg % (8192 * 2) == 0
        k.e('s_sub_u32 s30, s2, %d' % (GM * GN))
        k.e('s_mul_i32 s30, s30, %d' % per_wg)
        if env('PFOFF', 0): k.e('s_mov_b32 s30, 0x40000000')
        k.e('v_lshlrev_b32 v2, 4, v0')
        k.e('s_mov_b32 s31, %d' % (per_wg // 16384))
        k.e('s_waitcnt lgkmcnt(0)')
        srd(k, 32, pf)
        k.label('L_%s_pfl' % name)
        k.e('buffer_load_dwordx4 v[8:11], v2, s[32:35], s30 offen')
        k.e('s_add_u32 s30, s30, 8192')
        k.e('buffer_load_dwordx4 v[12:15], v2, s[32:35], s30 offen')
        k.e('s_add_u32 s30, s30, 8192')
        k.e('s_waitcnt vmcnt(6)')
        k.e('s_sub_u32 s31, s31, 1')
        k.e('s_cmp_lg_u32 s31, 0')
        k.e('s_cbranch_scc1 L_%s_pfl' % name)
        if env('L2W', 0): l2warm(k)
        signal(k, 'A')
    finish(k)
    assert g.free <= 256, g.free
    k.need(g.free, max(NS * STAGE, g.AUX + auxsz, (AUX_B + 12288) if side and not solo else 0))

def l2warm(k):
    k.e("""
    s_sub_u32 s30, s2, 224
    s_lshr_b32 s30, s30, 3             ; helper index
    s_and_b32 s31, s2, 3
    s_lshl_b32 s31, s31, 2
    s_add_u32 s31, s31, s30
    s_lshl_b32 s31, s31, 19            ; 128 rows * 4KB
    s_mov_b32 s44, %d
    """ % 32)
    if env('L2W', 0) & 1:
        srd(k, 32, 'w_sp')
        k.label('L_l2x')
        k.e("""
        buffer_load_dwordx4 v[8:11], v2, s[32:35], s31 offen
        s_add_u32 s31, s31, 8192
        buffer_load_dwordx4 v[12:15], v2, s[32:35], s31 offen
        s_add_u32 s31, s31, 8192
        s_waitcnt vmcnt(6)
        s_sub_u32 s44, s44, 1
        s_cmp_lg_u32 s44, 0
        s_cbranch_scc1 L_l2x
        """)
    if env('L2W', 0) & 2:
        handoff(k, 's_bfe_u32 s100, s2, 0x10002\ns_mul_i32 s100, s100, 7\ns_min_u32 s101, s3, 6\ns_add_u32 s100, s100, s101\ns_lshl_b32 s100, s100, 8\ns_add_u32 s100, s100, %d' % FL_WIN, 64, role='W', slp=8)
        k.e('s_barrier')
        srd(k, 32, 'ws', WS_Z2N, ZSZ)
        k.e("""
        s_add_u32 s44, s30, %d             ; first row block
        s_mul_i32 s31, s44, %d
        s_bfe_u32 s45, s2, 0x10002
        s_mul_i32 s45, s45, %d
        s_add_u32 s31, s31, s45
        L_l2y:
        """ % (2 * env('L2S', 3), 112 * KB, 56 * KB))
        for q in range(7):
            k.e('s_add_u32 s45, s31, %d' % (q * 8192))
            k.e('buffer_load_dwordx4 v[8:11], v2, s[32:35], s45 offen sc1')
        k.e("""
        s_waitcnt vmcnt(7)
        s_add_u32 s31, s31, %d
        s_add_u32 s44, s44, 4
        s_cmp_lt_u32 s44, 64
        s_cbranch_scc1 L_l2y
        """ % (4 * 112 * KB))

def alloc(g, n, align=4):
    b = (g.free + align - 1) // align * align
    g.free = b + n
    return b
def nop(g): pass

def store_xf_tile(g, a, T, voff, srdn, soff, imm):
    k = g.k
    for d in range(8):
        k.e('v_cvt_pk_bf16_f32 v%d, v%d, v%d' % (T + d, a + 2 * d, a + 2 * d + 1))
    if os.environ.get('SDATA') == 'zero' and k.c.name == 'qkv':
        for d in range(8): k.e('v_mov_b32 v%d, 0' % (T + d))
    if os.environ.get('SDATA') == 'rand' and k.c.name == 'qkv':
        import random
        for d in range(8):
            k.e('s_mul_i32 s68, s2, %d' % (random.getrandbits(31) | 1))
            k.e('v_add_u32 v%d, s68, v0' % (T + d))
            k.e('s_mov_b32 s69, %d' % (random.getrandbits(31) | 1))
            k.e('v_mul_lo_u32 v%d, v%d, s69' % (T + d, T + d))
            k.e('v_and_b32 v%d, 0xbfffbfff, v%d' % (T + d, T + d))
    if env('PACE', -1) >= 0: k.e('s_waitcnt vmcnt(%d)' % env('PACE', -1))
    k.e('buffer_store_dwordx4 %s, v%d, %s, %s offen offset:%d%s' % (vr(T, 4), voff, sr(srdn), soff, imm, WT))
    k.e('buffer_store_dwordx4 %s, v%d, %s, %s offen offset:%d%s' % (vr(T + 4, 4), voff, sr(srdn), soff, imm + 1024, WT))

def pk(op, d, *src, sel=None):
    s = 'v_pk_%s_f32 %s' % (op, vr(d, 2))
    hi = []
    for x in src:
        if isinstance(x, int): s += ', ' + vr(x, 2); hi.append(1)
        elif isinstance(x, tuple): s += ', ' + vr(x[0], 2); hi.append(0)
        elif x.startswith('s['): s += ', ' + x; hi.append(1)
        else: s += ', ' + x; hi.append(0)
    if 0 in hi: s += ' op_sel_hi:[%s]' % ','.join(map(str, hi))
    return s

def proj_wpre(wname, V, nw, wave):
    n = 16 // nw
    def setup(k):
        srd(k, 64, wname)
        k.e("""
        s_and_b32 s68, s2, 3
        s_lshl_b32 s68, s68, 3
        s_bfe_u32 s69, s2, 0x20003
        s_lshl_b32 s69, s69, 1
        s_add_u32 s68, s68, s69
        s_bfe_u32 s69, s2, 0x10005
        s_add_u32 s68, s68, s69            ; tm
        s_bfe_u32 s69, s2, 0x10002
        s_lshl_b32 s69, s69, 2
        s_lshr_b32 s70, s2, 6
        s_add_u32 s69, s69, s70            ; tn
        s_add_u32 s68, s68, s69            ; rotation
        s_lshl_b32 s69, s69, 8
        s_mul_i32 s70, %s, %d
        s_add_u32 s69, s69, s70
        s_mul_i32 s70, %s, %d              ; LDS offset of this wave's pieces
        v_lshrrev_b32 v%d, 5, v1
        v_lshlrev_b32 v%d, 13, v%d
        v_bfe_u32 v%d, v1, 2, 2
        v_lshl_add_u32 v%d, v%d, 11, v%d
        v_bfe_u32 v%d, v1, 4, 1
        v_lshl_add_u32 v%d, v%d, 6, v%d
        v_lshrrev_b32 v%d, 4, v1
        v_and_b32 v%d, 2, v%d
        v_xor_b32 v%d, v1, v%d
        v_and_b32 v%d, 3, v%d
        v_lshl_add_u32 v%d, v%d, 4, v%d
        v_add_u32 v%d, s69, v%d
        """ % (wave, n // 2 * 8 * 2048, wave, n * 1024, V, V, V, V + 1, V, V + 1, V, V + 1, V, V + 1, V, V + 1, V + 1, V + 1, V + 1, V + 1, V + 1, V + 1, V, V + 1, V, V, V))
        for j in range(1, n): k.e('v_add_u32 v%d, %d, v%d' % (V + j, (j // 2) * 8 * 2048 + (j % 2) * 128, V))
    def pieces(st):
        o = ['s_add_u32 s71, s68, %d\ns_and_b32 s71, s71, 3\ns_add_u32 s71, s71, %d\ns_lshl_b32 s71, s71, 17' % (st, st // 4 * 4)]
        for j in range(n):
            o.append('s_add_u32 m0, s70, %d' % (st * 16384 + j * 1024))
            o.append('buffer_load_dwordx4 v%d, s[64:67], s71 offen lds' % (V + j))
        return o
    return setup, pieces

def k_qkv(k, c):
    def pre(g):
        k = g.k
        srd(k, 32, 'ws', WS_Q, 4 * MB); srd(k, 36, 'ws', WS_KV, 8 * MB)
        g.L16 = alloc(g, 1, 1); g.LV16 = alloc(g, 1, 1)
        k.e('v_lshlrev_b32 v%d, 4, v1' % g.L16)
        if g.M16:
            k.e('v_and_b32 v5, 3, v1')
            k.e('v_lshl_add_u32 v5, v4, 4, v5')
            k.e('v_bfe_u32 v6, v1, 2, 1')
            k.e('v_lshl_add_u32 v5, v6, 3, v5')
            k.e('v_bfe_u32 v6, v1, 3, 1')
            k.e('v_lshl_add_u32 v5, v6, 2, v5')
            k.e('v_bfe_u32 v6, v1, 4, 1')
            k.e('v_lshl_add_u32 v5, v6, 5, v5')
            k.e('v_lshlrev_b32 v%d, 4, v5' % g.LV16)
        else: k.e('v_mov_b32 v%d, v%d' % (g.LV16, g.L16))
        k.e('''
        s_lshl_b32 s60, s31, 1
        s_add_u32 s60, s60, s51
        s_lshl_b32 s60, s60, 6
        s_lshl_b32 s61, s30, 2
        s_add_u32 s60, s60, s61
        s_lshl_b32 s61, s50, 1
        s_add_u32 s60, s60, s61           ; head*64 + rb0
        s_lshl_b32 s61, s60, 11           ; Q offset
        s_lshl_b32 s62, s60, 12           ; KV offset
        s_add_u32 s63, s62, 4096
        s_mov_b32 s66, %s
        s_mov_b32 s67, %s
        ''' % ((hx(32 ** -0.5 * LOG2E * float(os.environ.get('QERR', '1'))),) * 2))
    def epi(g):
        k = g.k
        T = g.FR
        k.e('s_nop 7')
        n = 0
        for i in range(2):
            a = g.acc(i, 0)
            for r in range(0, 16, 2): k.e(pk('mul', a + r, a + r, 's[66:67]'))
            store_xf_tile(g, a, T + 8 * n, g.L16, 32, 's61', i * 2048); n += 1
        for j in (1, 2):
            for i in range(2):
                store_xf_tile(g, g.acc(i, j), T + 8 * (n % 5), g.L16 if j == 1 else g.LV16, 36, 's62' if i == 0 else 's63', (j - 1) * 2048); n += 1
    QSP = env('QSP', 0)
    def epi2(g):
        k = g.k
        T = g.FR
        KP = [g.acc(0, 1), g.acc(1, 1)]; VP = [g.acc(0, 2), g.acc(1, 2)]; QP = [g.acc(0, 0), g.acc(1, 0)]
        for j in (1, 2):
            for i in range(2):
                g.fix(i, j)
                k.e('s_nop 0')
                store_xf_tile(g, g.acc(i, j), g.acc(i, j), g.L16 if j == 1 else g.LV16, 36, 's62' if i == 0 else 's63', (j - 1) * 2048)
        if g.deferred:
            g.deferred()
            if env('QSIG', 1): signal(k, 'C')
        for i in range(2):
            a = g.acc(i, 0)
            g.fix(i, 0)
            k.e('s_nop 0')
            for r in range(0, 16, 2): k.e(pk('mul', a + r, a + r, 's[66:67]'))
            for d in range(8): k.e('v_cvt_pk_bf16_f32 v%d, v%d, v%d' % (a + d, a + 2 * d, a + 2 * d + 1))
        if QSP == 1: signal(k, 'C')
        k.e('s_mul_i32 s68, s46, 5120')
        k.e('s_add_u32 s68, s68, %d' % AUX_A)
        k.e('v_add_u32 v5, s68, v%d' % g.L16)
        Sreg = [T, T + 16, T + 32, T + 48]
        for qi in range(2):
            for ki in range(2):
                S_ = Sreg[2 * qi + ki]
                k.e('v_mfma_f32_32x32x16_bf16 %s, %s, %s, 0' % (vr(S_, 16), vr(KP[ki], 4), vr(QP[qi], 4)))
                k.e('v_mfma_f32_32x32x16_bf16 %s, %s, %s, %s' % (vr(S_, 16), vr(KP[ki] + 4, 4), vr(QP[qi] + 4, 4), vr(S_, 16)))
        for q in range(4): k.e('ds_write_b128 v5, %s offset:%d' % (vr(QP[q // 2] + 4 * (q % 2), 4), q * 1024))
        if AOWN:
            k.e('s_lshl_b32 s69, s46, 15')
            k.e('v_add_u32 v6, s69, v%d' % g.L16)
            k.e('v_add_u32 v7, s69, v%d' % g.LV16)
            for i in range(2):
                for hh in range(2):
                    k.e('ds_write_b128 v6, %s offset:%d' % (vr(KP[i] + 4 * hh, 4), i * 4096 + hh * 1024))
                    k.e('ds_write_b128 v7, %s offset:%d' % (vr(VP[i] + 4 * hh, 4), i * 4096 + 2048 + hh * 1024))
        k.e('v_lshl_add_u32 v5, v1, 3, s68')
        if QSP == 2: signal(k, 'C')
        k.e('s_nop 7')
        MM = T + 64
        for qi in range(2):
            a0, a1 = Sreg[2 * qi], Sreg[2 * qi + 1]
            k.e('v_max_f32 v%d, v%d, v%d' % (MM + qi, a0, a1))
            for r in range(1, 16): k.e('v_max3_f32 v%d, v%d, v%d, v%d' % (MM + qi, MM + qi, a0 + r, a1 + r))
        for qi in range(2): k.e('v_mov_b32 v%d, v%d' % (MM + 2 + qi, MM + qi))
        k.e('s_nop 1')
        for qi in range(2): k.e('v_permlane32_swap_b32 v%d, v%d' % (MM + qi, MM + 2 + qi))
        k.e('s_nop 1')
        for qi in range(2): k.e('v_max_f32 v%d, v%d, v%d' % (MM + qi, MM + qi, MM + 2 + qi))
        for qi in range(2): k.e('v_sub_f32 v%d, %s, v%d' % (MM + qi, hx(-40.0), MM + qi))
        k.e('ds_write_b64 v5, %s offset:4096' % vr(MM, 2))
        k.e('s_waitcnt lgkmcnt(0)')
    sig = 's_lshl_b32 s100, s31, 8\ns_lshl_b32 s101, s30, 4\ns_add_u32 s100, s100, s101\ns_add_u32 s100, s100, %d' % FL_QKV
    wait = ('s_lshl_b32 s100, s30, 8\ns_add_u32 s100, s100, %d' % FL_LN1, 8)
    k_gemm(k, c, 16, 16, 3, 1, 4, 128, 192, 2, 2, 1024, 32, 4, ('xt', WS_N, 1024) if XT else ('xf', WS_H, 1024), ('w', 'wqkv', 6144, 'qkv'), pre, nop, epi2 if AT2 else epi, selfsig=bool(AT2 and (QSP or AOWN == 1 or (env('DEFER_qkv', 0) and env('QSIG', 1)))), lazyfix=bool(AT2), DEFER=0, dcols=([1, 2], [0]), swap=(2,), wait=wait, sig=sig, RWD=4, SOFT=4)

def k_proj(k, c, K, X, wname, final):
    NQ = 2 if MP0 else 4
    EARLYV = MP0 and env('EARLYV', 1)
    def modq_loads(k):
        for q in range(NQ):
            k.e('s_add_u32 s62, s69, %d' % (q * 16384))
            k.e('s_add_u32 s63, s70, %d' % (q * 16384))
            k.e('buffer_load_dwordx4 %s, v7, s[64:67], s62 offen sc1' % vr(24 + 4 * q, 4))
            k.e('buffer_load_dword v%d, v6, s[64:67], s63 offen sc1' % (40 + q))
    def aux(g):
        k = g.k
        if final:
            srd(k, 40, 'ws', WS_MOD, 6144 * 4)
            k.e('''
            v_and_b32 v7, 31, v1
            v_lshlrev_b32 v7, 4, v7
            s_lshl_b32 s62, s31, 9
            s_add_u32 s62, s62, %d
            buffer_load_dwordx4 v[24:27], v7, s[40:43], s62 offen sc1
            ''' % (5 * 4096))
            return 1
        srd(k, 64, 'ws', 0, 256 * KB)
        k.e('''
        v_and_b32 v2, 31, v1
        v_lshrrev_b32 v3, 5, v1
        v_lshlrev_b32 v2, 4, v2
        v_lshl_add_u32 v2, v3, 13, v2
        s_lshl_b32 s62, s31, 9
        s_add_u32 s62, s62, %d
        v_and_b32 v6, 15, v1
        v_lshlrev_b32 v6, 2, v6
        s_lshl_b32 s68, s2, 6
        s_add_u32 s63, s68, %d
        s_mov_b32 s69, s62
        s_mov_b32 s70, s63
        v_mov_b32 v7, v2
        ''' % (WS_MODQ, WS_MODQ))
        modq_loads(k)
        return xtile(g) + 2 * NQ
    def xtile(g):
        k = g.k
        srd(k, 40, 'x')
        k.e('''
        v_lshrrev_b32 v2, 4, v1
        v_and_b32 v3, 15, v1
        s_lshl_b32 s62, s30, 17            ; tm*64*2048
        s_lshl_b32 s63, s31, 8
        s_add_u32 s62, s62, s63
        s_lshl_b32 s63, s46, 15            ; lw*16 rows
        s_add_u32 s62, s62, s63
        s_lshl_b32 s63, s46, 12
        s_add_u32 s63, s63, %d
        ''' % g.AUX)
        for j in range(4):
            k.e('v_add_u32 v4, %d, v2' % (4 * j))
            k.e('v_xor_b32 v5, v4, v3')
            k.e('v_lshlrev_b32 v5, 4, v5')
            k.e('v_lshl_add_u32 v5, v4, 11, v5')
            k.e('s_add_u32 m0, s63, %d' % (j * 1024))
            k.e('s_nop 0')
            k.e('buffer_load_dwordx4 v5, s[40:43], s62 offen lds')
        return 4
    def aux_end(g):
        k = g.k
        lp = k.newlabel('mqp'); lc = k.newlabel('mqc')
        if final:
            poll_init(k)
            k.e('s_branch %s' % lc)
            k.label(lp)
            k.e('buffer_load_dwordx4 v[24:27], v7, s[40:43], s62 offen sc1')
            k.e('s_waitcnt vmcnt(0)')
            k.label(lc)
            k.e('v_max3_u32 v2, v24, v25, v26')
            k.e('v_max_u32 v2, v2, v27')
            k.e('v_cmp_eq_u32 vcc, -1, v2')
            poll_back(k, lp)
            k.e('v_add_u32 v2, %d, v7' % (g.AUX + 16 * KB))
            k.e('ds_write_b128 v2, v[24:27]')
            k.e('s_waitcnt lgkmcnt(0)')
            return
        if MP0:
            k.e('v_cmp_lt_u32 vcc, 31, v1')
            k.e(pk('add', 24, 24, 28)); k.e(pk('add', 26, 26, 30))
            k.e('v_add_f32 v40, v40, v41')
        else:
            poll_init(k)
            k.e('s_branch %s' % lc)
            k.label(lp)
            modq_loads(k)
            k.e('s_waitcnt vmcnt(0)')
            k.label(lc)
            k.e('v_max_u32 v2, v24, v25')
            for r in range(26, 44, 2): k.e('v_max3_u32 v2, v2, v%d, v%d' % (r, r + 1))
            k.e('v_cmp_eq_u32 vcc, -1, v2')
            poll_back(k, lp)
            k.e(pk('add', 24, 24, 28)); k.e(pk('add', 26, 26, 30)); k.e(pk('add', 32, 32, 36)); k.e(pk('add', 34, 34, 38))
            k.e(pk('add', 24, 24, 32)); k.e(pk('add', 26, 26, 34))
            k.e('v_cmp_lt_u32 vcc, 31, v1')
            k.e('v_add_f32 v40, v40, v41')
            k.e('v_add_f32 v42, v42, v43')
            k.e('v_add_f32 v40, v40, v42')
        k.e('v_cndmask_b32 v7, 0, 1.0, vcc')
        for d in range(2): round_bf16_pair(k, 24 + 2 * d, 25 + 2 * d, 28)
        for e in range(4): k.e('v_add_f32 v%d, v7, v%d' % (24 + e, 24 + e))
        for d in range(2): round_bf16_pair(k, 24 + 2 * d, 25 + 2 * d, 28)
        k.e('v_lshlrev_b32 v2, 4, v1')
        k.e('v_add_u32 v2, %d, v2' % (g.AUX + 16 * KB))
        k.e('ds_write_b128 v2, v[24:27]')
        k.e("""
        s_lshr_b32 s62, s2, 6
        s_cmp_eq_u32 s62, 2
        s_cselect_b32 s62, 1.0, 0
        v_cvt_pk_bf16_f32 v40, v40, v40
        v_lshlrev_b32 v40, 16, v40
        v_add_f32 v40, s62, v40
        v_cvt_pk_bf16_f32 v40, v40, v40
        v_lshlrev_b32 v40, 16, v40
        s_add_u32 s68, s68, 8192
        v_cmp_gt_u32 vcc, 16, v0
        s_and_saveexec_b64 s[62:63], vcc
        buffer_store_dword v40, v6, s[64:67], s68 offen%s
        s_mov_b64 exec, s[62:63]
        s_waitcnt lgkmcnt(0)
        """ % WT)
    def pre(g):
        k = g.k
        g.L16 = alloc(g, 1, 1); g.RA = alloc(g, 1, 1); g.CA = alloc(g, 1, 1); g.TA = alloc(g, 1, 1)
        g.RES = alloc(g, 16); g.GA = alloc(g, 32); g.G2 = alloc(g, 32) if not final else None
        srd(k, 36, 'ws', WS_X1, 8 * MB)
        if final: srd(k, 32, 'out')
        else: srd(k, 32, 'ws', WS_ST1, 256 * KB)
        k.e('v_lshlrev_b32 v%d, 4, v1' % g.L16)
        k.e('''
        s_lshl_b32 s60, s31, 7
        s_lshl_b32 s61, s51, 6
        s_add_u32 s60, s60, s61           ; col0
        s_lshl_b32 s61, s30, 1
        s_add_u32 s61, s61, s50           ; rb
        s_lshl_b32 s62, s61, 16
        s_lshl_b32 s63, s60, 1
        s_add_u32 s63, s63, s62           ; row-major byte offset of (row0,col0)
        s_lshl_b32 s64, s60, 6
        s_add_u32 s64, s64, s62           ; XF offset
        s_add_u32 s65, s64, %d            ; X1S offset
        ; tile image address: row*256 + ((wn*8) ^ (row%%16))*16 + h*8
        s_lshl_b32 s66, s50, 13
        s_add_u32 s66, s66, %d
        v_and_b32 v5, 15, v3
        s_lshl_b32 s67, s51, 3
        v_xor_b32 v5, s67, v5
        v_lshlrev_b32 v5, 4, v5
        v_lshl_add_u32 v5, v3, 8, v5
        v_lshl_add_u32 v5, v4, 3, v5
        v_add_u32 v%d, s66, v5
        ; column vector address: wn*256 + h*16
        s_lshl_b32 s67, s51, 8
        s_add_u32 s67, s67, %d
        v_lshl_add_u32 v%d, v4, 4, s67
        ''' % (4 * MB, g.AUX, g.RA, g.AUX + 16 * KB, g.CA))
    KX = same_kernel('wo', 'wout') and env('KEEPX', 1)
    def early(g):
        k = g.k
        if EARLYV:
            A_ = g.GA; V_ = g.RES
            l = k.newlabel('ev')
            k.e('s_cmp_lg_u32 s46, 1'); k.e('s_cbranch_scc1 %s' % l)
            srd(k, 80, 'ws', 0, 256 * KB)
            k.e('''
            v_lshlrev_b32 v%d, 4, v3
            v_lshl_add_u32 v%d, v4, 13, v%d
            s_lshl_b32 s68, s31, 9
            s_add_u32 s68, s68, %d
            s_add_u32 s69, s68, 16384
            buffer_load_dwordx4 %s, v%d, s[80:83], s68 offen sc1
            buffer_load_dwordx4 %s, v%d, s[80:83], s69 offen sc1
            ''' % (V_, V_, V_, WS_MODQ + (3 * 4096 if final else 0), vr(A_, 4), V_, vr(A_ + 4, 4), V_))
            if not final:
                k.e('''
                v_and_b32 v%d, 15, v1
                v_lshlrev_b32 v%d, 2, v%d
                s_lshl_b32 s70, s2, 6
                s_add_u32 s68, s70, %d
                s_add_u32 s69, s68, 16384
                buffer_load_dword v%d, v%d, s[80:83], s68 offen sc1
                buffer_load_dword v%d, v%d, s[80:83], s69 offen sc1
                ''' % (V_ + 1, V_ + 1, V_ + 1, WS_MODQ, A_ + 8, V_ + 1, A_ + 9, V_ + 1))
            k.e('v_cvt_f32_u32 v%d, v4' % (V_ + 2))
            k.e('v_add_u32 v%d, %d, v%d' % (V_ + 3, g.AUX + 16 * KB, g.L16))
            k.e('s_waitcnt vmcnt(0)')
            k.e(pk('add', A_, A_, A_ + 4)); k.e(pk('add', A_ + 2, A_ + 2, A_ + 6))
            for d in range(2): round_bf16_pair(k, A_ + 2 * d, A_ + 1 + 2 * d, A_ + 4)
            for e in range(4): k.e('v_add_f32 v%d, v%d, v%d' % (A_ + e, V_ + 2, A_ + e))
            for d in range(2): round_bf16_pair(k, A_ + 2 * d, A_ + 1 + 2 * d, A_ + 4)
            k.e('ds_write_b128 v%d, %s' % (V_ + 3, vr(A_, 4)))
            if not final:
                F = A_ + 8
                k.e('''
                s_lshr_b32 s68, s2, 6
                s_cmp_eq_u32 s68, 2
                s_cselect_b32 s68, 1.0, 0
                v_add_f32 v%d, v%d, v%d
                v_cvt_pk_bf16_f32 v%d, v%d, v%d
                v_lshlrev_b32 v%d, 16, v%d
                v_add_f32 v%d, s68, v%d
                v_cvt_pk_bf16_f32 v%d, v%d, v%d
                v_lshlrev_b32 v%d, 16, v%d
                s_add_u32 s70, s70, 8192
                s_mov_b64 exec, 0xffff
                buffer_store_dword v%d, v%d, s[80:83], s70 offen%s
                s_mov_b64 exec, -1
                ''' % (F, F, F + 1, F, F, F, F, F, F, F, F, F, F, F, F, F, V_ + 1, WT))
            k.e('s_waitcnt lgkmcnt(0)')
            k.label(l)
            return
        if final or MP0: return
        D = g.GA; MC = g.RES; MT = g.RES + 8
        k.e('s_lshl_b32 s68, s46, 13')
        k.e('s_add_u32 s68, s68, %d' % AUX_A)
        k.e('v_add_u32 v%d, s68, v%d' % (MT, g.L16))
        for j in range(8): k.e('ds_read_b128 %s, v%d offset:%d' % (vr(D + 4 * j, 4), MT, j * 1024))
        for j in range(8):
            k.e('s_waitcnt lgkmcnt(%d)' % (7 - j))
            for d in range(4):
                unpack(k, MT, MT + 1, D + 4 * j + d)
                op = 'v_mul_f32' if j == 0 else 'v_fmac_f32'
                k.e('%s v%d, v%d, v%d' % (op, MC + 2 * d, MT, MSV + j))
                k.e('%s v%d, v%d, v%d' % (op, MC + 2 * d + 1, MT + 1, MSV + j))
        k.e('s_nop 1')
        for e in range(4): k.e('v_permlane32_swap_b32 v%d, v%d' % (MC + e, MC + 4 + e))
        k.e('s_nop 1')
        for e in range(4): k.e('v_add_f32 v%d, v%d, v%d' % (MC + e, MC + e, MC + 4 + e))
        k.e('s_nop 1')
        for e in range(2): k.e('v_permlane16_swap_b32 v%d, v%d' % (MC + e, MC + 2 + e))
        k.e('s_nop 1')
        for e in range(2): k.e('v_add_f32 v%d, v%d, v%d' % (MC + e, MC + e, MC + 2 + e))
        k.e('s_nop 1')
        for e in range(2): k.e('v_add_f32_dpp v%d, v%d, v%d row_ror:8 row_mask:0xf bank_mask:0xf' % (MC + e, MC + e, MC + e))
        k.e('''
        v_and_b32 v%d, 7, v1
        v_lshlrev_b32 v%d, 5, v%d
        v_lshrrev_b32 v%d, 4, v1
        v_lshl_add_u32 v%d, v%d, 3, v%d
        v_add_u32 v%d, s68, v%d
        ds_write_b64 v%d, %s
        s_waitcnt lgkmcnt(0)
        ''' % (MT, MT, MT, MT + 1, MT, MT + 1, MT, MT, MT, MT, vr(MC, 2)))
    def pre2(g):
        k = g.k
        if not final and not MP0:
            MC = g.RES; MT = g.RES + 8
            l = k.newlabel('noC')
            k.e('s_cmp_lg_u32 s46, 1')
            k.e('s_cbranch_scc1 %s' % l)
            srd(k, 80, 'ws', 0, 256 * KB)
            k.e('v_lshlrev_b32 v%d, 2, v1' % (MT + 1))
            k.e('v_add_u32 v%d, %d, v%d' % (MT, AUX_A, MT + 1))
            for w in range(4): k.e('ds_read_b32 v%d, v%d offset:%d' % (MC + w, MT, w * 8192))
            k.e('''
            s_and_b32 s68, s2, 3
            s_lshl_b32 s68, s68, 14
            s_lshr_b32 s69, s2, 2
            s_lshl_b32 s69, s69, 8
            s_add_u32 s68, s68, s69
            s_add_u32 s68, s68, %d
            s_waitcnt lgkmcnt(0)
            v_add_f32 v%d, v%d, v%d
            v_add_f32 v%d, v%d, v%d
            v_add_f32 v%d, v%d, v%d
            v_min_u32 v%d, -2, v%d
            buffer_store_dword v%d, v%d, s[80:83], s68 offen sc1
            ''' % (WS_MODQ, MC, MC, MC + 1, MC + 2, MC + 2, MC + 3, MC, MC, MC + 2, MC, MC, MC, MT + 1))
            k.label(l)
        if final and not KX:
            for j in range(2):
                for t in range(2):
                    k.e('buffer_load_dwordx4 %s, v%d, s[36:39], s64 offen offset:%d sc1' % (vr(g.RES + 8 * j + 4 * t, 4), g.L16, (2 * j + t) * 1024))
    PL = env('PRELAST', 1)
    def operands(g):
        k = g.k
        for j in range(2):
            for q in range(4):
                k.e('ds_read_b128 %s, v%d offset:%d' % (vr(g.GA + 16 * j + 4 * q, 4), g.CA, j * 128 + q * 32))
        if not final or KX:
            for j in range(2):
                for q in range(4):
                    k.e('v_xor_b32 v%d, %d, v%d' % (g.TA, (j * 4 + q) * 16, g.RA))
                    k.e('ds_read_b64 %s, v%d' % (vr(g.RES + 8 * j + 2 * q, 2), g.TA))
        if not final:
            for j in range(2):
                for q in range(4):
                    k.e('ds_read_b128 %s, v%d offset:%d' % (vr(g.G2 + 16 * j + 4 * q, 4), g.CA, 512 + j * 128 + q * 32))
    def epi(g):
        k = g.k
        assert g.M16
        if not PL: operands(g)
        k.e('s_waitcnt lgkmcnt(0)' if (KX or not final) else 's_waitcnt vmcnt(0) lgkmcnt(0)')
        T = g.FR
        for j in range(2):
            a = g.acc(0, j)
            for d in range(8):
                unpack(k, T + 2 * (d % 4), T + 2 * (d % 4) + 1, g.RES + 8 * j + d)
                k.e(pk('fma', a + 2 * d, a + 2 * d, g.GA + 16 * j + 2 * d, T + 2 * (d % 4)))
            if not final:
                if j == 0: k.e('s_waitcnt lgkmcnt(0)')
                for d in range(8): k.e(pk('mul', g.G2 + 16 * j + 2 * d, a + 2 * d, g.G2 + 16 * j + 2 * d))
                store_xf_tile(g, g.G2 + 16 * j, g.GA + 16 * j, g.L16, 36, 's65', j * 2048)
        def keep():
            for j in range(2):
                a = g.acc(0, j)
                if final or KX:
                    for d in range(8):
                        k.e('v_cvt_pk_bf16_f32 v%d, v%d, v%d' % (g.RES + 8 * j + d, a + 2 * d, a + 2 * d + 1))
                    for q in range(4):
                        k.e('v_xor_b32 v%d, %d, v%d' % (g.TA, (j * 4 + q) * 16, g.RA))
                        k.e('ds_write_b64 v%d, %s' % (g.TA, vr(g.RES + 8 * j + 2 * q, 2)))
                else:
                    store_xf_tile(g, a, g.RES + 8 * j, g.L16, 36, 's64', j * 2048)
        if final: keep()
        if final:
            k.e('''
            v_lshrrev_b32 v5, 3, v1
            v_and_b32 v6, 7, v1
            s_lshl_b32 s67, s51, 3
            v_or_b32 v7, s67, v6
            v_xor_b32 v7, v7, v5
            v_lshlrev_b32 v7, 4, v7
            v_lshl_add_u32 v7, v5, 8, v7
            v_add_u32 v7, s66, v7              ; b=0 address
            v_xor_b32 v%d, 128, v7             ; rows 8..15: slot ^ 8
            v_lshlrev_b32 v5, 11, v5
            v_lshl_add_u32 v5, v6, 4, v5       ; global: row*2048 + c*16
            s_waitcnt lgkmcnt(0)
            ''' % g.TA)
            for b in range(4):
                k.e('ds_read_b128 %s, v%d offset:%d' % (vr(g.GA + 4 * b, 4), 7 if b % 2 == 0 else g.TA, b * 2048))
            for b in range(4):
                k.e('s_waitcnt lgkmcnt(%d)' % (3 - b))
                k.e('buffer_store_dwordx4 %s, v5, s[32:35], s63 offen%s' % (vr(g.GA + 4 * b, 4), os.environ.get('OUTFLAG', ' sc1')))
                k.e('s_add_u32 s63, s63, %d' % (8 * 2048))
            l = k.newlabel('ep')
            k.e('s_or_b32 s67, s2, s46')
            k.e('s_cbranch_scc1 %s' % l)
            srd(k, 96, 'ws', WS_EPOCH, 8)
            k.e('v_mov_b32 v%d, s84' % FV); k.e('v_mov_b32 v%d, s85' % (FV + 1)); k.e('v_mov_b32 v%d, 0' % (FV + 2))
            flag_store(k, '0')
            k.label(l)
        else:
            S1 = T + 8; S2 = T + 10
            a0 = g.acc(0, 0)
            k.e(pk('add', S1, a0, a0 + 2))
            k.e(pk('mul', S2, a0, a0))
            k.e(pk('fma', S2, a0 + 2, a0 + 2, S2))
            for r in range(4, 32, 2):
                k.e(pk('add', S1, S1, a0 + r))
                k.e(pk('fma', S2, a0 + r, a0 + r, S2))
            k.e('v_add_f32 v%d, v%d, v%d' % (S1, S1, S1 + 1))
            k.e('v_add_f32 v%d, v%d, v%d' % (S1 + 1, S2, S2 + 1))
            k.e('v_mov_b32 v%d, v%d' % (S2, S1))
            k.e('v_mov_b32 v%d, v%d' % (S2 + 1, S1 + 1))
            k.e('''
            s_lshl_b32 s66, s30, 4
            s_lshl_b32 s67, s31, 1
            s_add_u32 s66, s66, s67
            s_add_u32 s66, s66, s51
            s_lshl_b32 s66, s66, 9             ; (tm*16+part)*512
            s_lshl_b32 s67, s50, 8
            s_add_u32 s66, s66, s67
            v_lshlrev_b32 v5, 3, v3
            ''')
            k.e('v_permlane32_swap_b32 v%d, v%d' % (S1, S2))
            k.e('v_permlane32_swap_b32 v%d, v%d' % (S1 + 1, S2 + 1))
            k.e('s_nop 1')
            k.e(pk('add', S1, S1, S2))
            k.e('s_mov_b32 exec_hi, 0')
            k.e('buffer_store_dwordx2 %s, v5, s[32:35], s66 offen%s' % (vr(S1, 2), WT))
            k.e('s_mov_b32 exec_hi, -1')
            if g.LE == 1 and KX:
                k.e('s_barrier'); g.ended = 1
            keep()
            k.e('s_waitcnt lgkmcnt(0)')
    if final:
        sig = None
        wait = ('s_lshr_b32 s100, s30, 1\ns_lshl_b32 s100, s100, 8\ns_add_u32 s100, s100, %d' % FL_WSP, 56)
    else:
        sig = 's_lshr_b32 s100, s30, 1\ns_lshl_b32 s100, s100, 8\ns_and_b32 s101, s30, 1\ns_lshl_b32 s101, s101, 7\ns_add_u32 s100, s100, s101\ns_lshl_b32 s101, s31, 4\ns_add_u32 s100, s100, s101\ns_add_u32 s100, s100, %d' % FL_WO
        wait = ('s_lshr_b32 s100, s30, %d\ns_lshl_b32 s100, s100, 8\ns_add_u32 s100, s100, %d' % (1 if AT2 else 2, FL_ATT), 16 if AT2 else 32)
    geo = None
    if GEO: geo = (0, 6, 96 * KB, 4, (TPRE if final else APRE), 224 if final else 0)
    k_gemm(k, c, 32, 8, 3, 2, 4, 64, 128, 2, 2, K, 64, 4, X, ('w', wname, 2048, None), pre, pre2, epi, aux=None if EARLYV else aux, auxsz=17 * KB, auxbase=AUX_A, aux_end=None if EARLYV else aux_end,
           auxpre=xtile if EARLYV and not final else None, geo=geo, wait=wait, sig=sig, GU=2, RWD=4, early=early, altmap=True, prelast=operands if PL else None,
           own='s_lshr_b32 s68, s47, 2\ns_mul_i32 s68, s68, 7\ns_lshr_b32 s69, s48, 2\ns_add_u32 s68, s68, s69\ns_min_u32 s68, s68, 13\ns_lshl_b32 s68, s68, 1' if final else None, ownlim=224)

ZKEEP = 72
BSV = 244
MSV = 240
def stats_finish(k, S, n, R, M, T):
    k.e('v_mov_b32 v%d, v%d' % (T, S))
    k.e('v_mov_b32 v%d, v%d' % (T + 1, S + 1))
    k.e('s_nop 1')
    k.e('v_permlane32_swap_b32 v%d, v%d' % (S, T))
    k.e('v_permlane32_swap_b32 v%d, v%d' % (S + 1, T + 1))
    k.e('s_nop 1')
    k.e(pk('add', S, S, T))
    k.e('v_mul_f32 v%d, %s, v%d' % (S, hx(1.0 / n), S))
    k.e('v_mul_f32 v%d, v%d, v%d' % (T, S, S))
    k.e('v_mov_b32 v%d, %s' % (T + 1, hx(1.0 / n)))
    k.e('v_fma_f32 v%d, v%d, v%d, -v%d' % (S + 1, S + 1, T + 1, T))
    k.e('v_max_f32 v%d, 0, v%d' % (S + 1, S + 1))
    k.e('v_add_f32 v%d, %s, v%d' % (S + 1, hx(1e-5), S + 1))
    k.e('v_rsq_f32 v%d, v%d' % (R, S + 1))
    k.e('s_nop 0')
    k.e('v_mul_f32_e64 v%d, -v%d, v%d' % (M, S, R))

def uw_job(k, LB):
    k.e("""
    v_lshrrev_b32 v2, 3, v0
    v_and_b32 v3, 7, v0
    v_lshlrev_b32 v4, 6, v2
    s_mov_b32 s31, %d
    v_mul_lo_u32 v5, v2, s31
    v_lshl_add_u32 v5, v3, 4, v5
    s_movk_i32 s44, %d
    s_movk_i32 s45, %d
    s_lshl_b32 s30, s30, 1
    s_waitcnt lgkmcnt(0)
    """ % (16 * 7168, 4 * 4096, 3 * 4096))
    srd(k, 36, 'w_in'); srd(k, 40, 'ws', 0, 64 * KB)
    AV = 72; SV = 88; UA = 104; WA = 112
    lq = k.newlabel('uwq')
    poll_init(k)
    k.label(lq)
    for q in range(4): k.e('buffer_load_dwordx4 %s, v4, s[40:43], s44 offen offset:%d sc1' % (vr(AV + 4 * q, 4), q * 16))
    for q in range(4): k.e('buffer_load_dwordx4 %s, v4, s[40:43], s45 offen offset:%d sc1' % (vr(SV + 4 * q, 4), q * 16))
    if not k.c.first:
        k.e('s_waitcnt vmcnt(0)')
        k.e('v_max_u32 v6, v%d, v%d' % (AV, AV + 1))
        for r in range(AV + 2, AV + 32, 2): k.e('v_max3_u32 v6, v6, v%d, v%d' % (r, r + 1))
        k.e('v_cmp_eq_u32 vcc, -1, v6')
        poll_back(k, lq)
    k.e('s_mov_b32 s50, %d' % LB)
    lp = k.newlabel('uw')
    k.label(lp)
    k.e('s_lshl_b32 s31, s30, 7')
    for j in range(16):
        k.e('buffer_load_dwordx4 %s, v5, s[36:39], s31 offen' % vr(8 + 4 * j, 4))
        k.e('s_add_u32 s31, s31, 7168')
    for j in range(16):
        k.e('s_waitcnt vmcnt(%d)' % (15 - j))
        for d in range(4):
            unpack(k, 6, 7, 8 + 4 * j + d)
            for acc, cf in ((UA, AV), (WA, SV)):
                op = 'v_mul_f32' if j == 0 else 'v_fmac_f32'
                k.e('%s v%d, v6, v%d' % (op, acc + 2 * d, cf + j))
                k.e('%s v%d, v7, v%d' % (op, acc + 2 * d + 1, cf + j))
    red_lanes(k, list(range(UA, UA + 16)), list(range(8, 24)))
    lskip = k.newlabel('uwskip')
    k.e("""
    s_lshl_b32 s47, s46, 9
    s_add_u32 s47, s47, s50
    v_lshl_add_u32 v2, v3, 5, s47      ; pass*4096 + wave*512 + chunk*32
    v_cmp_gt_u32 vcc, 8, v1
    s_and_saveexec_b64 s[48:49], vcc
    ds_write_b128 v2, v[104:107]
    ds_write_b128 v2, v[108:111] offset:16
    ds_write_b128 v2, v[112:115] offset:256
    ds_write_b128 v2, v[116:119] offset:272
    s_mov_b64 exec, s[48:49]
    s_waitcnt lgkmcnt(0)
    s_barrier
    s_cmp_ge_u32 s46, 2
    s_cbranch_scc1 %s
    v_lshl_add_u32 v2, v0, 2, s50      ; wave0: u cols, wave1: w0 cols
    """ % lskip)
    for w in range(8): k.e('ds_read_b32 v%d, v2 offset:%d' % (8 + w, w * 512))
    k.e('s_waitcnt lgkmcnt(0)')
    for w in range(1, 8): k.e('v_add_f32 v8, v8, v%d' % (8 + w))
    k.e("""
    v_min_u32 v8, -2, v8
    v_lshlrev_b32 v2, 2, v1
    s_lshl_b32 s31, s30, 8
    s_lshl_b32 s47, s46, 14
    s_add_u32 s31, s31, s47
    s_add_u32 s31, s31, %d
    buffer_store_dword v8, v2, s[40:43], s31 offen sc1
    s_waitcnt vmcnt(0)
    """ % WS_UW)
    k.label(lskip)
    k.e("""
    s_add_u32 s30, s30, 1
    s_add_u32 s50, s50, 4096
    s_cmp_lt_u32 s50, %d
    s_cbranch_scc1 %s
    """ % (LB + 8192, lp))

GC1 = -2.0 * 0.7978845608028654 * LOG2E
def gelu_ops(k, a, U, W0, T, R, M, after_t=None):
    for r in range(0, 16, 2): k.e(pk('fma', T + r, U + r, (M,), W0 + r))
    if after_t: after_t()
    for r in range(0, 16, 2): k.e(pk('fma', a + r, a + r, (R,), T + r))
    for r in range(0, 16, 2): k.e(pk('mul', T + r, a + r, a + r))
    for r in range(0, 16, 2): k.e(pk('fma', T + r, T + r, 's[70:71]', (6,)))
    for r in range(0, 16, 2): k.e(pk('mul', T + r, T + r, a + r))
    for r in range(16): k.e('v_exp_f32 v%d, v%d' % (T + r, T + r))
    for r in range(0, 16, 2): k.e(pk('add', T + r, T + r, '1.0'))
    for r in range(16): k.e('v_rcp_f32 v%d, v%d' % (T + r, T + r))
    for r in range(0, 16, 2): k.e(pk('mul', a + r, a + r, T + r))
def stat_ops(k, a, S1, S2, first):
    for r in range(0, 16, 2):
        if first and r == 0:
            k.e(pk('add', S1, a, a + 2)); k.e(pk('mul', S2, a, a))
        else:
            if not (first and r == 2): k.e(pk('add', S1, S1, a + r))
            k.e(pk('fma', S2, a + r, a + r, S2))

def k_win(k, c):
    SPLIT = env('SPLIT', 0)
    XFER = 48 * KB
    def mid(g):
        k = g.k
        Z = 64; U = 96; T = 160; S = 176; RM_ = 180
        k.e("""
        s_lshl_b32 s67, s46, 13
        s_add_u32 s67, s67, %d
        v_lshl_add_u32 v44, v1, 4, s67     ; transfer area
        s_lshl_b32 s67, s46, 9
        s_add_u32 s67, s67, %d
        v_lshl_add_u32 v45, v1, 3, s67     ; (R,M) / stats slot
        v_lshrrev_b32 v46, 5, v1
        v_lshlrev_b32 v46, 4, v46
        v_add_u32 v46, %d, v46
        s_mov_b32 s70, %s
        s_mov_b32 s71, s70
        v_mov_b32 v6, %s
        ds_read_b64 v[%d:%d], v45
        """ % (XFER, g.AUX + 2048, g.AUX, hx(GC1 * 0.044715), hx(GC1), RM_, RM_ + 1))
        for b in range(2):
            for q in range(4):
                k.e('ds_read_b128 %s, v46 offset:%d' % (vr(U + 32 * b + 4 * q, 4), (2 + b) * 128 + q * 32))
                k.e('ds_read_b128 %s, v46 offset:%d' % (vr(U + 32 * b + 16 + 4 * q, 4), 1024 + (2 + b) * 128 + q * 32))
        k.e('s_setprio 1')
        k.e('s_waitcnt lgkmcnt(0)')
        k.e('v_mov_b32 v%d, v%d' % (RM_ + 2, RM_ + 1))
        k.e('s_barrier')
        for q in range(8): k.e('ds_read_b128 %s, v44 offset:%d' % (vr(Z + 4 * q, 4), q * 1024))
        for b in range(2):
            a = Z + 16 * b
            k.e('s_waitcnt lgkmcnt(%d)' % (4 - 4 * b))
            for hb in range(2):
                for e in range(4): k.e('v_permlane16_swap_b32 v%d, v%d' % (a + 8 * hb + e, a + 8 * hb + 4 + e))
            gelu_ops(k, a, U + 32 * b, U + 32 * b + 16, T, RM_, RM_ + 2)
            stat_ops(k, a, S, S + 2, b == 0)
        k.e('v_add_f32 v%d, v%d, v%d' % (S, S, S + 1))
        k.e('v_add_f32 v%d, v%d, v%d' % (S + 1, S + 2, S + 3))
        k.e('ds_write_b64 v45, %s' % vr(S, 2))
        k.e('s_waitcnt lgkmcnt(0)')
        k.e('s_barrier')
        for q in range(8): k.e('ds_write_b128 v44, %s offset:%d' % (vr(Z + 4 * q, 4), q * 1024))
        k.e('s_waitcnt lgkmcnt(0)')
    LP = 1; LPJ = env('LPJ', 3)
    KZ = c.nxt == 'wsp' and env('KEEPZ', 1)
    def post(g):
        if not LP: return
        k = g.k
        srd(k, 36, 'ws', WS_G, 256 * KB)
        k.e("""
        s_lshl_b32 s65, s30, 2
        s_add_u32 s65, s65, s46
        s_lshl_b32 s65, s65, 12            ; rb32*4096
        v_and_b32 v2, 31, v1
        v_lshrrev_b32 v3, 5, v1
        v_mul_u32_u24 v3, %d, v3
        v_lshl_add_u32 v2, v2, 3, v3
        s_lshl_b32 s67, s46, 9
        s_add_u32 s67, s67, %d
        v_lshl_add_u32 v3, v1, 3, s67
        s_setprio 2
        s_barrier
        """ % (7 * 256, g.AUX + 2048))
        lp = k.newlabel('lpoll')
        poll_init(k)
        k.label(lp)
        for p in range(7):
            k.e('buffer_load_dwordx2 %s, v2, s[36:39], s65 offen offset:%d sc1' % (vr(24 + 2 * p, 2), p * 256))
        k.e('s_waitcnt vmcnt(0)')
        k.e('v_max_u32 v5, v24, v25')
        for p in range(1, 7): k.e('v_max3_u32 v5, v5, v%d, v%d' % (24 + 2 * p, 25 + 2 * p))
        k.e('v_cmp_eq_u32 vcc, -1, v5')
        poll_back(k, lp)
        for p in range(1, 7): k.e(pk('add', 24, 24, 24 + 2 * p))
        stats_finish(k, 24, 1792, 40, 41, 26)
        k.e('ds_write_b64 v3, v[40:41]')
        k.e('s_waitcnt lgkmcnt(0)')
        k.e('s_barrier')
    def uw_loads(g):
        g.k.e('buffer_load_dwordx4 v[24:27], v2, s[40:43], s62 offen sc1')
        g.k.e('buffer_load_dwordx4 v[28:31], v2, s[40:43], s63 offen sc1')
    def aux(g):
        k = g.k
        srd(k, 40, 'ws', WS_UW, 32 * KB)
        k.e("""
        v_and_b32 v2, 31, v1
        v_lshlrev_b32 v2, 4, v2
        v_add_u32 v3, 7168, v2
        v_cmp_gt_u32 vcc, 32, v1
        s_lshl_b32 s62, s31, 9
        s_add_u32 s63, s62, %d
        v_cndmask_b32 v2, v2, v3, vcc
        v_lshlrev_b32 v3, 4, v1
        v_add_u32 v3, %d, v3
        """ % (16 * KB, g.AUX))
        uw_loads(g)
        return 2
    def aux_end(g):
        k = g.k
        lp = k.newlabel('uwp'); lc = k.newlabel('uwc')
        poll_init(k)
        k.e('s_branch %s' % lc)
        k.label(lp)
        uw_loads(g)
        k.e('s_waitcnt vmcnt(0)')
        k.label(lc)
        k.e("""
        v_max3_u32 v4, v24, v25, v26
        v_max3_u32 v4, v4, v27, v28
        v_max3_u32 v4, v4, v29, v30
        v_max_u32 v4, v4, v31
        v_cmp_eq_u32 vcc, -1, v4
        """)
        poll_back(k, lp)
        k.e("""
        ds_write_b128 v3, v[24:27]
        ds_write_b128 v3, v[28:31] offset:1024
        s_waitcnt lgkmcnt(0)
        """)
    def pre(g):
        k = g.k
        g.L16 = alloc(g, 1, 1); g.SA = alloc(g, 1, 1); g.GA = alloc(g, 1, 1); g.CA = alloc(g, 1, 1)
        g.R = alloc(g, 2, 2); g.M = alloc(g, 2, 2); g.P = alloc(g, 16)
        srd(k, 32, 'ws', ZB, max(WS_Z, WS_Z2N) - ZB + ZSZ); srd(k, 36, 'ws', WS_ST1, 512 * KB)
        k.e('v_lshlrev_b32 v%d, 4, v1' % g.L16)
        k.e("""
        s_lshl_b32 s61, s30, 2
        s_add_u32 s61, s61, s46           ; rb32
        s_lshr_b32 s64, s61, 1
        s_lshl_b32 s64, s64, 13           ; rb64*8192
        s_and_b32 s65, s61, 1
        s_lshl_b32 s65, s65, 8
        s_add_u32 s64, s64, s65           ; x1 stats offset
        s_lshl_b32 s65, s61, 12
        s_add_u32 s65, s65, %d            ; granule offset (row block)
        s_lshl_b32 s66, s31, 8
        s_add_u32 s66, s66, s65           ; own granule
        s_mul_i32 s60, s61, %d
        s_lshl_b32 s61, s31, 13
        s_add_u32 s60, s60, s61           ; Z1 offset
        v_lshlrev_b32 v5, 3, v3
        v_lshl_add_u32 v%d, v4, 12, v5    ; h*8*512 + row*8
        v_mul_u32_u24 v6, %d, v4
        v_add_u32 v%d, v6, v5             ; h*7*256 + row*8
        v_lshlrev_b32 v%d, 4, v4
        v_add_u32 v%d, %d, v%d
        """ % (WS_G - WS_ST1, 112 * 1024, g.SA, 7 * 256, g.GA, g.CA, g.CA, g.AUX, g.CA))
    def early(g):
        k = g.k
        for p in range(8):
            k.e('buffer_load_dwordx2 %s, v%d, s[36:39], s64 offen offset:%d sc1' % (vr(g.P + 2 * p, 2), g.SA, p * 512))
        k.e('s_waitcnt vmcnt(0)')
        for p in range(1, 8): k.e(pk('add', g.P, g.P, g.P + 2 * p))
        stats_finish(k, g.P, 1024, g.R, g.M, g.P + 2)
        if SPLIT:
            k.e('s_lshl_b32 s67, s46, 9')
            k.e('s_add_u32 s67, s67, %d' % (g.AUX + 2048))
            k.e('v_lshl_add_u32 v%d, v1, 3, s67' % g.SA)
            k.e('s_lshl_b32 s67, s46, 13')
            k.e('s_add_u32 s67, s67, %d' % XFER)
            k.e('v_lshl_add_u32 v%d, v1, 4, s67' % g.GA)
            k.e('v_mov_b32 v%d, v%d' % (g.R + 1, g.M))
            k.e('ds_write_b64 v%d, %s' % (g.SA, vr(g.R, 2)))
            k.e('s_waitcnt lgkmcnt(0)')
    def pre2(g): pass
    def epi(g):
        k = g.k
        c1 = -2.0 * 0.7978845608028654 * LOG2E
        U = g.FR; W0 = g.FR + 16; T = g.FR + 32; PS = g.FR + 48
        def rd_uw(j):
            for q in range(4):
                k.e('ds_read_b128 %s, v%d offset:%d' % (vr(U + 4 * q, 4), g.CA, j * 128 + q * 32))
                k.e('ds_read_b128 %s, v%d offset:%d' % (vr(W0 + 4 * q, 4), g.CA, 1024 + j * 128 + q * 32))
        k.e('s_nop 7')
        rd_uw(0)
        k.e('s_mov_b32 s70, %s' % hx(c1 * 0.044715)); k.e('s_mov_b32 s71, s70')
        k.e('v_mov_b32 v6, %s' % hx(c1))
        S1 = g.P; S2 = g.P + 2
        GR = g.P + 2
        n = 0
        def poll_loads():
            for p in range(7):
                k.e('buffer_load_dwordx2 %s, v%d, s[36:39], s65 offen offset:%d sc1' % (vr(GR + 2 * p, 2), g.GA, p * 256))
        cnt = [0]
        def block(j):
            a = g.acc(0, j)
            g.fix(0, j)
            k.e('s_waitcnt lgkmcnt(0)')
            lastz2 = 1 if SPLIT else 3
            gelu_ops(k, a, U, W0, T, g.R, g.M, after_t=(lambda: rd_uw(j + 1)) if (j < 7 and not (j == lastz2 and g.deferred)) else None)
            if j >= 4:
                if KZ:
                    for d in range(8): k.e('v_cvt_pk_bf16_f32 v%d, v%d, v%d' % (ZKEEP + 8 * (j - 4) + d, a + 2 * d, a + 2 * d + 1))
                else:
                    k.e('s_add_u32 s61, s60, %d' % (WS_Z - ZB + (j - 4) * 2048))
                    store_xf_tile(g, a, PS + 8 * (cnt[0] % 3), g.L16, 32, 's61', 0); cnt[0] += 1
            else: stat_ops(k, a, S1, S2, j == 0)
        if SPLIT:
            assert g.deferred and LPJ == 3
            for q in range(8): k.e('ds_write_b128 v%d, %s offset:%d' % (g.GA, vr(g.acc(0, 2) + 4 * q, 4), q * 1024))
            k.e('s_waitcnt lgkmcnt(0)')
            k.e('s_barrier')
        for j in range(2 if SPLIT else 4): block(j)
        k.e('v_add_f32 v%d, v%d, v%d' % (S1, S1, S1 + 1))
        k.e('v_add_f32 v%d, v%d, v%d' % (S1 + 1, S2, S2 + 1))
        if SPLIT:
            k.e('s_barrier')
            k.e('ds_read_b64 %s, v%d' % (vr(S2, 2), g.SA))
            k.e('s_waitcnt lgkmcnt(0)')
            k.e(pk('add', S1, S1, S2))
        k.e('v_mov_b32 v%d, v%d' % (S2, S1))
        k.e('v_mov_b32 v%d, v%d' % (S2 + 1, S1 + 1))
        k.e('v_lshlrev_b32 v5, 3, v3')
        k.e('s_nop 0')
        k.e('v_permlane32_swap_b32 v%d, v%d' % (S1, S2))
        k.e('v_permlane32_swap_b32 v%d, v%d' % (S1 + 1, S2 + 1))
        k.e('s_nop 1')
        k.e(pk('add', S1, S1, S2))
        k.e('v_min_u32 v%d, -2, v%d' % (S1, S1))
        k.e('v_min_u32 v%d, -2, v%d' % (S1 + 1, S1 + 1))
        k.e('s_mov_b32 exec_hi, 0')
        k.e('buffer_store_dwordx2 %s, v5, s[36:39], s66 offen sc1' % vr(S1, 2))
        k.e('s_mov_b32 exec_hi, -1')
        if env('WM', 0): mark(k, 0)
        NB4 = env('NB4', 1) if KZ else 4
        if g.deferred:
            g.deferred()
            rd_uw(4)
        if LPJ == 3: k.e('s_barrier')
        if SPLIT:
            assert NB4 >= 1
            for q in range(8): k.e('ds_read_b128 %s, v%d offset:%d' % (vr(g.acc(0, 2) + 4 * q, 4), g.GA, q * 1024))
        for j in range(4, 4 + NB4):
            block(j)
            if j == LPJ: k.e('s_barrier')
        if env('WM', 0): mark(k, 1)
        R2 = g.P + 4; M2 = g.P + 6
        k.e('s_lshl_b32 s67, s46, 9')
        k.e('s_add_u32 s67, s67, %d' % (g.AUX + 2048))
        k.e('v_lshl_add_u32 v5, v1, 3, s67')
        k.e('s_barrier')
        k.e('ds_read_b64 %s, v5' % vr(R2, 2))
        k.e('s_waitcnt lgkmcnt(0)')
        mark(k, 3)
        k.e('v_mov_b32 v%d, v%d' % (M2, R2 + 1))
        zo = ZOWN and c.nxt == 'wsp'
        if zo:
            assert g.M16
            ZA = g.P + 8
            k.e('''
            s_lshr_b32 s67, s46, 1
            s_lshl_b32 s67, s67, 15
            s_and_b32 s68, s46, 1
            s_lshl_b32 s68, s68, 13
            s_add_u32 s67, s67, s68
            s_add_u32 s67, s67, 16384
            v_bfe_u32 v5, v1, 4, 1
            v_lshl_add_u32 v%d, v5, 12, s67
            v_bfe_u32 v5, v1, 2, 2
            v_lshl_add_u32 v%d, v5, 8, v%d
            v_and_b32 v5, 2, v5
            v_or_b32 v5, v5, v4
            v_lshl_add_u32 v%d, v5, 6, v%d
            v_and_b32 v5, 3, v1
            v_lshl_add_u32 v%d, v5, 4, v%d
            v_xor_b32 v%d, 128, v%d
            ''' % (ZA, ZA, ZA, ZA, ZA, ZA, ZA, ZA + 1, ZA))
        for j in range(4):
            a = g.acc(0, j)
            for r in range(0, 16, 2): k.e(pk('fma', a + r, a + r, (R2,), (M2,)))
            k.e('s_add_u32 s61, s60, %d' % (WS_Z2N - ZB + j * 2048))
            if zo:
                store_xf_tile(g, a, a, g.L16, 32, 's61', 0)
            else:
                store_xf_tile(g, a, PS + 8 * (cnt[0] % 3), g.L16, 32, 's61', 0); cnt[0] += 1
        if zo:
            for j in range(4):
                for t in range(2): k.e('ds_write_b128 v%d, %s offset:%d' % (ZA + t, vr(g.acc(0, j) + 4 * t, 4), j * 1024))
        if g.LE: k.e('s_barrier')
        rest = list(range(4 + NB4, 8))
        NBS = env('NBS', 2)
        for j in rest[:NBS]: block(j)
        signal(k, 'C')
        if zo and LPW: k.e('s_barrier')
        for j in rest[NBS:]: block(j)
        k.e('s_waitcnt lgkmcnt(0)')
    sig = 's_lshl_b32 s100, s31, 8\ns_lshl_b32 s101, s30, 4\ns_add_u32 s100, s100, s101\ns_add_u32 s100, s100, %d' % FL_WIN
    wait = ('s_lshl_b32 s100, s30, 8\ns_add_u32 s100, s100, %d' % FL_WO, 64)
    H22 = env('H22', 0)
    k_gemm(k, c, 16, 14, 2, 2, 7, 128, 256, 2 if H22 else 4, 2 if H22 else 1, 1024, 32, 4, ('xf', WS_X1S, 1024), ('w', 'w_in', 7168, (256, [3584, 3584 + 128, 0, 128])),
           pre, pre2, epi, aux=aux, auxsz=4 * KB, auxbase=AUX_B, aux_end=aux_end, post=post, mid=mid if SPLIT else None, selfsig=True, early=early, SOFT=3, DEFER=3, dcols=([0, 1], [2, 3]) if H22 else ([0, 1, 2, 3], [4, 5, 6, 7]), JG=2, lazyfix=True, side=(28, uw_job), wait=wait, sig=sig)

def k_win2(k, c):
    assert c.nxt == 'wsp' and ZOWN
    def post(g):
        k = g.k
        srd(k, 36, 'ws', WS_G2, 512 * KB)
        k.e("""
        s_lshl_b32 s65, s30, 1
        s_lshr_b32 s66, s46, 1
        s_add_u32 s65, s65, s66
        s_lshl_b32 s65, s65, 14            ; rb64*16K
        s_and_b32 s66, s46, 1
        s_lshl_b32 s66, s66, 8
        s_add_u32 s65, s65, s66
        s_add_u32 s66, s65, 3584
        v_and_b32 v2, 31, v1
        v_lshrrev_b32 v3, 5, v1
        v_mul_u32_u24 v3, %d, v3
        v_lshl_add_u32 v2, v2, 3, v3
        s_lshl_b32 s67, s46, 9
        s_add_u32 s67, s67, %d
        v_lshl_add_u32 v3, v1, 3, s67
        s_setprio 2
        s_barrier
        """ % (14 * 512, g.AUX + 2048))
        lp = k.newlabel('lpoll')
        poll_init(k)
        k.label(lp)
        for p in range(14):
            k.e('buffer_load_dwordx2 %s, v2, s[36:39], s%d offen offset:%d sc1' % (vr(24 + 2 * p, 2), 65 + p // 7, (p % 7) * 512))
        k.e('s_waitcnt vmcnt(0)')
        k.e('v_max_u32 v5, v24, v25')
        for p in range(1, 14): k.e('v_max3_u32 v5, v5, v%d, v%d' % (24 + 2 * p, 25 + 2 * p))
        k.e('v_cmp_eq_u32 vcc, -1, v5')
        poll_back(k, lp)
        for p in range(1, 14): k.e(pk('add', 24, 24, 24 + 2 * p))
        stats_finish(k, 24, 1792, 56, 57, 26)
        k.e('ds_write_b64 v3, v[56:57]')
        k.e('s_waitcnt lgkmcnt(0)')
        k.e('s_barrier')
        if env('WLE', 2): k.e('s_barrier')
    def uw_loads(g):
        g.k.e('buffer_load_dwordx4 v[24:27], v2, s[40:43], s62 offen sc1')
        g.k.e('buffer_load_dwordx4 v[28:31], v2, s[40:43], s63 offen sc1')
    def aux(g):
        k = g.k
        srd(k, 40, 'ws', WS_UW, 32 * KB)
        k.e("""
        v_and_b32 v2, 31, v1
        v_lshlrev_b32 v2, 4, v2
        v_add_u32 v3, 7168, v2
        v_cmp_gt_u32 vcc, 32, v1
        s_lshl_b32 s62, s31, 9
        s_add_u32 s63, s62, %d
        v_cndmask_b32 v2, v2, v3, vcc
        v_lshlrev_b32 v3, 4, v1
        v_add_u32 v3, %d, v3
        """ % (16 * KB, g.AUX))
        uw_loads(g)
        return 2
    def aux_end(g):
        k = g.k
        lp = k.newlabel('uwp'); lc = k.newlabel('uwc')
        poll_init(k)
        k.e('s_branch %s' % lc)
        k.label(lp)
        uw_loads(g)
        k.e('s_waitcnt vmcnt(0)')
        k.label(lc)
        k.e("""
        v_max3_u32 v4, v24, v25, v26
        v_max3_u32 v4, v4, v27, v28
        v_max3_u32 v4, v4, v29, v30
        v_max_u32 v4, v4, v31
        v_cmp_eq_u32 vcc, -1, v4
        """)
        poll_back(k, lp)
        k.e("""
        ds_write_b128 v3, v[24:27]
        ds_write_b128 v3, v[28:31] offset:1024
        s_waitcnt lgkmcnt(0)
        """)
    def pre(g):
        k = g.k
        g.L16 = alloc(g, 1, 1); g.L8 = alloc(g, 1, 1); g.CA = alloc(g, 1, 1)
        g.R = alloc(g, 4); g.M = alloc(g, 4); g.P = alloc(g, 16)
        srd(k, 32, 'ws', WS_Z2N, ZSZ); srd(k, 36, 'ws', WS_ST1, 256 * KB); srd(k, 40, 'ws', WS_G2, 512 * KB)
        k.e('v_lshlrev_b32 v%d, 4, v1' % g.L16)
        k.e('v_lshlrev_b32 v%d, 3, v1' % g.L8)
        k.e("""
        s_lshl_b32 s61, s30, 1
        s_add_u32 s61, s61, s50           ; rb64
        s_lshl_b32 s64, s61, 13           ; x1 stats offset
        s_add_u32 s65, s64, 4096
        s_lshl_b32 s66, s31, 1
        s_add_u32 s66, s66, s51
        s_lshl_b32 s66, s66, 9
        s_lshl_b32 s67, s61, 14
        s_add_u32 s66, s66, s67           ; own granule
        s_mul_i32 s60, s61, %d
        s_lshl_b32 s61, s31, 13
        s_add_u32 s60, s60, s61
        s_lshl_b32 s61, s51, 12
        s_add_u32 s60, s60, s61           ; Z2N offset of block (0,0)
        s_add_u32 s61, s60, %d
        s_lshl_b32 s67, s51, 8
        s_add_u32 s67, s67, %d
        v_lshl_add_u32 v%d, v4, 4, s67
        """ % (2 * 112 * 1024, 112 * 1024, g.AUX, g.CA))
    def early(g):
        k = g.k
        if ZF32:
            assert g.free <= BSV
            srd(k, 80, 'b_sp')
            k.e('s_lshr_b32 s67, s64, 6')
            k.e('v_and_b32 v5, 15, v1')
            k.e('v_lshlrev_b32 v5, 1, v5')
            for q in range(4): k.e('buffer_load_ushort v%d, v5, s[80:83], s67 offen offset:%d' % (BSV + q, q * 32))
        Pp = g.FR
        for p in range(16):
            k.e('buffer_load_dwordx2 %s, v%d, s[36:39], s%d offen offset:%d sc1' % (vr(Pp + 2 * p, 2), g.L8, 64 + p // 8, (p % 8) * 512))
        k.e('s_waitcnt vmcnt(0)')
        for p in range(1, 16): k.e(pk('add', Pp, Pp, Pp + 2 * p))
        T_ = Pp + 2
        k.e('v_mul_f32 v%d, %s, v%d' % (Pp, hx(1.0 / 1024), Pp))
        k.e('v_mul_f32 v%d, v%d, v%d' % (T_, Pp, Pp))
        k.e('v_mov_b32 v%d, %s' % (T_ + 1, hx(1.0 / 1024)))
        k.e('v_fma_f32 v%d, v%d, v%d, -v%d' % (Pp + 1, Pp + 1, T_ + 1, T_))
        k.e('v_max_f32 v%d, 0, v%d' % (Pp + 1, Pp + 1))
        k.e('v_add_f32 v%d, %s, v%d' % (Pp + 1, hx(1e-5), Pp + 1))
        k.e('v_rsq_f32 v%d, v%d' % (g.R, Pp + 1))
        k.e('s_nop 0')
        k.e('v_mul_f32_e64 v%d, -v%d, v%d' % (g.M, Pp, g.R))
        k.e('v_mov_b32 v%d, v%d' % (g.R + 2, g.R))
        k.e('v_mov_b32 v%d, v%d' % (g.M + 2, g.M))
        k.e('s_nop 1')
        k.e('v_permlane32_swap_b32 v%d, v%d' % (g.R, g.R + 2))
        k.e('v_permlane32_swap_b32 v%d, v%d' % (g.M, g.M + 2))
    def epi(g):
        k = g.k
        U = g.FR; W0 = g.FR + 16; T = g.FR + 32
        def rd_uw(j):
            o = (j // 2) * 512 + (j % 2) * 128
            for q in range(4):
                k.e('ds_read_b128 %s, v%d offset:%d' % (vr(U + 4 * q, 4), g.CA, o + q * 32))
                k.e('ds_read_b128 %s, v%d offset:%d' % (vr(W0 + 4 * q, 4), g.CA, 1024 + o + q * 32))
        rd_uw(0)
        k.e('s_mov_b32 s70, %s' % hx(GC1 * 0.044715)); k.e('s_mov_b32 s71, s70')
        k.e('v_mov_b32 v6, %s' % hx(GC1))
        SS = g.P
        def block(n):
            j, i = n // 2, n % 2
            a = g.acc(i, j)
            g.fix(i, j)
            if i == 0: k.e('s_waitcnt lgkmcnt(0)')
            gelu_ops(k, a, U, W0, T, g.R + 2 * i, g.M + 2 * i, after_t=(lambda: rd_uw(j + 1)) if (i == 1 and j in (0, 2)) else None)
            if j >= 2:
                if not ZF32:
                    for d in range(8): k.e('v_cvt_pk_bf16_f32 v%d, v%d, v%d' % (a + d, a + 2 * d, a + 2 * d + 1))
            else: stat_ops(k, a, SS + 4 * i, SS + 4 * i + 2, j == 0)
        for n in range(4): block(n)
        for i in range(2):
            k.e('v_add_f32 v%d, v%d, v%d' % (SS + 4 * i, SS + 4 * i, SS + 4 * i + 1))
            k.e('v_add_f32 v%d, v%d, v%d' % (SS + 4 * i + 1, SS + 4 * i + 2, SS + 4 * i + 3))
        k.e('s_nop 1')
        k.e('v_permlane32_swap_b32 v%d, v%d' % (SS, SS + 4))
        k.e('v_permlane32_swap_b32 v%d, v%d' % (SS + 1, SS + 5))
        k.e('s_nop 1')
        k.e(pk('add', SS, SS, SS + 4))
        k.e('v_min_u32 v%d, -2, v%d' % (SS, SS))
        k.e('v_min_u32 v%d, -2, v%d' % (SS + 1, SS + 1))
        k.e('buffer_store_dwordx2 %s, v%d, s[40:43], s66 offen sc1' % (vr(SS, 2), g.L8))
        if env('WM', 0): mark(k, 0)
        NB4 = env('NB4', 1)
        g.deferred()
        rd_uw(2)
        k.e('s_barrier')
        for n in range(4, 4 + NB4): block(n)
        if env('WM', 0): mark(k, 1)
        R2 = g.P + 4; ZA = g.P + 12
        k.e("""
        s_lshl_b32 s67, s50, 10
        s_add_u32 s67, s67, %d
        v_add_u32 v7, s67, v%d
        s_lshl_b32 s67, s50, 15
        s_lshl_b32 s68, s51, 11
        s_add_u32 s67, s67, s68
        s_add_u32 s67, s67, 16384
        v_bfe_u32 v5, v1, 4, 1
        v_lshl_add_u32 v%d, v5, 12, s67
        v_bfe_u32 v5, v1, 2, 2
        v_lshl_add_u32 v%d, v5, 8, v%d
        v_and_b32 v5, 2, v5
        v_or_b32 v5, v5, v4
        v_lshl_add_u32 v%d, v5, 6, v%d
        v_and_b32 v5, 3, v1
        v_lshl_add_u32 v%d, v5, 4, v%d
        v_xor_b32 v%d, 128, v%d
        s_barrier
        ds_read_b64 %s, v7
        ds_read_b64 %s, v7 offset:512
        s_waitcnt lgkmcnt(0)
        """ % (g.AUX + 2048, g.L8, ZA, ZA, ZA, ZA, ZA, ZA, ZA, ZA + 1, ZA, vr(R2, 2), vr(R2 + 4, 2)))
        mark(k, 3)
        for i in range(2): k.e('v_mov_b32 v%d, v%d' % (R2 + 4 * i + 2, R2 + 4 * i + 1))
        for i in range(2):
            for j in range(2):
                a = g.acc(i, j)
                for r in range(0, 16, 2): k.e(pk('fma', a + r, a + r, (R2 + 4 * i,), (R2 + 4 * i + 2,)))
                store_xf_tile(g, a, a, g.L16, 32, 's%d' % (60 + i), j * 2048)
        if env('WLE', 2) == 1: k.e('s_barrier')
        for i in range(2):
            for j in range(2):
                for t in range(2): k.e('ds_write_b128 v%d, %s offset:%d' % (ZA + t, vr(g.acc(i, j) + 4 * t, 4), i * 8192 + j * 1024))
        rest = list(range(4 + NB4, 8))
        NBS = env('NBS', 2)
        for n in rest[:NBS]: block(n)
        signal(k, 'C')
        if env('WLE', 2) == 2: k.e('s_barrier')
        for n in rest[NBS:]: block(n)
        k.e('s_waitcnt lgkmcnt(0)')
    sig = 's_lshl_b32 s100, s31, 8\ns_lshl_b32 s101, s30, 4\ns_add_u32 s100, s100, s101\ns_add_u32 s100, s100, %d' % FL_WIN
    wait = ('s_lshl_b32 s100, s30, 8\ns_add_u32 s100, s100, %d' % FL_WO, 64)
    k_gemm(k, c, 16, 14, 2, 2, 7, 128, 256, 2, 2, 1024, 32, 4, ('xf', WS_X1S, 1024), ('w', 'w_in', 7168, (256, [3584, 0, 3584 + 128, 128])),
           pre, nop, epi, aux=aux, auxsz=4 * KB, auxbase=AUX_B, aux_end=aux_end, post=post, selfsig=True, early=early, SOFT=0, DEFER=3,
           dcols=([0, 1], [2, 3]), JG=2, lazyfix=True, side=(28, uw_job), wait=wait, sig=sig, accmap=lambda i, j: (j // 2) * 4 + i * 2 + j % 2)

def k_wsp(k, c):
    def pre(g):
        k = g.k
        g.L16 = alloc(g, 1, 1); g.L2 = alloc(g, 1, 1); g.B = alloc(g, 4); g.Z = alloc(g, 32)
        srd(k, 32, 'ws', WS_Z, ZSZ); srd(k, 36, 'ws', WS_U2, ZSZ); srd(k, 40, 'b_sp')
        k.e('v_lshlrev_b32 v%d, 4, v1' % g.L16)
        k.e('''
        s_lshl_b32 s60, s31, 13
        s_lshl_b32 s61, s51, 12
        s_add_u32 s60, s60, s61
        s_lshl_b32 s61, s30, 2
        s_lshl_b32 s62, s50, 1
        s_add_u32 s61, s61, s62           ; rb0
        s_lshl_b32 s63, s61, 6
        s_mul_i32 s61, s61, %d
        s_add_u32 s60, s60, s61
        s_add_u32 s61, s60, %d
        v_lshlrev_b32 v%d, 1, v3
        ''' % (112 * 1024, 112 * 1024, g.L2))
    def pre2(g):
        k = g.k
        for i in range(2):
            k.e('buffer_load_ushort v%d, v%d, s[40:43], s63 offen offset:%d' % (g.B + 2 * i, g.L2, i * 64))
        for i in range(2):
            for j in range(2):
                for t in range(2):
                    k.e('buffer_load_dwordx4 %s, v%d, s[32:35], s%d offen offset:%d sc1' % (vr(g.Z + 16 * i + 8 * j + 4 * t, 4), g.L16, 60 + i, (2 * j + t) * 1024))
    def epi(g):
        k = g.k
        T = g.FR
        k.e('s_waitcnt vmcnt(0)')
        for i in range(2): k.e('v_lshlrev_b32 v%d, 16, v%d' % (g.B + 2 * i, g.B + 2 * i))
        k.e('s_nop 7')
        for j in range(2):
            for i in range(2):
                a = g.acc(i, j); z = g.Z + 16 * i + 8 * j
                for d in range(8): unpack(k, T + 2 * d, T + 2 * d + 1, z + d)
                for d in range(8): k.e(pk('add', a + 2 * d, a + 2 * d, (g.B + 2 * i,)))
                for d in range(8): k.e(pk('mul', a + 2 * d, a + 2 * d, T + 2 * d))
                store_xf_tile(g, a, z, g.L16, 36, 's%d' % (60 + i), j * 2048)
    KZ = c.prev == 'win' and env('KEEPZ', 1)
    def preK(g):
        k = g.k
        g.L16 = alloc(g, 1, 1); g.L2 = alloc(g, 1, 1); g.B = alloc(g, 2, 2)
        srd(k, 36, 'ws', WS_U2, ZSZ); srd(k, 40, 'b_sp')
        k.e('v_lshlrev_b32 v%d, 4, v1' % g.L16)
        k.e('''
        s_lshl_b32 s60, s31, 13
        s_lshl_b32 s61, s30, 2
        s_add_u32 s61, s61, s46           ; rb32
        s_lshl_b32 s63, s61, 6
        s_mul_i32 s61, s61, %d
        s_add_u32 s60, s60, s61
        s_add_u32 s61, s60, 4096
        v_lshlrev_b32 v%d, 1, v3
        ''' % (112 * 1024, g.L2))
    def pre2K(g):
        g.k.e('buffer_load_ushort v%d, v%d, s[40:43], s63 offen' % (g.B, g.L2))
    def epiK(g):
        k = g.k
        T = g.FR
        k.e('s_waitcnt vmcnt(0)')
        k.e('v_lshlrev_b32 v%d, 16, v%d' % (g.B, g.B))
        for j in range(4):
            a = g.acc(0, j); z = ZKEEP + 8 * j
            for d in range(8): unpack(k, T + 2 * d, T + 2 * d + 1, z + d)
            for d in range(8): k.e(pk('add', a + 2 * d, a + 2 * d, (g.B,)))
            for d in range(8): k.e(pk('mul', a + 2 * d, a + 2 * d, T + 2 * d))
            store_xf_tile(g, a, z, g.L16, 36, 's%d' % (60 + j // 2), (j % 2) * 2048)
    sig = 's_lshl_b32 s100, s30, 8\ns_lshl_b32 s101, s31, 4\ns_add_u32 s100, s100, s101\ns_add_u32 s100, s100, %d' % FL_WSP
    wait = ('s_lshl_b32 s100, s31, 8\ns_add_u32 s100, s100, %d' % FL_WIN, 64)
    def pre22(g):
        k = g.k
        g.L16 = alloc(g, 1, 1); g.L2 = alloc(g, 1, 1); g.B = alloc(g, 4)
        srd(k, 36, 'ws', WS_U2, ZSZ); srd(k, 40, 'b_sp')
        k.e('v_lshlrev_b32 v%d, 4, v1' % g.L16)
        k.e('''
        s_lshl_b32 s60, s31, 13
        s_lshl_b32 s61, s51, 12
        s_add_u32 s60, s60, s61
        s_lshl_b32 s61, s30, 2
        s_lshl_b32 s62, s50, 1
        s_add_u32 s61, s61, s62           ; rb0
        s_lshl_b32 s63, s61, 6
        s_mul_i32 s61, s61, %d
        s_add_u32 s60, s60, s61
        s_add_u32 s61, s60, %d
        v_lshlrev_b32 v%d, 1, v3
        ''' % (112 * 1024, 112 * 1024, g.L2))
    def pre22f(g):
        pre22(g)
        k = g.k
        for q in range(4): k.e('v_lshlrev_b32 v%d, 16, v%d' % (BSV + q, BSV + q))
        for i in range(2):
            for j in range(2):
                for r in range(16): k.e('v_mov_b32 v%d, v%d' % (g.acc(i, j) + r, BSV + 2 * i + (r // 4) % 2))
    def epi22f(g):
        k = g.k
        for j in range(2):
            for i in range(2):
                a = g.acc(i, j); z = ZKEEP + 16 * (2 * i + j)
                g.fix(i, j)
                k.e('s_nop 0')
                for d in range(8): k.e(pk('mul', a + 2 * d, a + 2 * d, z + 2 * d))
                store_xf_tile(g, a, a, g.L16, 36, 's%d' % (60 + i), j * 2048)
    def pre222(g):
        for i in range(2): g.k.e('buffer_load_ushort v%d, v%d, s[40:43], s63 offen offset:%d' % (g.B + 2 * i, g.L2, i * 64))
    def epi22(g):
        k = g.k
        T = g.FR
        k.e('s_waitcnt vmcnt(0)')
        for i in range(2): k.e('v_lshlrev_b32 v%d, 16, v%d' % (g.B + 2 * i, g.B + 2 * i))
        for j in range(2):
            for i in range(2):
                a = g.acc(i, j); z = ZKEEP + 16 * (2 * i + j)
                for d in range(8): unpack(k, T + 2 * d, T + 2 * d + 1, z + d)
                for d in range(8): k.e(pk('add', a + 2 * d, a + 2 * d, (g.B + 2 * i,)))
                for d in range(8): k.e(pk('mul', a + 2 * d, a + 2 * d, T + 2 * d))
                store_xf_tile(g, a, z, g.L16, 36, 's%d' % (60 + i), j * 2048)
    tailpre = None
    if TPRE:
        su, pcs = proj_wpre('w_out', 24, 4, 's46')
        def tp(k, n):
            cnt = 0
            for st in (2 * n, 2 * n + 1):
                if st < TPRE:
                    for x in pcs(st):
                        k.e(x)
                        if 'm0' in x: k.e('s_nop 0')
                    cnt += 4
            return cnt
        tailpre = (su, tp)
    if W22 and ZF32: k_gemm(k, c, 16, 14, 2, 2, 7, 128, 128, 2, 2, 2048, 64, 3, ('rm', 'w_sp', 4096), ('z', WS_Z2N, 1792), pre22f, nop, epi22f, pf='w_out', wait=wait, sig=sig, dep='Y', GU=2, RWD=2, frbase=ZKEEP + 64, own='s_lshl_b32 s68, s30, 1', cinit=True, lazyfix=True, tailpre=tailpre)
    elif W22: k_gemm(k, c, 16, 14, 2, 2, 7, 128, 128, 2, 2, 2048, 64, 3, ('rm', 'w_sp', 4096), ('z', WS_Z2N, 1792), pre22, pre222, epi22, pf='w_out', wait=wait, sig=sig, dep='Y', GU=2, RWD=2, frbase=ZKEEP + 64, own='s_lshl_b32 s68, s30, 1')
    elif KZ: k_gemm(k, c, 16, 14, 2, 2, 7, 128, 128, 2 if env('H22', 0) else 4, 2 if env('H22', 0) else 1, 2048, 64, 3, ('rm', 'w_sp', 4096), ('z', WS_Z2N, 1792), preK, pre2K, epiK, pf='w_out', wait=wait, sig=sig, dep='Y', GU=2, RWD=2, frbase=ZKEEP + 32, own='s_lshl_b32 s68, s30, 1')
    else: k_gemm(k, c, 16, 14, 2, 2, 7, 128, 128, 2, 2, 2048, 64, 3, ('rm', 'w_sp', 4096), ('z', WS_Z2N, 1792), pre, pre2, epi, pf='w_out', wait=wait, sig=sig, dep='Y', GU=2, RWD=2, own='s_lshl_b32 s68, s30, 1')

def k_attn(k, c):
    NS = 4; STG = 32768; NST = 8
    phase_begin(k, c)
    SA, SB, O, NEGM = 8, 24, 40, 56
    L, ONES, Q, KF, VF, P = 72, 76, 80, 88, 96, 104
    A0 = 112; AC = 113; AO = 114; M = 115; T = 116; T2 = 117; PFA = 118; MA = 119; PFD = 120; MT = 124
    assert c.nxt == 'wo'
    k.e("""
    v_and_b32 v1, 63, v0
    s_mov_b32 s46, s3
    s_and_b32 s47, s2, 7
    s_lshr_b32 s48, s2, 3
    s_lshl_b32 s30, s47, 2
    s_lshr_b32 s49, s48, 3
    s_add_u32 s30, s30, s49            ; head
    s_and_b32 s31, s48, 7              ; q block (256 rows)
    v_lshlrev_b32 v%d, 4, v1
    s_lshl_b32 s50, s31, 3
    s_add_u32 s50, s50, s46            ; rb of this wave's queries
    s_lshl_b32 s51, s30, 6
    s_add_u32 s51, s51, s50
    s_lshl_b32 s51, s51, 11            ; Q offset
    s_lshl_b32 s52, s30, 18            ; KV head base
    s_lshl_b32 s53, s46, 12            ; wave part (4KB = one tile)
    s_lshl_b32 s62, s2, 13
    v_lshl_add_u32 v%d, v0, 4, s62     ; prefetch offset wg*8K + tid*16
    s_mov_b32 s62, %d
    s_waitcnt lgkmcnt(0)
    """ % (A0, PFA, 0x40000000 if env('PFOFF', 0) else 0))
    mark(k, 0)
    srd(k, 36, 'ws', WS_KV, 256 * KB, soff='s52'); srd(k, 32, 'ws', WS_Q, 4 * MB)
    set_flag(k, 's_lshl_b32 s100, s31, 8\ns_lshl_b32 s101, s30, 2\ns_add_u32 s100, s100, s101\ns_add_u32 s100, s100, %d' % FL_ATT)
    handoff(k, 's_lshr_b32 s100, s30, 1\ns_lshl_b32 s100, s100, 8\ns_add_u32 s100, s100, %d' % FL_QKV, 64, role='A')
    def dma(slot_expr):
        return ['s_add_u32 m0, s53, %s' % slot_expr] + \
               ['buffer_load_dwordx4 v%d, s[36:39], s56 offen offset:%d sc1 lds' % (A0, q * 1024) for q in range(4)] + \
               ['s_add_u32 s56, s56, %d' % STG]
    def pfl(n): return 'buffer_load_dwordx4 %s, v%d, %s, s62 offen' % (vr(PFD, 4), PFA, sr(n))
    def emit_dma(slot_expr):
        d = dma(slot_expr); k.e(d[0]); k.e('s_nop 0')
        for x in d[1:]: k.e(x)
    AST = env('AST', 1)
    if AST:
        k.e('s_lshl_b32 s56, s46, 10')
        k.e('s_mov_b32 m0, s56')
        k.e('s_mul_i32 s58, s46, 3072')
        k.e('buffer_load_dwordx4 v%d, s[36:39], s56 offen sc1 lds' % A0)
    else:
        k.e('s_mov_b32 s56, s53')
        emit_dma('0')
    k.e('buffer_load_dwordx4 %s, v%d, s[32:35], s51 offen sc1' % (vr(Q, 4), A0))
    k.e('buffer_load_dwordx4 %s, v%d, s[32:35], s51 offen offset:1024 sc1' % (vr(Q + 4, 4), A0))
    if AST:
        k.e('s_add_u32 s56, s58, 8192')
        k.e('s_mov_b32 m0, s56')
        k.e('s_nop 0')
        for q in range(3): k.e('buffer_load_dwordx4 v%d, s[36:39], s56 offen offset:%d sc1 lds' % (A0, q * 1024))
        k.e('s_add_u32 s56, s53, %d' % STG)
        emit_dma(str(STG))
    srd(k, 64, 'w_in'); srd(k, 68, 'w_sp'); srd(k, 32, 'wo')
    srd(k, 40, 'ws', WS_O, 4 * MB)
    k.e("""
    s_lshl_b32 s54, s50, 16
    s_lshl_b32 s55, s30, 11
    s_add_u32 s54, s54, s55            ; O offset
    v_and_b32 v3, 3, v1
    v_bfe_u32 v4, v1, 2, 1
    v_bfe_u32 v5, v1, 4, 1
    v_xor_b32 v4, v4, v5
    v_or_b32 v3, v3, v4
    v_cmp_eq_u32 vcc, 0, v3
    v_mov_b32 v4, 0x3f803f80
    s_nop 1
    v_cndmask_b32 v%d, 0, v4, vcc
    v_mov_b32 v%d, v%d
    v_mov_b32 v%d, v%d
    v_mov_b32 v%d, v%d
    """ % (ONES, ONES + 1, ONES, ONES + 2, ONES, ONES + 3, ONES))
    def adr(t): return (AC if t < 16 else AO), (t % 16) * 4096
    def rdK(t):
        a, o = adr(t)
        return ['ds_read_b128 %s, v%d offset:%d' % (vr(KF, 4), a, o), 'ds_read_b128 %s, v%d offset:%d' % (vr(KF + 4, 4), a, o + 1024)]
    def rdV(t):
        a, o = adr(t)
        return ['ds_read_b128 %s, v%d offset:%d' % (vr(VF, 4), a, o + 2048), 'ds_read_b128 %s, v%d offset:%d' % (vr(VF + 4, 4), a, o + 3072)]
    def qk(S, c):
        return ['v_mfma_f32_32x32x16_bf16 %s, %s, %s, %s' % (vr(S, 16), vr(KF, 4), vr(Q, 4), c),
                'v_mfma_f32_32x32x16_bf16 %s, %s, %s, %s' % (vr(S, 16), vr(KF + 4, 4), vr(Q + 4, 4), vr(S, 16))]
    def maxtile(S, first):
        st = 0
        if first:
            k.e('v_max3_f32 v%d, v%d, v%d, v%d' % (M, S, S + 1, S + 2))
            k.e('v_max_f32 v%d, v%d, v%d' % (M, M, S + 3))
            st = 4
        for r in range(st, 16, 2): k.e('v_max3_f32 v%d, v%d, v%d, v%d' % (M, M, S + r, S + r + 1))
    def set_negm(bias):
        k.e('v_mov_b32 v%d, v%d' % (T, M))
        k.e('s_nop 1')
        k.e('v_permlane32_swap_b32 v%d, v%d' % (M, T))
        k.e('s_nop 1')
        k.e('v_max_f32 v%d, v%d, v%d' % (M, M, T))
        k.e('v_sub_f32 v%d, %s, v%d' % (NEGM, hx(-bias), M))
        for r in range(1, 16): k.e('v_mov_b32 v%d, v%d' % (NEGM + r, NEGM))
    def zero_state():
        for r in range(16): k.e('v_mov_b32 v%d, 0' % (O + r))
        for r in range(4):
            k.e('v_mov_b32 v%d, 0' % (L + r))
            k.e('v_mov_b32 v%d, 0' % (P + 4 + r))
            k.e('v_mov_b32 v%d, 0' % (VF + 4 + r))
        k.e('v_mov_b32 v%d, v%d' % (AC, A0))
        k.e('v_add_u32 v%d, 0x10000, v%d' % (AO, A0))
        k.e('s_mov_b32 s57, 0')
    zero_state()
    if not MP0: srd(k, 80, 'ws', 0, 256 * KB)
    if not MP0: k.e("""
    s_and_b32 s49, s2, 3               ; k quarter
    s_lshl_b32 s49, s49, 3
    s_add_u32 s49, s49, s46            ; 32-row group
    s_mul_i32 s60, s49, %d
    s_lshr_b32 s63, s2, 2              ; col block
    s_lshl_b32 s63, s63, 7
    s_add_u32 s60, s60, s63
    s_add_u32 s60, s60, 4096
    s_add_u32 s61, s60, 12288
    s_and_b32 s49, s2, 3
    s_lshl_b32 s49, s49, 2
    s_and_b32 s63, s46, 3
    s_add_u32 s49, s49, s63
    s_lshl_b32 s49, s49, 8             ; silu offset of row groups 2(w&3), +1
    s_add_u32 s49, s49, %d
    v_lshrrev_b32 v%d, 3, v1
    v_mul_u32_u24 v%d, %d, v%d
    v_and_b32 v%d, 7, v1
    v_lshl_add_u32 v%d, v%d, 4, v%d
    v_lshlrev_b32 v%d, 4, v%d
    """ % (32 * 12288, WS_SC, MT, MA, 4 * 12288, MT, MT + 1, MA, MT + 1, MA, MT, MT))
    def mld(j): return ['s_add_u32 m0, s53, %d' % (AUX_A + j * 1024), 'buffer_load_dwordx4 v%d, s[80:83], s%d offen lds' % (MA, (60, 61, 63, 49)[j])]
    k.e('s_waitcnt vmcnt(%d)' % (7 if AST else 0))
    k.e('s_barrier')
    mark(k, 1)
    for r in rdK(1): k.e(r)
    k.e('s_waitcnt lgkmcnt(0)')
    for m in qk(SB, '0'): k.e(m)
    for r in rdK(0): k.e(r)
    k.e('s_waitcnt lgkmcnt(0)')
    for m in qk(SA, '0'): k.e(m)
    def extras():
        if MP0: return
        k.e(pfl(32))
        k.e('buffer_load_dwordx4 %s, v%d, s[80:83], s49 offen' % (vr(MSV, 4), MT))
        k.e('buffer_load_dwordx4 %s, v%d, s[80:83], s49 offen offset:128' % (vr(MSV + 4, 4), MT))
        srd(k, 80, 'w_mod')
        k.e('s_mov_b32 s49, 0x40000000')
        k.e('s_mov_b32 s63, 0x40000000')
    if AST: k.e('s_nop 7')
    else:
        emit_dma(str(STG)); extras()
    maxtile(SB, True)
    maxtile(SA, False)
    set_negm(40.0)
    if AST:
        k.e('s_waitcnt vmcnt(4)')
        k.e('s_barrier')
        extras()
    mark(k, 2)
    if env('APRIO', 0):
        k.e('s_cmp_ge_u32 s46, 4')
        k.e('s_cbranch_scc0 L_attn_noprio')
        k.e('s_setprio 1')
        k.label('L_attn_noprio')
    k.e('s_mov_b32 s59, %d' % (NST // 2))
    k.e('s_nop 0')
    for m in qk(SA, vr(NEGM, 16)): k.e(m)
    k.e(rdK(1)[0])
    k.e('ds_read_b32 v%d, v%d' % (T, A0))
    k.e(rdK(1)[1])
    k.e(rdV(0)[0])
    k.e('s_nop 7')
    lp = 'L_attn_loop'
    def pv(h): return 'v_mfma_f32_32x32x16_bf16 %s, %s, %s, %s' % (vr(O, 16), vr(VF + 4 * h, 4), vr(P + 4 * h, 4), vr(O, 16))
    def ls(h): return 'v_mfma_f32_16x16x32_bf16 %s, %s, %s, %s' % (vr(L, 4), vr(ONES, 4), vr(P + 4 * h, 4), vr(L, 4))
    def iteration(nsoft, pat0):
        for t in range(16):
            cur, nxt = (SA, SB) if t % 2 == 0 else (SB, SA)
            m_qk = qk(nxt, vr(NEGM, 16))
            kn = rdK(t + 2); v0n = rdV(t + 1)[0]; v1n = rdV(t)[1]
            ex = ['v_exp_f32 v%d, v%d' % (cur + r, cur + r) for r in range(16)]
            cv = ['v_cvt_pk_bf16_f32 v%d, v%d, v%d' % (P + d, cur + 2 * d, cur + 2 * d + 1) for d in range(8)]
            W = 's_waitcnt lgkmcnt(2)'
            head = []; xs = []
            if t % 8 == 6: head = ['s_waitcnt vmcnt(%d)' % (9 if not MP0 else (6 if t == 6 else 7)), 's_barrier']
            if t == 14 and not c.last and not nsoft: head = ['s_cmp_eq_u32 s59, 1', 's_cbranch_scc0 L_attn_nd', 's_waitcnt vmcnt(0)', 'L_attn_nd:'] + head
            d = dma('s58')
            if t % 8 == 0: xs = ['s_xor_b32 s58, s57, 0x%x' % (0x10000 if t == 0 else 0x18000), d[0], d[1]]
            elif t % 8 < 3: xs = [d[1 + t % 8]]
            elif t % 8 == 3: xs = [d[4], d[5]]
            elif t == 4: xs = [pfl(64)]
            elif t == 5: xs = [pfl(68)]
            elif MP0 and t == 7: xs = [pfl(32)]
            elif MP0 and t == 12: xs = ['s_add_u32 s62, s62, %d' % (2 * MB)]
            elif MP0 and t == 13: xs = []
            elif MP0 and t == 15: xs = ['s_xor_b32 s57, s57, 0x10000']
            elif t == 7: xs = mld(0)
            elif t == 12: xs = ['s_add_u32 s62, s62, %d' % (2 * MB)] + mld(2)
            elif t == 13: xs = mld(1)
            elif t == 15: xs = ['s_xor_b32 s57, s57, 0x10000'] + mld(3) + ['s_add_u32 s63, s60, %d' % (2 * 12288), 's_add_u32 s49, s60, %d' % (3 * 12288)]
            tail = ['v_swap_b32 v%d, v%d' % (AC, AO), 's_sub_u32 s59, s59, 1', 's_cmp_lg_u32 s59, 0'] if t == 15 else []
            pat = pat0 if t < nsoft else os.environ.get('APAT', 'eeeQeeePeeccLcc')
            body = []
            for hh in range(2):
                ei = 8 * hh; ci = 4 * hh
                for ch in pat:
                    if ch == 'e': body.append(ex[ei]); ei += 1
                    elif ch == 'c': body.append(cv[ci]); ci += 1
                    elif ch == 'Q': body += [W, m_qk[hh], kn[hh]]
                    elif ch == 'P': body += [pv(1 - hh), v1n if hh == 0 else v0n]
                    elif ch == 'L': body.append(ls(1 - hh))
                assert ei == 8 * hh + 8 and ci == 4 * hh + 4
            if tail:
                last_ds = max(i for i, x in enumerate(body) if x.startswith('ds_') or x.startswith('v_exp'))
                body = body[:last_ds + 1] + tail + body[last_ds + 1:]
            iq = max(i for i, x in enumerate(body) if x == m_qk[1])
            first_e = min(i for i, x in enumerate(body) if x.startswith('v_exp'))
            assert len(body) - 1 - iq + first_e >= 12, 'qk->exp distance'
            seq = list(head)
            for x in body:
                seq.append(x)
                if xs and x.startswith('v_exp'): seq.append(xs.pop(0))
            assert not xs
            AX = os.environ.get('AX', '')
            if 'p' in AX: seq = [x for x in seq if 's62 offen' not in x]
            for x in seq: k.e(x)
    if env('ASOFT', 0): iteration(env('ASOFT', 0), os.environ.get('APAT0', 'eQPLeeeeeeecccc'))
    k.label(lp)
    iteration(0, None)
    k.e('s_cbranch_scc1 %s' % lp)
    k.label('L_attn_epi')
    mark(k, 3)
    k.e('s_waitcnt lgkmcnt(0)')
    k.e(pv(1)); k.e(ls(1))
    k.e('s_nop 15')
    lstore = 'L_attn_store'; lsafe = 'L_attn_safe'
    k.e('v_max3_f32 v%d, |v%d|, |v%d|, |v%d|' % (T, O, O + 1, L))
    for r in range(2, 16, 2): k.e('v_max3_f32 v%d, |v%d|, |v%d|, v%d' % (T, O + r, O + r + 1, T))
    k.e('v_mul_f32 v%d, 0, v%d' % (T2, L))
    for r in range(16): k.e('v_fma_f32 v%d, 0, v%d, v%d' % (T2, O + r, T2))
    k.e('v_add_f32 v%d, v%d, v%d' % (T, T, T2))
    k.e('v_mov_b32 v3, %s' % hx(2.0 ** 120))
    k.e('v_cmp_nlt_f32 vcc, v%d, v3' % T)
    k.e('s_nop 4')
    k.e('s_cbranch_vccnz %s' % lsafe)
    k.label(lstore)
    k.e('v_rcp_f32 v%d, v%d' % (T, L))
    k.e('s_nop 0')
    for r in range(16): k.e('v_mul_f32 v%d, v%d, v%d' % (O + r, O + r, T))
    for d in range(8): k.e('v_cvt_pk_bf16_f32 v%d, v%d, v%d' % (P + d, O + 2 * d, O + 2 * d + 1))
    k.e('buffer_store_dwordx4 %s, v%d, s[40:43], s54 offen%s' % (vr(P, 4), A0, WT))
    k.e('buffer_store_dwordx4 %s, v%d, s[40:43], s54 offen offset:1024%s' % (vr(P + 4, 4), A0, WT))
    signal(k, 'S')
    endpgm(k)
    k.label(lsafe)
    def gl(dst, off): return 'buffer_load_dwordx4 %s, v%d, s[36:39], s56 offen offset:%d sc1' % (vr(dst, 4), A0, off)
    k.e('s_waitcnt vmcnt(0)')
    k.e('s_mov_b32 s56, 0')
    k.e('v_mov_b32 v%d, 0xff800000' % M)
    k.label(lsafe + '1')
    k.e(gl(KF, 0)); k.e(gl(KF + 4, 1024))
    k.e('s_waitcnt vmcnt(0)')
    for m in qk(SA, '0'): k.e(m)
    k.e('s_nop 15')
    maxtile(SA, False)
    k.e('s_add_u32 s56, s56, 4096')
    k.e('s_cmp_lt_u32 s56, %d' % (256 * KB))
    k.e('s_cbranch_scc1 %s1' % lsafe)
    set_negm(0.0)
    zero_state()
    k.e('s_mov_b32 s56, 0')
    k.label(lsafe + '2')
    k.e(gl(KF, 0)); k.e(gl(KF + 4, 1024)); k.e(gl(VF, 2048)); k.e(gl(VF + 4, 3072))
    k.e('s_waitcnt vmcnt(0)')
    for m in qk(SA, vr(NEGM, 16)): k.e(m)
    k.e('s_nop 15')
    for r in range(16): k.e('v_exp_f32 v%d, v%d' % (SA + r, SA + r))
    k.e('s_nop 0')
    for d in range(8): k.e('v_cvt_pk_bf16_f32 v%d, v%d, v%d' % (P + d, SA + 2 * d, SA + 2 * d + 1))
    k.e('s_nop 1')
    k.e(pv(0)); k.e(ls(0)); k.e(pv(1)); k.e(ls(1))
    k.e('s_add_u32 s56, s56, 4096')
    k.e('s_nop 7')
    k.e('s_cmp_lt_u32 s56, %d' % (256 * KB))
    k.e('s_cbranch_scc1 %s2' % lsafe)
    k.e('s_nop 15')
    k.e('s_branch %s' % lstore)
    k.need(MSV + 8, 160 * KB)

def k_attn2(k, c):
    phase_begin(k, c)
    assert c.prev == 'qkv' and c.nxt == 'wo' and not (MP0 and AOWN != 3)
    S2 = (8, 24); O2 = (40, 56); N2 = (72, 88); L2 = (104, 108); Q2 = (112, 120)
    ONES, KF, VF, P = 128, 132, 140, 148
    A0 = 156; AR = 157; M = 158; T = 159; T2 = 160; PFA = 161; MA = 162; MT = 164; PFD = 168
    k.e("""
    v_and_b32 v1, 63, v0
    s_mov_b32 s46, s3
    s_and_b32 s47, s3, 1               ; wn
    s_bfe_u32 s48, s3, 0x10001         ; wm
    s_lshr_b32 s49, s3, 2              ; kh
    s_lshl_b32 s50, s31, 1
    s_add_u32 s50, s50, s47            ; head
    s_lshl_b32 s52, s50, 18
    s_lshl_b32 s51, s49, 17
    s_add_u32 s51, s51, s52            ; stream base in KV
    s_lshl_b32 s55, s49, 1
    s_add_u32 s55, s55, s47
    s_lshl_b32 s55, s55, 15            ; stream ring base in LDS
    s_lshl_b32 s56, s48, 12            ; next global offset: own tile of stage 0
    s_add_u32 s57, s55, s56            ; LDS address of own tile in slot 0
    s_lshl_b32 s53, s3, 12             ; wave*4KB (mod slice staging)
    v_lshlrev_b32 v%d, 4, v1
    v_add_u32 v%d, s55, v%d
    s_lshl_b32 s54, s30, 2
    s_lshl_b32 s58, s48, 1
    s_add_u32 s54, s54, s58
    s_add_u32 s54, s54, s49            ; rb of the tile this wave finalises
    s_lshl_b32 s54, s54, 16
    s_lshl_b32 s58, s50, 11
    s_add_u32 s54, s54, s58            ; O offset
    s_lshl_b32 s62, s2, 13
    v_lshl_add_u32 v%d, v0, 4, s62     ; prefetch offset wg*8K + tid*16
    s_mov_b32 s62, 0
    v_and_b32 v3, 3, v1
    v_bfe_u32 v4, v1, 2, 1
    v_bfe_u32 v5, v1, 4, 1
    v_xor_b32 v4, v4, v5
    v_or_b32 v3, v3, v4
    v_cmp_eq_u32 vcc, 0, v3
    v_mov_b32 v4, 0x3f803f80
    s_nop 1
    v_cndmask_b32 v%d, 0, v4, vcc
    v_mov_b32 v%d, v%d
    v_mov_b32 v%d, v%d
    v_mov_b32 v%d, v%d
    """ % (A0, AR, A0, PFA, ONES, ONES + 1, ONES, ONES + 2, ONES, ONES + 3, ONES))
    mark(k, 0)
    if AOWN:
        srd(k, 36, 'ws', WS_KV, 256 * KB, soff='s52')
        k.e('''
        s_mov_b32 s86, s87                 ; qkv flag the compute waves still have to publish
        s_lshl_b32 s51, s30, 14
        s_add_u32 s51, s51, s56            ; offset of the own pairs (skipped in the stream)
        s_mul_i32 s58, s49, %d
        s_add_u32 s56, s56, s58
        s_cmp_ge_u32 s56, s51
        s_cselect_b32 s58, 16384, 0
        s_add_u32 s56, s56, s58
        ''' % (15 * 8192))
    else: srd(k, 36, 'ws', WS_KV, 128 * KB, soff='s51')
    srd(k, 80, 'ws', 0, 256 * KB)
    srd(k, 64, 'w_in'); srd(k, 68, 'w_sp'); srd(k, 32, 'wo')
    for r in range(16):
        k.e('v_mov_b32 v%d, 0' % (O2[0] + r)); k.e('v_mov_b32 v%d, 0' % (O2[1] + r))
    for r in range(4):
        for b in (L2[0], L2[1], P + 4, VF + 4): k.e('v_mov_b32 v%d, 0' % (b + r))
    k.e("""
    s_and_b32 s58, s2, 3               ; k quarter
    s_lshl_b32 s58, s58, 3
    s_add_u32 s58, s58, s46            ; 32-row group
    s_mul_i32 s60, s58, %d
    s_lshr_b32 s63, s2, 2              ; col block
    s_lshl_b32 s63, s63, 7
    s_add_u32 s60, s60, s63
    s_add_u32 s60, s60, 4096
    s_add_u32 s61, s60, 12288
    s_and_b32 s44, s2, 3
    s_lshl_b32 s44, s44, 2
    s_and_b32 s63, s46, 3
    s_add_u32 s44, s44, s63
    s_lshl_b32 s44, s44, 8             ; silu offset of row groups 2(w&3), +1
    s_add_u32 s44, s44, %d
    v_lshrrev_b32 v%d, 3, v1
    v_mul_u32_u24 v%d, %d, v%d
    v_and_b32 v%d, 7, v1
    v_lshl_add_u32 v%d, v%d, 4, v%d
    v_lshlrev_b32 v%d, 4, v%d
    ; Q / stand-in exchange area: tile A of this wave = tile kh
    s_and_b32 s58, s3, 3
    s_mul_i32 s58, s58, 5120
    s_add_u32 s58, s58, %d
    s_lshl_b32 s63, s49, 11
    s_add_u32 s63, s63, s58
    v_add_u32 v2, s63, v%d             ; Q of tile kh
    v_xor_b32 v3, 1, v2
    s_xor_b32 s63, s49, 1
    s_lshl_b32 s63, s63, 11
    s_add_u32 s63, s63, s58
    v_add_u32 v3, s63, v%d             ; Q of the other tile
    s_lshl_b32 s63, s49, 2
    s_add_u32 s63, s63, s58
    v_lshl_add_u32 v4, v1, 3, s63
    v_xor_b32 v5, 4, v4
    """ % (32 * 12288, WS_SC, MT, MA, 4 * 12288, MT, MT + 1, MA, MT + 1, MA, MT, MT, AUX_A, A0, A0))
    set_flag(k, 's_lshl_b32 s100, s30, 8\ns_lshl_b32 s101, s31, 2\ns_add_u32 s100, s100, s101\ns_add_u32 s100, s100, %d' % FL_ATT)
    def hand(): handoff(k, 's_lshl_b32 s100, s31, 8\ns_add_u32 s100, s100, %d' % FL_QKV, 64, role='A')
    if AOWN: k.e('s_barrier')
    else: hand()
    def dma(slot):
        return ['s_add_u32 m0, s57, %d' % (slot * 8192)] + \
               ['buffer_load_dwordx4 v%d, s[36:39], s56 offen offset:%d sc1 lds' % (A0, q * 1024) for q in range(4)] + \
               ['s_add_u32 s56, s56, 8192' + ('\ns_cmp_eq_u32 s56, s51\ns_cselect_b32 s58, 16384, 0\ns_add_u32 s56, s56, s58' if AOWN else '')]
    def emit_dma(slot):
        d = dma(slot); k.e(d[0]); k.e('s_nop 0')
        for x in d[1:]: k.e(x)
    def pfl(n): return 'buffer_load_dwordx4 %s, v%d, %s, s62 offen' % (vr(PFD, 4), PFA, sr(n))
    def mld(j): return [] if MP0 else ['s_add_u32 m0, s53, %d' % (AUX_A + j * 1024), 'buffer_load_dwordx4 v%d, s[80:83], s%d offen lds' % (MA, (60, 61, 63, 45)[j])]
    if not AOWN: emit_dma(0); emit_dma(1)
    for q in range(2):
        k.e('ds_read_b128 %s, v%d' % (vr(Q2[q], 4), 2 + q))
        k.e('ds_read_b128 %s, v%d offset:1024' % (vr(Q2[q] + 4, 4), 2 + q))
        k.e('ds_read_b32 v%d, v%d offset:4096' % (N2[q], 4 + q))
    k.e('s_waitcnt lgkmcnt(0)')
    for r in range(1, 16):
        for q in range(2): k.e('v_mov_b32 v%d, v%d' % (N2[q] + r, N2[q]))
    if not AOWN:
        k.e('s_waitcnt vmcnt(4)')
        k.e('s_barrier')
        mark(k, 1)
    def rd(dst, t, part): return 'ds_read_b128 %s, v%d offset:%d' % (vr(dst, 4), AR, (t % 8) * 4096 + part * 1024)
    def qk(q, hh, c0=None):
        S_ = S2[q]
        return 'v_mfma_f32_32x32x16_bf16 %s, %s, %s, %s' % (vr(S_, 16), vr(KF + 4 * hh, 4), vr(Q2[q] + 4 * hh, 4), (c0 or vr(N2[q], 16)) if hh == 0 else vr(S_, 16))
    def pv(q, h): return 'v_mfma_f32_32x32x16_bf16 %s, %s, %s, %s' % (vr(O2[q], 16), vr(VF + 4 * h, 4), vr(P + 4 * h, 4), vr(O2[q], 16))
    def ls(q, h): return 'v_mfma_f32_16x16x32_bf16 %s, %s, %s, %s' % (vr(L2[q], 4), vr(ONES, 4), vr(P + 4 * h, 4), vr(L2[q], 4))
    k.e(rd(KF, 0, 0)); k.e(rd(KF + 4, 0, 1)); k.e(rd(VF, 0, 2))
    def silu_loads():
        if MP0: return
        k.e('buffer_load_dwordx4 %s, v%d, s[80:83], s44 offen sc1' % (vr(MSV, 4), MT))
        k.e('buffer_load_dwordx4 %s, v%d, s[80:83], s44 offen offset:128 sc1' % (vr(MSV + 4, 4), MT))
    def wmod():
        if MP0: return
        srd(k, 80, 'w_mod')
        k.e('s_add_u32 s63, s60, %d' % (2 * 12288))
        k.e('s_add_u32 s45, s60, %d' % (3 * 12288))
    if not AOWN: silu_loads()
    k.e('s_waitcnt lgkmcnt(1)')
    k.e(qk(0, 0)); k.e(qk(0, 1))
    if AOWN: k.e('s_nop 11')
    else:
        emit_dma(2); wmod()
    OD = env('OD', 0) and AOWN == 3
    ool = []
    NOFIRST = MP0 and AOWN == 3 and not env('ASOFT', 0) and not OD and env('LASTB', 1) and env('NOFIRST', 0)
    def late_start():
        if AOWN == 1:
            l = k.newlabel('ls')
            k.e('s_cmp_lt_u32 s3, 4'); k.e('s_cbranch_scc1 %s' % l)
            flag_prep(k)
            k.e('s_and_b32 s100, s3, 3\ns_lshl_b32 s100, s100, 7\ns_add_u32 s100, s100, s86')
            k.e('s_waitcnt vmcnt(0)')
            flag_store(k, 's100')
            k.label(l)
        hand()
        mark(k, 1)
        if OD:
            emit_dma(1); silu_loads(); wmod()
            k.e('''
            s_lshl_b32 s43, s48, 12
            s_add_u32 s43, s43, %d
            s_cmp_ge_u32 s43, s51
            s_cselect_b32 s58, 16384, 0
            s_add_u32 s43, s43, s58
            s_cmp_lt_u32 s3, 4
            s_cselect_b64 vcc, -1, 0
            s_cbranch_scc0 L_attn_np
            s_setprio 1
            L_attn_np:
            ''' % (16 * 8192))
        else:
            emit_dma(1); silu_loads()
            if NOFIRST: k.e(pfl(32))
            emit_dma(2); wmod()
    k.e('s_mov_b32 s59, %d' % (3 if env('LASTB', 1) and not OD else 4))
    mark(k, 2)
    lp = 'L_attn_loop'
    LASTB = env('LASTB', 1) and not OD
    def iteration(first, nsoft, pat0, last=False):
        for u in range(16):
            t = u // 2; q = u % 2; st = u // 4; us = u % 4
            cur = S2[q]
            ex = ['v_exp_f32 v%d, v%d' % (cur + r, cur + r) for r in range(16)]
            cv = ['v_cvt_pk_bf16_f32 v%d, v%d, v%d' % (P + d, cur + 2 * d, cur + 2 * d + 1) for d in range(8)]
            if q == 0:
                Qs = [[qk(1, 0), rd(KF, t + 1, 0)], [qk(1, 1), rd(KF + 4, t + 1, 1)]]
                Ps = [[pv(1, 1), rd(VF + 4, t, 3)], ['WAITV', pv(0, 0)]]
            else:
                Qs = [['s_waitcnt lgkmcnt(0)', qk(0, 0)], [qk(0, 1)]]
                Ps = [[pv(0, 1)], [pv(1, 0), rd(VF, t + 1, 2)]]
            Ls = [ls(1 - q, 1), ls(q, 0)]
            peel = first and AOWN == 4 and u in (2, 3)
            if peel and u == 2:
                Qs = [[qk(1, 0)], [qk(1, 1)]]; Ps = [[pv(1, 1), rd(VF + 4, t, 3)], ['s_waitcnt lgkmcnt(1)', pv(0, 0)]]
            if peel and u == 3:
                Qs = [['s_waitcnt lgkmcnt(0)'], ['s_nop 0']]; Ps = [[pv(0, 1)], [pv(1, 0)]]
            inc = ['s_add_u32 s62, s62, %d' % (2 * MB)]
            NOPF = env('NOPF', 0)
            if first and AOWN: extra = [[], [], mld(0) + [pfl(32)], [pfl(64)], mld(1), mld(2), mld(3), [pfl(68)] + inc]
            elif first: extra = [[], [pfl(32)], mld(0), [pfl(64)], mld(1), mld(2), mld(3), [pfl(68)] + inc]
            else: extra = [[], [], [pfl(64)], [], [], [], [pfl(68)] + inc, []]
            if NOPF: extra = [[y for y in x if 's62' not in y] for x in extra]
            cnt = lambda e: [sum('buffer_load' in y for y in e[2 * i] + e[2 * i + 1]) for i in range(4)]
            nx_ = cnt(extra)
            prevx = ((0 if MP0 else 2) if first else nx_[3]) if st == 0 else nx_[st - 1]
            head = ['s_waitcnt vmcnt(%d)' % (prevx + 4 + nx_[st]), 's_barrier'] if us == 2 else []
            if last and us == 2 and st >= 2: head = (['s_waitcnt vmcnt(%d)' % (prevx + nx_[st])] if st == 2 else []) + ['s_barrier']
            if peel: head = []
            d = dma((st + 3) % 4)
            if OD and us == 2:
                lb = 'L_attn_fd%d_%d' % (first, st)
                d0 = dma((st + 2) % 4)
                d1 = [x.replace('s56', 's43').replace('s57, %d' % (((st + 2) % 4) * 8192), 's57, %d' % (((st + 2) % 4) * 8192 + 65536)) for x in d0]
                nw = 8 + nx_[st] + (2 if first and st == 0 else 0)
                ool.append([lb + ':', d0[0], 's_nop 0'] + d0[1:5] + [d1[0], 's_nop 0'] + d1[1:5] + [d0[5], d1[5], 's_waitcnt vmcnt(%d)' % nw, 's_branch %sr' % lb])
                head = ['s_cbranch_vccnz %s' % lb] + (['s_waitcnt vmcnt(2)'] if first and st == 0 else []) + [lb + 'r:', 's_barrier']
            if (OD or (last and st >= 1)) and us >= 2: xs = []
            elif us == 2: xs = [d[0], d[1], None, None, None, None, None, None, None, d[2]]
            elif us == 3: xs = [d[3], None, None, None, None, None, None, None, d[4], d[5]]
            else: xs = list(extra[2 * st + us])
            pat = pat0 if u < nsoft else os.environ.get('APAT', 'eeeQeeePeeccLcc')
            assert pat.index('Q') < pat.index('P')
            body = []
            for hh in range(2):
                ei = 8 * hh; ci = 4 * hh
                for ch in pat:
                    if ch == 'e': body.append(ex[ei]); ei += 1
                    elif ch == 'c': body.append(cv[ci]); ci += 1
                    elif ch == 'Q': body += Qs[hh]
                    elif ch == 'P': body += Ps[hh]
                    elif ch == 'L': body.append(Ls[hh])
            body = ['s_waitcnt lgkmcnt(3)' if x == 'WAITV' else x for x in body]
            if u == 15 and not last:
                le = max(i for i, x in enumerate(body) if x.startswith('v_exp'))
                body = body[:le + 1] + ['s_sub_u32 s59, s59, 1', 's_cmp_lg_u32 s59, 0'] + body[le + 1:]
            if peel and u == 3:
                body += ['s_waitcnt vmcnt(10)', 's_barrier', rd(KF, 2, 0), rd(KF + 4, 2, 1), rd(VF, 2, 2), 's_waitcnt lgkmcnt(1)', qk(0, 0), qk(0, 1)]
            iq = body.index(qk(1 - q, 1))
            first_e = min(i for i, x in enumerate(body) if x.startswith('v_exp'))
            gap = len(body) - 1 - iq + first_e
            if gap < 12: body.append('s_nop %d' % (11 - gap))
            if first and AOWN and u == (0 if AOWN == 3 else 2): late_start()
            seq = list(head)
            for x in body:
                seq.append(x)
                if xs and x.startswith('v_exp'):
                    y = xs.pop(0)
                    if y: seq.append(y)
            assert not xs
            AX = os.environ.get('AX', '')
            if 'b' in AX: seq = [x for x in seq if x != 's_barrier']
            if 'p' in AX: seq = [x for x in seq if 's62 offen' not in x and 's[80:83]' not in x]
            if 'v' in AX: seq = [x for x in seq if 'buffer_load' not in x]
            if 'd' in AX: seq = [x for x in seq if not x.startswith('ds_read') and 'lgkmcnt' not in x]
            if 'l' in AX: seq = [x for x in seq if '16x16x32' not in x]
            for x in seq: k.e(x)
    if NOFIRST: late_start()
    else: iteration(True, env('ASOFT', 0), os.environ.get('APAT0', 'eQPLeeeeeeecccc'))
    k.label(lp)
    iteration(False, 0, None)
    k.e('s_cbranch_scc1 %s' % lp)
    if LASTB:
        if CPF >= 2:
            l = k.newlabel('ct')
            k.e('s_cmp_lg_u32 s3, 0'); k.e('s_cbranch_scc1 %s' % l)
            k.e('s_mov_b64 s[60:61], s[64:65]')
            code_touch(k, 'L_attn_epi', 'L_text_end', '0', 172)
            k.e('s_mov_b64 s[64:65], s[60:61]')
            k.label(l)
        iteration(False, 0, None, last=True)
        k.e('s_nop 0')
    k.label('L_attn_epi')
    if 'b' in os.environ.get('AX', ''): k.e('s_barrier')
    mark(k, 3)
    k.e('s_nop 0')
    k.e(pv(1, 1)); k.e(ls(1, 1))
    if LASTB:
        k.e("""
        s_lshl_b32 s58, s48, 13
        s_add_u32 s58, s58, s55
        s_add_u32 s58, s58, 8192
        v_add_u32 v2, s58, v%d
        v_lshl_add_u32 v4, v1, 2, s58
        s_xor_b32 s58, s58, 0x10000
        v_add_u32 v3, s58, v%d
        v_lshl_add_u32 v5, v1, 2, s58
        s_nop 3
        """ % (A0, A0))
    else:
        k.e("""
        s_mul_i32 s58, s3, 5120
        v_add_u32 v2, s58, v%d
        v_lshl_add_u32 v4, v1, 2, s58
        s_xor_b32 s58, s3, 4
        s_mul_i32 s58, s58, 5120
        v_add_u32 v3, s58, v%d
        v_lshl_add_u32 v5, v1, 2, s58
        s_waitcnt vmcnt(0) lgkmcnt(0)
        s_barrier
        s_nop 3
        """ % (A0, A0))
    for r in range(4): k.e('ds_write_b128 v2, %s offset:%d' % (vr(O2[1] + 4 * r, 4), r * 1024))
    k.e('ds_write_b32 v4, v%d offset:4096' % L2[1])
    srd(k, 40, 'ws', WS_O, 4 * MB)
    k.e('s_waitcnt lgkmcnt(0)')
    k.e('s_barrier')
    for r in range(4): k.e('ds_read_b128 %s, v3 offset:%d' % (vr(S2[0] + 4 * r, 4), r * 1024))
    k.e('ds_read_b32 v%d, v5 offset:4096' % T)
    k.e('s_waitcnt lgkmcnt(0)')
    O = O2[0]; L = L2[0]; SA = S2[0]; NEGM = N2[0]
    for r in range(0, 16, 2): k.e(pk('add', O + r, O + r, SA + r))
    k.e('v_add_f32 v%d, v%d, v%d' % (L, L, T))
    lstore = 'L_attn_store'; lsafe = 'L_attn_safe'
    k.e('v_max3_f32 v%d, |v%d|, |v%d|, |v%d|' % (T, O, O + 1, L))
    for r in range(2, 16, 2): k.e('v_max3_f32 v%d, |v%d|, |v%d|, v%d' % (T, O + r, O + r + 1, T))
    k.e('v_mul_f32 v%d, 0, v%d' % (T2, L))
    for r in range(16): k.e('v_fma_f32 v%d, 0, v%d, v%d' % (T2, O + r, T2))
    k.e('v_add_f32 v%d, v%d, v%d' % (T, T, T2))
    k.e('v_mov_b32 v3, %s' % hx(2.0 ** 120))
    k.e('v_cmp_nlt_f32 vcc, v%d, v3' % T)
    k.e('s_nop 4')
    k.e('s_cbranch_vccnz %s' % lsafe)
    k.label(lstore)
    k.e('v_rcp_f32 v%d, v%d' % (T2, L))
    k.e('s_nop 0')
    for r in range(0, 16, 2): k.e(pk('mul', O + r, O + r, (T2,)))
    for d in range(8): k.e('v_cvt_pk_bf16_f32 v%d, v%d, v%d' % (P + d, O + 2 * d, O + 2 * d + 1))
    k.e('buffer_store_dwordx4 %s, v%d, s[40:43], s54 offen%s' % (vr(P, 4), A0, WT))
    k.e('buffer_store_dwordx4 %s, v%d, s[40:43], s54 offen offset:1024%s' % (vr(P + 4, 4), A0, WT))
    signal(k, 'S')
    endpgm(k)
    for blk in ool:
        for x in blk: k.e(x)
    k.label(lsafe)
    srd(k, 36, 'ws', WS_KV, 256 * KB, soff='s52')
    def gl(dst, off): return 'buffer_load_dwordx4 %s, v%d, s[36:39], s56 offen offset:%d sc1' % (vr(dst, 4), A0, off)
    k.e('s_mov_b32 s56, 0')
    k.e('v_mov_b32 v%d, 0xff800000' % M)
    k.label(lsafe + '1')
    k.e(gl(KF, 0)); k.e(gl(KF + 4, 1024))
    k.e('s_waitcnt vmcnt(0)')
    k.e(qk(0, 0, '0')); k.e(qk(0, 1))
    k.e('s_nop 15')
    for r in range(0, 16, 2): k.e('v_max3_f32 v%d, v%d, v%d, v%d' % (M, M, SA + r, SA + r + 1))
    k.e('s_add_u32 s56, s56, 4096')
    k.e('s_cmp_lt_u32 s56, %d' % (256 * KB))
    k.e('s_cbranch_scc1 %s1' % lsafe)
    k.e('v_mov_b32 v%d, v%d' % (T, M))
    k.e('s_nop 1')
    k.e('v_permlane32_swap_b32 v%d, v%d' % (M, T))
    k.e('s_nop 1')
    k.e('v_max_f32 v%d, v%d, v%d' % (M, M, T))
    k.e('v_sub_f32 v%d, 0, v%d' % (NEGM, M))
    for r in range(1, 16): k.e('v_mov_b32 v%d, v%d' % (NEGM + r, NEGM))
    for r in range(16): k.e('v_mov_b32 v%d, 0' % (O + r))
    for r in range(4): k.e('v_mov_b32 v%d, 0' % (L + r))
    k.e('s_mov_b32 s56, 0')
    k.label(lsafe + '2')
    k.e(gl(KF, 0)); k.e(gl(KF + 4, 1024)); k.e(gl(VF, 2048)); k.e(gl(VF + 4, 3072))
    k.e('s_waitcnt vmcnt(0)')
    k.e(qk(0, 0)); k.e(qk(0, 1))
    k.e('s_nop 15')
    for r in range(16): k.e('v_exp_f32 v%d, v%d' % (SA + r, SA + r))
    k.e('s_nop 0')
    for d in range(8): k.e('v_cvt_pk_bf16_f32 v%d, v%d, v%d' % (P + d, SA + 2 * d, SA + 2 * d + 1))
    k.e('s_nop 1')
    k.e(pv(0, 0)); k.e(ls(0, 0)); k.e(pv(0, 1)); k.e(ls(0, 1))
    k.e('s_add_u32 s56, s56, 4096')
    k.e('s_nop 7')
    k.e('s_cmp_lt_u32 s56, %d' % (256 * KB))
    k.e('s_cbranch_scc1 %s2' % lsafe)
    k.e('s_nop 15')
    k.e('s_branch %s' % lstore)
    k.need(MSV + 8, 160 * KB)

PHASES = dict(p0=k_p0, qkv=k_qkv, attn=k_attn2 if AT2 else k_attn,
              wo=lambda k, c: k_proj(k, c, 1024, ('xf', WS_O, 1024), 'wo', False),
              win=k_win2 if W22 else k_win, wsp=k_wsp,
              wout=lambda k, c: k_proj(k, c, 1792, ('xf', WS_U2, 1792), 'w_out', True))
GROUPS = [g.split('+') for g in os.environ.get('GRP', 'p0+qkv+attn+wo+win+wsp+wout').split(',')]
def same_kernel(a, b): return any(a in g_ and b in g_ for g_ in GROUPS)
def build():
    ks = []
    for grp in GROUPS:
        k = Kern(grp[0] if len(grp) == 1 else 'm' + grp[0], 256, 1024 if grp[0] == 'pre' else 512, 0)
        prologue(k)
        for i, ph in enumerate(grp):
            c = Ctx(); c.name = ph; c.first = i == 0; c.last = i == len(grp) - 1; c.nxt = None if c.last else grp[i + 1]; c.prev = grp[i - 1] if i else None
            PHASES[ph](k, c)
        k.label(k.endl)
        k.e('s_endpgm')
        assert k.lds <= 160 * KB
        ks.append(k)
    s = '; adaLN + softmax MHA + gMLP block, generated by gen.py (hand-written generator)\n'
    for k in ks: s += k.launch()
    s += '.amdgcn_target "amdgcn-amd-amdhsa--gfx950"\n.text\n'
    for k in ks: s += k.text()
    s += 'L_text_end:\n    s_endpgm\n'
    s += '.section .rodata,"a"\n'
    for k in ks: s += k.desc()
    if len(ks) == 1 and env('SINGLE', 0):
        s = s.replace('; @launch kernel=%s_kernel ' % ks[0].name, '; @launch ')
        s = s.replace(ks[0].name + '_kernel', 'adaLN_cond__softmax_full_mha__mixer_gmlp__prompt_kernel')
    return s

PROMO = ('v_exp_f32', 'v_rcp_f32', 'v_mov_b32', 'v_add_f32', 'v_mul_f32', 'v_sub_f32', 'v_max_f32', 'v_lshlrev_b32', 'v_lshrrev_b32',
         'v_and_b32', 'v_xor_b32', 'v_or_b32', 'v_add_u32', 'v_fmac_f32', 'v_min_u32', 'v_max_u32', 'v_rsq_f32', 'v_sqrt_f32')
def align8(text):
    import subprocess, tempfile, re
    lines = text.split('\n')
    i0 = next(i for i, l in enumerate(lines) if l.endswith('_kernel:')); i1 = next(i for i, l in enumerate(lines) if l.startswith('.section'))
    idx = [i for i in range(i0, i1) if lines[i].strip() and not lines[i].strip().startswith((';', '.')) and not lines[i].strip().endswith(':')]
    with tempfile.TemporaryDirectory() as d:
        open(d + '/a.s', 'w').write(text)
        subprocess.check_call(['clang', '-x', 'assembler', '-target', 'amdgcn-amd-amdhsa', '-mcpu=gfx950', '-c', d + '/a.s', '-o', d + '/a.o'])
        dis = subprocess.check_output(['llvm-objdump', '-d', '--mcpu=gfx950', d + '/a.o'], text=True)
    sz = [4 * len(m.group(1).split()) for m in re.finditer(r'// [0-9A-F]{12}: ([0-9A-F ]+)', dis)]
    assert len(sz) == len(idx), (len(sz), len(idx))
    off = 0; ins = {}; npro = nnop = 0
    MINRUN = env('MINRUN', 8)
    for n, i in enumerate(idx):
        if sz[n] == 8 and off % 8 == 4:
            p = n - 1; done = False
            while p >= 0 and sz[p] == 4:
                op = lines[idx[p]].split()[0]
                if op in PROMO:
                    lines[idx[p]] = lines[idx[p]].replace(op, op + '_e64', 1); sz[p] = 8; off += 4; done = True; npro += 1
                    break
                p -= 1
            if not done:
                r = 0
                while n + r < len(sz) and sz[n + r] == 8: r += 1
                prev = lines[idx[n - 1]].split()[0]
                if r >= MINRUN and prev != 's_getpc_b64':
                    ins[i] = '    s_nop 0'; off += 4; nnop += 1
        off += sz[n]
    out = []
    for i, l in enumerate(lines):
        if i in ins: out.append(ins[i])
        out.append(l)
    print('align8: %d widened, %d nops' % (npro, nnop))
    return '\n'.join(out)

if __name__ == '__main__':
    out = sys.argv[1] if len(sys.argv) > 1 else 'adaLN_cond__softmax_full_mha__mixer_gmlp__prompt.s'
    txt = build()
    if env('AL8', 1): txt = align8(txt)
    open(out, 'w').write(txt)
    print('wrote', out)
```
